```python
import torch

def _softmax(x, axis=-1):
    return torch.softmax(x, dim=axis)
def _gelu(x):
    return torch.nn.functional.gelu(x, approximate="tanh")
def _silu(x):
    return torch.nn.functional.silu(x)
def _sigmoid(x):
    return torch.sigmoid(x)
def _layernorm(x, axis=-1, eps=1e-5):
    m = x.mean(dim=axis, keepdim=True)
    v = x.var(dim=axis, keepdim=True, unbiased=False)
    return (x - m) / torch.sqrt(v + eps)
def _scatter_add(tgt, idx, src, axis=0):
    return tgt.clone().index_add_(axis, idx, src)
def _segment_sum(src, seg, n):
    out = torch.zeros((n,) + src.shape[1:], dtype=src.dtype)
    return out.index_add_(0, seg, src)
def _pad(x, pw):
    flat = tuple(v for pair in reversed(pw) for v in pair)
    return torch.nn.functional.pad(x, flat)

kernel_name = 'parallel_sum__compressed_kv_cla__moe_arch_mod__prompt'

def setup_inputs():

    _w = (lambda a: (lambda t: t.to(torch.bfloat16) if t.is_floating_point() else t)(torch.as_tensor(a)))
    def _A_setup():
        B, H, Sq, Sk, D, M = 1, 32, 2048, 2048, 128, 640
        Dc = 4 * D
        return {
            "x": _w((lambda *s: torch.randn(*s, dtype=torch.bfloat16) * 0.05)(B, Sq, M)),
            "c_kv": _w((lambda *s: torch.randn(*s, dtype=torch.bfloat16) * 1.6)(B, Sk, Dc)),
            "w_q": _w((lambda *s: torch.randn(*s, dtype=torch.bfloat16) * 0.8)(M, H, D) * (M ** -0.5)),
            "w_uk": _w((lambda *s: torch.randn(*s, dtype=torch.bfloat16) * 0.8)(Dc, H, D) * (Dc ** -0.5)),
            "w_uv": _w((lambda *s: torch.randn(*s, dtype=torch.bfloat16) * 1.6)(Dc, H, D) * (Dc ** -0.5)),
            "w_o": _w((lambda *s: torch.randn(*s, dtype=torch.bfloat16) * 1.6)(H, D, M) * ((H * D) ** -0.5)),
        }
    _A_in = _A_setup()

    def _B_setup():
        B, S, D, F, C = 1, 2048, 640, 1728, 8
        return {
            "x": _w((lambda *s: torch.randn(*s, dtype=torch.bfloat16) * 0.05)(B, S, D)),
            "w_r": _w((lambda *s: torch.randn(*s, dtype=torch.bfloat16) * 0.05)(D)),
            "w_gate": _w((lambda *s: torch.randn(*s, dtype=torch.bfloat16) * 0.05)(D, F)),
            "w_up": _w((lambda *s: torch.randn(*s, dtype=torch.bfloat16) * 0.05)(D, F)),
            "w_down": _w((lambda *s: torch.randn(*s, dtype=torch.bfloat16) * 0.05)(F, D)),
        }
    _B_in = _B_setup()

    return {
        "A_x": _A_in["x"],
        "A_c_kv": _A_in["c_kv"],
        "A_w_q": _A_in["w_q"],
        "A_w_uk": _A_in["w_uk"],
        "A_w_uv": _A_in["w_uv"],
        "A_w_o": _A_in["w_o"],
        "B_x": _B_in["x"],
        "B_w_r": _B_in["w_r"],
        "B_w_gate": _B_in["w_gate"],
        "B_w_up": _B_in["w_up"],
        "B_w_down": _B_in["w_down"],
    }

def reference(A_x, A_c_kv, A_w_q, A_w_uk, A_w_uv, A_w_o, B_x, B_w_r, B_w_gate, B_w_up, B_w_down):
    def _A_ref(x, c_kv, w_q, w_uk, w_uv, w_o):
        B, Sq, M = x.shape[0], x.shape[1], x.shape[2]
        Sk = c_kv.shape[1]
        H, D = w_q.shape[1], w_q.shape[2]
        q = torch.einsum("bqm,mhd->bhqd", x, w_q)
        k = torch.einsum("bkc,chd->bhkd", c_kv, w_uk)
        v = torch.einsum("bkc,chd->bhkd", c_kv, w_uv)
        scores = torch.einsum("bhqd,bhkd->bhqk", q, k) * (D ** -0.5)
        off = Sk - Sq
        qi = torch.arange(Sq)[:, None]
        kj = torch.arange(Sk)[None, :]
        cmask = kj <= (qi + off)
        scores = torch.where(cmask[None, None], scores, -1e9)
        p = _softmax(scores, axis=-1)
        ctx = torch.einsum("bhqk,bhkd->bhqd", p, v)
        return torch.einsum("bhqd,hdm->bqm", ctx, w_o)

    def _B_ref(x, w_r, w_gate, w_up, w_down):
        B, S, D = x.shape
        C = 8
        r = x @ w_r
        idx = torch.argsort(-r, axis=-1)[:, :C]
        idx_e = (lambda x, n, axis: torch.repeat_interleave(x, n, dim=axis))(idx.reshape(B, C, 1), D, axis=2)
        x_sel = (lambda x, i, axis: torch.take_along_dim(x, i, dim=axis))(x, idx_e, axis=1)
        g = _silu(x_sel @ w_gate)
        u = x_sel @ w_up
        y = (g * u) @ w_down
        r_sel = _sigmoid((lambda x, i, axis: torch.take_along_dim(x, i, dim=axis))(r, idx, axis=1))
        y = y * r_sel.reshape(B, C, 1)
        b_off = (torch.arange(B) * S).reshape(B, 1)
        flat_idx = (idx + b_off).reshape(B * C)
        zero = (x * 0.0).reshape(B * S, D)
        upd = _scatter_add(zero, flat_idx, y.reshape(B * C, D), axis=0)
        return x + upd.reshape(B, S, D)

    x = A_x
    xn = _layernorm(x, axis=-1)
    return x + _A_ref(xn, A_c_kv, A_w_q, A_w_uk, A_w_uv, A_w_o) + _B_ref(xn, B_w_r, B_w_gate, B_w_up, B_w_down)
```

```python
def v(a, n=1):
    return f"v{a}" if n == 1 else f"v[{a}:{a+n-1}]"
def s(a, n=1):
    return f"s{a}" if n == 1 else f"s[{a}:{a+n-1}]"

class Tracker:
    def __init__(self, name, maxv):
        self.name, self.maxv, self.q = name, maxv, []
    def issue(self, tag):
        self.q.append(tag)
    def need(self, tags):
        if not isinstance(tags, (list, set)): tags = [tags]
        idx = -1
        for i, t in enumerate(self.q):
            if t in tags: idx = i
        if idx < 0: return None
        n = len(self.q) - idx - 1
        n = min(n, self.maxv)
        self.q = self.q[len(self.q) - n:] if n > 0 else []
        return n
    def drain(self):
        self.q = []

class Asm:
    def __init__(self):
        self.o = []
        self.lg = Tracker("lgkmcnt", 15)
        self.vm = Tracker("vmcnt", 63)
        self.uid = 0
    def __call__(self, txt):
        for l in txt.split("\n"):
            l = l.strip()
            if l: self.o.append(("" if l.endswith(":") or l.startswith(".") else "    ") + l)
    def c(self, txt):
        self.o.append("    ; " + txt)
    def label(self, name):
        self.o.append(name + ":")
    def newlabel(self, base):
        self.uid += 1
        return f"L_{base}_{self.uid}"
    def wait_lg(self, tags):
        n = self.lg.need(tags)
        if n is not None: self(f"s_waitcnt lgkmcnt({n})")
    def wait_vm(self, tags):
        n = self.vm.need(tags)
        if n is not None: self(f"s_waitcnt vmcnt({n})")
    def text(self):
        return "\n".join(self.o) + "\n"
    def srd(self, d, base, nbytes):
        self(f"s_mov_b32 s{d}, s{base}\ns_mov_b32 s{d+1}, s{base+1}\ns_mov_b32 s{d+2}, {hex(nbytes)}\ns_mov_b32 s{d+3}, 0x20000")
    def mfma(self, d, a, b, c=None):
        cs = v(d, 4) if c is None else (c if isinstance(c, str) else v(c, 4))
        self(f"v_mfma_f32_16x16x32_bf16 {v(d,4)}, {v(a,4)}, {v(b,4)}, {cs}")
    def wave_reduce(self, op, r):
        for m in ("quad_perm:[1,0,3,2] row_mask:0xf bank_mask:0xf", "quad_perm:[2,3,0,1] row_mask:0xf bank_mask:0xf",
                  "row_half_mirror row_mask:0xf bank_mask:0xf", "row_mirror row_mask:0xf bank_mask:0xf",
                  "row_bcast:15 row_mask:0xa bank_mask:0xf", "row_bcast:31 row_mask:0xc bank_mask:0xf"):
            self("s_nop 1")
            self(f"{op}_dpp v{r}, v{r}, v{r} {m}")
        self("s_nop 1")

def kernel_header(name):
    return f".text\n.globl {name}\n.p2align 8\n.type {name},@function\n{name}:\n"

def kernel_desc(name, vgpr=256, sgpr=102):
    acc = (vgpr + 3) // 4 * 4
    return f""".amdhsa_kernel {name}
  .amdhsa_next_free_vgpr {vgpr}
  .amdhsa_next_free_sgpr {sgpr}
  .amdhsa_accum_offset {acc}
  .amdhsa_group_segment_fixed_size 0
  .amdhsa_kernarg_size 112
  .amdhsa_user_sgpr_count 2
  .amdhsa_user_sgpr_kernarg_segment_ptr 1
  .amdhsa_system_sgpr_workgroup_id_x 1
  .amdhsa_float_denorm_mode_32 3
.end_amdhsa_kernel
"""
```

```python
from asmlib import *
from gen import *

QF, O_, S_, FR, P_, NM, L_, ET = 16, 48, 112, 144, 176, 192, 208, 212
VKA, VVA, VL16, VDMA = 220, 221, 222, 223
QRW, QVW = 224, 232
LDS_QW = 98304
THRESH = 0x4b800000
S_B, S_J, S_JMAX, S_KVO, S_SLOT, S_LD, S_T = 60, 61, 62, 63, 64, 65, 66
S_ROW = 67

def xlane(a, op, r, t):
    for sw in ("v_permlane16_swap_b32", "v_permlane32_swap_b32"):
        a(f"v_mov_b32 v{t}, v{r}\ns_nop 1\n{sw} v{r}, v{t}\ns_nop 1\n{op} v{r}, v{r}, v{t}")

def Sreg(par, kt, qt): return S_ + 16*par + (kt*2+qt)*4
def NMreg(kt, qt): return NM + (kt*2+qt)*4
def Oreg(t, qt): return O_ + (t*2+qt)*4
def Qreg(qt, s): return QF + (qt*4+s)*4
def Preg(par, qt): return P_ + 8*par + 4*qt
def Lreg(par, qt): return L_ + 2*par + qt

def sm_ops(par):
    ops = []
    first = [True, True]
    n = 0
    for kt in range(2):
        for qt in range(2):
            for r in range(4):
                t = ET + n % 4
                e = f"v_exp_f32 v{t}, v{Sreg(par,kt,qt)+r}"
                src = Lreg(1-par, qt) if first[qt] else Lreg(par, qt)
                first[qt] = False
                ad = f"v_add_f32 v{Lreg(par,qt)}, v{t}, v{src}"
                cv = None
                if r & 1:
                    cv = f"v_cvt_pk_bf16_f32 v{Preg(par,qt)+2*kt+(r>>1)}, v{ET+(n-1)%4}, v{t}"
                ops.append((e, ad, cv)); n += 1
    return ops

def gen_k2(a):
    end = "L_k2_end"
    prologue(a, end)
    L = V_LANE
    a.srd(SRD_A, P_WQ, 640*4096*2)
    a(f"s_lshl_b32 s6, s{S_P}, 2\ns_add_u32 s7, s6, s{S_W}\ns_sub_u32 s6, 56, s6\ns_add_u32 s6, s6, s{S_W}")
    a(f"s_cmp_lt_u32 s{S_W}, 4\ns_cselect_b32 s{S_B}, s7, s6\ns_cselect_b32 s{S_LD}, 1, 0")
    a(f"s_lshl_b32 s6, s{S_P}, 1\ns_sub_u32 s{S_JMAX}, 31, s6")
    a(f"v_lshlrev_b32 v{VL16}, 4, v{L}")
    a(f"v_lshrrev_b32 v4, 4, v{L}\nv_and_b32 v6, 15, v{L}\ns_lshl_b32 s6, s{S_W}, 4\nv_add_u32 v7, s6, v4")
    for i in range(4):
        a(f"v_or_b32 v5, {4*(i>>1)}, v4\nv_lshlrev_b32 v5, 1, v5\nv_xor_b32 v5, v6, v5\nv_lshlrev_b32 v5, 4, v5")
        a(f"v_lshl_add_u32 v{QVW+i}, v7, 13, v5")
        if i: a(f"v_add_u32 v{QVW+i}, {i*(4*8192-1024)}, v{QVW+i}")
    S_WO_, S_MW, S_XO, S_ST = 68, 69, 70, 71
    a(f"s_lshl_b32 s{S_WO_}, s{S_H}, 8\ns_lshl_b32 s{S_MW}, s{S_W}, 12\ns_add_u32 s{S_MW}, s{S_MW}, {LDS_QW}")
    TOG = LDS_QW ^ (LDS_QW + 32768)
    def q_dma():
        a(f"s_mov_b32 m0, s{S_MW}\ns_nop 0")
        for i in range(4):
            a(f"buffer_load_dwordx4 v{QVW+i}, s[{SRD_A}:{SRD_A+3}], s{S_WO_} offen offset:{i*1024} lds"); a.vm.issue("D")
        a(f"s_xor_b32 s{S_MW}, s{S_MW}, {hex(TOG)}\ns_add_u32 s{S_WO_}, s{S_WO_}, {128*8192}")
    XF = S_
    VX1 = 236
    a(f"v_add_u32 v{VX1}, 20480, v{VL16}")
    a(f"s_mul_i32 s{S_XO}, s{S_B}, 40960")
    def rdX(ks):
        for qt in range(2):
            a(f"buffer_load_dwordx4 {v(XF+(ks*2+qt)*4,4)}, v{VL16 if qt==0 else VX1}, s[{SRD_WS}:{SRD_WS+3}], s{S_XO} offen offset:{ks*1024}")
            a.vm.issue(("X", ks))
    a.vm.drain()
    q_dma()
    rdX(0); rdX(1); rdX(2)
    q_dma()
    rdX(3)
    a(f"s_add_u32 s{S_XO}, s{S_XO}, 4096")
    a(f"s_lshl_b32 s6, s{S_W}, 13\nv_add_u32 v{VDMA}, s6, v{VL16}")
    a(f"s_lshl_b32 s{S_KVO}, s{S_H}, 20\ns_add_u32 s{S_KVO}, s{S_KVO}, {WS_KV}")
    a(f"s_lshl_b32 s{S_SLOT}, s{S_W}, 13")
    def kv_dma():
        for hf in range(2):
            a(f"s_add_u32 m0, s{S_SLOT}, {hf*4096}\ns_add_u32 s{S_T}, s{S_KVO}, {hf*4096}")
            for i in range(4):
                a(f"buffer_load_dwordx4 v{VDMA}, s[{SRD_WS}:{SRD_WS+3}], s{S_T} offen offset:{i*1024} lds")
        a(f"s_add_u32 s{S_SLOT}, s{S_SLOT}, 32768\ns_and_b32 s{S_SLOT}, s{S_SLOT}, 0x1ffff\ns_add_u32 s{S_KVO}, s{S_KVO}, 32768")
    a(f"s_cmp_eq_u32 s{S_LD}, 0\ns_cbranch_scc1 L_k2_nold")
    kv_dma(); kv_dma()
    a.label("L_k2_nold")
    a(f"v_and_b32 v2, 15, v{L}\nv_lshrrev_b32 v3, 4, v{L}")
    a(f"v_lshrrev_b32 v4, 2, v2\nv_lshl_add_u32 v5, v3, 3, v4\nv_lshlrev_b32 v5, 8, v5")
    a(f"v_and_b32 v6, 1, v2\nv_lshl_add_u32 v5, v6, 3, v5\nv_add_u32 v5, {LDS_QW}, v5")
    a(f"v_and_b32 v6, 1, v3\nv_lshl_or_b32 v4, v6, 2, v4\nv_lshlrev_b32 v4, 1, v4\nv_bfe_u32 v6, v2, 1, 1")
    for t in range(8):
        a(f"v_add_u32 v7, {2*t}, v6\nv_xor_b32 v7, v7, v4\nv_lshl_add_u32 v{QRW+t}, v7, 4, v5")
    for i in range(64): a(f"v_mov_b32 v{O_+i}, 0")
    def rdW(t, ks):
        for hf in range(2):
            a(f"ds_read_b64_tr_b16 {v(FR+4*t+2*hf,2)}, v{QRW+t} offset:{ks*8192+hf*1024}"); a.lg.issue(("W", t))
    a("s_waitcnt vmcnt(12)\ns_barrier")
    a.vm.q = a.vm.q[4:]
    a.lg.drain()
    for t in range(8): rdW(t, 0)
    lg0, vm0 = list(a.lg.q), list(a.vm.q)
    a(f"s_mov_b32 s{S_ST}, 0")
    a.label("L_k2_qloop")
    a(f"s_cmp_ge_u32 s{S_ST}, 4\ns_cselect_b32 s{S_XO}, {hex(WS_SIZE)}, s{S_XO}")
    for ks in range(4):
        for t in range(8):
            if t == 0: a.wait_vm(("X", ks))
            a.wait_lg(("W", t))
            for qt in range(2):
                a.mfma(Oreg(t, qt), FR+4*t, XF+(ks*2+qt)*4)
            if ks < 3: rdW(t, ks+1)
            elif t == 1:
                a.wait_vm("D")
                a("s_waitcnt lgkmcnt(0)\ns_barrier"); a.lg.drain()
                for r in range(8): a(f"v_xor_b32 v{QRW+r}, {hex(TOG)}, v{QRW+r}")
                rdW(0, 0); rdW(1, 0)
                q_dma()
            elif t >= 2: rdW(t, 0)
        rdX(ks)
    a(f"s_add_u32 s{S_XO}, s{S_XO}, 4096\ns_add_u32 s{S_ST}, s{S_ST}, 1\ns_cmp_lt_u32 s{S_ST}, 5\ns_cbranch_scc1 L_k2_qloop")
    assert a.lg.q == lg0 and a.vm.q == vm0, (a.vm.q, vm0)
    a("s_mov_b32 s6, 0x3e0293ee\ns_nop 7")
    for qt in range(2):
        for s_ in range(4):
            for hf in range(2):
                d = Oreg(2*s_+hf, qt)
                for r in range(4): a(f"v_mul_f32 v{d+r}, s6, v{d+r}")
                a(f"v_cvt_pk_bf16_f32 v{Qreg(qt,s_)+2*hf}, v{d}, v{d+1}\nv_cvt_pk_bf16_f32 v{Qreg(qt,s_)+2*hf+1}, v{d+2}, v{d+3}")
    a("s_waitcnt vmcnt(0) lgkmcnt(0)")
    for i in range(64): a(f"v_mov_b32 v{O_+i}, 0")
    for i in range(16): a(f"v_mov_b32 v{NM+i}, 0")
    for i in range(4): a(f"v_mov_b32 v{L_+i}, 0")
    a(f"v_mov_b32 v{VKA}, v{VL16}\ns_mov_b32 s{S_J}, 0")

    stubs = []
    def rdK(i, hf):
        a(f"ds_read_b128 {v(FR+4*i,4)}, v{VKA} offset:{(hf*8+i)*1024}"); a.lg.issue(("F", i))
    def rdV(i, hf, cur):
        a(f"ds_read_b128 {v(FR+4*i,4)}, v{VKA if cur else VVA} offset:{16384+(hf*8+i)*1024}"); a.lg.issue(("F", i))
    def head(first=False):
        nb = a.newlabel("nobar"); nl = a.newlabel("noload")
        if not first: a(f"s_cmp_gt_u32 s{S_J}, s{S_JMAX}\ns_cbranch_scc1 {nb}")
        a(f"s_waitcnt vmcnt(8)\ns_barrier")
        a(f"s_cmp_eq_u32 s{S_LD}, 0\ns_cbranch_scc1 {nl}")
        a(f"s_add_u32 s{S_T}, s{S_J}, 2\ns_cmp_gt_u32 s{S_T}, s{S_JMAX}\ns_cselect_b32 s{S_KVO}, {hex(WS_SIZE)}, s{S_KVO}")
        kv_dma()
        a.label(nl)
        if not first:
            a.label(nb)
            a(f"v_mov_b32 v{VVA}, v{VKA}\nv_add_u32 v{VKA}, 0x8000, v{VKA}\nv_and_b32 v{VKA}, 0x1ffff, v{VKA}")
    def mask_call():
        a("s_call_b64 s[82:83], L_mask")
    def stage(hf, qk=True, sm=True, pv=True, nxt=True):
        par_qk, par_sm, par_pv = hf, 1-hf, hf
        pairs = []
        if pv: pairs += [("V", i) for i in range(8)]
        if qk: pairs += [("K", i) for i in range(8)]
        ops = sm_ops(par_sm) if sm else []
        per = len(ops) // len(pairs) if sm else 0
        a.wait_lg(("F", 0))
        for n, (kind, i) in enumerate(pairs):
            my = ops[n*per:(n+1)*per]
            for qt in range(2):
                if kind == "V": a.mfma(Oreg(i, qt), FR+4*i, Preg(par_pv, qt))
                else:
                    kt, s_ = i >> 2, i & 3
                    a.mfma(Sreg(par_qk, kt, qt), FR+4*i, Qreg(qt, s_), None if s_ else NMreg(kt, qt))
                if qt == 0:
                    if n + 1 < len(pairs): a.wait_lg(("F", pairs[n+1][1]))
                    for e, ad, cv in my: a(e)
                else:
                    if kind == "V" and qk: rdK(i, hf)
                    elif nxt: rdV(i, 1-hf, cur=(hf == 1))
                    for e, ad, cv in my:
                        a(ad)
                        if cv: a(cv)
        if sm:
            st = a.newlabel("stub"); bk = a.newlabel("back")
            a(f"v_add_f32 v{ET}, v{Lreg(par_sm,0)}, v{Lreg(par_sm,1)}\nv_cmp_nge_f32 vcc, s{S_THR}, v{ET}\ns_cbranch_vccnz {st}")
            a.label(bk)
            stubs.append((st, bk, par_sm))
    S_THR = 72
    a(f"s_mov_b32 s{S_THR}, {hex(THRESH)}")
    FULLQ = [("F", i) for i in range(8)]
    a.vm.drain()
    head(first=True)
    a.lg.drain()
    for i in range(8): rdK(i, 0)
    a(f"s_cmp_lg_u32 s{S_B}, 0\ns_cbranch_scc1 L_nm0")
    mask_call()
    a.label("L_nm0")
    for i in range(8):
        a.wait_lg(("F", i))
        kt, s_ = i >> 2, i & 3
        for qt in range(2):
            a.mfma(Sreg(0, kt, qt), FR+4*i, Qreg(qt, s_), None if s_ else NMreg(kt, qt))
        rdK(i, 1)
    a("s_nop 7")
    for qt in range(2):
        m = ET + qt
        s0, s1 = Sreg(0, 0, qt), Sreg(0, 1, qt)
        a(f"v_max3_f32 v{m}, v{s0}, v{s0+1}, v{s0+2}\nv_max3_f32 v{m}, v{m}, v{s0+3}, v{s1}\nv_max3_f32 v{m}, v{m}, v{s1+1}, v{s1+2}\nv_max_f32 v{m}, v{m}, v{s1+3}")
        xlane(a, "v_max_f32", m, ET+2)
        for kt in range(2):
            for r in range(4):
                a(f"v_sub_f32 v{Sreg(0,kt,qt)+r}, v{Sreg(0,kt,qt)+r}, v{m}\nv_sub_f32 v{NMreg(kt,qt)+r}, 0, v{m}")
    a(f"s_cmp_lg_u32 s{S_B}, 1\ns_cbranch_scc1 L_nm1")
    mask_call()
    a.label("L_nm1")
    a("s_nop 1")
    stage(1, pv=False)
    assert a.lg.q == FULLQ
    a(f"s_mov_b32 s{S_J}, 1")
    a(".p2align 6")
    a.label("L_aloop")
    head()
    a(f"s_lshl_b32 s6, s{S_J}, 1\ns_cmp_gt_u32 s6, s{S_B}\ns_cbranch_scc1 L_tail")
    a(f"s_cmp_eq_u32 s6, s{S_B}\ns_cbranch_scc1 L_mask0")
    a.label("L_mask0_back")
    stage(0)
    assert a.lg.q == FULLQ
    a(f"s_add_u32 s{S_J}, s{S_J}, 1\ns_cmp_eq_u32 s6, s{S_B}\ns_cbranch_scc1 L_even_h1")
    a(f"s_add_u32 s6, s6, 1\ns_cmp_eq_u32 s6, s{S_B}\ns_cbranch_scc1 L_mask1")
    a.label("L_mask1_back")
    stage(1)
    assert a.lg.q == FULLQ
    a("s_branch L_aloop")
    a.label("L_mask0"); mask_call(); a("s_branch L_mask0_back")
    a.label("L_mask1"); mask_call(); a("s_branch L_mask1_back")
    a.label("L_even_h1")
    stage(1, qk=False)
    assert a.lg.q == FULLQ
    a("s_branch L_aloop")
    a.label("L_tail")
    a(f"s_add_u32 s{S_J}, s{S_J}, 1\ns_bitcmp1_b32 s{S_B}, 0\ns_cbranch_scc1 L_tail_odd")
    stage(0, qk=False, sm=False, nxt=False)
    a("s_branch L_fin")
    a.label("L_tail_odd")
    a.lg.q = list(FULLQ)
    stage(0, qk=False)
    stage(1, qk=False, sm=False, nxt=False)
    a(f"v_mov_b32 v{Lreg(0,0)}, v{Lreg(1,0)}\nv_mov_b32 v{Lreg(0,1)}, v{Lreg(1,1)}")
    a.label("L_fin")
    for qt in range(2):
        xlane(a, "v_add_f32", Lreg(0, qt), ET)
        a(f"v_rcp_f32 v{Lreg(0,qt)}, v{Lreg(0,qt)}")
    a(f"s_lshl_b32 s6, s{S_B}, 18\ns_lshl_b32 s7, s{S_H}, 12\ns_add_u32 s6, s6, s7\ns_add_u32 s6, s6, {WS_CTX}\ns_nop 4")
    n = 0
    for qt in range(2):
        for s_ in range(4):
            t = S_ + 4*n; n += 1
            for hf in range(2):
                d = Oreg(2*s_+hf, qt)
                for r in range(4): a(f"v_mul_f32 v{d+r}, v{Lreg(0,qt)}, v{d+r}")
                a(f"v_cvt_pk_bf16_f32 v{t+2*hf}, v{d}, v{d+1}\nv_cvt_pk_bf16_f32 v{t+2*hf+1}, v{d+2}, v{d+3}")
            a(f"buffer_store_dwordx4 {v(t,4)}, v{VL16}, s[{SRD_WS}:{SRD_WS+3}], s6 offen offset:{s_*1024}")
        if qt == 0: a("s_add_u32 s6, s6, 0x20000")
    a.label("L_idle")
    a(f"s_cmp_gt_u32 s{S_J}, s{S_JMAX}\ns_cbranch_scc1 L_adone")
    head(first=True)
    a(f"s_add_u32 s{S_J}, s{S_J}, 1\ns_branch L_idle")
    for st, bk, par in stubs:
        a.label(st); a(f"s_call_b64 s[80:81], L_rare{par}\ns_branch {bk}")
    a.label("L_mask")
    a(f"v_and_b32 v2, 15, v{L}\nv_lshrrev_b32 v3, 4, v{L}\nv_lshlrev_b32 v3, 2, v3\nv_sub_u32 v2, v2, v3\nv_mov_b32 v3, 0xff800000")
    for r in range(4):
        a(f"v_cmp_gt_i32 vcc, {r}, v2\nv_mov_b32 v{NMreg(1,0)+r}, v3\ns_nop 0")
        a(f"v_cndmask_b32 v{NMreg(0,0)+r}, v{NMreg(0,0)+r}, v3, vcc\nv_cndmask_b32 v{NMreg(1,1)+r}, v{NMreg(1,1)+r}, v3, vcc")
    a("s_nop 1\ns_setpc_b64 s[82:83]")
    for par in range(2):
        a.label(f"L_rare{par}")
        a("s_nop 15")
        for qt in range(2):
            m = ET + 4 + qt
            s0, s1 = Sreg(par, 0, qt), Sreg(par, 1, qt)
            a(f"v_log_f32 v{m}, v{Lreg(1-par,qt)}\ns_nop 0\nv_max_f32 v{m}, 0, v{m}")
            a(f"v_max3_f32 v{m}, v{m}, v{s0}, v{s0+1}\nv_max3_f32 v{m}, v{m}, v{s0+2}, v{s0+3}\nv_max3_f32 v{m}, v{m}, v{s1}, v{s1+1}\nv_max3_f32 v{m}, v{m}, v{s1+2}, v{s1+3}")
            xlane(a, "v_max_f32", m, ET)
            a(f"v_exp_f32 v{ET}, -v{m}")
            for kt in range(2):
                for r in range(4):
                    for reg in (Sreg(0,kt,qt), Sreg(1,kt,qt), NMreg(kt,qt)):
                        a(f"v_sub_f32 v{reg+r}, v{reg+r}, v{m}")
            a(f"v_mul_f32 v{Lreg(1-par,qt)}, v{ET}, v{Lreg(1-par,qt)}")
            for t in range(8):
                for r in range(4): a(f"v_mul_f32 v{Oreg(t,qt)+r}, v{ET}, v{Oreg(t,qt)+r}")
        for e, ad, cv in sm_ops(par):
            a(e); a("s_nop 0"); a(ad)
            if cv: a(cv)
        a("s_nop 1\ns_setpc_b64 s[80:81]")
    a.label("L_adone")
    gen_moe(a, end)
    a.label(end)
    a("s_endpgm")

M_WG, M_WU, M_WD, M_PART, M_CAND = 0, 40960, 81920, 122880, 139264
def gen_moe(a, end):
    L = V_LANE
    S_E = 60
    a(f"s_sub_u32 s6, s{S_P}, 6\ns_lshl_b32 s6, s6, 5\ns_add_u32 s{S_E}, s6, s{S_H}")
    a(f"s_cmp_lt_u32 s{S_P}, 6\ns_cbranch_scc1 {end}\ns_cmp_ge_u32 s{S_E}, 54\ns_cbranch_scc1 {end}")
    a.srd(SRD_A, P_WG, 640*1728*2)
    a(f"s_cmp_ge_u32 s{S_W}, 4\ns_cselect_b32 s{SRD_A}, s{P_WU}, s{SRD_A}\ns_cselect_b32 s{SRD_A+1}, s{P_WU+1}, s{SRD_A+1}")
    a.srd(SRD_B, P_WD, 1728*640*2)
    a(f"v_lshlrev_b32 v2, 4, v0\nbuffer_load_dwordx4 v[16:19], v2, s[{SRD_WS}:{SRD_WS+3}], s{73} offen".replace("s73", "s73"))
    a.o.pop(); a.o.pop()
    a(f"s_mov_b32 s73, {hex(WS_R)}\nv_lshlrev_b32 v2, 4, v0")
    a("s_waitcnt vmcnt(0)\ns_barrier")
    a(f"buffer_load_dwordx4 v[16:19], v2, s[{SRD_WS}:{SRD_WS+3}], s73 offen")
    a(f"v_lshrrev_b32 v3, 2, v{L}\nv_mul_u32_u24 v3, 3456, v3\nv_and_b32 v4, 3, v{L}\nv_lshl_add_u32 v3, v4, 4, v3")
    a(f"s_and_b32 s61, s{S_W}, 3\ns_mul_i32 s62, s61, {160*3456}\ns_lshl_b32 s6, s{S_E}, 6\ns_add_u32 s62, s62, s6")
    a(f"s_mul_i32 s63, s{S_W}, 10240")
    for n in range(10):
        a(f"s_add_u32 m0, s63, {n*1024}\ns_nop 0\nbuffer_load_dwordx4 v3, s[{SRD_A}:{SRD_A+3}], s62 offen lds\ns_add_u32 s62, s62, {16*3456}")
    a(f"s_mul_i32 s62, s{S_E}, 40960\ns_mul_i32 s6, s{S_W}, 5120\ns_add_u32 s62, s62, s6\ns_add_u32 s6, s6, {M_WD}")
    for n in range(5):
        a(f"s_add_u32 m0, s6, {n*1024}\ns_nop 0\nbuffer_load_dwordx4 v{VL16}, s[{SRD_B}:{SRD_B+3}], s62 offen lds\ns_add_u32 s62, s62, 1024")
    a("s_waitcnt vmcnt(15)\nv_mov_b32 v20, 0")
    for rd in range(8):
        a("v_max_u32 v4, v16, v17\nv_max3_u32 v4, v4, v18, v19")
        a.wave_reduce("v_max_u32", 4)
        a(f"v_readlane_b32 s6, v4, 63\ns_nop 1\nv_writelane_b32 v20, s6, {rd}")
        if rd < 7:
            for k in range(4):
                a(f"v_cmp_ne_u32 vcc, s6, v{16+k}\ns_nop 1\nv_cndmask_b32 v{16+k}, 0, v{16+k}, vcc")
    a(f"s_lshl_b32 s6, s{S_W}, 5\ns_add_u32 s6, s6, {M_CAND}\nv_lshl_add_u32 v5, v{L}, 2, s6")
    a(f"v_cmp_gt_u32 vcc, 8, v{L}\ns_and_saveexec_b64 s[74:75], vcc\nds_write_b32 v5, v20\ns_mov_b64 exec, s[74:75]")
    a(f"s_waitcnt lgkmcnt(0)\ns_barrier\nv_lshlrev_b32 v5, 2, v{L}\nv_add_u32 v5, {M_CAND}, v5\nds_read_b32 v16, v5\ns_waitcnt lgkmcnt(0)")
    a(f"v_and_b32 v6, 7, v{L}\nv_mov_b32 v20, 0")
    for rd in range(8):
        a("v_mov_b32 v4, v16")
        a.wave_reduce("v_max_u32", 4)
        a(f"v_readlane_b32 s6, v4, 63\nv_cmp_eq_u32 vcc, {rd}, v6\ns_nop 1\nv_mov_b32 v5, s6\nv_cndmask_b32 v20, v20, v5, vcc")
        if rd < 7:
            a(f"v_cmp_ne_u32 vcc, s6, v16\ns_nop 1\nv_cndmask_b32 v16, 0, v16, vcc")
    a(f"s_mov_b32 s73, {hex(WS_IDX)}\nv_lshlrev_b32 v5, 2, v6\nbuffer_store_dword v20, v5, s[{SRD_WS}:{SRD_WS+3}], s73 offen")
    a("v_and_b32 v4, 0x7ff, v20\nv_sub_u32 v4, 0x7ff, v4")
    a(f"v_lshrrev_b32 v5, 4, v4\nv_mul_u32_u24 v5, 20480, v5\nv_and_b32 v4, 15, v4\nv_lshl_add_u32 v5, v4, 4, v5")
    a(f"v_lshrrev_b32 v7, 4, v{L}\nv_lshl_add_u32 v5, v7, 8, v5\ns_mul_i32 s62, s61, 5120")
    for k in range(5):
        if k == 4: a("s_add_u32 s62, s62, 4096")
        a(f"buffer_load_dwordx4 {v(24+4*k,4)}, v5, s[{SRD_WS}:{SRD_WS+3}], s62 offen offset:{(k&3)*1024}")
    a(f"v_and_b32 v2, 15, v{L}\nv_lshrrev_b32 v3, 2, v2\nv_lshl_add_u32 v8, v7, 3, v3\nv_lshlrev_b32 v8, 6, v8\nv_and_b32 v2, 3, v2\nv_lshl_add_u32 v8, v2, 3, v8\nv_add_u32 v8, s63, v8")
    a(f"v_lshl_add_u32 v9, v7, 2, v3\nv_mul_u32_u24 v9, 1280, v9\nv_lshl_add_u32 v9, v2, 3, v9\ns_mul_i32 s6, s{S_W}, 160\ns_add_u32 s6, s6, {M_WD}\nv_add_u32 v9, s6, v9")
    a("s_waitcnt vmcnt(0)")
    for k in range(5):
        for ft in range(2):
            d = 48 + (k*2+ft)*4
            a(f"ds_read_b64_tr_b16 {v(d,2)}, v8 offset:{k*2048+ft*32}\nds_read_b64_tr_b16 {v(d+2,2)}, v8 offset:{k*2048+ft*32+256}")
        if k == 2: a("s_waitcnt lgkmcnt(0)")
    a("s_waitcnt lgkmcnt(0)")
    for k in range(5):
        for ft in range(2):
            a.mfma(88+4*ft, 48+(k*2+ft)*4, 24+4*k, "0" if k == 0 else None)
    a(f"s_lshl_b32 s6, s{S_W}, 11\ns_add_u32 s6, s6, {M_PART}\nv_add_u32 v10, s6, v{VL16}\ns_nop 7")
    a("ds_write_b128 v10, v[88:91]\nds_write_b128 v10, v[92:95] offset:1024")
    a(f"s_waitcnt lgkmcnt(0)\ns_barrier\nv_add_u32 v10, {M_PART}, v{VL16}")
    for w in range(8):
        for ft in range(2):
            a(f"ds_read_b128 {v(96+(w*2+ft)*4,4)}, v10 offset:{w*2048+ft*1024}")
        if w == 3: a("s_waitcnt lgkmcnt(0)")
    for m in range(5):
        a(f"ds_read_b64_tr_b16 {v(48+4*m,2)}, v9 offset:{m*32}\nds_read_b64_tr_b16 {v(50+4*m,2)}, v9 offset:{m*32+16*1280}")
        if m == 2: a("s_waitcnt lgkmcnt(6)")
    a("s_mov_b32 s6, 0xbfb8aa3b")
    for i in range(8):
        g0, u0 = 96 + i, 128 + i
        a(f"v_add_f32 v{g0}, v{g0}, v{g0+8}\nv_add_f32 v2, v{g0+16}, v{g0+24}\nv_add_f32 v{g0}, v{g0}, v2")
        a(f"v_add_f32 v{u0}, v{u0}, v{u0+8}\nv_add_f32 v2, v{u0+16}, v{u0+24}\nv_add_f32 v{u0}, v{u0}, v2")
        bf16_round(a, g0); bf16_round(a, u0)
        a(f"v_mul_f32 v2, s6, v{g0}\nv_exp_f32 v2, v2\ns_nop 0\nv_add_f32 v2, 1.0, v2\nv_rcp_f32 v2, v2\ns_nop 0\nv_mul_f32 v{g0}, v{g0}, v2")
        bf16_round(a, g0)
        a(f"v_mul_f32 v{g0}, v{g0}, v{u0}")
    for i in range(4):
        a(f"v_cvt_pk_bf16_f32 v{24+i}, v{96+2*i}, v{97+2*i}")
    a("s_waitcnt lgkmcnt(0)\ns_nop 1")
    for m in range(5):
        a.mfma(68+4*m, 48+4*m, 24, "0")
    a(f"v_and_b32 v2, 15, v{L}\nv_mul_u32_u24 v3, 2560, v2\nv_lshl_add_u32 v3, v7, 4, v3")
    a(f"s_mul_i32 s6, s{S_E}, 20480\ns_mul_i32 s7, s{S_W}, 320\ns_add_u32 s6, s6, s7\ns_add_u32 s6, s6, {WS_YP}")
    a("v_cmp_gt_u32 vcc, 8, v2\ns_and_saveexec_b64 s[74:75], vcc\ns_nop 7")
    for m in range(5):
        a(f"buffer_store_dwordx4 {v(68+4*m,4)}, v3, s[{SRD_WS}:{SRD_WS+3}], s6 offen offset:{m*64}")

def gen_k3(a):
    end = "L_k3_end"
    prologue(a, end)
    L = V_LANE
    NB = 4
    ACC, BUF = 176, 32
    VC, VW4 = 10, 14
    XR, XNR = 16, 22
    LDS_Y = 81920
    a.srd(SRD_A, P_X, 2048*640*2)
    a.srd(SRD_B, P_OUT, 2048*640*2)
    a(f"v_lshlrev_b32 v{VC}, 4, v{L}")
    for i in range(1, 4): a(f"v_add_u32 v{VC+i}, {i*131072}, v{VC}")
    a(f"v_add_u32 v{VW4}, 4096, v{VC}")
    S_CO, S_WO_, S_IT = 60, 61, 62
    a(f"s_lshl_b32 s{S_CO}, s{S_H}, 19\ns_lshl_b32 s6, s{S_W}, 14\ns_add_u32 s{S_CO}, s{S_CO}, s6\ns_add_u32 s{S_CO}, s{S_CO}, {WS_CTX}")
    a(f"s_mul_i32 s{S_WO_}, s{S_W}, {16*40960}\ns_mul_i32 s6, s{S_P}, 5120\ns_add_u32 s{S_WO_}, s{S_WO_}, s6\ns_add_u32 s{S_WO_}, s{S_WO_}, {WS_WOF}")
    a(f"s_add_u32 s6, s{P_WS}, {hex(WS_IDX)}\ns_addc_u32 s7, s{P_WS+1}, 0\ns_load_dwordx8 s[84:91], s[6:7], 0")
    def ld(b):
        for m in range(5):
            a(f"buffer_load_dwordx4 {v(BUF+36*b+16+4*m,4)}, v{VC if m<4 else VW4}, s[{SRD_WS}:{SRD_WS+3}], s{S_WO_} offen offset:{(m&3)*1024}"); a.vm.issue(("B", b))
        a(f"s_add_u32 s{S_WO_}, s{S_WO_}, 40960")
        for i in range(4):
            a(f"buffer_load_dwordx4 {v(BUF+36*b+4*i,4)}, v{VC+i}, s[{SRD_WS}:{SRD_WS+3}], s{S_CO} offen offset:{b*1024}"); a.vm.issue(("B", b))
    a("s_waitcnt lgkmcnt(0)")
    a(f"s_mov_b32 s63, s84")
    for t in range(1, 8): a(f"s_cmp_eq_u32 s{S_W}, {t}\ns_cselect_b32 s63, s{84+t}, s63")
    a(f"s_and_b32 s6, s63, 0x7ff\ns_sub_u32 s6, 0x7ff, s6\ns_lshr_b32 s6, s6, 6\ns_cmp_lg_u32 s6, s{S_H}\ns_cbranch_scc1 L_k3_noy")
    a(f"v_mul_u32_u24 v2, 13, v{L}\nv_lshrrev_b32 v2, 8, v2\nv_mul_u32_u24 v3, 20, v2\nv_sub_u32 v3, v{L}, v3")
    a(f"s_mov_b32 s6, {18*20480}\nv_mul_lo_u32 v4, v2, s6\nv_lshl_add_u32 v4, v3, 4, v4")
    a(f"v_cmp_lt_u32 vcc, 59, v{L}\nv_mov_b32 v5, {hex(WS_SIZE)}\ns_nop 0\nv_cndmask_b32 v4, v4, v5, vcc")
    a(f"s_mul_i32 s6, s{S_W}, 2560\ns_mul_i32 s7, s{S_P}, 320\ns_add_u32 s6, s6, s7\ns_add_u32 s6, s6, {WS_YP}")
    for e in range(18):
        a(f"buffer_load_dwordx4 {v(ACC+4*e,4)}, v4, s[{SRD_WS}:{SRD_WS+3}], s6 offen\ns_add_u32 s6, s6, 20480")
    a("s_waitcnt vmcnt(0)")
    for e in range(1, 18):
        for r in range(4): a(f"v_add_f32 v{ACC+r}, v{ACC+r}, v{ACC+4*e+r}")
    a(f"s_lshl_b32 s6, s{S_W}, 10\ns_add_u32 s6, s6, {LDS_Y}\nv_add_u32 v4, s6, v{VC}\nds_write_b128 v4, {v(ACC,4)}\ns_waitcnt lgkmcnt(0)")
    a.label("L_k3_noy")
    a.vm.drain()
    a(f"v_and_b32 v2, 15, v{L}\nv_lshrrev_b32 v3, 4, v{L}")
    a(f"s_and_b32 s6, s{S_W}, 3\ns_lshl_b32 s7, s{S_H}, 2\ns_add_u32 s64, s6, s7")
    a(f"s_lshl_b32 s6, s64, 4\nv_add_u32 v28, s6, v2")
    a(f"s_lshr_b32 s6, s{S_W}, 2\ns_mul_i32 s7, s{S_P}, 5\ns_add_u32 s65, s6, s7")
    a(f"v_mul_u32_u24 v29, 1280, v28\nv_lshl_add_u32 v29, v3, 3, v29\ns_lshl_b32 s66, s65, 5")
    a(f"v_lshrrev_b32 v4, 1, v3\nv_lshlrev_b32 v4, 8, v4\nv_lshl_add_u32 v4, v2, 4, v4\nv_and_b32 v5, 1, v3\nv_lshl_add_u32 v4, v5, 3, v4")
    a(f"s_mul_i32 s6, s64, 20480\ns_lshl_b32 s7, s65, 9\ns_add_u32 s6, s6, s7")
    for n in range(3):
        a(f"buffer_load_dwordx2 {v(XR+2*n,2)}, v29, s[{SRD_A}:{SRD_A+3}], s66 offen offset:{n*64}")
        a(f"buffer_load_dwordx2 {v(XNR+2*n,2)}, v4, s[{SRD_WS}:{SRD_WS+3}], s6 offen offset:{n*1024}")
    for b in range(NB): ld(b)
    for i in range(80): a(f"v_mov_b32 v{ACC+i}, 0")
    vm0 = list(a.vm.q)
    a(f"s_mov_b32 s{S_IT}, 0")
    a.label("L_k3_loop")
    a(f"s_add_u32 s{S_CO}, s{S_CO}, {NB*1024}\ns_cmp_ge_u32 s{S_IT}, {16//NB-1}\ns_cselect_b32 s{S_CO}, {hex(WS_SIZE)}, s{S_CO}\ns_cselect_b32 s{S_WO_}, {hex(WS_SIZE)}, s{S_WO_}")
    for b in range(NB):
        a.wait_vm(("B", b))
        for m in range(5):
            for i in range(4):
                a.mfma(ACC+(m*4+i)*4, BUF+36*b+16+4*m, BUF+36*b+4*i)
        ld(b)
    a(f"s_add_u32 s{S_IT}, s{S_IT}, 1\ns_cmp_lt_u32 s{S_IT}, {16//NB}\ns_cbranch_scc1 L_k3_loop")
    assert a.vm.q == vm0
    a(f"s_and_b32 s6, s{S_W}, 3\ns_mul_i32 s6, s6, 20480\nv_add_u32 v2, s6, v{VC}\ns_nop 7")
    a(f"s_cmp_lt_u32 s{S_W}, 4\ns_cbranch_scc1 L_k3_r1")
    for T in range(20): a(f"ds_write_b128 v2, {v(ACC+4*T,4)} offset:{T*1024}")
    a("s_waitcnt lgkmcnt(0)\ns_barrier\ns_branch L_k3_r2")
    a.label("L_k3_r1")
    a("s_waitcnt vmcnt(0)\ns_barrier")
    a.lg.drain()
    for T in range(20):
        a(f"ds_read_b128 {v(BUF+4*T,4)}, v2 offset:{T*1024}"); a.lg.issue(T)
        if T == 11:
            for T2 in range(4):
                a.wait_lg(T2)
                for r in range(4): a(f"v_add_f32 v{ACC+4*T2+r}, v{ACC+4*T2+r}, v{BUF+4*T2+r}")
    for T2 in range(4, 20):
        a.wait_lg(T2)
        for r in range(4): a(f"v_add_f32 v{ACC+4*T2+r}, v{ACC+4*T2+r}, v{BUF+4*T2+r}")
    for T in range(20): a(f"ds_write_b128 v2, {v(ACC+4*T,4)} offset:{T*1024}")
    a("s_waitcnt lgkmcnt(0)")
    a.label("L_k3_r2")
    a("s_waitcnt vmcnt(0)\ns_barrier")
    a(f"s_lshl_b32 s6, s{S_W}, 10\nv_add_u32 v2, s6, v{VC}")
    a("v_sub_u32 v3, 0x7ff, v28\nv_mov_b32 v30, -1\nv_mov_b32 v31, 0")
    for t in range(8):
        a(f"s_and_b32 s6, s{84+t}, 0x7ff\nv_cmp_eq_u32 vcc, s6, v3\nv_mov_b32 v4, {t}\nv_mov_b32 v5, s{84+t}\nv_cndmask_b32 v30, v30, v4, vcc\nv_cndmask_b32 v31, v31, v5, vcc")
    a("v_cmp_ne_u32 s[74:75], -1, v30")
    a("v_lshrrev_b32 v31, 11, v31\nv_bfe_i32 v4, v31, 15, 1\nv_not_b32 v4, v4\nv_and_b32 v4, 0x7fff, v4\nv_or_b32 v4, 0x8000, v4\nv_xor_b32 v31, v31, v4\nv_lshlrev_b32 v31, 16, v31")
    a("v_mul_f32 v31, 0xbfb8aa3b, v31\nv_exp_f32 v31, v31\ns_nop 0\nv_add_f32 v31, 1.0, v31\nv_rcp_f32 v31, v31\ns_nop 0")
    bf16_round(a, 31)
    a(f"v_and_b32 v30, 7, v30\nv_lshlrev_b32 v30, 10, v30\nv_lshrrev_b32 v4, 4, v{L}\nv_lshl_add_u32 v30, v4, 4, v30")
    a(f"s_lshr_b32 s6, s{S_W}, 2\ns_lshl_b32 s6, s6, 6\ns_add_u32 s6, s6, {LDS_Y}\nv_add_u32 v30, s6, v30")
    for n in range(3):
        if n == 2: a(f"s_cmp_ge_u32 s{S_W}, 4\ns_cbranch_scc1 {end}")
        R = BUF
        for k in range(4):
            off = k*20480 + n*8192
            if off > 65535:
                a(f"v_add_u32 v4, {k*20480}, v2\nds_read_b128 {v(R+4*k,4)}, v4 offset:{n*8192}")
            else:
                a(f"ds_read_b128 {v(R+4*k,4)}, v2 offset:{off}")
        for k in range(3):
            a(f"ds_read_b128 {v(R+16+4*k,4)}, v30 offset:{n*128+k*320}")
        a("s_waitcnt lgkmcnt(0)")
        for r in range(4):
            A_, Y = R + r, R + 16 + r
            a(f"v_add_f32 v{A_}, v{A_}, v{A_+4}\nv_add_f32 v4, v{A_+8}, v{A_+12}\nv_add_f32 v{A_}, v{A_}, v4")
            bf16_round(a, A_)
            xr, xnr = XR + 2*n + (r >> 1), XNR + 2*n + (r >> 1)
            if r & 1: a(f"v_and_b32 v4, 0xffff0000, v{xr}\nv_and_b32 v5, 0xffff0000, v{xnr}")
            else: a(f"v_lshlrev_b32 v4, 16, v{xr}\nv_lshlrev_b32 v5, 16, v{xnr}")
            a(f"v_add_f32 v{A_}, v{A_}, v4")
            bf16_round(a, A_)
            a(f"v_add_f32 v{Y}, v{Y}, v{Y+4}\nv_add_f32 v{Y}, v{Y}, v{Y+8}")
            bf16_round(a, Y)
            a(f"v_mul_f32 v{Y}, v{Y}, v31")
            bf16_round(a, Y)
            a(f"v_add_f32 v{Y}, v{Y}, v5")
            bf16_round(a, Y)
            a(f"v_cndmask_b32 v5, v5, v{Y}, s[74:75]\nv_add_f32 v{A_}, v{A_}, v5")
        a(f"v_cvt_pk_bf16_f32 v{6}, v{R}, v{R+1}\nv_cvt_pk_bf16_f32 v{7}, v{R+2}, v{R+3}")
        a(f"buffer_store_dwordx2 v[6:7], v29, s[{SRD_B}:{SRD_B+3}], s66 offen offset:{n*64}\ns_nop 1")
    a.label(end)
    a("s_endpgm")

KERNELS = [("k2_kernel", 163840, gen_k2), ("k3_kernel", 98304, gen_k3)]
```

```python
import sys
from asmlib import *

NAME = "parallel_sum__compressed_kv_cla__moe_arch_mod__prompt"
WS_XN = 0x0
WS_R = 0x280000
WS_YP = 0x290000
WS_IDX = 0x3A0000
WS_WOF = 0x400000
WS_KV = 0x1000000
WS_CTX = 0x3000000
WS_SIZE = 0x4000000
S_W, S_H, S_P = 3, 4, 5
SRD_WS, SRD_A, SRD_B, SRD_C, SRD_D, SRD_E = 8, 12, 16, 20, 24, 28
P_X, P_CKV, P_WQ, P_WUK, P_WUV, P_WO, P_BX, P_WR, P_WG, P_WU, P_WD, P_OUT, P_DBG, P_WS = range(32, 60, 2)
V_LANE = 1

def prologue(a, endlabel):
    a(f"s_cmp_ge_u32 s2, 256\ns_cbranch_scc1 {endlabel}")
    a("s_load_dwordx16 s[32:47], s[0:1], 0\ns_load_dwordx8 s[48:55], s[0:1], 64\ns_load_dwordx4 s[56:59], s[0:1], 96")
    a(f"v_lshrrev_b32 v2, 6, v0\nv_and_b32 v{V_LANE}, 63, v0")
    a(f"v_readfirstlane_b32 s{S_W}, v2")
    a(f"s_and_b32 s6, s2, 7\ns_lshl_b32 s6, s6, 2\ns_lshr_b32 s7, s2, 3\ns_and_b32 s7, s7, 3\ns_add_u32 s{S_H}, s6, s7\ns_lshr_b32 s{S_P}, s2, 5")
    a("s_waitcnt lgkmcnt(0)")
    a.srd(SRD_WS, P_WS, WS_SIZE)

def bf16_round(a, r, tmp=None):
    a(f"v_cvt_pk_bf16_f32 v{r}, v{r}, v{r}")
    a(f"v_lshlrev_b32 v{r}, 16, v{r}")

LDS_LN = 131072
LDS_WOT = 131072 + 10240

def gen_k1(a):
    end = "L_k1_end"
    prologue(a, end)
    a.srd(SRD_A, P_CKV, 2048*512*2)
    a.srd(SRD_B, P_WUK, 512*4096*2)
    a.srd(SRD_C, P_WUV, 512*4096*2)
    a.srd(SRD_D, P_WO, 4096*640*2)
    a.srd(SRD_E, P_X, 2048*640*2)
    L = V_LANE
    a.c("Wo slice -> LDS")
    a(f"s_lshr_b32 s60, s2, 1\ns_mul_i32 s60, s60, {32*1280}\ns_and_b32 s61, s2, 1\ns_mul_i32 s61, s61, 640\ns_add_u32 s60, s60, s61")
    a("s_movk_i32 s62, 1639")
    for n in range(3):
        skip = a.newlabel("wot_skip")
        if n == 2:
            a(f"s_cmp_ge_u32 s{S_W}, 4\ns_cbranch_scc1 {skip}")
        a(f"v_add_u32 v2, {n*512}, v0")
        a(f"v_mul_lo_u32 v3, v2, s62\nv_lshrrev_b32 v3, 16, v3")
        a(f"v_mul_u32_u24 v4, 40, v3\nv_sub_u32 v4, v2, v4")
        a(f"v_mul_u32_u24 v3, 1280, v3\nv_lshl_add_u32 v3, v4, 4, v3")
        a(f"s_lshl_b32 s63, s{S_W}, 10\ns_add_u32 m0, s63, {LDS_WOT + n*8192}")
        a(f"s_nop 0\nbuffer_load_dwordx4 v3, s[{SRD_D}:{SRD_D+3}], s60 offen lds")
        if n == 2: a.label(skip)
    a.c("LN loads: row = 8b+w")
    a(f"s_lshl_b32 s64, s2, 3\ns_add_u32 s64, s64, s{S_W}")
    a(f"s_mul_i32 s65, s64, 1280")
    a(f"v_lshlrev_b32 v2, 2, v{L}")
    for j in range(5):
        a(f"buffer_load_dword v{16+j}, v2, s[{SRD_E}:{SRD_E+3}], s65 offen offset:{j*256}")
    a.srd(SRD_D, P_WR, 1280)
    for j in range(5):
        a(f"buffer_load_dword v{21+j}, v2, s[{SRD_D}:{SRD_D+3}], 0 offen offset:{j*256}")
    VC, VW = 40, 44
    RC, RW = 46, 48
    CF, WF, ACC = 64, 96, 128
    a.c("KV DMA offsets")
    a(f"v_lshrrev_b32 v2, 3, v{L}\nv_and_b32 v3, 7, v{L}\nv_lshrrev_b32 v4, 4, v{L}")
    a(f"s_lshl_b32 s6, s{S_W}, 5")
    for i in range(4):
        a(f"v_add_u32 v5, {4*(i&1)}, v4\nv_xor_b32 v5, v3, v5\nv_lshlrev_b32 v5, 4, v5")
        a(f"s_add_u32 s7, s6, {8*i}\nv_add_u32 v6, s7, v2\nv_lshl_add_u32 v{VC+i}, v6, 10, v5")
        if i: a(f"v_subrev_u32 v{VC+i}, {i*1024}, v{VC+i}")
    a(f"s_and_b32 s7, s{S_W}, 1\ns_lshl_b32 s7, s7, 2\nv_or_b32 v5, s7, v4\nv_lshlrev_b32 v5, 1, v5\nv_and_b32 v6, 15, v{L}\nv_xor_b32 v5, v6, v5\nv_lshlrev_b32 v5, 4, v5")
    a(f"s_lshl_b32 s6, s{S_W}, 3\nv_add_u32 v6, s6, v4\nv_lshl_add_u32 v{VW}, v6, 13, v5")
    a(f"v_add_u32 v{VW+1}, {4*8192-1024}, v{VW}")
    S_CO, S_WO_, S_MC, S_MW, S_ST = 66, 67, 68, 69, 70
    a(f"s_lshl_b32 s{S_CO}, s{S_P}, 18")
    a(f"s_lshl_b32 s{S_WO_}, s{S_H}, 8")
    a(f"s_lshl_b32 s{S_MC}, s{S_W}, 12")
    a(f"s_lshl_b32 s{S_MW}, s{S_W}, 11\ns_add_u32 s{S_MW}, s{S_MW}, 65536")
    def kv_dma():
        a(f"s_mov_b32 m0, s{S_MC}\ns_nop 0")
        for i in range(4):
            a(f"buffer_load_dwordx4 v{VC+i}, s[{SRD_A}:{SRD_A+3}], s{S_CO} offen offset:{i*1024} lds")
        a(f"s_mov_b32 m0, s{S_MW}\ns_add_u32 s{S_CO}, s{S_CO}, 128")
        for i in range(2):
            a(f"buffer_load_dwordx4 v{VW+i}, s[{SRD_B}:{SRD_B+3}], s{S_WO_} offen offset:{i*1024} lds")
        a(f"s_add_u32 m0, s{S_MW}, 16384\ns_xor_b32 s{S_MC}, s{S_MC}, 0x8000")
        for i in range(2):
            a(f"buffer_load_dwordx4 v{VW+i}, s[{SRD_C}:{SRD_C+3}], s{S_WO_} offen offset:{i*1024} lds")
        a(f"s_xor_b32 s{S_MW}, s{S_MW}, 0x8000\ns_add_u32 s{S_WO_}, s{S_WO_}, {64*8192}")
    kv_dma(); kv_dma()
    a.c("frag read addresses")
    a(f"v_and_b32 v2, 15, v{L}\nv_lshrrev_b32 v3, 4, v{L}")
    a(f"s_and_b32 s6, s{S_W}, 1\ns_lshl_b32 s6, s6, 7\nv_add_u32 v4, s6, v2\nv_lshlrev_b32 v4, 7, v4")
    a(f"v_lshrrev_b32 v5, 1, v2")
    for sp in range(2):
        a(f"v_add_u32 v6, {4*sp}, v3\nv_xor_b32 v6, v6, v5\nv_lshl_add_u32 v{RC+sp}, v6, 4, v4")
    a(f"v_lshrrev_b32 v4, 2, v2\nv_lshl_add_u32 v5, v3, 3, v4\nv_lshlrev_b32 v5, 8, v5")
    a(f"v_and_b32 v6, 1, v2\nv_lshl_add_u32 v5, v6, 3, v5")
    a(f"v_and_b32 v6, 1, v3\nv_lshl_or_b32 v4, v6, 2, v4\nv_lshlrev_b32 v4, 1, v4")
    a(f"v_bfe_u32 v6, v2, 1, 1")
    a(f"s_lshr_b32 s6, s{S_W}, 2\ns_lshl_b32 s6, s6, 14\ns_add_u32 s6, s6, 65536\nv_add_u32 v5, s6, v5")
    a(f"s_lshr_b32 s7, s{S_W}, 1\ns_and_b32 s7, s7, 1\ns_lshl_b32 s7, s7, 3")
    for j in range(4):
        a(f"s_add_u32 s6, s7, {2*j}\nv_add_u32 v7, s6, v6\nv_xor_b32 v7, v7, v4\nv_lshl_add_u32 v{RW+j}, v7, 4, v5")
    for i in range(128):
        a(f"v_mov_b32 v{ACC+i}, 0")
    a.c("LayerNorm")
    a("s_waitcnt vmcnt(16)")
    X = 26
    for j in range(5):
        a(f"v_lshlrev_b32 v{X+2*j}, 16, v{16+j}\nv_and_b32 v{X+2*j+1}, 0xffff0000, v{16+j}")
    a(f"v_add_f32 v2, v{X}, v{X+1}")
    for j in range(2, 10): a(f"v_add_f32 v2, v2, v{X+j}")
    a.wave_reduce("v_add_f32", 2)
    a("v_readlane_b32 s6, v2, 63\ns_mov_b32 s7, 0x3acccccd")
    a("s_nop 1\nv_mov_b32 v3, s6\nv_mul_f32 v3, s7, v3")
    a(f"v_sub_f32 v4, v{X}, v3\nv_mul_f32 v2, v4, v4")
    for j in range(1, 10): a(f"v_sub_f32 v4, v{X+j}, v3\nv_fmac_f32 v2, v4, v4")
    a.wave_reduce("v_add_f32", 2)
    a("v_readlane_b32 s6, v2, 63\ns_nop 1\nv_mov_b32 v4, s6\nv_mul_f32 v4, s7, v4")
    bf16_round(a, 3); bf16_round(a, 4)
    a("v_add_f32 v4, 0x3727c5ac, v4")
    bf16_round(a, 4)
    a("v_sqrt_f32 v4, v4\ns_nop 0")
    bf16_round(a, 4)
    a("v_rcp_f32 v5, v4\ns_nop 0")
    a("v_fma_f32 v6, -v4, v5, 1.0\nv_fmac_f32 v5, v6, v5")
    for j in range(5):
        x0, x1 = X+2*j, X+2*j+1
        a(f"v_sub_f32 v{x0}, v{x0}, v3\nv_sub_f32 v{x1}, v{x1}, v3\nv_cvt_pk_bf16_f32 v6, v{x0}, v{x1}")
        a(f"v_lshlrev_b32 v{x0}, 16, v6\nv_and_b32 v{x1}, 0xffff0000, v6")
        a(f"v_mul_f32 v6, v{x0}, v5\nv_mul_f32 v7, v{x1}, v5")
        a(f"v_fma_f32 v{x0}, -v4, v6, v{x0}\nv_fma_f32 v{x1}, -v4, v7, v{x1}")
        a(f"v_fmac_f32 v6, v{x0}, v5\nv_fmac_f32 v7, v{x1}, v5")
        a(f"v_cvt_pk_bf16_f32 v{16+j}, v6, v7")
    a(f"s_mul_i32 s6, s{S_W}, 1280\ns_add_u32 s6, s6, {LDS_LN}\nv_lshl_add_u32 v8, v{L}, 2, s6")
    for j in range(5):
        a(f"ds_write_b32 v8, v{16+j} offset:{j*256}")
    a("v_mov_b32 v2, 0")
    for j in range(5):
        a(f"v_lshlrev_b32 v4, 16, v{16+j}\nv_lshlrev_b32 v5, 16, v{21+j}\nv_fmac_f32 v2, v4, v5")
        a(f"v_and_b32 v4, 0xffff0000, v{16+j}\nv_and_b32 v5, 0xffff0000, v{21+j}\nv_fmac_f32 v2, v4, v5")
    a.wave_reduce("v_add_f32", 2)
    a("v_cvt_pk_bf16_f32 v2, v2, v2\nv_and_b32 v2, 0xffff, v2")
    a("v_bfe_i32 v3, v2, 15, 1\nv_and_b32 v3, 0x7fff, v3\nv_or_b32 v3, 0x8000, v3\nv_xor_b32 v2, v2, v3")
    a("s_sub_u32 s6, 2047, s64\nv_lshlrev_b32 v2, 11, v2\nv_or_b32 v2, s6, v2")
    a(f"s_lshl_b32 s6, s64, 2\ns_add_u32 s6, s6, {WS_R}")
    a(f"v_mov_b32 v3, 0\nv_cmp_eq_u32 vcc, 63, v{L}\ns_and_saveexec_b64 s[72:73], vcc")
    a("s_waitcnt vmcnt(8)")
    a(f"buffer_store_dword v2, v3, s[{SRD_WS}:{SRD_WS+3}], s6 offen")
    a("s_mov_b64 exec, s[72:73]")
    a("s_waitcnt lgkmcnt(0)\ns_barrier")
    a.c("xn -> ws (fragment order)")
    a(f"s_lshr_b32 s6, s2, 1\ns_mul_i32 s6, s6, 20480\ns_and_b32 s7, s2, 1\ns_lshl_b32 s7, s7, 7\ns_add_u32 s6, s6, s7")
    for n in range(2):
        skip = a.newlabel("xn_skip")
        if n == 1: a(f"s_cmp_ge_u32 s{S_W}, 2\ns_cbranch_scc1 {skip}")
        a(f"v_add_u32 v2, {512*n}, v0\nv_lshrrev_b32 v3, 3, v2\nv_and_b32 v4, 7, v2")
        a(f"v_mul_u32_u24 v5, 1280, v4\nv_lshl_add_u32 v5, v3, 4, v5\nv_add_u32 v5, {LDS_LN}, v5")
        a(f"ds_read_b128 v[8:11], v5")
        a(f"v_lshlrev_b32 v5, 8, v3\nv_lshl_add_u32 v5, v4, 4, v5")
        a(f"s_waitcnt lgkmcnt(0)\nbuffer_store_dwordx4 v[8:11], v5, s[{SRD_WS}:{SRD_WS+3}], s6 offen")
        if n == 1: a.label(skip)
    a.c("Wo fragments -> ws")
    a(f"v_and_b32 v2, 15, v{L}\nv_lshrrev_b32 v3, 4, v{L}\nv_lshrrev_b32 v4, 2, v2\nv_lshl_add_u32 v4, v3, 2, v4\nv_mul_u32_u24 v4, 640, v4")
    a(f"v_and_b32 v2, 3, v2\nv_lshl_add_u32 v4, v2, 3, v4\ns_lshl_b32 s6, s{S_W}, 5\ns_add_u32 s6, s6, {LDS_WOT}\nv_add_u32 v4, s6, v4")
    a(f"s_mul_i32 s6, s2, 20480\ns_lshl_b32 s7, s{S_W}, 10\ns_add_u32 s6, s6, s7\ns_add_u32 s6, s6, {WS_WOF}\nv_lshlrev_b32 v5, 4, v{L}")
    for n in range(3):
        skip = a.newlabel("wof_skip")
        if n == 2: a(f"s_cmp_ge_u32 s{S_W}, 4\ns_cbranch_scc1 {skip}")
        d = 12 + 4*n
        a(f"ds_read_b64_tr_b16 v[{d}:{d+1}], v4 offset:{n*256}\nds_read_b64_tr_b16 v[{d+2}:{d+3}], v4 offset:{n*256+10240}")
        a(f"s_waitcnt lgkmcnt(0)\nbuffer_store_dwordx4 v[{d}:{d+3}], v5, s[{SRD_WS}:{SRD_WS+3}], s6 offen")
        a(f"s_add_u32 s6, s6, 8192")
        if n == 2: a.label(skip)
    def rdC(i, sp):
        a(f"ds_read_b128 {v(CF+4*i,4)}, v{RC+sp} offset:{i*2048}"); a.lg.issue(("C", i))
    def rdW(par, j, half, sp):
        r = WF + 16*par + 4*j + 2*half
        a(f"ds_read_b64_tr_b16 {v(r,2)}, v{RW+j} offset:{sp*8192 + half*1024}"); a.lg.issue(("W", par, j, half))
    def first_reads():
        rdC(0, 0); rdC(1, 0)
        for j in range(4):
            rdW(0, j, 0, 0); rdW(0, j, 1, 0)
        for i in range(2, 8): rdC(i, 0)
    def body(isK, lab):
        def mm(i, j, par):
            d = ACC + (i*4+j)*4
            a.wait_lg([("C", i), ("W", par, j, 0), ("W", par, j, 1)])
            if isK: a.mfma(d, WF+16*par+4*j, CF+4*i)
            else: a.mfma(d, CF+4*i, WF+16*par+4*j)
        a.label(lab)
        wq = [(j, hf) for j in range(4) for hf in range(2)]
        for i in range(8):
            for j in range(4):
                mm(i, j, 0)
                if i < 2:
                    jj, hf = wq[i*4+j]; rdW(1, jj, hf, 1)
            rdC(i, 1)
        for i in range(8):
            for j in range(4):
                mm(i, j, 1)
            if i == 1:
                a("s_waitcnt vmcnt(0) lgkmcnt(0)\ns_barrier"); a.lg.drain()
                for r in (RC, RC+1, RW, RW+1, RW+2, RW+3): a(f"v_xor_b32 v{r}, 0x8000, v{r}")
                rdC(0, 0); rdC(1, 0)
                for j in range(4):
                    rdW(0, j, 0, 0); rdW(0, j, 1, 0)
                skip = a.newlabel("dma_skip")
                a(f"s_cmp_ge_u32 s{S_ST}, 6\ns_cbranch_scc1 {skip}")
                kv_dma()
                a.label(skip)
            elif i >= 2:
                rdC(i, 0)
        a(f"s_add_u32 s{S_ST}, s{S_ST}, 1\ns_cmp_lt_u32 s{S_ST}, 8\ns_cbranch_scc1 {lab}")
    a(f"s_mov_b32 s{S_ST}, 0")
    a.lg.drain()
    first_reads()
    q0 = list(a.lg.q)
    a(f"s_lshl_b32 s6, s{S_H}, 20\ns_lshl_b32 s7, s{S_P}, 17\ns_add_u32 s6, s6, s7\ns_and_b32 s7, s{S_W}, 1\ns_lshl_b32 s7, s7, 16\ns_add_u32 s6, s6, s7\ns_add_u32 s71, s6, {WS_KV}")
    a(f"v_lshlrev_b32 v2, 4, v{L}")
    a(f"s_cmp_ge_u32 s{S_W}, 4\ns_cbranch_scc1 L_k1_v")
    body(True, "L_k1_kloop")
    assert a.lg.q == q0, (a.lg.q, q0)
    a.c("K epilogue")
    a(f"s_lshr_b32 s7, s{S_W}, 1\ns_and_b32 s7, s7, 1\ns_lshl_b32 s7, s7, 11\ns_add_u32 s71, s71, s7")
    a("s_waitcnt lgkmcnt(0)\ns_nop 7")
    n = 0
    for i in range(8):
        for jj in range(2):
            t = 64 + 4*(n % 8); n += 1
            d0 = ACC + (i*4+2*jj)*4; d1 = d0 + 4
            a(f"v_cvt_pk_bf16_f32 v{t}, v{d0}, v{d0+1}\nv_cvt_pk_bf16_f32 v{t+1}, v{d0+2}, v{d0+3}")
            a(f"v_cvt_pk_bf16_f32 v{t+2}, v{d1}, v{d1+1}\nv_cvt_pk_bf16_f32 v{t+3}, v{d1+2}, v{d1+3}")
            if jj == 0:
                a(f"s_add_u32 s6, s71, {(i>>2)*32768 + (i&3)*4096}")
            a(f"buffer_store_dwordx4 {v(t,4)}, v2, s[{SRD_WS}:{SRD_WS+3}], s6 offen offset:{jj*1024}")
    a(f"s_branch {end}")
    a.label("L_k1_v")
    a.lg.q = list(q0)
    body(False, "L_k1_vloop")
    a.c("V epilogue")
    a(f"s_lshr_b32 s7, s{S_W}, 1\ns_and_b32 s7, s7, 1\ns_lshl_b32 s7, s7, 12\ns_add_u32 s71, s71, s7\ns_add_u32 s71, s71, 16384")
    a("s_waitcnt lgkmcnt(0)\ns_nop 7")
    n = 0
    for ii in range(4):
        for j in range(4):
            t = 64 + 4*(n % 8); n += 1
            d0 = ACC + (2*ii*4+j)*4; d1 = d0 + 16
            a(f"v_cvt_pk_bf16_f32 v{t}, v{d0}, v{d0+1}\nv_cvt_pk_bf16_f32 v{t+1}, v{d0+2}, v{d0+3}")
            a(f"v_cvt_pk_bf16_f32 v{t+2}, v{d1}, v{d1+1}\nv_cvt_pk_bf16_f32 v{t+3}, v{d1+2}, v{d1+3}")
            if j == 0:
                a(f"s_add_u32 s6, s71, {(ii>>1)*32768 + (ii&1)*8192}")
            a(f"buffer_store_dwordx4 {v(t,4)}, v2, s[{SRD_WS}:{SRD_WS+3}], s6 offen offset:{j*1024}")
    a.label(end)
    a("s_endpgm")

HEADER = open("parallel_sum__compressed_kv_cla__moe_arch_mod__prompt.s.ref").read().split("; Override launch")[0]

def build(kernels):
    out = HEADER
    for name, lds, fn in kernels:
        out += f"; @launch kernel={name} grid=(256,1,1) block=(512,1,1) lds={lds}\n"
    out += '.amdgcn_target "amdgcn-amd-amdhsa--gfx950"\n'
    a = Asm()
    for name, lds, fn in kernels:
        a.o.append(kernel_header(name).rstrip())
        a.lg.drain(); a.vm.drain()
        fn(a)
    out += a.text()
    out += '.section .rodata,"a"\n'
    for name, lds, fn in kernels:
        out += ".p2align 6\n" + kernel_desc(name)
    return out

if __name__ == "__main__":
    ks = [("k1_kernel", 163840, gen_k1)]
    try:
        import gen2
        ks += gen2.KERNELS
    except ImportError:
        pass
    path = sys.argv[1] if len(sys.argv) > 1 else f"/code/{NAME}.s"
    open(path, "w").write(build(ks))
```

```python
def v(a, n=1):
    return f"v{a}" if n == 1 else f"v[{a}:{a+n-1}]"
def s(a, n=1):
    return f"s{a}" if n == 1 else f"s[{a}:{a+n-1}]"

class Tracker:
    def __init__(self, name, maxv):
        self.name, self.maxv, self.q = name, maxv, []
    def issue(self, tag):
        self.q.append(tag)
    def need(self, tags):
        if not isinstance(tags, (list, set)): tags = [tags]
        idx = -1
        for i, t in enumerate(self.q):
            if t in tags: idx = i
        if idx < 0: return None
        n = len(self.q) - idx - 1
        n = min(n, self.maxv)
        self.q = self.q[len(self.q) - n:] if n > 0 else []
        return n
    def drain(self):
        self.q = []

class Asm:
    def __init__(self):
        self.o = []
        self.lg = Tracker("lgkmcnt", 15)
        self.vm = Tracker("vmcnt", 63)
        self.uid = 0
    def __call__(self, txt):
        for l in txt.split("\n"):
            l = l.strip()
            if l: self.o.append(("" if l.endswith(":") or l.startswith(".") else "    ") + l)
    def c(self, txt):
        self.o.append("    ; " + txt)
    def label(self, name):
        self.o.append(name + ":")
    def newlabel(self, base):
        self.uid += 1
        return f"L_{base}_{self.uid}"
    def wait_lg(self, tags):
        n = self.lg.need(tags)
        if n is not None: self(f"s_waitcnt lgkmcnt({n})")
    def wait_vm(self, tags):
        n = self.vm.need(tags)
        if n is not None: self(f"s_waitcnt vmcnt({n})")
    prof = False
    def stamp_init(self, r0, kidx):
        self.sr, self.kidx, self.sn = r0, kidx, 0
        if self.prof: self(f"v_mov_b32 v{r0}, 0\nv_mov_b32 v{r0+1}, 0")
    def stamp(self, idx):
        if not self.prof: return
        self(f"s_memtime s[92:93]\ns_memrealtime s[94:95]\ns_waitcnt lgkmcnt(0)\nv_writelane_b32 v{self.sr}, s92, {idx}\nv_writelane_b32 v{self.sr+1}, s94, {idx}")
    def stampd(self, sreg, base):
        if not self.prof: return
        self(f"s_memtime s[92:93]\ns_memrealtime s[94:95]\ns_add_u32 m0, s{sreg}, {base}\ns_waitcnt lgkmcnt(0)\nv_writelane_b32 v{self.sr}, s92, m0\nv_writelane_b32 v{self.sr+1}, s94, m0")
    def stamp_flush(self, srd, base):
        if not self.prof: return
        self("s_mov_b64 exec, -1")
        self.stamp(63)
        self(f"s_lshl_b32 s92, s2, 12\ns_add_u32 s92, s92, {base + self.kidx*0x100000}\nv_lshlrev_b32 v0, 3, v0")
        self(f"buffer_store_dwordx2 v[{self.sr}:{self.sr+1}], v0, s[{srd}:{srd+3}], s92 offen")
    def text(self):
        return "\n".join(self.o) + "\n"
    def srd(self, d, base, nbytes):
        self(f"s_mov_b32 s{d}, s{base}\ns_mov_b32 s{d+1}, s{base+1}\ns_mov_b32 s{d+2}, {hex(nbytes)}\ns_mov_b32 s{d+3}, 0x20000")
    def mfma(self, d, a, b, c=None):
        cs = v(d, 4) if c is None else (c if isinstance(c, str) else v(c, 4))
        self(f"v_mfma_f32_16x16x32_bf16 {v(d,4)}, {v(a,4)}, {v(b,4)}, {cs}")
    def wave_reduce(self, op, r):
        for m in ("quad_perm:[1,0,3,2] row_mask:0xf bank_mask:0xf", "quad_perm:[2,3,0,1] row_mask:0xf bank_mask:0xf",
                  "row_half_mirror row_mask:0xf bank_mask:0xf", "row_mirror row_mask:0xf bank_mask:0xf",
                  "row_bcast:15 row_mask:0xa bank_mask:0xf", "row_bcast:31 row_mask:0xc bank_mask:0xf"):
            self("s_nop 1")
            self(f"{op}_dpp v{r}, v{r}, v{r} {m}")
        self("s_nop 1")

def kernel_header(name):
    return f".text\n.globl {name}\n.p2align 8\n.type {name},@function\n{name}:\n"

def kernel_desc(name, vgpr=256, sgpr=102):
    acc = (vgpr + 3) // 4 * 4
    return f""".amdhsa_kernel {name}
  .amdhsa_next_free_vgpr {vgpr}
  .amdhsa_next_free_sgpr {sgpr}
  .amdhsa_accum_offset {acc}
  .amdhsa_group_segment_fixed_size 0
  .amdhsa_kernarg_size 112
  .amdhsa_user_sgpr_count 2
  .amdhsa_user_sgpr_kernarg_segment_ptr 1
  .amdhsa_system_sgpr_workgroup_id_x 1
  .amdhsa_float_denorm_mode_32 3
.end_amdhsa_kernel
"""
```

```python
from asmlib import *
from gen import *

QF, O_, S_, FR, P_, NM, L_, ET = 16, 48, 112, 144, 176, 192, 208, 212
VKA, VVA, VL16, VDMA = 220, 221, 222, 223
QRW, QVW = 224, 232
LDS_QW = 98304
THRESH = 0x4b800000
S_B, S_J, S_JMAX, S_KVO, S_SLOT, S_LD, S_T = 60, 61, 62, 63, 64, 65, 66
S_ROW = 67

def xlane(a, op, r, t):
    for sw in ("v_permlane16_swap_b32", "v_permlane32_swap_b32"):
        a(f"v_mov_b32 v{t}, v{r}\ns_nop 1\n{sw} v{r}, v{t}\ns_nop 1\n{op} v{r}, v{r}, v{t}")

def Sreg(par, kt, qt): return S_ + 16*par + (kt*2+qt)*4
def NMreg(kt, qt): return NM + (kt*2+qt)*4
def Oreg(t, qt): return O_ + (t*2+qt)*4
def Qreg(qt, s): return QF + (qt*4+s)*4
def Preg(par, qt): return P_ + 8*par + 4*qt
def Lreg(par, qt): return L_ + 2*par + qt

def sm_ops(par):
    ops = []
    first = [True, True]
    n = 0
    for kt in range(2):
        for qt in range(2):
            for r in range(4):
                t = ET + n % 4
                e = f"v_exp_f32 v{t}, v{Sreg(par,kt,qt)+r}"
                src = Lreg(1-par, qt) if first[qt] else Lreg(par, qt)
                first[qt] = False
                ad = f"v_add_f32 v{Lreg(par,qt)}, v{t}, v{src}"
                cv = None
                if r & 1:
                    cv = f"v_cvt_pk_bf16_f32 v{Preg(par,qt)+2*kt+(r>>1)}, v{ET+(n-1)%4}, v{t}"
                ops.append((e, ad, cv)); n += 1
    return ops

def gen_k2(a):
    end = "L_k2_end"
    prologue(a, "L_k2_exit")
    a.stamp_init(238, 1); a.stamp(0)
    L = V_LANE
    a.srd(SRD_A, P_WQ, 640*4096*2)
    a(f"s_lshl_b32 s6, s{S_P}, 2\ns_add_u32 s7, s6, s{S_W}\ns_sub_u32 s6, 56, s6\ns_add_u32 s6, s6, s{S_W}")
    a(f"s_cmp_lt_u32 s{S_W}, 4\ns_cselect_b32 s{S_B}, s7, s6\ns_cselect_b32 s{S_LD}, 1, 0")
    a(f"s_lshl_b32 s6, s{S_P}, 1\ns_sub_u32 s{S_JMAX}, 31, s6")
    a(f"v_lshlrev_b32 v{VL16}, 4, v{L}")
    a(f"v_lshrrev_b32 v4, 4, v{L}\nv_and_b32 v6, 15, v{L}\ns_lshl_b32 s6, s{S_W}, 4\nv_add_u32 v7, s6, v4")
    for i in range(4):
        a(f"v_or_b32 v5, {4*(i>>1)}, v4\nv_lshlrev_b32 v5, 1, v5\nv_xor_b32 v5, v6, v5\nv_lshlrev_b32 v5, 4, v5")
        a(f"v_lshl_add_u32 v{QVW+i}, v7, 13, v5")
        if i: a(f"v_add_u32 v{QVW+i}, {i*(4*8192-1024)}, v{QVW+i}")
    S_WO_, S_MW, S_XO, S_ST = 68, 69, 70, 71
    a(f"s_lshl_b32 s{S_WO_}, s{S_H}, 8\ns_lshl_b32 s{S_MW}, s{S_W}, 12\ns_add_u32 s{S_MW}, s{S_MW}, {LDS_QW}")
    TOG = LDS_QW ^ (LDS_QW + 32768)
    def q_dma():
        a(f"s_mov_b32 m0, s{S_MW}\ns_nop 0")
        for i in range(4):
            a(f"buffer_load_dwordx4 v{QVW+i}, s[{SRD_A}:{SRD_A+3}], s{S_WO_} offen offset:{i*1024} lds"); a.vm.issue("D")
        a(f"s_xor_b32 s{S_MW}, s{S_MW}, {hex(TOG)}\ns_add_u32 s{S_WO_}, s{S_WO_}, {128*8192}")
    XF = S_
    VX1 = 236
    a(f"v_add_u32 v{VX1}, 20480, v{VL16}")
    a(f"s_mul_i32 s{S_XO}, s{S_B}, 40960")
    def rdX(ks):
        for qt in range(2):
            a(f"buffer_load_dwordx4 {v(XF+(ks*2+qt)*4,4)}, v{VL16 if qt==0 else VX1}, s[{SRD_WS}:{SRD_WS+3}], s{S_XO} offen offset:{ks*1024}")
            a.vm.issue(("X", ks))
    a.vm.drain()
    q_dma()
    rdX(0); rdX(1); rdX(2)
    q_dma()
    rdX(3)
    a(f"s_add_u32 s{S_XO}, s{S_XO}, 4096")
    a(f"s_lshl_b32 s6, s{S_W}, 13\nv_add_u32 v{VDMA}, s6, v{VL16}")
    a(f"s_lshl_b32 s{S_KVO}, s{S_H}, 20\ns_add_u32 s{S_KVO}, s{S_KVO}, {WS_KV}")
    a(f"s_lshl_b32 s{S_SLOT}, s{S_W}, 13")
    def kv_dma():
        for hf in range(2):
            a(f"s_add_u32 m0, s{S_SLOT}, {hf*4096}\ns_add_u32 s{S_T}, s{S_KVO}, {hf*4096}")
            for i in range(4):
                a(f"buffer_load_dwordx4 v{VDMA}, s[{SRD_WS}:{SRD_WS+3}], s{S_T} offen offset:{i*1024} lds")
        a(f"s_add_u32 s{S_SLOT}, s{S_SLOT}, 32768\ns_and_b32 s{S_SLOT}, s{S_SLOT}, 0x1ffff\ns_add_u32 s{S_KVO}, s{S_KVO}, 32768")
    a(f"s_cmp_eq_u32 s{S_LD}, 0\ns_cbranch_scc1 L_k2_nold")
    kv_dma(); kv_dma()
    a.label("L_k2_nold")
    a(f"v_and_b32 v2, 15, v{L}\nv_lshrrev_b32 v3, 4, v{L}")
    a(f"v_lshrrev_b32 v4, 2, v2\nv_lshl_add_u32 v5, v3, 3, v4\nv_lshlrev_b32 v5, 8, v5")
    a(f"v_and_b32 v6, 1, v2\nv_lshl_add_u32 v5, v6, 3, v5\nv_add_u32 v5, {LDS_QW}, v5")
    a(f"v_and_b32 v6, 1, v3\nv_lshl_or_b32 v4, v6, 2, v4\nv_lshlrev_b32 v4, 1, v4\nv_bfe_u32 v6, v2, 1, 1")
    for t in range(8):
        a(f"v_add_u32 v7, {2*t}, v6\nv_xor_b32 v7, v7, v4\nv_lshl_add_u32 v{QRW+t}, v7, 4, v5")
    for i in range(64): a(f"v_mov_b32 v{O_+i}, 0")
    def rdW(t, ks):
        for hf in range(2):
            a(f"ds_read_b64_tr_b16 {v(FR+4*t+2*hf,2)}, v{QRW+t} offset:{ks*8192+hf*1024}"); a.lg.issue(("W", t))
    a.stamp(1)
    a("s_waitcnt vmcnt(12)\ns_barrier")
    a.stamp(2)
    a.vm.q = a.vm.q[4:]
    a.lg.drain()
    for t in range(8): rdW(t, 0)
    lg0, vm0 = list(a.lg.q), list(a.vm.q)
    a(f"s_mov_b32 s{S_ST}, 0")
    a.label("L_k2_qloop")
    a(f"s_cmp_ge_u32 s{S_ST}, 4\ns_cselect_b32 s{S_XO}, {hex(WS_SIZE)}, s{S_XO}")
    for ks in range(4):
        for t in range(8):
            if t == 0: a.wait_vm(("X", ks))
            a.wait_lg(("W", t))
            for qt in range(2):
                a.mfma(Oreg(t, qt), FR+4*t, XF+(ks*2+qt)*4)
            if ks < 3: rdW(t, ks+1)
            elif t == 1:
                a.wait_vm("D")
                a("s_waitcnt lgkmcnt(0)\ns_barrier"); a.lg.drain()
                for r in range(8): a(f"v_xor_b32 v{QRW+r}, {hex(TOG)}, v{QRW+r}")
                rdW(0, 0); rdW(1, 0)
                q_dma()
            elif t >= 2: rdW(t, 0)
        rdX(ks)
    a(f"s_add_u32 s{S_XO}, s{S_XO}, 4096\ns_add_u32 s{S_ST}, s{S_ST}, 1\ns_cmp_lt_u32 s{S_ST}, 5\ns_cbranch_scc1 L_k2_qloop")
    assert a.lg.q == lg0 and a.vm.q == vm0, (a.vm.q, vm0)
    a.stamp(3)
    a("s_mov_b32 s6, 0x3e0293ee\ns_nop 7")
    for qt in range(2):
        for s_ in range(4):
            for hf in range(2):
                d = Oreg(2*s_+hf, qt)
                for r in range(4): a(f"v_mul_f32 v{d+r}, s6, v{d+r}")
                a(f"v_cvt_pk_bf16_f32 v{Qreg(qt,s_)+2*hf}, v{d}, v{d+1}\nv_cvt_pk_bf16_f32 v{Qreg(qt,s_)+2*hf+1}, v{d+2}, v{d+3}")
    a("s_waitcnt vmcnt(0) lgkmcnt(0)")
    for i in range(64): a(f"v_mov_b32 v{O_+i}, 0")
    for i in range(16): a(f"v_mov_b32 v{NM+i}, 0")
    for i in range(4): a(f"v_mov_b32 v{L_+i}, 0")
    a(f"v_mov_b32 v{VKA}, v{VL16}\ns_mov_b32 s{S_J}, 0")

    stubs = []
    def rdK(i, hf):
        a(f"ds_read_b128 {v(FR+4*i,4)}, v{VKA} offset:{(hf*8+i)*1024}"); a.lg.issue(("F", i))
    def rdV(i, hf, cur):
        a(f"ds_read_b128 {v(FR+4*i,4)}, v{VKA if cur else VVA} offset:{16384+(hf*8+i)*1024}"); a.lg.issue(("F", i))
    def head(first=False):
        nb = a.newlabel("nobar"); nl = a.newlabel("noload")
        if not first: a(f"s_cmp_gt_u32 s{S_J}, s{S_JMAX}\ns_cbranch_scc1 {nb}")
        a(f"s_waitcnt vmcnt(8)\ns_barrier")
        a(f"s_cmp_eq_u32 s{S_LD}, 0\ns_cbranch_scc1 {nl}")
        a(f"s_add_u32 s{S_T}, s{S_J}, 2\ns_cmp_gt_u32 s{S_T}, s{S_JMAX}\ns_cselect_b32 s{S_KVO}, {hex(WS_SIZE)}, s{S_KVO}")
        kv_dma()
        a.label(nl)
        if not first:
            a.label(nb)
            a(f"v_mov_b32 v{VVA}, v{VKA}\nv_add_u32 v{VKA}, 0x8000, v{VKA}\nv_and_b32 v{VKA}, 0x1ffff, v{VKA}")
    def mask_call():
        a("s_call_b64 s[82:83], L_mask")
    def stage(hf, qk=True, sm=True, pv=True, nxt=True):
        par_qk, par_sm, par_pv = hf, 1-hf, hf
        pairs = []
        if pv: pairs += [("V", i) for i in range(8)]
        if qk: pairs += [("K", i) for i in range(8)]
        ops = sm_ops(par_sm) if sm else []
        per = len(ops) // len(pairs) if sm else 0
        a.wait_lg(("F", 0))
        for n, (kind, i) in enumerate(pairs):
            my = ops[n*per:(n+1)*per]
            for qt in range(2):
                if kind == "V": a.mfma(Oreg(i, qt), FR+4*i, Preg(par_pv, qt))
                else:
                    kt, s_ = i >> 2, i & 3
                    a.mfma(Sreg(par_qk, kt, qt), FR+4*i, Qreg(qt, s_), None if s_ else NMreg(kt, qt))
                if qt == 0:
                    if n + 1 < len(pairs): a.wait_lg(("F", pairs[n+1][1]))
                    for e, ad, cv in my: a(e)
                else:
                    if kind == "V" and qk: rdK(i, hf)
                    elif nxt: rdV(i, 1-hf, cur=(hf == 1))
                    for e, ad, cv in my:
                        a(ad)
                        if cv: a(cv)
        if sm:
            st = a.newlabel("stub"); bk = a.newlabel("back")
            a(f"v_add_f32 v{ET}, v{Lreg(par_sm,0)}, v{Lreg(par_sm,1)}\nv_cmp_nge_f32 vcc, s{S_THR}, v{ET}\ns_cbranch_vccnz {st}")
            a.label(bk)
            stubs.append((st, bk, par_sm))
    S_THR = 72
    a(f"s_mov_b32 s{S_THR}, {hex(THRESH)}")
    FULLQ = [("F", i) for i in range(8)]
    a.stamp(4)
    a.vm.drain()
    head(first=True)
    a.lg.drain()
    for i in range(8): rdK(i, 0)
    a(f"s_cmp_lg_u32 s{S_B}, 0\ns_cbranch_scc1 L_nm0")
    mask_call()
    a.label("L_nm0")
    for i in range(8):
        a.wait_lg(("F", i))
        kt, s_ = i >> 2, i & 3
        for qt in range(2):
            a.mfma(Sreg(0, kt, qt), FR+4*i, Qreg(qt, s_), None if s_ else NMreg(kt, qt))
        rdK(i, 1)
    a("s_nop 7")
    for qt in range(2):
        m = ET + qt
        s0, s1 = Sreg(0, 0, qt), Sreg(0, 1, qt)
        a(f"v_max3_f32 v{m}, v{s0}, v{s0+1}, v{s0+2}\nv_max3_f32 v{m}, v{m}, v{s0+3}, v{s1}\nv_max3_f32 v{m}, v{m}, v{s1+1}, v{s1+2}\nv_max_f32 v{m}, v{m}, v{s1+3}")
        xlane(a, "v_max_f32", m, ET+2)
        for kt in range(2):
            for r in range(4):
                a(f"v_sub_f32 v{Sreg(0,kt,qt)+r}, v{Sreg(0,kt,qt)+r}, v{m}\nv_sub_f32 v{NMreg(kt,qt)+r}, 0, v{m}")
    a(f"s_cmp_lg_u32 s{S_B}, 1\ns_cbranch_scc1 L_nm1")
    mask_call()
    a.label("L_nm1")
    a("s_nop 1")
    stage(1, pv=False)
    assert a.lg.q == FULLQ
    a(f"s_mov_b32 s{S_J}, 1")
    a.stamp(5)
    a(".p2align 6")
    a.label("L_aloop")
    head()
    a(f"s_lshl_b32 s6, s{S_J}, 1\ns_cmp_gt_u32 s6, s{S_B}\ns_cbranch_scc1 L_tail")
    a(f"s_cmp_eq_u32 s6, s{S_B}\ns_cbranch_scc1 L_mask0")
    a.label("L_mask0_back")
    stage(0)
    assert a.lg.q == FULLQ
    a(f"s_add_u32 s{S_J}, s{S_J}, 1\ns_cmp_eq_u32 s6, s{S_B}\ns_cbranch_scc1 L_even_h1")
    a(f"s_add_u32 s6, s6, 1\ns_cmp_eq_u32 s6, s{S_B}\ns_cbranch_scc1 L_mask1")
    a.label("L_mask1_back")
    stage(1)
    assert a.lg.q == FULLQ
    a("s_branch L_aloop")
    a.label("L_mask0"); mask_call(); a("s_branch L_mask0_back")
    a.label("L_mask1"); mask_call(); a("s_branch L_mask1_back")
    a.label("L_even_h1")
    stage(1, qk=False)
    assert a.lg.q == FULLQ
    a("s_branch L_aloop")
    a.label("L_tail")
    a(f"s_add_u32 s{S_J}, s{S_J}, 1\ns_bitcmp1_b32 s{S_B}, 0\ns_cbranch_scc1 L_tail_odd")
    stage(0, qk=False, sm=False, nxt=False)
    a("s_branch L_fin")
    a.label("L_tail_odd")
    a.lg.q = list(FULLQ)
    stage(0, qk=False)
    stage(1, qk=False, sm=False, nxt=False)
    a(f"v_mov_b32 v{Lreg(0,0)}, v{Lreg(1,0)}\nv_mov_b32 v{Lreg(0,1)}, v{Lreg(1,1)}")
    a.label("L_fin")
    a.stamp(6)
    for qt in range(2):
        xlane(a, "v_add_f32", Lreg(0, qt), ET)
        a(f"v_rcp_f32 v{Lreg(0,qt)}, v{Lreg(0,qt)}")
    a(f"s_lshl_b32 s6, s{S_B}, 18\ns_lshl_b32 s7, s{S_H}, 12\ns_add_u32 s6, s6, s7\ns_add_u32 s6, s6, {WS_CTX}\ns_nop 4")
    n = 0
    for qt in range(2):
        for s_ in range(4):
            t = S_ + 4*n; n += 1
            for hf in range(2):
                d = Oreg(2*s_+hf, qt)
                for r in range(4): a(f"v_mul_f32 v{d+r}, v{Lreg(0,qt)}, v{d+r}")
                a(f"v_cvt_pk_bf16_f32 v{t+2*hf}, v{d}, v{d+1}\nv_cvt_pk_bf16_f32 v{t+2*hf+1}, v{d+2}, v{d+3}")
            a(f"buffer_store_dwordx4 {v(t,4)}, v{VL16}, s[{SRD_WS}:{SRD_WS+3}], s6 offen offset:{s_*1024}")
        if qt == 0: a("s_add_u32 s6, s6, 0x20000")
    a.stamp(7)
    a.label("L_idle")
    a(f"s_cmp_gt_u32 s{S_J}, s{S_JMAX}\ns_cbranch_scc1 L_adone")
    head(first=True)
    a(f"s_add_u32 s{S_J}, s{S_J}, 1\ns_branch L_idle")
    for st, bk, par in stubs:
        a.label(st); a(f"s_call_b64 s[80:81], L_rare{par}\ns_branch {bk}")
    a.label("L_mask")
    a(f"v_and_b32 v2, 15, v{L}\nv_lshrrev_b32 v3, 4, v{L}\nv_lshlrev_b32 v3, 2, v3\nv_sub_u32 v2, v2, v3\nv_mov_b32 v3, 0xff800000")
    for r in range(4):
        a(f"v_cmp_gt_i32 vcc, {r}, v2\nv_mov_b32 v{NMreg(1,0)+r}, v3\ns_nop 0")
        a(f"v_cndmask_b32 v{NMreg(0,0)+r}, v{NMreg(0,0)+r}, v3, vcc\nv_cndmask_b32 v{NMreg(1,1)+r}, v{NMreg(1,1)+r}, v3, vcc")
    a("s_nop 1\ns_setpc_b64 s[82:83]")
    for par in range(2):
        a.label(f"L_rare{par}")
        a("s_nop 15")
        for qt in range(2):
            m = ET + 4 + qt
            s0, s1 = Sreg(par, 0, qt), Sreg(par, 1, qt)
            a(f"v_log_f32 v{m}, v{Lreg(1-par,qt)}\ns_nop 0\nv_max_f32 v{m}, 0, v{m}")
            a(f"v_max3_f32 v{m}, v{m}, v{s0}, v{s0+1}\nv_max3_f32 v{m}, v{m}, v{s0+2}, v{s0+3}\nv_max3_f32 v{m}, v{m}, v{s1}, v{s1+1}\nv_max3_f32 v{m}, v{m}, v{s1+2}, v{s1+3}")
            xlane(a, "v_max_f32", m, ET)
            a(f"v_exp_f32 v{ET}, -v{m}")
            for kt in range(2):
                for r in range(4):
                    for reg in (Sreg(0,kt,qt), Sreg(1,kt,qt), NMreg(kt,qt)):
                        a(f"v_sub_f32 v{reg+r}, v{reg+r}, v{m}")
            a(f"v_mul_f32 v{Lreg(1-par,qt)}, v{ET}, v{Lreg(1-par,qt)}")
            for t in range(8):
                for r in range(4): a(f"v_mul_f32 v{Oreg(t,qt)+r}, v{ET}, v{Oreg(t,qt)+r}")
        for e, ad, cv in sm_ops(par):
            a(e); a("s_nop 0"); a(ad)
            if cv: a(cv)
        a("s_nop 1\ns_setpc_b64 s[80:81]")
    a.label("L_adone")
    a.stamp(8)
    gen_moe(a, end)
    a.label(end)
    a.stamp(9)
    if a.prof: a("s_waitcnt vmcnt(0)")
    a.stamp_flush(SRD_WS, WS_PROF)
    a.label("L_k2_exit")
    a("s_endpgm")

M_WG, M_WU, M_WD, M_PART, M_CAND = 0, 40960, 81920, 122880, 139264
def gen_moe(a, end):
    L = V_LANE
    S_E = 60
    a(f"s_sub_u32 s6, s{S_P}, 6\ns_lshl_b32 s6, s6, 5\ns_add_u32 s{S_E}, s6, s{S_H}")
    a(f"s_cmp_lt_u32 s{S_P}, 6\ns_cbranch_scc1 {end}\ns_cmp_ge_u32 s{S_E}, 54\ns_cbranch_scc1 {end}")
    a.srd(SRD_A, P_WG, 640*1728*2)
    a(f"s_cmp_ge_u32 s{S_W}, 4\ns_cselect_b32 s{SRD_A}, s{P_WU}, s{SRD_A}\ns_cselect_b32 s{SRD_A+1}, s{P_WU+1}, s{SRD_A+1}")
    a.srd(SRD_B, P_WD, 1728*640*2)
    a(f"s_mov_b32 s73, {hex(WS_R)}\nv_lshlrev_b32 v2, 4, v0")
    a("s_waitcnt vmcnt(0)\ns_barrier")
    a(f"buffer_load_dwordx4 v[16:19], v2, s[{SRD_WS}:{SRD_WS+3}], s73 offen")
    a(f"v_lshrrev_b32 v3, 2, v{L}\nv_mul_u32_u24 v3, 3456, v3\nv_and_b32 v4, 3, v{L}\nv_lshl_add_u32 v3, v4, 4, v3")
    a(f"s_and_b32 s61, s{S_W}, 3\ns_mul_i32 s62, s61, {160*3456}\ns_lshl_b32 s6, s{S_E}, 6\ns_add_u32 s62, s62, s6")
    a(f"s_mul_i32 s63, s{S_W}, 10240")
    for n in range(10):
        a(f"s_add_u32 m0, s63, {n*1024}\ns_nop 0\nbuffer_load_dwordx4 v3, s[{SRD_A}:{SRD_A+3}], s62 offen lds\ns_add_u32 s62, s62, {16*3456}")
    a(f"s_mul_i32 s62, s{S_E}, 40960\ns_mul_i32 s6, s{S_W}, 5120\ns_add_u32 s62, s62, s6\ns_add_u32 s6, s6, {M_WD}")
    for n in range(5):
        a(f"s_add_u32 m0, s6, {n*1024}\ns_nop 0\nbuffer_load_dwordx4 v{VL16}, s[{SRD_B}:{SRD_B+3}], s62 offen lds\ns_add_u32 s62, s62, 1024")
    a("s_waitcnt vmcnt(15)\nv_mov_b32 v20, 0")
    for rd in range(8):
        a("v_max_u32 v4, v16, v17\nv_max3_u32 v4, v4, v18, v19")
        a.wave_reduce("v_max_u32", 4)
        a(f"v_readlane_b32 s6, v4, 63\ns_nop 1\nv_writelane_b32 v20, s6, {rd}")
        if rd < 7:
            for k in range(4):
                a(f"v_cmp_ne_u32 vcc, s6, v{16+k}\ns_nop 1\nv_cndmask_b32 v{16+k}, 0, v{16+k}, vcc")
    a(f"s_lshl_b32 s6, s{S_W}, 5\ns_add_u32 s6, s6, {M_CAND}\nv_lshl_add_u32 v5, v{L}, 2, s6")
    a(f"v_cmp_gt_u32 vcc, 8, v{L}\ns_and_saveexec_b64 s[74:75], vcc\nds_write_b32 v5, v20\ns_mov_b64 exec, s[74:75]")
    a(f"s_waitcnt lgkmcnt(0)\ns_barrier\nv_lshlrev_b32 v5, 2, v{L}\nv_add_u32 v5, {M_CAND}, v5\nds_read_b32 v16, v5\ns_waitcnt lgkmcnt(0)")
    a(f"v_and_b32 v6, 7, v{L}\nv_mov_b32 v20, 0")
    for rd in range(8):
        a("v_mov_b32 v4, v16")
        a.wave_reduce("v_max_u32", 4)
        a(f"v_readlane_b32 s6, v4, 63\nv_cmp_eq_u32 vcc, {rd}, v6\ns_nop 1\nv_mov_b32 v5, s6\nv_cndmask_b32 v20, v20, v5, vcc")
        if rd < 7:
            a(f"v_cmp_ne_u32 vcc, s6, v16\ns_nop 1\nv_cndmask_b32 v16, 0, v16, vcc")
    a(f"s_mov_b32 s73, {hex(WS_IDX)}\nv_lshlrev_b32 v5, 2, v6\nbuffer_store_dword v20, v5, s[{SRD_WS}:{SRD_WS+3}], s73 offen")
    a("v_and_b32 v4, 0x7ff, v20\nv_sub_u32 v4, 0x7ff, v4")
    a(f"v_lshrrev_b32 v5, 4, v4\nv_mul_u32_u24 v5, 20480, v5\nv_and_b32 v4, 15, v4\nv_lshl_add_u32 v5, v4, 4, v5")
    a(f"v_lshrrev_b32 v7, 4, v{L}\nv_lshl_add_u32 v5, v7, 8, v5\ns_mul_i32 s62, s61, 5120")
    for k in range(5):
        if k == 4: a("s_add_u32 s62, s62, 4096")
        a(f"buffer_load_dwordx4 {v(24+4*k,4)}, v5, s[{SRD_WS}:{SRD_WS+3}], s62 offen offset:{(k&3)*1024}")
    a(f"v_and_b32 v2, 15, v{L}\nv_lshrrev_b32 v3, 2, v2\nv_lshl_add_u32 v8, v7, 3, v3\nv_lshlrev_b32 v8, 6, v8\nv_and_b32 v2, 3, v2\nv_lshl_add_u32 v8, v2, 3, v8\nv_add_u32 v8, s63, v8")
    a(f"v_lshl_add_u32 v9, v7, 2, v3\nv_mul_u32_u24 v9, 1280, v9\nv_lshl_add_u32 v9, v2, 3, v9\ns_mul_i32 s6, s{S_W}, 160\ns_add_u32 s6, s6, {M_WD}\nv_add_u32 v9, s6, v9")
    a("s_waitcnt vmcnt(0)")
    for k in range(5):
        for ft in range(2):
            d = 48 + (k*2+ft)*4
            a(f"ds_read_b64_tr_b16 {v(d,2)}, v8 offset:{k*2048+ft*32}\nds_read_b64_tr_b16 {v(d+2,2)}, v8 offset:{k*2048+ft*32+256}")
        if k == 2: a("s_waitcnt lgkmcnt(0)")
    a("s_waitcnt lgkmcnt(0)")
    for k in range(5):
        for ft in range(2):
            a.mfma(88+4*ft, 48+(k*2+ft)*4, 24+4*k, "0" if k == 0 else None)
    a(f"s_lshl_b32 s6, s{S_W}, 11\ns_add_u32 s6, s6, {M_PART}\nv_add_u32 v10, s6, v{VL16}\ns_nop 7")
    a("ds_write_b128 v10, v[88:91]\nds_write_b128 v10, v[92:95] offset:1024")
    a(f"s_waitcnt lgkmcnt(0)\ns_barrier\nv_add_u32 v10, {M_PART}, v{VL16}")
    for w in range(8):
        for ft in range(2):
            a(f"ds_read_b128 {v(96+(w*2+ft)*4,4)}, v10 offset:{w*2048+ft*1024}")
        if w == 3: a("s_waitcnt lgkmcnt(0)")
    for m in range(5):
        a(f"ds_read_b64_tr_b16 {v(48+4*m,2)}, v9 offset:{m*32}\nds_read_b64_tr_b16 {v(50+4*m,2)}, v9 offset:{m*32+16*1280}")
        if m == 2: a("s_waitcnt lgkmcnt(6)")
    a("s_mov_b32 s6, 0xbfb8aa3b")
    for i in range(8):
        g0, u0 = 96 + i, 128 + i
        a(f"v_add_f32 v{g0}, v{g0}, v{g0+8}\nv_add_f32 v2, v{g0+16}, v{g0+24}\nv_add_f32 v{g0}, v{g0}, v2")
        a(f"v_add_f32 v{u0}, v{u0}, v{u0+8}\nv_add_f32 v2, v{u0+16}, v{u0+24}\nv_add_f32 v{u0}, v{u0}, v2")
        bf16_round(a, g0); bf16_round(a, u0)
        a(f"v_mul_f32 v2, s6, v{g0}\nv_exp_f32 v2, v2\ns_nop 0\nv_add_f32 v2, 1.0, v2\nv_rcp_f32 v2, v2\ns_nop 0\nv_mul_f32 v{g0}, v{g0}, v2")
        bf16_round(a, g0)
        a(f"v_mul_f32 v{g0}, v{g0}, v{u0}")
    for i in range(4):
        a(f"v_cvt_pk_bf16_f32 v{24+i}, v{96+2*i}, v{97+2*i}")
    a("s_waitcnt lgkmcnt(0)\ns_nop 1")
    for m in range(5):
        a.mfma(68+4*m, 48+4*m, 24, "0")
    a(f"v_and_b32 v2, 15, v{L}\nv_mul_u32_u24 v3, 2560, v2\nv_lshl_add_u32 v3, v7, 4, v3")
    a(f"s_mul_i32 s6, s{S_E}, 20480\ns_mul_i32 s7, s{S_W}, 320\ns_add_u32 s6, s6, s7\ns_add_u32 s6, s6, {WS_YP}")
    a("v_cmp_gt_u32 vcc, 8, v2\ns_and_saveexec_b64 s[74:75], vcc\ns_nop 7")
    for m in range(5):
        a(f"buffer_store_dwordx4 {v(68+4*m,4)}, v3, s[{SRD_WS}:{SRD_WS+3}], s6 offen offset:{m*64}")

def gen_k3(a):
    end = "L_k3_end"
    prologue(a, "L_k3_exit")
    a.stamp_init(8, 2); a.stamp(0)
    L = V_LANE
    NB = 4
    ACC, BUF = 176, 32
    VC, VW4 = 10, 14
    XR, XNR = 16, 22
    LDS_Y = 81920
    a.srd(SRD_A, P_X, 2048*640*2)
    a.srd(SRD_B, P_OUT, 2048*640*2)
    a(f"v_lshlrev_b32 v{VC}, 4, v{L}")
    for i in range(1, 4): a(f"v_add_u32 v{VC+i}, {i*131072}, v{VC}")
    a(f"v_add_u32 v{VW4}, 4096, v{VC}")
    S_CO, S_WO_, S_IT = 60, 61, 62
    a(f"s_lshl_b32 s{S_CO}, s{S_H}, 19\ns_lshl_b32 s6, s{S_W}, 14\ns_add_u32 s{S_CO}, s{S_CO}, s6\ns_add_u32 s{S_CO}, s{S_CO}, {WS_CTX}")
    a(f"s_mul_i32 s{S_WO_}, s{S_W}, {16*40960}\ns_mul_i32 s6, s{S_P}, 5120\ns_add_u32 s{S_WO_}, s{S_WO_}, s6\ns_add_u32 s{S_WO_}, s{S_WO_}, {WS_WOF}")
    a(f"s_add_u32 s6, s{P_WS}, {hex(WS_IDX)}\ns_addc_u32 s7, s{P_WS+1}, 0\ns_load_dwordx8 s[84:91], s[6:7], 0")
    def ld(b):
        for m in range(5):
            a(f"buffer_load_dwordx4 {v(BUF+36*b+16+4*m,4)}, v{VC if m<4 else VW4}, s[{SRD_WS}:{SRD_WS+3}], s{S_WO_} offen offset:{(m&3)*1024}"); a.vm.issue(("B", b))
        a(f"s_add_u32 s{S_WO_}, s{S_WO_}, 40960")
        for i in range(4):
            a(f"buffer_load_dwordx4 {v(BUF+36*b+4*i,4)}, v{VC+i}, s[{SRD_WS}:{SRD_WS+3}], s{S_CO} offen offset:{b*1024}"); a.vm.issue(("B", b))
    a("s_waitcnt lgkmcnt(0)")
    a(f"s_mov_b32 s63, s84")
    for t in range(1, 8): a(f"s_cmp_eq_u32 s{S_W}, {t}\ns_cselect_b32 s63, s{84+t}, s63")
    a(f"s_and_b32 s6, s63, 0x7ff\ns_sub_u32 s6, 0x7ff, s6\ns_lshr_b32 s6, s6, 6\ns_cmp_lg_u32 s6, s{S_H}\ns_cbranch_scc1 L_k3_noy")
    a(f"v_mul_u32_u24 v2, 13, v{L}\nv_lshrrev_b32 v2, 8, v2\nv_mul_u32_u24 v3, 20, v2\nv_sub_u32 v3, v{L}, v3")
    a(f"s_mov_b32 s6, {18*20480}\nv_mul_lo_u32 v4, v2, s6\nv_lshl_add_u32 v4, v3, 4, v4")
    a(f"v_cmp_lt_u32 vcc, 59, v{L}\nv_mov_b32 v5, {hex(WS_SIZE)}\ns_nop 0\nv_cndmask_b32 v4, v4, v5, vcc")
    a(f"s_mul_i32 s6, s{S_W}, 2560\ns_mul_i32 s7, s{S_P}, 320\ns_add_u32 s6, s6, s7\ns_add_u32 s6, s6, {WS_YP}")
    for e in range(18):
        a(f"buffer_load_dwordx4 {v(ACC+4*e,4)}, v4, s[{SRD_WS}:{SRD_WS+3}], s6 offen\ns_add_u32 s6, s6, 20480")
    a("s_waitcnt vmcnt(0)")
    for e in range(1, 18):
        for r in range(4): a(f"v_add_f32 v{ACC+r}, v{ACC+r}, v{ACC+4*e+r}")
    a(f"s_lshl_b32 s6, s{S_W}, 10\ns_add_u32 s6, s6, {LDS_Y}\nv_add_u32 v4, s6, v{VC}\nds_write_b128 v4, {v(ACC,4)}\ns_waitcnt lgkmcnt(0)")
    a.label("L_k3_noy")
    a.stamp(1)
    a.vm.drain()
    a(f"v_and_b32 v2, 15, v{L}\nv_lshrrev_b32 v3, 4, v{L}")
    a(f"s_and_b32 s6, s{S_W}, 3\ns_lshl_b32 s7, s{S_H}, 2\ns_add_u32 s64, s6, s7")
    a(f"s_lshl_b32 s6, s64, 4\nv_add_u32 v28, s6, v2")
    a(f"s_lshr_b32 s6, s{S_W}, 2\ns_mul_i32 s7, s{S_P}, 5\ns_add_u32 s65, s6, s7")
    a(f"v_mul_u32_u24 v29, 1280, v28\nv_lshl_add_u32 v29, v3, 3, v29\ns_lshl_b32 s66, s65, 5")
    a(f"v_lshrrev_b32 v4, 1, v3\nv_lshlrev_b32 v4, 8, v4\nv_lshl_add_u32 v4, v2, 4, v4\nv_and_b32 v5, 1, v3\nv_lshl_add_u32 v4, v5, 3, v4")
    a(f"s_mul_i32 s6, s64, 20480\ns_lshl_b32 s7, s65, 9\ns_add_u32 s6, s6, s7")
    for n in range(3):
        a(f"buffer_load_dwordx2 {v(XR+2*n,2)}, v29, s[{SRD_A}:{SRD_A+3}], s66 offen offset:{n*64}")
        a(f"buffer_load_dwordx2 {v(XNR+2*n,2)}, v4, s[{SRD_WS}:{SRD_WS+3}], s6 offen offset:{n*1024}")
    for b in range(NB): ld(b)
    for i in range(80): a(f"v_mov_b32 v{ACC+i}, 0")
    vm0 = list(a.vm.q)
    a(f"s_mov_b32 s{S_IT}, 0")
    a.stamp(2)
    a.label("L_k3_loop")
    a(f"s_add_u32 s{S_CO}, s{S_CO}, {NB*1024}\ns_cmp_ge_u32 s{S_IT}, {16//NB-1}\ns_cselect_b32 s{S_CO}, {hex(WS_SIZE)}, s{S_CO}\ns_cselect_b32 s{S_WO_}, {hex(WS_SIZE)}, s{S_WO_}")
    for b in range(NB):
        a.wait_vm(("B", b))
        for m in range(5):
            for i in range(4):
                a.mfma(ACC+(m*4+i)*4, BUF+36*b+16+4*m, BUF+36*b+4*i)
        ld(b)
    a(f"s_add_u32 s{S_IT}, s{S_IT}, 1\ns_cmp_lt_u32 s{S_IT}, {16//NB}\ns_cbranch_scc1 L_k3_loop")
    assert a.vm.q == vm0
    a.stamp(3)
    a(f"s_and_b32 s6, s{S_W}, 3\ns_mul_i32 s6, s6, 20480\nv_add_u32 v2, s6, v{VC}\ns_nop 7")
    a(f"s_cmp_lt_u32 s{S_W}, 4\ns_cbranch_scc1 L_k3_r1")
    for T in range(20): a(f"ds_write_b128 v2, {v(ACC+4*T,4)} offset:{T*1024}")
    a("s_waitcnt lgkmcnt(0)\ns_barrier\ns_branch L_k3_r2")
    a.label("L_k3_r1")
    a("s_waitcnt vmcnt(0)\ns_barrier")
    a.lg.drain()
    for T in range(20):
        a(f"ds_read_b128 {v(BUF+4*T,4)}, v2 offset:{T*1024}"); a.lg.issue(T)
        if T == 11:
            for T2 in range(4):
                a.wait_lg(T2)
                for r in range(4): a(f"v_add_f32 v{ACC+4*T2+r}, v{ACC+4*T2+r}, v{BUF+4*T2+r}")
    for T2 in range(4, 20):
        a.wait_lg(T2)
        for r in range(4): a(f"v_add_f32 v{ACC+4*T2+r}, v{ACC+4*T2+r}, v{BUF+4*T2+r}")
    for T in range(20): a(f"ds_write_b128 v2, {v(ACC+4*T,4)} offset:{T*1024}")
    a("s_waitcnt lgkmcnt(0)")
    a.label("L_k3_r2")
    a("s_waitcnt vmcnt(0)\ns_barrier")
    a.stamp(4)
    a(f"s_lshl_b32 s6, s{S_W}, 10\nv_add_u32 v2, s6, v{VC}")
    a("v_sub_u32 v3, 0x7ff, v28\nv_mov_b32 v30, -1\nv_mov_b32 v31, 0")
    for t in range(8):
        a(f"s_and_b32 s6, s{84+t}, 0x7ff\nv_cmp_eq_u32 vcc, s6, v3\nv_mov_b32 v4, {t}\nv_mov_b32 v5, s{84+t}\nv_cndmask_b32 v30, v30, v4, vcc\nv_cndmask_b32 v31, v31, v5, vcc")
    a("v_cmp_ne_u32 s[74:75], -1, v30")
    a("v_lshrrev_b32 v31, 11, v31\nv_bfe_i32 v4, v31, 15, 1\nv_not_b32 v4, v4\nv_and_b32 v4, 0x7fff, v4\nv_or_b32 v4, 0x8000, v4\nv_xor_b32 v31, v31, v4\nv_lshlrev_b32 v31, 16, v31")
    a("v_mul_f32 v31, 0xbfb8aa3b, v31\nv_exp_f32 v31, v31\ns_nop 0\nv_add_f32 v31, 1.0, v31\nv_rcp_f32 v31, v31\ns_nop 0")
    bf16_round(a, 31)
    a(f"v_and_b32 v30, 7, v30\nv_lshlrev_b32 v30, 10, v30\nv_lshrrev_b32 v4, 4, v{L}\nv_lshl_add_u32 v30, v4, 4, v30")
    a(f"s_lshr_b32 s6, s{S_W}, 2\ns_lshl_b32 s6, s6, 6\ns_add_u32 s6, s6, {LDS_Y}\nv_add_u32 v30, s6, v30")
    for n in range(3):
        if n == 2: a(f"s_cmp_ge_u32 s{S_W}, 4\ns_cbranch_scc1 {end}")
        R = BUF
        for k in range(4):
            off = k*20480 + n*8192
            if off > 65535:
                a(f"v_add_u32 v4, {k*20480}, v2\nds_read_b128 {v(R+4*k,4)}, v4 offset:{n*8192}")
            else:
                a(f"ds_read_b128 {v(R+4*k,4)}, v2 offset:{off}")
        for k in range(3):
            a(f"ds_read_b128 {v(R+16+4*k,4)}, v30 offset:{n*128+k*320}")
        a("s_waitcnt lgkmcnt(0)")
        for r in range(4):
            A_, Y = R + r, R + 16 + r
            a(f"v_add_f32 v{A_}, v{A_}, v{A_+4}\nv_add_f32 v4, v{A_+8}, v{A_+12}\nv_add_f32 v{A_}, v{A_}, v4")
            bf16_round(a, A_)
            xr, xnr = XR + 2*n + (r >> 1), XNR + 2*n + (r >> 1)
            if r & 1: a(f"v_and_b32 v4, 0xffff0000, v{xr}\nv_and_b32 v5, 0xffff0000, v{xnr}")
            else: a(f"v_lshlrev_b32 v4, 16, v{xr}\nv_lshlrev_b32 v5, 16, v{xnr}")
            a(f"v_add_f32 v{A_}, v{A_}, v4")
            bf16_round(a, A_)
            a(f"v_add_f32 v{Y}, v{Y}, v{Y+4}\nv_add_f32 v{Y}, v{Y}, v{Y+8}")
            bf16_round(a, Y)
            a(f"v_mul_f32 v{Y}, v{Y}, v31")
            bf16_round(a, Y)
            a(f"v_add_f32 v{Y}, v{Y}, v5")
            bf16_round(a, Y)
            a(f"v_cndmask_b32 v5, v5, v{Y}, s[74:75]\nv_add_f32 v{A_}, v{A_}, v5")
        a(f"v_cvt_pk_bf16_f32 v{6}, v{R}, v{R+1}\nv_cvt_pk_bf16_f32 v{7}, v{R+2}, v{R+3}")
        a(f"buffer_store_dwordx2 v[6:7], v29, s[{SRD_B}:{SRD_B+3}], s66 offen offset:{n*64}\ns_nop 1")
    a.label(end)
    a.stamp(5)
    if a.prof: a("s_waitcnt vmcnt(0)")
    a.stamp_flush(SRD_WS, WS_PROF)
    a.label("L_k3_exit")
    a("s_endpgm")

KERNELS = [("k2_kernel", 163840, gen_k2), ("k3_kernel", 98304, gen_k3)]
```

```python
import sys, os
from asmlib import *

NAME = "parallel_sum__compressed_kv_cla__moe_arch_mod__prompt"
WS_XN = 0x0
WS_R = 0x280000
WS_YP = 0x290000
WS_IDX = 0x3A0000
WS_WOF = 0x400000
WS_KV = 0x1000000
WS_CTX = 0x3000000
WS_PROF = 0x900000
WS_SIZE = 0x4000000
S_W, S_H, S_P = 3, 4, 5
SRD_WS, SRD_A, SRD_B, SRD_C, SRD_D, SRD_E = 8, 12, 16, 20, 24, 28
P_X, P_CKV, P_WQ, P_WUK, P_WUV, P_WO, P_BX, P_WR, P_WG, P_WU, P_WD, P_OUT, P_DBG, P_WS = range(32, 60, 2)
V_LANE = 1

def prologue(a, endlabel):
    a(f"s_cmp_ge_u32 s2, 256\ns_cbranch_scc1 {endlabel}")
    a("s_load_dwordx16 s[32:47], s[0:1], 0\ns_load_dwordx8 s[48:55], s[0:1], 64\ns_load_dwordx4 s[56:59], s[0:1], 96")
    a(f"v_lshrrev_b32 v2, 6, v0\nv_and_b32 v{V_LANE}, 63, v0")
    a(f"v_readfirstlane_b32 s{S_W}, v2")
    a(f"s_and_b32 s6, s2, 7\ns_lshl_b32 s6, s6, 2\ns_lshr_b32 s7, s2, 3\ns_and_b32 s7, s7, 3\ns_add_u32 s{S_H}, s6, s7\ns_lshr_b32 s{S_P}, s2, 5")
    a("s_waitcnt lgkmcnt(0)")
    a.srd(SRD_WS, P_WS, WS_SIZE)

def bf16_round(a, r, tmp=None):
    a(f"v_cvt_pk_bf16_f32 v{r}, v{r}, v{r}")
    a(f"v_lshlrev_b32 v{r}, 16, v{r}")

LDS_LN = 131072
LDS_WOT = 131072 + 10240

def gen_k1(a):
    end = "L_k1_end"
    prologue(a, "L_k1_exit")
    a.stamp_init(52, 0); a.stamp(0)
    a.srd(SRD_A, P_CKV, 2048*512*2)
    a.srd(SRD_B, P_WUK, 512*4096*2)
    a.srd(SRD_C, P_WUV, 512*4096*2)
    a.srd(SRD_D, P_WO, 4096*640*2)
    a.srd(SRD_E, P_X, 2048*640*2)
    L = V_LANE
    a.c("Wo slice -> LDS")
    a(f"s_lshr_b32 s60, s2, 1\ns_mul_i32 s60, s60, {32*1280}\ns_and_b32 s61, s2, 1\ns_mul_i32 s61, s61, 640\ns_add_u32 s60, s60, s61")
    a("s_movk_i32 s62, 1639")
    for n in range(3):
        skip = a.newlabel("wot_skip")
        if n == 2:
            a(f"s_cmp_ge_u32 s{S_W}, 4\ns_cbranch_scc1 {skip}")
        a(f"v_add_u32 v2, {n*512}, v0")
        a(f"v_mul_lo_u32 v3, v2, s62\nv_lshrrev_b32 v3, 16, v3")
        a(f"v_mul_u32_u24 v4, 40, v3\nv_sub_u32 v4, v2, v4")
        a(f"v_mul_u32_u24 v3, 1280, v3\nv_lshl_add_u32 v3, v4, 4, v3")
        a(f"s_lshl_b32 s63, s{S_W}, 10\ns_add_u32 m0, s63, {LDS_WOT + n*8192}")
        a(f"s_nop 0\nbuffer_load_dwordx4 v3, s[{SRD_D}:{SRD_D+3}], s60 offen lds")
        if n == 2: a.label(skip)
    a.c("LN loads: row = 8b+w")
    a(f"s_lshl_b32 s64, s2, 3\ns_add_u32 s64, s64, s{S_W}")
    a(f"s_mul_i32 s65, s64, 1280")
    a(f"v_lshlrev_b32 v2, 2, v{L}")
    for j in range(5):
        a(f"buffer_load_dword v{16+j}, v2, s[{SRD_E}:{SRD_E+3}], s65 offen offset:{j*256}")
    a.srd(SRD_D, P_WR, 1280)
    for j in range(5):
        a(f"buffer_load_dword v{21+j}, v2, s[{SRD_D}:{SRD_D+3}], 0 offen offset:{j*256}")
    VC, VW = 40, 44
    RC, RW = 46, 48
    CF, WF, ACC = 64, 96, 128
    a.c("KV DMA offsets")
    a(f"v_lshrrev_b32 v2, 3, v{L}\nv_and_b32 v3, 7, v{L}\nv_lshrrev_b32 v4, 4, v{L}")
    a(f"s_lshl_b32 s6, s{S_W}, 5")
    for i in range(4):
        a(f"v_add_u32 v5, {4*(i&1)}, v4\nv_xor_b32 v5, v3, v5\nv_lshlrev_b32 v5, 4, v5")
        a(f"s_add_u32 s7, s6, {8*i}\nv_add_u32 v6, s7, v2\nv_lshl_add_u32 v{VC+i}, v6, 10, v5")
        if i: a(f"v_subrev_u32 v{VC+i}, {i*1024}, v{VC+i}")
    a(f"s_and_b32 s7, s{S_W}, 1\ns_lshl_b32 s7, s7, 2\nv_or_b32 v5, s7, v4\nv_lshlrev_b32 v5, 1, v5\nv_and_b32 v6, 15, v{L}\nv_xor_b32 v5, v6, v5\nv_lshlrev_b32 v5, 4, v5")
    a(f"s_lshl_b32 s6, s{S_W}, 3\nv_add_u32 v6, s6, v4\nv_lshl_add_u32 v{VW}, v6, 13, v5")
    a(f"v_add_u32 v{VW+1}, {4*8192-1024}, v{VW}")
    S_CO, S_WO_, S_MC, S_MW, S_ST = 66, 67, 68, 69, 70
    a(f"s_lshl_b32 s{S_CO}, s{S_P}, 18")
    a(f"s_lshl_b32 s{S_WO_}, s{S_H}, 8")
    a(f"s_lshl_b32 s{S_MC}, s{S_W}, 12")
    a(f"s_lshl_b32 s{S_MW}, s{S_W}, 11\ns_add_u32 s{S_MW}, s{S_MW}, 65536")
    def kv_dma():
        a(f"s_mov_b32 m0, s{S_MC}\ns_nop 0")
        for i in range(4):
            a(f"buffer_load_dwordx4 v{VC+i}, s[{SRD_A}:{SRD_A+3}], s{S_CO} offen offset:{i*1024} lds")
        a(f"s_mov_b32 m0, s{S_MW}\ns_add_u32 s{S_CO}, s{S_CO}, 128")
        for i in range(2):
            a(f"buffer_load_dwordx4 v{VW+i}, s[{SRD_B}:{SRD_B+3}], s{S_WO_} offen offset:{i*1024} lds")
        a(f"s_add_u32 m0, s{S_MW}, 16384\ns_xor_b32 s{S_MC}, s{S_MC}, 0x8000")
        for i in range(2):
            a(f"buffer_load_dwordx4 v{VW+i}, s[{SRD_C}:{SRD_C+3}], s{S_WO_} offen offset:{i*1024} lds")
        a(f"s_xor_b32 s{S_MW}, s{S_MW}, 0x8000\ns_add_u32 s{S_WO_}, s{S_WO_}, {64*8192}")
    kv_dma(); kv_dma()
    a.c("frag read addresses")
    a(f"v_and_b32 v2, 15, v{L}\nv_lshrrev_b32 v3, 4, v{L}")
    a(f"s_and_b32 s6, s{S_W}, 1\ns_lshl_b32 s6, s6, 7\nv_add_u32 v4, s6, v2\nv_lshlrev_b32 v4, 7, v4")
    a(f"v_lshrrev_b32 v5, 1, v2")
    for sp in range(2):
        a(f"v_add_u32 v6, {4*sp}, v3\nv_xor_b32 v6, v6, v5\nv_lshl_add_u32 v{RC+sp}, v6, 4, v4")
    a(f"v_lshrrev_b32 v4, 2, v2\nv_lshl_add_u32 v5, v3, 3, v4\nv_lshlrev_b32 v5, 8, v5")
    a(f"v_and_b32 v6, 1, v2\nv_lshl_add_u32 v5, v6, 3, v5")
    a(f"v_and_b32 v6, 1, v3\nv_lshl_or_b32 v4, v6, 2, v4\nv_lshlrev_b32 v4, 1, v4")
    a(f"v_bfe_u32 v6, v2, 1, 1")
    a(f"s_lshr_b32 s6, s{S_W}, 2\ns_lshl_b32 s6, s6, 14\ns_add_u32 s6, s6, 65536\nv_add_u32 v5, s6, v5")
    a(f"s_lshr_b32 s7, s{S_W}, 1\ns_and_b32 s7, s7, 1\ns_lshl_b32 s7, s7, 3")
    for j in range(4):
        a(f"s_add_u32 s6, s7, {2*j}\nv_add_u32 v7, s6, v6\nv_xor_b32 v7, v7, v4\nv_lshl_add_u32 v{RW+j}, v7, 4, v5")
    for i in range(128):
        a(f"v_mov_b32 v{ACC+i}, 0")
    a.c("LayerNorm")
    a.stamp(1)
    a("s_waitcnt vmcnt(16)")
    a.stamp(2)
    X = 26
    for j in range(5):
        a(f"v_lshlrev_b32 v{X+2*j}, 16, v{16+j}\nv_and_b32 v{X+2*j+1}, 0xffff0000, v{16+j}")
    a(f"v_add_f32 v2, v{X}, v{X+1}")
    for j in range(2, 10): a(f"v_add_f32 v2, v2, v{X+j}")
    a.wave_reduce("v_add_f32", 2)
    a("v_readlane_b32 s6, v2, 63\ns_mov_b32 s7, 0x3acccccd")
    a("s_nop 1\nv_mov_b32 v3, s6\nv_mul_f32 v3, s7, v3")
    a(f"v_sub_f32 v4, v{X}, v3\nv_mul_f32 v2, v4, v4")
    for j in range(1, 10): a(f"v_sub_f32 v4, v{X+j}, v3\nv_fmac_f32 v2, v4, v4")
    a.wave_reduce("v_add_f32", 2)
    a("v_readlane_b32 s6, v2, 63\ns_nop 1\nv_mov_b32 v4, s6\nv_mul_f32 v4, s7, v4")
    bf16_round(a, 3); bf16_round(a, 4)
    a("v_add_f32 v4, 0x3727c5ac, v4")
    bf16_round(a, 4)
    a("v_sqrt_f32 v4, v4\ns_nop 0")
    bf16_round(a, 4)
    a("v_rcp_f32 v5, v4\ns_nop 0")
    a("v_fma_f32 v6, -v4, v5, 1.0\nv_fmac_f32 v5, v6, v5")
    for j in range(5):
        x0, x1 = X+2*j, X+2*j+1
        a(f"v_sub_f32 v{x0}, v{x0}, v3\nv_sub_f32 v{x1}, v{x1}, v3\nv_cvt_pk_bf16_f32 v6, v{x0}, v{x1}")
        a(f"v_lshlrev_b32 v{x0}, 16, v6\nv_and_b32 v{x1}, 0xffff0000, v6")
        a(f"v_mul_f32 v6, v{x0}, v5\nv_mul_f32 v7, v{x1}, v5")
        a(f"v_fma_f32 v{x0}, -v4, v6, v{x0}\nv_fma_f32 v{x1}, -v4, v7, v{x1}")
        a(f"v_fmac_f32 v6, v{x0}, v5\nv_fmac_f32 v7, v{x1}, v5")
        a(f"v_cvt_pk_bf16_f32 v{16+j}, v6, v7")
    a(f"s_mul_i32 s6, s{S_W}, 1280\ns_add_u32 s6, s6, {LDS_LN}\nv_lshl_add_u32 v8, v{L}, 2, s6")
    for j in range(5):
        a(f"ds_write_b32 v8, v{16+j} offset:{j*256}")
    a("v_mov_b32 v2, 0")
    for j in range(5):
        a(f"v_lshlrev_b32 v4, 16, v{16+j}\nv_lshlrev_b32 v5, 16, v{21+j}\nv_fmac_f32 v2, v4, v5")
        a(f"v_and_b32 v4, 0xffff0000, v{16+j}\nv_and_b32 v5, 0xffff0000, v{21+j}\nv_fmac_f32 v2, v4, v5")
    a.wave_reduce("v_add_f32", 2)
    a("v_cvt_pk_bf16_f32 v2, v2, v2\nv_and_b32 v2, 0xffff, v2")
    a("v_bfe_i32 v3, v2, 15, 1\nv_and_b32 v3, 0x7fff, v3\nv_or_b32 v3, 0x8000, v3\nv_xor_b32 v2, v2, v3")
    a("s_sub_u32 s6, 2047, s64\nv_lshlrev_b32 v2, 11, v2\nv_or_b32 v2, s6, v2")
    a(f"s_lshl_b32 s6, s64, 2\ns_add_u32 s6, s6, {WS_R}")
    a(f"v_mov_b32 v3, 0\nv_cmp_eq_u32 vcc, 63, v{L}\ns_and_saveexec_b64 s[72:73], vcc")
    a("s_waitcnt vmcnt(8)")
    a(f"buffer_store_dword v2, v3, s[{SRD_WS}:{SRD_WS+3}], s6 offen")
    a("s_mov_b64 exec, s[72:73]")
    a.stamp(3)
    a("s_waitcnt lgkmcnt(0)\ns_barrier")
    a.stamp(4)
    a.c("xn -> ws (fragment order)")
    a(f"s_lshr_b32 s6, s2, 1\ns_mul_i32 s6, s6, 20480\ns_and_b32 s7, s2, 1\ns_lshl_b32 s7, s7, 7\ns_add_u32 s6, s6, s7")
    for n in range(2):
        skip = a.newlabel("xn_skip")
        if n == 1: a(f"s_cmp_ge_u32 s{S_W}, 2\ns_cbranch_scc1 {skip}")
        a(f"v_add_u32 v2, {512*n}, v0\nv_lshrrev_b32 v3, 3, v2\nv_and_b32 v4, 7, v2")
        a(f"v_mul_u32_u24 v5, 1280, v4\nv_lshl_add_u32 v5, v3, 4, v5\nv_add_u32 v5, {LDS_LN}, v5")
        a(f"ds_read_b128 v[8:11], v5")
        a(f"v_lshlrev_b32 v5, 8, v3\nv_lshl_add_u32 v5, v4, 4, v5")
        a(f"s_waitcnt lgkmcnt(0)\nbuffer_store_dwordx4 v[8:11], v5, s[{SRD_WS}:{SRD_WS+3}], s6 offen")
        if n == 1: a.label(skip)
    a.c("Wo fragments -> ws")
    a(f"v_and_b32 v2, 15, v{L}\nv_lshrrev_b32 v3, 4, v{L}\nv_lshrrev_b32 v4, 2, v2\nv_lshl_add_u32 v4, v3, 2, v4\nv_mul_u32_u24 v4, 640, v4")
    a(f"v_and_b32 v2, 3, v2\nv_lshl_add_u32 v4, v2, 3, v4\ns_lshl_b32 s6, s{S_W}, 5\ns_add_u32 s6, s6, {LDS_WOT}\nv_add_u32 v4, s6, v4")
    a(f"s_mul_i32 s6, s2, 20480\ns_lshl_b32 s7, s{S_W}, 10\ns_add_u32 s6, s6, s7\ns_add_u32 s6, s6, {WS_WOF}\nv_lshlrev_b32 v5, 4, v{L}")
    for n in range(3):
        skip = a.newlabel("wof_skip")
        if n == 2: a(f"s_cmp_ge_u32 s{S_W}, 4\ns_cbranch_scc1 {skip}")
        d = 12 + 4*n
        a(f"ds_read_b64_tr_b16 v[{d}:{d+1}], v4 offset:{n*256}\nds_read_b64_tr_b16 v[{d+2}:{d+3}], v4 offset:{n*256+10240}")
        a(f"s_waitcnt lgkmcnt(0)\nbuffer_store_dwordx4 v[{d}:{d+3}], v5, s[{SRD_WS}:{SRD_WS+3}], s6 offen")
        a(f"s_add_u32 s6, s6, 8192")
        if n == 2: a.label(skip)
    def rdC(i, sp):
        a(f"ds_read_b128 {v(CF+4*i,4)}, v{RC+sp} offset:{i*2048}"); a.lg.issue(("C", i))
    def rdW(par, j, half, sp):
        r = WF + 16*par + 4*j + 2*half
        a(f"ds_read_b64_tr_b16 {v(r,2)}, v{RW+j} offset:{sp*8192 + half*1024}"); a.lg.issue(("W", par, j, half))
    def first_reads():
        rdC(0, 0); rdC(1, 0)
        for j in range(4):
            rdW(0, j, 0, 0); rdW(0, j, 1, 0)
        for i in range(2, 8): rdC(i, 0)
    def body(isK, lab):
        def mm(i, j, par):
            d = ACC + (i*4+j)*4
            a.wait_lg([("C", i), ("W", par, j, 0), ("W", par, j, 1)])
            if isK: a.mfma(d, WF+16*par+4*j, CF+4*i)
            else: a.mfma(d, CF+4*i, WF+16*par+4*j)
        a.label(lab)
        wq = [(j, hf) for j in range(4) for hf in range(2)]
        for i in range(8):
            for j in range(4):
                mm(i, j, 0)
                if i < 2:
                    jj, hf = wq[i*4+j]; rdW(1, jj, hf, 1)
            rdC(i, 1)
        for i in range(8):
            for j in range(4):
                mm(i, j, 1)
            if i == 1:
                a("s_waitcnt vmcnt(0) lgkmcnt(0)\ns_barrier"); a.lg.drain()
                for r in (RC, RC+1, RW, RW+1, RW+2, RW+3): a(f"v_xor_b32 v{r}, 0x8000, v{r}")
                rdC(0, 0); rdC(1, 0)
                for j in range(4):
                    rdW(0, j, 0, 0); rdW(0, j, 1, 0)
                skip = a.newlabel("dma_skip")
                a(f"s_cmp_ge_u32 s{S_ST}, 6\ns_cbranch_scc1 {skip}")
                kv_dma()
                a.label(skip)
            elif i >= 2:
                rdC(i, 0)
        a(f"s_add_u32 s{S_ST}, s{S_ST}, 1\ns_cmp_lt_u32 s{S_ST}, 8\ns_cbranch_scc1 {lab}")
    a(f"s_mov_b32 s{S_ST}, 0")
    a.stamp(5)
    a.lg.drain()
    first_reads()
    q0 = list(a.lg.q)
    a(f"s_lshl_b32 s6, s{S_H}, 20\ns_lshl_b32 s7, s{S_P}, 17\ns_add_u32 s6, s6, s7\ns_and_b32 s7, s{S_W}, 1\ns_lshl_b32 s7, s7, 16\ns_add_u32 s6, s6, s7\ns_add_u32 s71, s6, {WS_KV}")
    a(f"v_lshlrev_b32 v2, 4, v{L}")
    a(f"s_cmp_ge_u32 s{S_W}, 4\ns_cbranch_scc1 L_k1_v")
    body(True, "L_k1_kloop")
    assert a.lg.q == q0, (a.lg.q, q0)
    a.c("K epilogue")
    a.stamp(6)
    a(f"s_lshr_b32 s7, s{S_W}, 1\ns_and_b32 s7, s7, 1\ns_lshl_b32 s7, s7, 11\ns_add_u32 s71, s71, s7")
    a("s_waitcnt lgkmcnt(0)\ns_nop 7")
    n = 0
    for i in range(8):
        for jj in range(2):
            t = 64 + 4*(n % 8); n += 1
            d0 = ACC + (i*4+2*jj)*4; d1 = d0 + 4
            a(f"v_cvt_pk_bf16_f32 v{t}, v{d0}, v{d0+1}\nv_cvt_pk_bf16_f32 v{t+1}, v{d0+2}, v{d0+3}")
            a(f"v_cvt_pk_bf16_f32 v{t+2}, v{d1}, v{d1+1}\nv_cvt_pk_bf16_f32 v{t+3}, v{d1+2}, v{d1+3}")
            if jj == 0:
                a(f"s_add_u32 s6, s71, {(i>>2)*32768 + (i&3)*4096}")
            a(f"buffer_store_dwordx4 {v(t,4)}, v2, s[{SRD_WS}:{SRD_WS+3}], s6 offen offset:{jj*1024}")
    a(f"s_branch {end}")
    a.label("L_k1_v")
    a.lg.q = list(q0)
    body(False, "L_k1_vloop")
    a.c("V epilogue")
    a.stamp(6)
    a(f"s_lshr_b32 s7, s{S_W}, 1\ns_and_b32 s7, s7, 1\ns_lshl_b32 s7, s7, 12\ns_add_u32 s71, s71, s7\ns_add_u32 s71, s71, 16384")
    a("s_waitcnt lgkmcnt(0)\ns_nop 7")
    n = 0
    for ii in range(4):
        for j in range(4):
            t = 64 + 4*(n % 8); n += 1
            d0 = ACC + (2*ii*4+j)*4; d1 = d0 + 16
            a(f"v_cvt_pk_bf16_f32 v{t}, v{d0}, v{d0+1}\nv_cvt_pk_bf16_f32 v{t+1}, v{d0+2}, v{d0+3}")
            a(f"v_cvt_pk_bf16_f32 v{t+2}, v{d1}, v{d1+1}\nv_cvt_pk_bf16_f32 v{t+3}, v{d1+2}, v{d1+3}")
            if j == 0:
                a(f"s_add_u32 s6, s71, {(ii>>1)*32768 + (ii&1)*8192}")
            a(f"buffer_store_dwordx4 {v(t,4)}, v2, s[{SRD_WS}:{SRD_WS+3}], s6 offen offset:{j*1024}")
    a.label(end)
    a.stamp(7)
    if a.prof: a("s_waitcnt vmcnt(0)")
    a.stamp_flush(SRD_WS, WS_PROF)
    a.label("L_k1_exit")
    a("s_endpgm")

HEADER = open("parallel_sum__compressed_kv_cla__moe_arch_mod__prompt.s.ref").read().split("; Override launch")[0]

def build(kernels):
    out = HEADER
    for name, lds, fn in kernels:
        out += f"; @launch kernel={name} grid=(256,1,1) block=(512,1,1) lds={lds}\n"
    out += '.amdgcn_target "amdgcn-amd-amdhsa--gfx950"\n'
    a = Asm()
    a.prof = bool(os.environ.get("PROF"))
    for name, lds, fn in kernels:
        a.o.append(kernel_header(name).rstrip())
        a.lg.drain(); a.vm.drain()
        fn(a)
    out += a.text()
    out += '.section .rodata,"a"\n'
    for name, lds, fn in kernels:
        out += ".p2align 6\n" + kernel_desc(name)
    return out

if __name__ == "__main__":
    ks = [("k1_kernel", 163840, gen_k1)]
    try:
        import gen2
        ks += gen2.KERNELS
    except ImportError:
        pass
    path = sys.argv[1] if len(sys.argv) > 1 else f"/code/{NAME}.s"
    open(path, "w").write(build(ks))
```

```python
import sys, os
from asmlib import *

NAME = "parallel_sum__compressed_kv_cla__moe_arch_mod__prompt"
ABL = set(os.environ.get("ABL", "").split(","))
WS_XN = 0x0
WS_R = 0x280000
WS_YP = 0x290000
WS_IDX = 0x3A0000
WS_KVF = 0x3B0000
WS_CTXF = 0x3C0000
WS_MOEF = 0x3A6000
WS_BSEL = 0x3A9000
WS_WOF = 0x400000
WS_XNR = 0xC00000
WS_PROF = 0x900000
WS_KV = 0x1000000
WS_CTX = 0x3000000
WS_SIZE = 0x4000000
S_W, S_H, S_P = 3, 4, 5
SRD_WS, SRD_A, SRD_B, SRD_C, SRD_D, SRD_E = 8, 12, 16, 20, 24, 28
P_X, P_CKV, P_WQ, P_WUK, P_WUV, P_WO, P_BX, P_WR, P_WG, P_WU, P_WD, P_OUT, P_DBG, P_WS = range(32, 60, 2)
S_B, S_E = 60, 61
WS = f"s[{SRD_WS}:{SRD_WS+3}]"
def R(d): return f"s[{d}:{d+3}]"
L, VL16 = 1, 13
DESIG = 0
SPIN = 1 << 18
LDS_SP = 131072
LDS_LN = LDS_SP
LDS_WOT = LDS_SP + 10240

def bf16_round(a, r):
    a(f"v_cvt_pk_bf16_f32 v{r}, v{r}, v{r}\nv_lshlrev_b32 v{r}, 16, v{r}")

def poll(a, load, cmp_notready, pre=""):
    lp = a.newlabel("poll"); dn = a.newlabel("polldone")
    a(f"s_mov_b32 s79, {SPIN}")
    a.label(lp)
    a(load); a("s_waitcnt vmcnt(0)"); a(cmp_notready)
    a(f"s_cbranch_vccz {dn}\ns_sleep 2\ns_sub_u32 s79, s79, 1\ns_cmp_lg_u32 s79, 0\ns_cbranch_scc1 {lp}")
    a.label(dn)

VC, VW, RC, RW, QRW = 40, 44, 48, 50, 54
CF, WF, ACC = 64, 96, 128
S_CO, S_WO_, S_MC, S_ST, S_ROW, S_KVD, S_INCA, S_INCB, S_XO, S_QO = 62, 63, 64, 65, 66, 67, 68, 69, 70, 71
S_XB = 84
XEARLY = [16, 20, 24, 28, 32, 36]
VX1 = 12
LX, LW, LV = 16, 26, 64
VDUM = 11
ITR = ((8, 9), (10, 55))

def wdma(a, srd, soff):
    return [f"buffer_load_dwordx4 v{VW+i}, {R(srd)}, s{soff} offen offset:{i*1024} lds" for i in range(4)]

def kv_dma_ops():
    g = []
    g.append([f"s_mov_b32 m0, s{S_MC}", f"s_add_u32 s72, s{S_CO}, 32768"])
    for i in range(4): g.append([f"buffer_load_dwordx4 v{VC+i}, {R(SRD_A)}, s{S_CO} offen offset:{i*1024} lds"])
    g.append([f"s_add_u32 m0, s{S_MC}, 4096", f"s_add_u32 s{S_CO}, s{S_CO}, 128", f"s_bitset0_b32 s{S_CO}, 10"])
    for i in range(4): g.append([f"buffer_load_dwordx4 v{VC+i}, {R(SRD_A)}, s72 offen offset:{i*1024} lds"])
    g.append([f"s_mov_b32 m0, s73", f"s_xor_b32 s{S_MC}, s{S_MC}, 0x10000"])
    for x in wdma(None, SRD_B, S_WO_): g.append([x])
    g.append([f"s_add_u32 m0, s73, 16384", f"s_xor_b32 s73, s73, 0x10000"])
    for x in wdma(None, SRD_C, S_WO_): g.append([x])
    g.append([f"s_add_u32 s{S_WO_}, s{S_WO_}, {64*8192}", f"s_bitset0_b32 s{S_WO_}, 22"])
    return g

def wq_dma_ops(nblk):
    g = []
    for h in range(2*nblk):
        g.append([f"s_mov_b32 m0, s74", f"s_add_u32 s74, s74, 16384"])
        for x in wdma(None, SRD_D, S_QO): g.append([x])
        g.append([f"s_add_u32 s{S_QO}, s{S_QO}, {64*8192}", f"s_sub_u32 s75, s{S_QO}, {640*8192}", f"s_cselect_b32 s{S_QO}, s{S_QO}, s75"])
    return g

def emit_groups(a, g):
    for x in g:
        for y in x: a(y)

def x_load(a, ks, regs):
    for qt in range(2):
        a(f"buffer_load_dwordx4 {v(regs[qt],4)}, v{VL16 if qt==0 else VX1}, {WS}, s{S_XB+(ks>>2)} offen offset:{(ks&3)*1024} sc1")
        a.vm.issue(("X", ks))

def ln_counter_poll(a, xl=True, off=0):
    a.srd(SRD_E, P_DBG, 256)
    a("v_mov_b32 v3, 0")
    poll(a, f"buffer_load_dword v2, v3, {R(SRD_E)}, 0 offen offset:{off} sc1", "v_cmp_gt_u32 vcc, 0x100, v2")
    if xl:
        for ks in range(3): x_load(a, ks, XEARLY[2*ks:2*ks+2])

def kv_touch(a, st0):
    sk = a.newlabel("tch")
    a(f"s_cmp_ge_u32 s76, 2\ns_cbranch_scc1 {sk}a")
    a(f"s_and_b32 s6, s{S_H}, 3\ns_lshl_b32 s6, s6, 16\ns_lshl_b32 s7, s{S_P}, 18\ns_add_u32 s6, s6, s7\ns_lshl_b32 s7, s76, 7\ns_add_u32 s6, s6, s7\ns_add_u32 s6, s6, {st0*128}")
    a(f"v_lshrrev_b32 v6, 1, v{L}\nv_lshlrev_b32 v6, 10, v6\nv_and_b32 v7, 1, v{L}\nv_lshl_add_u32 v6, v7, 6, v6")
    a(f"buffer_load_dword v{VDUM}, v6, {R(SRD_A)}, s6 offen\ns_add_u32 s6, s6, 32768\nbuffer_load_dword v{VDUM}, v6, {R(SRD_A)}, s6 offen\ns_branch {sk}c")
    a.label(sk + "a")
    a(f"v_lshrrev_b32 v6, 5, v{L}\nv_lshlrev_b32 v6, 6, v6\nv_bfe_u32 v7, v{L}, 2, 3\nv_add_u32 v6, v6, v7\nv_lshlrev_b32 v6, 13, v6\nv_and_b32 v7, 3, v{L}\nv_lshl_add_u32 v6, v7, 6, v6")
    a(f"s_lshl_b32 s6, s{S_H}, 8\ns_lshl_b32 s7, s{S_P}, 16\ns_add_u32 s6, s6, s7\ns_add_u32 s6, s6, {st0*64*8192}")
    a(f"s_cmp_lg_u32 s76, 2\ns_cbranch_scc1 {sk}b\nbuffer_load_dword v{VDUM}, v6, {R(SRD_B)}, s6 offen\ns_branch {sk}c")
    a.label(sk + "b")
    a(f"buffer_load_dword v{VDUM}, v6, {R(SRD_C)}, s6 offen")
    a.label(sk + "c")

def zero_regs(a, r0, n):
    for i in range(0, n, 2): a(f"v_mov_b64 {v(r0+i,2)}, 0")

def phase_start(a):
    a(f"s_cmp_ge_u32 s2, 256\ns_cbranch_scc1 L_exit")
    a("s_load_dwordx16 s[32:47], s[0:1], 0\ns_load_dwordx8 s[48:55], s[0:1], 64\ns_load_dwordx4 s[56:59], s[0:1], 96")
    a(f"v_lshrrev_b32 v2, 6, v0\nv_and_b32 v{L}, 63, v0\nv_readfirstlane_b32 s{S_W}, v2")
    if "nocode" not in ABL:
        a("s_getpc_b64 s[80:81]")
        a.label("L_pc")
        a(f"s_lshr_b32 s6, s2, 3\ns_and_b32 s6, s6, 15\ns_lshl_b32 s6, s6, 12\ns_cmp_lt_u32 s{S_W}, 2\ns_cselect_b32 s6, 0, s6\nv_lshl_add_u32 v3, v0, 6, s6")
        a(f"v_min_u32 v3, L_exit-L_pc, v3\ns_cmp_ge_u32 s{S_W}, 3\ns_cbranch_scc1 L_noct\nglobal_load_dword v{VDUM}, v3, s[80:81]")
        a.label("L_noct")
    a(f"v_lshrrev_b32 v62, 5, v0\nv_and_b32 v62, 7, v62\nv_and_b32 v2, 31, v0\nv_lshlrev_b32 v2, 3, v2\nv_mul_u32_u24 v63, 1280, v62\nv_add_u32 v63, v63, v2\ns_mul_i32 s6, s2, 10240\nv_add_u32 v10, s6, v63")
    a(f"s_cmp_lt_u32 s{S_W}, 4\ns_cbranch_scc1 L_st_k0")
    a("s_waitcnt lgkmcnt(0)")
    for j in range(5): a(f"global_load_dwordx2 {v(LX+2*j,2)}, v10, s[{P_X}:{P_X+1}] offset:{j*256}")
    for j in range(5): a(f"global_load_dwordx2 {v(LW+2*j,2)}, v2, s[{P_WR}:{P_WR+1}] offset:{j*256}")
    a.label("L_st_k0")
    a(f"s_and_b32 s6, s2, 7\ns_lshl_b32 s6, s6, 2\ns_lshr_b32 s7, s2, 3\ns_and_b32 s7, s7, 3\ns_add_u32 s{S_H}, s6, s7\ns_lshr_b32 s{S_P}, s2, 5\ns_and_b32 s76, s{S_W}, 3")
    a.stamp_init(14, 0); a.stamp(0)
    a(f"v_lshrrev_b32 v2, 3, v{L}\nv_and_b32 v3, 7, v{L}\nv_lshrrev_b32 v4, 4, v{L}\ns_lshl_b32 s6, s76, 6\nv_xor_b32 v5, v3, v4\nv_lshlrev_b32 v5, 4, v5")
    a(f"v_add_u32 v6, s6, v2\nv_lshl_add_u32 v{VC}, v6, 10, v5\nv_xor_b32 v5, 64, v{VC}\nv_add_u32 v{VC+1}, 7168, v5\nv_add_u32 v{VC+2}, 14336, v{VC}\nv_add_u32 v{VC+3}, 14336, v{VC+1}")
    a(f"v_and_b32 v6, 15, v{L}\ns_lshl_b32 s6, s76, 4\nv_add_u32 v7, s6, v4\nv_lshlrev_b32 v5, 1, v4\nv_xor_b32 v5, v6, v5\nv_lshlrev_b32 v5, 4, v5")
    a(f"v_lshl_add_u32 v{VW}, v7, 13, v5\nv_add_u32 v{VW+1}, 31744, v{VW}\nv_xor_b32 v5, 0x80, v{VW}\nv_add_u32 v{VW+2}, 63488, v5\nv_add_u32 v{VW+3}, 31744, v{VW+2}")
    a(f"s_lshl_b32 s{S_CO}, s{S_P}, 18\ns_lshl_b32 s{S_WO_}, s{S_H}, 8\ns_lshl_b32 s{S_MC}, s76, 13\ns_lshl_b32 s73, s76, 12\ns_add_u32 s73, s73, 32768")
    a("s_waitcnt lgkmcnt(0)")
    a.srd(SRD_A, P_CKV, 2048*512*2)
    a.srd(SRD_B, P_WUK, 512*4096*2)
    a.srd(SRD_C, P_WUV, 512*4096*2)
    a(f"s_cmp_ge_u32 s{S_W}, 4\ns_cbranch_scc1 L_st_v0")
    emit_groups(a, kv_dma_ops())
    if "noprio" not in ABL: a("s_setprio 1")
    a("s_branch L_st_j0")
    a.label("L_st_v0")
    if "nokvtouch" not in ABL: kv_touch(a, 1)
    a.label("L_st_j0")
    a.srd(SRD_WS, P_WS, WS_SIZE)
    a.srd(SRD_D, P_WQ, 640*4096*2)
    a(f"v_lshlrev_b32 v{VL16}, 4, v{L}")
    a(f"s_lshl_b32 s6, s{S_P}, 2\ns_add_u32 s7, s6, s{S_W}\ns_sub_u32 s6, 56, s6\ns_add_u32 s6, s6, s{S_W}")
    a(f"s_cmp_lt_u32 s{S_W}, 4\ns_cselect_b32 s{S_B}, s7, s6")
    a(f"s_add_u32 s6, s{S_P}, 7\ns_and_b32 s6, s6, 7\ns_lshl_b32 s6, s6, 5\ns_add_u32 s{S_E}, s6, s{S_H}")
    a(f"v_and_b32 v2, 15, v{L}\nv_lshrrev_b32 v3, 4, v{L}")
    a(f"s_and_b32 s6, s{S_W}, 1\ns_lshl_b32 s6, s6, 7\nv_add_u32 v4, s6, v2\nv_lshlrev_b32 v4, 7, v4\nv_lshrrev_b32 v5, 1, v2")
    for sp in range(2):
        a(f"v_add_u32 v6, {4*sp}, v3\nv_xor_b32 v6, v6, v5\nv_lshl_add_u32 v{RC+sp}, v6, 4, v4")
    a(f"v_lshrrev_b32 v4, 2, v2\nv_lshl_add_u32 v5, v3, 3, v4\nv_lshlrev_b32 v5, 8, v5")
    a(f"v_and_b32 v6, 1, v2\nv_lshl_add_u32 v5, v6, 3, v5")
    a(f"v_and_b32 v6, 1, v3\nv_lshl_or_b32 v4, v6, 2, v4\nv_lshlrev_b32 v4, 1, v4\nv_bfe_u32 v6, v2, 1, 1")
    a(f"v_add_u32 v8, {LDS_SP}, v5")
    for t in range(8):
        a(f"v_add_u32 v7, {2*t}, v6\nv_xor_b32 v7, v7, v4\nv_lshl_add_u32 v{QRW+t}, v7, 4, v8")
    a(f"s_lshr_b32 s6, s{S_W}, 2\ns_lshl_b32 s6, s6, 14\ns_add_u32 s6, s6, 32768\nv_add_u32 v5, s6, v5")
    a(f"s_lshr_b32 s7, s{S_W}, 1\ns_and_b32 s7, s7, 1\ns_lshl_b32 s7, s7, 3")
    for j in range(4):
        a(f"s_add_u32 s6, s7, {2*j}\nv_add_u32 v7, s6, v6\nv_xor_b32 v7, v7, v4\nv_lshl_add_u32 v{RW+j}, v7, 4, v5")
    zero_regs(a, ACC, 128)
    a(f"v_add_u32 v{VX1}, 20480, v{VL16}\ns_mul_i32 s{S_XO}, s{S_B}, 40960")
    a.stamp(1)
    a(f"s_cmp_ge_u32 s{S_W}, 4\ns_cbranch_scc1 L_st_v1")
    emit_groups(a, kv_dma_ops())
    a("s_waitcnt vmcnt(16)\ns_branch L_st_j1")
    a.label("L_st_v1")
    a(f"s_waitcnt vmcnt({0 if 'nokvtouch' in ABL else 1})")
    a.stamp(2)
    ln_compute(a)
    a.label("L_st_j1")
    a.stamp(3)
    a("s_barrier")
    a.stamp(4)

def zero_flags(a):
    a(f"v_mov_b32 v3, {hex(WS_SIZE)}\nv_mov_b32 v2, 0")
    flag_addr(a, "kv", 6); a("v_writelane_b32 v3, s6, 0")
    flag_addr(a, "ctx", 6); a("v_writelane_b32 v3, s6, 1")
    flag_addr(a, "moe", 6); a("v_writelane_b32 v3, s6, 2")
    a(f"s_lshl_b32 s6, s{S_W}, 2\ns_add_u32 s6, s6, {WS_IDX}\ns_cmp_eq_u32 s2, {DESIG}\ns_cselect_b32 s6, s6, {hex(WS_SIZE)}\nv_writelane_b32 v3, s6, 3")
    a(f"buffer_store_dword v2, v3, {WS}, 0 offen sc1")

def half_reduce(a, r):
    for m in ("quad_perm:[1,0,3,2]", "quad_perm:[2,3,0,1]", "row_half_mirror", "row_mirror"):
        a(f"s_nop 1\nv_add_f32_dpp v{r}, v{r}, v{r} {m} row_mask:0xf bank_mask:0xf")
    a(f"v_mov_b32 v8, v{r}\ns_nop 1\nv_permlane16_swap_b32 v{r}, v8\ns_nop 1\nv_add_f32 v{r}, v{r}, v8")

def ln_compute(a):
    X = LV
    NEG = "op_sel_hi:[1,0] neg_lo:[0,1] neg_hi:[0,1]"
    for j in range(10):
        a(f"v_lshlrev_b32 v{X+2*j}, 16, v{LX+j}\nv_and_b32 v{X+2*j+1}, 0xffff0000, v{LX+j}")
    a(f"v_pk_add_f32 v[2:3], {v(X,2)}, {v(X+2,2)}")
    for j in range(2, 10): a(f"v_pk_add_f32 v[2:3], v[2:3], {v(X+2*j,2)}")
    a("v_add_f32 v2, v2, v3")
    half_reduce(a, 2)
    a("s_mov_b32 s7, 0x3acccccd\nv_mul_f32 v2, s7, v2\nv_mov_b64 v[4:5], 0")
    for j in range(10):
        a(f"v_pk_add_f32 v[6:7], {v(X+2*j,2)}, v[2:3] {NEG}\nv_pk_fma_f32 v[4:5], v[6:7], v[6:7], v[4:5]")
    a("v_add_f32 v4, v4, v5")
    half_reduce(a, 4)
    a("v_mul_f32 v4, s7, v4")
    bf16_round(a, 2); bf16_round(a, 4)
    a("v_add_f32 v4, 0x3727c5ac, v4")
    bf16_round(a, 4)
    a("v_sqrt_f32 v4, v4\ns_nop 0")
    bf16_round(a, 4)
    a("v_rcp_f32 v6, v4\ns_nop 0\nv_fma_f32 v5, -v4, v6, 1.0\nv_fmac_f32 v6, v5, v6\nv_mov_b32 v9, 0")
    for j in range(10):
        x = X + 2*j
        a(f"v_pk_add_f32 {v(x,2)}, {v(x,2)}, v[2:3] {NEG}\nv_cvt_pk_bf16_f32 v5, v{x}, v{x+1}")
        a(f"v_lshlrev_b32 v{x}, 16, v5\nv_and_b32 v{x+1}, 0xffff0000, v5")
        a(f"v_pk_mul_f32 {v(x,2)}, {v(x,2)}, v[6:7] op_sel_hi:[1,0]\nv_cvt_pk_bf16_f32 v{LX+j}, v{x}, v{x+1}")
    a(f"v_add_u32 v10, {LDS_LN}, v63")
    for j in range(5): a(f"ds_write_b64 v10, {v(LX+2*j,2)} offset:{j*256}")
    a("s_waitcnt lgkmcnt(0)")

def ln_router(a):
    a(f"s_mul_i32 s6, s2, 10240\ns_add_u32 s6, s6, {WS_XNR}")
    for j in range(5): a(f"buffer_store_dwordx2 {v(LX+2*j,2)}, v63, {WS}, s6 offen offset:{j*256} sc1")
    a("v_mov_b32 v2, 0")
    for j in range(10):
        a(f"v_lshlrev_b32 v4, 16, v{LX+j}\nv_lshlrev_b32 v5, 16, v{LW+j}\nv_fmac_f32 v2, v4, v5")
        a(f"v_and_b32 v4, 0xffff0000, v{LX+j}\nv_and_b32 v5, 0xffff0000, v{LW+j}\nv_fmac_f32 v2, v4, v5")
    half_reduce(a, 2)
    a("v_cvt_pk_bf16_f32 v2, v2, v2\nv_and_b32 v2, 0xffff, v2")
    a("v_bfe_i32 v3, v2, 15, 1\nv_and_b32 v3, 0x7fff, v3\nv_or_b32 v3, 0x8000, v3\nv_xor_b32 v2, v2, v3")
    a(f"s_lshl_b32 s7, s2, 3\ns_sub_u32 s6, 2047, s7\nv_sub_u32 v3, s6, v62\nv_lshl_or_b32 v2, v2, 11, v3")
    a(f"s_lshl_b32 s6, s2, 5\ns_add_u32 s6, s6, {WS_R}\nv_lshlrev_b32 v3, 2, v62\nbuffer_store_dword v2, v3, {WS}, s6 offen sc1")

def ln_store(a, back):
    a(f"s_lshr_b32 s6, s2, 1\ns_mul_i32 s6, s6, 20480\ns_and_b32 s7, s2, 1\ns_lshl_b32 s7, s7, 7\ns_add_u32 s6, s6, s7")
    for n in range(3):
        a(f"v_add_u32 v2, {256*n-256}, v0\nv_lshrrev_b32 v3, 3, v2\nv_and_b32 v4, 7, v2")
        a(f"v_mul_u32_u24 v5, 1280, v4\nv_lshl_add_u32 v5, v3, 4, v5\nv_add_u32 v5, {LDS_LN}, v5")
        a(f"ds_read_b128 {v(LV+4*n,4)}, v5\nv_lshlrev_b32 v5, 8, v3\nv_lshl_add_u32 v{LV+12+n}, v4, 4, v5")
    a("s_waitcnt lgkmcnt(0)")
    for n in range(3):
        if n == 2: a(f"s_cmp_ge_u32 s{S_W}, 6\ns_cbranch_scc1 {back}")
        a(f"buffer_store_dwordx4 {v(LV+4*n,4)}, v{LV+12+n}, {WS}, s6 offen sc1")
    a.label(back)

def count_atomic(a, off):
    a.srd(SRD_E, P_DBG, 256)
    a(f"v_mov_b32 v2, 1\nv_lshlrev_b32 v3, 8, v{L}\nbuffer_atomic_add v2, v3, {R(SRD_E)}, 0 offen offset:{off} sc1")

def flag_addr(a, kind, d):
    if kind == "kv":
        a(f"s_lshl_b32 s{d}, s{S_H}, 3\ns_add_u32 s{d}, s{d}, s{S_P}\ns_lshl_b32 s{d}, s{d}, 5\ns_add_u32 s{d}, s{d}, s{S_W}\ns_lshl_b32 s{d}, s{d}, 2\ns_add_u32 s{d}, s{d}, {WS_KVF}")
    elif kind == "ctx":
        a(f"s_lshl_b32 s{d}, s{S_B}, 5\ns_add_u32 s{d}, s{d}, s{S_H}\ns_lshl_b32 s{d}, s{d}, 7\ns_add_u32 s{d}, s{d}, {WS_CTXF}")
    else:
        a(f"s_lshl_b32 s{d}, s{S_E}, 3\ns_add_u32 s{d}, s{d}, s{S_W}\ns_lshl_b32 s{d}, s{d}, 2\ns_add_u32 s{d}, s{d}, {WS_MOEF}")

def set_flag(a, kind):
    flag_addr(a, kind, 6)
    a(f"v_mov_b32 v2, 1\nv_mov_b32 v3, {hex(WS_SIZE)}\nv_writelane_b32 v3, s6, 0\nbuffer_store_dword v2, v3, {WS}, 0 offen sc1")
    a.vm.issue("flag")

def phase_kv(a):
    def rdC(i, sp):
        if "kv_noC" in ABL: return
        a(f"ds_read_b128 {v(CF+4*i,4)}, v{RC+sp} offset:{i*2048}"); a.lg.issue(("C", i))
    def rdW(par, j, half, sp):
        if "kv_noW" in ABL: return
        r = WF + 16*par + 4*j + 2*half
        a(f"ds_read_b64_tr_b16 {v(r,2)}, v{RW+j} offset:{sp*8192 + half*1024}"); a.lg.issue(("W", par, j, half))
    wq = [(j, hf) for j in range(4) for hf in range(2)]
    def body(isK, lab, dma, nend, hook=None):
        def mm(i, j, par):
            d = ACC + (i*4+j)*4
            a.wait_lg([("C", i), ("W", par, j, 0), ("W", par, j, 1)])
            if isK: a.mfma(d, WF+16*par+4*j, CF+4*i)
            else: a.mfma(d, CF+4*i, WF+16*par+4*j)
        a(".p2align 4")
        a.label(lab)
        if hook:
            a(f"s_branch {hook}"); a.label(hook + "_back")
        for i in range(8):
            for j in range(4):
                mm(i, j, 0)
                if i < 2: rdW(1, *wq[i*4+j], 1)
            rdC(i, 1)
        dma = list(dma)
        if "kv_nodma" in ABL: dma = []
        for i in range(8):
            for j in range(4):
                mm(i, j, 1)
                if i == 2 or i == 3: rdW(0, *wq[(i-2)*4+j], 0)
                if i >= 2 and dma:
                    for y in dma.pop(0): a(y)
            if i == 1:
                for r in (RC, RC+1, RW, RW+1, RW+2, RW+3): a(f"v_xor_b32 v{r}, 0x10000, v{r}")
                if isK: a("s_waitcnt vmcnt(0) lgkmcnt(0)\ns_barrier")
                else:
                    a(f"s_bitcmp1_b32 0x89, s{S_ST}\ns_cbranch_scc0 L_vnow\ns_waitcnt vmcnt({0 if 'nokvtouch' in ABL else 1})\ns_cmp_eq_u32 s{S_ST}, 0\ns_cbranch_scc1 L_vnow\ns_waitcnt vmcnt(0)")
                    a.label("L_vnow")
                    a("s_waitcnt lgkmcnt(0)\ns_barrier")
                a.lg.drain()
                a.stampd(S_ST, 24)
                rdC(0, 0); rdC(1, 0)
            elif i >= 2: rdC(i, 0)
        emit_groups(a, dma)
        a(f"s_add_u32 s{S_ST}, s{S_ST}, 1\ns_cmp_lt_u32 s{S_ST}, {nend}\ns_cbranch_scc1 {lab}")
    def first_reads():
        a.lg.drain()
        rdC(0, 0); rdC(1, 0)
        for k in range(4): rdW(0, *wq[k], 0)
        rdC(2, 0)
        for k in range(4, 8): rdW(0, *wq[k], 0)
        for i in range(3, 8): rdC(i, 0)
    def consts():
        a(f"s_mov_b32 s{S_ST}, 0")
        a(f"s_lshl_b32 s6, s{S_H}, 20\ns_lshl_b32 s7, s{S_P}, 16\ns_add_u32 s6, s6, s7\ns_and_b32 s7, s{S_W}, 1\ns_lshl_b32 s7, s7, 15\ns_add_u32 s6, s6, s7\ns_add_u32 s{S_KVD}, s6, {WS_KV}")
        if "noqrot" in ABL: a("s_mov_b32 s6, 0")
        else:
            a(f"s_and_b32 s6, s{S_H}, 3\ns_add_u32 s6, s6, s{S_P}")
            for _ in range(2): a("s_sub_u32 s7, s6, 5\ns_cselect_b32 s6, s6, s7")
        a(f"s_lshl_b32 s{S_QO}, s6, 20\ns_lshl_b32 s7, s{S_H}, 8\ns_add_u32 s{S_QO}, s{S_QO}, s7")
        for i in range(5):
            a(f"s_lshl_b32 s7, s6, 12\ns_add_u32 s{S_XB+i}, s{S_XO}, s7")
            if i < 4: a("s_add_u32 s6, s6, 1\ns_cmp_eq_u32 s6, 5\ns_cselect_b32 s6, 0, s6")
        a(f"s_lshr_b32 s7, s{S_W}, 1\ns_and_b32 s7, s7, 1")
    a(f"s_cmp_ge_u32 s{S_W}, 4\ns_cbranch_scc1 L_kv_v")
    first_reads()
    q0 = list(a.lg.q)
    zero_flags(a)
    consts()
    a(f"s_lshl_b32 s7, s7, 11\ns_add_u32 s{S_KVD}, s{S_KVD}, s7\ns_movk_i32 s{S_INCA}, 3072\ns_movk_i32 s{S_INCB}, 3072")
    a(f"s_add_u32 s{S_QO}, s{S_QO}, {128*8192}\ns_sub_u32 s75, s{S_QO}, {640*8192}\ns_cselect_b32 s{S_QO}, s{S_QO}, s75\ns_lshl_b32 s74, s76, 12")
    a.stamp(5)
    body(True, "L_kloopA", kv_dma_ops(), 6)
    assert a.lg.q == q0, (a.lg.q, q0)
    for ks in range(3): x_load(a, ks, XEARLY[2*ks:2*ks+2])
    body(True, "L_kloopB", wq_dma_ops(2), 8)
    a.stamp(6)
    a("s_waitcnt lgkmcnt(0)\ns_nop 7")
    for n in range(16):
        t = ACC + 4*n; d0 = ACC + 8*n; d1 = d0 + 4
        a(f"v_cvt_pk_bf16_f32 v{t}, v{d0}, v{d0+1}\nv_cvt_pk_bf16_f32 v{t+1}, v{d0+2}, v{d0+3}")
        a(f"v_cvt_pk_bf16_f32 v{t+2}, v{d1}, v{d1+1}\nv_cvt_pk_bf16_f32 v{t+3}, v{d1+2}, v{d1+3}")
    a("s_branch L_q")
    a.label("L_hook")
    for k in (1, 2, 3, 4, 5, 6): a(f"s_cmp_eq_u32 s{S_ST}, {k}\ns_cbranch_scc1 L_hook{k}")
    a(f"s_cmp_lg_u32 s{S_ST}, 7\ns_cbranch_scc1 L_hook_back")
    for ks in range(3): x_load(a, ks, XEARLY[2*ks:2*ks+2])
    a("s_branch L_hook_back")
    a.label("L_hook1")
    a(f"s_cmp_lg_u32 s{S_W}, 4\ns_cbranch_scc1 L_hook1b")
    count_atomic(a, 0)
    a.label("L_hook1b")
    if "nokvtouch" not in ABL: kv_touch(a, 5)
    a("s_branch L_hook_back")
    a.label("L_hook2")
    if "nokvtouch" not in ABL: kv_touch(a, 6)
    a.srd(SRD_E, P_WO, 4096*640*2)
    a(f"s_lshr_b32 s73, s2, 1\ns_mul_i32 s73, s73, {32*1280}\ns_and_b32 s6, s2, 1\ns_mul_i32 s6, s6, 640\ns_add_u32 s73, s73, s6\ns_movk_i32 s7, 1639")
    a(f"s_mul_i32 s74, s76, 5120\ns_add_u32 s74, s74, {LDS_WOT}\ns_mul_i32 s6, s76, 320\nv_add_u32 v9, s6, v{L}")
    for n in range(5):
        a(f"v_add_u32 v2, {n*64}, v9\nv_mul_lo_u32 v3, v2, s7\nv_lshrrev_b32 v3, 16, v3\nv_mul_u32_u24 v4, 40, v3\nv_sub_u32 v4, v2, v4")
        a(f"v_mul_u32_u24 v3, 1280, v3\nv_lshl_add_u32 v3, v4, 4, v3\ns_add_u32 m0, s74, {n*1024}\ns_nop 0")
        a(f"buffer_load_dwordx4 v3, {R(SRD_E)}, s73 offen lds")
    a.label("L_hook3")
    a("s_branch L_hook_back")
    a.label("L_hook4")
    WOTR = [16, 20, 24, 28, 32]
    a(f"v_and_b32 v2, 15, v{L}\nv_lshrrev_b32 v3, 4, v{L}\nv_lshrrev_b32 v4, 2, v2\nv_lshl_add_u32 v4, v3, 2, v4\nv_mul_u32_u24 v4, 640, v4")
    a(f"v_and_b32 v2, 3, v2\nv_lshl_add_u32 v4, v2, 3, v4\ns_mul_i32 s6, s76, 160\ns_add_u32 s6, s6, {LDS_WOT}\nv_add_u32 v4, s6, v4")
    a(f"s_mul_i32 s6, s2, 20480\ns_mul_i32 s7, s76, 5120\ns_add_u32 s6, s6, s7\ns_add_u32 s6, s6, {WS_WOF}\ns_add_u32 s7, s6, 4096")
    for n in range(5):
        d = WOTR[n]
        a(f"ds_read_b64_tr_b16 v[{d}:{d+1}], v4 offset:{n*32}\nds_read_b64_tr_b16 v[{d+2}:{d+3}], v4 offset:{n*32+10240}")
    a("s_waitcnt lgkmcnt(0)")
    for n in range(5):
        a(f"buffer_store_dwordx4 {v(WOTR[n],4)}, v{VL16}, {WS}, s{6 if n<4 else 7} offen offset:{(n&3)*1024} sc1")
    a.srd(SRD_E, P_DBG, 256)
    a(f"v_mov_b32 v3, 0\nbuffer_load_dword v62, v3, {R(SRD_E)}, 0 offen sc1\ns_branch L_hook_back")
    a.label("L_hook5")
    a("s_waitcnt vmcnt(0)\nv_cmp_gt_u32 vcc, 0x100, v62\ns_cbranch_vccz L_hook5b")
    ln_counter_poll(a, False)
    a.label("L_hook5b")
    a(f"s_lshl_b32 s74, s76, 12\ns_add_u32 s74, s74, {LDS_SP}")
    emit_groups(a, wq_dma_ops(1))
    a("s_branch L_hook_back")
    a.label("L_hook6")
    a(f"s_cmp_lg_u32 s{S_W}, 4\ns_cbranch_scc1 L_hook_back")
    count_atomic(a, 128)
    a("s_branch L_hook_back")
    a.label("L_kv_v")
    ln_store(a, "L_lns")
    first_reads()
    ln_router(a)
    zero_flags(a)
    if "nokvtouch" not in ABL: kv_touch(a, 3)
    consts()
    a.stamp(5)
    a(f"s_lshl_b32 s7, s7, 12\ns_add_u32 s{S_KVD}, s{S_KVD}, s7\ns_add_u32 s{S_KVD}, s{S_KVD}, 0x80000\ns_movk_i32 s{S_INCA}, 1024\ns_movk_i32 s{S_INCB}, 5120")
    body(False, "L_vloop", [], 8, hook="L_hook")
    a.stamp(6)
    a("s_waitcnt lgkmcnt(0)\ns_nop 7")
    for ii in range(4):
        for j in range(4):
            t = ACC + 16*ii + 4*j; d0 = ACC + 32*ii + 4*j; d1 = d0 + 16
            a(f"v_cvt_pk_bf16_f32 v{t}, v{d0}, v{d0+1}\nv_cvt_pk_bf16_f32 v{t+1}, v{d0+2}, v{d0+3}")
            a(f"v_cvt_pk_bf16_f32 v{t+2}, v{d1}, v{d1+1}\nv_cvt_pk_bf16_f32 v{t+3}, v{d1+2}, v{d1+3}")

QF, O_, S_, FR, P_, NM, T_, L_, ET = 16, 192, 64, 96, 128, 144, 52, 56, 58
VA, VDK, VDV = 48, 49, 50
S_N, S_NL, S_C, S_THR = 62, 63, 64, 65
THRESH = 0x4b800000
def Sreg(par, kt, qt): return S_ + 16*par + (kt*2+qt)*4
def NMreg(kt, qt): return NM + (kt*2+qt)*4
def Oreg(t, qt): return O_ + (t*2+qt)*4
def Qreg(qt, s): return QF + (qt*4+s)*4
def Preg(par, qt): return P_ + 8*par + 4*qt
def Treg(par, qt): return T_ + 2*par + qt

def xlane(a, op, r, t):
    for sw in ("v_permlane16_swap_b32", "v_permlane32_swap_b32"):
        a(f"v_mov_b32 v{t}, v{r}\ns_nop 1\n{sw} v{r}, v{t}\ns_nop 1\n{op} v{r}, v{r}, v{t}")

def st_dma(a, parts):
    if "K" in parts:
        for hf in range(2):
            a(f"s_lshl_b32 s6, s76, 13\ns_add_u32 s6, s6, s78\ns_add_u32 m0, s6, {hf*4096}\ns_add_u32 s7, s77, {hf*4096}")
            for i in range(4): a(f"buffer_load_dwordx4 v{VDK}, {WS}, s7 offen offset:{i*1024} sc1 lds")
    for hf in range(2):
        if f"V{hf}" in parts:
            a(f"s_lshl_b32 s6, s76, 12\ns_add_u32 s6, s6, s78\ns_add_u32 m0, s6, {32768+hf*16384}\ns_add_u32 s7, s77, {0x80000-16384+hf*16384}")
            for i in range(4): a(f"buffer_load_dwordx4 v{VDV}, {WS}, s7 offen offset:{i*1024} sc1 lds")

S_HK, S_ALL = 89, 90
def kv_self_touch(a):
    a(f"v_lshrrev_b32 v9, 3, v{L}\ns_cmp_lt_u32 s{S_W}, 4\ns_cselect_b32 s7, 6, 4\nv_and_b32 v10, s7, v9\nv_add_u32 v9, v9, v10\nv_lshlrev_b32 v9, 10, v9")
    a(f"v_and_b32 v10, 7, v{L}\nv_lshl_add_u32 v9, v10, 7, v9\ns_sub_u32 s6, s{S_KVD}, 32768")
    a(f"buffer_load_dword v{VDUM}, v9, {WS}, s6 offen sc1\ns_add_u32 s6, s6, 16384\nbuffer_load_dword v{VDUM}, v9, {WS}, s6 offen sc1")

def kv_flag_wait(a, need):
    lp = a.newlabel("kvp"); dn = a.newlabel("kvpd")
    a(f"s_cmp_ge_u32 s{S_ALL}, {need}\ns_cbranch_scc1 {dn}")
    a(f"s_lshl_b32 s7, s{S_H}, 10\ns_add_u32 s7, s7, {WS_KVF}\nv_lshrrev_b32 v2, 3, v{L}\nv_and_b32 v3, 7, v{L}\nv_lshlrev_b32 v3, 2, v3\nv_lshl_add_u32 v3, v2, 7, v3\ns_mov_b32 s79, {SPIN}")
    a.label(lp)
    a(f"buffer_load_dword v2, v3, {WS}, s7 offen sc1\ns_waitcnt vmcnt(0)\nv_cmp_ne_u32 vcc, 1, v2\ns_nop 3")
    a(f"s_ff1_i32_b64 s{S_ALL}, vcc\ns_cmp_ge_u32 s{S_ALL}, {need}\ns_cbranch_scc1 {dn}")
    a(f"s_sleep 2\ns_sub_u32 s79, s79, 1\ns_cmp_lg_u32 s79, 0\ns_cbranch_scc1 {lp}")
    a.label(dn)

KS_POLL = int(os.environ.get("KSP", "15"))
LATE_KS = (6, 8, 10, 12, 14, 16, 17, 18)
NEARLY = int(os.environ.get("NEARLY", "2"))
def kv_store(a, n, late=True):
    if late and "nolate" in ABL: return
    a(f"buffer_store_dwordx4 {v(ACC+4*n,4)}, v{VL16}, {WS}, s{S_KVD} offen sc1"); a.vm.issue("st")
    inc = ("1024", f"s{S_INCA}", "1024", f"s{S_INCB}")[n & 3]
    a(f"s_add_u32 s{S_KVD}, s{S_KVD}, {inc}")
def q_variant(a, early):
    sfx = "e" if early else "l"
    a.lg.drain(); a.vm.drain()
    def rdW(t, hf, ks):
        blk = ks >> 2
        off = (0, 0, 32768, 0, 32768)[blk] + (ks & 3)*8192 + hf*1024
        a(f"ds_read_b64_tr_b16 {v(WF+4*t+2*hf,2)}, v{QRW+t} offset:{off}"); a.lg.issue(("W", t, hf))
    for t in range(8):
        rdW(t, 0, 0); rdW(t, 1, 0)
    xr = {ks: XEARLY[2*ks:2*ks+2] for ks in range(3)}
    for ks in range(3, 7):
        xr[ks] = [CF + 8*(ks-3), CF + 8*(ks-3) + 4]
        x_load(a, ks, xr[ks])
    nst = 0
    for ks in range(20):
        pend = []
        a.wait_vm(("X", ks))
        if ks % 2 == 0: a.stamp(32 + ks//2)
        barrier_here = (ks == 11)
        upd = {3: -LDS_SP, 11: 65536}.get(ks)
        st_at = ((1, 3, 5, 7) if early else ((3,) if ks in LATE_KS else ()))
        for t in range(8):
            for qt in range(2):
                if qt == 0: a.wait_lg([("W", t, 0), ("W", t, 1)])
                a.mfma(Oreg(t, qt), WF+4*t, xr[ks][qt], "0" if ks == 0 else None)
                if qt == 1 and ks < 19: pend += [(t, 0), (t, 1)]
                if barrier_here and t == 1 and qt == 1:
                    a("s_waitcnt lgkmcnt(0)\ns_barrier"); a.lg.drain()
                    while len(pend) > 2: rdW(*pend.pop(0), ks+1)
                if pend and not (barrier_here and (t, qt) < (1, 1)): rdW(*pend.pop(0), ks+1)
                if upd is not None and qt == 0:
                    a(f"v_add_u32 v{QRW+t}, {hex(upd & 0xffffffff)}, v{QRW+t}")
                if qt == 0 and t in st_at and nst < 16:
                    kv_store(a, nst, not early); nst += 1
        while pend: rdW(*pend.pop(0), ks+1)
        if ks + 7 < 20:
            xr[ks+7] = xr[ks]; x_load(a, ks+7, xr[ks])
        if early and ks == 3: a("s_barrier")
        if early and ks == 5:
            assert nst == 16
            a.wait_vm("st")
            set_flag(a, "kv")
        if ks == KS_POLL:
            a.wait_vm(("X", 19))
            a(f"s_cmp_ge_u32 s{S_W}, 4\ns_cbranch_scc1 L_q_nold{sfx}")
            a.stamp(20)
            kv_flag_wait(a, "8")
            a.stamp(21)
            st_dma(a, ["K", "V1"])
            a(f"s_branch L_q_j{sfx}")
            a.label(f"L_q_nold{sfx}")
            a(f"v_mov_b32 v3, 0\nbuffer_load_dword v63, v3, {R(SRD_E)}, 0 offen offset:128 sc1")
            a.label(f"L_q_j{sfx}")
    assert nst == (16 if early else 8)

def phase_q(a):
    a.label("L_q")
    a.srd(SRD_E, P_DBG, 256)
    a(f"s_lshl_b32 s6, s76, 13\nv_add_u32 v{VDK}, s6, v{VL16}\ns_lshl_b32 s6, s76, 12\nv_add_u32 v{VDV}, s6, v{VL16}")
    a(f"s_lshl_b32 s77, s{S_H}, 20\ns_add_u32 s77, s77, {WS_KV}\ns_mov_b32 s78, 0\ns_mov_b32 s{S_ALL}, 0")
    a(f"s_cmp_lt_u32 s{S_W}, 4\ns_cselect_b32 s{S_HK}, 1, 0")
    a(f"s_cmp_ge_u32 s{S_P}, {NEARLY}\ns_cbranch_scc1 L_q_late")
    q_variant(a, True)
    a("s_branch L_q_end")
    a.label("L_q_late")
    a(f"s_or_b32 s{S_HK}, s{S_HK}, 2")
    q_variant(a, False)
    a.label("L_q_end")
    a.stamp(7)
    a("s_mov_b32 s6, 0x3e0293ee\ns_nop 7")
    for qt in range(2):
        a(f"s_cmp_lt_u32 s{S_P}, {NEARLY}\ns_cbranch_scc1 L_qs{qt}")
        kv_store(a, 8+2*qt); kv_store(a, 9+2*qt)
        a.label(f"L_qs{qt}")
        for s_ in range(4):
            for hf in range(2):
                d = Oreg(2*s_+hf, qt)
                for r in range(4): a(f"v_mul_f32 v{d+r}, s6, v{d+r}")
                a(f"v_cvt_pk_bf16_f32 v{Qreg(qt,s_)+2*hf}, v{d}, v{d+1}\nv_cvt_pk_bf16_f32 v{Qreg(qt,s_)+2*hf+1}, v{d+2}, v{d+3}")
    zero_regs(a, O_, 64)
    zero_regs(a, NM, 16)
    zero_regs(a, T_, 6)
    a(f"v_mov_b32 v{VA}, v{VL16}")
    a(f"s_waitcnt vmcnt({0 if 'nolate' in ABL else 4+len([k for k in LATE_KS if k > KS_POLL])})\ns_cmp_ge_u32 s{S_P}, {NEARLY}\ns_cbranch_scc1 L_q_w\ns_waitcnt vmcnt(0)")
    a.label("L_q_w")
    a(f"s_cmp_lt_u32 s{S_W}, 4\ns_cbranch_scc1 L_q_c\nv_cmp_gt_u32 vcc, 0x100, v63\ns_cbranch_vccz L_q_c")
    ln_counter_poll(a, False, 128)
    a.label("L_q_c")

def sm_ops(par):
    ops = []
    n = 0
    for kt in range(2):
        for qt in range(2):
            for r in range(4):
                t, tp = ET + n % 4, ET + (n-1) % 4
                e = f"v_exp_f32 v{t}, v{Sreg(par,kt,qt)+r}"
                rest = []
                if kt == 0 and r == 0: pass
                elif kt == 0 and r == 1: rest.append(f"v_add_f32 v{Treg(par,qt)}, v{tp}, v{t}")
                else: rest.append(f"v_add_f32 v{Treg(par,qt)}, v{t}, v{Treg(par,qt)}")
                if r & 1: rest.append(f"v_cvt_pk_bf16_f32 v{Preg(par,qt)+2*kt+(r>>1)}, v{tp}, v{t}")
                ops.append((e, rest)); n += 1
    return ops

def phase_attn(a):
    handlers = []
    FULLQ = [("F", i) for i in range(8)]
    def rd(kind, i, k):
        off = (0 if kind == "K" else 32768) + k*8192 + i*1024
        a(f"ds_read_b128 {v(FR+4*i,4)}, v{VA} offset:{off}"); a.lg.issue(("F", i))
    def bar(wait="vmcnt(0) lgkmcnt(0)", mid=None):
        bk = a.newlabel("ldback")
        a(f"s_waitcnt {wait}\ns_barrier"); a.lg.drain()
        if "stampbar" in ABL: a.stampd(S_N, 44)
        if mid: mid()
        a(f"s_cmp_lg_u32 s{S_HK}, 0\ns_cbranch_scc1 {bk}_c")
        a.label(bk)
        a(f"s_add_i32 s{S_N}, s{S_N}, 1")
        handlers.append(("ld", bk))
    def ladd(par, qt): return f"v_add_f32 v{L_+qt}, v{Treg(par,qt)}, v{L_+qt}"
    def stage(k, qk=True, sm=True, pv=True, nxt=True, loop=False):
        pq, ps = k & 1, 1 - (k & 1)
        pairs = []
        if pv: pairs += [("V", i) for i in range(8)]
        if qk: pairs += [("K", i) for i in range(8)]
        NP = len(pairs)
        g0 = [[] for _ in range(NP)]; g1 = [[] for _ in range(NP)]
        full = qk and pv
        if sm:
            ops = sm_ops(ps)[2:]
            per = 1 if full else 2
            for n, (e, rest) in enumerate(ops):
                g0[n//per].append(e); g1[n//per] += rest
            cp = NP - 2 if full else NP - 1
            g1[cp] += [f"v_add_f32 v{ET+4}, v{Treg(ps,0)}, v{Treg(ps,1)}", f"v_cmp_nge_f32 vcc, s{S_THR}, v{ET+4}"]
        g1[0].append(ladd(pq, 0)); g1[2].append(ladd(pq, 1))
        if full:
            for n, (e, rest) in enumerate(sm_ops(pq)[:2]):
                g0[14+n].append(e); g1[14+n] += rest
        sc = {}
        if loop:
            sc[3] = f"s_sub_i32 s{S_C}, s{S_C}, 1"; sc[5] = f"s_cmp_gt_i32 s{S_C}, 0"; sc[7] = f"s_cselect_b32 s{S_THR}, s72, -1.0"
        barp = (NP - 8 + 1) if k == 3 else None
        held = []
        a.wait_lg(("F", 0))
        for n, (kind, i) in enumerate(pairs):
            for qt in range(2):
                if kind == "V": a.mfma(Oreg(i, qt), FR+4*i, Preg(pq, qt))
                else: a.mfma(Sreg(pq, i >> 2, qt), FR+4*i, Qreg(qt, i & 3), None if i & 3 else NMreg(i >> 2, qt))
                if qt == 0:
                    if n + 1 < NP: a.wait_lg(("F", pairs[n+1][1]))
                    for x in g0[n]: a(x)
                    if barp is not None and n == barp: a(f"v_xor_b32 v{VA}, 0x10000, v{VA}")
                else:
                    if n in sc: a(sc[n])
                    if kind == "V" and qk: rd("K", i, k)
                    elif not nxt:
                        if n == barp: bar()
                    else:
                        if barp is not None and n < barp: held.append(i)
                        else:
                            if n == barp:
                                bar()
                                for h in held: rd("V", h, 0)
                            rd("V", i, (k+1) & 3)
                    for x in g1[n]: a(x)
        if sm:
            bk = a.newlabel("back")
            a(f"s_cbranch_vccnz {bk}_h")
            a.label(bk)
            handlers.append(("sm", bk, k, loop, full))
    a(f"s_mov_b32 s72, {hex(THRESH)}\ns_mov_b32 s{S_THR}, s72\ns_sub_u32 s{S_NL}, 15, s{S_P}\ns_mov_b32 s{S_N}, -1")
    a.stamp(8)
    bar("lgkmcnt(0)")
    a.stamp(9)
    for i in range(8): rd("K", i, 0)
    a(f"s_cmp_lg_u32 s{S_B}, 0\ns_cbranch_scc1 L_nm0\ns_call_b64 s[82:83], L_mask")
    a.label("L_nm0")
    for i in range(8):
        a.wait_lg(("F", i))
        for qt in range(2):
            a.mfma(Sreg(0, i >> 2, qt), FR+4*i, Qreg(qt, i & 3), None if i & 3 else NMreg(i >> 2, qt))
        rd("K", i, 1)
    a("s_nop 7")
    for qt in range(2):
        m = ET + qt
        s0, s1 = Sreg(0, 0, qt), Sreg(0, 1, qt)
        a(f"v_max3_f32 v{m}, v{s0}, v{s0+1}, v{s0+2}\nv_max3_f32 v{m}, v{m}, v{s0+3}, v{s1}\nv_max3_f32 v{m}, v{m}, v{s1+1}, v{s1+2}\nv_max_f32 v{m}, v{m}, v{s1+3}")
        xlane(a, "v_max_f32", m, ET+2)
        for kt in range(2):
            for r in range(4):
                a(f"v_sub_f32 v{Sreg(0,kt,qt)+r}, v{Sreg(0,kt,qt)+r}, v{m}\nv_sub_f32 v{NMreg(kt,qt)+r}, 0, v{m}")
    a(f"s_cmp_lg_u32 s{S_B}, 1\ns_cbranch_scc1 L_nm1\ns_call_b64 s[82:83], L_mask")
    a.label("L_nm1")
    def early(par):
        o = sm_ops(par)[:2]
        a(o[0][0]); a(o[1][0]); a("s_nop 0")
        for x in o[1][1]: a(x)
    early(0)
    stage(1, pv=False)
    assert a.lg.q == FULLQ
    a("s_nop 7")
    early(1)
    a(f"s_cmp_lt_u32 s{S_P}, {NEARLY}\ns_cbranch_scc1 L_qs2")
    for n in range(12, 16): kv_store(a, n)
    a.label("L_qs2")
    a(f"s_sub_i32 s{S_C}, s{S_B}, 2")
    a.stamp(10)
    a(f"s_cmp_eq_u32 s{S_B}, 0\ns_cbranch_scc1 L_pv2\ns_cmp_eq_u32 s{S_B}, 1\ns_cbranch_scc1 L_tail2")
    a(f"s_cmp_lg_u32 s{S_B}, 2\ns_cbranch_scc1 L_st2\ns_call_b64 s[82:83], L_mask\ns_branch L_st2")
    a(".p2align 6")
    a.label("L_st0")
    for k in range(4):
        if k == 2: a.label("L_st2")
        stage(k, loop=True)
        assert a.lg.q == FULLQ
    a("s_branch L_st0")
    for k in range(4):
        a.label(f"L_tail{k}")
        a.lg.q = list(FULLQ)
        a(f"s_mov_b32 s{S_THR}, s72")
        stage(k, qk=False)
        assert a.lg.q == FULLQ
        a.label(f"L_pv{(k+1)&3}")
        stage((k+1) & 3, qk=False, sm=False, nxt=False)
        if k < 3: a("s_branch L_fin")
    a.label("L_fin")
    a.stamp(11)
    for qt in range(2):
        xlane(a, "v_add_f32", L_+qt, ET)
        a(f"v_rcp_f32 v{L_+qt}, v{L_+qt}")
    a(f"s_lshl_b32 s6, s{S_B}, 18\ns_lshl_b32 s7, s{S_H}, 12\ns_add_u32 s6, s6, s7\ns_add_u32 s6, s6, {WS_CTX}\ns_nop 4")
    n = 0
    a.vm.drain()
    for qt in range(2):
        for s_ in range(4):
            t = QF + 4*n; n += 1
            for hf in range(2):
                d = Oreg(2*s_+hf, qt)
                for r in range(4): a(f"v_mul_f32 v{d+r}, v{L_+qt}, v{d+r}")
                a(f"v_cvt_pk_bf16_f32 v{t+2*hf}, v{d}, v{d+1}\nv_cvt_pk_bf16_f32 v{t+2*hf+1}, v{d+2}, v{d+3}")
            a(f"buffer_store_dwordx4 {v(t,4)}, v{VL16}, {WS}, s6 offen offset:{s_*1024} sc1"); a.vm.issue("st")
        if qt == 0: a("s_add_u32 s6, s6, 0x20000")
    a.stamp(12)
    def flag_now():
        a("s_waitcnt vmcnt(0)")
        set_flag(a, "ctx")
    a(f"s_cmp_gt_i32 s{S_N}, s{S_NL}\ns_cbranch_scc1 L_e0")
    bar("vmcnt(8)", flag_now)
    a("s_branch L_e1")
    a.label("L_e0")
    flag_now()
    a.label("L_e1")
    a.label("L_idle")
    a(f"s_sub_i32 s6, s{S_NL}, 3\ns_cmp_gt_i32 s{S_N}, s6\ns_cbranch_scc1 L_pre")
    bar()
    a(f"s_cmp_lt_u32 s{S_E}, 54\ns_cbranch_scc1 L_moe\ns_cmp_lg_u32 s2, {DESIG}\ns_cbranch_scc1 L_idle")
    pD = DESIG >> 5
    a(f"s_cmp_eq_u32 s{S_N}, {pD+3}\ns_cbranch_scc1 L_top1\ns_cmp_eq_u32 s{S_N}, {pD+4}\ns_cbranch_scc1 L_top2\ns_branch L_idle")
    a.label("L_pre")
    a(f"s_cmp_lt_u32 s{S_W}, 4\ns_cbranch_scc1 L_pre1\ns_barrier")
    a.label("L_pre1")
    a.vm.drain()
    for j in range(3):
        out_prefetch(a, j)
        a(f"s_cmp_gt_i32 s{S_N}, s{S_NL}\ns_cbranch_scc1 L_e{j+2}")
        bar(f"vmcnt({12 if j == 0 else 10})")
        a.label(f"L_e{j+2}")
    global VMQ
    VMQ = list(a.vm.q)
    a(f"s_cmp_ge_u32 s{S_W}, 4\ns_cbranch_scc1 L_adone")
    moe_finish(a)
    a("s_barrier\ns_branch L_adone")
    moe_steps(a, bar)
    top8(a)
    for h in handlers:
        if h[0] == "ld":
            a.label(h[1] + "_c"); a(f"s_call_b64 s[82:83], L_load\ns_branch {h[1]}")
        else:
            _, bk, k, loop, full = h
            a.label(bk + "_h")
            a(f"v_cmp_nge_f32 vcc, s72, v{ET+4}\ns_cbranch_vccz {bk}_n\ns_call_b64 s[80:81], L_rare{1-(k&1)}")
            if full:
                o = sm_ops(k & 1)[:2]
                a(o[0][0]); a(o[1][0]); a("s_nop 0")
                for x in o[1][1]: a(x)
            a.label(bk + "_n")
            if loop:
                a(f"s_cmp_lt_i32 s{S_C}, 0\ns_cbranch_scc1 L_tail{(k+1)&3}\ns_cmp_gt_i32 s{S_C}, 0\ns_cbranch_scc1 {bk}\ns_call_b64 s[82:83], L_mask")
            a(f"s_branch {bk}")
    a.label("L_load")
    a(f"s_bitcmp1_b32 s{S_HK}, 0\ns_cbranch_scc0 L_load_r")
    a(f"s_add_u32 s77, s77, 32768\ns_xor_b32 s78, s78, 0x10000\ns_add_i32 s73, s{S_N}, 1\ns_cmp_gt_i32 s73, s{S_NL}\ns_cbranch_scc1 L_load_r")
    if "at_nodma" not in ABL:
        a(f"s_cmp_eq_i32 s73, s{S_NL}\ns_cbranch_scc1 L_load_v\ns_bitcmp1_b32 s73, 0\ns_cbranch_scc0 L_load_k")
        a("s_lshl_b32 s74, s73, 2\ns_add_u32 s74, s74, 12")
        kv_flag_wait(a, "s74")
        a.label("L_load_k")
        st_dma(a, ["K", "V1"])
        a.label("L_load_v")
        st_dma(a, ["V0"])
    a(f"s_cmp_lt_u32 s{S_P}, 4\ns_cbranch_scc1 L_load_r\ns_sub_i32 s79, s73, 2\ns_cmp_lt_u32 s79, 2\ns_cbranch_scc1 L_x3")
    a.label("L_load_r")
    a(f"s_bitcmp1_b32 s{S_HK}, 1\ns_cbranch_scc0 L_load_a\ns_cmp_lt_i32 s{S_N}, 0\ns_cbranch_scc1 L_load_a")
    set_flag(a, "kv")
    a(f"s_and_b32 s{S_HK}, s{S_HK}, 1")
    a.label("L_load_a")
    a("s_setpc_b64 s[82:83]")
    a.label("L_x3")
    if "nomoetouch" not in ABL:
        a.srd(SRD_A, P_WG, 640*1728*2)
        a(f"s_cmp_eq_u32 s{S_W}, 3\ns_cbranch_scc1 L_load_r")
        a(f"s_cmp_eq_u32 s{S_W}, 1\ns_cselect_b32 s{SRD_A}, s{P_WU}, s{SRD_A}\ns_cselect_b32 s{SRD_A+1}, s{P_WU+1}, s{SRD_A+1}")
        a(f"s_cmp_eq_u32 s{S_W}, 2\ns_cselect_b32 s{SRD_A}, s{P_WD}, s{SRD_A}\ns_cselect_b32 s{SRD_A+1}, s{P_WD+1}, s{SRD_A+1}")
        a(f"s_mov_b32 s73, 3456\ns_cmov_b32 s73, 256\ns_mov_b32 s75, 256\ns_cmov_b32 s75, {4*40960}")
        a(f"s_lshr_b32 s6, s2, 3\ns_sub_u32 s6, s6, 16\ns_mul_i32 s6, s6, 40\nv_lshrrev_b32 v2, 2, v{L}\nv_add_u32 v2, s6, v2\nv_mul_lo_u32 v2, v2, s73\nv_and_b32 v3, 3, v{L}\nv_lshl_add_u32 v2, v3, 6, v2")
        a(f"s_lshl_b32 s6, s79, 3\ns_lshr_b32 s7, s{S_H}, 2\ns_add_u32 s6, s6, s7\ns_mul_i32 s6, s6, s75")
        a(f"v_mov_b32 v3, {hex(WS_SIZE)}\nv_cmp_gt_u32 vcc, 32, v{L}\ns_lshl_b32 s73, s73, 4\ns_nop 0\nv_cndmask_b32 v3, v3, v2, vcc")
        a(f"buffer_load_dword v{VDUM}, v2, {R(SRD_A)}, s6 offen\ns_add_u32 s7, s6, s73\nbuffer_load_dword v{VDUM}, v2, {R(SRD_A)}, s7 offen")
        a(f"s_add_u32 s7, s7, s73\nbuffer_load_dword v{VDUM}, v3, {R(SRD_A)}, s7 offen")
    a("s_setpc_b64 s[82:83]")
    a.label("L_mask")
    a(f"v_and_b32 v2, 15, v{L}\nv_lshrrev_b32 v3, 4, v{L}\nv_lshlrev_b32 v3, 2, v3\nv_sub_u32 v2, v2, v3\nv_mov_b32 v3, 0xff800000")
    for r in range(4):
        a(f"v_cmp_gt_i32 vcc, {r}, v2\nv_mov_b32 v{NMreg(1,0)+r}, v3\ns_nop 0")
        a(f"v_cndmask_b32 v{NMreg(0,0)+r}, v{NMreg(0,0)+r}, v3, vcc\nv_cndmask_b32 v{NMreg(1,1)+r}, v{NMreg(1,1)+r}, v3, vcc")
    a("s_nop 1\ns_setpc_b64 s[82:83]")
    for par in range(2):
        a.label(f"L_rare{par}")
        a("s_nop 15")
        for qt in range(2):
            m = ET + 4
            s0, s1 = Sreg(par, 0, qt), Sreg(par, 1, qt)
            a(f"v_max3_f32 v{m}, 0, v{s0}, v{s0+1}\nv_max3_f32 v{m}, v{m}, v{s0+2}, v{s0+3}\nv_max3_f32 v{m}, v{m}, v{s1}, v{s1+1}\nv_max3_f32 v{m}, v{m}, v{s1+2}, v{s1+3}")
            xlane(a, "v_max_f32", m, ET)
            a(f"v_exp_f32 v{ET}, -v{m}")
            for kt in range(2):
                for r in range(4):
                    for reg in (Sreg(0,kt,qt), Sreg(1,kt,qt), NMreg(kt,qt)):
                        a(f"v_sub_f32 v{reg+r}, v{reg+r}, v{m}")
            a(f"v_mul_f32 v{L_+qt}, v{ET}, v{L_+qt}")
            for t in range(8):
                for r in range(4): a(f"v_mul_f32 v{Oreg(t,qt)+r}, v{ET}, v{Oreg(t,qt)+r}")
        for e, rest in sm_ops(par):
            a(e); a("s_nop 0")
            for x in rest: a(x)
        a("s_nop 1\ns_setpc_b64 s[80:81]")
    a.label("L_adone")
    a.stamp(13)

def top8(a):
    a.label("L_top1")
    a(f"s_lshl_b32 s6, s{S_W}, 11\ns_add_u32 s6, s6, {WS_R}")
    a(f"buffer_load_dwordx4 v[16:19], v{VL16}, {WS}, s6 offen sc1\nbuffer_load_dwordx4 v[20:23], v{VL16}, {WS}, s6 offen offset:1024 sc1")
    a("s_waitcnt vmcnt(0)\nv_mov_b32 v24, 0\ns_mov_b32 s7, 0")
    a.label("L_top1_l")
    a("v_max3_u32 v4, v16, v17, v18\nv_max3_u32 v4, v4, v19, v20\nv_max3_u32 v4, v4, v21, v22\nv_max_u32 v4, v4, v23")
    a.wave_reduce("v_max_u32", 4)
    a("v_readlane_b32 s6, v4, 63\ns_mov_b32 m0, s7\ns_nop 3\nv_writelane_b32 v24, s6, m0")
    for k in range(8):
        a(f"v_cmp_ne_u32 vcc, s6, v{16+k}\ns_nop 1\nv_cndmask_b32 v{16+k}, 0, v{16+k}, vcc")
    a("s_add_u32 s7, s7, 1\ns_cmp_lt_u32 s7, 8\ns_cbranch_scc1 L_top1_l")
    a(f"s_lshl_b32 s6, s{S_W}, 8\ns_add_u32 s6, s6, {LDS_SP}\nv_lshl_add_u32 v5, v{L}, 2, s6\nds_write_b32 v5, v24\ns_branch L_idle")
    a.label("L_top2")
    a(f"s_cmp_lg_u32 s{S_W}, 0\ns_cbranch_scc1 L_idle")
    a(f"v_lshrrev_b32 v5, 3, v{L}\nv_and_b32 v5, 3, v5\nv_lshlrev_b32 v5, 6, v5\nv_and_b32 v6, 39, v{L}\nv_add_u32 v5, v5, v6\nv_lshlrev_b32 v5, 2, v5\nv_add_u32 v5, {LDS_SP}, v5")
    a("ds_read_b32 v16, v5\ns_waitcnt lgkmcnt(0)\nv_mov_b32 v24, 0\ns_mov_b32 s7, 0")
    a.label("L_top2_l")
    a("v_mov_b32 v4, v16")
    a.wave_reduce("v_max_u32", 4)
    a("v_readlane_b32 s6, v4, 63\ns_mov_b32 m0, s7\ns_nop 3\nv_writelane_b32 v24, s6, m0")
    a("v_cmp_ne_u32 vcc, s6, v16\ns_nop 1\nv_cndmask_b32 v16, 0, v16, vcc")
    a("s_add_u32 s7, s7, 1\ns_cmp_lt_u32 s7, 8\ns_cbranch_scc1 L_top2_l")
    a(f"v_or_b32 v24, 0x80000000, v24\nv_lshlrev_b32 v5, 2, v{L}\nv_mov_b32 v6, {hex(WS_SIZE)}\nv_cmp_gt_u32 vcc, 8, v{L}\ns_mov_b32 s6, {hex(WS_IDX)}\ns_nop 0\nv_cndmask_b32 v5, v6, v5, vcc")
    a(f"buffer_store_dword v24, v5, {WS}, s6 offen sc1\ns_branch L_idle")

OACC = 176
M_WD, M_PART = 81920, 122880
VIDX = 51
def idx_addr(a):
    a(f"v_and_b32 v3, 7, v{L}\nv_lshlrev_b32 v3, 2, v3\ns_mov_b32 s72, {hex(WS_IDX)}")
def ctxf_addr(a):
    a(f"v_and_b32 v3, 3, v{L}\nv_bfe_u32 v2, v{L}, 2, 1\nv_lshl_add_u32 v3, v2, 5, v3\nv_lshlrev_b32 v3, 7, v3")
    a(f"s_lshl_b32 s72, s{S_H}, 13\ns_lshl_b32 s6, s{S_W}, 9\ns_add_u32 s72, s72, s6\ns_add_u32 s72, s72, {WS_CTXF}")
def idx_poll(a, sfx, wait="s_waitcnt vmcnt(30)"):
    a(wait)
    a(f"v_cmp_le_i32 vcc, 0, v{VIDX}\ns_cbranch_vccz L_idx_ok{sfx}")
    idx_addr(a)
    poll(a, f"buffer_load_dword v{VIDX}, v3, {WS}, s72 offen sc1", f"v_cmp_le_i32 vcc, 0, v{VIDX}")
    a.label(f"L_idx_ok{sfx}")

def moe_steps(a, bar):
    XS, FRG, GA, WDR, WD2, PR, YO = 64, 104, 24, 32, 240, 184, 216
    VG, VT, VD, VTD, VY, VXS = 16, 17, 18, 19, 20, 21
    S_G, S_WIN, S_D = 84, 85, 86
    a.label("L_moe")
    a(f"s_cmp_lg_u32 s{S_N}, 5\ns_cbranch_scc1 L_idle")
    def srds():
        a.srd(SRD_A, P_WG, 640*1728*2)
        a(f"s_cmp_ge_u32 s{S_W}, 2\ns_cselect_b32 s{SRD_A}, s{P_WU}, s{SRD_A}\ns_cselect_b32 s{SRD_A+1}, s{P_WU+1}, s{SRD_A+1}")
        a.srd(SRD_B, P_WD, 1728*640*2)
    def dma_g(nk):
        for n in range(2*nk):
            a(f"s_add_u32 m0, s{S_WIN}, {n*1024}\ns_nop 0\nbuffer_load_dwordx4 v{VG}, {R(SRD_A)}, s{S_G} offen lds\ns_add_u32 s{S_G}, s{S_G}, {16*3456}")
    def dma_d():
        for n in range(4):
            a(f"s_add_u32 m0, s{S_WIN}, {4096+n*1024}\ns_add_u32 s6, s{S_D}, {n*8*1280}\nbuffer_load_dwordx4 v{VD}, {R(SRD_B)}, s6 offen lds")
        a(f"s_add_u32 s{S_D}, s{S_D}, 512")
    def rd_g(k0, nk):
        for k in range(nk):
            for ft in range(2):
                d = FRG + ((k0+k)*2+ft)*4
                a(f"ds_read_b64_tr_b16 {v(d,2)}, v{VT} offset:{k*2048+ft*32}\nds_read_b64_tr_b16 {v(d+2,2)}, v{VT} offset:{k*2048+ft*32+256}")
            if k == 1: a("s_waitcnt lgkmcnt(0)")
    def xs(k0, nk):
        for k in range(k0, k0+nk): a(f"buffer_load_dwordx4 {v(XS+4*k,4)}, v{VXS}, {WS}, 0 offen offset:{k*64} sc1")
    def rd_d(base):
        for m in range(4):
            a(f"ds_read_b64_tr_b16 {v(base+4*m,2)}, v{VTD} offset:{m*32}\nds_read_b64_tr_b16 {v(base+2+4*m,2)}, v{VTD} offset:{m*32+16*128}")
    def down(base, goff):
        for m in range(4): a.mfma(YO+4*m, base+4*m, GA, "0")
        a("s_nop 7")
        for m in range(4): a(f"buffer_store_dwordx4 {v(YO+4*m,4)}, v{VY}, {WS}, s87 offen offset:{goff*1024+m*64} sc1")
        a("s_nop 1")
    srds()
    a(f"v_lshrrev_b32 v3, 2, v{L}\nv_mul_u32_u24 v3, 3456, v3\nv_and_b32 v4, 3, v{L}\nv_lshl_add_u32 v{VG}, v4, 4, v3")
    a(f"v_lshrrev_b32 v3, 3, v{L}\nv_mul_u32_u24 v3, 1280, v3\nv_and_b32 v4, 7, v{L}\nv_lshl_add_u32 v{VD}, v4, 4, v3")
    a(f"s_and_b32 s7, s{S_W}, 1\ns_mul_i32 s{S_G}, s7, {320*3456}\ns_lshl_b32 s6, s{S_E}, 6\ns_add_u32 s{S_G}, s{S_G}, s6")
    a(f"s_lshl_b32 s{S_WIN}, s{S_W}, 13\ns_add_u32 s{S_WIN}, s{S_WIN}, {LDS_SP}")
    a(f"s_mul_i32 s{S_D}, s{S_E}, 40960\ns_lshl_b32 s6, s{S_W}, 7\ns_add_u32 s{S_D}, s{S_D}, s6")
    dma_g(4)
    idx_addr(a); a(f"buffer_load_dword v{VIDX}, v3, {WS}, s72 offen sc1")
    a(f"v_lshrrev_b32 v7, 4, v{L}\nv_and_b32 v2, 15, v{L}\nv_lshrrev_b32 v3, 2, v2\nv_lshl_add_u32 v8, v7, 3, v3\nv_lshlrev_b32 v8, 6, v8\nv_and_b32 v4, 3, v2\nv_lshl_add_u32 v8, v4, 3, v8\nv_add_u32 v{VT}, s{S_WIN}, v8")
    a(f"v_lshl_add_u32 v8, v7, 2, v3\nv_lshlrev_b32 v8, 7, v8\nv_lshl_add_u32 v8, v4, 3, v8\ns_add_u32 s6, s{S_WIN}, 4096\nv_add_u32 v{VTD}, s6, v8")
    a(f"v_mul_u32_u24 v3, 2560, v2\nv_lshl_add_u32 v3, v7, 4, v3\nv_mov_b32 v4, {hex(WS_SIZE)}\nv_cmp_gt_u32 vcc, 8, v2")
    a(f"s_mul_i32 s87, s{S_E}, 20480\ns_lshl_b32 s7, s{S_W}, 8\ns_add_u32 s87, s87, s7\ns_add_u32 s87, s87, {WS_YP}\nv_cndmask_b32 v{VY}, v4, v3, vcc")
    bar()
    rd_g(0, 4)
    idx_poll(a, "m", "")
    a("s_waitcnt lgkmcnt(0)"); dma_g(4)
    a(f"v_and_b32 v4, 0x7ff, v{VIDX}\nv_sub_u32 v4, 0x7ff, v4\nv_mul_u32_u24 v4, 1280, v4\nv_lshrrev_b32 v7, 4, v{L}\nv_lshl_add_u32 v4, v7, 4, v4")
    a(f"s_and_b32 s7, s{S_W}, 1\ns_mul_i32 s6, s7, 640\ns_add_u32 s6, s6, {WS_XNR}\nv_add_u32 v4, s6, v4\nv_mov_b32 v5, {hex(WS_SIZE)}\nv_and_b32 v2, 8, v{L}\nv_cmp_eq_u32 vcc, 0, v2\ns_nop 1\nv_cndmask_b32 v{VXS}, v5, v4, vcc")
    xs(0, 5)
    bar("vmcnt(5) lgkmcnt(0)")
    rd_g(4, 4); a("s_waitcnt lgkmcnt(0)"); dma_g(2); dma_d(); xs(5, 5)
    bar()
    rd_g(8, 2); rd_d(WDR); a("s_waitcnt lgkmcnt(0)"); dma_d()
    for k in range(10):
        for ft in range(2): a.mfma(GA+4*ft, FRG+(k*2+ft)*4, XS+4*k, "0" if k == 0 else None)
    a(f"v_add_u32 v10, s{S_WIN}, v{VL16}\ns_nop 7\nds_write_b128 v10, {v(GA,4)}\nds_write_b128 v10, {v(GA+4,4)} offset:1024")
    bar()
    a(f"v_add_u32 v10, {LDS_SP}, v{VL16}")
    for w in range(4):
        for ft in range(2): a(f"ds_read_b128 {v(PR+(w*2+ft)*4,4)}, v10 offset:{w*8192+ft*1024}")
    a("s_waitcnt lgkmcnt(0)")
    rd_d(WD2)
    a(f"s_waitcnt lgkmcnt(0)\ns_cmp_ge_u32 s{S_W}, 2\ns_cbranch_scc1 L_moe4b")
    dma_d()
    a.label("L_moe4b")
    a("s_mov_b32 s6, 0xbfb8aa3b")
    for i in range(8):
        g0, u0 = PR + i, PR + 16 + i
        a(f"v_add_f32 v{g0}, v{g0}, v{g0+8}\nv_add_f32 v{u0}, v{u0}, v{u0+8}")
        bf16_round(a, g0); bf16_round(a, u0)
        a(f"v_mul_f32 v2, s6, v{g0}\nv_exp_f32 v2, v2\ns_nop 0\nv_add_f32 v2, 1.0, v2\nv_rcp_f32 v2, v2\ns_nop 0\nv_mul_f32 v{g0}, v{g0}, v2")
        bf16_round(a, g0)
        a(f"v_mul_f32 v{g0}, v{g0}, v{u0}")
    for i in range(4): a(f"v_cvt_pk_bf16_f32 v{GA+i}, v{PR+2*i}, v{PR+1+2*i}")
    a("s_nop 1")
    down(WDR, 0)
    bar("vmcnt(4) lgkmcnt(0)")
    down(WD2, 1)
    a(f"s_cmp_ge_u32 s{S_W}, 2\ns_cbranch_scc1 L_moe5b")
    rd_d(WDR); a("s_waitcnt lgkmcnt(0)"); down(WDR, 2)
    a.label("L_moe5b")
    bar("vmcnt(4) lgkmcnt(0)", lambda: (a("s_waitcnt vmcnt(0)"), set_flag(a, "moe")))
    a("s_branch L_idle")

def moe_finish(a):
    Y = OACC
    idx_poll(a, "a")
    a(f"s_mov_b32 s84, s{S_W}")
    a.label("L_yl")
    a(f"s_mov_b32 m0, s84\ns_nop 3\nv_readlane_b32 s85, v{VIDX}, m0\ns_nop 3\ns_and_b32 s86, s85, 0x7ff\ns_sub_u32 s86, 0x7ff, s86\ns_lshr_b32 s6, s86, 6\ns_cmp_lg_u32 s6, s{S_H}\ns_cbranch_scc1 L_yn")
    a(f"v_min_u32 v3, 53, v{L}\nv_lshlrev_b32 v3, 5, v3\ns_mov_b32 s72, {hex(WS_MOEF)}")
    poll(a, f"buffer_load_dwordx4 {v(Y,4)}, v3, {WS}, s72 offen sc1",
         "\n".join([f"v_and_b32 v{Y}, v{Y}, v{Y+r}" for r in (1, 2, 3)]) + f"\nv_cmp_ne_u32 vcc, 1, v{Y}")
    a(f"v_mul_u32_u24 v2, 13, v{L}\nv_lshrrev_b32 v2, 8, v2\nv_mul_u32_u24 v3, 20, v2\nv_sub_u32 v4, v{L}, v3")
    a(f"s_mov_b32 s6, {18*20480}\nv_mul_lo_u32 v2, v2, s6\nv_lshl_add_u32 v2, v4, 4, v2")
    a(f"v_cmp_lt_u32 vcc, 59, v{L}\nv_mov_b32 v3, {hex(WS_SIZE)}\ns_nop 0\nv_cndmask_b32 v2, v2, v3, vcc")
    a(f"s_mul_i32 s6, s84, 2560\ns_mul_i32 s7, s{S_P}, 320\ns_add_u32 s6, s6, s7\ns_add_u32 s6, s6, {WS_YP}")
    for e in range(18):
        a(f"buffer_load_dwordx4 {v(Y+4*e,4)}, v2, {WS}, s6 offen sc1\ns_add_u32 s6, s6, 20480")
    a(f"s_lshr_b32 s6, s86, 4\ns_mul_i32 s6, s6, 20480\ns_and_b32 s7, s86, 15\ns_lshl_b32 s7, s7, 4\ns_add_u32 s6, s6, s7\ns_mul_i32 s7, s{S_P}, 2560\ns_add_u32 s6, s6, s7")
    a(f"v_lshrrev_b32 v5, 1, v4\nv_lshlrev_b32 v5, 8, v5\nv_and_b32 v6, 1, v4\nv_lshl_add_u32 v5, v6, 3, v5\nbuffer_load_dwordx2 {v(Y+72,2)}, v5, {WS}, s6 offen sc1")
    a("s_bfe_u32 s6, s85, 0x10000b\ns_xor_b32 s7, s6, 0xffff\ns_bitcmp1_b32 s6, 15\ns_bitset0_b32 s6, 15\ns_cselect_b32 s6, s6, s7\ns_lshl_b32 s6, s6, 16\nv_mov_b32 v5, s6")
    a("v_mul_f32 v5, 0xbfb8aa3b, v5\nv_exp_f32 v5, v5\ns_nop 0\nv_add_f32 v5, 1.0, v5\nv_rcp_f32 v5, v5\ns_nop 0")
    bf16_round(a, 5)
    a(f"v_lshlrev_b32 v6, 2, v{L}\ns_waitcnt vmcnt(0)")
    for e in range(1, 18):
        a(f"v_pk_add_f32 {v(Y,2)}, {v(Y,2)}, {v(Y+4*e,2)}\nv_pk_add_f32 {v(Y+2,2)}, {v(Y+2,2)}, {v(Y+4*e+2,2)}")
    for k in range(2):
        for r in range(4): a(f"ds_bpermute_b32 v{Y+4+4*k+r}, v6, v{Y+r} offset:{80*(k+1)}")
    a("s_waitcnt lgkmcnt(0)")
    for r in range(4):
        y = Y + r
        a(f"v_add_f32 v{y}, v{y}, v{y+4}\nv_add_f32 v{y}, v{y}, v{y+8}")
        bf16_round(a, y)
        a(f"v_mul_f32 v{y}, v{y}, v5")
        bf16_round(a, y)
        xn = Y + 72 + (r >> 1)
        a(f"v_and_b32 v7, 0xffff0000, v{xn}" if r & 1 else f"v_lshlrev_b32 v7, 16, v{xn}")
        a(f"v_add_f32 v{y}, v{y}, v7")
    a(f"v_cvt_pk_bf16_f32 v{Y+4}, v{Y}, v{Y+1}\nv_cvt_pk_bf16_f32 v{Y+5}, v{Y+2}, v{Y+3}")
    a(f"v_lshlrev_b32 v2, 3, v{L}\nv_cmp_lt_u32 vcc, 19, v{L}\ns_mul_i32 s6, s84, 1280\ns_mul_i32 s7, s{S_P}, 160\nv_cndmask_b32 v2, v2, v3, vcc\ns_add_u32 s6, s6, s7\ns_add_u32 s6, s6, {WS_BSEL}")
    a(f"buffer_store_dwordx2 {v(Y+4,2)}, v2, {WS}, s6 offen sc1\ns_waitcnt vmcnt(0)")
    a.label("L_yn")
    a("s_add_u32 s84, s84, 4\ns_cmp_lt_u32 s84, 8\ns_cbranch_scc1 L_yl")

NPRE = 6
WPOOL = list(range(56, 176, 4))
CPOOL = list(range(16, 48, 4))
S_OC, S_OW, S_OR = 68, 69, 66
VWO4 = 52
wo_regs = {}
def wo_load(a, ks, regs):
    a(f"s_add_u32 s75, s{S_OR}, {ks}\ns_and_b32 s75, s75, 15\ns_mul_i32 s75, s75, 40960\ns_add_u32 s75, s75, s{S_OW}")
    for m in range(5):
        a(f"buffer_load_dwordx4 {v(regs[m],4)}, v{VL16 if m<4 else VWO4}, {WS}, s75 offen offset:{(m&3)*1024} sc1"); a.vm.issue(("Wo", ks))
    wo_regs[ks] = regs

def out_prefetch(a, j):
    if j == 0:
        idx_addr(a); a(f"buffer_load_dword v{VIDX}, v3, {WS}, s72 offen sc1")
        ctxf_addr(a); a(f"buffer_load_dword v53, v3, {WS}, s72 offen sc1")
        OROT = os.environ.get("OROT", "nt")
        if OROT == "none": a(f"s_mov_b32 s{S_OR}, 0")
        else: a(f"s_lshl_b32 s{S_OR}, s{S_P}, 1")
        if OROT == "both": a(f"s_and_b32 s7, s{S_H}, 3\ns_lshl_b32 s7, s7, 2\ns_add_u32 s{S_OR}, s{S_OR}, s7")
        a(f"v_add_u32 v{VWO4}, 4096, v{VL16}")
        a(f"s_mul_i32 s{S_OW}, s{S_W}, {16*40960}\ns_mul_i32 s7, s{S_P}, 5120\ns_add_u32 s{S_OW}, s{S_OW}, s7\ns_add_u32 s{S_OW}, s{S_OW}, {WS_WOF}")
    for ks in (2*j, 2*j+1): wo_load(a, ks, WPOOL[5*ks:5*ks+5])

def phase_out(a):
    VCX = 4
    a.stamp(14)
    a(f"s_lshl_b32 s{S_OC}, s{S_H}, 19\ns_lshl_b32 s6, s{S_W}, 14\ns_add_u32 s{S_OC}, s{S_OC}, s6\ns_add_u32 s{S_OC}, s{S_OC}, {WS_CTX}")
    for i in range(4): a(f"v_add_u32 v{VCX+i}, {i*131072}, v{VL16}")
    zero_regs(a, OACC, 80)
    a("v_cmp_ne_u32 vcc, 1, v53\ns_cbranch_vccz L_ctx_ok")
    ctxf_addr(a)
    poll(a, f"buffer_load_dword v2, v3, {WS}, s72 offen sc1", "v_cmp_ne_u32 vcc, 1, v2")
    a.label("L_ctx_ok")
    a.stamp(15)
    a.vm.q = list(VMQ)
    free = list(CPOOL)
    cx = {}
    todo = []
    for ks in range(16):
        if ks >= NPRE: todo.append(("Wo", ks))
        todo.append(("C", ks))
    def fill():
        while todo:
            kind, ks = todo[0]
            need = 4 if kind == "C" else 5
            if len(free) < need: break
            regs = [free.pop(0) for _ in range(need)]
            todo.pop(0)
            if kind == "Wo": wo_load(a, ks, regs)
            else:
                a(f"s_add_u32 s75, s{S_OR}, {ks}\ns_and_b32 s75, s75, 15\ns_lshl_b32 s75, s75, 10\ns_add_u32 s75, s75, s{S_OC}")
                for i in range(4):
                    a(f"buffer_load_dwordx4 {v(regs[i],4)}, v{VCX+i}, {WS}, s75 offen sc1"); a.vm.issue(("C", ks))
                cx[ks] = regs
    fill()
    IT = {}
    for ks in range(16):
        a.wait_vm([("C", ks), ("Wo", ks)])
        for m in range(5):
            for i in range(4):
                a.mfma(OACC+(m*4+i)*4, wo_regs[ks][m], cx[ks][i])
        free += cx[ks] + wo_regs[ks]
        fill()
        if not todo and not IT and len(free) >= 4:
            a.srd(SRD_A, P_X, 2048*640*2)
            a(f"v_and_b32 v2, 0x7ff, v{VIDX}\ns_nop 0")
            for tk in range(8): a(f"v_readlane_b32 s{84+tk}, v2, {tk}")
            a(f"s_movk_i32 s7, 6554\ns_mul_i32 s70, s{S_H}, {64*1280}\ns_mul_i32 s6, s{S_P}, 160\ns_add_u32 s70, s70, s6")
            a(f"s_mul_i32 s71, s{S_H}, {4*20480}\ns_mul_i32 s6, s{S_P}, 2560\ns_add_u32 s71, s71, s6")
            for n in range(2):
                IT[n] = (free.pop(0), free.pop(0))
                rw, ch = ITR[n]
                a(f"v_lshrrev_b32 v2, 4, v0\nv_add_u32 v2, {32*n}, v2\nv_mul_lo_u32 v{rw}, v2, s7\nv_lshrrev_b32 v{rw}, 16, v{rw}\nv_mul_u32_u24 v3, 10, v{rw}\nv_sub_u32 v{ch}, v2, v3")
                a(f"v_and_b32 v3, 15, v{L}\nv_lshl_add_u32 v{rw}, v{rw}, 4, v3")
                a(f"v_mul_u32_u24 v2, 1280, v{rw}\nv_lshl_add_u32 v{53+n}, v{ch}, 4, v2")
                a(f"v_lshrrev_b32 v2, 4, v{rw}\nv_mul_u32_u24 v2, 20480, v2\nv_and_b32 v3, 15, v{rw}\nv_lshl_add_u32 v2, v3, 4, v2\nv_lshl_add_u32 v2, v{ch}, 8, v2")
                a(f"v_add_u32 v2, s71, v2\ns_lshl_b32 s6, s{S_H}, 6\ns_sub_u32 s6, 0x7ff, s6\nv_sub_u32 v3, s6, v{rw}\ns_mul_i32 s6, s{S_P}, 160\ns_add_u32 s6, s6, {WS_BSEL}\nv_lshl_add_u32 v{VDUM}, v{ch}, 4, s6")
                for tk in range(8):
                    a(f"v_cmp_eq_u32 vcc, s{84+tk}, v3\ns_nop 1\nv_cndmask_b32 v2, v2, v{VDUM}, vcc")
                    if tk < 7: a(f"v_add_u32 v{VDUM}, 1280, v{VDUM}")
                sk = a.newlabel("itskip")
                if n == 1: a(f"s_cmp_ge_u32 s{S_W}, 2\ns_cbranch_scc1 {sk}")
                a(f"buffer_load_dwordx4 {v(IT[n][0],4)}, v{53+n}, {R(SRD_A)}, s70 offen\nbuffer_load_dwordx4 {v(IT[n][1],4)}, v2, {WS}, 0 offen sc1")
                if n == 1: a.label(sk)
    a.stamp(16)
    assert IT
    a(f"s_mul_i32 s6, s{S_W}, 20480\nv_add_u32 v2, s6, v{VL16}\ns_nop 7")
    for T in range(20): a(f"ds_write_b128 v2, {v(OACC+4*T,4)} offset:{T*1024}")
    a.srd(SRD_B, P_OUT, 2048*640*2)
    a("s_waitcnt vmcnt(0) lgkmcnt(0)\ns_barrier")
    a.stamp(17)
    for n in range(2):
        if n == 1: a(f"s_cmp_ge_u32 s{S_W}, 2\ns_cbranch_scc1 L_end")
        rw, ch = ITR[n]
        a(f"v_lshrrev_b32 v2, 1, v{ch}\nv_lshlrev_b32 v2, 12, v2\nv_lshrrev_b32 v3, 4, v{rw}\nv_lshl_add_u32 v2, v3, 10, v2")
        a(f"v_and_b32 v3, 15, v{rw}\nv_lshl_add_u32 v2, v3, 4, v2\nv_and_b32 v3, 1, v{ch}\nv_lshl_add_u32 v2, v3, 9, v2")
        a(f"v_add_u32 v3, 61440, v2\nv_add_u32 v4, 122880, v2")
        a.lg.drain()
        for w in range(8):
            for hf in range(2):
                a(f"ds_read_b128 {v(OACC+(w*2+hf)*4,4)}, v{2+w//3} offset:{(w%3)*20480+hf*256}"); a.lg.issue(w)
        for w in range(1, 8):
            a.wait_lg(w)
            for r in range(8): a(f"v_add_f32 v{OACC+r}, v{OACC+r}, v{OACC+8*w+r}")
        for r in range(8):
            A_ = OACC + r
            bf16_round(a, A_)
            xr, xnr = IT[n][0] + (r >> 1), IT[n][1] + (r >> 1)
            if r & 1: a(f"v_and_b32 v5, 0xffff0000, v{xr}\nv_and_b32 v6, 0xffff0000, v{xnr}")
            else: a(f"v_lshlrev_b32 v5, 16, v{xr}\nv_lshlrev_b32 v6, 16, v{xnr}")
            a(f"v_add_f32 v{A_}, v{A_}, v5")
            bf16_round(a, A_)
            a(f"v_add_f32 v{A_}, v{A_}, v6")
        for r in range(4): a(f"v_cvt_pk_bf16_f32 v{OACC+64+4*n+r}, v{OACC+2*r}, v{OACC+2*r+1}")
        a(f"buffer_store_dwordx4 {v(OACC+64+4*n,4)}, v{53+n}, {R(SRD_B)}, s70 offen")

def gen(a):
    phase_start(a)
    phase_kv(a)
    phase_q(a)
    phase_attn(a)
    a("s_setprio 0")
    idx_poll(a, "b")
    phase_out(a)
    a.label("L_end")
    a.stamp(18)
    if a.prof: a("s_waitcnt vmcnt(0)")
    a.stamp_flush(SRD_WS, WS_PROF)
    a.label("L_exit")
    a("s_endpgm")

HEADER = open(os.path.join(os.path.dirname(os.path.abspath(__file__)), "..", NAME + ".s.ref")).read().split("; Override launch")[0]
if __name__ == "__main__":
    name = NAME + "_kernel"
    out = HEADER + "; @launch grid=(256,1,1) block=(512,1,1) lds=163840\n" + '.amdgcn_target "amdgcn-amd-amdhsa--gfx950"\n'
    a = Asm(); a.prof = bool(os.environ.get("PROF"))
    a.o.append(kernel_header(name).rstrip())
    gen(a)
    out += a.text() + '.section .rodata,"a"\n.p2align 6\n' + kernel_desc(name)
    open(sys.argv[1] if len(sys.argv) > 1 else "k.s", "w").write(out)
```

```python
import sys, os
from asmlib import *

NAME = "parallel_sum__compressed_kv_cla__moe_arch_mod__prompt"
ABL = set(os.environ.get("ABL", "").split(","))
WS_XN = 0x0
WS_R = 0x280000
WS_YP = 0x290000
WS_IDX = 0x3A0000
WS_KVF = 0x3B0000
WS_CTXF = 0x3C0000
WS_MOEF = 0x3A6000
WS_BSEL = 0x3A9000
WS_WOF = 0x400000
WS_XNR = 0xC00000
WS_PROF = 0x900000
WS_KV = 0x1000000
WS_CTX = 0x3000000
WS_SIZE = 0x4000000
S_W, S_H, S_P = 3, 4, 5
SRD_WS, SRD_A, SRD_B, SRD_C, SRD_D, SRD_E = 8, 12, 16, 20, 24, 28
P_X, P_CKV, P_WQ, P_WUK, P_WUV, P_WO, P_BX, P_WR, P_WG, P_WU, P_WD, P_OUT, P_DBG, P_WS = range(32, 60, 2)
S_B, S_E = 60, 61
WS = f"s[{SRD_WS}:{SRD_WS+3}]"
def R(d): return f"s[{d}:{d+3}]"
L, VL16 = 1, 13
DESIG = 0
SPIN = 1 << 18
LDS_SP = 131072
LDS_LN = LDS_SP
LDS_WOT = LDS_SP + 10240

def bf16_round(a, r):
    a(f"v_cvt_pk_bf16_f32 v{r}, v{r}, v{r}\nv_lshlrev_b32 v{r}, 16, v{r}")

def poll(a, load, cmp_notready, pre=""):
    lp = a.newlabel("poll"); dn = a.newlabel("polldone")
    a(f"s_mov_b32 s79, {SPIN}")
    a.label(lp)
    a(load); a("s_waitcnt vmcnt(0)"); a(cmp_notready)
    a(f"s_cbranch_vccz {dn}\ns_sleep 2\ns_sub_u32 s79, s79, 1\ns_cmp_lg_u32 s79, 0\ns_cbranch_scc1 {lp}")
    a.label(dn)

VC, VW, RC, RW, QRW = 40, 44, 48, 50, 54
CF, WF, ACC = 64, 96, 128
S_CO, S_WO_, S_MC, S_ST, S_ROW, S_KVD, S_INCA, S_INCB, S_XO, S_QO = 62, 63, 64, 65, 66, 67, 68, 69, 70, 71
S_XB = 84
XEARLY = [16, 20, 24, 28, 32, 36]
VX1 = 12
LX, LW, LV = 16, 26, 64
VDUM = 11
ITR = ((8, 9), (10, 55))

def wdma(a, srd, soff):
    return [f"buffer_load_dwordx4 v{VW+i}, {R(srd)}, s{soff} offen offset:{i*1024} lds" for i in range(4)]

def kv_dma_ops():
    g = []
    g.append([f"s_mov_b32 m0, s{S_MC}", f"s_add_u32 s72, s{S_CO}, 32768"])
    for i in range(4): g.append([f"buffer_load_dwordx4 v{VC+i}, {R(SRD_A)}, s{S_CO} offen offset:{i*1024} lds"])
    g.append([f"s_add_u32 m0, s{S_MC}, 4096", f"s_add_u32 s{S_CO}, s{S_CO}, 128", f"s_bitset0_b32 s{S_CO}, 10"])
    for i in range(4): g.append([f"buffer_load_dwordx4 v{VC+i}, {R(SRD_A)}, s72 offen offset:{i*1024} lds"])
    g.append([f"s_mov_b32 m0, s73", f"s_xor_b32 s{S_MC}, s{S_MC}, 0x10000"])
    for x in wdma(None, SRD_B, S_WO_): g.append([x])
    g.append([f"s_add_u32 m0, s73, 16384", f"s_xor_b32 s73, s73, 0x10000"])
    for x in wdma(None, SRD_C, S_WO_): g.append([x])
    g.append([f"s_add_u32 s{S_WO_}, s{S_WO_}, {64*8192}", f"s_bitset0_b32 s{S_WO_}, 22"])
    return g

def wq_dma_ops(nblk):
    g = []
    for h in range(2*nblk):
        g.append([f"s_mov_b32 m0, s74", f"s_add_u32 s74, s74, 16384"])
        for x in wdma(None, SRD_D, S_QO): g.append([x])
        g.append([f"s_add_u32 s{S_QO}, s{S_QO}, {64*8192}", f"s_sub_u32 s75, s{S_QO}, {640*8192}", f"s_cselect_b32 s{S_QO}, s{S_QO}, s75"])
    return g

def emit_groups(a, g):
    for x in g:
        for y in x: a(y)

def x_load(a, ks, regs):
    for qt in range(2):
        a(f"buffer_load_dwordx4 {v(regs[qt],4)}, v{VL16 if qt==0 else VX1}, {WS}, s{S_XB+(ks>>2)} offen offset:{(ks&3)*1024} sc1")
        a.vm.issue(("X", ks))

def ln_counter_poll(a, xl=True, off=0):
    a.srd(SRD_E, P_DBG, 256)
    a("v_mov_b32 v3, 0")
    poll(a, f"buffer_load_dword v2, v3, {R(SRD_E)}, 0 offen offset:{off} sc1", "v_cmp_gt_u32 vcc, 0x100, v2")
    if xl:
        for ks in range(3): x_load(a, ks, XEARLY[2*ks:2*ks+2])

def kv_touch(a, st0):
    sk = a.newlabel("tch")
    a(f"s_cmp_ge_u32 s76, 2\ns_cbranch_scc1 {sk}a")
    a(f"s_and_b32 s6, s{S_H}, 3\ns_lshl_b32 s6, s6, 16\ns_lshl_b32 s7, s{S_P}, 18\ns_add_u32 s6, s6, s7\ns_lshl_b32 s7, s76, 7\ns_add_u32 s6, s6, s7\ns_add_u32 s6, s6, {st0*128}")
    a(f"v_lshrrev_b32 v6, 1, v{L}\nv_lshlrev_b32 v6, 10, v6\nv_and_b32 v7, 1, v{L}\nv_lshl_add_u32 v6, v7, 6, v6")
    a(f"buffer_load_dword v{VDUM}, v6, {R(SRD_A)}, s6 offen\ns_add_u32 s6, s6, 32768\nbuffer_load_dword v{VDUM}, v6, {R(SRD_A)}, s6 offen\ns_branch {sk}c")
    a.label(sk + "a")
    a(f"v_lshrrev_b32 v6, 5, v{L}\nv_lshlrev_b32 v6, 6, v6\nv_bfe_u32 v7, v{L}, 2, 3\nv_add_u32 v6, v6, v7\nv_lshlrev_b32 v6, 13, v6\nv_and_b32 v7, 3, v{L}\nv_lshl_add_u32 v6, v7, 6, v6")
    a(f"s_lshl_b32 s6, s{S_H}, 8\ns_lshl_b32 s7, s{S_P}, 16\ns_add_u32 s6, s6, s7\ns_add_u32 s6, s6, {st0*64*8192}")
    a(f"s_cmp_lg_u32 s76, 2\ns_cbranch_scc1 {sk}b\nbuffer_load_dword v{VDUM}, v6, {R(SRD_B)}, s6 offen\ns_branch {sk}c")
    a.label(sk + "b")
    a(f"buffer_load_dword v{VDUM}, v6, {R(SRD_C)}, s6 offen")
    a.label(sk + "c")

def zero_regs(a, r0, n):
    for i in range(0, n, 2): a(f"v_mov_b64 {v(r0+i,2)}, 0")

def phase_start(a):
    a(f"s_cmp_ge_u32 s2, 256\ns_cbranch_scc1 L_exit")
    a("s_load_dwordx16 s[32:47], s[0:1], 0\ns_load_dwordx8 s[48:55], s[0:1], 64\ns_load_dwordx4 s[56:59], s[0:1], 96")
    a(f"v_lshrrev_b32 v2, 6, v0\nv_and_b32 v{L}, 63, v0\nv_readfirstlane_b32 s{S_W}, v2")
    if "nocode" not in ABL:
        a("s_getpc_b64 s[80:81]")
        a.label("L_pc")
        a(f"s_lshr_b32 s6, s2, 3\ns_and_b32 s6, s6, 15\ns_lshl_b32 s6, s6, 12\ns_cmp_lt_u32 s{S_W}, 2\ns_cselect_b32 s6, 0, s6\nv_lshl_add_u32 v3, v0, 6, s6")
        a(f"v_min_u32 v3, L_exit-L_pc, v3\ns_cmp_ge_u32 s{S_W}, 3\ns_cbranch_scc1 L_noct\nglobal_load_dword v{VDUM}, v3, s[80:81]")
        a.label("L_noct")
    a(f"v_lshrrev_b32 v62, 5, v0\nv_and_b32 v62, 7, v62\nv_and_b32 v2, 31, v0\nv_lshlrev_b32 v2, 3, v2\nv_mul_u32_u24 v63, 1280, v62\nv_add_u32 v63, v63, v2\ns_mul_i32 s6, s2, 10240\nv_add_u32 v10, s6, v63")
    a(f"s_cmp_lt_u32 s{S_W}, 4\ns_cbranch_scc1 L_st_k0")
    a("s_waitcnt lgkmcnt(0)")
    for j in range(5): a(f"global_load_dwordx2 {v(LX+2*j,2)}, v10, s[{P_X}:{P_X+1}] offset:{j*256}")
    for j in range(5): a(f"global_load_dwordx2 {v(LW+2*j,2)}, v2, s[{P_WR}:{P_WR+1}] offset:{j*256}")
    a.label("L_st_k0")
    a(f"s_and_b32 s6, s2, 7\ns_lshl_b32 s6, s6, 2\ns_lshr_b32 s7, s2, 3\ns_and_b32 s7, s7, 3\ns_add_u32 s{S_H}, s6, s7\ns_lshr_b32 s{S_P}, s2, 5\ns_and_b32 s76, s{S_W}, 3")
    a.stamp_init(14, 0); a.stamp(0)
    a(f"v_lshrrev_b32 v2, 3, v{L}\nv_and_b32 v3, 7, v{L}\nv_lshrrev_b32 v4, 4, v{L}\ns_lshl_b32 s6, s76, 6\nv_xor_b32 v5, v3, v4\nv_lshlrev_b32 v5, 4, v5")
    a(f"v_add_u32 v6, s6, v2\nv_lshl_add_u32 v{VC}, v6, 10, v5\nv_xor_b32 v5, 64, v{VC}\nv_add_u32 v{VC+1}, 7168, v5\nv_add_u32 v{VC+2}, 14336, v{VC}\nv_add_u32 v{VC+3}, 14336, v{VC+1}")
    a(f"v_and_b32 v6, 15, v{L}\ns_lshl_b32 s6, s76, 4\nv_add_u32 v7, s6, v4\nv_lshlrev_b32 v5, 1, v4\nv_xor_b32 v5, v6, v5\nv_lshlrev_b32 v5, 4, v5")
    a(f"v_lshl_add_u32 v{VW}, v7, 13, v5\nv_add_u32 v{VW+1}, 31744, v{VW}\nv_xor_b32 v5, 0x80, v{VW}\nv_add_u32 v{VW+2}, 63488, v5\nv_add_u32 v{VW+3}, 31744, v{VW+2}")
    a(f"s_lshl_b32 s{S_CO}, s{S_P}, 18\ns_lshl_b32 s{S_WO_}, s{S_H}, 8\ns_lshl_b32 s{S_MC}, s76, 13\ns_lshl_b32 s73, s76, 12\ns_add_u32 s73, s73, 32768")
    a("s_waitcnt lgkmcnt(0)")
    a.srd(SRD_A, P_CKV, 2048*512*2)
    a.srd(SRD_B, P_WUK, 512*4096*2)
    a.srd(SRD_C, P_WUV, 512*4096*2)
    a(f"s_cmp_ge_u32 s{S_W}, 4\ns_cbranch_scc1 L_st_v0")
    emit_groups(a, kv_dma_ops())
    if "noprio" not in ABL: a("s_setprio 1")
    a("s_branch L_st_j0")
    a.label("L_st_v0")
    if "nokvtouch" not in ABL: kv_touch(a, 1)
    a.label("L_st_j0")
    a.srd(SRD_WS, P_WS, WS_SIZE)
    a.srd(SRD_D, P_WQ, 640*4096*2)
    a(f"v_lshlrev_b32 v{VL16}, 4, v{L}")
    a(f"s_lshl_b32 s6, s{S_P}, 2\ns_add_u32 s7, s6, s{S_W}\ns_sub_u32 s6, 56, s6\ns_add_u32 s6, s6, s{S_W}")
    a(f"s_cmp_lt_u32 s{S_W}, 4\ns_cselect_b32 s{S_B}, s7, s6")
    a(f"s_add_u32 s6, s{S_P}, 7\ns_and_b32 s6, s6, 7\ns_lshl_b32 s6, s6, 5\ns_add_u32 s{S_E}, s6, s{S_H}")
    a(f"v_and_b32 v2, 15, v{L}\nv_lshrrev_b32 v3, 4, v{L}")
    a(f"s_and_b32 s6, s{S_W}, 1\ns_lshl_b32 s6, s6, 7\nv_add_u32 v4, s6, v2\nv_lshlrev_b32 v4, 7, v4\nv_lshrrev_b32 v5, 1, v2")
    for sp in range(2):
        a(f"v_add_u32 v6, {4*sp}, v3\nv_xor_b32 v6, v6, v5\nv_lshl_add_u32 v{RC+sp}, v6, 4, v4")
    a(f"v_lshrrev_b32 v4, 2, v2\nv_lshl_add_u32 v5, v3, 3, v4\nv_lshlrev_b32 v5, 8, v5")
    a(f"v_and_b32 v6, 1, v2\nv_lshl_add_u32 v5, v6, 3, v5")
    a(f"v_and_b32 v6, 1, v3\nv_lshl_or_b32 v4, v6, 2, v4\nv_lshlrev_b32 v4, 1, v4\nv_bfe_u32 v6, v2, 1, 1")
    a(f"v_add_u32 v8, {LDS_SP}, v5")
    for t in range(8):
        a(f"v_add_u32 v7, {2*t}, v6\nv_xor_b32 v7, v7, v4\nv_lshl_add_u32 v{QRW+t}, v7, 4, v8")
    a(f"s_lshr_b32 s6, s{S_W}, 2\ns_lshl_b32 s6, s6, 14\ns_add_u32 s6, s6, 32768\nv_add_u32 v5, s6, v5")
    a(f"s_lshr_b32 s7, s{S_W}, 1\ns_and_b32 s7, s7, 1\ns_lshl_b32 s7, s7, 3")
    for j in range(4):
        a(f"s_add_u32 s6, s7, {2*j}\nv_add_u32 v7, s6, v6\nv_xor_b32 v7, v7, v4\nv_lshl_add_u32 v{RW+j}, v7, 4, v5")
    zero_regs(a, ACC, 128)
    a(f"v_add_u32 v{VX1}, 20480, v{VL16}\ns_mul_i32 s{S_XO}, s{S_B}, 40960")
    a.stamp(1)
    a(f"s_cmp_ge_u32 s{S_W}, 4\ns_cbranch_scc1 L_st_v1")
    emit_groups(a, kv_dma_ops())
    a("s_waitcnt vmcnt(16)\ns_branch L_st_j1")
    a.label("L_st_v1")
    a(f"s_waitcnt vmcnt({0 if 'nokvtouch' in ABL else 1})")
    a.stamp(2)
    ln_compute(a)
    a.label("L_st_j1")
    a.stamp(3)
    a("s_barrier")
    a.stamp(4)

def zero_flags(a):
    a(f"v_mov_b32 v3, {hex(WS_SIZE)}\nv_mov_b32 v2, 0")
    flag_addr(a, "kv", 6); a("v_writelane_b32 v3, s6, 0")
    flag_addr(a, "ctx", 6); a("v_writelane_b32 v3, s6, 1")
    flag_addr(a, "moe", 6); a("v_writelane_b32 v3, s6, 2")
    a(f"s_lshl_b32 s6, s{S_W}, 2\ns_add_u32 s6, s6, {WS_IDX}\ns_cmp_eq_u32 s2, {DESIG}\ns_cselect_b32 s6, s6, {hex(WS_SIZE)}\nv_writelane_b32 v3, s6, 3")
    a(f"buffer_store_dword v2, v3, {WS}, 0 offen sc1")

def half_reduce(a, r):
    for m in ("quad_perm:[1,0,3,2]", "quad_perm:[2,3,0,1]", "row_half_mirror", "row_mirror"):
        a(f"s_nop 1\nv_add_f32_dpp v{r}, v{r}, v{r} {m} row_mask:0xf bank_mask:0xf")
    a(f"v_mov_b32 v8, v{r}\ns_nop 1\nv_permlane16_swap_b32 v{r}, v8\ns_nop 1\nv_add_f32 v{r}, v{r}, v8")

def ln_compute(a):
    X = LV
    NEG = "op_sel_hi:[1,0] neg_lo:[0,1] neg_hi:[0,1]"
    for j in range(10):
        a(f"v_lshlrev_b32 v{X+2*j}, 16, v{LX+j}\nv_and_b32 v{X+2*j+1}, 0xffff0000, v{LX+j}")
    a(f"v_pk_add_f32 v[2:3], {v(X,2)}, {v(X+2,2)}")
    for j in range(2, 10): a(f"v_pk_add_f32 v[2:3], v[2:3], {v(X+2*j,2)}")
    a("v_add_f32 v2, v2, v3")
    half_reduce(a, 2)
    a("s_mov_b32 s7, 0x3acccccd\nv_mul_f32 v2, s7, v2\nv_mov_b64 v[4:5], 0")
    for j in range(10):
        a(f"v_pk_add_f32 v[6:7], {v(X+2*j,2)}, v[2:3] {NEG}\nv_pk_fma_f32 v[4:5], v[6:7], v[6:7], v[4:5]")
    a("v_add_f32 v4, v4, v5")
    half_reduce(a, 4)
    a("v_mul_f32 v4, s7, v4")
    bf16_round(a, 2); bf16_round(a, 4)
    a("v_add_f32 v4, 0x3727c5ac, v4")
    bf16_round(a, 4)
    a("v_sqrt_f32 v4, v4\ns_nop 0")
    bf16_round(a, 4)
    a("v_rcp_f32 v6, v4\ns_nop 0\nv_fma_f32 v5, -v4, v6, 1.0\nv_fmac_f32 v6, v5, v6\nv_mov_b32 v9, 0")
    for j in range(10):
        x = X + 2*j
        a(f"v_pk_add_f32 {v(x,2)}, {v(x,2)}, v[2:3] {NEG}\nv_cvt_pk_bf16_f32 v5, v{x}, v{x+1}")
        a(f"v_lshlrev_b32 v{x}, 16, v5\nv_and_b32 v{x+1}, 0xffff0000, v5")
        a(f"v_pk_mul_f32 {v(x,2)}, {v(x,2)}, v[6:7] op_sel_hi:[1,0]\nv_cvt_pk_bf16_f32 v{LX+j}, v{x}, v{x+1}")
    a(f"v_add_u32 v10, {LDS_LN}, v63")
    for j in range(5): a(f"ds_write_b64 v10, {v(LX+2*j,2)} offset:{j*256}")
    a("s_waitcnt lgkmcnt(0)")

def ln_router(a):
    a(f"s_mul_i32 s6, s2, 10240\ns_add_u32 s6, s6, {WS_XNR}")
    for j in range(5): a(f"buffer_store_dwordx2 {v(LX+2*j,2)}, v63, {WS}, s6 offen offset:{j*256} sc1")
    a("v_mov_b32 v2, 0")
    for j in range(10):
        a(f"v_lshlrev_b32 v4, 16, v{LX+j}\nv_lshlrev_b32 v5, 16, v{LW+j}\nv_fmac_f32 v2, v4, v5")
        a(f"v_and_b32 v4, 0xffff0000, v{LX+j}\nv_and_b32 v5, 0xffff0000, v{LW+j}\nv_fmac_f32 v2, v4, v5")
    half_reduce(a, 2)
    a("v_cvt_pk_bf16_f32 v2, v2, v2\nv_and_b32 v2, 0xffff, v2")
    a("v_bfe_i32 v3, v2, 15, 1\nv_and_b32 v3, 0x7fff, v3\nv_or_b32 v3, 0x8000, v3\nv_xor_b32 v2, v2, v3")
    a(f"s_lshl_b32 s7, s2, 3\ns_sub_u32 s6, 2047, s7\nv_sub_u32 v3, s6, v62\nv_lshl_or_b32 v2, v2, 11, v3")
    a(f"s_lshl_b32 s6, s2, 5\ns_add_u32 s6, s6, {WS_R}\nv_lshlrev_b32 v3, 2, v62\nbuffer_store_dword v2, v3, {WS}, s6 offen sc1")

def ln_store(a, back):
    a(f"s_lshr_b32 s6, s2, 1\ns_mul_i32 s6, s6, 20480\ns_and_b32 s7, s2, 1\ns_lshl_b32 s7, s7, 7\ns_add_u32 s6, s6, s7")
    for n in range(3):
        a(f"v_add_u32 v2, {256*n-256}, v0\nv_lshrrev_b32 v3, 3, v2\nv_and_b32 v4, 7, v2")
        a(f"v_mul_u32_u24 v5, 1280, v4\nv_lshl_add_u32 v5, v3, 4, v5\nv_add_u32 v5, {LDS_LN}, v5")
        a(f"ds_read_b128 {v(LV+4*n,4)}, v5\nv_lshlrev_b32 v5, 8, v3\nv_lshl_add_u32 v{LV+12+n}, v4, 4, v5")
    a("s_waitcnt lgkmcnt(0)")
    for n in range(3):
        if n == 2: a(f"s_cmp_ge_u32 s{S_W}, 6\ns_cbranch_scc1 {back}")
        a(f"buffer_store_dwordx4 {v(LV+4*n,4)}, v{LV+12+n}, {WS}, s6 offen sc1")
    a.label(back)

def count_atomic(a, off):
    a.srd(SRD_E, P_DBG, 256)
    a(f"v_mov_b32 v2, 1\nv_lshlrev_b32 v3, 8, v{L}\nbuffer_atomic_add v2, v3, {R(SRD_E)}, 0 offen offset:{off} sc1")

def flag_addr(a, kind, d):
    if kind == "kv":
        a(f"s_lshl_b32 s{d}, s{S_H}, 3\ns_add_u32 s{d}, s{d}, s{S_P}\ns_lshl_b32 s{d}, s{d}, 5\ns_add_u32 s{d}, s{d}, s{S_W}\ns_lshl_b32 s{d}, s{d}, 2\ns_add_u32 s{d}, s{d}, {WS_KVF}")
    elif kind == "ctx":
        a(f"s_lshl_b32 s{d}, s{S_B}, 5\ns_add_u32 s{d}, s{d}, s{S_H}\ns_lshl_b32 s{d}, s{d}, 7\ns_add_u32 s{d}, s{d}, {WS_CTXF}")
    else:
        a(f"s_lshl_b32 s{d}, s{S_E}, 3\ns_add_u32 s{d}, s{d}, s{S_W}\ns_lshl_b32 s{d}, s{d}, 2\ns_add_u32 s{d}, s{d}, {WS_MOEF}")

def set_flag(a, kind):
    flag_addr(a, kind, 6)
    a(f"v_mov_b32 v2, 1\nv_mov_b32 v3, {hex(WS_SIZE)}\nv_writelane_b32 v3, s6, 0\nbuffer_store_dword v2, v3, {WS}, 0 offen sc1")
    a.vm.issue("flag")

def phase_kv(a):
    def rdC(i, sp):
        if "kv_noC" in ABL: return
        a(f"ds_read_b128 {v(CF+4*i,4)}, v{RC+sp} offset:{i*2048}"); a.lg.issue(("C", i))
    def rdW(par, j, half, sp):
        if "kv_noW" in ABL: return
        r = WF + 16*par + 4*j + 2*half
        a(f"ds_read_b64_tr_b16 {v(r,2)}, v{RW+j} offset:{sp*8192 + half*1024}"); a.lg.issue(("W", par, j, half))
    wq = [(j, hf) for j in range(4) for hf in range(2)]
    def body(isK, lab, dma, nend, hook=None):
        def mm(i, j, par):
            d = ACC + (i*4+j)*4
            a.wait_lg([("C", i), ("W", par, j, 0), ("W", par, j, 1)])
            if isK: a.mfma(d, WF+16*par+4*j, CF+4*i)
            else: a.mfma(d, CF+4*i, WF+16*par+4*j)
        a(".p2align 4")
        a.label(lab)
        if hook:
            a(f"s_branch {hook}"); a.label(hook + "_back")
        for i in range(8):
            for j in range(4):
                mm(i, j, 0)
                if i < 2: rdW(1, *wq[i*4+j], 1)
            rdC(i, 1)
        dma = list(dma)
        if "kv_nodma" in ABL: dma = []
        for i in range(8):
            for j in range(4):
                mm(i, j, 1)
                if i == 2 or i == 3: rdW(0, *wq[(i-2)*4+j], 0)
                if i >= 2 and dma:
                    for y in dma.pop(0): a(y)
            if i == 1:
                for r in (RC, RC+1, RW, RW+1, RW+2, RW+3): a(f"v_xor_b32 v{r}, 0x10000, v{r}")
                if isK: a("s_waitcnt vmcnt(0) lgkmcnt(0)\ns_barrier")
                else:
                    a(f"s_bitcmp1_b32 0x89, s{S_ST}\ns_cbranch_scc0 L_vnow\ns_waitcnt vmcnt({0 if 'nokvtouch' in ABL else 1})\ns_cmp_eq_u32 s{S_ST}, 0\ns_cbranch_scc1 L_vnow\ns_waitcnt vmcnt(0)")
                    a.label("L_vnow")
                    a("s_waitcnt lgkmcnt(0)\ns_barrier")
                a.lg.drain()
                a.stampd(S_ST, 24)
                rdC(0, 0); rdC(1, 0)
            elif i >= 2: rdC(i, 0)
        emit_groups(a, dma)
        a(f"s_add_u32 s{S_ST}, s{S_ST}, 1\ns_cmp_lt_u32 s{S_ST}, {nend}\ns_cbranch_scc1 {lab}")
    def first_reads():
        a.lg.drain()
        rdC(0, 0); rdC(1, 0)
        for k in range(4): rdW(0, *wq[k], 0)
        rdC(2, 0)
        for k in range(4, 8): rdW(0, *wq[k], 0)
        for i in range(3, 8): rdC(i, 0)
    def consts():
        a(f"s_mov_b32 s{S_ST}, 0")
        a(f"s_lshl_b32 s6, s{S_H}, 20\ns_lshl_b32 s7, s{S_P}, 16\ns_add_u32 s6, s6, s7\ns_and_b32 s7, s{S_W}, 1\ns_lshl_b32 s7, s7, 15\ns_add_u32 s6, s6, s7\ns_add_u32 s{S_KVD}, s6, {WS_KV}")
        if "noqrot" in ABL: a("s_mov_b32 s6, 0")
        else:
            a(f"s_and_b32 s6, s{S_H}, 3\ns_add_u32 s6, s6, s{S_P}")
            for _ in range(2): a("s_sub_u32 s7, s6, 5\ns_cselect_b32 s6, s6, s7")
        a(f"s_lshl_b32 s{S_QO}, s6, 20\ns_lshl_b32 s7, s{S_H}, 8\ns_add_u32 s{S_QO}, s{S_QO}, s7")
        for i in range(5):
            a(f"s_lshl_b32 s7, s6, 12\ns_add_u32 s{S_XB+i}, s{S_XO}, s7")
            if i < 4: a("s_add_u32 s6, s6, 1\ns_cmp_eq_u32 s6, 5\ns_cselect_b32 s6, 0, s6")
        a(f"s_lshr_b32 s7, s{S_W}, 1\ns_and_b32 s7, s7, 1")
    a(f"s_cmp_ge_u32 s{S_W}, 4\ns_cbranch_scc1 L_kv_v")
    first_reads()
    q0 = list(a.lg.q)
    zero_flags(a)
    consts()
    a(f"s_lshl_b32 s7, s7, 11\ns_add_u32 s{S_KVD}, s{S_KVD}, s7\ns_movk_i32 s{S_INCA}, 3072\ns_movk_i32 s{S_INCB}, 3072")
    a(f"s_add_u32 s{S_QO}, s{S_QO}, {128*8192}\ns_sub_u32 s75, s{S_QO}, {640*8192}\ns_cselect_b32 s{S_QO}, s{S_QO}, s75\ns_lshl_b32 s74, s76, 12")
    a.stamp(5)
    body(True, "L_kloopA", kv_dma_ops(), 6)
    assert a.lg.q == q0, (a.lg.q, q0)
    for ks in range(3): x_load(a, ks, XEARLY[2*ks:2*ks+2])
    body(True, "L_kloopB", wq_dma_ops(2), 8)
    a.stamp(6)
    a("s_waitcnt lgkmcnt(0)\ns_nop 7")
    for n in range(16):
        t = ACC + 4*n; d0 = ACC + 8*n; d1 = d0 + 4
        a(f"v_cvt_pk_bf16_f32 v{t}, v{d0}, v{d0+1}\nv_cvt_pk_bf16_f32 v{t+1}, v{d0+2}, v{d0+3}")
        a(f"v_cvt_pk_bf16_f32 v{t+2}, v{d1}, v{d1+1}\nv_cvt_pk_bf16_f32 v{t+3}, v{d1+2}, v{d1+3}")
    a("s_branch L_q")
    a.label("L_hook")
    for k in (1, 2, 3, 4, 5, 6): a(f"s_cmp_eq_u32 s{S_ST}, {k}\ns_cbranch_scc1 L_hook{k}")
    a(f"s_cmp_lg_u32 s{S_ST}, 7\ns_cbranch_scc1 L_hook_back")
    for ks in range(3): x_load(a, ks, XEARLY[2*ks:2*ks+2])
    a("s_branch L_hook_back")
    a.label("L_hook1")
    a(f"s_cmp_lg_u32 s{S_W}, 4\ns_cbranch_scc1 L_hook1b")
    count_atomic(a, 0)
    a.label("L_hook1b")
    if "nokvtouch" not in ABL: kv_touch(a, 5)
    a("s_branch L_hook_back")
    a.label("L_hook2")
    if "nokvtouch" not in ABL: kv_touch(a, 6)
    a.srd(SRD_E, P_WO, 4096*640*2)
    a(f"s_lshr_b32 s73, s2, 1\ns_mul_i32 s73, s73, {32*1280}\ns_and_b32 s6, s2, 1\ns_mul_i32 s6, s6, 640\ns_add_u32 s73, s73, s6\ns_movk_i32 s7, 1639")
    a(f"s_mul_i32 s74, s76, 5120\ns_add_u32 s74, s74, {LDS_WOT}\ns_mul_i32 s6, s76, 320\nv_add_u32 v9, s6, v{L}")
    for n in range(5):
        a(f"v_add_u32 v2, {n*64}, v9\nv_mul_lo_u32 v3, v2, s7\nv_lshrrev_b32 v3, 16, v3\nv_mul_u32_u24 v4, 40, v3\nv_sub_u32 v4, v2, v4")
        a(f"v_mul_u32_u24 v3, 1280, v3\nv_lshl_add_u32 v3, v4, 4, v3\ns_add_u32 m0, s74, {n*1024}\ns_nop 0")
        a(f"buffer_load_dwordx4 v3, {R(SRD_E)}, s73 offen lds")
    a.label("L_hook3")
    a("s_branch L_hook_back")
    a.label("L_hook4")
    WOTR = [16, 20, 24, 28, 32]
    a(f"v_and_b32 v2, 15, v{L}\nv_lshrrev_b32 v3, 4, v{L}\nv_lshrrev_b32 v4, 2, v2\nv_lshl_add_u32 v4, v3, 2, v4\nv_mul_u32_u24 v4, 640, v4")
    a(f"v_and_b32 v2, 3, v2\nv_lshl_add_u32 v4, v2, 3, v4\ns_mul_i32 s6, s76, 160\ns_add_u32 s6, s6, {LDS_WOT}\nv_add_u32 v4, s6, v4")
    a(f"s_mul_i32 s6, s2, 20480\ns_mul_i32 s7, s76, 5120\ns_add_u32 s6, s6, s7\ns_add_u32 s6, s6, {WS_WOF}\ns_add_u32 s7, s6, 4096")
    for n in range(5):
        d = WOTR[n]
        a(f"ds_read_b64_tr_b16 v[{d}:{d+1}], v4 offset:{n*32}\nds_read_b64_tr_b16 v[{d+2}:{d+3}], v4 offset:{n*32+10240}")
    a("s_waitcnt lgkmcnt(0)")
    for n in range(5):
        a(f"buffer_store_dwordx4 {v(WOTR[n],4)}, v{VL16}, {WS}, s{6 if n<4 else 7} offen offset:{(n&3)*1024} sc1")
    a.srd(SRD_E, P_DBG, 256)
    a(f"v_mov_b32 v3, 0\nbuffer_load_dword v62, v3, {R(SRD_E)}, 0 offen sc1\ns_branch L_hook_back")
    a.label("L_hook5")
    a("s_waitcnt vmcnt(0)\nv_cmp_gt_u32 vcc, 0x100, v62\ns_cbranch_vccz L_hook5b")
    ln_counter_poll(a, False)
    a.label("L_hook5b")
    a(f"s_lshl_b32 s74, s76, 12\ns_add_u32 s74, s74, {LDS_SP}")
    emit_groups(a, wq_dma_ops(1))
    a("s_branch L_hook_back")
    a.label("L_hook6")
    a(f"s_cmp_lg_u32 s{S_W}, 4\ns_cbranch_scc1 L_hook_back")
    count_atomic(a, 128)
    a("s_branch L_hook_back")
    a.label("L_kv_v")
    ln_store(a, "L_lns")
    first_reads()
    ln_router(a)
    zero_flags(a)
    if "nokvtouch" not in ABL: kv_touch(a, 3)
    consts()
    a.stamp(5)
    a(f"s_lshl_b32 s7, s7, 12\ns_add_u32 s{S_KVD}, s{S_KVD}, s7\ns_add_u32 s{S_KVD}, s{S_KVD}, 0x80000\ns_movk_i32 s{S_INCA}, 1024\ns_movk_i32 s{S_INCB}, 5120")
    body(False, "L_vloop", [], 8, hook="L_hook")
    a.stamp(6)
    a("s_waitcnt lgkmcnt(0)\ns_nop 7")
    for ii in range(4):
        for j in range(4):
            t = ACC + 16*ii + 4*j; d0 = ACC + 32*ii + 4*j; d1 = d0 + 16
            a(f"v_cvt_pk_bf16_f32 v{t}, v{d0}, v{d0+1}\nv_cvt_pk_bf16_f32 v{t+1}, v{d0+2}, v{d0+3}")
            a(f"v_cvt_pk_bf16_f32 v{t+2}, v{d1}, v{d1+1}\nv_cvt_pk_bf16_f32 v{t+3}, v{d1+2}, v{d1+3}")

QF, O_, S_, FR, P_, NM, T_, L_, ET = 16, 192, 64, 96, 128, 144, 52, 56, 58
VA, VDK, VDV = 48, 49, 50
S_N, S_NL, S_C, S_THR = 62, 63, 64, 65
THRESH = 0x4b800000
def Sreg(par, kt, qt): return S_ + 16*par + (kt*2+qt)*4
def NMreg(kt, qt): return NM + (kt*2+qt)*4
def Oreg(t, qt): return O_ + (t*2+qt)*4
def Qreg(qt, s): return QF + (qt*4+s)*4
def Preg(par, qt): return P_ + 8*par + 4*qt
def Treg(par, qt): return T_ + 2*par + qt

def xlane(a, op, r, t):
    for sw in ("v_permlane16_swap_b32", "v_permlane32_swap_b32"):
        a(f"v_mov_b32 v{t}, v{r}\ns_nop 1\n{sw} v{r}, v{t}\ns_nop 1\n{op} v{r}, v{r}, v{t}")

def st_dma(a, parts):
    if "K" in parts:
        for hf in range(2):
            a(f"s_lshl_b32 s6, s76, 13\ns_add_u32 s6, s6, s78\ns_add_u32 m0, s6, {hf*4096}\ns_add_u32 s7, s77, {hf*4096}")
            for i in range(4): a(f"buffer_load_dwordx4 v{VDK}, {WS}, s7 offen offset:{i*1024} sc1 lds")
    for hf in range(2):
        if f"V{hf}" in parts:
            a(f"s_lshl_b32 s6, s76, 12\ns_add_u32 s6, s6, s78\ns_add_u32 m0, s6, {32768+hf*16384}\ns_add_u32 s7, s77, {0x80000-16384+hf*16384}")
            for i in range(4): a(f"buffer_load_dwordx4 v{VDV}, {WS}, s7 offen offset:{i*1024} sc1 lds")

S_HK, S_ALL = 89, 90
def kv_self_touch(a):
    a(f"v_lshrrev_b32 v9, 3, v{L}\ns_cmp_lt_u32 s{S_W}, 4\ns_cselect_b32 s7, 6, 4\nv_and_b32 v10, s7, v9\nv_add_u32 v9, v9, v10\nv_lshlrev_b32 v9, 10, v9")
    a(f"v_and_b32 v10, 7, v{L}\nv_lshl_add_u32 v9, v10, 7, v9\ns_sub_u32 s6, s{S_KVD}, 32768")
    a(f"buffer_load_dword v{VDUM}, v9, {WS}, s6 offen sc1\ns_add_u32 s6, s6, 16384\nbuffer_load_dword v{VDUM}, v9, {WS}, s6 offen sc1")

def kv_flag_wait(a, need):
    lp = a.newlabel("kvp"); dn = a.newlabel("kvpd")
    a(f"s_cmp_ge_u32 s{S_ALL}, {need}\ns_cbranch_scc1 {dn}")
    a(f"s_lshl_b32 s7, s{S_H}, 10\ns_add_u32 s7, s7, {WS_KVF}\nv_lshrrev_b32 v2, 3, v{L}\nv_and_b32 v3, 7, v{L}\nv_lshlrev_b32 v3, 2, v3\nv_lshl_add_u32 v3, v2, 7, v3\ns_mov_b32 s79, {SPIN}")
    a.label(lp)
    a(f"buffer_load_dword v2, v3, {WS}, s7 offen sc1\ns_waitcnt vmcnt(0)\nv_cmp_ne_u32 vcc, 1, v2\ns_nop 3")
    a(f"s_ff1_i32_b64 s{S_ALL}, vcc\ns_cmp_ge_u32 s{S_ALL}, {need}\ns_cbranch_scc1 {dn}")
    a(f"s_sleep 2\ns_sub_u32 s79, s79, 1\ns_cmp_lg_u32 s79, 0\ns_cbranch_scc1 {lp}")
    a.label(dn)

KS_POLL = int(os.environ.get("KSP", "15"))
LATE_KS = (6, 8, 10, 12, 14, 16, 17, 18)
NEARLY = int(os.environ.get("NEARLY", "2"))
def kv_store(a, n, late=True):
    if late and "nolate" in ABL: return
    a(f"buffer_store_dwordx4 {v(ACC+4*n,4)}, v{VL16}, {WS}, s{S_KVD} offen sc1"); a.vm.issue("st")
    inc = ("1024", f"s{S_INCA}", "1024", f"s{S_INCB}")[n & 3]
    a(f"s_add_u32 s{S_KVD}, s{S_KVD}, {inc}")
def q_variant(a, early):
    sfx = "e" if early else "l"
    a.lg.drain(); a.vm.drain()
    def rdW(t, hf, ks):
        blk = ks >> 2
        off = (0, 0, 32768, 0, 32768)[blk] + (ks & 3)*8192 + hf*1024
        a(f"ds_read_b64_tr_b16 {v(WF+4*t+2*hf,2)}, v{QRW+t} offset:{off}"); a.lg.issue(("W", t, hf))
    for t in range(8):
        rdW(t, 0, 0); rdW(t, 1, 0)
    xr = {ks: XEARLY[2*ks:2*ks+2] for ks in range(3)}
    for ks in range(3, 7):
        xr[ks] = [CF + 8*(ks-3), CF + 8*(ks-3) + 4]
        x_load(a, ks, xr[ks])
    nst = 0
    for ks in range(20):
        pend = []
        a.wait_vm(("X", ks))
        if ks % 2 == 0: a.stamp(32 + ks//2)
        barrier_here = (ks == 11)
        upd = {3: -LDS_SP, 11: 65536}.get(ks)
        st_at = ((1, 3, 5, 7) if early else ((3,) if ks in LATE_KS else ()))
        for t in range(8):
            for qt in range(2):
                if qt == 0: a.wait_lg([("W", t, 0), ("W", t, 1)])
                a.mfma(Oreg(t, qt), WF+4*t, xr[ks][qt], "0" if ks == 0 else None)
                if qt == 1 and ks < 19: pend += [(t, 0), (t, 1)]
                if barrier_here and t == 1 and qt == 1:
                    a("s_waitcnt lgkmcnt(0)\ns_barrier"); a.lg.drain()
                    while len(pend) > 2: rdW(*pend.pop(0), ks+1)
                if pend and not (barrier_here and (t, qt) < (1, 1)): rdW(*pend.pop(0), ks+1)
                if upd is not None and qt == 0:
                    a(f"v_add_u32 v{QRW+t}, {hex(upd & 0xffffffff)}, v{QRW+t}")
                if qt == 0 and t in st_at and nst < 16:
                    kv_store(a, nst, not early); nst += 1
        while pend: rdW(*pend.pop(0), ks+1)
        if ks + 7 < 20:
            xr[ks+7] = xr[ks]; x_load(a, ks+7, xr[ks])
        if early and ks == 3: a("s_barrier")
        if early and ks == 5:
            assert nst == 16
            a.wait_vm("st")
            set_flag(a, "kv")
        if ks == KS_POLL:
            a.wait_vm(("X", 19))
            a(f"s_cmp_ge_u32 s{S_W}, 4\ns_cbranch_scc1 L_q_nold{sfx}")
            a.stamp(20)
            kv_flag_wait(a, "8")
            a.stamp(21)
            st_dma(a, ["K", "V1"])
            a(f"s_branch L_q_j{sfx}")
            a.label(f"L_q_nold{sfx}")
            a(f"v_mov_b32 v3, 0\nbuffer_load_dword v63, v3, {R(SRD_E)}, 0 offen offset:128 sc1")
            a.label(f"L_q_j{sfx}")
    assert nst == (16 if early else 8)

def phase_q(a):
    a.label("L_q")
    a.srd(SRD_E, P_DBG, 256)
    a(f"s_lshl_b32 s6, s76, 13\nv_add_u32 v{VDK}, s6, v{VL16}\ns_lshl_b32 s6, s76, 12\nv_add_u32 v{VDV}, s6, v{VL16}")
    a(f"s_lshl_b32 s77, s{S_H}, 20\ns_add_u32 s77, s77, {WS_KV}\ns_mov_b32 s78, 0\ns_mov_b32 s{S_ALL}, 0")
    a(f"s_cmp_lt_u32 s{S_W}, 4\ns_cselect_b32 s{S_HK}, 1, 0")
    a(f"s_cmp_ge_u32 s{S_P}, {NEARLY}\ns_cbranch_scc1 L_q_late")
    q_variant(a, True)
    a("s_branch L_q_end")
    a.label("L_q_late")
    a(f"s_or_b32 s{S_HK}, s{S_HK}, 2")
    q_variant(a, False)
    a.label("L_q_end")
    a.stamp(7)
    a("s_mov_b32 s6, 0x3e0293ee\ns_nop 7")
    for qt in range(2):
        a(f"s_cmp_lt_u32 s{S_P}, {NEARLY}\ns_cbranch_scc1 L_qs{qt}")
        kv_store(a, 8+2*qt); kv_store(a, 9+2*qt)
        a.label(f"L_qs{qt}")
        for s_ in range(4):
            for hf in range(2):
                d = Oreg(2*s_+hf, qt)
                for r in range(4): a(f"v_mul_f32 v{d+r}, s6, v{d+r}")
                a(f"v_cvt_pk_bf16_f32 v{Qreg(qt,s_)+2*hf}, v{d}, v{d+1}\nv_cvt_pk_bf16_f32 v{Qreg(qt,s_)+2*hf+1}, v{d+2}, v{d+3}")
    zero_regs(a, O_, 64)
    zero_regs(a, NM, 16)
    zero_regs(a, T_, 6)
    a(f"v_mov_b32 v{VA}, v{VL16}")
    a(f"s_waitcnt vmcnt({0 if 'nolate' in ABL else 4+len([k for k in LATE_KS if k > KS_POLL])})\ns_cmp_ge_u32 s{S_P}, {NEARLY}\ns_cbranch_scc1 L_q_w\ns_waitcnt vmcnt(0)")
    a.label("L_q_w")
    a(f"s_cmp_lt_u32 s{S_W}, 4\ns_cbranch_scc1 L_q_c\nv_cmp_gt_u32 vcc, 0x100, v63\ns_cbranch_vccz L_q_c")
    ln_counter_poll(a, False, 128)
    a.label("L_q_c")

def sm_ops(par):
    ops = []
    n = 0
    for kt in range(2):
        for qt in range(2):
            for r in range(4):
                t, tp = ET + n % 4, ET + (n-1) % 4
                e = f"v_exp_f32 v{t}, v{Sreg(par,kt,qt)+r}"
                rest = []
                if kt == 0 and r == 0: pass
                elif kt == 0 and r == 1: rest.append(f"v_add_f32 v{Treg(par,qt)}, v{tp}, v{t}")
                else: rest.append(f"v_add_f32 v{Treg(par,qt)}, v{t}, v{Treg(par,qt)}")
                if r & 1: rest.append(f"v_cvt_pk_bf16_f32 v{Preg(par,qt)+2*kt+(r>>1)}, v{tp}, v{t}")
                ops.append((e, rest)); n += 1
    return ops

def phase_attn(a):
    handlers = []
    FULLQ = [("F", i) for i in range(8)]
    def rd(kind, i, k):
        off = (0 if kind == "K" else 32768) + k*8192 + i*1024
        a(f"ds_read_b128 {v(FR+4*i,4)}, v{VA} offset:{off}"); a.lg.issue(("F", i))
    def bar(wait="vmcnt(0) lgkmcnt(0)", mid=None):
        bk = a.newlabel("ldback")
        a(f"s_waitcnt {wait}\ns_barrier"); a.lg.drain()
        if "stampbar" in ABL: a.stampd(S_N, 44)
        if mid: mid()
        a(f"s_cmp_lg_u32 s{S_HK}, 0\ns_cbranch_scc1 {bk}_c")
        a.label(bk)
        a(f"s_add_i32 s{S_N}, s{S_N}, 1")
        handlers.append(("ld", bk))
    def ladd(par, qt): return f"v_add_f32 v{L_+qt}, v{Treg(par,qt)}, v{L_+qt}"
    def stage(k, qk=True, sm=True, pv=True, nxt=True, loop=False):
        pq, ps = k & 1, 1 - (k & 1)
        pairs = []
        if pv: pairs += [("V", i) for i in range(8)]
        if qk: pairs += [("K", i) for i in range(8)]
        NP = len(pairs)
        g0 = [[] for _ in range(NP)]; g1 = [[] for _ in range(NP)]
        full = qk and pv
        if sm:
            ops = sm_ops(ps)[2:]
            per = 1 if full else 2
            for n, (e, rest) in enumerate(ops):
                g0[n//per].append(e); g1[n//per] += rest
            cp = NP - 2 if full else NP - 1
            g1[cp] += [f"v_add_f32 v{ET+4}, v{Treg(ps,0)}, v{Treg(ps,1)}", f"v_cmp_nge_f32 vcc, s{S_THR}, v{ET+4}"]
        g1[0].append(ladd(pq, 0)); g1[2].append(ladd(pq, 1))
        if full:
            for n, (e, rest) in enumerate(sm_ops(pq)[:2]):
                g0[14+n].append(e); g1[14+n] += rest
        sc = {}
        if loop:
            sc[3] = f"s_sub_i32 s{S_C}, s{S_C}, 1"; sc[5] = f"s_cmp_gt_i32 s{S_C}, 0"; sc[7] = f"s_cselect_b32 s{S_THR}, s72, -1.0"
        barp = (NP - 8 + 1) if k == 3 else None
        held = []
        a.wait_lg(("F", 0))
        for n, (kind, i) in enumerate(pairs):
            for qt in range(2):
                if kind == "V": a.mfma(Oreg(i, qt), FR+4*i, Preg(pq, qt))
                else: a.mfma(Sreg(pq, i >> 2, qt), FR+4*i, Qreg(qt, i & 3), None if i & 3 else NMreg(i >> 2, qt))
                if qt == 0:
                    if n + 1 < NP: a.wait_lg(("F", pairs[n+1][1]))
                    for x in g0[n]: a(x)
                    if barp is not None and n == barp: a(f"v_xor_b32 v{VA}, 0x10000, v{VA}")
                else:
                    if n in sc: a(sc[n])
                    if kind == "V" and qk: rd("K", i, k)
                    elif not nxt:
                        if n == barp: bar()
                    else:
                        if barp is not None and n < barp: held.append(i)
                        else:
                            if n == barp:
                                bar()
                                for h in held: rd("V", h, 0)
                            rd("V", i, (k+1) & 3)
                    for x in g1[n]: a(x)
        if sm:
            bk = a.newlabel("back")
            a(f"s_cbranch_vccnz {bk}_h")
            a.label(bk)
            handlers.append(("sm", bk, k, loop, full))
    a(f"s_mov_b32 s72, {hex(THRESH)}\ns_mov_b32 s{S_THR}, s72\ns_sub_u32 s{S_NL}, 15, s{S_P}\ns_mov_b32 s{S_N}, -1")
    a.stamp(8)
    bar("lgkmcnt(0)")
    a.stamp(9)
    for i in range(8): rd("K", i, 0)
    a(f"s_cmp_lg_u32 s{S_B}, 0\ns_cbranch_scc1 L_nm0\ns_call_b64 s[82:83], L_mask")
    a.label("L_nm0")
    for i in range(8):
        a.wait_lg(("F", i))
        for qt in range(2):
            a.mfma(Sreg(0, i >> 2, qt), FR+4*i, Qreg(qt, i & 3), None if i & 3 else NMreg(i >> 2, qt))
        rd("K", i, 1)
    a("s_nop 7")
    for qt in range(2):
        m = ET + qt
        s0, s1 = Sreg(0, 0, qt), Sreg(0, 1, qt)
        a(f"v_max3_f32 v{m}, v{s0}, v{s0+1}, v{s0+2}\nv_max3_f32 v{m}, v{m}, v{s0+3}, v{s1}\nv_max3_f32 v{m}, v{m}, v{s1+1}, v{s1+2}\nv_max_f32 v{m}, v{m}, v{s1+3}")
        xlane(a, "v_max_f32", m, ET+2)
        for kt in range(2):
            for r in range(4):
                a(f"v_sub_f32 v{Sreg(0,kt,qt)+r}, v{Sreg(0,kt,qt)+r}, v{m}\nv_sub_f32 v{NMreg(kt,qt)+r}, 0, v{m}")
    a(f"s_cmp_lg_u32 s{S_B}, 1\ns_cbranch_scc1 L_nm1\ns_call_b64 s[82:83], L_mask")
    a.label("L_nm1")
    def early(par):
        o = sm_ops(par)[:2]
        a(o[0][0]); a(o[1][0]); a("s_nop 0")
        for x in o[1][1]: a(x)
    early(0)
    stage(1, pv=False)
    assert a.lg.q == FULLQ
    a("s_nop 7")
    early(1)
    a(f"s_cmp_lt_u32 s{S_P}, {NEARLY}\ns_cbranch_scc1 L_qs2")
    for n in range(12, 16): kv_store(a, n)
    a.label("L_qs2")
    a(f"s_sub_i32 s{S_C}, s{S_B}, 2")
    a.stamp(10)
    a(f"s_cmp_eq_u32 s{S_B}, 0\ns_cbranch_scc1 L_pv2\ns_cmp_eq_u32 s{S_B}, 1\ns_cbranch_scc1 L_tail2")
    a(f"s_cmp_lg_u32 s{S_B}, 2\ns_cbranch_scc1 L_st2\ns_call_b64 s[82:83], L_mask\ns_branch L_st2")
    a(".p2align 6")
    a.label("L_st0")
    for k in range(4):
        if k == 2: a.label("L_st2")
        stage(k, loop=True)
        assert a.lg.q == FULLQ
    a("s_branch L_st0")
    for k in range(4):
        a.label(f"L_tail{k}")
        a.lg.q = list(FULLQ)
        a(f"s_mov_b32 s{S_THR}, s72")
        stage(k, qk=False)
        assert a.lg.q == FULLQ
        a.label(f"L_pv{(k+1)&3}")
        stage((k+1) & 3, qk=False, sm=False, nxt=False)
        if k < 3: a("s_branch L_fin")
    a.label("L_fin")
    a.stamp(11)
    for qt in range(2):
        xlane(a, "v_add_f32", L_+qt, ET)
        a(f"v_rcp_f32 v{L_+qt}, v{L_+qt}")
    a(f"s_lshl_b32 s6, s{S_B}, 18\ns_lshl_b32 s7, s{S_H}, 12\ns_add_u32 s6, s6, s7\ns_add_u32 s6, s6, {WS_CTX}\ns_nop 4")
    n = 0
    a.vm.drain()
    for qt in range(2):
        for s_ in range(4):
            t = QF + 4*n; n += 1
            for hf in range(2):
                d = Oreg(2*s_+hf, qt)
                for r in range(4): a(f"v_mul_f32 v{d+r}, v{L_+qt}, v{d+r}")
                a(f"v_cvt_pk_bf16_f32 v{t+2*hf}, v{d}, v{d+1}\nv_cvt_pk_bf16_f32 v{t+2*hf+1}, v{d+2}, v{d+3}")
            a(f"buffer_store_dwordx4 {v(t,4)}, v{VL16}, {WS}, s6 offen offset:{s_*1024} sc1"); a.vm.issue("st")
        if qt == 0: a("s_add_u32 s6, s6, 0x20000")
    a.stamp(12)
    def flag_now():
        a("s_waitcnt vmcnt(0)")
        set_flag(a, "ctx")
    a(f"s_cmp_gt_i32 s{S_N}, s{S_NL}\ns_cbranch_scc1 L_e0")
    bar("vmcnt(8)", flag_now)
    a("s_branch L_e1")
    a.label("L_e0")
    flag_now()
    a.label("L_e1")
    a.label("L_idle")
    a(f"s_sub_i32 s6, s{S_NL}, 3\ns_cmp_gt_i32 s{S_N}, s6\ns_cbranch_scc1 L_pre")
    bar()
    a(f"s_cmp_lt_u32 s{S_E}, 54\ns_cbranch_scc1 L_moe\ns_cmp_lg_u32 s2, {DESIG}\ns_cbranch_scc1 L_idle")
    pD = DESIG >> 5
    a(f"s_cmp_eq_u32 s{S_N}, {pD+3}\ns_cbranch_scc1 L_top1\ns_cmp_eq_u32 s{S_N}, {pD+4}\ns_cbranch_scc1 L_top2\ns_branch L_idle")
    a.label("L_pre")
    a(f"s_cmp_lt_u32 s{S_W}, 4\ns_cbranch_scc1 L_pre1\ns_barrier")
    a.label("L_pre1")
    a.vm.drain()
    for j in range(3):
        out_prefetch(a, j)
        a(f"s_cmp_gt_i32 s{S_N}, s{S_NL}\ns_cbranch_scc1 L_e{j+2}")
        bar(f"vmcnt({12 if j == 0 else 10})")
        a.label(f"L_e{j+2}")
    global VMQ
    VMQ = list(a.vm.q)
    a(f"s_cmp_ge_u32 s{S_W}, 4\ns_cbranch_scc1 L_adone")
    moe_finish(a)
    a("s_barrier\ns_branch L_adone")
    moe_steps(a, bar)
    top8(a)
    for h in handlers:
        if h[0] == "ld":
            a.label(h[1] + "_c"); a(f"s_call_b64 s[82:83], L_load\ns_branch {h[1]}")
        else:
            _, bk, k, loop, full = h
            a.label(bk + "_h")
            a(f"v_cmp_nge_f32 vcc, s72, v{ET+4}\ns_cbranch_vccz {bk}_n\ns_call_b64 s[80:81], L_rare{1-(k&1)}")
            if full:
                o = sm_ops(k & 1)[:2]
                a(o[0][0]); a(o[1][0]); a("s_nop 0")
                for x in o[1][1]: a(x)
            a.label(bk + "_n")
            if loop:
                a(f"s_cmp_lt_i32 s{S_C}, 0\ns_cbranch_scc1 L_tail{(k+1)&3}\ns_cmp_gt_i32 s{S_C}, 0\ns_cbranch_scc1 {bk}\ns_call_b64 s[82:83], L_mask")
            a(f"s_branch {bk}")
    a.label("L_load")
    a(f"s_bitcmp1_b32 s{S_HK}, 0\ns_cbranch_scc0 L_load_r")
    a(f"s_add_u32 s77, s77, 32768\ns_xor_b32 s78, s78, 0x10000\ns_add_i32 s73, s{S_N}, 1\ns_cmp_gt_i32 s73, s{S_NL}\ns_cbranch_scc1 L_load_r")
    if "at_nodma" not in ABL:
        a(f"s_cmp_eq_i32 s73, s{S_NL}\ns_cbranch_scc1 L_load_v\ns_bitcmp1_b32 s73, 0\ns_cbranch_scc0 L_load_k")
        a("s_lshl_b32 s74, s73, 2\ns_add_u32 s74, s74, 12")
        kv_flag_wait(a, "s74")
        a.label("L_load_k")
        st_dma(a, ["K", "V1"])
        a.label("L_load_v")
        st_dma(a, ["V0"])
    a(f"s_cmp_lt_u32 s{S_P}, 4\ns_cbranch_scc1 L_load_r\ns_sub_i32 s79, s73, 2\ns_cmp_lt_u32 s79, 2\ns_cbranch_scc1 L_x3")
    a.label("L_load_r")
    a(f"s_bitcmp1_b32 s{S_HK}, 1\ns_cbranch_scc0 L_load_a\ns_cmp_lt_i32 s{S_N}, 0\ns_cbranch_scc1 L_load_a")
    set_flag(a, "kv")
    a(f"s_and_b32 s{S_HK}, s{S_HK}, 1")
    a.label("L_load_a")
    a("s_setpc_b64 s[82:83]")
    a.label("L_x3")
    if "nomoetouch" not in ABL:
        a.srd(SRD_A, P_WG, 640*1728*2)
        a(f"s_cmp_eq_u32 s{S_W}, 3\ns_cbranch_scc1 L_load_r")
        a(f"s_cmp_eq_u32 s{S_W}, 1\ns_cselect_b32 s{SRD_A}, s{P_WU}, s{SRD_A}\ns_cselect_b32 s{SRD_A+1}, s{P_WU+1}, s{SRD_A+1}")
        a(f"s_cmp_eq_u32 s{S_W}, 2\ns_cselect_b32 s{SRD_A}, s{P_WD}, s{SRD_A}\ns_cselect_b32 s{SRD_A+1}, s{P_WD+1}, s{SRD_A+1}")
        a(f"s_mov_b32 s73, 3456\ns_cmov_b32 s73, 256\ns_mov_b32 s75, 256\ns_cmov_b32 s75, {4*40960}")
        a(f"s_lshr_b32 s6, s2, 3\ns_sub_u32 s6, s6, 16\ns_mul_i32 s6, s6, 40\nv_lshrrev_b32 v2, 2, v{L}\nv_add_u32 v2, s6, v2\nv_mul_lo_u32 v2, v2, s73\nv_and_b32 v3, 3, v{L}\nv_lshl_add_u32 v2, v3, 6, v2")
        a(f"s_lshl_b32 s6, s79, 3\ns_lshr_b32 s7, s{S_H}, 2\ns_add_u32 s6, s6, s7\ns_mul_i32 s6, s6, s75")
        a(f"v_mov_b32 v3, {hex(WS_SIZE)}\nv_cmp_gt_u32 vcc, 32, v{L}\ns_lshl_b32 s73, s73, 4\ns_nop 0\nv_cndmask_b32 v3, v3, v2, vcc")
        a(f"buffer_load_dword v{VDUM}, v2, {R(SRD_A)}, s6 offen\ns_add_u32 s7, s6, s73\nbuffer_load_dword v{VDUM}, v2, {R(SRD_A)}, s7 offen")
        a(f"s_add_u32 s7, s7, s73\nbuffer_load_dword v{VDUM}, v3, {R(SRD_A)}, s7 offen")
    a("s_setpc_b64 s[82:83]")
    a.label("L_mask")
    a(f"v_and_b32 v2, 15, v{L}\nv_lshrrev_b32 v3, 4, v{L}\nv_lshlrev_b32 v3, 2, v3\nv_sub_u32 v2, v2, v3\nv_mov_b32 v3, 0xff800000")
    for r in range(4):
        a(f"v_cmp_gt_i32 vcc, {r}, v2\nv_mov_b32 v{NMreg(1,0)+r}, v3\ns_nop 0")
        a(f"v_cndmask_b32 v{NMreg(0,0)+r}, v{NMreg(0,0)+r}, v3, vcc\nv_cndmask_b32 v{NMreg(1,1)+r}, v{NMreg(1,1)+r}, v3, vcc")
    a("s_nop 1\ns_setpc_b64 s[82:83]")
    for par in range(2):
        a.label(f"L_rare{par}")
        a("s_nop 15")
        for qt in range(2):
            m = ET + 4
            s0, s1 = Sreg(par, 0, qt), Sreg(par, 1, qt)
            a(f"v_max3_f32 v{m}, 0, v{s0}, v{s0+1}\nv_max3_f32 v{m}, v{m}, v{s0+2}, v{s0+3}\nv_max3_f32 v{m}, v{m}, v{s1}, v{s1+1}\nv_max3_f32 v{m}, v{m}, v{s1+2}, v{s1+3}")
            xlane(a, "v_max_f32", m, ET)
            a(f"v_exp_f32 v{ET}, -v{m}")
            for kt in range(2):
                for r in range(4):
                    for reg in (Sreg(0,kt,qt), Sreg(1,kt,qt), NMreg(kt,qt)):
                        a(f"v_sub_f32 v{reg+r}, v{reg+r}, v{m}")
            a(f"v_mul_f32 v{L_+qt}, v{ET}, v{L_+qt}")
            for t in range(8):
                for r in range(4): a(f"v_mul_f32 v{Oreg(t,qt)+r}, v{ET}, v{Oreg(t,qt)+r}")
        for e, rest in sm_ops(par):
            a(e); a("s_nop 0")
            for x in rest: a(x)
        a("s_nop 1\ns_setpc_b64 s[80:81]")
    a.label("L_adone")
    a.stamp(13)

def top8(a):
    a.label("L_top1")
    a(f"s_lshl_b32 s6, s{S_W}, 11\ns_add_u32 s6, s6, {WS_R}")
    a(f"buffer_load_dwordx4 v[16:19], v{VL16}, {WS}, s6 offen sc1\nbuffer_load_dwordx4 v[20:23], v{VL16}, {WS}, s6 offen offset:1024 sc1")
    a("s_waitcnt vmcnt(0)\nv_mov_b32 v24, 0\ns_mov_b32 s7, 0")
    a.label("L_top1_l")
    a("v_max3_u32 v4, v16, v17, v18\nv_max3_u32 v4, v4, v19, v20\nv_max3_u32 v4, v4, v21, v22\nv_max_u32 v4, v4, v23")
    a.wave_reduce("v_max_u32", 4)
    a("v_readlane_b32 s6, v4, 63\ns_mov_b32 m0, s7\ns_nop 3\nv_writelane_b32 v24, s6, m0")
    for k in range(8):
        a(f"v_cmp_ne_u32 vcc, s6, v{16+k}\ns_nop 1\nv_cndmask_b32 v{16+k}, 0, v{16+k}, vcc")
    a("s_add_u32 s7, s7, 1\ns_cmp_lt_u32 s7, 8\ns_cbranch_scc1 L_top1_l")
    a(f"s_lshl_b32 s6, s{S_W}, 8\ns_add_u32 s6, s6, {LDS_SP}\nv_lshl_add_u32 v5, v{L}, 2, s6\nds_write_b32 v5, v24\ns_branch L_idle")
    a.label("L_top2")
    a(f"s_cmp_lg_u32 s{S_W}, 0\ns_cbranch_scc1 L_idle")
    a(f"v_lshrrev_b32 v5, 3, v{L}\nv_and_b32 v5, 3, v5\nv_lshlrev_b32 v5, 6, v5\nv_and_b32 v6, 39, v{L}\nv_add_u32 v5, v5, v6\nv_lshlrev_b32 v5, 2, v5\nv_add_u32 v5, {LDS_SP}, v5")
    a("ds_read_b32 v16, v5\ns_waitcnt lgkmcnt(0)\nv_mov_b32 v24, 0\ns_mov_b32 s7, 0")
    a.label("L_top2_l")
    a("v_mov_b32 v4, v16")
    a.wave_reduce("v_max_u32", 4)
    a("v_readlane_b32 s6, v4, 63\ns_mov_b32 m0, s7\ns_nop 3\nv_writelane_b32 v24, s6, m0")
    a("v_cmp_ne_u32 vcc, s6, v16\ns_nop 1\nv_cndmask_b32 v16, 0, v16, vcc")
    a("s_add_u32 s7, s7, 1\ns_cmp_lt_u32 s7, 8\ns_cbranch_scc1 L_top2_l")
    a(f"v_or_b32 v24, 0x80000000, v24\nv_lshlrev_b32 v5, 2, v{L}\nv_mov_b32 v6, {hex(WS_SIZE)}\nv_cmp_gt_u32 vcc, 8, v{L}\ns_mov_b32 s6, {hex(WS_IDX)}\ns_nop 0\nv_cndmask_b32 v5, v6, v5, vcc")
    a(f"buffer_store_dword v24, v5, {WS}, s6 offen sc1\ns_branch L_idle")

OACC = 176
M_WD, M_PART = 81920, 122880
VIDX = 51
def idx_addr(a):
    a(f"v_and_b32 v3, 7, v{L}\nv_lshlrev_b32 v3, 2, v3\ns_mov_b32 s72, {hex(WS_IDX)}")
def ctxf_addr(a):
    a(f"v_and_b32 v3, 3, v{L}\nv_bfe_u32 v2, v{L}, 2, 1\nv_lshl_add_u32 v3, v2, 5, v3\nv_lshlrev_b32 v3, 7, v3")
    a(f"s_lshl_b32 s72, s{S_H}, 13\ns_lshl_b32 s6, s{S_W}, 9\ns_add_u32 s72, s72, s6\ns_add_u32 s72, s72, {WS_CTXF}")
def idx_poll(a, sfx, wait="s_waitcnt vmcnt(30)"):
    a(wait)
    a(f"v_cmp_le_i32 vcc, 0, v{VIDX}\ns_cbranch_vccz L_idx_ok{sfx}")
    idx_addr(a)
    poll(a, f"buffer_load_dword v{VIDX}, v3, {WS}, s72 offen sc1", f"v_cmp_le_i32 vcc, 0, v{VIDX}")
    a.label(f"L_idx_ok{sfx}")

def moe_steps(a, bar):
    XS, FRG, GA, WDR, WD2, PR, YO = 64, 104, 24, 32, 240, 184, 216
    VG, VT, VD, VTD, VY, VXS = 16, 17, 18, 19, 20, 21
    S_G, S_WIN, S_D = 84, 85, 86
    a.label("L_moe")
    a(f"s_cmp_lg_u32 s{S_N}, 5\ns_cbranch_scc1 L_idle")
    def srds():
        a.srd(SRD_A, P_WG, 640*1728*2)
        a(f"s_cmp_ge_u32 s{S_W}, 2\ns_cselect_b32 s{SRD_A}, s{P_WU}, s{SRD_A}\ns_cselect_b32 s{SRD_A+1}, s{P_WU+1}, s{SRD_A+1}")
        a.srd(SRD_B, P_WD, 1728*640*2)
    def dma_g(nk):
        for n in range(2*nk):
            a(f"s_add_u32 m0, s{S_WIN}, {n*1024}\ns_nop 0\nbuffer_load_dwordx4 v{VG}, {R(SRD_A)}, s{S_G} offen lds\ns_add_u32 s{S_G}, s{S_G}, {16*3456}")
    def dma_d():
        for n in range(4):
            a(f"s_add_u32 m0, s{S_WIN}, {4096+n*1024}\ns_add_u32 s6, s{S_D}, {n*8*1280}\nbuffer_load_dwordx4 v{VD}, {R(SRD_B)}, s6 offen lds")
        a(f"s_add_u32 s{S_D}, s{S_D}, 512")
    def rd_g(k0, nk):
        for k in range(nk):
            for ft in range(2):
                d = FRG + ((k0+k)*2+ft)*4
                a(f"ds_read_b64_tr_b16 {v(d,2)}, v{VT} offset:{k*2048+ft*32}\nds_read_b64_tr_b16 {v(d+2,2)}, v{VT} offset:{k*2048+ft*32+256}")
            if k == 1: a("s_waitcnt lgkmcnt(0)")
    def xs(k0, nk):
        for k in range(k0, k0+nk): a(f"buffer_load_dwordx4 {v(XS+4*k,4)}, v{VXS}, {WS}, 0 offen offset:{k*64} sc1")
    def rd_d(base):
        for m in range(4):
            a(f"ds_read_b64_tr_b16 {v(base+4*m,2)}, v{VTD} offset:{m*32}\nds_read_b64_tr_b16 {v(base+2+4*m,2)}, v{VTD} offset:{m*32+16*128}")
    def down(base, goff):
        for m in range(4): a.mfma(YO+4*m, base+4*m, GA, "0")
        a("s_nop 7")
        for m in range(4): a(f"buffer_store_dwordx4 {v(YO+4*m,4)}, v{VY}, {WS}, s87 offen offset:{goff*1024+m*64} sc1")
        a("s_nop 1")
    srds()
    a(f"v_lshrrev_b32 v3, 2, v{L}\nv_mul_u32_u24 v3, 3456, v3\nv_and_b32 v4, 3, v{L}\nv_lshl_add_u32 v{VG}, v4, 4, v3")
    a(f"v_lshrrev_b32 v3, 3, v{L}\nv_mul_u32_u24 v3, 1280, v3\nv_and_b32 v4, 7, v{L}\nv_lshl_add_u32 v{VD}, v4, 4, v3")
    a(f"s_and_b32 s7, s{S_W}, 1\ns_mul_i32 s{S_G}, s7, {320*3456}\ns_lshl_b32 s6, s{S_E}, 6\ns_add_u32 s{S_G}, s{S_G}, s6")
    a(f"s_lshl_b32 s{S_WIN}, s{S_W}, 13\ns_add_u32 s{S_WIN}, s{S_WIN}, {LDS_SP}")
    a(f"s_mul_i32 s{S_D}, s{S_E}, 40960\ns_lshl_b32 s6, s{S_W}, 7\ns_add_u32 s{S_D}, s{S_D}, s6")
    dma_g(4)
    idx_addr(a); a(f"buffer_load_dword v{VIDX}, v3, {WS}, s72 offen sc1")
    a(f"v_lshrrev_b32 v7, 4, v{L}\nv_and_b32 v2, 15, v{L}\nv_lshrrev_b32 v3, 2, v2\nv_lshl_add_u32 v8, v7, 3, v3\nv_lshlrev_b32 v8, 6, v8\nv_and_b32 v4, 3, v2\nv_lshl_add_u32 v8, v4, 3, v8\nv_add_u32 v{VT}, s{S_WIN}, v8")
    a(f"v_lshl_add_u32 v8, v7, 2, v3\nv_lshlrev_b32 v8, 7, v8\nv_lshl_add_u32 v8, v4, 3, v8\ns_add_u32 s6, s{S_WIN}, 4096\nv_add_u32 v{VTD}, s6, v8")
    a(f"v_mul_u32_u24 v3, 2560, v2\nv_lshl_add_u32 v3, v7, 4, v3\nv_mov_b32 v4, {hex(WS_SIZE)}\nv_cmp_gt_u32 vcc, 8, v2")
    a(f"s_mul_i32 s87, s{S_E}, 20480\ns_lshl_b32 s7, s{S_W}, 8\ns_add_u32 s87, s87, s7\ns_add_u32 s87, s87, {WS_YP}\nv_cndmask_b32 v{VY}, v4, v3, vcc")
    bar()
    rd_g(0, 4)
    idx_poll(a, "m", "")
    a("s_waitcnt lgkmcnt(0)"); dma_g(4)
    a(f"v_and_b32 v4, 0x7ff, v{VIDX}\nv_sub_u32 v4, 0x7ff, v4\nv_mul_u32_u24 v4, 1280, v4\nv_lshrrev_b32 v7, 4, v{L}\nv_lshl_add_u32 v4, v7, 4, v4")
    a(f"s_and_b32 s7, s{S_W}, 1\ns_mul_i32 s6, s7, 640\ns_add_u32 s6, s6, {WS_XNR}\nv_add_u32 v4, s6, v4\nv_mov_b32 v5, {hex(WS_SIZE)}\nv_and_b32 v2, 8, v{L}\nv_cmp_eq_u32 vcc, 0, v2\ns_nop 1\nv_cndmask_b32 v{VXS}, v5, v4, vcc")
    xs(0, 5)
    bar("vmcnt(5) lgkmcnt(0)")
    rd_g(4, 4); a("s_waitcnt lgkmcnt(0)"); dma_g(2); dma_d(); xs(5, 5)
    bar()
    rd_g(8, 2); rd_d(WDR); a("s_waitcnt lgkmcnt(0)"); dma_d()
    for k in range(10):
        for ft in range(2): a.mfma(GA+4*ft, FRG+(k*2+ft)*4, XS+4*k, "0" if k == 0 else None)
    a(f"v_add_u32 v10, s{S_WIN}, v{VL16}\ns_nop 7\nds_write_b128 v10, {v(GA,4)}\nds_write_b128 v10, {v(GA+4,4)} offset:1024")
    bar()
    a(f"v_add_u32 v10, {LDS_SP}, v{VL16}")
    for w in range(4):
        for ft in range(2): a(f"ds_read_b128 {v(PR+(w*2+ft)*4,4)}, v10 offset:{w*8192+ft*1024}")
    a("s_waitcnt lgkmcnt(0)")
    rd_d(WD2)
    a(f"s_waitcnt lgkmcnt(0)\ns_cmp_ge_u32 s{S_W}, 2\ns_cbranch_scc1 L_moe4b")
    dma_d()
    a.label("L_moe4b")
    a("s_mov_b32 s6, 0xbfb8aa3b")
    for i in range(8):
        g0, u0 = PR + i, PR + 16 + i
        a(f"v_add_f32 v{g0}, v{g0}, v{g0+8}\nv_add_f32 v{u0}, v{u0}, v{u0+8}")
        bf16_round(a, g0); bf16_round(a, u0)
        a(f"v_mul_f32 v2, s6, v{g0}\nv_exp_f32 v2, v2\ns_nop 0\nv_add_f32 v2, 1.0, v2\nv_rcp_f32 v2, v2\ns_nop 0\nv_mul_f32 v{g0}, v{g0}, v2")
        bf16_round(a, g0)
        a(f"v_mul_f32 v{g0}, v{g0}, v{u0}")
    for i in range(4): a(f"v_cvt_pk_bf16_f32 v{GA+i}, v{PR+2*i}, v{PR+1+2*i}")
    a("s_nop 1")
    down(WDR, 0)
    bar("vmcnt(4) lgkmcnt(0)")
    down(WD2, 1)
    a(f"s_cmp_ge_u32 s{S_W}, 2\ns_cbranch_scc1 L_moe5b")
    rd_d(WDR); a("s_waitcnt lgkmcnt(0)"); down(WDR, 2)
    a.label("L_moe5b")
    bar("vmcnt(4) lgkmcnt(0)", lambda: (a("s_waitcnt vmcnt(0)"), set_flag(a, "moe")))
    a("s_branch L_idle")

def moe_finish(a):
    Y = OACC
    idx_poll(a, "a")
    a(f"s_mov_b32 s84, s{S_W}")
    a.label("L_yl")
    a(f"s_mov_b32 m0, s84\ns_nop 3\nv_readlane_b32 s85, v{VIDX}, m0\ns_nop 3\ns_and_b32 s86, s85, 0x7ff\ns_sub_u32 s86, 0x7ff, s86\ns_lshr_b32 s6, s86, 6\ns_cmp_lg_u32 s6, s{S_H}\ns_cbranch_scc1 L_yn")
    a(f"v_min_u32 v3, 53, v{L}\nv_lshlrev_b32 v3, 5, v3\ns_mov_b32 s72, {hex(WS_MOEF)}")
    poll(a, f"buffer_load_dwordx4 {v(Y,4)}, v3, {WS}, s72 offen sc1",
         "\n".join([f"v_and_b32 v{Y}, v{Y}, v{Y+r}" for r in (1, 2, 3)]) + f"\nv_cmp_ne_u32 vcc, 1, v{Y}")
    a(f"v_mul_u32_u24 v2, 13, v{L}\nv_lshrrev_b32 v2, 8, v2\nv_mul_u32_u24 v3, 20, v2\nv_sub_u32 v4, v{L}, v3")
    a(f"s_mov_b32 s6, {18*20480}\nv_mul_lo_u32 v2, v2, s6\nv_lshl_add_u32 v2, v4, 4, v2")
    a(f"v_cmp_lt_u32 vcc, 59, v{L}\nv_mov_b32 v3, {hex(WS_SIZE)}\ns_nop 0\nv_cndmask_b32 v2, v2, v3, vcc")
    a(f"s_mul_i32 s6, s84, 2560\ns_mul_i32 s7, s{S_P}, 320\ns_add_u32 s6, s6, s7\ns_add_u32 s6, s6, {WS_YP}")
    for e in range(18):
        a(f"buffer_load_dwordx4 {v(Y+4*e,4)}, v2, {WS}, s6 offen sc1\ns_add_u32 s6, s6, 20480")
    a(f"s_lshr_b32 s6, s86, 4\ns_mul_i32 s6, s6, 20480\ns_and_b32 s7, s86, 15\ns_lshl_b32 s7, s7, 4\ns_add_u32 s6, s6, s7\ns_mul_i32 s7, s{S_P}, 2560\ns_add_u32 s6, s6, s7")
    a(f"v_lshrrev_b32 v5, 1, v4\nv_lshlrev_b32 v5, 8, v5\nv_and_b32 v6, 1, v4\nv_lshl_add_u32 v5, v6, 3, v5\nbuffer_load_dwordx2 {v(Y+72,2)}, v5, {WS}, s6 offen sc1")
    a("s_bfe_u32 s6, s85, 0x10000b\ns_xor_b32 s7, s6, 0xffff\ns_bitcmp1_b32 s6, 15\ns_bitset0_b32 s6, 15\ns_cselect_b32 s6, s6, s7\ns_lshl_b32 s6, s6, 16\nv_mov_b32 v5, s6")
    a("v_mul_f32 v5, 0xbfb8aa3b, v5\nv_exp_f32 v5, v5\ns_nop 0\nv_add_f32 v5, 1.0, v5\nv_rcp_f32 v5, v5\ns_nop 0")
    bf16_round(a, 5)
    a(f"v_lshlrev_b32 v6, 2, v{L}\ns_waitcnt vmcnt(0)")
    for e in range(1, 18):
        a(f"v_pk_add_f32 {v(Y,2)}, {v(Y,2)}, {v(Y+4*e,2)}\nv_pk_add_f32 {v(Y+2,2)}, {v(Y+2,2)}, {v(Y+4*e+2,2)}")
    for k in range(2):
        for r in range(4): a(f"ds_bpermute_b32 v{Y+4+4*k+r}, v6, v{Y+r} offset:{80*(k+1)}")
    a("s_waitcnt lgkmcnt(0)")
    for r in range(4):
        y = Y + r
        a(f"v_add_f32 v{y}, v{y}, v{y+4}\nv_add_f32 v{y}, v{y}, v{y+8}")
        bf16_round(a, y)
        a(f"v_mul_f32 v{y}, v{y}, v5")
        bf16_round(a, y)
        xn = Y + 72 + (r >> 1)
        a(f"v_and_b32 v7, 0xffff0000, v{xn}" if r & 1 else f"v_lshlrev_b32 v7, 16, v{xn}")
        a(f"v_add_f32 v{y}, v{y}, v7")
    a(f"v_cvt_pk_bf16_f32 v{Y+4}, v{Y}, v{Y+1}\nv_cvt_pk_bf16_f32 v{Y+5}, v{Y+2}, v{Y+3}")
    a(f"v_lshlrev_b32 v2, 3, v{L}\nv_cmp_lt_u32 vcc, 19, v{L}\ns_mul_i32 s6, s84, 1280\ns_mul_i32 s7, s{S_P}, 160\nv_cndmask_b32 v2, v2, v3, vcc\ns_add_u32 s6, s6, s7\ns_add_u32 s6, s6, {WS_BSEL}")
    a(f"buffer_store_dwordx2 {v(Y+4,2)}, v2, {WS}, s6 offen sc1\ns_waitcnt vmcnt(0)")
    a.label("L_yn")
    a("s_add_u32 s84, s84, 4\ns_cmp_lt_u32 s84, 8\ns_cbranch_scc1 L_yl")

NPRE = 6
WPOOL = list(range(56, 176, 4))
CPOOL = list(range(16, 48, 4))
S_OC, S_OW, S_OR = 68, 69, 66
VWO4 = 52
wo_regs = {}
def wo_load(a, ks, regs):
    a(f"s_add_u32 s75, s{S_OR}, {ks}\ns_and_b32 s75, s75, 15\ns_mul_i32 s75, s75, 40960\ns_add_u32 s75, s75, s{S_OW}")
    for m in range(5):
        a(f"buffer_load_dwordx4 {v(regs[m],4)}, v{VL16 if m<4 else VWO4}, {WS}, s75 offen offset:{(m&3)*1024} sc1"); a.vm.issue(("Wo", ks))
    wo_regs[ks] = regs

def out_prefetch(a, j):
    if j == 0:
        idx_addr(a); a(f"buffer_load_dword v{VIDX}, v3, {WS}, s72 offen sc1")
        ctxf_addr(a); a(f"buffer_load_dword v53, v3, {WS}, s72 offen sc1")
        OROT = os.environ.get("OROT", "nt")
        if OROT == "none": a(f"s_mov_b32 s{S_OR}, 0")
        else: a(f"s_lshl_b32 s{S_OR}, s{S_P}, 1")
        if OROT == "both": a(f"s_and_b32 s7, s{S_H}, 3\ns_lshl_b32 s7, s7, 2\ns_add_u32 s{S_OR}, s{S_OR}, s7")
        a(f"v_add_u32 v{VWO4}, 4096, v{VL16}")
        a(f"s_mul_i32 s{S_OW}, s{S_W}, {16*40960}\ns_mul_i32 s7, s{S_P}, 5120\ns_add_u32 s{S_OW}, s{S_OW}, s7\ns_add_u32 s{S_OW}, s{S_OW}, {WS_WOF}")
    for ks in (2*j, 2*j+1): wo_load(a, ks, WPOOL[5*ks:5*ks+5])

def phase_out(a):
    VCX = 4
    a.stamp(14)
    a(f"s_lshl_b32 s{S_OC}, s{S_H}, 19\ns_lshl_b32 s6, s{S_W}, 14\ns_add_u32 s{S_OC}, s{S_OC}, s6\ns_add_u32 s{S_OC}, s{S_OC}, {WS_CTX}")
    for i in range(4): a(f"v_add_u32 v{VCX+i}, {i*131072}, v{VL16}")
    zero_regs(a, OACC, 80)
    a("v_cmp_ne_u32 vcc, 1, v53\ns_cbranch_vccz L_ctx_ok")
    ctxf_addr(a)
    poll(a, f"buffer_load_dword v2, v3, {WS}, s72 offen sc1", "v_cmp_ne_u32 vcc, 1, v2")
    a.label("L_ctx_ok")
    a.stamp(15)
    a.vm.q = list(VMQ)
    free = list(CPOOL)
    cx = {}
    todo = []
    for ks in range(16):
        if ks >= NPRE: todo.append(("Wo", ks))
        todo.append(("C", ks))
    def fill():
        while todo:
            kind, ks = todo[0]
            need = 4 if kind == "C" else 5
            if len(free) < need: break
            regs = [free.pop(0) for _ in range(need)]
            todo.pop(0)
            if kind == "Wo": wo_load(a, ks, regs)
            else:
                a(f"s_add_u32 s75, s{S_OR}, {ks}\ns_and_b32 s75, s75, 15\ns_lshl_b32 s75, s75, 10\ns_add_u32 s75, s75, s{S_OC}")
                for i in range(4):
                    a(f"buffer_load_dwordx4 {v(regs[i],4)}, v{VCX+i}, {WS}, s75 offen sc1"); a.vm.issue(("C", ks))
                cx[ks] = regs
    fill()
    IT = {}
    for ks in range(16):
        a.wait_vm([("C", ks), ("Wo", ks)])
        for m in range(5):
            for i in range(4):
                a.mfma(OACC+(m*4+i)*4, wo_regs[ks][m], cx[ks][i])
        free += cx[ks] + wo_regs[ks]
        fill()
        if not todo and not IT and len(free) >= 4:
            a.srd(SRD_A, P_X, 2048*640*2)
            a(f"v_and_b32 v2, 0x7ff, v{VIDX}\ns_nop 0")
            for tk in range(8): a(f"v_readlane_b32 s{84+tk}, v2, {tk}")
            a(f"s_movk_i32 s7, 6554\ns_mul_i32 s70, s{S_H}, {64*1280}\ns_mul_i32 s6, s{S_P}, 160\ns_add_u32 s70, s70, s6")
            a(f"s_mul_i32 s71, s{S_H}, {4*20480}\ns_mul_i32 s6, s{S_P}, 2560\ns_add_u32 s71, s71, s6")
            for n in range(2):
                IT[n] = (free.pop(0), free.pop(0))
                rw, ch = ITR[n]
                a(f"v_lshrrev_b32 v2, 4, v0\nv_add_u32 v2, {32*n}, v2\nv_mul_lo_u32 v{rw}, v2, s7\nv_lshrrev_b32 v{rw}, 16, v{rw}\nv_mul_u32_u24 v3, 10, v{rw}\nv_sub_u32 v{ch}, v2, v3")
                a(f"v_and_b32 v3, 15, v{L}\nv_lshl_add_u32 v{rw}, v{rw}, 4, v3")
                a(f"v_mul_u32_u24 v2, 1280, v{rw}\nv_lshl_add_u32 v{53+n}, v{ch}, 4, v2")
                a(f"v_lshrrev_b32 v2, 4, v{rw}\nv_mul_u32_u24 v2, 20480, v2\nv_and_b32 v3, 15, v{rw}\nv_lshl_add_u32 v2, v3, 4, v2\nv_lshl_add_u32 v2, v{ch}, 8, v2")
                a(f"v_add_u32 v2, s71, v2\ns_lshl_b32 s6, s{S_H}, 6\ns_sub_u32 s6, 0x7ff, s6\nv_sub_u32 v3, s6, v{rw}\ns_mul_i32 s6, s{S_P}, 160\ns_add_u32 s6, s6, {WS_BSEL}\nv_lshl_add_u32 v{VDUM}, v{ch}, 4, s6")
                for tk in range(8):
                    a(f"v_cmp_eq_u32 vcc, s{84+tk}, v3\ns_nop 1\nv_cndmask_b32 v2, v2, v{VDUM}, vcc")
                    if tk < 7: a(f"v_add_u32 v{VDUM}, 1280, v{VDUM}")
                sk = a.newlabel("itskip")
                if n == 1: a(f"s_cmp_ge_u32 s{S_W}, 2\ns_cbranch_scc1 {sk}")
                a(f"buffer_load_dwordx4 {v(IT[n][0],4)}, v{53+n}, {R(SRD_A)}, s70 offen\nbuffer_load_dwordx4 {v(IT[n][1],4)}, v2, {WS}, 0 offen sc1")
                if n == 1: a.label(sk)
    a.stamp(16)
    assert IT
    a(f"s_mul_i32 s6, s{S_W}, 20480\nv_add_u32 v2, s6, v{VL16}\ns_nop 7")
    for T in range(20): a(f"ds_write_b128 v2, {v(OACC+4*T,4)} offset:{T*1024}")
    a.srd(SRD_B, P_OUT, 2048*640*2)
    a("s_waitcnt vmcnt(0) lgkmcnt(0)\ns_barrier")
    a.stamp(17)
    for n in range(2):
        if n == 1: a(f"s_cmp_ge_u32 s{S_W}, 2\ns_cbranch_scc1 L_end")
        rw, ch = ITR[n]
        a(f"v_lshrrev_b32 v2, 1, v{ch}\nv_lshlrev_b32 v2, 12, v2\nv_lshrrev_b32 v3, 4, v{rw}\nv_lshl_add_u32 v2, v3, 10, v2")
        a(f"v_and_b32 v3, 15, v{rw}\nv_lshl_add_u32 v2, v3, 4, v2\nv_and_b32 v3, 1, v{ch}\nv_lshl_add_u32 v2, v3, 9, v2")
        a(f"v_add_u32 v3, 61440, v2\nv_add_u32 v4, 122880, v2")
        a.lg.drain()
        for w in range(8):
            for hf in range(2):
                a(f"ds_read_b128 {v(OACC+(w*2+hf)*4,4)}, v{2+w//3} offset:{(w%3)*20480+hf*256}"); a.lg.issue(w)
        for w in range(1, 8):
            a.wait_lg(w)
            for r in range(8): a(f"v_add_f32 v{OACC+r}, v{OACC+r}, v{OACC+8*w+r}")
        for r in range(8):
            A_ = OACC + r
            bf16_round(a, A_)
            xr, xnr = IT[n][0] + (r >> 1), IT[n][1] + (r >> 1)
            if r & 1: a(f"v_and_b32 v5, 0xffff0000, v{xr}\nv_and_b32 v6, 0xffff0000, v{xnr}")
            else: a(f"v_lshlrev_b32 v5, 16, v{xr}\nv_lshlrev_b32 v6, 16, v{xnr}")
            a(f"v_add_f32 v{A_}, v{A_}, v5")
            bf16_round(a, A_)
            a(f"v_add_f32 v{A_}, v{A_}, v6")
        for r in range(4): a(f"v_cvt_pk_bf16_f32 v{OACC+64+4*n+r}, v{OACC+2*r}, v{OACC+2*r+1}")
        a(f"buffer_store_dwordx4 {v(OACC+64+4*n,4)}, v{53+n}, {R(SRD_B)}, s70 offen")

def gen(a):
    phase_start(a)
    phase_kv(a)
    phase_q(a)
    phase_attn(a)
    a("s_setprio 0")
    idx_poll(a, "b")
    phase_out(a)
    a.label("L_end")
    a.stamp(18)
    if a.prof: a("s_waitcnt vmcnt(0)")
    if a.prof and os.environ.get("DBGWG"):
        a(f"s_mov_b64 exec, -1\ns_cmp_lg_u32 s2, {os.environ['DBGWG']}\ns_cbranch_scc1 L_nodbg\ns_cmp_lg_u32 s{S_W}, 0\ns_cbranch_scc1 L_nodbg")
        a.srd(SRD_E, P_DBG, 64)
        a(f"v_readlane_b32 s6, v15, 0\ns_nop 3\nv_subrev_u32 v2, s6, v15\nv_subrev_u32 v3, 3, v{L}\nv_lshlrev_b32 v3, 2, v3\nv_cmp_gt_u32 vcc, 4, v{L}\nv_mov_b32 v4, 0x1000\ns_nop 0\nv_cndmask_b32 v3, v3, v4, vcc")
        a(f"buffer_store_dword v2, v3, {R(SRD_E)}, 0 offen")
        a.label("L_nodbg")
    a.stamp_flush(SRD_WS, WS_PROF)
    a.label("L_exit")
    a("s_endpgm")

HEADER = open(os.path.join(os.path.dirname(os.path.abspath(__file__)), "..", NAME + ".s.ref")).read().split("; Override launch")[0]
if __name__ == "__main__":
    name = NAME + "_kernel"
    out = HEADER + "; @launch grid=(256,1,1) block=(512,1,1) lds=163840\n" + '.amdgcn_target "amdgcn-amd-amdhsa--gfx950"\n'
    a = Asm(); a.prof = bool(os.environ.get("PROF"))
    a.o.append(kernel_header(name).rstrip())
    gen(a)
    out += a.text() + '.section .rodata,"a"\n.p2align 6\n' + kernel_desc(name)
    open(sys.argv[1] if len(sys.argv) > 1 else "k.s", "w").write(out)
```

```python
import sys, os
from asmlib import *

NAME = "parallel_sum__compressed_kv_cla__moe_arch_mod__prompt"
ABL = set(os.environ.get("ABL", "").split(","))
WS_XN = 0x0
WS_R = 0x280000
WS_YP = 0x290000
WS_IDX = 0x3A0000
WS_KVF = 0x3B0000
WS_CTXF = 0x3C0000
WS_MOEF = 0x3A6000
WS_BSEL = 0x3A9000
WS_BF = 0x3B8000
WS_WOF = 0x400000
WS_XNR = 0xC00000
WS_PROF = 0x900000
WS_KV = 0x1000000
WS_CTX = 0x3000000
WS_XF = 0xF00000
WS_XP = 0x4000000
WS_SIZE = 0x5000000
S_W, S_H, S_P = 3, 4, 5
SRD_WS, SRD_A, SRD_B, SRD_C, SRD_D, SRD_E = 8, 12, 16, 20, 24, 28
P_X, P_CKV, P_WQ, P_WUK, P_WUV, P_WO, P_BX, P_WR, P_WG, P_WU, P_WD, P_OUT, P_DBG, P_WS = range(32, 60, 2)
S_B, S_E = 60, 61
WS = f"s[{SRD_WS}:{SRD_WS+3}]"
def R(d): return f"s[{d}:{d+3}]"
L, VL16 = 1, 13
DESIG = 31
SPIN = 1 << 18
MOEJ = int(os.environ.get("MOEJ", "4"))
NT = "" if "nont" in ABL else " nt"
ABL.add("latewait")
TSCHED = os.environ.get("TSCHED", ";2;4;6").split(";")
TK, TV0, TV1, TV2 = [[int(y) for y in x.split(",") if y] for x in TSCHED]
LDS_SP = 131072
LDS_LN = LDS_SP
LDS_WOT = LDS_SP + 10240

def bf16_round(a, r):
    a(f"v_cvt_pk_bf16_f32 v{r}, v{r}, v{r}\nv_lshlrev_b32 v{r}, 16, v{r}")

def poll(a, load, cmp_notready, sleep=2):
    lp = a.newlabel("poll"); dn = a.newlabel("polldone")
    a(f"s_mov_b32 s79, {SPIN}")
    a.label(lp)
    a(load); a("s_waitcnt vmcnt(0)"); a(cmp_notready)
    a(f"s_cbranch_vccz {dn}\ns_sleep {sleep}\ns_sub_u32 s79, s79, 1\ns_cmp_lg_u32 s79, 0\ns_cbranch_scc1 {lp}")
    a.label(dn)

VC, VW, RC, RW, QRW = 40, 44, 48, 50, 54
CF, WF, ACC = 64, 96, 128
S_CO, S_WO_, S_MC, S_ST, S_ROW, S_KVD, S_INCA, S_INCB, S_XO, S_QO = 62, 63, 64, 65, 66, 67, 68, 69, 70, 71
S_XB = 84
XEARLY = [16, 20, 24, 28, 32, 36]
VX1 = 12
LX, LW, LV = 16, 26, 64
VDUM = 11
ITR = ((8, 9), (10, 55))

def wdma(a, srd, soff):
    return [f"buffer_load_dwordx4 v{VW+i}, {R(srd)}, s{soff} offen offset:{i*1024} lds" for i in range(4)]

def kv_dma_ops():
    g = []
    g.append([f"s_mov_b32 m0, s{S_MC}", f"s_add_u32 s72, s{S_CO}, 524288"])
    for i in range(4): g.append([f"buffer_load_dwordx4 v{VC+i}, {R(SRD_A)}, s{S_CO} offen offset:{i*1024} lds"])
    g.append([f"s_add_u32 m0, s{S_MC}, 4096", f"s_add_u32 s{S_CO}, s{S_CO}, 128", f"s_bitset0_b32 s{S_CO}, 10"])
    for i in range(4): g.append([f"buffer_load_dwordx4 v{VC+i}, {R(SRD_A)}, s72 offen offset:{i*1024} lds"])
    g.append([f"s_mov_b32 m0, s73", f"s_xor_b32 s{S_MC}, s{S_MC}, 0x10000"])
    for x in wdma(None, SRD_B, S_WO_): g.append([x])
    g.append([f"s_add_u32 m0, s73, 16384", f"s_xor_b32 s73, s73, 0x10000"])
    for x in wdma(None, SRD_C, S_WO_): g.append([x])
    g.append([f"s_add_u32 s{S_WO_}, s{S_WO_}, {64*8192}", f"s_bitset0_b32 s{S_WO_}, 22"])
    return g

def wq_dma_ops(nblk):
    g = []
    for h in range(2*nblk):
        g.append([f"s_mov_b32 m0, s74", f"s_add_u32 s74, s74, 16384"])
        for x in wdma(None, SRD_D, S_QO): g.append([x])
        g.append([f"s_add_u32 s{S_QO}, s{S_QO}, {64*8192}", f"s_sub_u32 s75, s{S_QO}, {640*8192}", f"s_cselect_b32 s{S_QO}, s{S_QO}, s75"])
    return g

def emit_groups(a, g):
    for x in g:
        for y in x: a(y)

def x_load(a, ks, regs):
    for qt in range(2):
        a(f"buffer_load_dwordx4 {v(regs[qt],4)}, v{VL16 if qt==0 else VX1}, {WS}, s{S_XB+(ks>>2)} offen offset:{(ks&3)*1024} sc1")
        a.vm.issue(("X", ks))

def cnt_load(a, r, which):
    return f"buffer_load_dword v{r}, v3, {R(SRD_E)}, 0 offen offset:{128*which} sc1"
def cnt_addr(a):
    a.srd(SRD_E, P_DBG, 256)
    a(f"v_and_b32 v3, 31, v{L}\nv_lshlrev_b32 v3, 2, v3")
def cnt_check(a, r, which):
    ok = a.newlabel("cntok")
    a(f"v_cmp_ne_u32 vcc, 8, v{r}\ns_cbranch_vccz {ok}")
    cnt_addr(a)
    poll(a, cnt_load(a, 2, which), "v_cmp_ne_u32 vcc, 8, v2", sleep=8)
    a.label(ok)

def kv_touch(a, st0):
    sk = a.newlabel("tch")
    a(f"s_cmp_ge_u32 s76, 2\ns_cbranch_scc1 {sk}a")
    a(f"s_and_b32 s6, s{S_H}, 3\ns_lshl_b32 s6, s6, 19\ns_lshl_b32 s7, s{S_P}, 15\ns_add_u32 s6, s6, s7\ns_lshl_b32 s7, s76, 7\ns_add_u32 s6, s6, s7\ns_add_u32 s6, s6, {st0*128}")
    a(f"v_lshrrev_b32 v6, 1, v{L}\nv_lshlrev_b32 v6, 10, v6\nv_and_b32 v7, 1, v{L}\nv_lshl_add_u32 v6, v7, 6, v6")
    a(f"buffer_load_dword v{VDUM}, v6, {R(SRD_A)}, s6 offen\ns_add_u32 s6, s6, 262144\nbuffer_load_dword v{VDUM}, v6, {R(SRD_A)}, s6 offen\ns_branch {sk}c")
    a.label(sk + "a")
    a(f"v_lshrrev_b32 v6, 5, v{L}\nv_lshlrev_b32 v6, 6, v6\nv_bfe_u32 v7, v{L}, 2, 3\nv_add_u32 v6, v6, v7\nv_lshlrev_b32 v6, 13, v6\nv_and_b32 v7, 3, v{L}\nv_lshl_add_u32 v6, v7, 6, v6")
    a(f"s_lshl_b32 s6, s{S_H}, 8\ns_lshl_b32 s7, s{S_P}, 16\ns_add_u32 s6, s6, s7\ns_add_u32 s6, s6, {st0*64*8192}")
    a(f"s_cmp_lg_u32 s76, 2\ns_cbranch_scc1 {sk}b\nbuffer_load_dword v{VDUM}, v6, {R(SRD_B)}, s6 offen\ns_branch {sk}c")
    a.label(sk + "b")
    a(f"buffer_load_dword v{VDUM}, v6, {R(SRD_C)}, s6 offen")
    a.label(sk + "c")

def consts(a):
    a(f"s_mov_b32 s{S_ST}, 0")
    a(f"s_lshl_b32 s6, s{S_H}, 20\ns_lshl_b32 s7, s{S_P}, 13\ns_add_u32 s6, s6, s7\ns_and_b32 s7, s{S_W}, 1\ns_lshl_b32 s7, s7, 16\ns_add_u32 s6, s6, s7\ns_add_u32 s{S_KVD}, s6, {WS_KV}")
    if "noqrot" in ABL: a("s_mov_b32 s6, 0")
    else:
        a(f"s_and_b32 s6, s{S_H}, 3\ns_add_u32 s6, s6, s{S_P}")
        for _ in range(2): a("s_sub_u32 s7, s6, 5\ns_cselect_b32 s6, s6, s7")
    a(f"s_lshl_b32 s{S_QO}, s6, 20\ns_lshl_b32 s7, s{S_H}, 8\ns_add_u32 s{S_QO}, s{S_QO}, s7")
    for i in range(5):
        a(f"s_lshl_b32 s7, s6, 12\ns_add_u32 s{S_XB+i}, s{S_XO}, s7")
        if i < 4: a("s_add_u32 s6, s6, 1\ns_cmp_eq_u32 s6, 5\ns_cselect_b32 s6, 0, s6")
    a(f"s_lshr_b32 s7, s{S_W}, 1\ns_and_b32 s7, s7, 1")
    a(f"s_cmp_ge_u32 s{S_W}, 4\ns_cbranch_scc1 L_c_v")
    a(f"s_lshl_b32 s7, s7, 11\ns_add_u32 s{S_KVD}, s{S_KVD}, s7\ns_movk_i32 s{S_INCA}, 3072\ns_mov_b32 s{S_INCB}, 125952")
    a(f"s_add_u32 s{S_QO}, s{S_QO}, {128*8192}\ns_sub_u32 s75, s{S_QO}, {640*8192}\ns_cselect_b32 s{S_QO}, s{S_QO}, s75\ns_lshl_b32 s74, s76, 12\ns_branch L_c_j")
    a.label("L_c_v")
    a(f"s_lshl_b32 s7, s7, 12\ns_add_u32 s{S_KVD}, s{S_KVD}, s7\ns_add_u32 s{S_KVD}, s{S_KVD}, 0x80000\ns_movk_i32 s{S_INCA}, 1024\ns_mov_b32 s{S_INCB}, 128000")
    a.label("L_c_j")

def zero_regs(a, r0, n):
    for i in range(0, n, 2): a(f"v_mov_b64 {v(r0+i,2)}, 0")

def phase_start(a):
    a(f"s_cmp_ge_u32 s2, 256\ns_cbranch_scc1 L_exit")
    a("s_load_dwordx16 s[32:47], s[0:1], 0\ns_load_dwordx8 s[48:55], s[0:1], 64\ns_load_dwordx4 s[56:59], s[0:1], 96")
    a(f"v_lshrrev_b32 v2, 6, v0\nv_and_b32 v{L}, 63, v0\nv_readfirstlane_b32 s{S_W}, v2")
    if "nocode" not in ABL:
        a("s_getpc_b64 s[80:81]")
        a.label("L_pc")
        a(f"s_lshr_b32 s6, s2, 3\ns_and_b32 s6, s6, 15\ns_lshl_b32 s6, s6, 12\ns_cmp_lt_u32 s{S_W}, 2\ns_cselect_b32 s6, 0, s6\nv_lshl_add_u32 v3, v0, 6, s6")
        a(f"v_min_u32 v3, L_exit-L_pc, v3\ns_cmp_ge_u32 s{S_W}, 3\ns_cbranch_scc1 L_noct\nglobal_load_dword v{VDUM}, v3, s[80:81]")
        a.label("L_noct")
    a(f"v_lshrrev_b32 v62, 5, v0\nv_and_b32 v62, 7, v62\nv_and_b32 v2, 31, v0\nv_lshlrev_b32 v2, 3, v2\nv_mul_u32_u24 v63, 1280, v62\nv_add_u32 v63, v63, v2\ns_mul_i32 s6, s2, 10240\nv_add_u32 v10, s6, v63")
    a(f"s_cmp_lt_u32 s{S_W}, 4\ns_cbranch_scc1 L_st_k0")
    a("s_waitcnt lgkmcnt(0)")
    for j in range(5): a(f"global_load_dwordx2 {v(LX+2*j,2)}, v10, s[{P_X}:{P_X+1}] offset:{j*256}{NT if 'xnt' in ABL else ''}")
    for j in range(5): a(f"global_load_dwordx2 {v(LW+2*j,2)}, v2, s[{P_WR}:{P_WR+1}] offset:{j*256}")
    a.label("L_st_k0")
    a(f"s_and_b32 s6, s2, 7\ns_lshl_b32 s6, s6, 2\ns_lshr_b32 s7, s2, 3\ns_and_b32 s7, s7, 3\ns_add_u32 s{S_H}, s6, s7\ns_lshr_b32 s{S_P}, s2, 5\ns_and_b32 s76, s{S_W}, 3")
    a.stamp_init(14, 0); a.stamp(0)
    a(f"v_lshrrev_b32 v2, 3, v{L}\nv_and_b32 v3, 7, v{L}\nv_lshrrev_b32 v4, 4, v{L}\nv_xor_b32 v5, v3, v4\nv_lshlrev_b32 v5, 4, v5")
    a(f"v_lshl_add_u32 v{VC}, v2, 10, v5\nv_xor_b32 v5, 64, v{VC}\nv_add_u32 v{VC+1}, 7168, v5\nv_add_u32 v{VC+2}, 14336, v{VC}\nv_add_u32 v{VC+3}, 14336, v{VC+1}")
    a(f"v_and_b32 v6, 15, v{L}\ns_lshl_b32 s6, s76, 4\nv_add_u32 v7, s6, v4\nv_lshlrev_b32 v5, 1, v4\nv_xor_b32 v5, v6, v5\nv_lshlrev_b32 v5, 4, v5")
    a(f"v_lshl_add_u32 v{VW}, v7, 13, v5\nv_add_u32 v{VW+1}, 31744, v{VW}\nv_xor_b32 v5, 0x80, v{VW}\nv_add_u32 v{VW+2}, 63488, v5\nv_add_u32 v{VW+3}, 31744, v{VW+2}")
    a(f"s_and_b32 s6, s76, 1\ns_lshl_b32 s6, s6, 20\ns_lshr_b32 s7, s76, 1\ns_lshl_b32 s7, s7, 18\ns_add_u32 s6, s6, s7\ns_lshl_b32 s{S_CO}, s{S_P}, 15\ns_add_u32 s{S_CO}, s{S_CO}, s6\ns_lshl_b32 s{S_WO_}, s{S_H}, 8\ns_lshl_b32 s{S_MC}, s76, 13\ns_lshl_b32 s73, s76, 12\ns_add_u32 s73, s73, 32768")
    a("s_waitcnt lgkmcnt(0)")
    a.srd(SRD_A, P_CKV, 2048*512*2)
    a.srd(SRD_B, P_WUK, 512*4096*2)
    a.srd(SRD_C, P_WUV, 512*4096*2)
    a(f"s_cmp_ge_u32 s{S_W}, 4\ns_cbranch_scc1 L_st_v0")
    for st in TK: kv_touch(a, st)
    emit_groups(a, kv_dma_ops())
    if "noprio" not in ABL: a("s_setprio 1")
    a.label("L_st_v0")
    a.srd(SRD_WS, P_WS, WS_SIZE)
    a.srd(SRD_D, P_WQ, 640*4096*2)
    a(f"v_lshlrev_b32 v{VL16}, 4, v{L}")
    a(f"s_lshl_b32 s6, s{S_P}, 2\ns_add_u32 s7, s6, s{S_W}\ns_sub_u32 s6, 56, s6\ns_add_u32 s6, s6, s{S_W}")
    a(f"s_cmp_lt_u32 s{S_W}, 4\ns_cselect_b32 s{S_B}, s7, s6")
    a(f"s_xor_b32 s6, s{S_P}, 1\ns_lshl_b32 s6, s6, 5\ns_add_u32 s{S_E}, s6, s{S_H}")
    a(f"v_and_b32 v2, 15, v{L}\nv_lshrrev_b32 v3, 4, v{L}")
    a(f"s_and_b32 s6, s{S_W}, 1\ns_lshl_b32 s6, s6, 7\nv_add_u32 v4, s6, v2\nv_lshlrev_b32 v4, 7, v4\nv_lshrrev_b32 v5, 1, v2")
    for sp in range(2):
        a(f"v_add_u32 v6, {4*sp}, v3\nv_xor_b32 v6, v6, v5\nv_lshl_add_u32 v{RC+sp}, v6, 4, v4")
    a(f"v_lshrrev_b32 v4, 2, v2\nv_lshl_add_u32 v5, v3, 3, v4\nv_lshlrev_b32 v5, 8, v5")
    a(f"v_and_b32 v6, 1, v2\nv_lshl_add_u32 v5, v6, 3, v5")
    a(f"v_and_b32 v6, 1, v3\nv_lshl_or_b32 v4, v6, 2, v4\nv_lshlrev_b32 v4, 1, v4\nv_bfe_u32 v6, v2, 1, 1")
    a(f"v_add_u32 v8, {LDS_SP}, v5")
    for t in range(8):
        a(f"v_add_u32 v7, {2*t}, v6\nv_xor_b32 v7, v7, v4\nv_lshl_add_u32 v{QRW+t}, v7, 4, v8")
    a(f"s_lshr_b32 s6, s{S_W}, 2\ns_lshl_b32 s6, s6, 14\ns_add_u32 s6, s6, 32768\nv_add_u32 v5, s6, v5")
    a(f"s_lshr_b32 s7, s{S_W}, 1\ns_and_b32 s7, s7, 1\ns_lshl_b32 s7, s7, 3")
    for j in range(4):
        a(f"s_add_u32 s6, s7, {2*j}\nv_add_u32 v7, s6, v6\nv_xor_b32 v7, v7, v4\nv_lshl_add_u32 v{RW+j}, v7, 4, v5")
    zero_regs(a, ACC, 128)
    a(f"v_add_u32 v{VX1}, 20480, v{VL16}\ns_mul_i32 s{S_XO}, s{S_B}, 40960")
    consts(a)
    a.stamp(1)
    a(f"s_cmp_ge_u32 s{S_W}, 4\ns_cbranch_scc1 L_st_v1")
    emit_groups(a, kv_dma_ops()[:10])
    a("s_waitcnt vmcnt(8)\ns_branch L_st_j1")
    a.label("L_st_v1")
    a(f"s_waitcnt vmcnt(0)")
    a.stamp(2)
    ln_compute(a)
    ln_router(a)
    a.label("L_st_j1")
    a.stamp(3)
    a("s_barrier")
    a.stamp(4)

def zero_flags(a, withr=False):
    a(f"v_mov_b32 v3, {hex(WS_SIZE)}\nv_mov_b32 v2, 0")
    flag_addr(a, "kv", 6); a("v_writelane_b32 v3, s6, 0")
    flag_addr(a, "ctx", 6); a("v_writelane_b32 v3, s6, 1")
    flag_addr(a, "moe", 6); a("v_writelane_b32 v3, s6, 2")
    a(f"s_lshl_b32 s6, s{S_W}, 2\ns_add_u32 s6, s6, {WS_IDX}\ns_cmp_eq_u32 s2, {DESIG}\ns_cselect_b32 s6, s6, {hex(WS_SIZE)}\nv_writelane_b32 v3, s6, 3")
    for k in range(3):
        xf_addr(a, k, 6); a(f"v_writelane_b32 v3, s6, {4+k}")
    if not withr:
        flag_addr(a, "b", 6); a(f"s_cmp_eq_u32 s{S_W}, 0\ns_cselect_b32 s6, s6, {hex(WS_SIZE)}\nv_writelane_b32 v3, s6, 7")
    if withr:
        a(f"v_cmp_lt_u32 vcc, 7, v{L}\ns_lshl_b32 s6, s2, 5\ns_lshl_b32 s7, s76, 3\ns_add_u32 s6, s6, s7\nv_cndmask_b32 v2, v2, v63, vcc\ns_add_u32 s6, s6, {WS_R}\nv_writelane_b32 v3, s6, 31\ns_add_u32 s6, s6, 4\nv_writelane_b32 v3, s6, 63")
    a(f"buffer_store_dword v2, v3, {WS}, 0 offen sc1")

def half_reduce(a, r):
    for m in ("quad_perm:[1,0,3,2]", "quad_perm:[2,3,0,1]", "row_half_mirror", "row_mirror"):
        a(f"s_nop 1\nv_add_f32_dpp v{r}, v{r}, v{r} {m} row_mask:0xf bank_mask:0xf")
    a(f"v_mov_b32 v8, v{r}\ns_nop 1\nv_permlane16_swap_b32 v{r}, v8\ns_nop 1\nv_add_f32 v{r}, v{r}, v8")

def ln_compute(a):
    X = LV
    NEG = "op_sel_hi:[1,0] neg_lo:[0,1] neg_hi:[0,1]"
    for j in range(10):
        a(f"v_lshlrev_b32 v{X+2*j}, 16, v{LX+j}\nv_and_b32 v{X+2*j+1}, 0xffff0000, v{LX+j}")
    a(f"v_pk_add_f32 v[2:3], {v(X,2)}, {v(X+2,2)}")
    for j in range(2, 10): a(f"v_pk_add_f32 v[2:3], v[2:3], {v(X+2*j,2)}")
    a("v_add_f32 v2, v2, v3")
    half_reduce(a, 2)
    a("s_mov_b32 s7, 0x3acccccd\nv_mul_f32 v2, s7, v2\nv_mov_b64 v[4:5], 0")
    for j in range(10):
        a(f"v_pk_add_f32 v[6:7], {v(X+2*j,2)}, v[2:3] {NEG}\nv_pk_fma_f32 v[4:5], v[6:7], v[6:7], v[4:5]")
    a("v_add_f32 v4, v4, v5")
    half_reduce(a, 4)
    a("v_mul_f32 v4, s7, v4")
    bf16_round(a, 2); bf16_round(a, 4)
    a("v_add_f32 v4, 0x3727c5ac, v4")
    bf16_round(a, 4)
    a("v_sqrt_f32 v4, v4\ns_nop 0")
    bf16_round(a, 4)
    a("v_rcp_f32 v6, v4\ns_nop 0\nv_fma_f32 v5, -v4, v6, 1.0\nv_fmac_f32 v6, v5, v6\nv_mov_b32 v9, 0")
    for j in range(10):
        x = X + 2*j
        a(f"v_pk_add_f32 {v(x,2)}, {v(x,2)}, v[2:3] {NEG}\nv_cvt_pk_bf16_f32 v5, v{x}, v{x+1}")
        a(f"v_lshlrev_b32 v{x}, 16, v5\nv_and_b32 v{x+1}, 0xffff0000, v5")
        a(f"v_pk_mul_f32 {v(x,2)}, {v(x,2)}, v[6:7] op_sel_hi:[1,0]\nv_cvt_pk_bf16_f32 v{LX+j}, v{x}, v{x+1}")
    a(f"v_add_u32 v10, {LDS_LN}, v63")
    for j in range(5): a(f"ds_write_b64 v10, {v(LX+2*j,2)} offset:{j*256}")
    a("s_waitcnt lgkmcnt(0)")

def ln_router(a):
    a("v_mov_b32 v2, 0")
    for j in range(10):
        a(f"v_lshlrev_b32 v4, 16, v{LX+j}\nv_lshlrev_b32 v5, 16, v{LW+j}\nv_fmac_f32 v2, v4, v5")
        a(f"v_and_b32 v4, 0xffff0000, v{LX+j}\nv_and_b32 v5, 0xffff0000, v{LW+j}\nv_fmac_f32 v2, v4, v5")
    half_reduce(a, 2)
    a("v_cvt_pk_bf16_f32 v2, v2, v2\nv_and_b32 v2, 0xffff, v2")
    a("v_bfe_i32 v3, v2, 15, 1\nv_and_b32 v3, 0x7fff, v3\nv_or_b32 v3, 0x8000, v3\nv_xor_b32 v2, v2, v3")
    a(f"s_lshl_b32 s7, s2, 3\ns_sub_u32 s6, 2047, s7\nv_sub_u32 v3, s6, v62\nv_lshl_or_b32 v63, v2, 11, v3")

def ln_store(a, back):
    LV = 16
    a(f"s_lshr_b32 s72, s2, 1\ns_mul_i32 s72, s72, 20480\ns_and_b32 s7, s2, 1\ns_lshl_b32 s7, s7, 7\ns_add_u32 s72, s72, s7")
    a(f"s_mul_i32 s73, s2, 10240\ns_add_u32 s73, s73, {WS_XNR-4096}\nv_lshlrev_b32 v9, 4, v0\nv_add_u32 v10, {LDS_LN-4096}, v9")
    for n in range(3):
        a(f"v_add_u32 v2, {256*n-256}, v0\nv_lshrrev_b32 v3, 3, v2\nv_and_b32 v4, 7, v2")
        a(f"v_mul_u32_u24 v5, 1280, v4\nv_lshl_add_u32 v5, v3, 4, v5\nv_add_u32 v5, {LDS_LN}, v5")
        a(f"ds_read_b128 {v(LV+8*n,4)}, v5\nds_read_b128 {v(LV+8*n+4,4)}, v10 offset:{4096*n}\nv_lshlrev_b32 v5, 8, v3\nv_lshl_add_u32 v{6+n}, v4, 4, v5")
    zero_flags(a, True)
    a("s_waitcnt lgkmcnt(0)")
    for n in range(3):
        if n == 2: a(f"s_cmp_ge_u32 s{S_W}, 6\ns_cbranch_scc1 {back}")
        SC = "" if "lnplain" in ABL else " sc1"
        if "nolnst" not in ABL: a(f"buffer_store_dwordx4 {v(LV+8*n,4)}, v{6+n}, {WS}, s72 offen{SC}")
        if "noxnr" not in ABL: a(f"buffer_store_dwordx4 {v(LV+8*n+4,4)}, v9, {WS}, s73 offen{SC}\ns_add_u32 s73, s73, 4096")
    a.label(back)

def count_atomic(a, which):
    a.srd(SRD_E, P_DBG, 256)
    a(f"v_mov_b32 v2, 1\nv_lshlrev_b32 v3, 8, v{L}\ns_and_b32 s6, s2, 31\ns_lshl_b32 s6, s6, 2\nbuffer_atomic_add v2, v3, {R(SRD_E)}, s6 offen offset:{128*which} sc1")

def flag_addr(a, kind, d):
    if kind == "kv":
        a(f"s_lshl_b32 s{d}, s{S_H}, 3\ns_add_u32 s{d}, s{d}, s{S_P}\ns_lshl_b32 s{d}, s{d}, 5\ns_add_u32 s{d}, s{d}, s{S_W}\ns_lshl_b32 s{d}, s{d}, 2\ns_add_u32 s{d}, s{d}, {WS_KVF}")
    elif kind == "ctx":
        a(f"s_lshl_b32 s{d}, s{S_B}, 5\ns_add_u32 s{d}, s{d}, s{S_H}\ns_lshl_b32 s{d}, s{d}, 7\ns_add_u32 s{d}, s{d}, {WS_CTXF}")
    elif kind == "b":
        a(f"s_xor_b32 s{d}, s{S_P}, 1\ns_lshl_b32 s{d}, s{d}, 5\ns_add_u32 s{d}, s{d}, s{S_H}\ns_lshl_b32 s{d}, s{d}, 7\ns_add_u32 s{d}, s{d}, {WS_BF}")
    else:
        a(f"s_lshl_b32 s{d}, s{S_E}, 3\ns_add_u32 s{d}, s{d}, s{S_W}\ns_lshl_b32 s{d}, s{d}, 2\ns_add_u32 s{d}, s{d}, {WS_MOEF}")

def tile_id(a, d):
    a(f"s_and_b32 s{d}, s{S_H}, 7\ns_lshl_b32 s7, s{S_P}, 3\ns_add_u32 s{d}, s{d}, s7")
def xslot(a, slot, d):
    tile_id(a, d)
    a(f"s_lshr_b32 s7, s{S_H}, 3\ns_add_u32 s7, s7, {slot}\ns_add_u32 s7, s7, 1\ns_and_b32 s7, s7, 3\ns_lshl_b32 s{d}, s{d}, 2\ns_add_u32 s{d}, s{d}, s7\ns_mul_i32 s{d}, s{d}, 3\ns_add_u32 s{d}, s{d}, {slot}")
def xf_addr(a, slot, d):
    xslot(a, slot, d)
    a(f"s_lshl_b32 s{d}, s{d}, 5\ns_add_u32 s{d}, s{d}, s{S_W}\ns_lshl_b32 s{d}, s{d}, 2\ns_add_u32 s{d}, s{d}, {WS_XF}")

def set_flag(a, kind, val=1):
    flag_addr(a, kind, 6)
    a(f"v_mov_b32 v2, {val}\nv_mov_b32 v3, {hex(WS_SIZE)}\nv_writelane_b32 v3, s6, 0\nbuffer_store_dword v2, v3, {WS}, 0 offen sc1")
    a.vm.issue("flag")

def phase_kv(a):
    def rdC(i, sp):
        if "kv_noC" in ABL: return
        a(f"ds_read_b128 {v(CF+4*i,4)}, v{RC+sp} offset:{i*2048}"); a.lg.issue(("C", i))
    def rdW(par, j, half, sp):
        if "kv_noW" in ABL: return
        r = WF + 16*par + 4*j + 2*half
        a(f"ds_read_b64_tr_b16 {v(r,2)}, v{RW+j} offset:{sp*8192 + half*1024}"); a.lg.issue(("W", par, j, half))
    wq = [(j, hf) for j in range(4) for hf in range(2)]
    def body(isK, lab, dma, nend, hook=None):
        def mm(i, j, par):
            d = ACC + (i*4+j)*4
            a.wait_lg([("C", i), ("W", par, j, 0), ("W", par, j, 1)])
            if isK: a.mfma(d, WF+16*par+4*j, CF+4*i)
            else: a.mfma(d, CF+4*i, WF+16*par+4*j)
        a(".p2align 4")
        a.label(lab)
        if hook:
            a(f"s_branch {hook}"); a.label(hook + "_back")
        for i in range(8):
            for j in range(4):
                mm(i, j, 0)
                if i < 2: rdW(1, *wq[i*4+j], 1)
            rdC(i, 1)
        dma = list(dma)
        if "kv_nodma" in ABL: dma = []
        for i in range(8):
            for j in range(4):
                mm(i, j, 1)
                if i == 2 or i == 3: rdW(0, *wq[(i-2)*4+j], 0)
                if i >= 2 and dma:
                    for y in dma.pop(0): a(y)
            if i == 1:
                for r in (RC, RC+1, RW, RW+1, RW+2, RW+3): a(f"v_xor_b32 v{r}, 0x10000, v{r}")
                if isK: a("s_waitcnt vmcnt(0) lgkmcnt(0)\ns_barrier")
                else:
                    a(f"s_bitcmp1_b32 0xe8, s{S_ST}\ns_cbranch_scc1 L_vpre")
                    a.label("L_vnow")
                    a("s_waitcnt lgkmcnt(0)\ns_barrier")
                a.lg.drain()
                a.stampd(S_ST, 24)
                rdC(0, 0); rdC(1, 0)
            elif i >= 2: rdC(i, 0)
        emit_groups(a, dma)
        a(f"s_add_u32 s{S_ST}, s{S_ST}, 1\ns_cmp_lt_u32 s{S_ST}, {nend}\ns_cbranch_scc1 {lab}")
    def first_reads():
        a.lg.drain()
        rdC(0, 0); rdC(1, 0)
        for k in range(4): rdW(0, *wq[k], 0)
        rdC(2, 0)
        for k in range(4, 8): rdW(0, *wq[k], 0)
        for i in range(3, 8): rdC(i, 0)
    a(f"s_cmp_ge_u32 s{S_W}, 4\ns_cbranch_scc1 L_kv_v")
    first_reads()
    q0 = list(a.lg.q)
    emit_groups(a, kv_dma_ops()[10:])
    zero_flags(a)
    a.stamp(5)
    body(True, "L_kloopA", kv_dma_ops(), 6)
    assert a.lg.q == q0, (a.lg.q, q0)
    body(True, "L_kloopB", wq_dma_ops(2), 8, hook="L_khook")
    a.stamp(6)
    a("s_waitcnt lgkmcnt(0)\ns_nop 7")
    for n in range(16):
        t = ACC + 4*n; d0 = ACC + 8*n; d1 = d0 + 4
        a(f"v_cvt_pk_bf16_f32 v{t}, v{d0}, v{d0+1}\nv_cvt_pk_bf16_f32 v{t+1}, v{d0+2}, v{d0+3}")
        a(f"v_cvt_pk_bf16_f32 v{t+2}, v{d1}, v{d1+1}\nv_cvt_pk_bf16_f32 v{t+3}, v{d1+2}, v{d1+3}")
    a("s_branch L_q")
    a.label("L_hook")
    for k in (1, 2, 4, 5, 6): a(f"s_cmp_eq_u32 s{S_ST}, {k}\ns_cbranch_scc1 L_hook{k}")
    a(f"s_cmp_lg_u32 s{S_ST}, 7\ns_cbranch_scc1 L_hook_back")
    for ks in range(3): x_load(a, ks, XEARLY[2*ks:2*ks+2])
    a("s_branch L_hook_back")
    a.label("L_hook1")
    ln_store(a, "L_lns")
    for st in TV1: kv_touch(a, st)
    a("s_branch L_hook_back")
    a.label("L_hook2")
    for st in TV2: kv_touch(a, st)
    if "nowot" in ABL: a("s_branch L_hook_back")
    a.srd(SRD_E, P_WO, 4096*640*2)
    a(f"s_lshr_b32 s73, s2, 1\ns_mul_i32 s73, s73, {32*1280}\ns_and_b32 s6, s2, 1\ns_mul_i32 s6, s6, 640\ns_add_u32 s73, s73, s6\ns_movk_i32 s7, 1639")
    a(f"s_mul_i32 s74, s76, 5120\ns_add_u32 s74, s74, {LDS_WOT}\ns_mul_i32 s6, s76, 320\nv_add_u32 v9, s6, v{L}")
    for n in range(5):
        a(f"v_add_u32 v2, {n*64}, v9\nv_mul_lo_u32 v3, v2, s7\nv_lshrrev_b32 v3, 16, v3\nv_mul_u32_u24 v4, 40, v3\nv_sub_u32 v4, v2, v4")
        a(f"v_mul_u32_u24 v3, 1280, v3\nv_lshl_add_u32 v3, v4, 4, v3\ns_add_u32 m0, s74, {n*1024}\ns_nop 0")
        a(f"buffer_load_dwordx4 v3, {R(SRD_E)}, s73 offen{NT} lds")
    a("s_branch L_hook_back")
    a.label("L_hook4")
    WOTR = [16, 20, 24, 28, 32]
    a(f"s_cmp_lg_u32 s{S_W}, 4\ns_cbranch_scc1 L_hook4b")
    count_atomic(a, 0)
    a.label("L_hook4b")
    if "nowot" in ABL: a("s_branch L_hook_back")
    a(f"v_and_b32 v2, 15, v{L}\nv_lshrrev_b32 v3, 4, v{L}\nv_lshrrev_b32 v4, 2, v2\nv_lshl_add_u32 v4, v3, 2, v4\nv_mul_u32_u24 v4, 640, v4")
    a(f"v_and_b32 v2, 3, v2\nv_lshl_add_u32 v4, v2, 3, v4\ns_mul_i32 s6, s76, 160\ns_add_u32 s6, s6, {LDS_WOT}\nv_add_u32 v4, s6, v4")
    a(f"s_mul_i32 s6, s2, 20480\ns_mul_i32 s7, s76, 5120\ns_add_u32 s6, s6, s7\ns_add_u32 s6, s6, {WS_WOF}\ns_add_u32 s7, s6, 4096")
    for n in range(5):
        d = WOTR[n]
        a(f"ds_read_b64_tr_b16 v[{d}:{d+1}], v4 offset:{n*32}\nds_read_b64_tr_b16 v[{d+2}:{d+3}], v4 offset:{n*32+10240}")
    a("s_waitcnt lgkmcnt(0)")
    for n in range(5):
        a(f"buffer_store_dwordx4 {v(WOTR[n],4)}, v{VL16}, {WS}, s{6 if n<4 else 7} offen offset:{(n&3)*1024} sc1")
    a("s_branch L_hook_back")
    a.label("L_hook5")
    a(f"s_lshl_b32 s74, s76, 12\ns_add_u32 s74, s74, {LDS_SP}")
    emit_groups(a, wq_dma_ops(1))
    a("s_branch L_hook_back")
    a.label("L_hook6")
    a(f"s_cmp_lg_u32 s{S_W}, 5\ns_cbranch_scc1 L_hook6b")
    cnt_addr(a); a(cnt_load(a, 62, 0))
    a.label("L_hook6b")
    a(f"s_cmp_lg_u32 s{S_W}, 4\ns_cbranch_scc1 L_hook_back")
    count_atomic(a, 1)
    a("s_branch L_hook_back")
    a.label("L_vpre")
    a(f"s_waitcnt vmcnt(8)\ns_cmp_eq_u32 s{S_ST}, 5\ns_cbranch_scc1 L_vnow\ns_cmp_eq_u32 s{S_ST}, 6\ns_cbranch_scc1 L_vpre6\ns_waitcnt vmcnt(0)\ns_branch L_vnow")
    a.label("L_vpre6")
    a(f"s_cmp_lg_u32 s{S_W}, 5\ns_cbranch_scc1 L_vnow\ns_waitcnt vmcnt(0)")
    cnt_check(a, 62, 0)
    a("s_branch L_vnow")
    a.label("L_khook")
    a(f"s_cmp_lg_u32 s{S_ST}, 7\ns_cbranch_scc1 L_khook_back")
    for ks in range(3): x_load(a, ks, XEARLY[2*ks:2*ks+2])
    a("s_branch L_khook_back")
    a.label("L_kv_v")
    first_reads()
    for st in TV0: kv_touch(a, st)
    a.stamp(5)
    body(False, "L_vloop", [], 8, hook="L_hook")
    a.stamp(6)
    a("s_waitcnt lgkmcnt(0)\ns_nop 7")
    for ii in range(4):
        for j in range(4):
            t = ACC + 16*ii + 4*j; d0 = ACC + 32*ii + 4*j; d1 = d0 + 16
            a(f"v_cvt_pk_bf16_f32 v{t}, v{d0}, v{d0+1}\nv_cvt_pk_bf16_f32 v{t+1}, v{d0+2}, v{d0+3}")
            a(f"v_cvt_pk_bf16_f32 v{t+2}, v{d1}, v{d1+1}\nv_cvt_pk_bf16_f32 v{t+3}, v{d1+2}, v{d1+3}")

QF, O_, S_, FR, P_, NM, T_, L_, ET = 16, 192, 64, 96, 128, 144, 52, 56, 58
VA, VDK, VDV = 48, 49, 50
S_N, S_NL, S_C, S_THR = 62, 63, 64, 65
THRESH = 0x4b800000
def Sreg(par, kt, qt): return S_ + 16*par + (kt*2+qt)*4
def NMreg(kt, qt): return NM + (kt*2+qt)*4
def Oreg(t, qt): return O_ + (t*2+qt)*4
def Qreg(qt, s): return QF + (qt*4+s)*4
def Preg(par, qt): return P_ + 8*par + 4*qt
def Treg(par, qt): return T_ + 2*par + qt

def xlane(a, op, r, t):
    for sw in ("v_permlane16_swap_b32", "v_permlane32_swap_b32"):
        a(f"v_mov_b32 v{t}, v{r}\ns_nop 1\n{sw} v{r}, v{t}\ns_nop 1\n{op} v{r}, v{r}, v{t}")

def st_dma(a, parts):
    if "K" in parts:
        for hf in range(2):
            a(f"s_lshl_b32 s6, s76, 13\ns_add_u32 s6, s6, s78\ns_add_u32 m0, s6, {hf*4096}\ns_add_u32 s7, s77, {hf*4096}")
            for i in range(4): a(f"buffer_load_dwordx4 v{VDK}, {WS}, s7 offen offset:{i*1024} sc1 lds")
    for hf in range(2):
        if f"V{hf}" in parts:
            a(f"s_lshl_b32 s6, s76, 12\ns_add_u32 s6, s6, s78\ns_add_u32 m0, s6, {32768+hf*16384}\ns_add_u32 s7, s77, {0x80000-16384+hf*16384}")
            for i in range(4): a(f"buffer_load_dwordx4 v{VDV}, {WS}, s7 offen offset:{i*1024} sc1 lds")

S_HK, S_ALL = 89, 90
def kv_self_touch(a):
    a(f"v_lshrrev_b32 v9, 3, v{L}\ns_cmp_lt_u32 s{S_W}, 4\ns_cselect_b32 s7, 6, 4\nv_and_b32 v10, s7, v9\nv_add_u32 v9, v9, v10\nv_lshlrev_b32 v9, 10, v9")
    a(f"v_and_b32 v10, 7, v{L}\nv_lshl_add_u32 v9, v10, 7, v9\ns_sub_u32 s6, s{S_KVD}, 32768")
    a(f"buffer_load_dword v{VDUM}, v9, {WS}, s6 offen sc1\ns_add_u32 s6, s6, 16384\nbuffer_load_dword v{VDUM}, v9, {WS}, s6 offen sc1")

def kv_flag_wait(a, level):
    a(f"s_lshl_b32 s7, s{S_H}, 10\ns_add_u32 s7, s7, {WS_KVF}\nv_lshrrev_b32 v2, 3, v{L}\nv_and_b32 v3, 7, v{L}\nv_lshlrev_b32 v3, 2, v3\nv_lshl_add_u32 v3, v2, 7, v3")
    poll(a, f"buffer_load_dword v2, v3, {WS}, s7 offen sc1", f"v_cmp_gt_u32 vcc, {level}, v2")

KS_POLL = int(os.environ.get("KSP", "15"))
LATE_KS = tuple(int(x) for x in os.environ.get("STKS", "0,1,2,3,16,17,18,19").split(","))
KS_FLAG = int(os.environ.get("KSF", "6"))
NEARLY = int(os.environ.get("NEARLY", "2"))
def kv_store(a, n, late=True):
    if late and "nolate" in ABL: return
    a(f"buffer_store_dwordx4 {v(ACC+4*n,4)}, v{VL16}, {WS}, s{S_KVD} offen sc1"); a.vm.issue(("st", n))
    inc = ("1024", f"s{S_INCA}", "1024", f"s{S_INCB}")[n & 3]
    a(f"s_add_u32 s{S_KVD}, s{S_KVD}, {inc}")
def q_body(a):
    sfx = ""
    a.lg.drain(); a.vm.drain()
    def rdW(t, hf, ks):
        blk = ks >> 2
        off = (0, 0, 32768, 0, 32768)[blk] + (ks & 3)*8192 + hf*1024
        a(f"ds_read_b64_tr_b16 {v(WF+4*t+2*hf,2)}, v{QRW+t} offset:{off}"); a.lg.issue(("W", t, hf))
    for t in range(8):
        rdW(t, 0, 0); rdW(t, 1, 0)
    xr = {ks: XEARLY[2*ks:2*ks+2] for ks in range(3)}
    for ks in range(3, 7):
        xr[ks] = [CF + 8*(ks-3), CF + 8*(ks-3) + 4]
        x_load(a, ks, xr[ks])
    nst = 0
    for ks in range(20):
        pend = []
        a.wait_vm(("X", ks))
        if ks % 2 == 0: a.stamp(32 + ks//2)
        barrier_here = (ks == 11)
        upd = {3: -LDS_SP, 11: 65536}.get(ks)
        st_at = (3,) if ks in LATE_KS else ()
        for t in range(8):
            for qt in range(2):
                if qt == 0: a.wait_lg([("W", t, 0), ("W", t, 1)])
                a.mfma(Oreg(t, qt), WF+4*t, xr[ks][qt], "0" if ks == 0 else None)
                if qt == 1 and ks < 19: pend += [(t, 0), (t, 1)]
                if barrier_here and t == 1 and qt == 1:
                    a("s_waitcnt lgkmcnt(0)\ns_barrier"); a.lg.drain()
                    while len(pend) > 2: rdW(*pend.pop(0), ks+1)
                if pend and not (barrier_here and (t, qt) < (1, 1)): rdW(*pend.pop(0), ks+1)
                if upd is not None and qt == 0:
                    a(f"v_add_u32 v{QRW+t}, {hex(upd & 0xffffffff)}, v{QRW+t}")
                if qt == 0 and t in st_at and nst < 16:
                    kv_store(a, nst); nst += 1
        while pend: rdW(*pend.pop(0), ks+1)
        if ks + 7 < 20:
            xr[ks+7] = xr[ks]; x_load(a, ks+7, xr[ks])
        if ks == KS_FLAG:
            a.wait_vm(("st", 3))
            set_flag(a, "kv", 1)
        if ks == KS_POLL:
            a.wait_vm(("X", 19))
            a(f"s_cmp_ge_u32 s{S_W}, 4\ns_cbranch_scc1 L_q_nold{sfx}")
            a.stamp(20)
            kv_flag_wait(a, 1)
            a.stamp(21)
            st_dma(a, ["K", "V1"])
            a(f"s_branch L_q_j{sfx}")
            a.label(f"L_q_nold{sfx}")
            a(f"s_cmp_lg_u32 s{S_W}, 5\ns_cbranch_scc1 L_q_j{sfx}")
            cnt_addr(a); a(cnt_load(a, 63, 1))
            a.label(f"L_q_j{sfx}")
    assert nst == len(LATE_KS) and 8 <= nst <= 12

def phase_q(a):
    a.label("L_q")
    a.srd(SRD_E, P_DBG, 256)
    a(f"s_lshl_b32 s6, s76, 13\nv_add_u32 v{VDK}, s6, v{VL16}\ns_lshl_b32 s6, s76, 12\nv_add_u32 v{VDV}, s6, v{VL16}")
    a(f"s_lshl_b32 s77, s{S_H}, 20\ns_add_u32 s77, s77, {WS_KV}\ns_mov_b32 s78, 0\ns_mov_b32 s{S_ALL}, 0")
    a(f"s_cmp_lt_u32 s{S_W}, 4\ns_cselect_b32 s{S_HK}, 3, 2")
    q_body(a)
    a.stamp(7)
    a("s_mov_b32 s6, 0x3e0293ee\ns_nop 7")
    for qt in range(2):
        for n in range(len(LATE_KS), 12):
            if (n & 1) == qt or 12 - len(LATE_KS) == 1: pass
        if qt == 0:
            for n in range(len(LATE_KS), 12): kv_store(a, n)
        for s_ in range(4):
            for hf in range(2):
                d = Oreg(2*s_+hf, qt)
                for r in range(4): a(f"v_mul_f32 v{d+r}, s6, v{d+r}")
                a(f"v_cvt_pk_bf16_f32 v{Qreg(qt,s_)+2*hf}, v{d}, v{d+1}\nv_cvt_pk_bf16_f32 v{Qreg(qt,s_)+2*hf+1}, v{d+2}, v{d+3}")
    zero_regs(a, O_, 64)
    zero_regs(a, NM, 16)
    zero_regs(a, T_, 6)
    a(f"v_mov_b32 v{VA}, v{VL16}")
    a(f"s_waitcnt vmcnt({12 - len([k for k in LATE_KS if k <= KS_POLL])})")
    a(f"s_cmp_lg_u32 s{S_W}, 5\ns_cbranch_scc1 L_q_c")
    cnt_check(a, 63, 1)
    a.label("L_q_c")

def sm_ops(par):
    ops = []
    n = 0
    for kt in range(2):
        for qt in range(2):
            for r in range(4):
                t, tp = ET + n % 4, ET + (n-1) % 4
                e = f"v_exp_f32 v{t}, v{Sreg(par,kt,qt)+r}"
                rest = []
                if kt == 0 and r == 0: pass
                elif kt == 0 and r == 1: rest.append(f"v_add_f32 v{Treg(par,qt)}, v{tp}, v{t}")
                else: rest.append(f"v_add_f32 v{Treg(par,qt)}, v{t}, v{Treg(par,qt)}")
                if r & 1: rest.append(f"v_cvt_pk_bf16_f32 v{Preg(par,qt)+2*kt+(r>>1)}, v{tp}, v{t}")
                ops.append((e, rest)); n += 1
    return ops

def phase_attn(a):
    handlers = []
    FULLQ = [("F", i) for i in range(8)]
    def rd(kind, i, k):
        off = (0 if kind == "K" else 32768) + k*8192 + i*1024
        a(f"ds_read_b128 {v(FR+4*i,4)}, v{VA} offset:{off}"); a.lg.issue(("F", i))
    def bar(wait="vmcnt(0) lgkmcnt(0)", mid=None, hot=False):
        bk = a.newlabel("ldback")
        if hot:
            a(f"s_cmp_lg_u32 s{S_HK}, 0\ns_cbranch_scc1 {bk}_c\ns_waitcnt lgkmcnt(0)\ns_barrier")
            a.label(bk)
            handlers.append(("ld", bk))
        else:
            a(f"s_waitcnt {wait}\ns_call_b64 s[82:83], L_pend\ns_barrier")
            if mid: mid()
            a(f"s_call_b64 s[82:83], L_load")
        a.lg.drain()
        if "stampbar" in ABL: a.stampd(S_N, 44)
        a(f"s_add_i32 s{S_N}, s{S_N}, 1")
    def ladd(par, qt): return f"v_add_f32 v{L_+qt}, v{Treg(par,qt)}, v{L_+qt}"
    def stage(k, qk=True, sm=True, pv=True, nxt=True, loop=False):
        pq, ps = k & 1, 1 - (k & 1)
        pairs = []
        if pv: pairs += [("V", i) for i in range(8)]
        if qk: pairs += [("K", i) for i in range(8)]
        NP = len(pairs)
        g0 = [[] for _ in range(NP)]; g1 = [[] for _ in range(NP)]
        full = qk and pv
        if sm:
            ops = sm_ops(ps)[2:]
            per = 1 if full else 2
            for n, (e, rest) in enumerate(ops):
                g0[n//per].append(e); g1[n//per] += rest
            cp = NP - 2 if full else NP - 1
            g1[cp] += [f"v_add_f32 v{ET+4}, v{Treg(ps,0)}, v{Treg(ps,1)}", f"v_cmp_nge_f32 vcc, s{S_THR}, v{ET+4}"]
        g1[0].append(ladd(pq, 0)); g1[2].append(ladd(pq, 1))
        if full:
            for n, (e, rest) in enumerate(sm_ops(pq)[:2]):
                g0[14+n].append(e); g1[14+n] += rest
        sc = {}
        if loop:
            sc[3] = f"s_sub_i32 s{S_C}, s{S_C}, 1"; sc[5] = f"s_cmp_gt_i32 s{S_C}, 0"; sc[7] = f"s_cselect_b32 s{S_THR}, s72, -1.0"
        barp = (NP - 8 + 1) if k == 3 else None
        held = []
        a.wait_lg(("F", 0))
        for n, (kind, i) in enumerate(pairs):
            for qt in range(2):
                if kind == "V": a.mfma(Oreg(i, qt), FR+4*i, Preg(pq, qt))
                else: a.mfma(Sreg(pq, i >> 2, qt), FR+4*i, Qreg(qt, i & 3), None if i & 3 else NMreg(i >> 2, qt))
                if qt == 0:
                    if n + 1 < NP: a.wait_lg(("F", pairs[n+1][1]))
                    for x in g0[n]: a(x)
                    if barp is not None and n == barp: a(f"v_xor_b32 v{VA}, 0x10000, v{VA}")
                else:
                    if n in sc: a(sc[n])
                    if kind == "V" and qk: rd("K", i, k)
                    elif not nxt:
                        if n == barp: bar()
                    else:
                        if barp is not None and n < barp: held.append(i)
                        else:
                            if n == barp:
                                bar(hot=loop)
                                for h in held: rd("V", h, 0)
                            rd("V", i, (k+1) & 3)
                    for x in g1[n]: a(x)
        if sm:
            bk = a.newlabel("back")
            a(f"s_cbranch_vccnz {bk}_h")
            a.label(bk)
            handlers.append(("sm", bk, k, loop, full))
    a(f"s_mov_b32 s72, {hex(THRESH)}\ns_mov_b32 s{S_THR}, s72\ns_sub_u32 s{S_NL}, 15, s{S_P}\ns_mov_b32 s{S_N}, -1")
    a.stamp(8)
    bar("lgkmcnt(0)")
    a.stamp(9)
    for i in range(8): rd("K", i, 0)
    a(f"s_cmp_lg_u32 s{S_B}, 0\ns_cbranch_scc1 L_nm0\ns_call_b64 s[82:83], L_mask")
    a.label("L_nm0")
    for i in range(8):
        a.wait_lg(("F", i))
        for qt in range(2):
            a.mfma(Sreg(0, i >> 2, qt), FR+4*i, Qreg(qt, i & 3), None if i & 3 else NMreg(i >> 2, qt))
        rd("K", i, 1)
    a("s_nop 7")
    for qt in range(2):
        m = ET + qt
        s0, s1 = Sreg(0, 0, qt), Sreg(0, 1, qt)
        a(f"v_max3_f32 v{m}, v{s0}, v{s0+1}, v{s0+2}\nv_max3_f32 v{m}, v{m}, v{s0+3}, v{s1}\nv_max3_f32 v{m}, v{m}, v{s1+1}, v{s1+2}\nv_max_f32 v{m}, v{m}, v{s1+3}")
        xlane(a, "v_max_f32", m, ET+2)
        for kt in range(2):
            for r in range(4):
                a(f"v_sub_f32 v{Sreg(0,kt,qt)+r}, v{Sreg(0,kt,qt)+r}, v{m}\nv_sub_f32 v{NMreg(kt,qt)+r}, 0, v{m}")
    a(f"s_cmp_lg_u32 s{S_B}, 1\ns_cbranch_scc1 L_nm1\ns_call_b64 s[82:83], L_mask")
    a.label("L_nm1")
    def early(par):
        o = sm_ops(par)[:2]
        a(o[0][0]); a(o[1][0]); a("s_nop 0")
        for x in o[1][1]: a(x)
    early(0)
    stage(1, pv=False)
    assert a.lg.q == FULLQ
    a("s_nop 7")
    early(1)
    for n in range(12, 16): kv_store(a, n)
    a(f"s_sub_i32 s{S_C}, s{S_B}, 2")
    a.stamp(10)
    a(f"s_cmp_eq_u32 s{S_B}, 0\ns_cbranch_scc1 L_pv2\ns_cmp_eq_u32 s{S_B}, 1\ns_cbranch_scc1 L_tail2")
    a(f"s_cmp_lg_u32 s{S_B}, 2\ns_cbranch_scc1 L_st2\ns_call_b64 s[82:83], L_mask\ns_branch L_st2")
    a(".p2align 6")
    a.label("L_st0")
    for k in range(4):
        if k == 2: a.label("L_st2")
        stage(k, loop=True)
        assert a.lg.q == FULLQ
    a("s_branch L_st0")
    for k in range(4):
        a.label(f"L_tail{k}")
        a.lg.q = list(FULLQ)
        a(f"s_mov_b32 s{S_THR}, s72")
        stage(k, qk=False)
        assert a.lg.q == FULLQ
        a.label(f"L_pv{(k+1)&3}")
        stage((k+1) & 3, qk=False, sm=False, nxt=False)
        if k < 3: a("s_branch L_fin")
    a.label("L_fin")
    a.stamp(11)
    idx_addr(a); a(f"buffer_load_dword v{VIDX}, v3, {WS}, s72 offen sc1")
    for qt in range(2):
        xlane(a, "v_add_f32", L_+qt, ET)
        a(f"v_rcp_f32 v{L_+qt}, v{L_+qt}")
    a(f"s_lshl_b32 s6, s{S_B}, 18\ns_lshl_b32 s7, s{S_H}, 12\ns_add_u32 s6, s6, s7\ns_add_u32 s6, s6, {WS_CTX}\ns_nop 4")
    n = 0
    a.vm.drain()
    for qt in range(2):
        for s_ in range(4):
            t = QF + 4*n; n += 1
            for hf in range(2):
                d = Oreg(2*s_+hf, qt)
                for r in range(4): a(f"v_mul_f32 v{d+r}, v{L_+qt}, v{d+r}")
                a(f"v_cvt_pk_bf16_f32 v{t+2*hf}, v{d}, v{d+1}\nv_cvt_pk_bf16_f32 v{t+2*hf+1}, v{d+2}, v{d+3}")
            a(f"buffer_store_dwordx4 {v(t,4)}, v{VL16}, {WS}, s6 offen offset:{s_*1024} sc1"); a.vm.issue("st")
        if qt == 0: a("s_add_u32 s6, s6, 0x20000")
    a.stamp(12)
    def flag_now():
        a("s_waitcnt vmcnt(0)")
        set_flag(a, "ctx")
    a(f"s_cmp_gt_i32 s{S_N}, s{S_NL}\ns_cbranch_scc1 L_pre")
    bar("vmcnt(8)", flag_now)
    a(f"s_lshl_b32 s6, s{S_W}, 8\ns_add_u32 s6, s6, s2\ns_cmp_eq_u32 s6, {DESIG}\ns_cbranch_scc1 L_top")
    a.label("L_idle")
    a(f"s_sub_i32 s6, s{S_NL}, 5\ns_cmp_gt_i32 s{S_N}, s6\ns_cbranch_scc1 L_pre")
    bar()
    a(f"s_cmp_lt_u32 s{S_E}, 54\ns_cbranch_scc1 L_moe\ns_branch L_idle")
    a.label("L_pre")
    a(f"s_cmp_lt_u32 s{S_W}, 4\ns_cbranch_scc1 L_pre1")
    out_setup(a, 1)
    a(f"s_and_b32 s6, s{S_NL}, 1\ns_lshl_b32 s6, s6, 16\ns_xor_b32 s6, s6, 0x10000\ns_lshl_b32 s7, s76, 12\ns_add_u32 s7, s7, s6\nv_add_u32 v5, s7, v{VL16}")
    a(f"s_lshl_b32 s7, s76, 13\ns_add_u32 s6, s6, s7\nv_add_u32 v3, s6, v{VL16}\ns_add_u32 s7, s7, {LDS_SP}\nv_add_u32 v2, s7, v{VL16}")
    a.stamp(19)
    a("s_barrier")
    for f in range(20):
        r, off = (2, f*1024) if f < 8 else (3, (f-8)*1024) if f < 16 else (5, 49152+(f-16)*1024)
        a(f"ds_read_b128 {v(WR+4*f,4)}, v{r} offset:{off}")
        if f % 8 == 7: a("s_waitcnt lgkmcnt(6)")
    a("s_waitcnt lgkmcnt(0)\ns_barrier")
    wo_load(a, 4)
    idx_poll(a, "b", "s_waitcnt vmcnt(13)")
    a("s_call_b64 s[80:81], L_oprep\ns_waitcnt vmcnt(5)")
    set_flag(a, "ctx")
    a("s_branch L_adone")
    a.label("L_oprep")
    wo_voffs(a, VWM, VWO4)
    out_consts(a)
    out_items(a)
    a("s_setpc_b64 s[80:81]")
    a.label("L_pre1")
    out_setup(a, 0)
    for j in range(5):
        if j == 4: idx_poll(a, "a", f"s_waitcnt vmcnt({10*j})")
        if j < 4:
            for i in (2*j, 2*j+1): wo_load(a, i)
        if j == 4:
            ctxf_addr(a, S_OB); a(f"buffer_load_dword v50, v3, {WS}, s72 offen sc1")
            a("s_call_b64 s[80:81], L_oprep")
        a(f"s_cmp_gt_i32 s{S_N}, s{S_NL}\ns_cbranch_scc1 L_e{j+2}")
        if j < 4:
            a(f"s_cmp_eq_i32 s{S_N}, s{S_NL}\ns_cbranch_scc1 L_lw{j}\ns_waitcnt vmcnt({(11, 10, 10, 10)[j]})")
            a.label(f"L_lw{j}")
        bar(f"vmcnt({20 if 'nocode2' in ABL else 21})")
        a.label(f"L_e{j+2}")
    a("s_waitcnt vmcnt(0)")
    a.stamp(22)
    moe_finish(a)
    a.stamp(23)
    a("v_cmp_ne_u32 vcc, 1, v50\ns_cbranch_vccz L_ce")
    ctxf_addr(a, S_OB)
    poll(a, f"buffer_load_dword v2, v3, {WS}, s72 offen sc1", "v_cmp_ne_u32 vcc, 1, v2", sleep=4)
    a.label("L_ce")
    a("s_setprio 0")
    a.stamp(19)
    a("s_barrier\ns_barrier")
    a.stamp(15)
    for r in range(2):
        for x in ctx_dma(r) + ctx_dma(r, 16384): a(x)
    a("s_waitcnt vmcnt(8)\ns_branch L_adone")
    moe_steps(a, bar)
    top8(a)
    for h in handlers:
        if h[0] == "ld":
            a.label(h[1] + "_c"); a(f"s_waitcnt vmcnt(0) lgkmcnt(0)\ns_call_b64 s[82:83], L_pend\ns_barrier\ns_call_b64 s[82:83], L_load\ns_branch {h[1]}")
        else:
            _, bk, k, loop, full = h
            a.label(bk + "_h")
            a(f"v_cmp_nge_f32 vcc, s72, v{ET+4}\ns_cbranch_vccz {bk}_n\ns_call_b64 s[80:81], L_rare{1-(k&1)}")
            if full:
                o = sm_ops(k & 1)[:2]
                a(o[0][0]); a(o[1][0]); a("s_nop 0")
                for x in o[1][1]: a(x)
            a.label(bk + "_n")
            if loop:
                a(f"s_cmp_lt_i32 s{S_C}, 0\ns_cbranch_scc1 L_tail{(k+1)&3}\ns_cmp_gt_i32 s{S_C}, 0\ns_cbranch_scc1 {bk}\ns_call_b64 s[82:83], L_mask")
            a(f"s_branch {bk}")
    a.label("L_load")
    a(f"s_bitcmp1_b32 s{S_HK}, 0\ns_cbranch_scc0 L_load_r")
    a(f"s_add_u32 s77, s77, 32768\ns_xor_b32 s78, s78, 0x10000\ns_add_i32 s73, s{S_N}, 1\ns_cmp_gt_i32 s73, s{S_NL}\ns_cbranch_scc1 L_load_r")
    if "at_nodma" not in ABL:
        a(f"s_cmp_eq_i32 s73, s{S_NL}\ns_cbranch_scc1 L_load_v\ns_cmp_lg_i32 s73, 3\ns_cbranch_scc1 L_load_k")
        kv_flag_wait(a, 2)
        a.label("L_load_k")
        st_dma(a, ["K", "V1"])
        a.label("L_load_v")
        st_dma(a, ["V0"])
    a(f"s_cmp_eq_i32 s73, s{S_NL}\ns_cbranch_scc1 L_xa")
    a(f"s_cmp_lt_u32 s{S_P}, 4\ns_cbranch_scc1 L_load_r\ns_sub_i32 s79, s73, 1\ns_cmp_lt_u32 s79, 2\ns_cbranch_scc1 L_x3")
    a.label("L_load_r")
    a("s_setpc_b64 s[82:83]")
    a.label("L_pend")
    a(f"s_bitcmp1_b32 s{S_HK}, 1\ns_cbranch_scc0 L_load_a\ns_cmp_lt_i32 s{S_N}, 0\ns_cbranch_scc1 L_load_a")
    set_flag(a, "kv", 2)
    a(f"s_and_b32 s{S_HK}, s{S_HK}, 1")
    a.label("L_load_a")
    a("s_setpc_b64 s[82:83]")
    def wo_dma(fs, m0base, m0off):
        for i, f in enumerate(fs):
            a(f"s_add_u32 m0, {m0base}, {m0off + i*1024}\ns_add_u32 s7, s74, {(f//5)*40960}\nbuffer_load_dwordx4 v{4 + f%5}, {WS}, s7 offen sc1 lds")
    a.label("L_xa")
    if "nocode2" not in ABL:
        a("s_getpc_b64 s[80:81]")
        a.label("L_pc2")
        a(f"s_sub_u32 s80, s80, L_pc2-L_fin\ns_subb_u32 s81, s81, 0\ns_and_b32 s6, s{S_H}, 1\ns_lshl_b32 s6, s6, 14\nv_lshl_add_u32 v3, v0, 6, s6")
        a(f"v_min_u32 v3, L_exit-L_fin, v3\nglobal_load_dword v{VDUM}, v3, s[80:81]")
    if "xt" in ABL:
        a.srd(SRD_A, P_X, 2048*640*2)
        a(f"v_lshrrev_b32 v2, 2, v{L}\nv_mul_u32_u24 v2, 1280, v2\nv_and_b32 v3, 3, v{L}\nv_lshl_add_u32 v2, v3, 6, v2")
        a(f"s_lshl_b32 s6, s{S_H}, 2\ns_add_u32 s6, s6, s{S_W}\ns_mul_i32 s73, s6, 20480\ns_mul_i32 s7, s{S_P}, 160\ns_andn2_b32 s7, s7, 63\ns_add_u32 s7, s7, s73")
        a(f"buffer_load_dword v{VDUM}, v2, {R(SRD_A)}, s7 offen\nv_min_u32 v2, 39, v{L}\nv_lshlrev_b32 v2, 6, v2\ns_mul_i32 s7, s{S_P}, 2560\ns_add_u32 s7, s7, s73")
        a(f"buffer_load_dword v{VDUM}, v2, {WS}, s7 offen sc1")
    wo_base(a, 74, 1)
    wo_voffs(a, 4)
    a(f"s_lshl_b32 s73, s{S_W}, 13\ns_add_u32 s75, s73, s78")
    wo_dma(range(8), "s73", LDS_SP); wo_dma(range(8, 16), "s75", 0)
    a(f"s_lshl_b32 s75, s{S_W}, 12\ns_add_u32 s75, s75, s78")
    wo_dma(range(16, 20), "s75", 49152)
    a("s_setpc_b64 s[82:83]")
    a.label("L_x3")
    if "nomoetouch" not in ABL:
        a.srd(SRD_A, P_WG, 640*1728*2)
        a(f"s_cmp_eq_u32 s{S_W}, 3\ns_cbranch_scc1 L_load_r")
        a(f"s_cmp_eq_u32 s{S_W}, 1\ns_cselect_b32 s{SRD_A}, s{P_WU}, s{SRD_A}\ns_cselect_b32 s{SRD_A+1}, s{P_WU+1}, s{SRD_A+1}")
        a(f"s_cmp_eq_u32 s{S_W}, 2\ns_cselect_b32 s{SRD_A}, s{P_WD}, s{SRD_A}\ns_cselect_b32 s{SRD_A+1}, s{P_WD+1}, s{SRD_A+1}")
        a(f"s_mov_b32 s73, 3456\ns_cmov_b32 s73, 256\ns_mov_b32 s75, 256\ns_cmov_b32 s75, {4*40960}")
        a(f"s_lshr_b32 s6, s2, 3\ns_sub_u32 s6, s6, 16\ns_mul_i32 s6, s6, 40\nv_lshrrev_b32 v2, 2, v{L}\nv_add_u32 v2, s6, v2\nv_mul_lo_u32 v2, v2, s73\nv_and_b32 v3, 3, v{L}\nv_lshl_add_u32 v2, v3, 6, v2")
        a(f"s_lshl_b32 s6, s79, 3\ns_lshr_b32 s7, s{S_H}, 2\ns_add_u32 s6, s6, s7\ns_mul_i32 s6, s6, s75")
        a(f"v_mov_b32 v3, {hex(WS_SIZE)}\nv_cmp_gt_u32 vcc, 32, v{L}\ns_lshl_b32 s73, s73, 4\ns_nop 0\nv_cndmask_b32 v3, v3, v2, vcc")
        a(f"buffer_load_dword v{VDUM}, v2, {R(SRD_A)}, s6 offen\ns_add_u32 s7, s6, s73\nbuffer_load_dword v{VDUM}, v2, {R(SRD_A)}, s7 offen")
        a(f"s_add_u32 s7, s7, s73\nbuffer_load_dword v{VDUM}, v3, {R(SRD_A)}, s7 offen")
    a("s_setpc_b64 s[82:83]")
    a.label("L_mask")
    a(f"v_and_b32 v2, 15, v{L}\nv_lshrrev_b32 v3, 4, v{L}\nv_lshlrev_b32 v3, 2, v3\nv_sub_u32 v2, v2, v3\nv_mov_b32 v3, 0xff800000")
    for r in range(4):
        a(f"v_cmp_gt_i32 vcc, {r}, v2\nv_mov_b32 v{NMreg(1,0)+r}, v3\ns_nop 0")
        a(f"v_cndmask_b32 v{NMreg(0,0)+r}, v{NMreg(0,0)+r}, v3, vcc\nv_cndmask_b32 v{NMreg(1,1)+r}, v{NMreg(1,1)+r}, v3, vcc")
    a("s_nop 1\ns_setpc_b64 s[82:83]")
    for par in range(2):
        a.label(f"L_rare{par}")
        a("s_nop 15")
        for qt in range(2):
            m = ET + 4
            s0, s1 = Sreg(par, 0, qt), Sreg(par, 1, qt)
            a(f"v_max3_f32 v{m}, 0, v{s0}, v{s0+1}\nv_max3_f32 v{m}, v{m}, v{s0+2}, v{s0+3}\nv_max3_f32 v{m}, v{m}, v{s1}, v{s1+1}\nv_max3_f32 v{m}, v{m}, v{s1+2}, v{s1+3}")
            xlane(a, "v_max_f32", m, ET)
            a(f"v_exp_f32 v{ET}, -v{m}")
            for kt in range(2):
                for r in range(4):
                    for reg in (Sreg(0,kt,qt), Sreg(1,kt,qt), NMreg(kt,qt)):
                        a(f"v_sub_f32 v{reg+r}, v{reg+r}, v{m}")
            a(f"v_mul_f32 v{L_+qt}, v{ET}, v{L_+qt}")
            for t in range(8):
                for r in range(4): a(f"v_mul_f32 v{Oreg(t,qt)+r}, v{ET}, v{Oreg(t,qt)+r}")
        for e, rest in sm_ops(par):
            a(e); a("s_nop 0")
            for x in rest: a(x)
        a("s_nop 1\ns_setpc_b64 s[80:81]")
    a.label("L_adone")
    a.stamp(13)

def top8(a):
    K = 64
    a.label("L_top")
    a(f"s_mov_b32 s6, {hex(WS_R)}\ns_mov_b32 s7, {hex(WS_R+4096)}")
    for i in range(8): a(f"buffer_load_dwordx4 {v(K+4*i,4)}, v{VL16}, {WS}, s{6+i//4} offen offset:{(i&3)*1024} sc1")
    a("s_waitcnt vmcnt(0)\nv_mov_b32 v24, 0\ns_mov_b32 s7, 0\ns_mov_b32 s84, 0")
    a.label("L_top_l")
    a(f"v_max3_u32 v4, v{K}, v{K+1}, v{K+2}\nv_max3_u32 v5, v{K+3}, v{K+4}, v{K+5}")
    for i in range(6, 30, 4): a(f"v_max3_u32 v4, v4, v{K+i}, v{K+i+1}\nv_max3_u32 v5, v5, v{K+i+2}, v{K+i+3}")
    a(f"v_max3_u32 v4, v4, v{K+30}, v{K+31}\nv_max_u32 v4, v4, v5")
    a.wave_reduce("v_max_u32", 4)
    a("v_readlane_b32 s6, v4, 63\ns_mov_b32 m0, s7\ns_nop 3\ns_add_u32 s84, s84, s6\nv_writelane_b32 v24, s84, m0")
    for i in range(32): a(f"v_subrev_u32 v{K+i}, s6, v{K+i}")
    a("s_add_u32 s7, s7, 1\ns_cmp_lt_u32 s7, 8\ns_cbranch_scc1 L_top_l")
    a(f"v_or_b32 v24, 0x80000000, v24\nv_lshlrev_b32 v5, 2, v{L}\nv_mov_b32 v6, {hex(WS_SIZE)}\nv_cmp_gt_u32 vcc, 8, v{L}\ns_mov_b32 s6, {hex(WS_IDX)}\ns_nop 0\nv_cndmask_b32 v5, v6, v5, vcc")
    a(f"buffer_store_dword v24, v5, {WS}, s6 offen sc1\ns_branch L_idle")

OACC = 176
M_WD, M_PART = 81920, 122880
VIDX = 51
def idx_addr(a):
    a(f"v_and_b32 v3, 7, v{L}\nv_lshlrev_b32 v3, 2, v3\ns_mov_b32 s72, {hex(WS_IDX)}")
def ctxf_addr(a, own):
    a(f"v_and_b32 v3, 1, v{L}\nv_lshlrev_b32 v3, 12, v3\nv_and_b32 v2, 2, v{L}\nv_lshl_add_u32 v3, v2, 8, v3")
    a(f"s_lshr_b32 s72, s{own}, 2\ns_lshl_b32 s72, s72, 6\ns_andn2_b32 s6, s{S_H}, 7\ns_add_u32 s72, s72, s6\ns_add_u32 s72, s72, s76\ns_lshl_b32 s72, s72, 7\ns_add_u32 s72, s72, {WS_CTXF}")
def idx_poll(a, sfx, wait="s_waitcnt vmcnt(40)"):
    a(wait)
    a(f"v_cmp_le_i32 vcc, 0, v{VIDX}\ns_cbranch_vccz L_idx_ok{sfx}")
    idx_addr(a)
    poll(a, f"buffer_load_dword v{VIDX}, v3, {WS}, s72 offen sc1", f"v_cmp_le_i32 vcc, 0, v{VIDX}")
    a.label(f"L_idx_ok{sfx}")

def moe_steps(a, bar):
    XS, FRG, GA, WDR, WD2, PR, YO = 64, 104, 24, 32, 240, 184, 216
    VG, VT, VD, VTD, VY, VXS = 16, 17, 18, 19, 20, 21
    S_G, S_WIN, S_D = 84, 85, 86
    a.label("L_moe")
    a(f"s_add_u32 s6, s{S_N}, s{S_P}\ns_cmp_lg_u32 s6, 5\ns_cbranch_scc1 L_idle")
    def srds():
        a.srd(SRD_A, P_WG, 640*1728*2)
        a(f"s_cmp_ge_u32 s{S_W}, 2\ns_cselect_b32 s{SRD_A}, s{P_WU}, s{SRD_A}\ns_cselect_b32 s{SRD_A+1}, s{P_WU+1}, s{SRD_A+1}")
        a.srd(SRD_B, P_WD, 1728*640*2)
    def dma_g(nk):
        for n in range(2*nk):
            a(f"s_add_u32 m0, s{S_WIN}, {n*1024}\ns_nop 0\nbuffer_load_dwordx4 v{VG}, {R(SRD_A)}, s{S_G} offen lds\ns_add_u32 s{S_G}, s{S_G}, {16*3456}")
    def dma_d():
        for n in range(4):
            a(f"s_add_u32 m0, s{S_WIN}, {4096+n*1024}\ns_add_u32 s6, s{S_D}, {n*8*1280}\nbuffer_load_dwordx4 v{VD}, {R(SRD_B)}, s6 offen lds")
        a(f"s_add_u32 s{S_D}, s{S_D}, 512")
    def rd_g(k0, nk):
        for k in range(nk):
            for ft in range(2):
                d = FRG + ((k0+k)*2+ft)*4
                a(f"ds_read_b64_tr_b16 {v(d,2)}, v{VT} offset:{k*2048+ft*32}\nds_read_b64_tr_b16 {v(d+2,2)}, v{VT} offset:{k*2048+ft*32+256}")
            if k == 1: a("s_waitcnt lgkmcnt(0)")
    def xs(k0, nk):
        for k in range(k0, k0+nk): a(f"buffer_load_dwordx4 {v(XS+4*k,4)}, v{VXS}, {WS}, 0 offen offset:{k*64} sc1")
    def rd_d(base):
        for m in range(4):
            a(f"ds_read_b64_tr_b16 {v(base+4*m,2)}, v{VTD} offset:{m*32}\nds_read_b64_tr_b16 {v(base+2+4*m,2)}, v{VTD} offset:{m*32+16*128}")
    def down(base, goff):
        for m in range(4): a.mfma(YO+4*m, base+4*m, GA, "0")
        a("s_nop 7")
        for m in range(4): a(f"buffer_store_dwordx4 {v(YO+4*m,4)}, v{VY}, {WS}, s87 offen offset:{goff*1024+m*64} sc1")
        a("s_nop 1")
    srds()
    a(f"v_lshrrev_b32 v3, 2, v{L}\nv_mul_u32_u24 v3, 3456, v3\nv_and_b32 v4, 3, v{L}\nv_lshl_add_u32 v{VG}, v4, 4, v3")
    a(f"v_lshrrev_b32 v3, 3, v{L}\nv_mul_u32_u24 v3, 1280, v3\nv_and_b32 v4, 7, v{L}\nv_lshl_add_u32 v{VD}, v4, 4, v3")
    a(f"s_and_b32 s7, s{S_W}, 1\ns_mul_i32 s{S_G}, s7, {320*3456}\ns_lshl_b32 s6, s{S_E}, 6\ns_add_u32 s{S_G}, s{S_G}, s6")
    a(f"s_lshl_b32 s{S_WIN}, s{S_W}, 13\ns_add_u32 s{S_WIN}, s{S_WIN}, {LDS_SP}")
    a(f"s_mul_i32 s{S_D}, s{S_E}, 40960\ns_lshl_b32 s6, s{S_W}, 7\ns_add_u32 s{S_D}, s{S_D}, s6")
    dma_g(4)
    idx_addr(a); a(f"buffer_load_dword v{VIDX}, v3, {WS}, s72 offen sc1")
    a(f"v_lshrrev_b32 v7, 4, v{L}\nv_and_b32 v2, 15, v{L}\nv_lshrrev_b32 v3, 2, v2\nv_lshl_add_u32 v8, v7, 3, v3\nv_lshlrev_b32 v8, 6, v8\nv_and_b32 v4, 3, v2\nv_lshl_add_u32 v8, v4, 3, v8\nv_add_u32 v{VT}, s{S_WIN}, v8")
    a(f"v_lshl_add_u32 v8, v7, 2, v3\nv_lshlrev_b32 v8, 7, v8\nv_lshl_add_u32 v8, v4, 3, v8\ns_add_u32 s6, s{S_WIN}, 4096\nv_add_u32 v{VTD}, s6, v8")
    a(f"v_mul_u32_u24 v3, 2560, v2\nv_lshl_add_u32 v3, v7, 4, v3\nv_mov_b32 v4, {hex(WS_SIZE)}\nv_cmp_gt_u32 vcc, 8, v2")
    a(f"s_mul_i32 s87, s{S_E}, 20480\ns_lshl_b32 s7, s{S_W}, 8\ns_add_u32 s87, s87, s7\ns_add_u32 s87, s87, {WS_YP}\nv_cndmask_b32 v{VY}, v4, v3, vcc")
    bar()
    rd_g(0, 4)
    idx_poll(a, "m", "")
    a("s_waitcnt lgkmcnt(0)"); dma_g(4)
    a(f"v_and_b32 v4, 0x7ff, v{VIDX}\nv_sub_u32 v4, 0x7ff, v4\nv_mul_u32_u24 v4, 1280, v4\nv_lshrrev_b32 v7, 4, v{L}\nv_lshl_add_u32 v4, v7, 4, v4")
    a(f"s_and_b32 s7, s{S_W}, 1\ns_mul_i32 s6, s7, 640\ns_add_u32 s6, s6, {WS_XNR}\nv_add_u32 v4, s6, v4\nv_mov_b32 v5, {hex(WS_SIZE)}\nv_and_b32 v2, 8, v{L}\nv_cmp_eq_u32 vcc, 0, v2\ns_nop 1\nv_cndmask_b32 v{VXS}, v5, v4, vcc")
    xs(0, 5)
    bar("vmcnt(5) lgkmcnt(0)")
    rd_g(4, 4); a("s_waitcnt lgkmcnt(0)"); dma_g(2); dma_d(); xs(5, 5)
    bar()
    rd_g(8, 2); rd_d(WDR); a("s_waitcnt lgkmcnt(0)"); dma_d()
    for k in range(10):
        for ft in range(2): a.mfma(GA+4*ft, FRG+(k*2+ft)*4, XS+4*k, "0" if k == 0 else None)
    a(f"v_add_u32 v10, s{S_WIN}, v{VL16}\ns_nop 7\nds_write_b128 v10, {v(GA,4)}\nds_write_b128 v10, {v(GA+4,4)} offset:1024")
    bar()
    a(f"v_add_u32 v10, {LDS_SP}, v{VL16}")
    for w in range(4):
        for ft in range(2): a(f"ds_read_b128 {v(PR+(w*2+ft)*4,4)}, v10 offset:{w*8192+ft*1024}")
    a("s_waitcnt lgkmcnt(0)")
    rd_d(WD2)
    a(f"s_waitcnt lgkmcnt(0)\ns_cmp_ge_u32 s{S_W}, 2\ns_cbranch_scc1 L_moe4b")
    dma_d()
    a.label("L_moe4b")
    a("s_mov_b32 s6, 0xbfb8aa3b")
    for i in range(8):
        g0, u0 = PR + i, PR + 16 + i
        a(f"v_add_f32 v{g0}, v{g0}, v{g0+8}\nv_add_f32 v{u0}, v{u0}, v{u0+8}")
        bf16_round(a, g0); bf16_round(a, u0)
        a(f"v_mul_f32 v2, s6, v{g0}\nv_exp_f32 v2, v2\ns_nop 0\nv_add_f32 v2, 1.0, v2\nv_rcp_f32 v2, v2\ns_nop 0\nv_mul_f32 v{g0}, v{g0}, v2")
        bf16_round(a, g0)
        a(f"v_mul_f32 v{g0}, v{g0}, v{u0}")
    for i in range(4): a(f"v_cvt_pk_bf16_f32 v{GA+i}, v{PR+2*i}, v{PR+1+2*i}")
    a("s_nop 1")
    down(WDR, 0)
    bar("vmcnt(4) lgkmcnt(0)")
    down(WD2, 1)
    a(f"s_cmp_ge_u32 s{S_W}, 2\ns_cbranch_scc1 L_moe5b")
    rd_d(WDR); a("s_waitcnt lgkmcnt(0)"); down(WDR, 2)
    a.label("L_moe5b")
    bar("vmcnt(4) lgkmcnt(0)", lambda: (a("s_waitcnt vmcnt(0)"), set_flag(a, "moe")))
    a("s_branch L_idle")

def moe_finish(a):
    YS = [16+4*i for i in range(8)] + [56+4*i for i in range(10)]
    Y, XR = YS[0], 54
    a(f"s_lshr_b32 s6, s{S_P}, 1\ns_lshl_b32 s7, s{S_W}, 4\ns_add_u32 s6, s6, s7\ns_cmp_lg_u32 s6, 2\ns_cbranch_scc1 L_yd")
    a(f"s_and_b32 s6, s{S_P}, 1\ns_xor_b32 s6, s6, 1\ns_lshl_b32 s6, s6, 2\ns_lshr_b32 s87, s{S_H}, 3\ns_add_u32 s87, s87, s6\ns_and_b32 s88, s{S_H}, 7")
    a(f"s_mov_b32 m0, s87\ns_nop 3\nv_readlane_b32 s85, v{VIDX}, m0\ns_nop 3\ns_and_b32 s86, s85, 0x7ff\ns_sub_u32 s86, 0x7ff, s86")
    a(f"v_min_u32 v3, 53, v{L}\nv_lshlrev_b32 v3, 5, v3\ns_mov_b32 s72, {hex(WS_MOEF)}")
    poll(a, f"buffer_load_dwordx4 {v(Y,4)}, v3, {WS}, s72 offen sc1",
         "\n".join([f"v_and_b32 v{Y}, v{Y}, v{Y+r}" for r in (1, 2, 3)]) + f"\nv_cmp_ne_u32 vcc, 1, v{Y}", sleep=16)
    a(f"v_mul_u32_u24 v2, 13, v{L}\nv_lshrrev_b32 v2, 8, v2\nv_mul_u32_u24 v3, 20, v2\nv_sub_u32 v4, v{L}, v3")
    a(f"s_mov_b32 s6, {18*20480}\nv_mul_lo_u32 v2, v2, s6\nv_lshl_add_u32 v2, v4, 4, v2")
    a(f"v_cmp_lt_u32 vcc, 59, v{L}\nv_mov_b32 v3, {hex(WS_SIZE)}\ns_nop 0\nv_cndmask_b32 v2, v2, v3, vcc")
    a(f"s_mul_i32 s6, s87, 2560\ns_mul_i32 s7, s88, 320\ns_add_u32 s6, s6, s7\ns_add_u32 s6, s6, {WS_YP}")
    for e in range(18):
        a(f"buffer_load_dwordx4 {v(YS[e],4)}, v2, {WS}, s6 offen sc1\ns_add_u32 s6, s6, 20480")
    a(f"s_lshr_b32 s6, s86, 4\ns_mul_i32 s6, s6, 20480\ns_and_b32 s7, s86, 15\ns_lshl_b32 s7, s7, 4\ns_add_u32 s6, s6, s7\ns_mul_i32 s7, s88, 2560\ns_add_u32 s6, s6, s7")
    a(f"v_lshrrev_b32 v5, 1, v4\nv_lshlrev_b32 v5, 8, v5\nv_and_b32 v6, 1, v4\nv_lshl_add_u32 v5, v6, 3, v5\nbuffer_load_dwordx2 {v(XR,2)}, v5, {WS}, s6 offen sc1")
    a("s_bfe_u32 s6, s85, 0x10000b\ns_xor_b32 s7, s6, 0xffff\ns_bitcmp1_b32 s6, 15\ns_bitset0_b32 s6, 15\ns_cselect_b32 s6, s6, s7\ns_lshl_b32 s6, s6, 16\nv_mov_b32 v5, s6")
    a("v_mul_f32 v5, 0xbfb8aa3b, v5\nv_exp_f32 v5, v5\ns_nop 0\nv_add_f32 v5, 1.0, v5\nv_rcp_f32 v5, v5\ns_nop 0")
    bf16_round(a, 5)
    a(f"v_lshlrev_b32 v6, 2, v{L}\ns_waitcnt vmcnt(0)")
    for e in range(1, 18):
        a(f"v_pk_add_f32 {v(Y,2)}, {v(Y,2)}, {v(YS[e],2)}\nv_pk_add_f32 {v(Y+2,2)}, {v(Y+2,2)}, {v(YS[e]+2,2)}")
    for k in range(2):
        for r in range(4): a(f"ds_bpermute_b32 v{Y+4+4*k+r}, v6, v{Y+r} offset:{80*(k+1)}")
    a("s_waitcnt lgkmcnt(0)")
    for r in range(4):
        y = Y + r
        a(f"v_add_f32 v{y}, v{y}, v{y+4}\nv_add_f32 v{y}, v{y}, v{y+8}")
        bf16_round(a, y)
        a(f"v_mul_f32 v{y}, v{y}, v5")
        bf16_round(a, y)
        xn = XR + (r >> 1)
        a(f"v_and_b32 v7, 0xffff0000, v{xn}" if r & 1 else f"v_lshlrev_b32 v7, 16, v{xn}")
        a(f"v_add_f32 v{y}, v{y}, v7")
    a(f"v_cvt_pk_bf16_f32 v{Y+4}, v{Y}, v{Y+1}\nv_cvt_pk_bf16_f32 v{Y+5}, v{Y+2}, v{Y+3}")
    a(f"v_lshlrev_b32 v2, 3, v{L}\nv_cmp_lt_u32 vcc, 19, v{L}\ns_mul_i32 s6, s87, 1280\ns_mul_i32 s7, s88, 160\nv_cndmask_b32 v2, v2, v3, vcc\ns_add_u32 s6, s6, s7\ns_add_u32 s6, s6, {WS_BSEL}")
    a(f"buffer_store_dwordx2 {v(Y+4,2)}, v2, {WS}, s6 offen sc1")
    a("s_call_b64 s[80:81], L_oprep\ns_waitcnt vmcnt(0)")
    set_flag(a, "b")
    a.label("L_yd")

WR, OA, CR, RT = 96, 56, 16, 32
S_OW, S_OB, S_CX, S_OL = 69, 68, 66, 61
VWO4 = 52
LDS_P, LDS_F = 98304, 65536
def wo_base(a, d, nh):
    a(f"s_lshr_b32 s{d}, s{S_H}, 3\ns_lshl_b32 s{d}, s{d}, 2\ns_add_u32 s{d}, s{d}, s76\ns_mul_i32 s{d}, s{d}, {8*40960}\ns_and_b32 s7, s{S_H}, 3\ns_mul_i32 s7, s7, 10240\ns_add_u32 s{d}, s{d}, s7\ns_add_u32 s{d}, s{d}, {WS_WOF + nh*5120}")

XNA = 48
S_TOK = 64
VWM = 44
def wo_voffs(a, r0, r4=None):
    for m in range(4): a(f"s_add_u32 s6, s76, {m}\ns_and_b32 s6, s6, 3\ns_lshl_b32 s6, s6, 10\nv_add_u32 v{r0+m}, s6, v{VL16}")
    a(f"v_add_u32 v{r0+4 if r4 is None else r4}, 4096, v{VL16}")
def wm(m): return VWM + m if m < 4 else VWO4
def wo_load(a, i):
    a(f"s_add_u32 s75, s{S_OW}, {i*40960}")
    for m in range(5): a(f"buffer_load_dwordx4 {v(WR+4*(5*i+m),4)}, v{wm(m)}, {WS}, s75 offen sc1")

def out_setup(a, nh):
    if nh == 0:
        idx_addr(a); a(f"buffer_load_dword v{VIDX}, v3, {WS}, s72 offen sc1")
    wo_voffs(a, VWM, VWO4)
    wo_base(a, S_OW, nh)
    a(f"s_and_b32 s6, s{S_H}, 4\ns_lshr_b32 s7, s{S_H}, 3\ns_add_u32 s6, s6, s7\ns_lshl_b32 s7, s{S_P}, 3\ns_add_u32 s{S_OB}, s6, s7\ns_sub_u32 s7, 120, s7\ns_add_u32 s{S_OL}, s6, s7")

VCA, VT, VPR = 4, 5, 6
S_RED = 71
S_PB, S_XS = 67, 96
def out_consts(a):
    a(f"s_lshr_b32 s6, s{S_W}, 2\ns_lshl_b32 s6, s6, 1\ns_sub_u32 s{S_RED}, s76, s6\ns_and_b32 s{S_RED}, s{S_RED}, 3")
    a(f"s_lshr_b32 s6, s{S_H}, 3\ns_lshl_b32 s6, s6, 15\ns_lshl_b32 s99, s{S_W}, 12\ns_add_u32 s{S_CX}, s6, s99\ns_add_u32 s{S_CX}, s{S_CX}, {WS_CTX}")
    a(f"s_lshl_b32 s6, s76, 13\nv_add_u32 v{VCA}, s6, v{VL16}\nv_add_u32 v7, 65536, v{VCA}")
    a(f"s_lshr_b32 s6, s{S_W}, 2\ns_mul_i32 s{S_PB}, s6, 15360\ns_add_u32 s{S_PB}, s{S_PB}, {LDS_P}\nv_add_u32 v{VPR}, s{S_PB}, v{VWM}")
    for k in range(3):
        xslot(a, k, S_XS+k)
        a(f"s_mul_i32 s{S_XS+k}, s{S_XS+k}, 20480\ns_lshr_b32 s6, s{S_W}, 2\ns_mul_i32 s6, s6, 5120\ns_add_u32 s{S_XS+k}, s{S_XS+k}, s6\ns_add_u32 s{S_XS+k}, s{S_XS+k}, {WS_XP}")

def ctx_dma(r, extra=0):
    own, d = (S_OL if r in (3, 4, 5, 7) else S_OB), (1 + r % 3 if r < 6 else 0)
    o = [f"s_add_u32 s65, s{own}, {d}\ns_and_b32 s65, s65, 3\ns_andn2_b32 s7, s{own}, 3\ns_add_u32 s65, s65, s7\ns_lshl_b32 s65, s65, 17\ns_add_u32 s65, s65, s{S_CX}\ns_add_u32 m0, s99, {(r%3)*32768+extra}\ns_add_u32 s65, s65, {extra}"]
    return o + [f"buffer_load_dwordx4 v{VL16}, {WS}, s65 offen offset:{i*1024} sc1 lds" for i in range(4)]

def phase_out(a):
    def rdc(r, i):
        reg, off = (VCA, (r%3)*32768) if r % 3 < 2 else (7, 0)
        a(f"ds_read_b128 {v(CR+4*(i&3),4)}, v{reg} offset:{off+i*1024}"); a.lg.issue(("C", i & 3))
    def xflag(vals):
        a(f"v_mov_b32 v3, {hex(WS_SIZE)}")
        for slot, val in enumerate(vals):
            if val:
                xf_addr(a, slot, 6)
                a(f"v_writelane_b32 v3, s6, {slot}\nv_writelane_b32 v2, {val}, {slot}")
        a(f"buffer_store_dword v2, v3, {WS}, 0 offen sc1")
    def xlook_addr():
        a(f"v_bfe_u32 v2, v{L}, 3, 2\nv_min_u32 v2, 2, v2\nv_and_b32 v3, 7, v{L}\nv_lshlrev_b32 v3, 2, v3\nv_lshl_add_u32 v3, v2, 7, v3")
    a("s_barrier")
    a.lg.drain()
    for i in range(4): rdc(0, i)
    IT = [(WR, WR+4), (WR+8, WR+12)]
    XI, LP, OUTR = WR+16, WR+64, WR+128
    def emit(x):
        if "o_now" in ABL and not isinstance(x, str) and x[0] == "W": return
        if "o_noadd" in ABL and isinstance(x, str) and x.startswith("v_add_f32"): return
        if "o_nodma" in ABL and isinstance(x, str) and x.endswith("lds"): return
        if "o_nost" in ABL and isinstance(x, str) and "buffer_store" in x: return
        if isinstance(x, str): a(x)
        elif x[0] == "wait": a.wait_lg(x[1])
        else:
            a(x[1]); a.lg.issue(x[0])
    def xin_addr():
        tile_id(a, 72)
        a(f"s_lshl_b32 s72, s72, 2\ns_lshr_b32 s7, s{S_H}, 3\ns_add_u32 s72, s72, s7\ns_mul_i32 s75, s72, 61440\ns_add_u32 s75, s75, {WS_XP}\ns_mul_i32 s72, s72, 384\ns_add_u32 s72, s72, {WS_XF}")
    def xin_load(slots):
        sk = a.newlabel("xi")
        for n in range(2):
            if n == 1: a(f"s_cmp_ge_u32 s{S_W}, 2\ns_cbranch_scc1 {sk}")
            for s_ in slots:
                a(f"s_add_u32 s6, s75, {s_*20480}")
                for hf in range(2): a(f"buffer_load_dwordx4 {v(XI+24*n+8*s_+4*hf,4)}, v{8+n}, {WS}, s6 offen offset:{hf*256} sc1")
        a.label(sk)
    for r in range(8):
        if "stampout" in ABL: a.stamp(44 + r)
        A = OA + 20*(r & 1); Ap = OA + 20*((r-1) & 1)
        po = ((r-1) & 1)*30720
        red = 1 <= r <= 6
        ib = 3 if r == 6 else 5
        for i in range(8):
            if r == 0 and i >= 4: a(f"s_waitcnt vmcnt({(20, 14, 9, 4)[i-4]})")
            a.wait_lg(("C", i & 3))
            fill = [[] for _ in range(5)]
            post = []
            if i == 0 and red:
                fill[1].append(f"s_sub_u32 s6, s{S_RED}, {r}\ns_and_b32 s6, s6, 3\ns_mul_i32 s7, s6, 5120")
                fill[2].append(f"s_add_u32 s7, s7, s{S_PB}\ns_cmp_eq_u32 s6, 3\ns_cselect_b32 s7, {159744-4096-po}, s7")
                fill[3].append(f"v_add_u32 v12, s7, v{VWO4}")
                fill[4].append(f"v_add_u32 v{VT}, s{S_PB}, v{wm(1)}")
            if red:
                pos = ((1, 0), (1, 3), (2, 1), (2, 4)) if r == 6 else ((1, 0), (2, 0), (3, 0), (4, 0))
                for m in range(1, 5):
                    if pos[m-1][0] == i:
                        g = pos[m-1][1]
                        if m < 4:
                            fill[g].append(("W", f"ds_write_b128 v{VT}, {v(Ap+4*m,4)} offset:{po+(m-1)*5120}"))
                            fill[g].append(f"v_add_u32 v{VT}, s{S_PB}, v{wm(m+1)}")
                        else: fill[g].append(("W", f"ds_write_b128 v12, {v(Ap+16,4)} offset:{po}"))
            if i == 0 and r == 7:
                fill[3].append(f"s_mul_i32 s73, s{S_W}, 5120\ns_add_u32 s73, s73, {LDS_F}")
                fill[4].append(f"v_add_u32 v{VT}, s73, v{wm(0)}")
            if 1 <= i <= 5 and r == 7:
                fill[0].append(("W", f"ds_write_b128 v{VT}, {v(Ap+4*(i-1),4)}"))
                if i < 5: fill[0].append(f"v_add_u32 v{VT}, s73, v{wm(i)}")
            st_ = lambda reg, vo: (f"buffer_store_dwordx4 {v(reg,4)}, v{vo}, {WS}, s6 offen sc1" if "noxst" not in ABL else f"buffer_load_dword v{VDUM}, v{VWM}, {WS}, 0 offen")
            if i == ib + 1 and red:
                fill[1].append(("wait", ("P", 2)))
                for k in range(3):
                    for q in range(4): fill[2+k].append(f"v_add_f32 v{Ap+q}, v{Ap+q}, v{RT+4*k+q}")
                for k in range(3): post.append((("P", k), f"ds_read_b128 {v(RT+4*k,4)}, v{VT} offset:{po+k*5120}"))
            if i == ib + 2 and red:
                fill[0].append(f"s_add_u32 s6, s{S_XS+(r-1)%3}, {((r-1)//3)*10240}")
                fill[1].append(("wait", ("P", 2)))
                for k in range(3):
                    for q in range(4): fill[2+k].append(f"v_add_f32 v{Ap+16+q}, v{Ap+16+q}, v{RT+4*k+q}")
                sk = a.newlabel("nost")
                post.append(st_(Ap, VWM))
                post.append(f"s_cmp_lg_u32 s{S_RED}, {(r-1)&3}\ns_cbranch_scc1 {sk}\n" + st_(Ap+16, VWO4) + f"\n{sk}:\ns_nop 0")
            if (i == 6 and 0 < r < 5) or (i == 3 and r == 0):
                d = ctx_dma(r+3 if i == 6 else 2)
                fill[0].append(d[0]); fill[0].append(d[1]); fill[1].insert(0, d[2])
            if i == 3 and r == 0:
                fill[2].append(d[3]); fill[3].append(d[4])
            if i == 7 and 0 < r < 5:
                fill[0].insert(0, d[3]); fill[1].insert(0, d[4])
            for m in range(5):
                a.mfma(A+4*m, WR+4*(5*i+m), CR+4*(i&3), "0" if i == 0 else None)
                for x in fill[m]: emit(x)
            for x in post: emit(x)
            if i < 4: rdc(r, i+4)
            elif r < 7 and i > 5: rdc(r+1, i-4)
            if r == 0 and i < 3:
                sk = a.newlabel("nowl")
                a(f"s_cmp_lt_u32 s{S_W}, 4\ns_cbranch_scc1 {sk}")
                wo_load(a, 5+i)
                a.label(sk)
            if i == 2 and r == 7:
                a("s_waitcnt vmcnt(0)")
                xflag((0, 2, 2))
            if i == 2 and r == 1:
                a(f"s_cmp_ge_u32 s{S_W}, 4\ns_cbranch_scc1 L_o1a")
                ctxf_addr(a, S_OL); a(f"buffer_load_dword v50, v3, {WS}, s72 offen sc1")
                a.label("L_o1a")
            if i == ib and i != 5:
                a("s_waitcnt vmcnt(1)")
                xflag((2, 1, 1))
                a("s_waitcnt lgkmcnt(0)\ns_barrier"); a.lg.drain()
            if i == 5:
                if r == 0:
                    a(f"s_cmp_ge_u32 s{S_W}, 4\ns_cbranch_scc1 L_o0\ns_waitcnt vmcnt(4)")
                    a.label("L_o0")
                elif r == 1:
                    a(f"s_waitcnt vmcnt(0)\ns_cmp_ge_u32 s{S_W}, 4\ns_cbranch_scc1 L_o1\nv_cmp_ne_u32 vcc, 1, v50\ns_cbranch_vccz L_o1")
                    poll(a, f"buffer_load_dword v2, v3, {WS}, s72 offen sc1", "v_cmp_ne_u32 vcc, 1, v2", sleep=1)
                    a.label("L_o1")
                elif r < 6: a(f"s_waitcnt vmcnt({(4, 4, 5, 5, 5, 5)[r]})")
                if r < 7:
                    a("s_waitcnt lgkmcnt(0)\ns_barrier"); a.lg.drain()
            if i == 3 and r == 7:
                a(f"s_cmp_eq_u32 s{S_TOK}, 0\ns_cbranch_scc1 L_nb")
                a(f"v_bfe_u32 v2, v{L}, 1, 3\nv_and_b32 v3, 1, v{L}\nv_lshl_add_u32 v3, v2, 3, v3\nv_lshlrev_b32 v3, 7, v3\ns_and_b32 s6, s{S_H}, 3\ns_lshl_b32 s6, s6, 8\ns_add_u32 s6, s6, {WS_BF+128*128}")
                poll(a, f"buffer_load_dword v2, v3, {WS}, s6 offen sc1", "v_cmp_ne_u32 vcc, 1, v2")
                a.label("L_nb")
                sk = a.newlabel("itskip")
                for n in range(2):
                    if n == 1: a(f"s_cmp_ge_u32 s{S_W}, 2\ns_cbranch_scc1 {sk}")
                    a(f"buffer_load_dwordx4 {v(IT[n][0],4)}, v{53+n}, {R(SRD_A)}, s70 offen\nbuffer_load_dwordx4 {v(IT[n][1],4)}, v{XNA+n}, {WS}, 0 offen sc1")
                a.label(sk)
            if i == 5 and r == 7:
                xin_addr(); xlook_addr()
                a(f"s_bitcmp1_b32 13, s{S_W}\ns_cselect_b32 s77, 1, 2\nbuffer_load_dword v50, v3, {WS}, s72 offen sc1")
            if i == ib and red:
                for k in range(3):
                    a(f"ds_read_b128 {v(RT+4*k,4)}, v{VPR} offset:{po+k*5120}"); a.lg.issue(("P", k))
            if i == 5 and r < 7:
                rdc(r+1, 0); rdc(r+1, 1)
            if i == 5 and r == 1:
                for x in ctx_dma(3): a(x)
    a.stamp(16)
    a("s_nop 7")
    for m in range(5): a(f"v_add_u32 v{VT}, s73, v{wm(m)}\nds_write_b128 v{VT}, {v(OA+20+4*m,4)} offset:40960")
    a("s_waitcnt vmcnt(0)\nv_cmp_gt_u32 s[78:79], s77, v50\ns_nop 3\ns_cmp_lg_u64 s[78:79], 0\ns_cbranch_scc1 L_x2a")
    xin_load((0, 1, 2))
    a.label("L_x2a")
    a("s_waitcnt lgkmcnt(0)\ns_barrier")
    for n in range(2):
        for k in range(4):
            for hf in range(2): a(f"ds_read_b128 {v(LP+32*n+8*k+4*hf,4)}, v{(10,55)[n]} offset:{k*5120+hf*256}")
    a("s_cmp_eq_u64 s[78:79], 0\ns_cbranch_scc1 L_x2b")
    poll(a, f"buffer_load_dword v2, v3, {WS}, s72 offen sc1", "v_cmp_gt_u32 vcc, s77, v2", sleep=1)
    xin_load((0, 1, 2))
    a.label("L_x2b")
    a.srd(SRD_B, P_OUT, 2048*640*2)
    a.stamp(17)
    for n in range(2):
        if n == 1: a(f"s_cmp_ge_u32 s{S_W}, 2\ns_cbranch_scc1 L_end")
        S = LP + 32*n
        a(f"s_waitcnt lgkmcnt({8 if n == 0 else 0})")
        for k in range(1, 4):
            for q in range(0, 8, 2): a(f"v_pk_add_f32 {v(S+q,2)}, {v(S+q,2)}, {v(S+8*k+q,2)}")
        a("s_waitcnt vmcnt(0)" if n == 0 else "s_nop 0")
        for k in range(3):
            for q in range(0, 8, 2): a(f"v_pk_add_f32 {v(S+q,2)}, {v(S+q,2)}, {v(XI+24*n+8*k+q,2)}")
        for q in range(4):
            x0, x1 = S+2*q, S+2*q+1
            a(f"v_cvt_pk_bf16_f32 v2, v{x0}, v{x1}\nv_lshlrev_b32 v{x0}, 16, v2\nv_and_b32 v{x1}, 0xffff0000, v2")
            a(f"v_lshlrev_b32 v2, 16, v{IT[n][0]+q}\nv_and_b32 v3, 0xffff0000, v{IT[n][0]+q}\nv_pk_add_f32 {v(x0,2)}, {v(x0,2)}, v[2:3]")
            a(f"v_cvt_pk_bf16_f32 v2, v{x0}, v{x1}\nv_lshlrev_b32 v{x0}, 16, v2\nv_and_b32 v{x1}, 0xffff0000, v2")
            a(f"v_lshlrev_b32 v2, 16, v{IT[n][1]+q}\nv_and_b32 v3, 0xffff0000, v{IT[n][1]+q}\nv_pk_add_f32 {v(x0,2)}, {v(x0,2)}, v[2:3]")
            a(f"v_cvt_pk_bf16_f32 v{OUTR+4*n+q}, v{x0}, v{x1}")
        a(f"buffer_store_dwordx4 {v(OUTR+4*n,4)}, v{53+n}, {R(SRD_B)}, s70 offen")

def out_items(a):
    a.srd(SRD_A, P_X, 2048*640*2)
    a(f"s_and_b32 s75, s{S_H}, 3\ns_mul_i32 s70, s75, 320\ns_add_u32 s73, s70, {WS_BSEL}")
    a(f"s_mul_i32 s72, s75, 5120")
    a(f"v_lshrrev_b32 v2, 4, v{L}\nv_and_b32 v3, 15, v{L}\nv_mul_u32_u24 v54, 1280, v3\nv_lshl_add_u32 v54, v2, 4, v54\nv_lshlrev_b32 v3, 4, v3\nv_lshl_add_u32 v9, v2, 9, v3")
    a(f"s_lshr_b32 s100, s{S_W}, 2\ns_cselect_b32 s6, s{S_OL}, s{S_OB}\ns_mul_i32 s6, s6, 20480\ns_lshl_b32 s7, s76, 6\ns_add_u32 s7, s7, s6\nv_add_u32 v53, s7, v54")
    a(f"s_lshl_b32 s7, s76, 10\ns_add_u32 s7, s7, s6\ns_add_u32 s7, s7, s72\nv_add_u32 v{XNA}, s7, v{VL16}")
    a(f"s_mul_i32 s6, s100, 10240\ns_lshl_b32 s7, s76, 11\ns_add_u32 s6, s6, s7\nv_add_u32 v8, s6, v9")
    a(f"s_mul_i32 s6, s100, 30720\ns_add_u32 s6, s6, {LDS_F}\nv_add_u32 v10, s6, v8\ns_lshl_b32 s7, s76, 2\nv_add_u32 v2, s7, v2\nv_cmp_lt_u32 vcc, 9, v2\nv_add_u32 v3, 15360, v10\ns_nop 0\nv_cndmask_b32 v10, v10, v3, vcc")
    a(f"s_and_b32 s100, s{S_W}, 1\ns_cselect_b32 s6, s{S_OL}, s{S_OB}\ns_mul_i32 s6, s6, 20480\ns_add_u32 s7, s6, 256\nv_add_u32 v54, s7, v54\ns_add_u32 s7, s6, s72\ns_add_u32 s7, s7, 4096\nv_add_u32 v{XNA+1}, s7, v{VL16}")
    a(f"s_mul_i32 s6, s100, 10240\ns_add_u32 s6, s6, 8192\nv_add_u32 v9, s6, v9\ns_mul_i32 s6, s100, 30720\ns_add_u32 s6, s6, {LDS_F+15360}\nv_add_u32 v55, s6, v9")
    sk = a.newlabel("notok")
    a(f"s_mov_b32 s{S_TOK}, 0")
    a(f"v_and_b32 v2, 0x7ff, v{VIDX}\nv_sub_u32 v2, 0x7ff, v2\nv_lshrrev_b32 v3, 4, v2\nv_cmp_eq_u32 vcc, s{S_OB}, v3\nv_cmp_eq_u32 s[74:75], s{S_OL}, v3\ns_nop 3\ns_or_b64 vcc, vcc, s[74:75]\ns_cbranch_scc0 {sk}")
    for tk in range(8): a(f"v_readlane_b32 s{(84,85,86,87,88,90,91,101)[tk]}, v2, {tk}")
    for n in range(2):
        a(f"s_lshl_b32 s7, s76, 6\ns_lshr_b32 s100, s{S_W}, 2" if n == 0 else f"s_movk_i32 s7, 256\ns_and_b32 s100, s{S_W}, 1")
        a(f"s_cselect_b32 s6, s{S_OL}, s{S_OB}\ns_lshl_b32 s6, s6, 4\nv_and_b32 v2, 15, v{L}\nv_add_u32 v2, s6, v2")
        a(f"s_add_u32 s7, s7, s73\nv_and_b32 v3, 48, v{L}\nv_add_u32 v3, s7, v3")
        for tk in range(8):
            a(f"v_cmp_eq_u32 vcc, s{(84,85,86,87,88,90,91,101)[tk]}, v2\ns_nop 1\nv_cndmask_b32 v{XNA+n}, v{XNA+n}, v3, vcc")
            if tk < 7: a(f"v_add_u32 v3, 1280, v3")
    a(f"s_mov_b32 s{S_TOK}, 1")
    a.label(sk)

def gen(a):
    phase_start(a)
    phase_kv(a)
    phase_q(a)
    phase_attn(a)
    phase_out(a)
    a.label("L_end")
    a.stamp(18)
    if a.prof: a("s_waitcnt vmcnt(0)")
    if a.prof and os.environ.get("DBGWG"):
        a(f"s_mov_b64 exec, -1\ns_cmp_lg_u32 s2, {os.environ['DBGWG']}\ns_cbranch_scc1 L_nodbg\ns_cmp_lg_u32 s{S_W}, 0\ns_cbranch_scc1 L_nodbg")
        a.srd(SRD_E, P_DBG, 64)
        a(f"v_readlane_b32 s6, v15, 0\ns_nop 3\nv_subrev_u32 v2, s6, v15\nv_subrev_u32 v3, 3, v{L}\nv_lshlrev_b32 v3, 2, v3\nv_cmp_gt_u32 vcc, 4, v{L}\nv_mov_b32 v4, 0x1000\ns_nop 0\nv_cndmask_b32 v3, v3, v4, vcc")
        a(f"buffer_store_dword v2, v3, {R(SRD_E)}, 0 offen")
        a.label("L_nodbg")
    a.stamp_flush(SRD_WS, WS_PROF)
    a.label("L_exit")
    a("s_endpgm")

HEADER = open(os.path.join(os.path.dirname(os.path.abspath(__file__)), "..", NAME + ".s.ref")).read().split("; Override launch")[0]
if __name__ == "__main__":
    name = NAME + "_kernel"
    out = HEADER + "; @launch grid=(256,1,1) block=(512,1,1) lds=163840\n" + '.amdgcn_target "amdgcn-amd-amdhsa--gfx950"\n'
    a = Asm(); a.prof = bool(os.environ.get("PROF"))
    a.o.append(kernel_header(name).rstrip())
    gen(a)
    out += a.text() + '.section .rodata,"a"\n.p2align 6\n' + kernel_desc(name)
    open(sys.argv[1] if len(sys.argv) > 1 else "k.s", "w").write(out)
```

```python
import sys, os
from asmlib import *

NAME = "parallel_sum__compressed_kv_cla__moe_arch_mod__prompt"
ABL = set(os.environ.get("ABL", "").split(","))
WS_XN = 0x0
WS_R = 0x280000
WS_YP = 0x290000
WS_IDX = 0x3A0000
WS_KVF = 0x3B0000
WS_CTXF = 0x3C0000
WS_MOEF = 0x3A6000
WS_BSEL = 0x3A9000
WS_BF = 0x3B8000
WS_WOF = 0x400000
WS_XNR = 0xC00000
WS_PROF = 0x900000
WS_KV = 0x1000000
WS_CTX = 0x3000000
WS_XF = 0xF00000
WS_XP = 0x4000000
WS_SIZE = 0x5000000
S_W, S_H, S_P = 3, 4, 5
SRD_WS, SRD_A, SRD_B, SRD_C, SRD_D, SRD_E = 8, 12, 16, 20, 24, 28
P_X, P_CKV, P_WQ, P_WUK, P_WUV, P_WO, P_BX, P_WR, P_WG, P_WU, P_WD, P_OUT, P_DBG, P_WS = range(32, 60, 2)
S_B, S_E = 60, 61
WS = f"s[{SRD_WS}:{SRD_WS+3}]"
def R(d): return f"s[{d}:{d+3}]"
L, VL16 = 1, 13
DESIG = 31
SPIN = 1 << 18
MOEJ = int(os.environ.get("MOEJ", "4"))
NT = "" if "nont" in ABL else " nt"
ABL.add("latewait")
TSCHED = os.environ.get("TSCHED", ";2;4;6").split(";")
TK, TV0, TV1, TV2 = [[int(y) for y in x.split(",") if y] for x in TSCHED]
LDS_SP = 131072
LDS_LN = LDS_SP
LDS_WOT = LDS_SP + 10240

def bf16_round(a, r):
    a(f"v_cvt_pk_bf16_f32 v{r}, v{r}, v{r}\nv_lshlrev_b32 v{r}, 16, v{r}")

def poll(a, load, cmp_notready, sleep=2):
    lp = a.newlabel("poll"); dn = a.newlabel("polldone")
    a(f"s_mov_b32 s79, {SPIN}")
    a.label(lp)
    a(load); a("s_waitcnt vmcnt(0)"); a(cmp_notready)
    a(f"s_cbranch_vccz {dn}\ns_sleep {sleep}\ns_sub_u32 s79, s79, 1\ns_cmp_lg_u32 s79, 0\ns_cbranch_scc1 {lp}")
    a.label(dn)

VC, VW, RC, RW, QRW = 40, 44, 48, 50, 54
CF, WF, ACC = 64, 96, 128
S_CO, S_WO_, S_MC, S_ST, S_ROW, S_KVD, S_INCA, S_INCB, S_XO, S_QO = 62, 63, 64, 65, 66, 67, 68, 69, 70, 71
S_XB = 84
XEARLY = [16, 20, 24, 28, 32, 36]
VX1 = 12
LX, LW, LV = 16, 26, 64
VDUM = 11
ITR = ((8, 9), (10, 55))

def wdma(a, srd, soff):
    return [f"buffer_load_dwordx4 v{VW+i}, {R(srd)}, s{soff} offen offset:{i*1024} lds" for i in range(4)]

def kv_dma_ops():
    g = []
    g.append([f"s_mov_b32 m0, s{S_MC}", f"s_add_u32 s72, s{S_CO}, 524288"])
    for i in range(4): g.append([f"buffer_load_dwordx4 v{VC+i}, {R(SRD_A)}, s{S_CO} offen offset:{i*1024} lds"])
    g.append([f"s_add_u32 m0, s{S_MC}, 4096", f"s_add_u32 s{S_CO}, s{S_CO}, 128", f"s_bitset0_b32 s{S_CO}, 10"])
    for i in range(4): g.append([f"buffer_load_dwordx4 v{VC+i}, {R(SRD_A)}, s72 offen offset:{i*1024} lds"])
    g.append([f"s_mov_b32 m0, s73", f"s_xor_b32 s{S_MC}, s{S_MC}, 0x10000"])
    for x in wdma(None, SRD_B, S_WO_): g.append([x])
    g.append([f"s_add_u32 m0, s73, 16384", f"s_xor_b32 s73, s73, 0x10000"])
    for x in wdma(None, SRD_C, S_WO_): g.append([x])
    g.append([f"s_add_u32 s{S_WO_}, s{S_WO_}, {64*8192}", f"s_bitset0_b32 s{S_WO_}, 22"])
    return g

def wq_dma_ops(nblk):
    g = []
    for h in range(2*nblk):
        g.append([f"s_mov_b32 m0, s74", f"s_add_u32 s74, s74, 16384"])
        for x in wdma(None, SRD_D, S_QO): g.append([x])
        g.append([f"s_add_u32 s{S_QO}, s{S_QO}, {64*8192}", f"s_sub_u32 s75, s{S_QO}, {640*8192}", f"s_cselect_b32 s{S_QO}, s{S_QO}, s75"])
    return g

def emit_groups(a, g):
    for x in g:
        for y in x: a(y)

def x_load(a, ks, regs):
    for qt in range(2):
        a(f"buffer_load_dwordx4 {v(regs[qt],4)}, v{VL16 if qt==0 else VX1}, {WS}, s{S_XB+(ks>>2)} offen offset:{(ks&3)*1024} sc1")
        a.vm.issue(("X", ks))

def cnt_load(a, r, which):
    return f"buffer_load_dword v{r}, v3, {R(SRD_E)}, 0 offen offset:{128*which} sc1"
def cnt_addr(a):
    a.srd(SRD_E, P_DBG, 256)
    a(f"v_and_b32 v3, 31, v{L}\nv_lshlrev_b32 v3, 2, v3")
def cnt_check(a, r, which):
    ok = a.newlabel("cntok")
    a(f"v_cmp_gt_u32 vcc, 8, v{r}\ns_cbranch_vccz {ok}")
    cnt_addr(a)
    poll(a, cnt_load(a, 2, which), "v_cmp_gt_u32 vcc, 8, v2", sleep=8)
    a.label(ok)

def kv_touch(a, st0):
    sk = a.newlabel("tch")
    a(f"s_cmp_ge_u32 s76, 2\ns_cbranch_scc1 {sk}a")
    a(f"s_and_b32 s6, s{S_H}, 3\ns_lshl_b32 s6, s6, 19\ns_lshl_b32 s7, s{S_P}, 15\ns_add_u32 s6, s6, s7\ns_lshl_b32 s7, s76, 7\ns_add_u32 s6, s6, s7\ns_add_u32 s6, s6, {st0*128}")
    a(f"v_lshrrev_b32 v6, 1, v{L}\nv_lshlrev_b32 v6, 10, v6\nv_and_b32 v7, 1, v{L}\nv_lshl_add_u32 v6, v7, 6, v6")
    a(f"buffer_load_dword v{VDUM}, v6, {R(SRD_A)}, s6 offen\ns_add_u32 s6, s6, 262144\nbuffer_load_dword v{VDUM}, v6, {R(SRD_A)}, s6 offen\ns_branch {sk}c")
    a.label(sk + "a")
    a(f"v_lshrrev_b32 v6, 5, v{L}\nv_lshlrev_b32 v6, 6, v6\nv_bfe_u32 v7, v{L}, 2, 3\nv_add_u32 v6, v6, v7\nv_lshlrev_b32 v6, 13, v6\nv_and_b32 v7, 3, v{L}\nv_lshl_add_u32 v6, v7, 6, v6")
    a(f"s_lshl_b32 s6, s{S_H}, 8\ns_lshl_b32 s7, s{S_P}, 16\ns_add_u32 s6, s6, s7\ns_add_u32 s6, s6, {st0*64*8192}")
    a(f"s_cmp_lg_u32 s76, 2\ns_cbranch_scc1 {sk}b\nbuffer_load_dword v{VDUM}, v6, {R(SRD_B)}, s6 offen\ns_branch {sk}c")
    a.label(sk + "b")
    a(f"buffer_load_dword v{VDUM}, v6, {R(SRD_C)}, s6 offen")
    a.label(sk + "c")

def consts(a):
    a(f"s_mov_b32 s{S_ST}, 0")
    a(f"s_lshl_b32 s6, s{S_H}, 20\ns_lshl_b32 s7, s{S_P}, 13\ns_add_u32 s6, s6, s7\ns_and_b32 s7, s{S_W}, 1\ns_lshl_b32 s7, s7, 16\ns_add_u32 s6, s6, s7\ns_add_u32 s{S_KVD}, s6, {WS_KV}")
    if "noqrot" in ABL: a("s_mov_b32 s6, 0")
    else:
        a(f"s_and_b32 s6, s{S_H}, 3\ns_add_u32 s6, s6, s{S_P}")
        for _ in range(2): a("s_sub_u32 s7, s6, 5\ns_cselect_b32 s6, s6, s7")
    a(f"s_lshl_b32 s{S_QO}, s6, 20\ns_lshl_b32 s7, s{S_H}, 8\ns_add_u32 s{S_QO}, s{S_QO}, s7")
    for i in range(5):
        a(f"s_lshl_b32 s7, s6, 12\ns_add_u32 s{S_XB+i}, s{S_XO}, s7")
        if i < 4: a("s_add_u32 s6, s6, 1\ns_cmp_eq_u32 s6, 5\ns_cselect_b32 s6, 0, s6")
    a(f"s_lshr_b32 s7, s{S_W}, 1\ns_and_b32 s7, s7, 1")
    a(f"s_cmp_ge_u32 s{S_W}, 4\ns_cbranch_scc1 L_c_v")
    a(f"s_lshl_b32 s7, s7, 11\ns_add_u32 s{S_KVD}, s{S_KVD}, s7\ns_movk_i32 s{S_INCA}, 3072\ns_mov_b32 s{S_INCB}, 125952")
    a(f"s_add_u32 s{S_QO}, s{S_QO}, {128*8192}\ns_sub_u32 s75, s{S_QO}, {640*8192}\ns_cselect_b32 s{S_QO}, s{S_QO}, s75\ns_lshl_b32 s74, s76, 12\ns_branch L_c_j")
    a.label("L_c_v")
    a(f"s_lshl_b32 s7, s7, 12\ns_add_u32 s{S_KVD}, s{S_KVD}, s7\ns_add_u32 s{S_KVD}, s{S_KVD}, 0x80000\ns_movk_i32 s{S_INCA}, 1024\ns_mov_b32 s{S_INCB}, 128000")
    a.label("L_c_j")

def zero_regs(a, r0, n):
    for i in range(0, n, 2): a(f"v_mov_b64 {v(r0+i,2)}, 0")

def phase_start(a):
    a(f"s_cmp_ge_u32 s2, 256\ns_cbranch_scc1 L_exit")
    a("s_load_dwordx16 s[32:47], s[0:1], 0\ns_load_dwordx8 s[48:55], s[0:1], 64\ns_load_dwordx4 s[56:59], s[0:1], 96")
    a(f"v_lshrrev_b32 v2, 6, v0\nv_and_b32 v{L}, 63, v0\nv_readfirstlane_b32 s{S_W}, v2")
    if "nocode" not in ABL:
        a("s_getpc_b64 s[80:81]")
        a.label("L_pc")
        a(f"s_lshr_b32 s6, s2, 3\ns_and_b32 s6, s6, 15\ns_lshl_b32 s6, s6, 12\ns_cmp_lt_u32 s{S_W}, 2\ns_cselect_b32 s6, 0, s6\nv_lshl_add_u32 v3, v0, 6, s6")
        a(f"v_min_u32 v3, L_exit-L_pc, v3\ns_cmp_ge_u32 s{S_W}, 3\ns_cbranch_scc1 L_noct\nglobal_load_dword v{VDUM}, v3, s[80:81]")
        a.label("L_noct")
    a(f"v_lshrrev_b32 v62, 5, v0\nv_and_b32 v62, 7, v62\nv_and_b32 v2, 31, v0\nv_lshlrev_b32 v2, 3, v2\nv_mul_u32_u24 v63, 1280, v62\nv_add_u32 v63, v63, v2\ns_mul_i32 s6, s2, 10240\nv_add_u32 v10, s6, v63")
    a(f"s_cmp_lt_u32 s{S_W}, 4\ns_cbranch_scc1 L_st_k0")
    a("s_waitcnt lgkmcnt(0)")
    for j in range(5): a(f"global_load_dwordx2 {v(LX+2*j,2)}, v10, s[{P_X}:{P_X+1}] offset:{j*256}{NT if 'xnt' in ABL else ''}")
    for j in range(5): a(f"global_load_dwordx2 {v(LW+2*j,2)}, v2, s[{P_WR}:{P_WR+1}] offset:{j*256}")
    a.label("L_st_k0")
    a(f"s_and_b32 s6, s2, 7\ns_lshl_b32 s6, s6, 2\ns_lshr_b32 s7, s2, 3\ns_and_b32 s7, s7, 3\ns_add_u32 s{S_H}, s6, s7\ns_lshr_b32 s{S_P}, s2, 5\ns_and_b32 s76, s{S_W}, 3")
    a.stamp_init(14, 0); a.stamp(0)
    a(f"v_lshrrev_b32 v2, 3, v{L}\nv_and_b32 v3, 7, v{L}\nv_lshrrev_b32 v4, 4, v{L}\nv_xor_b32 v5, v3, v4\nv_lshlrev_b32 v5, 4, v5")
    a(f"v_lshl_add_u32 v{VC}, v2, 10, v5\nv_xor_b32 v5, 64, v{VC}\nv_add_u32 v{VC+1}, 7168, v5\nv_add_u32 v{VC+2}, 14336, v{VC}\nv_add_u32 v{VC+3}, 14336, v{VC+1}")
    a(f"v_and_b32 v6, 15, v{L}\ns_lshl_b32 s6, s76, 4\nv_add_u32 v7, s6, v4\nv_lshlrev_b32 v5, 1, v4\nv_xor_b32 v5, v6, v5\nv_lshlrev_b32 v5, 4, v5")
    a(f"v_lshl_add_u32 v{VW}, v7, 13, v5\nv_add_u32 v{VW+1}, 31744, v{VW}\nv_xor_b32 v5, 0x80, v{VW}\nv_add_u32 v{VW+2}, 63488, v5\nv_add_u32 v{VW+3}, 31744, v{VW+2}")
    a(f"s_and_b32 s6, s76, 1\ns_lshl_b32 s6, s6, 20\ns_lshr_b32 s7, s76, 1\ns_lshl_b32 s7, s7, 18\ns_add_u32 s6, s6, s7\ns_lshl_b32 s{S_CO}, s{S_P}, 15\ns_add_u32 s{S_CO}, s{S_CO}, s6\ns_lshl_b32 s{S_WO_}, s{S_H}, 8\ns_lshl_b32 s{S_MC}, s76, 13\ns_lshl_b32 s73, s76, 12\ns_add_u32 s73, s73, 32768")
    a("s_waitcnt lgkmcnt(0)")
    a.srd(SRD_A, P_CKV, 2048*512*2)
    a.srd(SRD_B, P_WUK, 512*4096*2)
    a.srd(SRD_C, P_WUV, 512*4096*2)
    a(f"s_cmp_ge_u32 s{S_W}, 4\ns_cbranch_scc1 L_st_v0")
    for st in TK: kv_touch(a, st)
    emit_groups(a, kv_dma_ops())
    if "noprio" not in ABL: a("s_setprio 1")
    a.label("L_st_v0")
    a.srd(SRD_WS, P_WS, WS_SIZE)
    a.srd(SRD_D, P_WQ, 640*4096*2)
    a(f"v_lshlrev_b32 v{VL16}, 4, v{L}")
    a(f"s_lshl_b32 s6, s{S_P}, 2\ns_add_u32 s7, s6, s{S_W}\ns_sub_u32 s6, 56, s6\ns_add_u32 s6, s6, s{S_W}")
    a(f"s_cmp_lt_u32 s{S_W}, 4\ns_cselect_b32 s{S_B}, s7, s6")
    a(f"s_xor_b32 s6, s{S_P}, 1\ns_lshl_b32 s6, s6, 5\ns_add_u32 s{S_E}, s6, s{S_H}")
    a(f"v_and_b32 v2, 15, v{L}\nv_lshrrev_b32 v3, 4, v{L}")
    a(f"s_and_b32 s6, s{S_W}, 1\ns_lshl_b32 s6, s6, 7\nv_add_u32 v4, s6, v2\nv_lshlrev_b32 v4, 7, v4\nv_lshrrev_b32 v5, 1, v2")
    for sp in range(2):
        a(f"v_add_u32 v6, {4*sp}, v3\nv_xor_b32 v6, v6, v5\nv_lshl_add_u32 v{RC+sp}, v6, 4, v4")
    a(f"v_lshrrev_b32 v4, 2, v2\nv_lshl_add_u32 v5, v3, 3, v4\nv_lshlrev_b32 v5, 8, v5")
    a(f"v_and_b32 v6, 1, v2\nv_lshl_add_u32 v5, v6, 3, v5")
    a(f"v_and_b32 v6, 1, v3\nv_lshl_or_b32 v4, v6, 2, v4\nv_lshlrev_b32 v4, 1, v4\nv_bfe_u32 v6, v2, 1, 1")
    a(f"v_add_u32 v8, {LDS_SP}, v5")
    for t in range(8):
        a(f"v_add_u32 v7, {2*t}, v6\nv_xor_b32 v7, v7, v4\nv_lshl_add_u32 v{QRW+t}, v7, 4, v8")
    a(f"s_lshr_b32 s6, s{S_W}, 2\ns_lshl_b32 s6, s6, 14\ns_add_u32 s6, s6, 32768\nv_add_u32 v5, s6, v5")
    a(f"s_lshr_b32 s7, s{S_W}, 1\ns_and_b32 s7, s7, 1\ns_lshl_b32 s7, s7, 3")
    for j in range(4):
        a(f"s_add_u32 s6, s7, {2*j}\nv_add_u32 v7, s6, v6\nv_xor_b32 v7, v7, v4\nv_lshl_add_u32 v{RW+j}, v7, 4, v5")
    zero_regs(a, ACC, 128)
    a(f"v_add_u32 v{VX1}, 20480, v{VL16}\ns_mul_i32 s{S_XO}, s{S_B}, 40960")
    consts(a)
    a.stamp(1)
    a(f"s_cmp_ge_u32 s{S_W}, 4\ns_cbranch_scc1 L_st_v1")
    emit_groups(a, kv_dma_ops()[:10])
    a("s_waitcnt vmcnt(8)\ns_branch L_st_j1")
    a.label("L_st_v1")
    a(f"s_waitcnt vmcnt(0)")
    a.stamp(2)
    ln_compute(a)
    ln_router(a)
    a.label("L_st_j1")
    a.stamp(3)
    a("s_barrier")
    a.stamp(4)

def zero_flags(a, withr=False):
    a(f"v_mov_b32 v3, {hex(WS_SIZE)}\nv_mov_b32 v2, 0")
    flag_addr(a, "kv", 6); a("v_writelane_b32 v3, s6, 0")
    flag_addr(a, "ctx", 6); a("v_writelane_b32 v3, s6, 1")
    flag_addr(a, "moe", 6); a("v_writelane_b32 v3, s6, 2")
    a(f"s_lshl_b32 s6, s{S_W}, 2\ns_add_u32 s6, s6, {WS_IDX}\ns_cmp_eq_u32 s2, {DESIG}\ns_cselect_b32 s6, s6, {hex(WS_SIZE)}\nv_writelane_b32 v3, s6, 3")
    for k in range(3):
        xf_addr(a, k, 6); a(f"v_writelane_b32 v3, s6, {4+k}")
    if not withr:
        flag_addr(a, "b", 6); a(f"s_cmp_eq_u32 s{S_W}, 0\ns_cselect_b32 s6, s6, {hex(WS_SIZE)}\nv_writelane_b32 v3, s6, 7")
    if withr:
        a(f"v_cmp_lt_u32 vcc, 7, v{L}\ns_lshl_b32 s6, s2, 5\ns_lshl_b32 s7, s76, 3\ns_add_u32 s6, s6, s7\nv_cndmask_b32 v2, v2, v63, vcc\ns_add_u32 s6, s6, {WS_R}\nv_writelane_b32 v3, s6, 31\ns_add_u32 s6, s6, 4\nv_writelane_b32 v3, s6, 63")
    a(f"buffer_store_dword v2, v3, {WS}, 0 offen sc1")

def half_reduce(a, r):
    for m in ("quad_perm:[1,0,3,2]", "quad_perm:[2,3,0,1]", "row_half_mirror", "row_mirror"):
        a(f"s_nop 1\nv_add_f32_dpp v{r}, v{r}, v{r} {m} row_mask:0xf bank_mask:0xf")
    a(f"v_mov_b32 v8, v{r}\ns_nop 1\nv_permlane16_swap_b32 v{r}, v8\ns_nop 1\nv_add_f32 v{r}, v{r}, v8")

def ln_compute(a):
    X = LV
    NEG = "op_sel_hi:[1,0] neg_lo:[0,1] neg_hi:[0,1]"
    for j in range(10):
        a(f"v_lshlrev_b32 v{X+2*j}, 16, v{LX+j}\nv_and_b32 v{X+2*j+1}, 0xffff0000, v{LX+j}")
    a(f"v_pk_add_f32 v[2:3], {v(X,2)}, {v(X+2,2)}")
    for j in range(2, 10): a(f"v_pk_add_f32 v[2:3], v[2:3], {v(X+2*j,2)}")
    a("v_add_f32 v2, v2, v3")
    half_reduce(a, 2)
    a("s_mov_b32 s7, 0x3acccccd\nv_mul_f32 v2, s7, v2\nv_mov_b64 v[4:5], 0")
    for j in range(10):
        a(f"v_pk_add_f32 v[6:7], {v(X+2*j,2)}, v[2:3] {NEG}\nv_pk_fma_f32 v[4:5], v[6:7], v[6:7], v[4:5]")
    a("v_add_f32 v4, v4, v5")
    half_reduce(a, 4)
    a("v_mul_f32 v4, s7, v4")
    bf16_round(a, 2); bf16_round(a, 4)
    a("v_add_f32 v4, 0x3727c5ac, v4")
    bf16_round(a, 4)
    a("v_sqrt_f32 v4, v4\ns_nop 0")
    bf16_round(a, 4)
    a("v_rcp_f32 v6, v4\ns_nop 0\nv_fma_f32 v5, -v4, v6, 1.0\nv_fmac_f32 v6, v5, v6\nv_mov_b32 v9, 0")
    for j in range(10):
        x = X + 2*j
        a(f"v_pk_add_f32 {v(x,2)}, {v(x,2)}, v[2:3] {NEG}\nv_cvt_pk_bf16_f32 v5, v{x}, v{x+1}")
        a(f"v_lshlrev_b32 v{x}, 16, v5\nv_and_b32 v{x+1}, 0xffff0000, v5")
        a(f"v_pk_mul_f32 {v(x,2)}, {v(x,2)}, v[6:7] op_sel_hi:[1,0]\nv_cvt_pk_bf16_f32 v{LX+j}, v{x}, v{x+1}")
    a(f"v_add_u32 v10, {LDS_LN}, v63")
    for j in range(5): a(f"ds_write_b64 v10, {v(LX+2*j,2)} offset:{j*256}")
    a("s_waitcnt lgkmcnt(0)")

def ln_router(a):
    a("v_mov_b32 v2, 0")
    for j in range(10):
        a(f"v_lshlrev_b32 v4, 16, v{LX+j}\nv_lshlrev_b32 v5, 16, v{LW+j}\nv_fmac_f32 v2, v4, v5")
        a(f"v_and_b32 v4, 0xffff0000, v{LX+j}\nv_and_b32 v5, 0xffff0000, v{LW+j}\nv_fmac_f32 v2, v4, v5")
    half_reduce(a, 2)
    a("v_cvt_pk_bf16_f32 v2, v2, v2\nv_and_b32 v2, 0xffff, v2")
    a("v_bfe_i32 v3, v2, 15, 1\nv_and_b32 v3, 0x7fff, v3\nv_or_b32 v3, 0x8000, v3\nv_xor_b32 v2, v2, v3")
    a(f"s_lshl_b32 s7, s2, 3\ns_sub_u32 s6, 2047, s7\nv_sub_u32 v3, s6, v62\nv_lshl_or_b32 v63, v2, 11, v3")

def ln_store(a, back):
    LV = 16
    a(f"s_lshr_b32 s72, s2, 1\ns_mul_i32 s72, s72, 20480\ns_and_b32 s7, s2, 1\ns_lshl_b32 s7, s7, 7\ns_add_u32 s72, s72, s7")
    a(f"s_mul_i32 s73, s2, 10240\ns_add_u32 s73, s73, {WS_XNR-4096}\nv_lshlrev_b32 v9, 4, v0\nv_add_u32 v10, {LDS_LN-4096}, v9")
    for n in range(3):
        a(f"v_add_u32 v2, {256*n-256}, v0\nv_lshrrev_b32 v3, 3, v2\nv_and_b32 v4, 7, v2")
        a(f"v_mul_u32_u24 v5, 1280, v4\nv_lshl_add_u32 v5, v3, 4, v5\nv_add_u32 v5, {LDS_LN}, v5")
        a(f"ds_read_b128 {v(LV+8*n,4)}, v5\nds_read_b128 {v(LV+8*n+4,4)}, v10 offset:{4096*n}\nv_lshlrev_b32 v5, 8, v3\nv_lshl_add_u32 v{6+n}, v4, 4, v5")
    zero_flags(a, True)
    a("s_waitcnt lgkmcnt(0)")
    for n in range(3):
        if n == 2: a(f"s_cmp_ge_u32 s{S_W}, 6\ns_cbranch_scc1 {back}")
        SC = "" if "lnplain" in ABL else " sc1"
        if "nolnst" not in ABL: a(f"buffer_store_dwordx4 {v(LV+8*n,4)}, v{6+n}, {WS}, s72 offen{SC}")
        if "noxnr" not in ABL: a(f"buffer_store_dwordx4 {v(LV+8*n+4,4)}, v9, {WS}, s73 offen{SC}\ns_add_u32 s73, s73, 4096")
    a.label(back)

def count_atomic(a, which):
    a.srd(SRD_E, P_DBG, 256)
    a(f"v_mov_b32 v2, 1\nv_lshlrev_b32 v3, 8, v{L}\ns_and_b32 s6, s2, 31\ns_lshl_b32 s6, s6, 2\nbuffer_atomic_add v2, v3, {R(SRD_E)}, s6 offen offset:{128*which} sc1")

def flag_addr(a, kind, d):
    if kind == "kv":
        a(f"s_lshl_b32 s{d}, s{S_H}, 3\ns_add_u32 s{d}, s{d}, s{S_P}\ns_lshl_b32 s{d}, s{d}, 5\ns_add_u32 s{d}, s{d}, s{S_W}\ns_lshl_b32 s{d}, s{d}, 2\ns_add_u32 s{d}, s{d}, {WS_KVF}")
    elif kind == "ctx":
        a(f"s_lshl_b32 s{d}, s{S_B}, 5\ns_add_u32 s{d}, s{d}, s{S_H}\ns_lshl_b32 s{d}, s{d}, 7\ns_add_u32 s{d}, s{d}, {WS_CTXF}")
    elif kind == "b":
        a(f"s_xor_b32 s{d}, s{S_P}, 1\ns_lshl_b32 s{d}, s{d}, 5\ns_add_u32 s{d}, s{d}, s{S_H}\ns_lshl_b32 s{d}, s{d}, 7\ns_add_u32 s{d}, s{d}, {WS_BF}")
    else:
        a(f"s_lshl_b32 s{d}, s{S_E}, 3\ns_add_u32 s{d}, s{d}, s{S_W}\ns_lshl_b32 s{d}, s{d}, 2\ns_add_u32 s{d}, s{d}, {WS_MOEF}")

def tile_id(a, d):
    a(f"s_and_b32 s{d}, s{S_H}, 7\ns_lshl_b32 s7, s{S_P}, 3\ns_add_u32 s{d}, s{d}, s7")
def xslot(a, slot, d):
    tile_id(a, d)
    a(f"s_lshr_b32 s7, s{S_H}, 3\ns_add_u32 s7, s7, {slot}\ns_add_u32 s7, s7, 1\ns_and_b32 s7, s7, 3\ns_lshl_b32 s{d}, s{d}, 2\ns_add_u32 s{d}, s{d}, s7\ns_mul_i32 s{d}, s{d}, 3\ns_add_u32 s{d}, s{d}, {slot}")
def xf_addr(a, slot, d):
    xslot(a, slot, d)
    a(f"s_lshl_b32 s{d}, s{d}, 5\ns_add_u32 s{d}, s{d}, s{S_W}\ns_lshl_b32 s{d}, s{d}, 2\ns_add_u32 s{d}, s{d}, {WS_XF}")

def set_flag(a, kind, val=1):
    flag_addr(a, kind, 6)
    a(f"v_mov_b32 v2, {val}\nv_mov_b32 v3, {hex(WS_SIZE)}\nv_writelane_b32 v3, s6, 0\nbuffer_store_dword v2, v3, {WS}, 0 offen sc1")
    a.vm.issue("flag")

def phase_kv(a):
    def rdC(i, sp):
        if "kv_noC" in ABL: return
        a(f"ds_read_b128 {v(CF+4*i,4)}, v{RC+sp} offset:{i*2048}"); a.lg.issue(("C", i))
    def rdW(par, j, half, sp):
        if "kv_noW" in ABL: return
        r = WF + 16*par + 4*j + 2*half
        a(f"ds_read_b64_tr_b16 {v(r,2)}, v{RW+j} offset:{sp*8192 + half*1024}"); a.lg.issue(("W", par, j, half))
    wq = [(j, hf) for j in range(4) for hf in range(2)]
    def body(isK, lab, dma, nend, hook=None):
        def mm(i, j, par):
            d = ACC + (i*4+j)*4
            a.wait_lg([("C", i), ("W", par, j, 0), ("W", par, j, 1)])
            if isK: a.mfma(d, WF+16*par+4*j, CF+4*i)
            else: a.mfma(d, CF+4*i, WF+16*par+4*j)
        a(".p2align 4")
        a.label(lab)
        if hook:
            a(f"s_branch {hook}"); a.label(hook + "_back")
        for i in range(8):
            for j in range(4):
                mm(i, j, 0)
                if i < 2: rdW(1, *wq[i*4+j], 1)
            rdC(i, 1)
        dma = list(dma)
        if "kv_nodma" in ABL: dma = []
        for i in range(8):
            for j in range(4):
                mm(i, j, 1)
                if i == 2 or i == 3: rdW(0, *wq[(i-2)*4+j], 0)
                if i >= 2 and dma:
                    for y in dma.pop(0): a(y)
            if i == 1:
                for r in (RC, RC+1, RW, RW+1, RW+2, RW+3): a(f"v_xor_b32 v{r}, 0x10000, v{r}")
                if isK: a("s_waitcnt vmcnt(0) lgkmcnt(0)\ns_barrier")
                else:
                    a(f"s_bitcmp1_b32 0xe8, s{S_ST}\ns_cbranch_scc1 L_vpre")
                    a.label("L_vnow")
                    a("s_waitcnt lgkmcnt(0)\ns_barrier")
                a.lg.drain()
                a.stampd(S_ST, 24)
                rdC(0, 0); rdC(1, 0)
            elif i >= 2: rdC(i, 0)
        emit_groups(a, dma)
        a(f"s_add_u32 s{S_ST}, s{S_ST}, 1\ns_cmp_lt_u32 s{S_ST}, {nend}\ns_cbranch_scc1 {lab}")
    def first_reads():
        a.lg.drain()
        rdC(0, 0); rdC(1, 0)
        for k in range(4): rdW(0, *wq[k], 0)
        rdC(2, 0)
        for k in range(4, 8): rdW(0, *wq[k], 0)
        for i in range(3, 8): rdC(i, 0)
    a(f"s_cmp_ge_u32 s{S_W}, 4\ns_cbranch_scc1 L_kv_v")
    first_reads()
    q0 = list(a.lg.q)
    emit_groups(a, kv_dma_ops()[10:])
    zero_flags(a)
    a.stamp(5)
    body(True, "L_kloopA", kv_dma_ops(), 6)
    assert a.lg.q == q0, (a.lg.q, q0)
    body(True, "L_kloopB", wq_dma_ops(2), 8, hook="L_khook")
    a.stamp(6)
    a("s_waitcnt lgkmcnt(0)\ns_nop 7")
    for n in range(16):
        t = ACC + 4*n; d0 = ACC + 8*n; d1 = d0 + 4
        a(f"v_cvt_pk_bf16_f32 v{t}, v{d0}, v{d0+1}\nv_cvt_pk_bf16_f32 v{t+1}, v{d0+2}, v{d0+3}")
        a(f"v_cvt_pk_bf16_f32 v{t+2}, v{d1}, v{d1+1}\nv_cvt_pk_bf16_f32 v{t+3}, v{d1+2}, v{d1+3}")
    a("s_branch L_q")
    a.label("L_hook")
    for k in (1, 2, 4, 5, 6): a(f"s_cmp_eq_u32 s{S_ST}, {k}\ns_cbranch_scc1 L_hook{k}")
    a(f"s_cmp_lg_u32 s{S_ST}, 7\ns_cbranch_scc1 L_hook_back")
    for ks in range(3): x_load(a, ks, XEARLY[2*ks:2*ks+2])
    a("s_branch L_hook_back")
    a.label("L_hook1")
    ln_store(a, "L_lns")
    for st in TV1: kv_touch(a, st)
    a("s_branch L_hook_back")
    a.label("L_hook2")
    for st in TV2: kv_touch(a, st)
    if "nowot" in ABL: a("s_branch L_hook_back")
    a.srd(SRD_E, P_WO, 4096*640*2)
    a(f"s_lshr_b32 s73, s2, 1\ns_mul_i32 s73, s73, {32*1280}\ns_and_b32 s6, s2, 1\ns_mul_i32 s6, s6, 640\ns_add_u32 s73, s73, s6\ns_movk_i32 s7, 1639")
    a(f"s_mul_i32 s74, s76, 5120\ns_add_u32 s74, s74, {LDS_WOT}\ns_mul_i32 s6, s76, 320\nv_add_u32 v9, s6, v{L}")
    for n in range(5):
        a(f"v_add_u32 v2, {n*64}, v9\nv_mul_lo_u32 v3, v2, s7\nv_lshrrev_b32 v3, 16, v3\nv_mul_u32_u24 v4, 40, v3\nv_sub_u32 v4, v2, v4")
        a(f"v_mul_u32_u24 v3, 1280, v3\nv_lshl_add_u32 v3, v4, 4, v3\ns_add_u32 m0, s74, {n*1024}\ns_nop 0")
        a(f"buffer_load_dwordx4 v3, {R(SRD_E)}, s73 offen{NT} lds")
    a("s_branch L_hook_back")
    a.label("L_hook4")
    WOTR = [16, 20, 24, 28, 32]
    a(f"s_cmp_lg_u32 s{S_W}, 4\ns_cbranch_scc1 L_hook4b")
    count_atomic(a, 0)
    a.label("L_hook4b")
    if "nowot" in ABL: a("s_branch L_hook_back")
    a(f"v_and_b32 v2, 15, v{L}\nv_lshrrev_b32 v3, 4, v{L}\nv_lshrrev_b32 v4, 2, v2\nv_lshl_add_u32 v4, v3, 2, v4\nv_mul_u32_u24 v4, 640, v4")
    a(f"v_and_b32 v2, 3, v2\nv_lshl_add_u32 v4, v2, 3, v4\ns_mul_i32 s6, s76, 160\ns_add_u32 s6, s6, {LDS_WOT}\nv_add_u32 v4, s6, v4")
    a(f"s_mul_i32 s6, s2, 20480\ns_mul_i32 s7, s76, 5120\ns_add_u32 s6, s6, s7\ns_add_u32 s6, s6, {WS_WOF}\ns_add_u32 s7, s6, 4096")
    for n in range(5):
        d = WOTR[n]
        a(f"ds_read_b64_tr_b16 v[{d}:{d+1}], v4 offset:{n*32}\nds_read_b64_tr_b16 v[{d+2}:{d+3}], v4 offset:{n*32+10240}")
    a("s_waitcnt lgkmcnt(0)")
    for n in range(5):
        a(f"buffer_store_dwordx4 {v(WOTR[n],4)}, v{VL16}, {WS}, s{6 if n<4 else 7} offen offset:{(n&3)*1024} sc1")
    a("s_branch L_hook_back")
    a.label("L_hook5")
    a(f"s_lshl_b32 s74, s76, 12\ns_add_u32 s74, s74, {LDS_SP}")
    emit_groups(a, wq_dma_ops(1))
    a("s_branch L_hook_back")
    a.label("L_hook6")
    a(f"s_cmp_lg_u32 s{S_W}, 5\ns_cbranch_scc1 L_hook6b")
    cnt_addr(a); a(cnt_load(a, 62, 0))
    a.label("L_hook6b")
    a(f"s_cmp_lg_u32 s{S_W}, 4\ns_cbranch_scc1 L_hook_back")
    count_atomic(a, 1)
    a("s_branch L_hook_back")
    a.label("L_vpre")
    a(f"s_waitcnt vmcnt(8)\ns_cmp_eq_u32 s{S_ST}, 5\ns_cbranch_scc1 L_vnow\ns_cmp_eq_u32 s{S_ST}, 6\ns_cbranch_scc1 L_vpre6\ns_waitcnt vmcnt(0)\ns_branch L_vnow")
    a.label("L_vpre6")
    a(f"s_cmp_lg_u32 s{S_W}, 5\ns_cbranch_scc1 L_vnow\ns_waitcnt vmcnt(0)")
    cnt_check(a, 62, 0)
    a("s_branch L_vnow")
    a.label("L_khook")
    a(f"s_cmp_lg_u32 s{S_ST}, 7\ns_cbranch_scc1 L_khook_back")
    for ks in range(3): x_load(a, ks, XEARLY[2*ks:2*ks+2])
    a("s_branch L_khook_back")
    a.label("L_kv_v")
    first_reads()
    for st in TV0: kv_touch(a, st)
    a.stamp(5)
    body(False, "L_vloop", [], 8, hook="L_hook")
    a.stamp(6)
    a("s_waitcnt lgkmcnt(0)\ns_nop 7")
    for ii in range(4):
        for j in range(4):
            t = ACC + 16*ii + 4*j; d0 = ACC + 32*ii + 4*j; d1 = d0 + 16
            a(f"v_cvt_pk_bf16_f32 v{t}, v{d0}, v{d0+1}\nv_cvt_pk_bf16_f32 v{t+1}, v{d0+2}, v{d0+3}")
            a(f"v_cvt_pk_bf16_f32 v{t+2}, v{d1}, v{d1+1}\nv_cvt_pk_bf16_f32 v{t+3}, v{d1+2}, v{d1+3}")

QF, O_, S_, FR, P_, NM, T_, L_, ET = 16, 192, 64, 96, 128, 144, 52, 56, 58
VA, VDK, VDV = 48, 49, 50
S_N, S_NL, S_C, S_THR = 62, 63, 64, 65
THRESH = 0x4b800000
def Sreg(par, kt, qt): return S_ + 16*par + (kt*2+qt)*4
def NMreg(kt, qt): return NM + (kt*2+qt)*4
def Oreg(t, qt): return O_ + (t*2+qt)*4
def Qreg(qt, s): return QF + (qt*4+s)*4
def Preg(par, qt): return P_ + 8*par + 4*qt
def Treg(par, qt): return T_ + 2*par + qt

def xlane(a, op, r, t):
    for sw in ("v_permlane16_swap_b32", "v_permlane32_swap_b32"):
        a(f"v_mov_b32 v{t}, v{r}\ns_nop 1\n{sw} v{r}, v{t}\ns_nop 1\n{op} v{r}, v{r}, v{t}")

def st_dma(a, parts):
    if "K" in parts:
        for hf in range(2):
            a(f"s_lshl_b32 s6, s76, 13\ns_add_u32 s6, s6, s78\ns_add_u32 m0, s6, {hf*4096}\ns_add_u32 s7, s77, {hf*4096}")
            for i in range(4): a(f"buffer_load_dwordx4 v{VDK}, {WS}, s7 offen offset:{i*1024} sc1 lds")
    for hf in range(2):
        if f"V{hf}" in parts:
            a(f"s_lshl_b32 s6, s76, 12\ns_add_u32 s6, s6, s78\ns_add_u32 m0, s6, {32768+hf*16384}\ns_add_u32 s7, s77, {0x80000-16384+hf*16384}")
            for i in range(4): a(f"buffer_load_dwordx4 v{VDV}, {WS}, s7 offen offset:{i*1024} sc1 lds")

S_HK, S_ALL = 89, 90
def kv_self_touch(a):
    a(f"v_lshrrev_b32 v9, 3, v{L}\ns_cmp_lt_u32 s{S_W}, 4\ns_cselect_b32 s7, 6, 4\nv_and_b32 v10, s7, v9\nv_add_u32 v9, v9, v10\nv_lshlrev_b32 v9, 10, v9")
    a(f"v_and_b32 v10, 7, v{L}\nv_lshl_add_u32 v9, v10, 7, v9\ns_sub_u32 s6, s{S_KVD}, 32768")
    a(f"buffer_load_dword v{VDUM}, v9, {WS}, s6 offen sc1\ns_add_u32 s6, s6, 16384\nbuffer_load_dword v{VDUM}, v9, {WS}, s6 offen sc1")

def kv_flag_wait(a, level):
    a(f"s_lshl_b32 s7, s{S_H}, 10\ns_add_u32 s7, s7, {WS_KVF}\nv_lshrrev_b32 v2, 3, v{L}\nv_and_b32 v3, 7, v{L}\nv_lshlrev_b32 v3, 2, v3\nv_lshl_add_u32 v3, v2, 7, v3")
    poll(a, f"buffer_load_dword v2, v3, {WS}, s7 offen sc1", f"v_cmp_gt_u32 vcc, {level}, v2")

KS_POLL = int(os.environ.get("KSP", "15"))
LATE_KS = tuple(int(x) for x in os.environ.get("STKS", "0,1,2,3,16,17,18,19").split(","))
KS_FLAG = int(os.environ.get("KSF", "6"))
NEARLY = int(os.environ.get("NEARLY", "2"))
def kv_store(a, n, late=True):
    if late and "nolate" in ABL: return
    a(f"buffer_store_dwordx4 {v(ACC+4*n,4)}, v{VL16}, {WS}, s{S_KVD} offen sc1"); a.vm.issue(("st", n))
    inc = ("1024", f"s{S_INCA}", "1024", f"s{S_INCB}")[n & 3]
    a(f"s_add_u32 s{S_KVD}, s{S_KVD}, {inc}")
def q_body(a):
    sfx = ""
    a.lg.drain(); a.vm.drain()
    def rdW(t, hf, ks):
        blk = ks >> 2
        off = (0, 0, 32768, 0, 32768)[blk] + (ks & 3)*8192 + hf*1024
        a(f"ds_read_b64_tr_b16 {v(WF+4*t+2*hf,2)}, v{QRW+t} offset:{off}"); a.lg.issue(("W", t, hf))
    for t in range(8):
        rdW(t, 0, 0); rdW(t, 1, 0)
    xr = {ks: XEARLY[2*ks:2*ks+2] for ks in range(3)}
    for ks in range(3, 7):
        xr[ks] = [CF + 8*(ks-3), CF + 8*(ks-3) + 4]
        x_load(a, ks, xr[ks])
    nst = 0
    for ks in range(20):
        pend = []
        a.wait_vm(("X", ks))
        if ks % 2 == 0: a.stamp(32 + ks//2)
        barrier_here = (ks == 11)
        upd = {3: -LDS_SP, 11: 65536}.get(ks)
        st_at = (3,) if ks in LATE_KS else ()
        for t in range(8):
            for qt in range(2):
                if qt == 0: a.wait_lg([("W", t, 0), ("W", t, 1)])
                a.mfma(Oreg(t, qt), WF+4*t, xr[ks][qt], "0" if ks == 0 else None)
                if qt == 1 and ks < 19: pend += [(t, 0), (t, 1)]
                if barrier_here and t == 1 and qt == 1:
                    a("s_waitcnt lgkmcnt(0)\ns_barrier"); a.lg.drain()
                    while len(pend) > 2: rdW(*pend.pop(0), ks+1)
                if pend and not (barrier_here and (t, qt) < (1, 1)): rdW(*pend.pop(0), ks+1)
                if upd is not None and qt == 0:
                    a(f"v_add_u32 v{QRW+t}, {hex(upd & 0xffffffff)}, v{QRW+t}")
                if qt == 0 and t in st_at and nst < 16:
                    kv_store(a, nst); nst += 1
        while pend: rdW(*pend.pop(0), ks+1)
        if ks + 7 < 20:
            xr[ks+7] = xr[ks]; x_load(a, ks+7, xr[ks])
        if ks == KS_FLAG:
            a.wait_vm(("st", 3))
            set_flag(a, "kv", 1)
        if ks == KS_POLL:
            a.wait_vm(("X", 19))
            a(f"s_cmp_ge_u32 s{S_W}, 4\ns_cbranch_scc1 L_q_nold{sfx}")
            a.stamp(20)
            kv_flag_wait(a, 1)
            a.stamp(21)
            st_dma(a, ["K", "V1"])
            a(f"s_branch L_q_j{sfx}")
            a.label(f"L_q_nold{sfx}")
            a(f"s_cmp_lg_u32 s{S_W}, 5\ns_cbranch_scc1 L_q_j{sfx}")
            cnt_addr(a); a(cnt_load(a, 63, 1))
            a.label(f"L_q_j{sfx}")
    assert nst == len(LATE_KS) and 8 <= nst <= 12

def phase_q(a):
    a.label("L_q")
    a.srd(SRD_E, P_DBG, 256)
    a(f"s_lshl_b32 s6, s76, 13\nv_add_u32 v{VDK}, s6, v{VL16}\ns_lshl_b32 s6, s76, 12\nv_add_u32 v{VDV}, s6, v{VL16}")
    a(f"s_lshl_b32 s77, s{S_H}, 20\ns_add_u32 s77, s77, {WS_KV}\ns_mov_b32 s78, 0\ns_mov_b32 s{S_ALL}, 0")
    a(f"s_cmp_lt_u32 s{S_W}, 4\ns_cselect_b32 s{S_HK}, 3, 2")
    q_body(a)
    a.stamp(7)
    a("s_mov_b32 s6, 0x3e0293ee\ns_nop 7")
    for qt in range(2):
        for n in range(len(LATE_KS), 12):
            if (n & 1) == qt or 12 - len(LATE_KS) == 1: pass
        if qt == 0:
            for n in range(len(LATE_KS), 12): kv_store(a, n)
        for s_ in range(4):
            for hf in range(2):
                d = Oreg(2*s_+hf, qt)
                for r in range(4): a(f"v_mul_f32 v{d+r}, s6, v{d+r}")
                a(f"v_cvt_pk_bf16_f32 v{Qreg(qt,s_)+2*hf}, v{d}, v{d+1}\nv_cvt_pk_bf16_f32 v{Qreg(qt,s_)+2*hf+1}, v{d+2}, v{d+3}")
    zero_regs(a, O_, 64)
    zero_regs(a, NM, 16)
    zero_regs(a, T_, 6)
    a(f"v_mov_b32 v{VA}, v{VL16}")
    a(f"s_waitcnt vmcnt({12 - len([k for k in LATE_KS if k <= KS_POLL])})")
    a(f"s_cmp_lg_u32 s{S_W}, 5\ns_cbranch_scc1 L_q_c")
    cnt_check(a, 63, 1)
    a.label("L_q_c")

def sm_ops(par):
    ops = []
    n = 0
    for kt in range(2):
        for qt in range(2):
            for r in range(4):
                t, tp = ET + n % 4, ET + (n-1) % 4
                e = f"v_exp_f32 v{t}, v{Sreg(par,kt,qt)+r}"
                rest = []
                if kt == 0 and r == 0: pass
                elif kt == 0 and r == 1: rest.append(f"v_add_f32 v{Treg(par,qt)}, v{tp}, v{t}")
                else: rest.append(f"v_add_f32 v{Treg(par,qt)}, v{t}, v{Treg(par,qt)}")
                if r & 1: rest.append(f"v_cvt_pk_bf16_f32 v{Preg(par,qt)+2*kt+(r>>1)}, v{tp}, v{t}")
                ops.append((e, rest)); n += 1
    return ops

def phase_attn(a):
    handlers = []
    FULLQ = [("F", i) for i in range(8)]
    def rd(kind, i, k):
        off = (0 if kind == "K" else 32768) + k*8192 + i*1024
        a(f"ds_read_b128 {v(FR+4*i,4)}, v{VA} offset:{off}"); a.lg.issue(("F", i))
    def bar(wait="vmcnt(0) lgkmcnt(0)", mid=None, hot=False):
        bk = a.newlabel("ldback")
        if hot:
            a(f"s_cmp_lg_u32 s{S_HK}, 0\ns_cbranch_scc1 {bk}_c\ns_waitcnt lgkmcnt(0)\ns_barrier")
            a.label(bk)
            handlers.append(("ld", bk))
        else:
            a(f"s_waitcnt {wait}\ns_call_b64 s[82:83], L_pend\ns_barrier")
            if mid: mid()
            a(f"s_call_b64 s[82:83], L_load")
        a.lg.drain()
        if "stampbar" in ABL: a.stampd(S_N, 44)
        a(f"s_add_i32 s{S_N}, s{S_N}, 1")
    def ladd(par, qt): return f"v_add_f32 v{L_+qt}, v{Treg(par,qt)}, v{L_+qt}"
    def stage(k, qk=True, sm=True, pv=True, nxt=True, loop=False):
        pq, ps = k & 1, 1 - (k & 1)
        pairs = []
        if pv: pairs += [("V", i) for i in range(8)]
        if qk: pairs += [("K", i) for i in range(8)]
        NP = len(pairs)
        g0 = [[] for _ in range(NP)]; g1 = [[] for _ in range(NP)]
        full = qk and pv
        if sm:
            ops = sm_ops(ps)[2:]
            per = 1 if full else 2
            for n, (e, rest) in enumerate(ops):
                g0[n//per].append(e); g1[n//per] += rest
            cp = NP - 2 if full else NP - 1
            g1[cp] += [f"v_add_f32 v{ET+4}, v{Treg(ps,0)}, v{Treg(ps,1)}", f"v_cmp_nge_f32 vcc, s{S_THR}, v{ET+4}"]
        g1[0].append(ladd(pq, 0)); g1[2].append(ladd(pq, 1))
        if full:
            for n, (e, rest) in enumerate(sm_ops(pq)[:2]):
                g0[14+n].append(e); g1[14+n] += rest
        sc = {}
        if loop:
            sc[3] = f"s_sub_i32 s{S_C}, s{S_C}, 1"; sc[5] = f"s_cmp_gt_i32 s{S_C}, 0"; sc[7] = f"s_cselect_b32 s{S_THR}, s72, -1.0"
        barp = (NP - 8 + 1) if k == 3 else None
        held = []
        a.wait_lg(("F", 0))
        for n, (kind, i) in enumerate(pairs):
            for qt in range(2):
                if kind == "V": a.mfma(Oreg(i, qt), FR+4*i, Preg(pq, qt))
                else: a.mfma(Sreg(pq, i >> 2, qt), FR+4*i, Qreg(qt, i & 3), None if i & 3 else NMreg(i >> 2, qt))
                if qt == 0:
                    if n + 1 < NP: a.wait_lg(("F", pairs[n+1][1]))
                    for x in g0[n]: a(x)
                    if barp is not None and n == barp: a(f"v_xor_b32 v{VA}, 0x10000, v{VA}")
                else:
                    if n in sc: a(sc[n])
                    if kind == "V" and qk: rd("K", i, k)
                    elif not nxt:
                        if n == barp: bar()
                    else:
                        if barp is not None and n < barp: held.append(i)
                        else:
                            if n == barp:
                                bar(hot=loop)
                                for h in held: rd("V", h, 0)
                            rd("V", i, (k+1) & 3)
                    for x in g1[n]: a(x)
        if sm:
            bk = a.newlabel("back")
            a(f"s_cbranch_vccnz {bk}_h")
            a.label(bk)
            handlers.append(("sm", bk, k, loop, full))
    a(f"s_mov_b32 s72, {hex(THRESH)}\ns_mov_b32 s{S_THR}, s72\ns_sub_u32 s{S_NL}, 15, s{S_P}\ns_mov_b32 s{S_N}, -1")
    a.stamp(8)
    bar("lgkmcnt(0)")
    a.stamp(9)
    for i in range(8): rd("K", i, 0)
    a(f"s_cmp_lg_u32 s{S_B}, 0\ns_cbranch_scc1 L_nm0\ns_call_b64 s[82:83], L_mask")
    a.label("L_nm0")
    for i in range(8):
        a.wait_lg(("F", i))
        for qt in range(2):
            a.mfma(Sreg(0, i >> 2, qt), FR+4*i, Qreg(qt, i & 3), None if i & 3 else NMreg(i >> 2, qt))
        rd("K", i, 1)
    a("s_nop 7")
    for qt in range(2):
        m = ET + qt
        s0, s1 = Sreg(0, 0, qt), Sreg(0, 1, qt)
        a(f"v_max3_f32 v{m}, v{s0}, v{s0+1}, v{s0+2}\nv_max3_f32 v{m}, v{m}, v{s0+3}, v{s1}\nv_max3_f32 v{m}, v{m}, v{s1+1}, v{s1+2}\nv_max_f32 v{m}, v{m}, v{s1+3}")
        xlane(a, "v_max_f32", m, ET+2)
        for kt in range(2):
            for r in range(4):
                a(f"v_sub_f32 v{Sreg(0,kt,qt)+r}, v{Sreg(0,kt,qt)+r}, v{m}\nv_sub_f32 v{NMreg(kt,qt)+r}, 0, v{m}")
    a(f"s_cmp_lg_u32 s{S_B}, 1\ns_cbranch_scc1 L_nm1\ns_call_b64 s[82:83], L_mask")
    a.label("L_nm1")
    def early(par):
        o = sm_ops(par)[:2]
        a(o[0][0]); a(o[1][0]); a("s_nop 0")
        for x in o[1][1]: a(x)
    early(0)
    stage(1, pv=False)
    assert a.lg.q == FULLQ
    a("s_nop 7")
    early(1)
    for n in range(12, 16): kv_store(a, n)
    a(f"s_sub_i32 s{S_C}, s{S_B}, 2")
    a.stamp(10)
    a(f"s_cmp_eq_u32 s{S_B}, 0\ns_cbranch_scc1 L_pv2\ns_cmp_eq_u32 s{S_B}, 1\ns_cbranch_scc1 L_tail2")
    a(f"s_cmp_lg_u32 s{S_B}, 2\ns_cbranch_scc1 L_st2\ns_call_b64 s[82:83], L_mask\ns_branch L_st2")
    a(".p2align 6")
    a.label("L_st0")
    for k in range(4):
        if k == 2: a.label("L_st2")
        stage(k, loop=True)
        assert a.lg.q == FULLQ
    a("s_branch L_st0")
    for k in range(4):
        a.label(f"L_tail{k}")
        a.lg.q = list(FULLQ)
        a(f"s_mov_b32 s{S_THR}, s72")
        stage(k, qk=False)
        assert a.lg.q == FULLQ
        a.label(f"L_pv{(k+1)&3}")
        stage((k+1) & 3, qk=False, sm=False, nxt=False)
        if k < 3: a("s_branch L_fin")
    a.label("L_fin")
    a.stamp(11)
    idx_addr(a); a(f"buffer_load_dword v{VIDX}, v3, {WS}, s72 offen sc1")
    for qt in range(2):
        xlane(a, "v_add_f32", L_+qt, ET)
        a(f"v_rcp_f32 v{L_+qt}, v{L_+qt}")
    a(f"s_lshl_b32 s6, s{S_B}, 18\ns_lshl_b32 s7, s{S_H}, 12\ns_add_u32 s6, s6, s7\ns_add_u32 s6, s6, {WS_CTX}\ns_nop 4")
    n = 0
    a.vm.drain()
    for qt in range(2):
        for s_ in range(4):
            t = QF + 4*n; n += 1
            for hf in range(2):
                d = Oreg(2*s_+hf, qt)
                for r in range(4): a(f"v_mul_f32 v{d+r}, v{L_+qt}, v{d+r}")
                a(f"v_cvt_pk_bf16_f32 v{t+2*hf}, v{d}, v{d+1}\nv_cvt_pk_bf16_f32 v{t+2*hf+1}, v{d+2}, v{d+3}")
            a(f"buffer_store_dwordx4 {v(t,4)}, v{VL16}, {WS}, s6 offen offset:{s_*1024} sc1"); a.vm.issue("st")
        if qt == 0: a("s_add_u32 s6, s6, 0x20000")
    a.stamp(12)
    def flag_now():
        a("s_waitcnt vmcnt(0)")
        set_flag(a, "ctx")
    a(f"s_cmp_gt_i32 s{S_N}, s{S_NL}\ns_cbranch_scc1 L_pre")
    bar("vmcnt(8)", flag_now)
    a(f"s_lshl_b32 s6, s{S_W}, 8\ns_add_u32 s6, s6, s2\ns_cmp_eq_u32 s6, {DESIG}\ns_cbranch_scc1 L_top")
    a.label("L_idle")
    a(f"s_sub_i32 s6, s{S_NL}, 5\ns_cmp_gt_i32 s{S_N}, s6\ns_cbranch_scc1 L_pre")
    bar()
    a(f"s_cmp_lt_u32 s{S_E}, 54\ns_cbranch_scc1 L_moe\ns_branch L_idle")
    a.label("L_pre")
    a(f"s_cmp_lt_u32 s{S_W}, 4\ns_cbranch_scc1 L_pre1")
    out_setup(a, 1)
    a(f"s_and_b32 s6, s{S_NL}, 1\ns_lshl_b32 s6, s6, 16\ns_xor_b32 s6, s6, 0x10000\ns_lshl_b32 s7, s76, 12\ns_add_u32 s7, s7, s6\nv_add_u32 v5, s7, v{VL16}")
    a(f"s_lshl_b32 s7, s76, 13\ns_add_u32 s6, s6, s7\nv_add_u32 v3, s6, v{VL16}\ns_add_u32 s7, s7, {LDS_SP}\nv_add_u32 v2, s7, v{VL16}")
    a.stamp(19)
    a("s_barrier")
    for f in range(20):
        r, off = (2, f*1024) if f < 8 else (3, (f-8)*1024) if f < 16 else (5, 49152+(f-16)*1024)
        a(f"ds_read_b128 {v(WR+4*f,4)}, v{r} offset:{off}")
        if f % 8 == 7: a("s_waitcnt lgkmcnt(6)")
    a("s_waitcnt lgkmcnt(0)\ns_barrier")
    wo_load(a, 4)
    idx_poll(a, "b", "s_waitcnt vmcnt(13)")
    a("s_call_b64 s[80:81], L_oprep\ns_waitcnt vmcnt(5)")
    set_flag(a, "ctx")
    a("s_branch L_adone")
    a.label("L_oprep")
    wo_voffs(a, VWM, VWO4)
    out_consts(a)
    out_items(a)
    a("s_setpc_b64 s[80:81]")
    a.label("L_pre1")
    out_setup(a, 0)
    for j in range(5):
        if j == 4: idx_poll(a, "a", f"s_waitcnt vmcnt({10*j})")
        if j < 4:
            for i in (2*j, 2*j+1): wo_load(a, i)
        if j == 4:
            ctxf_addr(a, S_OB); a(f"buffer_load_dword v50, v3, {WS}, s72 offen sc1")
            a("s_call_b64 s[80:81], L_oprep")
        a(f"s_cmp_gt_i32 s{S_N}, s{S_NL}\ns_cbranch_scc1 L_e{j+2}")
        if j < 4:
            a(f"s_cmp_eq_i32 s{S_N}, s{S_NL}\ns_cbranch_scc1 L_lw{j}\ns_waitcnt vmcnt({(11, 10, 10, 10)[j]})")
            a.label(f"L_lw{j}")
        bar(f"vmcnt({20 if 'nocode2' in ABL else 21})")
        a.label(f"L_e{j+2}")
    a("s_waitcnt vmcnt(0)")
    a.stamp(22)
    moe_finish(a)
    a.stamp(23)
    a("v_cmp_ne_u32 vcc, 1, v50\ns_cbranch_vccz L_ce")
    ctxf_addr(a, S_OB)
    poll(a, f"buffer_load_dword v2, v3, {WS}, s72 offen sc1", "v_cmp_ne_u32 vcc, 1, v2", sleep=4)
    a.label("L_ce")
    a("s_setprio 0")
    a.stamp(19)
    a("s_barrier\ns_barrier")
    a.stamp(15)
    for r in range(2):
        for x in ctx_dma(r) + ctx_dma(r, 16384): a(x)
    a("s_waitcnt vmcnt(8)\ns_branch L_adone")
    moe_steps(a, bar)
    top8(a)
    for h in handlers:
        if h[0] == "ld":
            a.label(h[1] + "_c"); a(f"s_waitcnt vmcnt(0) lgkmcnt(0)\ns_call_b64 s[82:83], L_pend\ns_barrier\ns_call_b64 s[82:83], L_load\ns_branch {h[1]}")
        else:
            _, bk, k, loop, full = h
            a.label(bk + "_h")
            a(f"v_cmp_nge_f32 vcc, s72, v{ET+4}\ns_cbranch_vccz {bk}_n\ns_call_b64 s[80:81], L_rare{1-(k&1)}")
            if full:
                o = sm_ops(k & 1)[:2]
                a(o[0][0]); a(o[1][0]); a("s_nop 0")
                for x in o[1][1]: a(x)
            a.label(bk + "_n")
            if loop:
                a(f"s_cmp_lt_i32 s{S_C}, 0\ns_cbranch_scc1 L_tail{(k+1)&3}\ns_cmp_gt_i32 s{S_C}, 0\ns_cbranch_scc1 {bk}\ns_call_b64 s[82:83], L_mask")
            a(f"s_branch {bk}")
    a.label("L_load")
    a(f"s_bitcmp1_b32 s{S_HK}, 0\ns_cbranch_scc0 L_load_r")
    a(f"s_add_u32 s77, s77, 32768\ns_xor_b32 s78, s78, 0x10000\ns_add_i32 s73, s{S_N}, 1\ns_cmp_gt_i32 s73, s{S_NL}\ns_cbranch_scc1 L_load_r")
    if "at_nodma" not in ABL:
        a(f"s_cmp_eq_i32 s73, s{S_NL}\ns_cbranch_scc1 L_load_v\ns_cmp_lg_i32 s73, 3\ns_cbranch_scc1 L_load_k")
        kv_flag_wait(a, 2)
        a.label("L_load_k")
        st_dma(a, ["K", "V1"])
        a.label("L_load_v")
        st_dma(a, ["V0"])
    a(f"s_cmp_eq_i32 s73, s{S_NL}\ns_cbranch_scc1 L_xa")
    a(f"s_cmp_lt_u32 s{S_P}, 4\ns_cbranch_scc1 L_load_r\ns_sub_i32 s79, s73, 1\ns_cmp_lt_u32 s79, 2\ns_cbranch_scc1 L_x3")
    a.label("L_load_r")
    a("s_setpc_b64 s[82:83]")
    a.label("L_pend")
    a(f"s_bitcmp1_b32 s{S_HK}, 1\ns_cbranch_scc0 L_load_a\ns_cmp_lt_i32 s{S_N}, 0\ns_cbranch_scc1 L_load_a")
    set_flag(a, "kv", 2)
    a(f"s_and_b32 s{S_HK}, s{S_HK}, 1")
    a.label("L_load_a")
    a("s_setpc_b64 s[82:83]")
    def wo_dma(fs, m0base, m0off):
        for i, f in enumerate(fs):
            a(f"s_add_u32 m0, {m0base}, {m0off + i*1024}\ns_add_u32 s7, s74, {(f//5)*40960}\nbuffer_load_dwordx4 v{4 + f%5}, {WS}, s7 offen sc1 lds")
    a.label("L_xa")
    if "nocode2" not in ABL:
        a("s_getpc_b64 s[80:81]")
        a.label("L_pc2")
        a(f"s_sub_u32 s80, s80, L_pc2-L_fin\ns_subb_u32 s81, s81, 0\ns_and_b32 s6, s{S_H}, 1\ns_lshl_b32 s6, s6, 14\nv_lshl_add_u32 v3, v0, 6, s6")
        a(f"v_min_u32 v3, L_exit-L_fin, v3\nglobal_load_dword v{VDUM}, v3, s[80:81]")
    if "xt" in ABL:
        a.srd(SRD_A, P_X, 2048*640*2)
        a(f"v_lshrrev_b32 v2, 2, v{L}\nv_mul_u32_u24 v2, 1280, v2\nv_and_b32 v3, 3, v{L}\nv_lshl_add_u32 v2, v3, 6, v2")
        a(f"s_lshl_b32 s6, s{S_H}, 2\ns_add_u32 s6, s6, s{S_W}\ns_mul_i32 s73, s6, 20480\ns_mul_i32 s7, s{S_P}, 160\ns_andn2_b32 s7, s7, 63\ns_add_u32 s7, s7, s73")
        a(f"buffer_load_dword v{VDUM}, v2, {R(SRD_A)}, s7 offen\nv_min_u32 v2, 39, v{L}\nv_lshlrev_b32 v2, 6, v2\ns_mul_i32 s7, s{S_P}, 2560\ns_add_u32 s7, s7, s73")
        a(f"buffer_load_dword v{VDUM}, v2, {WS}, s7 offen sc1")
    wo_base(a, 74, 1)
    wo_voffs(a, 4)
    a(f"s_lshl_b32 s73, s{S_W}, 13\ns_add_u32 s75, s73, s78")
    wo_dma(range(8), "s73", LDS_SP); wo_dma(range(8, 16), "s75", 0)
    a(f"s_lshl_b32 s75, s{S_W}, 12\ns_add_u32 s75, s75, s78")
    wo_dma(range(16, 20), "s75", 49152)
    a("s_setpc_b64 s[82:83]")
    a.label("L_x3")
    if "nomoetouch" not in ABL:
        a.srd(SRD_A, P_WG, 640*1728*2)
        a(f"s_cmp_eq_u32 s{S_W}, 3\ns_cbranch_scc1 L_load_r")
        a(f"s_cmp_eq_u32 s{S_W}, 1\ns_cselect_b32 s{SRD_A}, s{P_WU}, s{SRD_A}\ns_cselect_b32 s{SRD_A+1}, s{P_WU+1}, s{SRD_A+1}")
        a(f"s_cmp_eq_u32 s{S_W}, 2\ns_cselect_b32 s{SRD_A}, s{P_WD}, s{SRD_A}\ns_cselect_b32 s{SRD_A+1}, s{P_WD+1}, s{SRD_A+1}")
        a(f"s_mov_b32 s73, 3456\ns_cmov_b32 s73, 256\ns_mov_b32 s75, 256\ns_cmov_b32 s75, {4*40960}")
        a(f"s_lshr_b32 s6, s2, 3\ns_sub_u32 s6, s6, 16\ns_mul_i32 s6, s6, 40\nv_lshrrev_b32 v2, 2, v{L}\nv_add_u32 v2, s6, v2\nv_mul_lo_u32 v2, v2, s73\nv_and_b32 v3, 3, v{L}\nv_lshl_add_u32 v2, v3, 6, v2")
        a(f"s_lshl_b32 s6, s79, 3\ns_lshr_b32 s7, s{S_H}, 2\ns_add_u32 s6, s6, s7\ns_mul_i32 s6, s6, s75")
        a(f"v_mov_b32 v3, {hex(WS_SIZE)}\nv_cmp_gt_u32 vcc, 32, v{L}\ns_lshl_b32 s73, s73, 4\ns_nop 0\nv_cndmask_b32 v3, v3, v2, vcc")
        a(f"buffer_load_dword v{VDUM}, v2, {R(SRD_A)}, s6 offen\ns_add_u32 s7, s6, s73\nbuffer_load_dword v{VDUM}, v2, {R(SRD_A)}, s7 offen")
        a(f"s_add_u32 s7, s7, s73\nbuffer_load_dword v{VDUM}, v3, {R(SRD_A)}, s7 offen")
    a("s_setpc_b64 s[82:83]")
    a.label("L_mask")
    a(f"v_and_b32 v2, 15, v{L}\nv_lshrrev_b32 v3, 4, v{L}\nv_lshlrev_b32 v3, 2, v3\nv_sub_u32 v2, v2, v3\nv_mov_b32 v3, 0xff800000")
    for r in range(4):
        a(f"v_cmp_gt_i32 vcc, {r}, v2\nv_mov_b32 v{NMreg(1,0)+r}, v3\ns_nop 0")
        a(f"v_cndmask_b32 v{NMreg(0,0)+r}, v{NMreg(0,0)+r}, v3, vcc\nv_cndmask_b32 v{NMreg(1,1)+r}, v{NMreg(1,1)+r}, v3, vcc")
    a("s_nop 1\ns_setpc_b64 s[82:83]")
    for par in range(2):
        a.label(f"L_rare{par}")
        a("s_nop 15")
        for qt in range(2):
            m = ET + 4
            s0, s1 = Sreg(par, 0, qt), Sreg(par, 1, qt)
            a(f"v_max3_f32 v{m}, 0, v{s0}, v{s0+1}\nv_max3_f32 v{m}, v{m}, v{s0+2}, v{s0+3}\nv_max3_f32 v{m}, v{m}, v{s1}, v{s1+1}\nv_max3_f32 v{m}, v{m}, v{s1+2}, v{s1+3}")
            xlane(a, "v_max_f32", m, ET)
            a(f"v_exp_f32 v{ET}, -v{m}")
            for kt in range(2):
                for r in range(4):
                    for reg in (Sreg(0,kt,qt), Sreg(1,kt,qt), NMreg(kt,qt)):
                        a(f"v_sub_f32 v{reg+r}, v{reg+r}, v{m}")
            a(f"v_mul_f32 v{L_+qt}, v{ET}, v{L_+qt}")
            for t in range(8):
                for r in range(4): a(f"v_mul_f32 v{Oreg(t,qt)+r}, v{ET}, v{Oreg(t,qt)+r}")
        for e, rest in sm_ops(par):
            a(e); a("s_nop 0")
            for x in rest: a(x)
        a("s_nop 1\ns_setpc_b64 s[80:81]")
    a.label("L_adone")
    a.stamp(13)

def top8(a):
    K = 64
    a.label("L_top")
    a(f"s_mov_b32 s6, {hex(WS_R)}\ns_mov_b32 s7, {hex(WS_R+4096)}")
    for i in range(8): a(f"buffer_load_dwordx4 {v(K+4*i,4)}, v{VL16}, {WS}, s{6+i//4} offen offset:{(i&3)*1024} sc1")
    a("s_waitcnt vmcnt(0)\nv_mov_b32 v24, 0\ns_mov_b32 s7, 0\ns_mov_b32 s84, 0")
    a.label("L_top_l")
    a(f"v_max3_u32 v4, v{K}, v{K+1}, v{K+2}\nv_max3_u32 v5, v{K+3}, v{K+4}, v{K+5}")
    for i in range(6, 30, 4): a(f"v_max3_u32 v4, v4, v{K+i}, v{K+i+1}\nv_max3_u32 v5, v5, v{K+i+2}, v{K+i+3}")
    a(f"v_max3_u32 v4, v4, v{K+30}, v{K+31}\nv_max_u32 v4, v4, v5")
    a.wave_reduce("v_max_u32", 4)
    a("v_readlane_b32 s6, v4, 63\ns_mov_b32 m0, s7\ns_nop 3\ns_add_u32 s84, s84, s6\nv_writelane_b32 v24, s84, m0")
    for i in range(32): a(f"v_subrev_u32 v{K+i}, s6, v{K+i}")
    a("s_add_u32 s7, s7, 1\ns_cmp_lt_u32 s7, 8\ns_cbranch_scc1 L_top_l")
    a(f"v_or_b32 v24, 0x80000000, v24\nv_lshlrev_b32 v5, 2, v{L}\nv_mov_b32 v6, {hex(WS_SIZE)}\nv_cmp_gt_u32 vcc, 8, v{L}\ns_mov_b32 s6, {hex(WS_IDX)}\ns_nop 0\nv_cndmask_b32 v5, v6, v5, vcc")
    a(f"buffer_store_dword v24, v5, {WS}, s6 offen sc1\ns_branch L_idle")

OACC = 176
M_WD, M_PART = 81920, 122880
VIDX = 51
def idx_addr(a):
    a(f"v_and_b32 v3, 7, v{L}\nv_lshlrev_b32 v3, 2, v3\ns_mov_b32 s72, {hex(WS_IDX)}")
def ctxf_addr(a, own):
    a(f"v_and_b32 v3, 1, v{L}\nv_lshlrev_b32 v3, 12, v3\nv_and_b32 v2, 2, v{L}\nv_lshl_add_u32 v3, v2, 8, v3")
    a(f"s_lshr_b32 s72, s{own}, 2\ns_lshl_b32 s72, s72, 6\ns_andn2_b32 s6, s{S_H}, 7\ns_add_u32 s72, s72, s6\ns_add_u32 s72, s72, s76\ns_lshl_b32 s72, s72, 7\ns_add_u32 s72, s72, {WS_CTXF}")
def idx_poll(a, sfx, wait="s_waitcnt vmcnt(40)"):
    a(wait)
    a(f"v_cmp_le_i32 vcc, 0, v{VIDX}\ns_cbranch_vccz L_idx_ok{sfx}")
    idx_addr(a)
    poll(a, f"buffer_load_dword v{VIDX}, v3, {WS}, s72 offen sc1", f"v_cmp_le_i32 vcc, 0, v{VIDX}")
    a.label(f"L_idx_ok{sfx}")

def moe_steps(a, bar):
    XS, FRG, GA, WDR, WD2, PR, YO = 64, 104, 24, 32, 240, 184, 216
    VG, VT, VD, VTD, VY, VXS = 16, 17, 18, 19, 20, 21
    S_G, S_WIN, S_D = 84, 85, 86
    a.label("L_moe")
    a(f"s_add_u32 s6, s{S_N}, s{S_P}\ns_cmp_lg_u32 s6, 5\ns_cbranch_scc1 L_idle")
    def srds():
        a.srd(SRD_A, P_WG, 640*1728*2)
        a(f"s_cmp_ge_u32 s{S_W}, 2\ns_cselect_b32 s{SRD_A}, s{P_WU}, s{SRD_A}\ns_cselect_b32 s{SRD_A+1}, s{P_WU+1}, s{SRD_A+1}")
        a.srd(SRD_B, P_WD, 1728*640*2)
    def dma_g(nk):
        for n in range(2*nk):
            a(f"s_add_u32 m0, s{S_WIN}, {n*1024}\ns_nop 0\nbuffer_load_dwordx4 v{VG}, {R(SRD_A)}, s{S_G} offen lds\ns_add_u32 s{S_G}, s{S_G}, {16*3456}")
    def dma_d():
        for n in range(4):
            a(f"s_add_u32 m0, s{S_WIN}, {4096+n*1024}\ns_add_u32 s6, s{S_D}, {n*8*1280}\nbuffer_load_dwordx4 v{VD}, {R(SRD_B)}, s6 offen lds")
        a(f"s_add_u32 s{S_D}, s{S_D}, 512")
    def rd_g(k0, nk):
        for k in range(nk):
            for ft in range(2):
                d = FRG + ((k0+k)*2+ft)*4
                a(f"ds_read_b64_tr_b16 {v(d,2)}, v{VT} offset:{k*2048+ft*32}\nds_read_b64_tr_b16 {v(d+2,2)}, v{VT} offset:{k*2048+ft*32+256}")
            if k == 1: a("s_waitcnt lgkmcnt(0)")
    def xs(k0, nk):
        for k in range(k0, k0+nk): a(f"buffer_load_dwordx4 {v(XS+4*k,4)}, v{VXS}, {WS}, 0 offen offset:{k*64} sc1")
    def rd_d(base):
        for m in range(4):
            a(f"ds_read_b64_tr_b16 {v(base+4*m,2)}, v{VTD} offset:{m*32}\nds_read_b64_tr_b16 {v(base+2+4*m,2)}, v{VTD} offset:{m*32+16*128}")
    def down(base, goff):
        for m in range(4): a.mfma(YO+4*m, base+4*m, GA, "0")
        a("s_nop 7")
        for m in range(4): a(f"buffer_store_dwordx4 {v(YO+4*m,4)}, v{VY}, {WS}, s87 offen offset:{goff*1024+m*64} sc1")
        a("s_nop 1")
    srds()
    a(f"v_lshrrev_b32 v3, 2, v{L}\nv_mul_u32_u24 v3, 3456, v3\nv_and_b32 v4, 3, v{L}\nv_lshl_add_u32 v{VG}, v4, 4, v3")
    a(f"v_lshrrev_b32 v3, 3, v{L}\nv_mul_u32_u24 v3, 1280, v3\nv_and_b32 v4, 7, v{L}\nv_lshl_add_u32 v{VD}, v4, 4, v3")
    a(f"s_and_b32 s7, s{S_W}, 1\ns_mul_i32 s{S_G}, s7, {320*3456}\ns_lshl_b32 s6, s{S_E}, 6\ns_add_u32 s{S_G}, s{S_G}, s6")
    a(f"s_lshl_b32 s{S_WIN}, s{S_W}, 13\ns_add_u32 s{S_WIN}, s{S_WIN}, {LDS_SP}")
    a(f"s_mul_i32 s{S_D}, s{S_E}, 40960\ns_lshl_b32 s6, s{S_W}, 7\ns_add_u32 s{S_D}, s{S_D}, s6")
    dma_g(4)
    idx_addr(a); a(f"buffer_load_dword v{VIDX}, v3, {WS}, s72 offen sc1")
    a(f"v_lshrrev_b32 v7, 4, v{L}\nv_and_b32 v2, 15, v{L}\nv_lshrrev_b32 v3, 2, v2\nv_lshl_add_u32 v8, v7, 3, v3\nv_lshlrev_b32 v8, 6, v8\nv_and_b32 v4, 3, v2\nv_lshl_add_u32 v8, v4, 3, v8\nv_add_u32 v{VT}, s{S_WIN}, v8")
    a(f"v_lshl_add_u32 v8, v7, 2, v3\nv_lshlrev_b32 v8, 7, v8\nv_lshl_add_u32 v8, v4, 3, v8\ns_add_u32 s6, s{S_WIN}, 4096\nv_add_u32 v{VTD}, s6, v8")
    a(f"v_mul_u32_u24 v3, 2560, v2\nv_lshl_add_u32 v3, v7, 4, v3\nv_mov_b32 v4, {hex(WS_SIZE)}\nv_cmp_gt_u32 vcc, 8, v2")
    a(f"s_mul_i32 s87, s{S_E}, 20480\ns_lshl_b32 s7, s{S_W}, 8\ns_add_u32 s87, s87, s7\ns_add_u32 s87, s87, {WS_YP}\nv_cndmask_b32 v{VY}, v4, v3, vcc")
    bar()
    rd_g(0, 4)
    idx_poll(a, "m", "")
    a("s_waitcnt lgkmcnt(0)"); dma_g(4)
    a(f"v_and_b32 v4, 0x7ff, v{VIDX}\nv_sub_u32 v4, 0x7ff, v4\nv_mul_u32_u24 v4, 1280, v4\nv_lshrrev_b32 v7, 4, v{L}\nv_lshl_add_u32 v4, v7, 4, v4")
    a(f"s_and_b32 s7, s{S_W}, 1\ns_mul_i32 s6, s7, 640\ns_add_u32 s6, s6, {WS_XNR}\nv_add_u32 v4, s6, v4\nv_mov_b32 v5, {hex(WS_SIZE)}\nv_and_b32 v2, 8, v{L}\nv_cmp_eq_u32 vcc, 0, v2\ns_nop 1\nv_cndmask_b32 v{VXS}, v5, v4, vcc")
    xs(0, 5)
    bar("vmcnt(5) lgkmcnt(0)")
    rd_g(4, 4); a("s_waitcnt lgkmcnt(0)"); dma_g(2); dma_d(); xs(5, 5)
    bar()
    rd_g(8, 2); rd_d(WDR); a("s_waitcnt lgkmcnt(0)"); dma_d()
    for k in range(10):
        for ft in range(2): a.mfma(GA+4*ft, FRG+(k*2+ft)*4, XS+4*k, "0" if k == 0 else None)
    a(f"v_add_u32 v10, s{S_WIN}, v{VL16}\ns_nop 7\nds_write_b128 v10, {v(GA,4)}\nds_write_b128 v10, {v(GA+4,4)} offset:1024")
    bar()
    a(f"v_add_u32 v10, {LDS_SP}, v{VL16}")
    for w in range(4):
        for ft in range(2): a(f"ds_read_b128 {v(PR+(w*2+ft)*4,4)}, v10 offset:{w*8192+ft*1024}")
    a("s_waitcnt lgkmcnt(0)")
    rd_d(WD2)
    a(f"s_waitcnt lgkmcnt(0)\ns_cmp_ge_u32 s{S_W}, 2\ns_cbranch_scc1 L_moe4b")
    dma_d()
    a.label("L_moe4b")
    a("s_mov_b32 s6, 0xbfb8aa3b")
    for i in range(8):
        g0, u0 = PR + i, PR + 16 + i
        a(f"v_add_f32 v{g0}, v{g0}, v{g0+8}\nv_add_f32 v{u0}, v{u0}, v{u0+8}")
        bf16_round(a, g0); bf16_round(a, u0)
        a(f"v_mul_f32 v2, s6, v{g0}\nv_exp_f32 v2, v2\ns_nop 0\nv_add_f32 v2, 1.0, v2\nv_rcp_f32 v2, v2\ns_nop 0\nv_mul_f32 v{g0}, v{g0}, v2")
        bf16_round(a, g0)
        a(f"v_mul_f32 v{g0}, v{g0}, v{u0}")
    for i in range(4): a(f"v_cvt_pk_bf16_f32 v{GA+i}, v{PR+2*i}, v{PR+1+2*i}")
    a("s_nop 1")
    down(WDR, 0)
    bar("vmcnt(4) lgkmcnt(0)")
    down(WD2, 1)
    a(f"s_cmp_ge_u32 s{S_W}, 2\ns_cbranch_scc1 L_moe5b")
    rd_d(WDR); a("s_waitcnt lgkmcnt(0)"); down(WDR, 2)
    a.label("L_moe5b")
    bar("vmcnt(4) lgkmcnt(0)", lambda: (a("s_waitcnt vmcnt(0)"), set_flag(a, "moe")))
    a("s_branch L_idle")

def moe_finish(a):
    YS = [16+4*i for i in range(8)] + [56+4*i for i in range(10)]
    Y, XR = YS[0], 54
    a(f"s_lshr_b32 s6, s{S_P}, 1\ns_lshl_b32 s7, s{S_W}, 4\ns_add_u32 s6, s6, s7\ns_cmp_lg_u32 s6, 2\ns_cbranch_scc1 L_yd")
    a(f"s_and_b32 s6, s{S_P}, 1\ns_xor_b32 s6, s6, 1\ns_lshl_b32 s6, s6, 2\ns_lshr_b32 s87, s{S_H}, 3\ns_add_u32 s87, s87, s6\ns_and_b32 s88, s{S_H}, 7")
    a(f"s_mov_b32 m0, s87\ns_nop 3\nv_readlane_b32 s85, v{VIDX}, m0\ns_nop 3\ns_and_b32 s86, s85, 0x7ff\ns_sub_u32 s86, 0x7ff, s86")
    a(f"v_min_u32 v3, 53, v{L}\nv_lshlrev_b32 v3, 5, v3\ns_mov_b32 s72, {hex(WS_MOEF)}")
    poll(a, f"buffer_load_dwordx4 {v(Y,4)}, v3, {WS}, s72 offen sc1",
         "\n".join([f"v_and_b32 v{Y}, v{Y}, v{Y+r}" for r in (1, 2, 3)]) + f"\nv_cmp_ne_u32 vcc, 1, v{Y}", sleep=16)
    a(f"v_mul_u32_u24 v2, 13, v{L}\nv_lshrrev_b32 v2, 8, v2\nv_mul_u32_u24 v3, 20, v2\nv_sub_u32 v4, v{L}, v3")
    a(f"s_mov_b32 s6, {18*20480}\nv_mul_lo_u32 v2, v2, s6\nv_lshl_add_u32 v2, v4, 4, v2")
    a(f"v_cmp_lt_u32 vcc, 59, v{L}\nv_mov_b32 v3, {hex(WS_SIZE)}\ns_nop 0\nv_cndmask_b32 v2, v2, v3, vcc")
    a(f"s_mul_i32 s6, s87, 2560\ns_mul_i32 s7, s88, 320\ns_add_u32 s6, s6, s7\ns_add_u32 s6, s6, {WS_YP}")
    for e in range(18):
        a(f"buffer_load_dwordx4 {v(YS[e],4)}, v2, {WS}, s6 offen sc1\ns_add_u32 s6, s6, 20480")
    a(f"s_lshr_b32 s6, s86, 4\ns_mul_i32 s6, s6, 20480\ns_and_b32 s7, s86, 15\ns_lshl_b32 s7, s7, 4\ns_add_u32 s6, s6, s7\ns_mul_i32 s7, s88, 2560\ns_add_u32 s6, s6, s7")
    a(f"v_lshrrev_b32 v5, 1, v4\nv_lshlrev_b32 v5, 8, v5\nv_and_b32 v6, 1, v4\nv_lshl_add_u32 v5, v6, 3, v5\nbuffer_load_dwordx2 {v(XR,2)}, v5, {WS}, s6 offen sc1")
    a("s_bfe_u32 s6, s85, 0x10000b\ns_xor_b32 s7, s6, 0xffff\ns_bitcmp1_b32 s6, 15\ns_bitset0_b32 s6, 15\ns_cselect_b32 s6, s6, s7\ns_lshl_b32 s6, s6, 16\nv_mov_b32 v5, s6")
    a("v_mul_f32 v5, 0xbfb8aa3b, v5\nv_exp_f32 v5, v5\ns_nop 0\nv_add_f32 v5, 1.0, v5\nv_rcp_f32 v5, v5\ns_nop 0")
    bf16_round(a, 5)
    a(f"v_lshlrev_b32 v6, 2, v{L}\ns_waitcnt vmcnt(0)")
    for e in range(1, 18):
        a(f"v_pk_add_f32 {v(Y,2)}, {v(Y,2)}, {v(YS[e],2)}\nv_pk_add_f32 {v(Y+2,2)}, {v(Y+2,2)}, {v(YS[e]+2,2)}")
    for k in range(2):
        for r in range(4): a(f"ds_bpermute_b32 v{Y+4+4*k+r}, v6, v{Y+r} offset:{80*(k+1)}")
    a("s_waitcnt lgkmcnt(0)")
    for r in range(4):
        y = Y + r
        a(f"v_add_f32 v{y}, v{y}, v{y+4}\nv_add_f32 v{y}, v{y}, v{y+8}")
        bf16_round(a, y)
        a(f"v_mul_f32 v{y}, v{y}, v5")
        bf16_round(a, y)
        xn = XR + (r >> 1)
        a(f"v_and_b32 v7, 0xffff0000, v{xn}" if r & 1 else f"v_lshlrev_b32 v7, 16, v{xn}")
        a(f"v_add_f32 v{y}, v{y}, v7")
    a(f"v_cvt_pk_bf16_f32 v{Y+4}, v{Y}, v{Y+1}\nv_cvt_pk_bf16_f32 v{Y+5}, v{Y+2}, v{Y+3}")
    a(f"v_lshlrev_b32 v2, 3, v{L}\nv_cmp_lt_u32 vcc, 19, v{L}\ns_mul_i32 s6, s87, 1280\ns_mul_i32 s7, s88, 160\nv_cndmask_b32 v2, v2, v3, vcc\ns_add_u32 s6, s6, s7\ns_add_u32 s6, s6, {WS_BSEL}")
    a(f"buffer_store_dwordx2 {v(Y+4,2)}, v2, {WS}, s6 offen sc1")
    a("s_call_b64 s[80:81], L_oprep\ns_waitcnt vmcnt(0)")
    set_flag(a, "b")
    a.label("L_yd")

WR, OA, CR, RT = 96, 56, 16, 32
S_OW, S_OB, S_CX, S_OL = 69, 68, 66, 61
VWO4 = 52
LDS_P, LDS_F = 98304, 65536
def wo_base(a, d, nh):
    a(f"s_lshr_b32 s{d}, s{S_H}, 3\ns_lshl_b32 s{d}, s{d}, 2\ns_add_u32 s{d}, s{d}, s76\ns_mul_i32 s{d}, s{d}, {8*40960}\ns_and_b32 s7, s{S_H}, 3\ns_mul_i32 s7, s7, 10240\ns_add_u32 s{d}, s{d}, s7\ns_add_u32 s{d}, s{d}, {WS_WOF + nh*5120}")

XNA = 48
S_TOK = 64
VWM = 44
def wo_voffs(a, r0, r4=None):
    for m in range(4): a(f"s_add_u32 s6, s76, {m}\ns_and_b32 s6, s6, 3\ns_lshl_b32 s6, s6, 10\nv_add_u32 v{r0+m}, s6, v{VL16}")
    a(f"v_add_u32 v{r0+4 if r4 is None else r4}, 4096, v{VL16}")
def wm(m): return VWM + m if m < 4 else VWO4
def wo_load(a, i):
    a(f"s_add_u32 s75, s{S_OW}, {i*40960}")
    for m in range(5): a(f"buffer_load_dwordx4 {v(WR+4*(5*i+m),4)}, v{wm(m)}, {WS}, s75 offen sc1")

def out_setup(a, nh):
    if nh == 0:
        idx_addr(a); a(f"buffer_load_dword v{VIDX}, v3, {WS}, s72 offen sc1")
    wo_voffs(a, VWM, VWO4)
    wo_base(a, S_OW, nh)
    a(f"s_and_b32 s6, s{S_H}, 4\ns_lshr_b32 s7, s{S_H}, 3\ns_add_u32 s6, s6, s7\ns_lshl_b32 s7, s{S_P}, 3\ns_add_u32 s{S_OB}, s6, s7\ns_sub_u32 s7, 120, s7\ns_add_u32 s{S_OL}, s6, s7")

VCA, VT, VPR = 4, 5, 6
S_RED = 71
S_PB, S_XS = 67, 96
def out_consts(a):
    a(f"s_lshr_b32 s6, s{S_W}, 2\ns_lshl_b32 s6, s6, 1\ns_sub_u32 s{S_RED}, s76, s6\ns_and_b32 s{S_RED}, s{S_RED}, 3")
    a(f"s_lshr_b32 s6, s{S_H}, 3\ns_lshl_b32 s6, s6, 15\ns_lshl_b32 s99, s{S_W}, 12\ns_add_u32 s{S_CX}, s6, s99\ns_add_u32 s{S_CX}, s{S_CX}, {WS_CTX}")
    a(f"s_lshl_b32 s6, s76, 13\nv_add_u32 v{VCA}, s6, v{VL16}\nv_add_u32 v7, 65536, v{VCA}")
    a(f"s_lshr_b32 s6, s{S_W}, 2\ns_mul_i32 s{S_PB}, s6, 15360\ns_add_u32 s{S_PB}, s{S_PB}, {LDS_P}\nv_add_u32 v{VPR}, s{S_PB}, v{VWM}")
    for k in range(3):
        xslot(a, k, S_XS+k)
        a(f"s_mul_i32 s{S_XS+k}, s{S_XS+k}, 20480\ns_lshr_b32 s6, s{S_W}, 2\ns_mul_i32 s6, s6, 5120\ns_add_u32 s{S_XS+k}, s{S_XS+k}, s6\ns_add_u32 s{S_XS+k}, s{S_XS+k}, {WS_XP}")

def ctx_dma(r, extra=0):
    own, d = (S_OL if r in (3, 4, 5, 7) else S_OB), (1 + r % 3 if r < 6 else 0)
    o = [f"s_add_u32 s65, s{own}, {d}\ns_and_b32 s65, s65, 3\ns_andn2_b32 s7, s{own}, 3\ns_add_u32 s65, s65, s7\ns_lshl_b32 s65, s65, 17\ns_add_u32 s65, s65, s{S_CX}\ns_add_u32 m0, s99, {(r%3)*32768+extra}\ns_add_u32 s65, s65, {extra}"]
    return o + [f"buffer_load_dwordx4 v{VL16}, {WS}, s65 offen offset:{i*1024} sc1 lds" for i in range(4)]

def phase_out(a):
    def rdc(r, i):
        reg, off = (VCA, (r%3)*32768) if r % 3 < 2 else (7, 0)
        a(f"ds_read_b128 {v(CR+4*(i&3),4)}, v{reg} offset:{off+i*1024}"); a.lg.issue(("C", i & 3))
    def xflag(vals):
        a(f"v_mov_b32 v3, {hex(WS_SIZE)}")
        for slot, val in enumerate(vals):
            if val:
                xf_addr(a, slot, 6)
                a(f"v_writelane_b32 v3, s6, {slot}\nv_writelane_b32 v2, {val}, {slot}")
        a(f"buffer_store_dword v2, v3, {WS}, 0 offen sc1")
    def xlook_addr():
        a(f"v_bfe_u32 v2, v{L}, 3, 2\nv_min_u32 v2, 2, v2\nv_and_b32 v3, 7, v{L}\nv_lshlrev_b32 v3, 2, v3\nv_lshl_add_u32 v3, v2, 7, v3")
    a("s_barrier")
    a.lg.drain()
    for i in range(4): rdc(0, i)
    IT = [(WR, WR+4), (WR+8, WR+12)]
    XI, LP, OUTR = WR+16, WR+64, WR+128
    def emit(x):
        if "o_now" in ABL and not isinstance(x, str) and x[0] == "W": return
        if "o_noadd" in ABL and isinstance(x, str) and x.startswith("v_add_f32"): return
        if "o_nodma" in ABL and isinstance(x, str) and x.endswith("lds"): return
        if "o_nost" in ABL and isinstance(x, str) and "buffer_store" in x: return
        if isinstance(x, str): a(x)
        elif x[0] == "wait": a.wait_lg(x[1])
        else:
            a(x[1]); a.lg.issue(x[0])
    def xin_addr():
        tile_id(a, 72)
        a(f"s_lshl_b32 s72, s72, 2\ns_lshr_b32 s7, s{S_H}, 3\ns_add_u32 s72, s72, s7\ns_mul_i32 s75, s72, 61440\ns_add_u32 s75, s75, {WS_XP}\ns_mul_i32 s72, s72, 384\ns_add_u32 s72, s72, {WS_XF}")
    def xin_load(slots):
        sk = a.newlabel("xi")
        for n in range(2):
            if n == 1: a(f"s_cmp_ge_u32 s{S_W}, 2\ns_cbranch_scc1 {sk}")
            for s_ in slots:
                a(f"s_add_u32 s6, s75, {s_*20480}")
                for hf in range(2): a(f"buffer_load_dwordx4 {v(XI+24*n+8*s_+4*hf,4)}, v{8+n}, {WS}, s6 offen offset:{hf*256} sc1")
        a.label(sk)
    for r in range(8):
        if "stampout" in ABL: a.stamp(44 + r)
        A = OA + 20*(r & 1); Ap = OA + 20*((r-1) & 1)
        po = ((r-1) & 1)*30720
        red = 1 <= r <= 6
        ib = 3 if r == 6 else 5
        for i in range(8):
            if r == 0 and i >= 4: a(f"s_waitcnt vmcnt({(20, 14, 9, 4)[i-4]})")
            a.wait_lg(("C", i & 3))
            fill = [[] for _ in range(5)]
            post = []
            if i == 0 and red:
                fill[1].append(f"s_sub_u32 s6, s{S_RED}, {r}\ns_and_b32 s6, s6, 3\ns_mul_i32 s7, s6, 5120")
                fill[2].append(f"s_add_u32 s7, s7, s{S_PB}\ns_cmp_eq_u32 s6, 3\ns_cselect_b32 s7, {159744-4096-po}, s7")
                fill[3].append(f"v_add_u32 v12, s7, v{VWO4}")
                fill[4].append(f"v_add_u32 v{VT}, s{S_PB}, v{wm(1)}")
            if red:
                pos = ((1, 0), (1, 3), (2, 1), (2, 4)) if r == 6 else ((1, 0), (2, 0), (3, 0), (4, 0))
                for m in range(1, 5):
                    if pos[m-1][0] == i:
                        g = pos[m-1][1]
                        if m < 4:
                            fill[g].append(("W", f"ds_write_b128 v{VT}, {v(Ap+4*m,4)} offset:{po+(m-1)*5120}"))
                            fill[g].append(f"v_add_u32 v{VT}, s{S_PB}, v{wm(m+1)}")
                        else: fill[g].append(("W", f"ds_write_b128 v12, {v(Ap+16,4)} offset:{po}"))
            if i == 0 and r == 7:
                fill[3].append(f"s_mul_i32 s73, s{S_W}, 5120\ns_add_u32 s73, s73, {LDS_F}")
                fill[4].append(f"v_add_u32 v{VT}, s73, v{wm(0)}")
            if 1 <= i <= 5 and r == 7:
                fill[0].append(("W", f"ds_write_b128 v{VT}, {v(Ap+4*(i-1),4)}"))
                if i < 5: fill[0].append(f"v_add_u32 v{VT}, s73, v{wm(i)}")
            st_ = lambda reg, vo: (f"buffer_store_dwordx4 {v(reg,4)}, v{vo}, {WS}, s6 offen sc1" if "noxst" not in ABL else f"buffer_load_dword v{VDUM}, v{VWM}, {WS}, 0 offen")
            if i == ib + 1 and red:
                fill[1].append(("wait", ("P", 2)))
                for k in range(3):
                    for q in range(4): fill[2+k].append(f"v_add_f32 v{Ap+q}, v{Ap+q}, v{RT+4*k+q}")
                for k in range(3): post.append((("P", k), f"ds_read_b128 {v(RT+4*k,4)}, v{VT} offset:{po+k*5120}"))
            if i == ib + 2 and red:
                fill[0].append(f"s_add_u32 s6, s{S_XS+(r-1)%3}, {((r-1)//3)*10240}")
                fill[1].append(("wait", ("P", 2)))
                for k in range(3):
                    for q in range(4): fill[2+k].append(f"v_add_f32 v{Ap+16+q}, v{Ap+16+q}, v{RT+4*k+q}")
                sk = a.newlabel("nost")
                post.append(st_(Ap, VWM))
                post.append(f"s_cmp_lg_u32 s{S_RED}, {(r-1)&3}\ns_cbranch_scc1 {sk}\n" + st_(Ap+16, VWO4) + f"\n{sk}:\ns_nop 0")
            if (i == 6 and 0 < r < 5) or (i == 3 and r == 0):
                d = ctx_dma(r+3 if i == 6 else 2)
                fill[0].append(d[0]); fill[0].append(d[1]); fill[1].insert(0, d[2])
            if i == 3 and r == 0:
                fill[2].append(d[3]); fill[3].append(d[4])
            if i == 7 and 0 < r < 5:
                fill[0].insert(0, d[3]); fill[1].insert(0, d[4])
            for m in range(5):
                a.mfma(A+4*m, WR+4*(5*i+m), CR+4*(i&3), "0" if i == 0 else None)
                for x in fill[m]: emit(x)
            for x in post: emit(x)
            if i < 4: rdc(r, i+4)
            elif r < 7 and i > 5: rdc(r+1, i-4)
            if r == 0 and i < 3:
                sk = a.newlabel("nowl")
                a(f"s_cmp_lt_u32 s{S_W}, 4\ns_cbranch_scc1 {sk}")
                wo_load(a, 5+i)
                a.label(sk)
            if i == 2 and r == 7:
                a("s_waitcnt vmcnt(0)")
                xflag((0, 2, 2))
            if i == 2 and r == 1:
                a(f"s_cmp_ge_u32 s{S_W}, 4\ns_cbranch_scc1 L_o1a")
                ctxf_addr(a, S_OL); a(f"buffer_load_dword v50, v3, {WS}, s72 offen sc1")
                a.label("L_o1a")
            if i == ib and i != 5:
                a("s_waitcnt vmcnt(1)")
                xflag((2, 1, 1))
                a("s_waitcnt lgkmcnt(0)\ns_barrier"); a.lg.drain()
            if i == 5:
                if r == 0:
                    a(f"s_cmp_ge_u32 s{S_W}, 4\ns_cbranch_scc1 L_o0\ns_waitcnt vmcnt(4)")
                    a.label("L_o0")
                elif r == 1:
                    a(f"s_waitcnt vmcnt(0)\ns_cmp_ge_u32 s{S_W}, 4\ns_cbranch_scc1 L_o1\nv_cmp_ne_u32 vcc, 1, v50\ns_cbranch_vccz L_o1")
                    poll(a, f"buffer_load_dword v2, v3, {WS}, s72 offen sc1", "v_cmp_ne_u32 vcc, 1, v2", sleep=1)
                    a.label("L_o1")
                elif r < 6: a(f"s_waitcnt vmcnt({(4, 4, 5, 5, 5, 5)[r]})")
                if r < 7:
                    a("s_waitcnt lgkmcnt(0)\ns_barrier"); a.lg.drain()
            if i == 3 and r == 7:
                a(f"s_cmp_eq_u32 s{S_TOK}, 0\ns_cbranch_scc1 L_nb")
                a(f"v_bfe_u32 v2, v{L}, 1, 3\nv_and_b32 v3, 1, v{L}\nv_lshl_add_u32 v3, v2, 3, v3\nv_lshlrev_b32 v3, 7, v3\ns_and_b32 s6, s{S_H}, 3\ns_lshl_b32 s6, s6, 8\ns_add_u32 s6, s6, {WS_BF+128*128}")
                poll(a, f"buffer_load_dword v2, v3, {WS}, s6 offen sc1", "v_cmp_ne_u32 vcc, 1, v2")
                a.label("L_nb")
                sk = a.newlabel("itskip")
                for n in range(2):
                    if n == 1: a(f"s_cmp_ge_u32 s{S_W}, 2\ns_cbranch_scc1 {sk}")
                    a(f"buffer_load_dwordx4 {v(IT[n][0],4)}, v{53+n}, {R(SRD_A)}, s70 offen\nbuffer_load_dwordx4 {v(IT[n][1],4)}, v{XNA+n}, {WS}, 0 offen sc1")
                a.label(sk)
            if i == 5 and r == 7:
                xin_addr(); xlook_addr()
                a(f"s_bitcmp1_b32 13, s{S_W}\ns_cselect_b32 s77, 1, 2\nbuffer_load_dword v50, v3, {WS}, s72 offen sc1")
            if i == ib and red:
                for k in range(3):
                    a(f"ds_read_b128 {v(RT+4*k,4)}, v{VPR} offset:{po+k*5120}"); a.lg.issue(("P", k))
            if i == 5 and r < 7:
                rdc(r+1, 0); rdc(r+1, 1)
            if i == 5 and r == 1:
                for x in ctx_dma(3): a(x)
    a.stamp(16)
    a("s_nop 7")
    for m in range(5): a(f"v_add_u32 v{VT}, s73, v{wm(m)}\nds_write_b128 v{VT}, {v(OA+20+4*m,4)} offset:40960")
    a("s_waitcnt vmcnt(0)\nv_cmp_gt_u32 s[78:79], s77, v50\ns_nop 3\ns_cmp_lg_u64 s[78:79], 0\ns_cbranch_scc1 L_x2a")
    xin_load((0, 1, 2))
    a.label("L_x2a")
    a("s_waitcnt lgkmcnt(0)\ns_barrier")
    for n in range(2):
        for k in range(4):
            for hf in range(2): a(f"ds_read_b128 {v(LP+32*n+8*k+4*hf,4)}, v{(10,55)[n]} offset:{k*5120+hf*256}")
    a("s_cmp_eq_u64 s[78:79], 0\ns_cbranch_scc1 L_x2b")
    poll(a, f"buffer_load_dword v2, v3, {WS}, s72 offen sc1", "v_cmp_gt_u32 vcc, s77, v2", sleep=1)
    xin_load((0, 1, 2))
    a.label("L_x2b")
    a.srd(SRD_B, P_OUT, 2048*640*2)
    a.stamp(17)
    for n in range(2):
        if n == 1: a(f"s_cmp_ge_u32 s{S_W}, 2\ns_cbranch_scc1 L_end")
        S = LP + 32*n
        a(f"s_waitcnt lgkmcnt({8 if n == 0 else 0})")
        for k in range(1, 4):
            for q in range(0, 8, 2): a(f"v_pk_add_f32 {v(S+q,2)}, {v(S+q,2)}, {v(S+8*k+q,2)}")
        a("s_waitcnt vmcnt(0)" if n == 0 else "s_nop 0")
        for k in range(3):
            for q in range(0, 8, 2): a(f"v_pk_add_f32 {v(S+q,2)}, {v(S+q,2)}, {v(XI+24*n+8*k+q,2)}")
        for q in range(4):
            x0, x1 = S+2*q, S+2*q+1
            a(f"v_cvt_pk_bf16_f32 v2, v{x0}, v{x1}\nv_lshlrev_b32 v{x0}, 16, v2\nv_and_b32 v{x1}, 0xffff0000, v2")
            a(f"v_lshlrev_b32 v2, 16, v{IT[n][0]+q}\nv_and_b32 v3, 0xffff0000, v{IT[n][0]+q}\nv_pk_add_f32 {v(x0,2)}, {v(x0,2)}, v[2:3]")
            a(f"v_cvt_pk_bf16_f32 v2, v{x0}, v{x1}\nv_lshlrev_b32 v{x0}, 16, v2\nv_and_b32 v{x1}, 0xffff0000, v2")
            a(f"v_lshlrev_b32 v2, 16, v{IT[n][1]+q}\nv_and_b32 v3, 0xffff0000, v{IT[n][1]+q}\nv_pk_add_f32 {v(x0,2)}, {v(x0,2)}, v[2:3]")
            a(f"v_cvt_pk_bf16_f32 v{OUTR+4*n+q}, v{x0}, v{x1}")
        a(f"buffer_store_dwordx4 {v(OUTR+4*n,4)}, v{53+n}, {R(SRD_B)}, s70 offen")

def out_items(a):
    a.srd(SRD_A, P_X, 2048*640*2)
    a(f"s_and_b32 s75, s{S_H}, 3\ns_mul_i32 s70, s75, 320\ns_add_u32 s73, s70, {WS_BSEL}")
    a(f"s_mul_i32 s72, s75, 5120")
    a(f"v_lshrrev_b32 v2, 4, v{L}\nv_and_b32 v3, 15, v{L}\nv_mul_u32_u24 v54, 1280, v3\nv_lshl_add_u32 v54, v2, 4, v54\nv_lshlrev_b32 v3, 4, v3\nv_lshl_add_u32 v9, v2, 9, v3")
    a(f"s_lshr_b32 s100, s{S_W}, 2\ns_cselect_b32 s6, s{S_OL}, s{S_OB}\ns_mul_i32 s6, s6, 20480\ns_lshl_b32 s7, s76, 6\ns_add_u32 s7, s7, s6\nv_add_u32 v53, s7, v54")
    a(f"s_lshl_b32 s7, s76, 10\ns_add_u32 s7, s7, s6\ns_add_u32 s7, s7, s72\nv_add_u32 v{XNA}, s7, v{VL16}")
    a(f"s_mul_i32 s6, s100, 10240\ns_lshl_b32 s7, s76, 11\ns_add_u32 s6, s6, s7\nv_add_u32 v8, s6, v9")
    a(f"s_mul_i32 s6, s100, 30720\ns_add_u32 s6, s6, {LDS_F}\nv_add_u32 v10, s6, v8\ns_lshl_b32 s7, s76, 2\nv_add_u32 v2, s7, v2\nv_cmp_lt_u32 vcc, 9, v2\nv_add_u32 v3, 15360, v10\ns_nop 0\nv_cndmask_b32 v10, v10, v3, vcc")
    a(f"s_and_b32 s100, s{S_W}, 1\ns_cselect_b32 s6, s{S_OL}, s{S_OB}\ns_mul_i32 s6, s6, 20480\ns_add_u32 s7, s6, 256\nv_add_u32 v54, s7, v54\ns_add_u32 s7, s6, s72\ns_add_u32 s7, s7, 4096\nv_add_u32 v{XNA+1}, s7, v{VL16}")
    a(f"s_mul_i32 s6, s100, 10240\ns_add_u32 s6, s6, 8192\nv_add_u32 v9, s6, v9\ns_mul_i32 s6, s100, 30720\ns_add_u32 s6, s6, {LDS_F+15360}\nv_add_u32 v55, s6, v9")
    sk = a.newlabel("notok")
    a(f"s_mov_b32 s{S_TOK}, 0")
    a(f"v_and_b32 v2, 0x7ff, v{VIDX}\nv_sub_u32 v2, 0x7ff, v2\nv_lshrrev_b32 v3, 4, v2\nv_cmp_eq_u32 vcc, s{S_OB}, v3\nv_cmp_eq_u32 s[74:75], s{S_OL}, v3\ns_nop 3\ns_or_b64 vcc, vcc, s[74:75]\ns_cbranch_scc0 {sk}")
    for tk in range(8): a(f"v_readlane_b32 s{(84,85,86,87,88,90,91,101)[tk]}, v2, {tk}")
    for n in range(2):
        a(f"s_lshl_b32 s7, s76, 6\ns_lshr_b32 s100, s{S_W}, 2" if n == 0 else f"s_movk_i32 s7, 256\ns_and_b32 s100, s{S_W}, 1")
        a(f"s_cselect_b32 s6, s{S_OL}, s{S_OB}\ns_lshl_b32 s6, s6, 4\nv_and_b32 v2, 15, v{L}\nv_add_u32 v2, s6, v2")
        a(f"s_add_u32 s7, s7, s73\nv_and_b32 v3, 48, v{L}\nv_add_u32 v3, s7, v3")
        for tk in range(8):
            a(f"v_cmp_eq_u32 vcc, s{(84,85,86,87,88,90,91,101)[tk]}, v2\ns_nop 1\nv_cndmask_b32 v{XNA+n}, v{XNA+n}, v3, vcc")
            if tk < 7: a(f"v_add_u32 v3, 1280, v3")
    a(f"s_mov_b32 s{S_TOK}, 1")
    a.label(sk)

def gen(a):
    phase_start(a)
    phase_kv(a)
    phase_q(a)
    phase_attn(a)
    phase_out(a)
    a.label("L_end")
    a.stamp(18)
    if a.prof: a("s_waitcnt vmcnt(0)")
    if a.prof and os.environ.get("STRETCH"):
        s0, s1 = os.environ["STRETCH"].split(",")
        a(f"v_readlane_b32 s6, v15, {s0}\nv_readlane_b32 s7, v15, {s1}\nv_readlane_b32 s72, v15, 18\ns_nop 3\ns_sub_u32 s6, s7, s6\ns_min_u32 s6, s6, 20000")
        a.label("L_str")
        a("s_memrealtime s[94:95]\ns_waitcnt lgkmcnt(0)\ns_sub_u32 s7, s94, s72\ns_cmp_lt_u32 s7, s6\ns_cbranch_scc1 L_str")
    if a.prof and os.environ.get("DBGWG"):
        a(f"s_mov_b64 exec, -1\ns_cmp_lg_u32 s2, {os.environ['DBGWG']}\ns_cbranch_scc1 L_nodbg\ns_cmp_lg_u32 s{S_W}, 0\ns_cbranch_scc1 L_nodbg")
        a.srd(SRD_E, P_DBG, 64)
        a(f"v_readlane_b32 s6, v15, 0\ns_nop 3\nv_subrev_u32 v2, s6, v15\nv_subrev_u32 v3, 3, v{L}\nv_lshlrev_b32 v3, 2, v3\nv_cmp_gt_u32 vcc, 4, v{L}\nv_mov_b32 v4, 0x1000\ns_nop 0\nv_cndmask_b32 v3, v3, v4, vcc")
        a(f"buffer_store_dword v2, v3, {R(SRD_E)}, 0 offen")
        a.label("L_nodbg")
    a.stamp_flush(SRD_WS, WS_PROF)
    a.label("L_exit")
    a("s_endpgm")

HEADER = open(os.path.join(os.path.dirname(os.path.abspath(__file__)), "..", NAME + ".s.ref")).read().split("; Override launch")[0]
if __name__ == "__main__":
    name = NAME + "_kernel"
    out = HEADER + "; @launch grid=(256,1,1) block=(512,1,1) lds=163840\n" + '.amdgcn_target "amdgcn-amd-amdhsa--gfx950"\n'
    a = Asm(); a.prof = bool(os.environ.get("PROF"))
    a.o.append(kernel_header(name).rstrip())
    gen(a)
    out += a.text() + '.section .rodata,"a"\n.p2align 6\n' + kernel_desc(name)
    open(sys.argv[1] if len(sys.argv) > 1 else "k.s", "w").write(out)
```

```python
import sys, os
from asmlib import *

NAME = "parallel_sum__compressed_kv_cla__moe_arch_mod__prompt"
ABL = set(os.environ.get("ABL", "").split(","))
WS_XN = 0x0
WS_R = 0x280000
WS_YP = 0x290000
WS_IDX = 0x3A0000
WS_KVF = 0x3B0000
WS_CTXF = 0x3C0000
WS_MOEF = 0xF20000
WS_BSEL = 0x3A9000
WS_BF = 0x3B8000
WS_WOF = 0x400000
WS_XS = 0xC00000
WS_PROF = 0x900000
WS_KV = 0x1000000
WS_CTX = 0x3000000
WS_XF = 0xF00000
WS_XP = 0x4000000
WS_SIZE = 0x5000000
S_W, S_H, S_P = 3, 4, 5
SRD_WS, SRD_A, SRD_B, SRD_C, SRD_D, SRD_E = 8, 12, 16, 20, 24, 28
P_X, P_CKV, P_WQ, P_WUK, P_WUV, P_WO, P_BX, P_WR, P_WG, P_WU, P_WD, P_OUT, P_DBG, P_WS = range(32, 60, 2)
S_B, S_E = 60, 61
WS = f"s[{SRD_WS}:{SRD_WS+3}]"
def R(d): return f"s[{d}:{d+3}]"
L, VL16 = 1, 13
DESIG = 31
SPIN = 1 << 18
WOTN = int(os.environ.get("WOTN", "0"))
LNH = int(os.environ.get("LNH", "2"))
MOEJ = int(os.environ.get("MOEJ", "4"))
NT = "" if "nont" in ABL else " nt"
ABL.add("latewait")
TSCHED = os.environ.get("TSCHED", ";2;4;6").split(";")
TK, TV0, TV1, TV2 = [[int(y) for y in x.split(",") if y] for x in TSCHED]
LDS_SP = 131072
LDS_LN = LDS_SP
LDS_WOT = LDS_SP + 10240
LDS_RK = LDS_SP + 30720

def bf16_round(a, r):
    a(f"v_cvt_pk_bf16_f32 v{r}, v{r}, v{r}\nv_lshlrev_b32 v{r}, 16, v{r}")

def poll(a, load, cmp_notready, sleep=2):
    lp = a.newlabel("poll"); dn = a.newlabel("polldone")
    a(f"s_mov_b32 s79, {SPIN}")
    a.label(lp)
    a(load); a("s_waitcnt vmcnt(0)"); a(cmp_notready)
    a(f"s_cbranch_vccz {dn}\ns_sleep {sleep}\ns_sub_u32 s79, s79, 1\ns_cmp_lg_u32 s79, 0\ns_cbranch_scc1 {lp}")
    a.label(dn)

VC, VW, RC, RW, QRW = 40, 44, 48, 50, 54
CF, WF, ACC = 64, 96, 128
S_CO, S_WO_, S_MC, S_ST, S_ROW, S_KVD, S_INCA, S_INCB, S_XO, S_QO = 62, 63, 64, 65, 66, 67, 68, 69, 70, 71
S_XB = 84
XEARLY = [16, 20, 24, 28, 32, 36]
VX1 = 12
LX, LW, LV = 16, 26, 64
VDUM = 11
ITR = ((8, 9), (10, 55))

def wdma(a, srd, soff):
    return [f"buffer_load_dwordx4 v{VW+i}, {R(srd)}, s{soff} offen offset:{i*1024} lds" for i in range(4)]

def kv_dma_ops():
    g = []
    g.append([f"s_mov_b32 m0, s{S_MC}", f"s_add_u32 s72, s{S_CO}, 524288"])
    for i in range(4): g.append([f"buffer_load_dwordx4 v{VC+i}, {R(SRD_A)}, s{S_CO} offen offset:{i*1024} lds"])
    g.append([f"s_add_u32 m0, s{S_MC}, 4096", f"s_add_u32 s{S_CO}, s{S_CO}, 128", f"s_bitset0_b32 s{S_CO}, 10"])
    for i in range(4): g.append([f"buffer_load_dwordx4 v{VC+i}, {R(SRD_A)}, s72 offen offset:{i*1024} lds"])
    g.append([f"s_mov_b32 m0, s73", f"s_xor_b32 s{S_MC}, s{S_MC}, 0x10000"])
    for x in wdma(None, SRD_B, S_WO_): g.append([x])
    g.append([f"s_add_u32 m0, s73, 16384", f"s_xor_b32 s73, s73, 0x10000"])
    for x in wdma(None, SRD_C, S_WO_): g.append([x])
    g.append([f"s_add_u32 s{S_WO_}, s{S_WO_}, {64*8192}", f"s_bitset0_b32 s{S_WO_}, 22"])
    return g

def wq_dma_ops(nblk):
    g = []
    for h in range(2*nblk):
        g.append([f"s_mov_b32 m0, s74", f"s_add_u32 s74, s74, 16384"])
        for x in wdma(None, SRD_D, S_QO): g.append([x])
        g.append([f"s_add_u32 s{S_QO}, s{S_QO}, {64*8192}", f"s_sub_u32 s75, s{S_QO}, {640*8192}", f"s_cselect_b32 s{S_QO}, s{S_QO}, s75"])
    return g

def emit_groups(a, g):
    for x in g:
        for y in x: a(y)

def x_load(a, ks, regs):
    for qt in range(2):
        a(f"buffer_load_dwordx4 {v(regs[qt],4)}, v{VL16 if qt==0 else VX1}, {WS}, s{S_XB+(ks>>2)} offen offset:{(ks&3)*1024} sc1")
        a.vm.issue(("X", ks))

def cnt_load(a, r, which):
    return f"buffer_load_dword v{r}, v3, {R(SRD_E)}, 0 offen offset:{128*which} sc1"
def cnt_addr(a):
    a.srd(SRD_E, P_DBG, 256)
    a(f"v_and_b32 v3, 31, v{L}\nv_lshlrev_b32 v3, 2, v3")
def cnt_check(a, r, which):
    ok = a.newlabel("cntok")
    a(f"v_cmp_gt_u32 vcc, 8, v{r}\ns_cbranch_vccz {ok}")
    cnt_addr(a)
    poll(a, cnt_load(a, 2, which), "v_cmp_gt_u32 vcc, 8, v2", sleep=8)
    a.label(ok)

def kv_touch(a, st0):
    sk = a.newlabel("tch")
    a(f"s_cmp_ge_u32 s76, 2\ns_cbranch_scc1 {sk}a")
    a(f"s_and_b32 s6, s{S_H}, 3\ns_lshl_b32 s6, s6, 19\ns_lshl_b32 s7, s{S_P}, 15\ns_add_u32 s6, s6, s7\ns_lshl_b32 s7, s76, 7\ns_add_u32 s6, s6, s7\ns_add_u32 s6, s6, {st0*128}")
    a(f"v_lshrrev_b32 v6, 1, v{L}\nv_lshlrev_b32 v6, 10, v6\nv_and_b32 v7, 1, v{L}\nv_lshl_add_u32 v6, v7, 6, v6")
    a(f"buffer_load_dword v{VDUM}, v6, {R(SRD_A)}, s6 offen\ns_add_u32 s6, s6, 262144\nbuffer_load_dword v{VDUM}, v6, {R(SRD_A)}, s6 offen\ns_branch {sk}c")
    a.label(sk + "a")
    a(f"v_lshrrev_b32 v6, 5, v{L}\nv_lshlrev_b32 v6, 6, v6\nv_bfe_u32 v7, v{L}, 2, 3\nv_add_u32 v6, v6, v7\nv_lshlrev_b32 v6, 13, v6\nv_and_b32 v7, 3, v{L}\nv_lshl_add_u32 v6, v7, 6, v6")
    a(f"s_lshl_b32 s6, s{S_H}, 8\ns_lshl_b32 s7, s{S_P}, 16\ns_add_u32 s6, s6, s7\ns_add_u32 s6, s6, {st0*64*8192}")
    a(f"s_cmp_lg_u32 s76, 2\ns_cbranch_scc1 {sk}b\nbuffer_load_dword v{VDUM}, v6, {R(SRD_B)}, s6 offen\ns_branch {sk}c")
    a.label(sk + "b")
    a(f"buffer_load_dword v{VDUM}, v6, {R(SRD_C)}, s6 offen")
    a.label(sk + "c")

def consts(a):
    a(f"s_mov_b32 s{S_ST}, 0")
    a(f"s_lshl_b32 s6, s{S_H}, 20\ns_lshl_b32 s7, s{S_P}, 13\ns_add_u32 s6, s6, s7\ns_and_b32 s7, s{S_W}, 1\ns_lshl_b32 s7, s7, 16\ns_add_u32 s6, s6, s7\ns_add_u32 s{S_KVD}, s6, {WS_KV}")
    if "noqrot" in ABL: a("s_mov_b32 s6, 0")
    else:
        a(f"s_and_b32 s6, s{S_H}, 3\ns_add_u32 s6, s6, s{S_P}")
        for _ in range(2): a("s_sub_u32 s7, s6, 5\ns_cselect_b32 s6, s6, s7")
    a(f"s_lshl_b32 s{S_QO}, s6, 20\ns_lshl_b32 s7, s{S_H}, 8\ns_add_u32 s{S_QO}, s{S_QO}, s7")
    for i in range(5):
        a(f"s_lshl_b32 s7, s6, 12\ns_add_u32 s{S_XB+i}, s{S_XO}, s7")
        if i < 4: a("s_add_u32 s6, s6, 1\ns_cmp_eq_u32 s6, 5\ns_cselect_b32 s6, 0, s6")
    a(f"s_lshr_b32 s7, s{S_W}, 1\ns_and_b32 s7, s7, 1")
    a(f"s_cmp_ge_u32 s{S_W}, 4\ns_cbranch_scc1 L_c_v")
    a(f"s_lshl_b32 s7, s7, 11\ns_add_u32 s{S_KVD}, s{S_KVD}, s7\ns_movk_i32 s{S_INCA}, 3072\ns_mov_b32 s{S_INCB}, 125952")
    a(f"s_add_u32 s{S_QO}, s{S_QO}, {128*8192}\ns_sub_u32 s75, s{S_QO}, {640*8192}\ns_cselect_b32 s{S_QO}, s{S_QO}, s75\ns_lshl_b32 s74, s76, 12\ns_branch L_c_j")
    a.label("L_c_v")
    a(f"s_lshl_b32 s7, s7, 12\ns_add_u32 s{S_KVD}, s{S_KVD}, s7\ns_add_u32 s{S_KVD}, s{S_KVD}, 0x80000\ns_movk_i32 s{S_INCA}, 1024\ns_mov_b32 s{S_INCB}, 128000")
    a.label("L_c_j")

def zero_regs(a, r0, n):
    for i in range(0, n, 2): a(f"v_mov_b64 {v(r0+i,2)}, 0")

def phase_start(a):
    a(f"s_cmp_ge_u32 s2, 256\ns_cbranch_scc1 L_exit")
    a("s_load_dwordx16 s[32:47], s[0:1], 0\ns_load_dwordx8 s[48:55], s[0:1], 64\ns_load_dwordx4 s[56:59], s[0:1], 96")
    a(f"v_lshrrev_b32 v2, 6, v0\nv_and_b32 v{L}, 63, v0\nv_readfirstlane_b32 s{S_W}, v2")
    if "nocode" not in ABL:
        a("s_getpc_b64 s[80:81]")
        a.label("L_pc")
        a(f"s_lshr_b32 s6, s2, 3\ns_and_b32 s6, s6, 15\ns_lshl_b32 s6, s6, 12\ns_cmp_lt_u32 s{S_W}, 2\ns_cselect_b32 s6, 0, s6\nv_lshl_add_u32 v3, v0, 6, s6")
        a(f"v_min_u32 v3, L_exit-L_pc, v3\ns_cmp_ge_u32 s{S_W}, 3\ns_cbranch_scc1 L_noct\nglobal_load_dword v{VDUM}, v3, s[80:81]")
        a.label("L_noct")
    a(f"v_lshrrev_b32 v62, 5, v0\nv_and_b32 v62, 7, v62\nv_and_b32 v2, 31, v0\nv_lshlrev_b32 v2, 3, v2\nv_mul_u32_u24 v63, 1280, v62\nv_add_u32 v63, v63, v2\ns_mul_i32 s6, s2, 10240\nv_add_u32 v10, s6, v63")
    a(f"s_cmp_lt_u32 s{S_W}, 4\ns_cbranch_scc1 L_st_k0")
    a("s_waitcnt lgkmcnt(0)")
    for j in range(5): a(f"global_load_dwordx2 {v(LX+2*j,2)}, v10, s[{P_X}:{P_X+1}] offset:{j*256}{NT if 'xnt' in ABL else ''}")
    for j in range(5): a(f"global_load_dwordx2 {v(LW+2*j,2)}, v2, s[{P_WR}:{P_WR+1}] offset:{j*256}")
    a.label("L_st_k0")
    a(f"s_and_b32 s6, s2, 7\ns_lshl_b32 s6, s6, 2\ns_lshr_b32 s7, s2, 3\ns_and_b32 s7, s7, 3\ns_add_u32 s{S_H}, s6, s7\ns_lshr_b32 s{S_P}, s2, 5\ns_and_b32 s76, s{S_W}, 3")
    a.stamp_init(14, 0); a.stamp(0)
    a(f"v_lshrrev_b32 v2, 3, v{L}\nv_and_b32 v3, 7, v{L}\nv_lshrrev_b32 v4, 4, v{L}\nv_xor_b32 v5, v3, v4\nv_lshlrev_b32 v5, 4, v5")
    a(f"v_lshl_add_u32 v{VC}, v2, 10, v5\nv_xor_b32 v5, 64, v{VC}\nv_add_u32 v{VC+1}, 7168, v5\nv_add_u32 v{VC+2}, 14336, v{VC}\nv_add_u32 v{VC+3}, 14336, v{VC+1}")
    a(f"v_and_b32 v6, 15, v{L}\ns_lshl_b32 s6, s76, 4\nv_add_u32 v7, s6, v4\nv_lshlrev_b32 v5, 1, v4\nv_xor_b32 v5, v6, v5\nv_lshlrev_b32 v5, 4, v5")
    a(f"v_lshl_add_u32 v{VW}, v7, 13, v5\nv_add_u32 v{VW+1}, 31744, v{VW}\nv_xor_b32 v5, 0x80, v{VW}\nv_add_u32 v{VW+2}, 63488, v5\nv_add_u32 v{VW+3}, 31744, v{VW+2}")
    a(f"s_and_b32 s6, s76, 1\ns_lshl_b32 s6, s6, 20\ns_lshr_b32 s7, s76, 1\ns_lshl_b32 s7, s7, 18\ns_add_u32 s6, s6, s7\ns_lshl_b32 s{S_CO}, s{S_P}, 15\ns_add_u32 s{S_CO}, s{S_CO}, s6\ns_lshl_b32 s{S_WO_}, s{S_H}, 8\ns_lshl_b32 s{S_MC}, s76, 13\ns_lshl_b32 s73, s76, 12\ns_add_u32 s73, s73, 32768")
    a("s_waitcnt lgkmcnt(0)")
    a.srd(SRD_A, P_CKV, 2048*512*2)
    a.srd(SRD_B, P_WUK, 512*4096*2)
    a.srd(SRD_C, P_WUV, 512*4096*2)
    a(f"s_cmp_ge_u32 s{S_W}, 4\ns_cbranch_scc1 L_st_v0")
    for st in TK: kv_touch(a, st)
    emit_groups(a, kv_dma_ops())
    if "noprio" not in ABL: a("s_setprio 1")
    a.label("L_st_v0")
    a.srd(SRD_WS, P_WS, WS_SIZE)
    a.srd(SRD_D, P_WQ, 640*4096*2)
    a(f"v_lshlrev_b32 v{VL16}, 4, v{L}")
    a(f"s_lshl_b32 s6, s{S_P}, 2\ns_add_u32 s7, s6, s{S_W}\ns_sub_u32 s6, 56, s6\ns_add_u32 s6, s6, s{S_W}")
    a(f"s_cmp_lt_u32 s{S_W}, 4\ns_cselect_b32 s{S_B}, s7, s6")
    a(f"s_sub_u32 s6, 2, s{S_P}\ns_and_b32 s6, s6, 7\ns_lshl_b32 s6, s6, 5\ns_add_u32 s{S_E}, s6, s{S_H}")
    a(f"v_and_b32 v2, 15, v{L}\nv_lshrrev_b32 v3, 4, v{L}")
    a(f"s_and_b32 s6, s{S_W}, 1\ns_lshl_b32 s6, s6, 7\nv_add_u32 v4, s6, v2\nv_lshlrev_b32 v4, 7, v4\nv_lshrrev_b32 v5, 1, v2")
    for sp in range(2):
        a(f"v_add_u32 v6, {4*sp}, v3\nv_xor_b32 v6, v6, v5\nv_lshl_add_u32 v{RC+sp}, v6, 4, v4")
    a(f"v_lshrrev_b32 v4, 2, v2\nv_lshl_add_u32 v5, v3, 3, v4\nv_lshlrev_b32 v5, 8, v5")
    a(f"v_and_b32 v6, 1, v2\nv_lshl_add_u32 v5, v6, 3, v5")
    a(f"v_and_b32 v6, 1, v3\nv_lshl_or_b32 v4, v6, 2, v4\nv_lshlrev_b32 v4, 1, v4\nv_bfe_u32 v6, v2, 1, 1")
    a(f"v_add_u32 v8, {LDS_SP}, v5")
    for t in range(8):
        a(f"v_add_u32 v7, {2*t}, v6\nv_xor_b32 v7, v7, v4\nv_lshl_add_u32 v{QRW+t}, v7, 4, v8")
    a(f"s_lshr_b32 s6, s{S_W}, 2\ns_lshl_b32 s6, s6, 14\ns_add_u32 s6, s6, 32768\nv_add_u32 v5, s6, v5")
    a(f"s_lshr_b32 s7, s{S_W}, 1\ns_and_b32 s7, s7, 1\ns_lshl_b32 s7, s7, 3")
    for j in range(4):
        a(f"s_add_u32 s6, s7, {2*j}\nv_add_u32 v7, s6, v6\nv_xor_b32 v7, v7, v4\nv_lshl_add_u32 v{RW+j}, v7, 4, v5")
    zero_regs(a, ACC, 128)
    a(f"v_add_u32 v{VX1}, 20480, v{VL16}\ns_mul_i32 s{S_XO}, s{S_B}, 40960")
    consts(a)
    a.stamp(1)
    a(f"s_cmp_ge_u32 s{S_W}, 4\ns_cbranch_scc1 L_st_v1")
    emit_groups(a, kv_dma_ops()[:10])
    a("s_waitcnt vmcnt(8)\ns_branch L_st_j1")
    a.label("L_st_v1")
    a(f"s_waitcnt vmcnt(0)")
    a.stamp(2)
    ln_compute(a)
    ln_router(a)
    a.label("L_st_j1")
    a.stamp(3)
    a("s_barrier")
    a.stamp(4)

def zero_flags(a):
    a(f"s_cmp_lt_u32 s{S_W}, 6\ns_cbranch_scc1 L_zd\nv_mov_b64 v[36:37], 0\nv_mov_b64 v[38:39], 0\nv_lshrrev_b32 v2, 3, v{L}\ns_cmp_eq_u32 s{S_W}, 6\ns_cbranch_scc1 L_z6")
    a(f"s_lshl_b32 s6, s{S_P}, 2\ns_sub_u32 s7, 56, s6\nv_mov_b32 v3, s6\nv_mov_b32 v4, s7\nv_cmp_gt_u32 vcc, 4, v2\ns_lshl_b32 s6, s{S_H}, 7\ns_add_u32 s6, s6, {WS_CTXF}\nv_cndmask_b32 v3, v4, v3, vcc\nv_add_u32 v3, v3, v2\nv_lshl_add_u32 v3, v3, 12, s6\ns_branch L_z7")
    a.label("L_z6")
    a(f"v_mov_b32 v3, {hex(WS_SIZE)}")
    def put(j): a(f"s_andn2_b32 s6, s6, 127\nv_cmp_eq_u32 vcc, {j}, v2\nv_mov_b32 v4, s6\ns_nop 0\nv_cndmask_b32 v3, v3, v4, vcc")
    flag_addr(a, "kv", 6); put(0)
    flag_addr(a, "moe", 6); put(1)
    flag_addr(a, "b", 6); put(2)
    for k in range(3):
        xf_addr(a, k, 6); put(3+k)
    a(f"s_mov_b32 s6, {hex(WS_SIZE)}\ns_cmp_eq_u32 s2, {DESIG}\ns_cmov_b32 s6, {WS_IDX}"); put(6)
    a(f"s_lshl_b32 s6, s2, 7\ns_add_u32 s6, s6, {WS_R}"); put(7)
    a(f"v_add_u32 v4, {LDS_RK-56*16}, v{VL16}\ns_mov_b32 exec_lo, 0\ns_mov_b32 exec_hi, 0x03000000\nds_read_b128 v[36:39], v4\ns_mov_b64 exec, -1\ns_waitcnt lgkmcnt(0)")
    a.label("L_z7")
    a(f"v_and_b32 v2, 7, v{L}\nv_lshl_add_u32 v3, v2, 4, v3\nbuffer_store_dwordx4 v[36:39], v3, {WS}, 0 offen sc1")
    a.label("L_zd")

def half_reduce(a, r):
    for m in ("quad_perm:[1,0,3,2]", "quad_perm:[2,3,0,1]", "row_half_mirror", "row_mirror"):
        a(f"s_nop 1\nv_add_f32_dpp v{r}, v{r}, v{r} {m} row_mask:0xf bank_mask:0xf")
    a(f"v_mov_b32 v8, v{r}\ns_nop 1\nv_permlane16_swap_b32 v{r}, v8\ns_nop 1\nv_add_f32 v{r}, v{r}, v8")

def ln_compute(a):
    X = LV
    NEG = "op_sel_hi:[1,0] neg_lo:[0,1] neg_hi:[0,1]"
    for j in range(10):
        a(f"v_lshlrev_b32 v{X+2*j}, 16, v{LX+j}\nv_and_b32 v{X+2*j+1}, 0xffff0000, v{LX+j}")
    a(f"v_pk_add_f32 v[2:3], {v(X,2)}, {v(X+2,2)}")
    for j in range(2, 10): a(f"v_pk_add_f32 v[2:3], v[2:3], {v(X+2*j,2)}")
    a("v_add_f32 v2, v2, v3")
    half_reduce(a, 2)
    a("s_mov_b32 s7, 0x3acccccd\nv_mul_f32 v2, s7, v2\nv_mov_b64 v[4:5], 0")
    for j in range(10):
        a(f"v_pk_add_f32 v[6:7], {v(X+2*j,2)}, v[2:3] {NEG}\nv_pk_fma_f32 v[4:5], v[6:7], v[6:7], v[4:5]")
    a("v_add_f32 v4, v4, v5")
    half_reduce(a, 4)
    a("v_mul_f32 v4, s7, v4")
    bf16_round(a, 2); bf16_round(a, 4)
    a("v_add_f32 v4, 0x3727c5ac, v4")
    bf16_round(a, 4)
    a("v_sqrt_f32 v4, v4\ns_nop 0")
    bf16_round(a, 4)
    a("v_rcp_f32 v6, v4\ns_nop 0\nv_fma_f32 v5, -v4, v6, 1.0\nv_fmac_f32 v6, v5, v6\nv_mov_b32 v9, 0")
    for j in range(10):
        x = X + 2*j
        a(f"v_pk_add_f32 {v(x,2)}, {v(x,2)}, v[2:3] {NEG}\nv_cvt_pk_bf16_f32 v5, v{x}, v{x+1}")
        a(f"v_lshlrev_b32 v{x}, 16, v5\nv_and_b32 v{x+1}, 0xffff0000, v5")
        a(f"v_pk_mul_f32 {v(x,2)}, {v(x,2)}, v[6:7] op_sel_hi:[1,0]\nv_cvt_pk_bf16_f32 v{LX+j}, v{x}, v{x+1}")
    a(f"v_add_u32 v10, {LDS_LN}, v63")
    for j in range(5): a(f"ds_write_b64 v10, {v(LX+2*j,2)} offset:{j*256}")
    a("s_waitcnt lgkmcnt(0)")

def ln_router(a):
    a("v_mov_b32 v2, 0")
    for j in range(10):
        a(f"v_lshlrev_b32 v4, 16, v{LX+j}\nv_lshlrev_b32 v5, 16, v{LW+j}\nv_fmac_f32 v2, v4, v5")
        a(f"v_and_b32 v4, 0xffff0000, v{LX+j}\nv_and_b32 v5, 0xffff0000, v{LW+j}\nv_fmac_f32 v2, v4, v5")
    half_reduce(a, 2)
    a("v_cvt_pk_bf16_f32 v2, v2, v2\nv_and_b32 v2, 0xffff, v2")
    a("v_bfe_i32 v3, v2, 15, 1\nv_and_b32 v3, 0x7fff, v3\nv_or_b32 v3, 0x8000, v3\nv_xor_b32 v2, v2, v3")
    a(f"s_lshl_b32 s7, s2, 3\ns_sub_u32 s6, 2047, s7\nv_sub_u32 v3, s6, v62\nv_lshl_or_b32 v2, v2, 11, v3\nv_lshlrev_b32 v3, 2, v62\nv_add_u32 v3, {LDS_RK}, v3\nds_write_b32 v3, v2\ns_waitcnt lgkmcnt(0)")

def ln_store(a, back):
    LV = 16
    a(f"s_lshr_b32 s72, s2, 1\ns_mul_i32 s72, s72, 20480\ns_and_b32 s7, s2, 1\ns_lshl_b32 s7, s7, 7\ns_add_u32 s72, s72, s7")
    for n in range(3):
        a(f"v_add_u32 v2, {256*n-256}, v0\nv_lshrrev_b32 v3, 3, v2\nv_and_b32 v4, 7, v2")
        a(f"v_mul_u32_u24 v5, 1280, v4\nv_lshl_add_u32 v5, v3, 4, v5\nv_add_u32 v5, {LDS_LN}, v5")
        a(f"ds_read_b128 {v(LV+8*n,4)}, v5\nv_lshlrev_b32 v5, 8, v3\nv_lshl_add_u32 v{6+n}, v4, 4, v5")
    a("s_waitcnt lgkmcnt(0)")
    for n in range(3):
        if n == 2: a(f"s_cmp_ge_u32 s{S_W}, 6\ns_cbranch_scc1 {back}")
        SC = "" if "lnplain" in ABL else " sc1"
        if "nolnst" not in ABL: a(f"buffer_store_dwordx4 {v(LV+8*n,4)}, v{6+n}, {WS}, s72 offen{SC}")
    a.label(back)
    zero_flags(a)

def count_atomic(a, which):
    a.srd(SRD_E, P_DBG, 256)
    a(f"v_mov_b32 v2, 1\nv_lshlrev_b32 v3, 8, v{L}\ns_and_b32 s6, s2, 31\ns_lshl_b32 s6, s6, 2\nbuffer_atomic_add v2, v3, {R(SRD_E)}, s6 offen offset:{128*which} sc1")

def flag_addr(a, kind, d):
    if kind == "kv":
        a(f"s_lshl_b32 s{d}, s{S_H}, 3\ns_add_u32 s{d}, s{d}, s{S_P}\ns_lshl_b32 s{d}, s{d}, 5\ns_add_u32 s{d}, s{d}, s{S_W}\ns_lshl_b32 s{d}, s{d}, 2\ns_add_u32 s{d}, s{d}, {WS_KVF}")
    elif kind == "ctx":
        a(f"s_lshl_b32 s{d}, s{S_B}, 5\ns_add_u32 s{d}, s{d}, s{S_H}\ns_lshl_b32 s{d}, s{d}, 7\ns_add_u32 s{d}, s{d}, {WS_CTXF}")
    elif kind == "b":
        a(f"s_xor_b32 s{d}, s{S_P}, 1\ns_lshl_b32 s{d}, s{d}, 5\ns_add_u32 s{d}, s{d}, s{S_H}\ns_lshl_b32 s{d}, s{d}, 7\ns_add_u32 s{d}, s{d}, {WS_BF}")
    else:
        a(f"s_lshl_b32 s{d}, s{S_E}, 5\ns_add_u32 s{d}, s{d}, s{S_W}\ns_lshl_b32 s{d}, s{d}, 2\ns_add_u32 s{d}, s{d}, {WS_MOEF}")

def tile_id(a, d):
    a(f"s_and_b32 s{d}, s{S_H}, 7\ns_lshl_b32 s7, s{S_P}, 3\ns_add_u32 s{d}, s{d}, s7")
def xslot(a, slot, d):
    tile_id(a, d)
    a(f"s_lshr_b32 s7, s{S_H}, 3\ns_add_u32 s7, s7, {slot}\ns_add_u32 s7, s7, 1\ns_and_b32 s7, s7, 3\ns_lshl_b32 s{d}, s{d}, 2\ns_add_u32 s{d}, s{d}, s7\ns_mul_i32 s{d}, s{d}, 3\ns_add_u32 s{d}, s{d}, {slot}")
def xf_addr(a, slot, d):
    xslot(a, slot, d)
    a(f"s_lshl_b32 s{d}, s{d}, 5\ns_add_u32 s{d}, s{d}, s{S_W}\ns_lshl_b32 s{d}, s{d}, 2\ns_add_u32 s{d}, s{d}, {WS_XF}")

def set_flag(a, kind, val=1):
    flag_addr(a, kind, 6)
    a(f"v_mov_b32 v2, {val}\nv_mov_b32 v3, {hex(WS_SIZE)}\nv_writelane_b32 v3, s6, 0\nbuffer_store_dword v2, v3, {WS}, 0 offen sc1")
    a.vm.issue("flag")

def phase_kv(a):
    def rdC(i, sp):
        if "kv_noC" in ABL: return
        a(f"ds_read_b128 {v(CF+4*i,4)}, v{RC+sp} offset:{i*2048}"); a.lg.issue(("C", i))
    def rdW(par, j, half, sp):
        if "kv_noW" in ABL: return
        r = WF + 16*par + 4*j + 2*half
        a(f"ds_read_b64_tr_b16 {v(r,2)}, v{RW+j} offset:{sp*8192 + half*1024}"); a.lg.issue(("W", par, j, half))
    wq = [(j, hf) for j in range(4) for hf in range(2)]
    def body(isK, lab, dma, nend, hook=None):
        def mm(i, j, par):
            d = ACC + (i*4+j)*4
            a.wait_lg([("C", i), ("W", par, j, 0), ("W", par, j, 1)])
            if isK: a.mfma(d, WF+16*par+4*j, CF+4*i)
            else: a.mfma(d, CF+4*i, WF+16*par+4*j)
        a(".p2align 4")
        a.label(lab)
        if hook:
            a(f"s_bitcmp1_b32 {0x80 if isK else 0xd6}, s{S_ST}\ns_cbranch_scc1 {hook}"); a.label(hook + "_back")
        for i in range(8):
            for j in range(4):
                mm(i, j, 0)
                if i < 2: rdW(1, *wq[i*4+j], 1)
            rdC(i, 1)
        dma = list(dma)
        if "kv_nodma" in ABL: dma = []
        for i in range(8):
            for j in range(4):
                mm(i, j, 1)
                if i == 2 or i == 3: rdW(0, *wq[(i-2)*4+j], 0)
                if i >= 2 and dma:
                    for y in dma.pop(0): a(y)
            if i == 1:
                for r in (RC, RC+1, RW, RW+1, RW+2, RW+3): a(f"v_xor_b32 v{r}, 0x10000, v{r}")
                if isK: a("s_waitcnt vmcnt(0) lgkmcnt(0)\ns_barrier")
                else:
                    a(f"s_bitcmp1_b32 0x48, s{S_ST}\ns_cbranch_scc1 L_vpre")
                    a.label("L_vnow")
                    a("s_waitcnt lgkmcnt(0)\ns_barrier")
                a.lg.drain()
                a.stampd(S_ST, 24)
                rdC(0, 0); rdC(1, 0)
            elif i >= 2: rdC(i, 0)
        emit_groups(a, dma)
        a(f"s_add_u32 s{S_ST}, s{S_ST}, 1\ns_cmp_lt_u32 s{S_ST}, {nend}\ns_cbranch_scc1 {lab}")
    def first_reads():
        a.lg.drain()
        rdC(0, 0); rdC(1, 0)
        for k in range(4): rdW(0, *wq[k], 0)
        rdC(2, 0)
        for k in range(4, 8): rdW(0, *wq[k], 0)
        for i in range(3, 8): rdC(i, 0)
    a(f"s_cmp_ge_u32 s{S_W}, 4\ns_cbranch_scc1 L_kv_v")
    first_reads()
    q0 = list(a.lg.q)
    emit_groups(a, kv_dma_ops()[10:])
    a.stamp(5)
    body(True, "L_kloopA", kv_dma_ops(), 6)
    assert a.lg.q == q0, (a.lg.q, q0)
    body(True, "L_kloopB", wq_dma_ops(2), 8, hook="L_khook" if "kx2" not in ABL else None)
    a.stamp(6)
    a("s_waitcnt lgkmcnt(0)\ns_nop 7")
    for n in range(16):
        t = ACC + 4*n; d0 = ACC + 8*n; d1 = d0 + 4
        a(f"v_cvt_pk_bf16_f32 v{t}, v{d0}, v{d0+1}\nv_cvt_pk_bf16_f32 v{t+1}, v{d0+2}, v{d0+3}")
        a(f"v_cvt_pk_bf16_f32 v{t+2}, v{d1}, v{d1+1}\nv_cvt_pk_bf16_f32 v{t+3}, v{d1+2}, v{d1+3}")
    a("s_branch L_q")
    a.label("L_hook")
    for k in (1, 2, 4, 6): a(f"s_cmp_eq_u32 s{S_ST}, {k}\ns_cbranch_scc1 L_hook{k}")
    a(f"s_cmp_lg_u32 s{S_ST}, 7\ns_cbranch_scc1 L_hook_back")
    for ks in range(3): x_load(a, ks, XEARLY[2*ks:2*ks+2])
    a("s_branch L_hook_back")
    a.label("L_hook1")
    if LNH == 1: ln_store(a, "L_lns")
    for st in TV1: kv_touch(a, st)
    a("s_branch L_hook_back")
    a.label("L_hook2")
    if LNH == 2: ln_store(a, "L_lns")
    for st in TV2: kv_touch(a, st)
    a("s_branch L_hook_back")
    a.label("L_hook4")
    WOTR = [16, 20, 24, 28, 32]
    a(f"s_cmp_lg_u32 s{S_W}, 4\ns_cbranch_scc1 L_hook4b")
    count_atomic(a, 0)
    a.label("L_hook4b")
    a(f"s_lshl_b32 s74, s76, 12\ns_add_u32 s74, s74, {LDS_SP}")
    emit_groups(a, wq_dma_ops(1))
    a("s_branch L_hook_back")
    a.label("L_hook6")
    a(f"s_cmp_lg_u32 s{S_W}, 5\ns_cbranch_scc1 L_hook_back")
    cnt_addr(a); a(cnt_load(a, 62, 0))
    a("s_branch L_hook_back")
    a.label("L_vpre")
    a(f"s_waitcnt vmcnt(0)\ns_lshl_b32 s6, s{S_ST}, 4\ns_add_u32 s6, s6, s{S_W}\ns_cmp_lg_u32 s6, 0x65\ns_cbranch_scc1 L_vnow")
    cnt_check(a, 62, 0)
    a("s_branch L_vnow")
    a.label("L_khook")
    a(f"s_cmp_lg_u32 s{S_ST}, 7\ns_cbranch_scc1 L_khook_back")
    for ks in range(3): x_load(a, ks, XEARLY[2*ks:2*ks+2])
    a("s_branch L_khook_back")
    a.label("L_kv_v")
    first_reads()
    for st in TV0: kv_touch(a, st)
    a.stamp(5)
    body(False, "L_vloop", [], 8, hook="L_hook")
    a.stamp(6)
    a("s_waitcnt lgkmcnt(0)\ns_nop 7")
    for ii in range(4):
        for j in range(4):
            t = ACC + 16*ii + 4*j; d0 = ACC + 32*ii + 4*j; d1 = d0 + 16
            a(f"v_cvt_pk_bf16_f32 v{t}, v{d0}, v{d0+1}\nv_cvt_pk_bf16_f32 v{t+1}, v{d0+2}, v{d0+3}")
            a(f"v_cvt_pk_bf16_f32 v{t+2}, v{d1}, v{d1+1}\nv_cvt_pk_bf16_f32 v{t+3}, v{d1+2}, v{d1+3}")
    a("s_waitcnt vmcnt(0)")

QF, O_, S_, FR, P_, NM, T_, L_, ET = 16, 192, 64, 96, 128, 144, 52, 56, 58
VA, VDK, VDV = 48, 49, 50
S_N, S_NL, S_C, S_THR = 62, 63, 64, 65
THRESH = 0x4b800000
def Sreg(par, kt, qt): return S_ + 16*par + (kt*2+qt)*4
def NMreg(kt, qt): return NM + (kt*2+qt)*4
def Oreg(t, qt): return O_ + (t*2+qt)*4
def Qreg(qt, s): return QF + (qt*4+s)*4
def Preg(par, qt): return P_ + 8*par + 4*qt
def Treg(par, qt): return T_ + 2*par + qt

def xlane(a, op, r, t):
    for sw in ("v_permlane16_swap_b32", "v_permlane32_swap_b32"):
        a(f"v_mov_b32 v{t}, v{r}\ns_nop 1\n{sw} v{r}, v{t}\ns_nop 1\n{op} v{r}, v{r}, v{t}")

def st_dma(a, parts):
    if "K" in parts:
        for hf in range(2):
            a(f"s_lshl_b32 s6, s76, 13\ns_add_u32 s6, s6, s78\ns_add_u32 m0, s6, {hf*4096}\ns_add_u32 s7, s77, {hf*4096}")
            for i in range(4): a(f"buffer_load_dwordx4 v{VDK}, {WS}, s7 offen offset:{i*1024} sc1 lds")
    for hf in range(2):
        if f"V{hf}" in parts:
            a(f"s_lshl_b32 s6, s76, 12\ns_add_u32 s6, s6, s78\ns_add_u32 m0, s6, {32768+hf*16384}\ns_add_u32 s7, s77, {0x80000-16384+hf*16384}")
            for i in range(4): a(f"buffer_load_dwordx4 v{VDV}, {WS}, s7 offen offset:{i*1024} sc1 lds")

S_HK, S_ALL = 89, 90
def kv_self_touch(a):
    a(f"v_lshrrev_b32 v9, 3, v{L}\ns_cmp_lt_u32 s{S_W}, 4\ns_cselect_b32 s7, 6, 4\nv_and_b32 v10, s7, v9\nv_add_u32 v9, v9, v10\nv_lshlrev_b32 v9, 10, v9")
    a(f"v_and_b32 v10, 7, v{L}\nv_lshl_add_u32 v9, v10, 7, v9\ns_sub_u32 s6, s{S_KVD}, 32768")
    a(f"buffer_load_dword v{VDUM}, v9, {WS}, s6 offen sc1\ns_add_u32 s6, s6, 16384\nbuffer_load_dword v{VDUM}, v9, {WS}, s6 offen sc1")

def kv_flag_wait(a, level):
    a(f"s_lshl_b32 s7, s{S_H}, 10\ns_add_u32 s7, s7, {WS_KVF}\nv_lshrrev_b32 v2, 3, v{L}\nv_and_b32 v3, 7, v{L}\nv_lshlrev_b32 v3, 2, v3\nv_lshl_add_u32 v3, v2, 7, v3")
    poll(a, f"buffer_load_dword v2, v3, {WS}, s7 offen sc1", f"v_cmp_gt_u32 vcc, {level}, v2")

KS_POLL = int(os.environ.get("KSP", "15"))
LATE_KS = tuple(int(x) for x in os.environ.get("STKS", "0,1,2,3,16,17,18,19").split(","))
KS_FLAG = int(os.environ.get("KSF", "6"))
NEARLY = int(os.environ.get("NEARLY", "2"))
def kv_store(a, n, late=True):
    if late and "nolate" in ABL: return
    a(f"buffer_store_dwordx4 {v(ACC+4*n,4)}, v{VL16}, {WS}, s{S_KVD} offen sc1"); a.vm.issue(("st", n))
    inc = ("1024", f"s{S_INCA}", "1024", f"s{S_INCB}")[n & 3]
    a(f"s_add_u32 s{S_KVD}, s{S_KVD}, {inc}")
def q_body(a):
    sfx = ""
    a.lg.drain(); a.vm.drain()
    def rdW(t, hf, ks):
        blk = ks >> 2
        off = (0, 0, 32768, 0, 32768)[blk] + (ks & 3)*8192 + hf*1024
        a(f"ds_read_b64_tr_b16 {v(WF+4*t+2*hf,2)}, v{QRW+t} offset:{off}"); a.lg.issue(("W", t, hf))
    for t in range(8):
        rdW(t, 0, 0); rdW(t, 1, 0)
    xr = {ks: XEARLY[2*ks:2*ks+2] for ks in range(3)}
    for ks in range(3, 7):
        xr[ks] = [CF + 8*(ks-3), CF + 8*(ks-3) + 4]
        x_load(a, ks, xr[ks])
    nst = 0
    for ks in range(20):
        pend = []
        a.wait_vm(("X", ks))
        if ks % 2 == 0: a.stamp(32 + ks//2)
        barrier_here = (ks == 11)
        upd = {3: -LDS_SP, 11: 65536}.get(ks)
        st_at = (3,) if ks in LATE_KS else ()
        for t in range(8):
            for qt in range(2):
                if qt == 0: a.wait_lg([("W", t, 0), ("W", t, 1)])
                a.mfma(Oreg(t, qt), WF+4*t, xr[ks][qt], "0" if ks == 0 else None)
                if qt == 1 and ks < 19: pend += [(t, 0), (t, 1)]
                if barrier_here and t == 1 and qt == 1:
                    a("s_waitcnt lgkmcnt(0)\ns_barrier"); a.lg.drain()
                    while len(pend) > 2: rdW(*pend.pop(0), ks+1)
                if pend and not (barrier_here and (t, qt) < (1, 1)): rdW(*pend.pop(0), ks+1)
                if upd is not None and qt == 0:
                    a(f"v_add_u32 v{QRW+t}, {hex(upd & 0xffffffff)}, v{QRW+t}")
                if qt == 0 and t in st_at and nst < 16:
                    kv_store(a, nst); nst += 1
        while pend: rdW(*pend.pop(0), ks+1)
        if ks + 7 < 20:
            xr[ks+7] = xr[ks]; x_load(a, ks+7, xr[ks])
        if ks == KS_FLAG:
            a.wait_vm(("st", 3))
            set_flag(a, "kv", 1)
        if ks == KS_POLL:
            a.wait_vm(("X", 19))
            a(f"s_cmp_ge_u32 s{S_W}, 4\ns_cbranch_scc1 L_q_nold{sfx}")
            a.stamp(20)
            kv_flag_wait(a, 1)
            a.stamp(21)
            st_dma(a, ["K", "V1"])
            a.label(f"L_q_nold{sfx}")
    assert nst == len(LATE_KS) and 8 <= nst <= 12

def phase_q(a):
    a.label("L_q")
    a.srd(SRD_E, P_DBG, 256)
    a(f"s_lshl_b32 s6, s76, 13\nv_add_u32 v{VDK}, s6, v{VL16}\ns_lshl_b32 s6, s76, 12\nv_add_u32 v{VDV}, s6, v{VL16}")
    a(f"s_lshl_b32 s77, s{S_H}, 20\ns_add_u32 s77, s77, {WS_KV}\ns_mov_b32 s78, 0\ns_mov_b32 s{S_ALL}, 0")
    a(f"s_cmp_lt_u32 s{S_W}, 4\ns_cselect_b32 s{S_HK}, 3, 2")
    q_body(a)
    a.stamp(7)
    if "symq" not in ABL:
        a(f"s_cmp_lt_u32 s{S_W}, 4\ns_cbranch_scc1 L_qb\ns_barrier")
        a.label("L_qb")
    a("s_mov_b32 s6, 0x3e0293ee\ns_nop 7")
    for qt in range(2):
        for n in range(len(LATE_KS), 12):
            if (n & 1) == qt or 12 - len(LATE_KS) == 1: pass
        if qt == 0:
            for n in range(len(LATE_KS), 12): kv_store(a, n)
        for s_ in range(4):
            for hf in range(2):
                d = Oreg(2*s_+hf, qt)
                for r in range(4): a(f"v_mul_f32 v{d+r}, s6, v{d+r}")
                a(f"v_cvt_pk_bf16_f32 v{Qreg(qt,s_)+2*hf}, v{d}, v{d+1}\nv_cvt_pk_bf16_f32 v{Qreg(qt,s_)+2*hf+1}, v{d+2}, v{d+3}")
    zero_regs(a, O_, 64)
    zero_regs(a, NM, 16)
    zero_regs(a, T_, 6)
    a(f"v_mov_b32 v{VA}, v{VL16}")
    a(f"s_waitcnt vmcnt({12 - len([k for k in LATE_KS if k <= KS_POLL])})")

def sm_ops(par):
    ops = []
    n = 0
    for kt in range(2):
        for qt in range(2):
            for r in range(4):
                t, tp = ET + n % 4, ET + (n-1) % 4
                e = f"v_exp_f32 v{t}, v{Sreg(par,kt,qt)+r}"
                rest = []
                if kt == 0 and r == 0: pass
                elif kt == 0 and r == 1: rest.append(f"v_add_f32 v{Treg(par,qt)}, v{tp}, v{t}")
                else: rest.append(f"v_add_f32 v{Treg(par,qt)}, v{t}, v{Treg(par,qt)}")
                if r & 1: rest.append(f"v_cvt_pk_bf16_f32 v{Preg(par,qt)+2*kt+(r>>1)}, v{tp}, v{t}")
                ops.append((e, rest)); n += 1
    return ops

def phase_attn(a):
    handlers = []
    FULLQ = [("F", i) for i in range(8)]
    def rd(kind, i, k):
        off = (0 if kind == "K" else 32768) + k*8192 + i*1024
        a(f"ds_read_b128 {v(FR+4*i,4)}, v{VA} offset:{off}"); a.lg.issue(("F", i))
    def bar(wait="vmcnt(0) lgkmcnt(0)", mid=None, hot=False):
        bk = a.newlabel("ldback")
        if hot:
            a(f"s_cmp_lg_u32 s{S_HK}, 0\ns_cbranch_scc1 {bk}_c\ns_waitcnt lgkmcnt(0)\ns_barrier")
            a.label(bk)
            handlers.append(("ld", bk))
        else:
            a(f"s_waitcnt {wait}\ns_call_b64 s[82:83], L_pend\ns_barrier")
            if mid: mid()
            a(f"s_call_b64 s[82:83], L_load")
        a.lg.drain()
        if "stampbar" in ABL: a.stampd(S_N, 44)
        a(f"s_add_i32 s{S_N}, s{S_N}, 1")
    def ladd(par, qt): return f"v_add_f32 v{L_+qt}, v{Treg(par,qt)}, v{L_+qt}"
    def stage(k, qk=True, sm=True, pv=True, nxt=True, loop=False):
        pq, ps = k & 1, 1 - (k & 1)
        pairs = []
        if pv: pairs += [("V", i) for i in range(8)]
        if qk: pairs += [("K", i) for i in range(8)]
        NP = len(pairs)
        g0 = [[] for _ in range(NP)]; g1 = [[] for _ in range(NP)]
        full = qk and pv
        if sm:
            ops = sm_ops(ps)[2:]
            per = 1 if full else 2
            for n, (e, rest) in enumerate(ops):
                g0[n//per].append(e); g1[n//per] += rest
            cp = NP - 2 if full else NP - 1
            g1[cp] += [f"v_add_f32 v{ET+4}, v{Treg(ps,0)}, v{Treg(ps,1)}", f"v_cmp_nge_f32 vcc, s{S_THR}, v{ET+4}"]
        g1[0].append(ladd(pq, 0)); g1[2].append(ladd(pq, 1))
        if full:
            for n, (e, rest) in enumerate(sm_ops(pq)[:2]):
                g0[14+n].append(e); g1[14+n] += rest
        sc = {}
        if loop:
            sc[3] = f"s_sub_i32 s{S_C}, s{S_C}, 1"; sc[5] = f"s_cmp_gt_i32 s{S_C}, 0"; sc[7] = f"s_cselect_b32 s{S_THR}, s72, -1.0"
        barp = (NP - 8 + 1) if k == 3 else None
        held = []
        a.wait_lg(("F", 0))
        for n, (kind, i) in enumerate(pairs):
            for qt in range(2):
                if kind == "V": a.mfma(Oreg(i, qt), FR+4*i, Preg(pq, qt))
                else: a.mfma(Sreg(pq, i >> 2, qt), FR+4*i, Qreg(qt, i & 3), None if i & 3 else NMreg(i >> 2, qt))
                if qt == 0:
                    if n + 1 < NP: a.wait_lg(("F", pairs[n+1][1]))
                    for x in g0[n]: a(x)
                    if barp is not None and n == barp: a(f"v_xor_b32 v{VA}, 0x10000, v{VA}")
                else:
                    if n in sc: a(sc[n])
                    if kind == "V" and qk: rd("K", i, k)
                    elif not nxt:
                        if n == barp: bar()
                    else:
                        if barp is not None and n < barp: held.append(i)
                        else:
                            if n == barp:
                                bar(hot=loop)
                                for h in held: rd("V", h, 0)
                            rd("V", i, (k+1) & 3)
                    for x in g1[n]: a(x)
        if sm:
            bk = a.newlabel("back")
            a(f"s_cbranch_vccnz {bk}_h")
            a.label(bk)
            handlers.append(("sm", bk, k, loop, full))
    a(f"s_mov_b32 s72, {hex(THRESH)}\ns_mov_b32 s{S_THR}, s72\ns_sub_u32 s{S_NL}, 15, s{S_P}\ns_mov_b32 s{S_N}, -1")
    a.stamp(8)
    if "symq" in ABL: bar("lgkmcnt(0)")
    else:
        a(f"s_cmp_ge_u32 s{S_W}, 4\ns_cbranch_scc1 L_qb2\ns_barrier")
        a.label("L_qb2")
        a.lg.drain()
        if "stampbar" in ABL: a.stampd(S_N, 44)
    a.stamp(9)
    for i in range(8): rd("K", i, 0)
    a(f"s_cmp_lg_u32 s{S_B}, 0\ns_cbranch_scc1 L_nm0\ns_call_b64 s[82:83], L_mask")
    a.label("L_nm0")
    for i in range(8):
        a.wait_lg(("F", i))
        for qt in range(2):
            a.mfma(Sreg(0, i >> 2, qt), FR+4*i, Qreg(qt, i & 3), None if i & 3 else NMreg(i >> 2, qt))
        rd("K", i, 1)
    a("s_nop 7")
    for qt in range(2):
        m = ET + qt
        s0, s1 = Sreg(0, 0, qt), Sreg(0, 1, qt)
        a(f"v_max3_f32 v{m}, v{s0}, v{s0+1}, v{s0+2}\nv_max3_f32 v{m}, v{m}, v{s0+3}, v{s1}\nv_max3_f32 v{m}, v{m}, v{s1+1}, v{s1+2}\nv_max_f32 v{m}, v{m}, v{s1+3}")
        xlane(a, "v_max_f32", m, ET+2)
        for kt in range(2):
            for r in range(4):
                a(f"v_sub_f32 v{Sreg(0,kt,qt)+r}, v{Sreg(0,kt,qt)+r}, v{m}\nv_sub_f32 v{NMreg(kt,qt)+r}, 0, v{m}")
    a(f"s_cmp_lg_u32 s{S_B}, 1\ns_cbranch_scc1 L_nm1\ns_call_b64 s[82:83], L_mask")
    a.label("L_nm1")
    def early(par):
        o = sm_ops(par)[:2]
        a(o[0][0]); a(o[1][0]); a("s_nop 0")
        for x in o[1][1]: a(x)
    early(0)
    stage(1, pv=False)
    assert a.lg.q == FULLQ
    a("s_nop 7")
    early(1)
    if "symq" not in ABL: a(f"s_call_b64 s[82:83], L_load\ns_mov_b32 s{S_N}, 0")
    for n in range(12, 16): kv_store(a, n)
    a(f"s_sub_i32 s{S_C}, s{S_B}, 2")
    a.stamp(10)
    a(f"s_cmp_eq_u32 s{S_B}, 0\ns_cbranch_scc1 L_pv2\ns_cmp_eq_u32 s{S_B}, 1\ns_cbranch_scc1 L_tail2")
    a(f"s_cmp_lg_u32 s{S_B}, 2\ns_cbranch_scc1 L_st2\ns_call_b64 s[82:83], L_mask\ns_branch L_st2")
    a(".p2align 6")
    a.label("L_st0")
    for k in range(4):
        if k == 2: a.label("L_st2")
        stage(k, loop=True)
        assert a.lg.q == FULLQ
    a("s_branch L_st0")
    for k in range(4):
        a.label(f"L_tail{k}")
        a.lg.q = list(FULLQ)
        a(f"s_mov_b32 s{S_THR}, s72")
        stage(k, qk=False)
        assert a.lg.q == FULLQ
        a.label(f"L_pv{(k+1)&3}")
        stage((k+1) & 3, qk=False, sm=False, nxt=False)
        if k < 3: a("s_branch L_fin")
    a.label("L_fin")
    a.stamp(11)
    idx_addr(a); a(f"buffer_load_dword v{VIDX}, v3, {WS}, s72 offen sc1")
    for qt in range(2):
        xlane(a, "v_add_f32", L_+qt, ET)
        a(f"v_rcp_f32 v{L_+qt}, v{L_+qt}")
    a(f"s_lshl_b32 s6, s{S_B}, 18\ns_lshl_b32 s7, s{S_H}, 12\ns_add_u32 s6, s6, s7\ns_add_u32 s6, s6, {WS_CTX}\ns_nop 4")
    n = 0
    a.vm.drain()
    for qt in range(2):
        for s_ in range(4):
            t = QF + 4*n; n += 1
            for hf in range(2):
                d = Oreg(2*s_+hf, qt)
                for r in range(4): a(f"v_mul_f32 v{d+r}, v{L_+qt}, v{d+r}")
                a(f"v_cvt_pk_bf16_f32 v{t+2*hf}, v{d}, v{d+1}\nv_cvt_pk_bf16_f32 v{t+2*hf+1}, v{d+2}, v{d+3}")
            a(f"buffer_store_dwordx4 {v(t,4)}, v{VL16}, {WS}, s6 offen offset:{s_*1024} sc1"); a.vm.issue("st")
        if qt == 0: a("s_add_u32 s6, s6, 0x20000")
    a.stamp(12)
    def flag_now():
        a("s_waitcnt vmcnt(0)")
        set_flag(a, "ctx")
    a(f"s_cmp_gt_i32 s{S_N}, s{S_NL}\ns_cbranch_scc1 L_pre")
    bar("vmcnt(8)", flag_now)
    a(f"s_lshl_b32 s6, s{S_W}, 8\ns_add_u32 s6, s6, s2\ns_cmp_eq_u32 s6, {DESIG}\ns_cbranch_scc1 L_top")
    a.label("L_idle")
    a(f"s_sub_i32 s6, s{S_NL}, 5\ns_cmp_gt_i32 s{S_N}, s6\ns_cbranch_scc1 L_pre")
    bar()
    a(f"s_cmp_lt_u32 s{S_E}, 54\ns_cbranch_scc1 L_moe\ns_branch L_idle")
    a.label("L_pre")
    a(f"s_cmp_lt_u32 s{S_W}, 4\ns_cbranch_scc1 L_pre1")
    out_setup(a, 1)
    a(f"s_and_b32 s6, s{S_NL}, 1\ns_lshl_b32 s6, s6, 16\ns_xor_b32 s6, s6, 0x10000\ns_lshl_b32 s7, s76, 12\ns_add_u32 s7, s7, s6\nv_add_u32 v5, s7, v{VL16}")
    a(f"s_lshl_b32 s7, s76, 13\ns_add_u32 s6, s6, s7\nv_add_u32 v3, s6, v{VL16}\ns_add_u32 s7, s7, {LDS_SP}\nv_add_u32 v2, s7, v{VL16}")
    a.stamp(19)
    a("s_barrier")
    for f in range(20):
        r, off = (2, f*1024) if f < 8 else (3, (f-8)*1024) if f < 16 else (5, 49152+(f-16)*1024)
        a(f"ds_read_b128 {v(WR+4*f,4)}, v{r} offset:{off}")
        if f % 8 == 7: a("s_waitcnt lgkmcnt(6)")
    a("s_waitcnt lgkmcnt(0)\ns_barrier")
    wo_load(a, 4)
    idx_poll(a, "b", "s_waitcnt vmcnt(13)")
    a("s_call_b64 s[80:81], L_oprep\ns_waitcnt vmcnt(5)")
    set_flag(a, "ctx")
    a("s_branch L_adone")
    a.label("L_oprep")
    wo_voffs(a, VWM, VWO4)
    out_consts(a)
    out_items(a)
    a("s_setpc_b64 s[80:81]")
    a.label("L_pre1")
    cnt_addr(a); poll(a, cnt_load(a, 2, 1), "v_cmp_gt_u32 vcc, 4, v2", sleep=8)
    a(f"s_mov_b32 s{S_ALL}, 1")
    out_setup(a, 0)
    for j in range(5):
        if j == 4: idx_poll(a, "a", f"s_waitcnt vmcnt({10*j})")
        if j < 4:
            for i in (2*j, 2*j+1): wo_load(a, i)
        if j == 4:
            ctxf_addr(a, S_OB); a(f"buffer_load_dword v50, v3, {WS}, s72 offen sc1")
            a("s_call_b64 s[80:81], L_oprep")
        a(f"s_cmp_gt_i32 s{S_N}, s{S_NL}\ns_cbranch_scc1 L_e{j+2}")
        if j < 4:
            a(f"s_cmp_eq_i32 s{S_N}, s{S_NL}\ns_cbranch_scc1 L_lw{j}\ns_waitcnt vmcnt({(11, 10, 10, 10)[j]})")
            a.label(f"L_lw{j}")
        bar(f"vmcnt({20 if 'nocode2' in ABL else 21})")
        a.label(f"L_e{j+2}")
    a("s_waitcnt vmcnt(0)")
    a.stamp(22)
    moe_finish(a)
    a.stamp(23)
    a("v_cmp_ne_u32 vcc, 1, v50\ns_cbranch_vccz L_ce")
    ctxf_addr(a, S_OB)
    poll(a, f"buffer_load_dword v2, v3, {WS}, s72 offen sc1", "v_cmp_ne_u32 vcc, 1, v2", sleep=4)
    a.label("L_ce")
    a("s_setprio 0")
    a.stamp(19)
    a("s_barrier\ns_barrier")
    a.stamp(15)
    for r in range(2):
        for x in ctx_dma(r) + ctx_dma(r, 16384): a(x)
    a("s_waitcnt vmcnt(8)\ns_branch L_adone")
    moe_steps(a, bar)
    top8(a, bar)
    for h in handlers:
        if h[0] == "ld":
            a.label(h[1] + "_c"); a(f"s_waitcnt vmcnt(0) lgkmcnt(0)\ns_call_b64 s[82:83], L_pend\ns_barrier\ns_call_b64 s[82:83], L_load\ns_branch {h[1]}")
        else:
            _, bk, k, loop, full = h
            a.label(bk + "_h")
            a(f"v_cmp_nge_f32 vcc, s72, v{ET+4}\ns_cbranch_vccz {bk}_n\ns_call_b64 s[80:81], L_rare{1-(k&1)}")
            if full:
                o = sm_ops(k & 1)[:2]
                a(o[0][0]); a(o[1][0]); a("s_nop 0")
                for x in o[1][1]: a(x)
            a.label(bk + "_n")
            if loop:
                a(f"s_cmp_lt_i32 s{S_C}, 0\ns_cbranch_scc1 L_tail{(k+1)&3}\ns_cmp_gt_i32 s{S_C}, 0\ns_cbranch_scc1 {bk}\ns_call_b64 s[82:83], L_mask")
            a(f"s_branch {bk}")
    a.label("L_load")
    a(f"s_bitcmp1_b32 s{S_HK}, 0\ns_cbranch_scc0 L_load_r")
    a(f"s_add_u32 s77, s77, 32768\ns_xor_b32 s78, s78, 0x10000\ns_add_i32 s73, s{S_N}, 1\ns_cmp_gt_i32 s73, s{S_NL}\ns_cbranch_scc1 L_load_r")
    if "at_nodma" not in ABL:
        a(f"s_cmp_eq_i32 s73, s{S_NL}\ns_cbranch_scc1 L_load_v\ns_cmp_lg_i32 s73, 3\ns_cbranch_scc1 L_load_k")
        kv_flag_wait(a, 2)
        a.label("L_load_k")
        st_dma(a, ["K", "V1"])
        a.label("L_load_v")
        st_dma(a, ["V0"])
    a(f"s_cmp_eq_i32 s73, s{S_NL}\ns_cbranch_scc1 L_xa")
    a(f"s_cmp_lt_u32 s{S_P}, 4\ns_cbranch_scc1 L_load_r")
    a(f"s_sub_i32 s6, s{S_N}, {WOTN}\ns_cmp_gt_u32 s6, 4\ns_cbranch_scc1 L_wb\ns_cbranch_scc0 L_wsel")
    a.label("L_wb")
    a(f"s_sub_i32 s79, s73, 1\ns_cmp_lt_u32 s79, 2\ns_cbranch_scc1 L_x3")
    a.label("L_load_r")
    a("s_setpc_b64 s[82:83]")
    a.label("L_pend")
    a(f"s_bitcmp1_b32 s{S_HK}, 1\ns_cbranch_scc0 L_load_a\ns_cmp_lt_i32 s{S_N}, 0\ns_cbranch_scc1 L_load_a")
    set_flag(a, "kv", 2)
    a(f"s_and_b32 s{S_HK}, s{S_HK}, 1")
    a.label("L_load_a")
    a("s_setpc_b64 s[82:83]")
    def wo_dma(fs, m0base, m0off):
        for i, f in enumerate(fs):
            a(f"s_add_u32 m0, {m0base}, {m0off + i*1024}\ns_add_u32 s7, s74, {(f//5)*40960}\nbuffer_load_dwordx4 v{4 + f%5}, {WS}, s7 offen sc1 lds")
    WOTR = [160, 164, 168, 172, 176]
    a.label("L_wsel")
    a(f"s_lshr_b32 s7, s6, 1\ns_lshl_b32 s91, s2, 1\ns_add_u32 s91, s91, s7\ns_sub_u32 s91, s91, 256\ns_cmp_eq_u32 s6, 4\ns_cbranch_scc1 L_w2\ns_bitcmp1_b32 s6, 0\ns_cbranch_scc1 L_w1")
    a.label("L_w0")
    a.srd(SRD_E, P_WO, 4096*640*2)
    a(f"s_lshr_b32 s75, s91, 1\ns_mul_i32 s75, s75, {32*1280}\ns_and_b32 s6, s91, 1\ns_mul_i32 s6, s6, 640\ns_add_u32 s75, s75, s6\ns_movk_i32 s7, 1639")
    a(f"s_mul_i32 s74, s76, 5120\ns_add_u32 s74, s74, {LDS_WOT}\ns_mul_i32 s6, s76, 320\nv_add_u32 v9, s6, v{L}")
    for n in range(5):
        a(f"v_add_u32 v2, {n*64}, v9\nv_mul_lo_u32 v3, v2, s7\nv_lshrrev_b32 v3, 16, v3\nv_mul_u32_u24 v4, 40, v3\nv_sub_u32 v4, v2, v4")
        a(f"v_mul_u32_u24 v3, 1280, v3\nv_lshl_add_u32 v3, v4, 4, v3\ns_add_u32 m0, s74, {n*1024}\ns_nop 0")
        a(f"buffer_load_dwordx4 v3, {R(SRD_E)}, s75 offen{NT} lds")
    a("s_branch L_wb")
    a.label("L_w1")
    a(f"v_and_b32 v2, 15, v{L}\nv_lshrrev_b32 v3, 4, v{L}\nv_lshrrev_b32 v4, 2, v2\nv_lshl_add_u32 v4, v3, 2, v4\nv_mul_u32_u24 v4, 640, v4")
    a(f"v_and_b32 v2, 3, v2\nv_lshl_add_u32 v4, v2, 3, v4\ns_mul_i32 s6, s76, 160\ns_add_u32 s6, s6, {LDS_WOT}\nv_add_u32 v4, s6, v4")
    a(f"s_mul_i32 s6, s91, 20480\ns_mul_i32 s7, s76, 5120\ns_add_u32 s6, s6, s7\ns_add_u32 s6, s6, {WS_WOF}\ns_add_u32 s7, s6, 4096")
    for n in range(5):
        d = WOTR[n]
        a(f"ds_read_b64_tr_b16 v[{d}:{d+1}], v4 offset:{n*32}\nds_read_b64_tr_b16 v[{d+2}:{d+3}], v4 offset:{n*32+10240}")
    a("s_waitcnt lgkmcnt(0)")
    for n in range(5):
        a(f"buffer_store_dwordx4 {v(WOTR[n],4)}, v{VL16}, {WS}, s{6 if n<4 else 7} offen offset:{(n&3)*1024} sc1")
    a("s_branch L_wb")
    a.label("L_w2")
    a(f"s_cmp_lg_u32 s{S_W}, 0\ns_cbranch_scc1 L_wb")
    count_atomic(a, 1)
    a("s_branch L_wb")
    a.label("L_xa")
    a(f"s_cmp_lg_u32 s{S_ALL}, 0\ns_cbranch_scc1 L_xa1")
    cnt_addr(a); poll(a, cnt_load(a, 2, 1), "v_cmp_gt_u32 vcc, 4, v2", sleep=8)
    a.label("L_xa1")
    if "nocode2" not in ABL:
        a("s_getpc_b64 s[80:81]")
        a.label("L_pc2")
        a(f"s_sub_u32 s80, s80, L_pc2-L_fin\ns_subb_u32 s81, s81, 0\ns_and_b32 s6, s{S_H}, 1\ns_lshl_b32 s6, s6, 14\nv_lshl_add_u32 v3, v0, 6, s6")
        a(f"v_min_u32 v3, L_exit-L_fin, v3\nglobal_load_dword v{VDUM}, v3, s[80:81]")
    if "xt" in ABL:
        a.srd(SRD_A, P_X, 2048*640*2)
        a(f"v_lshrrev_b32 v2, 2, v{L}\nv_mul_u32_u24 v2, 1280, v2\nv_and_b32 v3, 3, v{L}\nv_lshl_add_u32 v2, v3, 6, v2")
        a(f"s_lshl_b32 s6, s{S_H}, 2\ns_add_u32 s6, s6, s{S_W}\ns_mul_i32 s73, s6, 20480\ns_mul_i32 s7, s{S_P}, 160\ns_andn2_b32 s7, s7, 63\ns_add_u32 s7, s7, s73")
        a(f"buffer_load_dword v{VDUM}, v2, {R(SRD_A)}, s7 offen\nv_min_u32 v2, 39, v{L}\nv_lshlrev_b32 v2, 6, v2\ns_mul_i32 s7, s{S_P}, 2560\ns_add_u32 s7, s7, s73")
        a(f"buffer_load_dword v{VDUM}, v2, {WS}, s7 offen sc1")
    wo_base(a, 74, 1)
    wo_voffs(a, 4)
    a(f"s_lshl_b32 s73, s{S_W}, 13\ns_add_u32 s75, s73, s78")
    wo_dma(range(8), "s73", LDS_SP); wo_dma(range(8, 16), "s75", 0)
    a(f"s_lshl_b32 s75, s{S_W}, 12\ns_add_u32 s75, s75, s78")
    wo_dma(range(16, 20), "s75", 49152)
    a("s_setpc_b64 s[82:83]")
    a.label("L_x3")
    if "nomoetouch" not in ABL:
        a.srd(SRD_A, P_WG, 640*1728*2)
        a(f"s_cmp_eq_u32 s{S_W}, 3\ns_cbranch_scc1 L_load_r")
        a(f"s_cmp_eq_u32 s{S_W}, 1\ns_cselect_b32 s{SRD_A}, s{P_WU}, s{SRD_A}\ns_cselect_b32 s{SRD_A+1}, s{P_WU+1}, s{SRD_A+1}")
        a(f"s_cmp_eq_u32 s{S_W}, 2\ns_cselect_b32 s{SRD_A}, s{P_WD}, s{SRD_A}\ns_cselect_b32 s{SRD_A+1}, s{P_WD+1}, s{SRD_A+1}")
        a(f"s_mov_b32 s73, 3456\ns_cmov_b32 s73, 256\ns_mov_b32 s75, 256\ns_cmov_b32 s75, {4*40960}")
        a(f"s_lshr_b32 s6, s2, 3\ns_sub_u32 s6, s6, 16\ns_mul_i32 s6, s6, 40\nv_lshrrev_b32 v2, 2, v{L}\nv_add_u32 v2, s6, v2\nv_mul_lo_u32 v2, v2, s73\nv_and_b32 v3, 3, v{L}\nv_lshl_add_u32 v2, v3, 6, v2")
        a(f"s_xor_b32 s79, s79, 1\ns_lshl_b32 s6, s79, 3\ns_lshr_b32 s7, s{S_H}, 2\ns_add_u32 s6, s6, s7\ns_mul_i32 s6, s6, s75")
        a(f"v_mov_b32 v3, {hex(WS_SIZE)}\nv_cmp_gt_u32 vcc, 32, v{L}\ns_lshl_b32 s73, s73, 4\ns_nop 0\nv_cndmask_b32 v3, v3, v2, vcc")
        a(f"buffer_load_dword v{VDUM}, v2, {R(SRD_A)}, s6 offen\ns_add_u32 s7, s6, s73\nbuffer_load_dword v{VDUM}, v2, {R(SRD_A)}, s7 offen")
        a(f"s_add_u32 s7, s7, s73\nbuffer_load_dword v{VDUM}, v3, {R(SRD_A)}, s7 offen")
    a("s_setpc_b64 s[82:83]")
    a.label("L_mask")
    a(f"v_and_b32 v2, 15, v{L}\nv_lshrrev_b32 v3, 4, v{L}\nv_lshlrev_b32 v3, 2, v3\nv_sub_u32 v2, v2, v3\nv_mov_b32 v3, 0xff800000")
    for r in range(4):
        a(f"v_cmp_gt_i32 vcc, {r}, v2\nv_mov_b32 v{NMreg(1,0)+r}, v3\ns_nop 0")
        a(f"v_cndmask_b32 v{NMreg(0,0)+r}, v{NMreg(0,0)+r}, v3, vcc\nv_cndmask_b32 v{NMreg(1,1)+r}, v{NMreg(1,1)+r}, v3, vcc")
    a("s_nop 1\ns_setpc_b64 s[82:83]")
    for par in range(2):
        a.label(f"L_rare{par}")
        a("s_nop 15")
        for qt in range(2):
            m = ET + 4
            s0, s1 = Sreg(par, 0, qt), Sreg(par, 1, qt)
            a(f"v_max3_f32 v{m}, 0, v{s0}, v{s0+1}\nv_max3_f32 v{m}, v{m}, v{s0+2}, v{s0+3}\nv_max3_f32 v{m}, v{m}, v{s1}, v{s1+1}\nv_max3_f32 v{m}, v{m}, v{s1+2}, v{s1+3}")
            xlane(a, "v_max_f32", m, ET)
            a(f"v_exp_f32 v{ET}, -v{m}")
            for kt in range(2):
                for r in range(4):
                    for reg in (Sreg(0,kt,qt), Sreg(1,kt,qt), NMreg(kt,qt)):
                        a(f"v_sub_f32 v{reg+r}, v{reg+r}, v{m}")
            a(f"v_mul_f32 v{L_+qt}, v{ET}, v{L_+qt}")
            for t in range(8):
                for r in range(4): a(f"v_mul_f32 v{Oreg(t,qt)+r}, v{ET}, v{Oreg(t,qt)+r}")
        for e, rest in sm_ops(par):
            a(e); a("s_nop 0")
            for x in rest: a(x)
        a("s_nop 1\ns_setpc_b64 s[80:81]")
    a.label("L_adone")
    a.stamp(13)

def top8(a, bar):
    K = 64
    a.label("L_top")
    a(f"s_mov_b32 s6, {hex(WS_R)}\nv_lshrrev_b32 v2, 1, v{L}\nv_and_b32 v3, 1, v{L}\nv_lshlrev_b32 v3, 4, v3\nv_lshl_add_u32 v2, v2, 7, v3")
    for i in range(8): a(f"buffer_load_dwordx4 {v(K+4*i,4)}, v2, {WS}, s6 offen sc1\ns_add_u32 s6, s6, 4096")
    a("s_waitcnt vmcnt(0)\nv_mov_b32 v24, 0\ns_mov_b32 s7, 0\ns_mov_b32 s84, 0")
    a.label("L_top_l")
    a(f"v_max3_u32 v4, v{K}, v{K+1}, v{K+2}\nv_max3_u32 v5, v{K+3}, v{K+4}, v{K+5}")
    for i in range(6, 30, 4): a(f"v_max3_u32 v4, v4, v{K+i}, v{K+i+1}\nv_max3_u32 v5, v5, v{K+i+2}, v{K+i+3}")
    a(f"v_max3_u32 v4, v4, v{K+30}, v{K+31}\nv_max_u32 v4, v4, v5")
    a.wave_reduce("v_max_u32", 4)
    a("v_readlane_b32 s6, v4, 63\ns_mov_b32 m0, s7\ns_nop 3\ns_add_u32 s84, s84, s6\nv_writelane_b32 v24, s84, m0")
    for i in range(32): a(f"v_subrev_u32 v{K+i}, s6, v{K+i}")
    a("s_add_u32 s7, s7, 1\ns_cmp_lt_u32 s7, 8\ns_cbranch_scc1 L_top_l")
    a(f"v_and_b32 v2, 7, v{L}\nv_lshlrev_b32 v2, 2, v2\nds_bpermute_b32 v4, v2, v24\ns_waitcnt lgkmcnt(0)\nv_and_b32 v4, 0x7ff, v4\nv_sub_u32 v4, 0x7ff, v4")
    a(f"v_lshrrev_b32 v5, 4, v4\nv_mul_u32_u24 v5, 20480, v5\nv_and_b32 v4, 15, v4\nv_lshl_add_u32 v5, v4, 4, v5\nv_lshrrev_b32 v7, 4, v{L}\nv_lshl_add_u32 v5, v7, 8, v5")
    a(f"v_mov_b32 v6, {hex(WS_SIZE)}\nv_and_b32 v2, 8, v{L}\nv_cmp_eq_u32 vcc, 0, v2\ns_mov_b32 s6, 0\ns_nop 0\nv_cndmask_b32 v5, v6, v5, vcc")
    for k in range(20):
        if k and k % 4 == 0: a("s_add_u32 s6, s6, 4096")
        a(f"buffer_load_dwordx4 {v(K+4*k,4)}, v5, {WS}, s6 offen offset:{(k&3)*1024} sc1")
    def put():
        a(f"s_waitcnt vmcnt(0)\ns_mov_b32 s6, {hex(WS_XS)}")
        for k in range(20):
            if k and k % 4 == 0: a("s_add_u32 s6, s6, 4096")
            a(f"buffer_store_dwordx4 {v(K+4*k,4)}, v{VL16}, {WS}, s6 offen offset:{(k&3)*1024} sc1")
    bar("vmcnt(20)", put)
    a("s_waitcnt vmcnt(16)")
    a(f"v_or_b32 v24, 0x80000000, v24\nv_lshlrev_b32 v5, 2, v{L}\nv_mov_b32 v6, {hex(WS_SIZE)}\nv_cmp_gt_u32 vcc, 8, v{L}\ns_mov_b32 s6, {hex(WS_IDX)}\ns_nop 0\nv_cndmask_b32 v5, v6, v5, vcc")
    a(f"buffer_store_dword v24, v5, {WS}, s6 offen sc1\ns_branch L_idle")

OACC = 176
M_WD, M_PART = 81920, 122880
VIDX = 51
def idx_addr(a):
    a(f"v_and_b32 v3, 7, v{L}\nv_lshlrev_b32 v3, 2, v3\ns_mov_b32 s72, {hex(WS_IDX)}")
def ctxf_addr(a, own):
    a(f"v_and_b32 v3, 1, v{L}\nv_lshlrev_b32 v3, 12, v3\nv_and_b32 v2, 2, v{L}\nv_lshl_add_u32 v3, v2, 8, v3")
    a(f"s_lshr_b32 s72, s{own}, 2\ns_lshl_b32 s72, s72, 6\ns_andn2_b32 s6, s{S_H}, 7\ns_add_u32 s72, s72, s6\ns_add_u32 s72, s72, s76\ns_lshl_b32 s72, s72, 7\ns_add_u32 s72, s72, {WS_CTXF}")
def idx_poll(a, sfx, wait="s_waitcnt vmcnt(40)"):
    a(wait)
    a(f"v_cmp_le_i32 vcc, 0, v{VIDX}\ns_cbranch_vccz L_idx_ok{sfx}")
    idx_addr(a)
    poll(a, f"buffer_load_dword v{VIDX}, v3, {WS}, s72 offen sc1", f"v_cmp_le_i32 vcc, 0, v{VIDX}")
    a.label(f"L_idx_ok{sfx}")

def moe_steps(a, bar):
    XS, FRG, GA, WDR, WD2, PR, YO = 64, 104, 24, 32, 240, 184, 216
    VG, VT, VD, VTD, VY, VXS = 16, 17, 18, 19, 20, 21
    S_G, S_WIN, S_D = 84, 85, 86
    a.label("L_moe")
    a(f"s_sub_u32 s6, s{S_N}, s{S_P}\ns_cmp_lg_u32 s6, 3\ns_cbranch_scc1 L_idle")
    def srds():
        a.srd(SRD_A, P_WG, 640*1728*2)
        a(f"s_cmp_ge_u32 s{S_W}, 2\ns_cselect_b32 s{SRD_A}, s{P_WU}, s{SRD_A}\ns_cselect_b32 s{SRD_A+1}, s{P_WU+1}, s{SRD_A+1}")
        a.srd(SRD_B, P_WD, 1728*640*2)
    def dma_g(nk):
        for n in range(2*nk):
            a(f"s_add_u32 m0, s{S_WIN}, {n*1024}\ns_nop 0\nbuffer_load_dwordx4 v{VG}, {R(SRD_A)}, s{S_G} offen lds\ns_add_u32 s{S_G}, s{S_G}, {16*3456}")
    def dma_d():
        for n in range(4):
            a(f"s_add_u32 m0, s{S_WIN}, {4096+n*1024}\ns_add_u32 s6, s{S_D}, {n*8*1280}\nbuffer_load_dwordx4 v{VD}, {R(SRD_B)}, s6 offen lds")
        a(f"s_add_u32 s{S_D}, s{S_D}, 512")
    def rd_g(k0, nk):
        for k in range(nk):
            for ft in range(2):
                d = FRG + ((k0+k)*2+ft)*4
                a(f"ds_read_b64_tr_b16 {v(d,2)}, v{VT} offset:{k*2048+ft*32}\nds_read_b64_tr_b16 {v(d+2,2)}, v{VT} offset:{k*2048+ft*32+256}")
            if k == 1: a("s_waitcnt lgkmcnt(0)")
    def xs(k0, nk):
        for k in range(k0, k0+nk): a(f"buffer_load_dwordx4 {v(XS+4*k,4)}, v{VL16}, {WS}, s88 offen sc1\ns_add_u32 s88, s88, 1024")
    def rd_d(base):
        for m in range(4):
            a(f"ds_read_b64_tr_b16 {v(base+4*m,2)}, v{VTD} offset:{m*32}\nds_read_b64_tr_b16 {v(base+2+4*m,2)}, v{VTD} offset:{m*32+16*128}")
    def down(base, goff):
        for m in range(4): a.mfma(YO+4*m, base+4*m, GA, "0")
        a("s_nop 7")
        for m in range(4): a(f"buffer_store_dwordx4 {v(YO+4*m,4)}, v{VY}, {WS}, s87 offen offset:{goff*1024+m*64} sc1")
        a("s_nop 1")
    srds()
    a(f"v_lshrrev_b32 v3, 2, v{L}\nv_mul_u32_u24 v3, 3456, v3\nv_and_b32 v4, 3, v{L}\nv_lshl_add_u32 v{VG}, v4, 4, v3")
    a(f"v_lshrrev_b32 v3, 3, v{L}\nv_mul_u32_u24 v3, 1280, v3\nv_and_b32 v4, 7, v{L}\nv_lshl_add_u32 v{VD}, v4, 4, v3")
    a(f"s_and_b32 s7, s{S_W}, 1\ns_mul_i32 s{S_G}, s7, {320*3456}\ns_lshl_b32 s6, s{S_E}, 6\ns_add_u32 s{S_G}, s{S_G}, s6")
    a(f"s_lshl_b32 s{S_WIN}, s{S_W}, 13\ns_add_u32 s{S_WIN}, s{S_WIN}, {LDS_SP}")
    a(f"s_mul_i32 s{S_D}, s{S_E}, 40960\ns_lshl_b32 s6, s{S_W}, 7\ns_add_u32 s{S_D}, s{S_D}, s6")
    dma_g(4)
    a(f"v_lshrrev_b32 v7, 4, v{L}\nv_and_b32 v2, 15, v{L}\nv_lshrrev_b32 v3, 2, v2\nv_lshl_add_u32 v8, v7, 3, v3\nv_lshlrev_b32 v8, 6, v8\nv_and_b32 v4, 3, v2\nv_lshl_add_u32 v8, v4, 3, v8\nv_add_u32 v{VT}, s{S_WIN}, v8")
    a(f"v_lshl_add_u32 v8, v7, 2, v3\nv_lshlrev_b32 v8, 7, v8\nv_lshl_add_u32 v8, v4, 3, v8\ns_add_u32 s6, s{S_WIN}, 4096\nv_add_u32 v{VTD}, s6, v8")
    a(f"v_mul_u32_u24 v3, 2560, v2\nv_lshl_add_u32 v3, v7, 4, v3\nv_mov_b32 v4, {hex(WS_SIZE)}\nv_cmp_gt_u32 vcc, 8, v2")
    a(f"s_mul_i32 s87, s{S_E}, 20480\ns_lshl_b32 s7, s{S_W}, 8\ns_add_u32 s87, s87, s7\ns_add_u32 s87, s87, {WS_YP}\nv_cndmask_b32 v{VY}, v4, v3, vcc")
    a(f"s_and_b32 s7, s{S_W}, 1\ns_mul_i32 s88, s7, 10240\ns_add_u32 s88, s88, {WS_XS}")
    W0 = "vmcnt(0) lgkmcnt(0)"
    def m1():
        rd_g(0, 4); a("s_waitcnt lgkmcnt(0)"); dma_g(4)
    bar(W0, m1)
    idx_addr(a); a(f"buffer_load_dword v{VIDX}, v3, {WS}, s72 offen sc1")
    def m2():
        rd_g(4, 4); a("s_waitcnt lgkmcnt(0)"); dma_g(2); dma_d()
    bar(W0, m2)
    idx_poll(a, "m", "")
    xs(0, 10)
    def m3():
        rd_g(8, 2); rd_d(WDR); a("s_waitcnt lgkmcnt(0)"); dma_d()
    bar("vmcnt(10) lgkmcnt(0)", m3)
    a("s_waitcnt vmcnt(20)")
    for k in range(10):
        for ft in range(2): a.mfma(GA+4*ft, FRG+(k*2+ft)*4, XS+4*k, "0" if k == 0 else None)
    a(f"v_add_u32 v10, s{S_WIN}, v{VL16}\ns_nop 7\nds_write_b128 v10, {v(GA,4)}\nds_write_b128 v10, {v(GA+4,4)} offset:1024")
    def m4():
        rd_d(WD2)
        a(f"v_add_u32 v10, {LDS_SP}, v{VL16}\ns_waitcnt lgkmcnt(0)")
        for w in range(4):
            for ft in range(2): a(f"ds_read_b128 {v(PR+(w*2+ft)*4,4)}, v10 offset:{w*8192+ft*1024}")
        a(f"s_cmp_ge_u32 s{S_W}, 2\ns_cbranch_scc1 L_moe4b")
        dma_d()
        a.label("L_moe4b")
    bar(W0, m4)
    a("s_waitcnt lgkmcnt(0)")
    a("s_mov_b32 s6, 0xbfb8aa3b")
    def rnd2(r): a(f"v_cvt_pk_bf16_f32 v{r+1}, v{r}, v{r+1}\nv_lshlrev_b32 v{r}, 16, v{r+1}\nv_and_b32 v{r+1}, 0xffff0000, v{r+1}")
    for i in range(0, 8, 2):
        g0, u0 = PR + i, PR + 16 + i
        for q in range(2): a(f"v_add_f32 v{g0+q}, v{g0+q}, v{g0+8+q}\nv_add_f32 v{u0+q}, v{u0+q}, v{u0+8+q}")
        rnd2(g0); rnd2(u0)
        a(f"v_mul_f32 v2, s6, v{g0}\nv_mul_f32 v3, s6, v{g0+1}\nv_exp_f32 v2, v2\nv_exp_f32 v3, v3\nv_add_f32 v2, 1.0, v2\nv_add_f32 v3, 1.0, v3".replace("v_exp_f32 v3, v3\n", "v_exp_f32 v3, v3\ns_nop 0\n"))
        a(f"v_rcp_f32 v2, v2\nv_rcp_f32 v3, v3\ns_nop 0\nv_mul_f32 v{g0}, v{g0}, v2\nv_mul_f32 v{g0+1}, v{g0+1}, v3")
        rnd2(g0)
        a(f"v_mul_f32 v{g0}, v{g0}, v{u0}\nv_mul_f32 v{g0+1}, v{g0+1}, v{u0+1}\nv_cvt_pk_bf16_f32 v{GA+i//2}, v{g0}, v{g0+1}")
    a("s_nop 1")
    down(WDR, 0)
    bar("vmcnt(4) lgkmcnt(0)")
    down(WD2, 1)
    a(f"s_cmp_ge_u32 s{S_W}, 2\ns_cbranch_scc1 L_moe5b")
    rd_d(WDR); a("s_waitcnt lgkmcnt(0)"); down(WDR, 2)
    a.label("L_moe5b")
    bar("vmcnt(4) lgkmcnt(0)", lambda: (a("s_waitcnt vmcnt(0)"), set_flag(a, "moe")))
    a("s_branch L_idle")

def moe_finish(a):
    YS = [16+4*i for i in range(8)] + [56+4*i for i in range(10)]
    Y, XR = YS[0], 54
    a(f"s_lshr_b32 s6, s{S_P}, 1\ns_lshl_b32 s7, s{S_W}, 4\ns_add_u32 s6, s6, s7\ns_cmp_lg_u32 s6, 2\ns_cbranch_scc1 L_yd")
    a(f"s_and_b32 s6, s{S_P}, 1\ns_xor_b32 s6, s6, 1\ns_lshl_b32 s6, s6, 2\ns_lshr_b32 s87, s{S_H}, 3\ns_add_u32 s87, s87, s6\ns_and_b32 s88, s{S_H}, 7")
    a(f"s_mov_b32 m0, s87\ns_nop 3\nv_readlane_b32 s85, v{VIDX}, m0\ns_nop 3\ns_and_b32 s86, s85, 0x7ff\ns_sub_u32 s86, 0x7ff, s86")
    a(f"v_min_u32 v3, 53, v{L}\nv_lshlrev_b32 v3, 7, v3\ns_mov_b32 s72, {hex(WS_MOEF)}")
    poll(a, f"buffer_load_dwordx4 {v(Y,4)}, v3, {WS}, s72 offen sc1",
         "\n".join([f"v_and_b32 v{Y}, v{Y}, v{Y+r}" for r in (1, 2, 3)]) + f"\nv_cmp_ne_u32 vcc, 1, v{Y}", sleep=16)
    a(f"v_mul_u32_u24 v2, 13, v{L}\nv_lshrrev_b32 v2, 8, v2\nv_mul_u32_u24 v3, 20, v2\nv_sub_u32 v4, v{L}, v3")
    a(f"s_mov_b32 s6, {18*20480}\nv_mul_lo_u32 v2, v2, s6\nv_lshl_add_u32 v2, v4, 4, v2")
    a(f"v_cmp_lt_u32 vcc, 59, v{L}\nv_mov_b32 v3, {hex(WS_SIZE)}\ns_nop 0\nv_cndmask_b32 v2, v2, v3, vcc")
    a(f"s_mul_i32 s6, s87, 2560\ns_mul_i32 s7, s88, 320\ns_add_u32 s6, s6, s7\ns_add_u32 s6, s6, {WS_YP}")
    for e in range(18):
        a(f"buffer_load_dwordx4 {v(YS[e],4)}, v2, {WS}, s6 offen sc1\ns_add_u32 s6, s6, 20480")
    a(f"s_lshr_b32 s6, s86, 4\ns_mul_i32 s6, s6, 20480\ns_and_b32 s7, s86, 15\ns_lshl_b32 s7, s7, 4\ns_add_u32 s6, s6, s7\ns_mul_i32 s7, s88, 2560\ns_add_u32 s6, s6, s7")
    a(f"v_lshrrev_b32 v5, 1, v4\nv_lshlrev_b32 v5, 8, v5\nv_and_b32 v6, 1, v4\nv_lshl_add_u32 v5, v6, 3, v5\nbuffer_load_dwordx2 {v(XR,2)}, v5, {WS}, s6 offen sc1")
    a("s_bfe_u32 s6, s85, 0x10000b\ns_xor_b32 s7, s6, 0xffff\ns_bitcmp1_b32 s6, 15\ns_bitset0_b32 s6, 15\ns_cselect_b32 s6, s6, s7\ns_lshl_b32 s6, s6, 16\nv_mov_b32 v5, s6")
    a("v_mul_f32 v5, 0xbfb8aa3b, v5\nv_exp_f32 v5, v5\ns_nop 0\nv_add_f32 v5, 1.0, v5\nv_rcp_f32 v5, v5\ns_nop 0")
    bf16_round(a, 5)
    a(f"v_lshlrev_b32 v6, 2, v{L}\ns_waitcnt vmcnt(0)")
    for e in range(1, 18):
        a(f"v_pk_add_f32 {v(Y,2)}, {v(Y,2)}, {v(YS[e],2)}\nv_pk_add_f32 {v(Y+2,2)}, {v(Y+2,2)}, {v(YS[e]+2,2)}")
    for k in range(2):
        for r in range(4): a(f"ds_bpermute_b32 v{Y+4+4*k+r}, v6, v{Y+r} offset:{80*(k+1)}")
    a("s_waitcnt lgkmcnt(0)")
    for r in range(4):
        y = Y + r
        a(f"v_add_f32 v{y}, v{y}, v{y+4}\nv_add_f32 v{y}, v{y}, v{y+8}")
        bf16_round(a, y)
        a(f"v_mul_f32 v{y}, v{y}, v5")
        bf16_round(a, y)
        xn = XR + (r >> 1)
        a(f"v_and_b32 v7, 0xffff0000, v{xn}" if r & 1 else f"v_lshlrev_b32 v7, 16, v{xn}")
        a(f"v_add_f32 v{y}, v{y}, v7")
    a(f"v_cvt_pk_bf16_f32 v{Y+4}, v{Y}, v{Y+1}\nv_cvt_pk_bf16_f32 v{Y+5}, v{Y+2}, v{Y+3}")
    a(f"v_lshlrev_b32 v2, 3, v{L}\nv_cmp_lt_u32 vcc, 19, v{L}\ns_mul_i32 s6, s87, 1280\ns_mul_i32 s7, s88, 160\nv_cndmask_b32 v2, v2, v3, vcc\ns_add_u32 s6, s6, s7\ns_add_u32 s6, s6, {WS_BSEL}")
    a(f"buffer_store_dwordx2 {v(Y+4,2)}, v2, {WS}, s6 offen sc1")
    a("s_call_b64 s[80:81], L_oprep\ns_waitcnt vmcnt(0)")
    set_flag(a, "b")
    a.label("L_yd")

WR, OA, CR, RT = 96, 56, 16, 32
S_OW, S_OB, S_CX, S_OL = 69, 68, 66, 61
VWO4 = 52
LDS_P, LDS_F = 98304, 65536
def wo_base(a, d, nh):
    a(f"s_lshr_b32 s{d}, s{S_H}, 3\ns_lshl_b32 s{d}, s{d}, 2\ns_add_u32 s{d}, s{d}, s76\ns_mul_i32 s{d}, s{d}, {8*40960}\ns_and_b32 s7, s{S_H}, 3\ns_mul_i32 s7, s7, 10240\ns_add_u32 s{d}, s{d}, s7\ns_add_u32 s{d}, s{d}, {WS_WOF + nh*5120}")

XNA = 48
S_TOK = 64
VWM = 44
def wo_voffs(a, r0, r4=None):
    for m in range(4): a(f"s_add_u32 s6, s76, {m}\ns_and_b32 s6, s6, 3\ns_lshl_b32 s6, s6, 10\nv_add_u32 v{r0+m}, s6, v{VL16}")
    a(f"v_add_u32 v{r0+4 if r4 is None else r4}, 4096, v{VL16}")
def wm(m): return VWM + m if m < 4 else VWO4
def wo_load(a, i):
    a(f"s_add_u32 s75, s{S_OW}, {i*40960}")
    for m in range(5): a(f"buffer_load_dwordx4 {v(WR+4*(5*i+m),4)}, v{wm(m)}, {WS}, s75 offen sc1")

def out_setup(a, nh):
    if nh == 0:
        idx_addr(a); a(f"buffer_load_dword v{VIDX}, v3, {WS}, s72 offen sc1")
    wo_voffs(a, VWM, VWO4)
    wo_base(a, S_OW, nh)
    a(f"s_and_b32 s6, s{S_H}, 4\ns_lshr_b32 s7, s{S_H}, 3\ns_add_u32 s6, s6, s7\ns_lshl_b32 s7, s{S_P}, 3\ns_add_u32 s{S_OB}, s6, s7\ns_sub_u32 s7, 120, s7\ns_add_u32 s{S_OL}, s6, s7")

VCA, VT, VPR = 4, 5, 6
S_RED = 71
S_PB, S_XS = 67, 96
def out_consts(a):
    a(f"s_lshr_b32 s6, s{S_W}, 2\ns_lshl_b32 s6, s6, 1\ns_sub_u32 s{S_RED}, s76, s6\ns_and_b32 s{S_RED}, s{S_RED}, 3")
    a(f"s_lshr_b32 s6, s{S_H}, 3\ns_lshl_b32 s6, s6, 15\ns_lshl_b32 s99, s{S_W}, 12\ns_add_u32 s{S_CX}, s6, s99\ns_add_u32 s{S_CX}, s{S_CX}, {WS_CTX}")
    a(f"s_lshl_b32 s6, s76, 13\nv_add_u32 v{VCA}, s6, v{VL16}\nv_add_u32 v7, 65536, v{VCA}")
    a(f"s_lshr_b32 s6, s{S_W}, 2\ns_mul_i32 s{S_PB}, s6, 15360\ns_add_u32 s{S_PB}, s{S_PB}, {LDS_P}\nv_add_u32 v{VPR}, s{S_PB}, v{VWM}")
    for k in range(3):
        xslot(a, k, S_XS+k)
        a(f"s_mul_i32 s{S_XS+k}, s{S_XS+k}, 20480\ns_lshr_b32 s6, s{S_W}, 2\ns_mul_i32 s6, s6, 5120\ns_add_u32 s{S_XS+k}, s{S_XS+k}, s6\ns_add_u32 s{S_XS+k}, s{S_XS+k}, {WS_XP}")

def ctx_dma(r, extra=0):
    own, d = (S_OL if r in (3, 4, 5, 7) else S_OB), (1 + r % 3 if r < 6 else 0)
    o = [f"s_add_u32 s65, s{own}, {d}\ns_and_b32 s65, s65, 3\ns_andn2_b32 s7, s{own}, 3\ns_add_u32 s65, s65, s7\ns_lshl_b32 s65, s65, 17\ns_add_u32 s65, s65, s{S_CX}\ns_add_u32 m0, s99, {(r%3)*32768+extra}\ns_add_u32 s65, s65, {extra}"]
    return o + [f"buffer_load_dwordx4 v{VL16}, {WS}, s65 offen offset:{i*1024} sc1 lds" for i in range(4)]

def phase_out(a):
    def rdc(r, i):
        reg, off = (VCA, (r%3)*32768) if r % 3 < 2 else (7, 0)
        a(f"ds_read_b128 {v(CR+4*(i&3),4)}, v{reg} offset:{off+i*1024}"); a.lg.issue(("C", i & 3))
    def xflag(vals):
        a(f"v_mov_b32 v3, {hex(WS_SIZE)}")
        for slot, val in enumerate(vals):
            if val:
                xf_addr(a, slot, 6)
                a(f"v_writelane_b32 v3, s6, {slot}\nv_writelane_b32 v2, {val}, {slot}")
        a(f"buffer_store_dword v2, v3, {WS}, 0 offen sc1")
    def xlook_addr():
        a(f"v_bfe_u32 v2, v{L}, 3, 2\nv_min_u32 v2, 2, v2\nv_and_b32 v3, 7, v{L}\nv_lshlrev_b32 v3, 2, v3\nv_lshl_add_u32 v3, v2, 7, v3")
    a("s_barrier")
    a.lg.drain()
    for i in range(4): rdc(0, i)
    IT = [(WR, WR+4), (WR+8, WR+12)]
    XI, LP, OUTR = WR+16, WR+64, WR+128
    def emit(x):
        if "o_now" in ABL and not isinstance(x, str) and x[0] == "W": return
        if "o_noadd" in ABL and isinstance(x, str) and x.startswith("v_add_f32"): return
        if "o_nodma" in ABL and isinstance(x, str) and x.endswith("lds"): return
        if "o_nost" in ABL and isinstance(x, str) and "buffer_store" in x: return
        if isinstance(x, str): a(x)
        elif x[0] == "wait": a.wait_lg(x[1])
        else:
            a(x[1]); a.lg.issue(x[0])
    def xin_addr():
        tile_id(a, 72)
        a(f"s_lshl_b32 s72, s72, 2\ns_lshr_b32 s7, s{S_H}, 3\ns_add_u32 s72, s72, s7\ns_mul_i32 s75, s72, 61440\ns_add_u32 s75, s75, {WS_XP}\ns_mul_i32 s72, s72, 384\ns_add_u32 s72, s72, {WS_XF}")
    def xin_load(slots):
        sk = a.newlabel("xi")
        for n in range(2):
            if n == 1: a(f"s_cmp_ge_u32 s{S_W}, 2\ns_cbranch_scc1 {sk}")
            for s_ in slots:
                a(f"s_add_u32 s6, s75, {s_*20480}")
                for hf in range(2): a(f"buffer_load_dwordx4 {v(XI+24*n+8*s_+4*hf,4)}, v{8+n}, {WS}, s6 offen offset:{hf*256} sc1")
        a.label(sk)
    for r in range(8):
        if "stampout" in ABL: a.stamp(44 + r)
        A = OA + 20*(r & 1); Ap = OA + 20*((r-1) & 1)
        po = ((r-1) & 1)*30720
        red = 1 <= r <= 6
        ib = 3 if r == 6 else 5
        for i in range(8):
            if r == 0 and i >= 4: a(f"s_waitcnt vmcnt({(20, 14, 9, 4)[i-4]})")
            a.wait_lg(("C", i & 3))
            fill = [[] for _ in range(5)]
            post = []
            if i == 0 and red:
                fill[1].append(f"s_sub_u32 s6, s{S_RED}, {r}\ns_and_b32 s6, s6, 3\ns_mul_i32 s7, s6, 5120")
                fill[2].append(f"s_add_u32 s7, s7, s{S_PB}\ns_cmp_eq_u32 s6, 3\ns_cselect_b32 s7, {159744-4096-po}, s7")
                fill[3].append(f"v_add_u32 v12, s7, v{VWO4}")
                fill[4].append(f"v_add_u32 v{VT}, s{S_PB}, v{wm(1)}")
            if red:
                pos = ((1, 0), (1, 3), (2, 1), (2, 4)) if r == 6 else ((1, 0), (2, 0), (3, 0), (4, 0))
                for m in range(1, 5):
                    if pos[m-1][0] == i:
                        g = pos[m-1][1]
                        if m < 4:
                            fill[g].append(("W", f"ds_write_b128 v{VT}, {v(Ap+4*m,4)} offset:{po+(m-1)*5120}"))
                            fill[g].append(f"v_add_u32 v{VT}, s{S_PB}, v{wm(m+1)}")
                        else: fill[g].append(("W", f"ds_write_b128 v12, {v(Ap+16,4)} offset:{po}"))
            if i == 0 and r == 7:
                fill[3].append(f"s_mul_i32 s73, s{S_W}, 5120\ns_add_u32 s73, s73, {LDS_F}")
                fill[4].append(f"v_add_u32 v{VT}, s73, v{wm(0)}")
            if 1 <= i <= 5 and r == 7:
                fill[0].append(("W", f"ds_write_b128 v{VT}, {v(Ap+4*(i-1),4)}"))
                if i < 5: fill[0].append(f"v_add_u32 v{VT}, s73, v{wm(i)}")
            st_ = lambda reg, vo: (f"buffer_store_dwordx4 {v(reg,4)}, v{vo}, {WS}, s6 offen sc1" if "noxst" not in ABL else f"buffer_load_dword v{VDUM}, v{VWM}, {WS}, 0 offen")
            if i == ib + 1 and red:
                fill[1].append(("wait", ("P", 2)))
                for k in range(3):
                    for q in range(4): fill[2+k].append(f"v_add_f32 v{Ap+q}, v{Ap+q}, v{RT+4*k+q}")
                for k in range(3): post.append((("P", k), f"ds_read_b128 {v(RT+4*k,4)}, v{VT} offset:{po+k*5120}"))
            if i == ib + 2 and red:
                fill[0].append(f"s_add_u32 s6, s{S_XS+(r-1)%3}, {((r-1)//3)*10240}")
                fill[1].append(("wait", ("P", 2)))
                for k in range(3):
                    for q in range(4): fill[2+k].append(f"v_add_f32 v{Ap+16+q}, v{Ap+16+q}, v{RT+4*k+q}")
                sk = a.newlabel("nost")
                post.append(st_(Ap, VWM))
                post.append(f"s_cmp_lg_u32 s{S_RED}, {(r-1)&3}\ns_cbranch_scc1 {sk}\n" + st_(Ap+16, VWO4) + f"\n{sk}:\ns_nop 0")
            if (i == 6 and 0 < r < 5) or (i == 3 and r == 0):
                d = ctx_dma(r+3 if i == 6 else 2)
                fill[0].append(d[0]); fill[0].append(d[1]); fill[1].insert(0, d[2])
            if i == 3 and r == 0:
                fill[2].append(d[3]); fill[3].append(d[4])
            if i == 7 and 0 < r < 5:
                fill[0].insert(0, d[3]); fill[1].insert(0, d[4])
            for m in range(5):
                a.mfma(A+4*m, WR+4*(5*i+m), CR+4*(i&3), "0" if i == 0 else None)
                for x in fill[m]: emit(x)
            for x in post: emit(x)
            if i < 4: rdc(r, i+4)
            elif r < 7 and i > 5: rdc(r+1, i-4)
            if r == 0 and i < 3:
                sk = a.newlabel("nowl")
                a(f"s_cmp_lt_u32 s{S_W}, 4\ns_cbranch_scc1 {sk}")
                wo_load(a, 5+i)
                a.label(sk)
            if i == 2 and r == 7:
                a("s_waitcnt vmcnt(0)")
                xflag((0, 2, 2))
            if i == 2 and r == 1:
                a(f"s_cmp_ge_u32 s{S_W}, 4\ns_cbranch_scc1 L_o1a")
                ctxf_addr(a, S_OL); a(f"buffer_load_dword v50, v3, {WS}, s72 offen sc1")
                a.label("L_o1a")
            if i == ib and i != 5:
                a("s_waitcnt vmcnt(1)")
                xflag((2, 1, 1))
                a("s_waitcnt lgkmcnt(0)\ns_barrier"); a.lg.drain()
            if i == 5:
                if r == 0:
                    a(f"s_cmp_ge_u32 s{S_W}, 4\ns_cbranch_scc1 L_o0\ns_waitcnt vmcnt(4)")
                    a.label("L_o0")
                elif r == 1:
                    a(f"s_waitcnt vmcnt(0)\ns_cmp_ge_u32 s{S_W}, 4\ns_cbranch_scc1 L_o1\nv_cmp_ne_u32 vcc, 1, v50\ns_cbranch_vccz L_o1")
                    poll(a, f"buffer_load_dword v2, v3, {WS}, s72 offen sc1", "v_cmp_ne_u32 vcc, 1, v2", sleep=1)
                    a.label("L_o1")
                elif r < 6: a(f"s_waitcnt vmcnt({(4, 4, 5, 5, 5, 5)[r]})")
                if r < 7:
                    a("s_waitcnt lgkmcnt(0)\ns_barrier"); a.lg.drain()
            if i == 3 and r == 7:
                a(f"s_cmp_eq_u32 s{S_TOK}, 0\ns_cbranch_scc1 L_nb")
                a(f"v_bfe_u32 v2, v{L}, 1, 3\nv_and_b32 v3, 1, v{L}\nv_lshl_add_u32 v3, v2, 3, v3\nv_lshlrev_b32 v3, 7, v3\ns_and_b32 s6, s{S_H}, 3\ns_lshl_b32 s6, s6, 8\ns_add_u32 s6, s6, {WS_BF+128*128}")
                poll(a, f"buffer_load_dword v2, v3, {WS}, s6 offen sc1", "v_cmp_ne_u32 vcc, 1, v2")
                a.label("L_nb")
                sk = a.newlabel("itskip")
                for n in range(2):
                    if n == 1: a(f"s_cmp_ge_u32 s{S_W}, 2\ns_cbranch_scc1 {sk}")
                    a(f"buffer_load_dwordx4 {v(IT[n][0],4)}, v{53+n}, {R(SRD_A)}, s70 offen\nbuffer_load_dwordx4 {v(IT[n][1],4)}, v{XNA+n}, {WS}, 0 offen sc1")
                a.label(sk)
            if i == 5 and r == 7:
                xin_addr(); xlook_addr()
                a(f"s_bitcmp1_b32 13, s{S_W}\ns_cselect_b32 s77, 1, 2\nbuffer_load_dword v50, v3, {WS}, s72 offen sc1")
            if i == ib and red:
                for k in range(3):
                    a(f"ds_read_b128 {v(RT+4*k,4)}, v{VPR} offset:{po+k*5120}"); a.lg.issue(("P", k))
            if i == 5 and r < 7:
                rdc(r+1, 0); rdc(r+1, 1)
            if i == 5 and r == 1:
                for x in ctx_dma(3): a(x)
    a.stamp(16)
    a("s_nop 7")
    for m in range(5): a(f"v_add_u32 v{VT}, s73, v{wm(m)}\nds_write_b128 v{VT}, {v(OA+20+4*m,4)} offset:40960")
    a("s_waitcnt vmcnt(0)\nv_cmp_gt_u32 s[78:79], s77, v50\ns_nop 3\ns_cmp_lg_u64 s[78:79], 0\ns_cbranch_scc1 L_x2a")
    xin_load((0, 1, 2))
    a.label("L_x2a")
    a("s_waitcnt lgkmcnt(0)\ns_barrier")
    for n in range(2):
        for k in range(4):
            for hf in range(2): a(f"ds_read_b128 {v(LP+32*n+8*k+4*hf,4)}, v{(10,55)[n]} offset:{k*5120+hf*256}")
    a("s_cmp_eq_u64 s[78:79], 0\ns_cbranch_scc1 L_x2b")
    poll(a, f"buffer_load_dword v2, v3, {WS}, s72 offen sc1", "v_cmp_gt_u32 vcc, s77, v2", sleep=1)
    xin_load((0, 1, 2))
    a.label("L_x2b")
    a.srd(SRD_B, P_OUT, 2048*640*2)
    a.stamp(17)
    for n in range(2):
        if n == 1: a(f"s_cmp_ge_u32 s{S_W}, 2\ns_cbranch_scc1 L_end")
        S = LP + 32*n
        a(f"s_waitcnt lgkmcnt({8 if n == 0 else 0})")
        for k in range(1, 4):
            for q in range(0, 8, 2): a(f"v_pk_add_f32 {v(S+q,2)}, {v(S+q,2)}, {v(S+8*k+q,2)}")
        a("s_waitcnt vmcnt(0)" if n == 0 else "s_nop 0")
        for k in range(3):
            for q in range(0, 8, 2): a(f"v_pk_add_f32 {v(S+q,2)}, {v(S+q,2)}, {v(XI+24*n+8*k+q,2)}")
        for q in range(4):
            x0, x1 = S+2*q, S+2*q+1
            a(f"v_cvt_pk_bf16_f32 v2, v{x0}, v{x1}\nv_lshlrev_b32 v{x0}, 16, v2\nv_and_b32 v{x1}, 0xffff0000, v2")
            a(f"v_lshlrev_b32 v2, 16, v{IT[n][0]+q}\nv_and_b32 v3, 0xffff0000, v{IT[n][0]+q}\nv_pk_add_f32 {v(x0,2)}, {v(x0,2)}, v[2:3]")
            a(f"v_cvt_pk_bf16_f32 v2, v{x0}, v{x1}\nv_lshlrev_b32 v{x0}, 16, v2\nv_and_b32 v{x1}, 0xffff0000, v2")
            a(f"v_lshlrev_b32 v2, 16, v{IT[n][1]+q}\nv_and_b32 v3, 0xffff0000, v{IT[n][1]+q}\nv_pk_add_f32 {v(x0,2)}, {v(x0,2)}, v[2:3]")
            a(f"v_cvt_pk_bf16_f32 v{OUTR+4*n+q}, v{x0}, v{x1}")
        a(f"buffer_store_dwordx4 {v(OUTR+4*n,4)}, v{53+n}, {R(SRD_B)}, s70 offen")

def out_items(a):
    a.srd(SRD_A, P_X, 2048*640*2)
    a(f"s_and_b32 s75, s{S_H}, 3\ns_mul_i32 s70, s75, 320\ns_add_u32 s73, s70, {WS_BSEL}")
    a(f"s_mul_i32 s72, s75, 5120")
    a(f"v_lshrrev_b32 v2, 4, v{L}\nv_and_b32 v3, 15, v{L}\nv_mul_u32_u24 v54, 1280, v3\nv_lshl_add_u32 v54, v2, 4, v54\nv_lshlrev_b32 v3, 4, v3\nv_lshl_add_u32 v9, v2, 9, v3")
    a(f"s_lshr_b32 s100, s{S_W}, 2\ns_cselect_b32 s6, s{S_OL}, s{S_OB}\ns_mul_i32 s6, s6, 20480\ns_lshl_b32 s7, s76, 6\ns_add_u32 s7, s7, s6\nv_add_u32 v53, s7, v54")
    a(f"s_lshl_b32 s7, s76, 10\ns_add_u32 s7, s7, s6\ns_add_u32 s7, s7, s72\nv_add_u32 v{XNA}, s7, v{VL16}")
    a(f"s_mul_i32 s6, s100, 10240\ns_lshl_b32 s7, s76, 11\ns_add_u32 s6, s6, s7\nv_add_u32 v8, s6, v9")
    a(f"s_mul_i32 s6, s100, 30720\ns_add_u32 s6, s6, {LDS_F}\nv_add_u32 v10, s6, v8\ns_lshl_b32 s7, s76, 2\nv_add_u32 v2, s7, v2\nv_cmp_lt_u32 vcc, 9, v2\nv_add_u32 v3, 15360, v10\ns_nop 0\nv_cndmask_b32 v10, v10, v3, vcc")
    a(f"s_and_b32 s100, s{S_W}, 1\ns_cselect_b32 s6, s{S_OL}, s{S_OB}\ns_mul_i32 s6, s6, 20480\ns_add_u32 s7, s6, 256\nv_add_u32 v54, s7, v54\ns_add_u32 s7, s6, s72\ns_add_u32 s7, s7, 4096\nv_add_u32 v{XNA+1}, s7, v{VL16}")
    a(f"s_mul_i32 s6, s100, 10240\ns_add_u32 s6, s6, 8192\nv_add_u32 v9, s6, v9\ns_mul_i32 s6, s100, 30720\ns_add_u32 s6, s6, {LDS_F+15360}\nv_add_u32 v55, s6, v9")
    sk = a.newlabel("notok")
    a(f"s_mov_b32 s{S_TOK}, 0")
    a(f"v_and_b32 v2, 0x7ff, v{VIDX}\nv_sub_u32 v2, 0x7ff, v2\nv_lshrrev_b32 v3, 4, v2\nv_cmp_eq_u32 vcc, s{S_OB}, v3\nv_cmp_eq_u32 s[74:75], s{S_OL}, v3\ns_nop 3\ns_or_b64 vcc, vcc, s[74:75]\ns_cbranch_scc0 {sk}")
    for tk in range(8): a(f"v_readlane_b32 s{(84,85,86,87,88,90,91,101)[tk]}, v2, {tk}")
    for n in range(2):
        a(f"s_lshl_b32 s7, s76, 6\ns_lshr_b32 s100, s{S_W}, 2" if n == 0 else f"s_movk_i32 s7, 256\ns_and_b32 s100, s{S_W}, 1")
        a(f"s_cselect_b32 s6, s{S_OL}, s{S_OB}\ns_lshl_b32 s6, s6, 4\nv_and_b32 v2, 15, v{L}\nv_add_u32 v2, s6, v2")
        a(f"s_add_u32 s7, s7, s73\nv_and_b32 v3, 48, v{L}\nv_add_u32 v3, s7, v3")
        for tk in range(8):
            a(f"v_cmp_eq_u32 vcc, s{(84,85,86,87,88,90,91,101)[tk]}, v2\ns_nop 1\nv_cndmask_b32 v{XNA+n}, v{XNA+n}, v3, vcc")
            if tk < 7: a(f"v_add_u32 v3, 1280, v3")
    a(f"s_mov_b32 s{S_TOK}, 1")
    a.label(sk)

def gen(a):
    phase_start(a)
    phase_kv(a)
    phase_q(a)
    phase_attn(a)
    phase_out(a)
    a.label("L_end")
    a.stamp(18)
    if a.prof: a("s_waitcnt vmcnt(0)")
    if a.prof and os.environ.get("STRETCH"):
        s0, s1 = os.environ["STRETCH"].split(",")
        a(f"v_readlane_b32 s6, v15, {s0}\nv_readlane_b32 s7, v15, {s1}\nv_readlane_b32 s72, v15, 18\ns_nop 3\ns_sub_u32 s6, s7, s6\ns_min_u32 s6, s6, 20000")
        a.label("L_str")
        a("s_memrealtime s[94:95]\ns_waitcnt lgkmcnt(0)\ns_sub_u32 s7, s94, s72\ns_cmp_lt_u32 s7, s6\ns_cbranch_scc1 L_str")
    if a.prof and os.environ.get("DBGWG"):
        a(f"s_mov_b64 exec, -1\ns_cmp_lg_u32 s2, {os.environ['DBGWG']}\ns_cbranch_scc1 L_nodbg\ns_cmp_lg_u32 s{S_W}, 0\ns_cbranch_scc1 L_nodbg")
        a.srd(SRD_E, P_DBG, 64)
        a(f"v_readlane_b32 s6, v15, 0\ns_nop 3\nv_subrev_u32 v2, s6, v15\nv_subrev_u32 v3, 3, v{L}\nv_lshlrev_b32 v3, 2, v3\nv_cmp_gt_u32 vcc, 4, v{L}\nv_mov_b32 v4, 0x1000\ns_nop 0\nv_cndmask_b32 v3, v3, v4, vcc")
        a(f"buffer_store_dword v2, v3, {R(SRD_E)}, 0 offen")
        a.label("L_nodbg")
    a.stamp_flush(SRD_WS, WS_PROF)
    a.label("L_exit")
    a("s_endpgm")

HEADER = open(os.path.join(os.path.dirname(os.path.abspath(__file__)), "..", NAME + ".s.ref")).read().split("; Override launch")[0]
if __name__ == "__main__":
    name = NAME + "_kernel"
    out = HEADER + "; @launch grid=(256,1,1) block=(512,1,1) lds=163840\n" + '.amdgcn_target "amdgcn-amd-amdhsa--gfx950"\n'
    a = Asm(); a.prof = bool(os.environ.get("PROF"))
    a.o.append(kernel_header(name).rstrip())
    gen(a)
    out += a.text() + '.section .rodata,"a"\n.p2align 6\n' + kernel_desc(name)
    open(sys.argv[1] if len(sys.argv) > 1 else "k.s", "w").write(out)
```

```python
import sys, os
from asmlib import *

NAME = "parallel_sum__compressed_kv_cla__moe_arch_mod__prompt"
ABL = set(os.environ.get("ABL", "").split(","))
WS_XN = 0x0
WS_R = 0x280000
WS_YP = 0x290000
WS_IDX = 0x3A0000
WS_KVF = 0x3B0000
WS_CTXF = 0x3C0000
WS_MOEF = 0xF20000
WS_BSEL = 0x3A9000
WS_BF = 0x3B8000
WS_WOF = 0x400000
WS_XS = 0xC00000
WS_PROF = 0x900000
WS_KV = 0x1000000
WS_CTX = 0x3000000
WS_XF = 0xF00000
WS_XP = 0x4000000
WS_SIZE = 0x5000000
S_W, S_H, S_P = 3, 4, 5
SRD_WS, SRD_A, SRD_B, SRD_C, SRD_D, SRD_E = 8, 12, 16, 20, 24, 28
P_X, P_CKV, P_WQ, P_WUK, P_WUV, P_WO, P_BX, P_WR, P_WG, P_WU, P_WD, P_OUT, P_DBG, P_WS = range(32, 60, 2)
S_B, S_E = 60, 61
WS = f"s[{SRD_WS}:{SRD_WS+3}]"
def R(d): return f"s[{d}:{d+3}]"
L, VL16 = 1, 13
DESIG = 31
SPIN = 1 << 18
LOOKG = int(os.environ.get("LOOKG", "30"))
NPC = int(os.environ.get("NPC", "1"))
YP = int(os.environ.get("YP", "3"))
LPOS = int(os.environ.get("LPOS", "10"))
WOTN = int(os.environ.get("WOTN", "0"))
LNH = int(os.environ.get("LNH", "2"))
MOEJ = int(os.environ.get("MOEJ", "4"))
if "code2" not in ABL: ABL.add("nocode2")
if "newb7" not in ABL: ABL.add("oldb7")
NT = "" if "nont" in ABL else " nt"
ABL.add("latewait")
TSCHED = os.environ.get("TSCHED", ";2;4;6").split(";")
TK, TV0, TV1, TV2 = [[int(y) for y in x.split(",") if y] for x in TSCHED]
LDS_SP = 131072
LDS_LN = LDS_SP
LDS_WOT = LDS_SP + 10240
LDS_RK = LDS_SP + 30720

def bf16_round(a, r):
    a(f"v_cvt_pk_bf16_f32 v{r}, v{r}, v{r}\nv_lshlrev_b32 v{r}, 16, v{r}")

def poll(a, load, cmp_notready, sleep=2):
    lp = a.newlabel("poll"); dn = a.newlabel("polldone")
    a(f"s_mov_b32 s79, {SPIN}")
    a.label(lp)
    a(load); a("s_waitcnt vmcnt(0)"); a(cmp_notready)
    a(f"s_cbranch_vccz {dn}\ns_sleep {sleep}\ns_sub_u32 s79, s79, 1\ns_cmp_lg_u32 s79, 0\ns_cbranch_scc1 {lp}")
    a.label(dn)

VC, VW, RC, RW, QRW = 40, 44, 48, 50, 54
CF, WF, ACC = 64, 96, 128
S_CO, S_WO_, S_MC, S_ST, S_ROW, S_KVD, S_INCA, S_INCB, S_XO, S_QO = 62, 63, 64, 65, 66, 67, 68, 69, 70, 71
S_XB = 84
XEARLY = [16, 20, 24, 28, 32, 36]
VX1 = 12
LX, LW, LV = 16, 26, 64
VDUM = 11
ITR = ((8, 9), (10, 55))

def wdma(a, srd, soff):
    return [f"buffer_load_dwordx4 v{VW+i}, {R(srd)}, s{soff} offen offset:{i*1024} lds" for i in range(4)]

def kv_dma_ops():
    g = []
    g.append([f"s_mov_b32 m0, s{S_MC}", f"s_add_u32 s72, s{S_CO}, 524288"])
    for i in range(4): g.append([f"buffer_load_dwordx4 v{VC+i}, {R(SRD_A)}, s{S_CO} offen offset:{i*1024} lds"])
    g.append([f"s_add_u32 m0, s{S_MC}, 4096", f"s_add_u32 s{S_CO}, s{S_CO}, 128", f"s_bitset0_b32 s{S_CO}, 10"])
    for i in range(4): g.append([f"buffer_load_dwordx4 v{VC+i}, {R(SRD_A)}, s72 offen offset:{i*1024} lds"])
    g.append([f"s_mov_b32 m0, s73", f"s_xor_b32 s{S_MC}, s{S_MC}, 0x10000"])
    for x in wdma(None, SRD_B, S_WO_): g.append([x])
    g.append([f"s_add_u32 m0, s73, 16384", f"s_xor_b32 s73, s73, 0x10000"])
    for x in wdma(None, SRD_C, S_WO_): g.append([x])
    g.append([f"s_add_u32 s{S_WO_}, s{S_WO_}, {64*8192}", f"s_bitset0_b32 s{S_WO_}, 22"])
    return g

def wq_dma_ops(nblk):
    g = []
    for h in range(2*nblk):
        g.append([f"s_mov_b32 m0, s74", f"s_add_u32 s74, s74, 16384"] + (["s_bitset0_b32 s74, 17"] if nblk == 2 else []))
        for x in wdma(None, SRD_D, S_QO): g.append([x])
        g.append([f"s_add_u32 s{S_QO}, s{S_QO}, {64*8192}", f"s_sub_u32 s75, s{S_QO}, {640*8192}", f"s_cselect_b32 s{S_QO}, s{S_QO}, s75"])
    return g

def emit_groups(a, g):
    for x in g:
        for y in x: a(y)

def x_load(a, ks, regs):
    for qt in range(2):
        a(f"buffer_load_dwordx4 {v(regs[qt],4)}, v{VL16 if qt==0 else VX1}, {WS}, s{S_XB+(ks>>2)} offen offset:{(ks&3)*1024} sc1")
        a.vm.issue(("X", ks))

def cnt_load(a, r, which):
    return f"buffer_load_dword v{r}, v3, {R(SRD_E)}, 0 offen offset:{128*which} sc1"
def cnt_addr(a):
    a.srd(SRD_E, P_DBG, 256)
    a(f"v_and_b32 v3, 31, v{L}\nv_lshlrev_b32 v3, 2, v3")
def cnt_check(a, r, which):
    ok = a.newlabel("cntok")
    a(f"v_cmp_gt_u32 vcc, 8, v{r}\ns_cbranch_vccz {ok}")
    cnt_addr(a)
    poll(a, cnt_load(a, 2, which), "v_cmp_gt_u32 vcc, 8, v2", sleep=8)
    a.label(ok)

def kv_touch(a, st0):
    sk = a.newlabel("tch")
    a(f"s_cmp_ge_u32 s76, 2\ns_cbranch_scc1 {sk}a")
    a(f"s_and_b32 s6, s{S_H}, 3\ns_lshl_b32 s6, s6, 19\ns_lshl_b32 s7, s{S_P}, 15\ns_add_u32 s6, s6, s7\ns_lshl_b32 s7, s76, 7\ns_add_u32 s6, s6, s7\ns_add_u32 s6, s6, {st0*128}")
    a(f"v_lshrrev_b32 v6, 1, v{L}\nv_lshlrev_b32 v6, 10, v6\nv_and_b32 v7, 1, v{L}\nv_lshl_add_u32 v6, v7, 6, v6")
    a(f"buffer_load_dword v{VDUM}, v6, {R(SRD_A)}, s6 offen\ns_add_u32 s6, s6, 262144\nbuffer_load_dword v{VDUM}, v6, {R(SRD_A)}, s6 offen\ns_branch {sk}c")
    a.label(sk + "a")
    a(f"v_lshrrev_b32 v6, 5, v{L}\nv_lshlrev_b32 v6, 6, v6\nv_bfe_u32 v7, v{L}, 2, 3\nv_add_u32 v6, v6, v7\nv_lshlrev_b32 v6, 13, v6\nv_and_b32 v7, 3, v{L}\nv_lshl_add_u32 v6, v7, 6, v6")
    a(f"s_lshl_b32 s6, s{S_H}, 8\ns_lshl_b32 s7, s{S_P}, 16\ns_add_u32 s6, s6, s7\ns_add_u32 s6, s6, {st0*64*8192}")
    a(f"s_cmp_lg_u32 s76, 2\ns_cbranch_scc1 {sk}b\nbuffer_load_dword v{VDUM}, v6, {R(SRD_B)}, s6 offen\ns_branch {sk}c")
    a.label(sk + "b")
    a(f"buffer_load_dword v{VDUM}, v6, {R(SRD_C)}, s6 offen")
    a.label(sk + "c")

def consts(a):
    a(f"s_mov_b32 s{S_ST}, 0")
    a(f"s_lshl_b32 s6, s{S_H}, 20\ns_lshl_b32 s7, s{S_P}, 13\ns_add_u32 s6, s6, s7\ns_and_b32 s7, s{S_W}, 1\ns_lshl_b32 s7, s7, 16\ns_add_u32 s6, s6, s7\ns_add_u32 s{S_KVD}, s6, {WS_KV}")
    if "noqrot" in ABL: a("s_mov_b32 s6, 0")
    else:
        a(f"s_and_b32 s6, s{S_H}, 3\ns_add_u32 s6, s6, s{S_P}")
        for _ in range(2): a("s_sub_u32 s7, s6, 5\ns_cselect_b32 s6, s6, s7")
    a(f"s_lshl_b32 s{S_QO}, s6, 20\ns_lshl_b32 s7, s{S_H}, 8\ns_add_u32 s{S_QO}, s{S_QO}, s7")
    for i in range(5):
        a(f"s_lshl_b32 s7, s6, 12\ns_add_u32 s{S_XB+i}, s{S_XO}, s7")
        if i < 4: a("s_add_u32 s6, s6, 1\ns_cmp_eq_u32 s6, 5\ns_cselect_b32 s6, 0, s6")
    a(f"s_lshr_b32 s7, s{S_W}, 1\ns_and_b32 s7, s7, 1")
    a(f"s_cmp_ge_u32 s{S_W}, 4\ns_cbranch_scc1 L_c_v")
    a(f"s_lshl_b32 s7, s7, 11\ns_add_u32 s{S_KVD}, s{S_KVD}, s7\ns_movk_i32 s{S_INCA}, 3072\ns_mov_b32 s{S_INCB}, 125952")
    a(f"s_add_u32 s{S_QO}, s{S_QO}, {128*8192}\ns_sub_u32 s75, s{S_QO}, {640*8192}\ns_cselect_b32 s{S_QO}, s{S_QO}, s75\ns_lshl_b32 s74, s76, 12\ns_add_u32 s74, s74, s100\ns_branch L_c_j")
    a.label("L_c_v")
    a(f"s_lshl_b32 s7, s7, 12\ns_add_u32 s{S_KVD}, s{S_KVD}, s7\ns_add_u32 s{S_KVD}, s{S_KVD}, 0x80000\ns_movk_i32 s{S_INCA}, 1024\ns_mov_b32 s{S_INCB}, 128000")
    a.label("L_c_j")

def zero_regs(a, r0, n):
    for i in range(0, n, 2): a(f"v_mov_b64 {v(r0+i,2)}, 0")

def phase_start(a):
    a(f"s_cmp_ge_u32 s2, 256\ns_cbranch_scc1 L_exit")
    a("s_load_dwordx16 s[32:47], s[0:1], 0\ns_load_dwordx8 s[48:55], s[0:1], 64\ns_load_dwordx4 s[56:59], s[0:1], 96")
    a(f"v_lshrrev_b32 v2, 6, v0\nv_and_b32 v{L}, 63, v0\nv_readfirstlane_b32 s{S_W}, v2")
    if "nocode" not in ABL:
        a("s_getpc_b64 s[80:81]")
        a.label("L_pc")
        a(f"s_lshr_b32 s6, s2, 3\ns_and_b32 s6, s6, 15\ns_lshl_b32 s6, s6, 12\ns_cmp_lt_u32 s{S_W}, 2\ns_cselect_b32 s6, 0, s6\nv_lshl_add_u32 v3, v0, 6, s6")
        a(f"v_min_u32 v3, L_exit-L_pc, v3\ns_cmp_ge_u32 s{S_W}, 3\ns_cbranch_scc1 L_noct\nglobal_load_dword v{VDUM}, v3, s[80:81]")
        a.label("L_noct")
    a(f"v_lshrrev_b32 v62, 5, v0\nv_and_b32 v62, 7, v62\nv_and_b32 v2, 31, v0\nv_lshlrev_b32 v2, 3, v2\nv_mul_u32_u24 v63, 1280, v62\nv_add_u32 v63, v63, v2\ns_mul_i32 s6, s2, 10240\nv_add_u32 v10, s6, v63")
    a(f"s_cmp_lt_u32 s{S_W}, 4\ns_cbranch_scc1 L_st_k0")
    a("s_waitcnt lgkmcnt(0)")
    for j in range(5): a(f"global_load_dwordx2 {v(LX+2*j,2)}, v10, s[{P_X}:{P_X+1}] offset:{j*256}{NT if 'xnt' in ABL else ''}")
    for j in range(5): a(f"global_load_dwordx2 {v(LW+2*j,2)}, v2, s[{P_WR}:{P_WR+1}] offset:{j*256}")
    if "nob0" not in ABL: a("s_barrier")
    a.label("L_st_k0")
    a(f"s_and_b32 s6, s2, 7\ns_lshl_b32 s6, s6, 2\ns_lshr_b32 s7, s2, 3\ns_and_b32 s7, s7, 3\ns_add_u32 s{S_H}, s6, s7\ns_lshr_b32 s{S_P}, s2, 5\ns_and_b32 s76, s{S_W}, 3")
    a.stamp_init(14, 0); a.stamp(0)
    a(f"v_lshrrev_b32 v2, 3, v{L}\nv_and_b32 v3, 7, v{L}\nv_lshrrev_b32 v4, 4, v{L}\nv_xor_b32 v5, v3, v4\nv_lshlrev_b32 v5, 4, v5")
    a(f"v_lshl_add_u32 v{VC}, v2, 10, v5\nv_xor_b32 v5, 64, v{VC}\nv_add_u32 v{VC+1}, 7168, v5\nv_add_u32 v{VC+2}, 14336, v{VC}\nv_add_u32 v{VC+3}, 14336, v{VC+1}")
    a(f"v_and_b32 v6, 15, v{L}\ns_lshl_b32 s6, s76, 4\nv_add_u32 v7, s6, v4\nv_lshlrev_b32 v5, 1, v4\nv_xor_b32 v5, v6, v5\nv_lshlrev_b32 v5, 4, v5")
    a(f"v_lshl_add_u32 v{VW}, v7, 13, v5\nv_add_u32 v{VW+1}, 31744, v{VW}\nv_xor_b32 v5, 0x80, v{VW}\nv_add_u32 v{VW+2}, 63488, v5\nv_add_u32 v{VW+3}, 31744, v{VW+2}")
    a(f"s_and_b32 s6, s76, 1\ns_lshl_b32 s6, s6, 20\ns_lshr_b32 s7, s76, 1\ns_lshl_b32 s7, s7, 18\ns_add_u32 s6, s6, s7\ns_lshl_b32 s{S_CO}, s{S_P}, 15\ns_add_u32 s{S_CO}, s{S_CO}, s6\ns_lshl_b32 s{S_WO_}, s{S_H}, 8\ns_lshl_b32 s{S_MC}, s76, 13\ns_lshl_b32 s73, s76, 12\ns_add_u32 s73, s73, 32768")
    a(f"s_andn2_b32 s100, 1, s{S_P}\ns_lshl_b32 s100, s100, 16\ns_add_u32 s{S_MC}, s{S_MC}, s100\ns_add_u32 s73, s73, s100")
    a("s_waitcnt lgkmcnt(0)")
    a.srd(SRD_A, P_CKV, 2048*512*2)
    a.srd(SRD_B, P_WUK, 512*4096*2)
    a.srd(SRD_C, P_WUV, 512*4096*2)
    a(f"s_cmp_ge_u32 s{S_W}, 4\ns_cbranch_scc1 L_st_v0")
    if "nob0" not in ABL: a("s_barrier")
    for st in TK: kv_touch(a, st)
    emit_groups(a, kv_dma_ops())
    if "noprio" not in ABL: a("s_setprio 1")
    a.label("L_st_v0")
    a.srd(SRD_WS, P_WS, WS_SIZE)
    a.srd(SRD_D, P_WQ, 640*4096*2)
    a(f"v_lshlrev_b32 v{VL16}, 4, v{L}")
    a(f"s_lshl_b32 s6, s{S_P}, 2\ns_add_u32 s7, s6, s{S_W}\ns_sub_u32 s6, 56, s6\ns_add_u32 s6, s6, s{S_W}")
    a(f"s_cmp_lt_u32 s{S_W}, 4\ns_cselect_b32 s{S_B}, s7, s6")
    a(f"s_sub_u32 s6, 2, s{S_P}\ns_and_b32 s6, s6, 7\ns_lshl_b32 s6, s6, 5\ns_add_u32 s{S_E}, s6, s{S_H}")
    a(f"v_and_b32 v2, 15, v{L}\nv_lshrrev_b32 v3, 4, v{L}")
    a(f"s_and_b32 s6, s{S_W}, 1\ns_lshl_b32 s6, s6, 7\nv_add_u32 v4, s6, v2\nv_lshlrev_b32 v4, 7, v4\nv_add_u32 v4, s100, v4\nv_lshrrev_b32 v5, 1, v2")
    for sp in range(2):
        a(f"v_add_u32 v6, {4*sp}, v3\nv_xor_b32 v6, v6, v5\nv_lshl_add_u32 v{RC+sp}, v6, 4, v4")
    a(f"v_lshrrev_b32 v4, 2, v2\nv_lshl_add_u32 v5, v3, 3, v4\nv_lshlrev_b32 v5, 8, v5")
    a(f"v_and_b32 v6, 1, v2\nv_lshl_add_u32 v5, v6, 3, v5")
    a(f"v_and_b32 v6, 1, v3\nv_lshl_or_b32 v4, v6, 2, v4\nv_lshlrev_b32 v4, 1, v4\nv_bfe_u32 v6, v2, 1, 1")
    a(f"v_add_u32 v8, {LDS_SP}, v5")
    for t in range(8):
        a(f"v_add_u32 v7, {2*t}, v6\nv_xor_b32 v7, v7, v4\nv_lshl_add_u32 v{QRW+t}, v7, 4, v8")
    a(f"s_lshr_b32 s6, s{S_W}, 2\ns_lshl_b32 s6, s6, 14\ns_add_u32 s6, s6, 32768\ns_add_u32 s6, s6, s100\nv_add_u32 v5, s6, v5")
    a(f"s_lshr_b32 s7, s{S_W}, 1\ns_and_b32 s7, s7, 1\ns_lshl_b32 s7, s7, 3")
    for j in range(4):
        a(f"s_add_u32 s6, s7, {2*j}\nv_add_u32 v7, s6, v6\nv_xor_b32 v7, v7, v4\nv_lshl_add_u32 v{RW+j}, v7, 4, v5")
    zero_regs(a, ACC, 128)
    a(f"v_add_u32 v{VX1}, 20480, v{VL16}\ns_mul_i32 s{S_XO}, s{S_B}, 40960")
    consts(a)
    a.stamp(1)
    a(f"s_cmp_ge_u32 s{S_W}, 4\ns_cbranch_scc1 L_st_v1")
    TM = [int(x) for x in os.environ.get("TM", "").split(",") if x]
    TM2 = [int(x) for x in os.environ.get("TM2", "").split(",") if x]
    for st in TM: kv_touch(a, st)
    emit_groups(a, kv_dma_ops()[:10])
    for st in TM2: kv_touch(a, st)
    a(f"s_waitcnt vmcnt({8+len(TM)+len(TM2)})\ns_branch L_st_j1")
    a.label("L_st_v1")
    a(f"s_waitcnt vmcnt(0)")
    a.stamp(2)
    ln_compute(a)
    ln_router(a)
    a.label("L_st_j1")
    a.stamp(3)
    a("s_barrier")
    a.stamp(4)

def zero_flags(a):
    a(f"s_cmp_lt_u32 s{S_W}, 6\ns_cbranch_scc1 L_zd\nv_mov_b64 v[36:37], 0\nv_mov_b64 v[38:39], 0\nv_lshrrev_b32 v2, 3, v{L}\ns_cmp_eq_u32 s{S_W}, 6\ns_cbranch_scc1 L_z6")
    a(f"s_lshl_b32 s6, s{S_P}, 2\ns_sub_u32 s7, 56, s6\nv_mov_b32 v3, s6\nv_mov_b32 v4, s7\nv_cmp_gt_u32 vcc, 4, v2\ns_lshl_b32 s6, s{S_H}, 7\ns_add_u32 s6, s6, {WS_CTXF}\nv_cndmask_b32 v3, v4, v3, vcc\nv_add_u32 v3, v3, v2\nv_lshl_add_u32 v3, v3, 12, s6\ns_branch L_z7")
    a.label("L_z6")
    a(f"v_mov_b32 v3, {hex(WS_SIZE)}")
    def put(j): a(f"s_andn2_b32 s6, s6, 127\nv_cmp_eq_u32 vcc, {j}, v2\nv_mov_b32 v4, s6\ns_nop 0\nv_cndmask_b32 v3, v3, v4, vcc")
    flag_addr(a, "kv", 6); put(0)
    flag_addr(a, "moe", 6); put(1)
    flag_addr(a, "b", 6); put(2)
    for k in range(3):
        xf_addr(a, k, 6); put(3+k)
    a(f"s_mov_b32 s6, {hex(WS_SIZE)}\ns_cmp_eq_u32 s2, {DESIG}\ns_cmov_b32 s6, {WS_IDX}"); put(6)
    a(f"s_lshl_b32 s6, s2, 7\ns_add_u32 s6, s6, {WS_R}"); put(7)
    a(f"v_add_u32 v4, {LDS_RK-56*16}, v{VL16}\ns_mov_b32 exec_lo, 0\ns_mov_b32 exec_hi, 0x03000000\nds_read_b128 v[36:39], v4\ns_mov_b64 exec, -1\ns_waitcnt lgkmcnt(0)")
    a.label("L_z7")
    a(f"v_and_b32 v2, 7, v{L}\nv_lshl_add_u32 v3, v2, 4, v3\nbuffer_store_dwordx4 v[36:39], v3, {WS}, 0 offen sc1")
    a.label("L_zd")

def half_reduce(a, r):
    for m in ("quad_perm:[1,0,3,2]", "quad_perm:[2,3,0,1]", "row_half_mirror", "row_mirror"):
        a(f"s_nop 1\nv_add_f32_dpp v{r}, v{r}, v{r} {m} row_mask:0xf bank_mask:0xf")
    a(f"v_mov_b32 v8, v{r}\ns_nop 1\nv_permlane16_swap_b32 v{r}, v8\ns_nop 1\nv_add_f32 v{r}, v{r}, v8")

def ln_compute(a):
    X = LV
    NEG = "op_sel_hi:[1,0] neg_lo:[0,1] neg_hi:[0,1]"
    for j in range(10):
        a(f"v_lshlrev_b32 v{X+2*j}, 16, v{LX+j}\nv_and_b32 v{X+2*j+1}, 0xffff0000, v{LX+j}")
    a(f"v_pk_add_f32 v[2:3], {v(X,2)}, {v(X+2,2)}")
    for j in range(2, 10): a(f"v_pk_add_f32 v[2:3], v[2:3], {v(X+2*j,2)}")
    a("v_add_f32 v2, v2, v3")
    half_reduce(a, 2)
    a("s_mov_b32 s7, 0x3acccccd\nv_mul_f32 v2, s7, v2\nv_mov_b64 v[4:5], 0")
    for j in range(10):
        a(f"v_pk_add_f32 v[6:7], {v(X+2*j,2)}, v[2:3] {NEG}\nv_pk_fma_f32 v[4:5], v[6:7], v[6:7], v[4:5]")
    a("v_add_f32 v4, v4, v5")
    half_reduce(a, 4)
    a("v_mul_f32 v4, s7, v4")
    bf16_round(a, 2); bf16_round(a, 4)
    a("v_add_f32 v4, 0x3727c5ac, v4")
    bf16_round(a, 4)
    a("v_sqrt_f32 v4, v4\ns_nop 0")
    bf16_round(a, 4)
    a("v_rcp_f32 v6, v4\ns_nop 0\nv_fma_f32 v5, -v4, v6, 1.0\nv_fmac_f32 v6, v5, v6\nv_mov_b32 v9, 0")
    for j in range(10):
        x = X + 2*j
        a(f"v_pk_add_f32 {v(x,2)}, {v(x,2)}, v[2:3] {NEG}\nv_cvt_pk_bf16_f32 v5, v{x}, v{x+1}")
        a(f"v_lshlrev_b32 v{x}, 16, v5\nv_and_b32 v{x+1}, 0xffff0000, v5")
        a(f"v_pk_mul_f32 {v(x,2)}, {v(x,2)}, v[6:7] op_sel_hi:[1,0]\nv_cvt_pk_bf16_f32 v{LX+j}, v{x}, v{x+1}")
    a(f"v_add_u32 v10, {LDS_LN}, v63")
    for j in range(5): a(f"ds_write_b64 v10, {v(LX+2*j,2)} offset:{j*256}")
    a("s_waitcnt lgkmcnt(0)")

def ln_router(a):
    a("v_mov_b32 v2, 0")
    for j in range(10):
        a(f"v_lshlrev_b32 v4, 16, v{LX+j}\nv_lshlrev_b32 v5, 16, v{LW+j}\nv_fmac_f32 v2, v4, v5")
        a(f"v_and_b32 v4, 0xffff0000, v{LX+j}\nv_and_b32 v5, 0xffff0000, v{LW+j}\nv_fmac_f32 v2, v4, v5")
    half_reduce(a, 2)
    a("v_cvt_pk_bf16_f32 v2, v2, v2\nv_and_b32 v2, 0xffff, v2")
    a("v_bfe_i32 v3, v2, 15, 1\nv_and_b32 v3, 0x7fff, v3\nv_or_b32 v3, 0x8000, v3\nv_xor_b32 v2, v2, v3")
    a(f"s_lshl_b32 s7, s2, 3\ns_sub_u32 s6, 2047, s7\nv_sub_u32 v3, s6, v62\nv_lshl_or_b32 v2, v2, 11, v3\nv_lshlrev_b32 v3, 2, v62\nv_add_u32 v3, {LDS_RK}, v3\nds_write_b32 v3, v2\ns_waitcnt lgkmcnt(0)")

def ln_store(a, back):
    LV = 16
    a(f"s_lshr_b32 s72, s2, 1\ns_mul_i32 s72, s72, 20480\ns_and_b32 s7, s2, 1\ns_lshl_b32 s7, s7, 7\ns_add_u32 s72, s72, s7")
    for n in range(3):
        a(f"v_add_u32 v2, {256*n-256}, v0\nv_lshrrev_b32 v3, 3, v2\nv_and_b32 v4, 7, v2")
        a(f"v_mul_u32_u24 v5, 1280, v4\nv_lshl_add_u32 v5, v3, 4, v5\nv_add_u32 v5, {LDS_LN}, v5")
        a(f"ds_read_b128 {v(LV+8*n,4)}, v5\nv_lshlrev_b32 v5, 8, v3\nv_lshl_add_u32 v{6+n}, v4, 4, v5")
    a("s_waitcnt lgkmcnt(0)")
    for n in range(3):
        if n == 2: a(f"s_cmp_ge_u32 s{S_W}, 6\ns_cbranch_scc1 {back}")
        SC = "" if "lnplain" in ABL else " sc1"
        if "nolnst" not in ABL: a(f"buffer_store_dwordx4 {v(LV+8*n,4)}, v{6+n}, {WS}, s72 offen{SC}")
    a.label(back)
    zero_flags(a)

def count_atomic(a, which):
    a.srd(SRD_E, P_DBG, 256)
    a(f"v_mov_b32 v2, 1\nv_lshlrev_b32 v3, 8, v{L}\ns_and_b32 s6, s2, 31\ns_lshl_b32 s6, s6, 2\nbuffer_atomic_add v2, v3, {R(SRD_E)}, s6 offen offset:{128*which} sc1")

def flag_addr(a, kind, d):
    if kind == "kv":
        a(f"s_lshl_b32 s{d}, s{S_H}, 3\ns_add_u32 s{d}, s{d}, s{S_P}\ns_lshl_b32 s{d}, s{d}, 5\ns_add_u32 s{d}, s{d}, s{S_W}\ns_lshl_b32 s{d}, s{d}, 2\ns_add_u32 s{d}, s{d}, {WS_KVF}")
    elif kind == "ctx":
        a(f"s_lshl_b32 s{d}, s{S_B}, 5\ns_add_u32 s{d}, s{d}, s{S_H}\ns_lshl_b32 s{d}, s{d}, 7\ns_add_u32 s{d}, s{d}, {WS_CTXF}")
    elif kind == "b":
        a(f"s_lshl_b32 s{d}, s{S_P}, 5\ns_add_u32 s{d}, s{d}, s{S_H}\ns_lshl_b32 s{d}, s{d}, 5\ns_add_u32 s{d}, s{d}, s{S_W}\ns_lshl_b32 s{d}, s{d}, 2\ns_add_u32 s{d}, s{d}, {WS_BF}")
    else:
        a(f"s_lshl_b32 s{d}, s{S_E}, 5\ns_add_u32 s{d}, s{d}, s{S_W}\ns_lshl_b32 s{d}, s{d}, 2\ns_add_u32 s{d}, s{d}, {WS_MOEF}")

def tile_id(a, d):
    a(f"s_and_b32 s{d}, s{S_H}, 7\ns_lshl_b32 s7, s{S_P}, 3\ns_add_u32 s{d}, s{d}, s7")
def xslot(a, slot, d):
    tile_id(a, d)
    a(f"s_lshr_b32 s7, s{S_H}, 3\ns_add_u32 s7, s7, {slot}\ns_add_u32 s7, s7, 1\ns_and_b32 s7, s7, 3\ns_lshl_b32 s{d}, s{d}, 2\ns_add_u32 s{d}, s{d}, s7\ns_mul_i32 s{d}, s{d}, 3\ns_add_u32 s{d}, s{d}, {slot}")
def xf_addr(a, slot, d):
    xslot(a, slot, d)
    a(f"s_lshl_b32 s{d}, s{d}, 5\ns_add_u32 s{d}, s{d}, s{S_W}\ns_lshl_b32 s{d}, s{d}, 2\ns_add_u32 s{d}, s{d}, {WS_XF}")

def set_flag(a, kind, val=1):
    flag_addr(a, kind, 6)
    a(f"v_mov_b32 v2, {val}\nv_mov_b32 v3, {hex(WS_SIZE)}\nv_writelane_b32 v3, s6, 0\nbuffer_store_dword v2, v3, {WS}, 0 offen sc1")
    a.vm.issue("flag")

def phase_kv(a):
    def rdC(i, sp):
        if "kv_noC" in ABL: return
        a(f"ds_read_b128 {v(CF+4*i,4)}, v{RC+sp} offset:{i*2048}"); a.lg.issue(("C", i))
    def rdW(par, j, half, sp):
        if "kv_noW" in ABL: return
        r = WF + 16*par + 4*j + 2*half
        a(f"ds_read_b64_tr_b16 {v(r,2)}, v{RW+j} offset:{sp*8192 + half*1024}"); a.lg.issue(("W", par, j, half))
    wq = [(j, hf) for j in range(4) for hf in range(2)]
    def body(isK, lab, dma, nend, hook=None):
        def mm(i, j, par):
            d = ACC + (i*4+j)*4
            a.wait_lg([("C", i), ("W", par, j, 0), ("W", par, j, 1)])
            if isK: a.mfma(d, WF+16*par+4*j, CF+4*i)
            else: a.mfma(d, CF+4*i, WF+16*par+4*j)
        a(".p2align 4")
        a.label(lab)
        if hook:
            a(f"s_bitcmp1_b32 {0x80 if isK else 0xd6}, s{S_ST}\ns_cbranch_scc1 {hook}"); a.label(hook + "_back")
        for i in range(8):
            for j in range(4):
                mm(i, j, 0)
                if i < 2: rdW(1, *wq[i*4+j], 1)
            rdC(i, 1)
        dma = list(dma)
        if "kv_nodma" in ABL: dma = []
        for i in range(8):
            for j in range(4):
                mm(i, j, 1)
                if i == 2 or i == 3: rdW(0, *wq[(i-2)*4+j], 0)
                if i >= 2 and dma:
                    for y in dma.pop(0): a(y)
            if i == 1:
                for r in (RC, RC+1, RW, RW+1, RW+2, RW+3): a(f"v_xor_b32 v{r}, 0x10000, v{r}")
                if isK and hook and "oldb7" not in ABL:
                    a(f"s_cmp_eq_u32 s{S_ST}, 7\ns_cbranch_scc1 L_know\ns_waitcnt vmcnt(0)")
                    a.label("L_know")
                    a("s_waitcnt lgkmcnt(0)\ns_barrier")
                elif isK: a("s_waitcnt vmcnt(0) lgkmcnt(0)\ns_barrier")
                else:
                    a(f"s_bitcmp1_b32 0x48, s{S_ST}\ns_cbranch_scc1 L_vpre")
                    a.label("L_vnow")
                    a("s_waitcnt lgkmcnt(0)\ns_barrier")
                a.lg.drain()
                a.stampd(S_ST, 24)
                rdC(0, 0); rdC(1, 0)
            elif i >= 2: rdC(i, 0)
        emit_groups(a, dma)
        a(f"s_add_u32 s{S_ST}, s{S_ST}, 1\ns_cmp_lt_u32 s{S_ST}, {nend}\ns_cbranch_scc1 {lab}")
    def first_reads():
        a.lg.drain()
        rdC(0, 0); rdC(1, 0)
        for k in range(4): rdW(0, *wq[k], 0)
        rdC(2, 0)
        for k in range(4, 8): rdW(0, *wq[k], 0)
        for i in range(3, 8): rdC(i, 0)
    a(f"s_cmp_ge_u32 s{S_W}, 4\ns_cbranch_scc1 L_kv_v")
    first_reads()
    q0 = list(a.lg.q)
    emit_groups(a, kv_dma_ops()[10:])
    a.stamp(5)
    body(True, "L_kloopA", kv_dma_ops(), 6)
    assert a.lg.q == q0, (a.lg.q, q0)
    body(True, "L_kloopB", wq_dma_ops(2), 8, hook="L_khook" if "kx2" not in ABL else None)
    a.stamp(6)
    a("s_waitcnt lgkmcnt(0)\ns_nop 7")
    for n in range(16):
        t = ACC + 4*n; d0 = ACC + 8*n; d1 = d0 + 4
        a(f"v_cvt_pk_bf16_f32 v{t}, v{d0}, v{d0+1}\nv_cvt_pk_bf16_f32 v{t+1}, v{d0+2}, v{d0+3}")
        a(f"v_cvt_pk_bf16_f32 v{t+2}, v{d1}, v{d1+1}\nv_cvt_pk_bf16_f32 v{t+3}, v{d1+2}, v{d1+3}")
    a("s_waitcnt vmcnt(16)\ns_branch L_q")
    a.label("L_hook")
    for k in (1, 2, 4, 6): a(f"s_cmp_eq_u32 s{S_ST}, {k}\ns_cbranch_scc1 L_hook{k}")
    a(f"s_cmp_lg_u32 s{S_ST}, 7\ns_cbranch_scc1 L_hook_back")
    for ks in range(3): x_load(a, ks, XEARLY[2*ks:2*ks+2])
    a("s_branch L_hook_back")
    a.label("L_hook1")
    if LNH == 1: ln_store(a, "L_lns")
    for st in TV1: kv_touch(a, st)
    a("s_branch L_hook_back")
    a.label("L_hook2")
    if LNH == 2: ln_store(a, "L_lns")
    for st in TV2: kv_touch(a, st)
    a("s_branch L_hook_back")
    a.label("L_hook4")
    WOTR = [16, 20, 24, 28, 32]
    a(f"s_cmp_lg_u32 s{S_W}, 4\ns_cbranch_scc1 L_hook4b")
    count_atomic(a, 0)
    a.label("L_hook4b")
    a(f"s_lshl_b32 s74, s76, 12\ns_add_u32 s74, s74, {LDS_SP}")
    emit_groups(a, wq_dma_ops(1))
    a("s_branch L_hook_back")
    a.label("L_hook6")
    a(f"s_cmp_lg_u32 s{S_W}, 5\ns_cbranch_scc1 L_hook_back")
    cnt_addr(a); a(cnt_load(a, 62, 0))
    a("s_branch L_hook_back")
    a.label("L_vpre")
    a(f"s_waitcnt vmcnt(0)\ns_lshl_b32 s6, s{S_ST}, 4\ns_add_u32 s6, s6, s{S_W}\ns_cmp_lg_u32 s6, 0x65\ns_cbranch_scc1 L_vnow")
    cnt_check(a, 62, 0)
    a("s_branch L_vnow")
    a.label("L_khook")
    a(f"s_cmp_lg_u32 s{S_ST}, 7\ns_cbranch_scc1 L_khook_back")
    for ks in range(3): x_load(a, ks, XEARLY[2*ks:2*ks+2])
    a("s_branch L_khook_back")
    a.label("L_kv_v")
    first_reads()
    for st in TV0: kv_touch(a, st)
    a.stamp(5)
    body(False, "L_vloop", [], 8, hook="L_hook")
    a.stamp(6)
    a("s_waitcnt lgkmcnt(0)\ns_nop 7")
    for ii in range(4):
        for j in range(4):
            t = ACC + 16*ii + 4*j; d0 = ACC + 32*ii + 4*j; d1 = d0 + 16
            a(f"v_cvt_pk_bf16_f32 v{t}, v{d0}, v{d0+1}\nv_cvt_pk_bf16_f32 v{t+1}, v{d0+2}, v{d0+3}")
            a(f"v_cvt_pk_bf16_f32 v{t+2}, v{d1}, v{d1+1}\nv_cvt_pk_bf16_f32 v{t+3}, v{d1+2}, v{d1+3}")
    a("s_waitcnt vmcnt(0)")

QF, O_, S_, FR, P_, NM, T_, L_, ET = 16, 192, 64, 96, 128, 144, 52, 56, 58
VA, VDK, VDV = 48, 49, 50
S_N, S_NL, S_C, S_THR = 62, 63, 64, 65
LA, ONES = 160, 168
OFFS = 0x41c00000
def Sreg(par, kt, qt): return S_ + 16*par + (kt*2+qt)*4
def NMreg(kt, qt): return NM + (kt*2+qt)*4
def Oreg(t, qt): return O_ + (t*2+qt)*4
def Qreg(qt, s): return QF + (qt*4+s)*4
def Preg(par, qt): return P_ + 8*par + 4*qt
def Treg(par, qt): return T_ + 2*par + qt

def xlane(a, op, r, t):
    for sw in ("v_permlane16_swap_b32", "v_permlane32_swap_b32"):
        a(f"v_mov_b32 v{t}, v{r}\ns_nop 1\n{sw} v{r}, v{t}\ns_nop 1\n{op} v{r}, v{r}, v{t}")

def st_dma(a, parts):
    if "K" in parts:
        for hf in range(2):
            a(f"s_lshl_b32 s6, s76, 13\ns_add_u32 s6, s6, s78\ns_add_u32 m0, s6, {hf*4096}\ns_add_u32 s7, s77, {hf*4096}")
            for i in range(4): a(f"buffer_load_dwordx4 v{VDK}, {WS}, s7 offen offset:{i*1024} sc1 lds")
    for hf in range(2):
        if f"V{hf}" in parts:
            a(f"s_lshl_b32 s6, s76, 12\ns_add_u32 s6, s6, s78\ns_add_u32 m0, s6, {32768+hf*16384}\ns_add_u32 s7, s77, {0x80000-16384+hf*16384}")
            for i in range(4): a(f"buffer_load_dwordx4 v{VDV}, {WS}, s7 offen offset:{i*1024} sc1 lds")

S_HK, S_ALL = 89, 90
def kv_self_touch(a):
    a(f"v_lshrrev_b32 v9, 3, v{L}\ns_cmp_lt_u32 s{S_W}, 4\ns_cselect_b32 s7, 6, 4\nv_and_b32 v10, s7, v9\nv_add_u32 v9, v9, v10\nv_lshlrev_b32 v9, 10, v9")
    a(f"v_and_b32 v10, 7, v{L}\nv_lshl_add_u32 v9, v10, 7, v9\ns_sub_u32 s6, s{S_KVD}, 32768")
    a(f"buffer_load_dword v{VDUM}, v9, {WS}, s6 offen sc1\ns_add_u32 s6, s6, 16384\nbuffer_load_dword v{VDUM}, v9, {WS}, s6 offen sc1")

def kvf_addr(a):
    a(f"s_lshl_b32 s7, s{S_H}, 10\ns_add_u32 s7, s7, {WS_KVF}\nv_lshrrev_b32 v2, 3, v{L}\nv_and_b32 v3, 7, v{L}\nv_lshlrev_b32 v3, 2, v3\nv_lshl_add_u32 v3, v2, 7, v3")
def kv_flag_wait(a, level):
    kvf_addr(a)
    poll(a, f"buffer_load_dword v2, v3, {WS}, s7 offen sc1", f"v_cmp_gt_u32 vcc, {level}, v2")

KS_POLL = int(os.environ.get("KSP", "15"))
LATE_KS = tuple(int(x) for x in os.environ.get("STKS", "0,1,2,3,16,17,18,19").split(","))
KS_FLAG = int(os.environ.get("KSF", "6"))
NEARLY = int(os.environ.get("NEARLY", "2"))
def kv_store(a, n, late=True):
    if late and "nolate" in ABL: return
    a(f"buffer_store_dwordx4 {v(ACC+4*n,4)}, v{VL16}, {WS}, s{S_KVD} offen sc1"); a.vm.issue(("st", n))
    inc = ("1024", f"s{S_INCA}", "1024", f"s{S_INCB}")[n & 3]
    a(f"s_add_u32 s{S_KVD}, s{S_KVD}, {inc}")
def q_body(a):
    sfx = ""
    a.lg.drain(); a.vm.drain()
    def rdW(t, hf, ks):
        blk = ks >> 2
        off = (0, 0, 32768, 0, 32768)[blk] + (ks & 3)*8192 + hf*1024
        a(f"ds_read_b64_tr_b16 {v(WF+4*t+2*hf,2)}, v{QRW+t} offset:{off}"); a.lg.issue(("W", t, hf))
    for t in range(8):
        rdW(t, 0, 0); rdW(t, 1, 0)
    xr = {ks: XEARLY[2*ks:2*ks+2] for ks in range(3)}
    for ks in range(3, 7):
        xr[ks] = [CF + 8*(ks-3), CF + 8*(ks-3) + 4]
        x_load(a, ks, xr[ks])
    nst = 0
    for ks in range(20):
        pend = []
        a.wait_vm(("X", ks))
        if ks % 2 == 0: a.stamp(32 + ks//2)
        barrier_here = ks == 11 or (ks == 3 and "oldb7" not in ABL)
        upd = {3: -LDS_SP, 11: 65536}.get(ks)
        st_at = (3,) if ks in LATE_KS else ()
        for t in range(8):
            for qt in range(2):
                if qt == 0: a.wait_lg([("W", t, 0), ("W", t, 1)])
                a.mfma(Oreg(t, qt), WF+4*t, xr[ks][qt], "0" if ks == 0 else None)
                if qt == 1 and ks < 19: pend += [(t, 0), (t, 1)]
                if barrier_here and t == 1 and qt == 1:
                    a("s_waitcnt lgkmcnt(0)\ns_barrier"); a.lg.drain()
                    while len(pend) > 2: rdW(*pend.pop(0), ks+1)
                if pend and not (barrier_here and (t, qt) < (1, 1)): rdW(*pend.pop(0), ks+1)
                if upd is not None and qt == 0:
                    a(f"v_add_u32 v{QRW+t}, s101, v{QRW+t}" if ks == 3 else f"v_xor_b32 v{QRW+t}, 0x10000, v{QRW+t}")
                if qt == 0 and t in st_at and nst < 16:
                    kv_store(a, nst); nst += 1
        while pend: rdW(*pend.pop(0), ks+1)
        if ks + 7 < 20:
            xr[ks+7] = xr[ks]; x_load(a, ks+7, xr[ks])
        if ks == KS_FLAG:
            a.wait_vm(("st", 3))
            set_flag(a, "kv", 1)
        if ks == KS_POLL:
            a.wait_vm(("X", 19))
            a(f"s_cmp_ge_u32 s{S_W}, 4\ns_cbranch_scc1 L_q_nold{sfx}")
            a.stamp(20)
            kv_flag_wait(a, 1)
            a.stamp(21)
            st_dma(a, ["K", "V1"])
            a.label(f"L_q_nold{sfx}")
    assert nst == len(LATE_KS) and 8 <= nst <= 12

def phase_q(a):
    a.label("L_q")
    a.srd(SRD_E, P_DBG, 256)
    a(f"s_lshl_b32 s6, s76, 13\nv_add_u32 v{VDK}, s6, v{VL16}\ns_lshl_b32 s6, s76, 12\nv_add_u32 v{VDV}, s6, v{VL16}")
    a(f"s_lshl_b32 s77, s{S_H}, 20\ns_add_u32 s77, s77, {WS_KV}\ns_mov_b32 s78, s100\ns_sub_u32 s101, s100, {LDS_SP}\ns_mov_b32 s{S_ALL}, 0")
    a(f"s_cmp_lt_u32 s{S_W}, 4\ns_cselect_b32 s{S_HK}, 3, 2")
    q_body(a)
    a.stamp(7)
    if "symq" not in ABL:
        a(f"s_cmp_lt_u32 s{S_W}, 4\ns_cbranch_scc1 L_qb\ns_barrier")
        a.label("L_qb")
    a("s_mov_b32 s6, 0x3e0293ee\ns_nop 7")
    for qt in range(2):
        for n in range(len(LATE_KS), 12):
            if (n & 1) == qt or 12 - len(LATE_KS) == 1: pass
        if qt == 0:
            for n in range(len(LATE_KS), 12): kv_store(a, n)
        for s_ in range(4):
            for hf in range(2):
                d = Oreg(2*s_+hf, qt)
                for r in range(4): a(f"v_mul_f32 v{d+r}, s6, v{d+r}")
                a(f"v_cvt_pk_bf16_f32 v{Qreg(qt,s_)+2*hf}, v{d}, v{d+1}\nv_cvt_pk_bf16_f32 v{Qreg(qt,s_)+2*hf+1}, v{d+2}, v{d+3}")
    zero_regs(a, O_, 64)
    zero_regs(a, NM, 16)
    zero_regs(a, LA, 8)
    for i in range(4): a(f"v_mov_b32 v{ONES+i}, 0x3f803f80")
    a(f"v_add_u32 v{VA}, s100, v{VL16}")
    a(f"s_waitcnt vmcnt({12 - len([k for k in LATE_KS if k <= KS_POLL])})")

def sm_ops(par):
    ops = []
    n = 0
    for kt in range(2):
        for qt in range(2):
            for r in range(4):
                t, tp = ET + n % 4, ET + (n-1) % 4
                e = f"v_exp_f32 v{t}, v{Sreg(par,kt,qt)+r}"
                rest = []
                if r & 1: rest.append(f"v_cvt_pk_bf16_f32 v{Preg(par,qt)+2*kt+(r>>1)}, v{tp}, v{t}")
                ops.append((e, rest)); n += 1
    return ops

def phase_attn(a):
    handlers = []
    FULLQ = [("F", i) for i in range(1, 8)]
    def rd(kind, i, k):
        off = (0 if kind == "K" else 32768) + k*8192 + i*1024
        a(f"ds_read_b128 {v(FR+4*i,4)}, v{VA} offset:{off}"); a.lg.issue(("F", i))
    def bar(wait="vmcnt(0) lgkmcnt(0)", mid=None, hot=False):
        bk = a.newlabel("ldback")
        if hot:
            a(f"s_cbranch_scc1 {bk}_c\ns_barrier")
            a.label(bk)
            handlers.append(("ld", bk))
        else:
            a(f"s_waitcnt {wait}\ns_call_b64 s[82:83], L_pend\ns_barrier")
            if mid: mid()
            a(f"s_call_b64 s[82:83], L_load")
        a.lg.drain()
        if "stampbar" in ABL: a.stampd(S_N, 44)
        a(f"s_add_i32 s{S_N}, s{S_N}, 1")
    def stage(k, qk=True, sm=True, pv=True, nxt=True, loop=False):
        pq, ps = k & 1, 1 - (k & 1)
        full = qk and pv
        pairs = []
        if pv: pairs += [("V", i) for i in range(8)]
        if qk: pairs += [("K", i) for i in range(8)]
        if pv: pairs.insert(LPOS if full else 2, ("L", None))
        NP = len(pairs)
        g0 = [[] for _ in range(NP)]; g1 = [[] for _ in range(NP)]
        if sm:
            ops = sm_ops(ps)[2:]
            g1[0] += sm_ops(ps)[1][1]
            per = 1 if full else 2
            for n, (e, rest) in enumerate(ops):
                g0[n//per].append(e); g1[n//per] += rest
            c = [Preg(ps, qt) + 2*kt + h for kt in range(2) for qt in range(2) for h in range(2)]
            X = ET + 4
            chk = [f"v_or3_b32 v{X}, v{c[0]}, v{c[1]}, v{c[2]}", f"v_or3_b32 v{X}, v{X}, v{c[3]}, v{c[4]}", f"v_or3_b32 v{X}, v{X}, v{c[5]}, v{c[6]}",
                   f"v_bitop3_b32 v{X}, v{X}, v{c[7]}, s72 bitop3:0xa8", f"v_cmp_ne_u32 vcc, s{S_THR}, v{X}"]
            if full:
                g1[4].append(chk[0]); g1[8].append(chk[1]); g1[12].append(chk[2]); g0[14] += chk[3:]
            else: g0[7] += chk
        if full:
            for n, (e, rest) in enumerate(sm_ops(pq)[:2]):
                g0[15+n].append(e)
        sc = {}
        if loop:
            sc[1] = f"s_sub_i32 s{S_C}, s{S_C}, 1"; sc[3] = f"s_cmp_gt_i32 s{S_C}, 0"; sc[5] = f"s_cselect_b32 s{S_THR}, 0, 1"
            if k == 3: sc[LPOS-1] = f"s_cmp_lg_u32 s{S_HK}, 0"
        barp = [x[0] for x in pairs].index("L") if k == 3 else None
        if barp is not None: g1[barp-2].append(f"v_xor_b32 v{VA}, 0x10000, v{VA}")
        held = []
        for n, (kind, i) in enumerate(pairs):
            for qt in range(2):
                if kind == "V": a.mfma(Oreg(i, qt), FR+4*i, Preg(pq, qt))
                elif kind == "L": a.mfma(LA+4*qt, ONES, Preg(pq, qt))
                else: a.mfma(Sreg(pq, i >> 2, qt), FR+4*i, Qreg(qt, i & 3), None if i & 3 else NMreg(i >> 2, qt))
                if qt == 0:
                    if n == barp and loop:
                        a("s_waitcnt lgkmcnt(0)"); a.lg.drain()
                    if n + 1 < NP:
                        if pairs[n+1][0] != "L": a.wait_lg(("F", pairs[n+1][1]))
                    elif nxt: a.wait_lg(("F", 0))
                    for x in g0[n]: a(x)
                else:
                    if n in sc: a(sc[n])
                    if kind == "L":
                        if n == barp:
                            bar(hot=loop)
                            for h in held: rd("V", h, 0)
                    elif kind == "V" and qk: rd("K", i, k)
                    elif nxt:
                        if barp is not None and n < barp: held.append(i)
                        else: rd("V", i, (k+1) & 3)
                    for x in g1[n]: a(x)
        if sm:
            bk = a.newlabel("back")
            if loop and k == 3:
                a(f"s_cbranch_vccz L_st0\ns_branch {bk}_h")
                handlers.append(("sm", bk, k, loop, full, "L_st0"))
            else:
                a(f"s_cbranch_vccnz {bk}_h")
                a.label(bk)
                handlers.append(("sm", bk, k, loop, full, bk))
    a(f"s_mov_b32 s72, 0x40004000\ns_mov_b32 s{S_THR}, 0\ns_sub_u32 s{S_NL}, 15, s{S_P}\ns_mov_b32 s{S_N}, -1")
    a.stamp(8)
    if "symq" in ABL: bar("lgkmcnt(0)")
    else:
        a(f"s_cmp_ge_u32 s{S_W}, 4\ns_cbranch_scc1 L_qb2\ns_barrier")
        a.label("L_qb2")
        a.lg.drain()
        if "stampbar" in ABL: a.stampd(S_N, 44)
    a.stamp(9)
    for i in range(8): rd("K", i, 0)
    a(f"s_cmp_lg_u32 s{S_B}, 0\ns_cbranch_scc1 L_nm0\ns_call_b64 s[82:83], L_mask")
    a.label("L_nm0")
    for i in range(8):
        a.wait_lg(("F", i))
        for qt in range(2):
            a.mfma(Sreg(0, i >> 2, qt), FR+4*i, Qreg(qt, i & 3), None if i & 3 else NMreg(i >> 2, qt))
        rd("K", i, 1)
    a("s_nop 7")
    for qt in range(2):
        m = ET + qt
        s0, s1 = Sreg(0, 0, qt), Sreg(0, 1, qt)
        a(f"v_max3_f32 v{m}, v{s0}, v{s0+1}, v{s0+2}\nv_max3_f32 v{m}, v{m}, v{s0+3}, v{s1}\nv_max3_f32 v{m}, v{m}, v{s1+1}, v{s1+2}\nv_max_f32 v{m}, v{m}, v{s1+3}")
        xlane(a, "v_max_f32", m, ET+2)
        a(f"v_add_f32 v{m}, {hex(OFFS)}, v{m}")
        for kt in range(2):
            for r in range(4):
                a(f"v_sub_f32 v{Sreg(0,kt,qt)+r}, v{Sreg(0,kt,qt)+r}, v{m}\nv_sub_f32 v{NMreg(kt,qt)+r}, 0, v{m}")
    a(f"s_cmp_lg_u32 s{S_B}, 1\ns_cbranch_scc1 L_nm1\ns_call_b64 s[82:83], L_mask")
    a.label("L_nm1")
    def early(par):
        o = sm_ops(par)[:2]
        a(o[0][0]); a(o[1][0])
    early(0)
    a.wait_lg(("F", 0))
    stage(1, pv=False)
    assert a.lg.q == FULLQ
    a("s_nop 7")
    early(1)
    if "symq" not in ABL: a(f"s_call_b64 s[82:83], L_load\ns_mov_b32 s{S_N}, 0")
    for n in range(12, 16): kv_store(a, n)
    a(f"s_sub_i32 s{S_C}, s{S_B}, 2")
    a.stamp(10)
    a(f"s_cmp_eq_u32 s{S_B}, 0\ns_cbranch_scc1 L_pv2\ns_cmp_eq_u32 s{S_B}, 1\ns_cbranch_scc1 L_tail2")
    a(f"s_cmp_lg_u32 s{S_B}, 2\ns_cbranch_scc1 L_st2\ns_call_b64 s[82:83], L_mask\ns_branch L_st2")
    a(".p2align 6")
    a.label("L_st0")
    for k in range(4):
        if k == 2: a.label("L_st2")
        stage(k, loop=True)
        assert a.lg.q == FULLQ, a.lg.q
    for k in range(4):
        a.label(f"L_tail{k}")
        a.lg.q = list(FULLQ)
        a(f"s_mov_b32 s{S_THR}, 0")
        stage(k, qk=False)
        assert a.lg.q == FULLQ
        a.label(f"L_pv{(k+1)&3}")
        stage((k+1) & 3, qk=False, sm=False, nxt=False)
        if k < 3: a("s_branch L_fin")
    a.label("L_fin")
    a.stamp(11)
    idx_addr(a); a(f"buffer_load_dword v{VIDX}, v3, {WS}, s72 offen sc1")
    for qt in range(2): a(f"v_rcp_f32 v{L_+qt}, v{LA+4*qt}")
    a(f"s_lshl_b32 s6, s{S_B}, 18\ns_lshl_b32 s7, s{S_H}, 12\ns_add_u32 s6, s6, s7\ns_add_u32 s6, s6, {WS_CTX}\ns_nop 4")
    n = 0
    a.vm.drain()
    for qt in range(2):
        for s_ in range(4):
            t = QF + 4*n; n += 1
            for hf in range(2):
                d = Oreg(2*s_+hf, qt)
                for r in range(4): a(f"v_mul_f32 v{d+r}, v{L_+qt}, v{d+r}")
                a(f"v_cvt_pk_bf16_f32 v{t+2*hf}, v{d}, v{d+1}\nv_cvt_pk_bf16_f32 v{t+2*hf+1}, v{d+2}, v{d+3}")
            a(f"buffer_store_dwordx4 {v(t,4)}, v{VL16}, {WS}, s6 offen offset:{s_*1024} sc1"); a.vm.issue("st")
        if qt == 0: a("s_add_u32 s6, s6, 0x20000")
    a.stamp(12)
    def flag_now():
        a("s_waitcnt vmcnt(0)")
        set_flag(a, "ctx")
    a(f"s_cmp_gt_i32 s{S_N}, s{S_NL}\ns_cbranch_scc1 L_pre")
    bar("vmcnt(8)", flag_now)
    a(f"s_lshl_b32 s6, s{S_W}, 8\ns_add_u32 s6, s6, s2\ns_cmp_eq_u32 s6, {DESIG}\ns_cbranch_scc1 L_top")
    a.label("L_idle")
    a(f"s_sub_i32 s6, s{S_NL}, 5\ns_cmp_gt_i32 s{S_N}, s6\ns_cbranch_scc1 L_pre")
    bar()
    a(f"s_cmp_lt_u32 s{S_E}, 54\ns_cbranch_scc1 L_moe\ns_branch L_idle")
    a.label("L_pre")
    a(f"s_cmp_lt_u32 s{S_W}, 4\ns_cbranch_scc1 L_pre1")
    out_setup(a, 1)
    idx_poll(a, "b", "s_waitcnt vmcnt(8)")
    a("s_call_b64 s[80:81], L_oprep")
    a(f"s_mov_b32 s6, 0x10000\ns_lshl_b32 s7, s76, 12\ns_add_u32 s7, s7, s6\nv_add_u32 v12, s7, v{VL16}")
    a(f"s_lshl_b32 s7, s76, 13\ns_add_u32 s6, s6, s7\nv_add_u32 v3, s6, v{VL16}\ns_add_u32 s7, s7, {LDS_SP}\nv_add_u32 v2, s7, v{VL16}")
    a.stamp(19)
    a("s_barrier")
    wo_load(a, 4)
    for f in range(20):
        r, off = (2, f*1024) if f < 8 else (3, (f-8)*1024) if f < 16 else (12, 49152+(f-16)*1024)
        a(f"ds_read_b128 {v(WR+4*f,4)}, v{r} offset:{off}")
        if f % 8 == 7: a("s_waitcnt lgkmcnt(6)")
    a("s_waitcnt vmcnt(5)")
    set_flag(a, "ctx")
    a("s_waitcnt lgkmcnt(0)\ns_branch L_adone")
    a.label("L_oprep")
    wo_voffs(a, VWM, VWO4)
    out_consts(a)
    out_items(a)
    a("s_setpc_b64 s[80:81]")
    a.label("L_pre1")
    cnt_addr(a); poll(a, cnt_load(a, 2, 1), "v_cmp_gt_u32 vcc, 4, v2", sleep=8)
    a(f"s_mov_b32 s{S_ALL}, 1")
    out_setup(a, 0)
    if "xnt" in ABL:
        a.srd(SRD_A, P_X, 2048*640*2)
        a(f"v_min_u32 v2, 39, v{L}\nv_mul_u32_u24 v3, 52, v2\nv_lshrrev_b32 v3, 8, v3\nv_mul_u32_u24 v4, 5, v3\nv_sub_u32 v2, v2, v4\nv_mul_u32_u24 v3, 1280, v3\nv_lshl_add_u32 v2, v2, 6, v3")
        a(f"s_cmp_lt_u32 s{S_W}, 2\ns_cselect_b32 s6, s{S_OB}, s{S_OL}\ns_lshl_b32 s6, s6, 1\ns_and_b32 s7, s{S_W}, 1\ns_add_u32 s6, s6, s7\ns_mul_i32 s6, s6, 10240\ns_and_b32 s7, s{S_H}, 3\ns_mul_i32 s7, s7, 320\ns_add_u32 s6, s6, s7")
        a(f"buffer_load_dword v{VDUM}, v2, {R(SRD_A)}, s6 offen")
    for j in range(5):
        if j < 4:
            for i in (2*j, 2*j+1): wo_load(a, i)
        if j == 4:
            ctxf_addr(a, S_OB); a(f"buffer_load_dword v50, v3, {WS}, s72 offen sc1")

        a(f"s_cmp_gt_i32 s{S_N}, s{S_NL}\ns_cbranch_scc1 L_e{j+2}")
        if j < 4:
            a(f"s_cmp_eq_i32 s{S_N}, s{S_NL}\ns_cbranch_scc1 L_lw{j}\ns_waitcnt vmcnt({(11, 10, 10, 10)[j]})")
            a.label(f"L_lw{j}")
        bar(f"vmcnt({20 if 'nocode2' in ABL else 21})")
        a.label(f"L_e{j+2}")
    idx_poll(a, "a", "s_waitcnt vmcnt(20)")
    a.stamp(22)
    moe_finish(a)
    a("s_call_b64 s[80:81], L_oprep\ns_waitcnt vmcnt(0)")
    a.label("L_ye")
    a.stamp(23)
    a("v_cmp_ne_u32 vcc, 1, v50\ns_cbranch_vccz L_ce")
    ctxf_addr(a, S_OB)
    poll(a, f"buffer_load_dword v2, v3, {WS}, s72 offen sc1", "v_cmp_ne_u32 vcc, 1, v2", sleep=4)
    a.label("L_ce")
    for r in range(NPC):
        for x in ctx_dma(r) + ctx_dma(r, 16384): a(x)
    a("s_setprio 0")
    a.stamp(19)
    a("s_barrier")
    for r in range(NPC, 2):
        for x in ctx_dma(r) + ctx_dma(r, 16384): a(x)
    a.stamp(15)
    a("s_waitcnt vmcnt(8)\ns_branch L_adone")
    moe_steps(a, bar)
    top8(a, bar)
    for h in handlers:
        if h[0] == "ld":
            a.label(h[1] + "_c"); a(f"s_waitcnt vmcnt(0) lgkmcnt(0)\ns_call_b64 s[82:83], L_pend\ns_barrier\ns_call_b64 s[82:83], L_load\ns_branch {h[1]}")
        else:
            _, bk, k, loop, full, back = h
            a.label(bk + "_h")
            a(f"v_cmp_ne_u32 vcc, 0, v{ET+4}\ns_cbranch_vccz {bk}_n\ns_call_b64 s[80:81], L_rare{1-(k&1)}")
            if full:
                o = sm_ops(k & 1)[:2]
                a(o[0][0]); a(o[1][0])
            a.label(bk + "_n")
            if loop:
                a(f"s_cmp_lt_i32 s{S_C}, 0\ns_cbranch_scc1 L_tail{(k+1)&3}\ns_cmp_gt_i32 s{S_C}, 0\ns_cbranch_scc1 {back}\ns_call_b64 s[82:83], L_mask")
            a(f"s_branch {back}")
    a.label("L_load")
    a(f"s_bitcmp1_b32 s{S_HK}, 0\ns_cbranch_scc0 L_load_r")
    a(f"s_add_u32 s77, s77, 32768\ns_xor_b32 s78, s78, 0x10000\ns_add_i32 s73, s{S_N}, 1\ns_cmp_gt_i32 s73, s{S_NL}\ns_cbranch_scc1 L_load_r")
    if "at_nodma" not in ABL:
        a(f"s_cmp_eq_i32 s73, s{S_NL}\ns_cbranch_scc1 L_load_v\ns_cmp_lg_i32 s73, 3\ns_cbranch_scc1 L_load_k")
        a("v_cmp_gt_u32 vcc, 2, v12\ns_cbranch_vccz L_load_k")
        kv_flag_wait(a, 2)
        a.label("L_load_k")
        st_dma(a, ["K", "V1"])
        a.label("L_load_v")
        st_dma(a, ["V0"])
    a(f"s_cmp_eq_i32 s73, s{S_NL}\ns_cbranch_scc1 L_xa\ns_cmp_lg_i32 s73, 2\ns_cbranch_scc1 L_nolook")
    kvf_addr(a); a(f"buffer_load_dword v12, v3, {WS}, s7 offen sc1")
    a.label("L_nolook")
    a(f"s_cmp_lt_u32 s{S_P}, 4\ns_cbranch_scc1 L_load_r")
    a(f"s_sub_i32 s6, s{S_N}, {WOTN}\ns_cmp_gt_u32 s6, 4\ns_cbranch_scc1 L_wb\ns_cbranch_scc0 L_wsel")
    a.label("L_wb")
    a(f"s_sub_i32 s79, s73, 1\ns_cmp_lt_u32 s79, 2\ns_cbranch_scc1 L_x3")
    a.label("L_load_r")
    a("s_setpc_b64 s[82:83]")
    a.label("L_pend")
    a(f"s_bitcmp1_b32 s{S_HK}, 1\ns_cbranch_scc0 L_load_a\ns_cmp_lt_i32 s{S_N}, 0\ns_cbranch_scc1 L_load_a")
    set_flag(a, "kv", 2)
    a(f"s_and_b32 s{S_HK}, s{S_HK}, 1")
    a.label("L_load_a")
    a("s_setpc_b64 s[82:83]")
    def wo_dma(fs, m0base, m0off):
        for i, f in enumerate(fs):
            a(f"s_add_u32 m0, {m0base}, {m0off + i*1024}\ns_add_u32 s7, s{84 + f%5}, {(f//5)*40960}\nbuffer_load_dwordx4 v{VL16}, {WS}, s7 offen sc1 lds")
    WOTR = [172, 176, 180, 184, 188]
    a.label("L_wsel")
    a(f"s_lshr_b32 s7, s6, 1\ns_lshl_b32 s91, s2, 1\ns_add_u32 s91, s91, s7\ns_sub_u32 s91, s91, 256\ns_cmp_eq_u32 s6, 4\ns_cbranch_scc1 L_w2\ns_bitcmp1_b32 s6, 0\ns_cbranch_scc1 L_w1")
    a.label("L_w0")
    a.srd(SRD_E, P_WO, 4096*640*2)
    a(f"s_lshr_b32 s75, s91, 1\ns_mul_i32 s75, s75, {32*1280}\ns_and_b32 s6, s91, 1\ns_mul_i32 s6, s6, 640\ns_add_u32 s75, s75, s6\ns_movk_i32 s7, 1639")
    a(f"s_mul_i32 s74, s76, 5120\ns_add_u32 s74, s74, {LDS_WOT}\ns_mul_i32 s6, s76, 320\nv_add_u32 v9, s6, v{L}")
    for n in range(5):
        a(f"v_add_u32 v2, {n*64}, v9\nv_mul_lo_u32 v3, v2, s7\nv_lshrrev_b32 v3, 16, v3\nv_mul_u32_u24 v4, 40, v3\nv_sub_u32 v4, v2, v4")
        a(f"v_mul_u32_u24 v3, 1280, v3\nv_lshl_add_u32 v3, v4, 4, v3\ns_add_u32 m0, s74, {n*1024}\ns_nop 0")
        a(f"buffer_load_dwordx4 v3, {R(SRD_E)}, s75 offen{NT} lds")
    a("s_branch L_wb")
    a.label("L_w1")
    a(f"v_and_b32 v2, 15, v{L}\nv_lshrrev_b32 v3, 4, v{L}\nv_lshrrev_b32 v4, 2, v2\nv_lshl_add_u32 v4, v3, 2, v4\nv_mul_u32_u24 v4, 640, v4")
    a(f"v_and_b32 v2, 3, v2\nv_lshl_add_u32 v4, v2, 3, v4\ns_mul_i32 s6, s76, 160\ns_add_u32 s6, s6, {LDS_WOT}\nv_add_u32 v4, s6, v4")
    a(f"s_mul_i32 s6, s91, 20480\ns_mul_i32 s7, s76, 5120\ns_add_u32 s6, s6, s7\ns_add_u32 s6, s6, {WS_WOF}\ns_add_u32 s7, s6, 4096")
    for n in range(5):
        d = WOTR[n]
        a(f"ds_read_b64_tr_b16 v[{d}:{d+1}], v4 offset:{n*32}\nds_read_b64_tr_b16 v[{d+2}:{d+3}], v4 offset:{n*32+10240}")
    a("s_waitcnt lgkmcnt(0)")
    for n in range(5):
        a(f"buffer_store_dwordx4 {v(WOTR[n],4)}, v{VL16}, {WS}, s{6 if n<4 else 7} offen offset:{(n&3)*1024} sc1")
    a("s_branch L_wb")
    a.label("L_w2")
    a(f"s_cmp_lg_u32 s{S_W}, 0\ns_cbranch_scc1 L_wb")
    count_atomic(a, 1)
    a("s_branch L_wb")
    a.label("L_xa")
    a(f"s_cmp_lg_u32 s{S_ALL}, 0\ns_cbranch_scc1 L_xa1")
    cnt_addr(a); poll(a, cnt_load(a, 2, 1), "v_cmp_gt_u32 vcc, 4, v2", sleep=8)
    a.label("L_xa1")
    if "nocode2" not in ABL:
        a("s_getpc_b64 s[80:81]")
        a.label("L_pc2")
        a(f"s_sub_u32 s80, s80, L_pc2-L_fin\ns_subb_u32 s81, s81, 0\ns_and_b32 s6, s{S_H}, 1\ns_lshl_b32 s6, s6, 14\nv_lshl_add_u32 v3, v0, 6, s6")
        a(f"v_min_u32 v3, L_exit-L_fin, v3\nglobal_load_dword v{VDUM}, v3, s[80:81]")
    if "xt" in ABL:
        a.srd(SRD_A, P_X, 2048*640*2)
        a(f"v_lshrrev_b32 v2, 2, v{L}\nv_mul_u32_u24 v2, 1280, v2\nv_and_b32 v3, 3, v{L}\nv_lshl_add_u32 v2, v3, 6, v2")
        a(f"s_lshl_b32 s6, s{S_H}, 2\ns_add_u32 s6, s6, s{S_W}\ns_mul_i32 s73, s6, 20480\ns_mul_i32 s7, s{S_P}, 160\ns_andn2_b32 s7, s7, 63\ns_add_u32 s7, s7, s73")
        a(f"buffer_load_dword v{VDUM}, v2, {R(SRD_A)}, s7 offen\nv_min_u32 v2, 39, v{L}\nv_lshlrev_b32 v2, 6, v2\ns_mul_i32 s7, s{S_P}, 2560\ns_add_u32 s7, s7, s73")
        a(f"buffer_load_dword v{VDUM}, v2, {WS}, s7 offen sc1")
    wo_base(a, 74, 1)
    for m in range(4): a(f"s_add_u32 s6, s76, {m}\ns_and_b32 s6, s6, 3\ns_lshl_b32 s6, s6, 10\ns_add_u32 s{84+m}, s6, s74")
    a("s_add_u32 s88, s74, 4096")
    a(f"s_lshl_b32 s73, s{S_W}, 13\ns_add_u32 s75, s73, s78")
    wo_dma(range(8), "s73", LDS_SP); wo_dma(range(8, 16), "s75", 0)
    a(f"s_lshl_b32 s75, s{S_W}, 12\ns_add_u32 s75, s75, s78")
    wo_dma(range(16, 20), "s75", 49152)
    a("s_setpc_b64 s[82:83]")
    a.label("L_x3")
    if "nomoetouch" not in ABL:
        a.srd(SRD_A, P_WG, 640*1728*2)
        a(f"s_cmp_eq_u32 s{S_W}, 3\ns_cbranch_scc1 L_load_r")
        a(f"s_cmp_eq_u32 s{S_W}, 1\ns_cselect_b32 s{SRD_A}, s{P_WU}, s{SRD_A}\ns_cselect_b32 s{SRD_A+1}, s{P_WU+1}, s{SRD_A+1}")
        a(f"s_cmp_eq_u32 s{S_W}, 2\ns_cselect_b32 s{SRD_A}, s{P_WD}, s{SRD_A}\ns_cselect_b32 s{SRD_A+1}, s{P_WD+1}, s{SRD_A+1}")
        a(f"s_mov_b32 s73, 3456\ns_cmov_b32 s73, 256\ns_mov_b32 s75, 256\ns_cmov_b32 s75, {4*40960}")
        a(f"s_lshr_b32 s6, s2, 3\ns_sub_u32 s6, s6, 16\ns_mul_i32 s6, s6, 40\nv_lshrrev_b32 v2, 2, v{L}\nv_add_u32 v2, s6, v2\nv_mul_lo_u32 v2, v2, s73\nv_and_b32 v3, 3, v{L}\nv_lshl_add_u32 v2, v3, 6, v2")
        a(f"s_xor_b32 s79, s79, 1\ns_lshl_b32 s6, s79, 3\ns_lshr_b32 s7, s{S_H}, 2\ns_add_u32 s6, s6, s7\ns_mul_i32 s6, s6, s75")
        a(f"v_mov_b32 v3, {hex(WS_SIZE)}\nv_cmp_gt_u32 vcc, 32, v{L}\ns_lshl_b32 s73, s73, 4\ns_nop 0\nv_cndmask_b32 v3, v3, v2, vcc")
        a(f"buffer_load_dword v{VDUM}, v2, {R(SRD_A)}, s6 offen\ns_add_u32 s7, s6, s73\nbuffer_load_dword v{VDUM}, v2, {R(SRD_A)}, s7 offen")
        a(f"s_add_u32 s7, s7, s73\nbuffer_load_dword v{VDUM}, v3, {R(SRD_A)}, s7 offen")
    a("s_setpc_b64 s[82:83]")
    a.label("L_mask")
    a(f"v_and_b32 v2, 15, v{L}\nv_lshrrev_b32 v3, 4, v{L}\nv_lshlrev_b32 v3, 2, v3\nv_sub_u32 v2, v2, v3\nv_mov_b32 v3, 0xff800000")
    for r in range(4):
        a(f"v_cmp_gt_i32 vcc, {r}, v2\nv_mov_b32 v{NMreg(1,0)+r}, v3\ns_nop 0")
        a(f"v_cndmask_b32 v{NMreg(0,0)+r}, v{NMreg(0,0)+r}, v3, vcc\nv_cndmask_b32 v{NMreg(1,1)+r}, v{NMreg(1,1)+r}, v3, vcc")
    a("s_nop 1\ns_setpc_b64 s[82:83]")
    for par in range(2):
        a.label(f"L_rare{par}")
        a("s_nop 15")
        for qt in range(2):
            m = ET + 4
            s0, s1 = Sreg(par, 0, qt), Sreg(par, 1, qt)
            a(f"v_max_f32 v{m}, v{s0}, v{s0+1}\nv_max3_f32 v{m}, v{m}, v{s0+2}, v{s0+3}\nv_max3_f32 v{m}, v{m}, v{s1}, v{s1+1}\nv_max3_f32 v{m}, v{m}, v{s1+2}, v{s1+3}")
            xlane(a, "v_max_f32", m, ET)
            a(f"v_add_f32 v{m}, {hex(OFFS)}, v{m}\nv_max_f32 v{m}, 0, v{m}")
            a(f"v_exp_f32 v{ET}, -v{m}")
            for kt in range(2):
                for r in range(4):
                    for reg in (Sreg(0,kt,qt), Sreg(1,kt,qt), NMreg(kt,qt)):
                        a(f"v_sub_f32 v{reg+r}, v{reg+r}, v{m}")
            for r in range(4): a(f"v_mul_f32 v{LA+4*qt+r}, v{ET}, v{LA+4*qt+r}")
            for t in range(8):
                for r in range(4): a(f"v_mul_f32 v{Oreg(t,qt)+r}, v{ET}, v{Oreg(t,qt)+r}")
        for e, rest in sm_ops(par):
            a(e); a("s_nop 0")
            for x in rest: a(x)
        a("s_nop 1\ns_setpc_b64 s[80:81]")
    a.label("L_adone")
    a.stamp(13)

def top8(a, bar):
    K = 64
    a.label("L_top")
    a(f"s_mov_b32 s6, {hex(WS_R)}\nv_lshrrev_b32 v2, 1, v{L}\nv_and_b32 v3, 1, v{L}\nv_lshlrev_b32 v3, 4, v3\nv_lshl_add_u32 v2, v2, 7, v3")
    for i in range(8): a(f"buffer_load_dwordx4 {v(K+4*i,4)}, v2, {WS}, s6 offen sc1\ns_add_u32 s6, s6, 4096")
    a("s_waitcnt vmcnt(0)\nv_mov_b32 v24, 0\ns_mov_b32 s7, 0\ns_mov_b32 s84, 0")
    a.label("L_top_l")
    a(f"v_max3_u32 v4, v{K}, v{K+1}, v{K+2}\nv_max3_u32 v5, v{K+3}, v{K+4}, v{K+5}")
    for i in range(6, 30, 4): a(f"v_max3_u32 v4, v4, v{K+i}, v{K+i+1}\nv_max3_u32 v5, v5, v{K+i+2}, v{K+i+3}")
    a(f"v_max3_u32 v4, v4, v{K+30}, v{K+31}\nv_max_u32 v4, v4, v5")
    a.wave_reduce("v_max_u32", 4)
    a("v_readlane_b32 s6, v4, 63\ns_mov_b32 m0, s7\ns_nop 3\ns_add_u32 s84, s84, s6\nv_writelane_b32 v24, s84, m0")
    for i in range(32): a(f"v_subrev_u32 v{K+i}, s6, v{K+i}")
    a("s_add_u32 s7, s7, 1\ns_cmp_lt_u32 s7, 8\ns_cbranch_scc1 L_top_l")
    a(f"v_and_b32 v2, 7, v{L}\nv_lshlrev_b32 v2, 2, v2\nds_bpermute_b32 v4, v2, v24\ns_waitcnt lgkmcnt(0)\nv_and_b32 v4, 0x7ff, v4\nv_sub_u32 v4, 0x7ff, v4")
    a(f"v_lshrrev_b32 v5, 4, v4\nv_mul_u32_u24 v5, 20480, v5\nv_and_b32 v4, 15, v4\nv_lshl_add_u32 v5, v4, 4, v5\nv_lshrrev_b32 v7, 4, v{L}\nv_lshl_add_u32 v5, v7, 8, v5")
    a(f"v_mov_b32 v6, {hex(WS_SIZE)}\nv_and_b32 v2, 8, v{L}\nv_cmp_eq_u32 vcc, 0, v2\ns_mov_b32 s6, 0\ns_nop 0\nv_cndmask_b32 v5, v6, v5, vcc")
    for k in range(20):
        if k and k % 4 == 0: a("s_add_u32 s6, s6, 4096")
        a(f"buffer_load_dwordx4 {v(K+4*k,4)}, v5, {WS}, s6 offen offset:{(k&3)*1024} sc1")
    def put():
        a(f"s_waitcnt vmcnt(0)\ns_mov_b32 s6, {hex(WS_XS)}")
        for k in range(20):
            if k and k % 4 == 0: a("s_add_u32 s6, s6, 4096")
            a(f"buffer_store_dwordx4 {v(K+4*k,4)}, v{VL16}, {WS}, s6 offen offset:{(k&3)*1024} sc1")
    bar("vmcnt(20)", put)
    a("s_waitcnt vmcnt(16)")
    a(f"v_or_b32 v24, 0x80000000, v24\nv_lshlrev_b32 v5, 2, v{L}\nv_mov_b32 v6, {hex(WS_SIZE)}\nv_cmp_gt_u32 vcc, 8, v{L}\ns_mov_b32 s6, {hex(WS_IDX)}\ns_nop 0\nv_cndmask_b32 v5, v6, v5, vcc")
    a(f"buffer_store_dword v24, v5, {WS}, s6 offen sc1\ns_branch L_idle")

OACC = 176
M_WD, M_PART = 81920, 122880
VIDX = 51
def idx_addr(a):
    a(f"v_and_b32 v3, 7, v{L}\nv_lshlrev_b32 v3, 2, v3\ns_mov_b32 s72, {hex(WS_IDX)}")
def ctxf_addr(a, own, both=True):
    a(f"v_and_b32 v3, 1, v{L}\nv_lshlrev_b32 v3, 12, v3")
    if both: a(f"v_and_b32 v2, 2, v{L}\nv_lshl_add_u32 v3, v2, 8, v3")
    a(f"s_lshr_b32 s72, s{own}, 2\ns_lshl_b32 s72, s72, 6\ns_andn2_b32 s6, s{S_H}, 7\ns_add_u32 s72, s72, s6\ns_add_u32 s72, s72, s{S_W}\ns_lshl_b32 s72, s72, 7\ns_add_u32 s72, s72, {WS_CTXF}")
def idx_poll(a, sfx, wait="s_waitcnt vmcnt(40)"):
    a(wait)
    a(f"v_cmp_le_i32 vcc, 0, v{VIDX}\ns_cbranch_vccz L_idx_ok{sfx}")
    idx_addr(a)
    poll(a, f"buffer_load_dword v{VIDX}, v3, {WS}, s72 offen sc1", f"v_cmp_le_i32 vcc, 0, v{VIDX}")
    a.label(f"L_idx_ok{sfx}")

def moe_steps(a, bar):
    XS, FRG, GA, WDR, WD2, PR, YO = 64, 104, 24, 32, 240, 184, 216
    VG, VT, VD, VTD, VY, VXS = 16, 17, 18, 19, 20, 21
    S_G, S_WIN, S_D = 84, 85, 86
    a.label("L_moe")
    a(f"s_sub_u32 s6, s{S_N}, s{S_P}\ns_cmp_lg_u32 s6, 3\ns_cbranch_scc1 L_idle")
    def srds():
        a.srd(SRD_A, P_WG, 640*1728*2)
        a(f"s_cmp_ge_u32 s{S_W}, 2\ns_cselect_b32 s{SRD_A}, s{P_WU}, s{SRD_A}\ns_cselect_b32 s{SRD_A+1}, s{P_WU+1}, s{SRD_A+1}")
        a.srd(SRD_B, P_WD, 1728*640*2)
    def dma_g(nk):
        for n in range(2*nk):
            a(f"s_add_u32 m0, s{S_WIN}, {n*1024}\ns_nop 0\nbuffer_load_dwordx4 v{VG}, {R(SRD_A)}, s{S_G} offen lds\ns_add_u32 s{S_G}, s{S_G}, {16*3456}")
    def dma_d():
        for n in range(4):
            a(f"s_add_u32 m0, s{S_WIN}, {4096+n*1024}\ns_add_u32 s6, s{S_D}, {n*8*1280}\nbuffer_load_dwordx4 v{VD}, {R(SRD_B)}, s6 offen lds")
        a(f"s_add_u32 s{S_D}, s{S_D}, 512")
    def rd_g(k0, nk):
        for k in range(nk):
            for ft in range(2):
                d = FRG + ((k0+k)*2+ft)*4
                a(f"ds_read_b64_tr_b16 {v(d,2)}, v{VT} offset:{k*2048+ft*32}\nds_read_b64_tr_b16 {v(d+2,2)}, v{VT} offset:{k*2048+ft*32+256}")
            if k == 1: a("s_waitcnt lgkmcnt(0)")
    def xs(k0, nk):
        for k in range(k0, k0+nk): a(f"buffer_load_dwordx4 {v(XS+4*k,4)}, v{VL16}, {WS}, s88 offen sc1\ns_add_u32 s88, s88, 1024")
    def rd_d(base):
        for m in range(4):
            a(f"ds_read_b64_tr_b16 {v(base+4*m,2)}, v{VTD} offset:{m*32}\nds_read_b64_tr_b16 {v(base+2+4*m,2)}, v{VTD} offset:{m*32+16*128}")
    def down(base, goff):
        for m in range(4): a.mfma(YO+4*m, base+4*m, GA, "0")
        a("s_nop 7")
        for m in range(4): a(f"buffer_store_dwordx4 {v(YO+4*m,4)}, v{VY}, {WS}, s87 offen offset:{goff*1024+m*64} sc1")
        a("s_nop 1")
    srds()
    a(f"v_lshrrev_b32 v3, 2, v{L}\nv_mul_u32_u24 v3, 3456, v3\nv_and_b32 v4, 3, v{L}\nv_lshl_add_u32 v{VG}, v4, 4, v3")
    a(f"v_lshrrev_b32 v3, 3, v{L}\nv_mul_u32_u24 v3, 1280, v3\nv_and_b32 v4, 7, v{L}\nv_lshl_add_u32 v{VD}, v4, 4, v3")
    a(f"s_and_b32 s7, s{S_W}, 1\ns_mul_i32 s{S_G}, s7, {320*3456}\ns_lshl_b32 s6, s{S_E}, 6\ns_add_u32 s{S_G}, s{S_G}, s6")
    a(f"s_lshl_b32 s{S_WIN}, s{S_W}, 13\ns_add_u32 s{S_WIN}, s{S_WIN}, {LDS_SP}")
    a(f"s_mul_i32 s{S_D}, s{S_E}, 40960\ns_lshl_b32 s6, s{S_W}, 7\ns_add_u32 s{S_D}, s{S_D}, s6")
    dma_g(4)
    a(f"v_lshrrev_b32 v7, 4, v{L}\nv_and_b32 v2, 15, v{L}\nv_lshrrev_b32 v3, 2, v2\nv_lshl_add_u32 v8, v7, 3, v3\nv_lshlrev_b32 v8, 6, v8\nv_and_b32 v4, 3, v2\nv_lshl_add_u32 v8, v4, 3, v8\nv_add_u32 v{VT}, s{S_WIN}, v8")
    a(f"v_lshl_add_u32 v8, v7, 2, v3\nv_lshlrev_b32 v8, 7, v8\nv_lshl_add_u32 v8, v4, 3, v8\ns_add_u32 s6, s{S_WIN}, 4096\nv_add_u32 v{VTD}, s6, v8")
    a(f"v_mul_u32_u24 v3, 2560, v2\nv_lshl_add_u32 v3, v7, 4, v3\nv_mov_b32 v4, {hex(WS_SIZE)}\nv_cmp_gt_u32 vcc, 8, v2")
    a(f"s_mul_i32 s87, s{S_E}, 20480\ns_lshl_b32 s7, s{S_W}, 8\ns_add_u32 s87, s87, s7\ns_add_u32 s87, s87, {WS_YP}\nv_cndmask_b32 v{VY}, v4, v3, vcc")
    a(f"s_and_b32 s7, s{S_W}, 1\ns_mul_i32 s88, s7, 10240\ns_add_u32 s88, s88, {WS_XS}")
    W0 = "vmcnt(0) lgkmcnt(0)"
    def m1():
        rd_g(0, 4); a("s_waitcnt lgkmcnt(0)"); dma_g(4)
    bar(W0, m1)
    idx_addr(a); a(f"buffer_load_dword v{VIDX}, v3, {WS}, s72 offen sc1")
    def m2():
        rd_g(4, 4); a("s_waitcnt lgkmcnt(0)"); dma_g(2); dma_d()
    bar(W0, m2)
    idx_poll(a, "m", "")
    xs(0, 10)
    def m3():
        rd_g(8, 2); rd_d(WDR); a("s_waitcnt lgkmcnt(0)"); dma_d()
    bar("vmcnt(10) lgkmcnt(0)", m3)
    a("s_waitcnt vmcnt(20)")
    for k in range(10):
        for ft in range(2): a.mfma(GA+4*ft, FRG+(k*2+ft)*4, XS+4*k, "0" if k == 0 else None)
    a(f"v_add_u32 v10, s{S_WIN}, v{VL16}\ns_nop 7\nds_write_b128 v10, {v(GA,4)}\nds_write_b128 v10, {v(GA+4,4)} offset:1024")
    def m4():
        rd_d(WD2)
        a(f"v_add_u32 v10, {LDS_SP}, v{VL16}\ns_waitcnt lgkmcnt(0)")
        for w in range(4):
            for ft in range(2): a(f"ds_read_b128 {v(PR+(w*2+ft)*4,4)}, v10 offset:{w*8192+ft*1024}")
        a(f"s_cmp_ge_u32 s{S_W}, 2\ns_cbranch_scc1 L_moe4b")
        dma_d()
        a.label("L_moe4b")
    bar(W0, m4)
    a("s_waitcnt lgkmcnt(0)")
    a("s_mov_b32 s6, 0xbfb8aa3b")
    def rnd2(r): a(f"v_cvt_pk_bf16_f32 v{r+1}, v{r}, v{r+1}\nv_lshlrev_b32 v{r}, 16, v{r+1}\nv_and_b32 v{r+1}, 0xffff0000, v{r+1}")
    for i in range(0, 8, 2):
        g0, u0 = PR + i, PR + 16 + i
        for q in range(2): a(f"v_add_f32 v{g0+q}, v{g0+q}, v{g0+8+q}\nv_add_f32 v{u0+q}, v{u0+q}, v{u0+8+q}")
        rnd2(g0); rnd2(u0)
        a(f"v_mul_f32 v2, s6, v{g0}\nv_mul_f32 v3, s6, v{g0+1}\nv_exp_f32 v2, v2\nv_exp_f32 v3, v3\nv_add_f32 v2, 1.0, v2\nv_add_f32 v3, 1.0, v3".replace("v_exp_f32 v3, v3\n", "v_exp_f32 v3, v3\ns_nop 0\n"))
        a(f"v_rcp_f32 v2, v2\nv_rcp_f32 v3, v3\ns_nop 0\nv_mul_f32 v{g0}, v{g0}, v2\nv_mul_f32 v{g0+1}, v{g0+1}, v3")
        rnd2(g0)
        a(f"v_mul_f32 v{g0}, v{g0}, v{u0}\nv_mul_f32 v{g0+1}, v{g0+1}, v{u0+1}\nv_cvt_pk_bf16_f32 v{GA+i//2}, v{g0}, v{g0+1}")
    a("s_nop 1")
    down(WDR, 0)
    bar("vmcnt(4) lgkmcnt(0)")
    down(WD2, 1)
    a(f"s_cmp_ge_u32 s{S_W}, 2\ns_cbranch_scc1 L_moe5b")
    rd_d(WDR); a("s_waitcnt lgkmcnt(0)"); down(WDR, 2)
    a.label("L_moe5b")
    bar("vmcnt(4) lgkmcnt(0)", lambda: (a("s_waitcnt vmcnt(0)"), set_flag(a, "moe")))
    a("s_branch L_idle")

def moe_finish(a):
    YS = [16+4*i for i in range(8)] + [56+4*i for i in range(10)]
    Y, XR = YS[0], 54
    a(f"s_lshr_b32 s7, s{S_W}, 1\ns_lshl_b32 s7, s7, 4\ns_add_u32 s6, s{S_P}, s7\ns_cmp_lg_u32 s6, {YP}\ns_cbranch_scc1 L_yd")
    a(f"s_lshr_b32 s87, s{S_H}, 2\ns_and_b32 s88, s{S_H}, 3\ns_lshl_b32 s88, s88, 1\ns_add_u32 s88, s88, s{S_W}")
    a(f"s_mov_b32 m0, s87\ns_nop 3\nv_readlane_b32 s85, v{VIDX}, m0\ns_nop 3\ns_and_b32 s86, s85, 0x7ff\ns_sub_u32 s86, 0x7ff, s86")
    a(f"v_min_u32 v3, 53, v{L}\nv_lshlrev_b32 v3, 7, v3\ns_mov_b32 s72, {hex(WS_MOEF)}")
    poll(a, f"buffer_load_dwordx4 {v(Y,4)}, v3, {WS}, s72 offen sc1",
         "\n".join([f"v_and_b32 v{Y}, v{Y}, v{Y+r}" for r in (1, 2, 3)]) + f"\nv_cmp_ne_u32 vcc, 1, v{Y}", sleep=16)
    a(f"v_mul_u32_u24 v2, 13, v{L}\nv_lshrrev_b32 v2, 8, v2\nv_mul_u32_u24 v3, 20, v2\nv_sub_u32 v4, v{L}, v3")
    a(f"s_mov_b32 s6, {18*20480}\nv_mul_lo_u32 v2, v2, s6\nv_lshl_add_u32 v2, v4, 4, v2")
    a(f"v_cmp_lt_u32 vcc, 59, v{L}\nv_mov_b32 v3, {hex(WS_SIZE)}\ns_nop 0\nv_cndmask_b32 v2, v2, v3, vcc")
    a(f"s_mul_i32 s6, s87, 2560\ns_mul_i32 s7, s88, 320\ns_add_u32 s6, s6, s7\ns_add_u32 s6, s6, {WS_YP}")
    for e in range(18):
        a(f"buffer_load_dwordx4 {v(YS[e],4)}, v2, {WS}, s6 offen sc1\ns_add_u32 s6, s6, 20480")
    a(f"s_lshr_b32 s6, s86, 4\ns_mul_i32 s6, s6, 20480\ns_and_b32 s7, s86, 15\ns_lshl_b32 s7, s7, 4\ns_add_u32 s6, s6, s7\ns_mul_i32 s7, s88, 2560\ns_add_u32 s6, s6, s7")
    a(f"v_lshrrev_b32 v5, 1, v4\nv_lshlrev_b32 v5, 8, v5\nv_and_b32 v6, 1, v4\nv_lshl_add_u32 v5, v6, 3, v5\nbuffer_load_dwordx2 {v(XR,2)}, v5, {WS}, s6 offen sc1")
    a("s_bfe_u32 s6, s85, 0x10000b\ns_xor_b32 s7, s6, 0xffff\ns_bitcmp1_b32 s6, 15\ns_bitset0_b32 s6, 15\ns_cselect_b32 s6, s6, s7\ns_lshl_b32 s6, s6, 16\nv_mov_b32 v5, s6")
    a("v_mul_f32 v5, 0xbfb8aa3b, v5\nv_exp_f32 v5, v5\ns_nop 0\nv_add_f32 v5, 1.0, v5\nv_rcp_f32 v5, v5\ns_nop 0")
    bf16_round(a, 5)
    a(f"v_lshlrev_b32 v6, 2, v{L}\ns_waitcnt vmcnt(0)")
    for e in range(1, 18):
        a(f"v_pk_add_f32 {v(Y,2)}, {v(Y,2)}, {v(YS[e],2)}\nv_pk_add_f32 {v(Y+2,2)}, {v(Y+2,2)}, {v(YS[e]+2,2)}")
    for k in range(2):
        for r in range(4): a(f"ds_bpermute_b32 v{Y+4+4*k+r}, v6, v{Y+r} offset:{80*(k+1)}")
    a("s_waitcnt lgkmcnt(0)")
    for r in range(4):
        y = Y + r
        a(f"v_add_f32 v{y}, v{y}, v{y+4}\nv_add_f32 v{y}, v{y}, v{y+8}")
        bf16_round(a, y)
        a(f"v_mul_f32 v{y}, v{y}, v5")
        bf16_round(a, y)
        xn = XR + (r >> 1)
        a(f"v_and_b32 v7, 0xffff0000, v{xn}" if r & 1 else f"v_lshlrev_b32 v7, 16, v{xn}")
        a(f"v_add_f32 v{y}, v{y}, v7")
    a(f"v_cvt_pk_bf16_f32 v{Y+4}, v{Y}, v{Y+1}\nv_cvt_pk_bf16_f32 v{Y+5}, v{Y+2}, v{Y+3}")
    a(f"v_lshlrev_b32 v2, 3, v{L}\nv_cmp_lt_u32 vcc, 19, v{L}\ns_mul_i32 s6, s87, 1280\ns_mul_i32 s7, s88, 160\nv_cndmask_b32 v2, v2, v3, vcc\ns_add_u32 s6, s6, s7\ns_add_u32 s6, s6, {WS_BSEL}")
    a(f"buffer_store_dwordx2 {v(Y+4,2)}, v2, {WS}, s6 offen sc1")
    a("s_call_b64 s[80:81], L_oprep\ns_waitcnt vmcnt(0)")
    set_flag(a, "b")
    a("s_branch L_ye")
    a.label("L_yd")

WR, OA, CR, RT = 96, 56, 16, 32
S_OW, S_OB, S_CX, S_OL = 69, 68, 66, 61
VWO4 = 52
LDS_P, LDS_F = 98304, 65536
def wo_base(a, d, nh):
    a(f"s_lshr_b32 s{d}, s{S_H}, 3\ns_lshl_b32 s{d}, s{d}, 2\ns_add_u32 s{d}, s{d}, s76\ns_mul_i32 s{d}, s{d}, {8*40960}\ns_and_b32 s7, s{S_H}, 3\ns_mul_i32 s7, s7, 10240\ns_add_u32 s{d}, s{d}, s7\ns_add_u32 s{d}, s{d}, {WS_WOF + nh*5120}")

XNA = 48
S_TOK, S_XI, S_XFI, VXF = 64, 62, 63, 11
XFG = int(os.environ.get("XFG", "16"))
VWM = 44
def wo_voffs(a, r0, r4=None):
    for m in range(4): a(f"s_add_u32 s6, s76, {m}\ns_and_b32 s6, s6, 3\ns_lshl_b32 s6, s6, 10\nv_add_u32 v{r0+m}, s6, v{VL16}")
    a(f"v_add_u32 v{r0+4 if r4 is None else r4}, 4096, v{VL16}")
def wm(m): return VWM + m if m < 4 else VWO4
def wo_load(a, i):
    a(f"s_add_u32 s75, s{S_OW}, {i*40960}")
    for m in range(5): a(f"buffer_load_dwordx4 {v(WR+4*(5*i+m),4)}, v{wm(m)}, {WS}, s75 offen sc1")

def out_setup(a, nh):
    if nh == 0:
        idx_addr(a); a(f"buffer_load_dword v{VIDX}, v3, {WS}, s72 offen sc1")
    wo_voffs(a, VWM, VWO4)
    wo_base(a, S_OW, nh)
    a(f"s_and_b32 s6, s{S_H}, 4\ns_lshr_b32 s7, s{S_H}, 3\ns_add_u32 s6, s6, s7\ns_lshl_b32 s7, s{S_P}, 3\ns_add_u32 s{S_OB}, s6, s7\ns_sub_u32 s7, 120, s7\ns_add_u32 s{S_OL}, s6, s7")

VCA, VT, VPR = 4, 5, 6
S_RED = 71
S_PB, S_XS = 67, 96
def out_consts(a):
    a(f"s_lshr_b32 s6, s{S_W}, 2\ns_lshl_b32 s6, s6, 1\ns_sub_u32 s{S_RED}, s76, s6\ns_and_b32 s{S_RED}, s{S_RED}, 3")
    a(f"s_lshr_b32 s6, s{S_H}, 3\ns_lshl_b32 s6, s6, 15\ns_lshl_b32 s99, s{S_W}, 12\ns_add_u32 s{S_CX}, s6, s99\ns_add_u32 s{S_CX}, s{S_CX}, {WS_CTX}")
    a(f"s_lshl_b32 s6, s76, 13\nv_add_u32 v{VCA}, s6, v{VL16}\nv_add_u32 v7, 65536, v{VCA}")
    a(f"s_lshr_b32 s6, s{S_W}, 2\ns_mul_i32 s{S_PB}, s6, 15360\ns_add_u32 s{S_PB}, s{S_PB}, {LDS_P}\nv_add_u32 v{VPR}, s{S_PB}, v{VWM}")
    a(f"v_mov_b32 v{VXF}, {hex(WS_SIZE)}")
    tile_id(a, S_XFI)
    a(f"s_lshl_b32 s{S_XFI}, s{S_XFI}, 2\ns_lshr_b32 s7, s{S_H}, 3\ns_add_u32 s{S_XFI}, s{S_XFI}, s7\ns_mul_i32 s{S_XI}, s{S_XFI}, 61440\ns_add_u32 s{S_XI}, s{S_XI}, {WS_XP}\ns_mul_i32 s{S_XFI}, s{S_XFI}, 384\ns_add_u32 s{S_XFI}, s{S_XFI}, {WS_XF}")
    for k in range(3):
        xslot(a, k, S_XS+k)
        a(f"s_lshl_b32 s6, s{S_XS+k}, 5\ns_add_u32 s6, s6, s{S_W}\ns_lshl_b32 s6, s6, 2\ns_add_u32 s6, s6, {WS_XF}\nv_writelane_b32 v{VXF}, s6, {k}")
        a(f"s_mul_i32 s{S_XS+k}, s{S_XS+k}, 20480\ns_lshr_b32 s6, s{S_W}, 2\ns_mul_i32 s6, s6, 5120\ns_add_u32 s{S_XS+k}, s{S_XS+k}, s6\ns_add_u32 s{S_XS+k}, s{S_XS+k}, {WS_XP}")

def ctx_dma(r, extra=0):
    own, d = (S_OL if r in (3, 4, 5, 7) else S_OB), (1 + r % 3 if r < 6 else 0)
    o = [f"s_add_u32 s65, s{own}, {d}\ns_and_b32 s65, s65, 3\ns_andn2_b32 s7, s{own}, 3\ns_add_u32 s65, s65, s7\ns_lshl_b32 s65, s65, 17\ns_add_u32 s65, s65, s{S_CX}\ns_add_u32 m0, s99, {(r%3)*32768+extra}\ns_add_u32 s65, s65, {extra}"]
    return o + [f"buffer_load_dwordx4 v{VL16}, {WS}, s65 offen offset:{i*1024} sc1 lds" for i in range(4)]

def phase_out(a):
    def rdc(r, i):
        reg, off = (VCA, (r%3)*32768) if r % 3 < 2 else (7, 0)
        return (("C", i & 3), f"ds_read_b128 {v(CR+4*(i&3),4)}, v{reg} offset:{off+i*1024}")
    def xlook_addr():
        a(f"v_bfe_u32 v2, v{L}, 3, 2\nv_min_u32 v2, 2, v2\nv_and_b32 v3, 7, v{L}\nv_lshlrev_b32 v3, 2, v3\nv_lshl_add_u32 v3, v2, 7, v3")
    IT = [(WR, WR+4), (WR+8, WR+12)]
    XI, LP, OUTR = WR+16, WR+64, WR+128
    def emit(x):
        if callable(x): x()
        elif isinstance(x, str): a(x)
        elif x[0] == "wait": a.wait_lg(x[1])
        else:
            a(x[1]); a.lg.issue(x[0])
    def xin_load(slots):
        sk = a.newlabel("xi")
        for n in range(2):
            if n == 1: a(f"s_cmp_ge_u32 s{S_W}, 2\ns_cbranch_scc1 {sk}")
            for s_ in slots:
                a(f"s_add_u32 s6, s{S_XI}, {s_*20480}")
                for hf in range(2): a(f"buffer_load_dwordx4 {v(XI+24*n+8*s_+4*hf,4)}, v{8+n}, {WS}, s6 offen offset:{hf*256} sc1")
        a.label(sk)
    a("s_barrier")
    a.lg.drain()
    for i in range(4): emit(rdc(0, i))
    a.wait_lg(("C", 0))
    BG = 24
    for r in range(8):
        if "stampout" in ABL: a.stamp(44 + r)
        A = OA + 20*(r & 1); Ap = OA + 20*((r-1) & 1)
        po = ((r-1) & 1)*30720
        red = 1 <= r <= 6
        G = [[] for _ in range(40)]
        def dma_at(rr, g0, gs):
            d = ctx_dma(rr); sal = d[0].split("\n")
            G[g0] += sal[:3]; G[g0+1] += sal[3:6]; G[g0+2] += sal[6:7]
            for g, x in zip(gs, d[1:]): G[g].insert(0, x)
        def barrier():
            if r == 0:
                a(f"s_cmp_ge_u32 s{S_W}, 4\ns_cbranch_scc1 L_o0\ns_waitcnt vmcnt(4)")
                a.label("L_o0")
            else: a(f"s_waitcnt vmcnt({(0, 0, 4, 5, 5, 5, 1)[r]})")
            if r == 6: a(f"buffer_store_dword v2, v{VXF}, {WS}, 0 offen sc1")
            a("s_waitcnt lgkmcnt(0)\ns_barrier"); a.lg.drain()
        for i in range(8):
            if i < 4: G[5*i+4].append(rdc(r, i+4))
            elif r < 7 and i > 4: G[5*i+4].append(rdc(r+1, i-4))
            if i < 7 or r < 7: G[5*i+3].append(("wait", ("C", (i+1) & 3)))
        if r < 7: G[BG].append(barrier)
        if red:
            G[0].append(f"s_sub_u32 s6, s{S_RED}, {r}\ns_and_b32 s6, s6, 3\ns_mul_i32 s7, s6, 5120")
            G[1].append(f"s_add_u32 s7, s7, s{S_PB}\ns_cmp_eq_u32 s6, 3\ns_cselect_b32 s7, {159744-4096-po}, s7")
            G[2].append(f"v_add_u32 v12, s7, v{VWO4}\nv_add_u32 v{VT}, s{S_PB}, v{wm(1)}")
            for m, g in zip(range(1, 4), (5, 10, 15)):
                G[g] += [("W", f"ds_write_b128 v{VT}, {v(Ap+4*m,4)} offset:{po+(m-1)*5120}"), f"v_add_u32 v{VT}, s{S_PB}, v{wm(m+1)}"]
            G[20].append(("W", f"ds_write_b128 v12, {v(Ap+16,4)} offset:{po}"))
            for k in range(3): G[BG].append((("P", k), f"ds_read_b128 {v(RT+4*k,4)}, v{VPR} offset:{po+k*5120}"))
            for k in range(3):
                G[27+2*k].insert(0, ("wait", ("P", k)))
                for q in range(4): G[27+2*k+q//2].append(f"v_add_f32 v{Ap+q}, v{Ap+q}, v{RT+4*k+q}")
                G[29+2*k].insert(0, (("P", k), f"ds_read_b128 {v(RT+4*k,4)}, v{VT} offset:{po+k*5120}"))
            for k in range(3):
                G[33+2*k].append(("wait", ("P", k)))
                for q in range(4): G[33+2*k+q//2].append(f"v_add_f32 v{Ap+16+q}, v{Ap+16+q}, v{RT+4*k+q}")
            G[33].append(f"s_add_u32 s6, s{S_XS+(r-1)%3}, {((r-1)//3)*10240}")
            G[35].insert(0, f"buffer_store_dwordx4 {v(Ap,4)}, v{VWM}, {WS}, s6 offen sc1")
            sk = a.newlabel("nost")
            G[38].append(f"s_cmp_lg_u32 s{S_RED}, {(r-1)&3}")
            G[39].insert(0, f"s_cbranch_scc1 {sk}\nbuffer_store_dwordx4 {v(Ap+16,4)}, v{VWO4}, {WS}, s6 offen sc1\n{sk}:")
        if r < 7: G[BG].append(rdc(r+1, 0))
        if 1 < r < 5: dma_at(r+3, 21, (25, 26, 28, 30))
        if r == 0:
            dma_at(2, 11, (15, 16, 17, 18))
            for i in range(3):
                def wl(i=i):
                    sk = a.newlabel("nowl")
                    a(f"s_cmp_lt_u32 s{S_W}, 4\ns_cbranch_scc1 {sk}")
                    wo_load(a, 5+i)
                    a.label(sk)
                G[5*i+4].append(wl)
            for i in range(4): G[19+5*i].append(f"s_waitcnt vmcnt({(20, 14, 9, 4)[i]})")
        if r == 1:
            G[22].append(lambda: ctxf_addr(a, S_OL, False))
            G[LOOKG].insert(0, f"buffer_load_dword v50, v3, {WS}, s72 offen sc1")
        if r == 2:
            def chk():
                a(f"s_waitcnt vmcnt(1)\nv_cmp_ne_u32 vcc, 1, v50\ns_cbranch_vccz L_o1")
                poll(a, f"buffer_load_dword v2, v3, {WS}, s72 offen sc1", "v_cmp_ne_u32 vcc, 1, v2", sleep=1)
                a.label("L_o1")
            G[2].append(chk)
            dma_at(3, 3, (6, 6, 7, 7))
            dma_at(4, 8, (11, 12, 13, 16))
        if r == 6: G[22].append(f"v_mov_b32 v2, 1\nv_writelane_b32 v2, 2, 0")
        if r == 7:
            G[2].append(f"s_mul_i32 s73, s{S_W}, 5120\ns_add_u32 s6, s73, {LDS_F}")
            G[3].append(f"v_add_u32 v{VT}, s6, v{wm(0)}")
            for m in range(5):
                G[5+5*m].append(("W", f"ds_write_b128 v{VT}, {v(Ap+4*m,4)}"))
                if m < 4: G[5+5*m].append(f"s_add_u32 s6, s73, {LDS_F}\nv_add_u32 v{VT}, s6, v{wm(m+1)}")
            G[XFG].append(f"v_mov_b32 v2, 2\ns_waitcnt vmcnt(0)\nbuffer_store_dword v2, v{VXF}, {WS}, 0 offen sc1")
            def items():
                a(f"s_cmp_eq_u32 s{S_TOK}, 0\ns_cbranch_scc1 L_nb")
                a(f"v_bfe_u32 v2, v{L}, 1, 3\nv_and_b32 v3, 1, v{L}\nv_lshl_add_u32 v3, v2, 7, v3\nv_lshlrev_b32 v3, 2, v3\ns_and_b32 s6, s{S_H}, 3\ns_lshl_b32 s6, s6, 7\ns_add_u32 s6, s6, {WS_BF+YP*32*128}")
                poll(a, f"buffer_load_dword v2, v3, {WS}, s6 offen sc1", "v_cmp_ne_u32 vcc, 1, v2")
                a.label("L_nb")
                sk = a.newlabel("itskip")
                for n in range(2):
                    if n == 1: a(f"s_cmp_ge_u32 s{S_W}, 2\ns_cbranch_scc1 {sk}")
                    a(f"buffer_load_dwordx4 {v(IT[n][0],4)}, v{53+n}, {R(SRD_A)}, s70 offen\nbuffer_load_dwordx4 {v(IT[n][1],4)}, v{XNA+n}, {WS}, 0 offen sc1")
                a.label(sk)
            G[XFG+2].append(items)
            G[30].append(xlook_addr)
            G[31].append(f"s_bitcmp1_b32 13, s{S_W}\ns_cselect_b32 s77, 1, 2\nbuffer_load_dword v50, v3, {WS}, s{S_XFI} offen sc1")
            G[33].append(f"s_add_u32 s6, s73, {106496-20480}\ns_cmp_lt_u32 s{S_W}, 4\ns_cselect_b32 s73, s73, s6")
        for g in range(40):
            i, m = divmod(g, 5)
            a.mfma(A+4*m, WR+4*g, CR+4*(i&3), "0" if i == 0 else None)
            for x in G[g]: emit(x)
    a.stamp(16)
    a("s_nop 4")
    for m in range(5): a(f"v_add_u32 v{VT}, s73, v{wm(m)}\nds_write_b128 v{VT}, {v(OA+20+4*m,4)}")
    a("s_waitcnt vmcnt(0)\nv_cmp_gt_u32 s[78:79], s77, v50\ns_nop 3\ns_cmp_lg_u64 s[78:79], 0\ns_cbranch_scc1 L_x2a")
    xin_load((0, 1, 2))
    a.label("L_x2a")
    a("s_waitcnt lgkmcnt(0)\ns_barrier")
    for n in range(2):
        for k in range(4):
            for hf in range(2): a(f"ds_read_b128 {v(LP+32*n+8*k+4*hf,4)}, v{(10,55)[n]} offset:{k*5120+hf*256}")
    a("s_cmp_eq_u64 s[78:79], 0\ns_cbranch_scc1 L_x2b")
    poll(a, f"buffer_load_dword v2, v3, {WS}, s{S_XFI} offen sc1", "v_cmp_gt_u32 vcc, s77, v2", sleep=1)
    xin_load((0, 1, 2))
    a.label("L_x2b")
    a.srd(SRD_B, P_OUT, 2048*640*2)
    a.stamp(17)
    for n in range(2):
        if n == 1: a(f"s_cmp_ge_u32 s{S_W}, 2\ns_cbranch_scc1 L_end")
        S = LP + 32*n
        a(f"s_waitcnt lgkmcnt({8 if n == 0 else 0})")
        for k in range(1, 4):
            for q in range(0, 8, 2): a(f"v_pk_add_f32 {v(S+q,2)}, {v(S+q,2)}, {v(S+8*k+q,2)}")
        a("s_waitcnt vmcnt(0)" if n == 0 else "s_nop 0")
        for k in range(3):
            for q in range(0, 8, 2): a(f"v_pk_add_f32 {v(S+q,2)}, {v(S+q,2)}, {v(XI+24*n+8*k+q,2)}")
        for q in range(4):
            x0, x1 = S+2*q, S+2*q+1
            a(f"v_cvt_pk_bf16_f32 v2, v{x0}, v{x1}\nv_lshlrev_b32 v{x0}, 16, v2\nv_and_b32 v{x1}, 0xffff0000, v2")
            a(f"v_lshlrev_b32 v2, 16, v{IT[n][0]+q}\nv_and_b32 v3, 0xffff0000, v{IT[n][0]+q}\nv_pk_add_f32 {v(x0,2)}, {v(x0,2)}, v[2:3]")
            a(f"v_cvt_pk_bf16_f32 v2, v{x0}, v{x1}\nv_lshlrev_b32 v{x0}, 16, v2\nv_and_b32 v{x1}, 0xffff0000, v2")
            a(f"v_lshlrev_b32 v2, 16, v{IT[n][1]+q}\nv_and_b32 v3, 0xffff0000, v{IT[n][1]+q}\nv_pk_add_f32 {v(x0,2)}, {v(x0,2)}, v[2:3]")
            a(f"v_cvt_pk_bf16_f32 v{OUTR+4*n+q}, v{x0}, v{x1}")
        a(f"buffer_store_dwordx4 {v(OUTR+4*n,4)}, v{53+n}, {R(SRD_B)}, s70 offen")

def out_items(a):
    a.srd(SRD_A, P_X, 2048*640*2)
    a(f"s_and_b32 s75, s{S_H}, 3\ns_mul_i32 s70, s75, 320\ns_add_u32 s73, s70, {WS_BSEL}")
    a(f"s_mul_i32 s72, s75, 5120")
    a(f"v_lshrrev_b32 v2, 4, v{L}\nv_and_b32 v3, 15, v{L}\nv_mul_u32_u24 v54, 1280, v3\nv_lshl_add_u32 v54, v2, 4, v54\nv_lshlrev_b32 v3, 4, v3\nv_lshl_add_u32 v9, v2, 9, v3")
    a(f"s_lshr_b32 s100, s{S_W}, 2\ns_cselect_b32 s6, s{S_OL}, s{S_OB}\ns_mul_i32 s6, s6, 20480\ns_lshl_b32 s7, s76, 6\ns_add_u32 s7, s7, s6\nv_add_u32 v53, s7, v54")
    a(f"s_lshl_b32 s7, s76, 10\ns_add_u32 s7, s7, s6\ns_add_u32 s7, s7, s72\nv_add_u32 v{XNA}, s7, v{VL16}")
    a(f"s_mul_i32 s6, s100, 10240\ns_lshl_b32 s7, s76, 11\ns_add_u32 s6, s6, s7\nv_add_u32 v8, s6, v9")
    a(f"s_mul_i32 s6, s100, {LDS_F+10240}\ns_sub_u32 s6, {LDS_F}, s6\nv_add_u32 v10, s6, v8\ns_lshl_b32 s7, s76, 2\nv_add_u32 v2, s7, v2\nv_cmp_lt_u32 vcc, 9, v2\ns_mul_i32 s6, s100, {101376-15360}\ns_add_u32 s6, s6, 15360\nv_add_u32 v3, s6, v10\nv_cndmask_b32 v10, v10, v3, vcc")
    a(f"s_and_b32 s100, s{S_W}, 1\ns_cselect_b32 s6, s{S_OL}, s{S_OB}\ns_mul_i32 s6, s6, 20480\ns_add_u32 s7, s6, 256\nv_add_u32 v54, s7, v54\ns_add_u32 s7, s6, s72\ns_add_u32 s7, s7, 4096\nv_add_u32 v{XNA+1}, s7, v{VL16}")
    a(f"s_mul_i32 s6, s100, 10240\ns_add_u32 s6, s6, 8192\nv_add_u32 v9, s6, v9\ns_mul_i32 s6, s100, {101376-10240-LDS_F-15360}\ns_add_u32 s6, s6, {LDS_F+15360}\nv_add_u32 v55, s6, v9")
    sk = a.newlabel("notok")
    a(f"s_mov_b32 s{S_TOK}, 0")
    a(f"v_and_b32 v2, 0x7ff, v{VIDX}\nv_sub_u32 v2, 0x7ff, v2\nv_lshrrev_b32 v3, 4, v2\nv_cmp_eq_u32 vcc, s{S_OB}, v3\nv_cmp_eq_u32 s[74:75], s{S_OL}, v3\ns_nop 3\ns_or_b64 vcc, vcc, s[74:75]\ns_cbranch_scc0 {sk}")
    for tk in range(8): a(f"v_readlane_b32 s{(84,85,86,87,88,65,91,101)[tk]}, v2, {tk}")
    for n in range(2):
        a(f"s_lshl_b32 s7, s76, 6\ns_lshr_b32 s100, s{S_W}, 2" if n == 0 else f"s_movk_i32 s7, 256\ns_and_b32 s100, s{S_W}, 1")
        a(f"s_cselect_b32 s6, s{S_OL}, s{S_OB}\ns_lshl_b32 s6, s6, 4\nv_and_b32 v2, 15, v{L}\nv_add_u32 v2, s6, v2")
        a(f"s_add_u32 s7, s7, s73\nv_and_b32 v3, 48, v{L}\nv_add_u32 v3, s7, v3")
        for tk in range(8):
            a(f"v_cmp_eq_u32 vcc, s{(84,85,86,87,88,65,91,101)[tk]}, v2\ns_nop 1\nv_cndmask_b32 v{XNA+n}, v{XNA+n}, v3, vcc")
            if tk < 7: a(f"v_add_u32 v3, 1280, v3")
    a(f"s_mov_b32 s{S_TOK}, 1")
    a.label(sk)

def gen(a):
    phase_start(a)
    phase_kv(a)
    phase_q(a)
    phase_attn(a)
    phase_out(a)
    a.label("L_end")
    a.stamp(18)
    if a.prof: a("s_waitcnt vmcnt(0)")
    if a.prof and os.environ.get("STRETCH"):
        s0, s1 = os.environ["STRETCH"].split(",")
        a(f"v_readlane_b32 s6, v15, {s0}\nv_readlane_b32 s7, v15, {s1}\nv_readlane_b32 s72, v15, 18\ns_nop 3\ns_sub_u32 s6, s7, s6\ns_min_u32 s6, s6, 20000")
        a.label("L_str")
        a("s_memrealtime s[94:95]\ns_waitcnt lgkmcnt(0)\ns_sub_u32 s7, s94, s72\ns_cmp_lt_u32 s7, s6\ns_cbranch_scc1 L_str")
    if a.prof and os.environ.get("DBGWG"):
        a(f"s_mov_b64 exec, -1\ns_cmp_lg_u32 s2, {os.environ['DBGWG']}\ns_cbranch_scc1 L_nodbg\ns_cmp_lg_u32 s{S_W}, 0\ns_cbranch_scc1 L_nodbg")
        a.srd(SRD_E, P_DBG, 64)
        a(f"v_readlane_b32 s6, v15, 0\ns_nop 3\nv_subrev_u32 v2, s6, v15\nv_subrev_u32 v3, 3, v{L}\nv_lshlrev_b32 v3, 2, v3\nv_cmp_gt_u32 vcc, 4, v{L}\nv_mov_b32 v4, 0x1000\ns_nop 0\nv_cndmask_b32 v3, v3, v4, vcc")
        a(f"buffer_store_dword v2, v3, {R(SRD_E)}, 0 offen")
        a.label("L_nodbg")
    a.stamp_flush(SRD_WS, WS_PROF)
    a.label("L_exit")
    a("s_endpgm")

HEADER = open(os.path.join(os.path.dirname(os.path.abspath(__file__)), "..", NAME + ".s.ref")).read().split("; Override launch")[0]
if __name__ == "__main__":
    name = NAME + "_kernel"
    out = HEADER + "; @launch grid=(256,1,1) block=(512,1,1) lds=163840\n" + '.amdgcn_target "amdgcn-amd-amdhsa--gfx950"\n'
    a = Asm(); a.prof = bool(os.environ.get("PROF"))
    a.o.append(kernel_header(name).rstrip())
    gen(a)
    out += a.text() + '.section .rodata,"a"\n.p2align 6\n' + kernel_desc(name)
    open(sys.argv[1] if len(sys.argv) > 1 else "k.s", "w").write(out)
```

```python
import sys, os
from asmlib import *

NAME = "parallel_sum__compressed_kv_cla__moe_arch_mod__prompt"
ABL = set(os.environ.get("ABL", "").split(","))
WS_XN = 0x0
WS_R = 0x280000
WS_YP = 0x290000
WS_IDX = 0x3A0000
WS_KVF = 0x3B0000
WS_CTXF = 0x3C0000
WS_MOEF = 0xF20000
WS_BSEL = 0x3A9000
WS_BF = 0x3B8000
WS_WOF = 0x400000
WS_XS = 0xC00000
WS_PROF = 0x900000
WS_KV = 0x1000000
WS_CTX = 0x3000000
WS_XF = 0xF00000
WS_XP = 0x4000000
WS_SIZE = 0x5000000
S_W, S_H, S_P = 3, 4, 5
SRD_WS, SRD_A, SRD_B, SRD_C, SRD_D, SRD_E = 8, 12, 16, 20, 24, 28
P_X, P_CKV, P_WQ, P_WUK, P_WUV, P_WO, P_BX, P_WR, P_WG, P_WU, P_WD, P_OUT, P_DBG, P_WS = range(32, 60, 2)
S_B, S_E = 60, 61
WS = f"s[{SRD_WS}:{SRD_WS+3}]"
def R(d): return f"s[{d}:{d+3}]"
L, VL16 = 1, 13
DESIG = 31
SPIN = 1 << 18
SNAKE = os.environ.get("SNAKE", "akqo")
LOOKG = int(os.environ.get("LOOKG", "30"))
NPC = int(os.environ.get("NPC", "1"))
YP = int(os.environ.get("YP", "3"))
LPOS = int(os.environ.get("LPOS", "10"))
WOTN = int(os.environ.get("WOTN", "0"))
LNH = int(os.environ.get("LNH", "2"))
MOEJ = int(os.environ.get("MOEJ", "4"))
if "code2" not in ABL: ABL.add("nocode2")
if "newb7" not in ABL: ABL.add("oldb7")
NT = "" if "nont" in ABL else " nt"
ABL.add("latewait")
TSCHED = os.environ.get("TSCHED", ";2;4;6").split(";")
TK, TV0, TV1, TV2 = [[int(y) for y in x.split(",") if y] for x in TSCHED]
LDS_SP = 131072
LDS_LN = LDS_SP
LDS_WOT = LDS_SP + 10240
LDS_RK = LDS_SP + 30720

def bf16_round(a, r):
    a(f"v_cvt_pk_bf16_f32 v{r}, v{r}, v{r}\nv_lshlrev_b32 v{r}, 16, v{r}")

def poll(a, load, cmp_notready, sleep=2):
    lp = a.newlabel("poll"); dn = a.newlabel("polldone")
    a(f"s_mov_b32 s79, {SPIN}")
    a.label(lp)
    a(load); a("s_waitcnt vmcnt(0)"); a(cmp_notready)
    a(f"s_cbranch_vccz {dn}\ns_sleep {sleep}\ns_sub_u32 s79, s79, 1\ns_cmp_lg_u32 s79, 0\ns_cbranch_scc1 {lp}")
    a.label(dn)

VC, VW, RC, RW, QRW = 40, 44, 48, 50, 54
CF, WF, ACC = 64, 96, 128
S_CO, S_WO_, S_MC, S_ST, S_ROW, S_KVD, S_INCA, S_INCB, S_XO, S_QO = 62, 63, 64, 65, 66, 67, 68, 69, 70, 71
S_XB = 84
XEARLY = [16, 20, 24, 28, 32, 36]
VX1 = 12
LX, LW, LV = 16, 26, 64
VDUM = 11
ITR = ((8, 9), (10, 55))

def wdma(a, srd, soff):
    return [f"buffer_load_dwordx4 v{VW+i}, {R(srd)}, s{soff} offen offset:{i*1024} lds" for i in range(4)]

def kv_dma_ops():
    g = []
    g.append([f"s_mov_b32 m0, s{S_MC}", f"s_add_u32 s72, s{S_CO}, 524288"])
    for i in range(4): g.append([f"buffer_load_dwordx4 v{VC+i}, {R(SRD_A)}, s{S_CO} offen offset:{i*1024} lds"])
    g.append([f"s_add_u32 m0, s{S_MC}, 4096", f"s_add_u32 s{S_CO}, s{S_CO}, 128", f"s_bitset0_b32 s{S_CO}, 10"])
    for i in range(4): g.append([f"buffer_load_dwordx4 v{VC+i}, {R(SRD_A)}, s72 offen offset:{i*1024} lds"])
    g.append([f"s_mov_b32 m0, s73", f"s_xor_b32 s{S_MC}, s{S_MC}, 0x10000"])
    for x in wdma(None, SRD_B, S_WO_): g.append([x])
    g.append([f"s_add_u32 m0, s73, 16384", f"s_xor_b32 s73, s73, 0x10000"])
    for x in wdma(None, SRD_C, S_WO_): g.append([x])
    g.append([f"s_add_u32 s{S_WO_}, s{S_WO_}, {64*8192}", f"s_bitset0_b32 s{S_WO_}, 22"])
    return g

def wq_dma_ops(nblk):
    g = []
    for h in range(2*nblk):
        g.append([f"s_mov_b32 m0, s74", f"s_add_u32 s74, s74, 16384"] + (["s_bitset0_b32 s74, 17"] if nblk == 2 else []))
        for x in wdma(None, SRD_D, S_QO): g.append([x])
        g.append([f"s_add_u32 s{S_QO}, s{S_QO}, {64*8192}", f"s_sub_u32 s75, s{S_QO}, {640*8192}", f"s_cselect_b32 s{S_QO}, s{S_QO}, s75"])
    return g

def emit_groups(a, g):
    for x in g:
        for y in x: a(y)

def x_load(a, ks, regs):
    for qt in range(2):
        a(f"buffer_load_dwordx4 {v(regs[qt],4)}, v{VL16 if qt==0 else VX1}, {WS}, s{S_XB+(ks>>2)} offen offset:{(ks&3)*1024} sc1")
        a.vm.issue(("X", ks))

def cnt_load(a, r, which):
    return f"buffer_load_dword v{r}, v3, {R(SRD_E)}, 0 offen offset:{128*which} sc1"
def cnt_addr(a):
    a.srd(SRD_E, P_DBG, 256)
    a(f"v_and_b32 v3, 31, v{L}\nv_lshlrev_b32 v3, 2, v3")
def cnt_check(a, r, which):
    ok = a.newlabel("cntok")
    a(f"v_cmp_gt_u32 vcc, 8, v{r}\ns_cbranch_vccz {ok}")
    cnt_addr(a)
    poll(a, cnt_load(a, 2, which), "v_cmp_gt_u32 vcc, 8, v2", sleep=8)
    a.label(ok)

def kv_touch(a, st0):
    sk = a.newlabel("tch")
    a(f"s_cmp_ge_u32 s76, 2\ns_cbranch_scc1 {sk}a")
    a(f"s_and_b32 s6, s{S_H}, 3\ns_lshl_b32 s6, s6, 19\ns_lshl_b32 s7, s{S_P}, 15\ns_add_u32 s6, s6, s7\ns_lshl_b32 s7, s76, 7\ns_add_u32 s6, s6, s7\ns_add_u32 s6, s6, {st0*128}")
    a(f"v_lshrrev_b32 v6, 1, v{L}\nv_lshlrev_b32 v6, 10, v6\nv_and_b32 v7, 1, v{L}\nv_lshl_add_u32 v6, v7, 6, v6")
    a(f"buffer_load_dword v{VDUM}, v6, {R(SRD_A)}, s6 offen\ns_add_u32 s6, s6, 262144\nbuffer_load_dword v{VDUM}, v6, {R(SRD_A)}, s6 offen\ns_branch {sk}c")
    a.label(sk + "a")
    a(f"v_lshrrev_b32 v6, 5, v{L}\nv_lshlrev_b32 v6, 6, v6\nv_bfe_u32 v7, v{L}, 2, 3\nv_add_u32 v6, v6, v7\nv_lshlrev_b32 v6, 13, v6\nv_and_b32 v7, 3, v{L}\nv_lshl_add_u32 v6, v7, 6, v6")
    a(f"s_lshl_b32 s6, s{S_H}, 8\ns_lshl_b32 s7, s{S_P}, 16\ns_add_u32 s6, s6, s7\ns_add_u32 s6, s6, {st0*64*8192}")
    a(f"s_cmp_lg_u32 s76, 2\ns_cbranch_scc1 {sk}b\nbuffer_load_dword v{VDUM}, v6, {R(SRD_B)}, s6 offen\ns_branch {sk}c")
    a.label(sk + "b")
    a(f"buffer_load_dword v{VDUM}, v6, {R(SRD_C)}, s6 offen")
    a.label(sk + "c")

def consts(a):
    a(f"s_mov_b32 s{S_ST}, 0")
    a(f"s_lshl_b32 s6, s{S_H}, 20\ns_lshl_b32 s7, s{S_P}, 13\ns_add_u32 s6, s6, s7\ns_and_b32 s7, s{S_W}, 1\ns_lshl_b32 s7, s7, 16\ns_add_u32 s6, s6, s7\ns_add_u32 s{S_KVD}, s6, {WS_KV}")
    if "noqrot" in ABL: a("s_mov_b32 s6, 0")
    else:
        a(f"s_and_b32 s6, s{S_H}, 3\ns_add_u32 s6, s6, s{S_P}")
        for _ in range(2): a("s_sub_u32 s7, s6, 5\ns_cselect_b32 s6, s6, s7")
    a(f"s_lshl_b32 s{S_QO}, s6, 20\ns_lshl_b32 s7, s{S_H}, 8\ns_add_u32 s{S_QO}, s{S_QO}, s7")
    for i in range(5):
        a(f"s_lshl_b32 s7, s6, 12\ns_add_u32 s{S_XB+i}, s{S_XO}, s7")
        if i < 4: a("s_add_u32 s6, s6, 1\ns_cmp_eq_u32 s6, 5\ns_cselect_b32 s6, 0, s6")
    a(f"s_lshr_b32 s7, s{S_W}, 1\ns_and_b32 s7, s7, 1")
    a(f"s_cmp_ge_u32 s{S_W}, 4\ns_cbranch_scc1 L_c_v")
    a(f"s_lshl_b32 s7, s7, 11\ns_add_u32 s{S_KVD}, s{S_KVD}, s7\ns_movk_i32 s{S_INCA}, 3072\ns_mov_b32 s{S_INCB}, 125952")
    a(f"s_add_u32 s{S_QO}, s{S_QO}, {128*8192}\ns_sub_u32 s75, s{S_QO}, {640*8192}\ns_cselect_b32 s{S_QO}, s{S_QO}, s75\ns_lshl_b32 s74, s76, 12\ns_add_u32 s74, s74, s100\ns_branch L_c_j")
    a.label("L_c_v")
    a(f"s_lshl_b32 s7, s7, 12\ns_add_u32 s{S_KVD}, s{S_KVD}, s7\ns_add_u32 s{S_KVD}, s{S_KVD}, 0x80000\ns_movk_i32 s{S_INCA}, 1024\ns_mov_b32 s{S_INCB}, 128000")
    a.label("L_c_j")

def zero_regs(a, r0, n):
    for i in range(0, n, 2): a(f"v_mov_b64 {v(r0+i,2)}, 0")

def phase_start(a):
    a(f"s_cmp_ge_u32 s2, 256\ns_cbranch_scc1 L_exit")
    a("s_load_dwordx16 s[32:47], s[0:1], 0\ns_load_dwordx8 s[48:55], s[0:1], 64\ns_load_dwordx4 s[56:59], s[0:1], 96")
    a(f"v_lshrrev_b32 v2, 6, v0\nv_and_b32 v{L}, 63, v0\nv_readfirstlane_b32 s{S_W}, v2")
    if "nocode" not in ABL:
        a("s_getpc_b64 s[80:81]")
        a.label("L_pc")
        a(f"s_lshr_b32 s6, s2, 3\ns_and_b32 s6, s6, 15\ns_lshl_b32 s6, s6, 12\ns_cmp_lt_u32 s{S_W}, 2\ns_cselect_b32 s6, 0, s6\nv_lshl_add_u32 v3, v0, 6, s6")
        a(f"v_min_u32 v3, L_exit-L_pc, v3\ns_cmp_ge_u32 s{S_W}, 3\ns_cbranch_scc1 L_noct\nglobal_load_dword v{VDUM}, v3, s[80:81]")
        a.label("L_noct")
    a(f"v_lshrrev_b32 v62, 5, v0\nv_and_b32 v62, 7, v62\nv_and_b32 v2, 31, v0\nv_lshlrev_b32 v2, 3, v2\nv_mul_u32_u24 v63, 1280, v62\nv_add_u32 v63, v63, v2\ns_mul_i32 s6, s2, 10240\nv_add_u32 v10, s6, v63")
    a(f"s_cmp_lt_u32 s{S_W}, 4\ns_cbranch_scc1 L_st_k0")
    a("s_waitcnt lgkmcnt(0)")
    for j in range(5): a(f"global_load_dwordx2 {v(LX+2*j,2)}, v10, s[{P_X}:{P_X+1}] offset:{j*256}{NT if 'xnt' in ABL else ''}")
    for j in range(5): a(f"global_load_dwordx2 {v(LW+2*j,2)}, v2, s[{P_WR}:{P_WR+1}] offset:{j*256}")
    if "nob0" not in ABL: a("s_barrier")
    a.label("L_st_k0")
    a(f"s_and_b32 s6, s2, 7\ns_lshl_b32 s6, s6, 2\ns_lshr_b32 s7, s2, 3\ns_and_b32 s7, s7, 3\ns_add_u32 s{S_H}, s6, s7\ns_lshr_b32 s{S_P}, s2, 5\ns_and_b32 s76, s{S_W}, 3")
    a.stamp_init(14, 0); a.stamp(0)
    a(f"v_lshrrev_b32 v2, 3, v{L}\nv_and_b32 v3, 7, v{L}\nv_lshrrev_b32 v4, 4, v{L}\nv_xor_b32 v5, v3, v4\nv_lshlrev_b32 v5, 4, v5")
    a(f"v_lshl_add_u32 v{VC}, v2, 10, v5\nv_xor_b32 v5, 64, v{VC}\nv_add_u32 v{VC+1}, 7168, v5\nv_add_u32 v{VC+2}, 14336, v{VC}\nv_add_u32 v{VC+3}, 14336, v{VC+1}")
    a(f"v_and_b32 v6, 15, v{L}\ns_lshl_b32 s6, s76, 4\nv_add_u32 v7, s6, v4\nv_lshlrev_b32 v5, 1, v4\nv_xor_b32 v5, v6, v5\nv_lshlrev_b32 v5, 4, v5")
    a(f"v_lshl_add_u32 v{VW}, v7, 13, v5\nv_add_u32 v{VW+1}, 31744, v{VW}\nv_xor_b32 v5, 0x80, v{VW}\nv_add_u32 v{VW+2}, 63488, v5\nv_add_u32 v{VW+3}, 31744, v{VW+2}")
    a(f"s_and_b32 s6, s76, 1\ns_lshl_b32 s6, s6, 20\ns_lshr_b32 s7, s76, 1\ns_lshl_b32 s7, s7, 18\ns_add_u32 s6, s6, s7\ns_lshl_b32 s{S_CO}, s{S_P}, 15\ns_add_u32 s{S_CO}, s{S_CO}, s6\ns_lshl_b32 s{S_WO_}, s{S_H}, 8\ns_lshl_b32 s{S_MC}, s76, 13\ns_lshl_b32 s73, s76, 12\ns_add_u32 s73, s73, 32768")
    a(f"s_andn2_b32 s100, 1, s{S_P}\ns_lshl_b32 s100, s100, 16\ns_add_u32 s{S_MC}, s{S_MC}, s100\ns_add_u32 s73, s73, s100")
    a("s_waitcnt lgkmcnt(0)")
    a.srd(SRD_A, P_CKV, 2048*512*2)
    a.srd(SRD_B, P_WUK, 512*4096*2)
    a.srd(SRD_C, P_WUV, 512*4096*2)
    a(f"s_cmp_ge_u32 s{S_W}, 4\ns_cbranch_scc1 L_st_v0")
    if "nob0" not in ABL: a("s_barrier")
    for st in TK: kv_touch(a, st)
    emit_groups(a, kv_dma_ops())
    if "noprio" not in ABL: a("s_setprio 1")
    a.label("L_st_v0")
    a.srd(SRD_WS, P_WS, WS_SIZE)
    a.srd(SRD_D, P_WQ, 640*4096*2)
    a(f"v_lshlrev_b32 v{VL16}, 4, v{L}")
    a(f"s_lshl_b32 s6, s{S_P}, 2\ns_add_u32 s7, s6, s{S_W}\ns_sub_u32 s6, 56, s6\ns_add_u32 s6, s6, s{S_W}")
    a(f"s_cmp_lt_u32 s{S_W}, 4\ns_cselect_b32 s{S_B}, s7, s6")
    a(f"s_sub_u32 s6, 2, s{S_P}\ns_and_b32 s6, s6, 7\ns_lshl_b32 s6, s6, 5\ns_add_u32 s{S_E}, s6, s{S_H}")
    a(f"v_and_b32 v2, 15, v{L}\nv_lshrrev_b32 v3, 4, v{L}")
    a(f"s_and_b32 s6, s{S_W}, 1\ns_lshl_b32 s6, s6, 7\nv_add_u32 v4, s6, v2\nv_lshlrev_b32 v4, 7, v4\nv_add_u32 v4, s100, v4\nv_lshrrev_b32 v5, 1, v2")
    for sp in range(2):
        a(f"v_add_u32 v6, {4*sp}, v3\nv_xor_b32 v6, v6, v5\nv_lshl_add_u32 v{RC+sp}, v6, 4, v4")
    a(f"v_lshrrev_b32 v4, 2, v2\nv_lshl_add_u32 v5, v3, 3, v4\nv_lshlrev_b32 v5, 8, v5")
    a(f"v_and_b32 v6, 1, v2\nv_lshl_add_u32 v5, v6, 3, v5")
    a(f"v_and_b32 v6, 1, v3\nv_lshl_or_b32 v4, v6, 2, v4\nv_lshlrev_b32 v4, 1, v4\nv_bfe_u32 v6, v2, 1, 1")
    a(f"v_add_u32 v8, {LDS_SP}, v5")
    for t in range(8):
        a(f"v_add_u32 v7, {2*t}, v6\nv_xor_b32 v7, v7, v4\nv_lshl_add_u32 v{QRW+t}, v7, 4, v8")
    a(f"s_lshr_b32 s6, s{S_W}, 2\ns_lshl_b32 s6, s6, 14\ns_add_u32 s6, s6, 32768\ns_add_u32 s6, s6, s100\nv_add_u32 v5, s6, v5")
    a(f"s_lshr_b32 s7, s{S_W}, 1\ns_and_b32 s7, s7, 1\ns_lshl_b32 s7, s7, 3")
    for j in range(4):
        a(f"s_add_u32 s6, s7, {2*j}\nv_add_u32 v7, s6, v6\nv_xor_b32 v7, v7, v4\nv_lshl_add_u32 v{RW+j}, v7, 4, v5")
    zero_regs(a, ACC, 128)
    a(f"v_add_u32 v{VX1}, 20480, v{VL16}\ns_mul_i32 s{S_XO}, s{S_B}, 40960")
    consts(a)
    a.stamp(1)
    a(f"s_cmp_ge_u32 s{S_W}, 4\ns_cbranch_scc1 L_st_v1")
    TM = [int(x) for x in os.environ.get("TM", "").split(",") if x]
    TM2 = [int(x) for x in os.environ.get("TM2", "").split(",") if x]
    for st in TM: kv_touch(a, st)
    emit_groups(a, kv_dma_ops()[:10])
    for st in TM2: kv_touch(a, st)
    a(f"s_waitcnt vmcnt({8+len(TM)+len(TM2)})\ns_branch L_st_j1")
    a.label("L_st_v1")
    a(f"s_waitcnt vmcnt(0)")
    a.stamp(2)
    ln_compute(a)
    ln_router(a)
    a.label("L_st_j1")
    a.stamp(3)
    a("s_barrier")
    a.stamp(4)

def zero_flags(a):
    a(f"s_cmp_lt_u32 s{S_W}, 6\ns_cbranch_scc1 L_zd\nv_mov_b64 v[36:37], 0\nv_mov_b64 v[38:39], 0\nv_lshrrev_b32 v2, 3, v{L}\ns_cmp_eq_u32 s{S_W}, 6\ns_cbranch_scc1 L_z6")
    a(f"s_lshl_b32 s6, s{S_P}, 2\ns_sub_u32 s7, 56, s6\nv_mov_b32 v3, s6\nv_mov_b32 v4, s7\nv_cmp_gt_u32 vcc, 4, v2\ns_lshl_b32 s6, s{S_H}, 7\ns_add_u32 s6, s6, {WS_CTXF}\nv_cndmask_b32 v3, v4, v3, vcc\nv_add_u32 v3, v3, v2\nv_lshl_add_u32 v3, v3, 12, s6\ns_branch L_z7")
    a.label("L_z6")
    a(f"v_mov_b32 v3, {hex(WS_SIZE)}")
    def put(j): a(f"s_andn2_b32 s6, s6, 127\nv_cmp_eq_u32 vcc, {j}, v2\nv_mov_b32 v4, s6\ns_nop 0\nv_cndmask_b32 v3, v3, v4, vcc")
    flag_addr(a, "kv", 6); put(0)
    flag_addr(a, "moe", 6); put(1)
    flag_addr(a, "b", 6); put(2)
    for k in range(3):
        xf_addr(a, k, 6); put(3+k)
    a(f"s_mov_b32 s6, {hex(WS_SIZE)}\ns_cmp_eq_u32 s2, {DESIG}\ns_cmov_b32 s6, {WS_IDX}"); put(6)
    a(f"s_lshl_b32 s6, s2, 7\ns_add_u32 s6, s6, {WS_R}"); put(7)
    a(f"v_add_u32 v4, {LDS_RK-56*16}, v{VL16}\ns_mov_b32 exec_lo, 0\ns_mov_b32 exec_hi, 0x03000000\nds_read_b128 v[36:39], v4\ns_mov_b64 exec, -1\ns_waitcnt lgkmcnt(0)")
    a.label("L_z7")
    a(f"v_and_b32 v2, 7, v{L}\nv_lshl_add_u32 v3, v2, 4, v3\nbuffer_store_dwordx4 v[36:39], v3, {WS}, 0 offen sc1")
    a.label("L_zd")

def half_reduce(a, r):
    for m in ("quad_perm:[1,0,3,2]", "quad_perm:[2,3,0,1]", "row_half_mirror", "row_mirror"):
        a(f"s_nop 1\nv_add_f32_dpp v{r}, v{r}, v{r} {m} row_mask:0xf bank_mask:0xf")
    a(f"v_mov_b32 v8, v{r}\ns_nop 1\nv_permlane16_swap_b32 v{r}, v8\ns_nop 1\nv_add_f32 v{r}, v{r}, v8")

def ln_compute(a):
    X = LV
    NEG = "op_sel_hi:[1,0] neg_lo:[0,1] neg_hi:[0,1]"
    for j in range(10):
        a(f"v_lshlrev_b32 v{X+2*j}, 16, v{LX+j}\nv_and_b32 v{X+2*j+1}, 0xffff0000, v{LX+j}")
    a(f"v_pk_add_f32 v[2:3], {v(X,2)}, {v(X+2,2)}")
    for j in range(2, 10): a(f"v_pk_add_f32 v[2:3], v[2:3], {v(X+2*j,2)}")
    a("v_add_f32 v2, v2, v3")
    half_reduce(a, 2)
    a("s_mov_b32 s7, 0x3acccccd\nv_mul_f32 v2, s7, v2\nv_mov_b64 v[4:5], 0")
    for j in range(10):
        a(f"v_pk_add_f32 v[6:7], {v(X+2*j,2)}, v[2:3] {NEG}\nv_pk_fma_f32 v[4:5], v[6:7], v[6:7], v[4:5]")
    a("v_add_f32 v4, v4, v5")
    half_reduce(a, 4)
    a("v_mul_f32 v4, s7, v4")
    bf16_round(a, 2); bf16_round(a, 4)
    a("v_add_f32 v4, 0x3727c5ac, v4")
    bf16_round(a, 4)
    a("v_sqrt_f32 v4, v4\ns_nop 0")
    bf16_round(a, 4)
    a("v_rcp_f32 v6, v4\ns_nop 0\nv_fma_f32 v5, -v4, v6, 1.0\nv_fmac_f32 v6, v5, v6\nv_mov_b32 v9, 0")
    for j in range(10):
        x = X + 2*j
        a(f"v_pk_add_f32 {v(x,2)}, {v(x,2)}, v[2:3] {NEG}\nv_cvt_pk_bf16_f32 v5, v{x}, v{x+1}")
        a(f"v_lshlrev_b32 v{x}, 16, v5\nv_and_b32 v{x+1}, 0xffff0000, v5")
        a(f"v_pk_mul_f32 {v(x,2)}, {v(x,2)}, v[6:7] op_sel_hi:[1,0]\nv_cvt_pk_bf16_f32 v{LX+j}, v{x}, v{x+1}")
    a(f"v_add_u32 v10, {LDS_LN}, v63")
    for j in range(5): a(f"ds_write_b64 v10, {v(LX+2*j,2)} offset:{j*256}")
    a("s_waitcnt lgkmcnt(0)")

def ln_router(a):
    a("v_mov_b32 v2, 0")
    for j in range(10):
        a(f"v_lshlrev_b32 v4, 16, v{LX+j}\nv_lshlrev_b32 v5, 16, v{LW+j}\nv_fmac_f32 v2, v4, v5")
        a(f"v_and_b32 v4, 0xffff0000, v{LX+j}\nv_and_b32 v5, 0xffff0000, v{LW+j}\nv_fmac_f32 v2, v4, v5")
    half_reduce(a, 2)
    a("v_cvt_pk_bf16_f32 v2, v2, v2\nv_and_b32 v2, 0xffff, v2")
    a("v_bfe_i32 v3, v2, 15, 1\nv_and_b32 v3, 0x7fff, v3\nv_or_b32 v3, 0x8000, v3\nv_xor_b32 v2, v2, v3")
    a(f"s_lshl_b32 s7, s2, 3\ns_sub_u32 s6, 2047, s7\nv_sub_u32 v3, s6, v62\nv_lshl_or_b32 v2, v2, 11, v3\nv_lshlrev_b32 v3, 2, v62\nv_add_u32 v3, {LDS_RK}, v3\nds_write_b32 v3, v2\ns_waitcnt lgkmcnt(0)")

def ln_store(a, back):
    LV = 16
    a(f"s_lshr_b32 s72, s2, 1\ns_mul_i32 s72, s72, 20480\ns_and_b32 s7, s2, 1\ns_lshl_b32 s7, s7, 7\ns_add_u32 s72, s72, s7")
    for n in range(3):
        a(f"v_add_u32 v2, {256*n-256}, v0\nv_lshrrev_b32 v3, 3, v2\nv_and_b32 v4, 7, v2")
        a(f"v_mul_u32_u24 v5, 1280, v4\nv_lshl_add_u32 v5, v3, 4, v5\nv_add_u32 v5, {LDS_LN}, v5")
        a(f"ds_read_b128 {v(LV+8*n,4)}, v5\nv_lshlrev_b32 v5, 8, v3\nv_lshl_add_u32 v{6+n}, v4, 4, v5")
    a("s_waitcnt lgkmcnt(0)")
    for n in range(3):
        if n == 2: a(f"s_cmp_ge_u32 s{S_W}, 6\ns_cbranch_scc1 {back}")
        SC = "" if "lnplain" in ABL else " sc1"
        if "nolnst" not in ABL: a(f"buffer_store_dwordx4 {v(LV+8*n,4)}, v{6+n}, {WS}, s72 offen{SC}")
    a.label(back)
    zero_flags(a)

def count_atomic(a, which):
    a.srd(SRD_E, P_DBG, 256)
    a(f"v_mov_b32 v2, 1\nv_lshlrev_b32 v3, 8, v{L}\ns_and_b32 s6, s2, 31\ns_lshl_b32 s6, s6, 2\nbuffer_atomic_add v2, v3, {R(SRD_E)}, s6 offen offset:{128*which} sc1")

def flag_addr(a, kind, d):
    if kind == "kv":
        a(f"s_lshl_b32 s{d}, s{S_H}, 3\ns_add_u32 s{d}, s{d}, s{S_P}\ns_lshl_b32 s{d}, s{d}, 5\ns_add_u32 s{d}, s{d}, s{S_W}\ns_lshl_b32 s{d}, s{d}, 2\ns_add_u32 s{d}, s{d}, {WS_KVF}")
    elif kind == "ctx":
        a(f"s_lshl_b32 s{d}, s{S_B}, 5\ns_add_u32 s{d}, s{d}, s{S_H}\ns_lshl_b32 s{d}, s{d}, 7\ns_add_u32 s{d}, s{d}, {WS_CTXF}")
    elif kind == "b":
        a(f"s_lshl_b32 s{d}, s{S_P}, 5\ns_add_u32 s{d}, s{d}, s{S_H}\ns_lshl_b32 s{d}, s{d}, 5\ns_add_u32 s{d}, s{d}, s{S_W}\ns_lshl_b32 s{d}, s{d}, 2\ns_add_u32 s{d}, s{d}, {WS_BF}")
    else:
        a(f"s_lshl_b32 s{d}, s{S_E}, 5\ns_add_u32 s{d}, s{d}, s{S_W}\ns_lshl_b32 s{d}, s{d}, 2\ns_add_u32 s{d}, s{d}, {WS_MOEF}")

def tile_id(a, d):
    a(f"s_and_b32 s{d}, s{S_H}, 7\ns_lshl_b32 s7, s{S_P}, 3\ns_add_u32 s{d}, s{d}, s7")
def xslot(a, slot, d):
    tile_id(a, d)
    a(f"s_lshr_b32 s7, s{S_H}, 3\ns_add_u32 s7, s7, {slot}\ns_add_u32 s7, s7, 1\ns_and_b32 s7, s7, 3\ns_lshl_b32 s{d}, s{d}, 2\ns_add_u32 s{d}, s{d}, s7\ns_mul_i32 s{d}, s{d}, 3\ns_add_u32 s{d}, s{d}, {slot}")
def xf_addr(a, slot, d):
    xslot(a, slot, d)
    a(f"s_lshl_b32 s{d}, s{d}, 5\ns_add_u32 s{d}, s{d}, s{S_W}\ns_lshl_b32 s{d}, s{d}, 2\ns_add_u32 s{d}, s{d}, {WS_XF}")

def set_flag(a, kind, val=1):
    flag_addr(a, kind, 6)
    a(f"v_mov_b32 v2, {val}\nv_mov_b32 v3, {hex(WS_SIZE)}\nv_writelane_b32 v3, s6, 0\nbuffer_store_dword v2, v3, {WS}, 0 offen sc1")
    a.vm.issue("flag")

def phase_kv(a):
    def rdC(i, sp):
        if "kv_noC" in ABL: return
        a(f"ds_read_b128 {v(CF+4*i,4)}, v{RC+sp} offset:{i*2048}"); a.lg.issue(("C", i))
    def rdW(par, j, half, sp):
        if "kv_noW" in ABL: return
        r = WF + 16*par + 4*j + 2*half
        a(f"ds_read_b64_tr_b16 {v(r,2)}, v{RW+j} offset:{sp*8192 + half*1024}"); a.lg.issue(("W", par, j, half))
    wq = [(j, hf) for j in range(4) for hf in range(2)]
    def body(isK, lab, dma, nend, hook=None):
        def mm(i, j, par):
            if "k" in SNAKE and i & 1: j = 3 - j
            d = ACC + (i*4+j)*4
            a.wait_lg([("C", i), ("W", par, j, 0), ("W", par, j, 1)])
            if isK: a.mfma(d, WF+16*par+4*j, CF+4*i)
            else: a.mfma(d, CF+4*i, WF+16*par+4*j)
        a(".p2align 4")
        a.label(lab)
        if hook:
            a(f"s_bitcmp1_b32 {0x80 if isK else 0xd6}, s{S_ST}\ns_cbranch_scc1 {hook}"); a.label(hook + "_back")
        for i in range(8):
            for j in range(4):
                mm(i, j, 0)
                if i < 2: rdW(1, *wq[i*4+j], 1)
            rdC(i, 1)
        dma = list(dma)
        if "kv_nodma" in ABL: dma = []
        for i in range(8):
            for j in range(4):
                mm(i, j, 1)
                if i == 2 or i == 3: rdW(0, *wq[(i-2)*4+j], 0)
                if i >= 2 and dma:
                    for y in dma.pop(0): a(y)
            if i == 1:
                for r in (RC, RC+1, RW, RW+1, RW+2, RW+3): a(f"v_xor_b32 v{r}, 0x10000, v{r}")
                if isK and hook and "oldb7" not in ABL:
                    a(f"s_cmp_eq_u32 s{S_ST}, 7\ns_cbranch_scc1 L_know\ns_waitcnt vmcnt(0)")
                    a.label("L_know")
                    a("s_waitcnt lgkmcnt(0)\ns_barrier")
                elif isK: a("s_waitcnt vmcnt(0) lgkmcnt(0)\ns_barrier")
                else:
                    a(f"s_bitcmp1_b32 0x48, s{S_ST}\ns_cbranch_scc1 L_vpre")
                    a.label("L_vnow")
                    a("s_waitcnt lgkmcnt(0)\ns_barrier")
                a.lg.drain()
                a.stampd(S_ST, 24)
                rdC(0, 0); rdC(1, 0)
            elif i >= 2: rdC(i, 0)
        emit_groups(a, dma)
        a(f"s_add_u32 s{S_ST}, s{S_ST}, 1\ns_cmp_lt_u32 s{S_ST}, {nend}\ns_cbranch_scc1 {lab}")
    def first_reads():
        a.lg.drain()
        rdC(0, 0); rdC(1, 0)
        for k in range(4): rdW(0, *wq[k], 0)
        rdC(2, 0)
        for k in range(4, 8): rdW(0, *wq[k], 0)
        for i in range(3, 8): rdC(i, 0)
    a(f"s_cmp_ge_u32 s{S_W}, 4\ns_cbranch_scc1 L_kv_v")
    first_reads()
    q0 = list(a.lg.q)
    emit_groups(a, kv_dma_ops()[10:])
    a.stamp(5)
    body(True, "L_kloopA", kv_dma_ops(), 6)
    assert a.lg.q == q0, (a.lg.q, q0)
    body(True, "L_kloopB", wq_dma_ops(2), 8, hook="L_khook" if "kx2" not in ABL else None)
    a.stamp(6)
    a("s_waitcnt lgkmcnt(0)\ns_nop 7")
    for n in range(16):
        t = ACC + 4*n; d0 = ACC + 8*n; d1 = d0 + 4
        a(f"v_cvt_pk_bf16_f32 v{t}, v{d0}, v{d0+1}\nv_cvt_pk_bf16_f32 v{t+1}, v{d0+2}, v{d0+3}")
        a(f"v_cvt_pk_bf16_f32 v{t+2}, v{d1}, v{d1+1}\nv_cvt_pk_bf16_f32 v{t+3}, v{d1+2}, v{d1+3}")
    a("s_waitcnt vmcnt(16)\ns_branch L_q")
    a.label("L_hook")
    for k in (1, 2, 4, 6): a(f"s_cmp_eq_u32 s{S_ST}, {k}\ns_cbranch_scc1 L_hook{k}")
    a(f"s_cmp_lg_u32 s{S_ST}, 7\ns_cbranch_scc1 L_hook_back")
    for ks in range(3): x_load(a, ks, XEARLY[2*ks:2*ks+2])
    a("s_branch L_hook_back")
    a.label("L_hook1")
    if LNH == 1: ln_store(a, "L_lns")
    for st in TV1: kv_touch(a, st)
    a("s_branch L_hook_back")
    a.label("L_hook2")
    if LNH == 2: ln_store(a, "L_lns")
    for st in TV2: kv_touch(a, st)
    a("s_branch L_hook_back")
    a.label("L_hook4")
    WOTR = [16, 20, 24, 28, 32]
    a(f"s_cmp_lg_u32 s{S_W}, 4\ns_cbranch_scc1 L_hook4b")
    count_atomic(a, 0)
    a.label("L_hook4b")
    a(f"s_lshl_b32 s74, s76, 12\ns_add_u32 s74, s74, {LDS_SP}")
    emit_groups(a, wq_dma_ops(1))
    a("s_branch L_hook_back")
    a.label("L_hook6")
    a(f"s_cmp_lg_u32 s{S_W}, 5\ns_cbranch_scc1 L_hook_back")
    cnt_addr(a); a(cnt_load(a, 62, 0))
    a("s_branch L_hook_back")
    a.label("L_vpre")
    a(f"s_waitcnt vmcnt(0)\ns_lshl_b32 s6, s{S_ST}, 4\ns_add_u32 s6, s6, s{S_W}\ns_cmp_lg_u32 s6, 0x65\ns_cbranch_scc1 L_vnow")
    cnt_check(a, 62, 0)
    a("s_branch L_vnow")
    a.label("L_khook")
    a(f"s_cmp_lg_u32 s{S_ST}, 7\ns_cbranch_scc1 L_khook_back")
    for ks in range(3): x_load(a, ks, XEARLY[2*ks:2*ks+2])
    a("s_branch L_khook_back")
    a.label("L_kv_v")
    first_reads()
    for st in TV0: kv_touch(a, st)
    a.stamp(5)
    body(False, "L_vloop", [], 8, hook="L_hook")
    a.stamp(6)
    a("s_waitcnt lgkmcnt(0)\ns_nop 7")
    for ii in range(4):
        for j in range(4):
            t = ACC + 16*ii + 4*j; d0 = ACC + 32*ii + 4*j; d1 = d0 + 16
            a(f"v_cvt_pk_bf16_f32 v{t}, v{d0}, v{d0+1}\nv_cvt_pk_bf16_f32 v{t+1}, v{d0+2}, v{d0+3}")
            a(f"v_cvt_pk_bf16_f32 v{t+2}, v{d1}, v{d1+1}\nv_cvt_pk_bf16_f32 v{t+3}, v{d1+2}, v{d1+3}")
    a("s_waitcnt vmcnt(0)")

QF, O_, S_, FR, P_, NM, T_, L_, ET = 16, 192, 64, 96, 128, 144, 52, 56, 58
VA, VDK, VDV = 48, 49, 50
S_N, S_NL, S_C, S_THR = 62, 63, 64, 65
LA, ONES = 160, 168
OFFS = 0x41c00000
def Sreg(par, kt, qt): return S_ + 16*par + (kt*2+qt)*4
def NMreg(kt, qt): return NM + (kt*2+qt)*4
def Oreg(t, qt): return O_ + (t*2+qt)*4
def Qreg(qt, s): return QF + (qt*4+s)*4
def Preg(par, qt): return P_ + 8*par + 4*qt
def Treg(par, qt): return T_ + 2*par + qt

def xlane(a, op, r, t):
    for sw in ("v_permlane16_swap_b32", "v_permlane32_swap_b32"):
        a(f"v_mov_b32 v{t}, v{r}\ns_nop 1\n{sw} v{r}, v{t}\ns_nop 1\n{op} v{r}, v{r}, v{t}")

def st_dma(a, parts):
    if "K" in parts:
        for hf in range(2):
            a(f"s_lshl_b32 s6, s76, 13\ns_add_u32 s6, s6, s78\ns_add_u32 m0, s6, {hf*4096}\ns_add_u32 s7, s77, {hf*4096}")
            for i in range(4): a(f"buffer_load_dwordx4 v{VDK}, {WS}, s7 offen offset:{i*1024} sc1 lds")
    for hf in range(2):
        if f"V{hf}" in parts:
            a(f"s_lshl_b32 s6, s76, 12\ns_add_u32 s6, s6, s78\ns_add_u32 m0, s6, {32768+hf*16384}\ns_add_u32 s7, s77, {0x80000-16384+hf*16384}")
            for i in range(4): a(f"buffer_load_dwordx4 v{VDV}, {WS}, s7 offen offset:{i*1024} sc1 lds")

S_HK, S_ALL = 89, 90
def kv_self_touch(a):
    a(f"v_lshrrev_b32 v9, 3, v{L}\ns_cmp_lt_u32 s{S_W}, 4\ns_cselect_b32 s7, 6, 4\nv_and_b32 v10, s7, v9\nv_add_u32 v9, v9, v10\nv_lshlrev_b32 v9, 10, v9")
    a(f"v_and_b32 v10, 7, v{L}\nv_lshl_add_u32 v9, v10, 7, v9\ns_sub_u32 s6, s{S_KVD}, 32768")
    a(f"buffer_load_dword v{VDUM}, v9, {WS}, s6 offen sc1\ns_add_u32 s6, s6, 16384\nbuffer_load_dword v{VDUM}, v9, {WS}, s6 offen sc1")

def kvf_addr(a):
    a(f"s_lshl_b32 s7, s{S_H}, 10\ns_add_u32 s7, s7, {WS_KVF}\nv_lshrrev_b32 v2, 3, v{L}\nv_and_b32 v3, 7, v{L}\nv_lshlrev_b32 v3, 2, v3\nv_lshl_add_u32 v3, v2, 7, v3")
def kv_flag_wait(a, level):
    kvf_addr(a)
    poll(a, f"buffer_load_dword v2, v3, {WS}, s7 offen sc1", f"v_cmp_gt_u32 vcc, {level}, v2")

KS_POLL = int(os.environ.get("KSP", "15"))
LATE_KS = tuple(int(x) for x in os.environ.get("STKS", "0,1,2,3,16,17,18,19").split(","))
KS_FLAG = int(os.environ.get("KSF", "6"))
NEARLY = int(os.environ.get("NEARLY", "2"))
def kv_store(a, n, late=True):
    if late and "nolate" in ABL: return
    a(f"buffer_store_dwordx4 {v(ACC+4*n,4)}, v{VL16}, {WS}, s{S_KVD} offen sc1"); a.vm.issue(("st", n))
    inc = ("1024", f"s{S_INCA}", "1024", f"s{S_INCB}")[n & 3]
    a(f"s_add_u32 s{S_KVD}, s{S_KVD}, {inc}")
def q_body(a):
    sfx = ""
    a.lg.drain(); a.vm.drain()
    def rdW(t, hf, ks):
        blk = ks >> 2
        off = (0, 0, 32768, 0, 32768)[blk] + (ks & 3)*8192 + hf*1024
        a(f"ds_read_b64_tr_b16 {v(WF+4*t+2*hf,2)}, v{QRW+t} offset:{off}"); a.lg.issue(("W", t, hf))
    for t in range(8):
        rdW(t, 0, 0); rdW(t, 1, 0)
    xr = {ks: XEARLY[2*ks:2*ks+2] for ks in range(3)}
    for ks in range(3, 7):
        xr[ks] = [CF + 8*(ks-3), CF + 8*(ks-3) + 4]
        x_load(a, ks, xr[ks])
    nst = 0
    for ks in range(20):
        pend = []
        a.wait_vm(("X", ks))
        if ks % 2 == 0: a.stamp(32 + ks//2)
        barrier_here = ks == 11 or (ks == 3 and "oldb7" not in ABL)
        upd = {3: -LDS_SP, 11: 65536}.get(ks)
        st_at = (3,) if ks in LATE_KS else ()
        for t in range(8):
            for qt in range(2):
                if qt == 0: a.wait_lg([("W", t, 0), ("W", t, 1)])
                q = qt ^ (t & 1) if "q" in SNAKE else qt
                a.mfma(Oreg(t, q), WF+4*t, xr[ks][q], "0" if ks == 0 else None)
                if qt == 1 and ks < 19: pend += [(t, 0), (t, 1)]
                if barrier_here and t == 1 and qt == 1:
                    a("s_waitcnt lgkmcnt(0)\ns_barrier"); a.lg.drain()
                    while len(pend) > 2: rdW(*pend.pop(0), ks+1)
                if pend and not (barrier_here and (t, qt) < (1, 1)): rdW(*pend.pop(0), ks+1)
                if upd is not None and qt == 0:
                    a(f"v_add_u32 v{QRW+t}, s101, v{QRW+t}" if ks == 3 else f"v_xor_b32 v{QRW+t}, 0x10000, v{QRW+t}")
                if qt == 0 and t in st_at and nst < 16:
                    kv_store(a, nst); nst += 1
        while pend: rdW(*pend.pop(0), ks+1)
        if ks + 7 < 20:
            xr[ks+7] = xr[ks]; x_load(a, ks+7, xr[ks])
        if ks == KS_FLAG:
            a.wait_vm(("st", 3))
            set_flag(a, "kv", 1)
        if ks == KS_POLL:
            a.wait_vm(("X", 19))
            a(f"s_cmp_ge_u32 s{S_W}, 4\ns_cbranch_scc1 L_q_nold{sfx}")
            a.stamp(20)
            kv_flag_wait(a, 1)
            a.stamp(21)
            st_dma(a, ["K", "V1"])
            a.label(f"L_q_nold{sfx}")
    assert nst == len(LATE_KS) and 8 <= nst <= 12

def phase_q(a):
    a.label("L_q")
    a.srd(SRD_E, P_DBG, 256)
    a(f"s_lshl_b32 s6, s76, 13\nv_add_u32 v{VDK}, s6, v{VL16}\ns_lshl_b32 s6, s76, 12\nv_add_u32 v{VDV}, s6, v{VL16}")
    a(f"s_lshl_b32 s77, s{S_H}, 20\ns_add_u32 s77, s77, {WS_KV}\ns_mov_b32 s78, s100\ns_sub_u32 s101, s100, {LDS_SP}\ns_mov_b32 s{S_ALL}, 0")
    a(f"s_cmp_lt_u32 s{S_W}, 4\ns_cselect_b32 s{S_HK}, 3, 2")
    q_body(a)
    a.stamp(7)
    if "symq" not in ABL:
        a(f"s_cmp_lt_u32 s{S_W}, 4\ns_cbranch_scc1 L_qb\ns_barrier")
        a.label("L_qb")
    a("s_mov_b32 s6, 0x3e0293ee\ns_nop 7")
    for qt in range(2):
        for n in range(len(LATE_KS), 12):
            if (n & 1) == qt or 12 - len(LATE_KS) == 1: pass
        if qt == 0:
            for n in range(len(LATE_KS), 12): kv_store(a, n)
        for s_ in range(4):
            for hf in range(2):
                d = Oreg(2*s_+hf, qt)
                for r in range(4): a(f"v_mul_f32 v{d+r}, s6, v{d+r}")
                a(f"v_cvt_pk_bf16_f32 v{Qreg(qt,s_)+2*hf}, v{d}, v{d+1}\nv_cvt_pk_bf16_f32 v{Qreg(qt,s_)+2*hf+1}, v{d+2}, v{d+3}")
    zero_regs(a, O_, 64)
    zero_regs(a, NM, 16)
    zero_regs(a, LA, 8)
    for i in range(4): a(f"v_mov_b32 v{ONES+i}, 0x3f803f80")
    a(f"v_add_u32 v{VA}, s100, v{VL16}")
    a(f"s_waitcnt vmcnt({12 - len([k for k in LATE_KS if k <= KS_POLL])})")

def sm_ops(par):
    ops = []
    n = 0
    for kt in range(2):
        for qt in range(2):
            for r in range(4):
                t, tp = ET + n % 4, ET + (n-1) % 4
                e = f"v_exp_f32 v{t}, v{Sreg(par,kt,qt)+r}"
                rest = []
                if r & 1: rest.append(f"v_cvt_pk_bf16_f32 v{Preg(par,qt)+2*kt+(r>>1)}, v{tp}, v{t}")
                ops.append((e, rest)); n += 1
    return ops

def phase_attn(a):
    handlers = []
    FULLQ = [("F", i) for i in range(1, 8)]
    def rd(kind, i, k):
        off = (0 if kind == "K" else 32768) + k*8192 + i*1024
        a(f"ds_read_b128 {v(FR+4*i,4)}, v{VA} offset:{off}"); a.lg.issue(("F", i))
    def bar(wait="vmcnt(0) lgkmcnt(0)", mid=None, hot=False):
        bk = a.newlabel("ldback")
        if hot:
            a(f"s_cbranch_scc1 {bk}_c\ns_barrier")
            a.label(bk)
            handlers.append(("ld", bk))
        else:
            a(f"s_waitcnt {wait}\ns_call_b64 s[82:83], L_pend\ns_barrier")
            if mid: mid()
            a(f"s_call_b64 s[82:83], L_load")
        a.lg.drain()
        if "stampbar" in ABL: a.stampd(S_N, 44)
        a(f"s_add_i32 s{S_N}, s{S_N}, 1")
    def stage(k, qk=True, sm=True, pv=True, nxt=True, loop=False):
        pq, ps = k & 1, 1 - (k & 1)
        full = qk and pv
        pairs = []
        if pv: pairs += [("V", i) for i in range(8)]
        if qk: pairs += [("K", i) for i in range(8)]
        if pv: pairs.insert(LPOS if full else 2, ("L", None))
        NP = len(pairs)
        g0 = [[] for _ in range(NP)]; g1 = [[] for _ in range(NP)]
        if sm:
            ops = sm_ops(ps)[2:]
            g1[0] += sm_ops(ps)[1][1]
            per = 1 if full else 2
            for n, (e, rest) in enumerate(ops):
                g0[n//per].append(e); g1[n//per] += rest
            c = [Preg(ps, qt) + 2*kt + h for kt in range(2) for qt in range(2) for h in range(2)]
            X = ET + 4
            chk = [f"v_or3_b32 v{X}, v{c[0]}, v{c[1]}, v{c[2]}", f"v_or3_b32 v{X}, v{X}, v{c[3]}, v{c[4]}", f"v_or3_b32 v{X}, v{X}, v{c[5]}, v{c[6]}",
                   f"v_bitop3_b32 v{X}, v{X}, v{c[7]}, s72 bitop3:0xa8", f"v_cmp_ne_u32 vcc, s{S_THR}, v{X}"]
            if full:
                g1[4].append(chk[0]); g1[8].append(chk[1]); g1[12].append(chk[2]); g0[14] += chk[3:]
            else: g0[7] += chk
        if full:
            for n, (e, rest) in enumerate(sm_ops(pq)[:2]):
                g0[15+n].append(e)
        sc = {}
        if loop:
            sc[1] = f"s_sub_i32 s{S_C}, s{S_C}, 1"; sc[3] = f"s_cmp_gt_i32 s{S_C}, 0"; sc[5] = f"s_cselect_b32 s{S_THR}, 0, 1"
            if k == 3: sc[LPOS-1] = f"s_cmp_lg_u32 s{S_HK}, 0"
        barp = [x[0] for x in pairs].index("L") if k == 3 else None
        if barp is not None: g1[barp-2].append(f"v_xor_b32 v{VA}, 0x10000, v{VA}")
        held = []
        for n, (kind, i) in enumerate(pairs):
            for qt in range(2):
                q = qt ^ (i & 1) if ("a" in SNAKE and i is not None) else qt
                if kind == "V": a.mfma(Oreg(i, q), FR+4*i, Preg(pq, q))
                elif kind == "L": a.mfma(LA+4*q, ONES, Preg(pq, q))
                else: a.mfma(Sreg(pq, i >> 2, q), FR+4*i, Qreg(q, i & 3), None if i & 3 else NMreg(i >> 2, q))
                if qt == 0:
                    if n == barp and loop:
                        a("s_waitcnt lgkmcnt(0)"); a.lg.drain()
                    if n + 1 < NP:
                        if pairs[n+1][0] != "L": a.wait_lg(("F", pairs[n+1][1]))
                    elif nxt: a.wait_lg(("F", 0))
                    for x in g0[n]: a(x)
                else:
                    if n in sc: a(sc[n])
                    if kind == "L":
                        if n == barp:
                            bar(hot=loop)
                            for h in held: rd("V", h, 0)
                    elif kind == "V" and qk: rd("K", i, k)
                    elif nxt:
                        if barp is not None and n < barp: held.append(i)
                        else: rd("V", i, (k+1) & 3)
                    for x in g1[n]: a(x)
        if sm:
            bk = a.newlabel("back")
            if loop and k == 3:
                a(f"s_cbranch_vccz L_st0\ns_branch {bk}_h")
                handlers.append(("sm", bk, k, loop, full, "L_st0"))
            else:
                a(f"s_cbranch_vccnz {bk}_h")
                a.label(bk)
                handlers.append(("sm", bk, k, loop, full, bk))
    a(f"s_mov_b32 s72, 0x40004000\ns_mov_b32 s{S_THR}, 0\ns_sub_u32 s{S_NL}, 15, s{S_P}\ns_mov_b32 s{S_N}, -1")
    a.stamp(8)
    if "symq" in ABL: bar("lgkmcnt(0)")
    else:
        a(f"s_cmp_ge_u32 s{S_W}, 4\ns_cbranch_scc1 L_qb2\ns_barrier")
        a.label("L_qb2")
        a.lg.drain()
        if "stampbar" in ABL: a.stampd(S_N, 44)
    a.stamp(9)
    for i in range(8): rd("K", i, 0)
    a(f"s_cmp_lg_u32 s{S_B}, 0\ns_cbranch_scc1 L_nm0\ns_call_b64 s[82:83], L_mask")
    a.label("L_nm0")
    for i in range(8):
        a.wait_lg(("F", i))
        for qt in range(2):
            a.mfma(Sreg(0, i >> 2, qt), FR+4*i, Qreg(qt, i & 3), None if i & 3 else NMreg(i >> 2, qt))
        rd("K", i, 1)
    a("s_nop 7")
    for qt in range(2):
        m = ET + qt
        s0, s1 = Sreg(0, 0, qt), Sreg(0, 1, qt)
        a(f"v_max3_f32 v{m}, v{s0}, v{s0+1}, v{s0+2}\nv_max3_f32 v{m}, v{m}, v{s0+3}, v{s1}\nv_max3_f32 v{m}, v{m}, v{s1+1}, v{s1+2}\nv_max_f32 v{m}, v{m}, v{s1+3}")
        xlane(a, "v_max_f32", m, ET+2)
        a(f"v_add_f32 v{m}, {hex(OFFS)}, v{m}")
        for kt in range(2):
            for r in range(4):
                a(f"v_sub_f32 v{Sreg(0,kt,qt)+r}, v{Sreg(0,kt,qt)+r}, v{m}\nv_sub_f32 v{NMreg(kt,qt)+r}, 0, v{m}")
    a(f"s_cmp_lg_u32 s{S_B}, 1\ns_cbranch_scc1 L_nm1\ns_call_b64 s[82:83], L_mask")
    a.label("L_nm1")
    def early(par):
        o = sm_ops(par)[:2]
        a(o[0][0]); a(o[1][0])
    early(0)
    a.wait_lg(("F", 0))
    stage(1, pv=False)
    assert a.lg.q == FULLQ
    a("s_nop 7")
    early(1)
    if "symq" not in ABL: a(f"s_call_b64 s[82:83], L_load\ns_mov_b32 s{S_N}, 0")
    for n in range(12, 16): kv_store(a, n)
    a(f"s_sub_i32 s{S_C}, s{S_B}, 2")
    a.stamp(10)
    a(f"s_cmp_eq_u32 s{S_B}, 0\ns_cbranch_scc1 L_pv2\ns_cmp_eq_u32 s{S_B}, 1\ns_cbranch_scc1 L_tail2")
    a(f"s_cmp_lg_u32 s{S_B}, 2\ns_cbranch_scc1 L_st2\ns_call_b64 s[82:83], L_mask\ns_branch L_st2")
    a(".p2align 6")
    a.label("L_st0")
    for k in range(4):
        if k == 2: a.label("L_st2")
        stage(k, loop=True)
        assert a.lg.q == FULLQ, a.lg.q
    for k in range(4):
        a.label(f"L_tail{k}")
        a.lg.q = list(FULLQ)
        a(f"s_mov_b32 s{S_THR}, 0")
        stage(k, qk=False)
        assert a.lg.q == FULLQ
        a.label(f"L_pv{(k+1)&3}")
        stage((k+1) & 3, qk=False, sm=False, nxt=False)
        if k < 3: a("s_branch L_fin")
    a.label("L_fin")
    a.stamp(11)
    idx_addr(a); a(f"buffer_load_dword v{VIDX}, v3, {WS}, s72 offen sc1")
    for qt in range(2): a(f"v_rcp_f32 v{L_+qt}, v{LA+4*qt}")
    a(f"s_lshl_b32 s6, s{S_B}, 18\ns_lshl_b32 s7, s{S_H}, 12\ns_add_u32 s6, s6, s7\ns_add_u32 s6, s6, {WS_CTX}\ns_nop 4")
    n = 0
    a.vm.drain()
    for qt in range(2):
        for s_ in range(4):
            t = QF + 4*n; n += 1
            for hf in range(2):
                d = Oreg(2*s_+hf, qt)
                for r in range(4): a(f"v_mul_f32 v{d+r}, v{L_+qt}, v{d+r}")
                a(f"v_cvt_pk_bf16_f32 v{t+2*hf}, v{d}, v{d+1}\nv_cvt_pk_bf16_f32 v{t+2*hf+1}, v{d+2}, v{d+3}")
            a(f"buffer_store_dwordx4 {v(t,4)}, v{VL16}, {WS}, s6 offen offset:{s_*1024} sc1"); a.vm.issue("st")
        if qt == 0: a("s_add_u32 s6, s6, 0x20000")
    a.stamp(12)
    def flag_now():
        a("s_waitcnt vmcnt(0)")
        set_flag(a, "ctx")
    a(f"s_cmp_gt_i32 s{S_N}, s{S_NL}\ns_cbranch_scc1 L_pre")
    bar("vmcnt(8)", flag_now)
    a(f"s_lshl_b32 s6, s{S_W}, 8\ns_add_u32 s6, s6, s2\ns_cmp_eq_u32 s6, {DESIG}\ns_cbranch_scc1 L_top")
    a.label("L_idle")
    a(f"s_sub_i32 s6, s{S_NL}, 5\ns_cmp_gt_i32 s{S_N}, s6\ns_cbranch_scc1 L_pre")
    bar()
    a(f"s_cmp_lt_u32 s{S_E}, 54\ns_cbranch_scc1 L_moe\ns_branch L_idle")
    a.label("L_pre")
    a(f"s_cmp_lt_u32 s{S_W}, 4\ns_cbranch_scc1 L_pre1")
    out_setup(a, 1)
    idx_poll(a, "b", "s_waitcnt vmcnt(8)")
    a("s_call_b64 s[80:81], L_oprep")
    a(f"s_mov_b32 s6, 0x10000\ns_lshl_b32 s7, s76, 12\ns_add_u32 s7, s7, s6\nv_add_u32 v12, s7, v{VL16}")
    a(f"s_lshl_b32 s7, s76, 13\ns_add_u32 s6, s6, s7\nv_add_u32 v3, s6, v{VL16}\ns_add_u32 s7, s7, {LDS_SP}\nv_add_u32 v2, s7, v{VL16}")
    a.stamp(19)
    a("s_barrier")
    wo_load(a, 4)
    for f in range(20):
        r, off = (2, f*1024) if f < 8 else (3, (f-8)*1024) if f < 16 else (12, 49152+(f-16)*1024)
        a(f"ds_read_b128 {v(WR+4*f,4)}, v{r} offset:{off}")
        if f % 8 == 7: a("s_waitcnt lgkmcnt(6)")
    a("s_waitcnt vmcnt(5)")
    set_flag(a, "ctx")
    a("s_waitcnt lgkmcnt(0)\ns_branch L_adone")
    a.label("L_oprep")
    wo_voffs(a, VWM, VWO4)
    out_consts(a)
    out_items(a)
    a("s_setpc_b64 s[80:81]")
    a.label("L_pre1")
    cnt_addr(a); poll(a, cnt_load(a, 2, 1), "v_cmp_gt_u32 vcc, 4, v2", sleep=8)
    a(f"s_mov_b32 s{S_ALL}, 1")
    out_setup(a, 0)
    if "xnt" in ABL:
        a.srd(SRD_A, P_X, 2048*640*2)
        a(f"v_min_u32 v2, 39, v{L}\nv_mul_u32_u24 v3, 52, v2\nv_lshrrev_b32 v3, 8, v3\nv_mul_u32_u24 v4, 5, v3\nv_sub_u32 v2, v2, v4\nv_mul_u32_u24 v3, 1280, v3\nv_lshl_add_u32 v2, v2, 6, v3")
        a(f"s_cmp_lt_u32 s{S_W}, 2\ns_cselect_b32 s6, s{S_OB}, s{S_OL}\ns_lshl_b32 s6, s6, 1\ns_and_b32 s7, s{S_W}, 1\ns_add_u32 s6, s6, s7\ns_mul_i32 s6, s6, 10240\ns_and_b32 s7, s{S_H}, 3\ns_mul_i32 s7, s7, 320\ns_add_u32 s6, s6, s7")
        a(f"buffer_load_dword v{VDUM}, v2, {R(SRD_A)}, s6 offen")
    for j in range(5):
        if j < 4:
            for i in (2*j, 2*j+1): wo_load(a, i)
        if j == 4:
            ctxf_addr(a, S_OB); a(f"buffer_load_dword v50, v3, {WS}, s72 offen sc1")

        a(f"s_cmp_gt_i32 s{S_N}, s{S_NL}\ns_cbranch_scc1 L_e{j+2}")
        if j < 4:
            a(f"s_cmp_eq_i32 s{S_N}, s{S_NL}\ns_cbranch_scc1 L_lw{j}\ns_waitcnt vmcnt({(11, 10, 10, 10)[j]})")
            a.label(f"L_lw{j}")
        bar(f"vmcnt({20 if 'nocode2' in ABL else 21})")
        a.label(f"L_e{j+2}")
    idx_poll(a, "a", "s_waitcnt vmcnt(20)")
    a.stamp(22)
    moe_finish(a)
    a("s_call_b64 s[80:81], L_oprep\ns_waitcnt vmcnt(0)")
    a.label("L_ye")
    a.stamp(23)
    a("v_cmp_ne_u32 vcc, 1, v50\ns_cbranch_vccz L_ce")
    ctxf_addr(a, S_OB)
    poll(a, f"buffer_load_dword v2, v3, {WS}, s72 offen sc1", "v_cmp_ne_u32 vcc, 1, v2", sleep=4)
    a.label("L_ce")
    for r in range(NPC):
        for x in ctx_dma(r) + ctx_dma(r, 16384): a(x)
    a("s_setprio 0")
    a.stamp(19)
    a("s_barrier")
    for r in range(NPC, 2):
        for x in ctx_dma(r) + ctx_dma(r, 16384): a(x)
    a.stamp(15)
    a("s_waitcnt vmcnt(8)\ns_branch L_adone")
    moe_steps(a, bar)
    top8(a, bar)
    for h in handlers:
        if h[0] == "ld":
            a.label(h[1] + "_c"); a(f"s_waitcnt vmcnt(0) lgkmcnt(0)\ns_call_b64 s[82:83], L_pend\ns_barrier\ns_call_b64 s[82:83], L_load\ns_branch {h[1]}")
        else:
            _, bk, k, loop, full, back = h
            a.label(bk + "_h")
            a(f"v_cmp_ne_u32 vcc, 0, v{ET+4}\ns_cbranch_vccz {bk}_n\ns_call_b64 s[80:81], L_rare{1-(k&1)}")
            if full:
                o = sm_ops(k & 1)[:2]
                a(o[0][0]); a(o[1][0])
            a.label(bk + "_n")
            if loop:
                a(f"s_cmp_lt_i32 s{S_C}, 0\ns_cbranch_scc1 L_tail{(k+1)&3}\ns_cmp_gt_i32 s{S_C}, 0\ns_cbranch_scc1 {back}\ns_call_b64 s[82:83], L_mask")
            a(f"s_branch {back}")
    a.label("L_load")
    a(f"s_bitcmp1_b32 s{S_HK}, 0\ns_cbranch_scc0 L_load_r")
    a(f"s_add_u32 s77, s77, 32768\ns_xor_b32 s78, s78, 0x10000\ns_add_i32 s73, s{S_N}, 1\ns_cmp_gt_i32 s73, s{S_NL}\ns_cbranch_scc1 L_load_r")
    if "at_nodma" not in ABL:
        a(f"s_cmp_eq_i32 s73, s{S_NL}\ns_cbranch_scc1 L_load_v\ns_cmp_lg_i32 s73, 3\ns_cbranch_scc1 L_load_k")
        a("v_cmp_gt_u32 vcc, 2, v12\ns_cbranch_vccz L_load_k")
        kv_flag_wait(a, 2)
        a.label("L_load_k")
        st_dma(a, ["K", "V1"])
        a.label("L_load_v")
        st_dma(a, ["V0"])
    a(f"s_cmp_eq_i32 s73, s{S_NL}\ns_cbranch_scc1 L_xa\ns_cmp_lg_i32 s73, 2\ns_cbranch_scc1 L_nolook")
    kvf_addr(a); a(f"buffer_load_dword v12, v3, {WS}, s7 offen sc1")
    a.label("L_nolook")
    a(f"s_cmp_lt_u32 s{S_P}, 4\ns_cbranch_scc1 L_load_r")
    a(f"s_sub_i32 s6, s{S_N}, {WOTN}\ns_cmp_gt_u32 s6, 4\ns_cbranch_scc1 L_wb\ns_cbranch_scc0 L_wsel")
    a.label("L_wb")
    a(f"s_sub_i32 s79, s73, 1\ns_cmp_lt_u32 s79, 2\ns_cbranch_scc1 L_x3")
    a.label("L_load_r")
    a("s_setpc_b64 s[82:83]")
    a.label("L_pend")
    a(f"s_bitcmp1_b32 s{S_HK}, 1\ns_cbranch_scc0 L_load_a\ns_cmp_lt_i32 s{S_N}, 0\ns_cbranch_scc1 L_load_a")
    set_flag(a, "kv", 2)
    a(f"s_and_b32 s{S_HK}, s{S_HK}, 1")
    a.label("L_load_a")
    a("s_setpc_b64 s[82:83]")
    def wo_dma(fs, m0base, m0off):
        for i, f in enumerate(fs):
            a(f"s_add_u32 m0, {m0base}, {m0off + i*1024}\ns_add_u32 s7, s{84 + f%5}, {(f//5)*40960}\nbuffer_load_dwordx4 v{VL16}, {WS}, s7 offen sc1 lds")
    WOTR = [172, 176, 180, 184, 188]
    a.label("L_wsel")
    a(f"s_lshr_b32 s7, s6, 1\ns_lshl_b32 s91, s2, 1\ns_add_u32 s91, s91, s7\ns_sub_u32 s91, s91, 256\ns_cmp_eq_u32 s6, 4\ns_cbranch_scc1 L_w2\ns_bitcmp1_b32 s6, 0\ns_cbranch_scc1 L_w1")
    a.label("L_w0")
    a.srd(SRD_E, P_WO, 4096*640*2)
    a(f"s_lshr_b32 s75, s91, 1\ns_mul_i32 s75, s75, {32*1280}\ns_and_b32 s6, s91, 1\ns_mul_i32 s6, s6, 640\ns_add_u32 s75, s75, s6\ns_movk_i32 s7, 1639")
    a(f"s_mul_i32 s74, s76, 5120\ns_add_u32 s74, s74, {LDS_WOT}\ns_mul_i32 s6, s76, 320\nv_add_u32 v9, s6, v{L}")
    for n in range(5):
        a(f"v_add_u32 v2, {n*64}, v9\nv_mul_lo_u32 v3, v2, s7\nv_lshrrev_b32 v3, 16, v3\nv_mul_u32_u24 v4, 40, v3\nv_sub_u32 v4, v2, v4")
        a(f"v_mul_u32_u24 v3, 1280, v3\nv_lshl_add_u32 v3, v4, 4, v3\ns_add_u32 m0, s74, {n*1024}\ns_nop 0")
        a(f"buffer_load_dwordx4 v3, {R(SRD_E)}, s75 offen{NT} lds")
    a("s_branch L_wb")
    a.label("L_w1")
    a(f"v_and_b32 v2, 15, v{L}\nv_lshrrev_b32 v3, 4, v{L}\nv_lshrrev_b32 v4, 2, v2\nv_lshl_add_u32 v4, v3, 2, v4\nv_mul_u32_u24 v4, 640, v4")
    a(f"v_and_b32 v2, 3, v2\nv_lshl_add_u32 v4, v2, 3, v4\ns_mul_i32 s6, s76, 160\ns_add_u32 s6, s6, {LDS_WOT}\nv_add_u32 v4, s6, v4")
    a(f"s_mul_i32 s6, s91, 20480\ns_mul_i32 s7, s76, 5120\ns_add_u32 s6, s6, s7\ns_add_u32 s6, s6, {WS_WOF}\ns_add_u32 s7, s6, 4096")
    for n in range(5):
        d = WOTR[n]
        a(f"ds_read_b64_tr_b16 v[{d}:{d+1}], v4 offset:{n*32}\nds_read_b64_tr_b16 v[{d+2}:{d+3}], v4 offset:{n*32+10240}")
    a("s_waitcnt lgkmcnt(0)")
    for n in range(5):
        a(f"buffer_store_dwordx4 {v(WOTR[n],4)}, v{VL16}, {WS}, s{6 if n<4 else 7} offen offset:{(n&3)*1024} sc1")
    a("s_branch L_wb")
    a.label("L_w2")
    a(f"s_cmp_lg_u32 s{S_W}, 0\ns_cbranch_scc1 L_wb")
    count_atomic(a, 1)
    a("s_branch L_wb")
    a.label("L_xa")
    a(f"s_cmp_lg_u32 s{S_ALL}, 0\ns_cbranch_scc1 L_xa1")
    cnt_addr(a); poll(a, cnt_load(a, 2, 1), "v_cmp_gt_u32 vcc, 4, v2", sleep=8)
    a.label("L_xa1")
    if "nocode2" not in ABL:
        a("s_getpc_b64 s[80:81]")
        a.label("L_pc2")
        a(f"s_sub_u32 s80, s80, L_pc2-L_fin\ns_subb_u32 s81, s81, 0\ns_and_b32 s6, s{S_H}, 1\ns_lshl_b32 s6, s6, 14\nv_lshl_add_u32 v3, v0, 6, s6")
        a(f"v_min_u32 v3, L_exit-L_fin, v3\nglobal_load_dword v{VDUM}, v3, s[80:81]")
    if "xt" in ABL:
        a.srd(SRD_A, P_X, 2048*640*2)
        a(f"v_lshrrev_b32 v2, 2, v{L}\nv_mul_u32_u24 v2, 1280, v2\nv_and_b32 v3, 3, v{L}\nv_lshl_add_u32 v2, v3, 6, v2")
        a(f"s_lshl_b32 s6, s{S_H}, 2\ns_add_u32 s6, s6, s{S_W}\ns_mul_i32 s73, s6, 20480\ns_mul_i32 s7, s{S_P}, 160\ns_andn2_b32 s7, s7, 63\ns_add_u32 s7, s7, s73")
        a(f"buffer_load_dword v{VDUM}, v2, {R(SRD_A)}, s7 offen\nv_min_u32 v2, 39, v{L}\nv_lshlrev_b32 v2, 6, v2\ns_mul_i32 s7, s{S_P}, 2560\ns_add_u32 s7, s7, s73")
        a(f"buffer_load_dword v{VDUM}, v2, {WS}, s7 offen sc1")
    wo_base(a, 74, 1)
    for m in range(4): a(f"s_add_u32 s6, s76, {m}\ns_and_b32 s6, s6, 3\ns_lshl_b32 s6, s6, 10\ns_add_u32 s{84+m}, s6, s74")
    a("s_add_u32 s88, s74, 4096")
    a(f"s_lshl_b32 s73, s{S_W}, 13\ns_add_u32 s75, s73, s78")
    wo_dma(range(8), "s73", LDS_SP); wo_dma(range(8, 16), "s75", 0)
    a(f"s_lshl_b32 s75, s{S_W}, 12\ns_add_u32 s75, s75, s78")
    wo_dma(range(16, 20), "s75", 49152)
    a("s_setpc_b64 s[82:83]")
    a.label("L_x3")
    if "nomoetouch" not in ABL:
        a.srd(SRD_A, P_WG, 640*1728*2)
        a(f"s_cmp_eq_u32 s{S_W}, 3\ns_cbranch_scc1 L_load_r")
        a(f"s_cmp_eq_u32 s{S_W}, 1\ns_cselect_b32 s{SRD_A}, s{P_WU}, s{SRD_A}\ns_cselect_b32 s{SRD_A+1}, s{P_WU+1}, s{SRD_A+1}")
        a(f"s_cmp_eq_u32 s{S_W}, 2\ns_cselect_b32 s{SRD_A}, s{P_WD}, s{SRD_A}\ns_cselect_b32 s{SRD_A+1}, s{P_WD+1}, s{SRD_A+1}")
        a(f"s_mov_b32 s73, 3456\ns_cmov_b32 s73, 256\ns_mov_b32 s75, 256\ns_cmov_b32 s75, {4*40960}")
        a(f"s_lshr_b32 s6, s2, 3\ns_sub_u32 s6, s6, 16\ns_mul_i32 s6, s6, 40\nv_lshrrev_b32 v2, 2, v{L}\nv_add_u32 v2, s6, v2\nv_mul_lo_u32 v2, v2, s73\nv_and_b32 v3, 3, v{L}\nv_lshl_add_u32 v2, v3, 6, v2")
        a(f"s_xor_b32 s79, s79, 1\ns_lshl_b32 s6, s79, 3\ns_lshr_b32 s7, s{S_H}, 2\ns_add_u32 s6, s6, s7\ns_mul_i32 s6, s6, s75")
        a(f"v_mov_b32 v3, {hex(WS_SIZE)}\nv_cmp_gt_u32 vcc, 32, v{L}\ns_lshl_b32 s73, s73, 4\ns_nop 0\nv_cndmask_b32 v3, v3, v2, vcc")
        a(f"buffer_load_dword v{VDUM}, v2, {R(SRD_A)}, s6 offen\ns_add_u32 s7, s6, s73\nbuffer_load_dword v{VDUM}, v2, {R(SRD_A)}, s7 offen")
        a(f"s_add_u32 s7, s7, s73\nbuffer_load_dword v{VDUM}, v3, {R(SRD_A)}, s7 offen")
    a("s_setpc_b64 s[82:83]")
    a.label("L_mask")
    a(f"v_and_b32 v2, 15, v{L}\nv_lshrrev_b32 v3, 4, v{L}\nv_lshlrev_b32 v3, 2, v3\nv_sub_u32 v2, v2, v3\nv_mov_b32 v3, 0xff800000")
    for r in range(4):
        a(f"v_cmp_gt_i32 vcc, {r}, v2\nv_mov_b32 v{NMreg(1,0)+r}, v3\ns_nop 0")
        a(f"v_cndmask_b32 v{NMreg(0,0)+r}, v{NMreg(0,0)+r}, v3, vcc\nv_cndmask_b32 v{NMreg(1,1)+r}, v{NMreg(1,1)+r}, v3, vcc")
    a("s_nop 1\ns_setpc_b64 s[82:83]")
    for par in range(2):
        a.label(f"L_rare{par}")
        a("s_nop 15")
        for qt in range(2):
            m = ET + 4
            s0, s1 = Sreg(par, 0, qt), Sreg(par, 1, qt)
            a(f"v_max_f32 v{m}, v{s0}, v{s0+1}\nv_max3_f32 v{m}, v{m}, v{s0+2}, v{s0+3}\nv_max3_f32 v{m}, v{m}, v{s1}, v{s1+1}\nv_max3_f32 v{m}, v{m}, v{s1+2}, v{s1+3}")
            xlane(a, "v_max_f32", m, ET)
            a(f"v_add_f32 v{m}, {hex(OFFS)}, v{m}\nv_max_f32 v{m}, 0, v{m}")
            a(f"v_exp_f32 v{ET}, -v{m}")
            for kt in range(2):
                for r in range(4):
                    for reg in (Sreg(0,kt,qt), Sreg(1,kt,qt), NMreg(kt,qt)):
                        a(f"v_sub_f32 v{reg+r}, v{reg+r}, v{m}")
            for r in range(4): a(f"v_mul_f32 v{LA+4*qt+r}, v{ET}, v{LA+4*qt+r}")
            for t in range(8):
                for r in range(4): a(f"v_mul_f32 v{Oreg(t,qt)+r}, v{ET}, v{Oreg(t,qt)+r}")
        for e, rest in sm_ops(par):
            a(e); a("s_nop 0")
            for x in rest: a(x)
        a("s_nop 1\ns_setpc_b64 s[80:81]")
    a.label("L_adone")
    a.stamp(13)

def top8(a, bar):
    K = 64
    a.label("L_top")
    a(f"s_mov_b32 s6, {hex(WS_R)}\nv_lshrrev_b32 v2, 1, v{L}\nv_and_b32 v3, 1, v{L}\nv_lshlrev_b32 v3, 4, v3\nv_lshl_add_u32 v2, v2, 7, v3")
    for i in range(8): a(f"buffer_load_dwordx4 {v(K+4*i,4)}, v2, {WS}, s6 offen sc1\ns_add_u32 s6, s6, 4096")
    a("s_waitcnt vmcnt(0)\nv_mov_b32 v24, 0\ns_mov_b32 s7, 0\ns_mov_b32 s84, 0")
    a.label("L_top_l")
    a(f"v_max3_u32 v4, v{K}, v{K+1}, v{K+2}\nv_max3_u32 v5, v{K+3}, v{K+4}, v{K+5}")
    for i in range(6, 30, 4): a(f"v_max3_u32 v4, v4, v{K+i}, v{K+i+1}\nv_max3_u32 v5, v5, v{K+i+2}, v{K+i+3}")
    a(f"v_max3_u32 v4, v4, v{K+30}, v{K+31}\nv_max_u32 v4, v4, v5")
    a.wave_reduce("v_max_u32", 4)
    a("v_readlane_b32 s6, v4, 63\ns_mov_b32 m0, s7\ns_nop 3\ns_add_u32 s84, s84, s6\nv_writelane_b32 v24, s84, m0")
    for i in range(32): a(f"v_subrev_u32 v{K+i}, s6, v{K+i}")
    a("s_add_u32 s7, s7, 1\ns_cmp_lt_u32 s7, 8\ns_cbranch_scc1 L_top_l")
    a(f"v_and_b32 v2, 7, v{L}\nv_lshlrev_b32 v2, 2, v2\nds_bpermute_b32 v4, v2, v24\ns_waitcnt lgkmcnt(0)\nv_and_b32 v4, 0x7ff, v4\nv_sub_u32 v4, 0x7ff, v4")
    a(f"v_lshrrev_b32 v5, 4, v4\nv_mul_u32_u24 v5, 20480, v5\nv_and_b32 v4, 15, v4\nv_lshl_add_u32 v5, v4, 4, v5\nv_lshrrev_b32 v7, 4, v{L}\nv_lshl_add_u32 v5, v7, 8, v5")
    a(f"v_mov_b32 v6, {hex(WS_SIZE)}\nv_and_b32 v2, 8, v{L}\nv_cmp_eq_u32 vcc, 0, v2\ns_mov_b32 s6, 0\ns_nop 0\nv_cndmask_b32 v5, v6, v5, vcc")
    for k in range(20):
        if k and k % 4 == 0: a("s_add_u32 s6, s6, 4096")
        a(f"buffer_load_dwordx4 {v(K+4*k,4)}, v5, {WS}, s6 offen offset:{(k&3)*1024} sc1")
    def put():
        a(f"s_waitcnt vmcnt(0)\ns_mov_b32 s6, {hex(WS_XS)}")
        for k in range(20):
            if k and k % 4 == 0: a("s_add_u32 s6, s6, 4096")
            a(f"buffer_store_dwordx4 {v(K+4*k,4)}, v{VL16}, {WS}, s6 offen offset:{(k&3)*1024} sc1")
    bar("vmcnt(20)", put)
    a("s_waitcnt vmcnt(16)")
    a(f"v_or_b32 v24, 0x80000000, v24\nv_lshlrev_b32 v5, 2, v{L}\nv_mov_b32 v6, {hex(WS_SIZE)}\nv_cmp_gt_u32 vcc, 8, v{L}\ns_mov_b32 s6, {hex(WS_IDX)}\ns_nop 0\nv_cndmask_b32 v5, v6, v5, vcc")
    a(f"buffer_store_dword v24, v5, {WS}, s6 offen sc1\ns_branch L_idle")

OACC = 176
M_WD, M_PART = 81920, 122880
VIDX = 51
def idx_addr(a):
    a(f"v_and_b32 v3, 7, v{L}\nv_lshlrev_b32 v3, 2, v3\ns_mov_b32 s72, {hex(WS_IDX)}")
def ctxf_addr(a, own, both=True):
    a(f"v_and_b32 v3, 1, v{L}\nv_lshlrev_b32 v3, 12, v3")
    if both: a(f"v_and_b32 v2, 2, v{L}\nv_lshl_add_u32 v3, v2, 8, v3")
    a(f"s_lshr_b32 s72, s{own}, 2\ns_lshl_b32 s72, s72, 6\ns_andn2_b32 s6, s{S_H}, 7\ns_add_u32 s72, s72, s6\ns_add_u32 s72, s72, s{S_W}\ns_lshl_b32 s72, s72, 7\ns_add_u32 s72, s72, {WS_CTXF}")
def idx_poll(a, sfx, wait="s_waitcnt vmcnt(40)"):
    a(wait)
    a(f"v_cmp_le_i32 vcc, 0, v{VIDX}\ns_cbranch_vccz L_idx_ok{sfx}")
    idx_addr(a)
    poll(a, f"buffer_load_dword v{VIDX}, v3, {WS}, s72 offen sc1", f"v_cmp_le_i32 vcc, 0, v{VIDX}")
    a.label(f"L_idx_ok{sfx}")

def moe_steps(a, bar):
    XS, FRG, GA, WDR, WD2, PR, YO = 64, 104, 24, 32, 240, 184, 216
    VG, VT, VD, VTD, VY, VXS = 16, 17, 18, 19, 20, 21
    S_G, S_WIN, S_D = 84, 85, 86
    a.label("L_moe")
    a(f"s_sub_u32 s6, s{S_N}, s{S_P}\ns_cmp_lg_u32 s6, 3\ns_cbranch_scc1 L_idle")
    def srds():
        a.srd(SRD_A, P_WG, 640*1728*2)
        a(f"s_cmp_ge_u32 s{S_W}, 2\ns_cselect_b32 s{SRD_A}, s{P_WU}, s{SRD_A}\ns_cselect_b32 s{SRD_A+1}, s{P_WU+1}, s{SRD_A+1}")
        a.srd(SRD_B, P_WD, 1728*640*2)
    def dma_g(nk):
        for n in range(2*nk):
            a(f"s_add_u32 m0, s{S_WIN}, {n*1024}\ns_nop 0\nbuffer_load_dwordx4 v{VG}, {R(SRD_A)}, s{S_G} offen lds\ns_add_u32 s{S_G}, s{S_G}, {16*3456}")
    def dma_d():
        for n in range(4):
            a(f"s_add_u32 m0, s{S_WIN}, {4096+n*1024}\ns_add_u32 s6, s{S_D}, {n*8*1280}\nbuffer_load_dwordx4 v{VD}, {R(SRD_B)}, s6 offen lds")
        a(f"s_add_u32 s{S_D}, s{S_D}, 512")
    def rd_g(k0, nk):
        for k in range(nk):
            for ft in range(2):
                d = FRG + ((k0+k)*2+ft)*4
                a(f"ds_read_b64_tr_b16 {v(d,2)}, v{VT} offset:{k*2048+ft*32}\nds_read_b64_tr_b16 {v(d+2,2)}, v{VT} offset:{k*2048+ft*32+256}")
            if k == 1: a("s_waitcnt lgkmcnt(0)")
    def xs(k0, nk):
        for k in range(k0, k0+nk): a(f"buffer_load_dwordx4 {v(XS+4*k,4)}, v{VL16}, {WS}, s88 offen sc1\ns_add_u32 s88, s88, 1024")
    def rd_d(base):
        for m in range(4):
            a(f"ds_read_b64_tr_b16 {v(base+4*m,2)}, v{VTD} offset:{m*32}\nds_read_b64_tr_b16 {v(base+2+4*m,2)}, v{VTD} offset:{m*32+16*128}")
    def down(base, goff):
        for m in range(4): a.mfma(YO+4*m, base+4*m, GA, "0")
        a("s_nop 7")
        for m in range(4): a(f"buffer_store_dwordx4 {v(YO+4*m,4)}, v{VY}, {WS}, s87 offen offset:{goff*1024+m*64} sc1")
        a("s_nop 1")
    srds()
    a(f"v_lshrrev_b32 v3, 2, v{L}\nv_mul_u32_u24 v3, 3456, v3\nv_and_b32 v4, 3, v{L}\nv_lshl_add_u32 v{VG}, v4, 4, v3")
    a(f"v_lshrrev_b32 v3, 3, v{L}\nv_mul_u32_u24 v3, 1280, v3\nv_and_b32 v4, 7, v{L}\nv_lshl_add_u32 v{VD}, v4, 4, v3")
    a(f"s_and_b32 s7, s{S_W}, 1\ns_mul_i32 s{S_G}, s7, {320*3456}\ns_lshl_b32 s6, s{S_E}, 6\ns_add_u32 s{S_G}, s{S_G}, s6")
    a(f"s_lshl_b32 s{S_WIN}, s{S_W}, 13\ns_add_u32 s{S_WIN}, s{S_WIN}, {LDS_SP}")
    a(f"s_mul_i32 s{S_D}, s{S_E}, 40960\ns_lshl_b32 s6, s{S_W}, 7\ns_add_u32 s{S_D}, s{S_D}, s6")
    dma_g(4)
    a(f"v_lshrrev_b32 v7, 4, v{L}\nv_and_b32 v2, 15, v{L}\nv_lshrrev_b32 v3, 2, v2\nv_lshl_add_u32 v8, v7, 3, v3\nv_lshlrev_b32 v8, 6, v8\nv_and_b32 v4, 3, v2\nv_lshl_add_u32 v8, v4, 3, v8\nv_add_u32 v{VT}, s{S_WIN}, v8")
    a(f"v_lshl_add_u32 v8, v7, 2, v3\nv_lshlrev_b32 v8, 7, v8\nv_lshl_add_u32 v8, v4, 3, v8\ns_add_u32 s6, s{S_WIN}, 4096\nv_add_u32 v{VTD}, s6, v8")
    a(f"v_mul_u32_u24 v3, 2560, v2\nv_lshl_add_u32 v3, v7, 4, v3\nv_mov_b32 v4, {hex(WS_SIZE)}\nv_cmp_gt_u32 vcc, 8, v2")
    a(f"s_mul_i32 s87, s{S_E}, 20480\ns_lshl_b32 s7, s{S_W}, 8\ns_add_u32 s87, s87, s7\ns_add_u32 s87, s87, {WS_YP}\nv_cndmask_b32 v{VY}, v4, v3, vcc")
    a(f"s_and_b32 s7, s{S_W}, 1\ns_mul_i32 s88, s7, 10240\ns_add_u32 s88, s88, {WS_XS}")
    W0 = "vmcnt(0) lgkmcnt(0)"
    def m1():
        rd_g(0, 4); a("s_waitcnt lgkmcnt(0)"); dma_g(4)
    bar(W0, m1)
    idx_addr(a); a(f"buffer_load_dword v{VIDX}, v3, {WS}, s72 offen sc1")
    def m2():
        rd_g(4, 4); a("s_waitcnt lgkmcnt(0)"); dma_g(2); dma_d()
    bar(W0, m2)
    idx_poll(a, "m", "")
    xs(0, 10)
    def m3():
        rd_g(8, 2); rd_d(WDR); a("s_waitcnt lgkmcnt(0)"); dma_d()
    bar("vmcnt(10) lgkmcnt(0)", m3)
    a("s_waitcnt vmcnt(20)")
    for k in range(10):
        for ft in range(2): a.mfma(GA+4*ft, FRG+(k*2+ft)*4, XS+4*k, "0" if k == 0 else None)
    a(f"v_add_u32 v10, s{S_WIN}, v{VL16}\ns_nop 7\nds_write_b128 v10, {v(GA,4)}\nds_write_b128 v10, {v(GA+4,4)} offset:1024")
    def m4():
        rd_d(WD2)
        a(f"v_add_u32 v10, {LDS_SP}, v{VL16}\ns_waitcnt lgkmcnt(0)")
        for w in range(4):
            for ft in range(2): a(f"ds_read_b128 {v(PR+(w*2+ft)*4,4)}, v10 offset:{w*8192+ft*1024}")
        a(f"s_cmp_ge_u32 s{S_W}, 2\ns_cbranch_scc1 L_moe4b")
        dma_d()
        a.label("L_moe4b")
    bar(W0, m4)
    a("s_waitcnt lgkmcnt(0)")
    a("s_mov_b32 s6, 0xbfb8aa3b")
    def rnd2(r): a(f"v_cvt_pk_bf16_f32 v{r+1}, v{r}, v{r+1}\nv_lshlrev_b32 v{r}, 16, v{r+1}\nv_and_b32 v{r+1}, 0xffff0000, v{r+1}")
    for i in range(0, 8, 2):
        g0, u0 = PR + i, PR + 16 + i
        for q in range(2): a(f"v_add_f32 v{g0+q}, v{g0+q}, v{g0+8+q}\nv_add_f32 v{u0+q}, v{u0+q}, v{u0+8+q}")
        rnd2(g0); rnd2(u0)
        a(f"v_mul_f32 v2, s6, v{g0}\nv_mul_f32 v3, s6, v{g0+1}\nv_exp_f32 v2, v2\nv_exp_f32 v3, v3\nv_add_f32 v2, 1.0, v2\nv_add_f32 v3, 1.0, v3".replace("v_exp_f32 v3, v3\n", "v_exp_f32 v3, v3\ns_nop 0\n"))
        a(f"v_rcp_f32 v2, v2\nv_rcp_f32 v3, v3\ns_nop 0\nv_mul_f32 v{g0}, v{g0}, v2\nv_mul_f32 v{g0+1}, v{g0+1}, v3")
        rnd2(g0)
        a(f"v_mul_f32 v{g0}, v{g0}, v{u0}\nv_mul_f32 v{g0+1}, v{g0+1}, v{u0+1}\nv_cvt_pk_bf16_f32 v{GA+i//2}, v{g0}, v{g0+1}")
    a("s_nop 1")
    down(WDR, 0)
    bar("vmcnt(4) lgkmcnt(0)")
    down(WD2, 1)
    a(f"s_cmp_ge_u32 s{S_W}, 2\ns_cbranch_scc1 L_moe5b")
    rd_d(WDR); a("s_waitcnt lgkmcnt(0)"); down(WDR, 2)
    a.label("L_moe5b")
    bar("vmcnt(4) lgkmcnt(0)", lambda: (a("s_waitcnt vmcnt(0)"), set_flag(a, "moe")))
    a("s_branch L_idle")

def moe_finish(a):
    YS = [16+4*i for i in range(8)] + [56+4*i for i in range(10)]
    Y, XR = YS[0], 54
    a(f"s_lshr_b32 s7, s{S_W}, 1\ns_lshl_b32 s7, s7, 4\ns_add_u32 s6, s{S_P}, s7\ns_cmp_lg_u32 s6, {YP}\ns_cbranch_scc1 L_yd")
    a(f"s_lshr_b32 s87, s{S_H}, 2\ns_and_b32 s88, s{S_H}, 3\ns_lshl_b32 s88, s88, 1\ns_add_u32 s88, s88, s{S_W}")
    a(f"s_mov_b32 m0, s87\ns_nop 3\nv_readlane_b32 s85, v{VIDX}, m0\ns_nop 3\ns_and_b32 s86, s85, 0x7ff\ns_sub_u32 s86, 0x7ff, s86")
    a(f"v_min_u32 v3, 53, v{L}\nv_lshlrev_b32 v3, 7, v3\ns_mov_b32 s72, {hex(WS_MOEF)}")
    poll(a, f"buffer_load_dwordx4 {v(Y,4)}, v3, {WS}, s72 offen sc1",
         "\n".join([f"v_and_b32 v{Y}, v{Y}, v{Y+r}" for r in (1, 2, 3)]) + f"\nv_cmp_ne_u32 vcc, 1, v{Y}", sleep=16)
    a(f"v_mul_u32_u24 v2, 13, v{L}\nv_lshrrev_b32 v2, 8, v2\nv_mul_u32_u24 v3, 20, v2\nv_sub_u32 v4, v{L}, v3")
    a(f"s_mov_b32 s6, {18*20480}\nv_mul_lo_u32 v2, v2, s6\nv_lshl_add_u32 v2, v4, 4, v2")
    a(f"v_cmp_lt_u32 vcc, 59, v{L}\nv_mov_b32 v3, {hex(WS_SIZE)}\ns_nop 0\nv_cndmask_b32 v2, v2, v3, vcc")
    a(f"s_mul_i32 s6, s87, 2560\ns_mul_i32 s7, s88, 320\ns_add_u32 s6, s6, s7\ns_add_u32 s6, s6, {WS_YP}")
    for e in range(18):
        a(f"buffer_load_dwordx4 {v(YS[e],4)}, v2, {WS}, s6 offen sc1\ns_add_u32 s6, s6, 20480")
    a(f"s_lshr_b32 s6, s86, 4\ns_mul_i32 s6, s6, 20480\ns_and_b32 s7, s86, 15\ns_lshl_b32 s7, s7, 4\ns_add_u32 s6, s6, s7\ns_mul_i32 s7, s88, 2560\ns_add_u32 s6, s6, s7")
    a(f"v_lshrrev_b32 v5, 1, v4\nv_lshlrev_b32 v5, 8, v5\nv_and_b32 v6, 1, v4\nv_lshl_add_u32 v5, v6, 3, v5\nbuffer_load_dwordx2 {v(XR,2)}, v5, {WS}, s6 offen sc1")
    a("s_bfe_u32 s6, s85, 0x10000b\ns_xor_b32 s7, s6, 0xffff\ns_bitcmp1_b32 s6, 15\ns_bitset0_b32 s6, 15\ns_cselect_b32 s6, s6, s7\ns_lshl_b32 s6, s6, 16\nv_mov_b32 v5, s6")
    a("v_mul_f32 v5, 0xbfb8aa3b, v5\nv_exp_f32 v5, v5\ns_nop 0\nv_add_f32 v5, 1.0, v5\nv_rcp_f32 v5, v5\ns_nop 0")
    bf16_round(a, 5)
    a(f"v_lshlrev_b32 v6, 2, v{L}\ns_waitcnt vmcnt(0)")
    for e in range(1, 18):
        a(f"v_pk_add_f32 {v(Y,2)}, {v(Y,2)}, {v(YS[e],2)}\nv_pk_add_f32 {v(Y+2,2)}, {v(Y+2,2)}, {v(YS[e]+2,2)}")
    for k in range(2):
        for r in range(4): a(f"ds_bpermute_b32 v{Y+4+4*k+r}, v6, v{Y+r} offset:{80*(k+1)}")
    a("s_waitcnt lgkmcnt(0)")
    for r in range(4):
        y = Y + r
        a(f"v_add_f32 v{y}, v{y}, v{y+4}\nv_add_f32 v{y}, v{y}, v{y+8}")
        bf16_round(a, y)
        a(f"v_mul_f32 v{y}, v{y}, v5")
        bf16_round(a, y)
        xn = XR + (r >> 1)
        a(f"v_and_b32 v7, 0xffff0000, v{xn}" if r & 1 else f"v_lshlrev_b32 v7, 16, v{xn}")
        a(f"v_add_f32 v{y}, v{y}, v7")
    a(f"v_cvt_pk_bf16_f32 v{Y+4}, v{Y}, v{Y+1}\nv_cvt_pk_bf16_f32 v{Y+5}, v{Y+2}, v{Y+3}")
    a(f"v_lshlrev_b32 v2, 3, v{L}\nv_cmp_lt_u32 vcc, 19, v{L}\ns_mul_i32 s6, s87, 1280\ns_mul_i32 s7, s88, 160\nv_cndmask_b32 v2, v2, v3, vcc\ns_add_u32 s6, s6, s7\ns_add_u32 s6, s6, {WS_BSEL}")
    a(f"buffer_store_dwordx2 {v(Y+4,2)}, v2, {WS}, s6 offen sc1")
    a("s_call_b64 s[80:81], L_oprep\ns_waitcnt vmcnt(0)")
    set_flag(a, "b")
    a("s_branch L_ye")
    a.label("L_yd")

WR, OA, CR, RT = 96, 56, 16, 32
S_OW, S_OB, S_CX, S_OL = 69, 68, 66, 61
VWO4 = 52
LDS_P, LDS_F = 98304, 65536
def wo_base(a, d, nh):
    a(f"s_lshr_b32 s{d}, s{S_H}, 3\ns_lshl_b32 s{d}, s{d}, 2\ns_add_u32 s{d}, s{d}, s76\ns_mul_i32 s{d}, s{d}, {8*40960}\ns_and_b32 s7, s{S_H}, 3\ns_mul_i32 s7, s7, 10240\ns_add_u32 s{d}, s{d}, s7\ns_add_u32 s{d}, s{d}, {WS_WOF + nh*5120}")

XNA = 48
S_TOK, S_XI, S_XFI, VXF = 64, 62, 63, 11
XFG = int(os.environ.get("XFG", "16"))
VWM = 44
def wo_voffs(a, r0, r4=None):
    for m in range(4): a(f"s_add_u32 s6, s76, {m}\ns_and_b32 s6, s6, 3\ns_lshl_b32 s6, s6, 10\nv_add_u32 v{r0+m}, s6, v{VL16}")
    a(f"v_add_u32 v{r0+4 if r4 is None else r4}, 4096, v{VL16}")
def wm(m): return VWM + m if m < 4 else VWO4
def wo_load(a, i):
    a(f"s_add_u32 s75, s{S_OW}, {i*40960}")
    for m in range(5): a(f"buffer_load_dwordx4 {v(WR+4*(5*i+m),4)}, v{wm(m)}, {WS}, s75 offen sc1")

def out_setup(a, nh):
    if nh == 0:
        idx_addr(a); a(f"buffer_load_dword v{VIDX}, v3, {WS}, s72 offen sc1")
    wo_voffs(a, VWM, VWO4)
    wo_base(a, S_OW, nh)
    a(f"s_and_b32 s6, s{S_H}, 4\ns_lshr_b32 s7, s{S_H}, 3\ns_add_u32 s6, s6, s7\ns_lshl_b32 s7, s{S_P}, 3\ns_add_u32 s{S_OB}, s6, s7\ns_sub_u32 s7, 120, s7\ns_add_u32 s{S_OL}, s6, s7")

VCA, VT, VPR = 4, 5, 6
S_RED = 71
S_PB, S_XS = 67, 96
def out_consts(a):
    a(f"s_lshr_b32 s6, s{S_W}, 2\ns_lshl_b32 s6, s6, 1\ns_sub_u32 s{S_RED}, s76, s6\ns_and_b32 s{S_RED}, s{S_RED}, 3")
    a(f"s_lshr_b32 s6, s{S_H}, 3\ns_lshl_b32 s6, s6, 15\ns_lshl_b32 s99, s{S_W}, 12\ns_add_u32 s{S_CX}, s6, s99\ns_add_u32 s{S_CX}, s{S_CX}, {WS_CTX}")
    a(f"s_lshl_b32 s6, s76, 13\nv_add_u32 v{VCA}, s6, v{VL16}\nv_add_u32 v7, 65536, v{VCA}")
    a(f"s_lshr_b32 s6, s{S_W}, 2\ns_mul_i32 s{S_PB}, s6, 15360\ns_add_u32 s{S_PB}, s{S_PB}, {LDS_P}\nv_add_u32 v{VPR}, s{S_PB}, v{VWM}")
    a(f"v_mov_b32 v{VXF}, {hex(WS_SIZE)}")
    tile_id(a, S_XFI)
    a(f"s_lshl_b32 s{S_XFI}, s{S_XFI}, 2\ns_lshr_b32 s7, s{S_H}, 3\ns_add_u32 s{S_XFI}, s{S_XFI}, s7\ns_mul_i32 s{S_XI}, s{S_XFI}, 61440\ns_add_u32 s{S_XI}, s{S_XI}, {WS_XP}\ns_mul_i32 s{S_XFI}, s{S_XFI}, 384\ns_add_u32 s{S_XFI}, s{S_XFI}, {WS_XF}")
    for k in range(3):
        xslot(a, k, S_XS+k)
        a(f"s_lshl_b32 s6, s{S_XS+k}, 5\ns_add_u32 s6, s6, s{S_W}\ns_lshl_b32 s6, s6, 2\ns_add_u32 s6, s6, {WS_XF}\nv_writelane_b32 v{VXF}, s6, {k}")
        a(f"s_mul_i32 s{S_XS+k}, s{S_XS+k}, 20480\ns_lshr_b32 s6, s{S_W}, 2\ns_mul_i32 s6, s6, 5120\ns_add_u32 s{S_XS+k}, s{S_XS+k}, s6\ns_add_u32 s{S_XS+k}, s{S_XS+k}, {WS_XP}")

def ctx_dma(r, extra=0):
    own, d = (S_OL if r in (3, 4, 5, 7) else S_OB), (1 + r % 3 if r < 6 else 0)
    o = [f"s_add_u32 s65, s{own}, {d}\ns_and_b32 s65, s65, 3\ns_andn2_b32 s7, s{own}, 3\ns_add_u32 s65, s65, s7\ns_lshl_b32 s65, s65, 17\ns_add_u32 s65, s65, s{S_CX}\ns_add_u32 m0, s99, {(r%3)*32768+extra}\ns_add_u32 s65, s65, {extra}"]
    return o + [f"buffer_load_dwordx4 v{VL16}, {WS}, s65 offen offset:{i*1024} sc1 lds" for i in range(4)]

def phase_out(a):
    def rdc(r, i):
        reg, off = (VCA, (r%3)*32768) if r % 3 < 2 else (7, 0)
        return (("C", i & 3), f"ds_read_b128 {v(CR+4*(i&3),4)}, v{reg} offset:{off+i*1024}")
    def xlook_addr():
        a(f"v_bfe_u32 v2, v{L}, 3, 2\nv_min_u32 v2, 2, v2\nv_and_b32 v3, 7, v{L}\nv_lshlrev_b32 v3, 2, v3\nv_lshl_add_u32 v3, v2, 7, v3")
    IT = [(WR, WR+4), (WR+8, WR+12)]
    XI, LP, OUTR = WR+16, WR+64, WR+128
    def emit(x):
        if callable(x): x()
        elif isinstance(x, str): a(x)
        elif x[0] == "wait": a.wait_lg(x[1])
        else:
            a(x[1]); a.lg.issue(x[0])
    def xin_load(slots):
        sk = a.newlabel("xi")
        for n in range(2):
            if n == 1: a(f"s_cmp_ge_u32 s{S_W}, 2\ns_cbranch_scc1 {sk}")
            for s_ in slots:
                a(f"s_add_u32 s6, s{S_XI}, {s_*20480}")
                for hf in range(2): a(f"buffer_load_dwordx4 {v(XI+24*n+8*s_+4*hf,4)}, v{8+n}, {WS}, s6 offen offset:{hf*256} sc1")
        a.label(sk)
    a("s_barrier")
    a.lg.drain()
    for i in range(4): emit(rdc(0, i))
    a.wait_lg(("C", 0))
    BG = 24
    for r in range(8):
        if "stampout" in ABL: a.stamp(44 + r)
        A = OA + 20*(r & 1); Ap = OA + 20*((r-1) & 1)
        po = ((r-1) & 1)*30720
        red = 1 <= r <= 6
        G = [[] for _ in range(40)]
        def dma_at(rr, g0, gs):
            d = ctx_dma(rr); sal = d[0].split("\n")
            G[g0] += sal[:3]; G[g0+1] += sal[3:6]; G[g0+2] += sal[6:7]
            for g, x in zip(gs, d[1:]): G[g].insert(0, x)
        def barrier():
            if r == 0:
                a(f"s_cmp_ge_u32 s{S_W}, 4\ns_cbranch_scc1 L_o0\ns_waitcnt vmcnt(4)")
                a.label("L_o0")
            else: a(f"s_waitcnt vmcnt({(0, 0, 4, 5, 5, 5, 1)[r]})")
            if r == 6: a(f"buffer_store_dword v2, v{VXF}, {WS}, 0 offen sc1")
            a("s_waitcnt lgkmcnt(0)\ns_barrier"); a.lg.drain()
        for i in range(8):
            if i < 4: G[5*i+4].append(rdc(r, i+4))
            elif r < 7 and i > 4: G[5*i+4].append(rdc(r+1, i-4))
            if i < 7 or r < 7: G[5*i+3].append(("wait", ("C", (i+1) & 3)))
        if r < 7: G[BG].append(barrier)
        if red:
            G[0].append(f"s_sub_u32 s6, s{S_RED}, {r}\ns_and_b32 s6, s6, 3\ns_mul_i32 s7, s6, 5120")
            G[1].append(f"s_add_u32 s7, s7, s{S_PB}\ns_cmp_eq_u32 s6, 3\ns_cselect_b32 s7, {159744-4096-po}, s7")
            G[2].append(f"v_add_u32 v12, s7, v{VWO4}\nv_add_u32 v{VT}, s{S_PB}, v{wm(1)}")
            for m, g in zip(range(1, 4), (5, 10, 15)):
                G[g] += [("W", f"ds_write_b128 v{VT}, {v(Ap+4*m,4)} offset:{po+(m-1)*5120}"), f"v_add_u32 v{VT}, s{S_PB}, v{wm(m+1)}"]
            G[20].append(("W", f"ds_write_b128 v12, {v(Ap+16,4)} offset:{po}"))
            for k in range(3): G[BG].append((("P", k), f"ds_read_b128 {v(RT+4*k,4)}, v{VPR} offset:{po+k*5120}"))
            for k in range(3):
                G[27+2*k].insert(0, ("wait", ("P", k)))
                for q in range(4): G[27+2*k+q//2].append(f"v_add_f32 v{Ap+q}, v{Ap+q}, v{RT+4*k+q}")
                G[29+2*k].insert(0, (("P", k), f"ds_read_b128 {v(RT+4*k,4)}, v{VT} offset:{po+k*5120}"))
            for k in range(3):
                G[33+2*k].append(("wait", ("P", k)))
                for q in range(4): G[33+2*k+q//2].append(f"v_add_f32 v{Ap+16+q}, v{Ap+16+q}, v{RT+4*k+q}")
            G[33].append(f"s_add_u32 s6, s{S_XS+(r-1)%3}, {((r-1)//3)*10240}")
            G[35].insert(0, f"buffer_store_dwordx4 {v(Ap,4)}, v{VWM}, {WS}, s6 offen sc1")
            sk = a.newlabel("nost")
            G[38].append(f"s_cmp_lg_u32 s{S_RED}, {(r-1)&3}")
            G[39].insert(0, f"s_cbranch_scc1 {sk}\nbuffer_store_dwordx4 {v(Ap+16,4)}, v{VWO4}, {WS}, s6 offen sc1\n{sk}:")
        if r < 7: G[BG].append(rdc(r+1, 0))
        if 1 < r < 5: dma_at(r+3, 21, (25, 26, 28, 30))
        if r == 0:
            dma_at(2, 11, (15, 16, 17, 18))
            for i in range(3):
                def wl(i=i):
                    sk = a.newlabel("nowl")
                    a(f"s_cmp_lt_u32 s{S_W}, 4\ns_cbranch_scc1 {sk}")
                    wo_load(a, 5+i)
                    a.label(sk)
                G[5*i+4].append(wl)
            for i in range(4): G[19+5*i].append(f"s_waitcnt vmcnt({(20, 14, 9, 4)[i]})")
        if r == 1:
            G[22].append(lambda: ctxf_addr(a, S_OL, False))
            G[LOOKG].insert(0, f"buffer_load_dword v50, v3, {WS}, s72 offen sc1")
        if r == 2:
            def chk():
                a(f"s_waitcnt vmcnt(1)\nv_cmp_ne_u32 vcc, 1, v50\ns_cbranch_vccz L_o1")
                poll(a, f"buffer_load_dword v2, v3, {WS}, s72 offen sc1", "v_cmp_ne_u32 vcc, 1, v2", sleep=1)
                a.label("L_o1")
            G[2].append(chk)
            dma_at(3, 3, (6, 6, 7, 7))
            dma_at(4, 8, (11, 12, 13, 16))
        if r == 6: G[22].append(f"v_mov_b32 v2, 1\nv_writelane_b32 v2, 2, 0")
        if r == 7:
            G[2].append(f"s_mul_i32 s73, s{S_W}, 5120\ns_add_u32 s6, s73, {LDS_F}")
            G[3].append(f"v_add_u32 v{VT}, s6, v{wm(0)}")
            for m in range(5):
                G[5+5*m].append(("W", f"ds_write_b128 v{VT}, {v(Ap+4*m,4)}"))
                if m < 4: G[5+5*m].append(f"s_add_u32 s6, s73, {LDS_F}\nv_add_u32 v{VT}, s6, v{wm(m+1)}")
            G[XFG].append(f"v_mov_b32 v2, 2\ns_waitcnt vmcnt(0)\nbuffer_store_dword v2, v{VXF}, {WS}, 0 offen sc1")
            def items():
                a(f"s_cmp_eq_u32 s{S_TOK}, 0\ns_cbranch_scc1 L_nb")
                a(f"v_bfe_u32 v2, v{L}, 1, 3\nv_and_b32 v3, 1, v{L}\nv_lshl_add_u32 v3, v2, 7, v3\nv_lshlrev_b32 v3, 2, v3\ns_and_b32 s6, s{S_H}, 3\ns_lshl_b32 s6, s6, 7\ns_add_u32 s6, s6, {WS_BF+YP*32*128}")
                poll(a, f"buffer_load_dword v2, v3, {WS}, s6 offen sc1", "v_cmp_ne_u32 vcc, 1, v2")
                a.label("L_nb")
                sk = a.newlabel("itskip")
                for n in range(2):
                    if n == 1: a(f"s_cmp_ge_u32 s{S_W}, 2\ns_cbranch_scc1 {sk}")
                    a(f"buffer_load_dwordx4 {v(IT[n][0],4)}, v{53+n}, {R(SRD_A)}, s70 offen\nbuffer_load_dwordx4 {v(IT[n][1],4)}, v{XNA+n}, {WS}, 0 offen sc1")
                a.label(sk)
            G[XFG+2].append(items)
            G[30].append(xlook_addr)
            G[31].append(f"s_bitcmp1_b32 13, s{S_W}\ns_cselect_b32 s77, 1, 2\nbuffer_load_dword v50, v3, {WS}, s{S_XFI} offen sc1")
            G[33].append(f"s_add_u32 s6, s73, {106496-20480}\ns_cmp_lt_u32 s{S_W}, 4\ns_cselect_b32 s73, s73, s6")
        for g in range(40):
            i, m = divmod(g, 5)
            if "o" in SNAKE and i & 1 == 0 and i: m = 4 - m
            a.mfma(A+4*m, WR+4*(5*i+m), CR+4*(i&3), "0" if i == 0 else None)
            for x in G[g]: emit(x)
    a.stamp(16)
    a("s_nop 4")
    for m in range(5): a(f"v_add_u32 v{VT}, s73, v{wm(m)}\nds_write_b128 v{VT}, {v(OA+20+4*m,4)}")
    a("s_waitcnt vmcnt(0)\nv_cmp_gt_u32 s[78:79], s77, v50\ns_nop 3\ns_cmp_lg_u64 s[78:79], 0\ns_cbranch_scc1 L_x2a")
    xin_load((0, 1, 2))
    a.label("L_x2a")
    a("s_waitcnt lgkmcnt(0)\ns_barrier")
    for n in range(2):
        for k in range(4):
            for hf in range(2): a(f"ds_read_b128 {v(LP+32*n+8*k+4*hf,4)}, v{(10,55)[n]} offset:{k*5120+hf*256}")
    a("s_cmp_eq_u64 s[78:79], 0\ns_cbranch_scc1 L_x2b")
    poll(a, f"buffer_load_dword v2, v3, {WS}, s{S_XFI} offen sc1", "v_cmp_gt_u32 vcc, s77, v2", sleep=1)
    xin_load((0, 1, 2))
    a.label("L_x2b")
    a.srd(SRD_B, P_OUT, 2048*640*2)
    a.stamp(17)
    for n in range(2):
        if n == 1: a(f"s_cmp_ge_u32 s{S_W}, 2\ns_cbranch_scc1 L_end")
        S = LP + 32*n
        a(f"s_waitcnt lgkmcnt({8 if n == 0 else 0})")
        for k in range(1, 4):
            for q in range(0, 8, 2): a(f"v_pk_add_f32 {v(S+q,2)}, {v(S+q,2)}, {v(S+8*k+q,2)}")
        a("s_waitcnt vmcnt(0)" if n == 0 else "s_nop 0")
        for k in range(3):
            for q in range(0, 8, 2): a(f"v_pk_add_f32 {v(S+q,2)}, {v(S+q,2)}, {v(XI+24*n+8*k+q,2)}")
        for q in range(4):
            x0, x1 = S+2*q, S+2*q+1
            a(f"v_cvt_pk_bf16_f32 v2, v{x0}, v{x1}\nv_lshlrev_b32 v{x0}, 16, v2\nv_and_b32 v{x1}, 0xffff0000, v2")
            a(f"v_lshlrev_b32 v2, 16, v{IT[n][0]+q}\nv_and_b32 v3, 0xffff0000, v{IT[n][0]+q}\nv_pk_add_f32 {v(x0,2)}, {v(x0,2)}, v[2:3]")
            a(f"v_cvt_pk_bf16_f32 v2, v{x0}, v{x1}\nv_lshlrev_b32 v{x0}, 16, v2\nv_and_b32 v{x1}, 0xffff0000, v2")
            a(f"v_lshlrev_b32 v2, 16, v{IT[n][1]+q}\nv_and_b32 v3, 0xffff0000, v{IT[n][1]+q}\nv_pk_add_f32 {v(x0,2)}, {v(x0,2)}, v[2:3]")
            a(f"v_cvt_pk_bf16_f32 v{OUTR+4*n+q}, v{x0}, v{x1}")
        a(f"buffer_store_dwordx4 {v(OUTR+4*n,4)}, v{53+n}, {R(SRD_B)}, s70 offen")

def out_items(a):
    a.srd(SRD_A, P_X, 2048*640*2)
    a(f"s_and_b32 s75, s{S_H}, 3\ns_mul_i32 s70, s75, 320\ns_add_u32 s73, s70, {WS_BSEL}")
    a(f"s_mul_i32 s72, s75, 5120")
    a(f"v_lshrrev_b32 v2, 4, v{L}\nv_and_b32 v3, 15, v{L}\nv_mul_u32_u24 v54, 1280, v3\nv_lshl_add_u32 v54, v2, 4, v54\nv_lshlrev_b32 v3, 4, v3\nv_lshl_add_u32 v9, v2, 9, v3")
    a(f"s_lshr_b32 s100, s{S_W}, 2\ns_cselect_b32 s6, s{S_OL}, s{S_OB}\ns_mul_i32 s6, s6, 20480\ns_lshl_b32 s7, s76, 6\ns_add_u32 s7, s7, s6\nv_add_u32 v53, s7, v54")
    a(f"s_lshl_b32 s7, s76, 10\ns_add_u32 s7, s7, s6\ns_add_u32 s7, s7, s72\nv_add_u32 v{XNA}, s7, v{VL16}")
    a(f"s_mul_i32 s6, s100, 10240\ns_lshl_b32 s7, s76, 11\ns_add_u32 s6, s6, s7\nv_add_u32 v8, s6, v9")
    a(f"s_mul_i32 s6, s100, {LDS_F+10240}\ns_sub_u32 s6, {LDS_F}, s6\nv_add_u32 v10, s6, v8\ns_lshl_b32 s7, s76, 2\nv_add_u32 v2, s7, v2\nv_cmp_lt_u32 vcc, 9, v2\ns_mul_i32 s6, s100, {101376-15360}\ns_add_u32 s6, s6, 15360\nv_add_u32 v3, s6, v10\nv_cndmask_b32 v10, v10, v3, vcc")
    a(f"s_and_b32 s100, s{S_W}, 1\ns_cselect_b32 s6, s{S_OL}, s{S_OB}\ns_mul_i32 s6, s6, 20480\ns_add_u32 s7, s6, 256\nv_add_u32 v54, s7, v54\ns_add_u32 s7, s6, s72\ns_add_u32 s7, s7, 4096\nv_add_u32 v{XNA+1}, s7, v{VL16}")
    a(f"s_mul_i32 s6, s100, 10240\ns_add_u32 s6, s6, 8192\nv_add_u32 v9, s6, v9\ns_mul_i32 s6, s100, {101376-10240-LDS_F-15360}\ns_add_u32 s6, s6, {LDS_F+15360}\nv_add_u32 v55, s6, v9")
    sk = a.newlabel("notok")
    a(f"s_mov_b32 s{S_TOK}, 0")
    a(f"v_and_b32 v2, 0x7ff, v{VIDX}\nv_sub_u32 v2, 0x7ff, v2\nv_lshrrev_b32 v3, 4, v2\nv_cmp_eq_u32 vcc, s{S_OB}, v3\nv_cmp_eq_u32 s[74:75], s{S_OL}, v3\ns_nop 3\ns_or_b64 vcc, vcc, s[74:75]\ns_cbranch_scc0 {sk}")
    for tk in range(8): a(f"v_readlane_b32 s{(84,85,86,87,88,65,91,101)[tk]}, v2, {tk}")
    for n in range(2):
        a(f"s_lshl_b32 s7, s76, 6\ns_lshr_b32 s100, s{S_W}, 2" if n == 0 else f"s_movk_i32 s7, 256\ns_and_b32 s100, s{S_W}, 1")
        a(f"s_cselect_b32 s6, s{S_OL}, s{S_OB}\ns_lshl_b32 s6, s6, 4\nv_and_b32 v2, 15, v{L}\nv_add_u32 v2, s6, v2")
        a(f"s_add_u32 s7, s7, s73\nv_and_b32 v3, 48, v{L}\nv_add_u32 v3, s7, v3")
        for tk in range(8):
            a(f"v_cmp_eq_u32 vcc, s{(84,85,86,87,88,65,91,101)[tk]}, v2\ns_nop 1\nv_cndmask_b32 v{XNA+n}, v{XNA+n}, v3, vcc")
            if tk < 7: a(f"v_add_u32 v3, 1280, v3")
    a(f"s_mov_b32 s{S_TOK}, 1")
    a.label(sk)

def gen(a):
    phase_start(a)
    phase_kv(a)
    phase_q(a)
    phase_attn(a)
    phase_out(a)
    a.label("L_end")
    a.stamp(18)
    if a.prof: a("s_waitcnt vmcnt(0)")
    if a.prof and os.environ.get("STRETCH"):
        s0, s1 = os.environ["STRETCH"].split(",")
        a(f"v_readlane_b32 s6, v15, {s0}\nv_readlane_b32 s7, v15, {s1}\nv_readlane_b32 s72, v15, 18\ns_nop 3\ns_sub_u32 s6, s7, s6\ns_min_u32 s6, s6, 20000")
        a.label("L_str")
        a("s_memrealtime s[94:95]\ns_waitcnt lgkmcnt(0)\ns_sub_u32 s7, s94, s72\ns_cmp_lt_u32 s7, s6\ns_cbranch_scc1 L_str")
    if a.prof and os.environ.get("DBGWG"):
        a(f"s_mov_b64 exec, -1\ns_cmp_lg_u32 s2, {os.environ['DBGWG']}\ns_cbranch_scc1 L_nodbg\ns_cmp_lg_u32 s{S_W}, 0\ns_cbranch_scc1 L_nodbg")
        a.srd(SRD_E, P_DBG, 64)
        a(f"v_readlane_b32 s6, v15, 0\ns_nop 3\nv_subrev_u32 v2, s6, v15\nv_subrev_u32 v3, 3, v{L}\nv_lshlrev_b32 v3, 2, v3\nv_cmp_gt_u32 vcc, 4, v{L}\nv_mov_b32 v4, 0x1000\ns_nop 0\nv_cndmask_b32 v3, v3, v4, vcc")
        a(f"buffer_store_dword v2, v3, {R(SRD_E)}, 0 offen")
        a.label("L_nodbg")
    a.stamp_flush(SRD_WS, WS_PROF)
    a.label("L_exit")
    a("s_endpgm")

HEADER = open(os.path.join(os.path.dirname(os.path.abspath(__file__)), "..", NAME + ".s.ref")).read().split("; Override launch")[0]
if __name__ == "__main__":
    name = NAME + "_kernel"
    out = HEADER + "; @launch grid=(256,1,1) block=(512,1,1) lds=163840\n" + '.amdgcn_target "amdgcn-amd-amdhsa--gfx950"\n'
    a = Asm(); a.prof = bool(os.environ.get("PROF"))
    a.o.append(kernel_header(name).rstrip())
    gen(a)
    out += a.text() + '.section .rodata,"a"\n.p2align 6\n' + kernel_desc(name)
    open(sys.argv[1] if len(sys.argv) > 1 else "k.s", "w").write(out)
```

```python
import sys, os
from asmlib import *

NAME = "parallel_sum__compressed_kv_cla__moe_arch_mod__prompt"
ABL = set(os.environ.get("ABL", "").split(","))
WS_XN = 0x0
WS_R = 0x280000
WS_YP = 0x290000
WS_IDX = 0x3A0000
WS_KVF = 0x3B0000
WS_CTXF = 0x3C0000
WS_MOEF = 0xF20000
WS_BSEL = 0x3A9000
WS_BF = 0x3B8000
WS_WOF = 0x400000
WS_XS = 0xC00000
WS_PROF = 0x900000
WS_KV = 0x1000000
WS_CTX = 0x3000000
WS_XF = 0xF00000
WS_XP = 0x4000000
WS_SIZE = 0x5000000
S_W, S_H, S_P = 3, 4, 5
SRD_WS, SRD_A, SRD_B, SRD_C, SRD_D, SRD_E = 8, 12, 16, 20, 24, 28
P_X, P_CKV, P_WQ, P_WUK, P_WUV, P_WO, P_BX, P_WR, P_WG, P_WU, P_WD, P_OUT, P_DBG, P_WS = range(32, 60, 2)
S_B, S_E = 60, 61
WS = f"s[{SRD_WS}:{SRD_WS+3}]"
def R(d): return f"s[{d}:{d+3}]"
L, VL16 = 1, 13
DESIG = 31
SPIN = 1 << 18
WOTM = int(os.environ.get("WOTM", "0x71"), 0)
SNAKE = os.environ.get("SNAKE", "akqo")
LOOKG = int(os.environ.get("LOOKG", "30"))
NPC = int(os.environ.get("NPC", "2"))
YP = int(os.environ.get("YP", "3"))
LPOS = int(os.environ.get("LPOS", "10"))
WOTN = int(os.environ.get("WOTN", "0"))
LNH = int(os.environ.get("LNH", "2"))
MOEJ = int(os.environ.get("MOEJ", "4"))
if "code2" not in ABL: ABL.add("nocode2")
if "newb7" not in ABL: ABL.add("oldb7")
NT = "" if "nont" in ABL else " nt"
ABL.add("latewait")
TSCHED = os.environ.get("TSCHED", ";2;4;6").split(";")
TK, TV0, TV1, TV2 = [[int(y) for y in x.split(",") if y] for x in TSCHED]
LDS_SP = 131072
LDS_LN = LDS_SP
LDS_WOT = LDS_SP + 10240
LDS_RK = LDS_SP + 30720

def bf16_round(a, r):
    a(f"v_cvt_pk_bf16_f32 v{r}, v{r}, v{r}\nv_lshlrev_b32 v{r}, 16, v{r}")

def poll(a, load, cmp_notready, sleep=2):
    lp = a.newlabel("poll"); dn = a.newlabel("polldone")
    a(f"s_mov_b32 s79, {SPIN}")
    a.label(lp)
    a(load); a("s_waitcnt vmcnt(0)"); a(cmp_notready)
    a(f"s_cbranch_vccz {dn}\ns_sleep {sleep}\ns_sub_u32 s79, s79, 1\ns_cmp_lg_u32 s79, 0\ns_cbranch_scc1 {lp}")
    a.label(dn)

VC, VW, RC, RW, QRW = 40, 44, 48, 50, 54
CF, WF, ACC = 64, 96, 128
S_CO, S_WO_, S_MC, S_ST, S_ROW, S_KVD, S_INCA, S_INCB, S_XO, S_QO = 62, 63, 64, 65, 66, 67, 68, 69, 70, 71
S_XB = 84
XEARLY = [16, 20, 24, 28, 32, 36]
VX1 = 12
LX, LW, LV = 16, 26, 64
VDUM = 11
ITR = ((8, 9), (10, 55))

def wdma(a, srd, soff):
    return [f"buffer_load_dwordx4 v{VW+i}, {R(srd)}, s{soff} offen offset:{i*1024} lds" for i in range(4)]

def kv_dma_ops():
    g = []
    g.append([f"s_mov_b32 m0, s{S_MC}", f"s_add_u32 s72, s{S_CO}, 524288"])
    for i in range(4): g.append([f"buffer_load_dwordx4 v{VC+i}, {R(SRD_A)}, s{S_CO} offen offset:{i*1024} lds"])
    g.append([f"s_add_u32 m0, s{S_MC}, 4096", f"s_add_u32 s{S_CO}, s{S_CO}, 128", f"s_bitset0_b32 s{S_CO}, 10"])
    for i in range(4): g.append([f"buffer_load_dwordx4 v{VC+i}, {R(SRD_A)}, s72 offen offset:{i*1024} lds"])
    g.append([f"s_mov_b32 m0, s73", f"s_xor_b32 s{S_MC}, s{S_MC}, 0x10000"])
    for x in wdma(None, SRD_B, S_WO_): g.append([x])
    g.append([f"s_add_u32 m0, s73, 16384", f"s_xor_b32 s73, s73, 0x10000"])
    for x in wdma(None, SRD_C, S_WO_): g.append([x])
    g.append([f"s_add_u32 s{S_WO_}, s{S_WO_}, {64*8192}", f"s_bitset0_b32 s{S_WO_}, 22"])
    return g

def wq_dma_ops(nblk):
    g = []
    for h in range(2*nblk):
        g.append([f"s_mov_b32 m0, s74", f"s_add_u32 s74, s74, 16384"] + (["s_bitset0_b32 s74, 17"] if nblk == 2 else []))
        for x in wdma(None, SRD_D, S_QO): g.append([x])
        g.append([f"s_add_u32 s{S_QO}, s{S_QO}, {64*8192}", f"s_sub_u32 s75, s{S_QO}, {640*8192}", f"s_cselect_b32 s{S_QO}, s{S_QO}, s75"])
    return g

def emit_groups(a, g):
    for x in g:
        for y in x: a(y)

def x_load(a, ks, regs):
    for qt in range(2):
        a(f"buffer_load_dwordx4 {v(regs[qt],4)}, v{VL16 if qt==0 else VX1}, {WS}, s{S_XB+(ks>>2)} offen offset:{(ks&3)*1024} sc1")
        a.vm.issue(("X", ks))

def cnt_load(a, r, which):
    return f"buffer_load_dword v{r}, v3, {R(SRD_E)}, 0 offen offset:{128*which} sc1"
def cnt_addr(a):
    a.srd(SRD_E, P_DBG, 256)
    a(f"v_and_b32 v3, 31, v{L}\nv_lshlrev_b32 v3, 2, v3")
def cnt_check(a, r, which):
    ok = a.newlabel("cntok")
    a(f"v_cmp_gt_u32 vcc, 8, v{r}\ns_cbranch_vccz {ok}")
    cnt_addr(a)
    poll(a, cnt_load(a, 2, which), "v_cmp_gt_u32 vcc, 8, v2", sleep=8)
    a.label(ok)

def kv_touch(a, st0):
    sk = a.newlabel("tch")
    a(f"s_cmp_ge_u32 s76, 2\ns_cbranch_scc1 {sk}a")
    a(f"s_and_b32 s6, s{S_H}, 3\ns_lshl_b32 s6, s6, 19\ns_lshl_b32 s7, s{S_P}, 15\ns_add_u32 s6, s6, s7\ns_lshl_b32 s7, s76, 7\ns_add_u32 s6, s6, s7\ns_add_u32 s6, s6, {st0*128}")
    a(f"v_lshrrev_b32 v6, 1, v{L}\nv_lshlrev_b32 v6, 10, v6\nv_and_b32 v7, 1, v{L}\nv_lshl_add_u32 v6, v7, 6, v6")
    a(f"buffer_load_dword v{VDUM}, v6, {R(SRD_A)}, s6 offen\ns_add_u32 s6, s6, 262144\nbuffer_load_dword v{VDUM}, v6, {R(SRD_A)}, s6 offen\ns_branch {sk}c")
    a.label(sk + "a")
    a(f"v_lshrrev_b32 v6, 5, v{L}\nv_lshlrev_b32 v6, 6, v6\nv_bfe_u32 v7, v{L}, 2, 3\nv_add_u32 v6, v6, v7\nv_lshlrev_b32 v6, 13, v6\nv_and_b32 v7, 3, v{L}\nv_lshl_add_u32 v6, v7, 6, v6")
    a(f"s_lshl_b32 s6, s{S_H}, 8\ns_lshl_b32 s7, s{S_P}, 16\ns_add_u32 s6, s6, s7\ns_add_u32 s6, s6, {st0*64*8192}")
    a(f"s_cmp_lg_u32 s76, 2\ns_cbranch_scc1 {sk}b\nbuffer_load_dword v{VDUM}, v6, {R(SRD_B)}, s6 offen\ns_branch {sk}c")
    a.label(sk + "b")
    a(f"buffer_load_dword v{VDUM}, v6, {R(SRD_C)}, s6 offen")
    a.label(sk + "c")

def consts(a):
    a(f"s_mov_b32 s{S_ST}, 0")
    a(f"s_lshl_b32 s6, s{S_H}, 20\ns_lshl_b32 s7, s{S_P}, 13\ns_add_u32 s6, s6, s7\ns_and_b32 s7, s{S_W}, 1\ns_lshl_b32 s7, s7, 16\ns_add_u32 s6, s6, s7\ns_add_u32 s{S_KVD}, s6, {WS_KV}")
    if "noqrot" in ABL: a("s_mov_b32 s6, 0")
    else:
        a(f"s_and_b32 s6, s{S_H}, 3\ns_add_u32 s6, s6, s{S_P}")
        for _ in range(2): a("s_sub_u32 s7, s6, 5\ns_cselect_b32 s6, s6, s7")
    a(f"s_lshl_b32 s{S_QO}, s6, 20\ns_lshl_b32 s7, s{S_H}, 8\ns_add_u32 s{S_QO}, s{S_QO}, s7")
    for i in range(5):
        a(f"s_lshl_b32 s7, s6, 12\ns_add_u32 s{S_XB+i}, s{S_XO}, s7")
        if i < 4: a("s_add_u32 s6, s6, 1\ns_cmp_eq_u32 s6, 5\ns_cselect_b32 s6, 0, s6")
    a(f"s_lshr_b32 s7, s{S_W}, 1\ns_and_b32 s7, s7, 1")
    a(f"s_cmp_ge_u32 s{S_W}, 4\ns_cbranch_scc1 L_c_v")
    a(f"s_lshl_b32 s7, s7, 11\ns_add_u32 s{S_KVD}, s{S_KVD}, s7\ns_movk_i32 s{S_INCA}, 3072\ns_mov_b32 s{S_INCB}, 125952")
    a(f"s_add_u32 s{S_QO}, s{S_QO}, {128*8192}\ns_sub_u32 s75, s{S_QO}, {640*8192}\ns_cselect_b32 s{S_QO}, s{S_QO}, s75\ns_lshl_b32 s74, s76, 12\ns_add_u32 s74, s74, s100\ns_branch L_c_j")
    a.label("L_c_v")
    a(f"s_lshl_b32 s7, s7, 12\ns_add_u32 s{S_KVD}, s{S_KVD}, s7\ns_add_u32 s{S_KVD}, s{S_KVD}, 0x80000\ns_movk_i32 s{S_INCA}, 1024\ns_mov_b32 s{S_INCB}, 128000")
    a.label("L_c_j")

def zero_regs(a, r0, n):
    for i in range(0, n, 2): a(f"v_mov_b64 {v(r0+i,2)}, 0")

def phase_start(a):
    a(f"s_cmp_ge_u32 s2, 256\ns_cbranch_scc1 L_exit")
    a("s_load_dwordx16 s[32:47], s[0:1], 0\ns_load_dwordx8 s[48:55], s[0:1], 64\ns_load_dwordx4 s[56:59], s[0:1], 96")
    a(f"v_lshrrev_b32 v2, 6, v0\nv_and_b32 v{L}, 63, v0\nv_readfirstlane_b32 s{S_W}, v2")
    if "nocode" not in ABL:
        a("s_getpc_b64 s[80:81]")
        a.label("L_pc")
        a(f"s_lshr_b32 s6, s2, 3\ns_and_b32 s6, s6, 15\ns_lshl_b32 s6, s6, 12\ns_cmp_lt_u32 s{S_W}, 2\ns_cselect_b32 s6, 0, s6\nv_lshl_add_u32 v3, v0, 6, s6")
        a(f"v_min_u32 v3, L_exit-L_pc, v3\ns_cmp_ge_u32 s{S_W}, 3\ns_cbranch_scc1 L_noct\nglobal_load_dword v{VDUM}, v3, s[80:81]")
        a.label("L_noct")
    a(f"v_lshrrev_b32 v62, 5, v0\nv_and_b32 v62, 7, v62\nv_and_b32 v2, 31, v0\nv_lshlrev_b32 v2, 3, v2\nv_mul_u32_u24 v63, 1280, v62\nv_add_u32 v63, v63, v2\ns_mul_i32 s6, s2, 10240\nv_add_u32 v10, s6, v63")
    a(f"s_cmp_lt_u32 s{S_W}, 4\ns_cbranch_scc1 L_st_k0")
    a("s_waitcnt lgkmcnt(0)")
    for j in range(5): a(f"global_load_dwordx2 {v(LX+2*j,2)}, v10, s[{P_X}:{P_X+1}] offset:{j*256}{NT if 'xnt' in ABL else ''}")
    for j in range(5): a(f"global_load_dwordx2 {v(LW+2*j,2)}, v2, s[{P_WR}:{P_WR+1}] offset:{j*256}")
    if "nob0" not in ABL: a("s_barrier")
    a.label("L_st_k0")
    a(f"s_and_b32 s6, s2, 7\ns_lshl_b32 s6, s6, 2\ns_lshr_b32 s7, s2, 3\ns_and_b32 s7, s7, 3\ns_add_u32 s{S_H}, s6, s7\ns_lshr_b32 s{S_P}, s2, 5\ns_and_b32 s76, s{S_W}, 3")
    a.stamp_init(14, 0); a.stamp(0)
    a(f"v_lshrrev_b32 v2, 3, v{L}\nv_and_b32 v3, 7, v{L}\nv_lshrrev_b32 v4, 4, v{L}\nv_xor_b32 v5, v3, v4\nv_lshlrev_b32 v5, 4, v5")
    a(f"v_lshl_add_u32 v{VC}, v2, 10, v5\nv_xor_b32 v5, 64, v{VC}\nv_add_u32 v{VC+1}, 7168, v5\nv_add_u32 v{VC+2}, 14336, v{VC}\nv_add_u32 v{VC+3}, 14336, v{VC+1}")
    a(f"v_and_b32 v6, 15, v{L}\ns_lshl_b32 s6, s76, 4\nv_add_u32 v7, s6, v4\nv_lshlrev_b32 v5, 1, v4\nv_xor_b32 v5, v6, v5\nv_lshlrev_b32 v5, 4, v5")
    a(f"v_lshl_add_u32 v{VW}, v7, 13, v5\nv_add_u32 v{VW+1}, 31744, v{VW}\nv_xor_b32 v5, 0x80, v{VW}\nv_add_u32 v{VW+2}, 63488, v5\nv_add_u32 v{VW+3}, 31744, v{VW+2}")
    a(f"s_and_b32 s6, s76, 1\ns_lshl_b32 s6, s6, 20\ns_lshr_b32 s7, s76, 1\ns_lshl_b32 s7, s7, 18\ns_add_u32 s6, s6, s7\ns_lshl_b32 s{S_CO}, s{S_P}, 15\ns_add_u32 s{S_CO}, s{S_CO}, s6\ns_lshl_b32 s{S_WO_}, s{S_H}, 8\ns_lshl_b32 s{S_MC}, s76, 13\ns_lshl_b32 s73, s76, 12\ns_add_u32 s73, s73, 32768")
    a(f"s_andn2_b32 s100, 1, s{S_P}\ns_lshl_b32 s100, s100, 16\ns_add_u32 s{S_MC}, s{S_MC}, s100\ns_add_u32 s73, s73, s100")
    a("s_waitcnt lgkmcnt(0)")
    a.srd(SRD_A, P_CKV, 2048*512*2)
    a.srd(SRD_B, P_WUK, 512*4096*2)
    a.srd(SRD_C, P_WUV, 512*4096*2)
    a(f"s_cmp_ge_u32 s{S_W}, 4\ns_cbranch_scc1 L_st_v0")
    if "nob0" not in ABL: a("s_barrier")
    for st in TK: kv_touch(a, st)
    emit_groups(a, kv_dma_ops())
    if "noprio" not in ABL: a("s_setprio 1")
    a.label("L_st_v0")
    a.srd(SRD_WS, P_WS, WS_SIZE)
    a.srd(SRD_D, P_WQ, 640*4096*2)
    a(f"v_lshlrev_b32 v{VL16}, 4, v{L}")
    a(f"s_lshl_b32 s6, s{S_P}, 2\ns_add_u32 s7, s6, s{S_W}\ns_sub_u32 s6, 56, s6\ns_add_u32 s6, s6, s{S_W}")
    a(f"s_cmp_lt_u32 s{S_W}, 4\ns_cselect_b32 s{S_B}, s7, s6")
    a(f"s_sub_u32 s6, 2, s{S_P}\ns_and_b32 s6, s6, 7\ns_lshl_b32 s6, s6, 5\ns_add_u32 s{S_E}, s6, s{S_H}")
    a(f"v_and_b32 v2, 15, v{L}\nv_lshrrev_b32 v3, 4, v{L}")
    a(f"s_and_b32 s6, s{S_W}, 1\ns_lshl_b32 s6, s6, 7\nv_add_u32 v4, s6, v2\nv_lshlrev_b32 v4, 7, v4\nv_add_u32 v4, s100, v4\nv_lshrrev_b32 v5, 1, v2")
    for sp in range(2):
        a(f"v_add_u32 v6, {4*sp}, v3\nv_xor_b32 v6, v6, v5\nv_lshl_add_u32 v{RC+sp}, v6, 4, v4")
    a(f"v_lshrrev_b32 v4, 2, v2\nv_lshl_add_u32 v5, v3, 3, v4\nv_lshlrev_b32 v5, 8, v5")
    a(f"v_and_b32 v6, 1, v2\nv_lshl_add_u32 v5, v6, 3, v5")
    a(f"v_and_b32 v6, 1, v3\nv_lshl_or_b32 v4, v6, 2, v4\nv_lshlrev_b32 v4, 1, v4\nv_bfe_u32 v6, v2, 1, 1")
    a(f"v_add_u32 v8, {LDS_SP}, v5")
    for t in range(8):
        a(f"v_add_u32 v7, {2*t}, v6\nv_xor_b32 v7, v7, v4\nv_lshl_add_u32 v{QRW+t}, v7, 4, v8")
    a(f"s_lshr_b32 s6, s{S_W}, 2\ns_lshl_b32 s6, s6, 14\ns_add_u32 s6, s6, 32768\ns_add_u32 s6, s6, s100\nv_add_u32 v5, s6, v5")
    a(f"s_lshr_b32 s7, s{S_W}, 1\ns_and_b32 s7, s7, 1\ns_lshl_b32 s7, s7, 3")
    for j in range(4):
        a(f"s_add_u32 s6, s7, {2*j}\nv_add_u32 v7, s6, v6\nv_xor_b32 v7, v7, v4\nv_lshl_add_u32 v{RW+j}, v7, 4, v5")
    zero_regs(a, ACC, 128)
    a(f"v_add_u32 v{VX1}, 20480, v{VL16}\ns_mul_i32 s{S_XO}, s{S_B}, 40960")
    consts(a)
    a.stamp(1)
    a(f"s_cmp_ge_u32 s{S_W}, 4\ns_cbranch_scc1 L_st_v1")
    TM = [int(x) for x in os.environ.get("TM", "").split(",") if x]
    TM2 = [int(x) for x in os.environ.get("TM2", "").split(",") if x]
    for st in TM: kv_touch(a, st)
    emit_groups(a, kv_dma_ops()[:10])
    for st in TM2: kv_touch(a, st)
    a(f"s_waitcnt vmcnt({8+len(TM)+len(TM2)})\ns_branch L_st_j1")
    a.label("L_st_v1")
    a(f"s_waitcnt vmcnt(0)")
    a.stamp(2)
    ln_compute(a)
    ln_router(a)
    a.label("L_st_j1")
    a.stamp(3)
    a("s_barrier")
    a.stamp(4)

def zero_flags(a):
    a(f"s_cmp_lt_u32 s{S_W}, 6\ns_cbranch_scc1 L_zd\nv_mov_b64 v[36:37], 0\nv_mov_b64 v[38:39], 0\nv_lshrrev_b32 v2, 3, v{L}\ns_cmp_eq_u32 s{S_W}, 6\ns_cbranch_scc1 L_z6")
    a(f"s_lshl_b32 s6, s{S_P}, 2\ns_sub_u32 s7, 56, s6\nv_mov_b32 v3, s6\nv_mov_b32 v4, s7\nv_cmp_gt_u32 vcc, 4, v2\ns_lshl_b32 s6, s{S_H}, 7\ns_add_u32 s6, s6, {WS_CTXF}\nv_cndmask_b32 v3, v4, v3, vcc\nv_add_u32 v3, v3, v2\nv_lshl_add_u32 v3, v3, 12, s6\ns_branch L_z7")
    a.label("L_z6")
    a(f"v_mov_b32 v3, {hex(WS_SIZE)}")
    def put(j): a(f"s_andn2_b32 s6, s6, 127\nv_cmp_eq_u32 vcc, {j}, v2\nv_mov_b32 v4, s6\ns_nop 0\nv_cndmask_b32 v3, v3, v4, vcc")
    flag_addr(a, "kv", 6); put(0)
    flag_addr(a, "moe", 6); put(1)
    flag_addr(a, "b", 6); put(2)
    for k in range(3):
        xf_addr(a, k, 6); put(3+k)
    a(f"s_mov_b32 s6, {hex(WS_SIZE)}\ns_cmp_eq_u32 s2, {DESIG}\ns_cmov_b32 s6, {WS_IDX}"); put(6)
    a(f"s_lshl_b32 s6, s2, 7\ns_add_u32 s6, s6, {WS_R}"); put(7)
    a(f"v_add_u32 v4, {LDS_RK-56*16}, v{VL16}\ns_mov_b32 exec_lo, 0\ns_mov_b32 exec_hi, 0x03000000\nds_read_b128 v[36:39], v4\ns_mov_b64 exec, -1\ns_waitcnt lgkmcnt(0)")
    a.label("L_z7")
    a(f"v_and_b32 v2, 7, v{L}\nv_lshl_add_u32 v3, v2, 4, v3\nbuffer_store_dwordx4 v[36:39], v3, {WS}, 0 offen sc1")
    a.label("L_zd")

def half_reduce(a, r):
    for m in ("quad_perm:[1,0,3,2]", "quad_perm:[2,3,0,1]", "row_half_mirror", "row_mirror"):
        a(f"s_nop 1\nv_add_f32_dpp v{r}, v{r}, v{r} {m} row_mask:0xf bank_mask:0xf")
    a(f"v_mov_b32 v8, v{r}\ns_nop 1\nv_permlane16_swap_b32 v{r}, v8\ns_nop 1\nv_add_f32 v{r}, v{r}, v8")

def ln_compute(a):
    X = LV
    NEG = "op_sel_hi:[1,0] neg_lo:[0,1] neg_hi:[0,1]"
    for j in range(10):
        a(f"v_lshlrev_b32 v{X+2*j}, 16, v{LX+j}\nv_and_b32 v{X+2*j+1}, 0xffff0000, v{LX+j}")
    a(f"v_pk_add_f32 v[2:3], {v(X,2)}, {v(X+2,2)}")
    for j in range(2, 10): a(f"v_pk_add_f32 v[2:3], v[2:3], {v(X+2*j,2)}")
    a("v_add_f32 v2, v2, v3")
    half_reduce(a, 2)
    a("s_mov_b32 s7, 0x3acccccd\nv_mul_f32 v2, s7, v2\nv_mov_b64 v[4:5], 0")
    for j in range(10):
        a(f"v_pk_add_f32 v[6:7], {v(X+2*j,2)}, v[2:3] {NEG}\nv_pk_fma_f32 v[4:5], v[6:7], v[6:7], v[4:5]")
    a("v_add_f32 v4, v4, v5")
    half_reduce(a, 4)
    a("v_mul_f32 v4, s7, v4")
    bf16_round(a, 2); bf16_round(a, 4)
    a("v_add_f32 v4, 0x3727c5ac, v4")
    bf16_round(a, 4)
    a("v_sqrt_f32 v4, v4\ns_nop 0")
    bf16_round(a, 4)
    a("v_rcp_f32 v6, v4\ns_nop 0\nv_fma_f32 v5, -v4, v6, 1.0\nv_fmac_f32 v6, v5, v6\nv_mov_b32 v9, 0")
    for j in range(10):
        x = X + 2*j
        a(f"v_pk_add_f32 {v(x,2)}, {v(x,2)}, v[2:3] {NEG}\nv_cvt_pk_bf16_f32 v5, v{x}, v{x+1}")
        a(f"v_lshlrev_b32 v{x}, 16, v5\nv_and_b32 v{x+1}, 0xffff0000, v5")
        a(f"v_pk_mul_f32 {v(x,2)}, {v(x,2)}, v[6:7] op_sel_hi:[1,0]\nv_cvt_pk_bf16_f32 v{LX+j}, v{x}, v{x+1}")
    a(f"v_add_u32 v10, {LDS_LN}, v63")
    for j in range(5): a(f"ds_write_b64 v10, {v(LX+2*j,2)} offset:{j*256}")
    a("s_waitcnt lgkmcnt(0)")

def ln_router(a):
    a("v_mov_b32 v2, 0")
    for j in range(10):
        a(f"v_lshlrev_b32 v4, 16, v{LX+j}\nv_lshlrev_b32 v5, 16, v{LW+j}\nv_fmac_f32 v2, v4, v5")
        a(f"v_and_b32 v4, 0xffff0000, v{LX+j}\nv_and_b32 v5, 0xffff0000, v{LW+j}\nv_fmac_f32 v2, v4, v5")
    half_reduce(a, 2)
    a("v_cvt_pk_bf16_f32 v2, v2, v2\nv_and_b32 v2, 0xffff, v2")
    a("v_bfe_i32 v3, v2, 15, 1\nv_and_b32 v3, 0x7fff, v3\nv_or_b32 v3, 0x8000, v3\nv_xor_b32 v2, v2, v3")
    a(f"s_lshl_b32 s7, s2, 3\ns_sub_u32 s6, 2047, s7\nv_sub_u32 v3, s6, v62\nv_lshl_or_b32 v2, v2, 11, v3\nv_lshlrev_b32 v3, 2, v62\nv_add_u32 v3, {LDS_RK}, v3\nds_write_b32 v3, v2\ns_waitcnt lgkmcnt(0)")

def ln_store(a, back):
    LV = 16
    a(f"s_lshr_b32 s72, s2, 1\ns_mul_i32 s72, s72, 20480\ns_and_b32 s7, s2, 1\ns_lshl_b32 s7, s7, 7\ns_add_u32 s72, s72, s7")
    for n in range(3):
        a(f"v_add_u32 v2, {256*n-256}, v0\nv_lshrrev_b32 v3, 3, v2\nv_and_b32 v4, 7, v2")
        a(f"v_mul_u32_u24 v5, 1280, v4\nv_lshl_add_u32 v5, v3, 4, v5\nv_add_u32 v5, {LDS_LN}, v5")
        a(f"ds_read_b128 {v(LV+8*n,4)}, v5\nv_lshlrev_b32 v5, 8, v3\nv_lshl_add_u32 v{6+n}, v4, 4, v5")
    a("s_waitcnt lgkmcnt(0)")
    for n in range(3):
        if n == 2: a(f"s_cmp_ge_u32 s{S_W}, 6\ns_cbranch_scc1 {back}")
        SC = "" if "lnplain" in ABL else " sc1"
        if "nolnst" not in ABL: a(f"buffer_store_dwordx4 {v(LV+8*n,4)}, v{6+n}, {WS}, s72 offen{SC}")
    a.label(back)
    zero_flags(a)

def count_atomic(a, which):
    a.srd(SRD_E, P_DBG, 256)
    a(f"v_mov_b32 v2, 1\nv_lshlrev_b32 v3, 8, v{L}\ns_and_b32 s6, s2, 31\ns_lshl_b32 s6, s6, 2\nbuffer_atomic_add v2, v3, {R(SRD_E)}, s6 offen offset:{128*which} sc1")

def flag_addr(a, kind, d):
    if kind == "kv":
        a(f"s_lshl_b32 s{d}, s{S_H}, 3\ns_add_u32 s{d}, s{d}, s{S_P}\ns_lshl_b32 s{d}, s{d}, 5\ns_add_u32 s{d}, s{d}, s{S_W}\ns_lshl_b32 s{d}, s{d}, 2\ns_add_u32 s{d}, s{d}, {WS_KVF}")
    elif kind == "ctx":
        a(f"s_lshl_b32 s{d}, s{S_B}, 5\ns_add_u32 s{d}, s{d}, s{S_H}\ns_lshl_b32 s{d}, s{d}, 7\ns_add_u32 s{d}, s{d}, {WS_CTXF}")
    elif kind == "b":
        a(f"s_lshl_b32 s{d}, s{S_P}, 5\ns_add_u32 s{d}, s{d}, s{S_H}\ns_lshl_b32 s{d}, s{d}, 5\ns_add_u32 s{d}, s{d}, s{S_W}\ns_lshl_b32 s{d}, s{d}, 2\ns_add_u32 s{d}, s{d}, {WS_BF}")
    else:
        a(f"s_lshl_b32 s{d}, s{S_E}, 5\ns_add_u32 s{d}, s{d}, s{S_W}\ns_lshl_b32 s{d}, s{d}, 2\ns_add_u32 s{d}, s{d}, {WS_MOEF}")

def tile_id(a, d):
    a(f"s_and_b32 s{d}, s{S_H}, 7\ns_lshl_b32 s7, s{S_P}, 3\ns_add_u32 s{d}, s{d}, s7")
def xslot(a, slot, d):
    tile_id(a, d)
    a(f"s_lshr_b32 s7, s{S_H}, 3\ns_add_u32 s7, s7, {slot}\ns_add_u32 s7, s7, 1\ns_and_b32 s7, s7, 3\ns_lshl_b32 s{d}, s{d}, 2\ns_add_u32 s{d}, s{d}, s7\ns_mul_i32 s{d}, s{d}, 3\ns_add_u32 s{d}, s{d}, {slot}")
def xf_addr(a, slot, d):
    xslot(a, slot, d)
    a(f"s_lshl_b32 s{d}, s{d}, 5\ns_add_u32 s{d}, s{d}, s{S_W}\ns_lshl_b32 s{d}, s{d}, 2\ns_add_u32 s{d}, s{d}, {WS_XF}")

def set_flag(a, kind, val=1):
    flag_addr(a, kind, 6)
    a(f"v_mov_b32 v2, {val}\nv_mov_b32 v3, {hex(WS_SIZE)}\nv_writelane_b32 v3, s6, 0\nbuffer_store_dword v2, v3, {WS}, 0 offen sc1")
    a.vm.issue("flag")

def phase_kv(a):
    def rdC(i, sp):
        if "kv_noC" in ABL: return
        a(f"ds_read_b128 {v(CF+4*i,4)}, v{RC+sp} offset:{i*2048}"); a.lg.issue(("C", i))
    def rdW(par, j, half, sp):
        if "kv_noW" in ABL: return
        r = WF + 16*par + 4*j + 2*half
        a(f"ds_read_b64_tr_b16 {v(r,2)}, v{RW+j} offset:{sp*8192 + half*1024}"); a.lg.issue(("W", par, j, half))
    wq = [(j, hf) for j in range(4) for hf in range(2)]
    def body(isK, lab, dma, nend, hook=None):
        def mm(i, j, par):
            if "k" in SNAKE and i & 1: j = 3 - j
            d = ACC + (i*4+j)*4
            a.wait_lg([("C", i), ("W", par, j, 0), ("W", par, j, 1)])
            if isK: a.mfma(d, WF+16*par+4*j, CF+4*i)
            else: a.mfma(d, CF+4*i, WF+16*par+4*j)
        a(".p2align 4")
        a.label(lab)
        if hook:
            a(f"s_bitcmp1_b32 {0x80 if isK else 0xd6}, s{S_ST}\ns_cbranch_scc1 {hook}"); a.label(hook + "_back")
        for i in range(8):
            for j in range(4):
                mm(i, j, 0)
                if i < 2: rdW(1, *wq[i*4+j], 1)
            rdC(i, 1)
        dma = list(dma)
        if "kv_nodma" in ABL: dma = []
        for i in range(8):
            for j in range(4):
                mm(i, j, 1)
                if i == 2 or i == 3: rdW(0, *wq[(i-2)*4+j], 0)
                if i >= 2 and dma:
                    for y in dma.pop(0): a(y)
            if i == 1:
                for r in (RC, RC+1, RW, RW+1, RW+2, RW+3): a(f"v_xor_b32 v{r}, 0x10000, v{r}")
                if isK and hook and "oldb7" not in ABL:
                    a(f"s_cmp_eq_u32 s{S_ST}, 7\ns_cbranch_scc1 L_know\ns_waitcnt vmcnt(0)")
                    a.label("L_know")
                    a("s_waitcnt lgkmcnt(0)\ns_barrier")
                elif isK: a("s_waitcnt vmcnt(0) lgkmcnt(0)\ns_barrier")
                else:
                    a(f"s_bitcmp1_b32 0x48, s{S_ST}\ns_cbranch_scc1 L_vpre")
                    a.label("L_vnow")
                    a("s_waitcnt lgkmcnt(0)\ns_barrier")
                a.lg.drain()
                a.stampd(S_ST, 24)
                rdC(0, 0); rdC(1, 0)
            elif i >= 2: rdC(i, 0)
        emit_groups(a, dma)
        a(f"s_add_u32 s{S_ST}, s{S_ST}, 1\ns_cmp_lt_u32 s{S_ST}, {nend}\ns_cbranch_scc1 {lab}")
    def first_reads():
        a.lg.drain()
        rdC(0, 0); rdC(1, 0)
        for k in range(4): rdW(0, *wq[k], 0)
        rdC(2, 0)
        for k in range(4, 8): rdW(0, *wq[k], 0)
        for i in range(3, 8): rdC(i, 0)
    a(f"s_cmp_ge_u32 s{S_W}, 4\ns_cbranch_scc1 L_kv_v")
    first_reads()
    q0 = list(a.lg.q)
    emit_groups(a, kv_dma_ops()[10:])
    a.stamp(5)
    body(True, "L_kloopA", kv_dma_ops(), 6)
    assert a.lg.q == q0, (a.lg.q, q0)
    body(True, "L_kloopB", wq_dma_ops(2), 8, hook="L_khook" if "kx2" not in ABL else None)
    a.stamp(6)
    a("s_waitcnt lgkmcnt(0)\ns_nop 7")
    for n in range(16):
        t = ACC + 4*n; d0 = ACC + 8*n; d1 = d0 + 4
        a(f"v_cvt_pk_bf16_f32 v{t}, v{d0}, v{d0+1}\nv_cvt_pk_bf16_f32 v{t+1}, v{d0+2}, v{d0+3}")
        a(f"v_cvt_pk_bf16_f32 v{t+2}, v{d1}, v{d1+1}\nv_cvt_pk_bf16_f32 v{t+3}, v{d1+2}, v{d1+3}")
    a("s_waitcnt vmcnt(16)\ns_branch L_q")
    a.label("L_hook")
    for k in (1, 2, 4, 6): a(f"s_cmp_eq_u32 s{S_ST}, {k}\ns_cbranch_scc1 L_hook{k}")
    a(f"s_cmp_lg_u32 s{S_ST}, 7\ns_cbranch_scc1 L_hook_back")
    for ks in range(3): x_load(a, ks, XEARLY[2*ks:2*ks+2])
    a("s_branch L_hook_back")
    a.label("L_hook1")
    if LNH == 1: ln_store(a, "L_lns")
    for st in TV1: kv_touch(a, st)
    a("s_branch L_hook_back")
    a.label("L_hook2")
    if LNH == 2: ln_store(a, "L_lns")
    for st in TV2: kv_touch(a, st)
    a("s_branch L_hook_back")
    a.label("L_hook4")
    WOTR = [16, 20, 24, 28, 32]
    a(f"s_cmp_lg_u32 s{S_W}, 4\ns_cbranch_scc1 L_hook4b")
    count_atomic(a, 0)
    a.label("L_hook4b")
    a(f"s_lshl_b32 s74, s76, 12\ns_add_u32 s74, s74, {LDS_SP}")
    emit_groups(a, wq_dma_ops(1))
    a("s_branch L_hook_back")
    a.label("L_hook6")
    a(f"s_cmp_lg_u32 s{S_W}, 5\ns_cbranch_scc1 L_hook_back")
    cnt_addr(a); a(cnt_load(a, 62, 0))
    a("s_branch L_hook_back")
    a.label("L_vpre")
    a(f"s_waitcnt vmcnt(0)\ns_lshl_b32 s6, s{S_ST}, 4\ns_add_u32 s6, s6, s{S_W}\ns_cmp_lg_u32 s6, 0x65\ns_cbranch_scc1 L_vnow")
    cnt_check(a, 62, 0)
    a("s_branch L_vnow")
    a.label("L_khook")
    a(f"s_cmp_lg_u32 s{S_ST}, 7\ns_cbranch_scc1 L_khook_back")
    for ks in range(3): x_load(a, ks, XEARLY[2*ks:2*ks+2])
    a("s_branch L_khook_back")
    a.label("L_kv_v")
    first_reads()
    for st in TV0: kv_touch(a, st)
    a.stamp(5)
    body(False, "L_vloop", [], 8, hook="L_hook")
    a.stamp(6)
    a("s_waitcnt lgkmcnt(0)\ns_nop 7")
    for ii in range(4):
        for j in range(4):
            t = ACC + 16*ii + 4*j; d0 = ACC + 32*ii + 4*j; d1 = d0 + 16
            a(f"v_cvt_pk_bf16_f32 v{t}, v{d0}, v{d0+1}\nv_cvt_pk_bf16_f32 v{t+1}, v{d0+2}, v{d0+3}")
            a(f"v_cvt_pk_bf16_f32 v{t+2}, v{d1}, v{d1+1}\nv_cvt_pk_bf16_f32 v{t+3}, v{d1+2}, v{d1+3}")
    a("s_waitcnt vmcnt(0)")

QF, O_, S_, FR, P_, NM, T_, L_, ET = 16, 192, 64, 96, 128, 144, 52, 56, 58
VA, VDK, VDV = 48, 49, 50
S_N, S_NL, S_C, S_THR = 62, 63, 64, 65
LA, ONES = 160, 168
OFFS = 0x41c00000
def Sreg(par, kt, qt): return S_ + 16*par + (kt*2+qt)*4
def NMreg(kt, qt): return NM + (kt*2+qt)*4
def Oreg(t, qt): return O_ + (t*2+qt)*4
def Qreg(qt, s): return QF + (qt*4+s)*4
def Preg(par, qt): return P_ + 8*par + 4*qt
def Treg(par, qt): return T_ + 2*par + qt

def xlane(a, op, r, t):
    for sw in ("v_permlane16_swap_b32", "v_permlane32_swap_b32"):
        a(f"v_mov_b32 v{t}, v{r}\ns_nop 1\n{sw} v{r}, v{t}\ns_nop 1\n{op} v{r}, v{r}, v{t}")

def st_dma(a, parts):
    if "K" in parts:
        for hf in range(2):
            a(f"s_lshl_b32 s6, s76, 13\ns_add_u32 s6, s6, s78\ns_add_u32 m0, s6, {hf*4096}\ns_add_u32 s7, s77, {hf*4096}")
            for i in range(4): a(f"buffer_load_dwordx4 v{VDK}, {WS}, s7 offen offset:{i*1024} sc1 lds")
    for hf in range(2):
        if f"V{hf}" in parts:
            a(f"s_lshl_b32 s6, s76, 12\ns_add_u32 s6, s6, s78\ns_add_u32 m0, s6, {32768+hf*16384}\ns_add_u32 s7, s77, {0x80000-16384+hf*16384}")
            for i in range(4): a(f"buffer_load_dwordx4 v{VDV}, {WS}, s7 offen offset:{i*1024} sc1 lds")

S_HK, S_ALL = 89, 90
def kv_self_touch(a):
    a(f"v_lshrrev_b32 v9, 3, v{L}\ns_cmp_lt_u32 s{S_W}, 4\ns_cselect_b32 s7, 6, 4\nv_and_b32 v10, s7, v9\nv_add_u32 v9, v9, v10\nv_lshlrev_b32 v9, 10, v9")
    a(f"v_and_b32 v10, 7, v{L}\nv_lshl_add_u32 v9, v10, 7, v9\ns_sub_u32 s6, s{S_KVD}, 32768")
    a(f"buffer_load_dword v{VDUM}, v9, {WS}, s6 offen sc1\ns_add_u32 s6, s6, 16384\nbuffer_load_dword v{VDUM}, v9, {WS}, s6 offen sc1")

def kvf_addr(a):
    a(f"s_lshl_b32 s7, s{S_H}, 10\ns_add_u32 s7, s7, {WS_KVF}\nv_lshrrev_b32 v2, 3, v{L}\nv_and_b32 v3, 7, v{L}\nv_lshlrev_b32 v3, 2, v3\nv_lshl_add_u32 v3, v2, 7, v3")
def kv_flag_wait(a, level):
    kvf_addr(a)
    poll(a, f"buffer_load_dword v2, v3, {WS}, s7 offen sc1", f"v_cmp_gt_u32 vcc, {level}, v2")

KS_POLL = int(os.environ.get("KSP", "15"))
LATE_KS = tuple(int(x) for x in os.environ.get("STKS", "0,1,2,3,16,17,18,19").split(","))
KS_FLAG = int(os.environ.get("KSF", "6"))
NEARLY = int(os.environ.get("NEARLY", "2"))
def kv_store(a, n, late=True):
    if late and "nolate" in ABL: return
    a(f"buffer_store_dwordx4 {v(ACC+4*n,4)}, v{VL16}, {WS}, s{S_KVD} offen sc1"); a.vm.issue(("st", n))
    inc = ("1024", f"s{S_INCA}", "1024", f"s{S_INCB}")[n & 3]
    a(f"s_add_u32 s{S_KVD}, s{S_KVD}, {inc}")
def q_body(a):
    sfx = ""
    a.lg.drain(); a.vm.drain()
    def rdW(t, hf, ks):
        blk = ks >> 2
        off = (0, 0, 32768, 0, 32768)[blk] + (ks & 3)*8192 + hf*1024
        a(f"ds_read_b64_tr_b16 {v(WF+4*t+2*hf,2)}, v{QRW+t} offset:{off}"); a.lg.issue(("W", t, hf))
    for t in range(8):
        rdW(t, 0, 0); rdW(t, 1, 0)
    xr = {ks: XEARLY[2*ks:2*ks+2] for ks in range(3)}
    for ks in range(3, 7):
        xr[ks] = [CF + 8*(ks-3), CF + 8*(ks-3) + 4]
        x_load(a, ks, xr[ks])
    nst = 0
    for ks in range(20):
        pend = []
        a.wait_vm(("X", ks))
        if ks % 2 == 0: a.stamp(32 + ks//2)
        barrier_here = ks == 11 or (ks == 3 and "oldb7" not in ABL)
        upd = {3: -LDS_SP, 11: 65536}.get(ks)
        st_at = (3,) if ks in LATE_KS else ()
        for t in range(8):
            for qt in range(2):
                if qt == 0: a.wait_lg([("W", t, 0), ("W", t, 1)])
                q = qt ^ (t & 1) if "q" in SNAKE else qt
                a.mfma(Oreg(t, q), WF+4*t, xr[ks][q], "0" if ks == 0 else None)
                if qt == 1 and ks < 19: pend += [(t, 0), (t, 1)]
                if barrier_here and t == 1 and qt == 1:
                    a("s_waitcnt lgkmcnt(0)\ns_barrier"); a.lg.drain()
                    while len(pend) > 2: rdW(*pend.pop(0), ks+1)
                if pend and not (barrier_here and (t, qt) < (1, 1)): rdW(*pend.pop(0), ks+1)
                if upd is not None and qt == 0:
                    a(f"v_add_u32 v{QRW+t}, s101, v{QRW+t}" if ks == 3 else f"v_xor_b32 v{QRW+t}, 0x10000, v{QRW+t}")
                if qt == 0 and t in st_at and nst < 16:
                    kv_store(a, nst); nst += 1
        while pend: rdW(*pend.pop(0), ks+1)
        if ks + 7 < 20:
            xr[ks+7] = xr[ks]; x_load(a, ks+7, xr[ks])
        if ks == KS_FLAG:
            a.wait_vm(("st", 3))
            set_flag(a, "kv", 1)
        if ks == KS_POLL:
            a.wait_vm(("X", 19))
            a(f"s_cmp_ge_u32 s{S_W}, 4\ns_cbranch_scc1 L_q_nold{sfx}")
            a.stamp(20)
            kv_flag_wait(a, 1)
            a.stamp(21)
            st_dma(a, ["K", "V1"])
            a.label(f"L_q_nold{sfx}")
    assert nst == len(LATE_KS) and 8 <= nst <= 12

def phase_q(a):
    a.label("L_q")
    a.srd(SRD_E, P_DBG, 256)
    a(f"s_lshl_b32 s6, s76, 13\nv_add_u32 v{VDK}, s6, v{VL16}\ns_lshl_b32 s6, s76, 12\nv_add_u32 v{VDV}, s6, v{VL16}")
    a(f"s_lshl_b32 s77, s{S_H}, 20\ns_add_u32 s77, s77, {WS_KV}\ns_mov_b32 s78, s100\ns_sub_u32 s101, s100, {LDS_SP}\ns_mov_b32 s{S_ALL}, 0")
    a(f"s_cmp_lt_u32 s{S_W}, 4\ns_cselect_b32 s{S_HK}, 3, 2")
    q_body(a)
    a.stamp(7)
    if "symq" not in ABL:
        a(f"s_cmp_lt_u32 s{S_W}, 4\ns_cbranch_scc1 L_qb\ns_barrier")
        a.label("L_qb")
    a("s_mov_b32 s6, 0x3e0293ee\ns_nop 7")
    for qt in range(2):
        for n in range(len(LATE_KS), 12):
            if (n & 1) == qt or 12 - len(LATE_KS) == 1: pass
        if qt == 0:
            for n in range(len(LATE_KS), 12): kv_store(a, n)
        for s_ in range(4):
            for hf in range(2):
                d = Oreg(2*s_+hf, qt)
                for r in range(4): a(f"v_mul_f32 v{d+r}, s6, v{d+r}")
                a(f"v_cvt_pk_bf16_f32 v{Qreg(qt,s_)+2*hf}, v{d}, v{d+1}\nv_cvt_pk_bf16_f32 v{Qreg(qt,s_)+2*hf+1}, v{d+2}, v{d+3}")
    zero_regs(a, O_, 64)
    zero_regs(a, NM, 16)
    zero_regs(a, LA, 8)
    for i in range(4): a(f"v_mov_b32 v{ONES+i}, 0x3f803f80")
    a(f"v_add_u32 v{VA}, s100, v{VL16}")
    a(f"s_waitcnt vmcnt({12 - len([k for k in LATE_KS if k <= KS_POLL])})")

def sm_ops(par):
    ops = []
    n = 0
    for kt in range(2):
        for qt in range(2):
            for r in range(4):
                t, tp = ET + n % 4, ET + (n-1) % 4
                e = f"v_exp_f32 v{t}, v{Sreg(par,kt,qt)+r}"
                rest = []
                if r & 1: rest.append(f"v_cvt_pk_bf16_f32 v{Preg(par,qt)+2*kt+(r>>1)}, v{tp}, v{t}")
                ops.append((e, rest)); n += 1
    return ops

def phase_attn(a):
    handlers = []
    FULLQ = [("F", i) for i in range(1, 8)]
    def rd(kind, i, k):
        off = (0 if kind == "K" else 32768) + k*8192 + i*1024
        a(f"ds_read_b128 {v(FR+4*i,4)}, v{VA} offset:{off}"); a.lg.issue(("F", i))
    def bar(wait="vmcnt(0) lgkmcnt(0)", mid=None, hot=False):
        bk = a.newlabel("ldback")
        if hot:
            a(f"s_cbranch_scc1 {bk}_c\ns_barrier")
            a.label(bk)
            handlers.append(("ld", bk))
        else:
            a(f"s_waitcnt {wait}\ns_call_b64 s[82:83], L_pend\ns_barrier")
            if mid: mid()
            a(f"s_call_b64 s[82:83], L_load")
        a.lg.drain()
        if "stampbar" in ABL: a.stampd(S_N, 44)
        a(f"s_add_i32 s{S_N}, s{S_N}, 1")
    def stage(k, qk=True, sm=True, pv=True, nxt=True, loop=False):
        pq, ps = k & 1, 1 - (k & 1)
        full = qk and pv
        pairs = []
        if pv: pairs += [("V", i) for i in range(8)]
        if qk: pairs += [("K", i) for i in range(8)]
        if pv: pairs.insert(LPOS if full else 2, ("L", None))
        NP = len(pairs)
        g0 = [[] for _ in range(NP)]; g1 = [[] for _ in range(NP)]
        if sm:
            ops = sm_ops(ps)[2:]
            g1[0] += sm_ops(ps)[1][1]
            per = 1 if full else 2
            for n, (e, rest) in enumerate(ops):
                g0[n//per].append(e); g1[n//per] += rest
            c = [Preg(ps, qt) + 2*kt + h for kt in range(2) for qt in range(2) for h in range(2)]
            X = ET + 4
            chk = [f"v_or3_b32 v{X}, v{c[0]}, v{c[1]}, v{c[2]}", f"v_or3_b32 v{X}, v{X}, v{c[3]}, v{c[4]}", f"v_or3_b32 v{X}, v{X}, v{c[5]}, v{c[6]}",
                   f"v_bitop3_b32 v{X}, v{X}, v{c[7]}, s72 bitop3:0xa8", f"v_cmp_ne_u32 vcc, s{S_THR}, v{X}"]
            if full:
                g1[4].append(chk[0]); g1[8].append(chk[1]); g1[12].append(chk[2]); g0[14] += chk[3:]
            else: g0[7] += chk
        if full:
            for n, (e, rest) in enumerate(sm_ops(pq)[:2]):
                g0[15+n].append(e)
        sc = {}
        if loop:
            sc[1] = f"s_sub_i32 s{S_C}, s{S_C}, 1"; sc[3] = f"s_cmp_gt_i32 s{S_C}, 0"; sc[5] = f"s_cselect_b32 s{S_THR}, 0, 1"
            if k == 3: sc[LPOS-1] = f"s_cmp_lg_u32 s{S_HK}, 0"
        barp = [x[0] for x in pairs].index("L") if k == 3 else None
        if barp is not None: g1[barp-2].append(f"v_xor_b32 v{VA}, 0x10000, v{VA}")
        held = []
        for n, (kind, i) in enumerate(pairs):
            for qt in range(2):
                q = qt ^ (i & 1) if ("a" in SNAKE and i is not None) else qt
                if kind == "V": a.mfma(Oreg(i, q), FR+4*i, Preg(pq, q))
                elif kind == "L": a.mfma(LA+4*q, ONES, Preg(pq, q))
                else: a.mfma(Sreg(pq, i >> 2, q), FR+4*i, Qreg(q, i & 3), None if i & 3 else NMreg(i >> 2, q))
                if qt == 0:
                    if n == barp and loop:
                        a("s_waitcnt lgkmcnt(0)"); a.lg.drain()
                    if n + 1 < NP:
                        if pairs[n+1][0] != "L": a.wait_lg(("F", pairs[n+1][1]))
                    elif nxt: a.wait_lg(("F", 0))
                    for x in g0[n]: a(x)
                else:
                    if n in sc: a(sc[n])
                    if kind == "L":
                        if n == barp:
                            bar(hot=loop)
                            for h in held: rd("V", h, 0)
                    elif kind == "V" and qk: rd("K", i, k)
                    elif nxt:
                        if barp is not None and n < barp: held.append(i)
                        else: rd("V", i, (k+1) & 3)
                    for x in g1[n]: a(x)
        if sm:
            bk = a.newlabel("back")
            if loop and k == 3:
                a(f"s_cbranch_vccz L_st0\ns_branch {bk}_h")
                handlers.append(("sm", bk, k, loop, full, "L_st0"))
            else:
                a(f"s_cbranch_vccnz {bk}_h")
                a.label(bk)
                handlers.append(("sm", bk, k, loop, full, bk))
    a(f"s_mov_b32 s72, 0x40004000\ns_mov_b32 s{S_THR}, 0\ns_sub_u32 s{S_NL}, 15, s{S_P}\ns_mov_b32 s{S_N}, -1")
    a.stamp(8)
    if "symq" in ABL: bar("lgkmcnt(0)")
    else:
        a(f"s_cmp_ge_u32 s{S_W}, 4\ns_cbranch_scc1 L_qb2\ns_barrier")
        a.label("L_qb2")
        a.lg.drain()
        if "stampbar" in ABL: a.stampd(S_N, 44)
    a.stamp(9)
    for i in range(8): rd("K", i, 0)
    a(f"s_cmp_lg_u32 s{S_B}, 0\ns_cbranch_scc1 L_nm0\ns_call_b64 s[82:83], L_mask")
    a.label("L_nm0")
    for i in range(8):
        a.wait_lg(("F", i))
        for qt in range(2):
            a.mfma(Sreg(0, i >> 2, qt), FR+4*i, Qreg(qt, i & 3), None if i & 3 else NMreg(i >> 2, qt))
        rd("K", i, 1)
    a("s_nop 7")
    for qt in range(2):
        m = ET + qt
        s0, s1 = Sreg(0, 0, qt), Sreg(0, 1, qt)
        a(f"v_max3_f32 v{m}, v{s0}, v{s0+1}, v{s0+2}\nv_max3_f32 v{m}, v{m}, v{s0+3}, v{s1}\nv_max3_f32 v{m}, v{m}, v{s1+1}, v{s1+2}\nv_max_f32 v{m}, v{m}, v{s1+3}")
        xlane(a, "v_max_f32", m, ET+2)
        a(f"v_add_f32 v{m}, {hex(OFFS)}, v{m}")
        for kt in range(2):
            for r in range(4):
                a(f"v_sub_f32 v{Sreg(0,kt,qt)+r}, v{Sreg(0,kt,qt)+r}, v{m}\nv_sub_f32 v{NMreg(kt,qt)+r}, 0, v{m}")
    a(f"s_cmp_lg_u32 s{S_B}, 1\ns_cbranch_scc1 L_nm1\ns_call_b64 s[82:83], L_mask")
    a.label("L_nm1")
    def early(par):
        o = sm_ops(par)[:2]
        a(o[0][0]); a(o[1][0])
    early(0)
    a.wait_lg(("F", 0))
    stage(1, pv=False)
    assert a.lg.q == FULLQ
    a("s_nop 7")
    early(1)
    if "symq" not in ABL: a(f"s_call_b64 s[82:83], L_load\ns_mov_b32 s{S_N}, 0")
    for n in range(12, 16): kv_store(a, n)
    a(f"s_sub_i32 s{S_C}, s{S_B}, 2")
    a.stamp(10)
    a(f"s_cmp_eq_u32 s{S_B}, 0\ns_cbranch_scc1 L_pv2\ns_cmp_eq_u32 s{S_B}, 1\ns_cbranch_scc1 L_tail2")
    a(f"s_cmp_lg_u32 s{S_B}, 2\ns_cbranch_scc1 L_st2\ns_call_b64 s[82:83], L_mask\ns_branch L_st2")
    a(".p2align 6")
    a.label("L_st0")
    for k in range(4):
        if k == 2: a.label("L_st2")
        stage(k, loop=True)
        assert a.lg.q == FULLQ, a.lg.q
    for k in range(4):
        a.label(f"L_tail{k}")
        a.lg.q = list(FULLQ)
        a(f"s_mov_b32 s{S_THR}, 0")
        stage(k, qk=False)
        assert a.lg.q == FULLQ
        a.label(f"L_pv{(k+1)&3}")
        stage((k+1) & 3, qk=False, sm=False, nxt=False)
        if k < 3: a("s_branch L_fin")
    a.label("L_fin")
    a.stamp(11)
    idx_addr(a); a(f"buffer_load_dword v{VIDX}, v3, {WS}, s72 offen sc1")
    for qt in range(2): a(f"v_rcp_f32 v{L_+qt}, v{LA+4*qt}")
    a(f"s_lshl_b32 s6, s{S_B}, 18\ns_lshl_b32 s7, s{S_H}, 12\ns_add_u32 s6, s6, s7\ns_add_u32 s6, s6, {WS_CTX}\ns_nop 4")
    n = 0
    a.vm.drain()
    for qt in range(2):
        for s_ in range(4):
            t = QF + 4*n; n += 1
            for hf in range(2):
                d = Oreg(2*s_+hf, qt)
                for r in range(4): a(f"v_mul_f32 v{d+r}, v{L_+qt}, v{d+r}")
                a(f"v_cvt_pk_bf16_f32 v{t+2*hf}, v{d}, v{d+1}\nv_cvt_pk_bf16_f32 v{t+2*hf+1}, v{d+2}, v{d+3}")
            a(f"buffer_store_dwordx4 {v(t,4)}, v{VL16}, {WS}, s6 offen offset:{s_*1024} sc1"); a.vm.issue("st")
        if qt == 0: a("s_add_u32 s6, s6, 0x20000")
    a.stamp(12)
    def flag_now():
        a("s_waitcnt vmcnt(0)")
        set_flag(a, "ctx")
    a(f"s_cmp_gt_i32 s{S_N}, s{S_NL}\ns_cbranch_scc1 L_pre")
    bar("vmcnt(8)", flag_now)
    a(f"s_lshl_b32 s6, s{S_W}, 8\ns_add_u32 s6, s6, s2\ns_cmp_eq_u32 s6, {DESIG}\ns_cbranch_scc1 L_top")
    a.label("L_idle")
    a(f"s_sub_i32 s6, s{S_NL}, 5\ns_cmp_gt_i32 s{S_N}, s6\ns_cbranch_scc1 L_pre")
    bar()
    a(f"s_cmp_lt_u32 s{S_E}, 54\ns_cbranch_scc1 L_moe\ns_branch L_idle")
    a.label("L_pre")
    a(f"s_cmp_lt_u32 s{S_W}, 4\ns_cbranch_scc1 L_pre1")
    a.stamp(19)
    a("s_barrier")
    a(f"s_lshl_b32 s7, s76, 13\ns_add_u32 s7, s7, 0x10000\nv_add_u32 v3, s7, v{VL16}\nv_add_u32 v2, 0x10000, v3\ns_lshl_b32 s7, s76, 12\ns_add_u32 s7, s7, 0x10000\nv_add_u32 v12, s7, v{VL16}")
    def wrd(fs):
        for f in fs:
            r, off = (2, f*1024) if f < 8 else (3, (f-8)*1024) if f < 16 else (12, 49152+(f-16)*1024)
            a(f"ds_read_b128 {v(WR+4*f,4)}, v{r} offset:{off}")
    wrd(range(12))
    out_setup(a, 1)
    out_cx(a)
    wrd(range(12, 20))
    NWF = int(os.environ.get("NWF", "1"))
    for i in range(4, 4+NWF): wo_load(a, i)
    a(f"s_waitcnt vmcnt({5*NWF})")
    set_flag(a, "ctx")
    for i in range(4+NWF, 8): wo_load(a, i)
    a("s_waitcnt lgkmcnt(0)\ns_barrier")
    a("s_branch L_adone")
    a.label("L_pre1")
    cnt_addr(a); poll(a, cnt_load(a, 2, 1), "v_cmp_gt_u32 vcc, 4, v2", sleep=8)
    a(f"s_mov_b32 s{S_ALL}, 1")
    out_setup(a, 0)
    if "xnt" in ABL:
        a.srd(SRD_A, P_X, 2048*640*2)
        a(f"v_min_u32 v2, 39, v{L}\nv_mul_u32_u24 v3, 52, v2\nv_lshrrev_b32 v3, 8, v3\nv_mul_u32_u24 v4, 5, v3\nv_sub_u32 v2, v2, v4\nv_mul_u32_u24 v3, 1280, v3\nv_lshl_add_u32 v2, v2, 6, v3")
        a(f"s_cmp_lt_u32 s{S_W}, 2\ns_cselect_b32 s6, s{S_OB}, s{S_OL}\ns_lshl_b32 s6, s6, 1\ns_and_b32 s7, s{S_W}, 1\ns_add_u32 s6, s6, s7\ns_mul_i32 s6, s6, 10240\ns_and_b32 s7, s{S_H}, 3\ns_mul_i32 s7, s7, 320\ns_add_u32 s6, s6, s7")
        a(f"buffer_load_dword v{VDUM}, v2, {R(SRD_A)}, s6 offen")
    for j in range(5):
        if j == 3: y_look(a)
        if j == 4: y_try(a)
        if j < 4:
            for i in (2*j, 2*j+1): wo_load(a, i)
        if j == 4:
            ctxf_addr(a, S_OB); a(f"buffer_load_dword v50, v3, {WS}, s72 offen sc1")

        a(f"s_cmp_gt_i32 s{S_N}, s{S_NL}\ns_cbranch_scc1 L_e{j+2}")
        if j < 4:
            a(f"s_cmp_eq_i32 s{S_N}, s{S_NL}\ns_cbranch_scc1 L_lw{j}\ns_waitcnt vmcnt({(11, 10, 10, 10)[j]})")
            a.label(f"L_lw{j}")
        bar(f"vmcnt({20 if 'nocode2' in ABL else 21})")
        a.label(f"L_e{j+2}")
    a.stamp(22)
    moe_finish(a)
    out_cx(a)
    a("s_waitcnt vmcnt(0)\nv_cmp_ne_u32 vcc, 1, v50\ns_cbranch_vccz L_ce")
    ctxf_addr(a, S_OB)
    poll(a, f"buffer_load_dword v2, v3, {WS}, s72 offen sc1", "v_cmp_ne_u32 vcc, 1, v2", sleep=4)
    a.label("L_ce")
    for r in range(NPC):
        for x in ctx_dma(r) + ctx_dma(r, 16384): a(x)
    y_is(a, "L_yg")
    set_flag(a, "b")
    a("s_waitcnt vmcnt(1)\ns_branch L_ye")
    a.label("L_yg")
    a("s_waitcnt vmcnt(0)")
    a.label("L_ye")
    a.stamp(23)
    a("s_setprio 0")
    a.stamp(19)
    a("s_barrier")
    for r in range(NPC, 2):
        for x in ctx_dma(r) + ctx_dma(r, 16384): a(x)
    a.stamp(15)
    a("s_branch L_adone")
    y_loads(a)
    moe_steps(a, bar)
    top8(a, bar)
    for h in handlers:
        if h[0] == "ld":
            a.label(h[1] + "_c"); a(f"s_waitcnt vmcnt(0) lgkmcnt(0)\ns_call_b64 s[82:83], L_pend\ns_barrier\ns_call_b64 s[82:83], L_load\ns_branch {h[1]}")
        else:
            _, bk, k, loop, full, back = h
            a.label(bk + "_h")
            a(f"v_cmp_ne_u32 vcc, 0, v{ET+4}\ns_cbranch_vccz {bk}_n\ns_call_b64 s[80:81], L_rare{1-(k&1)}")
            if full:
                o = sm_ops(k & 1)[:2]
                a(o[0][0]); a(o[1][0])
            a.label(bk + "_n")
            if loop:
                a(f"s_cmp_lt_i32 s{S_C}, 0\ns_cbranch_scc1 L_tail{(k+1)&3}\ns_cmp_gt_i32 s{S_C}, 0\ns_cbranch_scc1 {back}\ns_call_b64 s[82:83], L_mask")
            a(f"s_branch {back}")
    a.label("L_load")
    a(f"s_bitcmp1_b32 s{S_HK}, 0\ns_cbranch_scc0 L_load_r")
    a(f"s_add_u32 s77, s77, 32768\ns_xor_b32 s78, s78, 0x10000\ns_add_i32 s73, s{S_N}, 1\ns_cmp_gt_i32 s73, s{S_NL}\ns_cbranch_scc1 L_load_r")
    if "at_nodma" not in ABL:
        a(f"s_cmp_eq_i32 s73, s{S_NL}\ns_cbranch_scc1 L_load_v\ns_cmp_lg_i32 s73, 3\ns_cbranch_scc1 L_load_k")
        a("v_cmp_gt_u32 vcc, 2, v12\ns_cbranch_vccz L_load_k")
        kv_flag_wait(a, 2)
        a.label("L_load_k")
        st_dma(a, ["K", "V1"])
        a.label("L_load_v")
        st_dma(a, ["V0"])
    a(f"s_cmp_eq_i32 s73, s{S_NL}\ns_cbranch_scc1 L_xa\ns_cmp_lg_i32 s73, 2\ns_cbranch_scc1 L_nolook")
    kvf_addr(a); a(f"buffer_load_dword v12, v3, {WS}, s7 offen sc1")
    a.label("L_nolook")
    a(f"s_bitcmp1_b32 {WOTM}, s{S_P}\ns_cbranch_scc0 L_wb\ns_sub_i32 s6, s{S_N}, {WOTN}\ns_cmp_gt_u32 s6, 4\ns_cbranch_scc0 L_wsel")
    a.label("L_wb")
    a(f"s_cmp_lt_u32 s{S_P}, 4\ns_cbranch_scc1 L_load_r")
    a(f"s_sub_i32 s79, s73, 1\ns_cmp_lt_u32 s79, 2\ns_cbranch_scc1 L_x3")
    a.label("L_load_r")
    a("s_setpc_b64 s[82:83]")
    a.label("L_pend")
    a(f"s_bitcmp1_b32 s{S_HK}, 1\ns_cbranch_scc0 L_load_a\ns_cmp_lt_i32 s{S_N}, 0\ns_cbranch_scc1 L_load_a")
    set_flag(a, "kv", 2)
    a(f"s_and_b32 s{S_HK}, s{S_HK}, 1")
    a.label("L_load_a")
    a("s_setpc_b64 s[82:83]")
    def wo_dma(fs, m0base, m0off):
        for i, f in enumerate(fs):
            a(f"s_add_u32 m0, {m0base}, {m0off + i*1024}\ns_add_u32 s7, s{84 + f%5}, {(f//5)*40960}\nbuffer_load_dwordx4 v{VL16}, {WS}, s7 offen sc1 lds")
    WOTR = [172, 176, 180, 184, 188]
    a.label("L_wsel")
    a(f"s_bfm_b32 s7, s{S_P}, 0\ns_and_b32 s7, s7, {WOTM}\ns_bcnt1_i32_b32 s7, s7\ns_lshl_b32 s7, s7, 5\ns_and_b32 s91, s2, 31\ns_add_u32 s91, s91, s7\ns_lshl_b32 s91, s91, 1\ns_lshr_b32 s7, s6, 1\ns_add_u32 s91, s91, s7\ns_cmp_eq_u32 s6, 4\ns_cbranch_scc1 L_w2\ns_bitcmp1_b32 s6, 0\ns_cbranch_scc1 L_w1")
    a.label("L_w0")
    a.srd(SRD_E, P_WO, 4096*640*2)
    a(f"s_lshr_b32 s75, s91, 1\ns_mul_i32 s75, s75, {32*1280}\ns_and_b32 s6, s91, 1\ns_mul_i32 s6, s6, 640\ns_add_u32 s75, s75, s6\ns_movk_i32 s7, 1639")
    a(f"s_mul_i32 s74, s76, 5120\ns_add_u32 s74, s74, {LDS_WOT}\ns_mul_i32 s6, s76, 320\nv_add_u32 v9, s6, v{L}")
    for n in range(5):
        a(f"v_add_u32 v2, {n*64}, v9\nv_mul_lo_u32 v3, v2, s7\nv_lshrrev_b32 v3, 16, v3\nv_mul_u32_u24 v4, 40, v3\nv_sub_u32 v4, v2, v4")
        a(f"v_mul_u32_u24 v3, 1280, v3\nv_lshl_add_u32 v3, v4, 4, v3\ns_add_u32 m0, s74, {n*1024}\ns_nop 0")
        a(f"buffer_load_dwordx4 v3, {R(SRD_E)}, s75 offen{NT} lds")
    a("s_branch L_wb")
    a.label("L_w1")
    a(f"v_and_b32 v2, 15, v{L}\nv_lshrrev_b32 v3, 4, v{L}\nv_lshrrev_b32 v4, 2, v2\nv_lshl_add_u32 v4, v3, 2, v4\nv_mul_u32_u24 v4, 640, v4")
    a(f"v_and_b32 v2, 3, v2\nv_lshl_add_u32 v4, v2, 3, v4\ns_mul_i32 s6, s76, 160\ns_add_u32 s6, s6, {LDS_WOT}\nv_add_u32 v4, s6, v4")
    a(f"s_mul_i32 s6, s91, 20480\ns_mul_i32 s7, s76, 5120\ns_add_u32 s6, s6, s7\ns_add_u32 s6, s6, {WS_WOF}\ns_add_u32 s7, s6, 4096")
    for n in range(5):
        d = WOTR[n]
        a(f"ds_read_b64_tr_b16 v[{d}:{d+1}], v4 offset:{n*32}\nds_read_b64_tr_b16 v[{d+2}:{d+3}], v4 offset:{n*32+10240}")
    a("s_waitcnt lgkmcnt(0)")
    for n in range(5):
        a(f"buffer_store_dwordx4 {v(WOTR[n],4)}, v{VL16}, {WS}, s{6 if n<4 else 7} offen offset:{(n&3)*1024} sc1")
    a("s_branch L_wb")
    a.label("L_w2")
    a(f"s_cmp_lg_u32 s{S_W}, 0\ns_cbranch_scc1 L_wb")
    count_atomic(a, 1)
    a("s_branch L_wb")
    a.label("L_xa")
    a(f"s_cmp_lg_u32 s{S_ALL}, 0\ns_cbranch_scc1 L_xa1")
    cnt_addr(a); poll(a, cnt_load(a, 2, 1), "v_cmp_gt_u32 vcc, 4, v2", sleep=8)
    a.label("L_xa1")
    if "nocode2" not in ABL:
        a("s_getpc_b64 s[80:81]")
        a.label("L_pc2")
        a(f"s_sub_u32 s80, s80, L_pc2-L_fin\ns_subb_u32 s81, s81, 0\ns_and_b32 s6, s{S_H}, 1\ns_lshl_b32 s6, s6, 14\nv_lshl_add_u32 v3, v0, 6, s6")
        a(f"v_min_u32 v3, L_exit-L_fin, v3\nglobal_load_dword v{VDUM}, v3, s[80:81]")
    if "xt" in ABL:
        a.srd(SRD_A, P_X, 2048*640*2)
        a(f"v_lshrrev_b32 v2, 2, v{L}\nv_mul_u32_u24 v2, 1280, v2\nv_and_b32 v3, 3, v{L}\nv_lshl_add_u32 v2, v3, 6, v2")
        a(f"s_lshl_b32 s6, s{S_H}, 2\ns_add_u32 s6, s6, s{S_W}\ns_mul_i32 s73, s6, 20480\ns_mul_i32 s7, s{S_P}, 160\ns_andn2_b32 s7, s7, 63\ns_add_u32 s7, s7, s73")
        a(f"buffer_load_dword v{VDUM}, v2, {R(SRD_A)}, s7 offen\nv_min_u32 v2, 39, v{L}\nv_lshlrev_b32 v2, 6, v2\ns_mul_i32 s7, s{S_P}, 2560\ns_add_u32 s7, s7, s73")
        a(f"buffer_load_dword v{VDUM}, v2, {WS}, s7 offen sc1")
    wo_base(a, 74, 1)
    for m in range(4): a(f"s_add_u32 s6, s76, {m}\ns_and_b32 s6, s6, 3\ns_lshl_b32 s6, s6, 10\ns_add_u32 s{84+m}, s6, s74")
    a("s_add_u32 s88, s74, 4096")
    a(f"s_lshl_b32 s73, s{S_W}, 13\ns_add_u32 s75, s73, s78")
    wo_dma(range(8), "s73", LDS_SP); wo_dma(range(8, 16), "s75", 0)
    a(f"s_lshl_b32 s75, s{S_W}, 12\ns_add_u32 s75, s75, s78")
    wo_dma(range(16, 20), "s75", 49152)
    a("s_setpc_b64 s[82:83]")
    a.label("L_x3")
    if "nomoetouch" not in ABL:
        a.srd(SRD_A, P_WG, 640*1728*2)
        a(f"s_cmp_eq_u32 s{S_W}, 3\ns_cbranch_scc1 L_load_r")
        a(f"s_cmp_eq_u32 s{S_W}, 1\ns_cselect_b32 s{SRD_A}, s{P_WU}, s{SRD_A}\ns_cselect_b32 s{SRD_A+1}, s{P_WU+1}, s{SRD_A+1}")
        a(f"s_cmp_eq_u32 s{S_W}, 2\ns_cselect_b32 s{SRD_A}, s{P_WD}, s{SRD_A}\ns_cselect_b32 s{SRD_A+1}, s{P_WD+1}, s{SRD_A+1}")
        a(f"s_mov_b32 s73, 3456\ns_cmov_b32 s73, 256\ns_mov_b32 s75, 256\ns_cmov_b32 s75, {4*40960}")
        a(f"s_lshr_b32 s6, s2, 3\ns_sub_u32 s6, s6, 16\ns_mul_i32 s6, s6, 40\nv_lshrrev_b32 v2, 2, v{L}\nv_add_u32 v2, s6, v2\nv_mul_lo_u32 v2, v2, s73\nv_and_b32 v3, 3, v{L}\nv_lshl_add_u32 v2, v3, 6, v2")
        a(f"s_xor_b32 s79, s79, 1\ns_lshl_b32 s6, s79, 3\ns_lshr_b32 s7, s{S_H}, 2\ns_add_u32 s6, s6, s7\ns_mul_i32 s6, s6, s75")
        a(f"v_mov_b32 v3, {hex(WS_SIZE)}\nv_cmp_gt_u32 vcc, 32, v{L}\ns_lshl_b32 s73, s73, 4\ns_nop 0\nv_cndmask_b32 v3, v3, v2, vcc")
        a(f"buffer_load_dword v{VDUM}, v2, {R(SRD_A)}, s6 offen\ns_add_u32 s7, s6, s73\nbuffer_load_dword v{VDUM}, v2, {R(SRD_A)}, s7 offen")
        a(f"s_add_u32 s7, s7, s73\nbuffer_load_dword v{VDUM}, v3, {R(SRD_A)}, s7 offen")
    a("s_setpc_b64 s[82:83]")
    a.label("L_mask")
    a(f"v_and_b32 v2, 15, v{L}\nv_lshrrev_b32 v3, 4, v{L}\nv_lshlrev_b32 v3, 2, v3\nv_sub_u32 v2, v2, v3\nv_mov_b32 v3, 0xff800000")
    for r in range(4):
        a(f"v_cmp_gt_i32 vcc, {r}, v2\nv_mov_b32 v{NMreg(1,0)+r}, v3\ns_nop 0")
        a(f"v_cndmask_b32 v{NMreg(0,0)+r}, v{NMreg(0,0)+r}, v3, vcc\nv_cndmask_b32 v{NMreg(1,1)+r}, v{NMreg(1,1)+r}, v3, vcc")
    a("s_nop 1\ns_setpc_b64 s[82:83]")
    for par in range(2):
        a.label(f"L_rare{par}")
        a("s_nop 15")
        for qt in range(2):
            m = ET + 4
            s0, s1 = Sreg(par, 0, qt), Sreg(par, 1, qt)
            a(f"v_max_f32 v{m}, v{s0}, v{s0+1}\nv_max3_f32 v{m}, v{m}, v{s0+2}, v{s0+3}\nv_max3_f32 v{m}, v{m}, v{s1}, v{s1+1}\nv_max3_f32 v{m}, v{m}, v{s1+2}, v{s1+3}")
            xlane(a, "v_max_f32", m, ET)
            a(f"v_add_f32 v{m}, {hex(OFFS)}, v{m}\nv_max_f32 v{m}, 0, v{m}")
            a(f"v_exp_f32 v{ET}, -v{m}")
            for kt in range(2):
                for r in range(4):
                    for reg in (Sreg(0,kt,qt), Sreg(1,kt,qt), NMreg(kt,qt)):
                        a(f"v_sub_f32 v{reg+r}, v{reg+r}, v{m}")
            for r in range(4): a(f"v_mul_f32 v{LA+4*qt+r}, v{ET}, v{LA+4*qt+r}")
            for t in range(8):
                for r in range(4): a(f"v_mul_f32 v{Oreg(t,qt)+r}, v{ET}, v{Oreg(t,qt)+r}")
        for e, rest in sm_ops(par):
            a(e); a("s_nop 0")
            for x in rest: a(x)
        a("s_nop 1\ns_setpc_b64 s[80:81]")
    a.label("L_adone")
    a.stamp(13)

def top8(a, bar):
    K = 64
    a.label("L_top")
    a(f"s_mov_b32 s6, {hex(WS_R)}\nv_lshrrev_b32 v2, 1, v{L}\nv_and_b32 v3, 1, v{L}\nv_lshlrev_b32 v3, 4, v3\nv_lshl_add_u32 v2, v2, 7, v3")
    for i in range(8): a(f"buffer_load_dwordx4 {v(K+4*i,4)}, v2, {WS}, s6 offen sc1\ns_add_u32 s6, s6, 4096")
    a("s_waitcnt vmcnt(0)\nv_mov_b32 v24, 0\ns_mov_b32 s7, 0\ns_mov_b32 s84, 0")
    a.label("L_top_l")
    a(f"v_max3_u32 v4, v{K}, v{K+1}, v{K+2}\nv_max3_u32 v5, v{K+3}, v{K+4}, v{K+5}")
    for i in range(6, 30, 4): a(f"v_max3_u32 v4, v4, v{K+i}, v{K+i+1}\nv_max3_u32 v5, v5, v{K+i+2}, v{K+i+3}")
    a(f"v_max3_u32 v4, v4, v{K+30}, v{K+31}\nv_max_u32 v4, v4, v5")
    a.wave_reduce("v_max_u32", 4)
    a("v_readlane_b32 s6, v4, 63\ns_mov_b32 m0, s7\ns_nop 3\ns_add_u32 s84, s84, s6\nv_writelane_b32 v24, s84, m0")
    for i in range(32): a(f"v_subrev_u32 v{K+i}, s6, v{K+i}")
    a("s_add_u32 s7, s7, 1\ns_cmp_lt_u32 s7, 8\ns_cbranch_scc1 L_top_l")
    a(f"v_and_b32 v2, 7, v{L}\nv_lshlrev_b32 v2, 2, v2\nds_bpermute_b32 v4, v2, v24\ns_waitcnt lgkmcnt(0)\nv_and_b32 v4, 0x7ff, v4\nv_sub_u32 v4, 0x7ff, v4")
    a(f"v_lshrrev_b32 v5, 4, v4\nv_mul_u32_u24 v5, 20480, v5\nv_and_b32 v4, 15, v4\nv_lshl_add_u32 v5, v4, 4, v5\nv_lshrrev_b32 v7, 4, v{L}\nv_lshl_add_u32 v5, v7, 8, v5")
    a(f"v_mov_b32 v6, {hex(WS_SIZE)}\nv_and_b32 v2, 8, v{L}\nv_cmp_eq_u32 vcc, 0, v2\ns_mov_b32 s6, 0\ns_nop 0\nv_cndmask_b32 v5, v6, v5, vcc")
    for k in range(20):
        if k and k % 4 == 0: a("s_add_u32 s6, s6, 4096")
        a(f"buffer_load_dwordx4 {v(K+4*k,4)}, v5, {WS}, s6 offen offset:{(k&3)*1024} sc1")
    def put():
        a(f"s_waitcnt vmcnt(0)\ns_mov_b32 s6, {hex(WS_XS)}")
        for k in range(20):
            if k and k % 4 == 0: a("s_add_u32 s6, s6, 4096")
            a(f"buffer_store_dwordx4 {v(K+4*k,4)}, v{VL16}, {WS}, s6 offen offset:{(k&3)*1024} sc1")
    bar("vmcnt(20)", put)
    a("s_waitcnt vmcnt(16)")
    a(f"v_or_b32 v24, 0x80000000, v24\nv_lshlrev_b32 v5, 2, v{L}\nv_mov_b32 v6, {hex(WS_SIZE)}\nv_cmp_gt_u32 vcc, 8, v{L}\ns_mov_b32 s6, {hex(WS_IDX)}\ns_nop 0\nv_cndmask_b32 v5, v6, v5, vcc")
    a(f"buffer_store_dword v24, v5, {WS}, s6 offen sc1\ns_branch L_idle")

OACC = 176
M_WD, M_PART = 81920, 122880
VIDX = 51
def idx_addr(a):
    a(f"v_and_b32 v3, 7, v{L}\nv_lshlrev_b32 v3, 2, v3\ns_mov_b32 s72, {hex(WS_IDX)}")
def ctxf_addr(a, own, both=True):
    a(f"v_and_b32 v3, 1, v{L}\nv_lshlrev_b32 v3, 12, v3")
    if both: a(f"v_and_b32 v2, 2, v{L}\nv_lshl_add_u32 v3, v2, 8, v3")
    a(f"s_lshr_b32 s72, s{own}, 2\ns_lshl_b32 s72, s72, 6\ns_andn2_b32 s6, s{S_H}, 7\ns_add_u32 s72, s72, s6\ns_add_u32 s72, s72, s{S_W}\ns_lshl_b32 s72, s72, 7\ns_add_u32 s72, s72, {WS_CTXF}")
def idx_poll(a, sfx, wait="s_waitcnt vmcnt(40)"):
    a(wait)
    a(f"v_cmp_le_i32 vcc, 0, v{VIDX}\ns_cbranch_vccz L_idx_ok{sfx}")
    idx_addr(a)
    poll(a, f"buffer_load_dword v{VIDX}, v3, {WS}, s72 offen sc1", f"v_cmp_le_i32 vcc, 0, v{VIDX}")
    a.label(f"L_idx_ok{sfx}")

def moe_steps(a, bar):
    XS, FRG, GA, WDR, WD2, PR, YO = 64, 104, 24, 32, 240, 184, 216
    VG, VT, VD, VTD, VY, VXS = 16, 17, 18, 19, 20, 21
    S_G, S_WIN, S_D = 84, 85, 86
    a.label("L_moe")
    a(f"s_sub_u32 s6, s{S_N}, s{S_P}\ns_cmp_lg_u32 s6, 3\ns_cbranch_scc1 L_idle")
    def srds():
        a.srd(SRD_A, P_WG, 640*1728*2)
        a(f"s_cmp_ge_u32 s{S_W}, 2\ns_cselect_b32 s{SRD_A}, s{P_WU}, s{SRD_A}\ns_cselect_b32 s{SRD_A+1}, s{P_WU+1}, s{SRD_A+1}")
        a.srd(SRD_B, P_WD, 1728*640*2)
    def dma_g(nk):
        for n in range(2*nk):
            a(f"s_add_u32 m0, s{S_WIN}, {n*1024}\ns_nop 0\nbuffer_load_dwordx4 v{VG}, {R(SRD_A)}, s{S_G} offen lds\ns_add_u32 s{S_G}, s{S_G}, {16*3456}")
    def dma_d():
        for n in range(4):
            a(f"s_add_u32 m0, s{S_WIN}, {4096+n*1024}\ns_add_u32 s6, s{S_D}, {n*8*1280}\nbuffer_load_dwordx4 v{VD}, {R(SRD_B)}, s6 offen lds")
        a(f"s_add_u32 s{S_D}, s{S_D}, 512")
    def rd_g(k0, nk):
        for k in range(nk):
            for ft in range(2):
                d = FRG + ((k0+k)*2+ft)*4
                a(f"ds_read_b64_tr_b16 {v(d,2)}, v{VT} offset:{k*2048+ft*32}\nds_read_b64_tr_b16 {v(d+2,2)}, v{VT} offset:{k*2048+ft*32+256}")
            if k == 1: a("s_waitcnt lgkmcnt(0)")
    def xs(k0, nk):
        for k in range(k0, k0+nk): a(f"buffer_load_dwordx4 {v(XS+4*k,4)}, v{VL16}, {WS}, s88 offen sc1\ns_add_u32 s88, s88, 1024")
    def rd_d(base):
        for m in range(4):
            a(f"ds_read_b64_tr_b16 {v(base+4*m,2)}, v{VTD} offset:{m*32}\nds_read_b64_tr_b16 {v(base+2+4*m,2)}, v{VTD} offset:{m*32+16*128}")
    def down(base, goff):
        for m in range(4): a.mfma(YO+4*m, base+4*m, GA, "0")
        a("s_nop 7")
        for m in range(4): a(f"buffer_store_dwordx4 {v(YO+4*m,4)}, v{VY}, {WS}, s87 offen offset:{goff*1024+m*64} sc1")
        a("s_nop 1")
    srds()
    a(f"v_lshrrev_b32 v3, 2, v{L}\nv_mul_u32_u24 v3, 3456, v3\nv_and_b32 v4, 3, v{L}\nv_lshl_add_u32 v{VG}, v4, 4, v3")
    a(f"v_lshrrev_b32 v3, 3, v{L}\nv_mul_u32_u24 v3, 1280, v3\nv_and_b32 v4, 7, v{L}\nv_lshl_add_u32 v{VD}, v4, 4, v3")
    a(f"s_and_b32 s7, s{S_W}, 1\ns_mul_i32 s{S_G}, s7, {320*3456}\ns_lshl_b32 s6, s{S_E}, 6\ns_add_u32 s{S_G}, s{S_G}, s6")
    a(f"s_lshl_b32 s{S_WIN}, s{S_W}, 13\ns_add_u32 s{S_WIN}, s{S_WIN}, {LDS_SP}")
    a(f"s_mul_i32 s{S_D}, s{S_E}, 40960\ns_lshl_b32 s6, s{S_W}, 7\ns_add_u32 s{S_D}, s{S_D}, s6")
    dma_g(4)
    a(f"v_lshrrev_b32 v7, 4, v{L}\nv_and_b32 v2, 15, v{L}\nv_lshrrev_b32 v3, 2, v2\nv_lshl_add_u32 v8, v7, 3, v3\nv_lshlrev_b32 v8, 6, v8\nv_and_b32 v4, 3, v2\nv_lshl_add_u32 v8, v4, 3, v8\nv_add_u32 v{VT}, s{S_WIN}, v8")
    a(f"v_lshl_add_u32 v8, v7, 2, v3\nv_lshlrev_b32 v8, 7, v8\nv_lshl_add_u32 v8, v4, 3, v8\ns_add_u32 s6, s{S_WIN}, 4096\nv_add_u32 v{VTD}, s6, v8")
    a(f"v_mul_u32_u24 v3, 2560, v2\nv_lshl_add_u32 v3, v7, 4, v3\nv_mov_b32 v4, {hex(WS_SIZE)}\nv_cmp_gt_u32 vcc, 8, v2")
    a(f"s_mul_i32 s87, s{S_E}, 20480\ns_lshl_b32 s7, s{S_W}, 8\ns_add_u32 s87, s87, s7\ns_add_u32 s87, s87, {WS_YP}\nv_cndmask_b32 v{VY}, v4, v3, vcc")
    a(f"s_and_b32 s7, s{S_W}, 1\ns_mul_i32 s88, s7, 10240\ns_add_u32 s88, s88, {WS_XS}")
    W0 = "vmcnt(0) lgkmcnt(0)"
    def m1():
        rd_g(0, 4); a("s_waitcnt lgkmcnt(0)"); dma_g(4)
    bar(W0, m1)
    idx_addr(a); a(f"buffer_load_dword v{VIDX}, v3, {WS}, s72 offen sc1")
    def m2():
        rd_g(4, 4); a("s_waitcnt lgkmcnt(0)"); dma_g(2); dma_d()
    bar(W0, m2)
    idx_poll(a, "m", "")
    xs(0, 10)
    def m3():
        rd_g(8, 2); rd_d(WDR); a("s_waitcnt lgkmcnt(0)"); dma_d()
    bar("vmcnt(10) lgkmcnt(0)", m3)
    a("s_waitcnt vmcnt(20)")
    for k in range(10):
        for ft in range(2): a.mfma(GA+4*ft, FRG+(k*2+ft)*4, XS+4*k, "0" if k == 0 else None)
    a(f"v_add_u32 v10, s{S_WIN}, v{VL16}\ns_nop 7\nds_write_b128 v10, {v(GA,4)}\nds_write_b128 v10, {v(GA+4,4)} offset:1024")
    def m4():
        rd_d(WD2)
        a(f"v_add_u32 v10, {LDS_SP}, v{VL16}\ns_waitcnt lgkmcnt(0)")
        for w in range(4):
            for ft in range(2): a(f"ds_read_b128 {v(PR+(w*2+ft)*4,4)}, v10 offset:{w*8192+ft*1024}")
        a(f"s_cmp_ge_u32 s{S_W}, 2\ns_cbranch_scc1 L_moe4b")
        dma_d()
        a.label("L_moe4b")
    bar(W0, m4)
    a("s_waitcnt lgkmcnt(0)")
    a("s_mov_b32 s6, 0xbfb8aa3b")
    def rnd2(r): a(f"v_cvt_pk_bf16_f32 v{r+1}, v{r}, v{r+1}\nv_lshlrev_b32 v{r}, 16, v{r+1}\nv_and_b32 v{r+1}, 0xffff0000, v{r+1}")
    for i in range(0, 8, 2):
        g0, u0 = PR + i, PR + 16 + i
        for q in range(2): a(f"v_add_f32 v{g0+q}, v{g0+q}, v{g0+8+q}\nv_add_f32 v{u0+q}, v{u0+q}, v{u0+8+q}")
        rnd2(g0); rnd2(u0)
        a(f"v_mul_f32 v2, s6, v{g0}\nv_mul_f32 v3, s6, v{g0+1}\nv_exp_f32 v2, v2\nv_exp_f32 v3, v3\nv_add_f32 v2, 1.0, v2\nv_add_f32 v3, 1.0, v3".replace("v_exp_f32 v3, v3\n", "v_exp_f32 v3, v3\ns_nop 0\n"))
        a(f"v_rcp_f32 v2, v2\nv_rcp_f32 v3, v3\ns_nop 0\nv_mul_f32 v{g0}, v{g0}, v2\nv_mul_f32 v{g0+1}, v{g0+1}, v3")
        rnd2(g0)
        a(f"v_mul_f32 v{g0}, v{g0}, v{u0}\nv_mul_f32 v{g0+1}, v{g0+1}, v{u0+1}\nv_cvt_pk_bf16_f32 v{GA+i//2}, v{g0}, v{g0+1}")
    a("s_nop 1")
    down(WDR, 0)
    bar("vmcnt(4) lgkmcnt(0)")
    down(WD2, 1)
    a(f"s_cmp_ge_u32 s{S_W}, 2\ns_cbranch_scc1 L_moe5b")
    rd_d(WDR); a("s_waitcnt lgkmcnt(0)"); down(WDR, 2)
    a.label("L_moe5b")
    bar("vmcnt(4) lgkmcnt(0)", lambda: (a("s_waitcnt vmcnt(0)"), set_flag(a, "moe")))
    a("s_branch L_idle")

YS = [16+4*i for i in range(7)] + [56+4*i for i in range(10)] + [4]
def y_is(a, skip): a(f"s_lshr_b32 s7, s{S_W}, 1\ns_lshl_b32 s7, s7, 4\ns_add_u32 s6, s{S_P}, s7\ns_cmp_lg_u32 s6, {YP}\ns_cbranch_scc1 {skip}")
def y_faddr(a): a(f"v_min_u32 v3, 53, v{L}\nv_lshlrev_b32 v3, 7, v3\ns_mov_b32 s72, {hex(WS_MOEF)}")
Y_LD = f"buffer_load_dwordx4 v[16:19], v3, {WS}, s72 offen sc1"
Y_CMP = "\n".join([f"v_and_b32 v16, v16, v{16+r}" for r in (1, 2, 3)]) + "\nv_cmp_ne_u32 vcc, 1, v16"
def y_look(a):
    y_is(a, "L_yl0"); y_faddr(a); a(Y_LD); a.label("L_yl0")
def y_try(a):
    a("s_mov_b32 s101, 0")
    y_is(a, "L_yl1"); a(Y_CMP); a("s_cbranch_vccnz L_yl1\ns_call_b64 s[80:81], L_yld"); a.label("L_yl1")
def y_loads(a):
    XR = 54
    a.label("L_yld")
    idx_poll(a, "a", "")
    a(f"s_lshr_b32 s96, s{S_H}, 2\ns_and_b32 s97, s{S_H}, 3\ns_lshl_b32 s97, s97, 1\ns_add_u32 s97, s97, s{S_W}")
    a(f"s_mov_b32 m0, s96\ns_nop 3\nv_readlane_b32 s98, v{VIDX}, m0\ns_nop 3\ns_and_b32 s100, s98, 0x7ff\ns_sub_u32 s100, 0x7ff, s100")
    a(f"v_mul_u32_u24 v2, 13, v{L}\nv_lshrrev_b32 v2, 8, v2\nv_mul_u32_u24 v3, 20, v2\nv_sub_u32 v8, v{L}, v3")
    a(f"s_mov_b32 s6, {18*20480}\nv_mul_lo_u32 v2, v2, s6\nv_lshl_add_u32 v2, v8, 4, v2")
    a(f"v_cmp_lt_u32 vcc, 59, v{L}\nv_mov_b32 v3, {hex(WS_SIZE)}\ns_nop 0\nv_cndmask_b32 v2, v2, v3, vcc")
    a(f"s_mul_i32 s6, s96, 2560\ns_mul_i32 s7, s97, 320\ns_add_u32 s6, s6, s7\ns_add_u32 s6, s6, {WS_YP}")
    for e in range(18):
        a(f"buffer_load_dwordx4 {v(YS[e],4)}, v2, {WS}, s6 offen sc1\ns_add_u32 s6, s6, 20480")
    a(f"s_lshr_b32 s6, s100, 4\ns_mul_i32 s6, s6, 20480\ns_and_b32 s7, s100, 15\ns_lshl_b32 s7, s7, 4\ns_add_u32 s6, s6, s7\ns_mul_i32 s7, s97, 2560\ns_add_u32 s6, s6, s7")
    a(f"v_lshrrev_b32 v9, 1, v8\nv_lshlrev_b32 v9, 8, v9\nv_and_b32 v10, 1, v8\nv_lshl_add_u32 v9, v10, 3, v9\nbuffer_load_dwordx2 {v(XR,2)}, v9, {WS}, s6 offen sc1")
    a("s_mov_b32 s101, 1\ns_setpc_b64 s[80:81]")

def moe_finish(a):
    Y, XR = YS[0], 54
    y_is(a, "L_yd")
    a("s_cmp_lg_u32 s101, 0\ns_cbranch_scc1 L_yf")
    y_faddr(a)
    poll(a, Y_LD, Y_CMP, sleep=16)
    a("s_call_b64 s[80:81], L_yld")
    a.label("L_yf")
    a("s_bfe_u32 s6, s98, 0x10000b\ns_xor_b32 s7, s6, 0xffff\ns_bitcmp1_b32 s6, 15\ns_bitset0_b32 s6, 15\ns_cselect_b32 s6, s6, s7\ns_lshl_b32 s6, s6, 16\nv_mov_b32 v9, s6")
    a("v_mul_f32 v9, 0xbfb8aa3b, v9\nv_exp_f32 v9, v9\ns_nop 0\nv_add_f32 v9, 1.0, v9\nv_rcp_f32 v9, v9\ns_nop 0")
    bf16_round(a, 9)
    a(f"v_lshlrev_b32 v10, 2, v{L}\nv_mov_b32 v3, {hex(WS_SIZE)}\ns_waitcnt vmcnt(0)")
    for e in range(1, 18):
        a(f"v_pk_add_f32 {v(Y,2)}, {v(Y,2)}, {v(YS[e],2)}\nv_pk_add_f32 {v(Y+2,2)}, {v(Y+2,2)}, {v(YS[e]+2,2)}")
    for k in range(2):
        for r in range(4): a(f"ds_bpermute_b32 v{Y+4+4*k+r}, v10, v{Y+r} offset:{80*(k+1)}")
    a("s_waitcnt lgkmcnt(0)")
    for r in range(4):
        y = Y + r
        a(f"v_add_f32 v{y}, v{y}, v{y+4}\nv_add_f32 v{y}, v{y}, v{y+8}")
        bf16_round(a, y)
        a(f"v_mul_f32 v{y}, v{y}, v9")
        bf16_round(a, y)
        xn = XR + (r >> 1)
        a(f"v_and_b32 v8, 0xffff0000, v{xn}" if r & 1 else f"v_lshlrev_b32 v8, 16, v{xn}")
        a(f"v_add_f32 v{y}, v{y}, v8")
    a(f"v_cvt_pk_bf16_f32 v{Y+4}, v{Y}, v{Y+1}\nv_cvt_pk_bf16_f32 v{Y+5}, v{Y+2}, v{Y+3}")
    a(f"v_lshlrev_b32 v2, 3, v{L}\nv_cmp_lt_u32 vcc, 19, v{L}\ns_mul_i32 s6, s96, 1280\ns_mul_i32 s7, s97, 160\nv_cndmask_b32 v2, v2, v3, vcc\ns_add_u32 s6, s6, s7\ns_add_u32 s6, s6, {WS_BSEL}")
    a(f"buffer_store_dwordx2 {v(Y+4,2)}, v2, {WS}, s6 offen sc1")
    a.label("L_yd")

WR, OA, CR, RT = 96, 56, 16, 32
S_OW, S_OB, S_CX, S_OL = 69, 68, 66, 61
VWO4 = 52
LDS_P, LDS_F = 98304, 65536
def wo_base(a, d, nh):
    a(f"s_lshr_b32 s{d}, s{S_H}, 3\ns_lshl_b32 s{d}, s{d}, 2\ns_add_u32 s{d}, s{d}, s76\ns_mul_i32 s{d}, s{d}, {8*40960}\ns_and_b32 s7, s{S_H}, 3\ns_mul_i32 s7, s7, 10240\ns_add_u32 s{d}, s{d}, s7\ns_add_u32 s{d}, s{d}, {WS_WOF + nh*5120}")

XNA = 48
S_TOK, S_XI, S_XFI, VXF = 64, 62, 63, 11
XFG = int(os.environ.get("XFG", "16"))
VWM = 44
def wo_voffs(a, r0, r4=None):
    for m in range(4): a(f"s_add_u32 s6, s76, {m}\ns_and_b32 s6, s6, 3\ns_lshl_b32 s6, s6, 10\nv_add_u32 v{r0+m}, s6, v{VL16}")
    a(f"v_add_u32 v{r0+4 if r4 is None else r4}, 4096, v{VL16}")
def wm(m): return VWM + m if m < 4 else VWO4
def wo_load(a, i):
    a(f"s_add_u32 s75, s{S_OW}, {i*40960}")
    for m in range(5): a(f"buffer_load_dwordx4 {v(WR+4*(5*i+m),4)}, v{wm(m)}, {WS}, s75 offen sc1")

def out_setup(a, nh):
    if nh == 0:
        idx_addr(a); a(f"buffer_load_dword v{VIDX}, v3, {WS}, s72 offen sc1")
    wo_voffs(a, VWM, VWO4)
    wo_base(a, S_OW, nh)
    a(f"s_and_b32 s6, s{S_H}, 4\ns_lshr_b32 s7, s{S_H}, 3\ns_add_u32 s6, s6, s7\ns_lshl_b32 s7, s{S_P}, 3\ns_add_u32 s{S_OB}, s6, s7\ns_sub_u32 s7, 120, s7\ns_add_u32 s{S_OL}, s6, s7")

VCA, VT, VPR = 4, 5, 6
S_RED = 71
S_PB, S_XS = 67, 96
def out_cx(a):
    a(f"s_lshr_b32 s6, s{S_H}, 3\ns_lshl_b32 s6, s6, 15\ns_lshl_b32 s99, s{S_W}, 12\ns_add_u32 s{S_CX}, s6, s99\ns_add_u32 s{S_CX}, s{S_CX}, {WS_CTX}")
    a(f"s_lshl_b32 s6, s76, 13\nv_add_u32 v{VCA}, s6, v{VL16}\nv_add_u32 v7, 65536, v{VCA}")
def out_consts(a):
    a(f"s_lshr_b32 s6, s{S_W}, 2\ns_mul_i32 s{S_PB}, s6, 15360\ns_add_u32 s{S_PB}, s{S_PB}, {LDS_P}\nv_add_u32 v{VPR}, s{S_PB}, v{VWM}")
    a(f"s_mul_i32 s73, s6, 5120\ns_add_u32 s73, s73, {WS_XP}\ns_lshl_b32 s6, s6, 1\ns_sub_u32 s{S_RED}, s76, s6\ns_and_b32 s{S_RED}, s{S_RED}, 3")
    a(f"v_mov_b32 v{VXF}, {hex(WS_SIZE)}\ns_lshl_b32 s74, s{S_W}, 2\ns_add_u32 s74, s74, {WS_XF}")
    tile_id(a, 72)
    a(f"s_mul_i32 s72, s72, 12\ns_lshr_b32 s75, s{S_H}, 3\ns_mul_i32 s7, s75, 3\ns_add_u32 s7, s7, s72\ns_mul_i32 s{S_XI}, s7, 20480\ns_add_u32 s{S_XI}, s{S_XI}, {WS_XP}\ns_lshl_b32 s7, s7, 7\ns_add_u32 s{S_XFI}, s7, {WS_XF}")
    for k in range(3):
        a(f"s_add_u32 s6, s75, {1+k}\ns_and_b32 s6, s6, 3\ns_mul_i32 s6, s6, 3\ns_add_u32 s6, s6, s72\ns_add_u32 s6, s6, {k}\ns_mul_i32 s7, s6, 20480\ns_add_u32 s{S_XS+k}, s7, s73")
        a(f"s_lshl_b32 s6, s6, 7\ns_add_u32 s6, s6, s74\nv_writelane_b32 v{VXF}, s6, {k}")

def ctx_dma(r, extra=0):
    own, d = (S_OL if r in (3, 4, 5, 7) else S_OB), (1 + r % 3 if r < 6 else 0)
    o = [f"s_add_u32 s65, s{own}, {d}\ns_and_b32 s65, s65, 3\ns_andn2_b32 s7, s{own}, 3\ns_add_u32 s65, s65, s7\ns_lshl_b32 s65, s65, 17\ns_add_u32 s65, s65, s{S_CX}\ns_add_u32 m0, s99, {(r%3)*32768+extra}\ns_add_u32 s65, s65, {extra}"]
    return o + [f"buffer_load_dwordx4 v{VL16}, {WS}, s65 offen offset:{i*1024} sc1 lds" for i in range(4)]

def phase_out(a):
    def rdc(r, i):
        reg, off = (VCA, (r%3)*32768) if r % 3 < 2 else (7, 0)
        return (("C", i & 3), f"ds_read_b128 {v(CR+4*(i&3),4)}, v{reg} offset:{off+i*1024}")
    def xlook_addr():
        a(f"v_bfe_u32 v2, v{L}, 3, 2\nv_min_u32 v2, 2, v2\nv_and_b32 v3, 7, v{L}\nv_lshlrev_b32 v3, 2, v3\nv_lshl_add_u32 v3, v2, 7, v3")
    IT = [(WR, WR+4), (WR+8, WR+12)]
    XI, LP, OUTR = WR+16, WR+64, WR+128
    def emit(x):
        if callable(x): x()
        elif isinstance(x, str): a(x)
        elif x[0] == "wait": a.wait_lg(x[1])
        else:
            a(x[1]); a.lg.issue(x[0])
    def xin_load(slots):
        sk = a.newlabel("xi")
        for n in range(2):
            if n == 1: a(f"s_cmp_ge_u32 s{S_W}, 2\ns_cbranch_scc1 {sk}")
            for s_ in slots:
                a(f"s_add_u32 s6, s{S_XI}, {s_*20480}")
                for hf in range(2): a(f"buffer_load_dwordx4 {v(XI+24*n+8*s_+4*hf,4)}, v{8+n}, {WS}, s6 offen offset:{hf*256} sc1")
        a.label(sk)
    a.lg.drain()
    for i in range(4): emit(rdc(0, i))
    a.wait_lg(("C", 0))
    BG = 24
    for r in range(8):
        if "stampout" in ABL: a.stamp(44 + r)
        A = OA + 20*(r & 1); Ap = OA + 20*((r-1) & 1)
        po = ((r-1) & 1)*30720
        red = 1 <= r <= 6
        G = [[] for _ in range(40)]
        def dma_at(rr, g0, gs):
            d = ctx_dma(rr); sal = d[0].split("\n")
            G[g0] += sal[:3]; G[g0+1] += sal[3:6]; G[g0+2] += sal[6:7]
            for g, x in zip(gs, d[1:]): G[g].insert(0, x)
        def barrier():
            if r == 0:
                a(f"s_cmp_ge_u32 s{S_W}, 4\ns_cbranch_scc1 L_o0\ns_waitcnt vmcnt(0)\ns_barrier")
                a.label("L_o0")
                return
            else: a(f"s_waitcnt vmcnt({(0, 0, 4, 5, 5, 5, 1)[r]})")
            if r == 6: a(f"buffer_store_dword v2, v{VXF}, {WS}, 0 offen sc1")
            a("s_waitcnt lgkmcnt(0)\ns_barrier"); a.lg.drain()
        for i in range(8):
            if i < 4: G[5*i+4].append(rdc(r, i+4))
            elif r < 7 and i > 4: G[5*i+4].append(rdc(r+1, i-4))
            if i < 7 or r < 7: G[5*i+3].append(("wait", ("C", (i+1) & 3)))
        if r < 7: G[BG].append(barrier)
        if red:
            G[0].append(f"s_sub_u32 s6, s{S_RED}, {r}\ns_and_b32 s6, s6, 3\ns_mul_i32 s7, s6, 5120")
            G[1].append(f"s_add_u32 s7, s7, s{S_PB}\ns_cmp_eq_u32 s6, 3\ns_cselect_b32 s7, {159744-4096-po}, s7")
            G[2].append(f"v_add_u32 v12, s7, v{VWO4}\nv_add_u32 v{VT}, s{S_PB}, v{wm(1)}")
            for m, g in zip(range(1, 4), (5, 10, 15)):
                G[g] += [("W", f"ds_write_b128 v{VT}, {v(Ap+4*m,4)} offset:{po+(m-1)*5120}"), f"v_add_u32 v{VT}, s{S_PB}, v{wm(m+1)}"]
            G[20].append(("W", f"ds_write_b128 v12, {v(Ap+16,4)} offset:{po}"))
            for k in range(3): G[BG].append((("P", k), f"ds_read_b128 {v(RT+4*k,4)}, v{VPR} offset:{po+k*5120}"))
            for k in range(3):
                G[27+2*k].insert(0, ("wait", ("P", k)))
                for q in range(4): G[27+2*k+q//2].append(f"v_add_f32 v{Ap+q}, v{Ap+q}, v{RT+4*k+q}")
                G[29+2*k].insert(0, (("P", k), f"ds_read_b128 {v(RT+4*k,4)}, v{VT} offset:{po+k*5120}"))
            for k in range(3):
                G[33+2*k].append(("wait", ("P", k)))
                for q in range(4): G[33+2*k+q//2].append(f"v_add_f32 v{Ap+16+q}, v{Ap+16+q}, v{RT+4*k+q}")
            G[33].append(f"s_add_u32 s6, s{S_XS+(r-1)%3}, {((r-1)//3)*10240}")
            G[35].insert(0, f"buffer_store_dwordx4 {v(Ap,4)}, v{VWM}, {WS}, s6 offen sc1")
            sk = a.newlabel("nost")
            G[38].append(f"s_cmp_lg_u32 s{S_RED}, {(r-1)&3}")
            G[39].insert(0, f"s_cbranch_scc1 {sk}\nbuffer_store_dwordx4 {v(Ap+16,4)}, v{VWO4}, {WS}, s6 offen sc1\n{sk}:")
        if r < 7: G[BG].append(rdc(r+1, 0))
        if 1 < r < 5: dma_at(r+3, 21, (25, 26, 28, 30))
        if r == 0:
            dma_at(2, 21, (25, 26, 28, 30))
            G[19].append("s_waitcnt vmcnt(0)")
        if r == 1:
            G[22].append(lambda: ctxf_addr(a, S_OL, False))
            G[LOOKG].insert(0, f"buffer_load_dword v50, v3, {WS}, s72 offen sc1")
        if r == 2:
            def chk():
                a(f"s_waitcnt vmcnt(1)\nv_cmp_ne_u32 vcc, 1, v50\ns_cbranch_vccz L_o1")
                poll(a, f"buffer_load_dword v2, v3, {WS}, s72 offen sc1", "v_cmp_ne_u32 vcc, 1, v2", sleep=1)
                a.label("L_o1")
            G[2].append(chk)
            dma_at(3, 3, (6, 6, 7, 7))
            dma_at(4, 8, (11, 12, 13, 16))
        def spread(fn, gaps):
            b = Asm(); b.uid = a.uid + 1000; fn(b)
            ls = [x.strip() for x in b.o]; n = -(-len(ls) // len(gaps))
            for k, g in enumerate(gaps): G[g] += ls[k*n:(k+1)*n]
        if r == 0: spread(out_consts, range(0, 19))
        if r == 3: spread(out_items, [3, 4, 6, 7, 8, 9, 11, 12, 13, 14, 16, 17, 18, 19])
        if r == 4: G[7].append(lambda: out_tokens(a))
        if r == 6: G[22].append(f"v_mov_b32 v2, 1\nv_writelane_b32 v2, 2, 0")
        if r == 7:
            G[2].append(f"s_mul_i32 s73, s{S_W}, 5120\ns_add_u32 s6, s73, {LDS_F}")
            G[3].append(f"v_add_u32 v{VT}, s6, v{wm(0)}")
            for m in range(5):
                G[5+5*m].append(("W", f"ds_write_b128 v{VT}, {v(Ap+4*m,4)}"))
                if m < 4: G[5+5*m].append(f"s_add_u32 s6, s73, {LDS_F}\nv_add_u32 v{VT}, s6, v{wm(m+1)}")
            G[XFG].append(f"v_mov_b32 v2, 2\ns_waitcnt vmcnt(0)\nbuffer_store_dword v2, v{VXF}, {WS}, 0 offen sc1")
            def items():
                a(f"s_cmp_eq_u32 s{S_TOK}, 0\ns_cbranch_scc1 L_nb")
                a(f"v_bfe_u32 v2, v{L}, 1, 3\nv_and_b32 v3, 1, v{L}\nv_lshl_add_u32 v3, v2, 7, v3\nv_lshlrev_b32 v3, 2, v3\ns_and_b32 s6, s{S_H}, 3\ns_lshl_b32 s6, s6, 7\ns_add_u32 s6, s6, {WS_BF+YP*32*128}")
                poll(a, f"buffer_load_dword v2, v3, {WS}, s6 offen sc1", "v_cmp_ne_u32 vcc, 1, v2")
                a.label("L_nb")
                sk = a.newlabel("itskip")
                for n in range(2):
                    if n == 1: a(f"s_cmp_ge_u32 s{S_W}, 2\ns_cbranch_scc1 {sk}")
                    a(f"buffer_load_dwordx4 {v(IT[n][0],4)}, v{53+n}, {R(SRD_A)}, s70 offen\nbuffer_load_dwordx4 {v(IT[n][1],4)}, v{XNA+n}, {WS}, 0 offen sc1")
                a.label(sk)
            G[XFG+2].append(items)
            G[30].append(xlook_addr)
            G[31].append(f"s_bitcmp1_b32 13, s{S_W}\ns_cselect_b32 s77, 1, 2\nbuffer_load_dword v50, v3, {WS}, s{S_XFI} offen sc1")
            G[33].append(f"s_add_u32 s6, s73, {106496-20480}\ns_cmp_lt_u32 s{S_W}, 4\ns_cselect_b32 s73, s73, s6")
        for g in range(40):
            i, m = divmod(g, 5)
            if "o" in SNAKE and i & 1 == 0 and i: m = 4 - m
            a.mfma(A+4*m, WR+4*(5*i+m), CR+4*(i&3), "0" if i == 0 else None)
            for x in G[g]: emit(x)
    a.stamp(16)
    a("s_nop 4")
    for m in range(5): a(f"v_add_u32 v{VT}, s73, v{wm(m)}\nds_write_b128 v{VT}, {v(OA+20+4*m,4)}")
    a("s_waitcnt vmcnt(0)\nv_cmp_gt_u32 s[78:79], s77, v50\ns_nop 3\ns_cmp_lg_u64 s[78:79], 0\ns_cbranch_scc1 L_x2a")
    xin_load((0, 1, 2))
    a.label("L_x2a")
    a("s_waitcnt lgkmcnt(0)\ns_barrier")
    for n in range(2):
        for k in range(4):
            for hf in range(2): a(f"ds_read_b128 {v(LP+32*n+8*k+4*hf,4)}, v{(10,55)[n]} offset:{k*5120+hf*256}")
    a("s_cmp_eq_u64 s[78:79], 0\ns_cbranch_scc1 L_x2b")
    poll(a, f"buffer_load_dword v2, v3, {WS}, s{S_XFI} offen sc1", "v_cmp_gt_u32 vcc, s77, v2", sleep=1)
    xin_load((0, 1, 2))
    a.label("L_x2b")
    a.srd(SRD_B, P_OUT, 2048*640*2)
    a.stamp(17)
    for n in range(2):
        if n == 1: a(f"s_cmp_ge_u32 s{S_W}, 2\ns_cbranch_scc1 L_end")
        S = LP + 32*n
        a(f"s_waitcnt lgkmcnt({8 if n == 0 else 0})")
        for k in range(1, 4):
            for q in range(0, 8, 2): a(f"v_pk_add_f32 {v(S+q,2)}, {v(S+q,2)}, {v(S+8*k+q,2)}")
        a("s_waitcnt vmcnt(0)" if n == 0 else "s_nop 0")
        for k in range(3):
            for q in range(0, 8, 2): a(f"v_pk_add_f32 {v(S+q,2)}, {v(S+q,2)}, {v(XI+24*n+8*k+q,2)}")
        for q in range(4):
            x0, x1 = S+2*q, S+2*q+1
            a(f"v_cvt_pk_bf16_f32 v2, v{x0}, v{x1}\nv_lshlrev_b32 v{x0}, 16, v2\nv_and_b32 v{x1}, 0xffff0000, v2")
            a(f"v_lshlrev_b32 v2, 16, v{IT[n][0]+q}\nv_and_b32 v3, 0xffff0000, v{IT[n][0]+q}\nv_pk_add_f32 {v(x0,2)}, {v(x0,2)}, v[2:3]")
            a(f"v_cvt_pk_bf16_f32 v2, v{x0}, v{x1}\nv_lshlrev_b32 v{x0}, 16, v2\nv_and_b32 v{x1}, 0xffff0000, v2")
            a(f"v_lshlrev_b32 v2, 16, v{IT[n][1]+q}\nv_and_b32 v3, 0xffff0000, v{IT[n][1]+q}\nv_pk_add_f32 {v(x0,2)}, {v(x0,2)}, v[2:3]")
            a(f"v_cvt_pk_bf16_f32 v{OUTR+4*n+q}, v{x0}, v{x1}")
        a(f"buffer_store_dwordx4 {v(OUTR+4*n,4)}, v{53+n}, {R(SRD_B)}, s70 offen")

def out_items(a):
    a.srd(SRD_A, P_X, 2048*640*2)
    a(f"s_and_b32 s75, s{S_H}, 3\ns_mul_i32 s70, s75, 320\ns_add_u32 s73, s70, {WS_BSEL}")
    a(f"s_mul_i32 s72, s75, 5120")
    a(f"v_lshrrev_b32 v2, 4, v{L}\nv_and_b32 v3, 15, v{L}\nv_mul_u32_u24 v54, 1280, v3\nv_lshl_add_u32 v54, v2, 4, v54\nv_lshlrev_b32 v3, 4, v3\nv_lshl_add_u32 v9, v2, 9, v3")
    a(f"s_lshr_b32 s100, s{S_W}, 2\ns_cselect_b32 s6, s{S_OL}, s{S_OB}\ns_mul_i32 s6, s6, 20480\ns_lshl_b32 s7, s76, 6\ns_add_u32 s7, s7, s6\nv_add_u32 v53, s7, v54")
    a(f"s_lshl_b32 s7, s76, 10\ns_add_u32 s7, s7, s6\ns_add_u32 s7, s7, s72\nv_add_u32 v{XNA}, s7, v{VL16}")
    a(f"s_mul_i32 s6, s100, 10240\ns_lshl_b32 s7, s76, 11\ns_add_u32 s6, s6, s7\nv_add_u32 v8, s6, v9")
    a(f"s_mul_i32 s6, s100, {LDS_F+10240}\ns_sub_u32 s6, {LDS_F}, s6\nv_add_u32 v10, s6, v8\ns_lshl_b32 s7, s76, 2\nv_add_u32 v2, s7, v2\nv_cmp_lt_u32 vcc, 9, v2\ns_mul_i32 s6, s100, {101376-15360}\ns_add_u32 s6, s6, 15360\nv_add_u32 v3, s6, v10\nv_cndmask_b32 v10, v10, v3, vcc")
    a(f"s_and_b32 s100, s{S_W}, 1\ns_cselect_b32 s6, s{S_OL}, s{S_OB}\ns_mul_i32 s6, s6, 20480\ns_add_u32 s7, s6, 256\nv_add_u32 v54, s7, v54\ns_add_u32 s7, s6, s72\ns_add_u32 s7, s7, 4096\nv_add_u32 v{XNA+1}, s7, v{VL16}")
    a(f"s_mul_i32 s6, s100, 10240\ns_add_u32 s6, s6, 8192\nv_add_u32 v9, s6, v9\ns_mul_i32 s6, s100, {101376-10240-LDS_F-15360}\ns_add_u32 s6, s6, {LDS_F+15360}\nv_add_u32 v55, s6, v9")

def out_tokens(a):
    idx_poll(a, "b", "")
    sk = a.newlabel("notok")
    a(f"s_mov_b32 s{S_TOK}, 0")
    a(f"v_and_b32 v2, 0x7ff, v{VIDX}\nv_sub_u32 v2, 0x7ff, v2\nv_lshrrev_b32 v3, 4, v2\nv_cmp_eq_u32 vcc, s{S_OB}, v3\nv_cmp_eq_u32 s[74:75], s{S_OL}, v3\ns_nop 3\ns_or_b64 vcc, vcc, s[74:75]\ns_cbranch_scc0 {sk}")
    for tk in range(8): a(f"v_readlane_b32 s{(84,85,86,87,88,65,91,101)[tk]}, v2, {tk}")
    for n in range(2):
        a(f"s_lshl_b32 s7, s76, 6\ns_lshr_b32 s100, s{S_W}, 2" if n == 0 else f"s_movk_i32 s7, 256\ns_and_b32 s100, s{S_W}, 1")
        a(f"s_cselect_b32 s6, s{S_OL}, s{S_OB}\ns_lshl_b32 s6, s6, 4\nv_and_b32 v2, 15, v{L}\nv_add_u32 v2, s6, v2")
        a(f"s_add_u32 s7, s7, s73\nv_and_b32 v3, 48, v{L}\nv_add_u32 v3, s7, v3")
        for tk in range(8):
            a(f"v_cmp_eq_u32 vcc, s{(84,85,86,87,88,65,91,101)[tk]}, v2\ns_nop 1\nv_cndmask_b32 v{XNA+n}, v{XNA+n}, v3, vcc")
            if tk < 7: a(f"v_add_u32 v3, 1280, v3")
    a(f"s_mov_b32 s{S_TOK}, 1")
    a.label(sk)

def gen(a):
    phase_start(a)
    phase_kv(a)
    phase_q(a)
    phase_attn(a)
    phase_out(a)
    a.label("L_end")
    a.stamp(18)
    if a.prof: a("s_waitcnt vmcnt(0)")
    if a.prof and os.environ.get("STRETCH"):
        s0, s1 = os.environ["STRETCH"].split(",")
        a(f"v_readlane_b32 s6, v15, {s0}\nv_readlane_b32 s7, v15, {s1}\nv_readlane_b32 s72, v15, 18\ns_nop 3\ns_sub_u32 s6, s7, s6\ns_min_u32 s6, s6, 20000")
        a.label("L_str")
        a("s_memrealtime s[94:95]\ns_waitcnt lgkmcnt(0)\ns_sub_u32 s7, s94, s72\ns_cmp_lt_u32 s7, s6\ns_cbranch_scc1 L_str")
    if a.prof and os.environ.get("DBGWG"):
        a(f"s_mov_b64 exec, -1\ns_cmp_lg_u32 s2, {os.environ['DBGWG']}\ns_cbranch_scc1 L_nodbg\ns_cmp_lg_u32 s{S_W}, 0\ns_cbranch_scc1 L_nodbg")
        a.srd(SRD_E, P_DBG, 64)
        a(f"v_readlane_b32 s6, v15, 0\ns_nop 3\nv_subrev_u32 v2, s6, v15\nv_subrev_u32 v3, 3, v{L}\nv_lshlrev_b32 v3, 2, v3\nv_cmp_gt_u32 vcc, 4, v{L}\nv_mov_b32 v4, 0x1000\ns_nop 0\nv_cndmask_b32 v3, v3, v4, vcc")
        a(f"buffer_store_dword v2, v3, {R(SRD_E)}, 0 offen")
        a.label("L_nodbg")
    a.stamp_flush(SRD_WS, WS_PROF)
    a.label("L_exit")
    a("s_endpgm")

HEADER = open(os.path.join(os.path.dirname(os.path.abspath(__file__)), "..", NAME + ".s.ref")).read().split("; Override launch")[0]
if __name__ == "__main__":
    name = NAME + "_kernel"
    out = HEADER + "; @launch grid=(256,1,1) block=(512,1,1) lds=163840\n" + '.amdgcn_target "amdgcn-amd-amdhsa--gfx950"\n'
    a = Asm(); a.prof = bool(os.environ.get("PROF"))
    a.o.append(kernel_header(name).rstrip())
    gen(a)
    out += a.text() + '.section .rodata,"a"\n.p2align 6\n' + kernel_desc(name)
    open(sys.argv[1] if len(sys.argv) > 1 else "k.s", "w").write(out)
```

```python
import sys, os
from asmlib import *

NAME = "parallel_sum__compressed_kv_cla__moe_arch_mod__prompt"
ABL = set(os.environ.get("ABL", "").split(","))
WS_XN = 0x0
WS_R = 0x280000
WS_YP = 0x290000
WS_IDX = 0x3A0000
WS_KVF = 0x3B0000
WS_CTXF = 0x3C0000
WS_MOEF = 0xF20000
WS_BSEL = 0x3A9000
WS_BF = 0x3B8000
WS_WOF = 0x400000
WS_XS = 0xC00000
WS_PROF = 0x900000
WS_KV = 0x1000000
WS_CTX = 0x3000000
WS_XF = 0xF00000
WS_XP = 0x4000000
WS_SIZE = 0x5000000
S_W, S_H, S_P = 3, 4, 5
SRD_WS, SRD_A, SRD_B, SRD_C, SRD_D, SRD_E = 8, 12, 16, 20, 24, 28
P_X, P_CKV, P_WQ, P_WUK, P_WUV, P_WO, P_BX, P_WR, P_WG, P_WU, P_WD, P_OUT, P_DBG, P_WS = range(32, 60, 2)
S_B, S_E = 60, 61
WS = f"s[{SRD_WS}:{SRD_WS+3}]"
def R(d): return f"s[{d}:{d+3}]"
L, VL16 = 1, 13
DESIG = 31
SPIN = 1 << 18
WOTM = int(os.environ.get("WOTM", "0xf0"), 0)
SNAKE = os.environ.get("SNAKE", "akqo")
LOOKG = int(os.environ.get("LOOKG", "30"))
NPC = int(os.environ.get("NPC", "2"))
YP = int(os.environ.get("YP", "3"))
LPOS = int(os.environ.get("LPOS", "10"))
WOTN = int(os.environ.get("WOTN", "0"))
LNH = int(os.environ.get("LNH", "2"))
MOEJ = int(os.environ.get("MOEJ", "4"))
if "code2" not in ABL: ABL.add("nocode2")
if "newb7" not in ABL: ABL.add("oldb7")
NT = "" if "nont" in ABL else " nt"
ABL.add("latewait")
TSCHED = os.environ.get("TSCHED", ";2;4;6").split(";")
TK, TV0, TV1, TV2 = [[int(y) for y in x.split(",") if y] for x in TSCHED]
LDS_SP = 131072
LDS_LN = LDS_SP
LDS_WOT = LDS_SP + 10240
LDS_RK = LDS_SP + 30720

def bf16_round(a, r):
    a(f"v_cvt_pk_bf16_f32 v{r}, v{r}, v{r}\nv_lshlrev_b32 v{r}, 16, v{r}")

def poll(a, load, cmp_notready, sleep=2):
    lp = a.newlabel("poll"); dn = a.newlabel("polldone")
    a(f"s_mov_b32 s79, {SPIN}")
    a.label(lp)
    a(load); a("s_waitcnt vmcnt(0)"); a(cmp_notready)
    a(f"s_cbranch_vccz {dn}\ns_sleep {sleep}\ns_sub_u32 s79, s79, 1\ns_cmp_lg_u32 s79, 0\ns_cbranch_scc1 {lp}")
    a.label(dn)

VC, VW, RC, RW, QRW = 40, 44, 48, 50, 54
CF, WF, ACC = 64, 96, 128
S_CO, S_WO_, S_MC, S_ST, S_ROW, S_KVD, S_INCA, S_INCB, S_XO, S_QO = 62, 63, 64, 65, 66, 67, 68, 69, 70, 71
S_XB = 84
XEARLY = [16, 20, 24, 28, 32, 36]
VX1 = 12
LX, LW, LV = 16, 26, 64
VDUM = 11
ITR = ((8, 9), (10, 55))

def wdma(a, srd, soff):
    return [f"buffer_load_dwordx4 v{VW+i}, {R(srd)}, s{soff} offen offset:{i*1024} lds" for i in range(4)]

def kv_dma_ops():
    g = []
    g.append([f"s_mov_b32 m0, s{S_MC}", f"s_add_u32 s72, s{S_CO}, 524288"])
    for i in range(4): g.append([f"buffer_load_dwordx4 v{VC+i}, {R(SRD_A)}, s{S_CO} offen offset:{i*1024} lds"])
    g.append([f"s_add_u32 m0, s{S_MC}, 4096", f"s_add_u32 s{S_CO}, s{S_CO}, 128", f"s_bitset0_b32 s{S_CO}, 10"])
    for i in range(4): g.append([f"buffer_load_dwordx4 v{VC+i}, {R(SRD_A)}, s72 offen offset:{i*1024} lds"])
    g.append([f"s_mov_b32 m0, s73", f"s_xor_b32 s{S_MC}, s{S_MC}, 0x10000"])
    for x in wdma(None, SRD_B, S_WO_): g.append([x])
    g.append([f"s_add_u32 m0, s73, 16384", f"s_xor_b32 s73, s73, 0x10000"])
    for x in wdma(None, SRD_C, S_WO_): g.append([x])
    g.append([f"s_add_u32 s{S_WO_}, s{S_WO_}, {64*8192}", f"s_bitset0_b32 s{S_WO_}, 22"])
    return g

def wq_dma_ops(nblk):
    g = []
    for h in range(2*nblk):
        g.append([f"s_mov_b32 m0, s74", f"s_add_u32 s74, s74, 16384"] + (["s_bitset0_b32 s74, 17"] if nblk == 2 else []))
        for x in wdma(None, SRD_D, S_QO): g.append([x])
        g.append([f"s_add_u32 s{S_QO}, s{S_QO}, {64*8192}", f"s_sub_u32 s75, s{S_QO}, {640*8192}", f"s_cselect_b32 s{S_QO}, s{S_QO}, s75"])
    return g

def emit_groups(a, g):
    for x in g:
        for y in x: a(y)

def x_load(a, ks, regs):
    for qt in range(2):
        a(f"buffer_load_dwordx4 {v(regs[qt],4)}, v{VL16 if qt==0 else VX1}, {WS}, s{S_XB+(ks>>2)} offen offset:{(ks&3)*1024} sc1")
        a.vm.issue(("X", ks))

def cnt_load(a, r, which):
    return f"buffer_load_dword v{r}, v3, {R(SRD_E)}, 0 offen offset:{128*which} sc1"
def cnt_addr(a):
    a.srd(SRD_E, P_DBG, 256)
    a(f"v_and_b32 v3, 31, v{L}\nv_lshlrev_b32 v3, 2, v3")
def cnt_check(a, r, which):
    ok = a.newlabel("cntok")
    a(f"v_cmp_gt_u32 vcc, 8, v{r}\ns_cbranch_vccz {ok}")
    cnt_addr(a)
    poll(a, cnt_load(a, 2, which), "v_cmp_gt_u32 vcc, 8, v2", sleep=8)
    a.label(ok)

def kv_touch(a, st0):
    sk = a.newlabel("tch")
    a(f"s_cmp_ge_u32 s76, 2\ns_cbranch_scc1 {sk}a")
    a(f"s_and_b32 s6, s{S_H}, 3\ns_lshl_b32 s6, s6, 19\ns_lshl_b32 s7, s{S_P}, 15\ns_add_u32 s6, s6, s7\ns_lshl_b32 s7, s76, 7\ns_add_u32 s6, s6, s7\ns_add_u32 s6, s6, {st0*128}")
    a(f"v_lshrrev_b32 v6, 1, v{L}\nv_lshlrev_b32 v6, 10, v6\nv_and_b32 v7, 1, v{L}\nv_lshl_add_u32 v6, v7, 6, v6")
    a(f"buffer_load_dword v{VDUM}, v6, {R(SRD_A)}, s6 offen\ns_add_u32 s6, s6, 262144\nbuffer_load_dword v{VDUM}, v6, {R(SRD_A)}, s6 offen\ns_branch {sk}c")
    a.label(sk + "a")
    a(f"v_lshrrev_b32 v6, 5, v{L}\nv_lshlrev_b32 v6, 6, v6\nv_bfe_u32 v7, v{L}, 2, 3\nv_add_u32 v6, v6, v7\nv_lshlrev_b32 v6, 13, v6\nv_and_b32 v7, 3, v{L}\nv_lshl_add_u32 v6, v7, 6, v6")
    a(f"s_lshl_b32 s6, s{S_H}, 8\ns_lshl_b32 s7, s{S_P}, 16\ns_add_u32 s6, s6, s7\ns_add_u32 s6, s6, {st0*64*8192}")
    a(f"s_cmp_lg_u32 s76, 2\ns_cbranch_scc1 {sk}b\nbuffer_load_dword v{VDUM}, v6, {R(SRD_B)}, s6 offen\ns_branch {sk}c")
    a.label(sk + "b")
    a(f"buffer_load_dword v{VDUM}, v6, {R(SRD_C)}, s6 offen")
    a.label(sk + "c")

def consts(a):
    a(f"s_mov_b32 s{S_ST}, 0")
    a(f"s_lshl_b32 s6, s{S_H}, 20\ns_lshl_b32 s7, s{S_P}, 13\ns_add_u32 s6, s6, s7\ns_and_b32 s7, s{S_W}, 1\ns_lshl_b32 s7, s7, 16\ns_add_u32 s6, s6, s7\ns_add_u32 s{S_KVD}, s6, {WS_KV}")
    if "noqrot" in ABL: a("s_mov_b32 s6, 0")
    else:
        a(f"s_and_b32 s6, s{S_H}, 3\ns_add_u32 s6, s6, s{S_P}")
        for _ in range(2): a("s_sub_u32 s7, s6, 5\ns_cselect_b32 s6, s6, s7")
    a(f"s_lshl_b32 s{S_QO}, s6, 20\ns_lshl_b32 s7, s{S_H}, 8\ns_add_u32 s{S_QO}, s{S_QO}, s7")
    for i in range(5):
        a(f"s_lshl_b32 s7, s6, 12\ns_add_u32 s{S_XB+i}, s{S_XO}, s7")
        if i < 4: a("s_add_u32 s6, s6, 1\ns_cmp_eq_u32 s6, 5\ns_cselect_b32 s6, 0, s6")
    a(f"s_lshr_b32 s7, s{S_W}, 1\ns_and_b32 s7, s7, 1")
    a(f"s_cmp_ge_u32 s{S_W}, 4\ns_cbranch_scc1 L_c_v")
    a(f"s_lshl_b32 s7, s7, 11\ns_add_u32 s{S_KVD}, s{S_KVD}, s7\ns_movk_i32 s{S_INCA}, 3072\ns_mov_b32 s{S_INCB}, 125952")
    a(f"s_add_u32 s{S_QO}, s{S_QO}, {128*8192}\ns_sub_u32 s75, s{S_QO}, {640*8192}\ns_cselect_b32 s{S_QO}, s{S_QO}, s75\ns_lshl_b32 s74, s76, 12\ns_add_u32 s74, s74, s100\ns_branch L_c_j")
    a.label("L_c_v")
    a(f"s_lshl_b32 s7, s7, 12\ns_add_u32 s{S_KVD}, s{S_KVD}, s7\ns_add_u32 s{S_KVD}, s{S_KVD}, 0x80000\ns_movk_i32 s{S_INCA}, 1024\ns_mov_b32 s{S_INCB}, 128000")
    a.label("L_c_j")

def zero_regs(a, r0, n):
    for i in range(0, n, 2): a(f"v_mov_b64 {v(r0+i,2)}, 0")

def phase_start(a):
    a(f"s_cmp_ge_u32 s2, 256\ns_cbranch_scc1 L_exit")
    a("s_load_dwordx16 s[32:47], s[0:1], 0\ns_load_dwordx8 s[48:55], s[0:1], 64\ns_load_dwordx4 s[56:59], s[0:1], 96")
    a(f"v_lshrrev_b32 v2, 6, v0\nv_and_b32 v{L}, 63, v0\nv_readfirstlane_b32 s{S_W}, v2")
    if "nocode" not in ABL:
        a("s_getpc_b64 s[80:81]")
        a.label("L_pc")
        a(f"s_lshr_b32 s6, s2, 3\ns_and_b32 s6, s6, 15\ns_lshl_b32 s6, s6, 12\ns_cmp_lt_u32 s{S_W}, 2\ns_cselect_b32 s6, 0, s6\nv_lshl_add_u32 v3, v0, 6, s6")
        a(f"v_min_u32 v3, L_exit-L_pc, v3\ns_cmp_ge_u32 s{S_W}, 3\ns_cbranch_scc1 L_noct\nglobal_load_dword v{VDUM}, v3, s[80:81]")
        a.label("L_noct")
    a(f"v_lshrrev_b32 v62, 5, v0\nv_and_b32 v62, 7, v62\nv_and_b32 v2, 31, v0\nv_lshlrev_b32 v2, 3, v2\nv_mul_u32_u24 v63, 1280, v62\nv_add_u32 v63, v63, v2\ns_mul_i32 s6, s2, 10240\nv_add_u32 v10, s6, v63")
    a(f"s_cmp_lt_u32 s{S_W}, 4\ns_cbranch_scc1 L_st_k0")
    a("s_waitcnt lgkmcnt(0)")
    for j in range(5): a(f"global_load_dwordx2 {v(LX+2*j,2)}, v10, s[{P_X}:{P_X+1}] offset:{j*256}{NT if 'xnt' in ABL else ''}")
    for j in range(5): a(f"global_load_dwordx2 {v(LW+2*j,2)}, v2, s[{P_WR}:{P_WR+1}] offset:{j*256}")
    if "nob0" not in ABL: a("s_barrier")
    a.label("L_st_k0")
    a(f"s_and_b32 s6, s2, 7\ns_lshl_b32 s6, s6, 2\ns_lshr_b32 s7, s2, 3\ns_and_b32 s7, s7, 3\ns_add_u32 s{S_H}, s6, s7\ns_lshr_b32 s{S_P}, s2, 5\ns_and_b32 s76, s{S_W}, 3")
    a.stamp_init(14, 0); a.stamp(0)
    a(f"v_lshrrev_b32 v2, 3, v{L}\nv_and_b32 v3, 7, v{L}\nv_lshrrev_b32 v4, 4, v{L}\nv_xor_b32 v5, v3, v4\nv_lshlrev_b32 v5, 4, v5")
    a(f"v_lshl_add_u32 v{VC}, v2, 10, v5\nv_xor_b32 v5, 64, v{VC}\nv_add_u32 v{VC+1}, 7168, v5\nv_add_u32 v{VC+2}, 14336, v{VC}\nv_add_u32 v{VC+3}, 14336, v{VC+1}")
    a(f"v_and_b32 v6, 15, v{L}\ns_lshl_b32 s6, s76, 4\nv_add_u32 v7, s6, v4\nv_lshlrev_b32 v5, 1, v4\nv_xor_b32 v5, v6, v5\nv_lshlrev_b32 v5, 4, v5")
    a(f"v_lshl_add_u32 v{VW}, v7, 13, v5\nv_add_u32 v{VW+1}, 31744, v{VW}\nv_xor_b32 v5, 0x80, v{VW}\nv_add_u32 v{VW+2}, 63488, v5\nv_add_u32 v{VW+3}, 31744, v{VW+2}")
    a(f"s_and_b32 s6, s76, 1\ns_lshl_b32 s6, s6, 20\ns_lshr_b32 s7, s76, 1\ns_lshl_b32 s7, s7, 18\ns_add_u32 s6, s6, s7\ns_lshl_b32 s{S_CO}, s{S_P}, 15\ns_add_u32 s{S_CO}, s{S_CO}, s6\ns_lshl_b32 s{S_WO_}, s{S_H}, 8\ns_lshl_b32 s{S_MC}, s76, 13\ns_lshl_b32 s73, s76, 12\ns_add_u32 s73, s73, 32768")
    a(f"s_andn2_b32 s100, 1, s{S_P}\ns_lshl_b32 s100, s100, 16\ns_add_u32 s{S_MC}, s{S_MC}, s100\ns_add_u32 s73, s73, s100")
    a("s_waitcnt lgkmcnt(0)")
    a.srd(SRD_A, P_CKV, 2048*512*2)
    a.srd(SRD_B, P_WUK, 512*4096*2)
    a.srd(SRD_C, P_WUV, 512*4096*2)
    a(f"s_cmp_ge_u32 s{S_W}, 4\ns_cbranch_scc1 L_st_v0")
    if "nob0" not in ABL: a("s_barrier")
    for st in TK: kv_touch(a, st)
    emit_groups(a, kv_dma_ops())
    if "noprio" not in ABL: a("s_setprio 1")
    a.label("L_st_v0")
    a.srd(SRD_WS, P_WS, WS_SIZE)
    a.srd(SRD_D, P_WQ, 640*4096*2)
    a(f"v_lshlrev_b32 v{VL16}, 4, v{L}")
    a(f"s_lshl_b32 s6, s{S_P}, 2\ns_add_u32 s7, s6, s{S_W}\ns_sub_u32 s6, 56, s6\ns_add_u32 s6, s6, s{S_W}")
    a(f"s_cmp_lt_u32 s{S_W}, 4\ns_cselect_b32 s{S_B}, s7, s6")
    a(f"s_sub_u32 s6, 2, s{S_P}\ns_and_b32 s6, s6, 7\ns_lshl_b32 s6, s6, 5\ns_add_u32 s{S_E}, s6, s{S_H}")
    a(f"v_and_b32 v2, 15, v{L}\nv_lshrrev_b32 v3, 4, v{L}")
    a(f"s_and_b32 s6, s{S_W}, 1\ns_lshl_b32 s6, s6, 7\nv_add_u32 v4, s6, v2\nv_lshlrev_b32 v4, 7, v4\nv_add_u32 v4, s100, v4\nv_lshrrev_b32 v5, 1, v2")
    for sp in range(2):
        a(f"v_add_u32 v6, {4*sp}, v3\nv_xor_b32 v6, v6, v5\nv_lshl_add_u32 v{RC+sp}, v6, 4, v4")
    a(f"v_lshrrev_b32 v4, 2, v2\nv_lshl_add_u32 v5, v3, 3, v4\nv_lshlrev_b32 v5, 8, v5")
    a(f"v_and_b32 v6, 1, v2\nv_lshl_add_u32 v5, v6, 3, v5")
    a(f"v_and_b32 v6, 1, v3\nv_lshl_or_b32 v4, v6, 2, v4\nv_lshlrev_b32 v4, 1, v4\nv_bfe_u32 v6, v2, 1, 1")
    a(f"v_add_u32 v8, {LDS_SP}, v5")
    for t in range(8):
        a(f"v_add_u32 v7, {2*t}, v6\nv_xor_b32 v7, v7, v4\nv_lshl_add_u32 v{QRW+t}, v7, 4, v8")
    a(f"s_lshr_b32 s6, s{S_W}, 2\ns_lshl_b32 s6, s6, 14\ns_add_u32 s6, s6, 32768\ns_add_u32 s6, s6, s100\nv_add_u32 v5, s6, v5")
    a(f"s_lshr_b32 s7, s{S_W}, 1\ns_and_b32 s7, s7, 1\ns_lshl_b32 s7, s7, 3")
    for j in range(4):
        a(f"s_add_u32 s6, s7, {2*j}\nv_add_u32 v7, s6, v6\nv_xor_b32 v7, v7, v4\nv_lshl_add_u32 v{RW+j}, v7, 4, v5")
    zero_regs(a, ACC, 128)
    a(f"v_add_u32 v{VX1}, 20480, v{VL16}\ns_mul_i32 s{S_XO}, s{S_B}, 40960")
    consts(a)
    a.stamp(1)
    a(f"s_cmp_ge_u32 s{S_W}, 4\ns_cbranch_scc1 L_st_v1")
    TM = [int(x) for x in os.environ.get("TM", "").split(",") if x]
    TM2 = [int(x) for x in os.environ.get("TM2", "").split(",") if x]
    for st in TM: kv_touch(a, st)
    emit_groups(a, kv_dma_ops()[:10])
    for st in TM2: kv_touch(a, st)
    a(f"s_waitcnt vmcnt({8+len(TM)+len(TM2)})\ns_branch L_st_j1")
    a.label("L_st_v1")
    a(f"s_waitcnt vmcnt(0)")
    a.stamp(2)
    ln_compute(a)
    ln_router(a)
    a.label("L_st_j1")
    a.stamp(3)
    a("s_barrier")
    a.stamp(4)

def zero_flags(a):
    a(f"s_cmp_lt_u32 s{S_W}, 6\ns_cbranch_scc1 L_zd\nv_mov_b64 v[36:37], 0\nv_mov_b64 v[38:39], 0\nv_lshrrev_b32 v2, 3, v{L}\ns_cmp_eq_u32 s{S_W}, 6\ns_cbranch_scc1 L_z6")
    a(f"s_lshl_b32 s6, s{S_P}, 2\ns_sub_u32 s7, 56, s6\nv_mov_b32 v3, s6\nv_mov_b32 v4, s7\nv_cmp_gt_u32 vcc, 4, v2\ns_lshl_b32 s6, s{S_H}, 7\ns_add_u32 s6, s6, {WS_CTXF}\nv_cndmask_b32 v3, v4, v3, vcc\nv_add_u32 v3, v3, v2\nv_lshl_add_u32 v3, v3, 12, s6\ns_branch L_z7")
    a.label("L_z6")
    a(f"v_mov_b32 v3, {hex(WS_SIZE)}")
    def put(j): a(f"s_andn2_b32 s6, s6, 127\nv_cmp_eq_u32 vcc, {j}, v2\nv_mov_b32 v4, s6\ns_nop 0\nv_cndmask_b32 v3, v3, v4, vcc")
    flag_addr(a, "kv", 6); put(0)
    flag_addr(a, "moe", 6); put(1)
    flag_addr(a, "b", 6); put(2)
    for k in range(3):
        xf_addr(a, k, 6); put(3+k)
    a(f"s_mov_b32 s6, {hex(WS_SIZE)}\ns_cmp_eq_u32 s2, {DESIG}\ns_cmov_b32 s6, {WS_IDX}"); put(6)
    a(f"s_lshl_b32 s6, s2, 7\ns_add_u32 s6, s6, {WS_R}"); put(7)
    a(f"v_add_u32 v4, {LDS_RK-56*16}, v{VL16}\ns_mov_b32 exec_lo, 0\ns_mov_b32 exec_hi, 0x03000000\nds_read_b128 v[36:39], v4\ns_mov_b64 exec, -1\ns_waitcnt lgkmcnt(0)")
    a.label("L_z7")
    a(f"v_and_b32 v2, 7, v{L}\nv_lshl_add_u32 v3, v2, 4, v3\nbuffer_store_dwordx4 v[36:39], v3, {WS}, 0 offen sc1")
    a.label("L_zd")

def half_reduce(a, r):
    for m in ("quad_perm:[1,0,3,2]", "quad_perm:[2,3,0,1]", "row_half_mirror", "row_mirror"):
        a(f"s_nop 1\nv_add_f32_dpp v{r}, v{r}, v{r} {m} row_mask:0xf bank_mask:0xf")
    a(f"v_mov_b32 v8, v{r}\ns_nop 1\nv_permlane16_swap_b32 v{r}, v8\ns_nop 1\nv_add_f32 v{r}, v{r}, v8")

def ln_compute(a):
    X = LV
    NEG = "op_sel_hi:[1,0] neg_lo:[0,1] neg_hi:[0,1]"
    for j in range(10):
        a(f"v_lshlrev_b32 v{X+2*j}, 16, v{LX+j}\nv_and_b32 v{X+2*j+1}, 0xffff0000, v{LX+j}")
    a(f"v_pk_add_f32 v[2:3], {v(X,2)}, {v(X+2,2)}")
    for j in range(2, 10): a(f"v_pk_add_f32 v[2:3], v[2:3], {v(X+2*j,2)}")
    a("v_add_f32 v2, v2, v3")
    half_reduce(a, 2)
    a("s_mov_b32 s7, 0x3acccccd\nv_mul_f32 v2, s7, v2\nv_mov_b64 v[4:5], 0")
    for j in range(10):
        a(f"v_pk_add_f32 v[6:7], {v(X+2*j,2)}, v[2:3] {NEG}\nv_pk_fma_f32 v[4:5], v[6:7], v[6:7], v[4:5]")
    a("v_add_f32 v4, v4, v5")
    half_reduce(a, 4)
    a("v_mul_f32 v4, s7, v4")
    bf16_round(a, 2); bf16_round(a, 4)
    a("v_add_f32 v4, 0x3727c5ac, v4")
    bf16_round(a, 4)
    a("v_sqrt_f32 v4, v4\ns_nop 0")
    bf16_round(a, 4)
    a("v_rcp_f32 v6, v4\ns_nop 0\nv_fma_f32 v5, -v4, v6, 1.0\nv_fmac_f32 v6, v5, v6\nv_mov_b32 v9, 0")
    for j in range(10):
        x = X + 2*j
        a(f"v_pk_add_f32 {v(x,2)}, {v(x,2)}, v[2:3] {NEG}\nv_cvt_pk_bf16_f32 v5, v{x}, v{x+1}")
        a(f"v_lshlrev_b32 v{x}, 16, v5\nv_and_b32 v{x+1}, 0xffff0000, v5")
        a(f"v_pk_mul_f32 {v(x,2)}, {v(x,2)}, v[6:7] op_sel_hi:[1,0]\nv_cvt_pk_bf16_f32 v{LX+j}, v{x}, v{x+1}")
    a(f"v_add_u32 v10, {LDS_LN}, v63")
    for j in range(5): a(f"ds_write_b64 v10, {v(LX+2*j,2)} offset:{j*256}")
    a("s_waitcnt lgkmcnt(0)")

def ln_router(a):
    a("v_mov_b32 v2, 0")
    for j in range(10):
        a(f"v_lshlrev_b32 v4, 16, v{LX+j}\nv_lshlrev_b32 v5, 16, v{LW+j}\nv_fmac_f32 v2, v4, v5")
        a(f"v_and_b32 v4, 0xffff0000, v{LX+j}\nv_and_b32 v5, 0xffff0000, v{LW+j}\nv_fmac_f32 v2, v4, v5")
    half_reduce(a, 2)
    a("v_cvt_pk_bf16_f32 v2, v2, v2\nv_and_b32 v2, 0xffff, v2")
    a("v_bfe_i32 v3, v2, 15, 1\nv_and_b32 v3, 0x7fff, v3\nv_or_b32 v3, 0x8000, v3\nv_xor_b32 v2, v2, v3")
    a(f"s_lshl_b32 s7, s2, 3\ns_sub_u32 s6, 2047, s7\nv_sub_u32 v3, s6, v62\nv_lshl_or_b32 v2, v2, 11, v3\nv_lshlrev_b32 v3, 2, v62\nv_add_u32 v3, {LDS_RK}, v3\nds_write_b32 v3, v2\ns_waitcnt lgkmcnt(0)")

def ln_store(a, back):
    LV = 16
    a(f"s_lshr_b32 s72, s2, 1\ns_mul_i32 s72, s72, 20480\ns_and_b32 s7, s2, 1\ns_lshl_b32 s7, s7, 7\ns_add_u32 s72, s72, s7")
    for n in range(3):
        a(f"v_add_u32 v2, {256*n-256}, v0\nv_lshrrev_b32 v3, 3, v2\nv_and_b32 v4, 7, v2")
        a(f"v_mul_u32_u24 v5, 1280, v4\nv_lshl_add_u32 v5, v3, 4, v5\nv_add_u32 v5, {LDS_LN}, v5")
        a(f"ds_read_b128 {v(LV+8*n,4)}, v5\nv_lshlrev_b32 v5, 8, v3\nv_lshl_add_u32 v{6+n}, v4, 4, v5")
    a("s_waitcnt lgkmcnt(0)")
    for n in range(3):
        if n == 2: a(f"s_cmp_ge_u32 s{S_W}, 6\ns_cbranch_scc1 {back}")
        SC = "" if "lnplain" in ABL else " sc1"
        if "nolnst" not in ABL: a(f"buffer_store_dwordx4 {v(LV+8*n,4)}, v{6+n}, {WS}, s72 offen{SC}")
    a.label(back)
    zero_flags(a)

def count_atomic(a, which):
    a.srd(SRD_E, P_DBG, 256)
    a(f"v_mov_b32 v2, 1\nv_lshlrev_b32 v3, 8, v{L}\ns_and_b32 s6, s2, 31\ns_lshl_b32 s6, s6, 2\nbuffer_atomic_add v2, v3, {R(SRD_E)}, s6 offen offset:{128*which} sc1")

def flag_addr(a, kind, d):
    if kind == "kv":
        a(f"s_lshl_b32 s{d}, s{S_H}, 3\ns_add_u32 s{d}, s{d}, s{S_P}\ns_lshl_b32 s{d}, s{d}, 5\ns_add_u32 s{d}, s{d}, s{S_W}\ns_lshl_b32 s{d}, s{d}, 2\ns_add_u32 s{d}, s{d}, {WS_KVF}")
    elif kind == "ctx":
        a(f"s_lshl_b32 s{d}, s{S_B}, 5\ns_add_u32 s{d}, s{d}, s{S_H}\ns_lshl_b32 s{d}, s{d}, 7\ns_add_u32 s{d}, s{d}, {WS_CTXF}")
    elif kind == "b":
        a(f"s_lshl_b32 s{d}, s{S_P}, 5\ns_add_u32 s{d}, s{d}, s{S_H}\ns_lshl_b32 s{d}, s{d}, 5\ns_add_u32 s{d}, s{d}, s{S_W}\ns_lshl_b32 s{d}, s{d}, 2\ns_add_u32 s{d}, s{d}, {WS_BF}")
    else:
        a(f"s_lshl_b32 s{d}, s{S_E}, 5\ns_add_u32 s{d}, s{d}, s{S_W}\ns_lshl_b32 s{d}, s{d}, 2\ns_add_u32 s{d}, s{d}, {WS_MOEF}")

def tile_id(a, d):
    a(f"s_and_b32 s{d}, s{S_H}, 7\ns_lshl_b32 s7, s{S_P}, 3\ns_add_u32 s{d}, s{d}, s7")
def xslot(a, slot, d):
    tile_id(a, d)
    a(f"s_lshr_b32 s7, s{S_H}, 3\ns_add_u32 s7, s7, {slot}\ns_add_u32 s7, s7, 1\ns_and_b32 s7, s7, 3\ns_lshl_b32 s{d}, s{d}, 2\ns_add_u32 s{d}, s{d}, s7\ns_mul_i32 s{d}, s{d}, 3\ns_add_u32 s{d}, s{d}, {slot}")
def xf_addr(a, slot, d):
    xslot(a, slot, d)
    a(f"s_lshl_b32 s{d}, s{d}, 5\ns_add_u32 s{d}, s{d}, s{S_W}\ns_lshl_b32 s{d}, s{d}, 2\ns_add_u32 s{d}, s{d}, {WS_XF}")

def set_flag(a, kind, val=1):
    flag_addr(a, kind, 6)
    a(f"v_mov_b32 v2, {val}\nv_mov_b32 v3, {hex(WS_SIZE)}\nv_writelane_b32 v3, s6, 0\nbuffer_store_dword v2, v3, {WS}, 0 offen sc1")
    a.vm.issue("flag")

def phase_kv(a):
    def rdC(i, sp):
        if "kv_noC" in ABL: return
        a(f"ds_read_b128 {v(CF+4*i,4)}, v{RC+sp} offset:{i*2048}"); a.lg.issue(("C", i))
    def rdW(par, j, half, sp):
        if "kv_noW" in ABL: return
        r = WF + 16*par + 4*j + 2*half
        a(f"ds_read_b64_tr_b16 {v(r,2)}, v{RW+j} offset:{sp*8192 + half*1024}"); a.lg.issue(("W", par, j, half))
    wq = [(j, hf) for j in range(4) for hf in range(2)]
    def body(isK, lab, dma, nend, hook=None):
        def mm(i, j, par):
            if "k" in SNAKE and i & 1: j = 3 - j
            d = ACC + (i*4+j)*4
            a.wait_lg([("C", i), ("W", par, j, 0), ("W", par, j, 1)])
            if isK: a.mfma(d, WF+16*par+4*j, CF+4*i)
            else: a.mfma(d, CF+4*i, WF+16*par+4*j)
        a(".p2align 4")
        a.label(lab)
        if hook:
            a(f"s_bitcmp1_b32 {0x80 if isK else 0xd6}, s{S_ST}\ns_cbranch_scc1 {hook}"); a.label(hook + "_back")
        for i in range(8):
            for j in range(4):
                mm(i, j, 0)
                if i < 2: rdW(1, *wq[i*4+j], 1)
            rdC(i, 1)
        dma = list(dma)
        if "kv_nodma" in ABL: dma = []
        for i in range(8):
            for j in range(4):
                mm(i, j, 1)
                if i == 2 or i == 3: rdW(0, *wq[(i-2)*4+j], 0)
                if i >= 2 and dma:
                    for y in dma.pop(0): a(y)
            if i == 1:
                for r in (RC, RC+1, RW, RW+1, RW+2, RW+3): a(f"v_xor_b32 v{r}, 0x10000, v{r}")
                if isK and hook and "oldb7" not in ABL:
                    a(f"s_cmp_eq_u32 s{S_ST}, 7\ns_cbranch_scc1 L_know\ns_waitcnt vmcnt(0)")
                    a.label("L_know")
                    a("s_waitcnt lgkmcnt(0)\ns_barrier")
                elif isK: a("s_waitcnt vmcnt(0) lgkmcnt(0)\ns_barrier")
                else:
                    a(f"s_bitcmp1_b32 0x48, s{S_ST}\ns_cbranch_scc1 L_vpre")
                    a.label("L_vnow")
                    a("s_waitcnt lgkmcnt(0)\ns_barrier")
                a.lg.drain()
                a.stampd(S_ST, 24)
                rdC(0, 0); rdC(1, 0)
            elif i >= 2: rdC(i, 0)
        emit_groups(a, dma)
        a(f"s_add_u32 s{S_ST}, s{S_ST}, 1\ns_cmp_lt_u32 s{S_ST}, {nend}\ns_cbranch_scc1 {lab}")
    def first_reads():
        a.lg.drain()
        rdC(0, 0); rdC(1, 0)
        for k in range(4): rdW(0, *wq[k], 0)
        rdC(2, 0)
        for k in range(4, 8): rdW(0, *wq[k], 0)
        for i in range(3, 8): rdC(i, 0)
    a(f"s_cmp_ge_u32 s{S_W}, 4\ns_cbranch_scc1 L_kv_v")
    first_reads()
    q0 = list(a.lg.q)
    emit_groups(a, kv_dma_ops()[10:])
    a.stamp(5)
    body(True, "L_kloopA", kv_dma_ops(), 6)
    assert a.lg.q == q0, (a.lg.q, q0)
    body(True, "L_kloopB", wq_dma_ops(2), 8, hook="L_khook" if "kx2" not in ABL else None)
    a.stamp(6)
    a("s_waitcnt lgkmcnt(0)\ns_nop 7")
    for n in range(16):
        t = ACC + 4*n; d0 = ACC + 8*n; d1 = d0 + 4
        a(f"v_cvt_pk_bf16_f32 v{t}, v{d0}, v{d0+1}\nv_cvt_pk_bf16_f32 v{t+1}, v{d0+2}, v{d0+3}")
        a(f"v_cvt_pk_bf16_f32 v{t+2}, v{d1}, v{d1+1}\nv_cvt_pk_bf16_f32 v{t+3}, v{d1+2}, v{d1+3}")
    a("s_waitcnt vmcnt(16)\ns_branch L_q")
    a.label("L_hook")
    for k in (1, 2, 4, 6): a(f"s_cmp_eq_u32 s{S_ST}, {k}\ns_cbranch_scc1 L_hook{k}")
    a(f"s_cmp_lg_u32 s{S_ST}, 7\ns_cbranch_scc1 L_hook_back")
    for ks in range(3): x_load(a, ks, XEARLY[2*ks:2*ks+2])
    a("s_branch L_hook_back")
    a.label("L_hook1")
    if LNH == 1: ln_store(a, "L_lns")
    for st in TV1: kv_touch(a, st)
    a("s_branch L_hook_back")
    a.label("L_hook2")
    if LNH == 2: ln_store(a, "L_lns")
    for st in TV2: kv_touch(a, st)
    a("s_branch L_hook_back")
    a.label("L_hook4")
    WOTR = [16, 20, 24, 28, 32]
    a(f"s_cmp_lg_u32 s{S_W}, 4\ns_cbranch_scc1 L_hook4b")
    count_atomic(a, 0)
    a.label("L_hook4b")
    a(f"s_lshl_b32 s74, s76, 12\ns_add_u32 s74, s74, {LDS_SP}")
    emit_groups(a, wq_dma_ops(1))
    a("s_branch L_hook_back")
    a.label("L_hook6")
    a(f"s_cmp_lg_u32 s{S_W}, 5\ns_cbranch_scc1 L_hook_back")
    cnt_addr(a); a(cnt_load(a, 62, 0))
    a("s_branch L_hook_back")
    a.label("L_vpre")
    a(f"s_waitcnt vmcnt(0)\ns_lshl_b32 s6, s{S_ST}, 4\ns_add_u32 s6, s6, s{S_W}\ns_cmp_lg_u32 s6, 0x65\ns_cbranch_scc1 L_vnow")
    cnt_check(a, 62, 0)
    a("s_branch L_vnow")
    a.label("L_khook")
    a(f"s_cmp_lg_u32 s{S_ST}, 7\ns_cbranch_scc1 L_khook_back")
    for ks in range(3): x_load(a, ks, XEARLY[2*ks:2*ks+2])
    a("s_branch L_khook_back")
    a.label("L_kv_v")
    first_reads()
    for st in TV0: kv_touch(a, st)
    a.stamp(5)
    body(False, "L_vloop", [], 8, hook="L_hook")
    a.stamp(6)
    a("s_waitcnt lgkmcnt(0)\ns_nop 7")
    for ii in range(4):
        for j in range(4):
            t = ACC + 16*ii + 4*j; d0 = ACC + 32*ii + 4*j; d1 = d0 + 16
            a(f"v_cvt_pk_bf16_f32 v{t}, v{d0}, v{d0+1}\nv_cvt_pk_bf16_f32 v{t+1}, v{d0+2}, v{d0+3}")
            a(f"v_cvt_pk_bf16_f32 v{t+2}, v{d1}, v{d1+1}\nv_cvt_pk_bf16_f32 v{t+3}, v{d1+2}, v{d1+3}")
    a("s_waitcnt vmcnt(0)")

QF, O_, S_, FR, P_, NM, T_, L_, ET = 16, 192, 64, 96, 128, 144, 52, 56, 58
VA, VDK, VDV = 48, 49, 50
S_N, S_NL, S_C, S_THR = 62, 63, 64, 65
LA, ONES, SIDX = 160, 164, 168
OFFS = 0x41c00000
def Sreg(par, kt, qt): return S_ + 16*par + (kt*2+qt)*4
def NMreg(kt, qt): return NM + (kt*2+qt)*4
def Oreg(t, qt): return O_ + (t*2+qt)*4
def Qreg(qt, s): return QF + (qt*4+s)*4
def Preg(par, qt): return P_ + 8*par + 4*qt
def Treg(par, qt): return T_ + 2*par + qt

def xlane(a, op, r, t):
    for sw in ("v_permlane16_swap_b32", "v_permlane32_swap_b32"):
        a(f"v_mov_b32 v{t}, v{r}\ns_nop 1\n{sw} v{r}, v{t}\ns_nop 1\n{op} v{r}, v{r}, v{t}")

def st_dma(a, parts):
    if "K" in parts:
        for hf in range(2):
            a(f"s_lshl_b32 s6, s76, 13\ns_add_u32 s6, s6, s78\ns_add_u32 m0, s6, {hf*4096}\ns_add_u32 s7, s77, {hf*4096}")
            for i in range(4): a(f"buffer_load_dwordx4 v{VDK}, {WS}, s7 offen offset:{i*1024} sc1 lds")
    for hf in range(2):
        if f"V{hf}" in parts:
            a(f"s_lshl_b32 s6, s76, 12\ns_add_u32 s6, s6, s78\ns_add_u32 m0, s6, {32768+hf*16384}\ns_add_u32 s7, s77, {0x80000-16384+hf*16384}")
            for i in range(4): a(f"buffer_load_dwordx4 v{VDV}, {WS}, s7 offen offset:{i*1024} sc1 lds")

S_HK, S_ALL = 89, 90
def kv_self_touch(a):
    a(f"v_lshrrev_b32 v9, 3, v{L}\ns_cmp_lt_u32 s{S_W}, 4\ns_cselect_b32 s7, 6, 4\nv_and_b32 v10, s7, v9\nv_add_u32 v9, v9, v10\nv_lshlrev_b32 v9, 10, v9")
    a(f"v_and_b32 v10, 7, v{L}\nv_lshl_add_u32 v9, v10, 7, v9\ns_sub_u32 s6, s{S_KVD}, 32768")
    a(f"buffer_load_dword v{VDUM}, v9, {WS}, s6 offen sc1\ns_add_u32 s6, s6, 16384\nbuffer_load_dword v{VDUM}, v9, {WS}, s6 offen sc1")

def kvf_addr(a):
    a(f"s_lshl_b32 s7, s{S_H}, 10\ns_add_u32 s7, s7, {WS_KVF}\nv_lshrrev_b32 v2, 3, v{L}\nv_and_b32 v3, 7, v{L}\nv_lshlrev_b32 v3, 2, v3\nv_lshl_add_u32 v3, v2, 7, v3")
def kv_flag_wait(a, level):
    kvf_addr(a)
    poll(a, f"buffer_load_dword v2, v3, {WS}, s7 offen sc1", f"v_cmp_gt_u32 vcc, {level}, v2")

KS_POLL = int(os.environ.get("KSP", "15"))
LATE_KS = tuple(int(x) for x in os.environ.get("STKS", "0,1,2,3,16,17,18,19").split(","))
KS_FLAG = int(os.environ.get("KSF", "6"))
NEARLY = int(os.environ.get("NEARLY", "2"))
def kv_store(a, n, late=True):
    if late and "nolate" in ABL: return
    a(f"buffer_store_dwordx4 {v(ACC+4*n,4)}, v{VL16}, {WS}, s{S_KVD} offen sc1"); a.vm.issue(("st", n))
    inc = ("1024", f"s{S_INCA}", "1024", f"s{S_INCB}")[n & 3]
    a(f"s_add_u32 s{S_KVD}, s{S_KVD}, {inc}")
def q_body(a):
    sfx = ""
    a.lg.drain(); a.vm.drain()
    def rdW(t, hf, ks):
        blk = ks >> 2
        off = (0, 0, 32768, 0, 32768)[blk] + (ks & 3)*8192 + hf*1024
        a(f"ds_read_b64_tr_b16 {v(WF+4*t+2*hf,2)}, v{QRW+t} offset:{off}"); a.lg.issue(("W", t, hf))
    for t in range(8):
        rdW(t, 0, 0); rdW(t, 1, 0)
    xr = {ks: XEARLY[2*ks:2*ks+2] for ks in range(3)}
    for ks in range(3, 7):
        xr[ks] = [CF + 8*(ks-3), CF + 8*(ks-3) + 4]
        x_load(a, ks, xr[ks])
    nst = 0
    for ks in range(20):
        pend = []
        a.wait_vm(("X", ks))
        if ks % 2 == 0: a.stamp(32 + ks//2)
        barrier_here = ks == 11 or (ks == 3 and "oldb7" not in ABL)
        upd = {3: -LDS_SP, 11: 65536}.get(ks)
        st_at = (3,) if ks in LATE_KS else ()
        for t in range(8):
            for qt in range(2):
                if qt == 0: a.wait_lg([("W", t, 0), ("W", t, 1)])
                q = qt ^ (t & 1) if "q" in SNAKE else qt
                a.mfma(Oreg(t, q), WF+4*t, xr[ks][q], "0" if ks == 0 else None)
                if qt == 1 and ks < 19: pend += [(t, 0), (t, 1)]
                if barrier_here and t == 1 and qt == 1:
                    a("s_waitcnt lgkmcnt(0)\ns_barrier"); a.lg.drain()
                    while len(pend) > 2: rdW(*pend.pop(0), ks+1)
                if pend and not (barrier_here and (t, qt) < (1, 1)): rdW(*pend.pop(0), ks+1)
                if upd is not None and qt == 0:
                    a(f"v_add_u32 v{QRW+t}, s101, v{QRW+t}" if ks == 3 else f"v_xor_b32 v{QRW+t}, 0x10000, v{QRW+t}")
                if qt == 0 and t in st_at and nst < 16:
                    kv_store(a, nst); nst += 1
        while pend: rdW(*pend.pop(0), ks+1)
        if ks + 7 < 20:
            xr[ks+7] = xr[ks]; x_load(a, ks+7, xr[ks])
        if ks == KS_FLAG:
            a.wait_vm(("st", 3))
            set_flag(a, "kv", 1)
        if ks == KS_POLL:
            a.wait_vm(("X", 19))
            a(f"s_cmp_ge_u32 s{S_W}, 4\ns_cbranch_scc1 L_q_nold{sfx}")
            a.stamp(20)
            kv_flag_wait(a, 1)
            a.stamp(21)
            st_dma(a, ["K", "V1"])
            a.label(f"L_q_nold{sfx}")
    assert nst == len(LATE_KS) and 8 <= nst <= 12

def phase_q(a):
    a.label("L_q")
    a.srd(SRD_E, P_DBG, 256)
    a(f"s_lshl_b32 s6, s76, 13\nv_add_u32 v{VDK}, s6, v{VL16}\ns_lshl_b32 s6, s76, 12\nv_add_u32 v{VDV}, s6, v{VL16}")
    a(f"s_lshl_b32 s77, s{S_H}, 20\ns_add_u32 s77, s77, {WS_KV}\ns_mov_b32 s78, s100\ns_sub_u32 s101, s100, {LDS_SP}\ns_mov_b32 s{S_ALL}, 0")
    a(f"s_cmp_lt_u32 s{S_W}, 4\ns_cselect_b32 s{S_HK}, 3, 2")
    q_body(a)
    a.stamp(7)
    if "symq" not in ABL:
        a(f"s_cmp_lt_u32 s{S_W}, 4\ns_cbranch_scc1 L_qb\ns_barrier")
        a.label("L_qb")
    a("s_mov_b32 s6, 0x3e0293ee\ns_nop 7")
    for qt in range(2):
        for n in range(len(LATE_KS), 12):
            if (n & 1) == qt or 12 - len(LATE_KS) == 1: pass
        if qt == 0:
            for n in range(len(LATE_KS), 12): kv_store(a, n)
        for s_ in range(4):
            for hf in range(2):
                d = Oreg(2*s_+hf, qt)
                for r in range(4): a(f"v_mul_f32 v{d+r}, s6, v{d+r}")
                a(f"v_cvt_pk_bf16_f32 v{Qreg(qt,s_)+2*hf}, v{d}, v{d+1}\nv_cvt_pk_bf16_f32 v{Qreg(qt,s_)+2*hf+1}, v{d+2}, v{d+3}")
    zero_regs(a, O_, 64)
    zero_regs(a, NM, 16)
    zero_regs(a, LA, 4)
    a(f"v_bfe_u32 v2, v{L}, 1, 1\nv_lshrrev_b32 v3, 5, v{L}\nv_cmp_eq_u32 vcc, v2, v3\nv_mov_b32 v2, 0x3f803f80\nv_and_b32 v3, 1, v{L}\nv_mul_u32_u24 v3, 0xaaaa, v3\nv_add_u32 v{SIDX}, 0x4444, v3")
    for i in range(4): a(f"v_cndmask_b32 v{ONES+i}, 0, v2, vcc")
    a(f"v_add_u32 v{VA}, s100, v{VL16}")
    a(f"s_waitcnt vmcnt({12 - len([k for k in LATE_KS if k <= KS_POLL])})")

def sm_ops(par):
    ops = []
    n = 0
    for kt in range(2):
        for qt in range(2):
            for r in range(4):
                t, tp = ET + n % 4, ET + (n-1) % 4
                e = f"v_exp_f32 v{t}, v{Sreg(par,kt,qt)+r}"
                rest = []
                if r & 1: rest.append(f"v_cvt_pk_bf16_f32 v{Preg(par,qt)+2*kt+(r>>1)}, v{tp}, v{t}")
                ops.append((e, rest)); n += 1
    return ops

def phase_attn(a):
    handlers = []
    FULLQ = [("F", i) for i in range(1, 8)]
    def rd(kind, i, k):
        off = (0 if kind == "K" else 32768) + k*8192 + i*1024
        a(f"ds_read_b128 {v(FR+4*i,4)}, v{VA} offset:{off}"); a.lg.issue(("F", i))
    def bar(wait="vmcnt(0) lgkmcnt(0)", mid=None, hot=False):
        bk = a.newlabel("ldback")
        if hot:
            a(f"s_cbranch_scc1 {bk}_c\ns_barrier")
            a.label(bk)
            handlers.append(("ld", bk))
        else:
            a(f"s_waitcnt {wait}\ns_call_b64 s[82:83], L_pend\ns_barrier")
            if mid: mid()
            a(f"s_call_b64 s[82:83], L_load")
        a.lg.drain()
        if "stampbar" in ABL: a.stampd(S_N, 44)
        a(f"s_add_i32 s{S_N}, s{S_N}, 1")
    def stage(k, qk=True, sm=True, pv=True, nxt=True, loop=False):
        pq, ps = k & 1, 1 - (k & 1)
        full = qk and pv
        pairs = []
        if pv: pairs += [("V", i) for i in range(8)]
        if qk: pairs += [("K", i) for i in range(8)]
        NP = len(pairs)
        lp = None if not pv else 1 if not full else LPOS - 1 if k == 3 else 13
        g0 = [[] for _ in range(NP)]; g1 = [[] for _ in range(NP)]; gl = []
        if sm:
            ops = sm_ops(ps)[2:]
            g1[0] += sm_ops(ps)[1][1]
            per = 1 if full else 2
            for n, (e, rest) in enumerate(ops):
                g0[n//per].append(e); g1[n//per] += rest
            c = [Preg(ps, qt) + 2*kt + h for kt in range(2) for qt in range(2) for h in range(2)]
            X = ET + 4
            chk = [f"v_or3_b32 v{X}, v{c[0]}, v{c[1]}, v{c[2]}", f"v_or3_b32 v{X}, v{X}, v{c[3]}, v{c[4]}", f"v_or3_b32 v{X}, v{X}, v{c[5]}, v{c[6]}",
                   f"v_bitop3_b32 v{X}, v{X}, v{c[7]}, s72 bitop3:0xa8", f"v_cmp_ne_u32 vcc, s{S_THR}, v{X}"]
            if full:
                g1[4].append(chk[0]); g1[8].append(chk[1]); g1[12].append(chk[2])
                (gl if lp == 13 else g1[14]).append(chk[3]); g1[14].append(chk[4])
            else: g0[7] += chk
        if full:
            for n, (e, rest) in enumerate(sm_ops(pq)[:2]): g0[14+n].append(e)
        sc = {}
        if loop:
            sc[1] = f"s_sub_i32 s{S_C}, s{S_C}, 1"; sc[3] = f"s_cmp_gt_i32 s{S_C}, 0"; sc[5] = f"s_cselect_b32 s{S_THR}, 0, 1"
            if k == 3: sc[lp-1] = f"s_cmp_lg_u32 s{S_HK}, 0"
        barp = lp if k == 3 else None
        if barp is not None: g1[barp-1].append(f"v_xor_b32 v{VA}, 0x10000, v{VA}")
        held = []
        for n, (kind, i) in enumerate(pairs):
            for qt in range(2):
                q = qt ^ (i & 1) if "a" in SNAKE else qt
                if kind == "V": a.mfma(Oreg(i, q), FR+4*i, Preg(pq, q))
                else: a.mfma(Sreg(pq, i >> 2, q), FR+4*i, Qreg(q, i & 3), None if i & 3 else NMreg(i >> 2, q))
                if qt == 0:
                    if n + 1 < NP: a.wait_lg(("F", pairs[n+1][1]))
                    elif nxt: a.wait_lg(("F", 0))
                    for x in g0[n]: a(x)
                else:
                    if n in sc: a(sc[n])
                    if n == barp and loop:
                        a("s_waitcnt lgkmcnt(0)"); a.lg.drain()
                    if kind == "V" and qk: rd("K", i, k)
                    elif nxt:
                        if barp is not None and n <= barp: held.append(i)
                        else: rd("V", i, (k+1) & 3)
                    for x in g1[n]: a(x)
            if n == lp:
                a(f"v_smfmac_f32_16x16x64_bf16 {v(LA,4)}, {v(ONES,4)}, {v(Preg(pq,0),8)}, v{SIDX}")
                for x in gl: a(x)
                if n == barp:
                    bar(hot=loop)
                    for h in held: rd("V", h, 0)
        if sm:
            bk = a.newlabel("back")
            if loop and k == 3:
                a(f"s_cbranch_vccz L_st0\ns_branch {bk}_h")
                handlers.append(("sm", bk, k, loop, full, "L_st0"))
            else:
                a(f"s_cbranch_vccnz {bk}_h")
                a.label(bk)
                handlers.append(("sm", bk, k, loop, full, bk))
    a(f"s_mov_b32 s72, 0x40004000\ns_mov_b32 s{S_THR}, 0\ns_sub_u32 s{S_NL}, 15, s{S_P}\ns_mov_b32 s{S_N}, -1")
    a.stamp(8)
    if "symq" in ABL: bar("lgkmcnt(0)")
    else:
        a(f"s_cmp_ge_u32 s{S_W}, 4\ns_cbranch_scc1 L_qb2\ns_barrier")
        a.label("L_qb2")
        a.lg.drain()
        if "stampbar" in ABL: a.stampd(S_N, 44)
    a.stamp(9)
    for i in range(8): rd("K", i, 0)
    a(f"s_cmp_lg_u32 s{S_B}, 0\ns_cbranch_scc1 L_nm0\ns_call_b64 s[82:83], L_mask")
    a.label("L_nm0")
    for i in range(8):
        a.wait_lg(("F", i))
        for qt in range(2):
            a.mfma(Sreg(0, i >> 2, qt), FR+4*i, Qreg(qt, i & 3), None if i & 3 else NMreg(i >> 2, qt))
        rd("K", i, 1)
    a("s_nop 7")
    for qt in range(2):
        m = ET + qt
        s0, s1 = Sreg(0, 0, qt), Sreg(0, 1, qt)
        a(f"v_max3_f32 v{m}, v{s0}, v{s0+1}, v{s0+2}\nv_max3_f32 v{m}, v{m}, v{s0+3}, v{s1}\nv_max3_f32 v{m}, v{m}, v{s1+1}, v{s1+2}\nv_max_f32 v{m}, v{m}, v{s1+3}")
        xlane(a, "v_max_f32", m, ET+2)
        a(f"v_add_f32 v{m}, {hex(OFFS)}, v{m}")
        for kt in range(2):
            for r in range(4):
                a(f"v_sub_f32 v{Sreg(0,kt,qt)+r}, v{Sreg(0,kt,qt)+r}, v{m}\nv_sub_f32 v{NMreg(kt,qt)+r}, 0, v{m}")
    a(f"s_cmp_lg_u32 s{S_B}, 1\ns_cbranch_scc1 L_nm1\ns_call_b64 s[82:83], L_mask")
    a.label("L_nm1")
    def early(par):
        o = sm_ops(par)[:2]
        a(o[0][0]); a(o[1][0])
    early(0)
    a.wait_lg(("F", 0))
    stage(1, pv=False)
    assert a.lg.q == FULLQ
    a("s_nop 7")
    early(1)
    if "symq" not in ABL: a(f"s_call_b64 s[82:83], L_load\ns_mov_b32 s{S_N}, 0")
    for n in range(12, 16): kv_store(a, n)
    a(f"s_sub_i32 s{S_C}, s{S_B}, 2")
    a.stamp(10)
    a(f"s_cmp_eq_u32 s{S_B}, 0\ns_cbranch_scc1 L_pv2\ns_cmp_eq_u32 s{S_B}, 1\ns_cbranch_scc1 L_tail2")
    a(f"s_cmp_lg_u32 s{S_B}, 2\ns_cbranch_scc1 L_st2\ns_call_b64 s[82:83], L_mask\ns_branch L_st2")
    a(".p2align 6")
    a.label("L_st0")
    for k in range(4):
        if k == 2: a.label("L_st2")
        stage(k, loop=True)
        assert a.lg.q == FULLQ, a.lg.q
    for k in range(4):
        a.label(f"L_tail{k}")
        a.lg.q = list(FULLQ)
        a(f"s_mov_b32 s{S_THR}, 0")
        stage(k, qk=False)
        assert a.lg.q == FULLQ
        a.label(f"L_pv{(k+1)&3}")
        stage((k+1) & 3, qk=False, sm=False, nxt=False)
        if k == 1 and "nopvb" not in ABL:
            a(f"s_cmp_eq_u32 s{S_B}, 0\ns_cbranch_scc1 L_fin")
            bar()
        if k < 3: a("s_branch L_fin")
    a.label("L_fin")
    a.stamp(11)
    idx_addr(a); a(f"buffer_load_dword v{VIDX}, v3, {WS}, s72 offen sc1")
    for qt in range(2): a(f"v_add_f32 v{L_+qt}, v{LA+2*qt}, v{LA+2*qt+1}\nv_rcp_f32 v{L_+qt}, v{L_+qt}")
    a(f"s_lshl_b32 s6, s{S_B}, 18\ns_lshl_b32 s7, s{S_H}, 12\ns_add_u32 s6, s6, s7\ns_add_u32 s6, s6, {WS_CTX}\ns_nop 4")
    n = 0
    a.vm.drain()
    for qt in range(2):
        for s_ in range(4):
            t = QF + 4*n; n += 1
            for hf in range(2):
                d = Oreg(2*s_+hf, qt)
                for r in range(4): a(f"v_mul_f32 v{d+r}, v{L_+qt}, v{d+r}")
                a(f"v_cvt_pk_bf16_f32 v{t+2*hf}, v{d}, v{d+1}\nv_cvt_pk_bf16_f32 v{t+2*hf+1}, v{d+2}, v{d+3}")
            a(f"buffer_store_dwordx4 {v(t,4)}, v{VL16}, {WS}, s6 offen offset:{s_*1024} sc1"); a.vm.issue("st")
        if qt == 0: a("s_add_u32 s6, s6, 0x20000")
    a.stamp(12)
    def flag_now():
        a("s_waitcnt vmcnt(0)")
        set_flag(a, "ctx")
    a(f"s_cmp_gt_i32 s{S_N}, s{S_NL}\ns_cbranch_scc1 L_pre")
    bar("vmcnt(8)", flag_now)
    a(f"s_lshl_b32 s6, s{S_W}, 8\ns_add_u32 s6, s6, s2\ns_cmp_eq_u32 s6, {DESIG}\ns_cbranch_scc1 L_top")
    a.label("L_idle")
    a(f"s_sub_i32 s6, s{S_NL}, 5\ns_cmp_gt_i32 s{S_N}, s6\ns_cbranch_scc1 L_pre")
    bar()
    a(f"s_cmp_lt_u32 s{S_E}, 54\ns_cbranch_scc1 L_moe\ns_branch L_idle")
    a.label("L_pre")
    a(f"s_cmp_lt_u32 s{S_W}, 4\ns_cbranch_scc1 L_pre1")
    a.stamp(19)
    a("s_barrier")
    a(f"s_lshl_b32 s7, s76, 13\ns_add_u32 s7, s7, 0x10000\nv_add_u32 v3, s7, v{VL16}\nv_add_u32 v2, 0x10000, v3\ns_lshl_b32 s7, s76, 12\ns_add_u32 s7, s7, 0x10000\nv_add_u32 v12, s7, v{VL16}")
    def wrd(fs):
        for f in fs:
            r, off = (2, f*1024) if f < 8 else (3, (f-8)*1024) if f < 16 else (12, 49152+(f-16)*1024)
            a(f"ds_read_b128 {v(WR+4*f,4)}, v{r} offset:{off}")
    wrd(range(12))
    out_setup(a, 1)
    out_cx(a)
    wrd(range(12, 20))
    NWF = int(os.environ.get("NWF", "1"))
    for i in range(4, 4+NWF): wo_load(a, i)
    a(f"s_waitcnt vmcnt({5*NWF})")
    set_flag(a, "ctx")
    for i in range(4+NWF, 8): wo_load(a, i)
    a("s_waitcnt lgkmcnt(0)\ns_barrier")
    a("s_branch L_adone")
    a.label("L_pre1")
    cnt_addr(a); poll(a, cnt_load(a, 2, 1), "v_cmp_gt_u32 vcc, 4, v2", sleep=8)
    a(f"s_mov_b32 s{S_ALL}, 1")
    out_setup(a, 0)
    if "xnt" in ABL:
        a.srd(SRD_A, P_X, 2048*640*2)
        a(f"v_min_u32 v2, 39, v{L}\nv_mul_u32_u24 v3, 52, v2\nv_lshrrev_b32 v3, 8, v3\nv_mul_u32_u24 v4, 5, v3\nv_sub_u32 v2, v2, v4\nv_mul_u32_u24 v3, 1280, v3\nv_lshl_add_u32 v2, v2, 6, v3")
        a(f"s_cmp_lt_u32 s{S_W}, 2\ns_cselect_b32 s6, s{S_OB}, s{S_OL}\ns_lshl_b32 s6, s6, 1\ns_and_b32 s7, s{S_W}, 1\ns_add_u32 s6, s6, s7\ns_mul_i32 s6, s6, 10240\ns_and_b32 s7, s{S_H}, 3\ns_mul_i32 s7, s7, 320\ns_add_u32 s6, s6, s7")
        a(f"buffer_load_dword v{VDUM}, v2, {R(SRD_A)}, s6 offen")
    for j in range(5):
        if j == 3: y_look(a)
        if j == 4: y_try(a)
        PIECES = eval(os.environ.get("PIECES", "((), (0,1,2), (3,4,5), (6,7))"))
        if j < 4:
            for i in PIECES[j]: wo_load(a, i)
        if j == 4:
            ctxf_addr(a, S_OB); a(f"buffer_load_dword v50, v3, {WS}, s72 offen sc1")

        if j == 0: a(f"s_sub_i32 s6, s{S_NL}, 4\ns_cmp_gt_i32 s{S_N}, s6\ns_cbranch_scc1 L_e{j+2}")
        else: a(f"s_cmp_gt_i32 s{S_N}, s{S_NL}\ns_cbranch_scc1 L_e{j+2}")
        if j < 4:
            a(f"s_cmp_eq_i32 s{S_N}, s{S_NL}\ns_cbranch_scc1 L_lw{j}\ns_waitcnt vmcnt({5*len(PIECES[j]) + (j == 0)})")
            a.label(f"L_lw{j}")
        bar(f"vmcnt({20 if 'nocode2' in ABL else 21})")
        a.label(f"L_e{j+2}")
    a.stamp(22)
    moe_finish(a)
    out_cx(a)
    a("s_waitcnt vmcnt(0)\nv_cmp_ne_u32 vcc, 1, v50\ns_cbranch_vccz L_ce")
    ctxf_addr(a, S_OB)
    poll(a, f"buffer_load_dword v2, v3, {WS}, s72 offen sc1", "v_cmp_ne_u32 vcc, 1, v2", sleep=4)
    a.label("L_ce")
    for r in range(NPC):
        for x in ctx_dma(r) + ctx_dma(r, 16384): a(x)
    y_is(a, "L_yg")
    set_flag(a, "b")
    a("s_waitcnt vmcnt(1)\ns_branch L_ye")
    a.label("L_yg")
    a("s_waitcnt vmcnt(0)")
    a.label("L_ye")
    a.stamp(23)
    a("s_setprio 0")
    a.stamp(19)
    a("s_barrier")
    for r in range(NPC, 2):
        for x in ctx_dma(r) + ctx_dma(r, 16384): a(x)
    a.stamp(15)
    a("s_branch L_adone")
    y_loads(a)
    moe_steps(a, bar)
    top8(a, bar)
    for h in handlers:
        if h[0] == "ld":
            a.label(h[1] + "_c"); a(f"s_waitcnt vmcnt(0) lgkmcnt(0)\ns_call_b64 s[82:83], L_pend\ns_barrier\ns_call_b64 s[82:83], L_load\ns_branch {h[1]}")
        else:
            _, bk, k, loop, full, back = h
            a.label(bk + "_h")
            a(f"v_cmp_ne_u32 vcc, 0, v{ET+4}\ns_cbranch_vccz {bk}_n\ns_call_b64 s[80:81], L_rare{1-(k&1)}")
            if full:
                o = sm_ops(k & 1)[:2]
                a(o[0][0]); a(o[1][0])
            a.label(bk + "_n")
            if loop:
                a(f"s_cmp_lt_i32 s{S_C}, 0\ns_cbranch_scc1 L_tail{(k+1)&3}\ns_cmp_gt_i32 s{S_C}, 0\ns_cbranch_scc1 {back}\ns_call_b64 s[82:83], L_mask")
            a(f"s_branch {back}")
    a.label("L_load")
    a(f"s_bitcmp1_b32 s{S_HK}, 0\ns_cbranch_scc0 L_load_r")
    a(f"s_add_u32 s77, s77, 32768\ns_xor_b32 s78, s78, 0x10000\ns_add_i32 s73, s{S_N}, 1\ns_cmp_gt_i32 s73, s{S_NL}\ns_cbranch_scc1 L_load_r")
    if "at_nodma" not in ABL:
        a(f"s_cmp_eq_i32 s73, s{S_NL}\ns_cbranch_scc1 L_load_v\ns_cmp_lg_i32 s73, 3\ns_cbranch_scc1 L_load_k")
        a("v_cmp_gt_u32 vcc, 2, v12\ns_cbranch_vccz L_load_k")
        kv_flag_wait(a, 2)
        a.label("L_load_k")
        st_dma(a, ["K", "V1"])
        a.label("L_load_v")
        st_dma(a, ["V0"])
    a(f"s_cmp_eq_i32 s73, s{S_NL}\ns_cbranch_scc1 L_xa\ns_cmp_lg_i32 s73, 2\ns_cbranch_scc1 L_nolook")
    kvf_addr(a); a(f"buffer_load_dword v12, v3, {WS}, s7 offen sc1")
    a.label("L_nolook")
    a(f"s_bitcmp1_b32 {WOTM}, s{S_P}\ns_cbranch_scc0 L_wb\ns_sub_i32 s6, s{S_N}, {WOTN}\ns_cmp_gt_u32 s6, 4\ns_cbranch_scc0 L_wsel")
    a.label("L_wb")
    a(f"s_cmp_lt_u32 s{S_P}, 4\ns_cbranch_scc1 L_load_r")
    a(f"s_sub_i32 s79, s73, 1\ns_cmp_lt_u32 s79, 2\ns_cbranch_scc1 L_x3")
    a.label("L_load_r")
    a("s_setpc_b64 s[82:83]")
    a.label("L_pend")
    a(f"s_bitcmp1_b32 s{S_HK}, 1\ns_cbranch_scc0 L_load_a\ns_cmp_lt_i32 s{S_N}, 0\ns_cbranch_scc1 L_load_a")
    set_flag(a, "kv", 2)
    a(f"s_and_b32 s{S_HK}, s{S_HK}, 1")
    a.label("L_load_a")
    a("s_setpc_b64 s[82:83]")
    def wo_dma(fs, m0base, m0off):
        for i, f in enumerate(fs):
            a(f"s_add_u32 m0, {m0base}, {m0off + i*1024}\ns_add_u32 s7, s{84 + f%5}, {(f//5)*40960}\nbuffer_load_dwordx4 v{VL16}, {WS}, s7 offen sc1 lds")
    WOTR = [172, 176, 180, 184, 188]
    a.label("L_wsel")
    a(f"s_bfm_b32 s7, s{S_P}, 0\ns_and_b32 s7, s7, {WOTM}\ns_bcnt1_i32_b32 s7, s7\ns_lshl_b32 s7, s7, 5\ns_and_b32 s91, s2, 31\ns_add_u32 s91, s91, s7\ns_lshl_b32 s91, s91, 1\ns_lshr_b32 s7, s6, 1\ns_add_u32 s91, s91, s7\ns_cmp_eq_u32 s6, 4\ns_cbranch_scc1 L_w2\ns_bitcmp1_b32 s6, 0\ns_cbranch_scc1 L_w1")
    a.label("L_w0")
    a.srd(SRD_E, P_WO, 4096*640*2)
    a(f"s_lshr_b32 s75, s91, 1\ns_mul_i32 s75, s75, {32*1280}\ns_and_b32 s6, s91, 1\ns_mul_i32 s6, s6, 640\ns_add_u32 s75, s75, s6\ns_movk_i32 s7, 1639")
    a(f"s_mul_i32 s74, s76, 5120\ns_add_u32 s74, s74, {LDS_WOT}\ns_mul_i32 s6, s76, 320\nv_add_u32 v9, s6, v{L}")
    for n in range(5):
        a(f"v_add_u32 v2, {n*64}, v9\nv_mul_lo_u32 v3, v2, s7\nv_lshrrev_b32 v3, 16, v3\nv_mul_u32_u24 v4, 40, v3\nv_sub_u32 v4, v2, v4")
        a(f"v_mul_u32_u24 v3, 1280, v3\nv_lshl_add_u32 v3, v4, 4, v3\ns_add_u32 m0, s74, {n*1024}\ns_nop 0")
        a(f"buffer_load_dwordx4 v3, {R(SRD_E)}, s75 offen{NT} lds")
    a("s_branch L_wb")
    a.label("L_w1")
    a(f"v_and_b32 v2, 15, v{L}\nv_lshrrev_b32 v3, 4, v{L}\nv_lshrrev_b32 v4, 2, v2\nv_lshl_add_u32 v4, v3, 2, v4\nv_mul_u32_u24 v4, 640, v4")
    a(f"v_and_b32 v2, 3, v2\nv_lshl_add_u32 v4, v2, 3, v4\ns_mul_i32 s6, s76, 160\ns_add_u32 s6, s6, {LDS_WOT}\nv_add_u32 v4, s6, v4")
    a(f"s_mul_i32 s6, s91, 20480\ns_mul_i32 s7, s76, 5120\ns_add_u32 s6, s6, s7\ns_add_u32 s6, s6, {WS_WOF}\ns_add_u32 s7, s6, 4096")
    for n in range(5):
        d = WOTR[n]
        a(f"ds_read_b64_tr_b16 v[{d}:{d+1}], v4 offset:{n*32}\nds_read_b64_tr_b16 v[{d+2}:{d+3}], v4 offset:{n*32+10240}")
    a("s_waitcnt lgkmcnt(0)")
    for n in range(5):
        a(f"buffer_store_dwordx4 {v(WOTR[n],4)}, v{VL16}, {WS}, s{6 if n<4 else 7} offen offset:{(n&3)*1024} sc1")
    a("s_branch L_wb")
    a.label("L_w2")
    a(f"s_cmp_lg_u32 s{S_W}, 0\ns_cbranch_scc1 L_wb")
    count_atomic(a, 1)
    a("s_branch L_wb")
    a.label("L_xa")
    a(f"s_cmp_lg_u32 s{S_ALL}, 0\ns_cbranch_scc1 L_xa1")
    cnt_addr(a); poll(a, cnt_load(a, 2, 1), "v_cmp_gt_u32 vcc, 4, v2", sleep=8)
    a.label("L_xa1")
    if "nocode2" not in ABL:
        a("s_getpc_b64 s[80:81]")
        a.label("L_pc2")
        a(f"s_sub_u32 s80, s80, L_pc2-L_fin\ns_subb_u32 s81, s81, 0\ns_and_b32 s6, s{S_H}, 1\ns_lshl_b32 s6, s6, 14\nv_lshl_add_u32 v3, v0, 6, s6")
        a(f"v_min_u32 v3, L_exit-L_fin, v3\nglobal_load_dword v{VDUM}, v3, s[80:81]")
    if "xt" in ABL:
        a.srd(SRD_A, P_X, 2048*640*2)
        a(f"v_lshrrev_b32 v2, 2, v{L}\nv_mul_u32_u24 v2, 1280, v2\nv_and_b32 v3, 3, v{L}\nv_lshl_add_u32 v2, v3, 6, v2")
        a(f"s_lshl_b32 s6, s{S_H}, 2\ns_add_u32 s6, s6, s{S_W}\ns_mul_i32 s73, s6, 20480\ns_mul_i32 s7, s{S_P}, 160\ns_andn2_b32 s7, s7, 63\ns_add_u32 s7, s7, s73")
        a(f"buffer_load_dword v{VDUM}, v2, {R(SRD_A)}, s7 offen\nv_min_u32 v2, 39, v{L}\nv_lshlrev_b32 v2, 6, v2\ns_mul_i32 s7, s{S_P}, 2560\ns_add_u32 s7, s7, s73")
        a(f"buffer_load_dword v{VDUM}, v2, {WS}, s7 offen sc1")
    wo_base(a, 74, 1)
    for m in range(4): a(f"s_add_u32 s6, s76, {m}\ns_and_b32 s6, s6, 3\ns_lshl_b32 s6, s6, 10\ns_add_u32 s{84+m}, s6, s74")
    a("s_add_u32 s88, s74, 4096")
    a(f"s_lshl_b32 s73, s{S_W}, 13\ns_add_u32 s75, s73, s78")
    wo_dma(range(8), "s73", LDS_SP); wo_dma(range(8, 16), "s75", 0)
    a(f"s_lshl_b32 s75, s{S_W}, 12\ns_add_u32 s75, s75, s78")
    wo_dma(range(16, 20), "s75", 49152)
    a("s_setpc_b64 s[82:83]")
    a.label("L_x3")
    if "nomoetouch" not in ABL:
        a.srd(SRD_A, P_WG, 640*1728*2)
        a(f"s_cmp_eq_u32 s{S_W}, 3\ns_cbranch_scc1 L_load_r")
        a(f"s_cmp_eq_u32 s{S_W}, 1\ns_cselect_b32 s{SRD_A}, s{P_WU}, s{SRD_A}\ns_cselect_b32 s{SRD_A+1}, s{P_WU+1}, s{SRD_A+1}")
        a(f"s_cmp_eq_u32 s{S_W}, 2\ns_cselect_b32 s{SRD_A}, s{P_WD}, s{SRD_A}\ns_cselect_b32 s{SRD_A+1}, s{P_WD+1}, s{SRD_A+1}")
        a(f"s_mov_b32 s73, 3456\ns_cmov_b32 s73, 256\ns_mov_b32 s75, 256\ns_cmov_b32 s75, {4*40960}")
        a(f"s_lshr_b32 s6, s2, 3\ns_sub_u32 s6, s6, 16\ns_mul_i32 s6, s6, 40\nv_lshrrev_b32 v2, 2, v{L}\nv_add_u32 v2, s6, v2\nv_mul_lo_u32 v2, v2, s73\nv_and_b32 v3, 3, v{L}\nv_lshl_add_u32 v2, v3, 6, v2")
        a(f"s_xor_b32 s79, s79, 1\ns_lshl_b32 s6, s79, 3\ns_lshr_b32 s7, s{S_H}, 2\ns_add_u32 s6, s6, s7\ns_mul_i32 s6, s6, s75")
        a(f"v_mov_b32 v3, {hex(WS_SIZE)}\nv_cmp_gt_u32 vcc, 32, v{L}\ns_lshl_b32 s73, s73, 4\ns_nop 0\nv_cndmask_b32 v3, v3, v2, vcc")
        a(f"buffer_load_dword v{VDUM}, v2, {R(SRD_A)}, s6 offen\ns_add_u32 s7, s6, s73\nbuffer_load_dword v{VDUM}, v2, {R(SRD_A)}, s7 offen")
        a(f"s_add_u32 s7, s7, s73\nbuffer_load_dword v{VDUM}, v3, {R(SRD_A)}, s7 offen")
    a("s_setpc_b64 s[82:83]")
    a.label("L_mask")
    a(f"v_and_b32 v2, 15, v{L}\nv_lshrrev_b32 v3, 4, v{L}\nv_lshlrev_b32 v3, 2, v3\nv_sub_u32 v2, v2, v3\nv_mov_b32 v3, 0xff800000")
    for r in range(4):
        a(f"v_cmp_gt_i32 vcc, {r}, v2\nv_mov_b32 v{NMreg(1,0)+r}, v3\ns_nop 0")
        a(f"v_cndmask_b32 v{NMreg(0,0)+r}, v{NMreg(0,0)+r}, v3, vcc\nv_cndmask_b32 v{NMreg(1,1)+r}, v{NMreg(1,1)+r}, v3, vcc")
    a("s_nop 1\ns_setpc_b64 s[82:83]")
    for par in range(2):
        a.label(f"L_rare{par}")
        a("s_nop 15")
        for qt in range(2):
            m = ET + 4
            s0, s1 = Sreg(par, 0, qt), Sreg(par, 1, qt)
            a(f"v_max_f32 v{m}, v{s0}, v{s0+1}\nv_max3_f32 v{m}, v{m}, v{s0+2}, v{s0+3}\nv_max3_f32 v{m}, v{m}, v{s1}, v{s1+1}\nv_max3_f32 v{m}, v{m}, v{s1+2}, v{s1+3}")
            xlane(a, "v_max_f32", m, ET)
            a(f"v_add_f32 v{m}, {hex(OFFS)}, v{m}\nv_max_f32 v{m}, 0, v{m}")
            a(f"v_exp_f32 v{ET}, -v{m}")
            for kt in range(2):
                for r in range(4):
                    for reg in (Sreg(0,kt,qt), Sreg(1,kt,qt), NMreg(kt,qt)):
                        a(f"v_sub_f32 v{reg+r}, v{reg+r}, v{m}")
            for r in range(2): a(f"v_mul_f32 v{LA+2*qt+r}, v{ET}, v{LA+2*qt+r}")
            for t in range(8):
                for r in range(4): a(f"v_mul_f32 v{Oreg(t,qt)+r}, v{ET}, v{Oreg(t,qt)+r}")
        for e, rest in sm_ops(par):
            a(e); a("s_nop 0")
            for x in rest: a(x)
        a("s_nop 1\ns_setpc_b64 s[80:81]")
    a.label("L_adone")
    a.stamp(13)

def top8(a, bar):
    K = 64
    a.label("L_top")
    a(f"s_mov_b32 s6, {hex(WS_R)}\nv_lshrrev_b32 v2, 1, v{L}\nv_and_b32 v3, 1, v{L}\nv_lshlrev_b32 v3, 4, v3\nv_lshl_add_u32 v2, v2, 7, v3")
    for i in range(8): a(f"buffer_load_dwordx4 {v(K+4*i,4)}, v2, {WS}, s6 offen sc1\ns_add_u32 s6, s6, 4096")
    a("s_waitcnt vmcnt(0)\nv_mov_b32 v24, 0\ns_mov_b32 s7, 0\ns_mov_b32 s84, 0")
    a.label("L_top_l")
    a(f"v_max3_u32 v4, v{K}, v{K+1}, v{K+2}\nv_max3_u32 v5, v{K+3}, v{K+4}, v{K+5}")
    for i in range(6, 30, 4): a(f"v_max3_u32 v4, v4, v{K+i}, v{K+i+1}\nv_max3_u32 v5, v5, v{K+i+2}, v{K+i+3}")
    a(f"v_max3_u32 v4, v4, v{K+30}, v{K+31}\nv_max_u32 v4, v4, v5")
    a.wave_reduce("v_max_u32", 4)
    a("v_readlane_b32 s6, v4, 63\ns_mov_b32 m0, s7\ns_nop 3\ns_add_u32 s84, s84, s6\nv_writelane_b32 v24, s84, m0")
    for i in range(32): a(f"v_subrev_u32 v{K+i}, s6, v{K+i}")
    a("s_add_u32 s7, s7, 1\ns_cmp_lt_u32 s7, 8\ns_cbranch_scc1 L_top_l")
    a(f"v_and_b32 v2, 7, v{L}\nv_lshlrev_b32 v2, 2, v2\nds_bpermute_b32 v4, v2, v24\ns_waitcnt lgkmcnt(0)\nv_and_b32 v4, 0x7ff, v4\nv_sub_u32 v4, 0x7ff, v4")
    a(f"v_lshrrev_b32 v5, 4, v4\nv_mul_u32_u24 v5, 20480, v5\nv_and_b32 v4, 15, v4\nv_lshl_add_u32 v5, v4, 4, v5\nv_lshrrev_b32 v7, 4, v{L}\nv_lshl_add_u32 v5, v7, 8, v5")
    a(f"v_mov_b32 v6, {hex(WS_SIZE)}\nv_and_b32 v2, 8, v{L}\nv_cmp_eq_u32 vcc, 0, v2\ns_mov_b32 s6, 0\ns_nop 0\nv_cndmask_b32 v5, v6, v5, vcc")
    for k in range(20):
        if k and k % 4 == 0: a("s_add_u32 s6, s6, 4096")
        a(f"buffer_load_dwordx4 {v(K+4*k,4)}, v5, {WS}, s6 offen offset:{(k&3)*1024} sc1")
    def put():
        a(f"s_waitcnt vmcnt(0)\ns_mov_b32 s6, {hex(WS_XS)}")
        for k in range(20):
            if k and k % 4 == 0: a("s_add_u32 s6, s6, 4096")
            a(f"buffer_store_dwordx4 {v(K+4*k,4)}, v{VL16}, {WS}, s6 offen offset:{(k&3)*1024} sc1")
    bar("vmcnt(20)", put)
    a("s_waitcnt vmcnt(16)")
    a(f"v_or_b32 v24, 0x80000000, v24\nv_lshlrev_b32 v5, 2, v{L}\nv_mov_b32 v6, {hex(WS_SIZE)}\nv_cmp_gt_u32 vcc, 8, v{L}\ns_mov_b32 s6, {hex(WS_IDX)}\ns_nop 0\nv_cndmask_b32 v5, v6, v5, vcc")
    a(f"buffer_store_dword v24, v5, {WS}, s6 offen sc1\ns_branch L_idle")

OACC = 176
M_WD, M_PART = 81920, 122880
VIDX = 51
def idx_addr(a):
    a(f"v_and_b32 v3, 7, v{L}\nv_lshlrev_b32 v3, 2, v3\ns_mov_b32 s72, {hex(WS_IDX)}")
def ctxf_addr(a, own, both=True):
    a(f"v_and_b32 v3, 1, v{L}\nv_lshlrev_b32 v3, 12, v3")
    if both: a(f"v_and_b32 v2, 2, v{L}\nv_lshl_add_u32 v3, v2, 8, v3")
    a(f"s_lshr_b32 s72, s{own}, 2\ns_lshl_b32 s72, s72, 6\ns_andn2_b32 s6, s{S_H}, 7\ns_add_u32 s72, s72, s6\ns_add_u32 s72, s72, s{S_W}\ns_lshl_b32 s72, s72, 7\ns_add_u32 s72, s72, {WS_CTXF}")
def idx_poll(a, sfx, wait="s_waitcnt vmcnt(40)"):
    a(wait)
    a(f"v_cmp_le_i32 vcc, 0, v{VIDX}\ns_cbranch_vccz L_idx_ok{sfx}")
    idx_addr(a)
    poll(a, f"buffer_load_dword v{VIDX}, v3, {WS}, s72 offen sc1", f"v_cmp_le_i32 vcc, 0, v{VIDX}")
    a.label(f"L_idx_ok{sfx}")

def moe_steps(a, bar):
    XS, FRG, GA, WDR, WD2, PR, YO = 64, 104, 24, 32, 240, 184, 216
    VG, VT, VD, VTD, VY, VXS = 16, 17, 18, 19, 20, 21
    S_G, S_WIN, S_D = 84, 85, 86
    a.label("L_moe")
    a(f"s_sub_u32 s6, s{S_N}, s{S_P}\ns_cmp_lg_u32 s6, 3\ns_cbranch_scc1 L_idle")
    def srds():
        a.srd(SRD_A, P_WG, 640*1728*2)
        a(f"s_cmp_ge_u32 s{S_W}, 2\ns_cselect_b32 s{SRD_A}, s{P_WU}, s{SRD_A}\ns_cselect_b32 s{SRD_A+1}, s{P_WU+1}, s{SRD_A+1}")
        a.srd(SRD_B, P_WD, 1728*640*2)
    def dma_g(nk):
        for n in range(2*nk):
            a(f"s_add_u32 m0, s{S_WIN}, {n*1024}\ns_nop 0\nbuffer_load_dwordx4 v{VG}, {R(SRD_A)}, s{S_G} offen lds\ns_add_u32 s{S_G}, s{S_G}, {16*3456}")
    def dma_d():
        for n in range(4):
            a(f"s_add_u32 m0, s{S_WIN}, {4096+n*1024}\ns_add_u32 s6, s{S_D}, {n*8*1280}\nbuffer_load_dwordx4 v{VD}, {R(SRD_B)}, s6 offen lds")
        a(f"s_add_u32 s{S_D}, s{S_D}, 512")
    def rd_g(k0, nk):
        for k in range(nk):
            for ft in range(2):
                d = FRG + ((k0+k)*2+ft)*4
                a(f"ds_read_b64_tr_b16 {v(d,2)}, v{VT} offset:{k*2048+ft*32}\nds_read_b64_tr_b16 {v(d+2,2)}, v{VT} offset:{k*2048+ft*32+256}")
            if k == 1: a("s_waitcnt lgkmcnt(0)")
    def xs(k0, nk):
        for k in range(k0, k0+nk): a(f"buffer_load_dwordx4 {v(XS+4*k,4)}, v{VL16}, {WS}, s88 offen sc1\ns_add_u32 s88, s88, 1024")
    def rd_d(base):
        for m in range(4):
            a(f"ds_read_b64_tr_b16 {v(base+4*m,2)}, v{VTD} offset:{m*32}\nds_read_b64_tr_b16 {v(base+2+4*m,2)}, v{VTD} offset:{m*32+16*128}")
    def down(base, goff):
        for m in range(4): a.mfma(YO+4*m, base+4*m, GA, "0")
        a("s_nop 7")
        for m in range(4): a(f"buffer_store_dwordx4 {v(YO+4*m,4)}, v{VY}, {WS}, s87 offen offset:{goff*1024+m*64} sc1")
        a("s_nop 1")
    srds()
    a(f"v_lshrrev_b32 v3, 2, v{L}\nv_mul_u32_u24 v3, 3456, v3\nv_and_b32 v4, 3, v{L}\nv_lshl_add_u32 v{VG}, v4, 4, v3")
    a(f"v_lshrrev_b32 v3, 3, v{L}\nv_mul_u32_u24 v3, 1280, v3\nv_and_b32 v4, 7, v{L}\nv_lshl_add_u32 v{VD}, v4, 4, v3")
    a(f"s_and_b32 s7, s{S_W}, 1\ns_mul_i32 s{S_G}, s7, {320*3456}\ns_lshl_b32 s6, s{S_E}, 6\ns_add_u32 s{S_G}, s{S_G}, s6")
    a(f"s_lshl_b32 s{S_WIN}, s{S_W}, 13\ns_add_u32 s{S_WIN}, s{S_WIN}, {LDS_SP}")
    a(f"s_mul_i32 s{S_D}, s{S_E}, 40960\ns_lshl_b32 s6, s{S_W}, 7\ns_add_u32 s{S_D}, s{S_D}, s6")
    dma_g(4)
    a(f"v_lshrrev_b32 v7, 4, v{L}\nv_and_b32 v2, 15, v{L}\nv_lshrrev_b32 v3, 2, v2\nv_lshl_add_u32 v8, v7, 3, v3\nv_lshlrev_b32 v8, 6, v8\nv_and_b32 v4, 3, v2\nv_lshl_add_u32 v8, v4, 3, v8\nv_add_u32 v{VT}, s{S_WIN}, v8")
    a(f"v_lshl_add_u32 v8, v7, 2, v3\nv_lshlrev_b32 v8, 7, v8\nv_lshl_add_u32 v8, v4, 3, v8\ns_add_u32 s6, s{S_WIN}, 4096\nv_add_u32 v{VTD}, s6, v8")
    a(f"v_mul_u32_u24 v3, 2560, v2\nv_lshl_add_u32 v3, v7, 4, v3\nv_mov_b32 v4, {hex(WS_SIZE)}\nv_cmp_gt_u32 vcc, 8, v2")
    a(f"s_mul_i32 s87, s{S_E}, 20480\ns_lshl_b32 s7, s{S_W}, 8\ns_add_u32 s87, s87, s7\ns_add_u32 s87, s87, {WS_YP}\nv_cndmask_b32 v{VY}, v4, v3, vcc")
    a(f"s_and_b32 s7, s{S_W}, 1\ns_mul_i32 s88, s7, 10240\ns_add_u32 s88, s88, {WS_XS}")
    W0 = "vmcnt(0) lgkmcnt(0)"
    def m1():
        rd_g(0, 4); a("s_waitcnt lgkmcnt(0)"); dma_g(4)
    bar(W0, m1)
    idx_addr(a); a(f"buffer_load_dword v{VIDX}, v3, {WS}, s72 offen sc1")
    def m2():
        rd_g(4, 4); a("s_waitcnt lgkmcnt(0)"); dma_g(2); dma_d()
    bar(W0, m2)
    idx_poll(a, "m", "")
    xs(0, 10)
    def m3():
        rd_g(8, 2); rd_d(WDR); a("s_waitcnt lgkmcnt(0)"); dma_d()
    bar("vmcnt(10) lgkmcnt(0)", m3)
    a("s_waitcnt vmcnt(20)")
    for k in range(10):
        for ft in range(2): a.mfma(GA+4*ft, FRG+(k*2+ft)*4, XS+4*k, "0" if k == 0 else None)
    a(f"v_add_u32 v10, s{S_WIN}, v{VL16}\ns_nop 7\nds_write_b128 v10, {v(GA,4)}\nds_write_b128 v10, {v(GA+4,4)} offset:1024")
    def m4():
        rd_d(WD2)
        a(f"v_add_u32 v10, {LDS_SP}, v{VL16}\ns_waitcnt lgkmcnt(0)")
        for w in range(4):
            for ft in range(2): a(f"ds_read_b128 {v(PR+(w*2+ft)*4,4)}, v10 offset:{w*8192+ft*1024}")
        a(f"s_cmp_ge_u32 s{S_W}, 2\ns_cbranch_scc1 L_moe4b")
        dma_d()
        a.label("L_moe4b")
    bar(W0, m4)
    a("s_waitcnt lgkmcnt(0)")
    a("s_mov_b32 s6, 0xbfb8aa3b")
    def rnd2(r): a(f"v_cvt_pk_bf16_f32 v{r+1}, v{r}, v{r+1}\nv_lshlrev_b32 v{r}, 16, v{r+1}\nv_and_b32 v{r+1}, 0xffff0000, v{r+1}")
    for i in range(0, 8, 2):
        g0, u0 = PR + i, PR + 16 + i
        for q in range(2): a(f"v_add_f32 v{g0+q}, v{g0+q}, v{g0+8+q}\nv_add_f32 v{u0+q}, v{u0+q}, v{u0+8+q}")
        rnd2(g0); rnd2(u0)
        a(f"v_mul_f32 v2, s6, v{g0}\nv_mul_f32 v3, s6, v{g0+1}\nv_exp_f32 v2, v2\nv_exp_f32 v3, v3\nv_add_f32 v2, 1.0, v2\nv_add_f32 v3, 1.0, v3".replace("v_exp_f32 v3, v3\n", "v_exp_f32 v3, v3\ns_nop 0\n"))
        a(f"v_rcp_f32 v2, v2\nv_rcp_f32 v3, v3\ns_nop 0\nv_mul_f32 v{g0}, v{g0}, v2\nv_mul_f32 v{g0+1}, v{g0+1}, v3")
        rnd2(g0)
        a(f"v_mul_f32 v{g0}, v{g0}, v{u0}\nv_mul_f32 v{g0+1}, v{g0+1}, v{u0+1}\nv_cvt_pk_bf16_f32 v{GA+i//2}, v{g0}, v{g0+1}")
    a("s_nop 1")
    down(WDR, 0)
    bar("vmcnt(4) lgkmcnt(0)")
    down(WD2, 1)
    a(f"s_cmp_ge_u32 s{S_W}, 2\ns_cbranch_scc1 L_moe5b")
    rd_d(WDR); a("s_waitcnt lgkmcnt(0)"); down(WDR, 2)
    a.label("L_moe5b")
    bar("vmcnt(4) lgkmcnt(0)", lambda: (a("s_waitcnt vmcnt(0)"), set_flag(a, "moe")))
    a("s_branch L_idle")

YS = [16+4*i for i in range(7)] + [56+4*i for i in range(10)] + [4]
def y_is(a, skip): a(f"s_lshr_b32 s7, s{S_W}, 1\ns_lshl_b32 s7, s7, 4\ns_add_u32 s6, s{S_P}, s7\ns_cmp_lg_u32 s6, {YP}\ns_cbranch_scc1 {skip}")
def y_faddr(a): a(f"v_min_u32 v3, 53, v{L}\nv_lshlrev_b32 v3, 7, v3\ns_mov_b32 s72, {hex(WS_MOEF)}")
Y_LD = f"buffer_load_dwordx4 v[16:19], v3, {WS}, s72 offen sc1"
Y_CMP = "\n".join([f"v_and_b32 v16, v16, v{16+r}" for r in (1, 2, 3)]) + "\nv_cmp_ne_u32 vcc, 1, v16"
def y_look(a):
    y_is(a, "L_yl0"); y_faddr(a); a(Y_LD); a.label("L_yl0")
def y_try(a):
    a("s_mov_b32 s101, 0")
    y_is(a, "L_yl1"); a(Y_CMP); a("s_cbranch_vccnz L_yl1\ns_call_b64 s[80:81], L_yld"); a.label("L_yl1")
def y_loads(a):
    XR = 54
    a.label("L_yld")
    idx_poll(a, "a", "")
    a(f"s_lshr_b32 s96, s{S_H}, 2\ns_and_b32 s97, s{S_H}, 3\ns_lshl_b32 s97, s97, 1\ns_add_u32 s97, s97, s{S_W}")
    a(f"s_mov_b32 m0, s96\ns_nop 3\nv_readlane_b32 s98, v{VIDX}, m0\ns_nop 3\ns_and_b32 s100, s98, 0x7ff\ns_sub_u32 s100, 0x7ff, s100")
    a(f"v_mul_u32_u24 v2, 13, v{L}\nv_lshrrev_b32 v2, 8, v2\nv_mul_u32_u24 v3, 20, v2\nv_sub_u32 v8, v{L}, v3")
    a(f"s_mov_b32 s6, {18*20480}\nv_mul_lo_u32 v2, v2, s6\nv_lshl_add_u32 v2, v8, 4, v2")
    a(f"v_cmp_lt_u32 vcc, 59, v{L}\nv_mov_b32 v3, {hex(WS_SIZE)}\ns_nop 0\nv_cndmask_b32 v2, v2, v3, vcc")
    a(f"s_mul_i32 s6, s96, 2560\ns_mul_i32 s7, s97, 320\ns_add_u32 s6, s6, s7\ns_add_u32 s6, s6, {WS_YP}")
    for e in range(18):
        a(f"buffer_load_dwordx4 {v(YS[e],4)}, v2, {WS}, s6 offen sc1\ns_add_u32 s6, s6, 20480")
    a(f"s_lshr_b32 s6, s100, 4\ns_mul_i32 s6, s6, 20480\ns_and_b32 s7, s100, 15\ns_lshl_b32 s7, s7, 4\ns_add_u32 s6, s6, s7\ns_mul_i32 s7, s97, 2560\ns_add_u32 s6, s6, s7")
    a(f"v_lshrrev_b32 v9, 1, v8\nv_lshlrev_b32 v9, 8, v9\nv_and_b32 v10, 1, v8\nv_lshl_add_u32 v9, v10, 3, v9\nbuffer_load_dwordx2 {v(XR,2)}, v9, {WS}, s6 offen sc1")
    a("s_mov_b32 s101, 1\ns_setpc_b64 s[80:81]")

def moe_finish(a):
    Y, XR = YS[0], 54
    y_is(a, "L_yd")
    a("s_cmp_lg_u32 s101, 0\ns_cbranch_scc1 L_yf")
    y_faddr(a)
    poll(a, Y_LD, Y_CMP, sleep=16)
    a("s_call_b64 s[80:81], L_yld")
    a.label("L_yf")
    a("s_bfe_u32 s6, s98, 0x10000b\ns_xor_b32 s7, s6, 0xffff\ns_bitcmp1_b32 s6, 15\ns_bitset0_b32 s6, 15\ns_cselect_b32 s6, s6, s7\ns_lshl_b32 s6, s6, 16\nv_mov_b32 v9, s6")
    a("v_mul_f32 v9, 0xbfb8aa3b, v9\nv_exp_f32 v9, v9\ns_nop 0\nv_add_f32 v9, 1.0, v9\nv_rcp_f32 v9, v9\ns_nop 0")
    bf16_round(a, 9)
    a(f"v_lshlrev_b32 v10, 2, v{L}\nv_mov_b32 v3, {hex(WS_SIZE)}\ns_waitcnt vmcnt(0)")
    for e in range(1, 18):
        a(f"v_pk_add_f32 {v(Y,2)}, {v(Y,2)}, {v(YS[e],2)}\nv_pk_add_f32 {v(Y+2,2)}, {v(Y+2,2)}, {v(YS[e]+2,2)}")
    for k in range(2):
        for r in range(4): a(f"ds_bpermute_b32 v{Y+4+4*k+r}, v10, v{Y+r} offset:{80*(k+1)}")
    a("s_waitcnt lgkmcnt(0)")
    for r in range(4):
        y = Y + r
        a(f"v_add_f32 v{y}, v{y}, v{y+4}\nv_add_f32 v{y}, v{y}, v{y+8}")
        bf16_round(a, y)
        a(f"v_mul_f32 v{y}, v{y}, v9")
        bf16_round(a, y)
        xn = XR + (r >> 1)
        a(f"v_and_b32 v8, 0xffff0000, v{xn}" if r & 1 else f"v_lshlrev_b32 v8, 16, v{xn}")
        a(f"v_add_f32 v{y}, v{y}, v8")
    a(f"v_cvt_pk_bf16_f32 v{Y+4}, v{Y}, v{Y+1}\nv_cvt_pk_bf16_f32 v{Y+5}, v{Y+2}, v{Y+3}")
    a(f"v_lshlrev_b32 v2, 3, v{L}\nv_cmp_lt_u32 vcc, 19, v{L}\ns_mul_i32 s6, s96, 1280\ns_mul_i32 s7, s97, 160\nv_cndmask_b32 v2, v2, v3, vcc\ns_add_u32 s6, s6, s7\ns_add_u32 s6, s6, {WS_BSEL}")
    a(f"buffer_store_dwordx2 {v(Y+4,2)}, v2, {WS}, s6 offen sc1")
    a.label("L_yd")

WR, OA, CR, RT = 96, 56, 16, 32
S_OW, S_OB, S_CX, S_OL = 69, 68, 66, 61
VWO4 = 52
LDS_P, LDS_F = 98304, 65536
def wo_base(a, d, nh):
    a(f"s_lshr_b32 s{d}, s{S_H}, 3\ns_lshl_b32 s{d}, s{d}, 2\ns_add_u32 s{d}, s{d}, s76\ns_mul_i32 s{d}, s{d}, {8*40960}\ns_and_b32 s7, s{S_H}, 3\ns_mul_i32 s7, s7, 10240\ns_add_u32 s{d}, s{d}, s7\ns_add_u32 s{d}, s{d}, {WS_WOF + nh*5120}")

XNA = 48
S_TOK, S_XI, S_XFI, VXF = 64, 62, 63, 11
XFG = int(os.environ.get("XFG", "16"))
VWM = 44
def wo_voffs(a, r0, r4=None):
    for m in range(4): a(f"s_add_u32 s6, s76, {m}\ns_and_b32 s6, s6, 3\ns_lshl_b32 s6, s6, 10\nv_add_u32 v{r0+m}, s6, v{VL16}")
    a(f"v_add_u32 v{r0+4 if r4 is None else r4}, 4096, v{VL16}")
def wm(m): return VWM + m if m < 4 else VWO4
def wo_load(a, i):
    a(f"s_add_u32 s75, s{S_OW}, {i*40960}")
    for m in range(5): a(f"buffer_load_dwordx4 {v(WR+4*(5*i+m),4)}, v{wm(m)}, {WS}, s75 offen sc1")

def out_setup(a, nh):
    if nh == 0:
        idx_addr(a); a(f"buffer_load_dword v{VIDX}, v3, {WS}, s72 offen sc1")
    wo_voffs(a, VWM, VWO4)
    wo_base(a, S_OW, nh)
    a(f"s_and_b32 s6, s{S_H}, 4\ns_lshr_b32 s7, s{S_H}, 3\ns_add_u32 s6, s6, s7\ns_lshl_b32 s7, s{S_P}, 3\ns_add_u32 s{S_OB}, s6, s7\ns_sub_u32 s7, 120, s7\ns_add_u32 s{S_OL}, s6, s7")

VCA, VT, VPR = 4, 5, 6
S_RED = 71
S_PB, S_XS = 67, 96
def out_cx(a):
    a(f"s_lshr_b32 s6, s{S_H}, 3\ns_lshl_b32 s6, s6, 15\ns_lshl_b32 s99, s{S_W}, 12\ns_add_u32 s{S_CX}, s6, s99\ns_add_u32 s{S_CX}, s{S_CX}, {WS_CTX}")
    a(f"s_lshl_b32 s6, s76, 13\nv_add_u32 v{VCA}, s6, v{VL16}\nv_add_u32 v7, 65536, v{VCA}")
def out_consts(a):
    a(f"s_lshr_b32 s6, s{S_W}, 2\ns_mul_i32 s{S_PB}, s6, 15360\ns_add_u32 s{S_PB}, s{S_PB}, {LDS_P}\nv_add_u32 v{VPR}, s{S_PB}, v{VWM}")
    a(f"s_mul_i32 s73, s6, 5120\ns_add_u32 s73, s73, {WS_XP}\ns_lshl_b32 s6, s6, 1\ns_sub_u32 s{S_RED}, s76, s6\ns_and_b32 s{S_RED}, s{S_RED}, 3")
    a(f"v_mov_b32 v{VXF}, {hex(WS_SIZE)}\ns_lshl_b32 s74, s{S_W}, 2\ns_add_u32 s74, s74, {WS_XF}")
    tile_id(a, 72)
    a(f"s_mul_i32 s72, s72, 12\ns_lshr_b32 s75, s{S_H}, 3\ns_mul_i32 s7, s75, 3\ns_add_u32 s7, s7, s72\ns_mul_i32 s{S_XI}, s7, 20480\ns_add_u32 s{S_XI}, s{S_XI}, {WS_XP}\ns_lshl_b32 s7, s7, 7\ns_add_u32 s{S_XFI}, s7, {WS_XF}")
    for k in range(3):
        a(f"s_add_u32 s6, s75, {1+k}\ns_and_b32 s6, s6, 3\ns_mul_i32 s6, s6, 3\ns_add_u32 s6, s6, s72\ns_add_u32 s6, s6, {k}\ns_mul_i32 s7, s6, 20480\ns_add_u32 s{S_XS+k}, s7, s73")
        a(f"s_lshl_b32 s6, s6, 7\ns_add_u32 s6, s6, s74\nv_writelane_b32 v{VXF}, s6, {k}")

def ctx_dma(r, extra=0):
    own, d = (S_OL if r in (3, 4, 5, 7) else S_OB), (1 + r % 3 if r < 6 else 0)
    o = [f"s_add_u32 s65, s{own}, {d}\ns_and_b32 s65, s65, 3\ns_andn2_b32 s7, s{own}, 3\ns_add_u32 s65, s65, s7\ns_lshl_b32 s65, s65, 17\ns_add_u32 s65, s65, s{S_CX}\ns_add_u32 m0, s99, {(r%3)*32768+extra}\ns_add_u32 s65, s65, {extra}"]
    return o + [f"buffer_load_dwordx4 v{VL16}, {WS}, s65 offen offset:{i*1024} sc1 lds" for i in range(4)]

def phase_out(a):
    def rdc(r, i):
        reg, off = (VCA, (r%3)*32768) if r % 3 < 2 else (7, 0)
        return (("C", i & 3), f"ds_read_b128 {v(CR+4*(i&3),4)}, v{reg} offset:{off+i*1024}")
    def xlook_addr():
        a(f"v_bfe_u32 v2, v{L}, 3, 2\nv_min_u32 v2, 2, v2\nv_and_b32 v3, 7, v{L}\nv_lshlrev_b32 v3, 2, v3\nv_lshl_add_u32 v3, v2, 7, v3")
    IT = [(WR, WR+4), (WR+8, WR+12)]
    XI, LP, OUTR = WR+16, WR+64, WR+128
    def emit(x):
        if callable(x): x()
        elif isinstance(x, str): a(x)
        elif x[0] == "wait": a.wait_lg(x[1])
        else:
            a(x[1]); a.lg.issue(x[0])
    def xin_load(slots):
        sk = a.newlabel("xi")
        for n in range(2):
            if n == 1: a(f"s_cmp_ge_u32 s{S_W}, 2\ns_cbranch_scc1 {sk}")
            for s_ in slots:
                a(f"s_add_u32 s6, s{S_XI}, {s_*20480}")
                for hf in range(2): a(f"buffer_load_dwordx4 {v(XI+24*n+8*s_+4*hf,4)}, v{8+n}, {WS}, s6 offen offset:{hf*256} sc1")
        a.label(sk)
    a.lg.drain()
    for i in range(4): emit(rdc(0, i))
    a.wait_lg(("C", 0))
    BG = 24
    for r in range(8):
        if "stampout" in ABL: a.stamp(44 + r)
        A = OA + 20*(r & 1); Ap = OA + 20*((r-1) & 1)
        po = ((r-1) & 1)*30720
        red = 1 <= r <= 6
        G = [[] for _ in range(40)]
        def dma_at(rr, g0, gs):
            d = ctx_dma(rr); sal = d[0].split("\n")
            G[g0] += sal[:3]; G[g0+1] += sal[3:6]; G[g0+2] += sal[6:7]
            for g, x in zip(gs, d[1:]): G[g].insert(0, x)
        def barrier():
            if r == 0:
                a(f"s_cmp_ge_u32 s{S_W}, 4\ns_cbranch_scc1 L_o0\ns_waitcnt vmcnt(0)\ns_barrier")
                a.label("L_o0")
                return
            else: a(f"s_waitcnt vmcnt({(0, 0, 4, 5, 5, 5, 1)[r]})")
            if r == 6: a(f"buffer_store_dword v2, v{VXF}, {WS}, 0 offen sc1")
            a("s_waitcnt lgkmcnt(0)\ns_barrier"); a.lg.drain()
        for i in range(8):
            if i < 4: G[5*i+4].append(rdc(r, i+4))
            elif r < 7 and i > 4: G[5*i+4].append(rdc(r+1, i-4))
            if i < 7 or r < 7: G[5*i+3].append(("wait", ("C", (i+1) & 3)))
        if r < 7: G[BG].append(barrier)
        if red:
            G[0].append(f"s_sub_u32 s6, s{S_RED}, {r}\ns_and_b32 s6, s6, 3\ns_mul_i32 s7, s6, 5120")
            G[1].append(f"s_add_u32 s7, s7, s{S_PB}\ns_cmp_eq_u32 s6, 3\ns_cselect_b32 s7, {159744-4096-po}, s7")
            G[2].append(f"v_add_u32 v12, s7, v{VWO4}\nv_add_u32 v{VT}, s{S_PB}, v{wm(1)}")
            for m, g in zip(range(1, 4), (5, 10, 15)):
                G[g] += [("W", f"ds_write_b128 v{VT}, {v(Ap+4*m,4)} offset:{po+(m-1)*5120}"), f"v_add_u32 v{VT}, s{S_PB}, v{wm(m+1)}"]
            G[20].append(("W", f"ds_write_b128 v12, {v(Ap+16,4)} offset:{po}"))
            for k in range(3): G[BG].append((("P", k), f"ds_read_b128 {v(RT+4*k,4)}, v{VPR} offset:{po+k*5120}"))
            for k in range(3):
                G[27+2*k].insert(0, ("wait", ("P", k)))
                for q in range(4): G[27+2*k+q//2].append(f"v_add_f32 v{Ap+q}, v{Ap+q}, v{RT+4*k+q}")
                G[29+2*k].insert(0, (("P", k), f"ds_read_b128 {v(RT+4*k,4)}, v{VT} offset:{po+k*5120}"))
            for k in range(3):
                G[33+2*k].append(("wait", ("P", k)))
                for q in range(4): G[33+2*k+q//2].append(f"v_add_f32 v{Ap+16+q}, v{Ap+16+q}, v{RT+4*k+q}")
            G[33].append(f"s_add_u32 s6, s{S_XS+(r-1)%3}, {((r-1)//3)*10240}")
            G[35].insert(0, f"buffer_store_dwordx4 {v(Ap,4)}, v{VWM}, {WS}, s6 offen sc1")
            sk = a.newlabel("nost")
            G[38].append(f"s_cmp_lg_u32 s{S_RED}, {(r-1)&3}")
            G[39].insert(0, f"s_cbranch_scc1 {sk}\nbuffer_store_dwordx4 {v(Ap+16,4)}, v{VWO4}, {WS}, s6 offen sc1\n{sk}:")
        if r < 7: G[BG].append(rdc(r+1, 0))
        if 1 < r < 5: dma_at(r+3, 21, (25, 26, 28, 30))
        if r == 0:
            dma_at(2, 21, (25, 26, 28, 30))
            G[19].append("s_waitcnt vmcnt(0)")
        if r == 1:
            G[22].append(lambda: ctxf_addr(a, S_OL, False))
            G[LOOKG].insert(0, f"buffer_load_dword v50, v3, {WS}, s72 offen sc1")
        if r == 2:
            def chk():
                a(f"s_waitcnt vmcnt(1)\nv_cmp_ne_u32 vcc, 1, v50\ns_cbranch_vccz L_o1")
                poll(a, f"buffer_load_dword v2, v3, {WS}, s72 offen sc1", "v_cmp_ne_u32 vcc, 1, v2", sleep=1)
                a.label("L_o1")
            G[2].append(chk)
            dma_at(3, 3, (6, 6, 7, 7))
            dma_at(4, 8, (11, 12, 13, 16))
        def spread(fn, gaps):
            b = Asm(); b.uid = a.uid + 1000; fn(b)
            ls = [x.strip() for x in b.o]; n = -(-len(ls) // len(gaps))
            for k, g in enumerate(gaps): G[g] += ls[k*n:(k+1)*n]
        if r == 0: spread(out_consts, range(0, 19))
        if r == 3: spread(out_items, [3, 4, 6, 7, 8, 9, 11, 12, 13, 14, 16, 17, 18, 19])
        if r == 4: G[7].append(lambda: out_tokens(a))
        if r == 6: G[22].append(f"v_mov_b32 v2, 1\nv_writelane_b32 v2, 2, 0")
        if r == 7:
            G[2].append(f"s_mul_i32 s73, s{S_W}, 5120\ns_add_u32 s6, s73, {LDS_F}")
            G[3].append(f"v_add_u32 v{VT}, s6, v{wm(0)}")
            for m in range(5):
                G[5+5*m].append(("W", f"ds_write_b128 v{VT}, {v(Ap+4*m,4)}"))
                if m < 4: G[5+5*m].append(f"s_add_u32 s6, s73, {LDS_F}\nv_add_u32 v{VT}, s6, v{wm(m+1)}")
            G[XFG].append(f"v_mov_b32 v2, 2\ns_waitcnt vmcnt(0)\nbuffer_store_dword v2, v{VXF}, {WS}, 0 offen sc1")
            def items():
                a(f"s_cmp_eq_u32 s{S_TOK}, 0\ns_cbranch_scc1 L_nb")
                a(f"v_bfe_u32 v2, v{L}, 1, 3\nv_and_b32 v3, 1, v{L}\nv_lshl_add_u32 v3, v2, 7, v3\nv_lshlrev_b32 v3, 2, v3\ns_and_b32 s6, s{S_H}, 3\ns_lshl_b32 s6, s6, 7\ns_add_u32 s6, s6, {WS_BF+YP*32*128}")
                poll(a, f"buffer_load_dword v2, v3, {WS}, s6 offen sc1", "v_cmp_ne_u32 vcc, 1, v2")
                a.label("L_nb")
                sk = a.newlabel("itskip")
                for n in range(2):
                    if n == 1: a(f"s_cmp_ge_u32 s{S_W}, 2\ns_cbranch_scc1 {sk}")
                    a(f"buffer_load_dwordx4 {v(IT[n][0],4)}, v{53+n}, {R(SRD_A)}, s70 offen\nbuffer_load_dwordx4 {v(IT[n][1],4)}, v{XNA+n}, {WS}, 0 offen sc1")
                a.label(sk)
            G[XFG+2].append(items)
            G[30].append(xlook_addr)
            G[31].append(f"s_bitcmp1_b32 13, s{S_W}\ns_cselect_b32 s77, 1, 2\nbuffer_load_dword v50, v3, {WS}, s{S_XFI} offen sc1")
            G[33].append(f"s_add_u32 s6, s73, {106496-20480}\ns_cmp_lt_u32 s{S_W}, 4\ns_cselect_b32 s73, s73, s6")
        for g in range(40):
            i, m = divmod(g, 5)
            if "o" in SNAKE and i & 1 == 0 and i: m = 4 - m
            a.mfma(A+4*m, WR+4*(5*i+m), CR+4*(i&3), "0" if i == 0 else None)
            for x in G[g]: emit(x)
    a.stamp(16)
    a("s_nop 4")
    for m in range(5): a(f"v_add_u32 v{VT}, s73, v{wm(m)}\nds_write_b128 v{VT}, {v(OA+20+4*m,4)}")
    a("s_waitcnt vmcnt(0)\nv_cmp_gt_u32 s[78:79], s77, v50\ns_nop 3\ns_cmp_lg_u64 s[78:79], 0\ns_cbranch_scc1 L_x2a")
    xin_load((0, 1, 2))
    a.label("L_x2a")
    a("s_waitcnt lgkmcnt(0)\ns_barrier")
    for n in range(2):
        for k in range(4):
            for hf in range(2): a(f"ds_read_b128 {v(LP+32*n+8*k+4*hf,4)}, v{(10,55)[n]} offset:{k*5120+hf*256}")
    a("s_cmp_eq_u64 s[78:79], 0\ns_cbranch_scc1 L_x2b")
    poll(a, f"buffer_load_dword v2, v3, {WS}, s{S_XFI} offen sc1", "v_cmp_gt_u32 vcc, s77, v2", sleep=1)
    xin_load((0, 1, 2))
    a.label("L_x2b")
    a.srd(SRD_B, P_OUT, 2048*640*2)
    a.stamp(17)
    for n in range(2):
        if n == 1: a(f"s_cmp_ge_u32 s{S_W}, 2\ns_cbranch_scc1 L_end")
        S = LP + 32*n
        a(f"s_waitcnt lgkmcnt({8 if n == 0 else 0})")
        for k in range(1, 4):
            for q in range(0, 8, 2): a(f"v_pk_add_f32 {v(S+q,2)}, {v(S+q,2)}, {v(S+8*k+q,2)}")
        a("s_waitcnt vmcnt(0)" if n == 0 else "s_nop 0")
        for k in range(3):
            for q in range(0, 8, 2): a(f"v_pk_add_f32 {v(S+q,2)}, {v(S+q,2)}, {v(XI+24*n+8*k+q,2)}")
        for q in range(4):
            x0, x1 = S+2*q, S+2*q+1
            a(f"v_cvt_pk_bf16_f32 v2, v{x0}, v{x1}\nv_lshlrev_b32 v{x0}, 16, v2\nv_and_b32 v{x1}, 0xffff0000, v2")
            a(f"v_lshlrev_b32 v2, 16, v{IT[n][0]+q}\nv_and_b32 v3, 0xffff0000, v{IT[n][0]+q}\nv_pk_add_f32 {v(x0,2)}, {v(x0,2)}, v[2:3]")
            a(f"v_cvt_pk_bf16_f32 v2, v{x0}, v{x1}\nv_lshlrev_b32 v{x0}, 16, v2\nv_and_b32 v{x1}, 0xffff0000, v2")
            a(f"v_lshlrev_b32 v2, 16, v{IT[n][1]+q}\nv_and_b32 v3, 0xffff0000, v{IT[n][1]+q}\nv_pk_add_f32 {v(x0,2)}, {v(x0,2)}, v[2:3]")
            a(f"v_cvt_pk_bf16_f32 v{OUTR+4*n+q}, v{x0}, v{x1}")
        a(f"buffer_store_dwordx4 {v(OUTR+4*n,4)}, v{53+n}, {R(SRD_B)}, s70 offen")

def out_items(a):
    a.srd(SRD_A, P_X, 2048*640*2)
    a(f"s_and_b32 s75, s{S_H}, 3\ns_mul_i32 s70, s75, 320\ns_add_u32 s73, s70, {WS_BSEL}")
    a(f"s_mul_i32 s72, s75, 5120")
    a(f"v_lshrrev_b32 v2, 4, v{L}\nv_and_b32 v3, 15, v{L}\nv_mul_u32_u24 v54, 1280, v3\nv_lshl_add_u32 v54, v2, 4, v54\nv_lshlrev_b32 v3, 4, v3\nv_lshl_add_u32 v9, v2, 9, v3")
    a(f"s_lshr_b32 s100, s{S_W}, 2\ns_cselect_b32 s6, s{S_OL}, s{S_OB}\ns_mul_i32 s6, s6, 20480\ns_lshl_b32 s7, s76, 6\ns_add_u32 s7, s7, s6\nv_add_u32 v53, s7, v54")
    a(f"s_lshl_b32 s7, s76, 10\ns_add_u32 s7, s7, s6\ns_add_u32 s7, s7, s72\nv_add_u32 v{XNA}, s7, v{VL16}")
    a(f"s_mul_i32 s6, s100, 10240\ns_lshl_b32 s7, s76, 11\ns_add_u32 s6, s6, s7\nv_add_u32 v8, s6, v9")
    a(f"s_mul_i32 s6, s100, {LDS_F+10240}\ns_sub_u32 s6, {LDS_F}, s6\nv_add_u32 v10, s6, v8\ns_lshl_b32 s7, s76, 2\nv_add_u32 v2, s7, v2\nv_cmp_lt_u32 vcc, 9, v2\ns_mul_i32 s6, s100, {101376-15360}\ns_add_u32 s6, s6, 15360\nv_add_u32 v3, s6, v10\nv_cndmask_b32 v10, v10, v3, vcc")
    a(f"s_and_b32 s100, s{S_W}, 1\ns_cselect_b32 s6, s{S_OL}, s{S_OB}\ns_mul_i32 s6, s6, 20480\ns_add_u32 s7, s6, 256\nv_add_u32 v54, s7, v54\ns_add_u32 s7, s6, s72\ns_add_u32 s7, s7, 4096\nv_add_u32 v{XNA+1}, s7, v{VL16}")
    a(f"s_mul_i32 s6, s100, 10240\ns_add_u32 s6, s6, 8192\nv_add_u32 v9, s6, v9\ns_mul_i32 s6, s100, {101376-10240-LDS_F-15360}\ns_add_u32 s6, s6, {LDS_F+15360}\nv_add_u32 v55, s6, v9")

def out_tokens(a):
    idx_poll(a, "b", "")
    sk = a.newlabel("notok")
    a(f"s_mov_b32 s{S_TOK}, 0")
    a(f"v_and_b32 v2, 0x7ff, v{VIDX}\nv_sub_u32 v2, 0x7ff, v2\nv_lshrrev_b32 v3, 4, v2\nv_cmp_eq_u32 vcc, s{S_OB}, v3\nv_cmp_eq_u32 s[74:75], s{S_OL}, v3\ns_nop 3\ns_or_b64 vcc, vcc, s[74:75]\ns_cbranch_scc0 {sk}")
    for tk in range(8): a(f"v_readlane_b32 s{(84,85,86,87,88,65,91,101)[tk]}, v2, {tk}")
    for n in range(2):
        a(f"s_lshl_b32 s7, s76, 6\ns_lshr_b32 s100, s{S_W}, 2" if n == 0 else f"s_movk_i32 s7, 256\ns_and_b32 s100, s{S_W}, 1")
        a(f"s_cselect_b32 s6, s{S_OL}, s{S_OB}\ns_lshl_b32 s6, s6, 4\nv_and_b32 v2, 15, v{L}\nv_add_u32 v2, s6, v2")
        a(f"s_add_u32 s7, s7, s73\nv_and_b32 v3, 48, v{L}\nv_add_u32 v3, s7, v3")
        for tk in range(8):
            a(f"v_cmp_eq_u32 vcc, s{(84,85,86,87,88,65,91,101)[tk]}, v2\ns_nop 1\nv_cndmask_b32 v{XNA+n}, v{XNA+n}, v3, vcc")
            if tk < 7: a(f"v_add_u32 v3, 1280, v3")
    a(f"s_mov_b32 s{S_TOK}, 1")
    a.label(sk)

def gen(a):
    phase_start(a)
    phase_kv(a)
    phase_q(a)
    phase_attn(a)
    phase_out(a)
    a.label("L_end")
    a.stamp(18)
    if a.prof: a("s_waitcnt vmcnt(0)")
    if a.prof and os.environ.get("STRETCH"):
        s0, s1 = os.environ["STRETCH"].split(",")
        a(f"v_readlane_b32 s6, v15, {s0}\nv_readlane_b32 s7, v15, {s1}\nv_readlane_b32 s72, v15, 18\ns_nop 3\ns_sub_u32 s6, s7, s6\ns_min_u32 s6, s6, 20000")
        a.label("L_str")
        a("s_memrealtime s[94:95]\ns_waitcnt lgkmcnt(0)\ns_sub_u32 s7, s94, s72\ns_cmp_lt_u32 s7, s6\ns_cbranch_scc1 L_str")
    if a.prof and os.environ.get("DBGWG"):
        a(f"s_mov_b64 exec, -1\ns_cmp_lg_u32 s2, {os.environ['DBGWG']}\ns_cbranch_scc1 L_nodbg\ns_cmp_lg_u32 s{S_W}, 0\ns_cbranch_scc1 L_nodbg")
        a.srd(SRD_E, P_DBG, 64)
        a(f"v_readlane_b32 s6, v15, 0\ns_nop 3\nv_subrev_u32 v2, s6, v15\nv_subrev_u32 v3, 3, v{L}\nv_lshlrev_b32 v3, 2, v3\nv_cmp_gt_u32 vcc, 4, v{L}\nv_mov_b32 v4, 0x1000\ns_nop 0\nv_cndmask_b32 v3, v3, v4, vcc")
        a(f"buffer_store_dword v2, v3, {R(SRD_E)}, 0 offen")
        a.label("L_nodbg")
    a.stamp_flush(SRD_WS, WS_PROF)
    a.label("L_exit")
    a("s_endpgm")

HEADER = open(os.path.join(os.path.dirname(os.path.abspath(__file__)), "..", NAME + ".s.ref")).read().split("; Override launch")[0]
if __name__ == "__main__":
    name = NAME + "_kernel"
    out = HEADER + "; @launch grid=(256,1,1) block=(512,1,1) lds=163840\n" + '.amdgcn_target "amdgcn-amd-amdhsa--gfx950"\n'
    a = Asm(); a.prof = bool(os.environ.get("PROF"))
    a.o.append(kernel_header(name).rstrip())
    gen(a)
    out += a.text() + '.section .rodata,"a"\n.p2align 6\n' + kernel_desc(name)
    open(sys.argv[1] if len(sys.argv) > 1 else "k.s", "w").write(out)
```

```python
import sys, os
from asmlib import *

NAME = "parallel_sum__compressed_kv_cla__moe_arch_mod__prompt"
ABL = set(os.environ.get("ABL", "").split(","))
WS_XN = 0x0
WS_R = 0x280000
WS_YP = 0x290000
WS_IDX = 0x3A0000
WS_KVF = 0x3B0000
WS_CTXF = 0x3C0000
WS_MOEF = 0xF20000
WS_BSEL = 0x3A9000
WS_BF = 0x3B8000
WS_WOF = 0x400000
WS_XS = 0xC00000
WS_PROF = 0x900000
WS_KV = 0x1000000
WS_CTX = 0x3000000
WS_XF = 0xF00000
WS_XP = 0x4000000
WS_SIZE = 0x5000000
S_W, S_H, S_P = 3, 4, 5
SRD_WS, SRD_A, SRD_B, SRD_C, SRD_D, SRD_E = 8, 12, 16, 20, 24, 28
P_X, P_CKV, P_WQ, P_WUK, P_WUV, P_WO, P_BX, P_WR, P_WG, P_WU, P_WD, P_OUT, P_DBG, P_WS = range(32, 60, 2)
S_B, S_E = 60, 61
WS = f"s[{SRD_WS}:{SRD_WS+3}]"
def R(d): return f"s[{d}:{d+3}]"
L, VL16 = 1, 13
DESIG = 31
SPIN = 1 << 18
LK1, LK2 = [int(x) for x in os.environ.get("LK", "22,34").split(",")]
WOTM = int(os.environ.get("WOTM", "0xf0"), 0)
SNAKE = os.environ.get("SNAKE", "akqo")
LOOKG = int(os.environ.get("LOOKG", "12"))
NPC = int(os.environ.get("NPC", "2"))
YP = int(os.environ.get("YP", "3"))
LPOS = int(os.environ.get("LPOS", "10"))
WOTN = int(os.environ.get("WOTN", "0"))
LNH = int(os.environ.get("LNH", "2"))
MOEJ = int(os.environ.get("MOEJ", "4"))
if "code2" not in ABL: ABL.add("nocode2")
if "newb7" not in ABL: ABL.add("oldb7")
NT = "" if "nont" in ABL else " nt"
ABL.add("latewait")
TSCHED = os.environ.get("TSCHED", ";2;4;6").split(";")
TK, TV0, TV1, TV2 = [[int(y) for y in x.split(",") if y] for x in TSCHED]
LDS_SP = 131072
LDS_LN = LDS_SP
LDS_WOT = LDS_SP + 10240
LDS_RK = LDS_SP + 30720

def bf16_round(a, r):
    a(f"v_cvt_pk_bf16_f32 v{r}, v{r}, v{r}\nv_lshlrev_b32 v{r}, 16, v{r}")

def poll(a, load, cmp_notready, sleep=2):
    lp = a.newlabel("poll"); dn = a.newlabel("polldone")
    a(f"s_mov_b32 s79, {SPIN}")
    a.label(lp)
    a(load); a("s_waitcnt vmcnt(0)"); a(cmp_notready)
    a(f"s_cbranch_vccz {dn}\ns_sleep {sleep}\ns_sub_u32 s79, s79, 1\ns_cmp_lg_u32 s79, 0\ns_cbranch_scc1 {lp}")
    a.label(dn)

VC, VW, RC, RW, QRW = 40, 44, 48, 50, 54
CF, WF, ACC = 64, 96, 128
S_CO, S_WO_, S_MC, S_ST, S_ROW, S_KVD, S_INCA, S_INCB, S_XO, S_QO = 62, 63, 64, 65, 66, 67, 68, 69, 70, 71
S_XB = 84
XEARLY = [16, 20, 24, 28, 32, 36]
VX1 = 12
LX, LW, LV = 16, 26, 64
VDUM = 11
ITR = ((8, 9), (10, 55))

def wdma(a, srd, soff):
    return [f"buffer_load_dwordx4 v{VW+i}, {R(srd)}, s{soff} offen offset:{i*1024} lds" for i in range(4)]

def kv_dma_ops():
    g = []
    g.append([f"s_mov_b32 m0, s{S_MC}", f"s_add_u32 s72, s{S_CO}, 524288"])
    for i in range(4): g.append([f"buffer_load_dwordx4 v{VC+i}, {R(SRD_A)}, s{S_CO} offen offset:{i*1024} lds"])
    g.append([f"s_add_u32 m0, s{S_MC}, 4096", f"s_add_u32 s{S_CO}, s{S_CO}, 128", f"s_bitset0_b32 s{S_CO}, 10"])
    for i in range(4): g.append([f"buffer_load_dwordx4 v{VC+i}, {R(SRD_A)}, s72 offen offset:{i*1024} lds"])
    g.append([f"s_mov_b32 m0, s73", f"s_xor_b32 s{S_MC}, s{S_MC}, 0x10000"])
    for x in wdma(None, SRD_B, S_WO_): g.append([x])
    g.append([f"s_add_u32 m0, s73, 16384", f"s_xor_b32 s73, s73, 0x10000"])
    for x in wdma(None, SRD_C, S_WO_): g.append([x])
    g.append([f"s_add_u32 s{S_WO_}, s{S_WO_}, {64*8192}", f"s_bitset0_b32 s{S_WO_}, 22"])
    return g

def wq_dma_ops(nblk):
    g = []
    for h in range(2*nblk):
        g.append([f"s_mov_b32 m0, s74", f"s_add_u32 s74, s74, 16384"] + (["s_bitset0_b32 s74, 17"] if nblk == 2 else []))
        for x in wdma(None, SRD_D, S_QO): g.append([x])
        g.append([f"s_add_u32 s{S_QO}, s{S_QO}, {64*8192}", f"s_sub_u32 s75, s{S_QO}, {640*8192}", f"s_cselect_b32 s{S_QO}, s{S_QO}, s75"])
    return g

def emit_groups(a, g):
    for x in g:
        for y in x: a(y)

def x_load(a, ks, regs):
    for qt in range(2):
        a(f"buffer_load_dwordx4 {v(regs[qt],4)}, v{VL16 if qt==0 else VX1}, {WS}, s{S_XB+(ks>>2)} offen offset:{(ks&3)*1024} sc1")
        a.vm.issue(("X", ks))

def cnt_load(a, r, which):
    return f"buffer_load_dword v{r}, v3, {R(SRD_E)}, 0 offen offset:{128*which} sc1"
def cnt_addr(a):
    a.srd(SRD_E, P_DBG, 256)
    a(f"v_and_b32 v3, 31, v{L}\nv_lshlrev_b32 v3, 2, v3")
def cnt_check(a, r, which):
    ok = a.newlabel("cntok")
    a(f"v_cmp_gt_u32 vcc, 8, v{r}\ns_cbranch_vccz {ok}")
    cnt_addr(a)
    poll(a, cnt_load(a, 2, which), "v_cmp_gt_u32 vcc, 8, v2", sleep=8)
    a.label(ok)

def kv_touch(a, st0):
    sk = a.newlabel("tch")
    a(f"s_cmp_ge_u32 s76, 2\ns_cbranch_scc1 {sk}a")
    a(f"s_and_b32 s6, s{S_H}, 3\ns_lshl_b32 s6, s6, 19\ns_lshl_b32 s7, s{S_P}, 15\ns_add_u32 s6, s6, s7\ns_lshl_b32 s7, s76, 7\ns_add_u32 s6, s6, s7\ns_add_u32 s6, s6, {st0*128}")
    a(f"v_lshrrev_b32 v6, 1, v{L}\nv_lshlrev_b32 v6, 10, v6\nv_and_b32 v7, 1, v{L}\nv_lshl_add_u32 v6, v7, 6, v6")
    a(f"buffer_load_dword v{VDUM}, v6, {R(SRD_A)}, s6 offen\ns_add_u32 s6, s6, 262144\nbuffer_load_dword v{VDUM}, v6, {R(SRD_A)}, s6 offen\ns_branch {sk}c")
    a.label(sk + "a")
    a(f"v_lshrrev_b32 v6, 5, v{L}\nv_lshlrev_b32 v6, 6, v6\nv_bfe_u32 v7, v{L}, 2, 3\nv_add_u32 v6, v6, v7\nv_lshlrev_b32 v6, 13, v6\nv_and_b32 v7, 3, v{L}\nv_lshl_add_u32 v6, v7, 6, v6")
    a(f"s_lshl_b32 s6, s{S_H}, 8\ns_lshl_b32 s7, s{S_P}, 16\ns_add_u32 s6, s6, s7\ns_add_u32 s6, s6, {st0*64*8192}")
    a(f"s_cmp_lg_u32 s76, 2\ns_cbranch_scc1 {sk}b\nbuffer_load_dword v{VDUM}, v6, {R(SRD_B)}, s6 offen\ns_branch {sk}c")
    a.label(sk + "b")
    a(f"buffer_load_dword v{VDUM}, v6, {R(SRD_C)}, s6 offen")
    a.label(sk + "c")

def consts(a):
    a(f"s_mov_b32 s{S_ST}, 0")
    a(f"s_lshl_b32 s6, s{S_H}, 20\ns_lshl_b32 s7, s{S_P}, 13\ns_add_u32 s6, s6, s7\ns_and_b32 s7, s{S_W}, 1\ns_lshl_b32 s7, s7, 16\ns_add_u32 s6, s6, s7\ns_add_u32 s{S_KVD}, s6, {WS_KV}")
    if "noqrot" in ABL: a("s_mov_b32 s6, 0")
    else:
        a(f"s_and_b32 s6, s{S_H}, 3\ns_add_u32 s6, s6, s{S_P}")
        for _ in range(2): a("s_sub_u32 s7, s6, 5\ns_cselect_b32 s6, s6, s7")
    a(f"s_lshl_b32 s{S_QO}, s6, 20\ns_lshl_b32 s7, s{S_H}, 8\ns_add_u32 s{S_QO}, s{S_QO}, s7")
    for i in range(5):
        a(f"s_lshl_b32 s7, s6, 12\ns_add_u32 s{S_XB+i}, s{S_XO}, s7")
        if i < 4: a("s_add_u32 s6, s6, 1\ns_cmp_eq_u32 s6, 5\ns_cselect_b32 s6, 0, s6")
    a(f"s_lshr_b32 s7, s{S_W}, 1\ns_and_b32 s7, s7, 1")
    a(f"s_cmp_ge_u32 s{S_W}, 4\ns_cbranch_scc1 L_c_v")
    a(f"s_lshl_b32 s7, s7, 11\ns_add_u32 s{S_KVD}, s{S_KVD}, s7\ns_movk_i32 s{S_INCA}, 3072\ns_mov_b32 s{S_INCB}, 125952")
    a(f"s_add_u32 s{S_QO}, s{S_QO}, {128*8192}\ns_sub_u32 s75, s{S_QO}, {640*8192}\ns_cselect_b32 s{S_QO}, s{S_QO}, s75\ns_lshl_b32 s74, s76, 12\ns_add_u32 s74, s74, s100\ns_branch L_c_j")
    a.label("L_c_v")
    a(f"s_lshl_b32 s7, s7, 12\ns_add_u32 s{S_KVD}, s{S_KVD}, s7\ns_add_u32 s{S_KVD}, s{S_KVD}, 0x80000\ns_movk_i32 s{S_INCA}, 1024\ns_mov_b32 s{S_INCB}, 128000")
    a.label("L_c_j")

def zero_regs(a, r0, n):
    for i in range(0, n, 2): a(f"v_mov_b64 {v(r0+i,2)}, 0")

def phase_start(a):
    a(f"s_cmp_ge_u32 s2, 256\ns_cbranch_scc1 L_exit")
    a("s_load_dwordx16 s[32:47], s[0:1], 0\ns_load_dwordx8 s[48:55], s[0:1], 64\ns_load_dwordx4 s[56:59], s[0:1], 96")
    a(f"v_lshrrev_b32 v2, 6, v0\nv_and_b32 v{L}, 63, v0\nv_readfirstlane_b32 s{S_W}, v2")
    if "nocode" not in ABL:
        a("s_getpc_b64 s[80:81]")
        a.label("L_pc")
        a(f"s_lshr_b32 s6, s2, 3\ns_and_b32 s6, s6, 15\ns_lshl_b32 s6, s6, 12\ns_cmp_lt_u32 s{S_W}, 2\ns_cselect_b32 s6, 0, s6\nv_lshl_add_u32 v3, v0, 6, s6")
        a(f"v_min_u32 v3, L_exit-L_pc, v3\ns_cmp_ge_u32 s{S_W}, 3\ns_cbranch_scc1 L_noct\nglobal_load_dword v{VDUM}, v3, s[80:81]")
        a.label("L_noct")
    a(f"v_lshrrev_b32 v62, 5, v0\nv_and_b32 v62, 7, v62\nv_and_b32 v2, 31, v0\nv_lshlrev_b32 v2, 3, v2\nv_mul_u32_u24 v63, 1280, v62\nv_add_u32 v63, v63, v2\ns_mul_i32 s6, s2, 10240\nv_add_u32 v10, s6, v63")
    a(f"s_cmp_lt_u32 s{S_W}, 4\ns_cbranch_scc1 L_st_k0")
    a("s_waitcnt lgkmcnt(0)")
    for j in range(5): a(f"global_load_dwordx2 {v(LX+2*j,2)}, v10, s[{P_X}:{P_X+1}] offset:{j*256}{NT if 'xnt' in ABL else ''}")
    for j in range(5): a(f"global_load_dwordx2 {v(LW+2*j,2)}, v2, s[{P_WR}:{P_WR+1}] offset:{j*256}")
    NPF = int(os.environ.get("NPF", "2"))
    if NPF:
        a(f"s_bfe_u32 s6, s2, 0x20003\ns_lshl_b32 s6, s6, 9\ns_bfe_u32 s7, s{S_W}, 0x10001\ns_lshl_b32 s7, s7, 8\ns_add_u32 s6, s6, s7\ns_andn2_b32 s7, s2, 31\ns_add_u32 s6, s6, s7\ns_and_b32 s72, s{S_W}, 1\ns_lshl_b32 s7, s72, 4\ns_add_u32 s6, s6, s7")
        a(f"v_lshrrev_b32 v4, 3, v{L}\nv_add_u32 v4, s6, v4\nv_and_b32 v5, 7, v{L}\nv_lshlrev_b32 v5, 4, v5\nv_lshl_add_u32 v4, v4, 10, v5\nv_add_u32 v5, 8192, v4")
        a(f"s_lshr_b32 s6, s2, 5\ns_lshl_b32 s6, s6, 1\ns_add_u32 s6, s6, s72\ns_lshl_b32 s6, s6, 15\ns_and_b32 s7, s2, 7\ns_lshl_b32 s7, s7, 10\ns_add_u32 s6, s6, s7\ns_bfe_u32 s7, s2, 0x20003\ns_lshl_b32 s7, s7, 8\ns_add_u32 s6, s6, s7")
        a(f"v_lshrrev_b32 v6, 4, v{L}\nv_and_b32 v7, 15, v{L}\nv_lshlrev_b32 v7, 4, v7\nv_lshl_add_u32 v6, v6, 13, v7\nv_add_u32 v6, s6, v6")
        a(f"s_cmp_ge_u32 s{S_W}, 6\ns_cselect_b32 s74, s{P_WUV}, s{P_WUK}\ns_cselect_b32 s75, s{P_WUV+1}, s{P_WUK+1}")
        for st in range(NPF):
            a(f"global_load_dwordx4 v[36:39], v4, s[{P_CKV}:{P_CKV+1}] offset:{st*128}\nglobal_load_dwordx4 v[36:39], v5, s[{P_CKV}:{P_CKV+1}] offset:{st*128}")
            a(f"global_load_dwordx4 v[36:39], v6, s[74:75]\nv_add_u32 v6, {64*8192}, v6")
    if "nob0" not in ABL: a("s_barrier")
    a.label("L_st_k0")
    a(f"s_and_b32 s6, s2, 7\ns_lshl_b32 s6, s6, 2\ns_lshr_b32 s7, s2, 3\ns_and_b32 s7, s7, 3\ns_add_u32 s{S_H}, s6, s7\ns_lshr_b32 s{S_P}, s2, 5\ns_and_b32 s76, s{S_W}, 3")
    a.stamp_init(14, 0); a.stamp(0)
    a(f"v_lshrrev_b32 v2, 3, v{L}\nv_and_b32 v3, 7, v{L}\nv_lshrrev_b32 v4, 4, v{L}\nv_xor_b32 v5, v3, v4\nv_lshlrev_b32 v5, 4, v5")
    a(f"v_lshl_add_u32 v{VC}, v2, 10, v5\nv_xor_b32 v5, 64, v{VC}\nv_add_u32 v{VC+1}, 7168, v5\nv_add_u32 v{VC+2}, 14336, v{VC}\nv_add_u32 v{VC+3}, 14336, v{VC+1}")
    a(f"v_and_b32 v6, 15, v{L}\ns_lshl_b32 s6, s76, 4\nv_add_u32 v7, s6, v4\nv_lshlrev_b32 v5, 1, v4\nv_xor_b32 v5, v6, v5\nv_lshlrev_b32 v5, 4, v5")
    a(f"v_lshl_add_u32 v{VW}, v7, 13, v5\nv_add_u32 v{VW+1}, 31744, v{VW}\nv_xor_b32 v5, 0x80, v{VW}\nv_add_u32 v{VW+2}, 63488, v5\nv_add_u32 v{VW+3}, 31744, v{VW+2}")
    a(f"s_and_b32 s6, s76, 1\ns_lshl_b32 s6, s6, 20\ns_lshr_b32 s7, s76, 1\ns_lshl_b32 s7, s7, 18\ns_add_u32 s6, s6, s7\ns_lshl_b32 s{S_CO}, s{S_P}, 15\ns_add_u32 s{S_CO}, s{S_CO}, s6\ns_lshl_b32 s{S_WO_}, s{S_H}, 8\ns_lshl_b32 s{S_MC}, s76, 13\ns_lshl_b32 s73, s76, 12\ns_add_u32 s73, s73, 32768")
    a(f"s_andn2_b32 s100, 1, s{S_P}\ns_lshl_b32 s100, s100, 16\ns_add_u32 s{S_MC}, s{S_MC}, s100\ns_add_u32 s73, s73, s100")
    a("s_waitcnt lgkmcnt(0)")
    a.srd(SRD_A, P_CKV, 2048*512*2)
    a.srd(SRD_B, P_WUK, 512*4096*2)
    a.srd(SRD_C, P_WUV, 512*4096*2)
    a(f"s_cmp_ge_u32 s{S_W}, 4\ns_cbranch_scc1 L_st_v0")
    if "nob0" not in ABL: a("s_barrier")
    for st in TK: kv_touch(a, st)
    emit_groups(a, kv_dma_ops())
    if "noprio" not in ABL: a("s_setprio 1")
    a.label("L_st_v0")
    a.srd(SRD_WS, P_WS, WS_SIZE)
    a.srd(SRD_D, P_WQ, 640*4096*2)
    a(f"v_lshlrev_b32 v{VL16}, 4, v{L}")
    a(f"s_lshl_b32 s6, s{S_P}, 2\ns_add_u32 s7, s6, s{S_W}\ns_sub_u32 s6, 56, s6\ns_add_u32 s6, s6, s{S_W}")
    a(f"s_cmp_lt_u32 s{S_W}, 4\ns_cselect_b32 s{S_B}, s7, s6")
    a(f"s_sub_u32 s6, 2, s{S_P}\ns_and_b32 s6, s6, 7\ns_lshl_b32 s6, s6, 5\ns_add_u32 s{S_E}, s6, s{S_H}")
    a(f"v_and_b32 v2, 15, v{L}\nv_lshrrev_b32 v3, 4, v{L}")
    a(f"s_and_b32 s6, s{S_W}, 1\ns_lshl_b32 s6, s6, 7\nv_add_u32 v4, s6, v2\nv_lshlrev_b32 v4, 7, v4\nv_add_u32 v4, s100, v4\nv_lshrrev_b32 v5, 1, v2")
    for sp in range(2):
        a(f"v_add_u32 v6, {4*sp}, v3\nv_xor_b32 v6, v6, v5\nv_lshl_add_u32 v{RC+sp}, v6, 4, v4")
    a(f"v_lshrrev_b32 v4, 2, v2\nv_lshl_add_u32 v5, v3, 3, v4\nv_lshlrev_b32 v5, 8, v5")
    a(f"v_and_b32 v6, 1, v2\nv_lshl_add_u32 v5, v6, 3, v5")
    a(f"v_and_b32 v6, 1, v3\nv_lshl_or_b32 v4, v6, 2, v4\nv_lshlrev_b32 v4, 1, v4\nv_bfe_u32 v6, v2, 1, 1")
    a(f"v_add_u32 v8, {LDS_SP}, v5")
    for t in range(8):
        a(f"v_add_u32 v7, {2*t}, v6\nv_xor_b32 v7, v7, v4\nv_lshl_add_u32 v{QRW+t}, v7, 4, v8")
    a(f"s_lshr_b32 s6, s{S_W}, 2\ns_lshl_b32 s6, s6, 14\ns_add_u32 s6, s6, 32768\ns_add_u32 s6, s6, s100\nv_add_u32 v5, s6, v5")
    a(f"s_lshr_b32 s7, s{S_W}, 1\ns_and_b32 s7, s7, 1\ns_lshl_b32 s7, s7, 3")
    for j in range(4):
        a(f"s_add_u32 s6, s7, {2*j}\nv_add_u32 v7, s6, v6\nv_xor_b32 v7, v7, v4\nv_lshl_add_u32 v{RW+j}, v7, 4, v5")
    zero_regs(a, ACC, 128)
    a(f"v_add_u32 v{VX1}, 20480, v{VL16}\ns_mul_i32 s{S_XO}, s{S_B}, 40960")
    consts(a)
    a.stamp(1)
    a(f"s_cmp_ge_u32 s{S_W}, 4\ns_cbranch_scc1 L_st_v1")
    TM = [int(x) for x in os.environ.get("TM", "").split(",") if x]
    TM2 = [int(x) for x in os.environ.get("TM2", "").split(",") if x]
    for st in TM: kv_touch(a, st)
    emit_groups(a, kv_dma_ops()[:10])
    for st in TM2: kv_touch(a, st)
    a(f"s_waitcnt vmcnt({8+len(TM)+len(TM2)})\ns_branch L_st_j1")
    a.label("L_st_v1")
    a(f"s_waitcnt vmcnt({3*NPF})")
    a.stamp(2)
    ln_compute(a)
    ln_router(a)
    a.label("L_st_j1")
    a.stamp(3)
    a("s_barrier")
    a.stamp(4)

def zero_flags(a):
    a(f"s_cmp_lt_u32 s{S_W}, 6\ns_cbranch_scc1 L_zd\nv_mov_b64 v[36:37], 0\nv_mov_b64 v[38:39], 0\nv_lshrrev_b32 v2, 3, v{L}\ns_cmp_eq_u32 s{S_W}, 6\ns_cbranch_scc1 L_z6")
    a(f"s_lshl_b32 s6, s{S_P}, 2\ns_sub_u32 s7, 56, s6\nv_mov_b32 v3, s6\nv_mov_b32 v4, s7\nv_cmp_gt_u32 vcc, 4, v2\ns_lshl_b32 s6, s{S_H}, 7\ns_add_u32 s6, s6, {WS_CTXF}\nv_cndmask_b32 v3, v4, v3, vcc\nv_add_u32 v3, v3, v2\nv_lshl_add_u32 v3, v3, 12, s6\ns_branch L_z7")
    a.label("L_z6")
    a(f"v_mov_b32 v3, {hex(WS_SIZE)}")
    def put(j): a(f"s_andn2_b32 s6, s6, 127\nv_cmp_eq_u32 vcc, {j}, v2\nv_mov_b32 v4, s6\ns_nop 0\nv_cndmask_b32 v3, v3, v4, vcc")
    flag_addr(a, "kv", 6); put(0)
    flag_addr(a, "moe", 6); put(1)
    flag_addr(a, "b", 6); put(2)
    for k in range(3):
        xf_addr(a, k, 6); put(3+k)
    a(f"s_mov_b32 s6, {hex(WS_SIZE)}\ns_cmp_eq_u32 s2, {DESIG}\ns_cmov_b32 s6, {WS_IDX}"); put(6)
    a(f"s_lshl_b32 s6, s2, 7\ns_add_u32 s6, s6, {WS_R}"); put(7)
    a(f"v_add_u32 v4, {LDS_RK-56*16}, v{VL16}\ns_mov_b32 exec_lo, 0\ns_mov_b32 exec_hi, 0x03000000\nds_read_b128 v[36:39], v4\ns_mov_b64 exec, -1\ns_waitcnt lgkmcnt(0)")
    a.label("L_z7")
    a(f"v_and_b32 v2, 7, v{L}\nv_lshl_add_u32 v3, v2, 4, v3\nbuffer_store_dwordx4 v[36:39], v3, {WS}, 0 offen sc1")
    a.label("L_zd")

def half_reduce(a, r):
    for m in ("quad_perm:[1,0,3,2]", "quad_perm:[2,3,0,1]", "row_half_mirror", "row_mirror"):
        a(f"s_nop 1\nv_add_f32_dpp v{r}, v{r}, v{r} {m} row_mask:0xf bank_mask:0xf")
    a(f"v_mov_b32 v8, v{r}\ns_nop 1\nv_permlane16_swap_b32 v{r}, v8\ns_nop 1\nv_add_f32 v{r}, v{r}, v8")

def ln_compute(a):
    X = LV
    NEG = "op_sel_hi:[1,0] neg_lo:[0,1] neg_hi:[0,1]"
    for j in range(10):
        a(f"v_lshlrev_b32 v{X+2*j}, 16, v{LX+j}\nv_and_b32 v{X+2*j+1}, 0xffff0000, v{LX+j}")
    a(f"v_pk_add_f32 v[2:3], {v(X,2)}, {v(X+2,2)}")
    for j in range(2, 10): a(f"v_pk_add_f32 v[2:3], v[2:3], {v(X+2*j,2)}")
    a("v_add_f32 v2, v2, v3")
    half_reduce(a, 2)
    a("s_mov_b32 s7, 0x3acccccd\nv_mul_f32 v2, s7, v2\nv_mov_b64 v[4:5], 0")
    for j in range(10):
        a(f"v_pk_add_f32 v[6:7], {v(X+2*j,2)}, v[2:3] {NEG}\nv_pk_fma_f32 v[4:5], v[6:7], v[6:7], v[4:5]")
    a("v_add_f32 v4, v4, v5")
    half_reduce(a, 4)
    a("v_mul_f32 v4, s7, v4")
    bf16_round(a, 2); bf16_round(a, 4)
    a("v_add_f32 v4, 0x3727c5ac, v4")
    bf16_round(a, 4)
    a("v_sqrt_f32 v4, v4\ns_nop 0")
    bf16_round(a, 4)
    a("v_rcp_f32 v6, v4\ns_nop 0\nv_fma_f32 v5, -v4, v6, 1.0\nv_fmac_f32 v6, v5, v6\nv_mov_b32 v9, 0")
    for j in range(10):
        x = X + 2*j
        a(f"v_pk_add_f32 {v(x,2)}, {v(x,2)}, v[2:3] {NEG}\nv_cvt_pk_bf16_f32 v5, v{x}, v{x+1}")
        a(f"v_lshlrev_b32 v{x}, 16, v5\nv_and_b32 v{x+1}, 0xffff0000, v5")
        a(f"v_pk_mul_f32 {v(x,2)}, {v(x,2)}, v[6:7] op_sel_hi:[1,0]\nv_cvt_pk_bf16_f32 v{LX+j}, v{x}, v{x+1}")
    a(f"v_add_u32 v10, {LDS_LN}, v63")
    for j in range(5): a(f"ds_write_b64 v10, {v(LX+2*j,2)} offset:{j*256}")
    a("s_waitcnt lgkmcnt(0)")

def ln_router(a):
    a("v_mov_b32 v2, 0")
    for j in range(10):
        a(f"v_lshlrev_b32 v4, 16, v{LX+j}\nv_lshlrev_b32 v5, 16, v{LW+j}\nv_fmac_f32 v2, v4, v5")
        a(f"v_and_b32 v4, 0xffff0000, v{LX+j}\nv_and_b32 v5, 0xffff0000, v{LW+j}\nv_fmac_f32 v2, v4, v5")
    half_reduce(a, 2)
    a("v_cvt_pk_bf16_f32 v2, v2, v2\nv_and_b32 v2, 0xffff, v2")
    a("v_bfe_i32 v3, v2, 15, 1\nv_and_b32 v3, 0x7fff, v3\nv_or_b32 v3, 0x8000, v3\nv_xor_b32 v2, v2, v3")
    a(f"s_lshl_b32 s7, s2, 3\ns_sub_u32 s6, 2047, s7\nv_sub_u32 v3, s6, v62\nv_lshl_or_b32 v2, v2, 11, v3\nv_lshlrev_b32 v3, 2, v62\nv_add_u32 v3, {LDS_RK}, v3\nds_write_b32 v3, v2\ns_waitcnt lgkmcnt(0)")

def ln_store(a, back):
    LV = 16
    a(f"s_lshr_b32 s72, s2, 1\ns_mul_i32 s72, s72, 20480\ns_and_b32 s7, s2, 1\ns_lshl_b32 s7, s7, 7\ns_add_u32 s72, s72, s7")
    for n in range(3):
        a(f"v_add_u32 v2, {256*n-256}, v0\nv_lshrrev_b32 v3, 3, v2\nv_and_b32 v4, 7, v2")
        a(f"v_mul_u32_u24 v5, 1280, v4\nv_lshl_add_u32 v5, v3, 4, v5\nv_add_u32 v5, {LDS_LN}, v5")
        a(f"ds_read_b128 {v(LV+8*n,4)}, v5\nv_lshlrev_b32 v5, 8, v3\nv_lshl_add_u32 v{6+n}, v4, 4, v5")
    a("s_waitcnt lgkmcnt(0)")
    for n in range(3):
        if n == 2: a(f"s_cmp_ge_u32 s{S_W}, 6\ns_cbranch_scc1 {back}")
        SC = "" if "lnplain" in ABL else " sc1"
        if "nolnst" not in ABL: a(f"buffer_store_dwordx4 {v(LV+8*n,4)}, v{6+n}, {WS}, s72 offen{SC}")
    a.label(back)
    zero_flags(a)

def count_atomic(a, which):
    a.srd(SRD_E, P_DBG, 256)
    a(f"v_mov_b32 v2, 1\nv_lshlrev_b32 v3, 8, v{L}\ns_and_b32 s6, s2, 31\ns_lshl_b32 s6, s6, 2\nbuffer_atomic_add v2, v3, {R(SRD_E)}, s6 offen offset:{128*which} sc1")

def flag_addr(a, kind, d):
    if kind == "kv":
        a(f"s_lshl_b32 s{d}, s{S_H}, 3\ns_add_u32 s{d}, s{d}, s{S_P}\ns_lshl_b32 s{d}, s{d}, 5\ns_add_u32 s{d}, s{d}, s{S_W}\ns_lshl_b32 s{d}, s{d}, 2\ns_add_u32 s{d}, s{d}, {WS_KVF}")
    elif kind == "ctx":
        a(f"s_lshl_b32 s{d}, s{S_B}, 5\ns_add_u32 s{d}, s{d}, s{S_H}\ns_lshl_b32 s{d}, s{d}, 7\ns_add_u32 s{d}, s{d}, {WS_CTXF}")
    elif kind == "b":
        a(f"s_lshl_b32 s{d}, s{S_P}, 5\ns_add_u32 s{d}, s{d}, s{S_H}\ns_lshl_b32 s{d}, s{d}, 5\ns_add_u32 s{d}, s{d}, s{S_W}\ns_lshl_b32 s{d}, s{d}, 2\ns_add_u32 s{d}, s{d}, {WS_BF}")
    else:
        a(f"s_lshl_b32 s{d}, s{S_E}, 5\ns_add_u32 s{d}, s{d}, s{S_W}\ns_lshl_b32 s{d}, s{d}, 2\ns_add_u32 s{d}, s{d}, {WS_MOEF}")

def tile_id(a, d):
    a(f"s_and_b32 s{d}, s{S_H}, 7\ns_lshl_b32 s7, s{S_P}, 3\ns_add_u32 s{d}, s{d}, s7")
def xslot(a, slot, d):
    tile_id(a, d)
    a(f"s_lshr_b32 s7, s{S_H}, 3\ns_add_u32 s7, s7, {slot}\ns_add_u32 s7, s7, 1\ns_and_b32 s7, s7, 3\ns_lshl_b32 s{d}, s{d}, 2\ns_add_u32 s{d}, s{d}, s7\ns_mul_i32 s{d}, s{d}, 3\ns_add_u32 s{d}, s{d}, {slot}")
def xf_addr(a, slot, d):
    xslot(a, slot, d)
    a(f"s_lshl_b32 s{d}, s{d}, 5\ns_add_u32 s{d}, s{d}, s{S_W}\ns_lshl_b32 s{d}, s{d}, 2\ns_add_u32 s{d}, s{d}, {WS_XF}")

def set_flag(a, kind, val=1):
    flag_addr(a, kind, 6)
    a(f"v_mov_b32 v2, {val}\nv_mov_b32 v3, {hex(WS_SIZE)}\nv_writelane_b32 v3, s6, 0\nbuffer_store_dword v2, v3, {WS}, 0 offen sc1")
    a.vm.issue("flag")

def phase_kv(a):
    def rdC(i, sp):
        if "kv_noC" in ABL: return
        a(f"ds_read_b128 {v(CF+4*i,4)}, v{RC+sp} offset:{i*2048}"); a.lg.issue(("C", i))
    def rdW(par, j, half, sp):
        if "kv_noW" in ABL: return
        r = WF + 16*par + 4*j + 2*half
        a(f"ds_read_b64_tr_b16 {v(r,2)}, v{RW+j} offset:{sp*8192 + half*1024}"); a.lg.issue(("W", par, j, half))
    wq = [(j, hf) for j in range(4) for hf in range(2)]
    def body(isK, lab, dma, nend, hook=None):
        def mm(i, j, par):
            if "k" in SNAKE and i & 1: j = 3 - j
            d = ACC + (i*4+j)*4
            a.wait_lg([("C", i), ("W", par, j, 0), ("W", par, j, 1)])
            if isK: a.mfma(d, WF+16*par+4*j, CF+4*i)
            else: a.mfma(d, CF+4*i, WF+16*par+4*j)
        a(".p2align 4")
        a.label(lab)
        if hook:
            a(f"s_bitcmp1_b32 {0x80 if isK else 0xd6}, s{S_ST}\ns_cbranch_scc1 {hook}"); a.label(hook + "_back")
        for i in range(8):
            for j in range(4):
                mm(i, j, 0)
                if i < 2: rdW(1, *wq[i*4+j], 1)
            rdC(i, 1)
        dma = list(dma)
        if "kv_nodma" in ABL: dma = []
        for i in range(8):
            for j in range(4):
                mm(i, j, 1)
                if i == 2 or i == 3: rdW(0, *wq[(i-2)*4+j], 0)
                if i >= 2 and dma:
                    for y in dma.pop(0): a(y)
            if i == 1:
                for r in (RC, RC+1, RW, RW+1, RW+2, RW+3): a(f"v_xor_b32 v{r}, 0x10000, v{r}")
                if isK and hook and "oldb7" not in ABL:
                    a(f"s_cmp_eq_u32 s{S_ST}, 7\ns_cbranch_scc1 L_know\ns_waitcnt vmcnt(0)")
                    a.label("L_know")
                    a("s_waitcnt lgkmcnt(0)\ns_barrier")
                elif isK: a("s_waitcnt vmcnt(0) lgkmcnt(0)\ns_barrier")
                else:
                    a(f"s_bitcmp1_b32 0x48, s{S_ST}\ns_cbranch_scc1 L_vpre")
                    a.label("L_vnow")
                    a("s_waitcnt lgkmcnt(0)\ns_barrier")
                a.lg.drain()
                a.stampd(S_ST, 24)
                rdC(0, 0); rdC(1, 0)
            elif i >= 2: rdC(i, 0)
        emit_groups(a, dma)
        a(f"s_add_u32 s{S_ST}, s{S_ST}, 1\ns_cmp_lt_u32 s{S_ST}, {nend}\ns_cbranch_scc1 {lab}")
    def first_reads():
        a.lg.drain()
        rdC(0, 0); rdC(1, 0)
        for k in range(4): rdW(0, *wq[k], 0)
        rdC(2, 0)
        for k in range(4, 8): rdW(0, *wq[k], 0)
        for i in range(3, 8): rdC(i, 0)
    a(f"s_cmp_ge_u32 s{S_W}, 4\ns_cbranch_scc1 L_kv_v")
    first_reads()
    q0 = list(a.lg.q)
    emit_groups(a, kv_dma_ops()[10:])
    a.stamp(5)
    body(True, "L_kloopA", kv_dma_ops(), 6)
    assert a.lg.q == q0, (a.lg.q, q0)
    body(True, "L_kloopB", wq_dma_ops(2), 8, hook="L_khook" if "kx2" not in ABL else None)
    a.stamp(6)
    a("s_waitcnt lgkmcnt(0)\ns_nop 7")
    for n in range(16):
        t = ACC + 4*n; d0 = ACC + 8*n; d1 = d0 + 4
        a(f"v_cvt_pk_bf16_f32 v{t}, v{d0}, v{d0+1}\nv_cvt_pk_bf16_f32 v{t+1}, v{d0+2}, v{d0+3}")
        a(f"v_cvt_pk_bf16_f32 v{t+2}, v{d1}, v{d1+1}\nv_cvt_pk_bf16_f32 v{t+3}, v{d1+2}, v{d1+3}")
    a("s_waitcnt vmcnt(16)\ns_branch L_q")
    a.label("L_hook")
    for k in (1, 2, 4, 6): a(f"s_cmp_eq_u32 s{S_ST}, {k}\ns_cbranch_scc1 L_hook{k}")
    a(f"s_cmp_lg_u32 s{S_ST}, 7\ns_cbranch_scc1 L_hook_back")
    for ks in range(3): x_load(a, ks, XEARLY[2*ks:2*ks+2])
    a("s_branch L_hook_back")
    a.label("L_hook1")
    if LNH == 1: ln_store(a, "L_lns")
    for st in TV1: kv_touch(a, st)
    a("s_branch L_hook_back")
    a.label("L_hook2")
    if LNH == 2: ln_store(a, "L_lns")
    for st in TV2: kv_touch(a, st)
    a("s_branch L_hook_back")
    a.label("L_hook4")
    WOTR = [16, 20, 24, 28, 32]
    a(f"s_cmp_lg_u32 s{S_W}, 4\ns_cbranch_scc1 L_hook4b")
    count_atomic(a, 0)
    a.label("L_hook4b")
    a(f"s_lshl_b32 s74, s76, 12\ns_add_u32 s74, s74, {LDS_SP}")
    emit_groups(a, wq_dma_ops(1))
    a("s_branch L_hook_back")
    a.label("L_hook6")
    a(f"s_cmp_lg_u32 s{S_W}, 5\ns_cbranch_scc1 L_hook_back")
    cnt_addr(a); a(cnt_load(a, 62, 0))
    a("s_branch L_hook_back")
    a.label("L_vpre")
    a(f"s_waitcnt vmcnt(0)\ns_lshl_b32 s6, s{S_ST}, 4\ns_add_u32 s6, s6, s{S_W}\ns_cmp_lg_u32 s6, 0x65\ns_cbranch_scc1 L_vnow")
    cnt_check(a, 62, 0)
    a("s_branch L_vnow")
    a.label("L_khook")
    a(f"s_cmp_lg_u32 s{S_ST}, 7\ns_cbranch_scc1 L_khook_back")
    for ks in range(3): x_load(a, ks, XEARLY[2*ks:2*ks+2])
    a("s_branch L_khook_back")
    a.label("L_kv_v")
    first_reads()
    for st in TV0: kv_touch(a, st)
    a.stamp(5)
    body(False, "L_vloop", [], 8, hook="L_hook")
    a.stamp(6)
    a("s_waitcnt lgkmcnt(0)\ns_nop 7")
    for ii in range(4):
        for j in range(4):
            t = ACC + 16*ii + 4*j; d0 = ACC + 32*ii + 4*j; d1 = d0 + 16
            a(f"v_cvt_pk_bf16_f32 v{t}, v{d0}, v{d0+1}\nv_cvt_pk_bf16_f32 v{t+1}, v{d0+2}, v{d0+3}")
            a(f"v_cvt_pk_bf16_f32 v{t+2}, v{d1}, v{d1+1}\nv_cvt_pk_bf16_f32 v{t+3}, v{d1+2}, v{d1+3}")
    a("s_waitcnt vmcnt(0)")

QF, O_, S_, FR, P_, NM, T_, L_, ET = 16, 192, 64, 96, 128, 144, 52, 56, 58
VA, VDK, VDV = 48, 49, 50
S_N, S_NL, S_C, S_THR = 62, 63, 64, 65
LA, ONES, SIDX = 160, 164, 168
OFFS = 0x41c00000
def Sreg(par, kt, qt): return S_ + 16*par + (kt*2+qt)*4
def NMreg(kt, qt): return NM + (kt*2+qt)*4
def Oreg(t, qt): return O_ + (t*2+qt)*4
def Qreg(qt, s): return QF + (qt*4+s)*4
def Preg(par, qt): return P_ + 8*par + 4*qt
def Treg(par, qt): return T_ + 2*par + qt

def xlane(a, op, r, t):
    for sw in ("v_permlane16_swap_b32", "v_permlane32_swap_b32"):
        a(f"v_mov_b32 v{t}, v{r}\ns_nop 1\n{sw} v{r}, v{t}\ns_nop 1\n{op} v{r}, v{r}, v{t}")

def st_dma(a, parts):
    if "K" in parts:
        for hf in range(2):
            a(f"s_lshl_b32 s6, s76, 13\ns_add_u32 s6, s6, s78\ns_add_u32 m0, s6, {hf*4096}\ns_add_u32 s7, s77, {hf*4096}")
            for i in range(4): a(f"buffer_load_dwordx4 v{VDK}, {WS}, s7 offen offset:{i*1024} sc1 lds")
    for hf in range(2):
        if f"V{hf}" in parts:
            a(f"s_lshl_b32 s6, s76, 12\ns_add_u32 s6, s6, s78\ns_add_u32 m0, s6, {32768+hf*16384}\ns_add_u32 s7, s77, {0x80000-16384+hf*16384}")
            for i in range(4): a(f"buffer_load_dwordx4 v{VDV}, {WS}, s7 offen offset:{i*1024} sc1 lds")

S_HK, S_ALL = 89, 90
def kv_self_touch(a):
    a(f"v_lshrrev_b32 v9, 3, v{L}\ns_cmp_lt_u32 s{S_W}, 4\ns_cselect_b32 s7, 6, 4\nv_and_b32 v10, s7, v9\nv_add_u32 v9, v9, v10\nv_lshlrev_b32 v9, 10, v9")
    a(f"v_and_b32 v10, 7, v{L}\nv_lshl_add_u32 v9, v10, 7, v9\ns_sub_u32 s6, s{S_KVD}, 32768")
    a(f"buffer_load_dword v{VDUM}, v9, {WS}, s6 offen sc1\ns_add_u32 s6, s6, 16384\nbuffer_load_dword v{VDUM}, v9, {WS}, s6 offen sc1")

def kvf_addr(a):
    a(f"s_lshl_b32 s7, s{S_H}, 10\ns_add_u32 s7, s7, {WS_KVF}\nv_lshrrev_b32 v2, 3, v{L}\nv_and_b32 v3, 7, v{L}\nv_lshlrev_b32 v3, 2, v3\nv_lshl_add_u32 v3, v2, 7, v3")
def kv_flag_wait(a, level):
    kvf_addr(a)
    poll(a, f"buffer_load_dword v2, v3, {WS}, s7 offen sc1", f"v_cmp_gt_u32 vcc, {level}, v2")

KS_POLL = int(os.environ.get("KSP", "15"))
LATE_KS = tuple(int(x) for x in os.environ.get("STKS", "0,1,2,3,16,17,18,19").split(","))
KS_FLAG = int(os.environ.get("KSF", "6"))
NEARLY = int(os.environ.get("NEARLY", "2"))
def kv_store(a, n, late=True):
    if late and "nolate" in ABL: return
    a(f"buffer_store_dwordx4 {v(ACC+4*n,4)}, v{VL16}, {WS}, s{S_KVD} offen sc1"); a.vm.issue(("st", n))
    inc = ("1024", f"s{S_INCA}", "1024", f"s{S_INCB}")[n & 3]
    a(f"s_add_u32 s{S_KVD}, s{S_KVD}, {inc}")
def q_body(a):
    sfx = ""
    a.lg.drain(); a.vm.drain()
    def rdW(t, hf, ks):
        blk = ks >> 2
        off = (0, 0, 32768, 0, 32768)[blk] + (ks & 3)*8192 + hf*1024
        a(f"ds_read_b64_tr_b16 {v(WF+4*t+2*hf,2)}, v{QRW+t} offset:{off}"); a.lg.issue(("W", t, hf))
    for t in range(8):
        rdW(t, 0, 0); rdW(t, 1, 0)
    xr = {ks: XEARLY[2*ks:2*ks+2] for ks in range(3)}
    for ks in range(3, 7):
        xr[ks] = [CF + 8*(ks-3), CF + 8*(ks-3) + 4]
        x_load(a, ks, xr[ks])
    nst = 0
    for ks in range(20):
        pend = []
        a.wait_vm(("X", ks))
        if ks % 2 == 0: a.stamp(32 + ks//2)
        barrier_here = ks == 11 or (ks == 3 and "oldb7" not in ABL)
        upd = {3: -LDS_SP, 11: 65536}.get(ks)
        st_at = (3,) if ks in LATE_KS else ()
        for t in range(8):
            for qt in range(2):
                if qt == 0: a.wait_lg([("W", t, 0), ("W", t, 1)])
                q = qt ^ (t & 1) if "q" in SNAKE else qt
                a.mfma(Oreg(t, q), WF+4*t, xr[ks][q], "0" if ks == 0 else None)
                if qt == 1 and ks < 19: pend += [(t, 0), (t, 1)]
                if barrier_here and t == 1 and qt == 1:
                    a("s_waitcnt lgkmcnt(0)\ns_barrier"); a.lg.drain()
                    while len(pend) > 2: rdW(*pend.pop(0), ks+1)
                if pend and not (barrier_here and (t, qt) < (1, 1)): rdW(*pend.pop(0), ks+1)
                if upd is not None and qt == 0:
                    a(f"v_add_u32 v{QRW+t}, s101, v{QRW+t}" if ks == 3 else f"v_xor_b32 v{QRW+t}, 0x10000, v{QRW+t}")
                if qt == 0 and t in st_at and nst < 16:
                    kv_store(a, nst); nst += 1
        while pend: rdW(*pend.pop(0), ks+1)
        if ks + 7 < 20:
            xr[ks+7] = xr[ks]; x_load(a, ks+7, xr[ks])
        if ks == KS_FLAG:
            a.wait_vm(("st", 3))
            set_flag(a, "kv", 1)
        if ks == KS_POLL:
            a.wait_vm(("X", 19))
            a(f"s_cmp_ge_u32 s{S_W}, 4\ns_cbranch_scc1 L_q_nold{sfx}")
            a.stamp(20)
            kv_flag_wait(a, 1)
            a.stamp(21)
            st_dma(a, ["K", "V1"])
            a.label(f"L_q_nold{sfx}")
    assert nst == len(LATE_KS) and 8 <= nst <= 12

def phase_q(a):
    a.label("L_q")
    a.srd(SRD_E, P_DBG, 256)
    a(f"s_lshl_b32 s6, s76, 13\nv_add_u32 v{VDK}, s6, v{VL16}\ns_lshl_b32 s6, s76, 12\nv_add_u32 v{VDV}, s6, v{VL16}")
    a(f"s_lshl_b32 s77, s{S_H}, 20\ns_add_u32 s77, s77, {WS_KV}\ns_mov_b32 s78, s100\ns_sub_u32 s101, s100, {LDS_SP}\ns_mov_b32 s{S_ALL}, 0")
    a(f"s_cmp_lt_u32 s{S_W}, 4\ns_cselect_b32 s{S_HK}, 3, 2")
    q_body(a)
    a.stamp(7)
    if "symq" not in ABL:
        a(f"s_cmp_lt_u32 s{S_W}, 4\ns_cbranch_scc1 L_qb\ns_barrier")
        a.label("L_qb")
    a("s_mov_b32 s6, 0x3e0293ee\ns_nop 7")
    for qt in range(2):
        for n in range(len(LATE_KS), 12):
            if (n & 1) == qt or 12 - len(LATE_KS) == 1: pass
        if qt == 0:
            for n in range(len(LATE_KS), 12): kv_store(a, n)
        for s_ in range(4):
            for hf in range(2):
                d = Oreg(2*s_+hf, qt)
                for r in range(4): a(f"v_mul_f32 v{d+r}, s6, v{d+r}")
                a(f"v_cvt_pk_bf16_f32 v{Qreg(qt,s_)+2*hf}, v{d}, v{d+1}\nv_cvt_pk_bf16_f32 v{Qreg(qt,s_)+2*hf+1}, v{d+2}, v{d+3}")
    zero_regs(a, O_, 64)
    zero_regs(a, NM, 16)
    zero_regs(a, LA, 4)
    a(f"v_bfe_u32 v2, v{L}, 1, 1\nv_lshrrev_b32 v3, 5, v{L}\nv_cmp_eq_u32 vcc, v2, v3\nv_mov_b32 v2, 0x3f803f80\nv_and_b32 v3, 1, v{L}\nv_mul_u32_u24 v3, 0xaaaa, v3\nv_add_u32 v{SIDX}, 0x4444, v3")
    for i in range(4): a(f"v_cndmask_b32 v{ONES+i}, 0, v2, vcc")
    a(f"v_add_u32 v{VA}, s100, v{VL16}")
    a(f"s_waitcnt vmcnt({12 - len([k for k in LATE_KS if k <= KS_POLL])})")

def sm_ops(par):
    ops = []
    n = 0
    for kt in range(2):
        for qt in range(2):
            for r in range(4):
                t, tp = ET + n % 4, ET + (n-1) % 4
                e = f"v_exp_f32 v{t}, v{Sreg(par,kt,qt)+r}"
                rest = []
                if r & 1: rest.append(f"v_cvt_pk_bf16_f32 v{Preg(par,qt)+2*kt+(r>>1)}, v{tp}, v{t}")
                ops.append((e, rest)); n += 1
    return ops

def phase_attn(a):
    handlers = []
    FULLQ = [("F", i) for i in range(1, 8)]
    def rd(kind, i, k):
        off = (0 if kind == "K" else 32768) + k*8192 + i*1024
        a(f"ds_read_b128 {v(FR+4*i,4)}, v{VA} offset:{off}"); a.lg.issue(("F", i))
    def bar(wait="vmcnt(0) lgkmcnt(0)", mid=None, hot=False):
        bk = a.newlabel("ldback")
        if hot:
            a(f"s_cbranch_scc1 {bk}_c\ns_barrier")
            a.label(bk)
            handlers.append(("ld", bk))
        else:
            a(f"s_waitcnt {wait}\ns_call_b64 s[82:83], L_pend\ns_barrier")
            if mid: mid()
            a(f"s_call_b64 s[82:83], L_load")
        a.lg.drain()
        if "stampbar" in ABL: a.stampd(S_N, 44)
        a(f"s_add_i32 s{S_N}, s{S_N}, 1")
    def stage(k, qk=True, sm=True, pv=True, nxt=True, loop=False):
        pq, ps = k & 1, 1 - (k & 1)
        full = qk and pv
        pairs = []
        if pv: pairs += [("V", i) for i in range(8)]
        if qk: pairs += [("K", i) for i in range(8)]
        NP = len(pairs)
        lp = None if not pv else 1 if not full else LPOS - 1 if k == 3 else 13
        g0 = [[] for _ in range(NP)]; g1 = [[] for _ in range(NP)]; gl = []
        if sm:
            ops = sm_ops(ps)[2:]
            g1[0] += sm_ops(ps)[1][1]
            per = 1 if full else 2
            for n, (e, rest) in enumerate(ops):
                g0[n//per].append(e); g1[n//per] += rest
            c = [Preg(ps, qt) + 2*kt + h for kt in range(2) for qt in range(2) for h in range(2)]
            X = ET + 4
            chk = [f"v_or3_b32 v{X}, v{c[0]}, v{c[1]}, v{c[2]}", f"v_or3_b32 v{X}, v{X}, v{c[3]}, v{c[4]}", f"v_or3_b32 v{X}, v{X}, v{c[5]}, v{c[6]}",
                   f"v_bitop3_b32 v{X}, v{X}, v{c[7]}, s72 bitop3:0xa8", f"v_cmp_ne_u32 vcc, s{S_THR}, v{X}"]
            if full:
                g1[4].append(chk[0]); g1[8].append(chk[1]); g1[12].append(chk[2])
                (gl if lp == 13 else g1[14]).append(chk[3]); g1[14].append(chk[4])
            else: g0[7] += chk
        if full:
            for n, (e, rest) in enumerate(sm_ops(pq)[:2]): g0[14+n].append(e)
        sc = {}
        if loop:
            sc[1] = f"s_sub_i32 s{S_C}, s{S_C}, 1"; sc[3] = f"s_cmp_gt_i32 s{S_C}, 0"; sc[5] = f"s_cselect_b32 s{S_THR}, 0, 1"
            if k == 3: sc[lp-1] = f"s_cmp_lg_u32 s{S_HK}, 0"
        barp = lp if k == 3 else None
        if barp is not None: g1[barp-1].append(f"v_xor_b32 v{VA}, 0x10000, v{VA}")
        held = []
        for n, (kind, i) in enumerate(pairs):
            for qt in range(2):
                q = qt ^ (i & 1) if "a" in SNAKE else qt
                if kind == "V": a.mfma(Oreg(i, q), FR+4*i, Preg(pq, q))
                else: a.mfma(Sreg(pq, i >> 2, q), FR+4*i, Qreg(q, i & 3), None if i & 3 else NMreg(i >> 2, q))
                if qt == 0:
                    if n + 1 < NP: a.wait_lg(("F", pairs[n+1][1]))
                    elif nxt: a.wait_lg(("F", 0))
                    for x in g0[n]: a(x)
                else:
                    if n in sc: a(sc[n])
                    if n == barp and loop:
                        a("s_waitcnt lgkmcnt(0)"); a.lg.drain()
                    if kind == "V" and qk: rd("K", i, k)
                    elif nxt:
                        if barp is not None and n <= barp: held.append(i)
                        else: rd("V", i, (k+1) & 3)
                    for x in g1[n]: a(x)
            if n == lp:
                a(f"v_smfmac_f32_16x16x64_bf16 {v(LA,4)}, {v(ONES,4)}, {v(Preg(pq,0),8)}, v{SIDX}")
                for x in gl: a(x)
                if n == barp:
                    bar(hot=loop)
                    for h in held: rd("V", h, 0)
        if sm:
            bk = a.newlabel("back")
            if loop and k == 3:
                a(f"s_cbranch_vccz L_st0\ns_branch {bk}_h")
                handlers.append(("sm", bk, k, loop, full, "L_st0"))
            else:
                a(f"s_cbranch_vccnz {bk}_h")
                a.label(bk)
                handlers.append(("sm", bk, k, loop, full, bk))
    a(f"s_mov_b32 s72, 0x40004000\ns_mov_b32 s{S_THR}, 0\ns_sub_u32 s{S_NL}, 15, s{S_P}\ns_mov_b32 s{S_N}, -1")
    a.stamp(8)
    if "symq" in ABL: bar("lgkmcnt(0)")
    else:
        a(f"s_cmp_ge_u32 s{S_W}, 4\ns_cbranch_scc1 L_qb2\ns_barrier")
        a.label("L_qb2")
        a.lg.drain()
        if "stampbar" in ABL: a.stampd(S_N, 44)
    a.stamp(9)
    for i in range(8): rd("K", i, 0)
    a(f"s_cmp_lg_u32 s{S_B}, 0\ns_cbranch_scc1 L_nm0\ns_call_b64 s[82:83], L_mask")
    a.label("L_nm0")
    for i in range(8):
        a.wait_lg(("F", i))
        for qt in range(2):
            a.mfma(Sreg(0, i >> 2, qt), FR+4*i, Qreg(qt, i & 3), None if i & 3 else NMreg(i >> 2, qt))
        rd("K", i, 1)
    a("s_nop 7")
    for qt in range(2):
        m = ET + qt
        s0, s1 = Sreg(0, 0, qt), Sreg(0, 1, qt)
        a(f"v_max3_f32 v{m}, v{s0}, v{s0+1}, v{s0+2}\nv_max3_f32 v{m}, v{m}, v{s0+3}, v{s1}\nv_max3_f32 v{m}, v{m}, v{s1+1}, v{s1+2}\nv_max_f32 v{m}, v{m}, v{s1+3}")
        xlane(a, "v_max_f32", m, ET+2)
        a(f"v_add_f32 v{m}, {hex(OFFS)}, v{m}")
        for kt in range(2):
            for r in range(4):
                a(f"v_sub_f32 v{Sreg(0,kt,qt)+r}, v{Sreg(0,kt,qt)+r}, v{m}\nv_sub_f32 v{NMreg(kt,qt)+r}, 0, v{m}")
    a(f"s_cmp_lg_u32 s{S_B}, 1\ns_cbranch_scc1 L_nm1\ns_call_b64 s[82:83], L_mask")
    a.label("L_nm1")
    def early(par):
        o = sm_ops(par)[:2]
        a(o[0][0]); a(o[1][0])
    early(0)
    a.wait_lg(("F", 0))
    stage(1, pv=False)
    assert a.lg.q == FULLQ
    a("s_nop 7")
    early(1)
    if "symq" not in ABL: a(f"s_call_b64 s[82:83], L_load\ns_mov_b32 s{S_N}, 0")
    for n in range(12, 16): kv_store(a, n)
    a(f"s_sub_i32 s{S_C}, s{S_B}, 2")
    a.stamp(10)
    a(f"s_cmp_eq_u32 s{S_B}, 0\ns_cbranch_scc1 L_pv2\ns_cmp_eq_u32 s{S_B}, 1\ns_cbranch_scc1 L_tail2")
    a(f"s_cmp_lg_u32 s{S_B}, 2\ns_cbranch_scc1 L_st2\ns_call_b64 s[82:83], L_mask\ns_branch L_st2")
    a(".p2align 6")
    a.label("L_st0")
    for k in range(4):
        if k == 2: a.label("L_st2")
        stage(k, loop=True)
        assert a.lg.q == FULLQ, a.lg.q
    for k in range(4):
        a.label(f"L_tail{k}")
        a.lg.q = list(FULLQ)
        a(f"s_mov_b32 s{S_THR}, 0")
        stage(k, qk=False)
        assert a.lg.q == FULLQ
        a.label(f"L_pv{(k+1)&3}")
        stage((k+1) & 3, qk=False, sm=False, nxt=False)
        if k == 1 and "nopvb" not in ABL:
            a(f"s_cmp_eq_u32 s{S_B}, 0\ns_cbranch_scc1 L_fin")
            bar()
        if k < 3: a("s_branch L_fin")
    a.label("L_fin")
    a.stamp(11)
    idx_addr(a); a(f"buffer_load_dword v{VIDX}, v3, {WS}, s72 offen sc1")
    for qt in range(2): a(f"v_add_f32 v{L_+qt}, v{LA+2*qt}, v{LA+2*qt+1}\nv_rcp_f32 v{L_+qt}, v{L_+qt}")
    a(f"s_lshl_b32 s6, s{S_B}, 18\ns_lshl_b32 s7, s{S_H}, 12\ns_add_u32 s6, s6, s7\ns_add_u32 s6, s6, {WS_CTX}\ns_nop 4")
    n = 0
    a.vm.drain()
    for qt in range(2):
        for s_ in range(4):
            t = QF + 4*n; n += 1
            for hf in range(2):
                d = Oreg(2*s_+hf, qt)
                for r in range(4): a(f"v_mul_f32 v{d+r}, v{L_+qt}, v{d+r}")
                a(f"v_cvt_pk_bf16_f32 v{t+2*hf}, v{d}, v{d+1}\nv_cvt_pk_bf16_f32 v{t+2*hf+1}, v{d+2}, v{d+3}")
            a(f"buffer_store_dwordx4 {v(t,4)}, v{VL16}, {WS}, s6 offen offset:{s_*1024} sc1"); a.vm.issue("st")
        if qt == 0: a("s_add_u32 s6, s6, 0x20000")
    a.stamp(12)
    def flag_now():
        a("s_waitcnt vmcnt(0)")
        set_flag(a, "ctx")
    a(f"s_cmp_gt_i32 s{S_N}, s{S_NL}\ns_cbranch_scc1 L_pre")
    bar("vmcnt(8)", flag_now)
    a(f"s_lshl_b32 s6, s{S_W}, 8\ns_add_u32 s6, s6, s2\ns_cmp_eq_u32 s6, {DESIG}\ns_cbranch_scc1 L_top")
    a.label("L_idle")
    a(f"s_sub_i32 s6, s{S_NL}, 5\ns_cmp_gt_i32 s{S_N}, s6\ns_cbranch_scc1 L_pre")
    bar()
    a(f"s_cmp_lt_u32 s{S_E}, 54\ns_cbranch_scc1 L_moe\ns_branch L_idle")
    a.label("L_pre")
    a(f"s_cmp_lt_u32 s{S_W}, 4\ns_cbranch_scc1 L_pre1")
    a.stamp(19)
    a("s_barrier")
    a(f"s_lshl_b32 s7, s76, 13\ns_add_u32 s7, s7, 0x10000\nv_add_u32 v3, s7, v{VL16}\nv_add_u32 v2, 0x10000, v3\ns_lshl_b32 s7, s76, 12\ns_add_u32 s7, s7, 0x10000\nv_add_u32 v12, s7, v{VL16}")
    def wrd(fs):
        for f in fs:
            r, off = (2, f*1024) if f < 8 else (3, (f-8)*1024) if f < 16 else (12, 49152+(f-16)*1024)
            a(f"ds_read_b128 {v(WR+4*f,4)}, v{r} offset:{off}")
    wrd(range(12))
    out_setup(a, 1)
    out_cx(a)
    wrd(range(12, 20))
    NWF = int(os.environ.get("NWF", "1"))
    for i in range(4, 4+NWF): wo_load(a, i)
    a(f"s_waitcnt vmcnt({5*NWF})")
    set_flag(a, "ctx")
    for i in range(4+NWF, 8): wo_load(a, i)
    a("s_waitcnt lgkmcnt(0)\ns_barrier")
    a("s_branch L_adone")
    a.label("L_pre1")
    cnt_addr(a); poll(a, cnt_load(a, 2, 1), "v_cmp_gt_u32 vcc, 4, v2", sleep=8)
    a(f"s_mov_b32 s{S_ALL}, 1")
    out_setup(a, 0)
    if "xnt" in ABL:
        a.srd(SRD_A, P_X, 2048*640*2)
        a(f"v_min_u32 v2, 39, v{L}\nv_mul_u32_u24 v3, 52, v2\nv_lshrrev_b32 v3, 8, v3\nv_mul_u32_u24 v4, 5, v3\nv_sub_u32 v2, v2, v4\nv_mul_u32_u24 v3, 1280, v3\nv_lshl_add_u32 v2, v2, 6, v3")
        a(f"s_cmp_lt_u32 s{S_W}, 2\ns_cselect_b32 s6, s{S_OB}, s{S_OL}\ns_lshl_b32 s6, s6, 1\ns_and_b32 s7, s{S_W}, 1\ns_add_u32 s6, s6, s7\ns_mul_i32 s6, s6, 10240\ns_and_b32 s7, s{S_H}, 3\ns_mul_i32 s7, s7, 320\ns_add_u32 s6, s6, s7")
        a(f"buffer_load_dword v{VDUM}, v2, {R(SRD_A)}, s6 offen")
    for j in range(5):
        if j == 3: y_look(a)
        if j == 4: y_try(a)
        PIECES = eval(os.environ.get("PIECES", "((), (0,1,2), (3,4,5), (6,7))"))
        if j < 4:
            for i in PIECES[j]: wo_load(a, i)
        if j == 4:
            ctxf_addr(a, S_OB); a(f"buffer_load_dword v50, v3, {WS}, s72 offen sc1")

        if j == 0: a(f"s_sub_i32 s6, s{S_NL}, 4\ns_cmp_gt_i32 s{S_N}, s6\ns_cbranch_scc1 L_e{j+2}")
        else: a(f"s_cmp_gt_i32 s{S_N}, s{S_NL}\ns_cbranch_scc1 L_e{j+2}")
        if j < 4:
            a(f"s_cmp_eq_i32 s{S_N}, s{S_NL}\ns_cbranch_scc1 L_lw{j}\ns_waitcnt vmcnt({5*len(PIECES[j]) + (j == 0)})")
            a.label(f"L_lw{j}")
        bar(f"vmcnt({20 if 'nocode2' in ABL else 21})")
        a.label(f"L_e{j+2}")
    a.stamp(22)
    moe_finish(a)
    out_cx(a)
    a("s_waitcnt vmcnt(0)\nv_cmp_ne_u32 vcc, 1, v50\ns_cbranch_vccz L_ce")
    ctxf_addr(a, S_OB)
    poll(a, f"buffer_load_dword v2, v3, {WS}, s72 offen sc1", "v_cmp_ne_u32 vcc, 1, v2", sleep=4)
    a.label("L_ce")
    for r in range(NPC):
        for x in ctx_dma(r) + ctx_dma(r, 16384): a(x)
    y_is(a, "L_yg")
    set_flag(a, "b")
    a("s_waitcnt vmcnt(1)\ns_branch L_ye")
    a.label("L_yg")
    a("s_waitcnt vmcnt(0)")
    a.label("L_ye")
    a.stamp(23)
    a("s_setprio 0")
    a.stamp(19)
    a("s_barrier")
    for r in range(NPC, 2):
        for x in ctx_dma(r) + ctx_dma(r, 16384): a(x)
    a.stamp(15)
    a("s_branch L_adone")
    y_loads(a)
    moe_steps(a, bar)
    top8(a, bar)
    for h in handlers:
        if h[0] == "ld":
            a.label(h[1] + "_c"); a(f"s_waitcnt vmcnt(0) lgkmcnt(0)\ns_call_b64 s[82:83], L_pend\ns_barrier\ns_call_b64 s[82:83], L_load\ns_branch {h[1]}")
        else:
            _, bk, k, loop, full, back = h
            a.label(bk + "_h")
            a(f"v_cmp_ne_u32 vcc, 0, v{ET+4}\ns_cbranch_vccz {bk}_n\ns_call_b64 s[80:81], L_rare{1-(k&1)}")
            if full:
                o = sm_ops(k & 1)[:2]
                a(o[0][0]); a(o[1][0])
            a.label(bk + "_n")
            if loop:
                a(f"s_cmp_lt_i32 s{S_C}, 0\ns_cbranch_scc1 L_tail{(k+1)&3}\ns_cmp_gt_i32 s{S_C}, 0\ns_cbranch_scc1 {back}\ns_call_b64 s[82:83], L_mask")
            a(f"s_branch {back}")
    a.label("L_load")
    a(f"s_bitcmp1_b32 s{S_HK}, 0\ns_cbranch_scc0 L_load_r")
    a(f"s_add_u32 s77, s77, 32768\ns_xor_b32 s78, s78, 0x10000\ns_add_i32 s73, s{S_N}, 1\ns_cmp_gt_i32 s73, s{S_NL}\ns_cbranch_scc1 L_load_r")
    if "at_nodma" not in ABL:
        a(f"s_cmp_eq_i32 s73, s{S_NL}\ns_cbranch_scc1 L_load_v\ns_cmp_lg_i32 s73, 3\ns_cbranch_scc1 L_load_k")
        a("v_cmp_gt_u32 vcc, 2, v12\ns_cbranch_vccz L_load_k")
        kv_flag_wait(a, 2)
        a.label("L_load_k")
        st_dma(a, ["K", "V1"])
        a.label("L_load_v")
        st_dma(a, ["V0"])
    a(f"s_cmp_eq_i32 s73, s{S_NL}\ns_cbranch_scc1 L_xa\ns_cmp_lg_i32 s73, 2\ns_cbranch_scc1 L_nolook")
    kvf_addr(a); a(f"buffer_load_dword v12, v3, {WS}, s7 offen sc1")
    a.label("L_nolook")
    a(f"s_bitcmp1_b32 {WOTM}, s{S_P}\ns_cbranch_scc0 L_wb\ns_sub_i32 s6, s{S_N}, {WOTN}\ns_cmp_gt_u32 s6, 4\ns_cbranch_scc0 L_wsel")
    a.label("L_wb")
    a(f"s_cmp_lt_u32 s{S_P}, 4\ns_cbranch_scc1 L_load_r")
    a(f"s_sub_i32 s79, s73, 1\ns_cmp_lt_u32 s79, 2\ns_cbranch_scc1 L_x3")
    a.label("L_load_r")
    a("s_setpc_b64 s[82:83]")
    a.label("L_pend")
    a(f"s_bitcmp1_b32 s{S_HK}, 1\ns_cbranch_scc0 L_load_a\ns_cmp_lt_i32 s{S_N}, 0\ns_cbranch_scc1 L_load_a")
    set_flag(a, "kv", 2)
    a(f"s_and_b32 s{S_HK}, s{S_HK}, 1")
    a.label("L_load_a")
    a("s_setpc_b64 s[82:83]")
    def wo_dma(fs, m0base, m0off):
        for i, f in enumerate(fs):
            a(f"s_add_u32 m0, {m0base}, {m0off + i*1024}\ns_add_u32 s7, s{84 + f%5}, {(f//5)*40960}\nbuffer_load_dwordx4 v{VL16}, {WS}, s7 offen sc1 lds")
    WOTR = [172, 176, 180, 184, 188]
    a.label("L_wsel")
    a(f"s_bfm_b32 s7, s{S_P}, 0\ns_and_b32 s7, s7, {WOTM}\ns_bcnt1_i32_b32 s7, s7\ns_lshl_b32 s7, s7, 5\ns_and_b32 s91, s2, 31\ns_add_u32 s91, s91, s7\ns_lshl_b32 s91, s91, 1\ns_lshr_b32 s7, s6, 1\ns_add_u32 s91, s91, s7\ns_cmp_eq_u32 s6, 4\ns_cbranch_scc1 L_w2\ns_bitcmp1_b32 s6, 0\ns_cbranch_scc1 L_w1")
    a.label("L_w0")
    a.srd(SRD_E, P_WO, 4096*640*2)
    a(f"s_lshr_b32 s75, s91, 1\ns_mul_i32 s75, s75, {32*1280}\ns_and_b32 s6, s91, 1\ns_mul_i32 s6, s6, 640\ns_add_u32 s75, s75, s6\ns_movk_i32 s7, 1639")
    a(f"s_mul_i32 s74, s76, 5120\ns_add_u32 s74, s74, {LDS_WOT}\ns_mul_i32 s6, s76, 320\nv_add_u32 v9, s6, v{L}")
    for n in range(5):
        a(f"v_add_u32 v2, {n*64}, v9\nv_mul_lo_u32 v3, v2, s7\nv_lshrrev_b32 v3, 16, v3\nv_mul_u32_u24 v4, 40, v3\nv_sub_u32 v4, v2, v4")
        a(f"v_mul_u32_u24 v3, 1280, v3\nv_lshl_add_u32 v3, v4, 4, v3\ns_add_u32 m0, s74, {n*1024}\ns_nop 0")
        a(f"buffer_load_dwordx4 v3, {R(SRD_E)}, s75 offen{NT} lds")
    a("s_branch L_wb")
    a.label("L_w1")
    a(f"v_and_b32 v2, 15, v{L}\nv_lshrrev_b32 v3, 4, v{L}\nv_lshrrev_b32 v4, 2, v2\nv_lshl_add_u32 v4, v3, 2, v4\nv_mul_u32_u24 v4, 640, v4")
    a(f"v_and_b32 v2, 3, v2\nv_lshl_add_u32 v4, v2, 3, v4\ns_mul_i32 s6, s76, 160\ns_add_u32 s6, s6, {LDS_WOT}\nv_add_u32 v4, s6, v4")
    a(f"s_mul_i32 s6, s91, 20480\ns_mul_i32 s7, s76, 5120\ns_add_u32 s6, s6, s7\ns_add_u32 s6, s6, {WS_WOF}\ns_add_u32 s7, s6, 4096")
    for n in range(5):
        d = WOTR[n]
        a(f"ds_read_b64_tr_b16 v[{d}:{d+1}], v4 offset:{n*32}\nds_read_b64_tr_b16 v[{d+2}:{d+3}], v4 offset:{n*32+10240}")
    a("s_waitcnt lgkmcnt(0)")
    for n in range(5):
        a(f"buffer_store_dwordx4 {v(WOTR[n],4)}, v{VL16}, {WS}, s{6 if n<4 else 7} offen offset:{(n&3)*1024} sc1")
    a("s_branch L_wb")
    a.label("L_w2")
    a(f"s_cmp_lg_u32 s{S_W}, 0\ns_cbranch_scc1 L_wb")
    count_atomic(a, 1)
    a("s_branch L_wb")
    a.label("L_xa")
    a(f"s_cmp_lg_u32 s{S_ALL}, 0\ns_cbranch_scc1 L_xa1")
    cnt_addr(a); poll(a, cnt_load(a, 2, 1), "v_cmp_gt_u32 vcc, 4, v2", sleep=8)
    a.label("L_xa1")
    if "nocode2" not in ABL:
        a("s_getpc_b64 s[80:81]")
        a.label("L_pc2")
        a(f"s_sub_u32 s80, s80, L_pc2-L_fin\ns_subb_u32 s81, s81, 0\ns_and_b32 s6, s{S_H}, 1\ns_lshl_b32 s6, s6, 14\nv_lshl_add_u32 v3, v0, 6, s6")
        a(f"v_min_u32 v3, L_exit-L_fin, v3\nglobal_load_dword v{VDUM}, v3, s[80:81]")
    if "xt" in ABL:
        a.srd(SRD_A, P_X, 2048*640*2)
        a(f"v_lshrrev_b32 v2, 2, v{L}\nv_mul_u32_u24 v2, 1280, v2\nv_and_b32 v3, 3, v{L}\nv_lshl_add_u32 v2, v3, 6, v2")
        a(f"s_lshl_b32 s6, s{S_H}, 2\ns_add_u32 s6, s6, s{S_W}\ns_mul_i32 s73, s6, 20480\ns_mul_i32 s7, s{S_P}, 160\ns_andn2_b32 s7, s7, 63\ns_add_u32 s7, s7, s73")
        a(f"buffer_load_dword v{VDUM}, v2, {R(SRD_A)}, s7 offen\nv_min_u32 v2, 39, v{L}\nv_lshlrev_b32 v2, 6, v2\ns_mul_i32 s7, s{S_P}, 2560\ns_add_u32 s7, s7, s73")
        a(f"buffer_load_dword v{VDUM}, v2, {WS}, s7 offen sc1")
    wo_base(a, 74, 1)
    for m in range(4): a(f"s_add_u32 s6, s76, {m}\ns_and_b32 s6, s6, 3\ns_lshl_b32 s6, s6, 10\ns_add_u32 s{84+m}, s6, s74")
    a("s_add_u32 s88, s74, 4096")
    a(f"s_lshl_b32 s73, s{S_W}, 13\ns_add_u32 s75, s73, s78")
    wo_dma(range(8), "s73", LDS_SP); wo_dma(range(8, 16), "s75", 0)
    a(f"s_lshl_b32 s75, s{S_W}, 12\ns_add_u32 s75, s75, s78")
    wo_dma(range(16, 20), "s75", 49152)
    a("s_setpc_b64 s[82:83]")
    a.label("L_x3")
    if "nomoetouch" not in ABL:
        a.srd(SRD_A, P_WG, 640*1728*2)
        a(f"s_cmp_eq_u32 s{S_W}, 3\ns_cbranch_scc1 L_load_r")
        a(f"s_cmp_eq_u32 s{S_W}, 1\ns_cselect_b32 s{SRD_A}, s{P_WU}, s{SRD_A}\ns_cselect_b32 s{SRD_A+1}, s{P_WU+1}, s{SRD_A+1}")
        a(f"s_cmp_eq_u32 s{S_W}, 2\ns_cselect_b32 s{SRD_A}, s{P_WD}, s{SRD_A}\ns_cselect_b32 s{SRD_A+1}, s{P_WD+1}, s{SRD_A+1}")
        a(f"s_mov_b32 s73, 3456\ns_cmov_b32 s73, 256\ns_mov_b32 s75, 256\ns_cmov_b32 s75, {4*40960}")
        a(f"s_lshr_b32 s6, s2, 3\ns_sub_u32 s6, s6, 16\ns_mul_i32 s6, s6, 40\nv_lshrrev_b32 v2, 2, v{L}\nv_add_u32 v2, s6, v2\nv_mul_lo_u32 v2, v2, s73\nv_and_b32 v3, 3, v{L}\nv_lshl_add_u32 v2, v3, 6, v2")
        a(f"s_xor_b32 s79, s79, 1\ns_lshl_b32 s6, s79, 3\ns_lshr_b32 s7, s{S_H}, 2\ns_add_u32 s6, s6, s7\ns_mul_i32 s6, s6, s75")
        a(f"v_mov_b32 v3, {hex(WS_SIZE)}\nv_cmp_gt_u32 vcc, 32, v{L}\ns_lshl_b32 s73, s73, 4\ns_nop 0\nv_cndmask_b32 v3, v3, v2, vcc")
        a(f"buffer_load_dword v{VDUM}, v2, {R(SRD_A)}, s6 offen\ns_add_u32 s7, s6, s73\nbuffer_load_dword v{VDUM}, v2, {R(SRD_A)}, s7 offen")
        a(f"s_add_u32 s7, s7, s73\nbuffer_load_dword v{VDUM}, v3, {R(SRD_A)}, s7 offen")
    a("s_setpc_b64 s[82:83]")
    a.label("L_mask")
    a(f"v_and_b32 v2, 15, v{L}\nv_lshrrev_b32 v3, 4, v{L}\nv_lshlrev_b32 v3, 2, v3\nv_sub_u32 v2, v2, v3\nv_mov_b32 v3, 0xff800000")
    for r in range(4):
        a(f"v_cmp_gt_i32 vcc, {r}, v2\nv_mov_b32 v{NMreg(1,0)+r}, v3\ns_nop 0")
        a(f"v_cndmask_b32 v{NMreg(0,0)+r}, v{NMreg(0,0)+r}, v3, vcc\nv_cndmask_b32 v{NMreg(1,1)+r}, v{NMreg(1,1)+r}, v3, vcc")
    a("s_nop 1\ns_setpc_b64 s[82:83]")
    for par in range(2):
        a.label(f"L_rare{par}")
        a("s_nop 15")
        for qt in range(2):
            m = ET + 4
            s0, s1 = Sreg(par, 0, qt), Sreg(par, 1, qt)
            a(f"v_max_f32 v{m}, v{s0}, v{s0+1}\nv_max3_f32 v{m}, v{m}, v{s0+2}, v{s0+3}\nv_max3_f32 v{m}, v{m}, v{s1}, v{s1+1}\nv_max3_f32 v{m}, v{m}, v{s1+2}, v{s1+3}")
            xlane(a, "v_max_f32", m, ET)
            a(f"v_add_f32 v{m}, {hex(OFFS)}, v{m}\nv_max_f32 v{m}, 0, v{m}")
            a(f"v_exp_f32 v{ET}, -v{m}")
            for kt in range(2):
                for r in range(4):
                    for reg in (Sreg(0,kt,qt), Sreg(1,kt,qt), NMreg(kt,qt)):
                        a(f"v_sub_f32 v{reg+r}, v{reg+r}, v{m}")
            for r in range(2): a(f"v_mul_f32 v{LA+2*qt+r}, v{ET}, v{LA+2*qt+r}")
            for t in range(8):
                for r in range(4): a(f"v_mul_f32 v{Oreg(t,qt)+r}, v{ET}, v{Oreg(t,qt)+r}")
        for e, rest in sm_ops(par):
            a(e); a("s_nop 0")
            for x in rest: a(x)
        a("s_nop 1\ns_setpc_b64 s[80:81]")
    a.label("L_adone")
    a.stamp(13)

def top8(a, bar):
    K = 64
    a.label("L_top")
    a(f"s_mov_b32 s6, {hex(WS_R)}\nv_lshrrev_b32 v2, 1, v{L}\nv_and_b32 v3, 1, v{L}\nv_lshlrev_b32 v3, 4, v3\nv_lshl_add_u32 v2, v2, 7, v3")
    for i in range(8): a(f"buffer_load_dwordx4 {v(K+4*i,4)}, v2, {WS}, s6 offen sc1\ns_add_u32 s6, s6, 4096")
    a("s_waitcnt vmcnt(0)\nv_mov_b32 v24, 0\ns_mov_b32 s7, 0\ns_mov_b32 s84, 0")
    a.label("L_top_l")
    a(f"v_max3_u32 v4, v{K}, v{K+1}, v{K+2}\nv_max3_u32 v5, v{K+3}, v{K+4}, v{K+5}")
    for i in range(6, 30, 4): a(f"v_max3_u32 v4, v4, v{K+i}, v{K+i+1}\nv_max3_u32 v5, v5, v{K+i+2}, v{K+i+3}")
    a(f"v_max3_u32 v4, v4, v{K+30}, v{K+31}\nv_max_u32 v4, v4, v5")
    a.wave_reduce("v_max_u32", 4)
    a("v_readlane_b32 s6, v4, 63\ns_mov_b32 m0, s7\ns_nop 3\ns_add_u32 s84, s84, s6\nv_writelane_b32 v24, s84, m0")
    for i in range(32): a(f"v_subrev_u32 v{K+i}, s6, v{K+i}")
    a("s_add_u32 s7, s7, 1\ns_cmp_lt_u32 s7, 8\ns_cbranch_scc1 L_top_l")
    a(f"v_and_b32 v2, 7, v{L}\nv_lshlrev_b32 v2, 2, v2\nds_bpermute_b32 v4, v2, v24\ns_waitcnt lgkmcnt(0)\nv_and_b32 v4, 0x7ff, v4\nv_sub_u32 v4, 0x7ff, v4")
    a(f"v_lshrrev_b32 v5, 4, v4\nv_mul_u32_u24 v5, 20480, v5\nv_and_b32 v4, 15, v4\nv_lshl_add_u32 v5, v4, 4, v5\nv_lshrrev_b32 v7, 4, v{L}\nv_lshl_add_u32 v5, v7, 8, v5")
    a(f"v_mov_b32 v6, {hex(WS_SIZE)}\nv_and_b32 v2, 8, v{L}\nv_cmp_eq_u32 vcc, 0, v2\ns_mov_b32 s6, 0\ns_nop 0\nv_cndmask_b32 v5, v6, v5, vcc")
    for k in range(20):
        if k and k % 4 == 0: a("s_add_u32 s6, s6, 4096")
        a(f"buffer_load_dwordx4 {v(K+4*k,4)}, v5, {WS}, s6 offen offset:{(k&3)*1024} sc1")
    def put():
        a(f"s_waitcnt vmcnt(0)\ns_mov_b32 s6, {hex(WS_XS)}")
        for k in range(20):
            if k and k % 4 == 0: a("s_add_u32 s6, s6, 4096")
            a(f"buffer_store_dwordx4 {v(K+4*k,4)}, v{VL16}, {WS}, s6 offen offset:{(k&3)*1024} sc1")
    bar("vmcnt(20)", put)
    a("s_waitcnt vmcnt(16)")
    a(f"v_or_b32 v24, 0x80000000, v24\nv_lshlrev_b32 v5, 2, v{L}\nv_mov_b32 v6, {hex(WS_SIZE)}\nv_cmp_gt_u32 vcc, 8, v{L}\ns_mov_b32 s6, {hex(WS_IDX)}\ns_nop 0\nv_cndmask_b32 v5, v6, v5, vcc")
    a(f"buffer_store_dword v24, v5, {WS}, s6 offen sc1\ns_branch L_idle")

OACC = 176
M_WD, M_PART = 81920, 122880
VIDX = 51
def idx_addr(a):
    a(f"v_and_b32 v3, 7, v{L}\nv_lshlrev_b32 v3, 2, v3\ns_mov_b32 s72, {hex(WS_IDX)}")
def ctxf_addr(a, own, both=True):
    a(f"v_and_b32 v3, 1, v{L}\nv_lshlrev_b32 v3, 12, v3")
    if both: a(f"v_and_b32 v2, 2, v{L}\nv_lshl_add_u32 v3, v2, 8, v3")
    a(f"s_lshr_b32 s72, s{own}, 2\ns_lshl_b32 s72, s72, 6\ns_andn2_b32 s6, s{S_H}, 7\ns_add_u32 s72, s72, s6\ns_add_u32 s72, s72, s{S_W}\ns_lshl_b32 s72, s72, 7\ns_add_u32 s72, s72, {WS_CTXF}")
def idx_poll(a, sfx, wait="s_waitcnt vmcnt(40)"):
    a(wait)
    a(f"v_cmp_le_i32 vcc, 0, v{VIDX}\ns_cbranch_vccz L_idx_ok{sfx}")
    idx_addr(a)
    poll(a, f"buffer_load_dword v{VIDX}, v3, {WS}, s72 offen sc1", f"v_cmp_le_i32 vcc, 0, v{VIDX}")
    a.label(f"L_idx_ok{sfx}")

def moe_steps(a, bar):
    XS, FRG, GA, WDR, WD2, PR, YO = 64, 104, 24, 32, 240, 184, 216
    VG, VT, VD, VTD, VY, VXS = 16, 17, 18, 19, 20, 21
    S_G, S_WIN, S_D = 84, 85, 86
    a.label("L_moe")
    a(f"s_sub_u32 s6, s{S_N}, s{S_P}\ns_cmp_lg_u32 s6, 3\ns_cbranch_scc1 L_idle")
    def srds():
        a.srd(SRD_A, P_WG, 640*1728*2)
        a(f"s_cmp_ge_u32 s{S_W}, 2\ns_cselect_b32 s{SRD_A}, s{P_WU}, s{SRD_A}\ns_cselect_b32 s{SRD_A+1}, s{P_WU+1}, s{SRD_A+1}")
        a.srd(SRD_B, P_WD, 1728*640*2)
    def dma_g(nk):
        for n in range(2*nk):
            a(f"s_add_u32 m0, s{S_WIN}, {n*1024}\ns_nop 0\nbuffer_load_dwordx4 v{VG}, {R(SRD_A)}, s{S_G} offen lds\ns_add_u32 s{S_G}, s{S_G}, {16*3456}")
    def dma_d():
        for n in range(4):
            a(f"s_add_u32 m0, s{S_WIN}, {4096+n*1024}\ns_add_u32 s6, s{S_D}, {n*8*1280}\nbuffer_load_dwordx4 v{VD}, {R(SRD_B)}, s6 offen lds")
        a(f"s_add_u32 s{S_D}, s{S_D}, 512")
    def rd_g(k0, nk):
        for k in range(nk):
            for ft in range(2):
                d = FRG + ((k0+k)*2+ft)*4
                a(f"ds_read_b64_tr_b16 {v(d,2)}, v{VT} offset:{k*2048+ft*32}\nds_read_b64_tr_b16 {v(d+2,2)}, v{VT} offset:{k*2048+ft*32+256}")
            if k == 1: a("s_waitcnt lgkmcnt(0)")
    def xs(k0, nk):
        for k in range(k0, k0+nk): a(f"buffer_load_dwordx4 {v(XS+4*k,4)}, v{VL16}, {WS}, s88 offen sc1\ns_add_u32 s88, s88, 1024")
    def rd_d(base):
        for m in range(4):
            a(f"ds_read_b64_tr_b16 {v(base+4*m,2)}, v{VTD} offset:{m*32}\nds_read_b64_tr_b16 {v(base+2+4*m,2)}, v{VTD} offset:{m*32+16*128}")
    def down(base, goff):
        for m in range(4): a.mfma(YO+4*m, base+4*m, GA, "0")
        a("s_nop 7")
        for m in range(4): a(f"buffer_store_dwordx4 {v(YO+4*m,4)}, v{VY}, {WS}, s87 offen offset:{goff*1024+m*64} sc1")
        a("s_nop 1")
    srds()
    a(f"v_lshrrev_b32 v3, 2, v{L}\nv_mul_u32_u24 v3, 3456, v3\nv_and_b32 v4, 3, v{L}\nv_lshl_add_u32 v{VG}, v4, 4, v3")
    a(f"v_lshrrev_b32 v3, 3, v{L}\nv_mul_u32_u24 v3, 1280, v3\nv_and_b32 v4, 7, v{L}\nv_lshl_add_u32 v{VD}, v4, 4, v3")
    a(f"s_and_b32 s7, s{S_W}, 1\ns_mul_i32 s{S_G}, s7, {320*3456}\ns_lshl_b32 s6, s{S_E}, 6\ns_add_u32 s{S_G}, s{S_G}, s6")
    a(f"s_lshl_b32 s{S_WIN}, s{S_W}, 13\ns_add_u32 s{S_WIN}, s{S_WIN}, {LDS_SP}")
    a(f"s_mul_i32 s{S_D}, s{S_E}, 40960\ns_lshl_b32 s6, s{S_W}, 7\ns_add_u32 s{S_D}, s{S_D}, s6")
    dma_g(4)
    a(f"v_lshrrev_b32 v7, 4, v{L}\nv_and_b32 v2, 15, v{L}\nv_lshrrev_b32 v3, 2, v2\nv_lshl_add_u32 v8, v7, 3, v3\nv_lshlrev_b32 v8, 6, v8\nv_and_b32 v4, 3, v2\nv_lshl_add_u32 v8, v4, 3, v8\nv_add_u32 v{VT}, s{S_WIN}, v8")
    a(f"v_lshl_add_u32 v8, v7, 2, v3\nv_lshlrev_b32 v8, 7, v8\nv_lshl_add_u32 v8, v4, 3, v8\ns_add_u32 s6, s{S_WIN}, 4096\nv_add_u32 v{VTD}, s6, v8")
    a(f"v_mul_u32_u24 v3, 2560, v2\nv_lshl_add_u32 v3, v7, 4, v3\nv_mov_b32 v4, {hex(WS_SIZE)}\nv_cmp_gt_u32 vcc, 8, v2")
    a(f"s_mul_i32 s87, s{S_E}, 20480\ns_lshl_b32 s7, s{S_W}, 8\ns_add_u32 s87, s87, s7\ns_add_u32 s87, s87, {WS_YP}\nv_cndmask_b32 v{VY}, v4, v3, vcc")
    a(f"s_and_b32 s7, s{S_W}, 1\ns_mul_i32 s88, s7, 10240\ns_add_u32 s88, s88, {WS_XS}")
    W0 = "vmcnt(0) lgkmcnt(0)"
    def m1():
        rd_g(0, 4); a("s_waitcnt lgkmcnt(0)"); dma_g(4)
    bar(W0, m1)
    idx_addr(a); a(f"buffer_load_dword v{VIDX}, v3, {WS}, s72 offen sc1")
    def m2():
        rd_g(4, 4); a("s_waitcnt lgkmcnt(0)"); dma_g(2); dma_d()
    bar(W0, m2)
    idx_poll(a, "m", "")
    xs(0, 10)
    def m3():
        rd_g(8, 2); rd_d(WDR); a("s_waitcnt lgkmcnt(0)"); dma_d()
    bar("vmcnt(10) lgkmcnt(0)", m3)
    a("s_waitcnt vmcnt(20)")
    for k in range(10):
        for ft in range(2): a.mfma(GA+4*ft, FRG+(k*2+ft)*4, XS+4*k, "0" if k == 0 else None)
    a(f"v_add_u32 v10, s{S_WIN}, v{VL16}\ns_nop 7\nds_write_b128 v10, {v(GA,4)}\nds_write_b128 v10, {v(GA+4,4)} offset:1024")
    def m4():
        rd_d(WD2)
        a(f"v_add_u32 v10, {LDS_SP}, v{VL16}\ns_waitcnt lgkmcnt(0)")
        for w in range(4):
            for ft in range(2): a(f"ds_read_b128 {v(PR+(w*2+ft)*4,4)}, v10 offset:{w*8192+ft*1024}")
        a(f"s_cmp_ge_u32 s{S_W}, 2\ns_cbranch_scc1 L_moe4b")
        dma_d()
        a.label("L_moe4b")
    bar(W0, m4)
    a("s_waitcnt lgkmcnt(0)")
    a("s_mov_b32 s6, 0xbfb8aa3b")
    def rnd2(r): a(f"v_cvt_pk_bf16_f32 v{r+1}, v{r}, v{r+1}\nv_lshlrev_b32 v{r}, 16, v{r+1}\nv_and_b32 v{r+1}, 0xffff0000, v{r+1}")
    for i in range(0, 8, 2):
        g0, u0 = PR + i, PR + 16 + i
        for q in range(2): a(f"v_add_f32 v{g0+q}, v{g0+q}, v{g0+8+q}\nv_add_f32 v{u0+q}, v{u0+q}, v{u0+8+q}")
        rnd2(g0); rnd2(u0)
        a(f"v_mul_f32 v2, s6, v{g0}\nv_mul_f32 v3, s6, v{g0+1}\nv_exp_f32 v2, v2\nv_exp_f32 v3, v3\nv_add_f32 v2, 1.0, v2\nv_add_f32 v3, 1.0, v3".replace("v_exp_f32 v3, v3\n", "v_exp_f32 v3, v3\ns_nop 0\n"))
        a(f"v_rcp_f32 v2, v2\nv_rcp_f32 v3, v3\ns_nop 0\nv_mul_f32 v{g0}, v{g0}, v2\nv_mul_f32 v{g0+1}, v{g0+1}, v3")
        rnd2(g0)
        a(f"v_mul_f32 v{g0}, v{g0}, v{u0}\nv_mul_f32 v{g0+1}, v{g0+1}, v{u0+1}\nv_cvt_pk_bf16_f32 v{GA+i//2}, v{g0}, v{g0+1}")
    a("s_nop 1")
    down(WDR, 0)
    bar("vmcnt(4) lgkmcnt(0)")
    down(WD2, 1)
    a(f"s_cmp_ge_u32 s{S_W}, 2\ns_cbranch_scc1 L_moe5b")
    rd_d(WDR); a("s_waitcnt lgkmcnt(0)"); down(WDR, 2)
    a.label("L_moe5b")
    bar("vmcnt(4) lgkmcnt(0)", lambda: (a("s_waitcnt vmcnt(0)"), set_flag(a, "moe")))
    a("s_branch L_idle")

YS = [16+4*i for i in range(7)] + [56+4*i for i in range(10)] + [4]
def y_is(a, skip): a(f"s_lshr_b32 s7, s{S_W}, 1\ns_lshl_b32 s7, s7, 4\ns_add_u32 s6, s{S_P}, s7\ns_cmp_lg_u32 s6, {YP}\ns_cbranch_scc1 {skip}")
def y_faddr(a): a(f"v_min_u32 v3, 53, v{L}\nv_lshlrev_b32 v3, 7, v3\ns_mov_b32 s72, {hex(WS_MOEF)}")
Y_LD = f"buffer_load_dwordx4 v[16:19], v3, {WS}, s72 offen sc1"
Y_CMP = "\n".join([f"v_and_b32 v16, v16, v{16+r}" for r in (1, 2, 3)]) + "\nv_cmp_ne_u32 vcc, 1, v16"
def y_look(a):
    y_is(a, "L_yl0"); y_faddr(a); a(Y_LD); a.label("L_yl0")
def y_try(a):
    a("s_mov_b32 s101, 0")
    y_is(a, "L_yl1"); a(Y_CMP); a("s_cbranch_vccnz L_yl1\ns_call_b64 s[80:81], L_yld"); a.label("L_yl1")
def y_loads(a):
    XR = 54
    a.label("L_yld")
    idx_poll(a, "a", "")
    a(f"s_lshr_b32 s96, s{S_H}, 2\ns_and_b32 s97, s{S_H}, 3\ns_lshl_b32 s97, s97, 1\ns_add_u32 s97, s97, s{S_W}")
    a(f"s_mov_b32 m0, s96\ns_nop 3\nv_readlane_b32 s98, v{VIDX}, m0\ns_nop 3\ns_and_b32 s100, s98, 0x7ff\ns_sub_u32 s100, 0x7ff, s100")
    a(f"v_mul_u32_u24 v2, 13, v{L}\nv_lshrrev_b32 v2, 8, v2\nv_mul_u32_u24 v3, 20, v2\nv_sub_u32 v8, v{L}, v3")
    a(f"s_mov_b32 s6, {18*20480}\nv_mul_lo_u32 v2, v2, s6\nv_lshl_add_u32 v2, v8, 4, v2")
    a(f"v_cmp_lt_u32 vcc, 59, v{L}\nv_mov_b32 v3, {hex(WS_SIZE)}\ns_nop 0\nv_cndmask_b32 v2, v2, v3, vcc")
    a(f"s_mul_i32 s6, s96, 2560\ns_mul_i32 s7, s97, 320\ns_add_u32 s6, s6, s7\ns_add_u32 s6, s6, {WS_YP}")
    for e in range(18):
        a(f"buffer_load_dwordx4 {v(YS[e],4)}, v2, {WS}, s6 offen sc1\ns_add_u32 s6, s6, 20480")
    a(f"s_lshr_b32 s6, s100, 4\ns_mul_i32 s6, s6, 20480\ns_and_b32 s7, s100, 15\ns_lshl_b32 s7, s7, 4\ns_add_u32 s6, s6, s7\ns_mul_i32 s7, s97, 2560\ns_add_u32 s6, s6, s7")
    a(f"v_lshrrev_b32 v9, 1, v8\nv_lshlrev_b32 v9, 8, v9\nv_and_b32 v10, 1, v8\nv_lshl_add_u32 v9, v10, 3, v9\nbuffer_load_dwordx2 {v(XR,2)}, v9, {WS}, s6 offen sc1")
    a("s_mov_b32 s101, 1\ns_setpc_b64 s[80:81]")

def moe_finish(a):
    Y, XR = YS[0], 54
    y_is(a, "L_yd")
    a("s_cmp_lg_u32 s101, 0\ns_cbranch_scc1 L_yf")
    y_faddr(a)
    poll(a, Y_LD, Y_CMP, sleep=16)
    a("s_call_b64 s[80:81], L_yld")
    a.label("L_yf")
    a("s_bfe_u32 s6, s98, 0x10000b\ns_xor_b32 s7, s6, 0xffff\ns_bitcmp1_b32 s6, 15\ns_bitset0_b32 s6, 15\ns_cselect_b32 s6, s6, s7\ns_lshl_b32 s6, s6, 16\nv_mov_b32 v9, s6")
    a("v_mul_f32 v9, 0xbfb8aa3b, v9\nv_exp_f32 v9, v9\ns_nop 0\nv_add_f32 v9, 1.0, v9\nv_rcp_f32 v9, v9\ns_nop 0")
    bf16_round(a, 9)
    a(f"v_lshlrev_b32 v10, 2, v{L}\nv_mov_b32 v3, {hex(WS_SIZE)}\ns_waitcnt vmcnt(0)")
    for e in range(1, 18):
        a(f"v_pk_add_f32 {v(Y,2)}, {v(Y,2)}, {v(YS[e],2)}\nv_pk_add_f32 {v(Y+2,2)}, {v(Y+2,2)}, {v(YS[e]+2,2)}")
    for k in range(2):
        for r in range(4): a(f"ds_bpermute_b32 v{Y+4+4*k+r}, v10, v{Y+r} offset:{80*(k+1)}")
    a("s_waitcnt lgkmcnt(0)")
    for r in range(4):
        y = Y + r
        a(f"v_add_f32 v{y}, v{y}, v{y+4}\nv_add_f32 v{y}, v{y}, v{y+8}")
        bf16_round(a, y)
        a(f"v_mul_f32 v{y}, v{y}, v9")
        bf16_round(a, y)
        xn = XR + (r >> 1)
        a(f"v_and_b32 v8, 0xffff0000, v{xn}" if r & 1 else f"v_lshlrev_b32 v8, 16, v{xn}")
        a(f"v_add_f32 v{y}, v{y}, v8")
    a(f"v_cvt_pk_bf16_f32 v{Y+4}, v{Y}, v{Y+1}\nv_cvt_pk_bf16_f32 v{Y+5}, v{Y+2}, v{Y+3}")
    a(f"v_lshlrev_b32 v2, 3, v{L}\nv_cmp_lt_u32 vcc, 19, v{L}\ns_mul_i32 s6, s96, 1280\ns_mul_i32 s7, s97, 160\nv_cndmask_b32 v2, v2, v3, vcc\ns_add_u32 s6, s6, s7\ns_add_u32 s6, s6, {WS_BSEL}")
    a(f"buffer_store_dwordx2 {v(Y+4,2)}, v2, {WS}, s6 offen sc1")
    a.label("L_yd")

WR, OA, CR, RT = 96, 56, 16, 32
S_OW, S_OB, S_CX, S_OL = 69, 68, 66, 61
VWO4 = 52
LDS_P, LDS_F = 98304, 65536
def wo_base(a, d, nh):
    a(f"s_lshr_b32 s{d}, s{S_H}, 3\ns_lshl_b32 s{d}, s{d}, 2\ns_add_u32 s{d}, s{d}, s76\ns_mul_i32 s{d}, s{d}, {8*40960}\ns_and_b32 s7, s{S_H}, 3\ns_mul_i32 s7, s7, 10240\ns_add_u32 s{d}, s{d}, s7\ns_add_u32 s{d}, s{d}, {WS_WOF + nh*5120}")

XNA = 48
S_TOK, S_XI, S_XFI, VXF = 64, 62, 63, 11
XFG = int(os.environ.get("XFG", "12"))
VWM = 44
def wo_voffs(a, r0, r4=None):
    for m in range(4): a(f"s_add_u32 s6, s76, {m}\ns_and_b32 s6, s6, 3\ns_lshl_b32 s6, s6, 10\nv_add_u32 v{r0+m}, s6, v{VL16}")
    a(f"v_add_u32 v{r0+4 if r4 is None else r4}, 4096, v{VL16}")
def wm(m): return VWM + m if m < 4 else VWO4
def wo_load(a, i):
    a(f"s_add_u32 s75, s{S_OW}, {i*40960}")
    for m in range(5): a(f"buffer_load_dwordx4 {v(WR+4*(5*i+m),4)}, v{wm(m)}, {WS}, s75 offen sc1")

def out_setup(a, nh):
    if nh == 0:
        idx_addr(a); a(f"buffer_load_dword v{VIDX}, v3, {WS}, s72 offen sc1")
    wo_voffs(a, VWM, VWO4)
    wo_base(a, S_OW, nh)
    a(f"s_and_b32 s6, s{S_H}, 4\ns_lshr_b32 s7, s{S_H}, 3\ns_add_u32 s6, s6, s7\ns_lshl_b32 s7, s{S_P}, 3\ns_add_u32 s{S_OB}, s6, s7\ns_sub_u32 s7, 120, s7\ns_add_u32 s{S_OL}, s6, s7")

VCA, VT, VPR = 4, 5, 6
S_RED = 71
S_PB, S_XS = 67, 96
def out_cx(a):
    a(f"s_lshr_b32 s6, s{S_H}, 3\ns_lshl_b32 s6, s6, 15\ns_lshl_b32 s99, s{S_W}, 12\ns_add_u32 s{S_CX}, s6, s99\ns_add_u32 s{S_CX}, s{S_CX}, {WS_CTX}")
    a(f"s_lshl_b32 s6, s76, 13\nv_add_u32 v{VCA}, s6, v{VL16}\nv_add_u32 v7, 65536, v{VCA}")
def out_consts(a):
    a(f"s_lshr_b32 s6, s{S_W}, 2\ns_mul_i32 s{S_PB}, s6, 15360\ns_add_u32 s{S_PB}, s{S_PB}, {LDS_P}\nv_add_u32 v{VPR}, s{S_PB}, v{VWM}")
    a(f"s_mul_i32 s73, s6, 5120\ns_add_u32 s73, s73, {WS_XP}\ns_lshl_b32 s6, s6, 1\ns_sub_u32 s{S_RED}, s76, s6\ns_and_b32 s{S_RED}, s{S_RED}, 3")
    a(f"v_mov_b32 v{VXF}, {hex(WS_SIZE)}\ns_lshl_b32 s74, s{S_W}, 2\ns_add_u32 s74, s74, {WS_XF}")
    tile_id(a, 72)
    a(f"s_mul_i32 s72, s72, 12\ns_lshr_b32 s75, s{S_H}, 3\ns_mul_i32 s7, s75, 3\ns_add_u32 s7, s7, s72\ns_mul_i32 s{S_XI}, s7, 20480\ns_add_u32 s{S_XI}, s{S_XI}, {WS_XP}\ns_lshl_b32 s7, s7, 7\ns_add_u32 s{S_XFI}, s7, {WS_XF}")
    for k in range(3):
        a(f"s_add_u32 s6, s75, {1+k}\ns_and_b32 s6, s6, 3\ns_mul_i32 s6, s6, 3\ns_add_u32 s6, s6, s72\ns_add_u32 s6, s6, {k}\ns_mul_i32 s7, s6, 20480\ns_add_u32 s{S_XS+k}, s7, s73")
        a(f"s_lshl_b32 s6, s6, 7\ns_add_u32 s6, s6, s74\nv_writelane_b32 v{VXF}, s6, {k}")

def ctx_dma(r, extra=0):
    own, d = (S_OL if r in (3, 4, 5, 7) else S_OB), (1 + r % 3 if r < 6 else 0)
    o = [f"s_add_u32 s65, s{own}, {d}\ns_and_b32 s65, s65, 3\ns_andn2_b32 s7, s{own}, 3\ns_add_u32 s65, s65, s7\ns_lshl_b32 s65, s65, 17\ns_add_u32 s65, s65, s{S_CX}\ns_add_u32 m0, s99, {(r%3)*32768+extra}\ns_add_u32 s65, s65, {extra}"]
    return o + [f"buffer_load_dwordx4 v{VL16}, {WS}, s65 offen offset:{i*1024} sc1 lds" for i in range(4)]

def phase_out(a):
    def rdc(r, i):
        reg, off = (VCA, (r%3)*32768) if r % 3 < 2 else (7, 0)
        return (("C", i & 3), f"ds_read_b128 {v(CR+4*(i&3),4)}, v{reg} offset:{off+i*1024}")
    def xlook_addr():
        a(f"v_bfe_u32 v2, v{L}, 3, 2\nv_min_u32 v2, 2, v2\nv_and_b32 v3, 7, v{L}\nv_lshlrev_b32 v3, 2, v3\nv_lshl_add_u32 v3, v2, 7, v3")
    IT = [(WR, WR+4), (WR+8, WR+12)]
    XI, LP, OUTR = WR+16, WR+64, WR+128
    def emit(x):
        if "o_now" in ABL and isinstance(x, tuple) and x[0] == "W": return
        if "o_noadd" in ABL and isinstance(x, str) and x.startswith("v_add_f32"): return
        if "o_nodma" in ABL and isinstance(x, str) and x.endswith("lds"): return
        if "o_nost" in ABL and isinstance(x, str) and "buffer_store_dwordx4" in x: return
        if "o_nop" in ABL and isinstance(x, tuple) and isinstance(x[0], tuple) and x[0][0] == "P": return
        if callable(x): x()
        elif isinstance(x, str): a(x)
        elif x[0] == "wait": a.wait_lg(x[1])
        else:
            a(x[1]); a.lg.issue(x[0])
    def xin_load(slots):
        sk = a.newlabel("xi")
        for n in range(2):
            if n == 1: a(f"s_cmp_ge_u32 s{S_W}, 2\ns_cbranch_scc1 {sk}")
            for s_ in slots:
                a(f"s_add_u32 s6, s{S_XI}, {s_*20480}")
                for hf in range(2): a(f"buffer_load_dwordx4 {v(XI+24*n+8*s_+4*hf,4)}, v{8+n}, {WS}, s6 offen offset:{hf*256} sc1")
        a.label(sk)
    a.lg.drain()
    for i in range(4): emit(rdc(0, i))
    a.wait_lg(("C", 0))
    BG = 24
    for r in range(8):
        if "stampout" in ABL: a.stamp(44 + r)
        A = OA + 20*(r & 1); Ap = OA + 20*((r-1) & 1)
        po = ((r-1) & 1)*30720
        red = 1 <= r <= 6
        G = [[] for _ in range(40)]
        def dma_at(rr, g0, gs):
            d = ctx_dma(rr); sal = d[0].split("\n")
            G[g0] += sal[:3]; G[g0+1] += sal[3:6]; G[g0+2] += sal[6:7]
            for g, x in zip(gs, d[1:]): G[g].insert(0, x)
        def barrier():
            if r == 0:
                a(f"s_cmp_ge_u32 s{S_W}, 4\ns_cbranch_scc1 L_o0\ns_waitcnt vmcnt(0)\ns_barrier")
                a.label("L_o0")
                return
            elif "o_novm" not in ABL: a(f"s_waitcnt vmcnt({(0, 0, 4, 5, 5, 5, 1)[r]})")
            if r == 6: a(f"buffer_store_dword v2, v{VXF}, {WS}, 0 offen sc1")
            a("s_waitcnt lgkmcnt(0)\ns_barrier"); a.lg.drain()
        for i in range(8):
            if i < 4: G[5*i+4].append(rdc(r, i+4))
            elif r < 7 and i > 4: G[5*i+4].append(rdc(r+1, i-4))
            if i < 7 or r < 7: G[5*i+3].append(("wait", ("C", (i+1) & 3)))
        if r < 7: G[BG].append(barrier)
        if red:
            G[0].append(f"s_sub_u32 s6, s{S_RED}, {r}\ns_and_b32 s6, s6, 3\ns_mul_i32 s7, s6, 5120")
            G[1].append(f"s_add_u32 s7, s7, s{S_PB}\ns_cmp_eq_u32 s6, 3\ns_cselect_b32 s7, {159744-4096-po}, s7")
            G[2].append(f"v_add_u32 v12, s7, v{VWO4}\nv_add_u32 v{VT}, s{S_PB}, v{wm(1)}")
            for m, g in zip(range(1, 4), (5, 10, 15)):
                G[g] += [("W", f"ds_write_b128 v{VT}, {v(Ap+4*m,4)} offset:{po+(m-1)*5120}"), f"v_add_u32 v{VT}, s{S_PB}, v{wm(m+1)}"]
            G[20].append(("W", f"ds_write_b128 v12, {v(Ap+16,4)} offset:{po}"))
            for k in range(3): G[BG].append((("P", k), f"ds_read_b128 {v(RT+4*k,4)}, v{VPR} offset:{po+k*5120}"))
            for k in range(3):
                G[27+2*k].insert(0, ("wait", ("P", k)))
                for q in range(4): G[27+2*k+q//2].append(f"v_add_f32 v{Ap+q}, v{Ap+q}, v{RT+4*k+q}")
                G[29+2*k].insert(0, (("P", k), f"ds_read_b128 {v(RT+4*k,4)}, v{VT} offset:{po+k*5120}"))
            for k in range(3):
                G[33+2*k].append(("wait", ("P", k)))
                for q in range(4): G[33+2*k+q//2].append(f"v_add_f32 v{Ap+16+q}, v{Ap+16+q}, v{RT+4*k+q}")
            G[33].append(f"s_add_u32 s6, s{S_XS+(r-1)%3}, {((r-1)//3)*10240}")
            G[35].insert(0, f"buffer_store_dwordx4 {v(Ap,4)}, v{VWM}, {WS}, s6 offen sc1")
            sk = a.newlabel("nost")
            G[38].append(f"s_cmp_lg_u32 s{S_RED}, {(r-1)&3}")
            G[39].insert(0, f"s_cbranch_scc1 {sk}\nbuffer_store_dwordx4 {v(Ap+16,4)}, v{VWO4}, {WS}, s6 offen sc1\n{sk}:")
        if r < 7: G[BG].append(rdc(r+1, 0))
        if 1 < r < 5: dma_at(r+3, 21, (25, 26, 28, 30))
        if r == 0:
            dma_at(2, 21, (25, 26, 28, 30))
            G[19].append("s_waitcnt vmcnt(0)")
        lookl = f"buffer_load_dword v50, v3, {WS}, s72 offen sc1"
        if r == 1:
            G[6].append(lambda: ctxf_addr(a, S_OL, False))
            G[LOOKG].insert(0, lookl)
            def try3():
                a("v_cmp_ne_u32 vcc, 1, v50\ns_mov_b32 s91, 0\ns_cbranch_vccnz L_t3n")
                for x in ctx_dma(3): a(x)
                a("s_mov_b32 s91, 1\ns_branch L_t3j")
                a.label("L_t3n")
                a(lookl)
                a.label("L_t3j")
            G[25].append(try3)
        if r == 2:
            def chk():
                a(f"s_cmp_lg_u32 s91, 0\ns_cbranch_scc1 L_o2\ns_waitcnt vmcnt(1)\nv_cmp_ne_u32 vcc, 1, v50\ns_cbranch_vccz L_o1")
                poll(a, f"buffer_load_dword v2, v3, {WS}, s72 offen sc1", "v_cmp_ne_u32 vcc, 1, v2", sleep=1)
                a.label("L_o1")
                for x in ctx_dma(3): a(x)
                a.label("L_o2")
            G[2].append(chk)
            dma_at(4, 6, (9, 11, 12, 13))
        def spread(fn, gaps):
            b = Asm(); b.uid = a.uid + 1000; fn(b)
            ls = [x.strip() for x in b.o]; n = -(-len(ls) // len(gaps))
            for k, g in enumerate(gaps): G[g] += ls[k*n:(k+1)*n]
        if r == 0: spread(out_consts, range(0, 19))
        if r == 3: spread(out_items, [3, 4, 6, 7, 8, 9, 11, 12, 13, 14, 16, 17, 18, 19])
        if r == 4: G[7].append(lambda: out_tokens(a))
        if r == 6: G[22].append(f"v_mov_b32 v2, 1\nv_writelane_b32 v2, 2, 0")
        if r == 7:
            G[2].append(f"s_mul_i32 s73, s{S_W}, 5120\ns_add_u32 s6, s73, {LDS_F}")
            G[3].append(f"v_add_u32 v{VT}, s6, v{wm(0)}")
            for m in range(5):
                G[5+5*m].append(("W", f"ds_write_b128 v{VT}, {v(Ap+4*m,4)}"))
                if m < 4: G[5+5*m].append(f"s_add_u32 s6, s73, {LDS_F}\nv_add_u32 v{VT}, s6, v{wm(m+1)}")
            G[XFG].append(f"v_mov_b32 v2, 2\ns_waitcnt vmcnt(0)\nbuffer_store_dword v2, v{VXF}, {WS}, 0 offen sc1")
            def items():
                a(f"s_cmp_eq_u32 s{S_TOK}, 0\ns_cbranch_scc1 L_nb")
                a(f"v_bfe_u32 v2, v{L}, 1, 3\nv_and_b32 v3, 1, v{L}\nv_lshl_add_u32 v3, v2, 7, v3\nv_lshlrev_b32 v3, 2, v3\ns_and_b32 s6, s{S_H}, 3\ns_lshl_b32 s6, s6, 7\ns_add_u32 s6, s6, {WS_BF+YP*32*128}")
                poll(a, f"buffer_load_dword v2, v3, {WS}, s6 offen sc1", "v_cmp_ne_u32 vcc, 1, v2")
                a.label("L_nb")
                sk = a.newlabel("itskip")
                for n in range(2):
                    if n == 1: a(f"s_cmp_ge_u32 s{S_W}, 2\ns_cbranch_scc1 {sk}")
                    a(f"buffer_load_dwordx4 {v(IT[n][0],4)}, v{53+n}, {R(SRD_A)}, s70 offen\nbuffer_load_dwordx4 {v(IT[n][1],4)}, v{XNA+n}, {WS}, 0 offen sc1")
                a.label(sk)
            G[XFG+2].append(items)
            G[LK1-1].append(xlook_addr)
            G[LK1].append(f"s_bitcmp1_b32 13, s{S_W}\ns_cselect_b32 s77, 1, 2\nbuffer_load_dword v50, v3, {WS}, s{S_XFI} offen sc1")
            def try1():
                a("s_waitcnt vmcnt(0)\nv_cmp_gt_u32 vcc, s77, v50\ns_mov_b32 s91, 0\ns_cbranch_vccnz L_x1n")
                xin_load((0, 1, 2))
                a("s_mov_b32 s91, 1\ns_branch L_x1j")
                a.label("L_x1n")
                a(f"buffer_load_dword v50, v3, {WS}, s{S_XFI} offen sc1")
                a.label("L_x1j")
            G[LK2].append(try1)
            G[33].append(f"s_add_u32 s6, s73, {106496-20480}\ns_cmp_lt_u32 s{S_W}, 4\ns_cselect_b32 s73, s73, s6")
        for g in range(40):
            i, m = divmod(g, 5)
            if "o" in SNAKE and i & 1 == 0 and i: m = 4 - m
            a.mfma(A+4*m, WR+4*(5*i+m), CR+4*(i&3), "0" if i == 0 else None)
            for x in G[g]: emit(x)
    a.stamp(16)
    a("s_nop 4")
    for m in range(5): a(f"v_add_u32 v{VT}, s73, v{wm(m)}\nds_write_b128 v{VT}, {v(OA+20+4*m,4)}")
    a("s_mov_b64 s[78:79], 0\ns_cmp_lg_u32 s91, 0\ns_cbranch_scc1 L_x2a")
    a("s_waitcnt vmcnt(0)\nv_cmp_gt_u32 s[78:79], s77, v50\ns_nop 3\ns_cmp_lg_u64 s[78:79], 0\ns_cbranch_scc1 L_x2a")
    xin_load((0, 1, 2))
    a.label("L_x2a")
    a("s_waitcnt lgkmcnt(0)\ns_barrier")
    for n in range(2):
        for k in range(4):
            for hf in range(2): a(f"ds_read_b128 {v(LP+32*n+8*k+4*hf,4)}, v{(10,55)[n]} offset:{k*5120+hf*256}")
    a("s_cmp_eq_u64 s[78:79], 0\ns_cbranch_scc1 L_x2b")
    poll(a, f"buffer_load_dword v2, v3, {WS}, s{S_XFI} offen sc1", "v_cmp_gt_u32 vcc, s77, v2", sleep=1)
    xin_load((0, 1, 2))
    a.label("L_x2b")
    a.srd(SRD_B, P_OUT, 2048*640*2)
    a.stamp(17)
    for n in range(2):
        if n == 1: a(f"s_cmp_ge_u32 s{S_W}, 2\ns_cbranch_scc1 L_end")
        S = LP + 32*n
        a(f"s_waitcnt lgkmcnt({8 if n == 0 else 0})")
        for k in range(1, 4):
            for q in range(0, 8, 2): a(f"v_pk_add_f32 {v(S+q,2)}, {v(S+q,2)}, {v(S+8*k+q,2)}")
        a("s_waitcnt vmcnt(0)" if n == 0 else "s_nop 0")
        for k in range(3):
            for q in range(0, 8, 2): a(f"v_pk_add_f32 {v(S+q,2)}, {v(S+q,2)}, {v(XI+24*n+8*k+q,2)}")
        for q in range(4):
            x0, x1 = S+2*q, S+2*q+1
            a(f"v_cvt_pk_bf16_f32 v2, v{x0}, v{x1}\nv_lshlrev_b32 v{x0}, 16, v2\nv_and_b32 v{x1}, 0xffff0000, v2")
            a(f"v_lshlrev_b32 v2, 16, v{IT[n][0]+q}\nv_and_b32 v3, 0xffff0000, v{IT[n][0]+q}\nv_pk_add_f32 {v(x0,2)}, {v(x0,2)}, v[2:3]")
            a(f"v_cvt_pk_bf16_f32 v2, v{x0}, v{x1}\nv_lshlrev_b32 v{x0}, 16, v2\nv_and_b32 v{x1}, 0xffff0000, v2")
            a(f"v_lshlrev_b32 v2, 16, v{IT[n][1]+q}\nv_and_b32 v3, 0xffff0000, v{IT[n][1]+q}\nv_pk_add_f32 {v(x0,2)}, {v(x0,2)}, v[2:3]")
            a(f"v_cvt_pk_bf16_f32 v{OUTR+4*n+q}, v{x0}, v{x1}")
        a(f"buffer_store_dwordx4 {v(OUTR+4*n,4)}, v{53+n}, {R(SRD_B)}, s70 offen")

def out_items(a):
    a.srd(SRD_A, P_X, 2048*640*2)
    a(f"s_and_b32 s75, s{S_H}, 3\ns_mul_i32 s70, s75, 320\ns_add_u32 s73, s70, {WS_BSEL}")
    a(f"s_mul_i32 s72, s75, 5120")
    a(f"v_lshrrev_b32 v2, 4, v{L}\nv_and_b32 v3, 15, v{L}\nv_mul_u32_u24 v54, 1280, v3\nv_lshl_add_u32 v54, v2, 4, v54\nv_lshlrev_b32 v3, 4, v3\nv_lshl_add_u32 v9, v2, 9, v3")
    a(f"s_lshr_b32 s100, s{S_W}, 2\ns_cselect_b32 s6, s{S_OL}, s{S_OB}\ns_mul_i32 s6, s6, 20480\ns_lshl_b32 s7, s76, 6\ns_add_u32 s7, s7, s6\nv_add_u32 v53, s7, v54")
    a(f"s_lshl_b32 s7, s76, 10\ns_add_u32 s7, s7, s6\ns_add_u32 s7, s7, s72\nv_add_u32 v{XNA}, s7, v{VL16}")
    a(f"s_mul_i32 s6, s100, 10240\ns_lshl_b32 s7, s76, 11\ns_add_u32 s6, s6, s7\nv_add_u32 v8, s6, v9")
    a(f"s_mul_i32 s6, s100, {LDS_F+10240}\ns_sub_u32 s6, {LDS_F}, s6\nv_add_u32 v10, s6, v8\ns_lshl_b32 s7, s76, 2\nv_add_u32 v2, s7, v2\nv_cmp_lt_u32 vcc, 9, v2\ns_mul_i32 s6, s100, {101376-15360}\ns_add_u32 s6, s6, 15360\nv_add_u32 v3, s6, v10\nv_cndmask_b32 v10, v10, v3, vcc")
    a(f"s_and_b32 s100, s{S_W}, 1\ns_cselect_b32 s6, s{S_OL}, s{S_OB}\ns_mul_i32 s6, s6, 20480\ns_add_u32 s7, s6, 256\nv_add_u32 v54, s7, v54\ns_add_u32 s7, s6, s72\ns_add_u32 s7, s7, 4096\nv_add_u32 v{XNA+1}, s7, v{VL16}")
    a(f"s_mul_i32 s6, s100, 10240\ns_add_u32 s6, s6, 8192\nv_add_u32 v9, s6, v9\ns_mul_i32 s6, s100, {101376-10240-LDS_F-15360}\ns_add_u32 s6, s6, {LDS_F+15360}\nv_add_u32 v55, s6, v9")

def out_tokens(a):
    idx_poll(a, "b", "")
    sk = a.newlabel("notok")
    a(f"s_mov_b32 s{S_TOK}, 0")
    a(f"v_and_b32 v2, 0x7ff, v{VIDX}\nv_sub_u32 v2, 0x7ff, v2\nv_lshrrev_b32 v3, 4, v2\nv_cmp_eq_u32 vcc, s{S_OB}, v3\nv_cmp_eq_u32 s[74:75], s{S_OL}, v3\ns_nop 3\ns_or_b64 vcc, vcc, s[74:75]\ns_cbranch_scc0 {sk}")
    for tk in range(8): a(f"v_readlane_b32 s{(84,85,86,87,88,65,91,101)[tk]}, v2, {tk}")
    for n in range(2):
        a(f"s_lshl_b32 s7, s76, 6\ns_lshr_b32 s100, s{S_W}, 2" if n == 0 else f"s_movk_i32 s7, 256\ns_and_b32 s100, s{S_W}, 1")
        a(f"s_cselect_b32 s6, s{S_OL}, s{S_OB}\ns_lshl_b32 s6, s6, 4\nv_and_b32 v2, 15, v{L}\nv_add_u32 v2, s6, v2")
        a(f"s_add_u32 s7, s7, s73\nv_and_b32 v3, 48, v{L}\nv_add_u32 v3, s7, v3")
        for tk in range(8):
            a(f"v_cmp_eq_u32 vcc, s{(84,85,86,87,88,65,91,101)[tk]}, v2\ns_nop 1\nv_cndmask_b32 v{XNA+n}, v{XNA+n}, v3, vcc")
            if tk < 7: a(f"v_add_u32 v3, 1280, v3")
    a(f"s_mov_b32 s{S_TOK}, 1")
    a.label(sk)

def gen(a):
    phase_start(a)
    phase_kv(a)
    phase_q(a)
    phase_attn(a)
    phase_out(a)
    a.label("L_end")
    a.stamp(18)
    if a.prof: a("s_waitcnt vmcnt(0)")
    if a.prof and os.environ.get("STRETCH"):
        s0, s1 = os.environ["STRETCH"].split(",")
        a(f"v_readlane_b32 s6, v15, {s0}\nv_readlane_b32 s7, v15, {s1}\nv_readlane_b32 s72, v15, 18\ns_nop 3\ns_sub_u32 s6, s7, s6\ns_min_u32 s6, s6, 20000")
        a.label("L_str")
        a("s_memrealtime s[94:95]\ns_waitcnt lgkmcnt(0)\ns_sub_u32 s7, s94, s72\ns_cmp_lt_u32 s7, s6\ns_cbranch_scc1 L_str")
    if a.prof and os.environ.get("DBGWG"):
        a(f"s_mov_b64 exec, -1\ns_cmp_lg_u32 s2, {os.environ['DBGWG']}\ns_cbranch_scc1 L_nodbg\ns_cmp_lg_u32 s{S_W}, 0\ns_cbranch_scc1 L_nodbg")
        a.srd(SRD_E, P_DBG, 64)
        a(f"v_readlane_b32 s6, v15, 0\ns_nop 3\nv_subrev_u32 v2, s6, v15\nv_subrev_u32 v3, 3, v{L}\nv_lshlrev_b32 v3, 2, v3\nv_cmp_gt_u32 vcc, 4, v{L}\nv_mov_b32 v4, 0x1000\ns_nop 0\nv_cndmask_b32 v3, v3, v4, vcc")
        a(f"buffer_store_dword v2, v3, {R(SRD_E)}, 0 offen")
        a.label("L_nodbg")
    a.stamp_flush(SRD_WS, WS_PROF)
    a.label("L_exit")
    a("s_endpgm")

HEADER = open(os.path.join(os.path.dirname(os.path.abspath(__file__)), "..", NAME + ".s.ref")).read().split("; Override launch")[0]
if __name__ == "__main__":
    name = NAME + "_kernel"
    out = HEADER + "; @launch grid=(256,1,1) block=(512,1,1) lds=163840\n" + '.amdgcn_target "amdgcn-amd-amdhsa--gfx950"\n'
    a = Asm(); a.prof = bool(os.environ.get("PROF"))
    a.o.append(kernel_header(name).rstrip())
    gen(a)
    out += a.text() + '.section .rodata,"a"\n.p2align 6\n' + kernel_desc(name)
    open(sys.argv[1] if len(sys.argv) > 1 else "k.s", "w").write(out)
```

```python
import sys, os
from asmlib import *

NAME = "parallel_sum__compressed_kv_cla__moe_arch_mod__prompt"
ABL = set(os.environ.get("ABL", "").split(","))
if "nontw" not in ABL: ABL |= {"ntt", "ntd"}
WS_XN = 0x0
WS_R = 0x280000
WS_YP = 0x290000
WS_IDX = 0x3A0000
WS_KVF = 0x3B0000
WS_CTXF = 0x3C0000
WS_MOEF = 0xF20000
WS_BSEL = 0x3A9000
WS_BF = 0x3B8000
WS_WOF = 0x400000
WS_XS = 0xC00000
WS_PROF = 0x900000
WS_KV = 0x1000000
WS_CTX = 0x3000000
WS_XF = 0xF00000
WS_XP = 0x4000000
WS_SIZE = 0x5000000
S_W, S_H, S_P = 3, 4, 5
SRD_WS, SRD_A, SRD_B, SRD_C, SRD_D, SRD_E = 8, 12, 16, 20, 24, 28
P_X, P_CKV, P_WQ, P_WUK, P_WUV, P_WO, P_BX, P_WR, P_WG, P_WU, P_WD, P_OUT, P_DBG, P_WS = range(32, 60, 2)
S_B, S_E = 60, 61
WS = f"s[{SRD_WS}:{SRD_WS+3}]"
def R(d): return f"s[{d}:{d+3}]"
L, VL16 = 1, 13
DESIG = 31
SPIN = 1 << 18
NTT = " nt" if "ntt" in ABL else ""
LK1, LK2 = [int(x) for x in os.environ.get("LK", "22,34").split(",")]
WOTM = int(os.environ.get("WOTM", "0xf0"), 0)
SNAKE = os.environ.get("SNAKE", "akqo")
LOOKG = int(os.environ.get("LOOKG", "12"))
NPC = int(os.environ.get("NPC", "2"))
YP = int(os.environ.get("YP", "3"))
LPOS = int(os.environ.get("LPOS", "10"))
WOTN = int(os.environ.get("WOTN", "0"))
LNH = int(os.environ.get("LNH", "2"))
MOEJ = int(os.environ.get("MOEJ", "4"))
if "code2" not in ABL: ABL.add("nocode2")
if "newb7" not in ABL: ABL.add("oldb7")
NT = "" if "nont" in ABL else " nt"
ABL.add("latewait")
TSCHED = os.environ.get("TSCHED", ";2;4;6").split(";")
TK, TV0, TV1, TV2 = [[int(y) for y in x.split(",") if y] for x in TSCHED]
LDS_SP = 131072
LDS_LN = LDS_SP
LDS_WOT = LDS_SP + 10240
LDS_RK = LDS_SP + 30720

def bf16_round(a, r):
    a(f"v_cvt_pk_bf16_f32 v{r}, v{r}, v{r}\nv_lshlrev_b32 v{r}, 16, v{r}")

def poll(a, load, cmp_notready, sleep=2):
    lp = a.newlabel("poll"); dn = a.newlabel("polldone")
    a(f"s_mov_b32 s79, {SPIN}")
    a.label(lp)
    a(load); a("s_waitcnt vmcnt(0)"); a(cmp_notready)
    a(f"s_cbranch_vccz {dn}\ns_sleep {sleep}\ns_sub_u32 s79, s79, 1\ns_cmp_lg_u32 s79, 0\ns_cbranch_scc1 {lp}")
    a.label(dn)

VC, VW, RC, RW, QRW = 40, 44, 48, 50, 54
CF, WF, ACC = 64, 96, 128
S_CO, S_WO_, S_MC, S_ST, S_ROW, S_KVD, S_INCA, S_INCB, S_XO, S_QO = 62, 63, 64, 65, 66, 67, 68, 69, 70, 71
S_XB = 84
XEARLY = [16, 20, 24, 28, 32, 36]
VX1 = 12
LX, LW, LV = 16, 26, 64
VDUM = 11
ITR = ((8, 9), (10, 55))

def wdma(a, srd, soff):
    nt = " nt" if ("ntd" in ABL and srd != SRD_D) or ("ntq" in ABL and srd == SRD_D) else ""
    return [f"buffer_load_dwordx4 v{VW+i}, {R(srd)}, s{soff} offen offset:{i*1024}{nt} lds" for i in range(4)]

def kv_dma_ops():
    g = []
    g.append([f"s_mov_b32 m0, s{S_MC}", f"s_add_u32 s72, s{S_CO}, 524288"])
    for i in range(4): g.append([f"buffer_load_dwordx4 v{VC+i}, {R(SRD_A)}, s{S_CO} offen offset:{i*1024} lds"])
    g.append([f"s_add_u32 m0, s{S_MC}, 4096", f"s_add_u32 s{S_CO}, s{S_CO}, 128", f"s_bitset0_b32 s{S_CO}, 10"])
    for i in range(4): g.append([f"buffer_load_dwordx4 v{VC+i}, {R(SRD_A)}, s72 offen offset:{i*1024} lds"])
    g.append([f"s_mov_b32 m0, s73", f"s_xor_b32 s{S_MC}, s{S_MC}, 0x10000"])
    for x in wdma(None, SRD_B, S_WO_): g.append([x])
    g.append([f"s_add_u32 m0, s73, 16384", f"s_xor_b32 s73, s73, 0x10000"])
    for x in wdma(None, SRD_C, S_WO_): g.append([x])
    g.append([f"s_add_u32 s{S_WO_}, s{S_WO_}, {64*8192}", f"s_bitset0_b32 s{S_WO_}, 22"])
    return g

def wq_dma_ops(nblk):
    g = []
    for h in range(2*nblk):
        g.append([f"s_mov_b32 m0, s74", f"s_add_u32 s74, s74, 16384"] + (["s_bitset0_b32 s74, 17"] if nblk == 2 else []))
        for x in wdma(None, SRD_D, S_QO): g.append([x])
        g.append([f"s_add_u32 s{S_QO}, s{S_QO}, {64*8192}", f"s_sub_u32 s75, s{S_QO}, {640*8192}", f"s_cselect_b32 s{S_QO}, s{S_QO}, s75"])
    return g

def emit_groups(a, g):
    for x in g:
        for y in x: a(y)

def x_load(a, ks, regs):
    for qt in range(2):
        a(f"buffer_load_dwordx4 {v(regs[qt],4)}, v{VL16 if qt==0 else VX1}, {WS}, s{S_XB+(ks>>2)} offen offset:{(ks&3)*1024} sc1")
        a.vm.issue(("X", ks))

def cnt_load(a, r, which):
    return f"buffer_load_dword v{r}, v3, {R(SRD_E)}, 0 offen offset:{128*which} sc1"
def cnt_addr(a):
    a.srd(SRD_E, P_DBG, 256)
    a(f"v_and_b32 v3, 31, v{L}\nv_lshlrev_b32 v3, 2, v3")
def cnt_check(a, r, which):
    ok = a.newlabel("cntok")
    a(f"v_cmp_gt_u32 vcc, 8, v{r}\ns_cbranch_vccz {ok}")
    cnt_addr(a)
    poll(a, cnt_load(a, 2, which), "v_cmp_gt_u32 vcc, 8, v2", sleep=8)
    a.label(ok)

def kv_touch(a, st0):
    sk = a.newlabel("tch")
    a(f"s_cmp_ge_u32 s76, 2\ns_cbranch_scc1 {sk}a")
    a(f"s_and_b32 s6, s{S_H}, 3\ns_lshl_b32 s6, s6, 19\ns_lshl_b32 s7, s{S_P}, 15\ns_add_u32 s6, s6, s7\ns_lshl_b32 s7, s76, 7\ns_add_u32 s6, s6, s7\ns_add_u32 s6, s6, {st0*128}")
    a(f"v_lshrrev_b32 v6, 1, v{L}\nv_lshlrev_b32 v6, 10, v6\nv_and_b32 v7, 1, v{L}\nv_lshl_add_u32 v6, v7, 6, v6")
    a(f"buffer_load_dword v{VDUM}, v6, {R(SRD_A)}, s6 offen\ns_add_u32 s6, s6, 262144\nbuffer_load_dword v{VDUM}, v6, {R(SRD_A)}, s6 offen\ns_branch {sk}c")
    a.label(sk + "a")
    a(f"v_lshrrev_b32 v6, 5, v{L}\nv_lshlrev_b32 v6, 6, v6\nv_bfe_u32 v7, v{L}, 2, 3\nv_add_u32 v6, v6, v7\nv_lshlrev_b32 v6, 13, v6\nv_and_b32 v7, 3, v{L}\nv_lshl_add_u32 v6, v7, 6, v6")
    a(f"s_lshl_b32 s6, s{S_H}, 8\ns_lshl_b32 s7, s{S_P}, 16\ns_add_u32 s6, s6, s7\ns_add_u32 s6, s6, {st0*64*8192}")
    a(f"s_cmp_lg_u32 s76, 2\ns_cbranch_scc1 {sk}b\nbuffer_load_dword v{VDUM}, v6, {R(SRD_B)}, s6 offen{NTT}\ns_branch {sk}c")
    a.label(sk + "b")
    a(f"buffer_load_dword v{VDUM}, v6, {R(SRD_C)}, s6 offen{NTT}")
    a.label(sk + "c")

def consts(a):
    a(f"s_mov_b32 s{S_ST}, 0")
    a(f"s_lshl_b32 s6, s{S_H}, 20\ns_lshl_b32 s7, s{S_P}, 13\ns_add_u32 s6, s6, s7\ns_and_b32 s7, s{S_W}, 1\ns_lshl_b32 s7, s7, 16\ns_add_u32 s6, s6, s7\ns_add_u32 s{S_KVD}, s6, {WS_KV}")
    if "noqrot" in ABL: a("s_mov_b32 s6, 0")
    else:
        a(f"s_and_b32 s6, s{S_H}, 3\ns_add_u32 s6, s6, s{S_P}")
        for _ in range(2): a("s_sub_u32 s7, s6, 5\ns_cselect_b32 s6, s6, s7")
    a(f"s_lshl_b32 s{S_QO}, s6, 20\ns_lshl_b32 s7, s{S_H}, 8\ns_add_u32 s{S_QO}, s{S_QO}, s7")
    for i in range(5):
        a(f"s_lshl_b32 s7, s6, 12\ns_add_u32 s{S_XB+i}, s{S_XO}, s7")
        if i < 4: a("s_add_u32 s6, s6, 1\ns_cmp_eq_u32 s6, 5\ns_cselect_b32 s6, 0, s6")
    a(f"s_lshr_b32 s7, s{S_W}, 1\ns_and_b32 s7, s7, 1")
    a(f"s_cmp_ge_u32 s{S_W}, 4\ns_cbranch_scc1 L_c_v")
    a(f"s_lshl_b32 s7, s7, 11\ns_add_u32 s{S_KVD}, s{S_KVD}, s7\ns_movk_i32 s{S_INCA}, 3072\ns_mov_b32 s{S_INCB}, 125952")
    a(f"s_add_u32 s{S_QO}, s{S_QO}, {128*8192}\ns_sub_u32 s75, s{S_QO}, {640*8192}\ns_cselect_b32 s{S_QO}, s{S_QO}, s75\ns_lshl_b32 s74, s76, 12\ns_add_u32 s74, s74, s100\ns_branch L_c_j")
    a.label("L_c_v")
    a(f"s_lshl_b32 s7, s7, 12\ns_add_u32 s{S_KVD}, s{S_KVD}, s7\ns_add_u32 s{S_KVD}, s{S_KVD}, 0x80000\ns_movk_i32 s{S_INCA}, 1024\ns_mov_b32 s{S_INCB}, 128000")
    a.label("L_c_j")

def zero_regs(a, r0, n):
    for i in range(0, n, 2): a(f"v_mov_b64 {v(r0+i,2)}, 0")

def phase_start(a):
    a(f"s_cmp_ge_u32 s2, 256\ns_cbranch_scc1 L_exit")
    a("s_load_dwordx16 s[32:47], s[0:1], 0\ns_load_dwordx8 s[48:55], s[0:1], 64\ns_load_dwordx4 s[56:59], s[0:1], 96")
    a(f"v_lshrrev_b32 v2, 6, v0\nv_and_b32 v{L}, 63, v0\nv_readfirstlane_b32 s{S_W}, v2")
    if "nocode" not in ABL:
        a("s_getpc_b64 s[80:81]")
        a.label("L_pc")
        a(f"s_lshr_b32 s6, s2, 3\ns_and_b32 s6, s6, 15\ns_lshl_b32 s6, s6, 12\ns_cmp_lt_u32 s{S_W}, 2\ns_cselect_b32 s6, 0, s6\nv_lshl_add_u32 v3, v0, 6, s6")
        a(f"v_min_u32 v3, L_exit-L_pc, v3\ns_cmp_ge_u32 s{S_W}, 3\ns_cbranch_scc1 L_noct\nglobal_load_dword v{VDUM}, v3, s[80:81]")
        a.label("L_noct")
    a(f"v_lshrrev_b32 v62, 5, v0\nv_and_b32 v62, 7, v62\nv_and_b32 v2, 31, v0\nv_lshlrev_b32 v2, 3, v2\nv_mul_u32_u24 v63, 1280, v62\nv_add_u32 v63, v63, v2\ns_mul_i32 s6, s2, 10240\nv_add_u32 v10, s6, v63")
    a(f"s_cmp_lt_u32 s{S_W}, 4\ns_cbranch_scc1 L_st_k0")
    a("s_waitcnt lgkmcnt(0)")
    for j in range(5): a(f"global_load_dwordx2 {v(LX+2*j,2)}, v10, s[{P_X}:{P_X+1}] offset:{j*256}{NT if 'xnt' in ABL else ''}")
    for j in range(5): a(f"global_load_dwordx2 {v(LW+2*j,2)}, v2, s[{P_WR}:{P_WR+1}] offset:{j*256}")
    NPF = int(os.environ.get("NPF", "2"))
    if NPF:
        a(f"s_bfe_u32 s6, s2, 0x20003\ns_lshl_b32 s6, s6, 9\ns_bfe_u32 s7, s{S_W}, 0x10001\ns_lshl_b32 s7, s7, 8\ns_add_u32 s6, s6, s7\ns_andn2_b32 s7, s2, 31\ns_add_u32 s6, s6, s7\ns_and_b32 s72, s{S_W}, 1\ns_lshl_b32 s7, s72, 4\ns_add_u32 s6, s6, s7")
        a(f"v_lshrrev_b32 v4, 3, v{L}\nv_add_u32 v4, s6, v4\nv_and_b32 v5, 7, v{L}\nv_lshlrev_b32 v5, 4, v5\nv_lshl_add_u32 v4, v4, 10, v5\nv_add_u32 v5, 8192, v4")
        a(f"s_lshr_b32 s6, s2, 5\ns_lshl_b32 s6, s6, 1\ns_add_u32 s6, s6, s72\ns_lshl_b32 s6, s6, 15\ns_and_b32 s7, s2, 7\ns_lshl_b32 s7, s7, 10\ns_add_u32 s6, s6, s7\ns_bfe_u32 s7, s2, 0x20003\ns_lshl_b32 s7, s7, 8\ns_add_u32 s6, s6, s7")
        a(f"v_lshrrev_b32 v6, 4, v{L}\nv_and_b32 v7, 15, v{L}\nv_lshlrev_b32 v7, 4, v7\nv_lshl_add_u32 v6, v6, 13, v7\nv_add_u32 v6, s6, v6")
        a(f"s_cmp_ge_u32 s{S_W}, 6\ns_cselect_b32 s74, s{P_WUV}, s{P_WUK}\ns_cselect_b32 s75, s{P_WUV+1}, s{P_WUK+1}")
        for st in range(NPF):
            a(f"global_load_dwordx4 v[36:39], v4, s[{P_CKV}:{P_CKV+1}] offset:{st*128}\nglobal_load_dwordx4 v[36:39], v5, s[{P_CKV}:{P_CKV+1}] offset:{st*128}")
            a(f"global_load_dwordx4 v[36:39], v6, s[74:75]{NTT}\nv_add_u32 v6, {64*8192}, v6")
    if "nob0" not in ABL: a("s_barrier")
    a.label("L_st_k0")
    a(f"s_and_b32 s6, s2, 7\ns_lshl_b32 s6, s6, 2\ns_lshr_b32 s7, s2, 3\ns_and_b32 s7, s7, 3\ns_add_u32 s{S_H}, s6, s7\ns_lshr_b32 s{S_P}, s2, 5\ns_and_b32 s76, s{S_W}, 3")
    a.stamp_init(14, 0); a.stamp(0)
    a(f"v_lshrrev_b32 v2, 3, v{L}\nv_and_b32 v3, 7, v{L}\nv_lshrrev_b32 v4, 4, v{L}\nv_xor_b32 v5, v3, v4\nv_lshlrev_b32 v5, 4, v5")
    a(f"v_lshl_add_u32 v{VC}, v2, 10, v5\nv_xor_b32 v5, 64, v{VC}\nv_add_u32 v{VC+1}, 7168, v5\nv_add_u32 v{VC+2}, 14336, v{VC}\nv_add_u32 v{VC+3}, 14336, v{VC+1}")
    a(f"v_and_b32 v6, 15, v{L}\ns_lshl_b32 s6, s76, 4\nv_add_u32 v7, s6, v4\nv_lshlrev_b32 v5, 1, v4\nv_xor_b32 v5, v6, v5\nv_lshlrev_b32 v5, 4, v5")
    a(f"v_lshl_add_u32 v{VW}, v7, 13, v5\nv_add_u32 v{VW+1}, 31744, v{VW}\nv_xor_b32 v5, 0x80, v{VW}\nv_add_u32 v{VW+2}, 63488, v5\nv_add_u32 v{VW+3}, 31744, v{VW+2}")
    a(f"s_and_b32 s6, s76, 1\ns_lshl_b32 s6, s6, 20\ns_lshr_b32 s7, s76, 1\ns_lshl_b32 s7, s7, 18\ns_add_u32 s6, s6, s7\ns_lshl_b32 s{S_CO}, s{S_P}, 15\ns_add_u32 s{S_CO}, s{S_CO}, s6\ns_lshl_b32 s{S_WO_}, s{S_H}, 8\ns_lshl_b32 s{S_MC}, s76, 13\ns_lshl_b32 s73, s76, 12\ns_add_u32 s73, s73, 32768")
    a(f"s_andn2_b32 s100, 1, s{S_P}\ns_lshl_b32 s100, s100, 16\ns_add_u32 s{S_MC}, s{S_MC}, s100\ns_add_u32 s73, s73, s100")
    a("s_waitcnt lgkmcnt(0)")
    a.srd(SRD_A, P_CKV, 2048*512*2)
    a.srd(SRD_B, P_WUK, 512*4096*2)
    a.srd(SRD_C, P_WUV, 512*4096*2)
    a(f"s_cmp_ge_u32 s{S_W}, 4\ns_cbranch_scc1 L_st_v0")
    if "nob0" not in ABL: a("s_barrier")
    for st in TK: kv_touch(a, st)
    emit_groups(a, kv_dma_ops())
    if "noprio" not in ABL: a("s_setprio 1")
    a.label("L_st_v0")
    a.srd(SRD_WS, P_WS, WS_SIZE)
    a.srd(SRD_D, P_WQ, 640*4096*2)
    a(f"v_lshlrev_b32 v{VL16}, 4, v{L}")
    a(f"s_lshl_b32 s6, s{S_P}, 2\ns_add_u32 s7, s6, s{S_W}\ns_sub_u32 s6, 56, s6\ns_add_u32 s6, s6, s{S_W}")
    a(f"s_cmp_lt_u32 s{S_W}, 4\ns_cselect_b32 s{S_B}, s7, s6")
    a(f"s_sub_u32 s6, 2, s{S_P}\ns_and_b32 s6, s6, 7\ns_lshl_b32 s6, s6, 5\ns_add_u32 s{S_E}, s6, s{S_H}")
    a(f"v_and_b32 v2, 15, v{L}\nv_lshrrev_b32 v3, 4, v{L}")
    a(f"s_and_b32 s6, s{S_W}, 1\ns_lshl_b32 s6, s6, 7\nv_add_u32 v4, s6, v2\nv_lshlrev_b32 v4, 7, v4\nv_add_u32 v4, s100, v4\nv_lshrrev_b32 v5, 1, v2")
    for sp in range(2):
        a(f"v_add_u32 v6, {4*sp}, v3\nv_xor_b32 v6, v6, v5\nv_lshl_add_u32 v{RC+sp}, v6, 4, v4")
    a(f"v_lshrrev_b32 v4, 2, v2\nv_lshl_add_u32 v5, v3, 3, v4\nv_lshlrev_b32 v5, 8, v5")
    a(f"v_and_b32 v6, 1, v2\nv_lshl_add_u32 v5, v6, 3, v5")
    a(f"v_and_b32 v6, 1, v3\nv_lshl_or_b32 v4, v6, 2, v4\nv_lshlrev_b32 v4, 1, v4\nv_bfe_u32 v6, v2, 1, 1")
    a(f"v_add_u32 v8, {LDS_SP}, v5")
    for t in range(8):
        a(f"v_add_u32 v7, {2*t}, v6\nv_xor_b32 v7, v7, v4\nv_lshl_add_u32 v{QRW+t}, v7, 4, v8")
    a(f"s_lshr_b32 s6, s{S_W}, 2\ns_lshl_b32 s6, s6, 14\ns_add_u32 s6, s6, 32768\ns_add_u32 s6, s6, s100\nv_add_u32 v5, s6, v5")
    a(f"s_lshr_b32 s7, s{S_W}, 1\ns_and_b32 s7, s7, 1\ns_lshl_b32 s7, s7, 3")
    for j in range(4):
        a(f"s_add_u32 s6, s7, {2*j}\nv_add_u32 v7, s6, v6\nv_xor_b32 v7, v7, v4\nv_lshl_add_u32 v{RW+j}, v7, 4, v5")
    zero_regs(a, ACC, 128)
    a(f"v_add_u32 v{VX1}, 20480, v{VL16}\ns_mul_i32 s{S_XO}, s{S_B}, 40960")
    consts(a)
    a.stamp(1)
    a(f"s_cmp_ge_u32 s{S_W}, 4\ns_cbranch_scc1 L_st_v1")
    TM = [int(x) for x in os.environ.get("TM", "").split(",") if x]
    TM2 = [int(x) for x in os.environ.get("TM2", "").split(",") if x]
    for st in TM: kv_touch(a, st)
    emit_groups(a, kv_dma_ops()[:10])
    for st in TM2: kv_touch(a, st)
    a(f"s_waitcnt vmcnt({8+len(TM)+len(TM2)})\ns_branch L_st_j1")
    a.label("L_st_v1")
    a(f"s_waitcnt vmcnt({3*NPF})")
    a.stamp(2)
    ln_compute(a)
    ln_router(a)
    a.label("L_st_j1")
    a.stamp(3)
    a("s_barrier")
    a.stamp(4)

def zero_flags(a):
    a(f"s_cmp_lt_u32 s{S_W}, 6\ns_cbranch_scc1 L_zd\nv_mov_b64 v[36:37], 0\nv_mov_b64 v[38:39], 0\nv_lshrrev_b32 v2, 3, v{L}\ns_cmp_eq_u32 s{S_W}, 6\ns_cbranch_scc1 L_z6")
    a(f"s_lshl_b32 s6, s{S_P}, 2\ns_sub_u32 s7, 56, s6\nv_mov_b32 v3, s6\nv_mov_b32 v4, s7\nv_cmp_gt_u32 vcc, 4, v2\ns_lshl_b32 s6, s{S_H}, 7\ns_add_u32 s6, s6, {WS_CTXF}\nv_cndmask_b32 v3, v4, v3, vcc\nv_add_u32 v3, v3, v2\nv_lshl_add_u32 v3, v3, 12, s6\ns_branch L_z7")
    a.label("L_z6")
    a(f"v_mov_b32 v3, {hex(WS_SIZE)}")
    def put(j): a(f"s_andn2_b32 s6, s6, 127\nv_cmp_eq_u32 vcc, {j}, v2\nv_mov_b32 v4, s6\ns_nop 0\nv_cndmask_b32 v3, v3, v4, vcc")
    flag_addr(a, "kv", 6); put(0)
    flag_addr(a, "moe", 6); put(1)
    flag_addr(a, "b", 6); put(2)
    for k in range(3):
        xf_addr(a, k, 6); put(3+k)
    a(f"s_mov_b32 s6, {hex(WS_SIZE)}\ns_cmp_eq_u32 s2, {DESIG}\ns_cmov_b32 s6, {WS_IDX}"); put(6)
    a(f"s_lshl_b32 s6, s2, 7\ns_add_u32 s6, s6, {WS_R}"); put(7)
    a(f"v_add_u32 v4, {LDS_RK-56*16}, v{VL16}\ns_mov_b32 exec_lo, 0\ns_mov_b32 exec_hi, 0x03000000\nds_read_b128 v[36:39], v4\ns_mov_b64 exec, -1\ns_waitcnt lgkmcnt(0)")
    a.label("L_z7")
    a(f"v_and_b32 v2, 7, v{L}\nv_lshl_add_u32 v3, v2, 4, v3\nbuffer_store_dwordx4 v[36:39], v3, {WS}, 0 offen sc1")
    a.label("L_zd")

def half_reduce(a, r):
    for m in ("quad_perm:[1,0,3,2]", "quad_perm:[2,3,0,1]", "row_half_mirror", "row_mirror"):
        a(f"s_nop 1\nv_add_f32_dpp v{r}, v{r}, v{r} {m} row_mask:0xf bank_mask:0xf")
    a(f"v_mov_b32 v8, v{r}\ns_nop 1\nv_permlane16_swap_b32 v{r}, v8\ns_nop 1\nv_add_f32 v{r}, v{r}, v8")

def ln_compute(a):
    X = LV
    NEG = "op_sel_hi:[1,0] neg_lo:[0,1] neg_hi:[0,1]"
    for j in range(10):
        a(f"v_lshlrev_b32 v{X+2*j}, 16, v{LX+j}\nv_and_b32 v{X+2*j+1}, 0xffff0000, v{LX+j}")
    a(f"v_pk_add_f32 v[2:3], {v(X,2)}, {v(X+2,2)}")
    for j in range(2, 10): a(f"v_pk_add_f32 v[2:3], v[2:3], {v(X+2*j,2)}")
    a("v_add_f32 v2, v2, v3")
    half_reduce(a, 2)
    a("s_mov_b32 s7, 0x3acccccd\nv_mul_f32 v2, s7, v2\nv_mov_b64 v[4:5], 0")
    for j in range(10):
        a(f"v_pk_add_f32 v[6:7], {v(X+2*j,2)}, v[2:3] {NEG}\nv_pk_fma_f32 v[4:5], v[6:7], v[6:7], v[4:5]")
    a("v_add_f32 v4, v4, v5")
    half_reduce(a, 4)
    a("v_mul_f32 v4, s7, v4")
    bf16_round(a, 2); bf16_round(a, 4)
    a("v_add_f32 v4, 0x3727c5ac, v4")
    bf16_round(a, 4)
    a("v_sqrt_f32 v4, v4\ns_nop 0")
    bf16_round(a, 4)
    a("v_rcp_f32 v6, v4\ns_nop 0\nv_fma_f32 v5, -v4, v6, 1.0\nv_fmac_f32 v6, v5, v6\nv_mov_b32 v9, 0")
    for j in range(10):
        x = X + 2*j
        a(f"v_pk_add_f32 {v(x,2)}, {v(x,2)}, v[2:3] {NEG}\nv_cvt_pk_bf16_f32 v5, v{x}, v{x+1}")
        a(f"v_lshlrev_b32 v{x}, 16, v5\nv_and_b32 v{x+1}, 0xffff0000, v5")
        a(f"v_pk_mul_f32 {v(x,2)}, {v(x,2)}, v[6:7] op_sel_hi:[1,0]\nv_cvt_pk_bf16_f32 v{LX+j}, v{x}, v{x+1}")
    a(f"v_add_u32 v10, {LDS_LN}, v63")
    for j in range(5): a(f"ds_write_b64 v10, {v(LX+2*j,2)} offset:{j*256}")
    a("s_waitcnt lgkmcnt(0)")

def ln_router(a):
    a("v_mov_b32 v2, 0")
    for j in range(10):
        a(f"v_lshlrev_b32 v4, 16, v{LX+j}\nv_lshlrev_b32 v5, 16, v{LW+j}\nv_fmac_f32 v2, v4, v5")
        a(f"v_and_b32 v4, 0xffff0000, v{LX+j}\nv_and_b32 v5, 0xffff0000, v{LW+j}\nv_fmac_f32 v2, v4, v5")
    half_reduce(a, 2)
    a("v_cvt_pk_bf16_f32 v2, v2, v2\nv_and_b32 v2, 0xffff, v2")
    a("v_bfe_i32 v3, v2, 15, 1\nv_and_b32 v3, 0x7fff, v3\nv_or_b32 v3, 0x8000, v3\nv_xor_b32 v2, v2, v3")
    a(f"s_lshl_b32 s7, s2, 3\ns_sub_u32 s6, 2047, s7\nv_sub_u32 v3, s6, v62\nv_lshl_or_b32 v2, v2, 11, v3\nv_lshlrev_b32 v3, 2, v62\nv_add_u32 v3, {LDS_RK}, v3\nds_write_b32 v3, v2\ns_waitcnt lgkmcnt(0)")

def ln_store(a, back):
    LV = 16
    a(f"s_lshr_b32 s72, s2, 1\ns_mul_i32 s72, s72, 20480\ns_and_b32 s7, s2, 1\ns_lshl_b32 s7, s7, 7\ns_add_u32 s72, s72, s7")
    for n in range(3):
        a(f"v_add_u32 v2, {256*n-256}, v0\nv_lshrrev_b32 v3, 3, v2\nv_and_b32 v4, 7, v2")
        a(f"v_mul_u32_u24 v5, 1280, v4\nv_lshl_add_u32 v5, v3, 4, v5\nv_add_u32 v5, {LDS_LN}, v5")
        a(f"ds_read_b128 {v(LV+8*n,4)}, v5\nv_lshlrev_b32 v5, 8, v3\nv_lshl_add_u32 v{6+n}, v4, 4, v5")
    a("s_waitcnt lgkmcnt(0)")
    for n in range(3):
        if n == 2: a(f"s_cmp_ge_u32 s{S_W}, 6\ns_cbranch_scc1 {back}")
        SC = "" if "lnplain" in ABL else " sc1"
        if "nolnst" not in ABL: a(f"buffer_store_dwordx4 {v(LV+8*n,4)}, v{6+n}, {WS}, s72 offen{SC}")
    a.label(back)
    zero_flags(a)

def count_atomic(a, which):
    a.srd(SRD_E, P_DBG, 256)
    a(f"v_mov_b32 v2, 1\nv_lshlrev_b32 v3, 8, v{L}\ns_and_b32 s6, s2, 31\ns_lshl_b32 s6, s6, 2\nbuffer_atomic_add v2, v3, {R(SRD_E)}, s6 offen offset:{128*which} sc1")

def flag_addr(a, kind, d):
    if kind == "kv":
        a(f"s_lshl_b32 s{d}, s{S_H}, 3\ns_add_u32 s{d}, s{d}, s{S_P}\ns_lshl_b32 s{d}, s{d}, 5\ns_add_u32 s{d}, s{d}, s{S_W}\ns_lshl_b32 s{d}, s{d}, 2\ns_add_u32 s{d}, s{d}, {WS_KVF}")
    elif kind == "ctx":
        a(f"s_lshl_b32 s{d}, s{S_B}, 5\ns_add_u32 s{d}, s{d}, s{S_H}\ns_lshl_b32 s{d}, s{d}, 7\ns_add_u32 s{d}, s{d}, {WS_CTXF}")
    elif kind == "b":
        a(f"s_lshl_b32 s{d}, s{S_P}, 5\ns_add_u32 s{d}, s{d}, s{S_H}\ns_lshl_b32 s{d}, s{d}, 5\ns_add_u32 s{d}, s{d}, s{S_W}\ns_lshl_b32 s{d}, s{d}, 2\ns_add_u32 s{d}, s{d}, {WS_BF}")
    else:
        a(f"s_lshl_b32 s{d}, s{S_E}, 5\ns_add_u32 s{d}, s{d}, s{S_W}\ns_lshl_b32 s{d}, s{d}, 2\ns_add_u32 s{d}, s{d}, {WS_MOEF}")

def tile_id(a, d):
    a(f"s_and_b32 s{d}, s{S_H}, 7\ns_lshl_b32 s7, s{S_P}, 3\ns_add_u32 s{d}, s{d}, s7")
def xslot(a, slot, d):
    tile_id(a, d)
    a(f"s_lshr_b32 s7, s{S_H}, 3\ns_add_u32 s7, s7, {slot}\ns_add_u32 s7, s7, 1\ns_and_b32 s7, s7, 3\ns_lshl_b32 s{d}, s{d}, 2\ns_add_u32 s{d}, s{d}, s7\ns_mul_i32 s{d}, s{d}, 3\ns_add_u32 s{d}, s{d}, {slot}")
def xf_addr(a, slot, d):
    xslot(a, slot, d)
    a(f"s_lshl_b32 s{d}, s{d}, 5\ns_add_u32 s{d}, s{d}, s{S_W}\ns_lshl_b32 s{d}, s{d}, 2\ns_add_u32 s{d}, s{d}, {WS_XF}")

def set_flag(a, kind, val=1):
    flag_addr(a, kind, 6)
    a(f"v_mov_b32 v2, {val}\nv_mov_b32 v3, {hex(WS_SIZE)}\nv_writelane_b32 v3, s6, 0\nbuffer_store_dword v2, v3, {WS}, 0 offen sc1")
    a.vm.issue("flag")

def phase_kv(a):
    def rdC(i, sp):
        if "kv_noC" in ABL: return
        a(f"ds_read_b128 {v(CF+4*i,4)}, v{RC+sp} offset:{i*2048}"); a.lg.issue(("C", i))
    def rdW(par, j, half, sp):
        if "kv_noW" in ABL: return
        r = WF + 16*par + 4*j + 2*half
        a(f"ds_read_b64_tr_b16 {v(r,2)}, v{RW+j} offset:{sp*8192 + half*1024}"); a.lg.issue(("W", par, j, half))
    wq = [(j, hf) for j in range(4) for hf in range(2)]
    def body(isK, lab, dma, nend, hook=None):
        def mm(i, j, par):
            if "k" in SNAKE and i & 1: j = 3 - j
            d = ACC + (i*4+j)*4
            a.wait_lg([("C", i), ("W", par, j, 0), ("W", par, j, 1)])
            if isK: a.mfma(d, WF+16*par+4*j, CF+4*i)
            else: a.mfma(d, CF+4*i, WF+16*par+4*j)
        a(".p2align 4")
        a.label(lab)
        if hook:
            a(f"s_bitcmp1_b32 {0x80 if isK else 0xd6}, s{S_ST}\ns_cbranch_scc1 {hook}"); a.label(hook + "_back")
        for i in range(8):
            for j in range(4):
                mm(i, j, 0)
                if i < 2: rdW(1, *wq[i*4+j], 1)
            rdC(i, 1)
        dma = list(dma)
        if "kv_nodma" in ABL: dma = []
        for i in range(8):
            for j in range(4):
                mm(i, j, 1)
                if i == 2 or i == 3: rdW(0, *wq[(i-2)*4+j], 0)
                if i >= 2 and dma:
                    for y in dma.pop(0): a(y)
            if i == 1:
                for r in (RC, RC+1, RW, RW+1, RW+2, RW+3): a(f"v_xor_b32 v{r}, 0x10000, v{r}")
                if isK and hook and "oldb7" not in ABL:
                    a(f"s_cmp_eq_u32 s{S_ST}, 7\ns_cbranch_scc1 L_know\ns_waitcnt vmcnt(0)")
                    a.label("L_know")
                    a("s_waitcnt lgkmcnt(0)\ns_barrier")
                elif isK: a("s_waitcnt vmcnt(0) lgkmcnt(0)\ns_barrier")
                else:
                    a(f"s_bitcmp1_b32 0x48, s{S_ST}\ns_cbranch_scc1 L_vpre")
                    a.label("L_vnow")
                    a("s_waitcnt lgkmcnt(0)\ns_barrier")
                a.lg.drain()
                a.stampd(S_ST, 24)
                rdC(0, 0); rdC(1, 0)
            elif i >= 2: rdC(i, 0)
        emit_groups(a, dma)
        a(f"s_add_u32 s{S_ST}, s{S_ST}, 1\ns_cmp_lt_u32 s{S_ST}, {nend}\ns_cbranch_scc1 {lab}")
    def first_reads():
        a.lg.drain()
        rdC(0, 0); rdC(1, 0)
        for k in range(4): rdW(0, *wq[k], 0)
        rdC(2, 0)
        for k in range(4, 8): rdW(0, *wq[k], 0)
        for i in range(3, 8): rdC(i, 0)
    a(f"s_cmp_ge_u32 s{S_W}, 4\ns_cbranch_scc1 L_kv_v")
    first_reads()
    q0 = list(a.lg.q)
    emit_groups(a, kv_dma_ops()[10:])
    a.stamp(5)
    body(True, "L_kloopA", kv_dma_ops(), 6)
    assert a.lg.q == q0, (a.lg.q, q0)
    body(True, "L_kloopB", wq_dma_ops(2), 8, hook="L_khook" if "kx2" not in ABL else None)
    a.stamp(6)
    a("s_waitcnt lgkmcnt(0)\ns_nop 7")
    for n in range(16):
        t = ACC + 4*n; d0 = ACC + 8*n; d1 = d0 + 4
        a(f"v_cvt_pk_bf16_f32 v{t}, v{d0}, v{d0+1}\nv_cvt_pk_bf16_f32 v{t+1}, v{d0+2}, v{d0+3}")
        a(f"v_cvt_pk_bf16_f32 v{t+2}, v{d1}, v{d1+1}\nv_cvt_pk_bf16_f32 v{t+3}, v{d1+2}, v{d1+3}")
    a("s_waitcnt vmcnt(16)\ns_branch L_q")
    a.label("L_hook")
    for k in (1, 2, 4, 6): a(f"s_cmp_eq_u32 s{S_ST}, {k}\ns_cbranch_scc1 L_hook{k}")
    a(f"s_cmp_lg_u32 s{S_ST}, 7\ns_cbranch_scc1 L_hook_back")
    for ks in range(3): x_load(a, ks, XEARLY[2*ks:2*ks+2])
    a("s_branch L_hook_back")
    a.label("L_hook1")
    if LNH == 1: ln_store(a, "L_lns")
    for st in TV1: kv_touch(a, st)
    a("s_branch L_hook_back")
    a.label("L_hook2")
    if LNH == 2: ln_store(a, "L_lns")
    for st in TV2: kv_touch(a, st)
    a("s_branch L_hook_back")
    a.label("L_hook4")
    WOTR = [16, 20, 24, 28, 32]
    a(f"s_cmp_lg_u32 s{S_W}, 4\ns_cbranch_scc1 L_hook4b")
    count_atomic(a, 0)
    a.label("L_hook4b")
    a(f"s_lshl_b32 s74, s76, 12\ns_add_u32 s74, s74, {LDS_SP}")
    emit_groups(a, wq_dma_ops(1))
    a("s_branch L_hook_back")
    a.label("L_hook6")
    a(f"s_cmp_lg_u32 s{S_W}, 5\ns_cbranch_scc1 L_hook_back")
    cnt_addr(a); a(cnt_load(a, 62, 0))
    a("s_branch L_hook_back")
    a.label("L_vpre")
    a(f"s_waitcnt vmcnt(0)\ns_lshl_b32 s6, s{S_ST}, 4\ns_add_u32 s6, s6, s{S_W}\ns_cmp_lg_u32 s6, 0x65\ns_cbranch_scc1 L_vnow")
    cnt_check(a, 62, 0)
    a("s_branch L_vnow")
    a.label("L_khook")
    a(f"s_cmp_lg_u32 s{S_ST}, 7\ns_cbranch_scc1 L_khook_back")
    for ks in range(3): x_load(a, ks, XEARLY[2*ks:2*ks+2])
    a("s_branch L_khook_back")
    a.label("L_kv_v")
    first_reads()
    for st in TV0: kv_touch(a, st)
    a.stamp(5)
    body(False, "L_vloop", [], 8, hook="L_hook")
    a.stamp(6)
    a("s_waitcnt lgkmcnt(0)\ns_nop 7")
    for ii in range(4):
        for j in range(4):
            t = ACC + 16*ii + 4*j; d0 = ACC + 32*ii + 4*j; d1 = d0 + 16
            a(f"v_cvt_pk_bf16_f32 v{t}, v{d0}, v{d0+1}\nv_cvt_pk_bf16_f32 v{t+1}, v{d0+2}, v{d0+3}")
            a(f"v_cvt_pk_bf16_f32 v{t+2}, v{d1}, v{d1+1}\nv_cvt_pk_bf16_f32 v{t+3}, v{d1+2}, v{d1+3}")
    a("s_waitcnt vmcnt(0)")

QF, O_, S_, FR, P_, NM, T_, L_, ET = 16, 192, 64, 96, 128, 144, 52, 56, 58
VA, VDK, VDV = 48, 49, 50
S_N, S_NL, S_C, S_THR = 62, 63, 64, 65
LA, ONES, SIDX = 160, 164, 168
OFFS = 0x41c00000
def Sreg(par, kt, qt): return S_ + 16*par + (kt*2+qt)*4
def NMreg(kt, qt): return NM + (kt*2+qt)*4
def Oreg(t, qt): return O_ + (t*2+qt)*4
def Qreg(qt, s): return QF + (qt*4+s)*4
def Preg(par, qt): return P_ + 8*par + 4*qt
def Treg(par, qt): return T_ + 2*par + qt

def xlane(a, op, r, t):
    for sw in ("v_permlane16_swap_b32", "v_permlane32_swap_b32"):
        a(f"v_mov_b32 v{t}, v{r}\ns_nop 1\n{sw} v{r}, v{t}\ns_nop 1\n{op} v{r}, v{r}, v{t}")

def st_dma(a, parts):
    if "K" in parts:
        for hf in range(2):
            a(f"s_lshl_b32 s6, s76, 13\ns_add_u32 s6, s6, s78\ns_add_u32 m0, s6, {hf*4096}\ns_add_u32 s7, s77, {hf*4096}")
            for i in range(4): a(f"buffer_load_dwordx4 v{VDK}, {WS}, s7 offen offset:{i*1024} sc1 lds")
    for hf in range(2):
        if f"V{hf}" in parts:
            a(f"s_lshl_b32 s6, s76, 12\ns_add_u32 s6, s6, s78\ns_add_u32 m0, s6, {32768+hf*16384}\ns_add_u32 s7, s77, {0x80000-16384+hf*16384}")
            for i in range(4): a(f"buffer_load_dwordx4 v{VDV}, {WS}, s7 offen offset:{i*1024} sc1 lds")

S_HK, S_ALL = 89, 90
def kv_self_touch(a):
    a(f"v_lshrrev_b32 v9, 3, v{L}\ns_cmp_lt_u32 s{S_W}, 4\ns_cselect_b32 s7, 6, 4\nv_and_b32 v10, s7, v9\nv_add_u32 v9, v9, v10\nv_lshlrev_b32 v9, 10, v9")
    a(f"v_and_b32 v10, 7, v{L}\nv_lshl_add_u32 v9, v10, 7, v9\ns_sub_u32 s6, s{S_KVD}, 32768")
    a(f"buffer_load_dword v{VDUM}, v9, {WS}, s6 offen sc1\ns_add_u32 s6, s6, 16384\nbuffer_load_dword v{VDUM}, v9, {WS}, s6 offen sc1")

def kvf_addr(a):
    a(f"s_lshl_b32 s7, s{S_H}, 10\ns_add_u32 s7, s7, {WS_KVF}\nv_lshrrev_b32 v2, 3, v{L}\nv_and_b32 v3, 7, v{L}\nv_lshlrev_b32 v3, 2, v3\nv_lshl_add_u32 v3, v2, 7, v3")
def kv_flag_wait(a, level):
    kvf_addr(a)
    poll(a, f"buffer_load_dword v2, v3, {WS}, s7 offen sc1", f"v_cmp_gt_u32 vcc, {level}, v2")

KS_POLL = int(os.environ.get("KSP", "15"))
LATE_KS = tuple(int(x) for x in os.environ.get("STKS", "0,1,2,3,16,17,18,19").split(","))
KS_FLAG = int(os.environ.get("KSF", "6"))
NEARLY = int(os.environ.get("NEARLY", "2"))
def kv_store(a, n, late=True):
    if late and "nolate" in ABL: return
    a(f"buffer_store_dwordx4 {v(ACC+4*n,4)}, v{VL16}, {WS}, s{S_KVD} offen sc1"); a.vm.issue(("st", n))
    inc = ("1024", f"s{S_INCA}", "1024", f"s{S_INCB}")[n & 3]
    a(f"s_add_u32 s{S_KVD}, s{S_KVD}, {inc}")
def q_body(a):
    sfx = ""
    a.lg.drain(); a.vm.drain()
    def rdW(t, hf, ks):
        blk = ks >> 2
        off = (0, 0, 32768, 0, 32768)[blk] + (ks & 3)*8192 + hf*1024
        a(f"ds_read_b64_tr_b16 {v(WF+4*t+2*hf,2)}, v{QRW+t} offset:{off}"); a.lg.issue(("W", t, hf))
    for t in range(8):
        rdW(t, 0, 0); rdW(t, 1, 0)
    xr = {ks: XEARLY[2*ks:2*ks+2] for ks in range(3)}
    for ks in range(3, 7):
        xr[ks] = [CF + 8*(ks-3), CF + 8*(ks-3) + 4]
        x_load(a, ks, xr[ks])
    nst = 0
    for ks in range(20):
        pend = []
        a.wait_vm(("X", ks))
        if ks % 2 == 0: a.stamp(32 + ks//2)
        barrier_here = ks == 11 or (ks == 3 and "oldb7" not in ABL)
        upd = {3: -LDS_SP, 11: 65536}.get(ks)
        st_at = (3,) if ks in LATE_KS else ()
        for t in range(8):
            for qt in range(2):
                if qt == 0: a.wait_lg([("W", t, 0), ("W", t, 1)])
                q = qt ^ (t & 1) if "q" in SNAKE else qt
                a.mfma(Oreg(t, q), WF+4*t, xr[ks][q], "0" if ks == 0 else None)
                if qt == 1 and ks < 19: pend += [(t, 0), (t, 1)]
                if barrier_here and t == 1 and qt == 1:
                    a("s_waitcnt lgkmcnt(0)\ns_barrier"); a.lg.drain()
                    while len(pend) > 2: rdW(*pend.pop(0), ks+1)
                if pend and not (barrier_here and (t, qt) < (1, 1)): rdW(*pend.pop(0), ks+1)
                if upd is not None and qt == 0:
                    a(f"v_add_u32 v{QRW+t}, s101, v{QRW+t}" if ks == 3 else f"v_xor_b32 v{QRW+t}, 0x10000, v{QRW+t}")
                if qt == 0 and t in st_at and nst < 16:
                    kv_store(a, nst); nst += 1
        while pend: rdW(*pend.pop(0), ks+1)
        if ks + 7 < 20:
            xr[ks+7] = xr[ks]; x_load(a, ks+7, xr[ks])
        if ks == KS_FLAG:
            a.wait_vm(("st", 3))
            set_flag(a, "kv", 1)
        if ks == KS_POLL:
            a.wait_vm(("X", 19))
            a(f"s_cmp_ge_u32 s{S_W}, 4\ns_cbranch_scc1 L_q_nold{sfx}")
            a.stamp(20)
            kv_flag_wait(a, 1)
            a.stamp(21)
            st_dma(a, ["K", "V1"])
            a.label(f"L_q_nold{sfx}")
    assert nst == len(LATE_KS) and 8 <= nst <= 12

def phase_q(a):
    a.label("L_q")
    a.srd(SRD_E, P_DBG, 256)
    a(f"s_lshl_b32 s6, s76, 13\nv_add_u32 v{VDK}, s6, v{VL16}\ns_lshl_b32 s6, s76, 12\nv_add_u32 v{VDV}, s6, v{VL16}")
    a(f"s_lshl_b32 s77, s{S_H}, 20\ns_add_u32 s77, s77, {WS_KV}\ns_mov_b32 s78, s100\ns_sub_u32 s101, s100, {LDS_SP}\ns_mov_b32 s{S_ALL}, 0")
    a(f"s_cmp_lt_u32 s{S_W}, 4\ns_cselect_b32 s{S_HK}, 3, 2")
    q_body(a)
    a.stamp(7)
    if "symq" not in ABL:
        a(f"s_cmp_lt_u32 s{S_W}, 4\ns_cbranch_scc1 L_qb\ns_barrier")
        a.label("L_qb")
    a("s_mov_b32 s6, 0x3e0293ee\ns_nop 7")
    for qt in range(2):
        for n in range(len(LATE_KS), 12):
            if (n & 1) == qt or 12 - len(LATE_KS) == 1: pass
        if qt == 0:
            for n in range(len(LATE_KS), 12): kv_store(a, n)
        for s_ in range(4):
            for hf in range(2):
                d = Oreg(2*s_+hf, qt)
                if "pkq" in ABL:
                    for r in (0, 2): a(f"v_pk_mul_f32 {v(d+r,2)}, {v(d+r,2)}, s[6:7] op_sel_hi:[1,0]")
                else:
                    for r in range(4): a(f"v_mul_f32 v{d+r}, s6, v{d+r}")
                a(f"v_cvt_pk_bf16_f32 v{Qreg(qt,s_)+2*hf}, v{d}, v{d+1}\nv_cvt_pk_bf16_f32 v{Qreg(qt,s_)+2*hf+1}, v{d+2}, v{d+3}")
    zero_regs(a, O_, 64)
    zero_regs(a, NM, 16)
    zero_regs(a, LA, 4)
    a(f"v_bfe_u32 v2, v{L}, 1, 1\nv_lshrrev_b32 v3, 5, v{L}\nv_cmp_eq_u32 vcc, v2, v3\nv_mov_b32 v2, 0x3f803f80\nv_and_b32 v3, 1, v{L}\nv_mul_u32_u24 v3, 0xaaaa, v3\nv_add_u32 v{SIDX}, 0x4444, v3")
    for i in range(4): a(f"v_cndmask_b32 v{ONES+i}, 0, v2, vcc")
    a(f"v_add_u32 v{VA}, s100, v{VL16}")
    a(f"s_waitcnt vmcnt({12 - len([k for k in LATE_KS if k <= KS_POLL])})")

def sm_ops(par):
    ops = []
    n = 0
    for kt in range(2):
        for qt in range(2):
            for r in range(4):
                t, tp = ET + n % 4, ET + (n-1) % 4
                e = f"v_exp_f32 v{t}, v{Sreg(par,kt,qt)+r}"
                rest = []
                if r & 1: rest.append(f"v_cvt_pk_bf16_f32 v{Preg(par,qt)+2*kt+(r>>1)}, v{tp}, v{t}")
                ops.append((e, rest)); n += 1
    return ops

def phase_attn(a):
    handlers = []
    FULLQ = [("F", i) for i in range(1, 8)]
    def rd(kind, i, k):
        off = (0 if kind == "K" else 32768) + k*8192 + i*1024
        a(f"ds_read_b128 {v(FR+4*i,4)}, v{VA} offset:{off}"); a.lg.issue(("F", i))
    def bar(wait="vmcnt(0) lgkmcnt(0)", mid=None, hot=False):
        bk = a.newlabel("ldback")
        if hot:
            a(f"s_cbranch_scc1 {bk}_c\ns_barrier")
            a.label(bk)
            handlers.append(("ld", bk))
        else:
            a(f"s_waitcnt {wait}\ns_call_b64 s[82:83], L_pend\ns_barrier")
            if mid: mid()
            a(f"s_call_b64 s[82:83], L_load")
        a.lg.drain()
        if "stampbar" in ABL: a.stampd(S_N, 44)
        a(f"s_add_i32 s{S_N}, s{S_N}, 1")
    def stage(k, qk=True, sm=True, pv=True, nxt=True, loop=False):
        pq, ps = k & 1, 1 - (k & 1)
        full = qk and pv
        pairs = []
        if pv: pairs += [("V", i) for i in range(8)]
        if qk: pairs += [("K", i) for i in range(8)]
        NP = len(pairs)
        lp = None if not pv else 1 if not full else LPOS - 1 if k == 3 else 13
        g0 = [[] for _ in range(NP)]; g1 = [[] for _ in range(NP)]; gl = []
        if sm:
            ops = sm_ops(ps)[2:]
            g1[0] += sm_ops(ps)[1][1]
            per = 1 if full else 2
            for n, (e, rest) in enumerate(ops):
                g0[n//per].append(e); g1[n//per] += rest
            c = [Preg(ps, qt) + 2*kt + h for kt in range(2) for qt in range(2) for h in range(2)]
            X = ET + 4
            chk = [f"v_or3_b32 v{X}, v{c[0]}, v{c[1]}, v{c[2]}", f"v_or3_b32 v{X}, v{X}, v{c[3]}, v{c[4]}", f"v_or3_b32 v{X}, v{X}, v{c[5]}, v{c[6]}",
                   f"v_bitop3_b32 v{X}, v{X}, v{c[7]}, s72 bitop3:0xa8", f"v_cmp_ne_u32 vcc, s{S_THR}, v{X}"]
            if full:
                g1[4].append(chk[0]); g1[8].append(chk[1]); g1[12].append(chk[2])
                (gl if lp == 13 else g1[14]).append(chk[3]); g1[14].append(chk[4])
            else: g0[7] += chk
        if full:
            for n, (e, rest) in enumerate(sm_ops(pq)[:2]): g0[14+n].append(e)
        sc = {}
        if loop:
            sc[1] = f"s_sub_i32 s{S_C}, s{S_C}, 1"; sc[3] = f"s_cmp_gt_i32 s{S_C}, 0"; sc[5] = f"s_cselect_b32 s{S_THR}, 0, 1"
            if k == 3: sc[lp-1] = f"s_cmp_lg_u32 s{S_HK}, 0"
        barp = lp if k == 3 else None
        if barp is not None: g1[barp-1].append(f"v_xor_b32 v{VA}, 0x10000, v{VA}")
        held = []
        for n, (kind, i) in enumerate(pairs):
            for qt in range(2):
                q = qt ^ (i & 1) if "a" in SNAKE else qt
                if kind == "V": a.mfma(Oreg(i, q), FR+4*i, Preg(pq, q))
                else: a.mfma(Sreg(pq, i >> 2, q), FR+4*i, Qreg(q, i & 3), None if i & 3 else NMreg(i >> 2, q))
                if qt == 0:
                    if n + 1 < NP: a.wait_lg(("F", pairs[n+1][1]))
                    elif nxt: a.wait_lg(("F", 0))
                    for x in g0[n]: a(x)
                else:
                    if n in sc: a(sc[n])
                    if n == barp and loop:
                        a("s_waitcnt lgkmcnt(0)"); a.lg.drain()
                    if kind == "V" and qk: rd("K", i, k)
                    elif nxt:
                        if barp is not None and n <= barp: held.append(i)
                        else: rd("V", i, (k+1) & 3)
                    for x in g1[n]: a(x)
            if n == lp:
                a(f"v_smfmac_f32_16x16x64_bf16 {v(LA,4)}, {v(ONES,4)}, {v(Preg(pq,0),8)}, v{SIDX}")
                for x in gl: a(x)
                if n == barp:
                    bar(hot=loop)
                    for h in held: rd("V", h, 0)
        if sm:
            bk = a.newlabel("back")
            if loop and k == 3:
                a(f"s_cbranch_vccz L_st0\ns_branch {bk}_h")
                handlers.append(("sm", bk, k, loop, full, "L_st0"))
            else:
                a(f"s_cbranch_vccnz {bk}_h")
                a.label(bk)
                handlers.append(("sm", bk, k, loop, full, bk))
    a(f"s_mov_b32 s72, 0x40004000\ns_mov_b32 s{S_THR}, 0\ns_sub_u32 s{S_NL}, 15, s{S_P}\ns_mov_b32 s{S_N}, -1")
    a.stamp(8)
    if "symq" in ABL: bar("lgkmcnt(0)")
    else:
        a(f"s_cmp_ge_u32 s{S_W}, 4\ns_cbranch_scc1 L_qb2\ns_barrier")
        a.label("L_qb2")
        a.lg.drain()
        if "stampbar" in ABL: a.stampd(S_N, 44)
    a.stamp(9)
    for i in range(8): rd("K", i, 0)
    a(f"s_cmp_lg_u32 s{S_B}, 0\ns_cbranch_scc1 L_nm0\ns_call_b64 s[82:83], L_mask")
    a.label("L_nm0")
    for i in range(8):
        a.wait_lg(("F", i))
        for qt in range(2):
            a.mfma(Sreg(0, i >> 2, qt), FR+4*i, Qreg(qt, i & 3), None if i & 3 else NMreg(i >> 2, qt))
        rd("K", i, 1)
    a("s_nop 7")
    for qt in range(2):
        m = ET + qt
        s0, s1 = Sreg(0, 0, qt), Sreg(0, 1, qt)
        a(f"v_max3_f32 v{m}, v{s0}, v{s0+1}, v{s0+2}\nv_max3_f32 v{m}, v{m}, v{s0+3}, v{s1}\nv_max3_f32 v{m}, v{m}, v{s1+1}, v{s1+2}\nv_max_f32 v{m}, v{m}, v{s1+3}")
        xlane(a, "v_max_f32", m, ET+2)
        a(f"v_add_f32 v{m}, {hex(OFFS)}, v{m}")
        for kt in range(2):
            for r in range(4):
                a(f"v_sub_f32 v{Sreg(0,kt,qt)+r}, v{Sreg(0,kt,qt)+r}, v{m}\nv_sub_f32 v{NMreg(kt,qt)+r}, 0, v{m}")
    a(f"s_cmp_lg_u32 s{S_B}, 1\ns_cbranch_scc1 L_nm1\ns_call_b64 s[82:83], L_mask")
    a.label("L_nm1")
    def early(par):
        o = sm_ops(par)[:2]
        a(o[0][0]); a(o[1][0])
    early(0)
    a.wait_lg(("F", 0))
    stage(1, pv=False)
    assert a.lg.q == FULLQ
    a("s_nop 7")
    early(1)
    if "symq" not in ABL: a(f"s_call_b64 s[82:83], L_load\ns_mov_b32 s{S_N}, 0")
    for n in range(12, 16): kv_store(a, n)
    if "pr_fin" in ABL: a("s_setprio 1")
    if "pr_long" in ABL:
        a(f"s_cmp_lt_u32 s{S_W}, 4\ns_cbranch_scc1 L_prl\ns_setprio 2")
        a.label("L_prl")
    a(f"s_sub_i32 s{S_C}, s{S_B}, 2")
    a.stamp(10)
    a(f"s_cmp_eq_u32 s{S_B}, 0\ns_cbranch_scc1 L_pv2\ns_cmp_eq_u32 s{S_B}, 1\ns_cbranch_scc1 L_tail2")
    a(f"s_cmp_lg_u32 s{S_B}, 2\ns_cbranch_scc1 L_st2\ns_call_b64 s[82:83], L_mask\ns_branch L_st2")
    a(".p2align 6")
    a.label("L_st0")
    for k in range(4):
        if k == 2: a.label("L_st2")
        stage(k, loop=True)
        assert a.lg.q == FULLQ, a.lg.q
    for k in range(4):
        a.label(f"L_tail{k}")
        a.lg.q = list(FULLQ)
        a(f"s_mov_b32 s{S_THR}, 0")
        stage(k, qk=False)
        assert a.lg.q == FULLQ
        a.label(f"L_pv{(k+1)&3}")
        stage((k+1) & 3, qk=False, sm=False, nxt=False)
        if k == 1 and "nopvb" not in ABL:
            a(f"s_cmp_eq_u32 s{S_B}, 0\ns_cbranch_scc1 L_fin")
            bar()
        if k < 3: a("s_branch L_fin")
    a.label("L_fin")
    if "pr_fin" in ABL: a("s_setprio 0")
    a.stamp(11)
    idx_addr(a); a(f"buffer_load_dword v{VIDX}, v3, {WS}, s72 offen sc1")
    for qt in range(2): a(f"v_add_f32 v{L_+qt}, v{LA+2*qt}, v{LA+2*qt+1}\nv_rcp_f32 v{L_+qt}, v{L_+qt}")
    a(f"s_lshl_b32 s6, s{S_B}, 18\ns_lshl_b32 s7, s{S_H}, 12\ns_add_u32 s6, s6, s7\ns_add_u32 s6, s6, {WS_CTX}\ns_nop 4")
    n = 0
    a.vm.drain()
    for qt in range(2):
        for s_ in range(4):
            t = QF + 4*n; n += 1
            for hf in range(2):
                d = Oreg(2*s_+hf, qt)
                if "pkfin" in ABL:
                    sel = "op_sel_hi:[1,0]" if qt == 0 else "op_sel:[0,1] op_sel_hi:[1,1]"
                    for r in (0, 2): a(f"v_pk_mul_f32 {v(d+r,2)}, {v(d+r,2)}, {v(L_,2)} {sel}")
                else:
                    for r in range(4): a(f"v_mul_f32 v{d+r}, v{L_+qt}, v{d+r}")
                a(f"v_cvt_pk_bf16_f32 v{t+2*hf}, v{d}, v{d+1}\nv_cvt_pk_bf16_f32 v{t+2*hf+1}, v{d+2}, v{d+3}")
            a(f"buffer_store_dwordx4 {v(t,4)}, v{VL16}, {WS}, s6 offen offset:{s_*1024} sc1"); a.vm.issue("st")
        if qt == 0: a("s_add_u32 s6, s6, 0x20000")
    a.stamp(12)
    def flag_now():
        a("s_waitcnt vmcnt(0)")
        set_flag(a, "ctx")
    a(f"s_cmp_gt_i32 s{S_N}, s{S_NL}\ns_cbranch_scc1 L_pre")
    bar("vmcnt(8)", flag_now)
    a(f"s_lshl_b32 s6, s{S_W}, 8\ns_add_u32 s6, s6, s2\ns_cmp_eq_u32 s6, {DESIG}\ns_cbranch_scc1 L_top")
    a.label("L_idle")
    a(f"s_sub_i32 s6, s{S_NL}, 5\ns_cmp_gt_i32 s{S_N}, s6\ns_cbranch_scc1 L_pre")
    bar()
    a(f"s_cmp_lt_u32 s{S_E}, 54\ns_cbranch_scc1 L_moe\ns_branch L_idle")
    a.label("L_pre")
    a(f"s_cmp_lt_u32 s{S_W}, 4\ns_cbranch_scc1 L_pre1")
    a.stamp(19)
    a("s_barrier")
    a(f"s_lshl_b32 s7, s76, 13\ns_add_u32 s7, s7, 0x10000\nv_add_u32 v3, s7, v{VL16}\nv_add_u32 v2, 0x10000, v3\ns_lshl_b32 s7, s76, 12\ns_add_u32 s7, s7, 0x10000\nv_add_u32 v12, s7, v{VL16}")
    def wrd(fs):
        for f in fs:
            r, off = (2, f*1024) if f < 8 else (3, (f-8)*1024) if f < 16 else (12, 49152+(f-16)*1024)
            a(f"ds_read_b128 {v(WR+4*f,4)}, v{r} offset:{off}")
    wrd(range(12))
    out_setup(a, 1)
    out_cx(a)
    wrd(range(12, 20))
    NWF = int(os.environ.get("NWF", "1"))
    for i in range(4, 4+NWF): wo_load(a, i)
    a(f"s_waitcnt vmcnt({5*NWF})")
    set_flag(a, "ctx")
    for i in range(4+NWF, 8): wo_load(a, i)
    a("s_waitcnt lgkmcnt(0)\ns_barrier")
    a("s_branch L_adone")
    a.label("L_pre1")
    cnt_addr(a); a(cnt_load(a, 12, 1))
    out_setup(a, 0)
    if "xnt" in ABL:
        a.srd(SRD_A, P_X, 2048*640*2)
        a(f"v_min_u32 v2, 39, v{L}\nv_mul_u32_u24 v3, 52, v2\nv_lshrrev_b32 v3, 8, v3\nv_mul_u32_u24 v4, 5, v3\nv_sub_u32 v2, v2, v4\nv_mul_u32_u24 v3, 1280, v3\nv_lshl_add_u32 v2, v2, 6, v3")
        a(f"s_cmp_lt_u32 s{S_W}, 2\ns_cselect_b32 s6, s{S_OB}, s{S_OL}\ns_lshl_b32 s6, s6, 1\ns_and_b32 s7, s{S_W}, 1\ns_add_u32 s6, s6, s7\ns_mul_i32 s6, s6, 10240\ns_and_b32 s7, s{S_H}, 3\ns_mul_i32 s7, s7, 320\ns_add_u32 s6, s6, s7")
        a(f"buffer_load_dword v{VDUM}, v2, {R(SRD_A)}, s6 offen")
    for j in range(5):
        if j == 1:
            a("v_cmp_gt_u32 vcc, 4, v12\ns_cbranch_vccz L_wok")
            a.label("L_wpoll")
            cnt_addr(a); poll(a, cnt_load(a, 2, 1), "v_cmp_gt_u32 vcc, 4, v2", sleep=8)
            a.label("L_wok")
            a(f"s_mov_b32 s{S_ALL}, 1")
        if j == 3: y_look(a)
        if j == 4: y_try(a)
        PIECES = eval(os.environ.get("PIECES", "((), (0,1,2), (3,4,5), (6,7))"))
        if j < 4:
            for i in PIECES[j]: wo_load(a, i)
        if j == 4:
            ctxf_addr(a, S_OB); a(f"buffer_load_dword v50, v3, {WS}, s72 offen sc1")

        if j == 0: a(f"s_sub_i32 s6, s{S_NL}, 4\ns_cmp_gt_i32 s{S_N}, s6\ns_cbranch_scc1 L_wpoll")
        else: a(f"s_cmp_gt_i32 s{S_N}, s{S_NL}\ns_cbranch_scc1 L_e{j+2}")
        if j < 4:
            a(f"s_cmp_eq_i32 s{S_N}, s{S_NL}\ns_cbranch_scc1 L_lw{j}\ns_waitcnt vmcnt({5*len(PIECES[j])})")
            a.label(f"L_lw{j}")
        bar(f"vmcnt({20 if 'nocode2' in ABL else 21})")
        a.label(f"L_e{j+2}")
    a.stamp(22)
    moe_finish(a)
    out_cx(a)
    a("s_waitcnt vmcnt(0)\nv_cmp_ne_u32 vcc, 1, v50\ns_cbranch_vccz L_ce")
    ctxf_addr(a, S_OB)
    poll(a, f"buffer_load_dword v2, v3, {WS}, s72 offen sc1", "v_cmp_ne_u32 vcc, 1, v2", sleep=4)
    a.label("L_ce")
    for r in range(NPC):
        for x in ctx_dma(r) + ctx_dma(r, 16384): a(x)
    y_is(a, "L_yg")
    set_flag(a, "b")
    a("s_waitcnt vmcnt(1)\ns_branch L_ye")
    a.label("L_yg")
    a("s_waitcnt vmcnt(0)")
    a.label("L_ye")
    a.stamp(23)
    a("s_setprio 0")
    a.stamp(19)
    a("s_barrier")
    for r in range(NPC, 2):
        for x in ctx_dma(r) + ctx_dma(r, 16384): a(x)
    a.stamp(15)
    a("s_branch L_adone")
    y_loads(a)
    moe_steps(a, bar)
    top8(a, bar)
    for h in handlers:
        if h[0] == "ld":
            a.label(h[1] + "_c"); a(f"s_waitcnt vmcnt(0) lgkmcnt(0)\ns_call_b64 s[82:83], L_pend\ns_barrier\ns_call_b64 s[82:83], L_load\ns_branch {h[1]}")
        else:
            _, bk, k, loop, full, back = h
            a.label(bk + "_h")
            a(f"v_cmp_ne_u32 vcc, 0, v{ET+4}\ns_cbranch_vccz {bk}_n\ns_call_b64 s[80:81], L_rare{1-(k&1)}")
            if full:
                o = sm_ops(k & 1)[:2]
                a(o[0][0]); a(o[1][0])
            a.label(bk + "_n")
            if loop:
                a(f"s_cmp_lt_i32 s{S_C}, 0\ns_cbranch_scc1 L_tail{(k+1)&3}\ns_cmp_gt_i32 s{S_C}, 0\ns_cbranch_scc1 {back}\ns_call_b64 s[82:83], L_mask")
            a(f"s_branch {back}")
    a.label("L_load")
    a(f"s_bitcmp1_b32 s{S_HK}, 0\ns_cbranch_scc0 L_load_r")
    a(f"s_add_u32 s77, s77, 32768\ns_xor_b32 s78, s78, 0x10000\ns_add_i32 s73, s{S_N}, 1\ns_cmp_gt_i32 s73, s{S_NL}\ns_cbranch_scc1 L_load_r")
    if "at_nodma" not in ABL:
        a(f"s_cmp_eq_i32 s73, s{S_NL}\ns_cbranch_scc1 L_load_v\ns_cmp_lg_i32 s73, 3\ns_cbranch_scc1 L_load_k")
        a("v_cmp_gt_u32 vcc, 2, v12\ns_cbranch_vccz L_load_k")
        kv_flag_wait(a, 2)
        a.label("L_load_k")
        st_dma(a, ["K", "V1"])
        a.label("L_load_v")
        st_dma(a, ["V0"])
    a(f"s_cmp_eq_i32 s73, s{S_NL}\ns_cbranch_scc1 L_xa\ns_cmp_lg_i32 s73, 2\ns_cbranch_scc1 L_nolook")
    kvf_addr(a); a(f"buffer_load_dword v12, v3, {WS}, s7 offen sc1")
    a.label("L_nolook")
    a(f"s_bitcmp1_b32 {WOTM}, s{S_P}\ns_cbranch_scc0 L_wb\ns_sub_i32 s6, s{S_N}, {WOTN}\ns_cmp_gt_u32 s6, 4\ns_cbranch_scc0 L_wsel")
    a.label("L_wb")
    a(f"s_cmp_lt_u32 s{S_P}, 4\ns_cbranch_scc1 L_load_r")
    a(f"s_sub_i32 s79, s73, 1\ns_cmp_lt_u32 s79, 2\ns_cbranch_scc1 L_x3")
    a.label("L_load_r")
    a("s_setpc_b64 s[82:83]")
    a.label("L_pend")
    a(f"s_bitcmp1_b32 s{S_HK}, 1\ns_cbranch_scc0 L_load_a\ns_cmp_lt_i32 s{S_N}, 0\ns_cbranch_scc1 L_load_a")
    set_flag(a, "kv", 2)
    a(f"s_and_b32 s{S_HK}, s{S_HK}, 1")
    a.label("L_load_a")
    a("s_setpc_b64 s[82:83]")
    def wo_dma(fs, m0base, m0off):
        for i, f in enumerate(fs):
            a(f"s_add_u32 m0, {m0base}, {m0off + i*1024}\ns_add_u32 s7, s{84 + f%5}, {(f//5)*40960}\nbuffer_load_dwordx4 v{VL16}, {WS}, s7 offen sc1 lds")
    WOTR = [172, 176, 180, 184, 188]
    a.label("L_wsel")
    a(f"s_bfm_b32 s7, s{S_P}, 0\ns_and_b32 s7, s7, {WOTM}\ns_bcnt1_i32_b32 s7, s7\ns_lshl_b32 s7, s7, 5\ns_and_b32 s91, s2, 31\ns_add_u32 s91, s91, s7\ns_lshl_b32 s91, s91, 1\ns_lshr_b32 s7, s6, 1\ns_add_u32 s91, s91, s7\ns_cmp_eq_u32 s6, 4\ns_cbranch_scc1 L_w2\ns_bitcmp1_b32 s6, 0\ns_cbranch_scc1 L_w1")
    a.label("L_w0")
    a.srd(SRD_E, P_WO, 4096*640*2)
    a(f"s_lshr_b32 s75, s91, 1\ns_mul_i32 s75, s75, {32*1280}\ns_and_b32 s6, s91, 1\ns_mul_i32 s6, s6, 640\ns_add_u32 s75, s75, s6\ns_movk_i32 s7, 1639")
    a(f"s_mul_i32 s74, s76, 5120\ns_add_u32 s74, s74, {LDS_WOT}\ns_mul_i32 s6, s76, 320\nv_add_u32 v9, s6, v{L}")
    for n in range(5):
        a(f"v_add_u32 v2, {n*64}, v9\nv_mul_lo_u32 v3, v2, s7\nv_lshrrev_b32 v3, 16, v3\nv_mul_u32_u24 v4, 40, v3\nv_sub_u32 v4, v2, v4")
        a(f"v_mul_u32_u24 v3, 1280, v3\nv_lshl_add_u32 v3, v4, 4, v3\ns_add_u32 m0, s74, {n*1024}\ns_nop 0")
        a(f"buffer_load_dwordx4 v3, {R(SRD_E)}, s75 offen{NT} lds")
    a("s_branch L_wb")
    a.label("L_w1")
    a(f"v_and_b32 v2, 15, v{L}\nv_lshrrev_b32 v3, 4, v{L}\nv_lshrrev_b32 v4, 2, v2\nv_lshl_add_u32 v4, v3, 2, v4\nv_mul_u32_u24 v4, 640, v4")
    a(f"v_and_b32 v2, 3, v2\nv_lshl_add_u32 v4, v2, 3, v4\ns_mul_i32 s6, s76, 160\ns_add_u32 s6, s6, {LDS_WOT}\nv_add_u32 v4, s6, v4")
    a(f"s_mul_i32 s6, s91, 20480\ns_mul_i32 s7, s76, 5120\ns_add_u32 s6, s6, s7\ns_add_u32 s6, s6, {WS_WOF}\ns_add_u32 s7, s6, 4096")
    for n in range(5):
        d = WOTR[n]
        a(f"ds_read_b64_tr_b16 v[{d}:{d+1}], v4 offset:{n*32}\nds_read_b64_tr_b16 v[{d+2}:{d+3}], v4 offset:{n*32+10240}")
    a("s_waitcnt lgkmcnt(0)")
    for n in range(5):
        a(f"buffer_store_dwordx4 {v(WOTR[n],4)}, v{VL16}, {WS}, s{6 if n<4 else 7} offen offset:{(n&3)*1024} sc1")
    a("s_branch L_wb")
    a.label("L_w2")
    a(f"s_cmp_lg_u32 s{S_W}, 0\ns_cbranch_scc1 L_wb")
    count_atomic(a, 1)
    a("s_branch L_wb")
    a.label("L_xa")
    a(f"s_cmp_lg_u32 s{S_ALL}, 0\ns_cbranch_scc1 L_xa1")
    cnt_addr(a); poll(a, cnt_load(a, 2, 1), "v_cmp_gt_u32 vcc, 4, v2", sleep=8)
    a.label("L_xa1")
    if "nocode2" not in ABL:
        a("s_getpc_b64 s[80:81]")
        a.label("L_pc2")
        a(f"s_sub_u32 s80, s80, L_pc2-L_fin\ns_subb_u32 s81, s81, 0\ns_and_b32 s6, s{S_H}, 1\ns_lshl_b32 s6, s6, 14\nv_lshl_add_u32 v3, v0, 6, s6")
        a(f"v_min_u32 v3, L_exit-L_fin, v3\nglobal_load_dword v{VDUM}, v3, s[80:81]")
    if "xt" in ABL:
        a.srd(SRD_A, P_X, 2048*640*2)
        a(f"v_lshrrev_b32 v2, 2, v{L}\nv_mul_u32_u24 v2, 1280, v2\nv_and_b32 v3, 3, v{L}\nv_lshl_add_u32 v2, v3, 6, v2")
        a(f"s_lshl_b32 s6, s{S_H}, 2\ns_add_u32 s6, s6, s{S_W}\ns_mul_i32 s73, s6, 20480\ns_mul_i32 s7, s{S_P}, 160\ns_andn2_b32 s7, s7, 63\ns_add_u32 s7, s7, s73")
        a(f"buffer_load_dword v{VDUM}, v2, {R(SRD_A)}, s7 offen\nv_min_u32 v2, 39, v{L}\nv_lshlrev_b32 v2, 6, v2\ns_mul_i32 s7, s{S_P}, 2560\ns_add_u32 s7, s7, s73")
        a(f"buffer_load_dword v{VDUM}, v2, {WS}, s7 offen sc1")
    wo_base(a, 74, 1)
    for m in range(4): a(f"s_add_u32 s6, s76, {m}\ns_and_b32 s6, s6, 3\ns_lshl_b32 s6, s6, 10\ns_add_u32 s{84+m}, s6, s74")
    a("s_add_u32 s88, s74, 4096")
    a(f"s_lshl_b32 s73, s{S_W}, 13\ns_add_u32 s75, s73, s78")
    wo_dma(range(8), "s73", LDS_SP); wo_dma(range(8, 16), "s75", 0)
    a(f"s_lshl_b32 s75, s{S_W}, 12\ns_add_u32 s75, s75, s78")
    wo_dma(range(16, 20), "s75", 49152)
    a("s_setpc_b64 s[82:83]")
    a.label("L_x3")
    if "nomoetouch" not in ABL:
        a.srd(SRD_A, P_WG, 640*1728*2)
        a(f"s_cmp_eq_u32 s{S_W}, 3\ns_cbranch_scc1 L_load_r")
        a(f"s_cmp_eq_u32 s{S_W}, 1\ns_cselect_b32 s{SRD_A}, s{P_WU}, s{SRD_A}\ns_cselect_b32 s{SRD_A+1}, s{P_WU+1}, s{SRD_A+1}")
        a(f"s_cmp_eq_u32 s{S_W}, 2\ns_cselect_b32 s{SRD_A}, s{P_WD}, s{SRD_A}\ns_cselect_b32 s{SRD_A+1}, s{P_WD+1}, s{SRD_A+1}")
        a(f"s_mov_b32 s73, 3456\ns_cmov_b32 s73, 256\ns_mov_b32 s75, 256\ns_cmov_b32 s75, {4*40960}")
        a(f"s_lshr_b32 s6, s2, 3\ns_sub_u32 s6, s6, 16\ns_mul_i32 s6, s6, 40\nv_lshrrev_b32 v2, 2, v{L}\nv_add_u32 v2, s6, v2\nv_mul_lo_u32 v2, v2, s73\nv_and_b32 v3, 3, v{L}\nv_lshl_add_u32 v2, v3, 6, v2")
        a(f"s_xor_b32 s79, s79, 1\ns_lshl_b32 s6, s79, 3\ns_lshr_b32 s7, s{S_H}, 2\ns_add_u32 s6, s6, s7\ns_mul_i32 s6, s6, s75")
        a(f"v_mov_b32 v3, {hex(WS_SIZE)}\nv_cmp_gt_u32 vcc, 32, v{L}\ns_lshl_b32 s73, s73, 4\ns_nop 0\nv_cndmask_b32 v3, v3, v2, vcc")
        a(f"buffer_load_dword v{VDUM}, v2, {R(SRD_A)}, s6 offen\ns_add_u32 s7, s6, s73\nbuffer_load_dword v{VDUM}, v2, {R(SRD_A)}, s7 offen")
        a(f"s_add_u32 s7, s7, s73\nbuffer_load_dword v{VDUM}, v3, {R(SRD_A)}, s7 offen")
    a("s_setpc_b64 s[82:83]")
    a.label("L_mask")
    a(f"v_and_b32 v2, 15, v{L}\nv_lshrrev_b32 v3, 4, v{L}\nv_lshlrev_b32 v3, 2, v3\nv_sub_u32 v2, v2, v3\nv_mov_b32 v3, 0xff800000")
    for r in range(4):
        a(f"v_cmp_gt_i32 vcc, {r}, v2\nv_mov_b32 v{NMreg(1,0)+r}, v3\ns_nop 0")
        a(f"v_cndmask_b32 v{NMreg(0,0)+r}, v{NMreg(0,0)+r}, v3, vcc\nv_cndmask_b32 v{NMreg(1,1)+r}, v{NMreg(1,1)+r}, v3, vcc")
    a("s_nop 1\ns_setpc_b64 s[82:83]")
    for par in range(2):
        a.label(f"L_rare{par}")
        a("s_nop 15")
        for qt in range(2):
            m = ET + 4
            s0, s1 = Sreg(par, 0, qt), Sreg(par, 1, qt)
            a(f"v_max_f32 v{m}, v{s0}, v{s0+1}\nv_max3_f32 v{m}, v{m}, v{s0+2}, v{s0+3}\nv_max3_f32 v{m}, v{m}, v{s1}, v{s1+1}\nv_max3_f32 v{m}, v{m}, v{s1+2}, v{s1+3}")
            xlane(a, "v_max_f32", m, ET)
            a(f"v_add_f32 v{m}, {hex(OFFS)}, v{m}\nv_max_f32 v{m}, 0, v{m}")
            a(f"v_exp_f32 v{ET}, -v{m}")
            for kt in range(2):
                for r in range(4):
                    for reg in (Sreg(0,kt,qt), Sreg(1,kt,qt), NMreg(kt,qt)):
                        a(f"v_sub_f32 v{reg+r}, v{reg+r}, v{m}")
            for r in range(2): a(f"v_mul_f32 v{LA+2*qt+r}, v{ET}, v{LA+2*qt+r}")
            for t in range(8):
                for r in range(4): a(f"v_mul_f32 v{Oreg(t,qt)+r}, v{ET}, v{Oreg(t,qt)+r}")
        for e, rest in sm_ops(par):
            a(e); a("s_nop 0")
            for x in rest: a(x)
        a("s_nop 1\ns_setpc_b64 s[80:81]")
    a.label("L_adone")
    a.stamp(13)

def top8(a, bar):
    K = 64
    a.label("L_top")
    a(f"s_mov_b32 s6, {hex(WS_R)}\nv_lshrrev_b32 v2, 1, v{L}\nv_and_b32 v3, 1, v{L}\nv_lshlrev_b32 v3, 4, v3\nv_lshl_add_u32 v2, v2, 7, v3")
    for i in range(8): a(f"buffer_load_dwordx4 {v(K+4*i,4)}, v2, {WS}, s6 offen sc1\ns_add_u32 s6, s6, 4096")
    a("s_waitcnt vmcnt(0)\nv_mov_b32 v24, 0\ns_mov_b32 s7, 0\ns_mov_b32 s84, 0")
    a.label("L_top_l")
    a(f"v_max3_u32 v4, v{K}, v{K+1}, v{K+2}\nv_max3_u32 v5, v{K+3}, v{K+4}, v{K+5}")
    for i in range(6, 30, 4): a(f"v_max3_u32 v4, v4, v{K+i}, v{K+i+1}\nv_max3_u32 v5, v5, v{K+i+2}, v{K+i+3}")
    a(f"v_max3_u32 v4, v4, v{K+30}, v{K+31}\nv_max_u32 v4, v4, v5")
    a.wave_reduce("v_max_u32", 4)
    a("v_readlane_b32 s6, v4, 63\ns_mov_b32 m0, s7\ns_nop 3\ns_add_u32 s84, s84, s6\nv_writelane_b32 v24, s84, m0")
    for i in range(32): a(f"v_subrev_u32 v{K+i}, s6, v{K+i}")
    a("s_add_u32 s7, s7, 1\ns_cmp_lt_u32 s7, 8\ns_cbranch_scc1 L_top_l")
    a(f"v_and_b32 v2, 7, v{L}\nv_lshlrev_b32 v2, 2, v2\nds_bpermute_b32 v4, v2, v24\ns_waitcnt lgkmcnt(0)\nv_and_b32 v4, 0x7ff, v4\nv_sub_u32 v4, 0x7ff, v4")
    a(f"v_lshrrev_b32 v5, 4, v4\nv_mul_u32_u24 v5, 20480, v5\nv_and_b32 v4, 15, v4\nv_lshl_add_u32 v5, v4, 4, v5\nv_lshrrev_b32 v7, 4, v{L}\nv_lshl_add_u32 v5, v7, 8, v5")
    a(f"v_mov_b32 v6, {hex(WS_SIZE)}\nv_and_b32 v2, 8, v{L}\nv_cmp_eq_u32 vcc, 0, v2\ns_mov_b32 s6, 0\ns_nop 0\nv_cndmask_b32 v5, v6, v5, vcc")
    for k in range(20):
        if k and k % 4 == 0: a("s_add_u32 s6, s6, 4096")
        a(f"buffer_load_dwordx4 {v(K+4*k,4)}, v5, {WS}, s6 offen offset:{(k&3)*1024} sc1")
    def put():
        a(f"s_waitcnt vmcnt(0)\ns_mov_b32 s6, {hex(WS_XS)}")
        for k in range(20):
            if k and k % 4 == 0: a("s_add_u32 s6, s6, 4096")
            a(f"buffer_store_dwordx4 {v(K+4*k,4)}, v{VL16}, {WS}, s6 offen offset:{(k&3)*1024} sc1")
    bar("vmcnt(20)", put)
    a("s_waitcnt vmcnt(16)")
    a(f"v_or_b32 v24, 0x80000000, v24\nv_lshlrev_b32 v5, 2, v{L}\nv_mov_b32 v6, {hex(WS_SIZE)}\nv_cmp_gt_u32 vcc, 8, v{L}\ns_mov_b32 s6, {hex(WS_IDX)}\ns_nop 0\nv_cndmask_b32 v5, v6, v5, vcc")
    a(f"buffer_store_dword v24, v5, {WS}, s6 offen sc1\ns_branch L_idle")

OACC = 176
M_WD, M_PART = 81920, 122880
VIDX = 51
def idx_addr(a):
    a(f"v_and_b32 v3, 7, v{L}\nv_lshlrev_b32 v3, 2, v3\ns_mov_b32 s72, {hex(WS_IDX)}")
def ctxf_addr(a, own, both=True):
    a(f"v_and_b32 v3, 1, v{L}\nv_lshlrev_b32 v3, 12, v3")
    if both: a(f"v_and_b32 v2, 2, v{L}\nv_lshl_add_u32 v3, v2, 8, v3")
    a(f"s_lshr_b32 s72, s{own}, 2\ns_lshl_b32 s72, s72, 6\ns_andn2_b32 s6, s{S_H}, 7\ns_add_u32 s72, s72, s6\ns_add_u32 s72, s72, s{S_W}\ns_lshl_b32 s72, s72, 7\ns_add_u32 s72, s72, {WS_CTXF}")
def idx_poll(a, sfx, wait="s_waitcnt vmcnt(40)"):
    a(wait)
    a(f"v_cmp_le_i32 vcc, 0, v{VIDX}\ns_cbranch_vccz L_idx_ok{sfx}")
    idx_addr(a)
    poll(a, f"buffer_load_dword v{VIDX}, v3, {WS}, s72 offen sc1", f"v_cmp_le_i32 vcc, 0, v{VIDX}")
    a.label(f"L_idx_ok{sfx}")

def moe_steps(a, bar):
    XS, FRG, GA, WDR, WD2, PR, YO = 64, 104, 24, 32, 240, 184, 216
    VG, VT, VD, VTD, VY, VXS = 16, 17, 18, 19, 20, 21
    S_G, S_WIN, S_D = 84, 85, 86
    a.label("L_moe")
    a(f"s_sub_u32 s6, s{S_N}, s{S_P}\ns_cmp_lg_u32 s6, 3\ns_cbranch_scc1 L_idle")
    def srds():
        a.srd(SRD_A, P_WG, 640*1728*2)
        a(f"s_cmp_ge_u32 s{S_W}, 2\ns_cselect_b32 s{SRD_A}, s{P_WU}, s{SRD_A}\ns_cselect_b32 s{SRD_A+1}, s{P_WU+1}, s{SRD_A+1}")
        a.srd(SRD_B, P_WD, 1728*640*2)
    def dma_g(nk):
        for n in range(2*nk):
            a(f"s_add_u32 m0, s{S_WIN}, {n*1024}\ns_nop 0\nbuffer_load_dwordx4 v{VG}, {R(SRD_A)}, s{S_G} offen lds\ns_add_u32 s{S_G}, s{S_G}, {16*3456}")
    def dma_d():
        for n in range(4):
            a(f"s_add_u32 m0, s{S_WIN}, {4096+n*1024}\ns_add_u32 s6, s{S_D}, {n*8*1280}\nbuffer_load_dwordx4 v{VD}, {R(SRD_B)}, s6 offen lds")
        a(f"s_add_u32 s{S_D}, s{S_D}, 512")
    def rd_g(k0, nk):
        for k in range(nk):
            for ft in range(2):
                d = FRG + ((k0+k)*2+ft)*4
                a(f"ds_read_b64_tr_b16 {v(d,2)}, v{VT} offset:{k*2048+ft*32}\nds_read_b64_tr_b16 {v(d+2,2)}, v{VT} offset:{k*2048+ft*32+256}")
            if k == 1: a("s_waitcnt lgkmcnt(0)")
    def xs(k0, nk):
        for k in range(k0, k0+nk): a(f"buffer_load_dwordx4 {v(XS+4*k,4)}, v{VL16}, {WS}, s88 offen sc1\ns_add_u32 s88, s88, 1024")
    def rd_d(base):
        for m in range(4):
            a(f"ds_read_b64_tr_b16 {v(base+4*m,2)}, v{VTD} offset:{m*32}\nds_read_b64_tr_b16 {v(base+2+4*m,2)}, v{VTD} offset:{m*32+16*128}")
    def down(base, goff):
        for m in range(4): a.mfma(YO+4*m, base+4*m, GA, "0")
        a("s_nop 7")
        for m in range(4): a(f"buffer_store_dwordx4 {v(YO+4*m,4)}, v{VY}, {WS}, s87 offen offset:{goff*1024+m*64} sc1")
        a("s_nop 1")
    srds()
    a(f"v_lshrrev_b32 v3, 2, v{L}\nv_mul_u32_u24 v3, 3456, v3\nv_and_b32 v4, 3, v{L}\nv_lshl_add_u32 v{VG}, v4, 4, v3")
    a(f"v_lshrrev_b32 v3, 3, v{L}\nv_mul_u32_u24 v3, 1280, v3\nv_and_b32 v4, 7, v{L}\nv_lshl_add_u32 v{VD}, v4, 4, v3")
    a(f"s_and_b32 s7, s{S_W}, 1\ns_mul_i32 s{S_G}, s7, {320*3456}\ns_lshl_b32 s6, s{S_E}, 6\ns_add_u32 s{S_G}, s{S_G}, s6")
    a(f"s_lshl_b32 s{S_WIN}, s{S_W}, 13\ns_add_u32 s{S_WIN}, s{S_WIN}, {LDS_SP}")
    a(f"s_mul_i32 s{S_D}, s{S_E}, 40960\ns_lshl_b32 s6, s{S_W}, 7\ns_add_u32 s{S_D}, s{S_D}, s6")
    dma_g(4)
    a(f"v_lshrrev_b32 v7, 4, v{L}\nv_and_b32 v2, 15, v{L}\nv_lshrrev_b32 v3, 2, v2\nv_lshl_add_u32 v8, v7, 3, v3\nv_lshlrev_b32 v8, 6, v8\nv_and_b32 v4, 3, v2\nv_lshl_add_u32 v8, v4, 3, v8\nv_add_u32 v{VT}, s{S_WIN}, v8")
    a(f"v_lshl_add_u32 v8, v7, 2, v3\nv_lshlrev_b32 v8, 7, v8\nv_lshl_add_u32 v8, v4, 3, v8\ns_add_u32 s6, s{S_WIN}, 4096\nv_add_u32 v{VTD}, s6, v8")
    a(f"v_mul_u32_u24 v3, 2560, v2\nv_lshl_add_u32 v3, v7, 4, v3\nv_mov_b32 v4, {hex(WS_SIZE)}\nv_cmp_gt_u32 vcc, 8, v2")
    a(f"s_mul_i32 s87, s{S_E}, 20480\ns_lshl_b32 s7, s{S_W}, 8\ns_add_u32 s87, s87, s7\ns_add_u32 s87, s87, {WS_YP}\nv_cndmask_b32 v{VY}, v4, v3, vcc")
    a(f"s_and_b32 s7, s{S_W}, 1\ns_mul_i32 s88, s7, 10240\ns_add_u32 s88, s88, {WS_XS}")
    W0 = "vmcnt(0) lgkmcnt(0)"
    def m1():
        rd_g(0, 4); a("s_waitcnt lgkmcnt(0)"); dma_g(4)
    bar(W0, m1)
    idx_addr(a); a(f"buffer_load_dword v{VIDX}, v3, {WS}, s72 offen sc1")
    def m2():
        rd_g(4, 4); a("s_waitcnt lgkmcnt(0)"); dma_g(2); dma_d()
    bar(W0, m2)
    idx_poll(a, "m", "")
    xs(0, 10)
    def m3():
        rd_g(8, 2); rd_d(WDR); a("s_waitcnt lgkmcnt(0)"); dma_d()
    bar("vmcnt(10) lgkmcnt(0)", m3)
    a("s_waitcnt vmcnt(20)")
    for k in range(10):
        for ft in range(2): a.mfma(GA+4*ft, FRG+(k*2+ft)*4, XS+4*k, "0" if k == 0 else None)
    a(f"v_add_u32 v10, s{S_WIN}, v{VL16}\ns_nop 7\nds_write_b128 v10, {v(GA,4)}\nds_write_b128 v10, {v(GA+4,4)} offset:1024")
    def m4():
        rd_d(WD2)
        a(f"v_add_u32 v10, {LDS_SP}, v{VL16}\ns_waitcnt lgkmcnt(0)")
        for w in range(4):
            for ft in range(2): a(f"ds_read_b128 {v(PR+(w*2+ft)*4,4)}, v10 offset:{w*8192+ft*1024}")
        a(f"s_cmp_ge_u32 s{S_W}, 2\ns_cbranch_scc1 L_moe4b")
        dma_d()
        a.label("L_moe4b")
    bar(W0, m4)
    a("s_waitcnt lgkmcnt(0)")
    a("s_mov_b32 s6, 0xbfb8aa3b")
    def rnd2(r): a(f"v_cvt_pk_bf16_f32 v{r+1}, v{r}, v{r+1}\nv_lshlrev_b32 v{r}, 16, v{r+1}\nv_and_b32 v{r+1}, 0xffff0000, v{r+1}")
    for i in range(0, 8, 2):
        g0, u0 = PR + i, PR + 16 + i
        for q in range(2): a(f"v_add_f32 v{g0+q}, v{g0+q}, v{g0+8+q}\nv_add_f32 v{u0+q}, v{u0+q}, v{u0+8+q}")
        rnd2(g0); rnd2(u0)
        a(f"v_mul_f32 v2, s6, v{g0}\nv_mul_f32 v3, s6, v{g0+1}\nv_exp_f32 v2, v2\nv_exp_f32 v3, v3\nv_add_f32 v2, 1.0, v2\nv_add_f32 v3, 1.0, v3".replace("v_exp_f32 v3, v3\n", "v_exp_f32 v3, v3\ns_nop 0\n"))
        a(f"v_rcp_f32 v2, v2\nv_rcp_f32 v3, v3\ns_nop 0\nv_mul_f32 v{g0}, v{g0}, v2\nv_mul_f32 v{g0+1}, v{g0+1}, v3")
        rnd2(g0)
        a(f"v_mul_f32 v{g0}, v{g0}, v{u0}\nv_mul_f32 v{g0+1}, v{g0+1}, v{u0+1}\nv_cvt_pk_bf16_f32 v{GA+i//2}, v{g0}, v{g0+1}")
    a("s_nop 1")
    down(WDR, 0)
    bar("vmcnt(4) lgkmcnt(0)")
    down(WD2, 1)
    a(f"s_cmp_ge_u32 s{S_W}, 2\ns_cbranch_scc1 L_moe5b")
    rd_d(WDR); a("s_waitcnt lgkmcnt(0)"); down(WDR, 2)
    a.label("L_moe5b")
    bar("vmcnt(4) lgkmcnt(0)", lambda: (a("s_waitcnt vmcnt(0)"), set_flag(a, "moe")))
    a("s_branch L_idle")

YS = [16+4*i for i in range(7)] + [56+4*i for i in range(10)] + [4]
def y_is(a, skip): a(f"s_lshr_b32 s7, s{S_W}, 1\ns_lshl_b32 s7, s7, 4\ns_add_u32 s6, s{S_P}, s7\ns_cmp_lg_u32 s6, {YP}\ns_cbranch_scc1 {skip}")
def y_faddr(a): a(f"v_min_u32 v3, 53, v{L}\nv_lshlrev_b32 v3, 7, v3\ns_mov_b32 s72, {hex(WS_MOEF)}")
Y_LD = f"buffer_load_dwordx4 v[16:19], v3, {WS}, s72 offen sc1"
Y_CMP = "\n".join([f"v_and_b32 v16, v16, v{16+r}" for r in (1, 2, 3)]) + "\nv_cmp_ne_u32 vcc, 1, v16"
def y_look(a):
    y_is(a, "L_yl0"); y_faddr(a); a(Y_LD); a.label("L_yl0")
def y_try(a):
    a("s_mov_b32 s101, 0")
    y_is(a, "L_yl1"); a(Y_CMP); a("s_cbranch_vccnz L_yl1\ns_call_b64 s[80:81], L_yld"); a.label("L_yl1")
def y_loads(a):
    XR = 54
    a.label("L_yld")
    idx_poll(a, "a", "")
    a(f"s_lshr_b32 s96, s{S_H}, 2\ns_and_b32 s97, s{S_H}, 3\ns_lshl_b32 s97, s97, 1\ns_add_u32 s97, s97, s{S_W}")
    a(f"s_mov_b32 m0, s96\ns_nop 3\nv_readlane_b32 s98, v{VIDX}, m0\ns_nop 3\ns_and_b32 s100, s98, 0x7ff\ns_sub_u32 s100, 0x7ff, s100")
    a(f"v_mul_u32_u24 v2, 13, v{L}\nv_lshrrev_b32 v2, 8, v2\nv_mul_u32_u24 v3, 20, v2\nv_sub_u32 v8, v{L}, v3")
    a(f"s_mov_b32 s6, {18*20480}\nv_mul_lo_u32 v2, v2, s6\nv_lshl_add_u32 v2, v8, 4, v2")
    a(f"v_cmp_lt_u32 vcc, 59, v{L}\nv_mov_b32 v3, {hex(WS_SIZE)}\ns_nop 0\nv_cndmask_b32 v2, v2, v3, vcc")
    a(f"s_mul_i32 s6, s96, 2560\ns_mul_i32 s7, s97, 320\ns_add_u32 s6, s6, s7\ns_add_u32 s6, s6, {WS_YP}")
    for e in range(18):
        a(f"buffer_load_dwordx4 {v(YS[e],4)}, v2, {WS}, s6 offen sc1\ns_add_u32 s6, s6, 20480")
    a(f"s_lshr_b32 s6, s100, 4\ns_mul_i32 s6, s6, 20480\ns_and_b32 s7, s100, 15\ns_lshl_b32 s7, s7, 4\ns_add_u32 s6, s6, s7\ns_mul_i32 s7, s97, 2560\ns_add_u32 s6, s6, s7")
    a(f"v_lshrrev_b32 v9, 1, v8\nv_lshlrev_b32 v9, 8, v9\nv_and_b32 v10, 1, v8\nv_lshl_add_u32 v9, v10, 3, v9\nbuffer_load_dwordx2 {v(XR,2)}, v9, {WS}, s6 offen sc1")
    a("s_mov_b32 s101, 1\ns_setpc_b64 s[80:81]")

def moe_finish(a):
    Y, XR = YS[0], 54
    y_is(a, "L_yd")
    a("s_cmp_lg_u32 s101, 0\ns_cbranch_scc1 L_yf")
    y_faddr(a)
    poll(a, Y_LD, Y_CMP, sleep=16)
    a("s_call_b64 s[80:81], L_yld")
    a.label("L_yf")
    a("s_bfe_u32 s6, s98, 0x10000b\ns_xor_b32 s7, s6, 0xffff\ns_bitcmp1_b32 s6, 15\ns_bitset0_b32 s6, 15\ns_cselect_b32 s6, s6, s7\ns_lshl_b32 s6, s6, 16\nv_mov_b32 v9, s6")
    a("v_mul_f32 v9, 0xbfb8aa3b, v9\nv_exp_f32 v9, v9\ns_nop 0\nv_add_f32 v9, 1.0, v9\nv_rcp_f32 v9, v9\ns_nop 0")
    bf16_round(a, 9)
    a(f"v_lshlrev_b32 v10, 2, v{L}\nv_mov_b32 v3, {hex(WS_SIZE)}\ns_waitcnt vmcnt(0)")
    for e in range(1, 18):
        a(f"v_pk_add_f32 {v(Y,2)}, {v(Y,2)}, {v(YS[e],2)}\nv_pk_add_f32 {v(Y+2,2)}, {v(Y+2,2)}, {v(YS[e]+2,2)}")
    for k in range(2):
        for r in range(4): a(f"ds_bpermute_b32 v{Y+4+4*k+r}, v10, v{Y+r} offset:{80*(k+1)}")
    a("s_waitcnt lgkmcnt(0)")
    for r in range(4):
        y = Y + r
        a(f"v_add_f32 v{y}, v{y}, v{y+4}\nv_add_f32 v{y}, v{y}, v{y+8}")
        bf16_round(a, y)
        a(f"v_mul_f32 v{y}, v{y}, v9")
        bf16_round(a, y)
        xn = XR + (r >> 1)
        a(f"v_and_b32 v8, 0xffff0000, v{xn}" if r & 1 else f"v_lshlrev_b32 v8, 16, v{xn}")
        a(f"v_add_f32 v{y}, v{y}, v8")
    a(f"v_cvt_pk_bf16_f32 v{Y+4}, v{Y}, v{Y+1}\nv_cvt_pk_bf16_f32 v{Y+5}, v{Y+2}, v{Y+3}")
    a(f"v_lshlrev_b32 v2, 3, v{L}\nv_cmp_lt_u32 vcc, 19, v{L}\ns_mul_i32 s6, s96, 1280\ns_mul_i32 s7, s97, 160\nv_cndmask_b32 v2, v2, v3, vcc\ns_add_u32 s6, s6, s7\ns_add_u32 s6, s6, {WS_BSEL}")
    a(f"buffer_store_dwordx2 {v(Y+4,2)}, v2, {WS}, s6 offen sc1")
    a.label("L_yd")

WR, OA, CR, RT = 96, 56, 16, 32
S_OW, S_OB, S_CX, S_OL = 69, 68, 66, 61
VWO4 = 52
LDS_P, LDS_F = 98304, 65536
def wo_base(a, d, nh):
    a(f"s_lshr_b32 s{d}, s{S_H}, 3\ns_lshl_b32 s{d}, s{d}, 2\ns_add_u32 s{d}, s{d}, s76\ns_mul_i32 s{d}, s{d}, {8*40960}\ns_and_b32 s7, s{S_H}, 3\ns_mul_i32 s7, s7, 10240\ns_add_u32 s{d}, s{d}, s7\ns_add_u32 s{d}, s{d}, {WS_WOF + nh*5120}")

XNA = 48
S_TOK, S_XI, S_XFI, VXF = 64, 62, 63, 11
XFG = int(os.environ.get("XFG", "12"))
VWM = 44
def wo_voffs(a, r0, r4=None):
    for m in range(4): a(f"s_add_u32 s6, s76, {m}\ns_and_b32 s6, s6, 3\ns_lshl_b32 s6, s6, 10\nv_add_u32 v{r0+m}, s6, v{VL16}")
    a(f"v_add_u32 v{r0+4 if r4 is None else r4}, 4096, v{VL16}")
def wm(m): return VWM + m if m < 4 else VWO4
def wo_load(a, i):
    a(f"s_add_u32 s75, s{S_OW}, {i*40960}")
    for m in range(5): a(f"buffer_load_dwordx4 {v(WR+4*(5*i+m),4)}, v{wm(m)}, {WS}, s75 offen sc1")

def out_setup(a, nh):
    if nh == 0:
        idx_addr(a); a(f"buffer_load_dword v{VIDX}, v3, {WS}, s72 offen sc1")
    wo_voffs(a, VWM, VWO4)
    wo_base(a, S_OW, nh)
    a(f"s_and_b32 s6, s{S_H}, 4\ns_lshr_b32 s7, s{S_H}, 3\ns_add_u32 s6, s6, s7\ns_lshl_b32 s7, s{S_P}, 3\ns_add_u32 s{S_OB}, s6, s7\ns_sub_u32 s7, 120, s7\ns_add_u32 s{S_OL}, s6, s7")

VCA, VT, VPR = 4, 5, 6
S_RED = 71
S_PB, S_XS = 67, 96
def out_cx(a):
    a(f"s_lshr_b32 s6, s{S_H}, 3\ns_lshl_b32 s6, s6, 15\ns_lshl_b32 s99, s{S_W}, 12\ns_add_u32 s{S_CX}, s6, s99\ns_add_u32 s{S_CX}, s{S_CX}, {WS_CTX}")
    a(f"s_lshl_b32 s6, s76, 13\nv_add_u32 v{VCA}, s6, v{VL16}\nv_add_u32 v7, 65536, v{VCA}")
def out_consts(a):
    a(f"s_lshr_b32 s6, s{S_W}, 2\ns_mul_i32 s{S_PB}, s6, 15360\ns_add_u32 s{S_PB}, s{S_PB}, {LDS_P}\nv_add_u32 v{VPR}, s{S_PB}, v{VWM}")
    a(f"s_mul_i32 s73, s6, 5120\ns_add_u32 s73, s73, {WS_XP}\ns_lshl_b32 s6, s6, 1\ns_sub_u32 s{S_RED}, s76, s6\ns_and_b32 s{S_RED}, s{S_RED}, 3")
    a(f"v_mov_b32 v{VXF}, {hex(WS_SIZE)}\ns_lshl_b32 s74, s{S_W}, 2\ns_add_u32 s74, s74, {WS_XF}")
    tile_id(a, 72)
    a(f"s_mul_i32 s72, s72, 12\ns_lshr_b32 s75, s{S_H}, 3\ns_mul_i32 s7, s75, 3\ns_add_u32 s7, s7, s72\ns_mul_i32 s{S_XI}, s7, 20480\ns_add_u32 s{S_XI}, s{S_XI}, {WS_XP}\ns_lshl_b32 s7, s7, 7\ns_add_u32 s{S_XFI}, s7, {WS_XF}")
    for k in range(3):
        a(f"s_add_u32 s6, s75, {1+k}\ns_and_b32 s6, s6, 3\ns_mul_i32 s6, s6, 3\ns_add_u32 s6, s6, s72\ns_add_u32 s6, s6, {k}\ns_mul_i32 s7, s6, 20480\ns_add_u32 s{S_XS+k}, s7, s73")
        a(f"s_lshl_b32 s6, s6, 7\ns_add_u32 s6, s6, s74\nv_writelane_b32 v{VXF}, s6, {k}")

def ctx_dma(r, extra=0):
    own, d = (S_OL if r in (3, 4, 5, 7) else S_OB), (1 + r % 3 if r < 6 else 0)
    o = [f"s_add_u32 s65, s{own}, {d}\ns_and_b32 s65, s65, 3\ns_andn2_b32 s7, s{own}, 3\ns_add_u32 s65, s65, s7\ns_lshl_b32 s65, s65, 17\ns_add_u32 s65, s65, s{S_CX}\ns_add_u32 m0, s99, {(r%3)*32768+extra}\ns_add_u32 s65, s65, {extra}"]
    return o + [f"buffer_load_dwordx4 v{VL16}, {WS}, s65 offen offset:{i*1024} sc1 lds" for i in range(4)]

def phase_out(a):
    def rdc(r, i):
        reg, off = (VCA, (r%3)*32768) if r % 3 < 2 else (7, 0)
        return (("C", i & 3), f"ds_read_b128 {v(CR+4*(i&3),4)}, v{reg} offset:{off+i*1024}")
    def xlook_addr():
        a(f"v_bfe_u32 v2, v{L}, 3, 2\nv_min_u32 v2, 2, v2\nv_and_b32 v3, 7, v{L}\nv_lshlrev_b32 v3, 2, v3\nv_lshl_add_u32 v3, v2, 7, v3")
    IT = [(WR, WR+4), (WR+8, WR+12)]
    XI, LP, OUTR = WR+16, WR+64, WR+128
    def emit(x):
        if "o_now" in ABL and isinstance(x, tuple) and x[0] == "W": return
        if "o_noadd" in ABL and isinstance(x, str) and x.startswith("v_add_f32"): return
        if "o_nodma" in ABL and isinstance(x, str) and x.endswith("lds"): return
        if "o_nost" in ABL and isinstance(x, str) and "buffer_store_dwordx4" in x: return
        if "o_nop" in ABL and isinstance(x, tuple) and isinstance(x[0], tuple) and x[0][0] == "P": return
        if callable(x): x()
        elif isinstance(x, str): a(x)
        elif x[0] == "wait": a.wait_lg(x[1])
        else:
            a(x[1]); a.lg.issue(x[0])
    def xin_load(slots):
        sk = a.newlabel("xi")
        for n in range(2):
            if n == 1: a(f"s_cmp_ge_u32 s{S_W}, 2\ns_cbranch_scc1 {sk}")
            for s_ in slots:
                a(f"s_add_u32 s6, s{S_XI}, {s_*20480}")
                for hf in range(2): a(f"buffer_load_dwordx4 {v(XI+24*n+8*s_+4*hf,4)}, v{8+n}, {WS}, s6 offen offset:{hf*256} sc1")
        a.label(sk)
    a.lg.drain()
    for i in range(4): emit(rdc(0, i))
    a.wait_lg(("C", 0))
    BG = 24
    for r in range(8):
        if "stampout" in ABL: a.stamp(44 + r)
        A = OA + 20*(r & 1); Ap = OA + 20*((r-1) & 1)
        po = ((r-1) & 1)*30720
        red = 1 <= r <= 6
        G = [[] for _ in range(40)]
        def dma_at(rr, g0, gs):
            d = ctx_dma(rr); sal = d[0].split("\n")
            G[g0] += sal[:3]; G[g0+1] += sal[3:6]; G[g0+2] += sal[6:7]
            for g, x in zip(gs, d[1:]): G[g].insert(0, x)
        def barrier():
            if r == 0:
                a(f"s_cmp_ge_u32 s{S_W}, 4\ns_cbranch_scc1 L_o0\ns_waitcnt vmcnt(0)\ns_barrier")
                a.label("L_o0")
                return
            elif "o_novm" not in ABL: a(f"s_waitcnt vmcnt({(0, 0, 4, 5, 5, 5, 1)[r]})")
            if r == 6: a(f"buffer_store_dword v2, v{VXF}, {WS}, 0 offen sc1")
            a("s_waitcnt lgkmcnt(0)\ns_barrier"); a.lg.drain()
        for i in range(8):
            if i < 4: G[5*i+4].append(rdc(r, i+4))
            elif r < 7 and i > 4: G[5*i+4].append(rdc(r+1, i-4))
            if i < 7 or r < 7: G[5*i+3].append(("wait", ("C", (i+1) & 3)))
        if r < 7: G[BG].append(barrier)
        if red:
            G[0].append(f"s_sub_u32 s6, s{S_RED}, {r}\ns_and_b32 s6, s6, 3\ns_mul_i32 s7, s6, 5120")
            G[1].append(f"s_add_u32 s7, s7, s{S_PB}\ns_cmp_eq_u32 s6, 3\ns_cselect_b32 s7, {159744-4096-po}, s7")
            G[2].append(f"v_add_u32 v12, s7, v{VWO4}\nv_add_u32 v{VT}, s{S_PB}, v{wm(1)}")
            for m, g in zip(range(1, 4), (5, 10, 15)):
                G[g] += [("W", f"ds_write_b128 v{VT}, {v(Ap+4*m,4)} offset:{po+(m-1)*5120}"), f"v_add_u32 v{VT}, s{S_PB}, v{wm(m+1)}"]
            G[20].append(("W", f"ds_write_b128 v12, {v(Ap+16,4)} offset:{po}"))
            for k in range(3): G[BG].append((("P", k), f"ds_read_b128 {v(RT+4*k,4)}, v{VPR} offset:{po+k*5120}"))
            for k in range(3):
                G[27+2*k].insert(0, ("wait", ("P", k)))
                for q in range(4): G[27+2*k+q//2].append(f"v_add_f32 v{Ap+q}, v{Ap+q}, v{RT+4*k+q}")
                G[29+2*k].insert(0, (("P", k), f"ds_read_b128 {v(RT+4*k,4)}, v{VT} offset:{po+k*5120}"))
            for k in range(3):
                G[33+2*k].append(("wait", ("P", k)))
                for q in range(4): G[33+2*k+q//2].append(f"v_add_f32 v{Ap+16+q}, v{Ap+16+q}, v{RT+4*k+q}")
            G[33].append(f"s_add_u32 s6, s{S_XS+(r-1)%3}, {((r-1)//3)*10240}")
            G[35].insert(0, f"buffer_store_dwordx4 {v(Ap,4)}, v{VWM}, {WS}, s6 offen sc1")
            sk = a.newlabel("nost")
            G[38].append(f"s_cmp_lg_u32 s{S_RED}, {(r-1)&3}")
            G[39].insert(0, f"s_cbranch_scc1 {sk}\nbuffer_store_dwordx4 {v(Ap+16,4)}, v{VWO4}, {WS}, s6 offen sc1\n{sk}:")
        if r < 7: G[BG].append(rdc(r+1, 0))
        if 1 < r < 5: dma_at(r+3, 21, (25, 26, 28, 30))
        if r == 0:
            dma_at(2, 21, (25, 26, 28, 30))
            G[19].append("s_waitcnt vmcnt(0)")
        lookl = f"buffer_load_dword v50, v3, {WS}, s72 offen sc1"
        if r == 1:
            G[6].append(lambda: ctxf_addr(a, S_OL, False))
            G[LOOKG].insert(0, lookl)
            def try3():
                a("v_cmp_ne_u32 vcc, 1, v50\ns_mov_b32 s91, 0\ns_cbranch_vccnz L_t3n")
                for x in ctx_dma(3): a(x)
                a("s_mov_b32 s91, 1\ns_branch L_t3j")
                a.label("L_t3n")
                a(lookl)
                a.label("L_t3j")
            G[25].append(try3)
        if r == 2:
            def chk():
                a(f"s_cmp_lg_u32 s91, 0\ns_cbranch_scc1 L_o2\ns_waitcnt vmcnt(1)\nv_cmp_ne_u32 vcc, 1, v50\ns_cbranch_vccz L_o1")
                poll(a, f"buffer_load_dword v2, v3, {WS}, s72 offen sc1", "v_cmp_ne_u32 vcc, 1, v2", sleep=1)
                a.label("L_o1")
                for x in ctx_dma(3): a(x)
                a.label("L_o2")
            G[2].append(chk)
            dma_at(4, 6, (9, 11, 12, 13))
        def spread(fn, gaps):
            b = Asm(); b.uid = a.uid + 1000; fn(b)
            ls = [x.strip() for x in b.o]; n = -(-len(ls) // len(gaps))
            for k, g in enumerate(gaps): G[g] += ls[k*n:(k+1)*n]
        if r == 0: spread(out_consts, range(0, 19))
        if r == 3: spread(out_items, [3, 4, 6, 7, 8, 9, 11, 12, 13, 14, 16, 17, 18, 19])
        if r == 4: G[7].append(lambda: out_tokens(a))
        if r == 6: G[22].append(f"v_mov_b32 v2, 1\nv_writelane_b32 v2, 2, 0")
        if r == 7:
            G[2].append(f"s_mul_i32 s73, s{S_W}, 5120\ns_add_u32 s6, s73, {LDS_F}")
            G[3].append(f"v_add_u32 v{VT}, s6, v{wm(0)}")
            for m in range(5):
                G[5+5*m].append(("W", f"ds_write_b128 v{VT}, {v(Ap+4*m,4)}"))
                if m < 4: G[5+5*m].append(f"s_add_u32 s6, s73, {LDS_F}\nv_add_u32 v{VT}, s6, v{wm(m+1)}")
            G[XFG].append(f"v_mov_b32 v2, 2\ns_waitcnt vmcnt(0)\nbuffer_store_dword v2, v{VXF}, {WS}, 0 offen sc1")
            def items():
                a(f"s_cmp_eq_u32 s{S_TOK}, 0\ns_cbranch_scc1 L_nb")
                a(f"v_bfe_u32 v2, v{L}, 1, 3\nv_and_b32 v3, 1, v{L}\nv_lshl_add_u32 v3, v2, 7, v3\nv_lshlrev_b32 v3, 2, v3\ns_and_b32 s6, s{S_H}, 3\ns_lshl_b32 s6, s6, 7\ns_add_u32 s6, s6, {WS_BF+YP*32*128}")
                poll(a, f"buffer_load_dword v2, v3, {WS}, s6 offen sc1", "v_cmp_ne_u32 vcc, 1, v2")
                a.label("L_nb")
                sk = a.newlabel("itskip")
                for n in range(2):
                    if n == 1: a(f"s_cmp_ge_u32 s{S_W}, 2\ns_cbranch_scc1 {sk}")
                    a(f"buffer_load_dwordx4 {v(IT[n][0],4)}, v{53+n}, {R(SRD_A)}, s70 offen\nbuffer_load_dwordx4 {v(IT[n][1],4)}, v{XNA+n}, {WS}, 0 offen sc1")
                a.label(sk)
            G[XFG+2].append(items)
            G[LK1-1].append(xlook_addr)
            G[LK1].append(f"s_bitcmp1_b32 13, s{S_W}\ns_cselect_b32 s77, 1, 2\nbuffer_load_dword v50, v3, {WS}, s{S_XFI} offen sc1")
            def try1():
                a("s_waitcnt vmcnt(0)\nv_cmp_gt_u32 vcc, s77, v50\ns_mov_b32 s91, 0\ns_cbranch_vccnz L_x1n")
                xin_load((0, 1, 2))
                a("s_mov_b32 s91, 1\ns_branch L_x1j")
                a.label("L_x1n")
                a(f"buffer_load_dword v50, v3, {WS}, s{S_XFI} offen sc1")
                a.label("L_x1j")
            G[LK2].append(try1)
            G[33].append(f"s_add_u32 s6, s73, {106496-20480}\ns_cmp_lt_u32 s{S_W}, 4\ns_cselect_b32 s73, s73, s6")
        for g in range(40):
            i, m = divmod(g, 5)
            if "o" in SNAKE and i & 1 == 0 and i: m = 4 - m
            a.mfma(A+4*m, WR+4*(5*i+m), CR+4*(i&3), "0" if i == 0 else None)
            for x in G[g]: emit(x)
    a.stamp(16)
    a("s_nop 4")
    for m in range(5): a(f"v_add_u32 v{VT}, s73, v{wm(m)}\nds_write_b128 v{VT}, {v(OA+20+4*m,4)}")
    a("s_mov_b64 s[78:79], 0\ns_cmp_lg_u32 s91, 0\ns_cbranch_scc1 L_x2a")
    a("s_waitcnt vmcnt(0)\nv_cmp_gt_u32 s[78:79], s77, v50\ns_nop 3\ns_cmp_lg_u64 s[78:79], 0\ns_cbranch_scc1 L_x2a")
    xin_load((0, 1, 2))
    a.label("L_x2a")
    a("s_waitcnt lgkmcnt(0)\ns_barrier")
    for n in range(2):
        for k in range(4):
            for hf in range(2): a(f"ds_read_b128 {v(LP+32*n+8*k+4*hf,4)}, v{(10,55)[n]} offset:{k*5120+hf*256}")
    a("s_cmp_eq_u64 s[78:79], 0\ns_cbranch_scc1 L_x2b")
    poll(a, f"buffer_load_dword v2, v3, {WS}, s{S_XFI} offen sc1", "v_cmp_gt_u32 vcc, s77, v2", sleep=1)
    xin_load((0, 1, 2))
    a.label("L_x2b")
    a.srd(SRD_B, P_OUT, 2048*640*2)
    a.stamp(17)
    for n in range(2):
        if n == 1: a(f"s_cmp_ge_u32 s{S_W}, 2\ns_cbranch_scc1 L_end")
        S = LP + 32*n
        a(f"s_waitcnt lgkmcnt({8 if n == 0 else 0})")
        for k in range(1, 4):
            for q in range(0, 8, 2): a(f"v_pk_add_f32 {v(S+q,2)}, {v(S+q,2)}, {v(S+8*k+q,2)}")
        a("s_waitcnt vmcnt(0)" if n == 0 else "s_nop 0")
        for k in range(3):
            for q in range(0, 8, 2): a(f"v_pk_add_f32 {v(S+q,2)}, {v(S+q,2)}, {v(XI+24*n+8*k+q,2)}")
        for q in range(4):
            x0, x1 = S+2*q, S+2*q+1
            a(f"v_cvt_pk_bf16_f32 v2, v{x0}, v{x1}\nv_lshlrev_b32 v{x0}, 16, v2\nv_and_b32 v{x1}, 0xffff0000, v2")
            a(f"v_lshlrev_b32 v2, 16, v{IT[n][0]+q}\nv_and_b32 v3, 0xffff0000, v{IT[n][0]+q}\nv_pk_add_f32 {v(x0,2)}, {v(x0,2)}, v[2:3]")
            a(f"v_cvt_pk_bf16_f32 v2, v{x0}, v{x1}\nv_lshlrev_b32 v{x0}, 16, v2\nv_and_b32 v{x1}, 0xffff0000, v2")
            a(f"v_lshlrev_b32 v2, 16, v{IT[n][1]+q}\nv_and_b32 v3, 0xffff0000, v{IT[n][1]+q}\nv_pk_add_f32 {v(x0,2)}, {v(x0,2)}, v[2:3]")
            a(f"v_cvt_pk_bf16_f32 v{OUTR+4*n+q}, v{x0}, v{x1}")
        a(f"buffer_store_dwordx4 {v(OUTR+4*n,4)}, v{53+n}, {R(SRD_B)}, s70 offen")

def out_items(a):
    a.srd(SRD_A, P_X, 2048*640*2)
    a(f"s_and_b32 s75, s{S_H}, 3\ns_mul_i32 s70, s75, 320\ns_add_u32 s73, s70, {WS_BSEL}")
    a(f"s_mul_i32 s72, s75, 5120")
    a(f"v_lshrrev_b32 v2, 4, v{L}\nv_and_b32 v3, 15, v{L}\nv_mul_u32_u24 v54, 1280, v3\nv_lshl_add_u32 v54, v2, 4, v54\nv_lshlrev_b32 v3, 4, v3\nv_lshl_add_u32 v9, v2, 9, v3")
    a(f"s_lshr_b32 s100, s{S_W}, 2\ns_cselect_b32 s6, s{S_OL}, s{S_OB}\ns_mul_i32 s6, s6, 20480\ns_lshl_b32 s7, s76, 6\ns_add_u32 s7, s7, s6\nv_add_u32 v53, s7, v54")
    a(f"s_lshl_b32 s7, s76, 10\ns_add_u32 s7, s7, s6\ns_add_u32 s7, s7, s72\nv_add_u32 v{XNA}, s7, v{VL16}")
    a(f"s_mul_i32 s6, s100, 10240\ns_lshl_b32 s7, s76, 11\ns_add_u32 s6, s6, s7\nv_add_u32 v8, s6, v9")
    a(f"s_mul_i32 s6, s100, {LDS_F+10240}\ns_sub_u32 s6, {LDS_F}, s6\nv_add_u32 v10, s6, v8\ns_lshl_b32 s7, s76, 2\nv_add_u32 v2, s7, v2\nv_cmp_lt_u32 vcc, 9, v2\ns_mul_i32 s6, s100, {101376-15360}\ns_add_u32 s6, s6, 15360\nv_add_u32 v3, s6, v10\nv_cndmask_b32 v10, v10, v3, vcc")
    a(f"s_and_b32 s100, s{S_W}, 1\ns_cselect_b32 s6, s{S_OL}, s{S_OB}\ns_mul_i32 s6, s6, 20480\ns_add_u32 s7, s6, 256\nv_add_u32 v54, s7, v54\ns_add_u32 s7, s6, s72\ns_add_u32 s7, s7, 4096\nv_add_u32 v{XNA+1}, s7, v{VL16}")
    a(f"s_mul_i32 s6, s100, 10240\ns_add_u32 s6, s6, 8192\nv_add_u32 v9, s6, v9\ns_mul_i32 s6, s100, {101376-10240-LDS_F-15360}\ns_add_u32 s6, s6, {LDS_F+15360}\nv_add_u32 v55, s6, v9")

def out_tokens(a):
    idx_poll(a, "b", "")
    sk = a.newlabel("notok")
    a(f"s_mov_b32 s{S_TOK}, 0")
    a(f"v_and_b32 v2, 0x7ff, v{VIDX}\nv_sub_u32 v2, 0x7ff, v2\nv_lshrrev_b32 v3, 4, v2\nv_cmp_eq_u32 vcc, s{S_OB}, v3\nv_cmp_eq_u32 s[74:75], s{S_OL}, v3\ns_nop 3\ns_or_b64 vcc, vcc, s[74:75]\ns_cbranch_scc0 {sk}")
    for tk in range(8): a(f"v_readlane_b32 s{(84,85,86,87,88,65,91,101)[tk]}, v2, {tk}")
    for n in range(2):
        a(f"s_lshl_b32 s7, s76, 6\ns_lshr_b32 s100, s{S_W}, 2" if n == 0 else f"s_movk_i32 s7, 256\ns_and_b32 s100, s{S_W}, 1")
        a(f"s_cselect_b32 s6, s{S_OL}, s{S_OB}\ns_lshl_b32 s6, s6, 4\nv_and_b32 v2, 15, v{L}\nv_add_u32 v2, s6, v2")
        a(f"s_add_u32 s7, s7, s73\nv_and_b32 v3, 48, v{L}\nv_add_u32 v3, s7, v3")
        for tk in range(8):
            a(f"v_cmp_eq_u32 vcc, s{(84,85,86,87,88,65,91,101)[tk]}, v2\ns_nop 1\nv_cndmask_b32 v{XNA+n}, v{XNA+n}, v3, vcc")
            if tk < 7: a(f"v_add_u32 v3, 1280, v3")
    a(f"s_mov_b32 s{S_TOK}, 1")
    a.label(sk)

def gen(a):
    phase_start(a)
    phase_kv(a)
    phase_q(a)
    phase_attn(a)
    phase_out(a)
    a.label("L_end")
    a.stamp(18)
    if a.prof: a("s_waitcnt vmcnt(0)")
    if a.prof and os.environ.get("STRETCH"):
        s0, s1 = os.environ["STRETCH"].split(",")
        a(f"v_readlane_b32 s6, v15, {s0}\nv_readlane_b32 s7, v15, {s1}\nv_readlane_b32 s72, v15, 18\ns_nop 3\ns_sub_u32 s6, s7, s6\ns_min_u32 s6, s6, 20000")
        a.label("L_str")
        a("s_memrealtime s[94:95]\ns_waitcnt lgkmcnt(0)\ns_sub_u32 s7, s94, s72\ns_cmp_lt_u32 s7, s6\ns_cbranch_scc1 L_str")
    if a.prof and os.environ.get("DBGWG"):
        a(f"s_mov_b64 exec, -1\ns_cmp_lg_u32 s2, {os.environ['DBGWG']}\ns_cbranch_scc1 L_nodbg\ns_cmp_lg_u32 s{S_W}, 0\ns_cbranch_scc1 L_nodbg")
        a.srd(SRD_E, P_DBG, 64)
        a(f"v_readlane_b32 s6, v15, 0\ns_nop 3\nv_subrev_u32 v2, s6, v15\nv_subrev_u32 v3, 3, v{L}\nv_lshlrev_b32 v3, 2, v3\nv_cmp_gt_u32 vcc, 4, v{L}\nv_mov_b32 v4, 0x1000\ns_nop 0\nv_cndmask_b32 v3, v3, v4, vcc")
        a(f"buffer_store_dword v2, v3, {R(SRD_E)}, 0 offen")
        a.label("L_nodbg")
    a.stamp_flush(SRD_WS, WS_PROF)
    a.label("L_exit")
    a("s_endpgm")

HEADER = open(os.path.join(os.path.dirname(os.path.abspath(__file__)), "..", NAME + ".s.ref")).read().split("; Override launch")[0]
if __name__ == "__main__":
    name = NAME + "_kernel"
    out = HEADER + "; @launch grid=(256,1,1) block=(512,1,1) lds=163840\n" + '.amdgcn_target "amdgcn-amd-amdhsa--gfx950"\n'
    a = Asm(); a.prof = bool(os.environ.get("PROF"))
    a.o.append(kernel_header(name).rstrip())
    gen(a)
    out += a.text() + '.section .rodata,"a"\n.p2align 6\n' + kernel_desc(name)
    open(sys.argv[1] if len(sys.argv) > 1 else "k.s", "w").write(out)
```

```python
def v(a, n=1):
    return f"v{a}" if n == 1 else f"v[{a}:{a+n-1}]"
def s(a, n=1):
    return f"s{a}" if n == 1 else f"s[{a}:{a+n-1}]"

class Tracker:
    def __init__(self, name, maxv):
        self.name, self.maxv, self.q = name, maxv, []
    def issue(self, tag):
        self.q.append(tag)
    def need(self, tags):
        if not isinstance(tags, (list, set)): tags = [tags]
        idx = -1
        for i, t in enumerate(self.q):
            if t in tags: idx = i
        if idx < 0: return None
        n = len(self.q) - idx - 1
        n = min(n, self.maxv)
        self.q = self.q[len(self.q) - n:] if n > 0 else []
        return n
    def drain(self):
        self.q = []

class Asm:
    def __init__(self):
        self.o = []
        self.lg = Tracker("lgkmcnt", 15)
        self.vm = Tracker("vmcnt", 63)
        self.uid = 0
    def __call__(self, txt):
        for l in txt.split("\n"):
            l = l.strip()
            if l: self.o.append(("" if l.endswith(":") or l.startswith(".") else "    ") + l)
    def c(self, txt):
        self.o.append("    ; " + txt)
    def label(self, name):
        self.o.append(name + ":")
    def newlabel(self, base):
        self.uid += 1
        return f"L_{base}_{self.uid}"
    def wait_lg(self, tags):
        n = self.lg.need(tags)
        if n is not None: self(f"s_waitcnt lgkmcnt({n})")
    def wait_vm(self, tags):
        n = self.vm.need(tags)
        if n is not None: self(f"s_waitcnt vmcnt({n})")
    prof = False
    def stamp_init(self, r0, kidx):
        self.sr, self.kidx, self.sn = r0, kidx, 0
        if self.prof: self(f"v_mov_b32 v{r0}, 0\nv_mov_b32 v{r0+1}, 0")
    def stamp(self, idx):
        import os
        if not self.prof: return
        if os.environ.get("PROFMIN") and idx not in (0, 4, 6, 7, 10, 11, 13, 16, 18, 63): return
        self(f"s_memtime s[92:93]\ns_memrealtime s[94:95]\ns_waitcnt lgkmcnt(0)\nv_writelane_b32 v{self.sr}, s92, {idx}\nv_writelane_b32 v{self.sr+1}, s94, {idx}")
    def stampd(self, sreg, base):
        import os
        if not self.prof or os.environ.get("PROFMIN"): return
        self(f"s_memtime s[92:93]\ns_memrealtime s[94:95]\ns_add_u32 m0, s{sreg}, {base}\ns_waitcnt lgkmcnt(0)\nv_writelane_b32 v{self.sr}, s92, m0\nv_writelane_b32 v{self.sr+1}, s94, m0")
    def stamp_flush(self, srd, base):
        if not self.prof: return
        self("s_mov_b64 exec, -1")
        self.stamp(63)
        self(f"s_lshl_b32 s92, s2, 12\ns_add_u32 s92, s92, {base + self.kidx*0x100000}\nv_lshlrev_b32 v0, 3, v0")
        self(f"buffer_store_dwordx2 v[{self.sr}:{self.sr+1}], v0, s[{srd}:{srd+3}], s92 offen")
    def text(self):
        return "\n".join(self.o) + "\n"
    def srd(self, d, base, nbytes):
        self(f"s_mov_b32 s{d}, s{base}\ns_mov_b32 s{d+1}, s{base+1}\ns_mov_b32 s{d+2}, {hex(nbytes)}\ns_mov_b32 s{d+3}, 0x20000")
    def mfma(self, d, a, b, c=None):
        cs = v(d, 4) if c is None else (c if isinstance(c, str) else v(c, 4))
        self(f"v_mfma_f32_16x16x32_bf16 {v(d,4)}, {v(a,4)}, {v(b,4)}, {cs}")
    def wave_reduce(self, op, r):
        for m in ("quad_perm:[1,0,3,2] row_mask:0xf bank_mask:0xf", "quad_perm:[2,3,0,1] row_mask:0xf bank_mask:0xf",
                  "row_half_mirror row_mask:0xf bank_mask:0xf", "row_mirror row_mask:0xf bank_mask:0xf",
                  "row_bcast:15 row_mask:0xa bank_mask:0xf", "row_bcast:31 row_mask:0xc bank_mask:0xf"):
            self("s_nop 1")
            self(f"{op}_dpp v{r}, v{r}, v{r} {m}")
        self("s_nop 1")

def kernel_header(name):
    return f".text\n.globl {name}\n.p2align 8\n.type {name},@function\n{name}:\n"

def kernel_desc(name, vgpr=256, sgpr=102):
    acc = (vgpr + 3) // 4 * 4
    return f""".amdhsa_kernel {name}
  .amdhsa_next_free_vgpr {vgpr}
  .amdhsa_next_free_sgpr {sgpr}
  .amdhsa_accum_offset {acc}
  .amdhsa_group_segment_fixed_size 0
  .amdhsa_kernarg_size 112
  .amdhsa_user_sgpr_count 2
  .amdhsa_user_sgpr_kernarg_segment_ptr 1
  .amdhsa_system_sgpr_workgroup_id_x 1
  .amdhsa_float_denorm_mode_32 3
.end_amdhsa_kernel
"""
```

```python
import sys, os
from asmlib import *

NAME = "parallel_sum__compressed_kv_cla__moe_arch_mod__prompt"
ABL = set(os.environ.get("ABL", "").split(","))
if "nontw" not in ABL: ABL |= {"ntt", "ntd"}
WS_XN = 0x0
WS_R = 0x280000
WS_YP = 0x290000
WS_IDX = 0x3A0000
WS_KVF = 0x3B0000
WS_CTXF = 0x3C0000
WS_MOEF = 0xF20000
WS_BSEL = 0x3A9000
WS_BF = 0x3B8000
WS_WOF = 0x400000
WS_XS = 0xC00000
WS_PROF = 0x900000
WS_KV = 0x1000000
WS_CTX = 0x3000000
WS_XF = 0xF00000
WS_XP = 0x4000000
WS_SIZE = 0x5000000
S_W, S_H, S_P = 3, 4, 5
SRD_WS, SRD_A, SRD_B, SRD_C, SRD_D, SRD_E = 8, 12, 16, 20, 24, 28
P_X, P_CKV, P_WQ, P_WUK, P_WUV, P_WO, P_BX, P_WR, P_WG, P_WU, P_WD, P_OUT, P_DBG, P_WS = range(32, 60, 2)
S_B, S_E = 60, 61
WS = f"s[{SRD_WS}:{SRD_WS+3}]"
def R(d): return f"s[{d}:{d+3}]"
L, VL16 = 1, 13
DESIG = 31
SPIN = 1 << 18
MOEP = int(os.environ.get("MOEP", "2"))
NTT = " nt" if "ntt" in ABL else ""
LK1, LK2 = [int(x) for x in os.environ.get("LK", "22,34").split(",")]
WOTM = int(os.environ.get("WOTM", "0xf0"), 0)
SNAKE = os.environ.get("SNAKE", "akqo")
LOOKG = int(os.environ.get("LOOKG", "12"))
NPC = int(os.environ.get("NPC", "2"))
YP = int(os.environ.get("YP", "3"))
LPOS = int(os.environ.get("LPOS", "10"))
WOTN = int(os.environ.get("WOTN", "0"))
LNH = int(os.environ.get("LNH", "2"))
MOEJ = int(os.environ.get("MOEJ", "4"))
if "code2" not in ABL: ABL.add("nocode2")
if "newb7" not in ABL: ABL.add("oldb7")
NT = "" if "nont" in ABL else " nt"
ABL.add("latewait")
TSCHED = os.environ.get("TSCHED", ";2;4;6").split(";")
TK, TV0, TV1, TV2 = [[int(y) for y in x.split(",") if y] for x in TSCHED]
LDS_SP = 131072
LDS_LN = LDS_SP
LDS_WOT = LDS_SP + 10240
LDS_RK = LDS_SP + 30720

def bf16_round(a, r):
    a(f"v_cvt_pk_bf16_f32 v{r}, v{r}, v{r}\nv_lshlrev_b32 v{r}, 16, v{r}")

def poll(a, load, cmp_notready, sleep=2):
    lp = a.newlabel("poll"); dn = a.newlabel("polldone")
    a(f"s_mov_b32 s79, {SPIN}")
    a.label(lp)
    a(load); a("s_waitcnt vmcnt(0)"); a(cmp_notready)
    a(f"s_cbranch_vccz {dn}\ns_sleep {sleep}\ns_sub_u32 s79, s79, 1\ns_cmp_lg_u32 s79, 0\ns_cbranch_scc1 {lp}")
    a.label(dn)

VC, VW, RC, RW, QRW = 40, 44, 48, 50, 54
CF, WF, ACC = 64, 96, 128
S_CO, S_WO_, S_MC, S_ST, S_ROW, S_KVD, S_INCA, S_INCB, S_XO, S_QO = 62, 63, 64, 65, 66, 67, 68, 69, 70, 71
S_XB = 84
XEARLY = [16, 20, 24, 28, 32, 36]
VX1 = 12
LX, LW, LV = 16, 26, 64
VDUM = 11
ITR = ((8, 9), (10, 55))

def wdma(a, srd, soff):
    nt = " nt" if ("ntd" in ABL and srd != SRD_D) or ("ntq" in ABL and srd == SRD_D) else ""
    return [f"buffer_load_dwordx4 v{VW+i}, {R(srd)}, s{soff} offen offset:{i*1024}{nt} lds" for i in range(4)]

def kv_dma_ops():
    g = []
    g.append([f"s_mov_b32 m0, s{S_MC}", f"s_add_u32 s72, s{S_CO}, 524288"])
    for i in range(4): g.append([f"buffer_load_dwordx4 v{VC+i}, {R(SRD_A)}, s{S_CO} offen offset:{i*1024} lds"])
    g.append([f"s_add_u32 m0, s{S_MC}, 4096", f"s_add_u32 s{S_CO}, s{S_CO}, 128", f"s_bitset0_b32 s{S_CO}, 10"])
    for i in range(4): g.append([f"buffer_load_dwordx4 v{VC+i}, {R(SRD_A)}, s72 offen offset:{i*1024} lds"])
    g.append([f"s_mov_b32 m0, s73", f"s_xor_b32 s{S_MC}, s{S_MC}, 0x10000"])
    for x in wdma(None, SRD_B, S_WO_): g.append([x])
    g.append([f"s_add_u32 m0, s73, 16384", f"s_xor_b32 s73, s73, 0x10000"])
    for x in wdma(None, SRD_C, S_WO_): g.append([x])
    g.append([f"s_add_u32 s{S_WO_}, s{S_WO_}, {64*8192}", f"s_bitset0_b32 s{S_WO_}, 22"])
    return g

def wq_dma_ops(nblk):
    g = []
    for h in range(2*nblk):
        g.append([f"s_mov_b32 m0, s74", f"s_add_u32 s74, s74, 16384"] + (["s_bitset0_b32 s74, 17"] if nblk == 2 else []))
        for x in wdma(None, SRD_D, S_QO): g.append([x])
        g.append([f"s_add_u32 s{S_QO}, s{S_QO}, {64*8192}", f"s_sub_u32 s75, s{S_QO}, {640*8192}", f"s_cselect_b32 s{S_QO}, s{S_QO}, s75"])
    return g

def emit_groups(a, g):
    for x in g:
        for y in x: a(y)

def x_load(a, ks, regs):
    for qt in range(2):
        a(f"buffer_load_dwordx4 {v(regs[qt],4)}, v{VL16 if qt==0 else VX1}, {WS}, s{S_XB+(ks>>2)} offen offset:{(ks&3)*1024} sc1")
        a.vm.issue(("X", ks))

def cnt_load(a, r, which):
    return f"buffer_load_dword v{r}, v3, {R(SRD_E)}, 0 offen offset:{128*which} sc1"
def cnt_addr(a):
    a.srd(SRD_E, P_DBG, 256)
    a(f"v_and_b32 v3, 31, v{L}\nv_lshlrev_b32 v3, 2, v3")
def cnt_check(a, r, which):
    ok = a.newlabel("cntok")
    a(f"v_cmp_gt_u32 vcc, 8, v{r}\ns_cbranch_vccz {ok}")
    cnt_addr(a)
    poll(a, cnt_load(a, 2, which), "v_cmp_gt_u32 vcc, 8, v2", sleep=8)
    a.label(ok)

def kv_touch(a, st0):
    sk = a.newlabel("tch")
    a(f"s_cmp_ge_u32 s76, 2\ns_cbranch_scc1 {sk}a")
    a(f"s_and_b32 s6, s{S_H}, 3\ns_lshl_b32 s6, s6, 19\ns_lshl_b32 s7, s{S_P}, 15\ns_add_u32 s6, s6, s7\ns_lshl_b32 s7, s76, 7\ns_add_u32 s6, s6, s7\ns_add_u32 s6, s6, {st0*128}")
    a(f"v_lshrrev_b32 v6, 1, v{L}\nv_lshlrev_b32 v6, 10, v6\nv_and_b32 v7, 1, v{L}\nv_lshl_add_u32 v6, v7, 6, v6")
    a(f"buffer_load_dword v{VDUM}, v6, {R(SRD_A)}, s6 offen\ns_add_u32 s6, s6, 262144\nbuffer_load_dword v{VDUM}, v6, {R(SRD_A)}, s6 offen\ns_branch {sk}c")
    a.label(sk + "a")
    a(f"v_lshrrev_b32 v6, 5, v{L}\nv_lshlrev_b32 v6, 6, v6\nv_bfe_u32 v7, v{L}, 2, 3\nv_add_u32 v6, v6, v7\nv_lshlrev_b32 v6, 13, v6\nv_and_b32 v7, 3, v{L}\nv_lshl_add_u32 v6, v7, 6, v6")
    a(f"s_lshl_b32 s6, s{S_H}, 8\ns_lshl_b32 s7, s{S_P}, 16\ns_add_u32 s6, s6, s7\ns_add_u32 s6, s6, {st0*64*8192}")
    a(f"s_cmp_lg_u32 s76, 2\ns_cbranch_scc1 {sk}b\nbuffer_load_dword v{VDUM}, v6, {R(SRD_B)}, s6 offen{NTT}\ns_branch {sk}c")
    a.label(sk + "b")
    a(f"buffer_load_dword v{VDUM}, v6, {R(SRD_C)}, s6 offen{NTT}")
    a.label(sk + "c")

def consts(a):
    a(f"s_mov_b32 s{S_ST}, 0")
    a(f"s_lshl_b32 s6, s{S_H}, 20\ns_lshl_b32 s7, s{S_P}, 13\ns_add_u32 s6, s6, s7\ns_and_b32 s7, s{S_W}, 1\ns_lshl_b32 s7, s7, 16\ns_add_u32 s6, s6, s7\ns_add_u32 s{S_KVD}, s6, {WS_KV}")
    if "noqrot" in ABL: a("s_mov_b32 s6, 0")
    else:
        a(f"s_and_b32 s6, s{S_H}, {int(os.environ.get('QROTM', '3'))}\ns_add_u32 s6, s6, s{S_P}")
        for _ in range(2): a("s_sub_u32 s7, s6, 5\ns_cselect_b32 s6, s6, s7")
    a(f"s_lshl_b32 s{S_QO}, s6, 20\ns_lshl_b32 s7, s{S_H}, 8\ns_add_u32 s{S_QO}, s{S_QO}, s7")
    for i in range(5):
        a(f"s_lshl_b32 s7, s6, 12\ns_add_u32 s{S_XB+i}, s{S_XO}, s7")
        if i < 4: a("s_add_u32 s6, s6, 1\ns_cmp_eq_u32 s6, 5\ns_cselect_b32 s6, 0, s6")
    a(f"s_lshr_b32 s7, s{S_W}, 1\ns_and_b32 s7, s7, 1")
    a(f"s_cmp_ge_u32 s{S_W}, 4\ns_cbranch_scc1 L_c_v")
    a(f"s_lshl_b32 s7, s7, 11\ns_add_u32 s{S_KVD}, s{S_KVD}, s7\ns_movk_i32 s{S_INCA}, 3072\ns_mov_b32 s{S_INCB}, 125952")
    a(f"s_add_u32 s{S_QO}, s{S_QO}, {128*8192}\ns_sub_u32 s75, s{S_QO}, {640*8192}\ns_cselect_b32 s{S_QO}, s{S_QO}, s75\ns_lshl_b32 s74, s76, 12\ns_add_u32 s74, s74, s100\ns_branch L_c_j")
    a.label("L_c_v")
    a(f"s_lshl_b32 s7, s7, 12\ns_add_u32 s{S_KVD}, s{S_KVD}, s7\ns_add_u32 s{S_KVD}, s{S_KVD}, 0x80000\ns_movk_i32 s{S_INCA}, 1024\ns_mov_b32 s{S_INCB}, 128000")
    a.label("L_c_j")

def zero_regs(a, r0, n):
    for i in range(0, n, 2): a(f"v_mov_b64 {v(r0+i,2)}, 0")

def phase_start(a):
    a(f"s_cmp_ge_u32 s2, 256\ns_cbranch_scc1 L_exit")
    a("s_load_dwordx16 s[32:47], s[0:1], 0\ns_load_dwordx8 s[48:55], s[0:1], 64\ns_load_dwordx4 s[56:59], s[0:1], 96")
    a(f"v_lshrrev_b32 v2, 6, v0\nv_and_b32 v{L}, 63, v0\nv_readfirstlane_b32 s{S_W}, v2")
    if "nocode" not in ABL:
        a("s_getpc_b64 s[80:81]")
        a.label("L_pc")
        a(f"s_lshr_b32 s6, s2, 3\ns_and_b32 s6, s6, 15\ns_lshl_b32 s6, s6, 12\ns_cmp_lt_u32 s{S_W}, 2\ns_cselect_b32 s6, 0, s6\nv_lshl_add_u32 v3, v0, 6, s6")
        a(f"v_min_u32 v3, L_exit-L_pc, v3\ns_cmp_ge_u32 s{S_W}, 3\ns_cbranch_scc1 L_noct\nglobal_load_dword v{VDUM}, v3, s[80:81]")
        a.label("L_noct")
    a(f"v_lshrrev_b32 v62, 5, v0\nv_and_b32 v62, 7, v62\nv_and_b32 v2, 31, v0\nv_lshlrev_b32 v2, 3, v2\nv_mul_u32_u24 v63, 1280, v62\nv_add_u32 v63, v63, v2\ns_mul_i32 s6, s2, 10240\nv_add_u32 v10, s6, v63")
    a(f"s_cmp_lt_u32 s{S_W}, 4\ns_cbranch_scc1 L_st_k0")
    a("s_waitcnt lgkmcnt(0)")
    for j in range(5): a(f"global_load_dwordx2 {v(LX+2*j,2)}, v10, s[{P_X}:{P_X+1}] offset:{j*256}{NT if 'xnt' in ABL else ''}")
    for j in range(5): a(f"global_load_dwordx2 {v(LW+2*j,2)}, v2, s[{P_WR}:{P_WR+1}] offset:{j*256}")
    NPF = int(os.environ.get("NPF", "2"))
    if NPF:
        a(f"s_bfe_u32 s6, s2, 0x20003\ns_lshl_b32 s6, s6, 9\ns_bfe_u32 s7, s{S_W}, 0x10001\ns_lshl_b32 s7, s7, 8\ns_add_u32 s6, s6, s7\ns_andn2_b32 s7, s2, 31\ns_add_u32 s6, s6, s7\ns_and_b32 s72, s{S_W}, 1\ns_lshl_b32 s7, s72, 4\ns_add_u32 s6, s6, s7")
        a(f"v_lshrrev_b32 v4, 3, v{L}\nv_add_u32 v4, s6, v4\nv_and_b32 v5, 7, v{L}\nv_lshlrev_b32 v5, 4, v5\nv_lshl_add_u32 v4, v4, 10, v5\nv_add_u32 v5, 8192, v4")
        a(f"s_lshr_b32 s6, s2, 5\ns_lshl_b32 s6, s6, 1\ns_add_u32 s6, s6, s72\ns_lshl_b32 s6, s6, 15\ns_and_b32 s7, s2, 7\ns_lshl_b32 s7, s7, 10\ns_add_u32 s6, s6, s7\ns_bfe_u32 s7, s2, 0x20003\ns_lshl_b32 s7, s7, 8\ns_add_u32 s6, s6, s7")
        a(f"v_lshrrev_b32 v6, 4, v{L}\nv_and_b32 v7, 15, v{L}\nv_lshlrev_b32 v7, 4, v7\nv_lshl_add_u32 v6, v6, 13, v7\nv_add_u32 v6, s6, v6")
        a(f"s_cmp_ge_u32 s{S_W}, 6\ns_cselect_b32 s74, s{P_WUV}, s{P_WUK}\ns_cselect_b32 s75, s{P_WUV+1}, s{P_WUK+1}")
        for st in range(NPF):
            a(f"global_load_dwordx4 v[36:39], v4, s[{P_CKV}:{P_CKV+1}] offset:{st*128}\nglobal_load_dwordx4 v[36:39], v5, s[{P_CKV}:{P_CKV+1}] offset:{st*128}")
            a(f"global_load_dwordx4 v[36:39], v6, s[74:75]{NTT}\nv_add_u32 v6, {64*8192}, v6")
    if "nob0" not in ABL: a("s_barrier")
    a.label("L_st_k0")
    a(f"s_and_b32 s6, s2, 7\ns_lshl_b32 s6, s6, 2\ns_lshr_b32 s7, s2, 3\ns_and_b32 s7, s7, 3\ns_add_u32 s{S_H}, s6, s7\ns_lshr_b32 s{S_P}, s2, 5\ns_and_b32 s76, s{S_W}, 3")
    a.stamp_init(14, 0); a.stamp(0)
    a(f"v_lshrrev_b32 v2, 3, v{L}\nv_and_b32 v3, 7, v{L}\nv_lshrrev_b32 v4, 4, v{L}\nv_xor_b32 v5, v3, v4\nv_lshlrev_b32 v5, 4, v5")
    a(f"v_lshl_add_u32 v{VC}, v2, 10, v5\nv_xor_b32 v5, 64, v{VC}\nv_add_u32 v{VC+1}, 7168, v5\nv_add_u32 v{VC+2}, 14336, v{VC}\nv_add_u32 v{VC+3}, 14336, v{VC+1}")
    a(f"v_and_b32 v6, 15, v{L}\ns_lshl_b32 s6, s76, 4\nv_add_u32 v7, s6, v4\nv_lshlrev_b32 v5, 1, v4\nv_xor_b32 v5, v6, v5\nv_lshlrev_b32 v5, 4, v5")
    a(f"v_lshl_add_u32 v{VW}, v7, 13, v5\nv_add_u32 v{VW+1}, 31744, v{VW}\nv_xor_b32 v5, 0x80, v{VW}\nv_add_u32 v{VW+2}, 63488, v5\nv_add_u32 v{VW+3}, 31744, v{VW+2}")
    a(f"s_and_b32 s6, s76, 1\ns_lshl_b32 s6, s6, 20\ns_lshr_b32 s7, s76, 1\ns_lshl_b32 s7, s7, 18\ns_add_u32 s6, s6, s7\ns_lshl_b32 s{S_CO}, s{S_P}, 15\ns_add_u32 s{S_CO}, s{S_CO}, s6\ns_lshl_b32 s{S_WO_}, s{S_H}, 8\ns_lshl_b32 s{S_MC}, s76, 13\ns_lshl_b32 s73, s76, 12\ns_add_u32 s73, s73, 32768")
    a(f"s_andn2_b32 s100, 1, s{S_P}\ns_lshl_b32 s100, s100, 16\ns_add_u32 s{S_MC}, s{S_MC}, s100\ns_add_u32 s73, s73, s100")
    a("s_waitcnt lgkmcnt(0)")
    a.srd(SRD_A, P_CKV, 2048*512*2)
    a.srd(SRD_B, P_WUK, 512*4096*2)
    a.srd(SRD_C, P_WUV, 512*4096*2)
    a(f"s_cmp_ge_u32 s{S_W}, 4\ns_cbranch_scc1 L_st_v0")
    if "nob0" not in ABL: a("s_barrier")
    for st in TK: kv_touch(a, st)
    emit_groups(a, kv_dma_ops())
    if "noprio" not in ABL: a("s_setprio 1")
    a.label("L_st_v0")
    a.srd(SRD_WS, P_WS, WS_SIZE)
    a.srd(SRD_D, P_WQ, 640*4096*2)
    a(f"v_lshlrev_b32 v{VL16}, 4, v{L}")
    a(f"s_lshl_b32 s6, s{S_P}, 2\ns_add_u32 s7, s6, s{S_W}\ns_sub_u32 s6, 56, s6\ns_add_u32 s6, s6, s{S_W}")
    a(f"s_cmp_lt_u32 s{S_W}, 4\ns_cselect_b32 s{S_B}, s7, s6")
    a(f"s_sub_u32 s6, {MOEP}, s{S_P}\ns_and_b32 s6, s6, 7\ns_lshl_b32 s6, s6, 5\ns_add_u32 s{S_E}, s6, s{S_H}")
    a(f"v_and_b32 v2, 15, v{L}\nv_lshrrev_b32 v3, 4, v{L}")
    a(f"s_and_b32 s6, s{S_W}, 1\ns_lshl_b32 s6, s6, 7\nv_add_u32 v4, s6, v2\nv_lshlrev_b32 v4, 7, v4\nv_add_u32 v4, s100, v4\nv_lshrrev_b32 v5, 1, v2")
    for sp in range(2):
        a(f"v_add_u32 v6, {4*sp}, v3\nv_xor_b32 v6, v6, v5\nv_lshl_add_u32 v{RC+sp}, v6, 4, v4")
    a(f"v_lshrrev_b32 v4, 2, v2\nv_lshl_add_u32 v5, v3, 3, v4\nv_lshlrev_b32 v5, 8, v5")
    a(f"v_and_b32 v6, 1, v2\nv_lshl_add_u32 v5, v6, 3, v5")
    a(f"v_and_b32 v6, 1, v3\nv_lshl_or_b32 v4, v6, 2, v4\nv_lshlrev_b32 v4, 1, v4\nv_bfe_u32 v6, v2, 1, 1")
    a(f"v_add_u32 v8, {LDS_SP}, v5")
    for t in range(8):
        a(f"v_add_u32 v7, {2*t}, v6\nv_xor_b32 v7, v7, v4\nv_lshl_add_u32 v{QRW+t}, v7, 4, v8")
    a(f"s_lshr_b32 s6, s{S_W}, 2\ns_lshl_b32 s6, s6, 14\ns_add_u32 s6, s6, 32768\ns_add_u32 s6, s6, s100\nv_add_u32 v5, s6, v5")
    a(f"s_lshr_b32 s7, s{S_W}, 1\ns_and_b32 s7, s7, 1\ns_lshl_b32 s7, s7, 3")
    for j in range(4):
        a(f"s_add_u32 s6, s7, {2*j}\nv_add_u32 v7, s6, v6\nv_xor_b32 v7, v7, v4\nv_lshl_add_u32 v{RW+j}, v7, 4, v5")
    zero_regs(a, ACC, 128)
    a(f"v_add_u32 v{VX1}, 20480, v{VL16}\ns_mul_i32 s{S_XO}, s{S_B}, 40960")
    consts(a)
    a.stamp(1)
    a(f"s_cmp_ge_u32 s{S_W}, 4\ns_cbranch_scc1 L_st_v1")
    TM = [int(x) for x in os.environ.get("TM", "").split(",") if x]
    TM2 = [int(x) for x in os.environ.get("TM2", "").split(",") if x]
    for st in TM: kv_touch(a, st)
    emit_groups(a, kv_dma_ops()[:10])
    for st in TM2: kv_touch(a, st)
    a(f"s_waitcnt vmcnt({8+len(TM)+len(TM2)})\ns_branch L_st_j1")
    a.label("L_st_v1")
    a(f"s_waitcnt vmcnt({3*NPF})")
    a.stamp(2)
    ln_compute(a)
    ln_router(a)
    a.label("L_st_j1")
    a.stamp(3)
    a("s_barrier")
    a.stamp(4)

def zero_flags(a):
    a(f"s_cmp_lt_u32 s{S_W}, 6\ns_cbranch_scc1 L_zd\nv_mov_b64 v[36:37], 0\nv_mov_b64 v[38:39], 0\nv_lshrrev_b32 v2, 3, v{L}\ns_cmp_eq_u32 s{S_W}, 6\ns_cbranch_scc1 L_z6")
    a(f"s_lshl_b32 s6, s{S_P}, 2\ns_sub_u32 s7, 56, s6\nv_mov_b32 v3, s6\nv_mov_b32 v4, s7\nv_cmp_gt_u32 vcc, 4, v2\ns_lshl_b32 s6, s{S_H}, 7\ns_add_u32 s6, s6, {WS_CTXF}\nv_cndmask_b32 v3, v4, v3, vcc\nv_add_u32 v3, v3, v2\nv_lshl_add_u32 v3, v3, 12, s6\ns_branch L_z7")
    a.label("L_z6")
    a(f"v_mov_b32 v3, {hex(WS_SIZE)}")
    def put(j): a(f"s_andn2_b32 s6, s6, 127\nv_cmp_eq_u32 vcc, {j}, v2\nv_mov_b32 v4, s6\ns_nop 0\nv_cndmask_b32 v3, v3, v4, vcc")
    flag_addr(a, "kv", 6); put(0)
    flag_addr(a, "moe", 6); put(1)
    flag_addr(a, "b", 6); put(2)
    for k in range(3):
        xf_addr(a, k, 6); put(3+k)
    a(f"s_mov_b32 s6, {hex(WS_SIZE)}\ns_cmp_eq_u32 s2, {DESIG}\ns_cmov_b32 s6, {WS_IDX}"); put(6)
    a(f"s_lshl_b32 s6, s2, 7\ns_add_u32 s6, s6, {WS_R}"); put(7)
    a(f"v_add_u32 v4, {LDS_RK-56*16}, v{VL16}\ns_mov_b32 exec_lo, 0\ns_mov_b32 exec_hi, 0x03000000\nds_read_b128 v[36:39], v4\ns_mov_b64 exec, -1\ns_waitcnt lgkmcnt(0)")
    a.label("L_z7")
    a(f"v_and_b32 v2, 7, v{L}\nv_lshl_add_u32 v3, v2, 4, v3\nbuffer_store_dwordx4 v[36:39], v3, {WS}, 0 offen sc1")
    a.label("L_zd")

def half_reduce(a, r):
    for m in ("quad_perm:[1,0,3,2]", "quad_perm:[2,3,0,1]", "row_half_mirror", "row_mirror"):
        a(f"s_nop 1\nv_add_f32_dpp v{r}, v{r}, v{r} {m} row_mask:0xf bank_mask:0xf")
    a(f"v_mov_b32 v8, v{r}\ns_nop 1\nv_permlane16_swap_b32 v{r}, v8\ns_nop 1\nv_add_f32 v{r}, v{r}, v8")

def ln_compute(a):
    X = LV
    NEG = "op_sel_hi:[1,0] neg_lo:[0,1] neg_hi:[0,1]"
    for j in range(10):
        a(f"v_lshlrev_b32 v{X+2*j}, 16, v{LX+j}\nv_and_b32 v{X+2*j+1}, 0xffff0000, v{LX+j}")
    a(f"v_pk_add_f32 v[2:3], {v(X,2)}, {v(X+2,2)}")
    for j in range(2, 10): a(f"v_pk_add_f32 v[2:3], v[2:3], {v(X+2*j,2)}")
    a("v_add_f32 v2, v2, v3")
    half_reduce(a, 2)
    a("s_mov_b32 s7, 0x3acccccd\nv_mul_f32 v2, s7, v2\nv_mov_b64 v[4:5], 0")
    for j in range(10):
        a(f"v_pk_add_f32 v[6:7], {v(X+2*j,2)}, v[2:3] {NEG}\nv_pk_fma_f32 v[4:5], v[6:7], v[6:7], v[4:5]")
    a("v_add_f32 v4, v4, v5")
    half_reduce(a, 4)
    a("v_mul_f32 v4, s7, v4")
    bf16_round(a, 2); bf16_round(a, 4)
    a("v_add_f32 v4, 0x3727c5ac, v4")
    bf16_round(a, 4)
    a("v_sqrt_f32 v4, v4\ns_nop 0")
    bf16_round(a, 4)
    a("v_rcp_f32 v6, v4\ns_nop 0\nv_fma_f32 v5, -v4, v6, 1.0\nv_fmac_f32 v6, v5, v6\nv_mov_b32 v9, 0")
    for j in range(10):
        x = X + 2*j
        a(f"v_pk_add_f32 {v(x,2)}, {v(x,2)}, v[2:3] {NEG}\nv_cvt_pk_bf16_f32 v5, v{x}, v{x+1}")
        a(f"v_lshlrev_b32 v{x}, 16, v5\nv_and_b32 v{x+1}, 0xffff0000, v5")
        a(f"v_pk_mul_f32 {v(x,2)}, {v(x,2)}, v[6:7] op_sel_hi:[1,0]\nv_cvt_pk_bf16_f32 v{LX+j}, v{x}, v{x+1}")
    a(f"v_add_u32 v10, {LDS_LN}, v63")
    for j in range(5): a(f"ds_write_b64 v10, {v(LX+2*j,2)} offset:{j*256}")
    a("s_waitcnt lgkmcnt(0)")

def ln_router(a):
    a("v_mov_b32 v2, 0")
    for j in range(10):
        a(f"v_lshlrev_b32 v4, 16, v{LX+j}\nv_lshlrev_b32 v5, 16, v{LW+j}\nv_fmac_f32 v2, v4, v5")
        a(f"v_and_b32 v4, 0xffff0000, v{LX+j}\nv_and_b32 v5, 0xffff0000, v{LW+j}\nv_fmac_f32 v2, v4, v5")
    half_reduce(a, 2)
    a("v_cvt_pk_bf16_f32 v2, v2, v2\nv_and_b32 v2, 0xffff, v2")
    a("v_bfe_i32 v3, v2, 15, 1\nv_and_b32 v3, 0x7fff, v3\nv_or_b32 v3, 0x8000, v3\nv_xor_b32 v2, v2, v3")
    a(f"s_lshl_b32 s7, s2, 3\ns_sub_u32 s6, 2047, s7\nv_sub_u32 v3, s6, v62\nv_lshl_or_b32 v2, v2, 11, v3\nv_lshlrev_b32 v3, 2, v62\nv_add_u32 v3, {LDS_RK}, v3\nds_write_b32 v3, v2\ns_waitcnt lgkmcnt(0)")

def ln_store(a, back):
    LV = 16
    a(f"s_lshr_b32 s72, s2, 1\ns_mul_i32 s72, s72, 20480\ns_and_b32 s7, s2, 1\ns_lshl_b32 s7, s7, 7\ns_add_u32 s72, s72, s7")
    for n in range(3):
        a(f"v_add_u32 v2, {256*n-256}, v0\nv_lshrrev_b32 v3, 3, v2\nv_and_b32 v4, 7, v2")
        a(f"v_mul_u32_u24 v5, 1280, v4\nv_lshl_add_u32 v5, v3, 4, v5\nv_add_u32 v5, {LDS_LN}, v5")
        a(f"ds_read_b128 {v(LV+8*n,4)}, v5\nv_lshlrev_b32 v5, 8, v3\nv_lshl_add_u32 v{6+n}, v4, 4, v5")
    a("s_waitcnt lgkmcnt(0)")
    for n in range(3):
        if n == 2: a(f"s_cmp_ge_u32 s{S_W}, 6\ns_cbranch_scc1 {back}")
        SC = "" if "lnplain" in ABL else " sc1"
        if "nolnst" not in ABL: a(f"buffer_store_dwordx4 {v(LV+8*n,4)}, v{6+n}, {WS}, s72 offen{SC}")
    a.label(back)
    zero_flags(a)

def count_atomic(a, which):
    a.srd(SRD_E, P_DBG, 256)
    a(f"v_mov_b32 v2, 1\nv_lshlrev_b32 v3, 8, v{L}\ns_and_b32 s6, s2, 31\ns_lshl_b32 s6, s6, 2\nbuffer_atomic_add v2, v3, {R(SRD_E)}, s6 offen offset:{128*which} sc1")

def flag_addr(a, kind, d):
    if kind == "kv":
        a(f"s_lshl_b32 s{d}, s{S_H}, 3\ns_add_u32 s{d}, s{d}, s{S_P}\ns_lshl_b32 s{d}, s{d}, 5\ns_add_u32 s{d}, s{d}, s{S_W}\ns_lshl_b32 s{d}, s{d}, 2\ns_add_u32 s{d}, s{d}, {WS_KVF}")
    elif kind == "ctx":
        a(f"s_lshl_b32 s{d}, s{S_B}, 5\ns_add_u32 s{d}, s{d}, s{S_H}\ns_lshl_b32 s{d}, s{d}, 7\ns_add_u32 s{d}, s{d}, {WS_CTXF}")
    elif kind == "b":
        a(f"s_lshl_b32 s{d}, s{S_P}, 5\ns_add_u32 s{d}, s{d}, s{S_H}\ns_lshl_b32 s{d}, s{d}, 5\ns_add_u32 s{d}, s{d}, s{S_W}\ns_lshl_b32 s{d}, s{d}, 2\ns_add_u32 s{d}, s{d}, {WS_BF}")
    else:
        a(f"s_lshl_b32 s{d}, s{S_E}, 5\ns_add_u32 s{d}, s{d}, s{S_W}\ns_lshl_b32 s{d}, s{d}, 2\ns_add_u32 s{d}, s{d}, {WS_MOEF}")

def tile_id(a, d):
    a(f"s_and_b32 s{d}, s{S_H}, 7\ns_lshl_b32 s7, s{S_P}, 3\ns_add_u32 s{d}, s{d}, s7")
def xslot(a, slot, d):
    tile_id(a, d)
    a(f"s_lshr_b32 s7, s{S_H}, 3\ns_add_u32 s7, s7, {slot}\ns_add_u32 s7, s7, 1\ns_and_b32 s7, s7, 3\ns_lshl_b32 s{d}, s{d}, 2\ns_add_u32 s{d}, s{d}, s7\ns_mul_i32 s{d}, s{d}, 3\ns_add_u32 s{d}, s{d}, {slot}")
def xf_addr(a, slot, d):
    xslot(a, slot, d)
    a(f"s_lshl_b32 s{d}, s{d}, 5\ns_add_u32 s{d}, s{d}, s{S_W}\ns_lshl_b32 s{d}, s{d}, 2\ns_add_u32 s{d}, s{d}, {WS_XF}")

def set_flag(a, kind, val=1):
    flag_addr(a, kind, 6)
    a(f"v_mov_b32 v2, {val}\nv_mov_b32 v3, {hex(WS_SIZE)}\nv_writelane_b32 v3, s6, 0\nbuffer_store_dword v2, v3, {WS}, 0 offen sc1")
    a.vm.issue("flag")

def phase_kv(a):
    def rdC(i, sp):
        if "kv_noC" in ABL: return
        a(f"ds_read_b128 {v(CF+4*i,4)}, v{RC+sp} offset:{i*2048}"); a.lg.issue(("C", i))
    def rdW(par, j, half, sp):
        if "kv_noW" in ABL: return
        r = WF + 16*par + 4*j + 2*half
        a(f"ds_read_b64_tr_b16 {v(r,2)}, v{RW+j} offset:{sp*8192 + half*1024}"); a.lg.issue(("W", par, j, half))
    wq = [(j, hf) for j in range(4) for hf in range(2)]
    def body(isK, lab, dma, nend, hook=None):
        def mm(i, j, par):
            if "k" in SNAKE and i & 1: j = 3 - j
            d = ACC + (i*4+j)*4
            a.wait_lg([("C", i), ("W", par, j, 0), ("W", par, j, 1)])
            if isK: a.mfma(d, WF+16*par+4*j, CF+4*i)
            else: a.mfma(d, CF+4*i, WF+16*par+4*j)
        a(".p2align 4")
        a.label(lab)
        if hook:
            a(f"s_bitcmp1_b32 {(0x80 if isK else 0xd6) & (0x7f if 'latex' in ABL else 0xff)}, s{S_ST}\ns_cbranch_scc1 {hook}"); a.label(hook + "_back")
        for i in range(8):
            for j in range(4):
                mm(i, j, 0)
                if i < 2: rdW(1, *wq[i*4+j], 1)
            rdC(i, 1)
        dma = list(dma)
        if "kv_nodma" in ABL: dma = []
        for i in range(8):
            for j in range(4):
                mm(i, j, 1)
                if i == 2 or i == 3: rdW(0, *wq[(i-2)*4+j], 0)
                if i >= 2 and dma:
                    for y in dma.pop(0): a(y)
            if i == 1:
                for r in (RC, RC+1, RW, RW+1, RW+2, RW+3): a(f"v_xor_b32 v{r}, 0x10000, v{r}")
                if isK and hook and "oldb7" not in ABL:
                    a(f"s_cmp_eq_u32 s{S_ST}, 7\ns_cbranch_scc1 {'L_kx' if 'latex' in ABL else 'L_know'}\ns_waitcnt vmcnt(0)")
                    a.label("L_know")
                    a("s_waitcnt lgkmcnt(0)\ns_barrier")
                elif isK: a("s_waitcnt vmcnt(0) lgkmcnt(0)\ns_barrier")
                else:
                    a(f"s_bitcmp1_b32 {0xc8 if 'latex' in ABL else 0x48}, s{S_ST}\ns_cbranch_scc1 L_vpre")
                    a.label("L_vnow")
                    a("s_waitcnt lgkmcnt(0)\ns_barrier")
                a.lg.drain()
                a.stampd(S_ST, 24)
                rdC(0, 0); rdC(1, 0)
            elif i >= 2: rdC(i, 0)
        emit_groups(a, dma)
        a(f"s_add_u32 s{S_ST}, s{S_ST}, 1\ns_cmp_lt_u32 s{S_ST}, {nend}\ns_cbranch_scc1 {lab}")
    def first_reads():
        a.lg.drain()
        rdC(0, 0); rdC(1, 0)
        for k in range(4): rdW(0, *wq[k], 0)
        rdC(2, 0)
        for k in range(4, 8): rdW(0, *wq[k], 0)
        for i in range(3, 8): rdC(i, 0)
    a(f"s_cmp_ge_u32 s{S_W}, 4\ns_cbranch_scc1 L_kv_v")
    first_reads()
    q0 = list(a.lg.q)
    emit_groups(a, kv_dma_ops()[10:])
    a.stamp(5)
    body(True, "L_kloopA", kv_dma_ops(), 6)
    assert a.lg.q == q0, (a.lg.q, q0)
    body(True, "L_kloopB", wq_dma_ops(2), 8, hook="L_khook" if "kx2" not in ABL else None)
    a.stamp(6)
    a("s_waitcnt lgkmcnt(0)\ns_nop 7")
    for n in range(16):
        t = ACC + 4*n; d0 = ACC + 8*n; d1 = d0 + 4
        a(f"v_cvt_pk_bf16_f32 v{t}, v{d0}, v{d0+1}\nv_cvt_pk_bf16_f32 v{t+1}, v{d0+2}, v{d0+3}")
        a(f"v_cvt_pk_bf16_f32 v{t+2}, v{d1}, v{d1+1}\nv_cvt_pk_bf16_f32 v{t+3}, v{d1+2}, v{d1+3}")
    a("s_waitcnt vmcnt(16)\ns_branch L_q")
    a.label("L_hook")
    for k in (1, 2, 4, 6): a(f"s_cmp_eq_u32 s{S_ST}, {k}\ns_cbranch_scc1 L_hook{k}")
    a(f"s_cmp_lg_u32 s{S_ST}, 7\ns_cbranch_scc1 L_hook_back")
    for ks in range(3): x_load(a, ks, XEARLY[2*ks:2*ks+2])
    a("s_branch L_hook_back")
    a.label("L_hook1")
    if LNH == 1: ln_store(a, "L_lns")
    for st in TV1: kv_touch(a, st)
    a("s_branch L_hook_back")
    a.label("L_hook2")
    if LNH == 2: ln_store(a, "L_lns")
    for st in TV2: kv_touch(a, st)
    a("s_branch L_hook_back")
    a.label("L_hook4")
    WOTR = [16, 20, 24, 28, 32]
    a(f"s_cmp_lg_u32 s{S_W}, 4\ns_cbranch_scc1 L_hook4b")
    count_atomic(a, 0)
    a.label("L_hook4b")
    a(f"s_lshl_b32 s74, s76, 12\ns_add_u32 s74, s74, {LDS_SP}")
    emit_groups(a, wq_dma_ops(1))
    a("s_branch L_hook_back")
    a.label("L_hook6")
    a(f"s_cmp_lg_u32 s{S_W}, 5\ns_cbranch_scc1 L_hook_back")
    cnt_addr(a); a(cnt_load(a, 62, 0))
    a("s_branch L_hook_back")
    if "latex" in ABL:
        a.label("L_kx")
        for ks in range(3): x_load(a, ks, XEARLY[2*ks:2*ks+2])
        a("s_branch L_know")
        a.label("L_vx")
        for ks in range(3): x_load(a, ks, XEARLY[2*ks:2*ks+2])
        a("s_branch L_vnow")
    a.label("L_vpre")
    if "latex" in ABL: a(f"s_cmp_eq_u32 s{S_ST}, 7\ns_cbranch_scc1 L_vx")
    a(f"s_waitcnt vmcnt(0)\ns_lshl_b32 s6, s{S_ST}, 4\ns_add_u32 s6, s6, s{S_W}\ns_cmp_lg_u32 s6, 0x65\ns_cbranch_scc1 L_vnow")
    cnt_check(a, 62, 0)
    a("s_branch L_vnow")
    a.label("L_khook")
    a(f"s_cmp_lg_u32 s{S_ST}, 7\ns_cbranch_scc1 L_khook_back")
    for ks in range(3): x_load(a, ks, XEARLY[2*ks:2*ks+2])
    a("s_branch L_khook_back")
    a.label("L_kv_v")
    first_reads()
    for st in TV0: kv_touch(a, st)
    a.stamp(5)
    body(False, "L_vloop", [], 8, hook="L_hook")
    a.stamp(6)
    a("s_waitcnt lgkmcnt(0)\ns_nop 7")
    for ii in range(4):
        for j in range(4):
            t = ACC + 16*ii + 4*j; d0 = ACC + 32*ii + 4*j; d1 = d0 + 16
            a(f"v_cvt_pk_bf16_f32 v{t}, v{d0}, v{d0+1}\nv_cvt_pk_bf16_f32 v{t+1}, v{d0+2}, v{d0+3}")
            a(f"v_cvt_pk_bf16_f32 v{t+2}, v{d1}, v{d1+1}\nv_cvt_pk_bf16_f32 v{t+3}, v{d1+2}, v{d1+3}")
    a("s_waitcnt vmcnt(0)")

QF, O_, S_, FR, P_, NM, T_, L_, ET = 16, 192, 64, 96, 128, 144, 52, 56, 58
VA, VDK, VDV = 48, 49, 50
S_N, S_NL, S_C, S_THR = 62, 63, 64, 65
LA, ONES, SIDX = 160, 164, 168
OFFS = 0x41c00000
def Sreg(par, kt, qt): return S_ + 16*par + (kt*2+qt)*4
def NMreg(kt, qt): return NM + (kt*2+qt)*4
def Oreg(t, qt): return O_ + (t*2+qt)*4
def Qreg(qt, s): return QF + (qt*4+s)*4
def Preg(par, qt): return P_ + 8*par + 4*qt
def Treg(par, qt): return T_ + 2*par + qt

def xlane(a, op, r, t):
    for sw in ("v_permlane16_swap_b32", "v_permlane32_swap_b32"):
        a(f"v_mov_b32 v{t}, v{r}\ns_nop 1\n{sw} v{r}, v{t}\ns_nop 1\n{op} v{r}, v{r}, v{t}")

def st_dma(a, parts):
    if "K" in parts:
        for hf in range(2):
            a(f"s_lshl_b32 s6, s76, 13\ns_add_u32 s6, s6, s78\ns_add_u32 m0, s6, {hf*4096}\ns_add_u32 s7, s77, {hf*4096}")
            for i in range(4): a(f"buffer_load_dwordx4 v{VDK}, {WS}, s7 offen offset:{i*1024} sc1 lds")
    for hf in range(2):
        if f"V{hf}" in parts:
            a(f"s_lshl_b32 s6, s76, 12\ns_add_u32 s6, s6, s78\ns_add_u32 m0, s6, {32768+hf*16384}\ns_add_u32 s7, s77, {0x80000-16384+hf*16384}")
            for i in range(4): a(f"buffer_load_dwordx4 v{VDV}, {WS}, s7 offen offset:{i*1024} sc1 lds")

S_HK, S_ALL = 89, 90
def kv_self_touch(a):
    a(f"v_lshrrev_b32 v9, 3, v{L}\ns_cmp_lt_u32 s{S_W}, 4\ns_cselect_b32 s7, 6, 4\nv_and_b32 v10, s7, v9\nv_add_u32 v9, v9, v10\nv_lshlrev_b32 v9, 10, v9")
    a(f"v_and_b32 v10, 7, v{L}\nv_lshl_add_u32 v9, v10, 7, v9\ns_sub_u32 s6, s{S_KVD}, 32768")
    a(f"buffer_load_dword v{VDUM}, v9, {WS}, s6 offen sc1\ns_add_u32 s6, s6, 16384\nbuffer_load_dword v{VDUM}, v9, {WS}, s6 offen sc1")

def kvf_addr(a):
    a(f"s_lshl_b32 s7, s{S_H}, 10\ns_add_u32 s7, s7, {WS_KVF}\nv_lshrrev_b32 v2, 3, v{L}\nv_and_b32 v3, 7, v{L}\nv_lshlrev_b32 v3, 2, v3\nv_lshl_add_u32 v3, v2, 7, v3")
def kv_flag_wait(a, level):
    kvf_addr(a)
    poll(a, f"buffer_load_dword v2, v3, {WS}, s7 offen sc1", f"v_cmp_gt_u32 vcc, {level}, v2")

KS_POLL = int(os.environ.get("KSP", "15"))
LATE_KS = tuple(int(x) for x in os.environ.get("STKS", "0,1,2,3,16,17,18,19").split(","))
KS_FLAG = int(os.environ.get("KSF", "6"))
NEARLY = int(os.environ.get("NEARLY", "2"))
def kv_store(a, n, late=True):
    if late and "nolate" in ABL: return
    a(f"buffer_store_dwordx4 {v(ACC+4*n,4)}, v{VL16}, {WS}, s{S_KVD} offen sc1"); a.vm.issue(("st", n))
    inc = ("1024", f"s{S_INCA}", "1024", f"s{S_INCB}")[n & 3]
    a(f"s_add_u32 s{S_KVD}, s{S_KVD}, {inc}")
def q_body(a):
    sfx = ""
    a.lg.drain(); a.vm.drain()
    def rdW(t, hf, ks):
        blk = ks >> 2
        off = (0, 0, 32768, 0, 32768)[blk] + (ks & 3)*8192 + hf*1024
        a(f"ds_read_b64_tr_b16 {v(WF+4*t+2*hf,2)}, v{QRW+t} offset:{off}"); a.lg.issue(("W", t, hf))
    for t in range(8):
        rdW(t, 0, 0); rdW(t, 1, 0)
    xr = {ks: XEARLY[2*ks:2*ks+2] for ks in range(3)}
    for ks in range(3, 7):
        xr[ks] = [CF + 8*(ks-3), CF + 8*(ks-3) + 4]
        x_load(a, ks, xr[ks])
    nst = 0
    for ks in range(20):
        pend = []
        a.wait_vm(("X", ks))
        if ks % 2 == 0: a.stamp(32 + ks//2)
        barrier_here = ks == 11 or (ks == 3 and "oldb7" not in ABL)
        upd = {3: -LDS_SP, 11: 65536}.get(ks)
        st_at = (3,) if ks in LATE_KS else ()
        for t in range(8):
            for qt in range(2):
                if qt == 0: a.wait_lg([("W", t, 0), ("W", t, 1)])
                q = qt ^ (t & 1) if "q" in SNAKE else qt
                a.mfma(Oreg(t, q), WF+4*t, xr[ks][q], "0" if ks == 0 else None)
                if qt == 1 and ks < 19: pend += [(t, 0), (t, 1)]
                if barrier_here and t == 1 and qt == 1:
                    a("s_waitcnt lgkmcnt(0)\ns_barrier"); a.lg.drain()
                    while len(pend) > 2: rdW(*pend.pop(0), ks+1)
                if pend and not (barrier_here and (t, qt) < (1, 1)): rdW(*pend.pop(0), ks+1)
                if upd is not None and qt == 0:
                    a(f"v_add_u32 v{QRW+t}, s101, v{QRW+t}" if ks == 3 else f"v_xor_b32 v{QRW+t}, 0x10000, v{QRW+t}")
                if qt == 0 and t in st_at and nst < 16:
                    kv_store(a, nst); nst += 1
        while pend: rdW(*pend.pop(0), ks+1)
        if ks + 7 < 20:
            xr[ks+7] = xr[ks]; x_load(a, ks+7, xr[ks])
        if ks == KS_FLAG:
            a.wait_vm(("st", 3))
            set_flag(a, "kv", 1)
        if ks == KS_POLL:
            a.wait_vm(("X", 19))
            a(f"s_cmp_ge_u32 s{S_W}, 4\ns_cbranch_scc1 L_q_nold{sfx}")
            a.stamp(20)
            kv_flag_wait(a, 1)
            a.stamp(21)
            st_dma(a, ["K", "V1"])
            a.label(f"L_q_nold{sfx}")
    assert nst == len(LATE_KS) and 8 <= nst <= 12

def phase_q(a):
    a.label("L_q")
    a.srd(SRD_E, P_DBG, 256)
    a(f"s_lshl_b32 s6, s76, 13\nv_add_u32 v{VDK}, s6, v{VL16}\ns_lshl_b32 s6, s76, 12\nv_add_u32 v{VDV}, s6, v{VL16}")
    a(f"s_lshl_b32 s77, s{S_H}, 20\ns_add_u32 s77, s77, {WS_KV}\ns_mov_b32 s78, s100\ns_sub_u32 s101, s100, {LDS_SP}\ns_mov_b32 s{S_ALL}, 0")
    a(f"s_cmp_lt_u32 s{S_W}, 4\ns_cselect_b32 s{S_HK}, 3, 2")
    q_body(a)
    a.stamp(7)
    if "symq" not in ABL:
        a(f"s_cmp_lt_u32 s{S_W}, 4\ns_cbranch_scc1 L_qb\ns_barrier")
        a.label("L_qb")
    a("s_mov_b32 s6, 0x3e0293ee\ns_nop 7")
    for qt in range(2):
        for n in range(len(LATE_KS), 12):
            if (n & 1) == qt or 12 - len(LATE_KS) == 1: pass
        if qt == 0:
            for n in range(len(LATE_KS), 12): kv_store(a, n)
        for s_ in range(4):
            for hf in range(2):
                d = Oreg(2*s_+hf, qt)
                if "pkq" in ABL:
                    for r in (0, 2): a(f"v_pk_mul_f32 {v(d+r,2)}, {v(d+r,2)}, s[6:7] op_sel_hi:[1,0]")
                else:
                    for r in range(4): a(f"v_mul_f32 v{d+r}, s6, v{d+r}")
                a(f"v_cvt_pk_bf16_f32 v{Qreg(qt,s_)+2*hf}, v{d}, v{d+1}\nv_cvt_pk_bf16_f32 v{Qreg(qt,s_)+2*hf+1}, v{d+2}, v{d+3}")
    zero_regs(a, O_, 64)
    zero_regs(a, NM, 16)
    zero_regs(a, LA, 4)
    a(f"v_bfe_u32 v2, v{L}, 1, 1\nv_lshrrev_b32 v3, 5, v{L}\nv_cmp_eq_u32 vcc, v2, v3\nv_mov_b32 v2, 0x3f803f80\nv_and_b32 v3, 1, v{L}\nv_mul_u32_u24 v3, 0xaaaa, v3\nv_add_u32 v{SIDX}, 0x4444, v3")
    for i in range(4): a(f"v_cndmask_b32 v{ONES+i}, 0, v2, vcc")
    a(f"v_add_u32 v{VA}, s100, v{VL16}")
    a(f"s_waitcnt vmcnt({12 - len([k for k in LATE_KS if k <= KS_POLL])})")

def sm_ops(par):
    ops = []
    n = 0
    for kt in range(2):
        for qt in range(2):
            for r in range(4):
                t, tp = ET + n % 4, ET + (n-1) % 4
                e = f"v_exp_f32 v{t}, v{Sreg(par,kt,qt)+r}"
                rest = []
                if r & 1: rest.append(f"v_cvt_pk_bf16_f32 v{Preg(par,qt)+2*kt+(r>>1)}, v{tp}, v{t}")
                ops.append((e, rest)); n += 1
    return ops

def phase_attn(a):
    handlers = []
    FULLQ = [("F", i) for i in range(1, 8)]
    def rd(kind, i, k):
        off = (0 if kind == "K" else 32768) + k*8192 + i*1024
        a(f"ds_read_b128 {v(FR+4*i,4)}, v{VA} offset:{off}"); a.lg.issue(("F", i))
    def bar(wait="vmcnt(0) lgkmcnt(0)", mid=None, hot=False):
        bk = a.newlabel("ldback")
        if hot:
            a(f"s_cbranch_scc1 {bk}_c\ns_barrier")
            a.label(bk)
            handlers.append(("ld", bk))
        else:
            a(f"s_waitcnt {wait}\ns_call_b64 s[82:83], L_pend\ns_barrier")
            if mid: mid()
            a(f"s_call_b64 s[82:83], L_load")
        a.lg.drain()
        if "stampbar" in ABL: a.stampd(S_N, 44)
        a(f"s_add_i32 s{S_N}, s{S_N}, 1")
    def stage(k, qk=True, sm=True, pv=True, nxt=True, loop=False):
        pq, ps = k & 1, 1 - (k & 1)
        full = qk and pv
        pairs = []
        if pv: pairs += [("V", i) for i in range(8)]
        if qk: pairs += [("K", i) for i in range(8)]
        NP = len(pairs)
        lp = None if not pv else 1 if not full else LPOS - 1 if k == 3 else 13
        g0 = [[] for _ in range(NP)]; g1 = [[] for _ in range(NP)]; gl = []
        if sm:
            ops = sm_ops(ps)[2:]
            g1[0] += sm_ops(ps)[1][1]
            per = 1 if full else 2
            for n, (e, rest) in enumerate(ops):
                g0[n//per].append(e); g1[n//per] += rest
            c = [Preg(ps, qt) + 2*kt + h for kt in range(2) for qt in range(2) for h in range(2)]
            X = ET + 4
            chk = [f"v_or3_b32 v{X}, v{c[0]}, v{c[1]}, v{c[2]}", f"v_or3_b32 v{X}, v{X}, v{c[3]}, v{c[4]}", f"v_or3_b32 v{X}, v{X}, v{c[5]}, v{c[6]}",
                   f"v_bitop3_b32 v{X}, v{X}, v{c[7]}, s72 bitop3:0xa8", f"v_cmp_ne_u32 vcc, s{S_THR}, v{X}"]
            if full:
                g1[4].append(chk[0]); g1[8].append(chk[1]); g1[12].append(chk[2])
                (gl if lp == 13 else g1[14]).append(chk[3]); g1[14].append(chk[4])
            else: g0[7] += chk
        if full:
            for n, (e, rest) in enumerate(sm_ops(pq)[:2]): g0[14+n].append(e)
        sc = {}
        if loop:
            sc[1] = f"s_sub_i32 s{S_C}, s{S_C}, 1"; sc[3] = f"s_cmp_gt_i32 s{S_C}, 0"; sc[5] = f"s_cselect_b32 s{S_THR}, 0, 1"
            if k == 3: sc[lp-1] = f"s_cmp_lg_u32 s{S_HK}, 0"
        barp = lp if k == 3 else None
        if barp is not None: g1[barp-1].append(f"v_xor_b32 v{VA}, 0x10000, v{VA}")
        held = []
        for n, (kind, i) in enumerate(pairs):
            for qt in range(2):
                q = qt ^ (i & 1) if "a" in SNAKE else qt
                if kind == "V": a.mfma(Oreg(i, q), FR+4*i, Preg(pq, q))
                else: a.mfma(Sreg(pq, i >> 2, q), FR+4*i, Qreg(q, i & 3), None if i & 3 else NMreg(i >> 2, q))
                if qt == 0:
                    if n + 1 < NP: a.wait_lg(("F", pairs[n+1][1]))
                    elif nxt: a.wait_lg(("F", 0))
                    for x in g0[n]: a(x)
                else:
                    if n in sc: a(sc[n])
                    if n == barp and loop:
                        a("s_waitcnt lgkmcnt(0)"); a.lg.drain()
                    if kind == "V" and qk: rd("K", i, k)
                    elif nxt:
                        if barp is not None and n <= barp: held.append(i)
                        else: rd("V", i, (k+1) & 3)
                    for x in g1[n]: a(x)
            if n == lp:
                a(f"v_smfmac_f32_16x16x64_bf16 {v(LA,4)}, {v(ONES,4)}, {v(Preg(pq,0),8)}, v{SIDX}")
                for x in gl: a(x)
                if n == barp:
                    bar(hot=loop)
                    for h in held: rd("V", h, 0)
        if sm:
            bk = a.newlabel("back")
            if loop and k == 3:
                a(f"s_cbranch_vccz L_st0\ns_branch {bk}_h")
                handlers.append(("sm", bk, k, loop, full, "L_st0"))
            else:
                a(f"s_cbranch_vccnz {bk}_h")
                a.label(bk)
                handlers.append(("sm", bk, k, loop, full, bk))
    a(f"s_mov_b32 s72, 0x40004000\ns_mov_b32 s{S_THR}, 0\ns_sub_u32 s{S_NL}, 15, s{S_P}\ns_mov_b32 s{S_N}, -1")
    a.stamp(8)
    if "symq" in ABL: bar("lgkmcnt(0)")
    else:
        a(f"s_cmp_ge_u32 s{S_W}, 4\ns_cbranch_scc1 L_qb2\ns_barrier")
        a.label("L_qb2")
        a.lg.drain()
        if "stampbar" in ABL: a.stampd(S_N, 44)
    a.stamp(9)
    for i in range(8): rd("K", i, 0)
    a(f"s_cmp_lg_u32 s{S_B}, 0\ns_cbranch_scc1 L_nm0\ns_call_b64 s[82:83], L_mask")
    a.label("L_nm0")
    for i in range(8):
        a.wait_lg(("F", i))
        for qt in range(2):
            a.mfma(Sreg(0, i >> 2, qt), FR+4*i, Qreg(qt, i & 3), None if i & 3 else NMreg(i >> 2, qt))
        rd("K", i, 1)
    a("s_nop 7")
    for qt in range(2):
        m = ET + qt
        s0, s1 = Sreg(0, 0, qt), Sreg(0, 1, qt)
        a(f"v_max3_f32 v{m}, v{s0}, v{s0+1}, v{s0+2}\nv_max3_f32 v{m}, v{m}, v{s0+3}, v{s1}\nv_max3_f32 v{m}, v{m}, v{s1+1}, v{s1+2}\nv_max_f32 v{m}, v{m}, v{s1+3}")
        xlane(a, "v_max_f32", m, ET+2)
        a(f"v_add_f32 v{m}, {hex(OFFS)}, v{m}")
        for kt in range(2):
            for r in range(4):
                a(f"v_sub_f32 v{Sreg(0,kt,qt)+r}, v{Sreg(0,kt,qt)+r}, v{m}\nv_sub_f32 v{NMreg(kt,qt)+r}, 0, v{m}")
    a(f"s_cmp_lg_u32 s{S_B}, 1\ns_cbranch_scc1 L_nm1\ns_call_b64 s[82:83], L_mask")
    a.label("L_nm1")
    def early(par):
        o = sm_ops(par)[:2]
        a(o[0][0]); a(o[1][0])
    early(0)
    a.wait_lg(("F", 0))
    stage(1, pv=False)
    assert a.lg.q == FULLQ
    a("s_nop 7")
    early(1)
    if "symq" not in ABL: a(f"s_call_b64 s[82:83], L_load\ns_mov_b32 s{S_N}, 0")
    for n in range(12, 16): kv_store(a, n)
    if "pr_fin" in ABL: a("s_setprio 1")
    if "pr_long" in ABL:
        a(f"s_cmp_lt_u32 s{S_W}, 4\ns_cbranch_scc1 L_prl\ns_setprio 2")
        a.label("L_prl")
    a(f"s_sub_i32 s{S_C}, s{S_B}, 2")
    a.stamp(10)
    a(f"s_cmp_eq_u32 s{S_B}, 0\ns_cbranch_scc1 L_pv2\ns_cmp_eq_u32 s{S_B}, 1\ns_cbranch_scc1 L_tail2")
    a(f"s_cmp_lg_u32 s{S_B}, 2\ns_cbranch_scc1 L_st2\ns_call_b64 s[82:83], L_mask\ns_branch L_st2")
    a(".p2align 6")
    a.label("L_st0")
    for k in range(4):
        if k == 2: a.label("L_st2")
        stage(k, loop=True)
        assert a.lg.q == FULLQ, a.lg.q
    for k in range(4):
        a.label(f"L_tail{k}")
        a.lg.q = list(FULLQ)
        a(f"s_mov_b32 s{S_THR}, 0")
        stage(k, qk=False)
        assert a.lg.q == FULLQ
        a.label(f"L_pv{(k+1)&3}")
        stage((k+1) & 3, qk=False, sm=False, nxt=False)
        if k == 1 and "nopvb" not in ABL:
            a(f"s_cmp_eq_u32 s{S_B}, 0\ns_cbranch_scc1 L_fin")
            bar()
        if k < 3: a("s_branch L_fin")
    a.label("L_fin")
    if "pr_fin" in ABL: a("s_setprio 0")
    a.stamp(11)
    idx_addr(a); a(f"buffer_load_dword v{VIDX}, v3, {WS}, s72 offen sc1")
    for qt in range(2): a(f"v_add_f32 v{L_+qt}, v{LA+2*qt}, v{LA+2*qt+1}\nv_rcp_f32 v{L_+qt}, v{L_+qt}")
    a(f"s_lshl_b32 s6, s{S_B}, 18\ns_lshl_b32 s7, s{S_H}, 12\ns_add_u32 s6, s6, s7\ns_add_u32 s6, s6, {WS_CTX}\ns_nop 4")
    n = 0
    a.vm.drain()
    for qt in range(2):
        for s_ in range(4):
            t = QF + 4*n; n += 1
            for hf in range(2):
                d = Oreg(2*s_+hf, qt)
                if "pkfin" in ABL:
                    sel = "op_sel_hi:[1,0]" if qt == 0 else "op_sel:[0,1] op_sel_hi:[1,1]"
                    for r in (0, 2): a(f"v_pk_mul_f32 {v(d+r,2)}, {v(d+r,2)}, {v(L_,2)} {sel}")
                else:
                    for r in range(4): a(f"v_mul_f32 v{d+r}, v{L_+qt}, v{d+r}")
                a(f"v_cvt_pk_bf16_f32 v{t+2*hf}, v{d}, v{d+1}\nv_cvt_pk_bf16_f32 v{t+2*hf+1}, v{d+2}, v{d+3}")
            a(f"buffer_store_dwordx4 {v(t,4)}, v{VL16}, {WS}, s6 offen offset:{s_*1024} sc1"); a.vm.issue("st")
        if qt == 0: a("s_add_u32 s6, s6, 0x20000")
    a.stamp(12)
    def flag_now():
        a("s_waitcnt vmcnt(0)")
        set_flag(a, "ctx")
    a(f"s_cmp_gt_i32 s{S_N}, s{S_NL}\ns_cbranch_scc1 L_pre")
    bar("vmcnt(8)", flag_now)
    a(f"s_lshl_b32 s6, s{S_W}, 8\ns_add_u32 s6, s6, s2\ns_cmp_eq_u32 s6, {DESIG}\ns_cbranch_scc1 L_top")
    a.label("L_idle")
    a(f"s_sub_i32 s6, s{S_NL}, 5\ns_cmp_gt_i32 s{S_N}, s6\ns_cbranch_scc1 L_pre")
    bar()
    a(f"s_cmp_lt_u32 s{S_E}, 54\ns_cbranch_scc1 L_moe\ns_branch L_idle")
    a.label("L_pre")
    a(f"s_cmp_lt_u32 s{S_W}, 4\ns_cbranch_scc1 L_pre1")
    a.stamp(19)
    a("s_barrier")
    a(f"s_lshl_b32 s7, s76, 13\ns_add_u32 s7, s7, 0x10000\nv_add_u32 v3, s7, v{VL16}\nv_add_u32 v2, 0x10000, v3\ns_lshl_b32 s7, s76, 12\ns_add_u32 s7, s7, 0x10000\nv_add_u32 v12, s7, v{VL16}")
    def wrd(fs):
        for f in fs:
            r, off = (2, f*1024) if f < 8 else (3, (f-8)*1024) if f < 16 else (12, 49152+(f-16)*1024)
            a(f"ds_read_b128 {v(WR+4*f,4)}, v{r} offset:{off}")
    wrd(range(12))
    out_setup(a, 1)
    out_cx(a)
    wrd(range(12, 20))
    NWF = int(os.environ.get("NWF", "1"))
    if "w0in" in ABL:
        a("s_waitcnt lgkmcnt(0)\ns_barrier")
        wo_load(a, 4)
    else:
        for i in range(4, 4+NWF): wo_load(a, i)
        a(f"s_waitcnt vmcnt({5*NWF})")
        set_flag(a, "ctx")
        for i in range(4+NWF, 8): wo_load(a, i)
        a("s_waitcnt lgkmcnt(0)\ns_barrier")
    a("s_branch L_adone")
    a.label("L_pre1")
    cnt_addr(a); a(cnt_load(a, 12, 1))
    out_setup(a, 0)
    if "xnt" in ABL:
        a.srd(SRD_A, P_X, 2048*640*2)
        a(f"v_min_u32 v2, 39, v{L}\nv_mul_u32_u24 v3, 52, v2\nv_lshrrev_b32 v3, 8, v3\nv_mul_u32_u24 v4, 5, v3\nv_sub_u32 v2, v2, v4\nv_mul_u32_u24 v3, 1280, v3\nv_lshl_add_u32 v2, v2, 6, v3")
        a(f"s_cmp_lt_u32 s{S_W}, 2\ns_cselect_b32 s6, s{S_OB}, s{S_OL}\ns_lshl_b32 s6, s6, 1\ns_and_b32 s7, s{S_W}, 1\ns_add_u32 s6, s6, s7\ns_mul_i32 s6, s6, 10240\ns_and_b32 s7, s{S_H}, 3\ns_mul_i32 s7, s7, 320\ns_add_u32 s6, s6, s7")
        a(f"buffer_load_dword v{VDUM}, v2, {R(SRD_A)}, s6 offen")
    for j in range(5):
        if j == 1:
            a("v_cmp_gt_u32 vcc, 4, v12\ns_cbranch_vccz L_wok")
            a.label("L_wpoll")
            cnt_addr(a); poll(a, cnt_load(a, 2, 1), "v_cmp_gt_u32 vcc, 4, v2", sleep=8)
            a.label("L_wok")
            a(f"s_mov_b32 s{S_ALL}, 1")
        if j == 3: y_look(a)
        if j == 4: y_try(a)
        PIECES = eval(os.environ.get("PIECES", "((), (0,1,2), (3,4,5), (6,7))"))
        if j < 4:
            for i in PIECES[j]: wo_load(a, i)
        if j == 4:
            ctxf_addr(a, S_OB); a(f"buffer_load_dword v50, v3, {WS}, s72 offen sc1")

        if j == 0: a(f"s_sub_i32 s6, s{S_NL}, 4\ns_cmp_gt_i32 s{S_N}, s6\ns_cbranch_scc1 L_wpoll")
        else: a(f"s_cmp_gt_i32 s{S_N}, s{S_NL}\ns_cbranch_scc1 L_e{j+2}")
        if j < 4:
            a(f"s_cmp_eq_i32 s{S_N}, s{S_NL}\ns_cbranch_scc1 L_lw{j}\ns_waitcnt vmcnt({5*len(PIECES[j])})")
            a.label(f"L_lw{j}")
        bar(f"vmcnt({20 if 'nocode2' in ABL else 21})")
        a.label(f"L_e{j+2}")
    a.stamp(22)
    moe_finish(a)
    out_cx(a)
    a("s_waitcnt vmcnt(0)\nv_cmp_ne_u32 vcc, 1, v50\ns_cbranch_vccz L_ce")
    ctxf_addr(a, S_OB)
    poll(a, f"buffer_load_dword v2, v3, {WS}, s72 offen sc1", "v_cmp_ne_u32 vcc, 1, v2", sleep=4)
    a.label("L_ce")
    for r in range(NPC):
        for x in ctx_dma(r) + ctx_dma(r, 16384): a(x)
    y_is(a, "L_yg")
    set_flag(a, "b")
    a("s_waitcnt vmcnt(1)\ns_branch L_ye")
    a.label("L_yg")
    a("s_waitcnt vmcnt(0)")
    a.label("L_ye")
    a.stamp(23)
    a("s_setprio 0")
    a.stamp(19)
    a("s_barrier")
    for r in range(NPC, 2):
        for x in ctx_dma(r) + ctx_dma(r, 16384): a(x)
    a.stamp(15)
    a("s_branch L_adone")
    y_loads(a)
    moe_steps(a, bar)
    top8(a, bar)
    for h in handlers:
        if h[0] == "ld":
            a.label(h[1] + "_c"); a(f"s_waitcnt vmcnt(0) lgkmcnt(0)\ns_call_b64 s[82:83], L_pend\ns_barrier\ns_call_b64 s[82:83], L_load\ns_branch {h[1]}")
        else:
            _, bk, k, loop, full, back = h
            a.label(bk + "_h")
            a(f"v_cmp_ne_u32 vcc, 0, v{ET+4}\ns_cbranch_vccz {bk}_n\ns_call_b64 s[80:81], L_rare{1-(k&1)}")
            if full:
                o = sm_ops(k & 1)[:2]
                a(o[0][0]); a(o[1][0])
            a.label(bk + "_n")
            if loop:
                a(f"s_cmp_lt_i32 s{S_C}, 0\ns_cbranch_scc1 L_tail{(k+1)&3}\ns_cmp_gt_i32 s{S_C}, 0\ns_cbranch_scc1 {back}\ns_call_b64 s[82:83], L_mask")
            a(f"s_branch {back}")
    a.label("L_load")
    a(f"s_bitcmp1_b32 s{S_HK}, 0\ns_cbranch_scc0 L_load_r")
    a(f"s_add_u32 s77, s77, 32768\ns_xor_b32 s78, s78, 0x10000\ns_add_i32 s73, s{S_N}, 1\ns_cmp_gt_i32 s73, s{S_NL}\ns_cbranch_scc1 L_load_r")
    if "at_nodma" not in ABL:
        a(f"s_cmp_eq_i32 s73, s{S_NL}\ns_cbranch_scc1 L_load_v\ns_cmp_lg_i32 s73, 3\ns_cbranch_scc1 L_load_k")
        a("v_cmp_gt_u32 vcc, 2, v12\ns_cbranch_vccz L_load_k")
        kv_flag_wait(a, 2)
        a.label("L_load_k")
        st_dma(a, ["K", "V1"])
        a.label("L_load_v")
        st_dma(a, ["V0"])
    a(f"s_cmp_eq_i32 s73, s{S_NL}\ns_cbranch_scc1 L_xa\ns_cmp_lg_i32 s73, 2\ns_cbranch_scc1 L_nolook")
    kvf_addr(a); a(f"buffer_load_dword v12, v3, {WS}, s7 offen sc1")
    a.label("L_nolook")
    a(f"s_bitcmp1_b32 {WOTM}, s{S_P}\ns_cbranch_scc0 L_wb\ns_sub_i32 s6, s{S_N}, {WOTN}\ns_cmp_gt_u32 s6, 4\ns_cbranch_scc0 L_wsel")
    a.label("L_wb")
    a(f"s_cmp_lt_u32 s{S_P}, 4\ns_cbranch_scc1 L_load_r")
    a(f"s_sub_i32 s79, s73, 1\ns_cmp_lt_u32 s79, 2\ns_cbranch_scc1 L_x3")
    a.label("L_load_r")
    a("s_setpc_b64 s[82:83]")
    a.label("L_pend")
    a(f"s_bitcmp1_b32 s{S_HK}, 1\ns_cbranch_scc0 L_load_a\ns_cmp_lt_i32 s{S_N}, 0\ns_cbranch_scc1 L_load_a")
    set_flag(a, "kv", 2)
    a(f"s_and_b32 s{S_HK}, s{S_HK}, 1")
    a.label("L_load_a")
    a("s_setpc_b64 s[82:83]")
    def wo_dma(fs, m0base, m0off):
        for i, f in enumerate(fs):
            a(f"s_add_u32 m0, {m0base}, {m0off + i*1024}\ns_add_u32 s7, s{84 + f%5}, {(f//5)*40960}\nbuffer_load_dwordx4 v{VL16}, {WS}, s7 offen sc1 lds")
    WOTR = [172, 176, 180, 184, 188]
    a.label("L_wsel")
    a(f"s_bfm_b32 s7, s{S_P}, 0\ns_and_b32 s7, s7, {WOTM}\ns_bcnt1_i32_b32 s7, s7\ns_lshl_b32 s7, s7, 5\ns_and_b32 s91, s2, 31\ns_add_u32 s91, s91, s7\ns_lshl_b32 s91, s91, 1\ns_lshr_b32 s7, s6, 1\ns_add_u32 s91, s91, s7\ns_cmp_eq_u32 s6, 4\ns_cbranch_scc1 L_w2\ns_bitcmp1_b32 s6, 0\ns_cbranch_scc1 L_w1")
    a.label("L_w0")
    a.srd(SRD_E, P_WO, 4096*640*2)
    a(f"s_lshr_b32 s75, s91, 1\ns_mul_i32 s75, s75, {32*1280}\ns_and_b32 s6, s91, 1\ns_mul_i32 s6, s6, 640\ns_add_u32 s75, s75, s6\ns_movk_i32 s7, 1639")
    a(f"s_mul_i32 s74, s76, 5120\ns_add_u32 s74, s74, {LDS_WOT}\ns_mul_i32 s6, s76, 320\nv_add_u32 v9, s6, v{L}")
    for n in range(5):
        a(f"v_add_u32 v2, {n*64}, v9\nv_mul_lo_u32 v3, v2, s7\nv_lshrrev_b32 v3, 16, v3\nv_mul_u32_u24 v4, 40, v3\nv_sub_u32 v4, v2, v4")
        a(f"v_mul_u32_u24 v3, 1280, v3\nv_lshl_add_u32 v3, v4, 4, v3\ns_add_u32 m0, s74, {n*1024}\ns_nop 0")
        a(f"buffer_load_dwordx4 v3, {R(SRD_E)}, s75 offen{NT} lds")
    a("s_branch L_wb")
    a.label("L_w1")
    a(f"v_and_b32 v2, 15, v{L}\nv_lshrrev_b32 v3, 4, v{L}\nv_lshrrev_b32 v4, 2, v2\nv_lshl_add_u32 v4, v3, 2, v4\nv_mul_u32_u24 v4, 640, v4")
    a(f"v_and_b32 v2, 3, v2\nv_lshl_add_u32 v4, v2, 3, v4\ns_mul_i32 s6, s76, 160\ns_add_u32 s6, s6, {LDS_WOT}\nv_add_u32 v4, s6, v4")
    a(f"s_mul_i32 s6, s91, 20480\ns_mul_i32 s7, s76, 5120\ns_add_u32 s6, s6, s7\ns_add_u32 s6, s6, {WS_WOF}\ns_add_u32 s7, s6, 4096")
    for n in range(5):
        d = WOTR[n]
        a(f"ds_read_b64_tr_b16 v[{d}:{d+1}], v4 offset:{n*32}\nds_read_b64_tr_b16 v[{d+2}:{d+3}], v4 offset:{n*32+10240}")
    a("s_waitcnt lgkmcnt(0)")
    for n in range(5):
        a(f"buffer_store_dwordx4 {v(WOTR[n],4)}, v{VL16}, {WS}, s{6 if n<4 else 7} offen offset:{(n&3)*1024} sc1")
    a("s_branch L_wb")
    a.label("L_w2")
    a(f"s_cmp_lg_u32 s{S_W}, 0\ns_cbranch_scc1 L_wb")
    count_atomic(a, 1)
    a("s_branch L_wb")
    a.label("L_xa")
    a(f"s_cmp_lg_u32 s{S_ALL}, 0\ns_cbranch_scc1 L_xa1")
    cnt_addr(a); poll(a, cnt_load(a, 2, 1), "v_cmp_gt_u32 vcc, 4, v2", sleep=8)
    a.label("L_xa1")
    if "nocode2" not in ABL:
        a("s_getpc_b64 s[80:81]")
        a.label("L_pc2")
        a(f"s_sub_u32 s80, s80, L_pc2-L_fin\ns_subb_u32 s81, s81, 0\ns_and_b32 s6, s{S_H}, 1\ns_lshl_b32 s6, s6, 14\nv_lshl_add_u32 v3, v0, 6, s6")
        a(f"v_min_u32 v3, L_exit-L_fin, v3\nglobal_load_dword v{VDUM}, v3, s[80:81]")
    if "xt" in ABL:
        a.srd(SRD_A, P_X, 2048*640*2)
        a(f"v_lshrrev_b32 v2, 2, v{L}\nv_mul_u32_u24 v2, 1280, v2\nv_and_b32 v3, 3, v{L}\nv_lshl_add_u32 v2, v3, 6, v2")
        a(f"s_lshl_b32 s6, s{S_H}, 2\ns_add_u32 s6, s6, s{S_W}\ns_mul_i32 s73, s6, 20480\ns_mul_i32 s7, s{S_P}, 160\ns_andn2_b32 s7, s7, 63\ns_add_u32 s7, s7, s73")
        a(f"buffer_load_dword v{VDUM}, v2, {R(SRD_A)}, s7 offen\nv_min_u32 v2, 39, v{L}\nv_lshlrev_b32 v2, 6, v2\ns_mul_i32 s7, s{S_P}, 2560\ns_add_u32 s7, s7, s73")
        a(f"buffer_load_dword v{VDUM}, v2, {WS}, s7 offen sc1")
    wo_base(a, 74, 1)
    for m in range(4): a(f"s_add_u32 s6, s76, {m}\ns_and_b32 s6, s6, 3\ns_lshl_b32 s6, s6, 10\ns_add_u32 s{84+m}, s6, s74")
    a("s_add_u32 s88, s74, 4096")
    a(f"s_lshl_b32 s73, s{S_W}, 13\ns_add_u32 s75, s73, s78")
    wo_dma(range(8), "s73", LDS_SP); wo_dma(range(8, 16), "s75", 0)
    a(f"s_lshl_b32 s75, s{S_W}, 12\ns_add_u32 s75, s75, s78")
    wo_dma(range(16, 20), "s75", 49152)
    a("s_setpc_b64 s[82:83]")
    a.label("L_x3")
    if "nomoetouch" not in ABL:
        a.srd(SRD_A, P_WG, 640*1728*2)
        a(f"s_cmp_eq_u32 s{S_W}, 3\ns_cbranch_scc1 L_load_r")
        a(f"s_cmp_eq_u32 s{S_W}, 1\ns_cselect_b32 s{SRD_A}, s{P_WU}, s{SRD_A}\ns_cselect_b32 s{SRD_A+1}, s{P_WU+1}, s{SRD_A+1}")
        a(f"s_cmp_eq_u32 s{S_W}, 2\ns_cselect_b32 s{SRD_A}, s{P_WD}, s{SRD_A}\ns_cselect_b32 s{SRD_A+1}, s{P_WD+1}, s{SRD_A+1}")
        a(f"s_mov_b32 s73, 3456\ns_cmov_b32 s73, 256\ns_mov_b32 s75, 256\ns_cmov_b32 s75, {4*40960}")
        a(f"s_lshr_b32 s6, s2, 3\ns_sub_u32 s6, s6, 16\ns_mul_i32 s6, s6, 40\nv_lshrrev_b32 v2, 2, v{L}\nv_add_u32 v2, s6, v2\nv_mul_lo_u32 v2, v2, s73\nv_and_b32 v3, 3, v{L}\nv_lshl_add_u32 v2, v3, 6, v2")
        a(f"s_xor_b32 s79, s79, 1\ns_lshl_b32 s6, s79, 3\ns_lshr_b32 s7, s{S_H}, 2\ns_add_u32 s6, s6, s7\ns_mul_i32 s6, s6, s75")
        a(f"v_mov_b32 v3, {hex(WS_SIZE)}\nv_cmp_gt_u32 vcc, 32, v{L}\ns_lshl_b32 s73, s73, 4\ns_nop 0\nv_cndmask_b32 v3, v3, v2, vcc")
        a(f"buffer_load_dword v{VDUM}, v2, {R(SRD_A)}, s6 offen\ns_add_u32 s7, s6, s73\nbuffer_load_dword v{VDUM}, v2, {R(SRD_A)}, s7 offen")
        a(f"s_add_u32 s7, s7, s73\nbuffer_load_dword v{VDUM}, v3, {R(SRD_A)}, s7 offen")
    a("s_setpc_b64 s[82:83]")
    a.label("L_mask")
    a(f"v_and_b32 v2, 15, v{L}\nv_lshrrev_b32 v3, 4, v{L}\nv_lshlrev_b32 v3, 2, v3\nv_sub_u32 v2, v2, v3\nv_mov_b32 v3, 0xff800000")
    for r in range(4):
        a(f"v_cmp_gt_i32 vcc, {r}, v2\nv_mov_b32 v{NMreg(1,0)+r}, v3\ns_nop 0")
        a(f"v_cndmask_b32 v{NMreg(0,0)+r}, v{NMreg(0,0)+r}, v3, vcc\nv_cndmask_b32 v{NMreg(1,1)+r}, v{NMreg(1,1)+r}, v3, vcc")
    a("s_nop 1\ns_setpc_b64 s[82:83]")
    for par in range(2):
        a.label(f"L_rare{par}")
        a("s_nop 15")
        for qt in range(2):
            m = ET + 4
            s0, s1 = Sreg(par, 0, qt), Sreg(par, 1, qt)
            a(f"v_max_f32 v{m}, v{s0}, v{s0+1}\nv_max3_f32 v{m}, v{m}, v{s0+2}, v{s0+3}\nv_max3_f32 v{m}, v{m}, v{s1}, v{s1+1}\nv_max3_f32 v{m}, v{m}, v{s1+2}, v{s1+3}")
            xlane(a, "v_max_f32", m, ET)
            a(f"v_add_f32 v{m}, {hex(OFFS)}, v{m}\nv_max_f32 v{m}, 0, v{m}")
            a(f"v_exp_f32 v{ET}, -v{m}")
            for kt in range(2):
                for r in range(4):
                    for reg in (Sreg(0,kt,qt), Sreg(1,kt,qt), NMreg(kt,qt)):
                        a(f"v_sub_f32 v{reg+r}, v{reg+r}, v{m}")
            for r in range(2): a(f"v_mul_f32 v{LA+2*qt+r}, v{ET}, v{LA+2*qt+r}")
            for t in range(8):
                for r in range(4): a(f"v_mul_f32 v{Oreg(t,qt)+r}, v{ET}, v{Oreg(t,qt)+r}")
        for e, rest in sm_ops(par):
            a(e); a("s_nop 0")
            for x in rest: a(x)
        a("s_nop 1\ns_setpc_b64 s[80:81]")
    a.label("L_adone")
    a.stamp(13)

def top8(a, bar):
    K = 64
    a.label("L_top")
    a(f"s_mov_b32 s6, {hex(WS_R)}\nv_lshrrev_b32 v2, 1, v{L}\nv_and_b32 v3, 1, v{L}\nv_lshlrev_b32 v3, 4, v3\nv_lshl_add_u32 v2, v2, 7, v3")
    for i in range(8): a(f"buffer_load_dwordx4 {v(K+4*i,4)}, v2, {WS}, s6 offen sc1\ns_add_u32 s6, s6, 4096")
    a("s_waitcnt vmcnt(0)\nv_mov_b32 v24, 0\ns_mov_b32 s7, 0\ns_mov_b32 s84, 0")
    a.label("L_top_l")
    a(f"v_max3_u32 v4, v{K}, v{K+1}, v{K+2}\nv_max3_u32 v5, v{K+3}, v{K+4}, v{K+5}")
    for i in range(6, 30, 4): a(f"v_max3_u32 v4, v4, v{K+i}, v{K+i+1}\nv_max3_u32 v5, v5, v{K+i+2}, v{K+i+3}")
    a(f"v_max3_u32 v4, v4, v{K+30}, v{K+31}\nv_max_u32 v4, v4, v5")
    a.wave_reduce("v_max_u32", 4)
    a("v_readlane_b32 s6, v4, 63\ns_mov_b32 m0, s7\ns_nop 3\ns_add_u32 s84, s84, s6\nv_writelane_b32 v24, s84, m0")
    for i in range(32): a(f"v_subrev_u32 v{K+i}, s6, v{K+i}")
    a("s_add_u32 s7, s7, 1\ns_cmp_lt_u32 s7, 8\ns_cbranch_scc1 L_top_l")
    a(f"v_and_b32 v2, 7, v{L}\nv_lshlrev_b32 v2, 2, v2\nds_bpermute_b32 v4, v2, v24\ns_waitcnt lgkmcnt(0)\nv_and_b32 v4, 0x7ff, v4\nv_sub_u32 v4, 0x7ff, v4")
    a(f"v_lshrrev_b32 v5, 4, v4\nv_mul_u32_u24 v5, 20480, v5\nv_and_b32 v4, 15, v4\nv_lshl_add_u32 v5, v4, 4, v5\nv_lshrrev_b32 v7, 4, v{L}\nv_lshl_add_u32 v5, v7, 8, v5")
    a(f"v_mov_b32 v6, {hex(WS_SIZE)}\nv_and_b32 v2, 8, v{L}\nv_cmp_eq_u32 vcc, 0, v2\ns_mov_b32 s6, 0\ns_nop 0\nv_cndmask_b32 v5, v6, v5, vcc")
    for k in range(20):
        if k and k % 4 == 0: a("s_add_u32 s6, s6, 4096")
        a(f"buffer_load_dwordx4 {v(K+4*k,4)}, v5, {WS}, s6 offen offset:{(k&3)*1024} sc1")
    def put():
        a(f"s_waitcnt vmcnt(0)\ns_mov_b32 s6, {hex(WS_XS)}")
        for k in range(20):
            if k and k % 4 == 0: a("s_add_u32 s6, s6, 4096")
            a(f"buffer_store_dwordx4 {v(K+4*k,4)}, v{VL16}, {WS}, s6 offen offset:{(k&3)*1024} sc1")
    bar("vmcnt(20)", put)
    a("s_waitcnt vmcnt(16)")
    a(f"v_or_b32 v24, 0x80000000, v24\nv_lshlrev_b32 v5, 2, v{L}\nv_mov_b32 v6, {hex(WS_SIZE)}\nv_cmp_gt_u32 vcc, 8, v{L}\ns_mov_b32 s6, {hex(WS_IDX)}\ns_nop 0\nv_cndmask_b32 v5, v6, v5, vcc")
    a(f"buffer_store_dword v24, v5, {WS}, s6 offen sc1\ns_branch L_idle")

OACC = 176
M_WD, M_PART = 81920, 122880
VIDX = 51
def idx_addr(a):
    a(f"v_and_b32 v3, 7, v{L}\nv_lshlrev_b32 v3, 2, v3\ns_mov_b32 s72, {hex(WS_IDX)}")
def ctxf_addr(a, own, both=True):
    a(f"v_and_b32 v3, 1, v{L}\nv_lshlrev_b32 v3, 12, v3")
    if both: a(f"v_and_b32 v2, 2, v{L}\nv_lshl_add_u32 v3, v2, 8, v3")
    a(f"s_lshr_b32 s72, s{own}, 2\ns_lshl_b32 s72, s72, 6\ns_andn2_b32 s6, s{S_H}, 7\ns_add_u32 s72, s72, s6\ns_add_u32 s72, s72, s{S_W}\ns_lshl_b32 s72, s72, 7\ns_add_u32 s72, s72, {WS_CTXF}")
def idx_poll(a, sfx, wait="s_waitcnt vmcnt(40)"):
    a(wait)
    a(f"v_cmp_le_i32 vcc, 0, v{VIDX}\ns_cbranch_vccz L_idx_ok{sfx}")
    idx_addr(a)
    poll(a, f"buffer_load_dword v{VIDX}, v3, {WS}, s72 offen sc1", f"v_cmp_le_i32 vcc, 0, v{VIDX}")
    a.label(f"L_idx_ok{sfx}")

def moe_steps(a, bar):
    XS, FRG, GA, WDR, WD2, PR, YO = 64, 104, 24, 32, 240, 184, 216
    VG, VT, VD, VTD, VY, VXS = 16, 17, 18, 19, 20, 21
    S_G, S_WIN, S_D = 84, 85, 86
    a.label("L_moe")
    if MOEP == 2: a(f"s_sub_u32 s6, s{S_N}, s{S_P}\ns_cmp_lg_u32 s6, 3\ns_cbranch_scc1 L_idle")
    else: a(f"s_add_u32 s6, s{S_N}, s{S_P}\ns_cmp_lg_u32 s6, 5\ns_cbranch_scc1 L_idle")
    def srds():
        a.srd(SRD_A, P_WG, 640*1728*2)
        a(f"s_cmp_ge_u32 s{S_W}, 2\ns_cselect_b32 s{SRD_A}, s{P_WU}, s{SRD_A}\ns_cselect_b32 s{SRD_A+1}, s{P_WU+1}, s{SRD_A+1}")
        a.srd(SRD_B, P_WD, 1728*640*2)
    def dma_g(nk):
        for n in range(2*nk):
            a(f"s_add_u32 m0, s{S_WIN}, {n*1024}\ns_nop 0\nbuffer_load_dwordx4 v{VG}, {R(SRD_A)}, s{S_G} offen lds\ns_add_u32 s{S_G}, s{S_G}, {16*3456}")
    def dma_d():
        for n in range(4):
            a(f"s_add_u32 m0, s{S_WIN}, {4096+n*1024}\ns_add_u32 s6, s{S_D}, {n*8*1280}\nbuffer_load_dwordx4 v{VD}, {R(SRD_B)}, s6 offen lds")
        a(f"s_add_u32 s{S_D}, s{S_D}, 512")
    def rd_g(k0, nk):
        for k in range(nk):
            for ft in range(2):
                d = FRG + ((k0+k)*2+ft)*4
                a(f"ds_read_b64_tr_b16 {v(d,2)}, v{VT} offset:{k*2048+ft*32}\nds_read_b64_tr_b16 {v(d+2,2)}, v{VT} offset:{k*2048+ft*32+256}")
            if k == 1: a("s_waitcnt lgkmcnt(0)")
    def xs(k0, nk):
        for k in range(k0, k0+nk): a(f"buffer_load_dwordx4 {v(XS+4*k,4)}, v{VL16}, {WS}, s88 offen sc1\ns_add_u32 s88, s88, 1024")
    def rd_d(base):
        for m in range(4):
            a(f"ds_read_b64_tr_b16 {v(base+4*m,2)}, v{VTD} offset:{m*32}\nds_read_b64_tr_b16 {v(base+2+4*m,2)}, v{VTD} offset:{m*32+16*128}")
    def down(base, goff):
        for m in range(4): a.mfma(YO+4*m, base+4*m, GA, "0")
        a("s_nop 7")
        for m in range(4): a(f"buffer_store_dwordx4 {v(YO+4*m,4)}, v{VY}, {WS}, s87 offen offset:{goff*1024+m*64} sc1")
        a("s_nop 1")
    srds()
    a(f"v_lshrrev_b32 v3, 2, v{L}\nv_mul_u32_u24 v3, 3456, v3\nv_and_b32 v4, 3, v{L}\nv_lshl_add_u32 v{VG}, v4, 4, v3")
    a(f"v_lshrrev_b32 v3, 3, v{L}\nv_mul_u32_u24 v3, 1280, v3\nv_and_b32 v4, 7, v{L}\nv_lshl_add_u32 v{VD}, v4, 4, v3")
    a(f"s_and_b32 s7, s{S_W}, 1\ns_mul_i32 s{S_G}, s7, {320*3456}\ns_lshl_b32 s6, s{S_E}, 6\ns_add_u32 s{S_G}, s{S_G}, s6")
    a(f"s_lshl_b32 s{S_WIN}, s{S_W}, 13\ns_add_u32 s{S_WIN}, s{S_WIN}, {LDS_SP}")
    a(f"s_mul_i32 s{S_D}, s{S_E}, 40960\ns_lshl_b32 s6, s{S_W}, 7\ns_add_u32 s{S_D}, s{S_D}, s6")
    dma_g(4)
    a(f"v_lshrrev_b32 v7, 4, v{L}\nv_and_b32 v2, 15, v{L}\nv_lshrrev_b32 v3, 2, v2\nv_lshl_add_u32 v8, v7, 3, v3\nv_lshlrev_b32 v8, 6, v8\nv_and_b32 v4, 3, v2\nv_lshl_add_u32 v8, v4, 3, v8\nv_add_u32 v{VT}, s{S_WIN}, v8")
    a(f"v_lshl_add_u32 v8, v7, 2, v3\nv_lshlrev_b32 v8, 7, v8\nv_lshl_add_u32 v8, v4, 3, v8\ns_add_u32 s6, s{S_WIN}, 4096\nv_add_u32 v{VTD}, s6, v8")
    a(f"v_mul_u32_u24 v3, 2560, v2\nv_lshl_add_u32 v3, v7, 4, v3\nv_mov_b32 v4, {hex(WS_SIZE)}\nv_cmp_gt_u32 vcc, 8, v2")
    a(f"s_mul_i32 s87, s{S_E}, 20480\ns_lshl_b32 s7, s{S_W}, 8\ns_add_u32 s87, s87, s7\ns_add_u32 s87, s87, {WS_YP}\nv_cndmask_b32 v{VY}, v4, v3, vcc")
    a(f"s_and_b32 s7, s{S_W}, 1\ns_mul_i32 s88, s7, 10240\ns_add_u32 s88, s88, {WS_XS}")
    W0 = "vmcnt(0) lgkmcnt(0)"
    def m1():
        rd_g(0, 4); a("s_waitcnt lgkmcnt(0)"); dma_g(4)
    bar(W0, m1)
    idx_addr(a); a(f"buffer_load_dword v{VIDX}, v3, {WS}, s72 offen sc1")
    def m2():
        rd_g(4, 4); a("s_waitcnt lgkmcnt(0)"); dma_g(2); dma_d()
    bar(W0, m2)
    idx_poll(a, "m", "")
    xs(0, 10)
    def m3():
        rd_g(8, 2); rd_d(WDR); a("s_waitcnt lgkmcnt(0)"); dma_d()
    bar("vmcnt(10) lgkmcnt(0)", m3)
    a("s_waitcnt vmcnt(20)")
    for k in range(10):
        for ft in range(2): a.mfma(GA+4*ft, FRG+(k*2+ft)*4, XS+4*k, "0" if k == 0 else None)
    a(f"v_add_u32 v10, s{S_WIN}, v{VL16}\ns_nop 7\nds_write_b128 v10, {v(GA,4)}\nds_write_b128 v10, {v(GA+4,4)} offset:1024")
    def m4():
        rd_d(WD2)
        a(f"v_add_u32 v10, {LDS_SP}, v{VL16}\ns_waitcnt lgkmcnt(0)")
        for w in range(4):
            for ft in range(2): a(f"ds_read_b128 {v(PR+(w*2+ft)*4,4)}, v10 offset:{w*8192+ft*1024}")
        a(f"s_cmp_ge_u32 s{S_W}, 2\ns_cbranch_scc1 L_moe4b")
        dma_d()
        a.label("L_moe4b")
    bar(W0, m4)
    a("s_waitcnt lgkmcnt(0)")
    a("s_mov_b32 s6, 0xbfb8aa3b")
    def rnd2(r): a(f"v_cvt_pk_bf16_f32 v{r+1}, v{r}, v{r+1}\nv_lshlrev_b32 v{r}, 16, v{r+1}\nv_and_b32 v{r+1}, 0xffff0000, v{r+1}")
    for i in range(0, 8, 2):
        g0, u0 = PR + i, PR + 16 + i
        for q in range(2): a(f"v_add_f32 v{g0+q}, v{g0+q}, v{g0+8+q}\nv_add_f32 v{u0+q}, v{u0+q}, v{u0+8+q}")
        rnd2(g0); rnd2(u0)
        a(f"v_mul_f32 v2, s6, v{g0}\nv_mul_f32 v3, s6, v{g0+1}\nv_exp_f32 v2, v2\nv_exp_f32 v3, v3\nv_add_f32 v2, 1.0, v2\nv_add_f32 v3, 1.0, v3".replace("v_exp_f32 v3, v3\n", "v_exp_f32 v3, v3\ns_nop 0\n"))
        a(f"v_rcp_f32 v2, v2\nv_rcp_f32 v3, v3\ns_nop 0\nv_mul_f32 v{g0}, v{g0}, v2\nv_mul_f32 v{g0+1}, v{g0+1}, v3")
        rnd2(g0)
        a(f"v_mul_f32 v{g0}, v{g0}, v{u0}\nv_mul_f32 v{g0+1}, v{g0+1}, v{u0+1}\nv_cvt_pk_bf16_f32 v{GA+i//2}, v{g0}, v{g0+1}")
    a("s_nop 1")
    down(WDR, 0)
    bar("vmcnt(4) lgkmcnt(0)")
    down(WD2, 1)
    a(f"s_cmp_ge_u32 s{S_W}, 2\ns_cbranch_scc1 L_moe5b")
    rd_d(WDR); a("s_waitcnt lgkmcnt(0)"); down(WDR, 2)
    a.label("L_moe5b")
    bar("vmcnt(4) lgkmcnt(0)", lambda: (a("s_waitcnt vmcnt(0)"), set_flag(a, "moe")))
    a("s_branch L_idle")

YS = [16+4*i for i in range(7)] + [56+4*i for i in range(10)] + [4]
def y_is(a, skip): a(f"s_lshr_b32 s7, s{S_W}, 1\ns_lshl_b32 s7, s7, 4\ns_add_u32 s6, s{S_P}, s7\ns_cmp_lg_u32 s6, {YP}\ns_cbranch_scc1 {skip}")
def y_faddr(a): a(f"v_min_u32 v3, 53, v{L}\nv_lshlrev_b32 v3, 7, v3\ns_mov_b32 s72, {hex(WS_MOEF)}")
Y_LD = f"buffer_load_dwordx4 v[16:19], v3, {WS}, s72 offen sc1"
Y_CMP = "\n".join([f"v_and_b32 v16, v16, v{16+r}" for r in (1, 2, 3)]) + "\nv_cmp_ne_u32 vcc, 1, v16"
def y_look(a):
    y_is(a, "L_yl0"); y_faddr(a); a(Y_LD); a.label("L_yl0")
def y_try(a):
    a("s_mov_b32 s101, 0")
    y_is(a, "L_yl1"); a(Y_CMP); a("s_cbranch_vccnz L_yl1\ns_call_b64 s[80:81], L_yld"); a.label("L_yl1")
def y_loads(a):
    XR = 54
    a.label("L_yld")
    idx_poll(a, "a", "")
    a(f"s_lshr_b32 s96, s{S_H}, 2\ns_and_b32 s97, s{S_H}, 3\ns_lshl_b32 s97, s97, 1\ns_add_u32 s97, s97, s{S_W}")
    a(f"s_mov_b32 m0, s96\ns_nop 3\nv_readlane_b32 s98, v{VIDX}, m0\ns_nop 3\ns_and_b32 s100, s98, 0x7ff\ns_sub_u32 s100, 0x7ff, s100")
    a(f"v_mul_u32_u24 v2, 13, v{L}\nv_lshrrev_b32 v2, 8, v2\nv_mul_u32_u24 v3, 20, v2\nv_sub_u32 v8, v{L}, v3")
    a(f"s_mov_b32 s6, {18*20480}\nv_mul_lo_u32 v2, v2, s6\nv_lshl_add_u32 v2, v8, 4, v2")
    a(f"v_cmp_lt_u32 vcc, 59, v{L}\nv_mov_b32 v3, {hex(WS_SIZE)}\ns_nop 0\nv_cndmask_b32 v2, v2, v3, vcc")
    a(f"s_mul_i32 s6, s96, 2560\ns_mul_i32 s7, s97, 320\ns_add_u32 s6, s6, s7\ns_add_u32 s6, s6, {WS_YP}")
    for e in range(18):
        a(f"buffer_load_dwordx4 {v(YS[e],4)}, v2, {WS}, s6 offen sc1\ns_add_u32 s6, s6, 20480")
    a(f"s_lshr_b32 s6, s100, 4\ns_mul_i32 s6, s6, 20480\ns_and_b32 s7, s100, 15\ns_lshl_b32 s7, s7, 4\ns_add_u32 s6, s6, s7\ns_mul_i32 s7, s97, 2560\ns_add_u32 s6, s6, s7")
    a(f"v_lshrrev_b32 v9, 1, v8\nv_lshlrev_b32 v9, 8, v9\nv_and_b32 v10, 1, v8\nv_lshl_add_u32 v9, v10, 3, v9\nbuffer_load_dwordx2 {v(XR,2)}, v9, {WS}, s6 offen sc1")
    a("s_mov_b32 s101, 1\ns_setpc_b64 s[80:81]")

def moe_finish(a):
    Y, XR = YS[0], 54
    y_is(a, "L_yd")
    a("s_cmp_lg_u32 s101, 0\ns_cbranch_scc1 L_yf")
    y_faddr(a)
    poll(a, Y_LD, Y_CMP, sleep=16)
    a("s_call_b64 s[80:81], L_yld")
    a.label("L_yf")
    a("s_bfe_u32 s6, s98, 0x10000b\ns_xor_b32 s7, s6, 0xffff\ns_bitcmp1_b32 s6, 15\ns_bitset0_b32 s6, 15\ns_cselect_b32 s6, s6, s7\ns_lshl_b32 s6, s6, 16\nv_mov_b32 v9, s6")
    a("v_mul_f32 v9, 0xbfb8aa3b, v9\nv_exp_f32 v9, v9\ns_nop 0\nv_add_f32 v9, 1.0, v9\nv_rcp_f32 v9, v9\ns_nop 0")
    bf16_round(a, 9)
    a(f"v_lshlrev_b32 v10, 2, v{L}\nv_mov_b32 v3, {hex(WS_SIZE)}\ns_waitcnt vmcnt(0)")
    for e in range(1, 18):
        a(f"v_pk_add_f32 {v(Y,2)}, {v(Y,2)}, {v(YS[e],2)}\nv_pk_add_f32 {v(Y+2,2)}, {v(Y+2,2)}, {v(YS[e]+2,2)}")
    for k in range(2):
        for r in range(4): a(f"ds_bpermute_b32 v{Y+4+4*k+r}, v10, v{Y+r} offset:{80*(k+1)}")
    a("s_waitcnt lgkmcnt(0)")
    for r in range(4):
        y = Y + r
        a(f"v_add_f32 v{y}, v{y}, v{y+4}\nv_add_f32 v{y}, v{y}, v{y+8}")
        bf16_round(a, y)
        a(f"v_mul_f32 v{y}, v{y}, v9")
        bf16_round(a, y)
        xn = XR + (r >> 1)
        a(f"v_and_b32 v8, 0xffff0000, v{xn}" if r & 1 else f"v_lshlrev_b32 v8, 16, v{xn}")
        a(f"v_add_f32 v{y}, v{y}, v8")
    a(f"v_cvt_pk_bf16_f32 v{Y+4}, v{Y}, v{Y+1}\nv_cvt_pk_bf16_f32 v{Y+5}, v{Y+2}, v{Y+3}")
    a(f"v_lshlrev_b32 v2, 3, v{L}\nv_cmp_lt_u32 vcc, 19, v{L}\ns_mul_i32 s6, s96, 1280\ns_mul_i32 s7, s97, 160\nv_cndmask_b32 v2, v2, v3, vcc\ns_add_u32 s6, s6, s7\ns_add_u32 s6, s6, {WS_BSEL}")
    a(f"buffer_store_dwordx2 {v(Y+4,2)}, v2, {WS}, s6 offen sc1")
    a.label("L_yd")

WR, OA, CR, RT = 96, 56, 16, 32
S_OW, S_OB, S_CX, S_OL = 69, 68, 66, 61
VWO4 = 52
LDS_P, LDS_F = 98304, 65536
def wo_base(a, d, nh):
    a(f"s_lshr_b32 s{d}, s{S_H}, 3\ns_lshl_b32 s{d}, s{d}, 2\ns_add_u32 s{d}, s{d}, s76\ns_mul_i32 s{d}, s{d}, {8*40960}\ns_and_b32 s7, s{S_H}, 3\ns_mul_i32 s7, s7, 10240\ns_add_u32 s{d}, s{d}, s7\ns_add_u32 s{d}, s{d}, {WS_WOF + nh*5120}")

XNA = 48
S_TOK, S_XI, S_XFI, VXF = 64, 62, 63, 11
XFG = int(os.environ.get("XFG", "12"))
VWM = 44
def wo_voffs(a, r0, r4=None):
    for m in range(4): a(f"s_add_u32 s6, s76, {m}\ns_and_b32 s6, s6, 3\ns_lshl_b32 s6, s6, 10\nv_add_u32 v{r0+m}, s6, v{VL16}")
    a(f"v_add_u32 v{r0+4 if r4 is None else r4}, 4096, v{VL16}")
def wm(m): return VWM + m if m < 4 else VWO4
def wo_load(a, i):
    a(f"s_add_u32 s75, s{S_OW}, {i*40960}")
    for m in range(5): a(f"buffer_load_dwordx4 {v(WR+4*(5*i+m),4)}, v{wm(m)}, {WS}, s75 offen sc1")

def out_setup(a, nh):
    if nh == 0:
        idx_addr(a); a(f"buffer_load_dword v{VIDX}, v3, {WS}, s72 offen sc1")
    wo_voffs(a, VWM, VWO4)
    wo_base(a, S_OW, nh)
    a(f"s_and_b32 s6, s{S_H}, 4\ns_lshr_b32 s7, s{S_H}, 3\ns_add_u32 s6, s6, s7\ns_lshl_b32 s7, s{S_P}, 3\ns_add_u32 s{S_OB}, s6, s7\ns_sub_u32 s7, 120, s7\ns_add_u32 s{S_OL}, s6, s7")

VCA, VT, VPR = 4, 5, 6
S_RED = 71
S_PB, S_XS = 67, 96
def out_cx(a):
    a(f"s_lshr_b32 s6, s{S_H}, 3\ns_lshl_b32 s6, s6, 15\ns_lshl_b32 s99, s{S_W}, 12\ns_add_u32 s{S_CX}, s6, s99\ns_add_u32 s{S_CX}, s{S_CX}, {WS_CTX}")
    a(f"s_lshl_b32 s6, s76, 13\nv_add_u32 v{VCA}, s6, v{VL16}\nv_add_u32 v7, 65536, v{VCA}")
def out_consts(a):
    a(f"s_lshr_b32 s6, s{S_W}, 2\ns_mul_i32 s{S_PB}, s6, 15360\ns_add_u32 s{S_PB}, s{S_PB}, {LDS_P}\nv_add_u32 v{VPR}, s{S_PB}, v{VWM}")
    a(f"s_mul_i32 s73, s6, 5120\ns_add_u32 s73, s73, {WS_XP}\ns_lshl_b32 s6, s6, 1\ns_sub_u32 s{S_RED}, s76, s6\ns_and_b32 s{S_RED}, s{S_RED}, 3")
    a(f"v_mov_b32 v{VXF}, {hex(WS_SIZE)}\ns_lshl_b32 s74, s{S_W}, 2\ns_add_u32 s74, s74, {WS_XF}")
    tile_id(a, 72)
    a(f"s_mul_i32 s72, s72, 12\ns_lshr_b32 s75, s{S_H}, 3\ns_mul_i32 s7, s75, 3\ns_add_u32 s7, s7, s72\ns_mul_i32 s{S_XI}, s7, 20480\ns_add_u32 s{S_XI}, s{S_XI}, {WS_XP}\ns_lshl_b32 s7, s7, 7\ns_add_u32 s{S_XFI}, s7, {WS_XF}")
    for k in range(3):
        a(f"s_add_u32 s6, s75, {1+k}\ns_and_b32 s6, s6, 3\ns_mul_i32 s6, s6, 3\ns_add_u32 s6, s6, s72\ns_add_u32 s6, s6, {k}\ns_mul_i32 s7, s6, 20480\ns_add_u32 s{S_XS+k}, s7, s73")
        a(f"s_lshl_b32 s6, s6, 7\ns_add_u32 s6, s6, s74\nv_writelane_b32 v{VXF}, s6, {k}")

def ctx_dma(r, extra=0):
    own, d = (S_OL if r in (3, 4, 5, 7) else S_OB), (1 + r % 3 if r < 6 else 0)
    o = [f"s_add_u32 s65, s{own}, {d}\ns_and_b32 s65, s65, 3\ns_andn2_b32 s7, s{own}, 3\ns_add_u32 s65, s65, s7\ns_lshl_b32 s65, s65, 17\ns_add_u32 s65, s65, s{S_CX}\ns_add_u32 m0, s99, {(r%3)*32768+extra}\ns_add_u32 s65, s65, {extra}"]
    return o + [f"buffer_load_dwordx4 v{VL16}, {WS}, s65 offen offset:{i*1024} sc1 lds" for i in range(4)]

def phase_out(a):
    def rdc(r, i):
        reg, off = (VCA, (r%3)*32768) if r % 3 < 2 else (7, 0)
        return (("C", i & 3), f"ds_read_b128 {v(CR+4*(i&3),4)}, v{reg} offset:{off+i*1024}")
    def xlook_addr():
        a(f"v_bfe_u32 v2, v{L}, 3, 2\nv_min_u32 v2, 2, v2\nv_and_b32 v3, 7, v{L}\nv_lshlrev_b32 v3, 2, v3\nv_lshl_add_u32 v3, v2, 7, v3")
    IT = [(WR, WR+4), (WR+8, WR+12)]
    XI, LP, OUTR = WR+16, WR+64, WR+128
    def emit(x):
        if "o_now" in ABL and isinstance(x, tuple) and x[0] == "W": return
        if "o_noadd" in ABL and isinstance(x, str) and x.startswith("v_add_f32"): return
        if "o_nodma" in ABL and isinstance(x, str) and x.endswith("lds"): return
        if "o_nost" in ABL and isinstance(x, str) and "buffer_store_dwordx4" in x: return
        if "o_nop" in ABL and isinstance(x, tuple) and isinstance(x[0], tuple) and x[0][0] == "P": return
        if callable(x): x()
        elif isinstance(x, str): a(x)
        elif x[0] == "wait": a.wait_lg(x[1])
        else:
            a(x[1]); a.lg.issue(x[0])
    def xin_load(slots):
        sk = a.newlabel("xi")
        for n in range(2):
            if n == 1: a(f"s_cmp_ge_u32 s{S_W}, 2\ns_cbranch_scc1 {sk}")
            for s_ in slots:
                a(f"s_add_u32 s6, s{S_XI}, {s_*20480}")
                for hf in range(2): a(f"buffer_load_dwordx4 {v(XI+24*n+8*s_+4*hf,4)}, v{8+n}, {WS}, s6 offen offset:{hf*256} sc1")
        a.label(sk)
    a.lg.drain()
    for i in range(4): emit(rdc(0, i))
    a.wait_lg(("C", 0))
    BG = 24
    for r in range(8):
        if "stampout" in ABL: a.stamp(44 + r)
        A = OA + 20*(r & 1); Ap = OA + 20*((r-1) & 1)
        po = ((r-1) & 1)*30720
        red = 1 <= r <= 6
        G = [[] for _ in range(40)]
        def dma_at(rr, g0, gs):
            d = ctx_dma(rr); sal = d[0].split("\n")
            G[g0] += sal[:3]; G[g0+1] += sal[3:6]; G[g0+2] += sal[6:7]
            for g, x in zip(gs, d[1:]): G[g].insert(0, x)
        def barrier():
            if r == 0:
                a(f"s_cmp_ge_u32 s{S_W}, 4\ns_cbranch_scc1 L_o0\ns_waitcnt vmcnt(0)\ns_barrier")
                a.label("L_o0")
                return
            elif "o_novm" not in ABL: a(f"s_waitcnt vmcnt({(0, 0, 4, 5, 5, 5, 1)[r]})")
            if r == 6: a(f"buffer_store_dword v2, v{VXF}, {WS}, 0 offen sc1")
            a("s_waitcnt lgkmcnt(0)\ns_barrier"); a.lg.drain()
        for i in range(8):
            if i < 4: G[5*i+4].append(rdc(r, i+4))
            elif r < 7 and i > 4: G[5*i+4].append(rdc(r+1, i-4))
            if i < 7 or r < 7: G[5*i+3].append(("wait", ("C", (i+1) & 3)))
        if r < 7: G[3 if (r == 0 and "w0in" in ABL) else BG].append(barrier)
        if red:
            G[0].append(f"s_sub_u32 s6, s{S_RED}, {r}\ns_and_b32 s6, s6, 3\ns_mul_i32 s7, s6, 5120")
            G[1].append(f"s_add_u32 s7, s7, s{S_PB}\ns_cmp_eq_u32 s6, 3\ns_cselect_b32 s7, {159744-4096-po}, s7")
            G[2].append(f"v_add_u32 v12, s7, v{VWO4}\nv_add_u32 v{VT}, s{S_PB}, v{wm(1)}")
            for m, g in zip(range(1, 4), (5, 10, 15)):
                G[g] += [("W", f"ds_write_b128 v{VT}, {v(Ap+4*m,4)} offset:{po+(m-1)*5120}"), f"v_add_u32 v{VT}, s{S_PB}, v{wm(m+1)}"]
            G[20].append(("W", f"ds_write_b128 v12, {v(Ap+16,4)} offset:{po}"))
            for k in range(3): G[BG].append((("P", k), f"ds_read_b128 {v(RT+4*k,4)}, v{VPR} offset:{po+k*5120}"))
            for k in range(3):
                G[27+2*k].insert(0, ("wait", ("P", k)))
                for q in range(4): G[27+2*k+q//2].append(f"v_add_f32 v{Ap+q}, v{Ap+q}, v{RT+4*k+q}")
                G[29+2*k].insert(0, (("P", k), f"ds_read_b128 {v(RT+4*k,4)}, v{VT} offset:{po+k*5120}"))
            for k in range(3):
                G[33+2*k].append(("wait", ("P", k)))
                for q in range(4): G[33+2*k+q//2].append(f"v_add_f32 v{Ap+16+q}, v{Ap+16+q}, v{RT+4*k+q}")
            G[33].append(f"s_add_u32 s6, s{S_XS+(r-1)%3}, {((r-1)//3)*10240}")
            G[35].insert(0, f"buffer_store_dwordx4 {v(Ap,4)}, v{VWM}, {WS}, s6 offen sc1")
            sk = a.newlabel("nost")
            G[38].append(f"s_cmp_lg_u32 s{S_RED}, {(r-1)&3}")
            G[39].insert(0, f"s_cbranch_scc1 {sk}\nbuffer_store_dwordx4 {v(Ap+16,4)}, v{VWO4}, {WS}, s6 offen sc1\n{sk}:")
        if r < 7: G[BG].append(rdc(r+1, 0))
        if 1 < r < 5: dma_at(r+3, 21, (25, 26, 28, 30))
        if r == 0:
            dma_at(2, 21, (25, 26, 28, 30))
            if "w0in" in ABL:
                for i in range(3):
                    def wl(i=i):
                        sk = a.newlabel("nowl")
                        a(f"s_cmp_lt_u32 s{S_W}, 4\ns_cbranch_scc1 {sk}")
                        if i == 0:
                            a("s_waitcnt vmcnt(5)")
                            set_flag(a, "ctx")
                        wo_load(a, 5+i)
                        a.label(sk)
                    G[(0, 1, 2)[i]].append(wl)
                for i in range(4): G[19+5*i].append(f"s_waitcnt vmcnt({(16, 10, 8, 4)[i]})")
            else: G[19].append("s_waitcnt vmcnt(0)")
        lookl = f"buffer_load_dword v50, v3, {WS}, s72 offen sc1"
        if r == 1:
            G[6].append(lambda: ctxf_addr(a, S_OL, False))
            G[LOOKG].insert(0, lookl)
            def try3():
                a("v_cmp_ne_u32 vcc, 1, v50\ns_mov_b32 s91, 0\ns_cbranch_vccnz L_t3n")
                for x in ctx_dma(3): a(x)
                a("s_mov_b32 s91, 1\ns_branch L_t3j")
                a.label("L_t3n")
                a(lookl)
                a.label("L_t3j")
            G[25].append(try3)
        if r == 2:
            def chk():
                a(f"s_cmp_lg_u32 s91, 0\ns_cbranch_scc1 L_o2\ns_waitcnt vmcnt(1)\nv_cmp_ne_u32 vcc, 1, v50\ns_cbranch_vccz L_o1")
                poll(a, f"buffer_load_dword v2, v3, {WS}, s72 offen sc1", "v_cmp_ne_u32 vcc, 1, v2", sleep=1)
                a.label("L_o1")
                for x in ctx_dma(3): a(x)
                a.label("L_o2")
            G[2].append(chk)
            dma_at(4, 6, (9, 11, 12, 13))
        def spread(fn, gaps):
            b = Asm(); b.uid = a.uid + 1000; fn(b)
            ls = [x.strip() for x in b.o]; n = -(-len(ls) // len(gaps))
            for k, g in enumerate(gaps): G[g] += ls[k*n:(k+1)*n]
        if r == 0: spread(out_consts, range(4 if "w0in" in ABL else 0, 19))
        if r == 3: spread(out_items, [3, 4, 6, 7, 8, 9, 11, 12, 13, 14, 16, 17, 18, 19])
        if r == 4: G[7].append(lambda: out_tokens(a))
        if r == 6: G[22].append(f"v_mov_b32 v2, 1\nv_writelane_b32 v2, 2, 0")
        if r == 7:
            G[2].append(f"s_mul_i32 s73, s{S_W}, 5120\ns_add_u32 s6, s73, {LDS_F}")
            G[3].append(f"v_add_u32 v{VT}, s6, v{wm(0)}")
            for m in range(5):
                G[5+5*m].append(("W", f"ds_write_b128 v{VT}, {v(Ap+4*m,4)}"))
                if m < 4: G[5+5*m].append(f"s_add_u32 s6, s73, {LDS_F}\nv_add_u32 v{VT}, s6, v{wm(m+1)}")
            G[XFG].append(f"v_mov_b32 v2, 2\ns_waitcnt vmcnt(0)\nbuffer_store_dword v2, v{VXF}, {WS}, 0 offen sc1")
            def items():
                a(f"s_cmp_eq_u32 s{S_TOK}, 0\ns_cbranch_scc1 L_nb")
                a(f"v_bfe_u32 v2, v{L}, 1, 3\nv_and_b32 v3, 1, v{L}\nv_lshl_add_u32 v3, v2, 7, v3\nv_lshlrev_b32 v3, 2, v3\ns_and_b32 s6, s{S_H}, 3\ns_lshl_b32 s6, s6, 7\ns_add_u32 s6, s6, {WS_BF+YP*32*128}")
                poll(a, f"buffer_load_dword v2, v3, {WS}, s6 offen sc1", "v_cmp_ne_u32 vcc, 1, v2")
                a.label("L_nb")
                sk = a.newlabel("itskip")
                for n in range(2):
                    if n == 1: a(f"s_cmp_ge_u32 s{S_W}, 2\ns_cbranch_scc1 {sk}")
                    a(f"buffer_load_dwordx4 {v(IT[n][0],4)}, v{53+n}, {R(SRD_A)}, s70 offen\nbuffer_load_dwordx4 {v(IT[n][1],4)}, v{XNA+n}, {WS}, 0 offen sc1")
                a.label(sk)
            G[XFG+2].append(items)
            G[LK1-1].append(xlook_addr)
            G[LK1].append(f"s_bitcmp1_b32 13, s{S_W}\ns_cselect_b32 s77, 1, 2\nbuffer_load_dword v50, v3, {WS}, s{S_XFI} offen sc1")
            def try1():
                a("s_waitcnt vmcnt(0)\nv_cmp_gt_u32 vcc, s77, v50\ns_mov_b32 s91, 0\ns_cbranch_vccnz L_x1n")
                xin_load((0, 1, 2))
                a("s_mov_b32 s91, 1\ns_branch L_x1j")
                a.label("L_x1n")
                a(f"buffer_load_dword v50, v3, {WS}, s{S_XFI} offen sc1")
                a.label("L_x1j")
            G[LK2].append(try1)
            G[33].append(f"s_add_u32 s6, s73, {106496-20480}\ns_cmp_lt_u32 s{S_W}, 4\ns_cselect_b32 s73, s73, s6")
        for g in range(40):
            i, m = divmod(g, 5)
            if "o" in SNAKE and i & 1 == 0 and i: m = 4 - m
            a.mfma(A+4*m, WR+4*(5*i+m), CR+4*(i&3), "0" if i == 0 else None)
            for x in G[g]: emit(x)
    a.stamp(16)
    a("s_nop 4")
    for m in range(5): a(f"v_add_u32 v{VT}, s73, v{wm(m)}\nds_write_b128 v{VT}, {v(OA+20+4*m,4)}")
    a("s_mov_b64 s[78:79], 0\ns_cmp_lg_u32 s91, 0\ns_cbranch_scc1 L_x2a")
    a("s_waitcnt vmcnt(0)\nv_cmp_gt_u32 s[78:79], s77, v50\ns_nop 3\ns_cmp_lg_u64 s[78:79], 0\ns_cbranch_scc1 L_x2a")
    xin_load((0, 1, 2))
    a.label("L_x2a")
    a("s_waitcnt lgkmcnt(0)\ns_barrier")
    for n in range(2):
        for k in range(4):
            for hf in range(2): a(f"ds_read_b128 {v(LP+32*n+8*k+4*hf,4)}, v{(10,55)[n]} offset:{k*5120+hf*256}")
    a("s_cmp_eq_u64 s[78:79], 0\ns_cbranch_scc1 L_x2b")
    poll(a, f"buffer_load_dword v2, v3, {WS}, s{S_XFI} offen sc1", "v_cmp_gt_u32 vcc, s77, v2", sleep=1)
    xin_load((0, 1, 2))
    a.label("L_x2b")
    a.srd(SRD_B, P_OUT, 2048*640*2)
    a.stamp(17)
    for n in range(2):
        if n == 1: a(f"s_cmp_ge_u32 s{S_W}, 2\ns_cbranch_scc1 L_end")
        S = LP + 32*n
        a(f"s_waitcnt lgkmcnt({8 if n == 0 else 0})")
        for k in range(1, 4):
            for q in range(0, 8, 2): a(f"v_pk_add_f32 {v(S+q,2)}, {v(S+q,2)}, {v(S+8*k+q,2)}")
        a("s_waitcnt vmcnt(0)" if n == 0 else "s_nop 0")
        for k in range(3):
            for q in range(0, 8, 2): a(f"v_pk_add_f32 {v(S+q,2)}, {v(S+q,2)}, {v(XI+24*n+8*k+q,2)}")
        for q in range(4):
            x0, x1 = S+2*q, S+2*q+1
            a(f"v_cvt_pk_bf16_f32 v2, v{x0}, v{x1}\nv_lshlrev_b32 v{x0}, 16, v2\nv_and_b32 v{x1}, 0xffff0000, v2")
            a(f"v_lshlrev_b32 v2, 16, v{IT[n][0]+q}\nv_and_b32 v3, 0xffff0000, v{IT[n][0]+q}\nv_pk_add_f32 {v(x0,2)}, {v(x0,2)}, v[2:3]")
            a(f"v_cvt_pk_bf16_f32 v2, v{x0}, v{x1}\nv_lshlrev_b32 v{x0}, 16, v2\nv_and_b32 v{x1}, 0xffff0000, v2")
            a(f"v_lshlrev_b32 v2, 16, v{IT[n][1]+q}\nv_and_b32 v3, 0xffff0000, v{IT[n][1]+q}\nv_pk_add_f32 {v(x0,2)}, {v(x0,2)}, v[2:3]")
            a(f"v_cvt_pk_bf16_f32 v{OUTR+4*n+q}, v{x0}, v{x1}")
        a(f"buffer_store_dwordx4 {v(OUTR+4*n,4)}, v{53+n}, {R(SRD_B)}, s70 offen")

def out_items(a):
    a.srd(SRD_A, P_X, 2048*640*2)
    a(f"s_and_b32 s75, s{S_H}, 3\ns_mul_i32 s70, s75, 320\ns_add_u32 s73, s70, {WS_BSEL}")
    a(f"s_mul_i32 s72, s75, 5120")
    a(f"v_lshrrev_b32 v2, 4, v{L}\nv_and_b32 v3, 15, v{L}\nv_mul_u32_u24 v54, 1280, v3\nv_lshl_add_u32 v54, v2, 4, v54\nv_lshlrev_b32 v3, 4, v3\nv_lshl_add_u32 v9, v2, 9, v3")
    a(f"s_lshr_b32 s100, s{S_W}, 2\ns_cselect_b32 s6, s{S_OL}, s{S_OB}\ns_mul_i32 s6, s6, 20480\ns_lshl_b32 s7, s76, 6\ns_add_u32 s7, s7, s6\nv_add_u32 v53, s7, v54")
    a(f"s_lshl_b32 s7, s76, 10\ns_add_u32 s7, s7, s6\ns_add_u32 s7, s7, s72\nv_add_u32 v{XNA}, s7, v{VL16}")
    a(f"s_mul_i32 s6, s100, 10240\ns_lshl_b32 s7, s76, 11\ns_add_u32 s6, s6, s7\nv_add_u32 v8, s6, v9")
    a(f"s_mul_i32 s6, s100, {LDS_F+10240}\ns_sub_u32 s6, {LDS_F}, s6\nv_add_u32 v10, s6, v8\ns_lshl_b32 s7, s76, 2\nv_add_u32 v2, s7, v2\nv_cmp_lt_u32 vcc, 9, v2\ns_mul_i32 s6, s100, {101376-15360}\ns_add_u32 s6, s6, 15360\nv_add_u32 v3, s6, v10\nv_cndmask_b32 v10, v10, v3, vcc")
    a(f"s_and_b32 s100, s{S_W}, 1\ns_cselect_b32 s6, s{S_OL}, s{S_OB}\ns_mul_i32 s6, s6, 20480\ns_add_u32 s7, s6, 256\nv_add_u32 v54, s7, v54\ns_add_u32 s7, s6, s72\ns_add_u32 s7, s7, 4096\nv_add_u32 v{XNA+1}, s7, v{VL16}")
    a(f"s_mul_i32 s6, s100, 10240\ns_add_u32 s6, s6, 8192\nv_add_u32 v9, s6, v9\ns_mul_i32 s6, s100, {101376-10240-LDS_F-15360}\ns_add_u32 s6, s6, {LDS_F+15360}\nv_add_u32 v55, s6, v9")

def out_tokens(a):
    idx_poll(a, "b", "")
    sk = a.newlabel("notok")
    a(f"s_mov_b32 s{S_TOK}, 0")
    a(f"v_and_b32 v2, 0x7ff, v{VIDX}\nv_sub_u32 v2, 0x7ff, v2\nv_lshrrev_b32 v3, 4, v2\nv_cmp_eq_u32 vcc, s{S_OB}, v3\nv_cmp_eq_u32 s[74:75], s{S_OL}, v3\ns_nop 3\ns_or_b64 vcc, vcc, s[74:75]\ns_cbranch_scc0 {sk}")
    for tk in range(8): a(f"v_readlane_b32 s{(84,85,86,87,88,65,91,101)[tk]}, v2, {tk}")
    for n in range(2):
        a(f"s_lshl_b32 s7, s76, 6\ns_lshr_b32 s100, s{S_W}, 2" if n == 0 else f"s_movk_i32 s7, 256\ns_and_b32 s100, s{S_W}, 1")
        a(f"s_cselect_b32 s6, s{S_OL}, s{S_OB}\ns_lshl_b32 s6, s6, 4\nv_and_b32 v2, 15, v{L}\nv_add_u32 v2, s6, v2")
        a(f"s_add_u32 s7, s7, s73\nv_and_b32 v3, 48, v{L}\nv_add_u32 v3, s7, v3")
        for tk in range(8):
            a(f"v_cmp_eq_u32 vcc, s{(84,85,86,87,88,65,91,101)[tk]}, v2\ns_nop 1\nv_cndmask_b32 v{XNA+n}, v{XNA+n}, v3, vcc")
            if tk < 7: a(f"v_add_u32 v3, 1280, v3")
    a(f"s_mov_b32 s{S_TOK}, 1")
    a.label(sk)

def gen(a):
    phase_start(a)
    phase_kv(a)
    phase_q(a)
    phase_attn(a)
    phase_out(a)
    a.label("L_end")
    a.stamp(18)
    if a.prof: a("s_waitcnt vmcnt(0)")
    if a.prof and os.environ.get("STRETCH"):
        s0, s1 = os.environ["STRETCH"].split(",")
        a(f"v_readlane_b32 s6, v15, {s0}\nv_readlane_b32 s7, v15, {s1}\nv_readlane_b32 s72, v15, 18\ns_nop 3\ns_sub_u32 s6, s7, s6\ns_min_u32 s6, s6, 20000")
        a.label("L_str")
        a("s_memrealtime s[94:95]\ns_waitcnt lgkmcnt(0)\ns_sub_u32 s7, s94, s72\ns_cmp_lt_u32 s7, s6\ns_cbranch_scc1 L_str")
    if a.prof and os.environ.get("DBGWG"):
        a(f"s_mov_b64 exec, -1\ns_cmp_lg_u32 s2, {os.environ['DBGWG']}\ns_cbranch_scc1 L_nodbg\ns_cmp_lg_u32 s{S_W}, 0\ns_cbranch_scc1 L_nodbg")
        a.srd(SRD_E, P_DBG, 64)
        a(f"v_readlane_b32 s6, v15, 0\ns_nop 3\nv_subrev_u32 v2, s6, v15\nv_subrev_u32 v3, 3, v{L}\nv_lshlrev_b32 v3, 2, v3\nv_cmp_gt_u32 vcc, 4, v{L}\nv_mov_b32 v4, 0x1000\ns_nop 0\nv_cndmask_b32 v3, v3, v4, vcc")
        a(f"buffer_store_dword v2, v3, {R(SRD_E)}, 0 offen")
        a.label("L_nodbg")
    a.stamp_flush(SRD_WS, WS_PROF)
    a.label("L_exit")
    a("s_endpgm")

HEADER = open(os.path.join(os.path.dirname(os.path.abspath(__file__)), "..", NAME + ".s.ref")).read().split("; Override launch")[0]
if __name__ == "__main__":
    name = NAME + "_kernel"
    out = HEADER + "; @launch grid=(256,1,1) block=(512,1,1) lds=163840\n" + '.amdgcn_target "amdgcn-amd-amdhsa--gfx950"\n'
    a = Asm(); a.prof = bool(os.environ.get("PROF"))
    a.o.append(kernel_header(name).rstrip())
    gen(a)
    out += a.text() + '.section .rodata,"a"\n.p2align 6\n' + kernel_desc(name)
    open(sys.argv[1] if len(sys.argv) > 1 else "k.s", "w").write(out)
```

```python
import sys, os
from asmlib import *

NAME = "parallel_sum__compressed_kv_cla__moe_arch_mod__prompt"
ABL = set(os.environ.get("ABL", "").split(","))
if "nontw" not in ABL: ABL |= {"ntt", "ntd"}
if "now0in" not in ABL: ABL.add("w0in")
WS_XN = 0x0
WS_R = 0x280000
WS_YP = 0x290000
WS_IDX = 0x3A0000
WS_KVF = 0x3B0000
WS_CTXF = 0x3C0000
WS_MOEF = 0xF20000
WS_BSEL = 0x3A9000
WS_BF = 0x3B8000
WS_WOF = 0x400000
WS_XS = 0xC00000
WS_PROF = 0x900000
WS_KV = 0x1000000
WS_CTX = 0x3000000
WS_XF = 0xF00000
WS_XP = 0x4000000
WS_SIZE = 0x5000000
S_W, S_H, S_P = 3, 4, 5
SRD_WS, SRD_A, SRD_B, SRD_C, SRD_D, SRD_E = 8, 12, 16, 20, 24, 28
P_X, P_CKV, P_WQ, P_WUK, P_WUV, P_WO, P_BX, P_WR, P_WG, P_WU, P_WD, P_OUT, P_DBG, P_WS = range(32, 60, 2)
S_B, S_E = 60, 61
WS = f"s[{SRD_WS}:{SRD_WS+3}]"
def R(d): return f"s[{d}:{d+3}]"
L, VL16 = 1, 13
DESIG = 31
SPIN = 1 << 18
X3P = int(os.environ.get("X3P", "4"))
MOEP = int(os.environ.get("MOEP", "1"))
NTT = " nt" if "ntt" in ABL else ""
LK1, LK2 = [int(x) for x in os.environ.get("LK", "22,34").split(",")]
WOTM = int(os.environ.get("WOTM", "0x78"), 0)
SNAKE = os.environ.get("SNAKE", "akqo")
LOOKG = int(os.environ.get("LOOKG", "12"))
NPC = int(os.environ.get("NPC", "2"))
YP = int(os.environ.get("YP", "2"))
LPOS = int(os.environ.get("LPOS", "10"))
WOTN = int(os.environ.get("WOTN", "0"))
LNH = int(os.environ.get("LNH", "2"))
MOEJ = int(os.environ.get("MOEJ", "4"))
if "code2" not in ABL: ABL.add("nocode2")
if "newb7" not in ABL: ABL.add("oldb7")
NT = "" if "nont" in ABL else " nt"
ABL.add("latewait")
TSCHED = os.environ.get("TSCHED", ";2;4;6").split(";")
TK, TV0, TV1, TV2 = [[int(y) for y in x.split(",") if y] for x in TSCHED]
LDS_SP = 131072
LDS_LN = LDS_SP
LDS_WOT = LDS_SP + 10240
LDS_RK = LDS_SP + 30720

def bf16_round(a, r):
    a(f"v_cvt_pk_bf16_f32 v{r}, v{r}, v{r}\nv_lshlrev_b32 v{r}, 16, v{r}")

def poll(a, load, cmp_notready, sleep=2):
    lp = a.newlabel("poll"); dn = a.newlabel("polldone")
    a(f"s_mov_b32 s79, {SPIN}")
    a.label(lp)
    a(load); a("s_waitcnt vmcnt(0)"); a(cmp_notready)
    a(f"s_cbranch_vccz {dn}\ns_sleep {sleep}\ns_sub_u32 s79, s79, 1\ns_cmp_lg_u32 s79, 0\ns_cbranch_scc1 {lp}")
    a.label(dn)

VC, VW, RC, RW, QRW = 40, 44, 48, 50, 54
CF, WF, ACC = 64, 96, 128
S_CO, S_WO_, S_MC, S_ST, S_ROW, S_KVD, S_INCA, S_INCB, S_XO, S_QO = 62, 63, 64, 65, 66, 67, 68, 69, 70, 71
S_XB = 84
XEARLY = [16, 20, 24, 28, 32, 36]
VX1 = 12
LX, LW, LV = 16, 26, 64
VDUM = 11
ITR = ((8, 9), (10, 55))

def wdma(a, srd, soff):
    nt = " nt" if ("ntd" in ABL and srd != SRD_D) or ("ntq" in ABL and srd == SRD_D) else ""
    return [f"buffer_load_dwordx4 v{VW+i}, {R(srd)}, s{soff} offen offset:{i*1024}{nt} lds" for i in range(4)]

def kv_dma_ops():
    g = []
    g.append([f"s_mov_b32 m0, s{S_MC}", f"s_add_u32 s72, s{S_CO}, 524288"])
    for i in range(4): g.append([f"buffer_load_dwordx4 v{VC+i}, {R(SRD_A)}, s{S_CO} offen offset:{i*1024} lds"])
    g.append([f"s_add_u32 m0, s{S_MC}, 4096", f"s_add_u32 s{S_CO}, s{S_CO}, 128", f"s_bitset0_b32 s{S_CO}, 10"])
    for i in range(4): g.append([f"buffer_load_dwordx4 v{VC+i}, {R(SRD_A)}, s72 offen offset:{i*1024} lds"])
    g.append([f"s_mov_b32 m0, s73", f"s_xor_b32 s{S_MC}, s{S_MC}, 0x10000"])
    for x in wdma(None, SRD_B, S_WO_): g.append([x])
    g.append([f"s_add_u32 m0, s73, 16384", f"s_xor_b32 s73, s73, 0x10000"])
    for x in wdma(None, SRD_C, S_WO_): g.append([x])
    g.append([f"s_add_u32 s{S_WO_}, s{S_WO_}, {64*8192}", f"s_bitset0_b32 s{S_WO_}, 22"])
    return g

def wq_dma_ops(nblk):
    g = []
    for h in range(2*nblk):
        g.append([f"s_mov_b32 m0, s74", f"s_add_u32 s74, s74, 16384"] + (["s_bitset0_b32 s74, 17"] if nblk == 2 else []))
        for x in wdma(None, SRD_D, S_QO): g.append([x])
        g.append([f"s_add_u32 s{S_QO}, s{S_QO}, {64*8192}", f"s_sub_u32 s75, s{S_QO}, {640*8192}", f"s_cselect_b32 s{S_QO}, s{S_QO}, s75"])
    return g

def emit_groups(a, g):
    for x in g:
        for y in x: a(y)

def x_load(a, ks, regs):
    for qt in range(2):
        a(f"buffer_load_dwordx4 {v(regs[qt],4)}, v{VL16 if qt==0 else VX1}, {WS}, s{S_XB+(ks>>2)} offen offset:{(ks&3)*1024} sc1")
        a.vm.issue(("X", ks))

def cnt_load(a, r, which):
    return f"buffer_load_dword v{r}, v3, {R(SRD_E)}, 0 offen offset:{128*which} sc1"
def cnt_addr(a):
    a.srd(SRD_E, P_DBG, 256)
    a(f"v_and_b32 v3, 31, v{L}\nv_lshlrev_b32 v3, 2, v3")
def cnt_check(a, r, which):
    ok = a.newlabel("cntok")
    a(f"v_cmp_gt_u32 vcc, 8, v{r}\ns_cbranch_vccz {ok}")
    cnt_addr(a)
    poll(a, cnt_load(a, 2, which), "v_cmp_gt_u32 vcc, 8, v2", sleep=8)
    a.label(ok)

def kv_touch(a, st0):
    sk = a.newlabel("tch")
    a(f"s_cmp_ge_u32 s76, 2\ns_cbranch_scc1 {sk}a")
    a(f"s_and_b32 s6, s{S_H}, 3\ns_lshl_b32 s6, s6, 19\ns_lshl_b32 s7, s{S_P}, 15\ns_add_u32 s6, s6, s7\ns_lshl_b32 s7, s76, 7\ns_add_u32 s6, s6, s7\ns_add_u32 s6, s6, {st0*128}")
    a(f"v_lshrrev_b32 v6, 1, v{L}\nv_lshlrev_b32 v6, 10, v6\nv_and_b32 v7, 1, v{L}\nv_lshl_add_u32 v6, v7, 6, v6")
    a(f"buffer_load_dword v{VDUM}, v6, {R(SRD_A)}, s6 offen\ns_add_u32 s6, s6, 262144\nbuffer_load_dword v{VDUM}, v6, {R(SRD_A)}, s6 offen\ns_branch {sk}c")
    a.label(sk + "a")
    a(f"v_lshrrev_b32 v6, 5, v{L}\nv_lshlrev_b32 v6, 6, v6\nv_bfe_u32 v7, v{L}, 2, 3\nv_add_u32 v6, v6, v7\nv_lshlrev_b32 v6, 13, v6\nv_and_b32 v7, 3, v{L}\nv_lshl_add_u32 v6, v7, 6, v6")
    a(f"s_lshl_b32 s6, s{S_H}, 8\ns_lshl_b32 s7, s{S_P}, 16\ns_add_u32 s6, s6, s7\ns_add_u32 s6, s6, {st0*64*8192}")
    a(f"s_cmp_lg_u32 s76, 2\ns_cbranch_scc1 {sk}b\nbuffer_load_dword v{VDUM}, v6, {R(SRD_B)}, s6 offen{NTT}\ns_branch {sk}c")
    a.label(sk + "b")
    a(f"buffer_load_dword v{VDUM}, v6, {R(SRD_C)}, s6 offen{NTT}")
    a.label(sk + "c")

def consts(a):
    a(f"s_mov_b32 s{S_ST}, 0")
    a(f"s_lshl_b32 s6, s{S_H}, 20\ns_lshl_b32 s7, s{S_P}, 13\ns_add_u32 s6, s6, s7\ns_and_b32 s7, s{S_W}, 1\ns_lshl_b32 s7, s7, 16\ns_add_u32 s6, s6, s7\ns_add_u32 s{S_KVD}, s6, {WS_KV}")
    if "noqrot" in ABL: a("s_mov_b32 s6, 0")
    else:
        a(f"s_and_b32 s6, s{S_H}, {int(os.environ.get('QROTM', '3'))}\ns_add_u32 s6, s6, s{S_P}")
        for _ in range(2): a("s_sub_u32 s7, s6, 5\ns_cselect_b32 s6, s6, s7")
    a(f"s_lshl_b32 s{S_QO}, s6, 20\ns_lshl_b32 s7, s{S_H}, 8\ns_add_u32 s{S_QO}, s{S_QO}, s7")
    for i in range(5):
        a(f"s_lshl_b32 s7, s6, 12\ns_add_u32 s{S_XB+i}, s{S_XO}, s7")
        if i < 4: a("s_add_u32 s6, s6, 1\ns_cmp_eq_u32 s6, 5\ns_cselect_b32 s6, 0, s6")
    a(f"s_lshr_b32 s7, s{S_W}, 1\ns_and_b32 s7, s7, 1")
    a(f"s_cmp_ge_u32 s{S_W}, 4\ns_cbranch_scc1 L_c_v")
    a(f"s_lshl_b32 s7, s7, 11\ns_add_u32 s{S_KVD}, s{S_KVD}, s7\ns_movk_i32 s{S_INCA}, 3072\ns_mov_b32 s{S_INCB}, 125952")
    a(f"s_add_u32 s{S_QO}, s{S_QO}, {128*8192}\ns_sub_u32 s75, s{S_QO}, {640*8192}\ns_cselect_b32 s{S_QO}, s{S_QO}, s75\ns_lshl_b32 s74, s76, 12\ns_add_u32 s74, s74, s100\ns_branch L_c_j")
    a.label("L_c_v")
    a(f"s_lshl_b32 s7, s7, 12\ns_add_u32 s{S_KVD}, s{S_KVD}, s7\ns_add_u32 s{S_KVD}, s{S_KVD}, 0x80000\ns_movk_i32 s{S_INCA}, 1024\ns_mov_b32 s{S_INCB}, 128000")
    a.label("L_c_j")

def zero_regs(a, r0, n):
    for i in range(0, n, 2): a(f"v_mov_b64 {v(r0+i,2)}, 0")

def phase_start(a):
    a(f"s_cmp_ge_u32 s2, 256\ns_cbranch_scc1 L_exit")
    a("s_load_dwordx16 s[32:47], s[0:1], 0\ns_load_dwordx8 s[48:55], s[0:1], 64\ns_load_dwordx4 s[56:59], s[0:1], 96")
    a(f"v_lshrrev_b32 v2, 6, v0\nv_and_b32 v{L}, 63, v0\nv_readfirstlane_b32 s{S_W}, v2")
    if "nocode" not in ABL:
        a("s_getpc_b64 s[80:81]")
        a.label("L_pc")
        a(f"s_lshr_b32 s6, s2, 3\ns_and_b32 s6, s6, 15\ns_lshl_b32 s6, s6, 12\ns_cmp_lt_u32 s{S_W}, 2\ns_cselect_b32 s6, 0, s6\nv_lshl_add_u32 v3, v0, 6, s6")
        a(f"v_min_u32 v3, L_exit-L_pc, v3\ns_cmp_ge_u32 s{S_W}, 3\ns_cbranch_scc1 L_noct\nglobal_load_dword v{VDUM}, v3, s[80:81]")
        a.label("L_noct")
    a(f"v_lshrrev_b32 v62, 5, v0\nv_and_b32 v62, 7, v62\nv_and_b32 v2, 31, v0\nv_lshlrev_b32 v2, 3, v2\nv_mul_u32_u24 v63, 1280, v62\nv_add_u32 v63, v63, v2\ns_mul_i32 s6, s2, 10240\nv_add_u32 v10, s6, v63")
    a(f"s_cmp_lt_u32 s{S_W}, 4\ns_cbranch_scc1 L_st_k0")
    a("s_waitcnt lgkmcnt(0)")
    for j in range(5): a(f"global_load_dwordx2 {v(LX+2*j,2)}, v10, s[{P_X}:{P_X+1}] offset:{j*256}{NT if 'xnt' in ABL else ''}")
    for j in range(5): a(f"global_load_dwordx2 {v(LW+2*j,2)}, v2, s[{P_WR}:{P_WR+1}] offset:{j*256}")
    NPF = int(os.environ.get("NPF", "2"))
    if NPF:
        a(f"s_bfe_u32 s6, s2, 0x20003\ns_lshl_b32 s6, s6, 9\ns_bfe_u32 s7, s{S_W}, 0x10001\ns_lshl_b32 s7, s7, 8\ns_add_u32 s6, s6, s7\ns_andn2_b32 s7, s2, 31\ns_add_u32 s6, s6, s7\ns_and_b32 s72, s{S_W}, 1\ns_lshl_b32 s7, s72, 4\ns_add_u32 s6, s6, s7")
        a(f"v_lshrrev_b32 v4, 3, v{L}\nv_add_u32 v4, s6, v4\nv_and_b32 v5, 7, v{L}\nv_lshlrev_b32 v5, 4, v5\nv_lshl_add_u32 v4, v4, 10, v5\nv_add_u32 v5, 8192, v4")
        a(f"s_lshr_b32 s6, s2, 5\ns_lshl_b32 s6, s6, 1\ns_add_u32 s6, s6, s72\ns_lshl_b32 s6, s6, 15\ns_and_b32 s7, s2, 7\ns_lshl_b32 s7, s7, 10\ns_add_u32 s6, s6, s7\ns_bfe_u32 s7, s2, 0x20003\ns_lshl_b32 s7, s7, 8\ns_add_u32 s6, s6, s7")
        a(f"v_lshrrev_b32 v6, 4, v{L}\nv_and_b32 v7, 15, v{L}\nv_lshlrev_b32 v7, 4, v7\nv_lshl_add_u32 v6, v6, 13, v7\nv_add_u32 v6, s6, v6")
        a(f"s_cmp_ge_u32 s{S_W}, 6\ns_cselect_b32 s74, s{P_WUV}, s{P_WUK}\ns_cselect_b32 s75, s{P_WUV+1}, s{P_WUK+1}")
        for st in range(NPF):
            a(f"global_load_dwordx4 v[36:39], v4, s[{P_CKV}:{P_CKV+1}] offset:{st*128}\nglobal_load_dwordx4 v[36:39], v5, s[{P_CKV}:{P_CKV+1}] offset:{st*128}")
            a(f"global_load_dwordx4 v[36:39], v6, s[74:75]{NTT}\nv_add_u32 v6, {64*8192}, v6")
    if "nob0" not in ABL: a("s_barrier")
    a.label("L_st_k0")
    a(f"s_and_b32 s6, s2, 7\ns_lshl_b32 s6, s6, 2\ns_lshr_b32 s7, s2, 3\ns_and_b32 s7, s7, 3\ns_add_u32 s{S_H}, s6, s7\ns_lshr_b32 s{S_P}, s2, 5\ns_and_b32 s76, s{S_W}, 3")
    a.stamp_init(14, 0); a.stamp(0)
    a(f"v_lshrrev_b32 v2, 3, v{L}\nv_and_b32 v3, 7, v{L}\nv_lshrrev_b32 v4, 4, v{L}\nv_xor_b32 v5, v3, v4\nv_lshlrev_b32 v5, 4, v5")
    a(f"v_lshl_add_u32 v{VC}, v2, 10, v5\nv_xor_b32 v5, 64, v{VC}\nv_add_u32 v{VC+1}, 7168, v5\nv_add_u32 v{VC+2}, 14336, v{VC}\nv_add_u32 v{VC+3}, 14336, v{VC+1}")
    a(f"v_and_b32 v6, 15, v{L}\ns_lshl_b32 s6, s76, 4\nv_add_u32 v7, s6, v4\nv_lshlrev_b32 v5, 1, v4\nv_xor_b32 v5, v6, v5\nv_lshlrev_b32 v5, 4, v5")
    a(f"v_lshl_add_u32 v{VW}, v7, 13, v5\nv_add_u32 v{VW+1}, 31744, v{VW}\nv_xor_b32 v5, 0x80, v{VW}\nv_add_u32 v{VW+2}, 63488, v5\nv_add_u32 v{VW+3}, 31744, v{VW+2}")
    a(f"s_and_b32 s6, s76, 1\ns_lshl_b32 s6, s6, 20\ns_lshr_b32 s7, s76, 1\ns_lshl_b32 s7, s7, 18\ns_add_u32 s6, s6, s7\ns_lshl_b32 s{S_CO}, s{S_P}, 15\ns_add_u32 s{S_CO}, s{S_CO}, s6\ns_lshl_b32 s{S_WO_}, s{S_H}, 8\ns_lshl_b32 s{S_MC}, s76, 13\ns_lshl_b32 s73, s76, 12\ns_add_u32 s73, s73, 32768")
    a(f"s_andn2_b32 s100, 1, s{S_P}\ns_lshl_b32 s100, s100, 16\ns_add_u32 s{S_MC}, s{S_MC}, s100\ns_add_u32 s73, s73, s100")
    a("s_waitcnt lgkmcnt(0)")
    a.srd(SRD_A, P_CKV, 2048*512*2)
    a.srd(SRD_B, P_WUK, 512*4096*2)
    a.srd(SRD_C, P_WUV, 512*4096*2)
    a(f"s_cmp_ge_u32 s{S_W}, 4\ns_cbranch_scc1 L_st_v0")
    if "nob0" not in ABL: a("s_barrier")
    for st in TK: kv_touch(a, st)
    emit_groups(a, kv_dma_ops())
    if "noprio" not in ABL: a("s_setprio 1")
    a.label("L_st_v0")
    a.srd(SRD_WS, P_WS, WS_SIZE)
    a.srd(SRD_D, P_WQ, 640*4096*2)
    a(f"v_lshlrev_b32 v{VL16}, 4, v{L}")
    a(f"s_lshl_b32 s6, s{S_P}, 2\ns_add_u32 s7, s6, s{S_W}\ns_sub_u32 s6, 56, s6\ns_add_u32 s6, s6, s{S_W}")
    a(f"s_cmp_lt_u32 s{S_W}, 4\ns_cselect_b32 s{S_B}, s7, s6")
    a(f"s_sub_u32 s6, {MOEP}, s{S_P}\ns_and_b32 s6, s6, 7\ns_lshl_b32 s6, s6, 5\ns_add_u32 s{S_E}, s6, s{S_H}")
    a(f"v_and_b32 v2, 15, v{L}\nv_lshrrev_b32 v3, 4, v{L}")
    a(f"s_and_b32 s6, s{S_W}, 1\ns_lshl_b32 s6, s6, 7\nv_add_u32 v4, s6, v2\nv_lshlrev_b32 v4, 7, v4\nv_add_u32 v4, s100, v4\nv_lshrrev_b32 v5, 1, v2")
    for sp in range(2):
        a(f"v_add_u32 v6, {4*sp}, v3\nv_xor_b32 v6, v6, v5\nv_lshl_add_u32 v{RC+sp}, v6, 4, v4")
    a(f"v_lshrrev_b32 v4, 2, v2\nv_lshl_add_u32 v5, v3, 3, v4\nv_lshlrev_b32 v5, 8, v5")
    a(f"v_and_b32 v6, 1, v2\nv_lshl_add_u32 v5, v6, 3, v5")
    a(f"v_and_b32 v6, 1, v3\nv_lshl_or_b32 v4, v6, 2, v4\nv_lshlrev_b32 v4, 1, v4\nv_bfe_u32 v6, v2, 1, 1")
    a(f"v_add_u32 v8, {LDS_SP}, v5")
    for t in range(8):
        a(f"v_add_u32 v7, {2*t}, v6\nv_xor_b32 v7, v7, v4\nv_lshl_add_u32 v{QRW+t}, v7, 4, v8")
    a(f"s_lshr_b32 s6, s{S_W}, 2\ns_lshl_b32 s6, s6, 14\ns_add_u32 s6, s6, 32768\ns_add_u32 s6, s6, s100\nv_add_u32 v5, s6, v5")
    a(f"s_lshr_b32 s7, s{S_W}, 1\ns_and_b32 s7, s7, 1\ns_lshl_b32 s7, s7, 3")
    for j in range(4):
        a(f"s_add_u32 s6, s7, {2*j}\nv_add_u32 v7, s6, v6\nv_xor_b32 v7, v7, v4\nv_lshl_add_u32 v{RW+j}, v7, 4, v5")
    zero_regs(a, ACC, 128)
    a(f"v_add_u32 v{VX1}, 20480, v{VL16}\ns_mul_i32 s{S_XO}, s{S_B}, 40960")
    consts(a)
    a.stamp(1)
    a(f"s_cmp_ge_u32 s{S_W}, 4\ns_cbranch_scc1 L_st_v1")
    TM = [int(x) for x in os.environ.get("TM", "").split(",") if x]
    TM2 = [int(x) for x in os.environ.get("TM2", "").split(",") if x]
    for st in TM: kv_touch(a, st)
    emit_groups(a, kv_dma_ops()[:10])
    for st in TM2: kv_touch(a, st)
    a(f"s_waitcnt vmcnt({8+len(TM)+len(TM2)})\ns_branch L_st_j1")
    a.label("L_st_v1")
    a(f"s_waitcnt vmcnt({3*NPF})")
    a.stamp(2)
    ln_compute(a)
    ln_router(a)
    a.label("L_st_j1")
    a.stamp(3)
    a("s_barrier")
    a.stamp(4)

def zero_flags(a):
    a(f"s_cmp_lt_u32 s{S_W}, 6\ns_cbranch_scc1 L_zd\nv_mov_b64 v[36:37], 0\nv_mov_b64 v[38:39], 0\nv_lshrrev_b32 v2, 3, v{L}\ns_cmp_eq_u32 s{S_W}, 6\ns_cbranch_scc1 L_z6")
    a(f"s_lshl_b32 s6, s{S_P}, 2\ns_sub_u32 s7, 56, s6\nv_mov_b32 v3, s6\nv_mov_b32 v4, s7\nv_cmp_gt_u32 vcc, 4, v2\ns_lshl_b32 s6, s{S_H}, 7\ns_add_u32 s6, s6, {WS_CTXF}\nv_cndmask_b32 v3, v4, v3, vcc\nv_add_u32 v3, v3, v2\nv_lshl_add_u32 v3, v3, 12, s6\ns_branch L_z7")
    a.label("L_z6")
    a(f"v_mov_b32 v3, {hex(WS_SIZE)}")
    def put(j): a(f"s_andn2_b32 s6, s6, 127\nv_cmp_eq_u32 vcc, {j}, v2\nv_mov_b32 v4, s6\ns_nop 0\nv_cndmask_b32 v3, v3, v4, vcc")
    flag_addr(a, "kv", 6); put(0)
    flag_addr(a, "moe", 6); put(1)
    flag_addr(a, "b", 6); put(2)
    for k in range(3):
        xf_addr(a, k, 6); put(3+k)
    a(f"s_mov_b32 s6, {hex(WS_SIZE)}\ns_cmp_eq_u32 s2, {DESIG}\ns_cmov_b32 s6, {WS_IDX}"); put(6)
    a(f"s_lshl_b32 s6, s2, 7\ns_add_u32 s6, s6, {WS_R}"); put(7)
    a(f"v_add_u32 v4, {LDS_RK-56*16}, v{VL16}\ns_mov_b32 exec_lo, 0\ns_mov_b32 exec_hi, 0x03000000\nds_read_b128 v[36:39], v4\ns_mov_b64 exec, -1\ns_waitcnt lgkmcnt(0)")
    a.label("L_z7")
    a(f"v_and_b32 v2, 7, v{L}\nv_lshl_add_u32 v3, v2, 4, v3\nbuffer_store_dwordx4 v[36:39], v3, {WS}, 0 offen sc1")
    a.label("L_zd")

def half_reduce(a, r):
    for m in ("quad_perm:[1,0,3,2]", "quad_perm:[2,3,0,1]", "row_half_mirror", "row_mirror"):
        a(f"s_nop 1\nv_add_f32_dpp v{r}, v{r}, v{r} {m} row_mask:0xf bank_mask:0xf")
    a(f"v_mov_b32 v8, v{r}\ns_nop 1\nv_permlane16_swap_b32 v{r}, v8\ns_nop 1\nv_add_f32 v{r}, v{r}, v8")

def ln_compute(a):
    X = LV
    NEG = "op_sel_hi:[1,0] neg_lo:[0,1] neg_hi:[0,1]"
    for j in range(10):
        a(f"v_lshlrev_b32 v{X+2*j}, 16, v{LX+j}\nv_and_b32 v{X+2*j+1}, 0xffff0000, v{LX+j}")
    a(f"v_pk_add_f32 v[2:3], {v(X,2)}, {v(X+2,2)}")
    for j in range(2, 10): a(f"v_pk_add_f32 v[2:3], v[2:3], {v(X+2*j,2)}")
    a("v_add_f32 v2, v2, v3")
    half_reduce(a, 2)
    a("s_mov_b32 s7, 0x3acccccd\nv_mul_f32 v2, s7, v2\nv_mov_b64 v[4:5], 0")
    for j in range(10):
        a(f"v_pk_add_f32 v[6:7], {v(X+2*j,2)}, v[2:3] {NEG}\nv_pk_fma_f32 v[4:5], v[6:7], v[6:7], v[4:5]")
    a("v_add_f32 v4, v4, v5")
    half_reduce(a, 4)
    a("v_mul_f32 v4, s7, v4")
    bf16_round(a, 2); bf16_round(a, 4)
    a("v_add_f32 v4, 0x3727c5ac, v4")
    bf16_round(a, 4)
    a("v_sqrt_f32 v4, v4\ns_nop 0")
    bf16_round(a, 4)
    a("v_rcp_f32 v6, v4\ns_nop 0\nv_fma_f32 v5, -v4, v6, 1.0\nv_fmac_f32 v6, v5, v6\nv_mov_b32 v9, 0")
    for j in range(10):
        x = X + 2*j
        a(f"v_pk_add_f32 {v(x,2)}, {v(x,2)}, v[2:3] {NEG}\nv_cvt_pk_bf16_f32 v5, v{x}, v{x+1}")
        a(f"v_lshlrev_b32 v{x}, 16, v5\nv_and_b32 v{x+1}, 0xffff0000, v5")
        a(f"v_pk_mul_f32 {v(x,2)}, {v(x,2)}, v[6:7] op_sel_hi:[1,0]\nv_cvt_pk_bf16_f32 v{LX+j}, v{x}, v{x+1}")
    a(f"v_add_u32 v10, {LDS_LN}, v63")
    for j in range(5): a(f"ds_write_b64 v10, {v(LX+2*j,2)} offset:{j*256}")
    a("s_waitcnt lgkmcnt(0)")

def ln_router(a):
    a("v_mov_b32 v2, 0")
    for j in range(10):
        a(f"v_lshlrev_b32 v4, 16, v{LX+j}\nv_lshlrev_b32 v5, 16, v{LW+j}\nv_fmac_f32 v2, v4, v5")
        a(f"v_and_b32 v4, 0xffff0000, v{LX+j}\nv_and_b32 v5, 0xffff0000, v{LW+j}\nv_fmac_f32 v2, v4, v5")
    half_reduce(a, 2)
    a("v_cvt_pk_bf16_f32 v2, v2, v2\nv_and_b32 v2, 0xffff, v2")
    a("v_bfe_i32 v3, v2, 15, 1\nv_and_b32 v3, 0x7fff, v3\nv_or_b32 v3, 0x8000, v3\nv_xor_b32 v2, v2, v3")
    a(f"s_lshl_b32 s7, s2, 3\ns_sub_u32 s6, 2047, s7\nv_sub_u32 v3, s6, v62\nv_lshl_or_b32 v2, v2, 11, v3\nv_lshlrev_b32 v3, 2, v62\nv_add_u32 v3, {LDS_RK}, v3\nds_write_b32 v3, v2\ns_waitcnt lgkmcnt(0)")

def ln_store(a, back):
    LV = 16
    a(f"s_lshr_b32 s72, s2, 1\ns_mul_i32 s72, s72, 20480\ns_and_b32 s7, s2, 1\ns_lshl_b32 s7, s7, 7\ns_add_u32 s72, s72, s7")
    for n in range(3):
        a(f"v_add_u32 v2, {256*n-256}, v0\nv_lshrrev_b32 v3, 3, v2\nv_and_b32 v4, 7, v2")
        a(f"v_mul_u32_u24 v5, 1280, v4\nv_lshl_add_u32 v5, v3, 4, v5\nv_add_u32 v5, {LDS_LN}, v5")
        a(f"ds_read_b128 {v(LV+8*n,4)}, v5\nv_lshlrev_b32 v5, 8, v3\nv_lshl_add_u32 v{6+n}, v4, 4, v5")
    a("s_waitcnt lgkmcnt(0)")
    for n in range(3):
        if n == 2: a(f"s_cmp_ge_u32 s{S_W}, 6\ns_cbranch_scc1 {back}")
        SC = "" if "lnplain" in ABL else " sc1"
        if "nolnst" not in ABL: a(f"buffer_store_dwordx4 {v(LV+8*n,4)}, v{6+n}, {WS}, s72 offen{SC}")
    a.label(back)
    zero_flags(a)

def count_atomic(a, which):
    a.srd(SRD_E, P_DBG, 256)
    a(f"v_mov_b32 v2, 1\nv_lshlrev_b32 v3, 8, v{L}\ns_and_b32 s6, s2, 31\ns_lshl_b32 s6, s6, 2\nbuffer_atomic_add v2, v3, {R(SRD_E)}, s6 offen offset:{128*which} sc1")

def flag_addr(a, kind, d):
    if kind == "kv":
        a(f"s_lshl_b32 s{d}, s{S_H}, 3\ns_add_u32 s{d}, s{d}, s{S_P}\ns_lshl_b32 s{d}, s{d}, 5\ns_add_u32 s{d}, s{d}, s{S_W}\ns_lshl_b32 s{d}, s{d}, 2\ns_add_u32 s{d}, s{d}, {WS_KVF}")
    elif kind == "ctx":
        a(f"s_lshl_b32 s{d}, s{S_B}, 5\ns_add_u32 s{d}, s{d}, s{S_H}\ns_lshl_b32 s{d}, s{d}, 7\ns_add_u32 s{d}, s{d}, {WS_CTXF}")
    elif kind == "b":
        a(f"s_lshl_b32 s{d}, s{S_P}, 5\ns_add_u32 s{d}, s{d}, s{S_H}\ns_lshl_b32 s{d}, s{d}, 5\ns_add_u32 s{d}, s{d}, s{S_W}\ns_lshl_b32 s{d}, s{d}, 2\ns_add_u32 s{d}, s{d}, {WS_BF}")
    else:
        a(f"s_lshl_b32 s{d}, s{S_E}, 5\ns_add_u32 s{d}, s{d}, s{S_W}\ns_lshl_b32 s{d}, s{d}, 2\ns_add_u32 s{d}, s{d}, {WS_MOEF}")

def tile_id(a, d):
    a(f"s_and_b32 s{d}, s{S_H}, 7\ns_lshl_b32 s7, s{S_P}, 3\ns_add_u32 s{d}, s{d}, s7")
def xslot(a, slot, d):
    tile_id(a, d)
    a(f"s_lshr_b32 s7, s{S_H}, 3\ns_add_u32 s7, s7, {slot}\ns_add_u32 s7, s7, 1\ns_and_b32 s7, s7, 3\ns_lshl_b32 s{d}, s{d}, 2\ns_add_u32 s{d}, s{d}, s7\ns_mul_i32 s{d}, s{d}, 3\ns_add_u32 s{d}, s{d}, {slot}")
def xf_addr(a, slot, d):
    xslot(a, slot, d)
    a(f"s_lshl_b32 s{d}, s{d}, 5\ns_add_u32 s{d}, s{d}, s{S_W}\ns_lshl_b32 s{d}, s{d}, 2\ns_add_u32 s{d}, s{d}, {WS_XF}")

def set_flag(a, kind, val=1):
    flag_addr(a, kind, 6)
    a(f"v_mov_b32 v2, {val}\nv_mov_b32 v3, {hex(WS_SIZE)}\nv_writelane_b32 v3, s6, 0\nbuffer_store_dword v2, v3, {WS}, 0 offen sc1")
    a.vm.issue("flag")

def phase_kv(a):
    def rdC(i, sp):
        if "kv_noC" in ABL: return
        a(f"ds_read_b128 {v(CF+4*i,4)}, v{RC+sp} offset:{i*2048}"); a.lg.issue(("C", i))
    def rdW(par, j, half, sp):
        if "kv_noW" in ABL: return
        r = WF + 16*par + 4*j + 2*half
        a(f"ds_read_b64_tr_b16 {v(r,2)}, v{RW+j} offset:{sp*8192 + half*1024}"); a.lg.issue(("W", par, j, half))
    wq = [(j, hf) for j in range(4) for hf in range(2)]
    def body(isK, lab, dma, nend, hook=None):
        def mm(i, j, par):
            if "k" in SNAKE and i & 1: j = 3 - j
            d = ACC + (i*4+j)*4
            a.wait_lg([("C", i), ("W", par, j, 0), ("W", par, j, 1)])
            if isK: a.mfma(d, WF+16*par+4*j, CF+4*i)
            else: a.mfma(d, CF+4*i, WF+16*par+4*j)
        a(".p2align 4")
        a.label(lab)
        if hook:
            a(f"s_bitcmp1_b32 {(0x80 if isK else 0xd6) & (0x7f if 'latex' in ABL else 0xff)}, s{S_ST}\ns_cbranch_scc1 {hook}"); a.label(hook + "_back")
        for i in range(8):
            for j in range(4):
                mm(i, j, 0)
                if i < 2: rdW(1, *wq[i*4+j], 1)
            rdC(i, 1)
        dma = list(dma)
        if "kv_nodma" in ABL: dma = []
        for i in range(8):
            for j in range(4):
                mm(i, j, 1)
                if i == 2 or i == 3: rdW(0, *wq[(i-2)*4+j], 0)
                if i >= 2 and dma:
                    for y in dma.pop(0): a(y)
            if i == 1:
                for r in (RC, RC+1, RW, RW+1, RW+2, RW+3): a(f"v_xor_b32 v{r}, 0x10000, v{r}")
                if isK and hook and "oldb7" not in ABL:
                    a(f"s_cmp_eq_u32 s{S_ST}, 7\ns_cbranch_scc1 {'L_kx' if 'latex' in ABL else 'L_know'}\ns_waitcnt vmcnt(0)")
                    a.label("L_know")
                    a("s_waitcnt lgkmcnt(0)\ns_barrier")
                elif isK: a("s_waitcnt vmcnt(0) lgkmcnt(0)\ns_barrier")
                else:
                    a(f"s_bitcmp1_b32 {0xc8 if 'latex' in ABL else 0x48}, s{S_ST}\ns_cbranch_scc1 L_vpre")
                    a.label("L_vnow")
                    a("s_waitcnt lgkmcnt(0)\ns_barrier")
                a.lg.drain()
                a.stampd(S_ST, 24)
                rdC(0, 0); rdC(1, 0)
            elif i >= 2: rdC(i, 0)
        emit_groups(a, dma)
        a(f"s_add_u32 s{S_ST}, s{S_ST}, 1\ns_cmp_lt_u32 s{S_ST}, {nend}\ns_cbranch_scc1 {lab}")
    def first_reads():
        a.lg.drain()
        rdC(0, 0); rdC(1, 0)
        for k in range(4): rdW(0, *wq[k], 0)
        rdC(2, 0)
        for k in range(4, 8): rdW(0, *wq[k], 0)
        for i in range(3, 8): rdC(i, 0)
    a(f"s_cmp_ge_u32 s{S_W}, 4\ns_cbranch_scc1 L_kv_v")
    first_reads()
    q0 = list(a.lg.q)
    emit_groups(a, kv_dma_ops()[10:])
    a.stamp(5)
    body(True, "L_kloopA", kv_dma_ops(), 6)
    assert a.lg.q == q0, (a.lg.q, q0)
    body(True, "L_kloopB", wq_dma_ops(2), 8, hook="L_khook" if "kx2" not in ABL else None)
    a.stamp(6)
    a("s_waitcnt lgkmcnt(0)\ns_nop 7")
    for n in range(16):
        t = ACC + 4*n; d0 = ACC + 8*n; d1 = d0 + 4
        a(f"v_cvt_pk_bf16_f32 v{t}, v{d0}, v{d0+1}\nv_cvt_pk_bf16_f32 v{t+1}, v{d0+2}, v{d0+3}")
        a(f"v_cvt_pk_bf16_f32 v{t+2}, v{d1}, v{d1+1}\nv_cvt_pk_bf16_f32 v{t+3}, v{d1+2}, v{d1+3}")
    a("s_waitcnt vmcnt(16)\ns_branch L_q")
    a.label("L_hook")
    for k in (1, 2, 4, 6): a(f"s_cmp_eq_u32 s{S_ST}, {k}\ns_cbranch_scc1 L_hook{k}")
    a(f"s_cmp_lg_u32 s{S_ST}, 7\ns_cbranch_scc1 L_hook_back")
    for ks in range(3): x_load(a, ks, XEARLY[2*ks:2*ks+2])
    a("s_branch L_hook_back")
    a.label("L_hook1")
    if LNH == 1: ln_store(a, "L_lns")
    for st in TV1: kv_touch(a, st)
    a("s_branch L_hook_back")
    a.label("L_hook2")
    if LNH == 2: ln_store(a, "L_lns")
    for st in TV2: kv_touch(a, st)
    a("s_branch L_hook_back")
    a.label("L_hook4")
    WOTR = [16, 20, 24, 28, 32]
    a(f"s_cmp_lg_u32 s{S_W}, 4\ns_cbranch_scc1 L_hook4b")
    count_atomic(a, 0)
    a.label("L_hook4b")
    a(f"s_lshl_b32 s74, s76, 12\ns_add_u32 s74, s74, {LDS_SP}")
    emit_groups(a, wq_dma_ops(1))
    a("s_branch L_hook_back")
    a.label("L_hook6")
    a(f"s_cmp_lg_u32 s{S_W}, 5\ns_cbranch_scc1 L_hook_back")
    cnt_addr(a); a(cnt_load(a, 62, 0))
    a("s_branch L_hook_back")
    if "latex" in ABL:
        a.label("L_kx")
        for ks in range(3): x_load(a, ks, XEARLY[2*ks:2*ks+2])
        a("s_branch L_know")
        a.label("L_vx")
        for ks in range(3): x_load(a, ks, XEARLY[2*ks:2*ks+2])
        a("s_branch L_vnow")
    a.label("L_vpre")
    if "latex" in ABL: a(f"s_cmp_eq_u32 s{S_ST}, 7\ns_cbranch_scc1 L_vx")
    a(f"s_waitcnt vmcnt(0)\ns_lshl_b32 s6, s{S_ST}, 4\ns_add_u32 s6, s6, s{S_W}\ns_cmp_lg_u32 s6, 0x65\ns_cbranch_scc1 L_vnow")
    cnt_check(a, 62, 0)
    a("s_branch L_vnow")
    a.label("L_khook")
    a(f"s_cmp_lg_u32 s{S_ST}, 7\ns_cbranch_scc1 L_khook_back")
    for ks in range(3): x_load(a, ks, XEARLY[2*ks:2*ks+2])
    a("s_branch L_khook_back")
    a.label("L_kv_v")
    first_reads()
    for st in TV0: kv_touch(a, st)
    a.stamp(5)
    body(False, "L_vloop", [], 8, hook="L_hook")
    a.stamp(6)
    a("s_waitcnt lgkmcnt(0)\ns_nop 7")
    for ii in range(4):
        for j in range(4):
            t = ACC + 16*ii + 4*j; d0 = ACC + 32*ii + 4*j; d1 = d0 + 16
            a(f"v_cvt_pk_bf16_f32 v{t}, v{d0}, v{d0+1}\nv_cvt_pk_bf16_f32 v{t+1}, v{d0+2}, v{d0+3}")
            a(f"v_cvt_pk_bf16_f32 v{t+2}, v{d1}, v{d1+1}\nv_cvt_pk_bf16_f32 v{t+3}, v{d1+2}, v{d1+3}")
    a("s_waitcnt vmcnt(0)")

QF, O_, S_, FR, P_, NM, T_, L_, ET = 16, 192, 64, 96, 128, 144, 52, 56, 58
VA, VDK, VDV = 48, 49, 50
S_N, S_NL, S_C, S_THR = 62, 63, 64, 65
LA, ONES, SIDX = 160, 164, 168
OFFS = 0x41c00000
def Sreg(par, kt, qt): return S_ + 16*par + (kt*2+qt)*4
def NMreg(kt, qt): return NM + (kt*2+qt)*4
def Oreg(t, qt): return O_ + (t*2+qt)*4
def Qreg(qt, s): return QF + (qt*4+s)*4
def Preg(par, qt): return P_ + 8*par + 4*qt
def Treg(par, qt): return T_ + 2*par + qt

def xlane(a, op, r, t):
    for sw in ("v_permlane16_swap_b32", "v_permlane32_swap_b32"):
        a(f"v_mov_b32 v{t}, v{r}\ns_nop 1\n{sw} v{r}, v{t}\ns_nop 1\n{op} v{r}, v{r}, v{t}")

def st_dma(a, parts):
    if "K" in parts:
        for hf in range(2):
            a(f"s_lshl_b32 s6, s76, 13\ns_add_u32 s6, s6, s78\ns_add_u32 m0, s6, {hf*4096}\ns_add_u32 s7, s77, {hf*4096}")
            for i in range(4): a(f"buffer_load_dwordx4 v{VDK}, {WS}, s7 offen offset:{i*1024} sc1 lds")
    for hf in range(2):
        if f"V{hf}" in parts:
            a(f"s_lshl_b32 s6, s76, 12\ns_add_u32 s6, s6, s78\ns_add_u32 m0, s6, {32768+hf*16384}\ns_add_u32 s7, s77, {0x80000-16384+hf*16384}")
            for i in range(4): a(f"buffer_load_dwordx4 v{VDV}, {WS}, s7 offen offset:{i*1024} sc1 lds")

S_HK, S_ALL = 89, 90
def kv_self_touch(a):
    a(f"v_lshrrev_b32 v9, 3, v{L}\ns_cmp_lt_u32 s{S_W}, 4\ns_cselect_b32 s7, 6, 4\nv_and_b32 v10, s7, v9\nv_add_u32 v9, v9, v10\nv_lshlrev_b32 v9, 10, v9")
    a(f"v_and_b32 v10, 7, v{L}\nv_lshl_add_u32 v9, v10, 7, v9\ns_sub_u32 s6, s{S_KVD}, 32768")
    a(f"buffer_load_dword v{VDUM}, v9, {WS}, s6 offen sc1\ns_add_u32 s6, s6, 16384\nbuffer_load_dword v{VDUM}, v9, {WS}, s6 offen sc1")

def kvf_addr(a):
    a(f"s_lshl_b32 s7, s{S_H}, 10\ns_add_u32 s7, s7, {WS_KVF}\nv_lshrrev_b32 v2, 3, v{L}\nv_and_b32 v3, 7, v{L}\nv_lshlrev_b32 v3, 2, v3\nv_lshl_add_u32 v3, v2, 7, v3")
def kv_flag_wait(a, level):
    kvf_addr(a)
    poll(a, f"buffer_load_dword v2, v3, {WS}, s7 offen sc1", f"v_cmp_gt_u32 vcc, {level}, v2")

KS_POLL = int(os.environ.get("KSP", "15"))
LATE_KS = tuple(int(x) for x in os.environ.get("STKS", "0,1,2,3,16,17,18,19").split(","))
KS_FLAG = int(os.environ.get("KSF", "6"))
NEARLY = int(os.environ.get("NEARLY", "2"))
def kv_store(a, n, late=True):
    if late and "nolate" in ABL: return
    a(f"buffer_store_dwordx4 {v(ACC+4*n,4)}, v{VL16}, {WS}, s{S_KVD} offen sc1"); a.vm.issue(("st", n))
    inc = ("1024", f"s{S_INCA}", "1024", f"s{S_INCB}")[n & 3]
    a(f"s_add_u32 s{S_KVD}, s{S_KVD}, {inc}")
def q_body(a):
    sfx = ""
    a.lg.drain(); a.vm.drain()
    def rdW(t, hf, ks):
        blk = ks >> 2
        off = (0, 0, 32768, 0, 32768)[blk] + (ks & 3)*8192 + hf*1024
        a(f"ds_read_b64_tr_b16 {v(WF+4*t+2*hf,2)}, v{QRW+t} offset:{off}"); a.lg.issue(("W", t, hf))
    for t in range(8):
        rdW(t, 0, 0); rdW(t, 1, 0)
    xr = {ks: XEARLY[2*ks:2*ks+2] for ks in range(3)}
    for ks in range(3, 7):
        xr[ks] = [CF + 8*(ks-3), CF + 8*(ks-3) + 4]
        x_load(a, ks, xr[ks])
    nst = 0
    for ks in range(20):
        pend = []
        a.wait_vm(("X", ks))
        if ks % 2 == 0: a.stamp(32 + ks//2)
        barrier_here = ks == 11 or (ks == 3 and "oldb7" not in ABL)
        upd = {3: -LDS_SP, 11: 65536}.get(ks)
        st_at = (3,) if ks in LATE_KS else ()
        for t in range(8):
            for qt in range(2):
                if qt == 0: a.wait_lg([("W", t, 0), ("W", t, 1)])
                q = qt ^ (t & 1) if "q" in SNAKE else qt
                a.mfma(Oreg(t, q), WF+4*t, xr[ks][q], "0" if ks == 0 else None)
                if qt == 1 and ks < 19: pend += [(t, 0), (t, 1)]
                if barrier_here and t == 1 and qt == 1:
                    a("s_waitcnt lgkmcnt(0)\ns_barrier"); a.lg.drain()
                    while len(pend) > 2: rdW(*pend.pop(0), ks+1)
                if pend and not (barrier_here and (t, qt) < (1, 1)): rdW(*pend.pop(0), ks+1)
                if upd is not None and qt == 0:
                    a(f"v_add_u32 v{QRW+t}, s101, v{QRW+t}" if ks == 3 else f"v_xor_b32 v{QRW+t}, 0x10000, v{QRW+t}")
                if qt == 0 and t in st_at and nst < 16:
                    kv_store(a, nst); nst += 1
        while pend: rdW(*pend.pop(0), ks+1)
        if ks + 7 < 20:
            xr[ks+7] = xr[ks]; x_load(a, ks+7, xr[ks])
        if ks == KS_FLAG:
            a.wait_vm(("st", 3))
            set_flag(a, "kv", 1)
        if ks == KS_POLL:
            a.wait_vm(("X", 19))
            a(f"s_cmp_ge_u32 s{S_W}, 4\ns_cbranch_scc1 L_q_nold{sfx}")
            a.stamp(20)
            kv_flag_wait(a, 1)
            a.stamp(21)
            st_dma(a, ["K", "V1"])
            a.label(f"L_q_nold{sfx}")
    assert nst == len(LATE_KS) and 8 <= nst <= 12

def phase_q(a):
    a.label("L_q")
    a.srd(SRD_E, P_DBG, 256)
    a(f"s_lshl_b32 s6, s76, 13\nv_add_u32 v{VDK}, s6, v{VL16}\ns_lshl_b32 s6, s76, 12\nv_add_u32 v{VDV}, s6, v{VL16}")
    a(f"s_lshl_b32 s77, s{S_H}, 20\ns_add_u32 s77, s77, {WS_KV}\ns_mov_b32 s78, s100\ns_sub_u32 s101, s100, {LDS_SP}\ns_mov_b32 s{S_ALL}, 0")
    a(f"s_cmp_lt_u32 s{S_W}, 4\ns_cselect_b32 s{S_HK}, 3, 2")
    q_body(a)
    a.stamp(7)
    if "symq" not in ABL:
        a(f"s_cmp_lt_u32 s{S_W}, 4\ns_cbranch_scc1 L_qb\ns_barrier")
        a.label("L_qb")
    a("s_mov_b32 s6, 0x3e0293ee\ns_nop 7")
    for qt in range(2):
        for n in range(len(LATE_KS), 12):
            if (n & 1) == qt or 12 - len(LATE_KS) == 1: pass
        if qt == 0:
            for n in range(len(LATE_KS), 12): kv_store(a, n)
        for s_ in range(4):
            for hf in range(2):
                d = Oreg(2*s_+hf, qt)
                if "pkq" in ABL:
                    for r in (0, 2): a(f"v_pk_mul_f32 {v(d+r,2)}, {v(d+r,2)}, s[6:7] op_sel_hi:[1,0]")
                else:
                    for r in range(4): a(f"v_mul_f32 v{d+r}, s6, v{d+r}")
                a(f"v_cvt_pk_bf16_f32 v{Qreg(qt,s_)+2*hf}, v{d}, v{d+1}\nv_cvt_pk_bf16_f32 v{Qreg(qt,s_)+2*hf+1}, v{d+2}, v{d+3}")
    zero_regs(a, O_, 64)
    zero_regs(a, NM, 16)
    zero_regs(a, LA, 4)
    a(f"v_bfe_u32 v2, v{L}, 1, 1\nv_lshrrev_b32 v3, 5, v{L}\nv_cmp_eq_u32 vcc, v2, v3\nv_mov_b32 v2, 0x3f803f80\nv_and_b32 v3, 1, v{L}\nv_mul_u32_u24 v3, 0xaaaa, v3\nv_add_u32 v{SIDX}, 0x4444, v3")
    for i in range(4): a(f"v_cndmask_b32 v{ONES+i}, 0, v2, vcc")
    a(f"v_add_u32 v{VA}, s100, v{VL16}")
    a(f"s_waitcnt vmcnt({12 - len([k for k in LATE_KS if k <= KS_POLL])})")

def sm_ops(par):
    ops = []
    n = 0
    for kt in range(2):
        for qt in range(2):
            for r in range(4):
                t, tp = ET + n % 4, ET + (n-1) % 4
                e = f"v_exp_f32 v{t}, v{Sreg(par,kt,qt)+r}"
                rest = []
                if r & 1: rest.append(f"v_cvt_pk_bf16_f32 v{Preg(par,qt)+2*kt+(r>>1)}, v{tp}, v{t}")
                ops.append((e, rest)); n += 1
    return ops

def phase_attn(a):
    handlers = []
    FULLQ = [("F", i) for i in range(1, 8)]
    def rd(kind, i, k):
        off = (0 if kind == "K" else 32768) + k*8192 + i*1024
        a(f"ds_read_b128 {v(FR+4*i,4)}, v{VA} offset:{off}"); a.lg.issue(("F", i))
    def bar(wait="vmcnt(0) lgkmcnt(0)", mid=None, hot=False):
        bk = a.newlabel("ldback")
        if hot:
            a(f"s_cbranch_scc1 {bk}_c\ns_barrier")
            a.label(bk)
            handlers.append(("ld", bk))
        else:
            a(f"s_waitcnt {wait}\ns_call_b64 s[82:83], L_pend\ns_barrier")
            if mid: mid()
            a(f"s_call_b64 s[82:83], L_load")
        a.lg.drain()
        if "stampbar" in ABL: a.stampd(S_N, 44)
        a(f"s_add_i32 s{S_N}, s{S_N}, 1")
    def stage(k, qk=True, sm=True, pv=True, nxt=True, loop=False):
        pq, ps = k & 1, 1 - (k & 1)
        full = qk and pv
        pairs = []
        if pv: pairs += [("V", i) for i in range(8)]
        if qk: pairs += [("K", i) for i in range(8)]
        NP = len(pairs)
        lp = None if not pv else 1 if not full else LPOS - 1 if k == 3 else 13
        g0 = [[] for _ in range(NP)]; g1 = [[] for _ in range(NP)]; gl = []
        if sm:
            ops = sm_ops(ps)[2:]
            g1[0] += sm_ops(ps)[1][1]
            per = 1 if full else 2
            for n, (e, rest) in enumerate(ops):
                g0[n//per].append(e); g1[n//per] += rest
            c = [Preg(ps, qt) + 2*kt + h for kt in range(2) for qt in range(2) for h in range(2)]
            X = ET + 4
            chk = [f"v_or3_b32 v{X}, v{c[0]}, v{c[1]}, v{c[2]}", f"v_or3_b32 v{X}, v{X}, v{c[3]}, v{c[4]}", f"v_or3_b32 v{X}, v{X}, v{c[5]}, v{c[6]}",
                   f"v_bitop3_b32 v{X}, v{X}, v{c[7]}, s72 bitop3:0xa8", f"v_cmp_ne_u32 vcc, s{S_THR}, v{X}"]
            if full:
                g1[4].append(chk[0]); g1[8].append(chk[1]); g1[12].append(chk[2])
                (gl if lp == 13 else g1[14]).append(chk[3]); g1[14].append(chk[4])
            else: g0[7] += chk
        if full:
            for n, (e, rest) in enumerate(sm_ops(pq)[:2]): g0[14+n].append(e)
        sc = {}
        if loop:
            sc[1] = f"s_sub_i32 s{S_C}, s{S_C}, 1"; sc[3] = f"s_cmp_gt_i32 s{S_C}, 0"; sc[5] = f"s_cselect_b32 s{S_THR}, 0, 1"
            if k == 3: sc[lp-1] = f"s_cmp_lg_u32 s{S_HK}, 0"
        barp = lp if k == 3 else None
        if barp is not None: g1[barp-1].append(f"v_xor_b32 v{VA}, 0x10000, v{VA}")
        held = []
        for n, (kind, i) in enumerate(pairs):
            for qt in range(2):
                q = qt ^ (i & 1) if "a" in SNAKE else qt
                if kind == "V": a.mfma(Oreg(i, q), FR+4*i, Preg(pq, q))
                else: a.mfma(Sreg(pq, i >> 2, q), FR+4*i, Qreg(q, i & 3), None if i & 3 else NMreg(i >> 2, q))
                if qt == 0:
                    if n + 1 < NP: a.wait_lg(("F", pairs[n+1][1]))
                    elif nxt: a.wait_lg(("F", 0))
                    for x in g0[n]: a(x)
                else:
                    if n in sc: a(sc[n])
                    if n == barp and loop:
                        a("s_waitcnt lgkmcnt(0)"); a.lg.drain()
                    if kind == "V" and qk: rd("K", i, k)
                    elif nxt:
                        if barp is not None and n <= barp: held.append(i)
                        else: rd("V", i, (k+1) & 3)
                    for x in g1[n]: a(x)
            if n == lp:
                a(f"v_smfmac_f32_16x16x64_bf16 {v(LA,4)}, {v(ONES,4)}, {v(Preg(pq,0),8)}, v{SIDX}")
                for x in gl: a(x)
                if n == barp:
                    bar(hot=loop)
                    for h in held: rd("V", h, 0)
        if sm:
            bk = a.newlabel("back")
            if loop and k == 3:
                a(f"s_cbranch_vccz L_st0\ns_branch {bk}_h")
                handlers.append(("sm", bk, k, loop, full, "L_st0"))
            else:
                a(f"s_cbranch_vccnz {bk}_h")
                a.label(bk)
                handlers.append(("sm", bk, k, loop, full, bk))
    a(f"s_mov_b32 s72, 0x40004000\ns_mov_b32 s{S_THR}, 0\ns_sub_u32 s{S_NL}, 15, s{S_P}\ns_mov_b32 s{S_N}, -1")
    a.stamp(8)
    if "symq" in ABL: bar("lgkmcnt(0)")
    else:
        a(f"s_cmp_ge_u32 s{S_W}, 4\ns_cbranch_scc1 L_qb2\ns_barrier")
        a.label("L_qb2")
        a.lg.drain()
        if "stampbar" in ABL: a.stampd(S_N, 44)
    a.stamp(9)
    for i in range(8): rd("K", i, 0)
    a(f"s_cmp_lg_u32 s{S_B}, 0\ns_cbranch_scc1 L_nm0\ns_call_b64 s[82:83], L_mask")
    a.label("L_nm0")
    for i in range(8):
        a.wait_lg(("F", i))
        for qt in range(2):
            a.mfma(Sreg(0, i >> 2, qt), FR+4*i, Qreg(qt, i & 3), None if i & 3 else NMreg(i >> 2, qt))
        rd("K", i, 1)
    a("s_nop 7")
    for qt in range(2):
        m = ET + qt
        s0, s1 = Sreg(0, 0, qt), Sreg(0, 1, qt)
        a(f"v_max3_f32 v{m}, v{s0}, v{s0+1}, v{s0+2}\nv_max3_f32 v{m}, v{m}, v{s0+3}, v{s1}\nv_max3_f32 v{m}, v{m}, v{s1+1}, v{s1+2}\nv_max_f32 v{m}, v{m}, v{s1+3}")
        xlane(a, "v_max_f32", m, ET+2)
        a(f"v_add_f32 v{m}, {hex(OFFS)}, v{m}")
        for kt in range(2):
            for r in range(4):
                a(f"v_sub_f32 v{Sreg(0,kt,qt)+r}, v{Sreg(0,kt,qt)+r}, v{m}\nv_sub_f32 v{NMreg(kt,qt)+r}, 0, v{m}")
    a(f"s_cmp_lg_u32 s{S_B}, 1\ns_cbranch_scc1 L_nm1\ns_call_b64 s[82:83], L_mask")
    a.label("L_nm1")
    def early(par):
        o = sm_ops(par)[:2]
        a(o[0][0]); a(o[1][0])
    early(0)
    a.wait_lg(("F", 0))
    stage(1, pv=False)
    assert a.lg.q == FULLQ
    a("s_nop 7")
    early(1)
    if "symq" not in ABL: a(f"s_call_b64 s[82:83], L_load\ns_mov_b32 s{S_N}, 0")
    for n in range(12, 16): kv_store(a, n)
    if "pr_fin" in ABL: a("s_setprio 1")
    if "pr_long" in ABL:
        a(f"s_cmp_lt_u32 s{S_W}, 4\ns_cbranch_scc1 L_prl\ns_setprio 2")
        a.label("L_prl")
    a(f"s_sub_i32 s{S_C}, s{S_B}, 2")
    a.stamp(10)
    a(f"s_cmp_eq_u32 s{S_B}, 0\ns_cbranch_scc1 L_pv2\ns_cmp_eq_u32 s{S_B}, 1\ns_cbranch_scc1 L_tail2")
    a(f"s_cmp_lg_u32 s{S_B}, 2\ns_cbranch_scc1 L_st2\ns_call_b64 s[82:83], L_mask\ns_branch L_st2")
    a(".p2align 6")
    a.label("L_st0")
    for k in range(4):
        if k == 2: a.label("L_st2")
        stage(k, loop=True)
        assert a.lg.q == FULLQ, a.lg.q
    for k in range(4):
        a.label(f"L_tail{k}")
        a.lg.q = list(FULLQ)
        a(f"s_mov_b32 s{S_THR}, 0")
        stage(k, qk=False)
        assert a.lg.q == FULLQ
        a.label(f"L_pv{(k+1)&3}")
        stage((k+1) & 3, qk=False, sm=False, nxt=False)
        if k == 1 and "nopvb" not in ABL:
            a(f"s_cmp_eq_u32 s{S_B}, 0\ns_cbranch_scc1 L_fin")
            bar()
        if k < 3: a("s_branch L_fin")
    a.label("L_fin")
    if "pr_fin" in ABL: a("s_setprio 0")
    a.stamp(11)
    idx_addr(a); a(f"buffer_load_dword v{VIDX}, v3, {WS}, s72 offen sc1")
    for qt in range(2): a(f"v_add_f32 v{L_+qt}, v{LA+2*qt}, v{LA+2*qt+1}\nv_rcp_f32 v{L_+qt}, v{L_+qt}")
    a(f"s_lshl_b32 s6, s{S_B}, 18\ns_lshl_b32 s7, s{S_H}, 12\ns_add_u32 s6, s6, s7\ns_add_u32 s6, s6, {WS_CTX}\ns_nop 4")
    n = 0
    a.vm.drain()
    for qt in range(2):
        for s_ in range(4):
            t = QF + 4*n; n += 1
            for hf in range(2):
                d = Oreg(2*s_+hf, qt)
                if "pkfin" in ABL:
                    sel = "op_sel_hi:[1,0]" if qt == 0 else "op_sel:[0,1] op_sel_hi:[1,1]"
                    for r in (0, 2): a(f"v_pk_mul_f32 {v(d+r,2)}, {v(d+r,2)}, {v(L_,2)} {sel}")
                else:
                    for r in range(4): a(f"v_mul_f32 v{d+r}, v{L_+qt}, v{d+r}")
                a(f"v_cvt_pk_bf16_f32 v{t+2*hf}, v{d}, v{d+1}\nv_cvt_pk_bf16_f32 v{t+2*hf+1}, v{d+2}, v{d+3}")
            a(f"buffer_store_dwordx4 {v(t,4)}, v{VL16}, {WS}, s6 offen offset:{s_*1024} sc1"); a.vm.issue("st")
        if qt == 0: a("s_add_u32 s6, s6, 0x20000")
    a.stamp(12)
    def flag_now():
        a("s_waitcnt vmcnt(0)")
        set_flag(a, "ctx")
    a(f"s_sub_i32 s6, s{S_NL}, {0 if 'nolatefin' in ABL else 4}\ns_cmp_gt_i32 s{S_N}, s6\ns_cbranch_scc1 L_pre")
    bar("vmcnt(8)", flag_now)
    a(f"s_lshl_b32 s6, s{S_W}, 8\ns_add_u32 s6, s6, s2\ns_cmp_eq_u32 s6, {DESIG}\ns_cbranch_scc1 L_top")
    a.label("L_idle")
    a(f"s_sub_i32 s6, s{S_NL}, 5\ns_cmp_gt_i32 s{S_N}, s6\ns_cbranch_scc1 L_pre")
    bar()
    a(f"s_cmp_lt_u32 s{S_E}, 54\ns_cbranch_scc1 L_moe\ns_branch L_idle")
    a.label("L_pre")
    a(f"s_cmp_lt_u32 s{S_W}, 4\ns_cbranch_scc1 L_pre1")
    a.stamp(19)
    a("s_barrier")
    a(f"s_lshl_b32 s7, s76, 13\ns_add_u32 s7, s7, 0x10000\nv_add_u32 v3, s7, v{VL16}\nv_add_u32 v2, 0x10000, v3\ns_lshl_b32 s7, s76, 12\ns_add_u32 s7, s7, 0x10000\nv_add_u32 v12, s7, v{VL16}")
    def wrd(fs):
        for f in fs:
            r, off = (2, f*1024) if f < 8 else (3, (f-8)*1024) if f < 16 else (12, 49152+(f-16)*1024)
            a(f"ds_read_b128 {v(WR+4*f,4)}, v{r} offset:{off}")
    wrd(range(12))
    out_setup(a, 1)
    out_cx(a)
    wrd(range(12, 20))
    NWF = int(os.environ.get("NWF", "1"))
    if "w0in" in ABL:
        a("s_waitcnt lgkmcnt(0)\ns_barrier")
        wo_load(a, 4)
    else:
        for i in range(4, 4+NWF): wo_load(a, i)
        a(f"s_waitcnt vmcnt({5*NWF})")
        set_flag(a, "ctx")
        for i in range(4+NWF, 8): wo_load(a, i)
        a("s_waitcnt lgkmcnt(0)\ns_barrier")
    a("s_branch L_adone")
    a.label("L_pre1")
    cnt_addr(a); a(cnt_load(a, 12, 1))
    out_setup(a, 0)
    if "xnt" in ABL:
        a.srd(SRD_A, P_X, 2048*640*2)
        a(f"v_min_u32 v2, 39, v{L}\nv_mul_u32_u24 v3, 52, v2\nv_lshrrev_b32 v3, 8, v3\nv_mul_u32_u24 v4, 5, v3\nv_sub_u32 v2, v2, v4\nv_mul_u32_u24 v3, 1280, v3\nv_lshl_add_u32 v2, v2, 6, v3")
        a(f"s_cmp_lt_u32 s{S_W}, 2\ns_cselect_b32 s6, s{S_OB}, s{S_OL}\ns_lshl_b32 s6, s6, 1\ns_and_b32 s7, s{S_W}, 1\ns_add_u32 s6, s6, s7\ns_mul_i32 s6, s6, 10240\ns_and_b32 s7, s{S_H}, 3\ns_mul_i32 s7, s7, 320\ns_add_u32 s6, s6, s7")
        a(f"buffer_load_dword v{VDUM}, v2, {R(SRD_A)}, s6 offen")
    for j in range(5):
        if j == 1:
            a("v_cmp_gt_u32 vcc, 4, v12\ns_cbranch_vccz L_wok")
            a.label("L_wpoll")
            cnt_addr(a); poll(a, cnt_load(a, 2, 1), "v_cmp_gt_u32 vcc, 4, v2", sleep=8)
            set_flag(a, "ctx")
            a.label("L_wok")
            a(f"s_mov_b32 s{S_ALL}, 1")
        if j == 3: y_look(a)
        if j == 4: y_try(a)
        PIECES = eval(os.environ.get("PIECES", "((), (0,1,2,3), (4,5), (6,7))"))
        if j < 4:
            for i in PIECES[j]: wo_load(a, i)
        if j == 4:
            ctxf_addr(a, S_OB); a(f"buffer_load_dword v50, v3, {WS}, s72 offen sc1")

        if j == 0: a(f"s_sub_i32 s6, s{S_NL}, 4\ns_cmp_gt_i32 s{S_N}, s6\ns_cbranch_scc1 L_wpoll")
        else: a(f"s_cmp_gt_i32 s{S_N}, s{S_NL}\ns_cbranch_scc1 L_e{j+2}")
        if j < 4:
            a(f"s_cmp_eq_i32 s{S_N}, s{S_NL}\ns_cbranch_scc1 L_lw{j}\ns_waitcnt vmcnt({5*len(PIECES[j])})")
            a.label(f"L_lw{j}")
        bar(f"vmcnt({20 if 'nocode2' in ABL else 21})")
        a.label(f"L_e{j+2}")
    a.stamp(22)
    moe_finish(a)
    out_cx(a)
    a("s_waitcnt vmcnt(0)\nv_cmp_ne_u32 vcc, 1, v50\ns_cbranch_vccz L_ce")
    ctxf_addr(a, S_OB)
    poll(a, f"buffer_load_dword v2, v3, {WS}, s72 offen sc1", "v_cmp_ne_u32 vcc, 1, v2", sleep=4)
    a.label("L_ce")
    for r in range(NPC):
        for x in ctx_dma(r) + ctx_dma(r, 16384): a(x)
    y_is(a, "L_yg")
    set_flag(a, "b")
    a("s_waitcnt vmcnt(1)\ns_branch L_ye")
    a.label("L_yg")
    a("s_waitcnt vmcnt(0)")
    a.label("L_ye")
    a.stamp(23)
    a("s_setprio 0")
    a.stamp(19)
    a("s_barrier")
    for r in range(NPC, 2):
        for x in ctx_dma(r) + ctx_dma(r, 16384): a(x)
    a.stamp(15)
    a("s_branch L_adone")
    y_loads(a)
    moe_steps(a, bar)
    top8(a, bar)
    for h in handlers:
        if h[0] == "ld":
            a.label(h[1] + "_c"); a(f"s_waitcnt vmcnt(0) lgkmcnt(0)\ns_call_b64 s[82:83], L_pend\ns_barrier\ns_call_b64 s[82:83], L_load\ns_branch {h[1]}")
        else:
            _, bk, k, loop, full, back = h
            a.label(bk + "_h")
            a(f"v_cmp_ne_u32 vcc, 0, v{ET+4}\ns_cbranch_vccz {bk}_n\ns_call_b64 s[80:81], L_rare{1-(k&1)}")
            if full:
                o = sm_ops(k & 1)[:2]
                a(o[0][0]); a(o[1][0])
            a.label(bk + "_n")
            if loop:
                a(f"s_cmp_lt_i32 s{S_C}, 0\ns_cbranch_scc1 L_tail{(k+1)&3}\ns_cmp_gt_i32 s{S_C}, 0\ns_cbranch_scc1 {back}\ns_call_b64 s[82:83], L_mask")
            a(f"s_branch {back}")
    a.label("L_load")
    a(f"s_bitcmp1_b32 s{S_HK}, 0\ns_cbranch_scc0 L_load_r")
    a(f"s_add_u32 s77, s77, 32768\ns_xor_b32 s78, s78, 0x10000\ns_add_i32 s73, s{S_N}, 1\ns_cmp_gt_i32 s73, s{S_NL}\ns_cbranch_scc1 L_load_r")
    if "at_nodma" not in ABL:
        a(f"s_cmp_eq_i32 s73, s{S_NL}\ns_cbranch_scc1 L_load_v\ns_cmp_lg_i32 s73, 3\ns_cbranch_scc1 L_load_k")
        a("v_cmp_gt_u32 vcc, 2, v12\ns_cbranch_vccz L_load_k")
        kv_flag_wait(a, 2)
        a.label("L_load_k")
        st_dma(a, ["K", "V1"])
        a.label("L_load_v")
        st_dma(a, ["V0"])
    a(f"s_cmp_eq_i32 s73, s{S_NL}\ns_cbranch_scc1 L_xa\ns_cmp_lg_i32 s73, 2\ns_cbranch_scc1 L_nolook")
    kvf_addr(a); a(f"buffer_load_dword v12, v3, {WS}, s7 offen sc1")
    a.label("L_nolook")
    a(f"s_bitcmp1_b32 {WOTM}, s{S_P}\ns_cbranch_scc0 L_wb\ns_sub_i32 s6, s{S_N}, {WOTN}\ns_cmp_gt_u32 s6, 4\ns_cbranch_scc0 L_wsel")
    a.label("L_wb")
    a(f"s_sub_u32 s6, s{S_P}, {X3P}\ns_cmp_ge_u32 s6, 4\ns_cbranch_scc1 L_load_r")
    a(f"s_sub_i32 s79, s73, 1\ns_cmp_lt_u32 s79, 2\ns_cbranch_scc1 L_x3")
    a.label("L_load_r")
    a("s_setpc_b64 s[82:83]")
    a.label("L_pend")
    a(f"s_bitcmp1_b32 s{S_HK}, 1\ns_cbranch_scc0 L_load_a\ns_cmp_lt_i32 s{S_N}, 0\ns_cbranch_scc1 L_load_a")
    set_flag(a, "kv", 2)
    a(f"s_and_b32 s{S_HK}, s{S_HK}, 1")
    a.label("L_load_a")
    a("s_setpc_b64 s[82:83]")
    def wo_dma(fs, m0base, m0off):
        for i, f in enumerate(fs):
            a(f"s_add_u32 m0, {m0base}, {m0off + i*1024}\ns_add_u32 s7, s{84 + f%5}, {(f//5)*40960}\nbuffer_load_dwordx4 v{VL16}, {WS}, s7 offen sc1 lds")
    WOTR = [172, 176, 180, 184, 188]
    a.label("L_wsel")
    a(f"s_bfm_b32 s7, s{S_P}, 0\ns_and_b32 s7, s7, {WOTM}\ns_bcnt1_i32_b32 s7, s7\ns_lshl_b32 s7, s7, 5\ns_and_b32 s91, s2, 31\ns_add_u32 s91, s91, s7\ns_lshl_b32 s91, s91, 1\ns_lshr_b32 s7, s6, 1\ns_add_u32 s91, s91, s7\ns_cmp_eq_u32 s6, 4\ns_cbranch_scc1 L_w2\ns_bitcmp1_b32 s6, 0\ns_cbranch_scc1 L_w1")
    a.label("L_w0")
    a.srd(SRD_E, P_WO, 4096*640*2)
    a(f"s_lshr_b32 s75, s91, 1\ns_mul_i32 s75, s75, {32*1280}\ns_and_b32 s6, s91, 1\ns_mul_i32 s6, s6, 640\ns_add_u32 s75, s75, s6\ns_movk_i32 s7, 1639")
    a(f"s_mul_i32 s74, s76, 5120\ns_add_u32 s74, s74, {LDS_WOT}\ns_mul_i32 s6, s76, 320\nv_add_u32 v9, s6, v{L}")
    for n in range(5):
        a(f"v_add_u32 v2, {n*64}, v9\nv_mul_lo_u32 v3, v2, s7\nv_lshrrev_b32 v3, 16, v3\nv_mul_u32_u24 v4, 40, v3\nv_sub_u32 v4, v2, v4")
        a(f"v_mul_u32_u24 v3, 1280, v3\nv_lshl_add_u32 v3, v4, 4, v3\ns_add_u32 m0, s74, {n*1024}\ns_nop 0")
        a(f"buffer_load_dwordx4 v3, {R(SRD_E)}, s75 offen{NT} lds")
    a("s_branch L_wb")
    a.label("L_w1")
    a(f"v_and_b32 v2, 15, v{L}\nv_lshrrev_b32 v3, 4, v{L}\nv_lshrrev_b32 v4, 2, v2\nv_lshl_add_u32 v4, v3, 2, v4\nv_mul_u32_u24 v4, 640, v4")
    a(f"v_and_b32 v2, 3, v2\nv_lshl_add_u32 v4, v2, 3, v4\ns_mul_i32 s6, s76, 160\ns_add_u32 s6, s6, {LDS_WOT}\nv_add_u32 v4, s6, v4")
    a(f"s_mul_i32 s6, s91, 20480\ns_mul_i32 s7, s76, 5120\ns_add_u32 s6, s6, s7\ns_add_u32 s6, s6, {WS_WOF}\ns_add_u32 s7, s6, 4096")
    for n in range(5):
        d = WOTR[n]
        a(f"ds_read_b64_tr_b16 v[{d}:{d+1}], v4 offset:{n*32}\nds_read_b64_tr_b16 v[{d+2}:{d+3}], v4 offset:{n*32+10240}")
    a("s_waitcnt lgkmcnt(0)")
    for n in range(5):
        a(f"buffer_store_dwordx4 {v(WOTR[n],4)}, v{VL16}, {WS}, s{6 if n<4 else 7} offen offset:{(n&3)*1024} sc1")
    a("s_branch L_wb")
    a.label("L_w2")
    a(f"s_cmp_lg_u32 s{S_W}, 0\ns_cbranch_scc1 L_wb")
    count_atomic(a, 1)
    a("s_branch L_wb")
    a.label("L_xa")
    a(f"s_cmp_lg_u32 s{S_ALL}, 0\ns_cbranch_scc1 L_xa1")
    cnt_addr(a); poll(a, cnt_load(a, 2, 1), "v_cmp_gt_u32 vcc, 4, v2", sleep=8)
    a.label("L_xa1")
    if "nocode2" not in ABL:
        a("s_getpc_b64 s[80:81]")
        a.label("L_pc2")
        a(f"s_sub_u32 s80, s80, L_pc2-L_fin\ns_subb_u32 s81, s81, 0\ns_and_b32 s6, s{S_H}, 1\ns_lshl_b32 s6, s6, 14\nv_lshl_add_u32 v3, v0, 6, s6")
        a(f"v_min_u32 v3, L_exit-L_fin, v3\nglobal_load_dword v{VDUM}, v3, s[80:81]")
    if "xt" in ABL:
        a.srd(SRD_A, P_X, 2048*640*2)
        a(f"v_lshrrev_b32 v2, 2, v{L}\nv_mul_u32_u24 v2, 1280, v2\nv_and_b32 v3, 3, v{L}\nv_lshl_add_u32 v2, v3, 6, v2")
        a(f"s_lshl_b32 s6, s{S_H}, 2\ns_add_u32 s6, s6, s{S_W}\ns_mul_i32 s73, s6, 20480\ns_mul_i32 s7, s{S_P}, 160\ns_andn2_b32 s7, s7, 63\ns_add_u32 s7, s7, s73")
        a(f"buffer_load_dword v{VDUM}, v2, {R(SRD_A)}, s7 offen\nv_min_u32 v2, 39, v{L}\nv_lshlrev_b32 v2, 6, v2\ns_mul_i32 s7, s{S_P}, 2560\ns_add_u32 s7, s7, s73")
        a(f"buffer_load_dword v{VDUM}, v2, {WS}, s7 offen sc1")
    wo_base(a, 74, 1)
    for m in range(4): a(f"s_add_u32 s6, s76, {m}\ns_and_b32 s6, s6, 3\ns_lshl_b32 s6, s6, 10\ns_add_u32 s{84+m}, s6, s74")
    a("s_add_u32 s88, s74, 4096")
    a(f"s_lshl_b32 s73, s{S_W}, 13\ns_add_u32 s75, s73, s78")
    wo_dma(range(8), "s73", LDS_SP); wo_dma(range(8, 16), "s75", 0)
    a(f"s_lshl_b32 s75, s{S_W}, 12\ns_add_u32 s75, s75, s78")
    wo_dma(range(16, 20), "s75", 49152)
    a("s_setpc_b64 s[82:83]")
    a.label("L_x3")
    if "nomoetouch" not in ABL:
        a.srd(SRD_A, P_WG, 640*1728*2)
        a(f"s_cmp_eq_u32 s{S_W}, 3\ns_cbranch_scc1 L_load_r")
        a(f"s_cmp_eq_u32 s{S_W}, 1\ns_cselect_b32 s{SRD_A}, s{P_WU}, s{SRD_A}\ns_cselect_b32 s{SRD_A+1}, s{P_WU+1}, s{SRD_A+1}")
        a(f"s_cmp_eq_u32 s{S_W}, 2\ns_cselect_b32 s{SRD_A}, s{P_WD}, s{SRD_A}\ns_cselect_b32 s{SRD_A+1}, s{P_WD+1}, s{SRD_A+1}")
        a(f"s_mov_b32 s73, 3456\ns_cmov_b32 s73, 256\ns_mov_b32 s75, 256\ns_cmov_b32 s75, {4*40960}")
        a(f"s_lshr_b32 s6, s2, 3\ns_sub_u32 s6, s6, {4*X3P}\ns_mul_i32 s6, s6, 40\nv_lshrrev_b32 v2, 2, v{L}\nv_add_u32 v2, s6, v2\nv_mul_lo_u32 v2, v2, s73\nv_and_b32 v3, 3, v{L}\nv_lshl_add_u32 v2, v3, 6, v2")
        a(f"s_xor_b32 s79, s79, 1\ns_lshl_b32 s6, s79, 3\ns_lshr_b32 s7, s{S_H}, 2\ns_add_u32 s6, s6, s7\ns_mul_i32 s6, s6, s75")
        a(f"v_mov_b32 v3, {hex(WS_SIZE)}\nv_cmp_gt_u32 vcc, 32, v{L}\ns_lshl_b32 s73, s73, 4\ns_nop 0\nv_cndmask_b32 v3, v3, v2, vcc")
        a(f"buffer_load_dword v{VDUM}, v2, {R(SRD_A)}, s6 offen\ns_add_u32 s7, s6, s73\nbuffer_load_dword v{VDUM}, v2, {R(SRD_A)}, s7 offen")
        a(f"s_add_u32 s7, s7, s73\nbuffer_load_dword v{VDUM}, v3, {R(SRD_A)}, s7 offen")
    a("s_setpc_b64 s[82:83]")
    a.label("L_mask")
    a(f"v_and_b32 v2, 15, v{L}\nv_lshrrev_b32 v3, 4, v{L}\nv_lshlrev_b32 v3, 2, v3\nv_sub_u32 v2, v2, v3\nv_mov_b32 v3, 0xff800000")
    for r in range(4):
        a(f"v_cmp_gt_i32 vcc, {r}, v2\nv_mov_b32 v{NMreg(1,0)+r}, v3\ns_nop 0")
        a(f"v_cndmask_b32 v{NMreg(0,0)+r}, v{NMreg(0,0)+r}, v3, vcc\nv_cndmask_b32 v{NMreg(1,1)+r}, v{NMreg(1,1)+r}, v3, vcc")
    a("s_nop 1\ns_setpc_b64 s[82:83]")
    for par in range(2):
        a.label(f"L_rare{par}")
        a("s_nop 15")
        for qt in range(2):
            m = ET + 4
            s0, s1 = Sreg(par, 0, qt), Sreg(par, 1, qt)
            a(f"v_max_f32 v{m}, v{s0}, v{s0+1}\nv_max3_f32 v{m}, v{m}, v{s0+2}, v{s0+3}\nv_max3_f32 v{m}, v{m}, v{s1}, v{s1+1}\nv_max3_f32 v{m}, v{m}, v{s1+2}, v{s1+3}")
            xlane(a, "v_max_f32", m, ET)
            a(f"v_add_f32 v{m}, {hex(OFFS)}, v{m}\nv_max_f32 v{m}, 0, v{m}")
            a(f"v_exp_f32 v{ET}, -v{m}")
            for kt in range(2):
                for r in range(4):
                    for reg in (Sreg(0,kt,qt), Sreg(1,kt,qt), NMreg(kt,qt)):
                        a(f"v_sub_f32 v{reg+r}, v{reg+r}, v{m}")
            for r in range(2): a(f"v_mul_f32 v{LA+2*qt+r}, v{ET}, v{LA+2*qt+r}")
            for t in range(8):
                for r in range(4): a(f"v_mul_f32 v{Oreg(t,qt)+r}, v{ET}, v{Oreg(t,qt)+r}")
        for e, rest in sm_ops(par):
            a(e); a("s_nop 0")
            for x in rest: a(x)
        a("s_nop 1\ns_setpc_b64 s[80:81]")
    a.label("L_adone")
    a.stamp(13)

def top8(a, bar):
    K = 64
    a.label("L_top")
    a(f"s_mov_b32 s6, {hex(WS_R)}\nv_lshrrev_b32 v2, 1, v{L}\nv_and_b32 v3, 1, v{L}\nv_lshlrev_b32 v3, 4, v3\nv_lshl_add_u32 v2, v2, 7, v3")
    for i in range(8): a(f"buffer_load_dwordx4 {v(K+4*i,4)}, v2, {WS}, s6 offen sc1\ns_add_u32 s6, s6, 4096")
    a("s_waitcnt vmcnt(0)\nv_mov_b32 v24, 0\ns_mov_b32 s7, 0\ns_mov_b32 s84, 0")
    a.label("L_top_l")
    a(f"v_max3_u32 v4, v{K}, v{K+1}, v{K+2}\nv_max3_u32 v5, v{K+3}, v{K+4}, v{K+5}")
    for i in range(6, 30, 4): a(f"v_max3_u32 v4, v4, v{K+i}, v{K+i+1}\nv_max3_u32 v5, v5, v{K+i+2}, v{K+i+3}")
    a(f"v_max3_u32 v4, v4, v{K+30}, v{K+31}\nv_max_u32 v4, v4, v5")
    a.wave_reduce("v_max_u32", 4)
    a("v_readlane_b32 s6, v4, 63\ns_mov_b32 m0, s7\ns_nop 3\ns_add_u32 s84, s84, s6\nv_writelane_b32 v24, s84, m0")
    for i in range(32): a(f"v_subrev_u32 v{K+i}, s6, v{K+i}")
    a("s_add_u32 s7, s7, 1\ns_cmp_lt_u32 s7, 8\ns_cbranch_scc1 L_top_l")
    a(f"v_and_b32 v2, 7, v{L}\nv_lshlrev_b32 v2, 2, v2\nds_bpermute_b32 v4, v2, v24\ns_waitcnt lgkmcnt(0)\nv_and_b32 v4, 0x7ff, v4\nv_sub_u32 v4, 0x7ff, v4")
    a(f"v_lshrrev_b32 v5, 4, v4\nv_mul_u32_u24 v5, 20480, v5\nv_and_b32 v4, 15, v4\nv_lshl_add_u32 v5, v4, 4, v5\nv_lshrrev_b32 v7, 4, v{L}\nv_lshl_add_u32 v5, v7, 8, v5")
    a(f"v_mov_b32 v6, {hex(WS_SIZE)}\nv_and_b32 v2, 8, v{L}\nv_cmp_eq_u32 vcc, 0, v2\ns_mov_b32 s6, 0\ns_nop 0\nv_cndmask_b32 v5, v6, v5, vcc")
    for k in range(20):
        if k and k % 4 == 0: a("s_add_u32 s6, s6, 4096")
        a(f"buffer_load_dwordx4 {v(K+4*k,4)}, v5, {WS}, s6 offen offset:{(k&3)*1024} sc1")
    def put():
        a(f"s_waitcnt vmcnt(0)\ns_mov_b32 s6, {hex(WS_XS)}")
        for k in range(20):
            if k and k % 4 == 0: a("s_add_u32 s6, s6, 4096")
            a(f"buffer_store_dwordx4 {v(K+4*k,4)}, v{VL16}, {WS}, s6 offen offset:{(k&3)*1024} sc1")
    bar("vmcnt(20)", put)
    a("s_waitcnt vmcnt(16)")
    a(f"v_or_b32 v24, 0x80000000, v24\nv_lshlrev_b32 v5, 2, v{L}\nv_mov_b32 v6, {hex(WS_SIZE)}\nv_cmp_gt_u32 vcc, 8, v{L}\ns_mov_b32 s6, {hex(WS_IDX)}\ns_nop 0\nv_cndmask_b32 v5, v6, v5, vcc")
    a(f"buffer_store_dword v24, v5, {WS}, s6 offen sc1\ns_branch L_idle")

OACC = 176
M_WD, M_PART = 81920, 122880
VIDX = 51
def idx_addr(a):
    a(f"v_and_b32 v3, 7, v{L}\nv_lshlrev_b32 v3, 2, v3\ns_mov_b32 s72, {hex(WS_IDX)}")
def ctxf_addr(a, own, both=True):
    a(f"v_and_b32 v3, 1, v{L}\nv_lshlrev_b32 v3, 12, v3")
    if both: a(f"v_and_b32 v2, 2, v{L}\nv_lshl_add_u32 v3, v2, 8, v3")
    a(f"s_lshr_b32 s72, s{own}, 2\ns_lshl_b32 s72, s72, 6\ns_andn2_b32 s6, s{S_H}, 7\ns_add_u32 s72, s72, s6\ns_add_u32 s72, s72, s{S_W}\ns_lshl_b32 s72, s72, 7\ns_add_u32 s72, s72, {WS_CTXF}")
def idx_poll(a, sfx, wait="s_waitcnt vmcnt(40)"):
    a(wait)
    a(f"v_cmp_le_i32 vcc, 0, v{VIDX}\ns_cbranch_vccz L_idx_ok{sfx}")
    idx_addr(a)
    poll(a, f"buffer_load_dword v{VIDX}, v3, {WS}, s72 offen sc1", f"v_cmp_le_i32 vcc, 0, v{VIDX}")
    a.label(f"L_idx_ok{sfx}")

def moe_steps(a, bar):
    XS, FRG, GA, WDR, WD2, PR, YO = 64, 104, 24, 32, 240, 184, 216
    VG, VT, VD, VTD, VY, VXS = 16, 17, 18, 19, 20, 21
    S_G, S_WIN, S_D = 84, 85, 86
    a.label("L_moe")
    if MOEP == 2: a(f"s_sub_u32 s6, s{S_N}, s{S_P}\ns_cmp_lg_u32 s6, 3\ns_cbranch_scc1 L_idle")
    else: a(f"s_add_u32 s6, s{S_N}, s{S_P}\ns_cmp_lg_u32 s6, 5\ns_cbranch_scc1 L_idle")
    def srds():
        a.srd(SRD_A, P_WG, 640*1728*2)
        a(f"s_cmp_ge_u32 s{S_W}, 2\ns_cselect_b32 s{SRD_A}, s{P_WU}, s{SRD_A}\ns_cselect_b32 s{SRD_A+1}, s{P_WU+1}, s{SRD_A+1}")
        a.srd(SRD_B, P_WD, 1728*640*2)
    def dma_g(nk):
        for n in range(2*nk):
            a(f"s_add_u32 m0, s{S_WIN}, {n*1024}\ns_nop 0\nbuffer_load_dwordx4 v{VG}, {R(SRD_A)}, s{S_G} offen lds\ns_add_u32 s{S_G}, s{S_G}, {16*3456}")
    def dma_d():
        for n in range(4):
            a(f"s_add_u32 m0, s{S_WIN}, {4096+n*1024}\ns_add_u32 s6, s{S_D}, {n*8*1280}\nbuffer_load_dwordx4 v{VD}, {R(SRD_B)}, s6 offen lds")
        a(f"s_add_u32 s{S_D}, s{S_D}, 512")
    def rd_g(k0, nk):
        for k in range(nk):
            for ft in range(2):
                d = FRG + ((k0+k)*2+ft)*4
                a(f"ds_read_b64_tr_b16 {v(d,2)}, v{VT} offset:{k*2048+ft*32}\nds_read_b64_tr_b16 {v(d+2,2)}, v{VT} offset:{k*2048+ft*32+256}")
            if k == 1: a("s_waitcnt lgkmcnt(0)")
    def xs(k0, nk):
        for k in range(k0, k0+nk): a(f"buffer_load_dwordx4 {v(XS+4*k,4)}, v{VL16}, {WS}, s88 offen sc1\ns_add_u32 s88, s88, 1024")
    def rd_d(base):
        for m in range(4):
            a(f"ds_read_b64_tr_b16 {v(base+4*m,2)}, v{VTD} offset:{m*32}\nds_read_b64_tr_b16 {v(base+2+4*m,2)}, v{VTD} offset:{m*32+16*128}")
    def down(base, goff):
        for m in range(4): a.mfma(YO+4*m, base+4*m, GA, "0")
        a("s_nop 7")
        for m in range(4): a(f"buffer_store_dwordx4 {v(YO+4*m,4)}, v{VY}, {WS}, s87 offen offset:{goff*1024+m*64} sc1")
        a("s_nop 1")
    srds()
    a(f"v_lshrrev_b32 v3, 2, v{L}\nv_mul_u32_u24 v3, 3456, v3\nv_and_b32 v4, 3, v{L}\nv_lshl_add_u32 v{VG}, v4, 4, v3")
    a(f"v_lshrrev_b32 v3, 3, v{L}\nv_mul_u32_u24 v3, 1280, v3\nv_and_b32 v4, 7, v{L}\nv_lshl_add_u32 v{VD}, v4, 4, v3")
    a(f"s_and_b32 s7, s{S_W}, 1\ns_mul_i32 s{S_G}, s7, {320*3456}\ns_lshl_b32 s6, s{S_E}, 6\ns_add_u32 s{S_G}, s{S_G}, s6")
    a(f"s_lshl_b32 s{S_WIN}, s{S_W}, 13\ns_add_u32 s{S_WIN}, s{S_WIN}, {LDS_SP}")
    a(f"s_mul_i32 s{S_D}, s{S_E}, 40960\ns_lshl_b32 s6, s{S_W}, 7\ns_add_u32 s{S_D}, s{S_D}, s6")
    dma_g(4)
    a(f"v_lshrrev_b32 v7, 4, v{L}\nv_and_b32 v2, 15, v{L}\nv_lshrrev_b32 v3, 2, v2\nv_lshl_add_u32 v8, v7, 3, v3\nv_lshlrev_b32 v8, 6, v8\nv_and_b32 v4, 3, v2\nv_lshl_add_u32 v8, v4, 3, v8\nv_add_u32 v{VT}, s{S_WIN}, v8")
    a(f"v_lshl_add_u32 v8, v7, 2, v3\nv_lshlrev_b32 v8, 7, v8\nv_lshl_add_u32 v8, v4, 3, v8\ns_add_u32 s6, s{S_WIN}, 4096\nv_add_u32 v{VTD}, s6, v8")
    a(f"v_mul_u32_u24 v3, 2560, v2\nv_lshl_add_u32 v3, v7, 4, v3\nv_mov_b32 v4, {hex(WS_SIZE)}\nv_cmp_gt_u32 vcc, 8, v2")
    a(f"s_mul_i32 s87, s{S_E}, 20480\ns_lshl_b32 s7, s{S_W}, 8\ns_add_u32 s87, s87, s7\ns_add_u32 s87, s87, {WS_YP}\nv_cndmask_b32 v{VY}, v4, v3, vcc")
    a(f"s_and_b32 s7, s{S_W}, 1\ns_mul_i32 s88, s7, 10240\ns_add_u32 s88, s88, {WS_XS}")
    W0 = "vmcnt(0) lgkmcnt(0)"
    def m1():
        rd_g(0, 4); a("s_waitcnt lgkmcnt(0)"); dma_g(4)
    bar(W0, m1)
    idx_addr(a); a(f"buffer_load_dword v{VIDX}, v3, {WS}, s72 offen sc1")
    def m2():
        rd_g(4, 4); a("s_waitcnt lgkmcnt(0)"); dma_g(2); dma_d()
    bar(W0, m2)
    idx_poll(a, "m", "")
    xs(0, 10)
    def m3():
        rd_g(8, 2); rd_d(WDR); a("s_waitcnt lgkmcnt(0)"); dma_d()
    bar("vmcnt(10) lgkmcnt(0)", m3)
    a("s_waitcnt vmcnt(20)")
    for k in range(10):
        for ft in range(2): a.mfma(GA+4*ft, FRG+(k*2+ft)*4, XS+4*k, "0" if k == 0 else None)
    a(f"v_add_u32 v10, s{S_WIN}, v{VL16}\ns_nop 7\nds_write_b128 v10, {v(GA,4)}\nds_write_b128 v10, {v(GA+4,4)} offset:1024")
    def m4():
        rd_d(WD2)
        a(f"s_lshr_b32 s6, s{S_W}, 1\ns_lshl_b32 s6, s6, 10\ns_and_b32 s7, s{S_W}, 1\ns_lshl_b32 s7, s7, 3\ns_add_u32 s6, s6, s7\ns_add_u32 s6, s6, {LDS_SP}\nv_add_u32 v10, s6, v{VL16}\ns_waitcnt lgkmcnt(0)")
        for w in range(4): a(f"ds_read_b64 {v(PR+2*w,2)}, v10 offset:{w*8192}")
        a(f"s_cmp_ge_u32 s{S_W}, 2\ns_cbranch_scc1 L_moe4b")
        dma_d()
        a.label("L_moe4b")
    bar(W0, m4)
    a("s_waitcnt lgkmcnt(0)\ns_mov_b32 s6, 0xbfb8aa3b")
    def rnd2(r): a(f"v_cvt_pk_bf16_f32 v{r+1}, v{r}, v{r+1}\nv_lshlrev_b32 v{r}, 16, v{r+1}\nv_and_b32 v{r+1}, 0xffff0000, v{r+1}")
    g0, u0 = PR, PR + 4
    for q in range(2): a(f"v_add_f32 v{g0+q}, v{g0+q}, v{g0+2+q}\nv_add_f32 v{u0+q}, v{u0+q}, v{u0+2+q}")
    rnd2(g0); rnd2(u0)
    a(f"v_mul_f32 v2, s6, v{g0}\nv_mul_f32 v3, s6, v{g0+1}\nv_exp_f32 v2, v2\nv_exp_f32 v3, v3\ns_nop 0\nv_add_f32 v2, 1.0, v2\nv_add_f32 v3, 1.0, v3")
    a(f"v_rcp_f32 v2, v2\nv_rcp_f32 v3, v3\ns_nop 0\nv_mul_f32 v{g0}, v{g0}, v2\nv_mul_f32 v{g0+1}, v{g0+1}, v3")
    rnd2(g0)
    a(f"v_mul_f32 v{g0}, v{g0}, v{u0}\nv_mul_f32 v{g0+1}, v{g0+1}, v{u0+1}\nv_cvt_pk_bf16_f32 v2, v{g0}, v{g0+1}")
    a(f"s_lshl_b32 s6, s{S_W}, 2\ns_add_u32 s6, s6, {LDS_SP+2048}\nv_add_u32 v10, s6, v{VL16}\nds_write_b32 v10, v2")
    def m5():
        a(f"v_add_u32 v10, {LDS_SP+2048}, v{VL16}\nds_read_b128 {v(GA,4)}, v10")
        rd_d(FRG)
    bar(W0, m5)
    a("s_waitcnt lgkmcnt(0)")
    down(WDR, 0); down(WD2, 1)
    a(f"s_cmp_ge_u32 s{S_W}, 2\ns_cbranch_scc1 L_moe5b")
    down(FRG, 2)
    a.label("L_moe5b")
    bar("vmcnt(8) lgkmcnt(0)", lambda: (a("s_waitcnt vmcnt(0)"), set_flag(a, "moe")))
    a("s_branch L_idle")

YS = [16+4*i for i in range(7)] + [56+4*i for i in range(10)] + [4]
def y_is(a, skip): a(f"s_lshr_b32 s7, s{S_W}, 1\ns_lshl_b32 s7, s7, 4\ns_add_u32 s6, s{S_P}, s7\ns_cmp_lg_u32 s6, {YP}\ns_cbranch_scc1 {skip}")
def y_faddr(a): a(f"v_min_u32 v3, 53, v{L}\nv_lshlrev_b32 v3, 7, v3\ns_mov_b32 s72, {hex(WS_MOEF)}")
Y_LD = f"buffer_load_dwordx4 v[16:19], v3, {WS}, s72 offen sc1"
Y_CMP = "\n".join([f"v_and_b32 v16, v16, v{16+r}" for r in (1, 2, 3)]) + "\nv_cmp_ne_u32 vcc, 1, v16"
def y_look(a):
    y_is(a, "L_yl0"); y_faddr(a); a(Y_LD); a.label("L_yl0")
def y_try(a):
    a("s_mov_b32 s101, 0")
    y_is(a, "L_yl1"); a(Y_CMP); a("s_cbranch_vccnz L_yl1\ns_call_b64 s[80:81], L_yld"); a.label("L_yl1")
def y_loads(a):
    XR = 54
    a.label("L_yld")
    idx_poll(a, "a", "")
    a(f"s_lshr_b32 s96, s{S_H}, 2\ns_and_b32 s97, s{S_H}, 3\ns_lshl_b32 s97, s97, 1\ns_add_u32 s97, s97, s{S_W}")
    a(f"s_mov_b32 m0, s96\ns_nop 3\nv_readlane_b32 s98, v{VIDX}, m0\ns_nop 3\ns_and_b32 s100, s98, 0x7ff\ns_sub_u32 s100, 0x7ff, s100")
    a(f"v_mul_u32_u24 v2, 13, v{L}\nv_lshrrev_b32 v2, 8, v2\nv_mul_u32_u24 v3, 20, v2\nv_sub_u32 v8, v{L}, v3")
    a(f"s_mov_b32 s6, {18*20480}\nv_mul_lo_u32 v2, v2, s6\nv_lshl_add_u32 v2, v8, 4, v2")
    a(f"v_cmp_lt_u32 vcc, 59, v{L}\nv_mov_b32 v3, {hex(WS_SIZE)}\ns_nop 0\nv_cndmask_b32 v2, v2, v3, vcc")
    a(f"s_mul_i32 s6, s96, 2560\ns_mul_i32 s7, s97, 320\ns_add_u32 s6, s6, s7\ns_add_u32 s6, s6, {WS_YP}")
    for e in range(18):
        a(f"buffer_load_dwordx4 {v(YS[e],4)}, v2, {WS}, s6 offen sc1\ns_add_u32 s6, s6, 20480")
    a(f"s_lshr_b32 s6, s100, 4\ns_mul_i32 s6, s6, 20480\ns_and_b32 s7, s100, 15\ns_lshl_b32 s7, s7, 4\ns_add_u32 s6, s6, s7\ns_mul_i32 s7, s97, 2560\ns_add_u32 s6, s6, s7")
    a(f"v_lshrrev_b32 v9, 1, v8\nv_lshlrev_b32 v9, 8, v9\nv_and_b32 v10, 1, v8\nv_lshl_add_u32 v9, v10, 3, v9\nbuffer_load_dwordx2 {v(XR,2)}, v9, {WS}, s6 offen sc1")
    a("s_mov_b32 s101, 1\ns_setpc_b64 s[80:81]")

def moe_finish(a):
    Y, XR = YS[0], 54
    y_is(a, "L_yd")
    a("s_cmp_lg_u32 s101, 0\ns_cbranch_scc1 L_yf")
    y_faddr(a)
    poll(a, Y_LD, Y_CMP, sleep=16)
    a("s_call_b64 s[80:81], L_yld")
    a.label("L_yf")
    a("s_bfe_u32 s6, s98, 0x10000b\ns_xor_b32 s7, s6, 0xffff\ns_bitcmp1_b32 s6, 15\ns_bitset0_b32 s6, 15\ns_cselect_b32 s6, s6, s7\ns_lshl_b32 s6, s6, 16\nv_mov_b32 v9, s6")
    a("v_mul_f32 v9, 0xbfb8aa3b, v9\nv_exp_f32 v9, v9\ns_nop 0\nv_add_f32 v9, 1.0, v9\nv_rcp_f32 v9, v9\ns_nop 0")
    bf16_round(a, 9)
    a(f"v_lshlrev_b32 v10, 2, v{L}\nv_mov_b32 v3, {hex(WS_SIZE)}\ns_waitcnt vmcnt(0)")
    for e in range(1, 18):
        a(f"v_pk_add_f32 {v(Y,2)}, {v(Y,2)}, {v(YS[e],2)}\nv_pk_add_f32 {v(Y+2,2)}, {v(Y+2,2)}, {v(YS[e]+2,2)}")
    for k in range(2):
        for r in range(4): a(f"ds_bpermute_b32 v{Y+4+4*k+r}, v10, v{Y+r} offset:{80*(k+1)}")
    a("s_waitcnt lgkmcnt(0)")
    for r in range(4):
        y = Y + r
        a(f"v_add_f32 v{y}, v{y}, v{y+4}\nv_add_f32 v{y}, v{y}, v{y+8}")
        bf16_round(a, y)
        a(f"v_mul_f32 v{y}, v{y}, v9")
        bf16_round(a, y)
        xn = XR + (r >> 1)
        a(f"v_and_b32 v8, 0xffff0000, v{xn}" if r & 1 else f"v_lshlrev_b32 v8, 16, v{xn}")
        a(f"v_add_f32 v{y}, v{y}, v8")
    a(f"v_cvt_pk_bf16_f32 v{Y+4}, v{Y}, v{Y+1}\nv_cvt_pk_bf16_f32 v{Y+5}, v{Y+2}, v{Y+3}")
    a(f"v_lshlrev_b32 v2, 3, v{L}\nv_cmp_lt_u32 vcc, 19, v{L}\ns_mul_i32 s6, s96, 1280\ns_mul_i32 s7, s97, 160\nv_cndmask_b32 v2, v2, v3, vcc\ns_add_u32 s6, s6, s7\ns_add_u32 s6, s6, {WS_BSEL}")
    a(f"buffer_store_dwordx2 {v(Y+4,2)}, v2, {WS}, s6 offen sc1")
    a.label("L_yd")

WR, OA, CR, RT = 96, 56, 16, 32
S_OW, S_OB, S_CX, S_OL = 69, 68, 66, 61
VWO4 = 52
LDS_P, LDS_F = 98304, 65536
def wo_base(a, d, nh):
    a(f"s_lshr_b32 s{d}, s{S_H}, 3\ns_lshl_b32 s{d}, s{d}, 2\ns_add_u32 s{d}, s{d}, s76\ns_mul_i32 s{d}, s{d}, {8*40960}\ns_and_b32 s7, s{S_H}, 3\ns_mul_i32 s7, s7, 10240\ns_add_u32 s{d}, s{d}, s7\ns_add_u32 s{d}, s{d}, {WS_WOF + nh*5120}")

XNA = 48
S_TOK, S_XI, S_XFI, VXF = 64, 62, 63, 11
XFG = int(os.environ.get("XFG", "12"))
VWM = 44
def wo_voffs(a, r0, r4=None):
    for m in range(4): a(f"s_add_u32 s6, s76, {m}\ns_and_b32 s6, s6, 3\ns_lshl_b32 s6, s6, 10\nv_add_u32 v{r0+m}, s6, v{VL16}")
    a(f"v_add_u32 v{r0+4 if r4 is None else r4}, 4096, v{VL16}")
def wm(m): return VWM + m if m < 4 else VWO4
def wo_load(a, i):
    a(f"s_add_u32 s75, s{S_OW}, {i*40960}")
    for m in range(5): a(f"buffer_load_dwordx4 {v(WR+4*(5*i+m),4)}, v{wm(m)}, {WS}, s75 offen sc1")

def out_setup(a, nh):
    if nh == 0:
        idx_addr(a); a(f"buffer_load_dword v{VIDX}, v3, {WS}, s72 offen sc1")
    wo_voffs(a, VWM, VWO4)
    wo_base(a, S_OW, nh)
    a(f"s_and_b32 s6, s{S_H}, 4\ns_lshr_b32 s7, s{S_H}, 3\ns_add_u32 s6, s6, s7\ns_lshl_b32 s7, s{S_P}, 3\ns_add_u32 s{S_OB}, s6, s7\ns_sub_u32 s7, 120, s7\ns_add_u32 s{S_OL}, s6, s7")

VCA, VT, VPR = 4, 5, 6
S_RED = 71
S_PB, S_XS = 67, 96
def out_cx(a):
    a(f"s_lshr_b32 s6, s{S_H}, 3\ns_lshl_b32 s6, s6, 15\ns_lshl_b32 s99, s{S_W}, 12\ns_add_u32 s{S_CX}, s6, s99\ns_add_u32 s{S_CX}, s{S_CX}, {WS_CTX}")
    a(f"s_lshl_b32 s6, s76, 13\nv_add_u32 v{VCA}, s6, v{VL16}\nv_add_u32 v7, 65536, v{VCA}")
def out_consts(a):
    a(f"s_lshr_b32 s6, s{S_W}, 2\ns_mul_i32 s{S_PB}, s6, 15360\ns_add_u32 s{S_PB}, s{S_PB}, {LDS_P}\nv_add_u32 v{VPR}, s{S_PB}, v{VWM}")
    a(f"s_mul_i32 s73, s6, 5120\ns_add_u32 s73, s73, {WS_XP}\ns_lshl_b32 s6, s6, 1\ns_sub_u32 s{S_RED}, s76, s6\ns_and_b32 s{S_RED}, s{S_RED}, 3")
    a(f"v_mov_b32 v{VXF}, {hex(WS_SIZE)}\ns_lshl_b32 s74, s{S_W}, 2\ns_add_u32 s74, s74, {WS_XF}")
    tile_id(a, 72)
    a(f"s_mul_i32 s72, s72, 12\ns_lshr_b32 s75, s{S_H}, 3\ns_mul_i32 s7, s75, 3\ns_add_u32 s7, s7, s72\ns_mul_i32 s{S_XI}, s7, 20480\ns_add_u32 s{S_XI}, s{S_XI}, {WS_XP}\ns_lshl_b32 s7, s7, 7\ns_add_u32 s{S_XFI}, s7, {WS_XF}")
    for k in range(3):
        a(f"s_add_u32 s6, s75, {1+k}\ns_and_b32 s6, s6, 3\ns_mul_i32 s6, s6, 3\ns_add_u32 s6, s6, s72\ns_add_u32 s6, s6, {k}\ns_mul_i32 s7, s6, 20480\ns_add_u32 s{S_XS+k}, s7, s73")
        a(f"s_lshl_b32 s6, s6, 7\ns_add_u32 s6, s6, s74\nv_writelane_b32 v{VXF}, s6, {k}")

def ctx_dma(r, extra=0):
    own, d = (S_OL if r in (3, 4, 5, 7) else S_OB), (1 + r % 3 if r < 6 else 0)
    o = [f"s_add_u32 s65, s{own}, {d}\ns_and_b32 s65, s65, 3\ns_andn2_b32 s7, s{own}, 3\ns_add_u32 s65, s65, s7\ns_lshl_b32 s65, s65, 17\ns_add_u32 s65, s65, s{S_CX}\ns_add_u32 m0, s99, {(r%3)*32768+extra}\ns_add_u32 s65, s65, {extra}"]
    return o + [f"buffer_load_dwordx4 v{VL16}, {WS}, s65 offen offset:{i*1024} sc1 lds" for i in range(4)]

def phase_out(a):
    def rdc(r, i):
        reg, off = (VCA, (r%3)*32768) if r % 3 < 2 else (7, 0)
        return (("C", i & 3), f"ds_read_b128 {v(CR+4*(i&3),4)}, v{reg} offset:{off+i*1024}")
    def xlook_addr():
        a(f"v_bfe_u32 v2, v{L}, 3, 2\nv_min_u32 v2, 2, v2\nv_and_b32 v3, 7, v{L}\nv_lshlrev_b32 v3, 2, v3\nv_lshl_add_u32 v3, v2, 7, v3")
    IT = [(WR, WR+4), (WR+8, WR+12)]
    XI, LP, OUTR = WR+16, WR+64, WR+128
    def emit(x):
        if "o_now" in ABL and isinstance(x, tuple) and x[0] == "W": return
        if "o_noadd" in ABL and isinstance(x, str) and x.startswith("v_add_f32"): return
        if "o_nodma" in ABL and isinstance(x, str) and x.endswith("lds"): return
        if "o_nost" in ABL and isinstance(x, str) and "buffer_store_dwordx4" in x: return
        if "o_nop" in ABL and isinstance(x, tuple) and isinstance(x[0], tuple) and x[0][0] == "P": return
        if callable(x): x()
        elif isinstance(x, str): a(x)
        elif x[0] == "wait": a.wait_lg(x[1])
        else:
            a(x[1]); a.lg.issue(x[0])
    def xin_load(slots):
        sk = a.newlabel("xi")
        for n in range(2):
            if n == 1: a(f"s_cmp_ge_u32 s{S_W}, 2\ns_cbranch_scc1 {sk}")
            for s_ in slots:
                a(f"s_add_u32 s6, s{S_XI}, {s_*20480}")
                for hf in range(2): a(f"buffer_load_dwordx4 {v(XI+24*n+8*s_+4*hf,4)}, v{8+n}, {WS}, s6 offen offset:{hf*256} sc1")
        a.label(sk)
    a.lg.drain()
    for i in range(4): emit(rdc(0, i))
    a.wait_lg(("C", 0))
    BG = 24
    for r in range(8):
        if "stampout" in ABL: a.stamp(44 + r)
        A = OA + 20*(r & 1); Ap = OA + 20*((r-1) & 1)
        po = ((r-1) & 1)*30720
        red = 1 <= r <= 6
        G = [[] for _ in range(40)]
        def dma_at(rr, g0, gs):
            d = ctx_dma(rr); sal = d[0].split("\n")
            G[g0] += sal[:3]; G[g0+1] += sal[3:6]; G[g0+2] += sal[6:7]
            for g, x in zip(gs, d[1:]): G[g].insert(0, x)
        def barrier():
            if r == 0:
                a(f"s_cmp_ge_u32 s{S_W}, 4\ns_cbranch_scc1 L_o0\ns_waitcnt vmcnt(0)\ns_barrier")
                a.label("L_o0")
                return
            elif "o_novm" not in ABL: a(f"s_waitcnt vmcnt({(0, 0, 4, 5, 5, 5, 1)[r]})")
            if r == 6: a(f"buffer_store_dword v2, v{VXF}, {WS}, 0 offen sc1")
            a("s_waitcnt lgkmcnt(0)\ns_barrier"); a.lg.drain()
        for i in range(8):
            if i < 4: G[5*i+4].append(rdc(r, i+4))
            elif r < 7 and i > 4: G[5*i+4].append(rdc(r+1, i-4))
            if i < 7 or r < 7: G[5*i+3].append(("wait", ("C", (i+1) & 3)))
        if r < 7: G[3 if (r == 0 and "w0in" in ABL) else BG].append(barrier)
        if red:
            G[0].append(f"s_sub_u32 s6, s{S_RED}, {r}\ns_and_b32 s6, s6, 3\ns_mul_i32 s7, s6, 5120")
            G[1].append(f"s_add_u32 s7, s7, s{S_PB}\ns_cmp_eq_u32 s6, 3\ns_cselect_b32 s7, {159744-4096-po}, s7")
            G[2].append(f"v_add_u32 v12, s7, v{VWO4}\nv_add_u32 v{VT}, s{S_PB}, v{wm(1)}")
            for m, g in zip(range(1, 4), (5, 10, 15)):
                G[g] += [("W", f"ds_write_b128 v{VT}, {v(Ap+4*m,4)} offset:{po+(m-1)*5120}"), f"v_add_u32 v{VT}, s{S_PB}, v{wm(m+1)}"]
            G[20].append(("W", f"ds_write_b128 v12, {v(Ap+16,4)} offset:{po}"))
            for k in range(3): G[BG].append((("P", k), f"ds_read_b128 {v(RT+4*k,4)}, v{VPR} offset:{po+k*5120}"))
            for k in range(3):
                G[27+2*k].insert(0, ("wait", ("P", k)))
                for q in range(4): G[27+2*k+q//2].append(f"v_add_f32 v{Ap+q}, v{Ap+q}, v{RT+4*k+q}")
                G[29+2*k].insert(0, (("P", k), f"ds_read_b128 {v(RT+4*k,4)}, v{VT} offset:{po+k*5120}"))
            for k in range(3):
                G[33+2*k].append(("wait", ("P", k)))
                for q in range(4): G[33+2*k+q//2].append(f"v_add_f32 v{Ap+16+q}, v{Ap+16+q}, v{RT+4*k+q}")
            G[33].append(f"s_add_u32 s6, s{S_XS+(r-1)%3}, {((r-1)//3)*10240}")
            G[35].insert(0, f"buffer_store_dwordx4 {v(Ap,4)}, v{VWM}, {WS}, s6 offen sc1")
            sk = a.newlabel("nost")
            G[38].append(f"s_cmp_lg_u32 s{S_RED}, {(r-1)&3}")
            G[39].insert(0, f"s_cbranch_scc1 {sk}\nbuffer_store_dwordx4 {v(Ap+16,4)}, v{VWO4}, {WS}, s6 offen sc1\n{sk}:")
        if r < 7: G[BG].append(rdc(r+1, 0))
        if 1 < r < 5: dma_at(r+3, 21, (25, 26, 28, 30))
        if r == 0:
            dma_at(2, 21, (25, 26, 28, 30))
            if "w0in" in ABL:
                for i in range(3):
                    def wl(i=i):
                        sk = a.newlabel("nowl")
                        a(f"s_cmp_lt_u32 s{S_W}, 4\ns_cbranch_scc1 {sk}")
                        if i == 0:
                            a("s_waitcnt vmcnt(5)")
                            set_flag(a, "ctx")
                        wo_load(a, 5+i)
                        a.label(sk)
                    G[(0, 1, 2)[i]].append(wl)
                for i in range(4): G[19+5*i].append(f"s_waitcnt vmcnt({(16, 10, 8, 4)[i]})")
            else: G[19].append("s_waitcnt vmcnt(0)")
        lookl = f"buffer_load_dword v50, v3, {WS}, s72 offen sc1"
        if r == 1:
            G[6].append(lambda: ctxf_addr(a, S_OL, False))
            G[LOOKG].insert(0, lookl)
            def try3():
                a("v_cmp_ne_u32 vcc, 1, v50\ns_mov_b32 s91, 0\ns_cbranch_vccnz L_t3n")
                for x in ctx_dma(3): a(x)
                a("s_mov_b32 s91, 1\ns_branch L_t3j")
                a.label("L_t3n")
                a(lookl)
                a.label("L_t3j")
            G[25].append(try3)
        if r == 2:
            def chk():
                a(f"s_cmp_lg_u32 s91, 0\ns_cbranch_scc1 L_o2\ns_waitcnt vmcnt(1)\nv_cmp_ne_u32 vcc, 1, v50\ns_cbranch_vccz L_o1")
                poll(a, f"buffer_load_dword v2, v3, {WS}, s72 offen sc1", "v_cmp_ne_u32 vcc, 1, v2", sleep=1)
                a.label("L_o1")
                for x in ctx_dma(3): a(x)
                a.label("L_o2")
            G[2].append(chk)
            dma_at(4, 6, (9, 11, 12, 13))
        def spread(fn, gaps):
            b = Asm(); b.uid = a.uid + 1000; fn(b)
            ls = [x.strip() for x in b.o]; n = -(-len(ls) // len(gaps))
            for k, g in enumerate(gaps): G[g] += ls[k*n:(k+1)*n]
        if r == 0: spread(out_consts, range(4 if "w0in" in ABL else 0, 19))
        if r == 3: spread(out_items, [3, 4, 6, 7, 8, 9, 11, 12, 13, 14, 16, 17, 18, 19])
        if r == 4: G[7].append(lambda: out_tokens(a))
        if r == 6: G[22].append(f"v_mov_b32 v2, 1\nv_writelane_b32 v2, 2, 0")
        if r == 7:
            G[2].append(f"s_mul_i32 s73, s{S_W}, 5120\ns_add_u32 s6, s73, {LDS_F}")
            G[3].append(f"v_add_u32 v{VT}, s6, v{wm(0)}")
            for m in range(5):
                G[5+5*m].append(("W", f"ds_write_b128 v{VT}, {v(Ap+4*m,4)}"))
                if m < 4: G[5+5*m].append(f"s_add_u32 s6, s73, {LDS_F}\nv_add_u32 v{VT}, s6, v{wm(m+1)}")
            G[XFG].append(f"v_mov_b32 v2, 2\ns_waitcnt vmcnt(0)\nbuffer_store_dword v2, v{VXF}, {WS}, 0 offen sc1")
            def items():
                a(f"s_cmp_eq_u32 s{S_TOK}, 0\ns_cbranch_scc1 L_nb")
                a(f"v_bfe_u32 v2, v{L}, 1, 3\nv_and_b32 v3, 1, v{L}\nv_lshl_add_u32 v3, v2, 7, v3\nv_lshlrev_b32 v3, 2, v3\ns_and_b32 s6, s{S_H}, 3\ns_lshl_b32 s6, s6, 7\ns_add_u32 s6, s6, {WS_BF+YP*32*128}")
                poll(a, f"buffer_load_dword v2, v3, {WS}, s6 offen sc1", "v_cmp_ne_u32 vcc, 1, v2")
                a.label("L_nb")
                sk = a.newlabel("itskip")
                for n in range(2):
                    if n == 1: a(f"s_cmp_ge_u32 s{S_W}, 2\ns_cbranch_scc1 {sk}")
                    a(f"buffer_load_dwordx4 {v(IT[n][0],4)}, v{53+n}, {R(SRD_A)}, s70 offen\nbuffer_load_dwordx4 {v(IT[n][1],4)}, v{XNA+n}, {WS}, 0 offen sc1")
                a.label(sk)
            G[XFG+2].append(items)
            G[LK1-1].append(xlook_addr)
            G[LK1].append(f"s_bitcmp1_b32 13, s{S_W}\ns_cselect_b32 s77, 1, 2\nbuffer_load_dword v50, v3, {WS}, s{S_XFI} offen sc1")
            def try1():
                a("s_waitcnt vmcnt(0)\nv_cmp_gt_u32 vcc, s77, v50\ns_mov_b32 s91, 0\ns_cbranch_vccnz L_x1n")
                xin_load((0, 1, 2))
                a("s_mov_b32 s91, 1\ns_branch L_x1j")
                a.label("L_x1n")
                a(f"buffer_load_dword v50, v3, {WS}, s{S_XFI} offen sc1")
                a.label("L_x1j")
            G[LK2].append(try1)
            G[33].append(f"s_add_u32 s6, s73, {106496-20480}\ns_cmp_lt_u32 s{S_W}, 4\ns_cselect_b32 s73, s73, s6")
        for g in range(40):
            i, m = divmod(g, 5)
            if "o" in SNAKE and i & 1 == 0 and i: m = 4 - m
            a.mfma(A+4*m, WR+4*(5*i+m), CR+4*(i&3), "0" if i == 0 else None)
            for x in G[g]: emit(x)
    a.stamp(16)
    a("s_nop 4")
    for m in range(5): a(f"v_add_u32 v{VT}, s73, v{wm(m)}\nds_write_b128 v{VT}, {v(OA+20+4*m,4)}")
    a("s_mov_b64 s[78:79], 0\ns_cmp_lg_u32 s91, 0\ns_cbranch_scc1 L_x2a")
    a("s_waitcnt vmcnt(0)\nv_cmp_gt_u32 s[78:79], s77, v50\ns_nop 3\ns_cmp_lg_u64 s[78:79], 0\ns_cbranch_scc1 L_x2a")
    xin_load((0, 1, 2))
    a.label("L_x2a")
    a("s_waitcnt lgkmcnt(0)\ns_barrier")
    for n in range(2):
        for k in range(4):
            for hf in range(2): a(f"ds_read_b128 {v(LP+32*n+8*k+4*hf,4)}, v{(10,55)[n]} offset:{k*5120+hf*256}")
    a("s_cmp_eq_u64 s[78:79], 0\ns_cbranch_scc1 L_x2b")
    poll(a, f"buffer_load_dword v2, v3, {WS}, s{S_XFI} offen sc1", "v_cmp_gt_u32 vcc, s77, v2", sleep=1)
    xin_load((0, 1, 2))
    a.label("L_x2b")
    a.srd(SRD_B, P_OUT, 2048*640*2)
    a.stamp(17)
    for n in range(2):
        if n == 1: a(f"s_cmp_ge_u32 s{S_W}, 2\ns_cbranch_scc1 L_end")
        S = LP + 32*n
        a(f"s_waitcnt lgkmcnt({8 if n == 0 else 0})")
        for k in range(1, 4):
            for q in range(0, 8, 2): a(f"v_pk_add_f32 {v(S+q,2)}, {v(S+q,2)}, {v(S+8*k+q,2)}")
        a("s_waitcnt vmcnt(0)" if n == 0 else "s_nop 0")
        for k in range(3):
            for q in range(0, 8, 2): a(f"v_pk_add_f32 {v(S+q,2)}, {v(S+q,2)}, {v(XI+24*n+8*k+q,2)}")
        for q in range(4):
            x0, x1 = S+2*q, S+2*q+1
            a(f"v_cvt_pk_bf16_f32 v2, v{x0}, v{x1}\nv_lshlrev_b32 v{x0}, 16, v2\nv_and_b32 v{x1}, 0xffff0000, v2")
            a(f"v_lshlrev_b32 v2, 16, v{IT[n][0]+q}\nv_and_b32 v3, 0xffff0000, v{IT[n][0]+q}\nv_pk_add_f32 {v(x0,2)}, {v(x0,2)}, v[2:3]")
            a(f"v_cvt_pk_bf16_f32 v2, v{x0}, v{x1}\nv_lshlrev_b32 v{x0}, 16, v2\nv_and_b32 v{x1}, 0xffff0000, v2")
            a(f"v_lshlrev_b32 v2, 16, v{IT[n][1]+q}\nv_and_b32 v3, 0xffff0000, v{IT[n][1]+q}\nv_pk_add_f32 {v(x0,2)}, {v(x0,2)}, v[2:3]")
            a(f"v_cvt_pk_bf16_f32 v{OUTR+4*n+q}, v{x0}, v{x1}")
        a(f"buffer_store_dwordx4 {v(OUTR+4*n,4)}, v{53+n}, {R(SRD_B)}, s70 offen")

def out_items(a):
    a.srd(SRD_A, P_X, 2048*640*2)
    a(f"s_and_b32 s75, s{S_H}, 3\ns_mul_i32 s70, s75, 320\ns_add_u32 s73, s70, {WS_BSEL}")
    a(f"s_mul_i32 s72, s75, 5120")
    a(f"v_lshrrev_b32 v2, 4, v{L}\nv_and_b32 v3, 15, v{L}\nv_mul_u32_u24 v54, 1280, v3\nv_lshl_add_u32 v54, v2, 4, v54\nv_lshlrev_b32 v3, 4, v3\nv_lshl_add_u32 v9, v2, 9, v3")
    a(f"s_lshr_b32 s100, s{S_W}, 2\ns_cselect_b32 s6, s{S_OL}, s{S_OB}\ns_mul_i32 s6, s6, 20480\ns_lshl_b32 s7, s76, 6\ns_add_u32 s7, s7, s6\nv_add_u32 v53, s7, v54")
    a(f"s_lshl_b32 s7, s76, 10\ns_add_u32 s7, s7, s6\ns_add_u32 s7, s7, s72\nv_add_u32 v{XNA}, s7, v{VL16}")
    a(f"s_mul_i32 s6, s100, 10240\ns_lshl_b32 s7, s76, 11\ns_add_u32 s6, s6, s7\nv_add_u32 v8, s6, v9")
    a(f"s_mul_i32 s6, s100, {LDS_F+10240}\ns_sub_u32 s6, {LDS_F}, s6\nv_add_u32 v10, s6, v8\ns_lshl_b32 s7, s76, 2\nv_add_u32 v2, s7, v2\nv_cmp_lt_u32 vcc, 9, v2\ns_mul_i32 s6, s100, {101376-15360}\ns_add_u32 s6, s6, 15360\nv_add_u32 v3, s6, v10\nv_cndmask_b32 v10, v10, v3, vcc")
    a(f"s_and_b32 s100, s{S_W}, 1\ns_cselect_b32 s6, s{S_OL}, s{S_OB}\ns_mul_i32 s6, s6, 20480\ns_add_u32 s7, s6, 256\nv_add_u32 v54, s7, v54\ns_add_u32 s7, s6, s72\ns_add_u32 s7, s7, 4096\nv_add_u32 v{XNA+1}, s7, v{VL16}")
    a(f"s_mul_i32 s6, s100, 10240\ns_add_u32 s6, s6, 8192\nv_add_u32 v9, s6, v9\ns_mul_i32 s6, s100, {101376-10240-LDS_F-15360}\ns_add_u32 s6, s6, {LDS_F+15360}\nv_add_u32 v55, s6, v9")

def out_tokens(a):
    idx_poll(a, "b", "")
    sk = a.newlabel("notok")
    a(f"s_mov_b32 s{S_TOK}, 0")
    a(f"v_and_b32 v2, 0x7ff, v{VIDX}\nv_sub_u32 v2, 0x7ff, v2\nv_lshrrev_b32 v3, 4, v2\nv_cmp_eq_u32 vcc, s{S_OB}, v3\nv_cmp_eq_u32 s[74:75], s{S_OL}, v3\ns_nop 3\ns_or_b64 vcc, vcc, s[74:75]\ns_cbranch_scc0 {sk}")
    for tk in range(8): a(f"v_readlane_b32 s{(84,85,86,87,88,65,91,101)[tk]}, v2, {tk}")
    for n in range(2):
        a(f"s_lshl_b32 s7, s76, 6\ns_lshr_b32 s100, s{S_W}, 2" if n == 0 else f"s_movk_i32 s7, 256\ns_and_b32 s100, s{S_W}, 1")
        a(f"s_cselect_b32 s6, s{S_OL}, s{S_OB}\ns_lshl_b32 s6, s6, 4\nv_and_b32 v2, 15, v{L}\nv_add_u32 v2, s6, v2")
        a(f"s_add_u32 s7, s7, s73\nv_and_b32 v3, 48, v{L}\nv_add_u32 v3, s7, v3")
        for tk in range(8):
            a(f"v_cmp_eq_u32 vcc, s{(84,85,86,87,88,65,91,101)[tk]}, v2\ns_nop 1\nv_cndmask_b32 v{XNA+n}, v{XNA+n}, v3, vcc")
            if tk < 7: a(f"v_add_u32 v3, 1280, v3")
    a(f"s_mov_b32 s{S_TOK}, 1")
    a.label(sk)

def gen(a):
    phase_start(a)
    phase_kv(a)
    phase_q(a)
    phase_attn(a)
    phase_out(a)
    a.label("L_end")
    a.stamp(18)
    if a.prof: a("s_waitcnt vmcnt(0)")
    if a.prof and os.environ.get("STRETCH"):
        s0, s1 = os.environ["STRETCH"].split(",")
        a(f"v_readlane_b32 s6, v15, {s0}\nv_readlane_b32 s7, v15, {s1}\nv_readlane_b32 s72, v15, 18\ns_nop 3\ns_sub_u32 s6, s7, s6\ns_min_u32 s6, s6, 20000")
        a.label("L_str")
        a("s_memrealtime s[94:95]\ns_waitcnt lgkmcnt(0)\ns_sub_u32 s7, s94, s72\ns_cmp_lt_u32 s7, s6\ns_cbranch_scc1 L_str")
    if a.prof and os.environ.get("DBGWG"):
        a(f"s_mov_b64 exec, -1\ns_cmp_lg_u32 s2, {os.environ['DBGWG']}\ns_cbranch_scc1 L_nodbg\ns_cmp_lg_u32 s{S_W}, 0\ns_cbranch_scc1 L_nodbg")
        a.srd(SRD_E, P_DBG, 64)
        a(f"v_readlane_b32 s6, v15, 0\ns_nop 3\nv_subrev_u32 v2, s6, v15\nv_subrev_u32 v3, 3, v{L}\nv_lshlrev_b32 v3, 2, v3\nv_cmp_gt_u32 vcc, 4, v{L}\nv_mov_b32 v4, 0x1000\ns_nop 0\nv_cndmask_b32 v3, v3, v4, vcc")
        a(f"buffer_store_dword v2, v3, {R(SRD_E)}, 0 offen")
        a.label("L_nodbg")
    a.stamp_flush(SRD_WS, WS_PROF)
    a.label("L_exit")
    a("s_endpgm")

HEADER = open(os.path.join(os.path.dirname(os.path.abspath(__file__)), "..", NAME + ".s.ref")).read().split("; Override launch")[0]
if __name__ == "__main__":
    name = NAME + "_kernel"
    out = HEADER + "; @launch grid=(256,1,1) block=(512,1,1) lds=163840\n" + '.amdgcn_target "amdgcn-amd-amdhsa--gfx950"\n'
    a = Asm(); a.prof = bool(os.environ.get("PROF"))
    a.o.append(kernel_header(name).rstrip())
    gen(a)
    out += a.text() + '.section .rodata,"a"\n.p2align 6\n' + kernel_desc(name)
    open(sys.argv[1] if len(sys.argv) > 1 else "k.s", "w").write(out)
```

```python
import sys, os
from asmlib import *

NAME = "parallel_sum__compressed_kv_cla__moe_arch_mod__prompt"
ABL = set(os.environ.get("ABL", "").split(","))
if "nontw" not in ABL: ABL |= {"ntt", "ntd"}
if "now0in" not in ABL: ABL.add("w0in")
WS_XN = 0x0
WS_R = 0x280000
WS_YP = 0x290000
WS_IDX = 0x3A0000
WS_KVF = 0x3B0000
WS_CTXF = 0x3C0000
WS_MOEF = 0xF20000
WS_BSEL = 0x3A9000
WS_BF = 0x3B8000
WS_WOF = 0x400000
WS_XS = 0xC00000
WS_PROF = 0x900000
WS_KV = 0x1000000
WS_CTX = 0x3000000
WS_XF = 0xF00000
WS_XP = 0x4000000
WS_SIZE = 0x5000000
S_W, S_H, S_P = 3, 4, 5
SRD_WS, SRD_A, SRD_B, SRD_C, SRD_D, SRD_E = 8, 12, 16, 20, 24, 28
P_X, P_CKV, P_WQ, P_WUK, P_WUV, P_WO, P_BX, P_WR, P_WG, P_WU, P_WD, P_OUT, P_DBG, P_WS = range(32, 60, 2)
S_B, S_E = 60, 61
WS = f"s[{SRD_WS}:{SRD_WS+3}]"
def R(d): return f"s[{d}:{d+3}]"
L, VL16 = 1, 13
DESIG = 31
SPIN = 1 << 18
X3P = int(os.environ.get("X3P", "4"))
MOEP = int(os.environ.get("MOEP", "1"))
NTT = " nt" if "ntt" in ABL else ""
LK1, LK2 = [int(x) for x in os.environ.get("LK", "18,30").split(",")]
WOTM = int(os.environ.get("WOTM", "0x78"), 0)
SNAKE = os.environ.get("SNAKE", "akqo")
LOOKG = int(os.environ.get("LOOKG", "12"))
NPC = int(os.environ.get("NPC", "2"))
YP = int(os.environ.get("YP", "2"))
LPOS = int(os.environ.get("LPOS", "10"))
WOTN = int(os.environ.get("WOTN", "0"))
LNH = int(os.environ.get("LNH", "2"))
MOEJ = int(os.environ.get("MOEJ", "4"))
if "code2" not in ABL: ABL.add("nocode2")
if "newb7" not in ABL: ABL.add("oldb7")
NT = "" if "nont" in ABL else " nt"
ABL.add("latewait")
TSCHED = os.environ.get("TSCHED", ";2;4;6").split(";")
TK, TV0, TV1, TV2 = [[int(y) for y in x.split(",") if y] for x in TSCHED]
LDS_SP = 131072
LDS_LN = LDS_SP
LDS_WOT = LDS_SP + 10240
LDS_RK = LDS_SP + 30720

def bf16_round(a, r):
    a(f"v_cvt_pk_bf16_f32 v{r}, v{r}, v{r}\nv_lshlrev_b32 v{r}, 16, v{r}")

def poll(a, load, cmp_notready, sleep=2):
    lp = a.newlabel("poll"); dn = a.newlabel("polldone")
    a(f"s_mov_b32 s79, {SPIN}")
    a.label(lp)
    a(load); a("s_waitcnt vmcnt(0)"); a(cmp_notready)
    a(f"s_cbranch_vccz {dn}\ns_sleep {sleep}\ns_sub_u32 s79, s79, 1\ns_cmp_lg_u32 s79, 0\ns_cbranch_scc1 {lp}")
    a.label(dn)

VC, VW, RC, RW, QRW = 40, 44, 48, 50, 54
CF, WF, ACC = 64, 96, 128
S_CO, S_WO_, S_MC, S_ST, S_ROW, S_KVD, S_INCA, S_INCB, S_XO, S_QO = 62, 63, 64, 65, 66, 67, 68, 69, 70, 71
S_XB = 84
XEARLY = [16, 20, 24, 28, 32, 36]
VX1 = 12
LX, LW, LV = 16, 26, 64
VDUM = 11
ITR = ((8, 9), (10, 55))

def wdma(a, srd, soff):
    nt = " nt" if ("ntd" in ABL and srd != SRD_D) or ("ntq" in ABL and srd == SRD_D) else ""
    return [f"buffer_load_dwordx4 v{VW+i}, {R(srd)}, s{soff} offen offset:{i*1024}{nt} lds" for i in range(4)]

def kv_dma_ops():
    g = []
    g.append([f"s_mov_b32 m0, s{S_MC}", f"s_add_u32 s72, s{S_CO}, 524288"])
    for i in range(4): g.append([f"buffer_load_dwordx4 v{VC+i}, {R(SRD_A)}, s{S_CO} offen offset:{i*1024} lds"])
    g.append([f"s_add_u32 m0, s{S_MC}, 4096", f"s_add_u32 s{S_CO}, s{S_CO}, 128", f"s_bitset0_b32 s{S_CO}, 10"])
    for i in range(4): g.append([f"buffer_load_dwordx4 v{VC+i}, {R(SRD_A)}, s72 offen offset:{i*1024} lds"])
    g.append([f"s_mov_b32 m0, s73", f"s_xor_b32 s{S_MC}, s{S_MC}, 0x10000"])
    for x in wdma(None, SRD_B, S_WO_): g.append([x])
    g.append([f"s_add_u32 m0, s73, 16384", f"s_xor_b32 s73, s73, 0x10000"])
    for x in wdma(None, SRD_C, S_WO_): g.append([x])
    g.append([f"s_add_u32 s{S_WO_}, s{S_WO_}, {64*8192}", f"s_bitset0_b32 s{S_WO_}, 22"])
    return g

def wq_dma_ops(nblk):
    g = []
    for h in range(2*nblk):
        g.append([f"s_mov_b32 m0, s74", f"s_add_u32 s74, s74, 16384"] + (["s_bitset0_b32 s74, 17"] if nblk == 2 else []))
        for x in wdma(None, SRD_D, S_QO): g.append([x])
        g.append([f"s_add_u32 s{S_QO}, s{S_QO}, {64*8192}", f"s_sub_u32 s75, s{S_QO}, {640*8192}", f"s_cselect_b32 s{S_QO}, s{S_QO}, s75"])
    return g

def emit_groups(a, g):
    for x in g:
        for y in x: a(y)

def x_load(a, ks, regs):
    for qt in range(2):
        a(f"buffer_load_dwordx4 {v(regs[qt],4)}, v{VL16 if qt==0 else VX1}, {WS}, s{S_XB+(ks>>2)} offen offset:{(ks&3)*1024} sc1")
        a.vm.issue(("X", ks))

def cnt_load(a, r, which):
    return f"buffer_load_dword v{r}, v3, {R(SRD_E)}, 0 offen offset:{128*which} sc1"
def cnt_addr(a):
    a.srd(SRD_E, P_DBG, 256)
    a(f"v_and_b32 v3, 31, v{L}\nv_lshlrev_b32 v3, 2, v3")
def cnt_check(a, r, which):
    ok = a.newlabel("cntok")
    a(f"v_cmp_gt_u32 vcc, 8, v{r}\ns_cbranch_vccz {ok}")
    cnt_addr(a)
    poll(a, cnt_load(a, 2, which), "v_cmp_gt_u32 vcc, 8, v2", sleep=8)
    a.label(ok)

def kv_touch(a, st0):
    sk = a.newlabel("tch")
    a(f"s_cmp_ge_u32 s76, 2\ns_cbranch_scc1 {sk}a")
    a(f"s_and_b32 s6, s{S_H}, 3\ns_lshl_b32 s6, s6, 19\ns_lshl_b32 s7, s{S_P}, 15\ns_add_u32 s6, s6, s7\ns_lshl_b32 s7, s76, 7\ns_add_u32 s6, s6, s7\ns_add_u32 s6, s6, {st0*128}")
    a(f"v_lshrrev_b32 v6, 1, v{L}\nv_lshlrev_b32 v6, 10, v6\nv_and_b32 v7, 1, v{L}\nv_lshl_add_u32 v6, v7, 6, v6")
    a(f"buffer_load_dword v{VDUM}, v6, {R(SRD_A)}, s6 offen\ns_add_u32 s6, s6, 262144\nbuffer_load_dword v{VDUM}, v6, {R(SRD_A)}, s6 offen\ns_branch {sk}c")
    a.label(sk + "a")
    a(f"v_lshrrev_b32 v6, 5, v{L}\nv_lshlrev_b32 v6, 6, v6\nv_bfe_u32 v7, v{L}, 2, 3\nv_add_u32 v6, v6, v7\nv_lshlrev_b32 v6, 13, v6\nv_and_b32 v7, 3, v{L}\nv_lshl_add_u32 v6, v7, 6, v6")
    a(f"s_lshl_b32 s6, s{S_H}, 8\ns_lshl_b32 s7, s{S_P}, 16\ns_add_u32 s6, s6, s7\ns_add_u32 s6, s6, {st0*64*8192}")
    a(f"s_cmp_lg_u32 s76, 2\ns_cbranch_scc1 {sk}b\nbuffer_load_dword v{VDUM}, v6, {R(SRD_B)}, s6 offen{NTT}\ns_branch {sk}c")
    a.label(sk + "b")
    a(f"buffer_load_dword v{VDUM}, v6, {R(SRD_C)}, s6 offen{NTT}")
    a.label(sk + "c")

def consts(a):
    a(f"s_mov_b32 s{S_ST}, 0")
    a(f"s_lshl_b32 s6, s{S_H}, 20\ns_lshl_b32 s7, s{S_P}, 13\ns_add_u32 s6, s6, s7\ns_and_b32 s7, s{S_W}, 1\ns_lshl_b32 s7, s7, 16\ns_add_u32 s6, s6, s7\ns_add_u32 s{S_KVD}, s6, {WS_KV}")
    if "noqrot" in ABL: a("s_mov_b32 s6, 0")
    else:
        a(f"s_and_b32 s6, s{S_H}, {int(os.environ.get('QROTM', '3'))}\ns_add_u32 s6, s6, s{S_P}")
        for _ in range(2): a("s_sub_u32 s7, s6, 5\ns_cselect_b32 s6, s6, s7")
    a(f"s_lshl_b32 s{S_QO}, s6, 20\ns_lshl_b32 s7, s{S_H}, 8\ns_add_u32 s{S_QO}, s{S_QO}, s7")
    for i in range(5):
        a(f"s_lshl_b32 s7, s6, 12\ns_add_u32 s{S_XB+i}, s{S_XO}, s7")
        if i < 4: a("s_add_u32 s6, s6, 1\ns_cmp_eq_u32 s6, 5\ns_cselect_b32 s6, 0, s6")
    a(f"s_lshr_b32 s7, s{S_W}, 1\ns_and_b32 s7, s7, 1")
    a(f"s_cmp_ge_u32 s{S_W}, 4\ns_cbranch_scc1 L_c_v")
    a(f"s_lshl_b32 s7, s7, 11\ns_add_u32 s{S_KVD}, s{S_KVD}, s7\ns_movk_i32 s{S_INCA}, 3072\ns_mov_b32 s{S_INCB}, 125952")
    a(f"s_add_u32 s{S_QO}, s{S_QO}, {128*8192}\ns_sub_u32 s75, s{S_QO}, {640*8192}\ns_cselect_b32 s{S_QO}, s{S_QO}, s75\ns_lshl_b32 s74, s76, 12\ns_add_u32 s74, s74, s100\ns_branch L_c_j")
    a.label("L_c_v")
    a(f"s_lshl_b32 s7, s7, 12\ns_add_u32 s{S_KVD}, s{S_KVD}, s7\ns_add_u32 s{S_KVD}, s{S_KVD}, 0x80000\ns_movk_i32 s{S_INCA}, 1024\ns_mov_b32 s{S_INCB}, 128000")
    a.label("L_c_j")

def zero_regs(a, r0, n):
    for i in range(0, n, 2): a(f"v_mov_b64 {v(r0+i,2)}, 0")

def phase_start(a):
    a(f"s_cmp_ge_u32 s2, 256\ns_cbranch_scc1 L_exit")
    a("s_load_dwordx16 s[32:47], s[0:1], 0\ns_load_dwordx8 s[48:55], s[0:1], 64\ns_load_dwordx4 s[56:59], s[0:1], 96")
    a(f"v_lshrrev_b32 v2, 6, v0\nv_and_b32 v{L}, 63, v0\nv_readfirstlane_b32 s{S_W}, v2")
    if "nocode" not in ABL:
        a("s_getpc_b64 s[80:81]")
        a.label("L_pc")
        a(f"s_lshr_b32 s6, s2, 3\ns_and_b32 s6, s6, 15\ns_lshl_b32 s6, s6, 12\ns_cmp_lt_u32 s{S_W}, 2\ns_cselect_b32 s6, 0, s6\nv_lshl_add_u32 v3, v0, 6, s6")
        a(f"v_min_u32 v3, L_exit-L_pc, v3\ns_cmp_ge_u32 s{S_W}, 3\ns_cbranch_scc1 L_noct\nglobal_load_dword v{VDUM}, v3, s[80:81]")
        a.label("L_noct")
    a(f"v_lshrrev_b32 v62, 5, v0\nv_and_b32 v62, 7, v62\nv_and_b32 v2, 31, v0\nv_lshlrev_b32 v2, 3, v2\nv_mul_u32_u24 v63, 1280, v62\nv_add_u32 v63, v63, v2\ns_mul_i32 s6, s2, 10240\nv_add_u32 v10, s6, v63")
    a(f"s_cmp_lt_u32 s{S_W}, 4\ns_cbranch_scc1 L_st_k0")
    a("s_waitcnt lgkmcnt(0)")
    for j in range(5): a(f"global_load_dwordx2 {v(LX+2*j,2)}, v10, s[{P_X}:{P_X+1}] offset:{j*256}{NT if 'xnt' in ABL else ''}")
    for j in range(5): a(f"global_load_dwordx2 {v(LW+2*j,2)}, v2, s[{P_WR}:{P_WR+1}] offset:{j*256}")
    NPF = int(os.environ.get("NPF", "2"))
    if NPF:
        a(f"s_bfe_u32 s6, s2, 0x20003\ns_lshl_b32 s6, s6, 9\ns_bfe_u32 s7, s{S_W}, 0x10001\ns_lshl_b32 s7, s7, 8\ns_add_u32 s6, s6, s7\ns_andn2_b32 s7, s2, 31\ns_add_u32 s6, s6, s7\ns_and_b32 s72, s{S_W}, 1\ns_lshl_b32 s7, s72, 4\ns_add_u32 s6, s6, s7")
        a(f"v_lshrrev_b32 v4, 3, v{L}\nv_add_u32 v4, s6, v4\nv_and_b32 v5, 7, v{L}\nv_lshlrev_b32 v5, 4, v5\nv_lshl_add_u32 v4, v4, 10, v5\nv_add_u32 v5, 8192, v4")
        a(f"s_lshr_b32 s6, s2, 5\ns_lshl_b32 s6, s6, 1\ns_add_u32 s6, s6, s72\ns_lshl_b32 s6, s6, 15\ns_and_b32 s7, s2, 7\ns_lshl_b32 s7, s7, 10\ns_add_u32 s6, s6, s7\ns_bfe_u32 s7, s2, 0x20003\ns_lshl_b32 s7, s7, 8\ns_add_u32 s6, s6, s7")
        a(f"v_lshrrev_b32 v6, 4, v{L}\nv_and_b32 v7, 15, v{L}\nv_lshlrev_b32 v7, 4, v7\nv_lshl_add_u32 v6, v6, 13, v7\nv_add_u32 v6, s6, v6")
        a(f"s_cmp_ge_u32 s{S_W}, 6\ns_cselect_b32 s74, s{P_WUV}, s{P_WUK}\ns_cselect_b32 s75, s{P_WUV+1}, s{P_WUK+1}")
        for st in range(NPF):
            a(f"global_load_dwordx4 v[36:39], v4, s[{P_CKV}:{P_CKV+1}] offset:{st*128}\nglobal_load_dwordx4 v[36:39], v5, s[{P_CKV}:{P_CKV+1}] offset:{st*128}")
            a(f"global_load_dwordx4 v[36:39], v6, s[74:75]{NTT}\nv_add_u32 v6, {64*8192}, v6")
    if "nob0" not in ABL: a("s_barrier")
    a.label("L_st_k0")
    a(f"s_and_b32 s6, s2, 7\ns_lshl_b32 s6, s6, 2\ns_lshr_b32 s7, s2, 3\ns_and_b32 s7, s7, 3\ns_add_u32 s{S_H}, s6, s7\ns_lshr_b32 s{S_P}, s2, 5\ns_and_b32 s76, s{S_W}, 3")
    a.stamp_init(14, 0); a.stamp(0)
    a(f"v_lshrrev_b32 v2, 3, v{L}\nv_and_b32 v3, 7, v{L}\nv_lshrrev_b32 v4, 4, v{L}\nv_xor_b32 v5, v3, v4\nv_lshlrev_b32 v5, 4, v5")
    a(f"v_lshl_add_u32 v{VC}, v2, 10, v5\nv_xor_b32 v5, 64, v{VC}\nv_add_u32 v{VC+1}, 7168, v5\nv_add_u32 v{VC+2}, 14336, v{VC}\nv_add_u32 v{VC+3}, 14336, v{VC+1}")
    a(f"v_and_b32 v6, 15, v{L}\ns_lshl_b32 s6, s76, 4\nv_add_u32 v7, s6, v4\nv_lshlrev_b32 v5, 1, v4\nv_xor_b32 v5, v6, v5\nv_lshlrev_b32 v5, 4, v5")
    a(f"v_lshl_add_u32 v{VW}, v7, 13, v5\nv_add_u32 v{VW+1}, 31744, v{VW}\nv_xor_b32 v5, 0x80, v{VW}\nv_add_u32 v{VW+2}, 63488, v5\nv_add_u32 v{VW+3}, 31744, v{VW+2}")
    a(f"s_and_b32 s6, s76, 1\ns_lshl_b32 s6, s6, 20\ns_lshr_b32 s7, s76, 1\ns_lshl_b32 s7, s7, 18\ns_add_u32 s6, s6, s7\ns_lshl_b32 s{S_CO}, s{S_P}, 15\ns_add_u32 s{S_CO}, s{S_CO}, s6\ns_lshl_b32 s{S_WO_}, s{S_H}, 8\ns_lshl_b32 s{S_MC}, s76, 13\ns_lshl_b32 s73, s76, 12\ns_add_u32 s73, s73, 32768")
    a(f"s_andn2_b32 s100, 1, s{S_P}\ns_lshl_b32 s100, s100, 16\ns_add_u32 s{S_MC}, s{S_MC}, s100\ns_add_u32 s73, s73, s100")
    a("s_waitcnt lgkmcnt(0)")
    a.srd(SRD_A, P_CKV, 2048*512*2)
    a.srd(SRD_B, P_WUK, 512*4096*2)
    a.srd(SRD_C, P_WUV, 512*4096*2)
    a(f"s_cmp_ge_u32 s{S_W}, 4\ns_cbranch_scc1 L_st_v0")
    if "nob0" not in ABL: a("s_barrier")
    for st in TK: kv_touch(a, st)
    emit_groups(a, kv_dma_ops())
    if "noprio" not in ABL: a("s_setprio 1")
    a.label("L_st_v0")
    a.srd(SRD_WS, P_WS, WS_SIZE)
    a.srd(SRD_D, P_WQ, 640*4096*2)
    a(f"v_lshlrev_b32 v{VL16}, 4, v{L}")
    a(f"s_lshl_b32 s6, s{S_P}, 2\ns_add_u32 s7, s6, s{S_W}\ns_sub_u32 s6, 56, s6\ns_add_u32 s6, s6, s{S_W}")
    a(f"s_cmp_lt_u32 s{S_W}, 4\ns_cselect_b32 s{S_B}, s7, s6")
    a(f"s_sub_u32 s6, {MOEP}, s{S_P}\ns_and_b32 s6, s6, 7\ns_lshl_b32 s6, s6, 5\ns_add_u32 s{S_E}, s6, s{S_H}")
    a(f"v_and_b32 v2, 15, v{L}\nv_lshrrev_b32 v3, 4, v{L}")
    a(f"s_and_b32 s6, s{S_W}, 1\ns_lshl_b32 s6, s6, 7\nv_add_u32 v4, s6, v2\nv_lshlrev_b32 v4, 7, v4\nv_add_u32 v4, s100, v4\nv_lshrrev_b32 v5, 1, v2")
    for sp in range(2):
        a(f"v_add_u32 v6, {4*sp}, v3\nv_xor_b32 v6, v6, v5\nv_lshl_add_u32 v{RC+sp}, v6, 4, v4")
    a(f"v_lshrrev_b32 v4, 2, v2\nv_lshl_add_u32 v5, v3, 3, v4\nv_lshlrev_b32 v5, 8, v5")
    a(f"v_and_b32 v6, 1, v2\nv_lshl_add_u32 v5, v6, 3, v5")
    a(f"v_and_b32 v6, 1, v3\nv_lshl_or_b32 v4, v6, 2, v4\nv_lshlrev_b32 v4, 1, v4\nv_bfe_u32 v6, v2, 1, 1")
    a(f"v_add_u32 v8, {LDS_SP}, v5")
    for t in range(8):
        a(f"v_add_u32 v7, {2*t}, v6\nv_xor_b32 v7, v7, v4\nv_lshl_add_u32 v{QRW+t}, v7, 4, v8")
    a(f"s_lshr_b32 s6, s{S_W}, 2\ns_lshl_b32 s6, s6, 14\ns_add_u32 s6, s6, 32768\ns_add_u32 s6, s6, s100\nv_add_u32 v5, s6, v5")
    a(f"s_lshr_b32 s7, s{S_W}, 1\ns_and_b32 s7, s7, 1\ns_lshl_b32 s7, s7, 3")
    for j in range(4):
        a(f"s_add_u32 s6, s7, {2*j}\nv_add_u32 v7, s6, v6\nv_xor_b32 v7, v7, v4\nv_lshl_add_u32 v{RW+j}, v7, 4, v5")
    zero_regs(a, ACC, 128)
    a(f"v_add_u32 v{VX1}, 20480, v{VL16}\ns_mul_i32 s{S_XO}, s{S_B}, 40960")
    consts(a)
    a.stamp(1)
    a(f"s_cmp_ge_u32 s{S_W}, 4\ns_cbranch_scc1 L_st_v1")
    TM = [int(x) for x in os.environ.get("TM", "").split(",") if x]
    TM2 = [int(x) for x in os.environ.get("TM2", "").split(",") if x]
    for st in TM: kv_touch(a, st)
    emit_groups(a, kv_dma_ops()[:10])
    for st in TM2: kv_touch(a, st)
    a(f"s_waitcnt vmcnt({8+len(TM)+len(TM2)})\ns_branch L_st_j1")
    a.label("L_st_v1")
    a(f"s_waitcnt vmcnt({3*NPF})")
    a.stamp(2)
    ln_compute(a)
    ln_router(a)
    a.label("L_st_j1")
    a.stamp(3)
    a("s_barrier")
    a.stamp(4)

def zero_flags(a):
    a(f"s_cmp_lt_u32 s{S_W}, 6\ns_cbranch_scc1 L_zd\nv_mov_b64 v[36:37], 0\nv_mov_b64 v[38:39], 0\nv_lshrrev_b32 v2, 3, v{L}\ns_cmp_eq_u32 s{S_W}, 6\ns_cbranch_scc1 L_z6")
    a(f"s_lshl_b32 s6, s{S_P}, 2\ns_sub_u32 s7, 56, s6\nv_mov_b32 v3, s6\nv_mov_b32 v4, s7\nv_cmp_gt_u32 vcc, 4, v2\ns_lshl_b32 s6, s{S_H}, 7\ns_add_u32 s6, s6, {WS_CTXF}\nv_cndmask_b32 v3, v4, v3, vcc\nv_add_u32 v3, v3, v2\nv_lshl_add_u32 v3, v3, 12, s6\ns_branch L_z7")
    a.label("L_z6")
    a(f"v_mov_b32 v3, {hex(WS_SIZE)}")
    def put(j): a(f"s_andn2_b32 s6, s6, 127\nv_cmp_eq_u32 vcc, {j}, v2\nv_mov_b32 v4, s6\ns_nop 0\nv_cndmask_b32 v3, v3, v4, vcc")
    flag_addr(a, "kv", 6); put(0)
    flag_addr(a, "moe", 6); put(1)
    flag_addr(a, "b", 6); put(2)
    for k in range(3):
        xf_addr(a, k, 6); put(3+k)
    a(f"s_mov_b32 s6, {hex(WS_SIZE)}\ns_cmp_eq_u32 s2, {DESIG}\ns_cmov_b32 s6, {WS_IDX}"); put(6)
    a(f"s_lshl_b32 s6, s2, 7\ns_add_u32 s6, s6, {WS_R}"); put(7)
    a(f"v_add_u32 v4, {LDS_RK-56*16}, v{VL16}\ns_mov_b32 exec_lo, 0\ns_mov_b32 exec_hi, 0x03000000\nds_read_b128 v[36:39], v4\ns_mov_b64 exec, -1\ns_waitcnt lgkmcnt(0)")
    a.label("L_z7")
    a(f"v_and_b32 v2, 7, v{L}\nv_lshl_add_u32 v3, v2, 4, v3\nbuffer_store_dwordx4 v[36:39], v3, {WS}, 0 offen sc1")
    a.label("L_zd")

def half_reduce(a, r):
    for m in ("quad_perm:[1,0,3,2]", "quad_perm:[2,3,0,1]", "row_half_mirror", "row_mirror"):
        a(f"s_nop 1\nv_add_f32_dpp v{r}, v{r}, v{r} {m} row_mask:0xf bank_mask:0xf")
    a(f"v_mov_b32 v8, v{r}\ns_nop 1\nv_permlane16_swap_b32 v{r}, v8\ns_nop 1\nv_add_f32 v{r}, v{r}, v8")

def ln_compute(a):
    X = LV
    NEG = "op_sel_hi:[1,0] neg_lo:[0,1] neg_hi:[0,1]"
    for j in range(10):
        a(f"v_lshlrev_b32 v{X+2*j}, 16, v{LX+j}\nv_and_b32 v{X+2*j+1}, 0xffff0000, v{LX+j}")
    a(f"v_pk_add_f32 v[2:3], {v(X,2)}, {v(X+2,2)}")
    for j in range(2, 10): a(f"v_pk_add_f32 v[2:3], v[2:3], {v(X+2*j,2)}")
    a("v_add_f32 v2, v2, v3")
    half_reduce(a, 2)
    a("s_mov_b32 s7, 0x3acccccd\nv_mul_f32 v2, s7, v2\nv_mov_b64 v[4:5], 0")
    for j in range(10):
        a(f"v_pk_add_f32 v[6:7], {v(X+2*j,2)}, v[2:3] {NEG}\nv_pk_fma_f32 v[4:5], v[6:7], v[6:7], v[4:5]")
    a("v_add_f32 v4, v4, v5")
    half_reduce(a, 4)
    a("v_mul_f32 v4, s7, v4")
    bf16_round(a, 2); bf16_round(a, 4)
    a("v_add_f32 v4, 0x3727c5ac, v4")
    bf16_round(a, 4)
    a("v_sqrt_f32 v4, v4\ns_nop 0")
    bf16_round(a, 4)
    a("v_rcp_f32 v6, v4\ns_nop 0\nv_fma_f32 v5, -v4, v6, 1.0\nv_fmac_f32 v6, v5, v6\nv_mov_b32 v9, 0")
    for j in range(10):
        x = X + 2*j
        a(f"v_pk_add_f32 {v(x,2)}, {v(x,2)}, v[2:3] {NEG}\nv_cvt_pk_bf16_f32 v5, v{x}, v{x+1}")
        a(f"v_lshlrev_b32 v{x}, 16, v5\nv_and_b32 v{x+1}, 0xffff0000, v5")
        a(f"v_pk_mul_f32 {v(x,2)}, {v(x,2)}, v[6:7] op_sel_hi:[1,0]\nv_cvt_pk_bf16_f32 v{LX+j}, v{x}, v{x+1}")
    a(f"v_add_u32 v10, {LDS_LN}, v63")
    for j in range(5): a(f"ds_write_b64 v10, {v(LX+2*j,2)} offset:{j*256}")
    a("s_waitcnt lgkmcnt(0)")

def ln_router(a):
    a("v_mov_b32 v2, 0")
    for j in range(10):
        a(f"v_lshlrev_b32 v4, 16, v{LX+j}\nv_lshlrev_b32 v5, 16, v{LW+j}\nv_fmac_f32 v2, v4, v5")
        a(f"v_and_b32 v4, 0xffff0000, v{LX+j}\nv_and_b32 v5, 0xffff0000, v{LW+j}\nv_fmac_f32 v2, v4, v5")
    half_reduce(a, 2)
    a("v_cvt_pk_bf16_f32 v2, v2, v2\nv_and_b32 v2, 0xffff, v2")
    a("v_bfe_i32 v3, v2, 15, 1\nv_and_b32 v3, 0x7fff, v3\nv_or_b32 v3, 0x8000, v3\nv_xor_b32 v2, v2, v3")
    a(f"s_lshl_b32 s7, s2, 3\ns_sub_u32 s6, 2047, s7\nv_sub_u32 v3, s6, v62\nv_lshl_or_b32 v2, v2, 11, v3\nv_lshlrev_b32 v3, 2, v62\nv_add_u32 v3, {LDS_RK}, v3\nds_write_b32 v3, v2\ns_waitcnt lgkmcnt(0)")

def ln_store(a, back):
    LV = 16
    a(f"s_lshr_b32 s72, s2, 1\ns_mul_i32 s72, s72, 20480\ns_and_b32 s7, s2, 1\ns_lshl_b32 s7, s7, 7\ns_add_u32 s72, s72, s7")
    for n in range(3):
        a(f"v_add_u32 v2, {256*n-256}, v0\nv_lshrrev_b32 v3, 3, v2\nv_and_b32 v4, 7, v2")
        a(f"v_mul_u32_u24 v5, 1280, v4\nv_lshl_add_u32 v5, v3, 4, v5\nv_add_u32 v5, {LDS_LN}, v5")
        a(f"ds_read_b128 {v(LV+8*n,4)}, v5\nv_lshlrev_b32 v5, 8, v3\nv_lshl_add_u32 v{6+n}, v4, 4, v5")
    a("s_waitcnt lgkmcnt(0)")
    for n in range(3):
        if n == 2: a(f"s_cmp_ge_u32 s{S_W}, 6\ns_cbranch_scc1 {back}")
        SC = "" if "lnplain" in ABL else " sc1"
        if "nolnst" not in ABL: a(f"buffer_store_dwordx4 {v(LV+8*n,4)}, v{6+n}, {WS}, s72 offen{SC}")
    a.label(back)
    zero_flags(a)

def count_atomic(a, which):
    a.srd(SRD_E, P_DBG, 256)
    a(f"v_mov_b32 v2, 1\nv_lshlrev_b32 v3, 8, v{L}\ns_and_b32 s6, s2, 31\ns_lshl_b32 s6, s6, 2\nbuffer_atomic_add v2, v3, {R(SRD_E)}, s6 offen offset:{128*which} sc1")

def flag_addr(a, kind, d):
    if kind == "kv":
        a(f"s_lshl_b32 s{d}, s{S_H}, 3\ns_add_u32 s{d}, s{d}, s{S_P}\ns_lshl_b32 s{d}, s{d}, 5\ns_add_u32 s{d}, s{d}, s{S_W}\ns_lshl_b32 s{d}, s{d}, 2\ns_add_u32 s{d}, s{d}, {WS_KVF}")
    elif kind == "ctx":
        a(f"s_lshl_b32 s{d}, s{S_B}, 5\ns_add_u32 s{d}, s{d}, s{S_H}\ns_lshl_b32 s{d}, s{d}, 7\ns_add_u32 s{d}, s{d}, {WS_CTXF}")
    elif kind == "b":
        a(f"s_lshl_b32 s{d}, s{S_P}, 5\ns_add_u32 s{d}, s{d}, s{S_H}\ns_lshl_b32 s{d}, s{d}, 5\ns_add_u32 s{d}, s{d}, s{S_W}\ns_lshl_b32 s{d}, s{d}, 2\ns_add_u32 s{d}, s{d}, {WS_BF}")
    else:
        a(f"s_lshl_b32 s{d}, s{S_E}, 5\ns_add_u32 s{d}, s{d}, s{S_W}\ns_lshl_b32 s{d}, s{d}, 2\ns_add_u32 s{d}, s{d}, {WS_MOEF}")

def tile_id(a, d):
    a(f"s_and_b32 s{d}, s{S_H}, 7\ns_lshl_b32 s7, s{S_P}, 3\ns_add_u32 s{d}, s{d}, s7")
def xslot(a, slot, d):
    tile_id(a, d)
    a(f"s_lshr_b32 s7, s{S_H}, 3\ns_add_u32 s7, s7, {slot}\ns_add_u32 s7, s7, 1\ns_and_b32 s7, s7, 3\ns_lshl_b32 s{d}, s{d}, 2\ns_add_u32 s{d}, s{d}, s7\ns_mul_i32 s{d}, s{d}, 3\ns_add_u32 s{d}, s{d}, {slot}")
def xf_addr(a, slot, d):
    xslot(a, slot, d)
    a(f"s_lshl_b32 s{d}, s{d}, 5\ns_add_u32 s{d}, s{d}, s{S_W}\ns_lshl_b32 s{d}, s{d}, 2\ns_add_u32 s{d}, s{d}, {WS_XF}")

def set_flag(a, kind, val=1):
    flag_addr(a, kind, 6)
    a(f"v_mov_b32 v2, {val}\nv_mov_b32 v3, {hex(WS_SIZE)}\nv_writelane_b32 v3, s6, 0\nbuffer_store_dword v2, v3, {WS}, 0 offen sc1")
    a.vm.issue("flag")

def phase_kv(a):
    def rdC(i, sp):
        if "kv_noC" in ABL: return
        a(f"ds_read_b128 {v(CF+4*i,4)}, v{RC+sp} offset:{i*2048}"); a.lg.issue(("C", i))
    def rdW(par, j, half, sp):
        if "kv_noW" in ABL: return
        r = WF + 16*par + 4*j + 2*half
        a(f"ds_read_b64_tr_b16 {v(r,2)}, v{RW+j} offset:{sp*8192 + half*1024}"); a.lg.issue(("W", par, j, half))
    wq = [(j, hf) for j in range(4) for hf in range(2)]
    def body(isK, lab, dma, nend, hook=None):
        def mm(i, j, par):
            if "k" in SNAKE and i & 1: j = 3 - j
            d = ACC + (i*4+j)*4
            a.wait_lg([("C", i), ("W", par, j, 0), ("W", par, j, 1)])
            if "fakechain" in ABL:
                d = ACC + (i*4 + (j & 2) + par)*4
                if j in (1, 2): i = (i + 4) & 7
                j = (0, 1, 1, 0)[j] + 2*(i & 1)
            if isK: a.mfma(d, WF+16*par+4*j, CF+4*i)
            else: a.mfma(d, CF+4*i, WF+16*par+4*j)
        a(".p2align 4")
        a.label(lab)
        if hook:
            a(f"s_bitcmp1_b32 {(0x80 if isK else 0xd6) & (0x7f if 'latex' in ABL else 0xff)}, s{S_ST}\ns_cbranch_scc1 {hook}"); a.label(hook + "_back")
        for i in range(8):
            for j in range(4):
                mm(i, j, 0)
                if i < 2: rdW(1, *wq[i*4+j], 1)
            rdC(i, 1)
        dma = list(dma)
        if "kv_nodma" in ABL: dma = []
        for i in range(8):
            for j in range(4):
                mm(i, j, 1)
                if i == 2 or i == 3: rdW(0, *wq[(i-2)*4+j], 0)
                if i >= 2 and dma:
                    for y in dma.pop(0): a(y)
            if i == 1:
                for r in (RC, RC+1, RW, RW+1, RW+2, RW+3): a(f"v_xor_b32 v{r}, 0x10000, v{r}")
                if isK and hook and "oldb7" not in ABL:
                    a(f"s_cmp_eq_u32 s{S_ST}, 7\ns_cbranch_scc1 {'L_kx' if 'latex' in ABL else 'L_know'}\ns_waitcnt vmcnt(0)")
                    a.label("L_know")
                    a("s_waitcnt lgkmcnt(0)\ns_barrier")
                elif isK: a("s_waitcnt vmcnt(0) lgkmcnt(0)\ns_barrier")
                else:
                    a(f"s_bitcmp1_b32 {0xc8 if 'latex' in ABL else 0x48}, s{S_ST}\ns_cbranch_scc1 L_vpre")
                    a.label("L_vnow")
                    a("s_waitcnt lgkmcnt(0)\ns_barrier")
                a.lg.drain()
                a.stampd(S_ST, 24)
                rdC(0, 0); rdC(1, 0)
            elif i >= 2: rdC(i, 0)
        emit_groups(a, dma)
        a(f"s_add_u32 s{S_ST}, s{S_ST}, 1\ns_cmp_lt_u32 s{S_ST}, {nend}\ns_cbranch_scc1 {lab}")
    def first_reads():
        a.lg.drain()
        rdC(0, 0); rdC(1, 0)
        for k in range(4): rdW(0, *wq[k], 0)
        rdC(2, 0)
        for k in range(4, 8): rdW(0, *wq[k], 0)
        for i in range(3, 8): rdC(i, 0)
    a(f"s_cmp_ge_u32 s{S_W}, 4\ns_cbranch_scc1 L_kv_v")
    first_reads()
    q0 = list(a.lg.q)
    emit_groups(a, kv_dma_ops()[10:])
    a.stamp(5)
    body(True, "L_kloopA", kv_dma_ops(), 6)
    assert a.lg.q == q0, (a.lg.q, q0)
    body(True, "L_kloopB", wq_dma_ops(2), 8, hook="L_khook" if "kx2" not in ABL else None)
    a.stamp(6)
    a("s_waitcnt lgkmcnt(0)\ns_nop 7")
    for n in range(16):
        t = ACC + 4*n; d0 = ACC + 8*n; d1 = d0 + 4
        a(f"v_cvt_pk_bf16_f32 v{t}, v{d0}, v{d0+1}\nv_cvt_pk_bf16_f32 v{t+1}, v{d0+2}, v{d0+3}")
        a(f"v_cvt_pk_bf16_f32 v{t+2}, v{d1}, v{d1+1}\nv_cvt_pk_bf16_f32 v{t+3}, v{d1+2}, v{d1+3}")
    a("s_waitcnt vmcnt(16)\ns_branch L_q")
    a.label("L_hook")
    for k in (1, 2, 4, 6): a(f"s_cmp_eq_u32 s{S_ST}, {k}\ns_cbranch_scc1 L_hook{k}")
    a(f"s_cmp_lg_u32 s{S_ST}, 7\ns_cbranch_scc1 L_hook_back")
    for ks in range(3): x_load(a, ks, XEARLY[2*ks:2*ks+2])
    a("s_branch L_hook_back")
    a.label("L_hook1")
    if LNH == 1: ln_store(a, "L_lns")
    for st in TV1: kv_touch(a, st)
    a("s_branch L_hook_back")
    a.label("L_hook2")
    if LNH == 2: ln_store(a, "L_lns")
    for st in TV2: kv_touch(a, st)
    a("s_branch L_hook_back")
    a.label("L_hook4")
    WOTR = [16, 20, 24, 28, 32]
    a(f"s_cmp_lg_u32 s{S_W}, 4\ns_cbranch_scc1 L_hook4b")
    count_atomic(a, 0)
    a.label("L_hook4b")
    a(f"s_lshl_b32 s74, s76, 12\ns_add_u32 s74, s74, {LDS_SP}")
    emit_groups(a, wq_dma_ops(1))
    a("s_branch L_hook_back")
    a.label("L_hook6")
    a(f"s_cmp_lg_u32 s{S_W}, 5\ns_cbranch_scc1 L_hook_back")
    cnt_addr(a); a(cnt_load(a, 62, 0))
    a("s_branch L_hook_back")
    if "latex" in ABL:
        a.label("L_kx")
        for ks in range(3): x_load(a, ks, XEARLY[2*ks:2*ks+2])
        a("s_branch L_know")
        a.label("L_vx")
        for ks in range(3): x_load(a, ks, XEARLY[2*ks:2*ks+2])
        a("s_branch L_vnow")
    a.label("L_vpre")
    if "latex" in ABL: a(f"s_cmp_eq_u32 s{S_ST}, 7\ns_cbranch_scc1 L_vx")
    a(f"s_waitcnt vmcnt(0)\ns_lshl_b32 s6, s{S_ST}, 4\ns_add_u32 s6, s6, s{S_W}\ns_cmp_lg_u32 s6, 0x65\ns_cbranch_scc1 L_vnow")
    cnt_check(a, 62, 0)
    a("s_branch L_vnow")
    a.label("L_khook")
    a(f"s_cmp_lg_u32 s{S_ST}, 7\ns_cbranch_scc1 L_khook_back")
    for ks in range(3): x_load(a, ks, XEARLY[2*ks:2*ks+2])
    a("s_branch L_khook_back")
    a.label("L_kv_v")
    first_reads()
    for st in TV0: kv_touch(a, st)
    a.stamp(5)
    body(False, "L_vloop", [], 8, hook="L_hook")
    a.stamp(6)
    a("s_waitcnt lgkmcnt(0)\ns_nop 7")
    for ii in range(4):
        for j in range(4):
            t = ACC + 16*ii + 4*j; d0 = ACC + 32*ii + 4*j; d1 = d0 + 16
            a(f"v_cvt_pk_bf16_f32 v{t}, v{d0}, v{d0+1}\nv_cvt_pk_bf16_f32 v{t+1}, v{d0+2}, v{d0+3}")
            a(f"v_cvt_pk_bf16_f32 v{t+2}, v{d1}, v{d1+1}\nv_cvt_pk_bf16_f32 v{t+3}, v{d1+2}, v{d1+3}")
    a("s_waitcnt vmcnt(0)")

QF, O_, S_, FR, P_, NM, T_, L_, ET = 16, 192, 64, 96, 128, 144, 52, 56, 58
VA, VDK, VDV = 48, 49, 50
S_N, S_NL, S_C, S_THR = 62, 63, 64, 65
LA, ONES, SIDX = 160, 164, 168
OFFS = 0x41c00000
def Sreg(par, kt, qt): return S_ + 16*par + (kt*2+qt)*4
def NMreg(kt, qt): return NM + (kt*2+qt)*4
def Oreg(t, qt): return O_ + (t*2+qt)*4
def Qreg(qt, s): return QF + (qt*4+s)*4
def Preg(par, qt): return P_ + 8*par + 4*qt
def Treg(par, qt): return T_ + 2*par + qt

def xlane(a, op, r, t):
    for sw in ("v_permlane16_swap_b32", "v_permlane32_swap_b32"):
        a(f"v_mov_b32 v{t}, v{r}\ns_nop 1\n{sw} v{r}, v{t}\ns_nop 1\n{op} v{r}, v{r}, v{t}")

def st_dma(a, parts):
    if "K" in parts:
        for hf in range(2):
            a(f"s_lshl_b32 s6, s76, 13\ns_add_u32 s6, s6, s78\ns_add_u32 m0, s6, {hf*4096}\ns_add_u32 s7, s77, {hf*4096}")
            for i in range(4): a(f"buffer_load_dwordx4 v{VDK}, {WS}, s7 offen offset:{i*1024} sc1 lds")
    for hf in range(2):
        if f"V{hf}" in parts:
            a(f"s_lshl_b32 s6, s76, 12\ns_add_u32 s6, s6, s78\ns_add_u32 m0, s6, {32768+hf*16384}\ns_add_u32 s7, s77, {0x80000-16384+hf*16384}")
            for i in range(4): a(f"buffer_load_dwordx4 v{VDV}, {WS}, s7 offen offset:{i*1024} sc1 lds")

S_HK, S_ALL = 89, 90
def kv_self_touch(a):
    a(f"v_lshrrev_b32 v9, 3, v{L}\ns_cmp_lt_u32 s{S_W}, 4\ns_cselect_b32 s7, 6, 4\nv_and_b32 v10, s7, v9\nv_add_u32 v9, v9, v10\nv_lshlrev_b32 v9, 10, v9")
    a(f"v_and_b32 v10, 7, v{L}\nv_lshl_add_u32 v9, v10, 7, v9\ns_sub_u32 s6, s{S_KVD}, 32768")
    a(f"buffer_load_dword v{VDUM}, v9, {WS}, s6 offen sc1\ns_add_u32 s6, s6, 16384\nbuffer_load_dword v{VDUM}, v9, {WS}, s6 offen sc1")

def kvf_addr(a):
    a(f"s_lshl_b32 s7, s{S_H}, 10\ns_add_u32 s7, s7, {WS_KVF}\nv_lshrrev_b32 v2, 3, v{L}\nv_and_b32 v3, 7, v{L}\nv_lshlrev_b32 v3, 2, v3\nv_lshl_add_u32 v3, v2, 7, v3")
def kv_flag_wait(a, level):
    kvf_addr(a)
    poll(a, f"buffer_load_dword v2, v3, {WS}, s7 offen sc1", f"v_cmp_gt_u32 vcc, {level}, v2")

KS_POLL = int(os.environ.get("KSP", "15"))
LATE_KS = tuple(int(x) for x in os.environ.get("STKS", "0,1,2,3,16,17,18,19").split(","))
KS_FLAG = int(os.environ.get("KSF", "6"))
NEARLY = int(os.environ.get("NEARLY", "2"))
def kv_store(a, n, late=True):
    if late and "nolate" in ABL: return
    sc = "" if n >= int(os.environ.get("PLAINFROM", "99")) else " sc1"
    a(f"buffer_store_dwordx4 {v(ACC+4*n,4)}, v{VL16}, {WS}, s{S_KVD} offen{sc}"); a.vm.issue(("st", n))
    inc = ("1024", f"s{S_INCA}", "1024", f"s{S_INCB}")[n & 3]
    a(f"s_add_u32 s{S_KVD}, s{S_KVD}, {inc}")
def q_body(a):
    sfx = ""
    a.lg.drain(); a.vm.drain()
    def rdW(t, hf, ks):
        blk = ks >> 2
        off = (0, 0, 32768, 0, 32768)[blk] + (ks & 3)*8192 + hf*1024
        a(f"ds_read_b64_tr_b16 {v(WF+4*t+2*hf,2)}, v{QRW+t} offset:{off}"); a.lg.issue(("W", t, hf))
    for t in range(8):
        rdW(t, 0, 0); rdW(t, 1, 0)
    xr = {ks: XEARLY[2*ks:2*ks+2] for ks in range(3)}
    for ks in range(3, 7):
        xr[ks] = [CF + 8*(ks-3), CF + 8*(ks-3) + 4]
        x_load(a, ks, xr[ks])
    nst = 0
    for ks in range(20):
        pend = []
        a.wait_vm(("X", ks))
        if ks % 2 == 0: a.stamp(32 + ks//2)
        barrier_here = ks == 11 or (ks == 3 and "oldb7" not in ABL)
        upd = {3: -LDS_SP, 11: 65536}.get(ks)
        st_at = (3,) if ks in LATE_KS else ()
        for t in range(8):
            for qt in range(2):
                if qt == 0: a.wait_lg([("W", t, 0), ("W", t, 1)])
                q = qt ^ (t & 1) if "q" in SNAKE else qt
                a.mfma(Oreg(t, q), WF+4*t, xr[ks][q], "0" if ks == 0 else None)
                if qt == 1 and ks < 19: pend += [(t, 0), (t, 1)]
                if barrier_here and t == 1 and qt == 1:
                    a("s_waitcnt lgkmcnt(0)\ns_barrier"); a.lg.drain()
                    while len(pend) > 2: rdW(*pend.pop(0), ks+1)
                if pend and not (barrier_here and (t, qt) < (1, 1)): rdW(*pend.pop(0), ks+1)
                if upd is not None and qt == 0:
                    a(f"v_add_u32 v{QRW+t}, s101, v{QRW+t}" if ks == 3 else f"v_xor_b32 v{QRW+t}, 0x10000, v{QRW+t}")
                if qt == 0 and t in st_at and nst < 16:
                    kv_store(a, nst); nst += 1
        while pend: rdW(*pend.pop(0), ks+1)
        if ks + 7 < 20:
            xr[ks+7] = xr[ks]; x_load(a, ks+7, xr[ks])
        if ks == KS_FLAG:
            a.wait_vm(("st", 3))
            set_flag(a, "kv", 1)
        if ks == KS_POLL:
            a.wait_vm(("X", 19))
            a(f"s_cmp_ge_u32 s{S_W}, 4\ns_cbranch_scc1 L_q_nold{sfx}")
            a.stamp(20)
            kv_flag_wait(a, 1)
            a.stamp(21)
            st_dma(a, ["K", "V1"])
            a.label(f"L_q_nold{sfx}")
    assert nst == len(LATE_KS) and 8 <= nst <= 12

def phase_q(a):
    a.label("L_q")
    a.srd(SRD_E, P_DBG, 256)
    a(f"s_lshl_b32 s6, s76, 13\nv_add_u32 v{VDK}, s6, v{VL16}\ns_lshl_b32 s6, s76, 12\nv_add_u32 v{VDV}, s6, v{VL16}")
    a(f"s_lshl_b32 s77, s{S_H}, 20\ns_add_u32 s77, s77, {WS_KV}\ns_mov_b32 s78, s100\ns_sub_u32 s101, s100, {LDS_SP}\ns_mov_b32 s{S_ALL}, 0")
    a(f"s_cmp_lt_u32 s{S_W}, 4\ns_cselect_b32 s{S_HK}, 3, 2")
    q_body(a)
    a.stamp(7)
    if "symq" not in ABL:
        a(f"s_cmp_lt_u32 s{S_W}, 4\ns_cbranch_scc1 L_qb\ns_barrier")
        a.label("L_qb")
    a("s_mov_b32 s6, 0x3e0293ee\ns_nop 7")
    for qt in range(2):
        for n in range(len(LATE_KS), 12):
            if (n & 1) == qt or 12 - len(LATE_KS) == 1: pass
        if qt == 0:
            for n in range(len(LATE_KS), 12): kv_store(a, n)
        for s_ in range(4):
            for hf in range(2):
                d = Oreg(2*s_+hf, qt)
                if "pkq" in ABL:
                    for r in (0, 2): a(f"v_pk_mul_f32 {v(d+r,2)}, {v(d+r,2)}, s[6:7] op_sel_hi:[1,0]")
                else:
                    for r in range(4): a(f"v_mul_f32 v{d+r}, s6, v{d+r}")
                a(f"v_cvt_pk_bf16_f32 v{Qreg(qt,s_)+2*hf}, v{d}, v{d+1}\nv_cvt_pk_bf16_f32 v{Qreg(qt,s_)+2*hf+1}, v{d+2}, v{d+3}")
    zero_regs(a, O_, 64)
    zero_regs(a, NM, 16)
    zero_regs(a, LA, 4)
    a(f"v_bfe_u32 v2, v{L}, 1, 1\nv_lshrrev_b32 v3, 5, v{L}\nv_cmp_eq_u32 vcc, v2, v3\nv_mov_b32 v2, 0x3f803f80\nv_and_b32 v3, 1, v{L}\nv_mul_u32_u24 v3, 0xaaaa, v3\nv_add_u32 v{SIDX}, 0x4444, v3")
    for i in range(4): a(f"v_cndmask_b32 v{ONES+i}, 0, v2, vcc")
    a(f"v_add_u32 v{VA}, s100, v{VL16}")
    a(f"s_waitcnt vmcnt({12 - len([k for k in LATE_KS if k <= KS_POLL])})")

def sm_ops(par):
    ops = []
    n = 0
    for kt in range(2):
        for qt in range(2):
            for r in range(4):
                t, tp = ET + n % 4, ET + (n-1) % 4
                e = f"v_exp_f32 v{t}, v{Sreg(par,kt,qt)+r}"
                rest = []
                if r & 1: rest.append(f"v_cvt_pk_bf16_f32 v{Preg(par,qt)+2*kt+(r>>1)}, v{tp}, v{t}")
                ops.append((e, rest)); n += 1
    return ops

def phase_attn(a):
    handlers = []
    FULLQ = [("F", i) for i in range(1, 8)]
    def rd(kind, i, k):
        off = (0 if kind == "K" else 32768) + k*8192 + i*1024
        a(f"ds_read_b128 {v(FR+4*i,4)}, v{VA} offset:{off}"); a.lg.issue(("F", i))
    def bar(wait="vmcnt(0) lgkmcnt(0)", mid=None, hot=False):
        bk = a.newlabel("ldback")
        if hot:
            a(f"s_cbranch_scc1 {bk}_c\ns_barrier")
            a.label(bk)
            handlers.append(("ld", bk))
        else:
            a(f"s_waitcnt {wait}\ns_call_b64 s[82:83], L_pend\ns_barrier")
            if mid: mid()
            a(f"s_call_b64 s[82:83], L_load")
        a.lg.drain()
        if "stampbar" in ABL: a.stampd(S_N, 44)
        a(f"s_add_i32 s{S_N}, s{S_N}, 1")
    def stage(k, qk=True, sm=True, pv=True, nxt=True, loop=False):
        pq, ps = k & 1, 1 - (k & 1)
        full = qk and pv
        pairs = []
        if pv: pairs += [("V", i) for i in range(8)]
        if qk: pairs += [("K", i) for i in range(8)]
        NP = len(pairs)
        lp = None if not pv else 1 if not full else LPOS - 1 if k == 3 else 13
        g0 = [[] for _ in range(NP)]; g1 = [[] for _ in range(NP)]; gl = []
        if sm:
            ops = sm_ops(ps)[2:]
            g1[0] += sm_ops(ps)[1][1]
            per = 1 if full else 2
            for n, (e, rest) in enumerate(ops):
                g0[n//per].append(e); g1[n//per] += rest
            c = [Preg(ps, qt) + 2*kt + h for kt in range(2) for qt in range(2) for h in range(2)]
            X = ET + 4
            chk = [f"v_or3_b32 v{X}, v{c[0]}, v{c[1]}, v{c[2]}", f"v_or3_b32 v{X}, v{X}, v{c[3]}, v{c[4]}", f"v_or3_b32 v{X}, v{X}, v{c[5]}, v{c[6]}",
                   f"v_bitop3_b32 v{X}, v{X}, v{c[7]}, s72 bitop3:0xa8", f"v_cmp_ne_u32 vcc, s{S_THR}, v{X}"]
            if full:
                g1[4].append(chk[0]); g1[8].append(chk[1]); g1[12].append(chk[2])
                (gl if lp == 13 else g1[14]).append(chk[3]); g1[14].append(chk[4])
            else: g0[7] += chk
        if full:
            for n, (e, rest) in enumerate(sm_ops(pq)[:2]): g0[14+n].append(e)
        sc = {}
        if loop:
            sc[1] = f"s_sub_i32 s{S_C}, s{S_C}, 1"; sc[3] = f"s_cmp_gt_i32 s{S_C}, 0"; sc[5] = f"s_cselect_b32 s{S_THR}, 0, 1"
            if k == 3: sc[lp-1] = f"s_cmp_lg_u32 s{S_HK}, 0"
        barp = lp if k == 3 else None
        if barp is not None: g1[barp-1].append(f"v_xor_b32 v{VA}, 0x10000, v{VA}")
        held = []
        for n, (kind, i) in enumerate(pairs):
            for qt in range(2):
                q = qt ^ (i & 1) if "a" in SNAKE else qt
                if kind == "V": a.mfma(Oreg(i, q), FR+4*i, Preg(pq, q))
                else: a.mfma(Sreg(pq, i >> 2, q), FR+4*i, Qreg(q, i & 3), None if i & 3 else NMreg(i >> 2, q))
                if qt == 0:
                    if n + 1 < NP: a.wait_lg(("F", pairs[n+1][1]))
                    elif nxt: a.wait_lg(("F", 0))
                    for x in g0[n]: a(x)
                else:
                    if n in sc: a(sc[n])
                    if n == barp and loop:
                        a("s_waitcnt lgkmcnt(0)"); a.lg.drain()
                    if kind == "V" and qk: rd("K", i, k)
                    elif nxt:
                        if barp is not None and n <= barp: held.append(i)
                        else: rd("V", i, (k+1) & 3)
                    for x in g1[n]: a(x)
            if n == lp:
                a(f"v_smfmac_f32_16x16x64_bf16 {v(LA,4)}, {v(ONES,4)}, {v(Preg(pq,0),8)}, v{SIDX}")
                for x in gl: a(x)
                if n == barp:
                    bar(hot=loop)
                    for h in held: rd("V", h, 0)
        if sm:
            bk = a.newlabel("back")
            if loop and k == 3:
                a(f"s_cbranch_vccz L_st0\ns_branch {bk}_h")
                handlers.append(("sm", bk, k, loop, full, "L_st0"))
            else:
                a(f"s_cbranch_vccnz {bk}_h")
                a.label(bk)
                handlers.append(("sm", bk, k, loop, full, bk))
    a(f"s_mov_b32 s72, 0x40004000\ns_mov_b32 s{S_THR}, 0\ns_sub_u32 s{S_NL}, 15, s{S_P}\ns_mov_b32 s{S_N}, -1")
    a.stamp(8)
    if "symq" in ABL: bar("lgkmcnt(0)")
    else:
        a(f"s_cmp_ge_u32 s{S_W}, 4\ns_cbranch_scc1 L_qb2\ns_barrier")
        a.label("L_qb2")
        a.lg.drain()
        if "stampbar" in ABL: a.stampd(S_N, 44)
    a.stamp(9)
    for i in range(8): rd("K", i, 0)
    a(f"s_cmp_lg_u32 s{S_B}, 0\ns_cbranch_scc1 L_nm0\ns_call_b64 s[82:83], L_mask")
    a.label("L_nm0")
    for i in range(8):
        a.wait_lg(("F", i))
        for qt in range(2):
            a.mfma(Sreg(0, i >> 2, qt), FR+4*i, Qreg(qt, i & 3), None if i & 3 else NMreg(i >> 2, qt))
        rd("K", i, 1)
    a("s_nop 7")
    for qt in range(2):
        m = ET + qt
        s0, s1 = Sreg(0, 0, qt), Sreg(0, 1, qt)
        a(f"v_max3_f32 v{m}, v{s0}, v{s0+1}, v{s0+2}\nv_max3_f32 v{m}, v{m}, v{s0+3}, v{s1}\nv_max3_f32 v{m}, v{m}, v{s1+1}, v{s1+2}\nv_max_f32 v{m}, v{m}, v{s1+3}")
        xlane(a, "v_max_f32", m, ET+2)
        a(f"v_add_f32 v{m}, {hex(OFFS)}, v{m}")
        for kt in range(2):
            for r in range(4):
                a(f"v_sub_f32 v{Sreg(0,kt,qt)+r}, v{Sreg(0,kt,qt)+r}, v{m}\nv_sub_f32 v{NMreg(kt,qt)+r}, 0, v{m}")
    a(f"s_cmp_lg_u32 s{S_B}, 1\ns_cbranch_scc1 L_nm1\ns_call_b64 s[82:83], L_mask")
    a.label("L_nm1")
    def early(par):
        o = sm_ops(par)[:2]
        a(o[0][0]); a(o[1][0])
    early(0)
    a.wait_lg(("F", 0))
    stage(1, pv=False)
    assert a.lg.q == FULLQ
    a("s_nop 7")
    early(1)
    if "symq" not in ABL: a(f"s_call_b64 s[82:83], L_load\ns_mov_b32 s{S_N}, 0")
    for n in range(12, 16): kv_store(a, n)
    if "pr_fin" in ABL: a("s_setprio 1")
    if "pr_long" in ABL:
        a(f"s_cmp_lt_u32 s{S_W}, 4\ns_cbranch_scc1 L_prl\ns_setprio 2")
        a.label("L_prl")
    a(f"s_sub_i32 s{S_C}, s{S_B}, 2")
    a.stamp(10)
    a(f"s_cmp_eq_u32 s{S_B}, 0\ns_cbranch_scc1 L_pv2\ns_cmp_eq_u32 s{S_B}, 1\ns_cbranch_scc1 L_tail2")
    a(f"s_cmp_lg_u32 s{S_B}, 2\ns_cbranch_scc1 L_st2\ns_call_b64 s[82:83], L_mask\ns_branch L_st2")
    a(".p2align 6")
    a.label("L_st0")
    for k in range(4):
        if k == 2: a.label("L_st2")
        stage(k, loop=True)
        assert a.lg.q == FULLQ, a.lg.q
    for k in range(4):
        a.label(f"L_tail{k}")
        a.lg.q = list(FULLQ)
        a(f"s_mov_b32 s{S_THR}, 0")
        stage(k, qk=False)
        assert a.lg.q == FULLQ
        a.label(f"L_pv{(k+1)&3}")
        stage((k+1) & 3, qk=False, sm=False, nxt=False)
        if k == 1 and "nopvb" not in ABL:
            a(f"s_cmp_eq_u32 s{S_B}, 0\ns_cbranch_scc1 L_fin")
            bar()
        if k < 3: a("s_branch L_fin")
    a.label("L_fin")
    if "pr_fin" in ABL: a("s_setprio 0")
    a.stamp(11)
    idx_addr(a); a(f"buffer_load_dword v{VIDX}, v3, {WS}, s72 offen sc1")
    for qt in range(2): a(f"v_add_f32 v{L_+qt}, v{LA+2*qt}, v{LA+2*qt+1}\nv_rcp_f32 v{L_+qt}, v{L_+qt}")
    a(f"s_lshl_b32 s6, s{S_B}, 18\ns_lshl_b32 s7, s{S_H}, 12\ns_add_u32 s6, s6, s7\ns_add_u32 s6, s6, {WS_CTX}\ns_nop 4")
    n = 0
    a.vm.drain()
    for qt in range(2):
        for s_ in range(4):
            t = QF + 4*n; n += 1
            for hf in range(2):
                d = Oreg(2*s_+hf, qt)
                if "pkfin" in ABL:
                    sel = "op_sel_hi:[1,0]" if qt == 0 else "op_sel:[0,1] op_sel_hi:[1,1]"
                    for r in (0, 2): a(f"v_pk_mul_f32 {v(d+r,2)}, {v(d+r,2)}, {v(L_,2)} {sel}")
                else:
                    for r in range(4): a(f"v_mul_f32 v{d+r}, v{L_+qt}, v{d+r}")
                a(f"v_cvt_pk_bf16_f32 v{t+2*hf}, v{d}, v{d+1}\nv_cvt_pk_bf16_f32 v{t+2*hf+1}, v{d+2}, v{d+3}")
            a(f"buffer_store_dwordx4 {v(t,4)}, v{VL16}, {WS}, s6 offen offset:{s_*1024} sc1"); a.vm.issue("st")
        if qt == 0: a("s_add_u32 s6, s6, 0x20000")
    a.stamp(12)
    def flag_now():
        a("s_waitcnt vmcnt(0)")
        set_flag(a, "ctx")
    a(f"s_sub_i32 s6, s{S_NL}, {0 if 'nolatefin' in ABL else 4}\ns_cmp_gt_i32 s{S_N}, s6\ns_cbranch_scc1 L_pre")
    bar("vmcnt(8)", flag_now)
    a(f"s_lshl_b32 s6, s{S_W}, 8\ns_add_u32 s6, s6, s2\ns_cmp_eq_u32 s6, {DESIG}\ns_cbranch_scc1 L_top")
    a.label("L_idle")
    a(f"s_sub_i32 s6, s{S_NL}, 5\ns_cmp_gt_i32 s{S_N}, s6\ns_cbranch_scc1 L_pre")
    bar()
    a(f"s_cmp_lt_u32 s{S_E}, 54\ns_cbranch_scc1 L_moe\ns_branch L_idle")
    a.label("L_pre")
    a(f"s_cmp_lt_u32 s{S_W}, 4\ns_cbranch_scc1 L_pre1")
    a.stamp(19)
    a("s_barrier")
    a(f"s_lshl_b32 s7, s76, 13\ns_add_u32 s7, s7, 0x10000\nv_add_u32 v3, s7, v{VL16}\nv_add_u32 v2, 0x10000, v3\ns_lshl_b32 s7, s76, 12\ns_add_u32 s7, s7, 0x10000\nv_add_u32 v12, s7, v{VL16}")
    def wrd(fs):
        for f in fs:
            r, off = (2, f*1024) if f < 8 else (3, (f-8)*1024) if f < 16 else (12, 49152+(f-16)*1024)
            a(f"ds_read_b128 {v(WR+4*f,4)}, v{r} offset:{off}")
    wrd(range(12))
    out_setup(a, 1)
    out_cx(a)
    wrd(range(12, 20))
    NWF = int(os.environ.get("NWF", "1"))
    if "w0in" in ABL:
        a("s_waitcnt lgkmcnt(0)\ns_barrier")
        wo_load(a, 4)
    else:
        for i in range(4, 4+NWF): wo_load(a, i)
        a(f"s_waitcnt vmcnt({5*NWF})")
        set_flag(a, "ctx")
        for i in range(4+NWF, 8): wo_load(a, i)
        a("s_waitcnt lgkmcnt(0)\ns_barrier")
    a("s_branch L_adone")
    a.label("L_pre1")
    cnt_addr(a); a(cnt_load(a, 12, 1))
    out_setup(a, 0)
    if "xnt" in ABL:
        a.srd(SRD_A, P_X, 2048*640*2)
        a(f"v_min_u32 v2, 39, v{L}\nv_mul_u32_u24 v3, 52, v2\nv_lshrrev_b32 v3, 8, v3\nv_mul_u32_u24 v4, 5, v3\nv_sub_u32 v2, v2, v4\nv_mul_u32_u24 v3, 1280, v3\nv_lshl_add_u32 v2, v2, 6, v3")
        a(f"s_cmp_lt_u32 s{S_W}, 2\ns_cselect_b32 s6, s{S_OB}, s{S_OL}\ns_lshl_b32 s6, s6, 1\ns_and_b32 s7, s{S_W}, 1\ns_add_u32 s6, s6, s7\ns_mul_i32 s6, s6, 10240\ns_and_b32 s7, s{S_H}, 3\ns_mul_i32 s7, s7, 320\ns_add_u32 s6, s6, s7")
        a(f"buffer_load_dword v{VDUM}, v2, {R(SRD_A)}, s6 offen")
    for j in range(5):
        if j == 1:
            a("v_cmp_gt_u32 vcc, 4, v12\ns_cbranch_vccz L_wok")
            a.label("L_wpoll")
            cnt_addr(a); poll(a, cnt_load(a, 2, 1), "v_cmp_gt_u32 vcc, 4, v2", sleep=8)
            set_flag(a, "ctx")
            a.label("L_wok")
            a(f"s_mov_b32 s{S_ALL}, 1")
        if j == 3: y_look(a)
        if j == 4: y_try(a)
        PIECES = eval(os.environ.get("PIECES", "((), (0,1,2,3), (4,5), (6,7))"))
        if j < 4:
            for i in PIECES[j]: wo_load(a, i)
        if j == 4:
            ctxf_addr(a, S_OB); a(f"buffer_load_dword v50, v3, {WS}, s72 offen sc1")

        if j == 0: a(f"s_sub_i32 s6, s{S_NL}, 4\ns_cmp_gt_i32 s{S_N}, s6\ns_cbranch_scc1 L_wpoll")
        else: a(f"s_cmp_gt_i32 s{S_N}, s{S_NL}\ns_cbranch_scc1 L_e{j+2}")
        if j < 4:
            a(f"s_cmp_eq_i32 s{S_N}, s{S_NL}\ns_cbranch_scc1 L_lw{j}\ns_waitcnt vmcnt({5*len(PIECES[j])})")
            a.label(f"L_lw{j}")
        bar(f"vmcnt({20 if 'nocode2' in ABL else 21})")
        a.label(f"L_e{j+2}")
    a.stamp(22)
    moe_finish(a)
    out_cx(a)
    a("s_waitcnt vmcnt(0)\nv_cmp_ne_u32 vcc, 1, v50\ns_cbranch_vccz L_ce")
    ctxf_addr(a, S_OB)
    poll(a, f"buffer_load_dword v2, v3, {WS}, s72 offen sc1", "v_cmp_ne_u32 vcc, 1, v2", sleep=4)
    a.label("L_ce")
    for r in range(NPC):
        for x in ctx_dma(r) + ctx_dma(r, 16384): a(x)
    y_is(a, "L_yg")
    set_flag(a, "b")
    a("s_waitcnt vmcnt(1)\ns_branch L_ye")
    a.label("L_yg")
    a("s_waitcnt vmcnt(0)")
    a.label("L_ye")
    a.stamp(23)
    a("s_setprio 0")
    a.stamp(19)
    a("s_barrier")
    for r in range(NPC, 2):
        for x in ctx_dma(r) + ctx_dma(r, 16384): a(x)
    a.stamp(15)
    a("s_branch L_adone")
    y_loads(a)
    moe_steps(a, bar)
    top8(a, bar)
    for h in handlers:
        if h[0] == "ld":
            a.label(h[1] + "_c"); a(f"s_waitcnt vmcnt(0) lgkmcnt(0)\ns_call_b64 s[82:83], L_pend\ns_barrier\ns_call_b64 s[82:83], L_load\ns_branch {h[1]}")
        else:
            _, bk, k, loop, full, back = h
            a.label(bk + "_h")
            a(f"v_cmp_ne_u32 vcc, 0, v{ET+4}\ns_cbranch_vccz {bk}_n\ns_call_b64 s[80:81], L_rare{1-(k&1)}")
            if full:
                o = sm_ops(k & 1)[:2]
                a(o[0][0]); a(o[1][0])
            a.label(bk + "_n")
            if loop:
                a(f"s_cmp_lt_i32 s{S_C}, 0\ns_cbranch_scc1 L_tail{(k+1)&3}\ns_cmp_gt_i32 s{S_C}, 0\ns_cbranch_scc1 {back}\ns_call_b64 s[82:83], L_mask")
            a(f"s_branch {back}")
    a.label("L_load")
    a(f"s_bitcmp1_b32 s{S_HK}, 0\ns_cbranch_scc0 L_load_r")
    a(f"s_add_u32 s77, s77, 32768\ns_xor_b32 s78, s78, 0x10000\ns_add_i32 s73, s{S_N}, 1\ns_cmp_gt_i32 s73, s{S_NL}\ns_cbranch_scc1 L_load_r")
    if "at_nodma" not in ABL:
        a(f"s_cmp_eq_i32 s73, s{S_NL}\ns_cbranch_scc1 L_load_v\ns_cmp_lg_i32 s73, 3\ns_cbranch_scc1 L_load_k")
        a("v_cmp_gt_u32 vcc, 2, v12\ns_cbranch_vccz L_load_k")
        kv_flag_wait(a, 2)
        a.label("L_load_k")
        st_dma(a, ["K", "V1"])
        a.label("L_load_v")
        st_dma(a, ["V0"])
    a(f"s_cmp_eq_i32 s73, s{S_NL}\ns_cbranch_scc1 L_xa\ns_cmp_lg_i32 s73, 2\ns_cbranch_scc1 L_nolook")
    kvf_addr(a); a(f"buffer_load_dword v12, v3, {WS}, s7 offen sc1")
    a.label("L_nolook")
    a(f"s_bitcmp1_b32 {WOTM}, s{S_P}\ns_cbranch_scc0 L_wb\ns_sub_i32 s6, s{S_N}, {WOTN}\ns_cmp_gt_u32 s6, 4\ns_cbranch_scc0 L_wsel")
    a.label("L_wb")
    a(f"s_sub_u32 s6, s{S_P}, {X3P}\ns_cmp_ge_u32 s6, 4\ns_cbranch_scc1 L_load_r")
    a(f"s_sub_i32 s79, s73, 1\ns_cmp_lt_u32 s79, 2\ns_cbranch_scc1 L_x3")
    a.label("L_load_r")
    a("s_setpc_b64 s[82:83]")
    a.label("L_pend")
    a(f"s_bitcmp1_b32 s{S_HK}, 1\ns_cbranch_scc0 L_load_a\ns_cmp_lt_i32 s{S_N}, 0\ns_cbranch_scc1 L_load_a")
    set_flag(a, "kv", 2)
    a(f"s_and_b32 s{S_HK}, s{S_HK}, 1")
    a.label("L_load_a")
    a("s_setpc_b64 s[82:83]")
    def wo_dma(fs, m0base, m0off):
        for i, f in enumerate(fs):
            a(f"s_add_u32 m0, {m0base}, {m0off + i*1024}\ns_add_u32 s7, s{84 + f%5}, {(f//5)*40960}\nbuffer_load_dwordx4 v{VL16}, {WS}, s7 offen sc1 lds")
    WOTR = [172, 176, 180, 184, 188]
    a.label("L_wsel")
    a(f"s_bfm_b32 s7, s{S_P}, 0\ns_and_b32 s7, s7, {WOTM}\ns_bcnt1_i32_b32 s7, s7\ns_lshl_b32 s7, s7, 5\ns_and_b32 s91, s2, 31\ns_add_u32 s91, s91, s7\ns_lshl_b32 s91, s91, 1\ns_lshr_b32 s7, s6, 1\ns_add_u32 s91, s91, s7\ns_cmp_eq_u32 s6, 4\ns_cbranch_scc1 L_w2\ns_bitcmp1_b32 s6, 0\ns_cbranch_scc1 L_w1")
    a.label("L_w0")
    a.srd(SRD_E, P_WO, 4096*640*2)
    a(f"s_lshr_b32 s75, s91, 1\ns_mul_i32 s75, s75, {32*1280}\ns_and_b32 s6, s91, 1\ns_mul_i32 s6, s6, 640\ns_add_u32 s75, s75, s6\ns_movk_i32 s7, 1639")
    a(f"s_mul_i32 s74, s76, 5120\ns_add_u32 s74, s74, {LDS_WOT}\ns_mul_i32 s6, s76, 320\nv_add_u32 v9, s6, v{L}")
    for n in range(5):
        a(f"v_add_u32 v2, {n*64}, v9\nv_mul_lo_u32 v3, v2, s7\nv_lshrrev_b32 v3, 16, v3\nv_mul_u32_u24 v4, 40, v3\nv_sub_u32 v4, v2, v4")
        a(f"v_mul_u32_u24 v3, 1280, v3\nv_lshl_add_u32 v3, v4, 4, v3\ns_add_u32 m0, s74, {n*1024}\ns_nop 0")
        a(f"buffer_load_dwordx4 v3, {R(SRD_E)}, s75 offen{NT} lds")
    a("s_branch L_wb")
    a.label("L_w1")
    a(f"v_and_b32 v2, 15, v{L}\nv_lshrrev_b32 v3, 4, v{L}\nv_lshrrev_b32 v4, 2, v2\nv_lshl_add_u32 v4, v3, 2, v4\nv_mul_u32_u24 v4, 640, v4")
    a(f"v_and_b32 v2, 3, v2\nv_lshl_add_u32 v4, v2, 3, v4\ns_mul_i32 s6, s76, 160\ns_add_u32 s6, s6, {LDS_WOT}\nv_add_u32 v4, s6, v4")
    a(f"s_mul_i32 s6, s91, 20480\ns_mul_i32 s7, s76, 5120\ns_add_u32 s6, s6, s7\ns_add_u32 s6, s6, {WS_WOF}\ns_add_u32 s7, s6, 4096")
    for n in range(5):
        d = WOTR[n]
        a(f"ds_read_b64_tr_b16 v[{d}:{d+1}], v4 offset:{n*32}\nds_read_b64_tr_b16 v[{d+2}:{d+3}], v4 offset:{n*32+10240}")
    a("s_waitcnt lgkmcnt(0)")
    for n in range(5):
        a(f"buffer_store_dwordx4 {v(WOTR[n],4)}, v{VL16}, {WS}, s{6 if n<4 else 7} offen offset:{(n&3)*1024} sc1")
    a("s_branch L_wb")
    a.label("L_w2")
    a(f"s_cmp_lg_u32 s{S_W}, 0\ns_cbranch_scc1 L_wb")
    count_atomic(a, 1)
    a("s_branch L_wb")
    a.label("L_xa")
    a(f"s_cmp_lg_u32 s{S_ALL}, 0\ns_cbranch_scc1 L_xa1")
    cnt_addr(a); poll(a, cnt_load(a, 2, 1), "v_cmp_gt_u32 vcc, 4, v2", sleep=8)
    a.label("L_xa1")
    if "nocode2" not in ABL:
        a("s_getpc_b64 s[80:81]")
        a.label("L_pc2")
        a(f"s_sub_u32 s80, s80, L_pc2-L_fin\ns_subb_u32 s81, s81, 0\ns_and_b32 s6, s{S_H}, 1\ns_lshl_b32 s6, s6, 14\nv_lshl_add_u32 v3, v0, 6, s6")
        a(f"v_min_u32 v3, L_exit-L_fin, v3\nglobal_load_dword v{VDUM}, v3, s[80:81]")
    if "xt" in ABL:
        a.srd(SRD_A, P_X, 2048*640*2)
        a(f"v_lshrrev_b32 v2, 2, v{L}\nv_mul_u32_u24 v2, 1280, v2\nv_and_b32 v3, 3, v{L}\nv_lshl_add_u32 v2, v3, 6, v2")
        a(f"s_lshl_b32 s6, s{S_H}, 2\ns_add_u32 s6, s6, s{S_W}\ns_mul_i32 s73, s6, 20480\ns_mul_i32 s7, s{S_P}, 160\ns_andn2_b32 s7, s7, 63\ns_add_u32 s7, s7, s73")
        a(f"buffer_load_dword v{VDUM}, v2, {R(SRD_A)}, s7 offen\nv_min_u32 v2, 39, v{L}\nv_lshlrev_b32 v2, 6, v2\ns_mul_i32 s7, s{S_P}, 2560\ns_add_u32 s7, s7, s73")
        a(f"buffer_load_dword v{VDUM}, v2, {WS}, s7 offen sc1")
    wo_base(a, 74, 1)
    for m in range(4): a(f"s_add_u32 s6, s76, {m}\ns_and_b32 s6, s6, 3\ns_lshl_b32 s6, s6, 10\ns_add_u32 s{84+m}, s6, s74")
    a("s_add_u32 s88, s74, 4096")
    a(f"s_lshl_b32 s73, s{S_W}, 13\ns_add_u32 s75, s73, s78")
    wo_dma(range(8), "s73", LDS_SP); wo_dma(range(8, 16), "s75", 0)
    a(f"s_lshl_b32 s75, s{S_W}, 12\ns_add_u32 s75, s75, s78")
    wo_dma(range(16, 20), "s75", 49152)
    a("s_setpc_b64 s[82:83]")
    a.label("L_x3")
    if "nomoetouch" not in ABL:
        a.srd(SRD_A, P_WG, 640*1728*2)
        a(f"s_cmp_eq_u32 s{S_W}, 3\ns_cbranch_scc1 L_load_r")
        a(f"s_cmp_eq_u32 s{S_W}, 1\ns_cselect_b32 s{SRD_A}, s{P_WU}, s{SRD_A}\ns_cselect_b32 s{SRD_A+1}, s{P_WU+1}, s{SRD_A+1}")
        a(f"s_cmp_eq_u32 s{S_W}, 2\ns_cselect_b32 s{SRD_A}, s{P_WD}, s{SRD_A}\ns_cselect_b32 s{SRD_A+1}, s{P_WD+1}, s{SRD_A+1}")
        a(f"s_mov_b32 s73, 3456\ns_cmov_b32 s73, 256\ns_mov_b32 s75, 256\ns_cmov_b32 s75, {4*40960}")
        a(f"s_lshr_b32 s6, s2, 3\ns_sub_u32 s6, s6, {4*X3P}\ns_mul_i32 s6, s6, 40\nv_lshrrev_b32 v2, 2, v{L}\nv_add_u32 v2, s6, v2\nv_mul_lo_u32 v2, v2, s73\nv_and_b32 v3, 3, v{L}\nv_lshl_add_u32 v2, v3, 6, v2")
        a(f"s_xor_b32 s79, s79, 1\ns_lshl_b32 s6, s79, 3\ns_lshr_b32 s7, s{S_H}, 2\ns_add_u32 s6, s6, s7\ns_mul_i32 s6, s6, s75")
        a(f"v_mov_b32 v3, {hex(WS_SIZE)}\nv_cmp_gt_u32 vcc, 32, v{L}\ns_lshl_b32 s73, s73, 4\ns_nop 0\nv_cndmask_b32 v3, v3, v2, vcc")
        a(f"buffer_load_dword v{VDUM}, v2, {R(SRD_A)}, s6 offen\ns_add_u32 s7, s6, s73\nbuffer_load_dword v{VDUM}, v2, {R(SRD_A)}, s7 offen")
        a(f"s_add_u32 s7, s7, s73\nbuffer_load_dword v{VDUM}, v3, {R(SRD_A)}, s7 offen")
    a("s_setpc_b64 s[82:83]")
    a.label("L_mask")
    a(f"v_and_b32 v2, 15, v{L}\nv_lshrrev_b32 v3, 4, v{L}\nv_lshlrev_b32 v3, 2, v3\nv_sub_u32 v2, v2, v3\nv_mov_b32 v3, 0xff800000")
    for r in range(4):
        a(f"v_cmp_gt_i32 vcc, {r}, v2\nv_mov_b32 v{NMreg(1,0)+r}, v3\ns_nop 0")
        a(f"v_cndmask_b32 v{NMreg(0,0)+r}, v{NMreg(0,0)+r}, v3, vcc\nv_cndmask_b32 v{NMreg(1,1)+r}, v{NMreg(1,1)+r}, v3, vcc")
    a("s_nop 1\ns_setpc_b64 s[82:83]")
    for par in range(2):
        a.label(f"L_rare{par}")
        a("s_nop 15")
        for qt in range(2):
            m = ET + 4
            s0, s1 = Sreg(par, 0, qt), Sreg(par, 1, qt)
            a(f"v_max_f32 v{m}, v{s0}, v{s0+1}\nv_max3_f32 v{m}, v{m}, v{s0+2}, v{s0+3}\nv_max3_f32 v{m}, v{m}, v{s1}, v{s1+1}\nv_max3_f32 v{m}, v{m}, v{s1+2}, v{s1+3}")
            xlane(a, "v_max_f32", m, ET)
            a(f"v_add_f32 v{m}, {hex(OFFS)}, v{m}\nv_max_f32 v{m}, 0, v{m}")
            a(f"v_exp_f32 v{ET}, -v{m}")
            for kt in range(2):
                for r in range(4):
                    for reg in (Sreg(0,kt,qt), Sreg(1,kt,qt), NMreg(kt,qt)):
                        a(f"v_sub_f32 v{reg+r}, v{reg+r}, v{m}")
            for r in range(2): a(f"v_mul_f32 v{LA+2*qt+r}, v{ET}, v{LA+2*qt+r}")
            for t in range(8):
                for r in range(4): a(f"v_mul_f32 v{Oreg(t,qt)+r}, v{ET}, v{Oreg(t,qt)+r}")
        for e, rest in sm_ops(par):
            a(e); a("s_nop 0")
            for x in rest: a(x)
        a("s_nop 1\ns_setpc_b64 s[80:81]")
    a.label("L_adone")
    a.stamp(13)

def top8(a, bar):
    K = 64
    a.label("L_top")
    a(f"s_mov_b32 s6, {hex(WS_R)}\nv_lshrrev_b32 v2, 1, v{L}\nv_and_b32 v3, 1, v{L}\nv_lshlrev_b32 v3, 4, v3\nv_lshl_add_u32 v2, v2, 7, v3")
    for i in range(8): a(f"buffer_load_dwordx4 {v(K+4*i,4)}, v2, {WS}, s6 offen sc1\ns_add_u32 s6, s6, 4096")
    a("s_waitcnt vmcnt(0)\nv_mov_b32 v24, 0\ns_mov_b32 s7, 0\ns_mov_b32 s84, 0")
    a.label("L_top_l")
    a(f"v_max3_u32 v4, v{K}, v{K+1}, v{K+2}\nv_max3_u32 v5, v{K+3}, v{K+4}, v{K+5}")
    for i in range(6, 30, 4): a(f"v_max3_u32 v4, v4, v{K+i}, v{K+i+1}\nv_max3_u32 v5, v5, v{K+i+2}, v{K+i+3}")
    a(f"v_max3_u32 v4, v4, v{K+30}, v{K+31}\nv_max_u32 v4, v4, v5")
    a.wave_reduce("v_max_u32", 4)
    a("v_readlane_b32 s6, v4, 63\ns_mov_b32 m0, s7\ns_nop 3\ns_add_u32 s84, s84, s6\nv_writelane_b32 v24, s84, m0")
    for i in range(32): a(f"v_subrev_u32 v{K+i}, s6, v{K+i}")
    a("s_add_u32 s7, s7, 1\ns_cmp_lt_u32 s7, 8\ns_cbranch_scc1 L_top_l")
    a(f"v_and_b32 v2, 7, v{L}\nv_lshlrev_b32 v2, 2, v2\nds_bpermute_b32 v4, v2, v24\ns_waitcnt lgkmcnt(0)\nv_and_b32 v4, 0x7ff, v4\nv_sub_u32 v4, 0x7ff, v4")
    a(f"v_lshrrev_b32 v5, 4, v4\nv_mul_u32_u24 v5, 20480, v5\nv_and_b32 v4, 15, v4\nv_lshl_add_u32 v5, v4, 4, v5\nv_lshrrev_b32 v7, 4, v{L}\nv_lshl_add_u32 v5, v7, 8, v5")
    a(f"v_mov_b32 v6, {hex(WS_SIZE)}\nv_and_b32 v2, 8, v{L}\nv_cmp_eq_u32 vcc, 0, v2\ns_mov_b32 s6, 0\ns_nop 0\nv_cndmask_b32 v5, v6, v5, vcc")
    for k in range(20):
        if k and k % 4 == 0: a("s_add_u32 s6, s6, 4096")
        a(f"buffer_load_dwordx4 {v(K+4*k,4)}, v5, {WS}, s6 offen offset:{(k&3)*1024} sc1")
    def put():
        a(f"s_waitcnt vmcnt(0)\ns_mov_b32 s6, {hex(WS_XS)}")
        for k in range(20):
            if k and k % 4 == 0: a("s_add_u32 s6, s6, 4096")
            a(f"buffer_store_dwordx4 {v(K+4*k,4)}, v{VL16}, {WS}, s6 offen offset:{(k&3)*1024} sc1")
    bar("vmcnt(20)", put)
    a("s_waitcnt vmcnt(16)")
    a(f"v_or_b32 v24, 0x80000000, v24\nv_lshlrev_b32 v5, 2, v{L}\nv_mov_b32 v6, {hex(WS_SIZE)}\nv_cmp_gt_u32 vcc, 8, v{L}\ns_mov_b32 s6, {hex(WS_IDX)}\ns_nop 0\nv_cndmask_b32 v5, v6, v5, vcc")
    a(f"buffer_store_dword v24, v5, {WS}, s6 offen sc1\ns_branch L_idle")

OACC = 176
M_WD, M_PART = 81920, 122880
VIDX = 51
def idx_addr(a):
    a(f"v_and_b32 v3, 7, v{L}\nv_lshlrev_b32 v3, 2, v3\ns_mov_b32 s72, {hex(WS_IDX)}")
def ctxf_addr(a, own, both=True):
    a(f"v_and_b32 v3, 1, v{L}\nv_lshlrev_b32 v3, 12, v3")
    if both: a(f"v_and_b32 v2, 2, v{L}\nv_lshl_add_u32 v3, v2, 8, v3")
    a(f"s_lshr_b32 s72, s{own}, 2\ns_lshl_b32 s72, s72, 6\ns_andn2_b32 s6, s{S_H}, 7\ns_add_u32 s72, s72, s6\ns_add_u32 s72, s72, s{S_W}\ns_lshl_b32 s72, s72, 7\ns_add_u32 s72, s72, {WS_CTXF}")
def idx_poll(a, sfx, wait="s_waitcnt vmcnt(40)"):
    a(wait)
    a(f"v_cmp_le_i32 vcc, 0, v{VIDX}\ns_cbranch_vccz L_idx_ok{sfx}")
    idx_addr(a)
    poll(a, f"buffer_load_dword v{VIDX}, v3, {WS}, s72 offen sc1", f"v_cmp_le_i32 vcc, 0, v{VIDX}")
    a.label(f"L_idx_ok{sfx}")

def moe_steps(a, bar):
    XS, FRG, GA, WDR, WD2, PR, YO = 64, 104, 24, 32, 240, 184, 216
    VG, VT, VD, VTD, VY, VXS = 16, 17, 18, 19, 20, 21
    S_G, S_WIN, S_D = 84, 85, 86
    a.label("L_moe")
    if MOEP == 2: a(f"s_sub_u32 s6, s{S_N}, s{S_P}\ns_cmp_lg_u32 s6, 3\ns_cbranch_scc1 L_idle")
    else: a(f"s_add_u32 s6, s{S_N}, s{S_P}\ns_cmp_lg_u32 s6, 5\ns_cbranch_scc1 L_idle")
    def srds():
        a.srd(SRD_A, P_WG, 640*1728*2)
        a(f"s_cmp_ge_u32 s{S_W}, 2\ns_cselect_b32 s{SRD_A}, s{P_WU}, s{SRD_A}\ns_cselect_b32 s{SRD_A+1}, s{P_WU+1}, s{SRD_A+1}")
        a.srd(SRD_B, P_WD, 1728*640*2)
    def dma_g(nk):
        for n in range(2*nk):
            a(f"s_add_u32 m0, s{S_WIN}, {n*1024}\ns_nop 0\nbuffer_load_dwordx4 v{VG}, {R(SRD_A)}, s{S_G} offen lds\ns_add_u32 s{S_G}, s{S_G}, {16*3456}")
    def dma_d():
        for n in range(4):
            a(f"s_add_u32 m0, s{S_WIN}, {4096+n*1024}\ns_add_u32 s6, s{S_D}, {n*8*1280}\nbuffer_load_dwordx4 v{VD}, {R(SRD_B)}, s6 offen lds")
        a(f"s_add_u32 s{S_D}, s{S_D}, 512")
    def rd_g(k0, nk):
        for k in range(nk):
            for ft in range(2):
                d = FRG + ((k0+k)*2+ft)*4
                a(f"ds_read_b64_tr_b16 {v(d,2)}, v{VT} offset:{k*2048+ft*32}\nds_read_b64_tr_b16 {v(d+2,2)}, v{VT} offset:{k*2048+ft*32+256}")
            if k == 1: a("s_waitcnt lgkmcnt(0)")
    def xs(k0, nk):
        for k in range(k0, k0+nk): a(f"buffer_load_dwordx4 {v(XS+4*k,4)}, v{VL16}, {WS}, s88 offen sc1\ns_add_u32 s88, s88, 1024")
    def rd_d(base):
        for m in range(4):
            a(f"ds_read_b64_tr_b16 {v(base+4*m,2)}, v{VTD} offset:{m*32}\nds_read_b64_tr_b16 {v(base+2+4*m,2)}, v{VTD} offset:{m*32+16*128}")
    def down(base, goff):
        for m in range(4): a.mfma(YO+4*m, base+4*m, GA, "0")
        a("s_nop 7")
        for m in range(4): a(f"buffer_store_dwordx4 {v(YO+4*m,4)}, v{VY}, {WS}, s87 offen offset:{goff*1024+m*64} sc1")
        a("s_nop 1")
    srds()
    a(f"v_lshrrev_b32 v3, 2, v{L}\nv_mul_u32_u24 v3, 3456, v3\nv_and_b32 v4, 3, v{L}\nv_lshl_add_u32 v{VG}, v4, 4, v3")
    a(f"v_lshrrev_b32 v3, 3, v{L}\nv_mul_u32_u24 v3, 1280, v3\nv_and_b32 v4, 7, v{L}\nv_lshl_add_u32 v{VD}, v4, 4, v3")
    a(f"s_and_b32 s7, s{S_W}, 1\ns_mul_i32 s{S_G}, s7, {320*3456}\ns_lshl_b32 s6, s{S_E}, 6\ns_add_u32 s{S_G}, s{S_G}, s6")
    a(f"s_lshl_b32 s{S_WIN}, s{S_W}, 13\ns_add_u32 s{S_WIN}, s{S_WIN}, {LDS_SP}")
    a(f"s_mul_i32 s{S_D}, s{S_E}, 40960\ns_lshl_b32 s6, s{S_W}, 7\ns_add_u32 s{S_D}, s{S_D}, s6")
    dma_g(4)
    a(f"v_lshrrev_b32 v7, 4, v{L}\nv_and_b32 v2, 15, v{L}\nv_lshrrev_b32 v3, 2, v2\nv_lshl_add_u32 v8, v7, 3, v3\nv_lshlrev_b32 v8, 6, v8\nv_and_b32 v4, 3, v2\nv_lshl_add_u32 v8, v4, 3, v8\nv_add_u32 v{VT}, s{S_WIN}, v8")
    a(f"v_lshl_add_u32 v8, v7, 2, v3\nv_lshlrev_b32 v8, 7, v8\nv_lshl_add_u32 v8, v4, 3, v8\ns_add_u32 s6, s{S_WIN}, 4096\nv_add_u32 v{VTD}, s6, v8")
    a(f"v_mul_u32_u24 v3, 2560, v2\nv_lshl_add_u32 v3, v7, 4, v3\nv_mov_b32 v4, {hex(WS_SIZE)}\nv_cmp_gt_u32 vcc, 8, v2")
    a(f"s_mul_i32 s87, s{S_E}, 20480\ns_lshl_b32 s7, s{S_W}, 8\ns_add_u32 s87, s87, s7\ns_add_u32 s87, s87, {WS_YP}\nv_cndmask_b32 v{VY}, v4, v3, vcc")
    a(f"s_and_b32 s7, s{S_W}, 1\ns_mul_i32 s88, s7, 10240\ns_add_u32 s88, s88, {WS_XS}")
    W0 = "vmcnt(0) lgkmcnt(0)"
    def m1():
        rd_g(0, 4); a("s_waitcnt lgkmcnt(0)"); dma_g(4)
    bar(W0, m1)
    idx_addr(a); a(f"buffer_load_dword v{VIDX}, v3, {WS}, s72 offen sc1")
    def m2():
        rd_g(4, 4); a("s_waitcnt lgkmcnt(0)"); dma_g(2); dma_d()
    bar(W0, m2)
    idx_poll(a, "m", "")
    xs(0, 10)
    def m3():
        rd_g(8, 2); rd_d(WDR); a("s_waitcnt lgkmcnt(0)"); dma_d()
    bar("vmcnt(10) lgkmcnt(0)", m3)
    a("s_waitcnt vmcnt(20)")
    for k in range(10):
        for ft in range(2): a.mfma(GA+4*ft, FRG+(k*2+ft)*4, XS+4*k, "0" if k == 0 else None)
    a(f"v_add_u32 v10, s{S_WIN}, v{VL16}\ns_nop 7\nds_write_b128 v10, {v(GA,4)}\nds_write_b128 v10, {v(GA+4,4)} offset:1024")
    def m4():
        rd_d(WD2)
        a(f"s_lshr_b32 s6, s{S_W}, 1\ns_lshl_b32 s6, s6, 10\ns_and_b32 s7, s{S_W}, 1\ns_lshl_b32 s7, s7, 3\ns_add_u32 s6, s6, s7\ns_add_u32 s6, s6, {LDS_SP}\nv_add_u32 v10, s6, v{VL16}\ns_waitcnt lgkmcnt(0)")
        for w in range(4): a(f"ds_read_b64 {v(PR+2*w,2)}, v10 offset:{w*8192}")
        a(f"s_cmp_ge_u32 s{S_W}, 2\ns_cbranch_scc1 L_moe4b")
        dma_d()
        a.label("L_moe4b")
    bar(W0, m4)
    a("s_waitcnt lgkmcnt(0)\ns_mov_b32 s6, 0xbfb8aa3b")
    def rnd2(r): a(f"v_cvt_pk_bf16_f32 v{r+1}, v{r}, v{r+1}\nv_lshlrev_b32 v{r}, 16, v{r+1}\nv_and_b32 v{r+1}, 0xffff0000, v{r+1}")
    g0, u0 = PR, PR + 4
    for q in range(2): a(f"v_add_f32 v{g0+q}, v{g0+q}, v{g0+2+q}\nv_add_f32 v{u0+q}, v{u0+q}, v{u0+2+q}")
    rnd2(g0); rnd2(u0)
    a(f"v_mul_f32 v2, s6, v{g0}\nv_mul_f32 v3, s6, v{g0+1}\nv_exp_f32 v2, v2\nv_exp_f32 v3, v3\ns_nop 0\nv_add_f32 v2, 1.0, v2\nv_add_f32 v3, 1.0, v3")
    a(f"v_rcp_f32 v2, v2\nv_rcp_f32 v3, v3\ns_nop 0\nv_mul_f32 v{g0}, v{g0}, v2\nv_mul_f32 v{g0+1}, v{g0+1}, v3")
    rnd2(g0)
    a(f"v_mul_f32 v{g0}, v{g0}, v{u0}\nv_mul_f32 v{g0+1}, v{g0+1}, v{u0+1}\nv_cvt_pk_bf16_f32 v2, v{g0}, v{g0+1}")
    a(f"s_lshl_b32 s6, s{S_W}, 2\ns_add_u32 s6, s6, {LDS_SP+2048}\nv_add_u32 v10, s6, v{VL16}\nds_write_b32 v10, v2")
    def m5():
        a(f"v_add_u32 v10, {LDS_SP+2048}, v{VL16}\nds_read_b128 {v(GA,4)}, v10")
        rd_d(FRG)
    bar(W0, m5)
    a("s_waitcnt lgkmcnt(0)")
    down(WDR, 0); down(WD2, 1)
    a(f"s_cmp_ge_u32 s{S_W}, 2\ns_cbranch_scc1 L_moe5b")
    down(FRG, 2)
    a.label("L_moe5b")
    bar("vmcnt(8) lgkmcnt(0)", lambda: (a("s_waitcnt vmcnt(0)"), set_flag(a, "moe")))
    a("s_branch L_idle")

YS = [16+4*i for i in range(7)] + [56+4*i for i in range(10)] + [4]
def y_is(a, skip): a(f"s_lshr_b32 s7, s{S_W}, 1\ns_lshl_b32 s7, s7, 4\ns_add_u32 s6, s{S_P}, s7\ns_cmp_lg_u32 s6, {YP}\ns_cbranch_scc1 {skip}")
def y_faddr(a): a(f"v_min_u32 v3, 53, v{L}\nv_lshlrev_b32 v3, 7, v3\ns_mov_b32 s72, {hex(WS_MOEF)}")
Y_LD = f"buffer_load_dwordx4 v[16:19], v3, {WS}, s72 offen sc1"
Y_CMP = "\n".join([f"v_and_b32 v16, v16, v{16+r}" for r in (1, 2, 3)]) + "\nv_cmp_ne_u32 vcc, 1, v16"
def y_look(a):
    y_is(a, "L_yl0"); y_faddr(a); a(Y_LD); a.label("L_yl0")
def y_try(a):
    a("s_mov_b32 s101, 0")
    y_is(a, "L_yl1"); a(Y_CMP); a("s_cbranch_vccnz L_yl1\ns_call_b64 s[80:81], L_yld"); a.label("L_yl1")
def y_loads(a):
    XR = 54
    a.label("L_yld")
    idx_poll(a, "a", "")
    a(f"s_lshr_b32 s96, s{S_H}, 2\ns_and_b32 s97, s{S_H}, 3\ns_lshl_b32 s97, s97, 1\ns_add_u32 s97, s97, s{S_W}")
    a(f"s_mov_b32 m0, s96\ns_nop 3\nv_readlane_b32 s98, v{VIDX}, m0\ns_nop 3\ns_and_b32 s100, s98, 0x7ff\ns_sub_u32 s100, 0x7ff, s100")
    a(f"v_mul_u32_u24 v2, 13, v{L}\nv_lshrrev_b32 v2, 8, v2\nv_mul_u32_u24 v3, 20, v2\nv_sub_u32 v8, v{L}, v3")
    a(f"s_mov_b32 s6, {18*20480}\nv_mul_lo_u32 v2, v2, s6\nv_lshl_add_u32 v2, v8, 4, v2")
    a(f"v_cmp_lt_u32 vcc, 59, v{L}\nv_mov_b32 v3, {hex(WS_SIZE)}\ns_nop 0\nv_cndmask_b32 v2, v2, v3, vcc")
    a(f"s_mul_i32 s6, s96, 2560\ns_mul_i32 s7, s97, 320\ns_add_u32 s6, s6, s7\ns_add_u32 s6, s6, {WS_YP}")
    for e in range(18):
        a(f"buffer_load_dwordx4 {v(YS[e],4)}, v2, {WS}, s6 offen sc1\ns_add_u32 s6, s6, 20480")
    a(f"s_lshr_b32 s6, s100, 4\ns_mul_i32 s6, s6, 20480\ns_and_b32 s7, s100, 15\ns_lshl_b32 s7, s7, 4\ns_add_u32 s6, s6, s7\ns_mul_i32 s7, s97, 2560\ns_add_u32 s6, s6, s7")
    a(f"v_lshrrev_b32 v9, 1, v8\nv_lshlrev_b32 v9, 8, v9\nv_and_b32 v10, 1, v8\nv_lshl_add_u32 v9, v10, 3, v9\nbuffer_load_dwordx2 {v(XR,2)}, v9, {WS}, s6 offen sc1")
    a("s_mov_b32 s101, 1\ns_setpc_b64 s[80:81]")

def moe_finish(a):
    Y, XR = YS[0], 54
    y_is(a, "L_yd")
    a("s_cmp_lg_u32 s101, 0\ns_cbranch_scc1 L_yf")
    y_faddr(a)
    poll(a, Y_LD, Y_CMP, sleep=16)
    a("s_call_b64 s[80:81], L_yld")
    a.label("L_yf")
    a("s_bfe_u32 s6, s98, 0x10000b\ns_xor_b32 s7, s6, 0xffff\ns_bitcmp1_b32 s6, 15\ns_bitset0_b32 s6, 15\ns_cselect_b32 s6, s6, s7\ns_lshl_b32 s6, s6, 16\nv_mov_b32 v9, s6")
    a("v_mul_f32 v9, 0xbfb8aa3b, v9\nv_exp_f32 v9, v9\ns_nop 0\nv_add_f32 v9, 1.0, v9\nv_rcp_f32 v9, v9\ns_nop 0")
    bf16_round(a, 9)
    a(f"v_lshlrev_b32 v10, 2, v{L}\nv_mov_b32 v3, {hex(WS_SIZE)}\ns_waitcnt vmcnt(0)")
    for e in range(1, 18):
        a(f"v_pk_add_f32 {v(Y,2)}, {v(Y,2)}, {v(YS[e],2)}\nv_pk_add_f32 {v(Y+2,2)}, {v(Y+2,2)}, {v(YS[e]+2,2)}")
    for k in range(2):
        for r in range(4): a(f"ds_bpermute_b32 v{Y+4+4*k+r}, v10, v{Y+r} offset:{80*(k+1)}")
    a("s_waitcnt lgkmcnt(0)")
    for r in range(4):
        y = Y + r
        a(f"v_add_f32 v{y}, v{y}, v{y+4}\nv_add_f32 v{y}, v{y}, v{y+8}")
        bf16_round(a, y)
        a(f"v_mul_f32 v{y}, v{y}, v9")
        bf16_round(a, y)
        xn = XR + (r >> 1)
        a(f"v_and_b32 v8, 0xffff0000, v{xn}" if r & 1 else f"v_lshlrev_b32 v8, 16, v{xn}")
        a(f"v_add_f32 v{y}, v{y}, v8")
    a(f"v_cvt_pk_bf16_f32 v{Y+4}, v{Y}, v{Y+1}\nv_cvt_pk_bf16_f32 v{Y+5}, v{Y+2}, v{Y+3}")
    a(f"v_lshlrev_b32 v2, 3, v{L}\nv_cmp_lt_u32 vcc, 19, v{L}\ns_mul_i32 s6, s96, 1280\ns_mul_i32 s7, s97, 160\nv_cndmask_b32 v2, v2, v3, vcc\ns_add_u32 s6, s6, s7\ns_add_u32 s6, s6, {WS_BSEL}")
    a(f"buffer_store_dwordx2 {v(Y+4,2)}, v2, {WS}, s6 offen sc1")
    a.label("L_yd")

WR, OA, CR, RT = 96, 56, 16, 32
S_OW, S_OB, S_CX, S_OL = 69, 68, 66, 61
VWO4 = 52
LDS_P, LDS_F = 98304, 65536
def wo_base(a, d, nh):
    a(f"s_lshr_b32 s{d}, s{S_H}, 3\ns_lshl_b32 s{d}, s{d}, 2\ns_add_u32 s{d}, s{d}, s76\ns_mul_i32 s{d}, s{d}, {8*40960}\ns_and_b32 s7, s{S_H}, 3\ns_mul_i32 s7, s7, 10240\ns_add_u32 s{d}, s{d}, s7\ns_add_u32 s{d}, s{d}, {WS_WOF + nh*5120}")

XNA = 48
S_TOK, S_XI, S_XFI, VXF = 64, 62, 63, 11
XFG = int(os.environ.get("XFG", "6"))
VWM = 44
def wo_voffs(a, r0, r4=None):
    for m in range(4): a(f"s_add_u32 s6, s76, {m}\ns_and_b32 s6, s6, 3\ns_lshl_b32 s6, s6, 10\nv_add_u32 v{r0+m}, s6, v{VL16}")
    a(f"v_add_u32 v{r0+4 if r4 is None else r4}, 4096, v{VL16}")
def wm(m): return VWM + m if m < 4 else VWO4
def wo_load(a, i):
    a(f"s_add_u32 s75, s{S_OW}, {i*40960}")
    for m in range(5): a(f"buffer_load_dwordx4 {v(WR+4*(5*i+m),4)}, v{wm(m)}, {WS}, s75 offen sc1")

def out_setup(a, nh):
    if nh == 0:
        idx_addr(a); a(f"buffer_load_dword v{VIDX}, v3, {WS}, s72 offen sc1")
    wo_voffs(a, VWM, VWO4)
    wo_base(a, S_OW, nh)
    a(f"s_and_b32 s6, s{S_H}, 4\ns_lshr_b32 s7, s{S_H}, 3\ns_add_u32 s6, s6, s7\ns_lshl_b32 s7, s{S_P}, 3\ns_add_u32 s{S_OB}, s6, s7\ns_sub_u32 s7, 120, s7\ns_add_u32 s{S_OL}, s6, s7")

VCA, VT, VPR = 4, 5, 6
S_RED = 71
S_PB, S_XS = 67, 96
def out_cx(a):
    a(f"s_lshr_b32 s6, s{S_H}, 3\ns_lshl_b32 s6, s6, 15\ns_lshl_b32 s99, s{S_W}, 12\ns_add_u32 s{S_CX}, s6, s99\ns_add_u32 s{S_CX}, s{S_CX}, {WS_CTX}")
    a(f"s_lshl_b32 s6, s76, 13\nv_add_u32 v{VCA}, s6, v{VL16}\nv_add_u32 v7, 65536, v{VCA}")
def out_consts(a):
    a(f"s_lshr_b32 s6, s{S_W}, 2\ns_mul_i32 s{S_PB}, s6, 15360\ns_add_u32 s{S_PB}, s{S_PB}, {LDS_P}\nv_add_u32 v{VPR}, s{S_PB}, v{VWM}")
    a(f"s_mul_i32 s73, s6, 5120\ns_add_u32 s73, s73, {WS_XP}\ns_lshl_b32 s6, s6, 1\ns_sub_u32 s{S_RED}, s76, s6\ns_and_b32 s{S_RED}, s{S_RED}, 3")
    a(f"v_mov_b32 v{VXF}, {hex(WS_SIZE)}\ns_lshl_b32 s74, s{S_W}, 2\ns_add_u32 s74, s74, {WS_XF}")
    tile_id(a, 72)
    a(f"s_mul_i32 s72, s72, 12\ns_lshr_b32 s75, s{S_H}, 3\ns_mul_i32 s7, s75, 3\ns_add_u32 s7, s7, s72\ns_mul_i32 s{S_XI}, s7, 20480\ns_add_u32 s{S_XI}, s{S_XI}, {WS_XP}\ns_lshl_b32 s7, s7, 7\ns_add_u32 s{S_XFI}, s7, {WS_XF}")
    for k in range(3):
        a(f"s_add_u32 s6, s75, {1+k}\ns_and_b32 s6, s6, 3\ns_mul_i32 s6, s6, 3\ns_add_u32 s6, s6, s72\ns_add_u32 s6, s6, {k}\ns_mul_i32 s7, s6, 20480\ns_add_u32 s{S_XS+k}, s7, s73")
        a(f"s_lshl_b32 s6, s6, 7\ns_add_u32 s6, s6, s74\nv_writelane_b32 v{VXF}, s6, {k}")

def ctx_dma(r, extra=0):
    own, d = (S_OL if r in (3, 4, 5, 7) else S_OB), (1 + r % 3 if r < 6 else 0)
    o = [f"s_add_u32 s65, s{own}, {d}\ns_and_b32 s65, s65, 3\ns_andn2_b32 s7, s{own}, 3\ns_add_u32 s65, s65, s7\ns_lshl_b32 s65, s65, 17\ns_add_u32 s65, s65, s{S_CX}\ns_add_u32 m0, s99, {(r%3)*32768+extra}\ns_add_u32 s65, s65, {extra}"]
    return o + [f"buffer_load_dwordx4 v{VL16}, {WS}, s65 offen offset:{i*1024} sc1 lds" for i in range(4)]

def phase_out(a):
    def rdc(r, i):
        reg, off = (VCA, (r%3)*32768) if r % 3 < 2 else (7, 0)
        return (("C", i & 3), f"ds_read_b128 {v(CR+4*(i&3),4)}, v{reg} offset:{off+i*1024}")
    def xlook_addr():
        a(f"v_bfe_u32 v2, v{L}, 3, 2\nv_min_u32 v2, 2, v2\nv_and_b32 v3, 7, v{L}\nv_lshlrev_b32 v3, 2, v3\nv_lshl_add_u32 v3, v2, 7, v3")
    IT = [(WR, WR+4), (WR+8, WR+12)]
    XI, LP, OUTR = WR+16, WR+64, WR+128
    def emit(x):
        if "o_now" in ABL and isinstance(x, tuple) and x[0] == "W": return
        if "o_noadd" in ABL and isinstance(x, str) and x.startswith("v_add_f32"): return
        if "o_nodma" in ABL and isinstance(x, str) and x.endswith("lds"): return
        if "o_nost" in ABL and isinstance(x, str) and "buffer_store_dwordx4" in x: return
        if "o_nop" in ABL and isinstance(x, tuple) and isinstance(x[0], tuple) and x[0][0] == "P": return
        if callable(x): x()
        elif isinstance(x, str): a(x)
        elif x[0] == "wait": a.wait_lg(x[1])
        else:
            a(x[1]); a.lg.issue(x[0])
    def xin_load(slots):
        sk = a.newlabel("xi")
        for n in range(2):
            if n == 1: a(f"s_cmp_ge_u32 s{S_W}, 2\ns_cbranch_scc1 {sk}")
            for s_ in slots:
                a(f"s_add_u32 s6, s{S_XI}, {s_*20480}")
                for hf in range(2): a(f"buffer_load_dwordx4 {v(XI+24*n+8*s_+4*hf,4)}, v{8+n}, {WS}, s6 offen offset:{hf*256} sc1")
        a.label(sk)
    a.lg.drain()
    for i in range(4): emit(rdc(0, i))
    a.wait_lg(("C", 0))
    BG = 24
    for r in range(8):
        if "stampout" in ABL: a.stamp(44 + r)
        A = OA + 20*(r & 1); Ap = OA + 20*((r-1) & 1)
        po = ((r-1) & 1)*30720
        red = 1 <= r <= 6
        G = [[] for _ in range(40)]
        E6 = int(os.environ.get("E6", "10")) if r == 6 else 0
        def dma_at(rr, g0, gs):
            d = ctx_dma(rr); sal = d[0].split("\n")
            G[g0] += sal[:3]; G[g0+1] += sal[3:6]; G[g0+2] += sal[6:7]
            for g, x in zip(gs, d[1:]): G[g].insert(0, x)
        def barrier():
            if r == 0:
                a(f"s_cmp_ge_u32 s{S_W}, 4\ns_cbranch_scc1 L_o0\ns_waitcnt vmcnt(0)\ns_barrier")
                a.label("L_o0")
                return
            elif "o_novm" not in ABL: a(f"s_waitcnt vmcnt({(0, 0, 4, 5, 5, 5, 1)[r]})")
            if r == 6: a(f"buffer_store_dword v2, v{VXF}, {WS}, 0 offen sc1")
            a("s_waitcnt lgkmcnt(0)\ns_barrier"); a.lg.drain()
        for i in range(8):
            if i < 4: G[5*i+4].append(rdc(r, i+4))
            elif r < 7 and i > 4: G[5*i+4].append(rdc(r+1, i-4))
            if i < 7 or r < 7: G[5*i+3].append(("wait", ("C", (i+1) & 3)))
        if r < 7: G[3 if (r == 0 and "w0in" in ABL) else BG - E6].append(barrier)
        if r == 7 and int(os.environ.get("E6", "10")): G[1].append("s_barrier")
        if red:
            G[0].append(f"s_sub_u32 s6, s{S_RED}, {r}\ns_and_b32 s6, s6, 3\ns_mul_i32 s7, s6, 5120")
            G[1].append(f"s_add_u32 s7, s7, s{S_PB}\ns_cmp_eq_u32 s6, 3\ns_cselect_b32 s7, {159744-4096-po}, s7")
            G[2].append(f"v_add_u32 v12, s7, v{VWO4}\nv_add_u32 v{VT}, s{S_PB}, v{wm(1)}")
            for m, g in zip(range(1, 4), (5, 10, 15) if not E6 else (3, 6, 9)):
                G[g] += [("W", f"ds_write_b128 v{VT}, {v(Ap+4*m,4)} offset:{po+(m-1)*5120}"), f"v_add_u32 v{VT}, s{S_PB}, v{wm(m+1)}"]
            G[20 if not E6 else 12].append(("W", f"ds_write_b128 v12, {v(Ap+16,4)} offset:{po}"))
            for k in range(3): G[BG-E6].append((("P", k), f"ds_read_b128 {v(RT+4*k,4)}, v{VPR} offset:{po+k*5120}"))
            for k in range(3):
                G[27-E6+2*k].insert(0, ("wait", ("P", k)))
                for q in range(4): G[27-E6+2*k+q//2].append(f"v_add_f32 v{Ap+q}, v{Ap+q}, v{RT+4*k+q}")
                G[29-E6+2*k].insert(0, (("P", k), f"ds_read_b128 {v(RT+4*k,4)}, v{VT} offset:{po+k*5120}"))
            for k in range(3):
                G[33-E6+2*k].append(("wait", ("P", k)))
                for q in range(4): G[33-E6+2*k+q//2].append(f"v_add_f32 v{Ap+16+q}, v{Ap+16+q}, v{RT+4*k+q}")
            G[33-E6].append(f"s_add_u32 s6, s{S_XS+(r-1)%3}, {((r-1)//3)*10240}")
            G[35-E6].insert(0, f"buffer_store_dwordx4 {v(Ap,4)}, v{VWM}, {WS}, s6 offen sc1")
            sk = a.newlabel("nost")
            G[38-E6].append(f"s_cmp_lg_u32 s{S_RED}, {(r-1)&3}")
            G[39-E6].insert(0, f"s_cbranch_scc1 {sk}\nbuffer_store_dwordx4 {v(Ap+16,4)}, v{VWO4}, {WS}, s6 offen sc1\n{sk}:")
        if r < 7: G[BG].append(rdc(r+1, 0))
        if 1 < r < 5: dma_at(r+3, 21, (25, 26, 28, 30))
        if r == 0:
            dma_at(2, 21, (25, 26, 28, 30))
            if "w0in" in ABL:
                for i in range(3):
                    def wl(i=i):
                        sk = a.newlabel("nowl")
                        a(f"s_cmp_lt_u32 s{S_W}, 4\ns_cbranch_scc1 {sk}")
                        if i == 0:
                            a("s_waitcnt vmcnt(5)")
                            set_flag(a, "ctx")
                        wo_load(a, 5+i)
                        a.label(sk)
                    G[(0, 1, 2)[i]].append(wl)
                for i in range(4): G[19+5*i].append(f"s_waitcnt vmcnt({(16, 10, 8, 4)[i]})")
            else: G[19].append("s_waitcnt vmcnt(0)")
        lookl = f"buffer_load_dword v50, v3, {WS}, s72 offen sc1"
        if r == 1:
            G[6].append(lambda: ctxf_addr(a, S_OL, False))
            G[LOOKG].insert(0, lookl)
            def try3():
                a("v_cmp_ne_u32 vcc, 1, v50\ns_mov_b32 s91, 0\ns_cbranch_vccnz L_t3n")
                for x in ctx_dma(3): a(x)
                a("s_mov_b32 s91, 1\ns_branch L_t3j")
                a.label("L_t3n")
                a(lookl)
                a.label("L_t3j")
            G[25].append(try3)
        if r == 2:
            def chk():
                a(f"s_cmp_lg_u32 s91, 0\ns_cbranch_scc1 L_o2\ns_waitcnt vmcnt(1)\nv_cmp_ne_u32 vcc, 1, v50\ns_cbranch_vccz L_o1")
                poll(a, f"buffer_load_dword v2, v3, {WS}, s72 offen sc1", "v_cmp_ne_u32 vcc, 1, v2", sleep=1)
                a.label("L_o1")
                for x in ctx_dma(3): a(x)
                a.label("L_o2")
            G[2].append(chk)
            dma_at(4, 6, (9, 11, 12, 13))
        def spread(fn, gaps):
            b = Asm(); b.uid = a.uid + 1000; fn(b)
            ls = [x.strip() for x in b.o]; n = -(-len(ls) // len(gaps))
            for k, g in enumerate(gaps): G[g] += ls[k*n:(k+1)*n]
        if r == 0: spread(out_consts, range(4 if "w0in" in ABL else 0, 19))
        if r == 3: spread(out_items, [3, 4, 6, 7, 8, 9, 11, 12, 13, 14, 16, 17, 18, 19])
        if r == 4: G[7].append(lambda: out_tokens(a))
        if r == 6: G[22-E6].append(f"v_mov_b32 v2, 1\nv_writelane_b32 v2, 2, 0")
        if r == 7:
            G[2].append(f"s_mul_i32 s73, s{S_W}, 5120\ns_add_u32 s6, s73, {LDS_F}")
            G[3].append(f"v_add_u32 v{VT}, s6, v{wm(0)}")
            for m in range(5):
                G[5+5*m].append(("W", f"ds_write_b128 v{VT}, {v(Ap+4*m,4)}"))
                if m < 4: G[5+5*m].append(f"s_add_u32 s6, s73, {LDS_F}\nv_add_u32 v{VT}, s6, v{wm(m+1)}")
            G[XFG].append(f"v_mov_b32 v2, 2\ns_waitcnt vmcnt(0)\nbuffer_store_dword v2, v{VXF}, {WS}, 0 offen sc1")
            def items():
                a(f"s_cmp_eq_u32 s{S_TOK}, 0\ns_cbranch_scc1 L_nb")
                a(f"v_bfe_u32 v2, v{L}, 1, 3\nv_and_b32 v3, 1, v{L}\nv_lshl_add_u32 v3, v2, 7, v3\nv_lshlrev_b32 v3, 2, v3\ns_and_b32 s6, s{S_H}, 3\ns_lshl_b32 s6, s6, 7\ns_add_u32 s6, s6, {WS_BF+YP*32*128}")
                poll(a, f"buffer_load_dword v2, v3, {WS}, s6 offen sc1", "v_cmp_ne_u32 vcc, 1, v2")
                a.label("L_nb")
                sk = a.newlabel("itskip")
                for n in range(2):
                    if n == 1: a(f"s_cmp_ge_u32 s{S_W}, 2\ns_cbranch_scc1 {sk}")
                    a(f"buffer_load_dwordx4 {v(IT[n][0],4)}, v{53+n}, {R(SRD_A)}, s70 offen\nbuffer_load_dwordx4 {v(IT[n][1],4)}, v{XNA+n}, {WS}, 0 offen sc1")
                a.label(sk)
            G[XFG+2].append(items)
            G[LK1-1].append(xlook_addr)
            G[LK1].append(f"s_bitcmp1_b32 13, s{S_W}\ns_cselect_b32 s77, 1, 2\nbuffer_load_dword v50, v3, {WS}, s{S_XFI} offen sc1")
            def try1():
                a("s_waitcnt vmcnt(0)\nv_cmp_gt_u32 vcc, s77, v50\ns_mov_b32 s91, 0\ns_cbranch_vccnz L_x1n")
                xin_load((0, 1, 2))
                a("s_mov_b32 s91, 1\ns_branch L_x1j")
                a.label("L_x1n")
                a(f"buffer_load_dword v50, v3, {WS}, s{S_XFI} offen sc1")
                a.label("L_x1j")
            G[LK2].append(try1)
            G[33].append(f"s_add_u32 s6, s73, {106496-20480}\ns_cmp_lt_u32 s{S_W}, 4\ns_cselect_b32 s73, s73, s6")
        for g in range(40):
            i, m = divmod(g, 5)
            if "o" in SNAKE and i & 1 == 0 and i: m = 4 - m
            a.mfma(A+4*m, WR+4*(5*i+m), CR+4*(i&3), "0" if i == 0 else None)
            for x in G[g]: emit(x)
    a.stamp(16)
    a("s_nop 4")
    for m in range(5): a(f"v_add_u32 v{VT}, s73, v{wm(m)}\nds_write_b128 v{VT}, {v(OA+20+4*m,4)}")
    a("s_mov_b64 s[78:79], 0\ns_cmp_lg_u32 s91, 0\ns_cbranch_scc1 L_x2a")
    a("s_waitcnt vmcnt(0)\nv_cmp_gt_u32 s[78:79], s77, v50\ns_nop 3\ns_cmp_lg_u64 s[78:79], 0\ns_cbranch_scc1 L_x2a")
    xin_load((0, 1, 2))
    a.label("L_x2a")
    a("s_waitcnt lgkmcnt(0)\ns_barrier")
    for n in range(2):
        for k in range(4):
            for hf in range(2): a(f"ds_read_b128 {v(LP+32*n+8*k+4*hf,4)}, v{(10,55)[n]} offset:{k*5120+hf*256}")
    a("s_cmp_eq_u64 s[78:79], 0\ns_cbranch_scc1 L_x2b")
    poll(a, f"buffer_load_dword v2, v3, {WS}, s{S_XFI} offen sc1", "v_cmp_gt_u32 vcc, s77, v2", sleep=1)
    xin_load((0, 1, 2))
    a.label("L_x2b")
    a.srd(SRD_B, P_OUT, 2048*640*2)
    a.stamp(17)
    for n in range(2):
        if n == 1: a(f"s_cmp_ge_u32 s{S_W}, 2\ns_cbranch_scc1 L_end")
        S = LP + 32*n
        a(f"s_waitcnt lgkmcnt({8 if n == 0 else 0})")
        for k in range(1, 4):
            for q in range(0, 8, 2): a(f"v_pk_add_f32 {v(S+q,2)}, {v(S+q,2)}, {v(S+8*k+q,2)}")
        a("s_waitcnt vmcnt(0)" if n == 0 else "s_nop 0")
        for k in range(3):
            for q in range(0, 8, 2): a(f"v_pk_add_f32 {v(S+q,2)}, {v(S+q,2)}, {v(XI+24*n+8*k+q,2)}")
        for q in range(4):
            x0, x1 = S+2*q, S+2*q+1
            a(f"v_cvt_pk_bf16_f32 v2, v{x0}, v{x1}\nv_lshlrev_b32 v{x0}, 16, v2\nv_and_b32 v{x1}, 0xffff0000, v2")
            a(f"v_lshlrev_b32 v2, 16, v{IT[n][0]+q}\nv_and_b32 v3, 0xffff0000, v{IT[n][0]+q}\nv_pk_add_f32 {v(x0,2)}, {v(x0,2)}, v[2:3]")
            a(f"v_cvt_pk_bf16_f32 v2, v{x0}, v{x1}\nv_lshlrev_b32 v{x0}, 16, v2\nv_and_b32 v{x1}, 0xffff0000, v2")
            a(f"v_lshlrev_b32 v2, 16, v{IT[n][1]+q}\nv_and_b32 v3, 0xffff0000, v{IT[n][1]+q}\nv_pk_add_f32 {v(x0,2)}, {v(x0,2)}, v[2:3]")
            a(f"v_cvt_pk_bf16_f32 v{OUTR+4*n+q}, v{x0}, v{x1}")
        a(f"buffer_store_dwordx4 {v(OUTR+4*n,4)}, v{53+n}, {R(SRD_B)}, s70 offen")

def out_items(a):
    a.srd(SRD_A, P_X, 2048*640*2)
    a(f"s_and_b32 s75, s{S_H}, 3\ns_mul_i32 s70, s75, 320\ns_add_u32 s73, s70, {WS_BSEL}")
    a(f"s_mul_i32 s72, s75, 5120")
    a(f"v_lshrrev_b32 v2, 4, v{L}\nv_and_b32 v3, 15, v{L}\nv_mul_u32_u24 v54, 1280, v3\nv_lshl_add_u32 v54, v2, 4, v54\nv_lshlrev_b32 v3, 4, v3\nv_lshl_add_u32 v9, v2, 9, v3")
    a(f"s_lshr_b32 s100, s{S_W}, 2\ns_cselect_b32 s6, s{S_OL}, s{S_OB}\ns_mul_i32 s6, s6, 20480\ns_lshl_b32 s7, s76, 6\ns_add_u32 s7, s7, s6\nv_add_u32 v53, s7, v54")
    a(f"s_lshl_b32 s7, s76, 10\ns_add_u32 s7, s7, s6\ns_add_u32 s7, s7, s72\nv_add_u32 v{XNA}, s7, v{VL16}")
    a(f"s_mul_i32 s6, s100, 10240\ns_lshl_b32 s7, s76, 11\ns_add_u32 s6, s6, s7\nv_add_u32 v8, s6, v9")
    a(f"s_mul_i32 s6, s100, {LDS_F+10240}\ns_sub_u32 s6, {LDS_F}, s6\nv_add_u32 v10, s6, v8\ns_lshl_b32 s7, s76, 2\nv_add_u32 v2, s7, v2\nv_cmp_lt_u32 vcc, 9, v2\ns_mul_i32 s6, s100, {101376-15360}\ns_add_u32 s6, s6, 15360\nv_add_u32 v3, s6, v10\nv_cndmask_b32 v10, v10, v3, vcc")
    a(f"s_and_b32 s100, s{S_W}, 1\ns_cselect_b32 s6, s{S_OL}, s{S_OB}\ns_mul_i32 s6, s6, 20480\ns_add_u32 s7, s6, 256\nv_add_u32 v54, s7, v54\ns_add_u32 s7, s6, s72\ns_add_u32 s7, s7, 4096\nv_add_u32 v{XNA+1}, s7, v{VL16}")
    a(f"s_mul_i32 s6, s100, 10240\ns_add_u32 s6, s6, 8192\nv_add_u32 v9, s6, v9\ns_mul_i32 s6, s100, {101376-10240-LDS_F-15360}\ns_add_u32 s6, s6, {LDS_F+15360}\nv_add_u32 v55, s6, v9")

def out_tokens(a):
    idx_poll(a, "b", "")
    sk = a.newlabel("notok")
    a(f"s_mov_b32 s{S_TOK}, 0")
    a(f"v_and_b32 v2, 0x7ff, v{VIDX}\nv_sub_u32 v2, 0x7ff, v2\nv_lshrrev_b32 v3, 4, v2\nv_cmp_eq_u32 vcc, s{S_OB}, v3\nv_cmp_eq_u32 s[74:75], s{S_OL}, v3\ns_nop 3\ns_or_b64 vcc, vcc, s[74:75]\ns_cbranch_scc0 {sk}")
    for tk in range(8): a(f"v_readlane_b32 s{(84,85,86,87,88,65,91,101)[tk]}, v2, {tk}")
    for n in range(2):
        a(f"s_lshl_b32 s7, s76, 6\ns_lshr_b32 s100, s{S_W}, 2" if n == 0 else f"s_movk_i32 s7, 256\ns_and_b32 s100, s{S_W}, 1")
        a(f"s_cselect_b32 s6, s{S_OL}, s{S_OB}\ns_lshl_b32 s6, s6, 4\nv_and_b32 v2, 15, v{L}\nv_add_u32 v2, s6, v2")
        a(f"s_add_u32 s7, s7, s73\nv_and_b32 v3, 48, v{L}\nv_add_u32 v3, s7, v3")
        for tk in range(8):
            a(f"v_cmp_eq_u32 vcc, s{(84,85,86,87,88,65,91,101)[tk]}, v2\ns_nop 1\nv_cndmask_b32 v{XNA+n}, v{XNA+n}, v3, vcc")
            if tk < 7: a(f"v_add_u32 v3, 1280, v3")
    a(f"s_mov_b32 s{S_TOK}, 1")
    a.label(sk)

def gen(a):
    phase_start(a)
    phase_kv(a)
    phase_q(a)
    phase_attn(a)
    phase_out(a)
    a.label("L_end")
    a.stamp(18)
    if a.prof: a("s_waitcnt vmcnt(0)")
    if a.prof and os.environ.get("STRETCH"):
        s0, s1 = os.environ["STRETCH"].split(",")
        a(f"v_readlane_b32 s6, v15, {s0}\nv_readlane_b32 s7, v15, {s1}\nv_readlane_b32 s72, v15, 18\ns_nop 3\ns_sub_u32 s6, s7, s6\ns_min_u32 s6, s6, 20000")
        a.label("L_str")
        a("s_memrealtime s[94:95]\ns_waitcnt lgkmcnt(0)\ns_sub_u32 s7, s94, s72\ns_cmp_lt_u32 s7, s6\ns_cbranch_scc1 L_str")
    if a.prof and os.environ.get("DBGWG"):
        a(f"s_mov_b64 exec, -1\ns_cmp_lg_u32 s2, {os.environ['DBGWG']}\ns_cbranch_scc1 L_nodbg\ns_cmp_lg_u32 s{S_W}, 0\ns_cbranch_scc1 L_nodbg")
        a.srd(SRD_E, P_DBG, 64)
        a(f"v_readlane_b32 s6, v15, 0\ns_nop 3\nv_subrev_u32 v2, s6, v15\nv_subrev_u32 v3, 3, v{L}\nv_lshlrev_b32 v3, 2, v3\nv_cmp_gt_u32 vcc, 4, v{L}\nv_mov_b32 v4, 0x1000\ns_nop 0\nv_cndmask_b32 v3, v3, v4, vcc")
        a(f"buffer_store_dword v2, v3, {R(SRD_E)}, 0 offen")
        a.label("L_nodbg")
    a.stamp_flush(SRD_WS, WS_PROF)
    a.label("L_exit")
    a("s_endpgm")

HEADER = open(os.path.join(os.path.dirname(os.path.abspath(__file__)), "..", NAME + ".s.ref")).read().split("; Override launch")[0]
if __name__ == "__main__":
    name = NAME + "_kernel"
    out = HEADER + "; @launch grid=(256,1,1) block=(512,1,1) lds=163840\n" + '.amdgcn_target "amdgcn-amd-amdhsa--gfx950"\n'
    a = Asm(); a.prof = bool(os.environ.get("PROF"))
    a.o.append(kernel_header(name).rstrip())
    gen(a)
    out += a.text() + '.section .rodata,"a"\n.p2align 6\n' + kernel_desc(name)
    open(sys.argv[1] if len(sys.argv) > 1 else "k.s", "w").write(out)
```
